```python
import torch

def _softmax(x, axis=-1):
    return torch.softmax(x, dim=axis)
def _gelu(x):
    return torch.nn.functional.gelu(x, approximate="tanh")
def _silu(x):
    return torch.nn.functional.silu(x)
def _sigmoid(x):
    return torch.sigmoid(x)
def _layernorm(x, axis=-1, eps=1e-5):
    m = x.mean(dim=axis, keepdim=True)
    v = x.var(dim=axis, keepdim=True, unbiased=False)
    return (x - m) / torch.sqrt(v + eps)
def _scatter_add(tgt, idx, src, axis=0):
    return tgt.clone().index_add_(axis, idx, src)
def _segment_sum(src, seg, n):
    out = torch.zeros((n,) + src.shape[1:], dtype=src.dtype)
    return out.index_add_(0, seg, src)
def _pad(x, pw):
    flat = tuple(v for pair in reversed(pw) for v in pair)
    return torch.nn.functional.pad(x, flat)

kernel_name = 'standalone__channel_attn_cbam__vision'

def setup_inputs():

    _w = (lambda a: (lambda t: t.to(torch.bfloat16) if t.is_floating_point() else t)(torch.as_tensor(a)))
    H = W = 512
    C = 192
    r = max(C // 4, 1)
    return {
        "x": _w((lambda *s: torch.randn(*s, dtype=torch.bfloat16) * 0.2)(1, H, W, C) + (lambda *s: torch.randn(*s, dtype=torch.bfloat16) * 0.2)(1, 1, 1, C) * 2.0),
        "w1": _w((lambda *s: torch.randn(*s, dtype=torch.bfloat16) * 0.2)(C, r)),
        "w2": _w((lambda *s: torch.randn(*s, dtype=torch.bfloat16) * 0.2)(r, C)),
    }

def reference(x, w1, w2):
    B, H, W, C = x.shape
    xf = x.reshape(B, H * W, C)
    gap = torch.mean(xf, 1)
    gmp = torch.amax(xf, 1)
    h_a = gap @ w1
    h_a = h_a * (lambda x, dt: x.to(dt))(h_a > 0, h_a.dtype)
    h_m = gmp @ w1
    h_m = h_m * (lambda x, dt: x.to(dt))(h_m > 0, h_m.dtype)
    scale = _sigmoid(h_a @ w2 + h_m @ w2)
    return x * scale[:, None, None, :]
```

```python
import argparse

KNAME = "standalone__channel_attn_cbam__vision_kernel"

HEADER = """; Kernarg layout for this problem (48 bytes, ptrs only, base s[0:1]):
;   offset   0: d_in[0] x  shape=(1, 512, 512, 192) dtype=bfloat16 strides=(100663296, 196608, 384, 2) contiguous=True
;   offset   8: d_in[1] w1  shape=(192, 48) dtype=bfloat16 strides=(96, 2) contiguous=True
;   offset  16: d_in[2] w2  shape=(48, 192) dtype=bfloat16 strides=(384, 2) contiguous=True
"""

X_BYTES = 100663296
NWG = 256

L_RED = 0
L_H = 6144
L_S = 6400
L_W1 = 8192
L_W2 = L_W1 + 18432
L_SPILL = L_W2 + 18432
L_TOTAL = L_SPILL + 18432

WS_P = 0
WS_F = 96 * 4096
WS_STAMP = 1 << 20
WS_USED = WS_F + 768

S_X, S_OUT, S_WS, S_DBG, S_W = 4, 8, 12, 16, 20
S_WAVE, S_TY, S_SUB, S_OFF, S_MASK, S_CNT, S_T0, S_T1, S_BASE = 28, 29, 30, 31, 32, 33, 34, 35, 48
S_STAMP = 52

D0 = 40
SPIN = 400000


class G:
    def __init__(self, o):
        self.o = o
        self.lines = []
        self.nstamp = 0

    def e(self, s=""):
        self.lines.append(("    " + s) if s and not s.endswith(":") else s)

    def stamp(self, idx):
        if self.o.stamps:
            self.e(f"s_memrealtime s[{S_STAMP + 2 * idx}:{S_STAMP + 2 * idx + 1}]")

    def srd(self, d, lo, nbytes):
        e = self.e
        e(f"s_mov_b32 s{d}, s{lo}")
        e(f"s_mov_b32 s{d + 1}, s{lo + 1}")
        e(f"s_mov_b32 s{d + 2}, {nbytes}")
        e(f"s_mov_b32 s{d + 3}, 0x20000")

    def build(self):
        o, e = self.o, self.e
        if o.map == "contig":
            wgstride, jstride = 393216, 12288
        else:
            wgstride, jstride = 12288, 12288 * 256
        ldf = (" " + o.ldflags) if o.ldflags else ""
        stf = (" " + o.stflags) if o.stflags else ""

        self.stamp(0)
        e("s_cmp_ge_u32 s2, %d" % NWG)
        e("s_cbranch_scc1 L_end")
        e("s_load_dwordx4 s[36:39], s[0:1], 0        ; x, w1")
        e("s_load_dwordx4 s[40:43], s[0:1], 16       ; w2, out")
        e("s_load_dwordx4 s[44:47], s[0:1], 32")
        e("v_readfirstlane_b32 s%d, v0" % S_WAVE)
        e("v_and_b32 v1, 63, v0                      ; lane")
        e("v_lshrrev_b32 v2, 3, v1")
        e("v_mul_u32_u24 v2, 384, v2")
        e("v_and_b32 v3, 7, v1")
        e("v_lshl_add_u32 v0, v3, 4, v2")
        e(f"s_lshr_b32 s{S_WAVE}, s{S_WAVE}, 6")
        e(f"s_mul_i32 s{S_SUB}, s{S_WAVE}, 43")
        e(f"s_lshr_b32 s{S_SUB}, s{S_SUB}, 7")
        e(f"s_mul_i32 s{S_TY}, s{S_SUB}, 3")
        e(f"s_sub_u32 s{S_TY}, s{S_WAVE}, s{S_TY}        ; ty = wave % 3")
        e(f"s_mul_i32 s{S_BASE}, s2, {wgstride}")
        e(f"s_mul_i32 s{S_T0}, s{S_SUB}, 3072")
        e(f"s_add_u32 s{S_BASE}, s{S_BASE}, s{S_T0}")
        e(f"s_lshl_b32 s{S_T0}, s{S_TY}, 7")
        e(f"s_add_u32 s{S_BASE}, s{S_BASE}, s{S_T0}")
        e(f"s_mov_b32 s{S_MASK}, 0xffff0000")
        e(f"s_mov_b32 s{S_OFF}, s{S_BASE}")
        e("s_waitcnt lgkmcnt(0)")
        self.srd(S_X, 36, X_BYTES)
        self.srd(S_OUT, 42, X_BYTES)
        self.srd(S_WS, 46, (2 << 20) if o.stamps else WS_USED)
        self.srd(S_DBG, 44, 256)
        e(f"s_cmp_lt_u32 s{S_WAVE}, 6")
        e(f"s_cselect_b32 s{S_W}, s38, s40")
        e(f"s_cselect_b32 s{S_W + 1}, s39, s41")
        e(f"s_mov_b32 s{S_W + 2}, 18432")
        e(f"s_mov_b32 s{S_W + 3}, 0x20000")

        e(f"s_cmp_lg_u32 s{S_WAVE}, 4")
        e("s_cbranch_scc1 L_noclear")
        e("v_mov_b32 v4, -1")
        e("v_mov_b32 v5, -1")
        e("v_mov_b32 v6, -1")
        e("v_mov_b32 v7, -1")
        e("v_lshlrev_b32 v2, 12, v1                  ; piece*4096")
        e(f"s_lshl_b32 s{S_T0}, s2, 4")
        e(f"s_add_u32 s{S_T1}, s{S_T0}, {64 * 4096}")
        e(f"buffer_store_dwordx4 v[4:7], v2, s[{S_WS}:{S_WS + 3}], s{S_T0} offen sc1")
        e("s_mov_b32 exec_hi, 0")
        e(f"buffer_store_dwordx4 v[4:7], v2, s[{S_WS}:{S_WS + 3}], s{S_T1} offen sc1")
        e("s_mov_b64 exec, 1")
        e("s_cmp_ge_u32 s2, 96")
        e("s_cbranch_scc1 L_noclearF")
        e(f"s_lshl_b32 s{S_T0}, s2, 3")
        e(f"s_add_u32 s{S_T0}, s{S_T0}, {WS_F}")
        e(f"buffer_store_dwordx2 v[4:5], off, s[{S_WS}:{S_WS + 3}], s{S_T0} sc1")
        e("L_noclearF:")
        e("v_mov_b32 v3, 1")
        e("s_waitcnt vmcnt(0)")
        e(f"buffer_atomic_add v3, off, s[{S_DBG}:{S_DBG + 3}], 0")
        e("s_mov_b64 exec, -1")
        e("L_noclear:")

        WPOS = 8
        for j in range(32):
            if j == WPOS:
                e("v_lshlrev_b32 v2, 4, v1")
                e(f"s_mul_i32 s{S_T0}, s{S_WAVE}, 3072")
                e(f"s_add_u32 s{S_T1}, s{S_T0}, {L_W1}")
                e(f"s_mov_b32 m0, s{S_T1}")
                e(f"s_cmp_lt_u32 s{S_WAVE}, 6")
                e(f"s_cselect_b32 s{S_T1}, 0, 18432")
                e(f"s_sub_u32 s{S_T0}, s{S_T0}, s{S_T1}")
                for k in range(3):
                    e(f"buffer_load_dwordx4 v2, s[{S_W}:{S_W + 3}], s{S_T0} offen offset:{k * 1024} lds")
            r = D0 + 4 * j
            e(f"buffer_load_dwordx4 v[{r}:{r + 3}], v0, s[{S_X}:{S_X + 3}], s{S_OFF} offen{ldf}")
            if j < 31:
                e(f"s_add_u32 s{S_OFF}, s{S_OFF}, {jstride}")
        e("v_mov_b32 v3, 0")
        e(f"s_cmp_lg_u32 s{S_WAVE}, 4")
        e("s_cbranch_scc1 L_nocnt")
        e(f"buffer_load_dword v3, off, s[{S_DBG}:{S_DBG + 3}], 0 sc1")
        e("s_branch L_cntdone")
        e("L_nocnt:")
        e(f"buffer_load_dword v3, off, s[{S_W}:{S_W + 3}], 0")
        e("L_cntdone:")
        self.stamp(1)

        SUM, MAX, T = 4, 12, 20
        total = 32 + 3 + 1
        for jj in range(16):
            a, b = D0 + 8 * jj, D0 + 8 * jj + 4
            issued_upto = 2 * jj + 2 + (3 if 2 * jj + 1 >= WPOS else 0)
            e(f"s_waitcnt vmcnt({total - issued_upto})")
            if jj == 0:
                self.stamp(2)
            if jj == 15:
                self.stamp(3)
            for i in range(4):
                t = T + 4 * i
                e(f"v_lshlrev_b32 v{t}, 16, v{a + i}")
                e(f"v_and_b32 v{t + 1}, s{S_MASK}, v{a + i}")
                e(f"v_lshlrev_b32 v{t + 2}, 16, v{b + i}")
                e(f"v_and_b32 v{t + 3}, s{S_MASK}, v{b + i}")
            for i in range(4):
                t = T + 4 * i
                s, m = SUM + 2 * i, MAX + 2 * i
                if jj == 0:
                    e(f"v_max_f32 v{m}, v{t}, v{t + 2}")
                    e(f"v_max_f32 v{m + 1}, v{t + 1}, v{t + 3}")
                    e(f"v_pk_add_f32 v[{s}:{s + 1}], v[{t}:{t + 1}], v[{t + 2}:{t + 3}]")
                else:
                    e(f"v_max3_f32 v{m}, v{m}, v{t}, v{t + 2}")
                    e(f"v_max3_f32 v{m + 1}, v{m + 1}, v{t + 1}, v{t + 3}")
                    e(f"v_pk_add_f32 v[{t}:{t + 1}], v[{t}:{t + 1}], v[{t + 2}:{t + 3}]")
            if jj:
                for i in range(4):
                    t = T + 4 * i
                    s = SUM + 2 * i
                    e(f"v_pk_add_f32 v[{s}:{s + 1}], v[{s}:{s + 1}], v[{t}:{t + 1}]")

        e("v_and_b32 v20, 7, v1")
        e("v_lshlrev_b32 v20, 5, v20                 ; (l&7)*32")
        e("v_lshrrev_b32 v21, 4, v1")
        e("v_lshl_add_u32 v20, v21, 3, v20           ; + (l>>4)*8")
        e("v_bfe_u32 v21, v1, 3, 1")
        e("v_mul_u32_u24 v21, 768, v21")
        e(f"s_mul_i32 s{S_T0}, s{S_SUB}, 1536")
        e(f"s_lshl_b32 s{S_T1}, s{S_TY}, 8")
        e(f"s_add_u32 s{S_T0}, s{S_T0}, s{S_T1}")
        e(f"v_add3_u32 v20, v20, v21, s{S_T0}")
        for base in (MAX, SUM):
            for i in range(4):
                e(f"v_permlane32_swap_b32 v{base + i}, v{base + 4 + i}")
        for i in range(4):
            e(f"v_max_f32 v{MAX + i}, v{MAX + i}, v{MAX + 4 + i}")
        for i in range(4):
            e(f"v_add_f32 v{SUM + i}, v{SUM + i}, v{SUM + 4 + i}")
        for i in range(2):
            e(f"v_permlane16_swap_b32 v{MAX + i}, v{MAX + 2 + i}")
        for i in range(2):
            e(f"v_permlane16_swap_b32 v{SUM + i}, v{SUM + 2 + i}")
        for i in range(2):
            e(f"v_max_f32 v{MAX + i}, v{MAX + i}, v{MAX + 2 + i}")
        for i in range(2):
            e(f"v_add_f32 v{SUM + i}, v{SUM + i}, v{SUM + 2 + i}")
        e("s_nop 1")
        for i in range(2):
            e(f"v_add_f32_dpp v{SUM + i}, v{SUM + i}, v{SUM + i} row_ror:8 row_mask:0xf bank_mask:0x3")
        for i in range(2):
            e(f"v_max_f32_dpp v{SUM + i}, v{MAX + i}, v{MAX + i} row_ror:8 row_mask:0xf bank_mask:0xc")
        e(f"ds_write_b64 v20, v[{SUM}:{SUM + 1}] offset:{L_RED}")

        e("s_waitcnt vmcnt(0)")
        e(f"s_cmp_lg_u32 s{S_WAVE}, 4")
        e("s_cbranch_scc1 L_cntok")
        e(f"s_mov_b32 s{S_CNT}, {SPIN}")
        e("L_cntloop:")
        e(f"v_readfirstlane_b32 s{S_T0}, v3")
        e(f"s_sub_u32 s{S_CNT}, s{S_CNT}, 1")
        e("s_cbranch_scc1 L_cntok")
        e(f"s_cmp_ge_u32 s{S_T0}, {NWG}")
        e("s_cbranch_scc1 L_cntok")
        e(f"buffer_load_dword v3, off, s[{S_DBG}:{S_DBG + 3}], 0 sc1")
        e("s_waitcnt vmcnt(0)")
        e("s_branch L_cntloop")
        e("L_cntok:")
        e("s_waitcnt lgkmcnt(0)")
        e("s_barrier")
        self.stamp(4)

        e(f"s_cmp_lt_u32 s{S_WAVE}, 3")
        e("s_cbranch_scc1 L_mlp1")
        e(f"s_cmp_eq_u32 s{S_WAVE}, 3")
        e("s_cbranch_scc1 L_reducer")
        e(f"s_cmp_ge_u32 s{S_WAVE}, 6")
        e("s_cbranch_scc1 L_join1")

        e(f"s_sub_u32 s{S_T0}, s{S_WAVE}, 4             ; kind")
        e(f"s_mul_i32 s{S_T1}, s{S_T0}, 768")
        e(f"v_lshl_add_u32 v20, v1, 4, s{S_T1}")
        e("s_mov_b32 exec_hi, 0xffff")
        for k in range(4):
            e(f"ds_read_b128 v[{4 + 4 * k}:{7 + 4 * k}], v20 offset:{L_RED + 1536 * k}")
        e("v_lshlrev_b32 v2, 12, v1")
        e(f"s_mul_i32 s{S_T1}, s{S_T0}, {48 * 4096}")
        e(f"s_lshl_b32 s{S_CNT}, s2, 4")
        e(f"s_add_u32 s{S_T1}, s{S_T1}, s{S_CNT}")
        e(f"s_cmp_eq_u32 s{S_T0}, 0")
        e("s_cbranch_scc0 L_pubmax")
        e("s_waitcnt lgkmcnt(2)")
        e("v_pk_add_f32 v[4:5], v[4:5], v[8:9]")
        e("v_pk_add_f32 v[6:7], v[6:7], v[10:11]")
        e("s_waitcnt lgkmcnt(0)")
        e("v_pk_add_f32 v[12:13], v[12:13], v[16:17]")
        e("v_pk_add_f32 v[14:15], v[14:15], v[18:19]")
        e("v_pk_add_f32 v[4:5], v[4:5], v[12:13]")
        e("v_pk_add_f32 v[6:7], v[6:7], v[14:15]")
        e("s_branch L_pub")
        e("L_pubmax:")
        e("s_waitcnt lgkmcnt(1)")
        for i in range(4):
            e(f"v_max3_f32 v{4 + i}, v{4 + i}, v{8 + i}, v{12 + i}")
        e("s_waitcnt lgkmcnt(0)")
        for i in range(4):
            e(f"v_max_f32 v{4 + i}, v{4 + i}, v{16 + i}")
        e("L_pub:")
        for i in range(4):
            e(f"v_min_u32 v{4 + i}, -2, v{4 + i}")
        e(f"buffer_store_dwordx4 v[4:7], v2, s[{S_WS}:{S_WS + 3}], s{S_T1} offen sc1")
        e("s_mov_b64 exec, -1")
        e("s_branch L_join1")

        e("L_reducer:")
        e("s_cmp_ge_u32 s2, 96")
        e("s_cbranch_scc1 L_join1")
        e("v_lshlrev_b32 v2, 4, v1")
        e(f"s_lshl_b32 s{S_T1}, s2, 12")
        e(f"s_mov_b32 s{S_CNT}, {SPIN}")
        e("L_rpoll:")
        for k in range(4):
            e(f"buffer_load_dwordx4 v[{4 + 4 * k}:{7 + 4 * k}], v2, s[{S_WS}:{S_WS + 3}], s{S_T1} offen offset:{1024 * k} sc1")
        e(f"s_sub_u32 s{S_CNT}, s{S_CNT}, 1")
        e("s_cbranch_scc1 L_rgot")
        e("s_waitcnt vmcnt(0)")
        e("v_max3_u32 v20, v4, v5, v6")
        e("v_max3_u32 v21, v7, v8, v9")
        e("v_max3_u32 v22, v10, v11, v12")
        e("v_max3_u32 v23, v13, v14, v15")
        e("v_max3_u32 v24, v16, v17, v18")
        e("v_max3_u32 v20, v20, v21, v19")
        e("v_max3_u32 v22, v22, v23, v24")
        e("v_max_u32 v20, v20, v22")
        e("v_cmp_eq_u32 vcc, -1, v20")
        e("s_cbranch_vccnz L_rpoll")
        e("L_rgot:")
        e("s_waitcnt vmcnt(0)")
        self.stamp(9)
        e(f"s_lshl_b32 s{S_T1}, s2, 3")
        e(f"s_add_u32 s{S_T1}, s{S_T1}, {WS_F}")
        e("v_lshrrev_b32 v2, 3, v1                   ; lane 32 -> +4")
        e("s_cmp_ge_u32 s2, 48")
        e("s_cbranch_scc1 L_rmax")
        for kind in (0, 1):
            op = "v_add_f32" if kind == 0 else "v_max_f32"
            if kind == 1:
                e("L_rmax:")
                for i in range(4):
                    e(f"v_max3_f32 v{4 + i}, v{4 + i}, v{8 + i}, v{12 + i}")
                for i in range(4):
                    e(f"v_max_f32 v{4 + i}, v{4 + i}, v{16 + i}")
            else:
                e("v_pk_add_f32 v[4:5], v[4:5], v[8:9]")
                e("v_pk_add_f32 v[6:7], v[6:7], v[10:11]")
                e("v_pk_add_f32 v[12:13], v[12:13], v[16:17]")
                e("v_pk_add_f32 v[14:15], v[14:15], v[18:19]")
                e("v_pk_add_f32 v[4:5], v[4:5], v[12:13]")
                e("v_pk_add_f32 v[6:7], v[6:7], v[14:15]")
            e("s_nop 1")
            e("v_permlane32_swap_b32 v4, v6")
            e("v_permlane32_swap_b32 v5, v7")
            e(f"{op} v4, v4, v6")
            e(f"{op} v5, v5, v7")
            e("s_nop 1")
            e("v_permlane16_swap_b32 v4, v5")
            e(f"{op} v4, v4, v5")
            for r in (8, 4, 2, 1):
                e("s_nop 1")
                e(f"{op}_dpp v4, v4, v4 row_ror:{r} row_mask:0xf bank_mask:0xf")
            if kind == 0:
                e("v_mul_f32 v4, 0x36800000, v4              ; 1/262144")
                e("s_branch L_rpack")
        e("L_rpack:")
        e("v_mov_b32 v5, v4")
        e("s_nop 1")
        e("v_permlane16_swap_b32 v4, v5")
        e("v_cvt_pk_bf16_f32 v4, v4, v5")
        e("s_mov_b32 exec_lo, 1")
        e("s_mov_b32 exec_hi, 1")
        e("v_min_u32 v4, -2, v4")
        e(f"buffer_store_dword v4, v2, s[{S_WS}:{S_WS + 3}], s{S_T1} offen sc1")
        e("s_mov_b64 exec, -1")
        e("s_branch L_join1")

        e("L_mlp1:")
        A1 = 144
        e(f"s_mul_i32 s{S_T0}, s{S_WAVE}, 6144")
        e(f"v_lshl_add_u32 v36, v1, 4, s{S_T0}")
        for k in range(6):
            e(f"ds_write_b128 v36, v[{A1 + 4 * k}:{A1 + 4 * k + 3}] offset:{L_SPILL + 1024 * k}")
        e("v_lshrrev_b32 v2, 4, v1")
        e("v_lshlrev_b32 v2, 3, v2")
        e("v_bfe_u32 v3, v1, 2, 2")
        e("v_add_u32 v2, v2, v3")
        e("v_mul_u32_u24 v2, 96, v2")
        e("v_and_b32 v3, 3, v1")
        e("v_lshl_add_u32 v2, v3, 3, v2")
        e(f"s_lshl_b32 s{S_T0}, s{S_WAVE}, 5")
        e(f"v_add_u32 v2, s{S_T0}, v2")
        e("s_waitcnt lgkmcnt(0)")
        for s in range(6):
            for h in range(2):
                r = A1 + 4 * s + 2 * h
                e(f"ds_read_b64_tr_b16 v[{r}:{r + 1}], v2 offset:{L_W1 + s * 3072 + h * 384}")
        e("v_and_b32 v2, 1, v1")
        e("v_mul_u32_u24 v2, 384, v2")
        e("v_lshrrev_b32 v3, 4, v1")
        e("v_lshl_add_u32 v2, v3, 4, v2")
        for i in range(24):
            e(f"v_mov_b32 v{4 + i}, 0")
        e(f"s_mov_b32 s{S_T1}, {WS_F}")
        e(f"s_mov_b32 s{S_CNT}, {SPIN}")
        e("s_waitcnt lgkmcnt(0)")
        e("L_fpoll:")
        e("s_mov_b32 exec_lo, 0x00030003")
        e("s_mov_b32 exec_hi, 0x00030003")
        for s in range(6):
            e(f"buffer_load_dwordx4 v[{4 + 4 * s}:{7 + 4 * s}], v2, s[{S_WS}:{S_WS + 3}], s{S_T1} offen offset:{64 * s} sc1")
        e("s_mov_b64 exec, -1")
        e(f"s_sub_u32 s{S_CNT}, s{S_CNT}, 1")
        e("s_waitcnt vmcnt(0)")
        for s in range(6):
            c = "0" if s == 0 else "v[28:31]"
            e(f"v_mfma_f32_16x16x32_bf16 v[28:31], v[{A1 + 4 * s}:{A1 + 4 * s + 3}], v[{4 + 4 * s}:{7 + 4 * s}], {c}")
            b = 4 + 4 * s
            if s == 0:
                e(f"v_max3_u32 v32, v{b}, v{b + 1}, v{b + 2}")
                e(f"v_max_u32 v32, v32, v{b + 3}")
            else:
                e(f"v_max3_u32 v32, v32, v{b}, v{b + 1}")
                e(f"v_max3_u32 v32, v32, v{b + 2}, v{b + 3}")
        e("s_cbranch_scc1 L_fgot")
        e("v_cmp_eq_u32 vcc, -1, v32")
        e("s_cbranch_vccnz L_fpoll")
        e("L_fgot:")
        self.stamp(5)
        e("v_and_b32 v2, 1, v1")
        e("v_mul_u32_u24 v2, 96, v2")
        e("v_lshrrev_b32 v3, 4, v1")
        e("v_lshl_add_u32 v2, v3, 3, v2")
        e(f"v_add_u32 v2, s{S_T0}, v2")
        e("s_nop 1")
        for i in range(4):
            e(f"v_maximum3_f32 v{28 + i}, v{28 + i}, 0, 0")
        e("v_cvt_pk_bf16_f32 v28, v28, v29")
        e("v_cvt_pk_bf16_f32 v29, v30, v31")
        e("s_mov_b32 exec_lo, 0x00030003")
        e("s_mov_b32 exec_hi, 0x00030003")
        e(f"ds_write_b64 v2, v[28:29] offset:{L_H}")
        e("s_mov_b64 exec, -1")
        for k in range(6):
            e(f"ds_read_b128 v[{A1 + 4 * k}:{A1 + 4 * k + 3}], v36 offset:{L_SPILL + 1024 * k}")

        e("L_join1:")
        e("v_lshrrev_b32 v2, 4, v1")
        e("v_lshlrev_b32 v2, 3, v2")
        e("v_bfe_u32 v3, v1, 2, 2")
        e("v_add_u32 v2, v2, v3                      ; row")
        e("v_and_b32 v22, 15, v2")
        e("v_mul_u32_u24 v2, 384, v2")
        e("v_mul_u32_u24 v22, 384, v22")
        e("v_and_b32 v3, 3, v1")
        e("v_lshlrev_b32 v3, 3, v3")
        e(f"s_lshl_b32 s{S_T0}, s{S_WAVE}, 5")
        e(f"v_add3_u32 v2, v2, v3, s{S_T0}")
        e(f"v_add3_u32 v22, v22, v3, s{S_T0}")
        e(f"ds_read_b64_tr_b16 v[4:5], v2 offset:{L_W2}")
        e(f"ds_read_b64_tr_b16 v[6:7], v2 offset:{L_W2 + 4 * 384}")
        e(f"ds_read_b64_tr_b16 v[8:9], v22 offset:{L_W2 + 32 * 384}")
        e(f"ds_read_b64_tr_b16 v[10:11], v22 offset:{L_W2 + 36 * 384}")
        e("v_and_b32 v2, 1, v1")
        e("v_mul_u32_u24 v2, 96, v2")
        e("v_lshrrev_b32 v3, 4, v1")
        e("v_lshl_add_u32 v20, v3, 4, v2")
        e("v_and_b32 v3, 1, v3")
        e("v_lshl_add_u32 v21, v3, 4, v2")
        e(f"s_lshl_b32 s{S_T0}, s{S_WAVE}, 6")
        e(f"v_lshl_add_u32 v22, v1, 2, s{S_T0}")
        e("v_and_b32 v3, 7, v1")
        e(f"s_lshl_b32 s{S_T0}, s{S_TY}, 8")
        e(f"v_lshl_add_u32 v23, v3, 5, s{S_T0}")
        e("s_waitcnt lgkmcnt(0)")
        e("s_mov_b32 exec_lo, 0")
        for i in range(4):
            e(f"v_mov_b32 v{8 + i}, 0")
        e("s_mov_b64 exec, -1")
        e("s_barrier")
        self.stamp(6)
        e(f"ds_read_b128 v[12:15], v20 offset:{L_H}")
        e(f"ds_read_b128 v[16:19], v21 offset:{L_H + 64}")
        e("s_waitcnt lgkmcnt(1)")
        e("v_mfma_f32_16x16x32_bf16 v[24:27], v[12:15], v[4:7], 0")
        e("s_waitcnt lgkmcnt(0)")
        e("v_mfma_f32_16x16x32_bf16 v[24:27], v[16:19], v[8:11], v[24:27]")
        e(f"s_mov_b32 s{S_OFF}, s{S_BASE}")
        e("s_mov_b64 exec, 0xffff")
        e("s_nop 5")
        e("v_cvt_pk_bf16_f32 v24, v24, v25")
        e("v_lshlrev_b32 v25, 16, v24")
        e(f"v_and_b32 v24, s{S_MASK}, v24")
        e("v_add_f32 v24, v24, v25")
        e("v_cvt_pk_bf16_f32 v24, v24, v24")
        e("v_lshlrev_b32 v24, 16, v24")
        e("v_mul_f32 v24, 0xbfb8aa3b, v24            ; -log2(e)")
        e("v_exp_f32 v24, v24")
        e("s_nop 0")
        e("v_add_f32 v24, 1.0, v24")
        e("v_rcp_f32 v24, v24")
        e("s_nop 0")
        e("v_cvt_pk_bf16_f32 v24, v24, v24")
        e("v_lshlrev_b32 v24, 16, v24")
        e(f"ds_write_b32 v22, v24 offset:{L_S}")
        e("s_mov_b64 exec, -1")
        e("s_waitcnt lgkmcnt(0)")
        e("s_barrier")
        e(f"ds_read_b128 v[4:7], v23 offset:{L_S}")
        e(f"ds_read_b128 v[8:11], v23 offset:{L_S + 16}")
        e("s_waitcnt lgkmcnt(0)")
        self.stamp(7)

        for j in range(32):
            a = D0 + 4 * j
            t0 = 12 + 8 * (j & 1)
            for i in range(4):
                t = t0 + 2 * i
                e(f"v_lshlrev_b32 v{t}, 16, v{a + i}")
                e(f"v_and_b32 v{t + 1}, s{S_MASK}, v{a + i}")
            for i in range(4):
                t = t0 + 2 * i
                e(f"v_pk_mul_f32 v[{t}:{t + 1}], v[{t}:{t + 1}], v[{4 + 2 * i}:{5 + 2 * i}]")
            for i in range(4):
                t = t0 + 2 * i
                e(f"v_cvt_pk_bf16_f32 v{a + i}, v{t}, v{t + 1}")
            e(f"buffer_store_dwordx4 v[{a}:{a + 3}], v0, s[{S_OUT}:{S_OUT + 3}], s{S_OFF} offen{stf}")
            if j < 31:
                e(f"s_add_u32 s{S_OFF}, s{S_OFF}, {jstride}")
        if o.stamps:
            self.stamp(8)
            e("s_waitcnt vmcnt(0)")
            self.stamp(10)
            e("s_getreg_b32 s74, hwreg(HW_REG_XCC_ID)")
            e("s_getreg_b32 s75, hwreg(HW_REG_HW_ID)")
            e("s_waitcnt lgkmcnt(0)")
            e("v_mov_b32 v2, 0")
            for i in range(11):
                e(f"v_writelane_b32 v2, s{S_STAMP + 2 * i}, {i}")
            e("v_writelane_b32 v2, s74, 14")
            e("v_writelane_b32 v2, s75, 15")
            e(f"s_mul_i32 s{S_T0}, s2, 12")
            e(f"s_add_u32 s{S_T0}, s{S_T0}, s{S_WAVE}")
            e(f"s_lshl_b32 s{S_T0}, s{S_T0}, 6")
            e(f"s_add_u32 s{S_T0}, s{S_T0}, {WS_STAMP}")
            e("v_lshlrev_b32 v3, 2, v1")
            e("s_mov_b64 exec, 0xffff")
            e(f"buffer_store_dword v2, v3, s[{S_WS}:{S_WS + 3}], s{S_T0} offen")
        e("L_end:")
        e("s_endpgm")

    def text(self):
        out = HEADER
        out += f"; @launch grid=({NWG},1,1) block=(768,1,1) lds={L_TOTAL}\n"
        out += '.amdgcn_target "amdgcn-amd-amdhsa--gfx950"\n.text\n'
        out += f".globl {KNAME}\n.p2align 8\n.type {KNAME},@function\n{KNAME}:\n"
        out += "\n".join(self.lines) + "\n"
        out += f""".section .rodata,"a"
.p2align 6
.amdhsa_kernel {KNAME}
  .amdhsa_next_free_vgpr 168
  .amdhsa_next_free_sgpr 80
  .amdhsa_accum_offset 168
  .amdhsa_group_segment_fixed_size 0
  .amdhsa_kernarg_size 48
  .amdhsa_user_sgpr_count 2
  .amdhsa_user_sgpr_kernarg_segment_ptr 1
  .amdhsa_system_sgpr_workgroup_id_x 1
  .amdhsa_float_denorm_mode_32 3
.end_amdhsa_kernel
"""
        return out


def main():
    p = argparse.ArgumentParser()
    p.add_argument("-o", default="standalone__channel_attn_cbam__vision.s")
    p.add_argument("--map", default="contig")
    p.add_argument("--ldflags", default="")
    p.add_argument("--stflags", default="")
    p.add_argument("--stamps", action="store_true")
    o = p.parse_args()
    g = G(o)
    g.build()
    open(o.o, "w").write(g.text())


if __name__ == "__main__":
    main()
```

```python
import argparse

KNAME = "standalone__channel_attn_cbam__vision_kernel"

HEADER = """; Kernarg layout for this problem (48 bytes, ptrs only, base s[0:1]):
;   offset   0: d_in[0] x  shape=(1, 512, 512, 192) dtype=bfloat16 strides=(100663296, 196608, 384, 2) contiguous=True
;   offset   8: d_in[1] w1  shape=(192, 48) dtype=bfloat16 strides=(96, 2) contiguous=True
;   offset  16: d_in[2] w2  shape=(48, 192) dtype=bfloat16 strides=(384, 2) contiguous=True
"""

X_BYTES = 100663296
NWG = 256

L_RED = 0
L_H = 6144
L_S = 6400
L_W1 = 8192
L_W2 = L_W1 + 18432
L_SPILL = L_W2 + 18432
L_TOTAL = L_SPILL + 18432

WS_P = 0
WS_F = 96 * 4096
WS_STAMP = 1 << 20
WS_USED = WS_F + 768

S_X, S_OUT, S_WS, S_DBG, S_W = 4, 8, 12, 16, 20
S_WAVE, S_TY, S_SUB, S_OFF, S_MASK, S_CNT, S_T0, S_T1, S_BASE = 28, 29, 30, 31, 32, 33, 34, 35, 48
S_STAMP = 52

D0 = 40
SPIN = 400000


class G:
    def __init__(self, o):
        self.o = o
        self.lines = []
        self.nstamp = 0

    def e(self, s=""):
        self.lines.append(("    " + s) if s and not s.endswith(":") else s)

    def stamp(self, idx):
        if self.o.stamps:
            self.e(f"s_memrealtime s[{S_STAMP + 2 * idx}:{S_STAMP + 2 * idx + 1}]")

    def srd(self, d, lo, nbytes):
        e = self.e
        e(f"s_mov_b32 s{d}, s{lo}")
        e(f"s_mov_b32 s{d + 1}, s{lo + 1}")
        e(f"s_mov_b32 s{d + 2}, {nbytes}")
        e(f"s_mov_b32 s{d + 3}, 0x20000")

    def build(self):
        o, e = self.o, self.e
        if o.map == "contig":
            wgstride, jstride = 393216, 12288
        else:
            wgstride, jstride = 12288, 12288 * 256
        ldf = (" " + o.ldflags) if o.ldflags else ""
        stf = (" " + o.stflags) if o.stflags else ""

        self.stamp(0)
        e("s_cmp_ge_u32 s2, %d" % NWG)
        e("s_cbranch_scc1 L_end")
        e("s_load_dwordx4 s[36:39], s[0:1], 0        ; x, w1")
        e("s_load_dwordx4 s[40:43], s[0:1], 16       ; w2, out")
        e("s_load_dwordx4 s[44:47], s[0:1], 32")
        e("v_readfirstlane_b32 s%d, v0" % S_WAVE)
        e("v_and_b32 v1, 63, v0                      ; lane")
        e("v_lshrrev_b32 v2, 3, v1")
        e("v_mul_u32_u24 v2, 384, v2")
        e("v_and_b32 v3, 7, v1")
        e("v_lshl_add_u32 v0, v3, 4, v2")
        e(f"s_lshr_b32 s{S_WAVE}, s{S_WAVE}, 6")
        e(f"s_mul_i32 s{S_SUB}, s{S_WAVE}, 43")
        e(f"s_lshr_b32 s{S_SUB}, s{S_SUB}, 7")
        e(f"s_mul_i32 s{S_TY}, s{S_SUB}, 3")
        e(f"s_sub_u32 s{S_TY}, s{S_WAVE}, s{S_TY}        ; ty = wave % 3")
        e(f"s_mul_i32 s{S_BASE}, s2, {wgstride}")
        e(f"s_mul_i32 s{S_T0}, s{S_SUB}, 3072")
        e(f"s_add_u32 s{S_BASE}, s{S_BASE}, s{S_T0}")
        e(f"s_lshl_b32 s{S_T0}, s{S_TY}, 7")
        e(f"s_add_u32 s{S_BASE}, s{S_BASE}, s{S_T0}")
        e(f"s_mov_b32 s{S_MASK}, 0xffff0000")
        e(f"s_mov_b32 s{S_OFF}, s{S_BASE}")
        e("s_waitcnt lgkmcnt(0)")
        self.srd(S_X, 36, X_BYTES)
        self.srd(S_OUT, 42, X_BYTES)
        self.srd(S_WS, 46, (2 << 20) if o.stamps else WS_USED)
        self.srd(S_DBG, 44, 256)
        e(f"s_cmp_lt_u32 s{S_WAVE}, 6")
        e(f"s_cselect_b32 s{S_W}, s38, s40")
        e(f"s_cselect_b32 s{S_W + 1}, s39, s41")
        e(f"s_mov_b32 s{S_W + 2}, 18432")
        e(f"s_mov_b32 s{S_W + 3}, 0x20000")

        e(f"s_cmp_lg_u32 s{S_WAVE}, 4")
        e("s_cbranch_scc1 L_noclear")
        e("v_mov_b32 v4, -1")
        e("v_mov_b32 v5, -1")
        e("v_mov_b32 v6, -1")
        e("v_mov_b32 v7, -1")
        e("v_lshlrev_b32 v2, 12, v1                  ; piece*4096")
        e(f"s_lshl_b32 s{S_T0}, s2, 4")
        e(f"s_add_u32 s{S_T1}, s{S_T0}, {64 * 4096}")
        e(f"buffer_store_dwordx4 v[4:7], v2, s[{S_WS}:{S_WS + 3}], s{S_T0} offen sc1")
        e("s_mov_b32 exec_hi, 0")
        e(f"buffer_store_dwordx4 v[4:7], v2, s[{S_WS}:{S_WS + 3}], s{S_T1} offen sc1")
        e("s_mov_b64 exec, 1")
        e("s_cmp_ge_u32 s2, 96")
        e("s_cbranch_scc1 L_noclearF")
        e(f"s_lshl_b32 s{S_T0}, s2, 3")
        e(f"s_add_u32 s{S_T0}, s{S_T0}, {WS_F}")
        e(f"buffer_store_dwordx2 v[4:5], off, s[{S_WS}:{S_WS + 3}], s{S_T0} sc1")
        e("L_noclearF:")
        e("v_mov_b32 v3, 1")
        e("s_waitcnt vmcnt(0)")
        e(f"buffer_atomic_add v3, off, s[{S_DBG}:{S_DBG + 3}], 0")
        e("s_mov_b64 exec, -1")
        e("L_noclear:")

        WPOS = 8
        for j in range(32):
            if j == WPOS:
                e("v_lshlrev_b32 v2, 4, v1")
                e(f"s_mul_i32 s{S_T0}, s{S_WAVE}, 3072")
                e(f"s_add_u32 s{S_T1}, s{S_T0}, {L_W1}")
                e(f"s_mov_b32 m0, s{S_T1}")
                e(f"s_cmp_lt_u32 s{S_WAVE}, 6")
                e(f"s_cselect_b32 s{S_T1}, 0, 18432")
                e(f"s_sub_u32 s{S_T0}, s{S_T0}, s{S_T1}")
                for k in range(3):
                    e(f"buffer_load_dwordx4 v2, s[{S_W}:{S_W + 3}], s{S_T0} offen offset:{k * 1024} lds")
            r = D0 + 4 * j
            e(f"buffer_load_dwordx4 v[{r}:{r + 3}], v0, s[{S_X}:{S_X + 3}], s{S_OFF} offen{ldf}")
            if j < 31:
                e(f"s_add_u32 s{S_OFF}, s{S_OFF}, {jstride}")
        e("v_mov_b32 v3, 0")
        e(f"s_cmp_lg_u32 s{S_WAVE}, 4")
        e("s_cbranch_scc1 L_nocnt")
        e(f"buffer_load_dword v3, off, s[{S_DBG}:{S_DBG + 3}], 0 sc1")
        e("s_branch L_cntdone")
        e("L_nocnt:")
        e(f"buffer_load_dword v3, off, s[{S_W}:{S_W + 3}], 0")
        e("L_cntdone:")
        self.stamp(1)

        SUM, MAX, T = 4, 12, 20
        total = 32 + 3 + 1
        for jj in range(16):
            a, b = D0 + 8 * jj, D0 + 8 * jj + 4
            issued_upto = 2 * jj + 2 + (3 if 2 * jj + 1 >= WPOS else 0)
            e(f"s_waitcnt vmcnt({total - issued_upto})")
            if jj == 0:
                self.stamp(2)
            if jj == 15:
                self.stamp(3)
            for i in range(4):
                t = T + 4 * i
                e(f"v_lshlrev_b32 v{t}, 16, v{a + i}")
                e(f"v_and_b32 v{t + 1}, s{S_MASK}, v{a + i}")
                e(f"v_lshlrev_b32 v{t + 2}, 16, v{b + i}")
                e(f"v_and_b32 v{t + 3}, s{S_MASK}, v{b + i}")
            for i in range(4):
                t = T + 4 * i
                s, m = SUM + 2 * i, MAX + 2 * i
                if jj == 0:
                    e(f"v_max_f32 v{m}, v{t}, v{t + 2}")
                    e(f"v_max_f32 v{m + 1}, v{t + 1}, v{t + 3}")
                    e(f"v_pk_add_f32 v[{s}:{s + 1}], v[{t}:{t + 1}], v[{t + 2}:{t + 3}]")
                else:
                    e(f"v_max3_f32 v{m}, v{m}, v{t}, v{t + 2}")
                    e(f"v_max3_f32 v{m + 1}, v{m + 1}, v{t + 1}, v{t + 3}")
                    e(f"v_pk_add_f32 v[{t}:{t + 1}], v[{t}:{t + 1}], v[{t + 2}:{t + 3}]")
            if jj:
                for i in range(4):
                    t = T + 4 * i
                    s = SUM + 2 * i
                    e(f"v_pk_add_f32 v[{s}:{s + 1}], v[{s}:{s + 1}], v[{t}:{t + 1}]")

        e("v_and_b32 v20, 7, v1")
        e("v_lshlrev_b32 v20, 5, v20                 ; (l&7)*32")
        e("v_lshrrev_b32 v21, 4, v1")
        e("v_lshl_add_u32 v20, v21, 3, v20           ; + (l>>4)*8")
        e("v_bfe_u32 v21, v1, 3, 1")
        e("v_mul_u32_u24 v21, 768, v21")
        e(f"s_mul_i32 s{S_T0}, s{S_SUB}, 1536")
        e(f"s_lshl_b32 s{S_T1}, s{S_TY}, 8")
        e(f"s_add_u32 s{S_T0}, s{S_T0}, s{S_T1}")
        e(f"v_add3_u32 v20, v20, v21, s{S_T0}")
        for base in (MAX, SUM):
            for i in range(4):
                e(f"v_permlane32_swap_b32 v{base + i}, v{base + 4 + i}")
        for i in range(4):
            e(f"v_max_f32 v{MAX + i}, v{MAX + i}, v{MAX + 4 + i}")
        for i in range(4):
            e(f"v_add_f32 v{SUM + i}, v{SUM + i}, v{SUM + 4 + i}")
        for i in range(2):
            e(f"v_permlane16_swap_b32 v{MAX + i}, v{MAX + 2 + i}")
        for i in range(2):
            e(f"v_permlane16_swap_b32 v{SUM + i}, v{SUM + 2 + i}")
        for i in range(2):
            e(f"v_max_f32 v{MAX + i}, v{MAX + i}, v{MAX + 2 + i}")
        for i in range(2):
            e(f"v_add_f32 v{SUM + i}, v{SUM + i}, v{SUM + 2 + i}")
        e("s_nop 1")
        for i in range(2):
            e(f"v_add_f32_dpp v{SUM + i}, v{SUM + i}, v{SUM + i} row_ror:8 row_mask:0xf bank_mask:0x3")
        for i in range(2):
            e(f"v_max_f32_dpp v{SUM + i}, v{MAX + i}, v{MAX + i} row_ror:8 row_mask:0xf bank_mask:0xc")
        e(f"ds_write_b64 v20, v[{SUM}:{SUM + 1}] offset:{L_RED}")

        e("s_waitcnt vmcnt(0)")
        e(f"s_cmp_lg_u32 s{S_WAVE}, 4")
        e("s_cbranch_scc1 L_cntok")
        e(f"s_mov_b32 s{S_CNT}, {SPIN}")
        e("L_cntloop:")
        e(f"v_readfirstlane_b32 s{S_T0}, v3")
        e(f"s_sub_u32 s{S_CNT}, s{S_CNT}, 1")
        e("s_cbranch_scc1 L_cntok")
        e(f"s_cmp_ge_u32 s{S_T0}, {NWG}")
        e("s_cbranch_scc1 L_cntok")
        e(f"buffer_load_dword v3, off, s[{S_DBG}:{S_DBG + 3}], 0 sc1")
        e("s_waitcnt vmcnt(0)")
        e("s_branch L_cntloop")
        e("L_cntok:")
        e("s_waitcnt lgkmcnt(0)")
        e("s_barrier")
        self.stamp(4)

        e(f"s_cmp_lt_u32 s{S_WAVE}, 3")
        e("s_cbranch_scc1 L_mlp1")
        e(f"s_cmp_eq_u32 s{S_WAVE}, 3")
        e("s_cbranch_scc1 L_reducer")
        e(f"s_cmp_ge_u32 s{S_WAVE}, 6")
        e("s_cbranch_scc1 L_join1")

        e(f"s_sub_u32 s{S_T0}, s{S_WAVE}, 4             ; kind")
        e(f"s_mul_i32 s{S_T1}, s{S_T0}, 768")
        e(f"v_lshl_add_u32 v20, v1, 4, s{S_T1}")
        e("s_mov_b32 exec_hi, 0xffff")
        for k in range(4):
            e(f"ds_read_b128 v[{4 + 4 * k}:{7 + 4 * k}], v20 offset:{L_RED + 1536 * k}")
        e("v_lshlrev_b32 v2, 12, v1")
        e(f"s_mul_i32 s{S_T1}, s{S_T0}, {48 * 4096}")
        e(f"s_lshl_b32 s{S_CNT}, s2, 4")
        e(f"s_add_u32 s{S_T1}, s{S_T1}, s{S_CNT}")
        e(f"s_cmp_eq_u32 s{S_T0}, 0")
        e("s_cbranch_scc0 L_pubmax")
        e("s_waitcnt lgkmcnt(2)")
        e("v_pk_add_f32 v[4:5], v[4:5], v[8:9]")
        e("v_pk_add_f32 v[6:7], v[6:7], v[10:11]")
        e("s_waitcnt lgkmcnt(0)")
        e("v_pk_add_f32 v[12:13], v[12:13], v[16:17]")
        e("v_pk_add_f32 v[14:15], v[14:15], v[18:19]")
        e("v_pk_add_f32 v[4:5], v[4:5], v[12:13]")
        e("v_pk_add_f32 v[6:7], v[6:7], v[14:15]")
        e("s_branch L_pub")
        e("L_pubmax:")
        e("s_waitcnt lgkmcnt(1)")
        for i in range(4):
            e(f"v_max3_f32 v{4 + i}, v{4 + i}, v{8 + i}, v{12 + i}")
        e("s_waitcnt lgkmcnt(0)")
        for i in range(4):
            e(f"v_max_f32 v{4 + i}, v{4 + i}, v{16 + i}")
        e("L_pub:")
        for i in range(4):
            e(f"v_min_u32 v{4 + i}, -2, v{4 + i}")
        e(f"buffer_store_dwordx4 v[4:7], v2, s[{S_WS}:{S_WS + 3}], s{S_T1} offen sc1")
        e("s_mov_b64 exec, -1")
        e("s_branch L_join1")

        e("L_reducer:")
        e("s_cmp_ge_u32 s2, 96")
        e("s_cbranch_scc1 L_join1")
        e("v_lshlrev_b32 v2, 4, v1")
        e(f"s_lshl_b32 s{S_T1}, s2, 12")
        e(f"s_mov_b32 s{S_CNT}, {SPIN}")
        e("L_rpoll:")
        for k in range(4):
            e(f"buffer_load_dwordx4 v[{4 + 4 * k}:{7 + 4 * k}], v2, s[{S_WS}:{S_WS + 3}], s{S_T1} offen offset:{1024 * k} sc1")
        e(f"s_sub_u32 s{S_CNT}, s{S_CNT}, 1")
        e("s_cbranch_scc1 L_rgot")
        e("s_waitcnt vmcnt(0)")
        e("v_max3_u32 v20, v4, v5, v6")
        e("v_max3_u32 v21, v7, v8, v9")
        e("v_max3_u32 v22, v10, v11, v12")
        e("v_max3_u32 v23, v13, v14, v15")
        e("v_max3_u32 v24, v16, v17, v18")
        e("v_max3_u32 v20, v20, v21, v19")
        e("v_max3_u32 v22, v22, v23, v24")
        e("v_max_u32 v20, v20, v22")
        e("v_cmp_eq_u32 vcc, -1, v20")
        e("s_cbranch_vccnz L_rpoll")
        e("L_rgot:")
        e("s_waitcnt vmcnt(0)")
        self.stamp(9)
        e(f"s_lshl_b32 s{S_T1}, s2, 3")
        e(f"s_add_u32 s{S_T1}, s{S_T1}, {WS_F}")
        e("v_lshrrev_b32 v2, 3, v1                   ; lane 32 -> +4")
        e("s_cmp_ge_u32 s2, 48")
        e("s_cbranch_scc1 L_rmax")
        for kind in (0, 1):
            op = "v_add_f32" if kind == 0 else "v_max_f32"
            if kind == 1:
                e("L_rmax:")
                for i in range(4):
                    e(f"v_max3_f32 v{4 + i}, v{4 + i}, v{8 + i}, v{12 + i}")
                for i in range(4):
                    e(f"v_max_f32 v{4 + i}, v{4 + i}, v{16 + i}")
            else:
                e("v_pk_add_f32 v[4:5], v[4:5], v[8:9]")
                e("v_pk_add_f32 v[6:7], v[6:7], v[10:11]")
                e("v_pk_add_f32 v[12:13], v[12:13], v[16:17]")
                e("v_pk_add_f32 v[14:15], v[14:15], v[18:19]")
                e("v_pk_add_f32 v[4:5], v[4:5], v[12:13]")
                e("v_pk_add_f32 v[6:7], v[6:7], v[14:15]")
            e("s_nop 1")
            e("v_permlane32_swap_b32 v4, v6")
            e("v_permlane32_swap_b32 v5, v7")
            e(f"{op} v4, v4, v6")
            e(f"{op} v5, v5, v7")
            e("s_nop 1")
            e("v_permlane16_swap_b32 v4, v5")
            e(f"{op} v4, v4, v5")
            for r in (8, 4, 2, 1):
                e("s_nop 1")
                e(f"{op}_dpp v4, v4, v4 row_ror:{r} row_mask:0xf bank_mask:0xf")
            if kind == 0:
                e("v_mul_f32 v4, 0x36800000, v4              ; 1/262144")
                e("s_branch L_rpack")
        e("L_rpack:")
        e("v_mov_b32 v5, v4")
        e("s_nop 1")
        e("v_permlane16_swap_b32 v4, v5")
        e("v_cvt_pk_bf16_f32 v4, v4, v5")
        e("s_mov_b32 exec_lo, 1")
        e("s_mov_b32 exec_hi, 1")
        e("v_min_u32 v4, -2, v4")
        e(f"buffer_store_dword v4, v2, s[{S_WS}:{S_WS + 3}], s{S_T1} offen sc1")
        e("s_mov_b64 exec, -1")
        e("s_branch L_join1")

        e("L_mlp1:")
        A1 = 144
        e(f"s_mul_i32 s{S_T0}, s{S_WAVE}, 6144")
        e(f"v_lshl_add_u32 v36, v1, 4, s{S_T0}")
        for k in range(6):
            e(f"ds_write_b128 v36, v[{A1 + 4 * k}:{A1 + 4 * k + 3}] offset:{L_SPILL + 1024 * k}")
        e("v_lshrrev_b32 v2, 4, v1")
        e("v_lshlrev_b32 v2, 3, v2")
        e("v_bfe_u32 v3, v1, 2, 2")
        e("v_add_u32 v2, v2, v3")
        e("v_mul_u32_u24 v2, 96, v2")
        e("v_and_b32 v3, 3, v1")
        e("v_lshl_add_u32 v2, v3, 3, v2")
        e(f"s_lshl_b32 s{S_T0}, s{S_WAVE}, 5")
        e(f"v_add_u32 v2, s{S_T0}, v2")
        e("s_waitcnt lgkmcnt(0)")
        for s in range(6):
            for h in range(2):
                r = A1 + 4 * s + 2 * h
                e(f"ds_read_b64_tr_b16 v[{r}:{r + 1}], v2 offset:{L_W1 + s * 3072 + h * 384}")
        e("v_and_b32 v2, 1, v1")
        e("v_mul_u32_u24 v2, 384, v2")
        e("v_lshrrev_b32 v3, 4, v1")
        e("v_lshl_add_u32 v2, v3, 4, v2")
        for i in range(24):
            e(f"v_mov_b32 v{4 + i}, 0")
        e(f"s_mov_b32 s{S_T1}, {WS_F}")
        e(f"s_mov_b32 s{S_CNT}, {SPIN}")
        e("s_waitcnt lgkmcnt(0)")
        e("L_fpoll:")
        e("s_mov_b32 exec_lo, 0x00030003")
        e("s_mov_b32 exec_hi, 0x00030003")
        for s in range(6):
            e(f"buffer_load_dwordx4 v[{4 + 4 * s}:{7 + 4 * s}], v2, s[{S_WS}:{S_WS + 3}], s{S_T1} offen offset:{64 * s} sc1")
        e("s_mov_b64 exec, -1")
        e(f"s_sub_u32 s{S_CNT}, s{S_CNT}, 1")
        e("s_waitcnt vmcnt(0)")
        for s in range(6):
            c = "0" if s == 0 else "v[28:31]"
            e(f"v_mfma_f32_16x16x32_bf16 v[28:31], v[{A1 + 4 * s}:{A1 + 4 * s + 3}], v[{4 + 4 * s}:{7 + 4 * s}], {c}")
            b = 4 + 4 * s
            if s == 0:
                e(f"v_max3_u32 v32, v{b}, v{b + 1}, v{b + 2}")
                e(f"v_max_u32 v32, v32, v{b + 3}")
            else:
                e(f"v_max3_u32 v32, v32, v{b}, v{b + 1}")
                e(f"v_max3_u32 v32, v32, v{b + 2}, v{b + 3}")
        e("s_cbranch_scc1 L_fgot")
        e("v_cmp_eq_u32 vcc, -1, v32")
        e("s_cbranch_vccnz L_fpoll")
        e("L_fgot:")
        self.stamp(5)
        e("v_and_b32 v2, 1, v1")
        e("v_mul_u32_u24 v2, 96, v2")
        e("v_lshrrev_b32 v3, 4, v1")
        e("v_lshl_add_u32 v2, v3, 3, v2")
        e(f"v_add_u32 v2, s{S_T0}, v2")
        e("s_nop 1")
        for i in range(4):
            e(f"v_maximum3_f32 v{28 + i}, v{28 + i}, 0, 0")
        e("v_cvt_pk_bf16_f32 v28, v28, v29")
        e("v_cvt_pk_bf16_f32 v29, v30, v31")
        e("s_mov_b32 exec_lo, 0x00030003")
        e("s_mov_b32 exec_hi, 0x00030003")
        e(f"ds_write_b64 v2, v[28:29] offset:{L_H}")
        e("s_mov_b64 exec, -1")
        for k in range(6):
            e(f"ds_read_b128 v[{A1 + 4 * k}:{A1 + 4 * k + 3}], v36 offset:{L_SPILL + 1024 * k}")

        e("L_join1:")
        e("v_lshrrev_b32 v2, 4, v1")
        e("v_lshlrev_b32 v2, 3, v2")
        e("v_bfe_u32 v3, v1, 2, 2")
        e("v_add_u32 v2, v2, v3                      ; row")
        e("v_and_b32 v22, 15, v2")
        e("v_mul_u32_u24 v2, 384, v2")
        e("v_mul_u32_u24 v22, 384, v22")
        e("v_and_b32 v3, 3, v1")
        e("v_lshlrev_b32 v3, 3, v3")
        e(f"s_lshl_b32 s{S_T0}, s{S_WAVE}, 5")
        e(f"v_add3_u32 v2, v2, v3, s{S_T0}")
        e(f"v_add3_u32 v22, v22, v3, s{S_T0}")
        e(f"ds_read_b64_tr_b16 v[4:5], v2 offset:{L_W2}")
        e(f"ds_read_b64_tr_b16 v[6:7], v2 offset:{L_W2 + 4 * 384}")
        e(f"ds_read_b64_tr_b16 v[8:9], v22 offset:{L_W2 + 32 * 384}")
        e(f"ds_read_b64_tr_b16 v[10:11], v22 offset:{L_W2 + 36 * 384}")
        e("v_and_b32 v2, 1, v1")
        e("v_mul_u32_u24 v2, 96, v2")
        e("v_lshrrev_b32 v3, 4, v1")
        e("v_lshl_add_u32 v20, v3, 4, v2")
        e("v_and_b32 v3, 1, v3")
        e("v_lshl_add_u32 v21, v3, 4, v2")
        e(f"s_lshl_b32 s{S_T0}, s{S_WAVE}, 6")
        e(f"v_lshl_add_u32 v22, v1, 2, s{S_T0}")
        e("v_and_b32 v3, 7, v1")
        e(f"s_lshl_b32 s{S_T0}, s{S_TY}, 8")
        e(f"v_lshl_add_u32 v23, v3, 5, s{S_T0}")
        e("s_waitcnt lgkmcnt(0)")
        e("s_mov_b32 exec_lo, 0")
        for i in range(4):
            e(f"v_mov_b32 v{8 + i}, 0")
        e("s_mov_b64 exec, -1")
        e("s_barrier")
        self.stamp(6)
        e(f"ds_read_b128 v[12:15], v20 offset:{L_H}")
        e(f"ds_read_b128 v[16:19], v21 offset:{L_H + 64}")
        e("s_waitcnt lgkmcnt(1)")
        e("v_mfma_f32_16x16x32_bf16 v[24:27], v[12:15], v[4:7], 0")
        e("s_waitcnt lgkmcnt(0)")
        e("v_mfma_f32_16x16x32_bf16 v[24:27], v[16:19], v[8:11], v[24:27]")
        e(f"s_mov_b32 s{S_OFF}, s{S_BASE}")
        e("s_mov_b64 exec, 0xffff")
        e("s_nop 5")
        e("v_cvt_pk_bf16_f32 v24, v24, v25")
        e("v_lshlrev_b32 v25, 16, v24")
        e(f"v_and_b32 v24, s{S_MASK}, v24")
        e("v_add_f32 v24, v24, v25")
        e("v_cvt_pk_bf16_f32 v24, v24, v24")
        e("v_lshlrev_b32 v24, 16, v24")
        e("v_mul_f32 v24, 0xbfb8aa3b, v24            ; -log2(e)")
        e("v_exp_f32 v24, v24")
        e("s_nop 0")
        e("v_add_f32 v24, 1.0, v24")
        e("v_rcp_f32 v24, v24")
        e("s_nop 0")
        e("v_cvt_pk_bf16_f32 v24, v24, v24")
        e("v_lshlrev_b32 v24, 16, v24")
        e(f"ds_write_b32 v22, v24 offset:{L_S}")
        e("s_mov_b64 exec, -1")
        e("s_waitcnt lgkmcnt(0)")
        e("s_barrier")
        e(f"ds_read_b128 v[4:7], v23 offset:{L_S}")
        e(f"ds_read_b128 v[8:11], v23 offset:{L_S + 16}")
        e("s_waitcnt lgkmcnt(0)")
        self.stamp(7)

        for j in range(32):
            a = D0 + 4 * j
            t0 = 12 + 8 * (j & 1)
            for i in range(4):
                t = t0 + 2 * i
                e(f"v_lshlrev_b32 v{t}, 16, v{a + i}")
                e(f"v_and_b32 v{t + 1}, s{S_MASK}, v{a + i}")
            for i in range(4):
                t = t0 + 2 * i
                e(f"v_pk_mul_f32 v[{t}:{t + 1}], v[{t}:{t + 1}], v[{4 + 2 * i}:{5 + 2 * i}]")
            for i in range(4):
                t = t0 + 2 * i
                e(f"v_cvt_pk_bf16_f32 v{a + i}, v{t}, v{t + 1}")
            e(f"buffer_store_dwordx4 v[{a}:{a + 3}], v0, s[{S_OUT}:{S_OUT + 3}], s{S_OFF} offen{stf}")
            if j < 31:
                e(f"s_add_u32 s{S_OFF}, s{S_OFF}, {jstride}")
        if o.stamps:
            self.stamp(8)
            e("s_waitcnt vmcnt(0)")
            self.stamp(10)
            e("s_getreg_b32 s74, hwreg(HW_REG_XCC_ID)")
            e("s_getreg_b32 s75, hwreg(HW_REG_HW_ID)")
            e("s_waitcnt lgkmcnt(0)")
            e("v_mov_b32 v2, 0")
            for i in range(11):
                e(f"v_writelane_b32 v2, s{S_STAMP + 2 * i}, {i}")
            e("v_writelane_b32 v2, s74, 14")
            e("v_writelane_b32 v2, s75, 15")
            e(f"s_mul_i32 s{S_T0}, s2, 12")
            e(f"s_add_u32 s{S_T0}, s{S_T0}, s{S_WAVE}")
            e(f"s_lshl_b32 s{S_T0}, s{S_T0}, 6")
            e(f"s_add_u32 s{S_T0}, s{S_T0}, {WS_STAMP}")
            e("v_lshlrev_b32 v3, 2, v1")
            e("s_mov_b64 exec, 0xffff")
            e(f"buffer_store_dword v2, v3, s[{S_WS}:{S_WS + 3}], s{S_T0} offen")
        if o.probe:
            idx, K = [int(v) for v in o.probe.split(",")]
            e("s_cmp_lg_u32 s2, 0")
            e("s_cbranch_scc1 L_end")
            e(f"s_cmp_lg_u32 s{S_WAVE}, 0")
            e("s_cbranch_scc1 L_end")
            if idx < 0:
                e(f"s_mov_b32 s76, {K}")
            else:
                e(f"s_sub_u32 s76, s{S_STAMP + 2 * idx}, s{S_STAMP}")
                e(f"s_mul_i32 s76, s76, {K}")
            e("s_min_u32 s76, s76, 200000")
            e("L_probe:")
            e("s_memrealtime s[78:79]")
            e("s_waitcnt lgkmcnt(0)")
            e(f"s_sub_u32 s78, s78, s{S_STAMP}")
            e("s_cmp_lt_u32 s78, s76")
            e("s_cbranch_scc1 L_probe")
        e("L_end:")
        e("s_endpgm")

    def text(self):
        out = HEADER
        out += f"; @launch grid=({NWG},1,1) block=(768,1,1) lds={L_TOTAL}\n"
        out += '.amdgcn_target "amdgcn-amd-amdhsa--gfx950"\n.text\n'
        out += f".globl {KNAME}\n.p2align 8\n.type {KNAME},@function\n{KNAME}:\n"
        out += "\n".join(self.lines) + "\n"
        out += f""".section .rodata,"a"
.p2align 6
.amdhsa_kernel {KNAME}
  .amdhsa_next_free_vgpr 168
  .amdhsa_next_free_sgpr 80
  .amdhsa_accum_offset 168
  .amdhsa_group_segment_fixed_size 0
  .amdhsa_kernarg_size 48
  .amdhsa_user_sgpr_count 2
  .amdhsa_user_sgpr_kernarg_segment_ptr 1
  .amdhsa_system_sgpr_workgroup_id_x 1
  .amdhsa_float_denorm_mode_32 3
.end_amdhsa_kernel
"""
        return out


def main():
    p = argparse.ArgumentParser()
    p.add_argument("-o", default="standalone__channel_attn_cbam__vision.s")
    p.add_argument("--map", default="contig")
    p.add_argument("--ldflags", default="")
    p.add_argument("--stflags", default="")
    p.add_argument("--stamps", action="store_true")
    p.add_argument("--probe", default="")
    o = p.parse_args()
    g = G(o)
    g.build()
    open(o.o, "w").write(g.text())


if __name__ == "__main__":
    main()
```

```python
import argparse

KNAME = "standalone__channel_attn_cbam__vision_kernel"

HEADER = """; Kernarg layout for this problem (48 bytes, ptrs only, base s[0:1]):
;   offset   0: d_in[0] x  shape=(1, 512, 512, 192) dtype=bfloat16 strides=(100663296, 196608, 384, 2) contiguous=True
;   offset   8: d_in[1] w1  shape=(192, 48) dtype=bfloat16 strides=(96, 2) contiguous=True
;   offset  16: d_in[2] w2  shape=(48, 192) dtype=bfloat16 strides=(384, 2) contiguous=True
"""

X_BYTES = 100663296
NWG = 256

L_RED = 0
L_H = 6144
L_S = 6400
L_W1 = 8192
L_W2 = L_W1 + 18432
L_SPILL = L_W2 + 18432
L_TOTAL = L_SPILL + 18432

WS_P = 0
WS_F = 96 * 4096
WS_STAMP = 1 << 20
WS_USED = WS_F + 768

S_X, S_OUT, S_WS, S_DBG, S_W = 4, 8, 12, 16, 20
S_WAVE, S_TY, S_SUB, S_OFF, S_MASK, S_CNT, S_T0, S_T1, S_BASE = 28, 29, 30, 31, 32, 33, 34, 35, 48
S_STAMP = 52

D0 = 40
SPIN = 400000


class G:
    def __init__(self, o):
        self.o = o
        self.lines = []
        self.nstamp = 0

    def e(self, s=""):
        self.lines.append(("    " + s) if s and not s.endswith(":") else s)

    def stamp(self, idx):
        if self.o.stamps:
            self.e(f"s_memrealtime s[{S_STAMP + 2 * idx}:{S_STAMP + 2 * idx + 1}]")

    def srd(self, d, lo, nbytes):
        e = self.e
        e(f"s_mov_b32 s{d}, s{lo}")
        e(f"s_mov_b32 s{d + 1}, s{lo + 1}")
        e(f"s_mov_b32 s{d + 2}, {nbytes}")
        e(f"s_mov_b32 s{d + 3}, 0x20000")

    def build(self):
        o, e = self.o, self.e
        numa = o.map == "numa"
        if o.map == "contig" or numa:
            wgstride, jstride = 393216, 12288
        else:
            wgstride, jstride = 12288, 12288 * 256
        ldf = (" " + o.ldflags) if o.ldflags else ""
        stf = (" " + o.stflags) if o.stflags else ""

        def va(j):
            return "v39" if numa and (j & 1) else "v0"

        def adv(j):
            if j == 31:
                return
            if not numa:
                e(f"s_add_u32 s{S_OFF}, s{S_OFF}, {jstride}")
            elif j & 3 == 1:
                e(f"s_add_u32 s{S_OFF}, s{S_OFF}, 49152")
            elif j & 3 == 3:
                e(f"s_add_u32 s{S_OFF}, s{S_OFF}, {12 * 1048576 - 49152}")

        self.stamp(0)
        e("s_cmp_ge_u32 s2, %d" % NWG)
        e("s_cbranch_scc1 L_end")
        e("s_load_dwordx4 s[36:39], s[0:1], 0        ; x, w1")
        e("s_load_dwordx4 s[40:43], s[0:1], 16       ; w2, out")
        e("s_load_dwordx4 s[44:47], s[0:1], 32")
        e("v_readfirstlane_b32 s%d, v0" % S_WAVE)
        e("v_and_b32 v1, 63, v0                      ; lane")
        e("v_lshrrev_b32 v2, 3, v1")
        e("v_mul_u32_u24 v2, 384, v2")
        e("v_and_b32 v3, 7, v1")
        e("v_lshl_add_u32 v0, v3, 4, v2")
        e(f"s_lshr_b32 s{S_WAVE}, s{S_WAVE}, 6")
        e(f"s_mul_i32 s{S_SUB}, s{S_WAVE}, 43")
        e(f"s_lshr_b32 s{S_SUB}, s{S_SUB}, 7")
        e(f"s_mul_i32 s{S_TY}, s{S_SUB}, 3")
        e(f"s_sub_u32 s{S_TY}, s{S_WAVE}, s{S_TY}        ; ty = wave % 3")
        e(f"s_mul_i32 s{S_BASE}, s2, {wgstride}")
        e(f"s_mul_i32 s{S_T0}, s{S_SUB}, 3072")
        e(f"s_add_u32 s{S_BASE}, s{S_BASE}, s{S_T0}")
        e(f"s_lshl_b32 s{S_T0}, s{S_TY}, 7")
        e(f"s_add_u32 s{S_BASE}, s{S_BASE}, s{S_T0}")
        e(f"s_mov_b32 s{S_MASK}, 0xffff0000")
        if numa:
            e(f"s_mul_i32 s{S_T0}, s{S_SUB}, 3072")
            e(f"s_lshl_b32 s{S_T1}, s{S_TY}, 7")
            e(f"s_add_u32 s{S_T0}, s{S_T0}, s{S_T1}")
            e(f"v_add_u32 v0, s{S_T0}, v0")
            e("v_add_u32 v39, 12288, v0")
            e(f"s_lshr_b32 s{S_T0}, s2, 3")
            e(f"s_lshl_b32 s{S_T0}, s{S_T0}, 2")
            e(f"s_and_b32 s{S_T1}, s2, 3")
            e(f"s_add_u32 s{S_T0}, s{S_T0}, s{S_T1}")
            e(f"s_mul_i32 s{S_BASE}, s{S_T0}, 98304")
            e(f"s_add_u32 s{S_T0}, s{S_BASE}, 49152")
            e(f"s_lshr_b32 s{S_T0}, s{S_T0}, 21")
            e(f"s_lshr_b32 s{S_T1}, s2, 2")
            e(f"s_xor_b32 s{S_T0}, s{S_T0}, s{S_T1}")
            e(f"s_xor_b32 s{S_T0}, s{S_T0}, {o.flip}")
            e(f"s_and_b32 s{S_T0}, s{S_T0}, 1             ; P")
            e(f"s_mul_i32 s{S_T0}, s{S_T0}, 3")
            for r in (0, 39):
                e(f"v_lshrrev_b32 v2, 13, v{r}")
                e(f"v_lshl_add_u32 v2, v2, 2, s{S_T0}       ; 4k'+3P in 0..11")
                e("v_subrev_u32 v3, 6, v2")
                e("v_min_u32 v2, v2, v3                   ; mod 6")
                e(f"v_and_b32 v{r}, 8191, v{r}")
                e(f"v_lshl_add_u32 v{r}, v2, 13, v{r}")
        e(f"s_mov_b32 s{S_OFF}, s{S_BASE}")
        e("s_waitcnt lgkmcnt(0)")
        self.srd(S_X, 36, X_BYTES)
        self.srd(S_OUT, 42, X_BYTES)
        self.srd(S_WS, 46, (2 << 20) if o.stamps else WS_USED)
        self.srd(S_DBG, 44, 256)
        e(f"s_cmp_lt_u32 s{S_WAVE}, 6")
        e(f"s_cselect_b32 s{S_W}, s38, s40")
        e(f"s_cselect_b32 s{S_W + 1}, s39, s41")
        e(f"s_mov_b32 s{S_W + 2}, 18432")
        e(f"s_mov_b32 s{S_W + 3}, 0x20000")

        e(f"s_cmp_lg_u32 s{S_WAVE}, 4")
        e("s_cbranch_scc1 L_noclear")
        e("v_mov_b32 v4, -1")
        e("v_mov_b32 v5, -1")
        e("v_mov_b32 v6, -1")
        e("v_mov_b32 v7, -1")
        e("v_lshlrev_b32 v2, 12, v1                  ; piece*4096")
        e(f"s_lshl_b32 s{S_T0}, s2, 4")
        e(f"s_add_u32 s{S_T1}, s{S_T0}, {64 * 4096}")
        e(f"buffer_store_dwordx4 v[4:7], v2, s[{S_WS}:{S_WS + 3}], s{S_T0} offen sc1")
        e("s_mov_b32 exec_hi, 0")
        e(f"buffer_store_dwordx4 v[4:7], v2, s[{S_WS}:{S_WS + 3}], s{S_T1} offen sc1")
        e("s_mov_b64 exec, 1")
        e("s_cmp_ge_u32 s2, 96")
        e("s_cbranch_scc1 L_noclearF")
        e(f"s_lshl_b32 s{S_T0}, s2, 3")
        e(f"s_add_u32 s{S_T0}, s{S_T0}, {WS_F}")
        e(f"buffer_store_dwordx2 v[4:5], off, s[{S_WS}:{S_WS + 3}], s{S_T0} sc1")
        e("L_noclearF:")
        e("v_mov_b32 v3, 1")
        e("s_waitcnt vmcnt(0)")
        e(f"buffer_atomic_add v3, off, s[{S_DBG}:{S_DBG + 3}], 0")
        e("s_mov_b64 exec, -1")
        e("L_noclear:")

        WPOS = 8
        for j in range(32):
            if j == WPOS:
                e("v_lshlrev_b32 v2, 4, v1")
                e(f"s_mul_i32 s{S_T0}, s{S_WAVE}, 3072")
                e(f"s_add_u32 s{S_T1}, s{S_T0}, {L_W1}")
                e(f"s_mov_b32 m0, s{S_T1}")
                e(f"s_cmp_lt_u32 s{S_WAVE}, 6")
                e(f"s_cselect_b32 s{S_T1}, 0, 18432")
                e(f"s_sub_u32 s{S_T0}, s{S_T0}, s{S_T1}")
                for k in range(3):
                    e(f"buffer_load_dwordx4 v2, s[{S_W}:{S_W + 3}], s{S_T0} offen offset:{k * 1024} lds")
            r = D0 + 4 * j
            e(f"buffer_load_dwordx4 v[{r}:{r + 3}], {va(j)}, s[{S_X}:{S_X + 3}], s{S_OFF} offen{ldf}")
            adv(j)
        e("v_mov_b32 v3, 0")
        e(f"s_cmp_lg_u32 s{S_WAVE}, 4")
        e("s_cbranch_scc1 L_nocnt")
        e(f"buffer_load_dword v3, off, s[{S_DBG}:{S_DBG + 3}], 0 sc1")
        e("s_branch L_cntdone")
        e("L_nocnt:")
        e(f"buffer_load_dword v3, off, s[{S_W}:{S_W + 3}], 0")
        e("L_cntdone:")
        self.stamp(1)

        SUM, MAX, T = 4, 12, 20
        total = 32 + 3 + 1
        for jj in range(16):
            a, b = D0 + 8 * jj, D0 + 8 * jj + 4
            issued_upto = 2 * jj + 2 + (3 if 2 * jj + 1 >= WPOS else 0)
            e(f"s_waitcnt vmcnt({total - issued_upto})")
            if jj == 0:
                self.stamp(2)
            if jj == 15:
                self.stamp(3)
            for i in range(4):
                t = T + 4 * i
                e(f"v_lshlrev_b32 v{t}, 16, v{a + i}")
                e(f"v_and_b32 v{t + 1}, s{S_MASK}, v{a + i}")
                e(f"v_lshlrev_b32 v{t + 2}, 16, v{b + i}")
                e(f"v_and_b32 v{t + 3}, s{S_MASK}, v{b + i}")
            for i in range(4):
                t = T + 4 * i
                s, m = SUM + 2 * i, MAX + 2 * i
                if jj == 0:
                    e(f"v_max_f32 v{m}, v{t}, v{t + 2}")
                    e(f"v_max_f32 v{m + 1}, v{t + 1}, v{t + 3}")
                    e(f"v_pk_add_f32 v[{s}:{s + 1}], v[{t}:{t + 1}], v[{t + 2}:{t + 3}]")
                else:
                    e(f"v_max3_f32 v{m}, v{m}, v{t}, v{t + 2}")
                    e(f"v_max3_f32 v{m + 1}, v{m + 1}, v{t + 1}, v{t + 3}")
                    e(f"v_pk_add_f32 v[{t}:{t + 1}], v[{t}:{t + 1}], v[{t + 2}:{t + 3}]")
            if jj:
                for i in range(4):
                    t = T + 4 * i
                    s = SUM + 2 * i
                    e(f"v_pk_add_f32 v[{s}:{s + 1}], v[{s}:{s + 1}], v[{t}:{t + 1}]")

        e("v_and_b32 v20, 7, v1")
        e("v_lshlrev_b32 v20, 5, v20                 ; (l&7)*32")
        e("v_lshrrev_b32 v21, 4, v1")
        e("v_lshl_add_u32 v20, v21, 3, v20           ; + (l>>4)*8")
        e("v_bfe_u32 v21, v1, 3, 1")
        e("v_mul_u32_u24 v21, 768, v21")
        e(f"s_mul_i32 s{S_T0}, s{S_SUB}, 1536")
        e(f"s_lshl_b32 s{S_T1}, s{S_TY}, 8")
        e(f"s_add_u32 s{S_T0}, s{S_T0}, s{S_T1}")
        e(f"v_add3_u32 v20, v20, v21, s{S_T0}")
        for base in (MAX, SUM):
            for i in range(4):
                e(f"v_permlane32_swap_b32 v{base + i}, v{base + 4 + i}")
        for i in range(4):
            e(f"v_max_f32 v{MAX + i}, v{MAX + i}, v{MAX + 4 + i}")
        for i in range(4):
            e(f"v_add_f32 v{SUM + i}, v{SUM + i}, v{SUM + 4 + i}")
        for i in range(2):
            e(f"v_permlane16_swap_b32 v{MAX + i}, v{MAX + 2 + i}")
        for i in range(2):
            e(f"v_permlane16_swap_b32 v{SUM + i}, v{SUM + 2 + i}")
        for i in range(2):
            e(f"v_max_f32 v{MAX + i}, v{MAX + i}, v{MAX + 2 + i}")
        for i in range(2):
            e(f"v_add_f32 v{SUM + i}, v{SUM + i}, v{SUM + 2 + i}")
        e("s_nop 1")
        for i in range(2):
            e(f"v_add_f32_dpp v{SUM + i}, v{SUM + i}, v{SUM + i} row_ror:8 row_mask:0xf bank_mask:0x3")
        for i in range(2):
            e(f"v_max_f32_dpp v{SUM + i}, v{MAX + i}, v{MAX + i} row_ror:8 row_mask:0xf bank_mask:0xc")
        e(f"ds_write_b64 v20, v[{SUM}:{SUM + 1}] offset:{L_RED}")

        e("s_waitcnt vmcnt(0)")
        e(f"s_cmp_lg_u32 s{S_WAVE}, 4")
        e("s_cbranch_scc1 L_cntok")
        e(f"s_mov_b32 s{S_CNT}, {SPIN}")
        e("L_cntloop:")
        e(f"v_readfirstlane_b32 s{S_T0}, v3")
        e(f"s_sub_u32 s{S_CNT}, s{S_CNT}, 1")
        e("s_cbranch_scc1 L_cntok")
        e(f"s_cmp_ge_u32 s{S_T0}, {NWG}")
        e("s_cbranch_scc1 L_cntok")
        e(f"buffer_load_dword v3, off, s[{S_DBG}:{S_DBG + 3}], 0 sc1")
        e("s_waitcnt vmcnt(0)")
        e("s_branch L_cntloop")
        e("L_cntok:")
        e("s_waitcnt lgkmcnt(0)")
        e("s_barrier")
        self.stamp(4)

        e(f"s_cmp_lt_u32 s{S_WAVE}, 3")
        e("s_cbranch_scc1 L_mlp1")
        e(f"s_cmp_eq_u32 s{S_WAVE}, 3")
        e("s_cbranch_scc1 L_reducer")
        e(f"s_cmp_ge_u32 s{S_WAVE}, 6")
        e("s_cbranch_scc1 L_join1")

        e(f"s_sub_u32 s{S_T0}, s{S_WAVE}, 4             ; kind")
        e(f"s_mul_i32 s{S_T1}, s{S_T0}, 768")
        e(f"v_lshl_add_u32 v20, v1, 4, s{S_T1}")
        e("s_mov_b32 exec_hi, 0xffff")
        for k in range(4):
            e(f"ds_read_b128 v[{4 + 4 * k}:{7 + 4 * k}], v20 offset:{L_RED + 1536 * k}")
        e("v_lshlrev_b32 v2, 12, v1")
        e(f"s_mul_i32 s{S_T1}, s{S_T0}, {48 * 4096}")
        e(f"s_lshl_b32 s{S_CNT}, s2, 4")
        e(f"s_add_u32 s{S_T1}, s{S_T1}, s{S_CNT}")
        e(f"s_cmp_eq_u32 s{S_T0}, 0")
        e("s_cbranch_scc0 L_pubmax")
        e("s_waitcnt lgkmcnt(2)")
        e("v_pk_add_f32 v[4:5], v[4:5], v[8:9]")
        e("v_pk_add_f32 v[6:7], v[6:7], v[10:11]")
        e("s_waitcnt lgkmcnt(0)")
        e("v_pk_add_f32 v[12:13], v[12:13], v[16:17]")
        e("v_pk_add_f32 v[14:15], v[14:15], v[18:19]")
        e("v_pk_add_f32 v[4:5], v[4:5], v[12:13]")
        e("v_pk_add_f32 v[6:7], v[6:7], v[14:15]")
        e("s_branch L_pub")
        e("L_pubmax:")
        e("s_waitcnt lgkmcnt(1)")
        for i in range(4):
            e(f"v_max3_f32 v{4 + i}, v{4 + i}, v{8 + i}, v{12 + i}")
        e("s_waitcnt lgkmcnt(0)")
        for i in range(4):
            e(f"v_max_f32 v{4 + i}, v{4 + i}, v{16 + i}")
        e("L_pub:")
        for i in range(4):
            e(f"v_min_u32 v{4 + i}, -2, v{4 + i}")
        e(f"buffer_store_dwordx4 v[4:7], v2, s[{S_WS}:{S_WS + 3}], s{S_T1} offen sc1")
        e("s_mov_b64 exec, -1")
        e("s_branch L_join1")

        e("L_reducer:")
        e("s_cmp_ge_u32 s2, 96")
        e("s_cbranch_scc1 L_join1")
        e("v_lshlrev_b32 v2, 4, v1")
        e(f"s_lshl_b32 s{S_T1}, s2, 12")
        e(f"s_mov_b32 s{S_CNT}, {SPIN}")
        e("L_rpoll:")
        for k in range(4):
            e(f"buffer_load_dwordx4 v[{4 + 4 * k}:{7 + 4 * k}], v2, s[{S_WS}:{S_WS + 3}], s{S_T1} offen offset:{1024 * k} sc1")
        e(f"s_sub_u32 s{S_CNT}, s{S_CNT}, 1")
        e("s_cbranch_scc1 L_rgot")
        e("s_waitcnt vmcnt(0)")
        e("v_max3_u32 v20, v4, v5, v6")
        e("v_max3_u32 v21, v7, v8, v9")
        e("v_max3_u32 v22, v10, v11, v12")
        e("v_max3_u32 v23, v13, v14, v15")
        e("v_max3_u32 v24, v16, v17, v18")
        e("v_max3_u32 v20, v20, v21, v19")
        e("v_max3_u32 v22, v22, v23, v24")
        e("v_max_u32 v20, v20, v22")
        e("v_cmp_eq_u32 vcc, -1, v20")
        e("s_cbranch_vccnz L_rpoll")
        e("L_rgot:")
        e("s_waitcnt vmcnt(0)")
        self.stamp(9)
        e(f"s_lshl_b32 s{S_T1}, s2, 3")
        e(f"s_add_u32 s{S_T1}, s{S_T1}, {WS_F}")
        e("v_lshrrev_b32 v2, 3, v1                   ; lane 32 -> +4")
        e("s_cmp_ge_u32 s2, 48")
        e("s_cbranch_scc1 L_rmax")
        for kind in (0, 1):
            op = "v_add_f32" if kind == 0 else "v_max_f32"
            if kind == 1:
                e("L_rmax:")
                for i in range(4):
                    e(f"v_max3_f32 v{4 + i}, v{4 + i}, v{8 + i}, v{12 + i}")
                for i in range(4):
                    e(f"v_max_f32 v{4 + i}, v{4 + i}, v{16 + i}")
            else:
                e("v_pk_add_f32 v[4:5], v[4:5], v[8:9]")
                e("v_pk_add_f32 v[6:7], v[6:7], v[10:11]")
                e("v_pk_add_f32 v[12:13], v[12:13], v[16:17]")
                e("v_pk_add_f32 v[14:15], v[14:15], v[18:19]")
                e("v_pk_add_f32 v[4:5], v[4:5], v[12:13]")
                e("v_pk_add_f32 v[6:7], v[6:7], v[14:15]")
            e("s_nop 1")
            e("v_permlane32_swap_b32 v4, v6")
            e("v_permlane32_swap_b32 v5, v7")
            e(f"{op} v4, v4, v6")
            e(f"{op} v5, v5, v7")
            e("s_nop 1")
            e("v_permlane16_swap_b32 v4, v5")
            e(f"{op} v4, v4, v5")
            for r in (8, 4, 2, 1):
                e("s_nop 1")
                e(f"{op}_dpp v4, v4, v4 row_ror:{r} row_mask:0xf bank_mask:0xf")
            if kind == 0:
                e("v_mul_f32 v4, 0x36800000, v4              ; 1/262144")
                e("s_branch L_rpack")
        e("L_rpack:")
        e("v_mov_b32 v5, v4")
        e("s_nop 1")
        e("v_permlane16_swap_b32 v4, v5")
        e("v_cvt_pk_bf16_f32 v4, v4, v5")
        e("s_mov_b32 exec_lo, 1")
        e("s_mov_b32 exec_hi, 1")
        e("v_min_u32 v4, -2, v4")
        e(f"buffer_store_dword v4, v2, s[{S_WS}:{S_WS + 3}], s{S_T1} offen sc1")
        e("s_mov_b64 exec, -1")
        e("s_branch L_join1")

        e("L_mlp1:")
        A1 = 144
        e(f"s_mul_i32 s{S_T0}, s{S_WAVE}, 6144")
        e(f"v_lshl_add_u32 v36, v1, 4, s{S_T0}")
        for k in range(6):
            e(f"ds_write_b128 v36, v[{A1 + 4 * k}:{A1 + 4 * k + 3}] offset:{L_SPILL + 1024 * k}")
        e("v_lshrrev_b32 v2, 4, v1")
        e("v_lshlrev_b32 v2, 3, v2")
        e("v_bfe_u32 v3, v1, 2, 2")
        e("v_add_u32 v2, v2, v3")
        e("v_mul_u32_u24 v2, 96, v2")
        e("v_and_b32 v3, 3, v1")
        e("v_lshl_add_u32 v2, v3, 3, v2")
        e(f"s_lshl_b32 s{S_T0}, s{S_WAVE}, 5")
        e(f"v_add_u32 v2, s{S_T0}, v2")
        e("s_waitcnt lgkmcnt(0)")
        for s in range(6):
            for h in range(2):
                r = A1 + 4 * s + 2 * h
                e(f"ds_read_b64_tr_b16 v[{r}:{r + 1}], v2 offset:{L_W1 + s * 3072 + h * 384}")
        e("v_and_b32 v2, 1, v1")
        e("v_mul_u32_u24 v2, 384, v2")
        e("v_lshrrev_b32 v3, 4, v1")
        e("v_lshl_add_u32 v2, v3, 4, v2")
        for i in range(24):
            e(f"v_mov_b32 v{4 + i}, 0")
        e(f"s_mov_b32 s{S_T1}, {WS_F}")
        e(f"s_mov_b32 s{S_CNT}, {SPIN}")
        e("s_waitcnt lgkmcnt(0)")
        e("L_fpoll:")
        e("s_mov_b32 exec_lo, 0x00030003")
        e("s_mov_b32 exec_hi, 0x00030003")
        for s in range(6):
            e(f"buffer_load_dwordx4 v[{4 + 4 * s}:{7 + 4 * s}], v2, s[{S_WS}:{S_WS + 3}], s{S_T1} offen offset:{64 * s} sc1")
        e("s_mov_b64 exec, -1")
        e(f"s_sub_u32 s{S_CNT}, s{S_CNT}, 1")
        e("s_waitcnt vmcnt(0)")
        for s in range(6):
            c = "0" if s == 0 else "v[28:31]"
            e(f"v_mfma_f32_16x16x32_bf16 v[28:31], v[{A1 + 4 * s}:{A1 + 4 * s + 3}], v[{4 + 4 * s}:{7 + 4 * s}], {c}")
            b = 4 + 4 * s
            if s == 0:
                e(f"v_max3_u32 v32, v{b}, v{b + 1}, v{b + 2}")
                e(f"v_max_u32 v32, v32, v{b + 3}")
            else:
                e(f"v_max3_u32 v32, v32, v{b}, v{b + 1}")
                e(f"v_max3_u32 v32, v32, v{b + 2}, v{b + 3}")
        e("s_cbranch_scc1 L_fgot")
        e("v_cmp_eq_u32 vcc, -1, v32")
        e("s_cbranch_vccnz L_fpoll")
        e("L_fgot:")
        self.stamp(5)
        e("v_and_b32 v2, 1, v1")
        e("v_mul_u32_u24 v2, 96, v2")
        e("v_lshrrev_b32 v3, 4, v1")
        e("v_lshl_add_u32 v2, v3, 3, v2")
        e(f"v_add_u32 v2, s{S_T0}, v2")
        e("s_nop 1")
        for i in range(4):
            e(f"v_maximum3_f32 v{28 + i}, v{28 + i}, 0, 0")
        e("v_cvt_pk_bf16_f32 v28, v28, v29")
        e("v_cvt_pk_bf16_f32 v29, v30, v31")
        e("s_mov_b32 exec_lo, 0x00030003")
        e("s_mov_b32 exec_hi, 0x00030003")
        e(f"ds_write_b64 v2, v[28:29] offset:{L_H}")
        e("s_mov_b64 exec, -1")
        for k in range(6):
            e(f"ds_read_b128 v[{A1 + 4 * k}:{A1 + 4 * k + 3}], v36 offset:{L_SPILL + 1024 * k}")

        e("L_join1:")
        e("v_lshrrev_b32 v2, 4, v1")
        e("v_lshlrev_b32 v2, 3, v2")
        e("v_bfe_u32 v3, v1, 2, 2")
        e("v_add_u32 v2, v2, v3                      ; row")
        e("v_and_b32 v22, 15, v2")
        e("v_mul_u32_u24 v2, 384, v2")
        e("v_mul_u32_u24 v22, 384, v22")
        e("v_and_b32 v3, 3, v1")
        e("v_lshlrev_b32 v3, 3, v3")
        e(f"s_lshl_b32 s{S_T0}, s{S_WAVE}, 5")
        e(f"v_add3_u32 v2, v2, v3, s{S_T0}")
        e(f"v_add3_u32 v22, v22, v3, s{S_T0}")
        e(f"ds_read_b64_tr_b16 v[4:5], v2 offset:{L_W2}")
        e(f"ds_read_b64_tr_b16 v[6:7], v2 offset:{L_W2 + 4 * 384}")
        e(f"ds_read_b64_tr_b16 v[8:9], v22 offset:{L_W2 + 32 * 384}")
        e(f"ds_read_b64_tr_b16 v[10:11], v22 offset:{L_W2 + 36 * 384}")
        e("v_and_b32 v2, 1, v1")
        e("v_mul_u32_u24 v2, 96, v2")
        e("v_lshrrev_b32 v3, 4, v1")
        e("v_lshl_add_u32 v20, v3, 4, v2")
        e("v_and_b32 v3, 1, v3")
        e("v_lshl_add_u32 v21, v3, 4, v2")
        e(f"s_lshl_b32 s{S_T0}, s{S_WAVE}, 6")
        e(f"v_lshl_add_u32 v22, v1, 2, s{S_T0}")
        e("v_and_b32 v3, 7, v1")
        e(f"s_lshl_b32 s{S_T0}, s{S_TY}, 8")
        e(f"v_lshl_add_u32 v23, v3, 5, s{S_T0}")
        e("s_waitcnt lgkmcnt(0)")
        e("s_mov_b32 exec_lo, 0")
        for i in range(4):
            e(f"v_mov_b32 v{8 + i}, 0")
        e("s_mov_b64 exec, -1")
        e("s_barrier")
        self.stamp(6)
        e(f"ds_read_b128 v[12:15], v20 offset:{L_H}")
        e(f"ds_read_b128 v[16:19], v21 offset:{L_H + 64}")
        e("s_waitcnt lgkmcnt(1)")
        e("v_mfma_f32_16x16x32_bf16 v[24:27], v[12:15], v[4:7], 0")
        e("s_waitcnt lgkmcnt(0)")
        e("v_mfma_f32_16x16x32_bf16 v[24:27], v[16:19], v[8:11], v[24:27]")
        e(f"s_mov_b32 s{S_OFF}, s{S_BASE}")
        e("s_mov_b64 exec, 0xffff")
        e("s_nop 5")
        e("v_cvt_pk_bf16_f32 v24, v24, v25")
        e("v_lshlrev_b32 v25, 16, v24")
        e(f"v_and_b32 v24, s{S_MASK}, v24")
        e("v_add_f32 v24, v24, v25")
        e("v_cvt_pk_bf16_f32 v24, v24, v24")
        e("v_lshlrev_b32 v24, 16, v24")
        e("v_mul_f32 v24, 0xbfb8aa3b, v24            ; -log2(e)")
        e("v_exp_f32 v24, v24")
        e("s_nop 0")
        e("v_add_f32 v24, 1.0, v24")
        e("v_rcp_f32 v24, v24")
        e("s_nop 0")
        e("v_cvt_pk_bf16_f32 v24, v24, v24")
        e("v_lshlrev_b32 v24, 16, v24")
        e(f"ds_write_b32 v22, v24 offset:{L_S}")
        e("s_mov_b64 exec, -1")
        e("s_waitcnt lgkmcnt(0)")
        e("s_barrier")
        e(f"ds_read_b128 v[4:7], v23 offset:{L_S}")
        e(f"ds_read_b128 v[8:11], v23 offset:{L_S + 16}")
        e("s_waitcnt lgkmcnt(0)")
        self.stamp(7)

        if o.xccmask:
            e("s_getreg_b32 s74, hwreg(HW_REG_XCC_ID)")
            e("s_and_b32 s74, s74, 15")
            e(f"s_lshr_b32 s74, {o.xccmask}, s74")
            e("s_bitcmp1_b32 s74, 0")
            e("s_cbranch_scc0 L_skipst")
        for j in range(32):
            a = D0 + 4 * j
            t0 = 12 + 8 * (j & 1)
            for i in range(4):
                t = t0 + 2 * i
                e(f"v_lshlrev_b32 v{t}, 16, v{a + i}")
                e(f"v_and_b32 v{t + 1}, s{S_MASK}, v{a + i}")
            for i in range(4):
                t = t0 + 2 * i
                e(f"v_pk_mul_f32 v[{t}:{t + 1}], v[{t}:{t + 1}], v[{4 + 2 * i}:{5 + 2 * i}]")
            for i in range(4):
                t = t0 + 2 * i
                e(f"v_cvt_pk_bf16_f32 v{a + i}, v{t}, v{t + 1}")
            e(f"buffer_store_dwordx4 v[{a}:{a + 3}], {va(j)}, s[{S_OUT}:{S_OUT + 3}], s{S_OFF} offen{stf}")
            adv(j)
        e("L_skipst:")
        if o.stamps:
            self.stamp(8)
            e("s_waitcnt vmcnt(0)")
            self.stamp(10)
            e("s_getreg_b32 s74, hwreg(HW_REG_XCC_ID)")
            e("s_getreg_b32 s75, hwreg(HW_REG_HW_ID)")
            e("s_waitcnt lgkmcnt(0)")
            e("v_mov_b32 v2, 0")
            for i in range(11):
                e(f"v_writelane_b32 v2, s{S_STAMP + 2 * i}, {i}")
            e("v_writelane_b32 v2, s74, 14")
            e("v_writelane_b32 v2, s75, 15")
            e(f"s_mul_i32 s{S_T0}, s2, 12")
            e(f"s_add_u32 s{S_T0}, s{S_T0}, s{S_WAVE}")
            e(f"s_lshl_b32 s{S_T0}, s{S_T0}, 6")
            e(f"s_add_u32 s{S_T0}, s{S_T0}, {WS_STAMP}")
            e("v_lshlrev_b32 v3, 2, v1")
            e("s_mov_b64 exec, 0xffff")
            e(f"buffer_store_dword v2, v3, s[{S_WS}:{S_WS + 3}], s{S_T0} offen")
        if o.probe:
            idx, K = [int(v) for v in o.probe.split(",")]
            e("s_cmp_lg_u32 s2, 0")
            e("s_cbranch_scc1 L_end")
            e(f"s_cmp_lg_u32 s{S_WAVE}, 0")
            e("s_cbranch_scc1 L_end")
            if idx < 0:
                e(f"s_mov_b32 s76, {K}")
            else:
                e(f"s_sub_u32 s76, s{S_STAMP + 2 * idx}, s{S_STAMP}")
                e(f"s_mul_i32 s76, s76, {K}")
            e("s_min_u32 s76, s76, 200000")
            e("L_probe:")
            e("s_memrealtime s[78:79]")
            e("s_waitcnt lgkmcnt(0)")
            e(f"s_sub_u32 s78, s78, s{S_STAMP}")
            e("s_cmp_lt_u32 s78, s76")
            e("s_cbranch_scc1 L_probe")
        e("L_end:")
        e("s_endpgm")

    def text(self):
        out = HEADER
        out += f"; @launch grid=({NWG},1,1) block=(768,1,1) lds={L_TOTAL}\n"
        out += '.amdgcn_target "amdgcn-amd-amdhsa--gfx950"\n.text\n'
        out += f".globl {KNAME}\n.p2align 8\n.type {KNAME},@function\n{KNAME}:\n"
        out += "\n".join(self.lines) + "\n"
        out += f""".section .rodata,"a"
.p2align 6
.amdhsa_kernel {KNAME}
  .amdhsa_next_free_vgpr 168
  .amdhsa_next_free_sgpr 80
  .amdhsa_accum_offset 168
  .amdhsa_group_segment_fixed_size 0
  .amdhsa_kernarg_size 48
  .amdhsa_user_sgpr_count 2
  .amdhsa_user_sgpr_kernarg_segment_ptr 1
  .amdhsa_system_sgpr_workgroup_id_x 1
  .amdhsa_float_denorm_mode_32 3
.end_amdhsa_kernel
"""
        return out


def main():
    p = argparse.ArgumentParser()
    p.add_argument("-o", default="standalone__channel_attn_cbam__vision.s")
    p.add_argument("--map", default="contig")
    p.add_argument("--ldflags", default="")
    p.add_argument("--stflags", default="")
    p.add_argument("--stamps", action="store_true")
    p.add_argument("--probe", default="")
    p.add_argument("--xccmask", default="")
    p.add_argument("--flip", type=int, default=0)
    o = p.parse_args()
    g = G(o)
    g.build()
    open(o.o, "w").write(g.text())


if __name__ == "__main__":
    main()
```

```python
import argparse

KNAME = "standalone__channel_attn_cbam__vision_kernel"

HEADER = """; Kernarg layout for this problem (48 bytes, ptrs only, base s[0:1]):
"""

X_BYTES = 100663296
NWG = 256
NRED = 12

L_RED = 0
L_H = 6144
L_S = 6400
L_R2 = 7168
L_W1 = 8192
L_W2 = L_W1 + 18432
L_SPILL = L_W2 + 18432
L_TOTAL = L_SPILL + 3 * 8192

WS_P = 0
WS_F = 256 * 1536
WS_STAMP = 1 << 20
WS_USED = WS_F + 12 * 128

S_X, S_OUT, S_WS, S_DBG, S_W = 4, 8, 12, 16, 20
S_WAVE, S_TY, S_SUB, S_OFF, S_MASK, S_CNT, S_T0, S_T1 = 28, 29, 30, 31, 32, 33, 34, 35
S_BASE, S_PM, S_P, S_T2 = 48, 49, 50, 51
S_STAMP = 52

D0 = 40
SPIN = 400000
V_A0, V_A1, V_D0, V_D1, V_AT = 0, 39, 38, 37, 36


class G:
    def __init__(self, o):
        self.o = o
        self.lines = []

    def e(self, s=""):
        self.lines.append(("    " + s) if s and not s.endswith(":") else s)

    def stamp(self, idx):
        if self.o.stamps:
            self.e(f"s_memrealtime s[{S_STAMP + 2 * idx}:{S_STAMP + 2 * idx + 1}]")

    def srd(self, d, lo, nbytes):
        e = self.e
        e(f"s_mov_b32 s{d}, s{lo}")
        e(f"s_mov_b32 s{d + 1}, s{lo + 1}")
        e(f"s_mov_b32 s{d + 2}, {nbytes}")
        e(f"s_mov_b32 s{d + 3}, 0x20000")

    def span_off(self, z):
        return (z >> 1) * 12 * 1048576 + (z & 1) * 49152

    def mem(self, j, fn):
        e = self.e
        z, u = j >> 1, j & 1
        if u == 0:
            e(f"s_bfe_u32 s{S_P}, s{S_PM}, {(1 << 16) | z}")
            e(f"s_add_u32 s{S_OFF}, s{S_BASE}, {self.span_off(z)}")
        at = 2 + u
        e(f"v_mad_i32_i24 v{at}, v{(V_D0, V_D1)[u]}, s{S_P}, v{(V_A0, V_A1)[u]}")
        fn(f"v{at}")

    def build(self):
        o, e = self.o, self.e
        ldf = (" " + o.ldflags) if o.ldflags else ""
        stf = (" " + o.stflags) if o.stflags else ""

        self.stamp(0)
        e("s_cmp_ge_u32 s2, %d" % NWG)
        e("s_cbranch_scc1 L_end")
        e("s_load_dwordx4 s[36:39], s[0:1], 0        ; x, w1")
        e("s_load_dwordx4 s[40:43], s[0:1], 16       ; w2, out")
        e("s_load_dwordx4 s[44:47], s[0:1], 32")
        e("v_readfirstlane_b32 s%d, v0" % S_WAVE)
        e("v_and_b32 v1, 63, v0                      ; lane")
        e("v_lshrrev_b32 v2, 3, v1")
        e("v_mul_u32_u24 v2, 384, v2")
        e("v_and_b32 v3, 7, v1")
        e("v_lshl_add_u32 v0, v3, 4, v2")
        e(f"s_lshr_b32 s{S_WAVE}, s{S_WAVE}, 6")
        e(f"s_mul_i32 s{S_SUB}, s{S_WAVE}, 43")
        e(f"s_lshr_b32 s{S_SUB}, s{S_SUB}, 7")
        e(f"s_mul_i32 s{S_TY}, s{S_SUB}, 3")
        e(f"s_sub_u32 s{S_TY}, s{S_WAVE}, s{S_TY}        ; ty = wave % 3")
        e(f"s_mov_b32 s{S_MASK}, 0xffff0000")
        e(f"s_mul_i32 s{S_T0}, s{S_SUB}, 3072")
        e(f"s_lshl_b32 s{S_T1}, s{S_TY}, 7")
        e(f"s_add_u32 s{S_T0}, s{S_T0}, s{S_T1}")
        e(f"v_add_u32 v{V_A0}, s{S_T0}, v0")
        e(f"v_add_u32 v{V_A1}, 12288, v{V_A0}")
        for a, d in ((V_A0, V_D0), (V_A1, V_D1)):
            e(f"v_lshrrev_b32 v2, 13, v{a}")
            e("v_cmp_eq_u32 vcc, 1, v2")
            e(f"v_mov_b32 v3, 24576")
            e(f"v_sub_u32 v{d}, 0, v3")
            e(f"v_cndmask_b32 v4, 0, v3, vcc           ; k'=1: block 1 -> 4")
            e(f"v_cndmask_b32 v{d}, v3, v{d}, vcc")
            e(f"v_add_u32 v{a}, v{a}, v4")
        e(f"s_lshr_b32 s{S_T0}, s2, 3")
        e(f"s_lshl_b32 s{S_T0}, s{S_T0}, 2")
        e(f"s_and_b32 s{S_T1}, s2, 3")
        e(f"s_add_u32 s{S_T0}, s{S_T0}, s{S_T1}")
        e(f"s_mul_i32 s{S_BASE}, s{S_T0}, 98304")
        e(f"s_bfe_u32 s{S_T1}, s2, 0x10002")
        e(f"s_lshr_b32 s{S_PM}, 0xaaaa, s{S_T1}")
        e("s_waitcnt lgkmcnt(0)")
        self.srd(S_X, 36, X_BYTES)
        self.srd(S_OUT, 42, X_BYTES)
        self.srd(S_WS, 46, (2 << 20) if o.stamps else WS_USED)
        self.srd(S_DBG, 44, 256)
        e(f"s_cmp_lt_u32 s{S_WAVE}, 6")
        e(f"s_cselect_b32 s{S_W}, s38, s40")
        e(f"s_cselect_b32 s{S_W + 1}, s39, s41")
        e(f"s_mov_b32 s{S_W + 2}, 18432")
        e(f"s_mov_b32 s{S_W + 3}, 0x20000")

        if o.ctl:
            e("s_load_dwordx4 s[76:79], s[44:45], 32")
            e("s_waitcnt lgkmcnt(0)")
            e(f"s_mov_b32 s{S_T2}, 0")
            for z in range(16):
                e(f"s_add_u32 s{S_T0}, s{S_BASE}, {self.span_off(z) + 24576}")
                e(f"s_lshr_b32 s{S_T1}, s{S_T0}, 25")
                e(f"s_lshr_b32 s{S_T1}, s76, s{S_T1}")
                e(f"s_lshr_b32 s{S_T0}, s{S_T0}, 21")
                e(f"s_xor_b32 s{S_T0}, s{S_T0}, s{S_T1}")
                e(f"s_and_b32 s{S_T0}, s{S_T0}, 1")
                e(f"s_lshl_b32 s{S_T0}, s{S_T0}, {z}")
                e(f"s_or_b32 s{S_T2}, s{S_T2}, s{S_T0}")
            e("s_bitcmp1_b32 s2, 2")
            e(f"s_cselect_b32 s{S_T0}, 0xffff, 0")
            e(f"s_xor_b32 s{S_T2}, s{S_T2}, s{S_T0}")
            e(f"s_xor_b32 s{S_T2}, s{S_T2}, s78")
            e(f"s_and_b32 s{S_PM}, s{S_PM}, s77")
            e(f"s_andn2_b32 s{S_T2}, s{S_T2}, s77")
            e(f"s_or_b32 s{S_PM}, s{S_PM}, s{S_T2}")

        CW = 11
        e(f"s_cmp_lg_u32 s{S_WAVE}, {CW}")
        e("s_cbranch_scc1 L_noclear")
        for i in range(4):
            e(f"v_mov_b32 v{4 + i}, -1")
        e("v_lshlrev_b32 v2, 4, v1")
        e(f"s_mul_i32 s{S_T0}, s2, 1536")
        e(f"buffer_store_dwordx4 v[4:7], v2, s[{S_WS}:{S_WS + 3}], s{S_T0} offen sc1")
        e("s_mov_b32 exec_hi, 0")
        e(f"buffer_store_dwordx4 v[4:7], v2, s[{S_WS}:{S_WS + 3}], s{S_T0} offen offset:1024 sc1")
        e(f"s_cmp_ge_u32 s2, {NRED}")
        e("s_cbranch_scc1 L_noclearF")
        e("s_mov_b32 exec_lo, 0xff")
        e(f"s_lshl_b32 s{S_T0}, s2, 7")
        e(f"s_add_u32 s{S_T0}, s{S_T0}, {WS_F}")
        e(f"buffer_store_dwordx4 v[4:7], v2, s[{S_WS}:{S_WS + 3}], s{S_T0} offen sc1")
        e("L_noclearF:")
        e("s_mov_b32 exec_lo, 1")
        e("v_mov_b32 v3, 1")
        e("s_waitcnt vmcnt(0)")
        e(f"buffer_atomic_add v3, off, s[{S_DBG}:{S_DBG + 3}], 0")
        e("s_mov_b64 exec, -1")
        e("L_noclear:")

        SUM, MAX, T = 4, 12, 20
        DEPTH = o.depth
        WPOS = 8
        seq = []

        def issue(j):
            if j == WPOS:
                e(f"v_lshlrev_b32 v{V_AT}, 4, v1")
                e(f"s_mul_i32 s{S_T0}, s{S_WAVE}, 3072")
                e(f"s_add_u32 s{S_T1}, s{S_T0}, {L_W1}")
                e(f"s_mov_b32 m0, s{S_T1}")
                e(f"s_cmp_lt_u32 s{S_WAVE}, 6")
                e(f"s_cselect_b32 s{S_T1}, 0, 18432")
                e(f"s_sub_u32 s{S_T0}, s{S_T0}, s{S_T1}")
                for k in range(3):
                    e(f"buffer_load_dwordx4 v{V_AT}, s[{S_W}:{S_W + 3}], s{S_T0} offen offset:{k * 1024} lds")
                    seq.append(None)
            if j == 30:
                e(f"s_cmp_lg_u32 s{S_WAVE}, {CW}")
                e("s_cbranch_scc1 L_nocnt")
                e(f"buffer_load_dword v{V_AT}, off, s[{S_DBG}:{S_DBG + 3}], 0 sc1")
                e("s_branch L_cntdone")
                e("L_nocnt:")
                e(f"buffer_load_dword v{V_AT}, off, s[{S_W}:{S_W + 3}], 0")
                e("L_cntdone:")
                seq.append(None)
            r = D0 + 4 * j
            self.mem(j, lambda va: e(f"buffer_load_dwordx4 v[{r}:{r + 3}], {va}, s[{S_X}:{S_X + 3}], s{S_OFF} offen{ldf}"))
            seq.append(j)

        def wait_for(j):
            e(f"s_waitcnt vmcnt({len(seq) - 1 - seq.index(j)})")

        nxt = 0
        for jj in range(16):
            while nxt < 32 and nxt < 2 * jj + DEPTH:
                issue(nxt)
                nxt += 1
                if nxt == 32:
                    self.stamp(1)
            a, b = D0 + 8 * jj, D0 + 8 * jj + 4
            if jj == 15:
                e("v_and_b32 v2, 7, v1")
                e("v_lshlrev_b32 v2, 5, v2                   ; (l&7)*32")
                e("v_lshrrev_b32 v3, 4, v1")
                e("v_lshl_add_u32 v2, v3, 3, v2              ; + (l>>4)*8")
                e("v_bfe_u32 v3, v1, 3, 1")
                e("v_mul_u32_u24 v3, 768, v3")
                e(f"s_mul_i32 s{S_T0}, s{S_SUB}, 1536")
                e(f"s_lshl_b32 s{S_T1}, s{S_TY}, 8")
                e(f"s_add_u32 s{S_T0}, s{S_T0}, s{S_T1}")
                e(f"v_add3_u32 v2, v2, v3, s{S_T0}")
                for r in (a, b):
                    wait_for((r - D0) // 4)
                    if r == b:
                        self.stamp(3)
                    for i in range(4):
                        t = T + 2 * i
                        e(f"v_lshlrev_b32 v{t}, 16, v{r + i}")
                        e(f"v_and_b32 v{t + 1}, s{S_MASK}, v{r + i}")
                    for i in range(8):
                        e(f"v_max_f32 v{MAX + i}, v{MAX + i}, v{T + i}")
                    for i in range(4):
                        t, s = T + 2 * i, SUM + 2 * i
                        e(f"v_pk_add_f32 v[{s}:{s + 1}], v[{s}:{s + 1}], v[{t}:{t + 1}]")
                continue
            wait_for(2 * jj + 1)
            if jj == 0:
                self.stamp(2)
            for i in range(4):
                t = T + 4 * i
                e(f"v_lshlrev_b32 v{t}, 16, v{a + i}")
                e(f"v_and_b32 v{t + 1}, s{S_MASK}, v{a + i}")
                e(f"v_lshlrev_b32 v{t + 2}, 16, v{b + i}")
                e(f"v_and_b32 v{t + 3}, s{S_MASK}, v{b + i}")
            for i in range(4):
                t = T + 4 * i
                s, m = SUM + 2 * i, MAX + 2 * i
                if jj == 0:
                    e(f"v_max_f32 v{m}, v{t}, v{t + 2}")
                    e(f"v_max_f32 v{m + 1}, v{t + 1}, v{t + 3}")
                    e(f"v_pk_add_f32 v[{s}:{s + 1}], v[{t}:{t + 1}], v[{t + 2}:{t + 3}]")
                else:
                    e(f"v_max3_f32 v{m}, v{m}, v{t}, v{t + 2}")
                    e(f"v_max3_f32 v{m + 1}, v{m + 1}, v{t + 1}, v{t + 3}")
                    e(f"v_pk_add_f32 v[{t}:{t + 1}], v[{t}:{t + 1}], v[{t + 2}:{t + 3}]")
            if jj:
                for i in range(4):
                    t = T + 4 * i
                    s = SUM + 2 * i
                    e(f"v_pk_add_f32 v[{s}:{s + 1}], v[{s}:{s + 1}], v[{t}:{t + 1}]")

        for base in (MAX, SUM):
            for i in range(4):
                e(f"v_permlane32_swap_b32 v{base + i}, v{base + 4 + i}")
        for i in range(4):
            e(f"v_max_f32 v{MAX + i}, v{MAX + i}, v{MAX + 4 + i}")
        for i in range(4):
            e(f"v_add_f32 v{SUM + i}, v{SUM + i}, v{SUM + 4 + i}")
        for i in range(2):
            e(f"v_permlane16_swap_b32 v{MAX + i}, v{MAX + 2 + i}")
        for i in range(2):
            e(f"v_permlane16_swap_b32 v{SUM + i}, v{SUM + 2 + i}")
        for i in range(2):
            e(f"v_add_f32 v{SUM + i}, v{SUM + i}, v{SUM + 2 + i}")
        for i in range(2):
            e(f"v_max_f32 v{MAX + i}, v{MAX + i}, v{MAX + 2 + i}")
        e("s_nop 0")
        for i in range(2):
            e(f"v_add_f32_dpp v{SUM + i}, v{SUM + i}, v{SUM + i} row_ror:8 row_mask:0xf bank_mask:0x3")
        for i in range(2):
            e(f"v_max_f32_dpp v{SUM + i}, v{MAX + i}, v{MAX + i} row_ror:8 row_mask:0xf bank_mask:0xc")
        e(f"ds_write_b64 v2, v[{SUM}:{SUM + 1}] offset:{L_RED}")

        e(f"s_cmp_lg_u32 s{S_WAVE}, {CW}")
        e("s_cbranch_scc1 L_cntok")
        e(f"s_mov_b32 s{S_CNT}, {SPIN}")
        e("L_cntloop:")
        e(f"v_readfirstlane_b32 s{S_T0}, v{V_AT}")
        e(f"s_sub_u32 s{S_CNT}, s{S_CNT}, 1")
        e("s_cbranch_scc1 L_cntok")
        e(f"s_cmp_ge_u32 s{S_T0}, {NWG}")
        e("s_cbranch_scc1 L_cntok")
        e(f"buffer_load_dword v{V_AT}, off, s[{S_DBG}:{S_DBG + 3}], 0 sc1")
        e("s_waitcnt vmcnt(0)")
        e("s_branch L_cntloop")
        e("L_cntok:")
        e(f"s_and_b32 s{S_T0}, s{S_WAVE}, 1             ; kind")
        e(f"s_mul_i32 s{S_T1}, s{S_T0}, 768")
        e(f"v_lshl_add_u32 v2, v1, 4, s{S_T1}")
        e(f"s_mul_i32 s{S_T1}, s2, 1536")
        e("s_waitcnt lgkmcnt(0)")
        e("s_barrier")
        self.stamp(4)

        e(f"s_and_b32 s{S_CNT}, s{S_WAVE}, 14")
        e(f"s_cmp_lg_u32 s{S_CNT}, 4")
        e("s_cbranch_scc1 L_nopub")
        e("s_mov_b32 exec_hi, 0xffff")
        for k in range(4):
            e(f"ds_read_b128 v[{4 + 4 * k}:{7 + 4 * k}], v2 offset:{L_RED + 1536 * k}")
        e(f"s_cmp_eq_u32 s{S_T0}, 0")
        e("s_cbranch_scc0 L_pubmax")
        e("s_waitcnt lgkmcnt(2)")
        e("v_pk_add_f32 v[4:5], v[4:5], v[8:9]")
        e("v_pk_add_f32 v[6:7], v[6:7], v[10:11]")
        e("s_waitcnt lgkmcnt(0)")
        e("v_pk_add_f32 v[12:13], v[12:13], v[16:17]")
        e("v_pk_add_f32 v[14:15], v[14:15], v[18:19]")
        e("v_pk_add_f32 v[4:5], v[4:5], v[12:13]")
        e("v_pk_add_f32 v[6:7], v[6:7], v[14:15]")
        e("s_branch L_pub")
        e("L_pubmax:")
        e("s_waitcnt lgkmcnt(1)")
        for i in range(4):
            e(f"v_max3_f32 v{4 + i}, v{4 + i}, v{8 + i}, v{12 + i}")
        e("s_waitcnt lgkmcnt(0)")
        for i in range(4):
            e(f"v_max_f32 v{4 + i}, v{4 + i}, v{16 + i}")
        e("L_pub:")
        for i in range(4):
            e(f"v_min_u32 v{4 + i}, -2, v{4 + i}")
        e(f"buffer_store_dwordx4 v[4:7], v2, s[{S_WS}:{S_WS + 3}], s{S_T1} offen sc1")
        e("s_mov_b64 exec, -1")
        e("L_nopub:")

        B2 = 28
        V_H0, V_H1, V_SW, V_SR = 24, 25, 26, 27
        e("v_lshrrev_b32 v20, 4, v1                  ; q")
        e("v_bfe_u32 v3, v1, 2, 2")
        e("v_lshl_add_u32 v21, v20, 3, v3            ; row")
        e("v_and_b32 v22, 15, v21")
        e("v_and_b32 v3, 3, v1")
        e(f"s_lshl_b32 s{S_T2}, s{S_WAVE}, 5")
        e(f"v_lshl_add_u32 v23, v3, 3, s{S_T2}")
        e("v_mov_b32 v3, 384")
        e("v_mad_u32_u24 v2, v21, v3, v23")
        e("v_mad_u32_u24 v22, v22, v3, v23")
        e(f"ds_read_b64_tr_b16 v[{B2}:{B2 + 1}], v2 offset:{L_W2}")
        e(f"ds_read_b64_tr_b16 v[{B2 + 2}:{B2 + 3}], v2 offset:{L_W2 + 4 * 384}")
        e(f"ds_read_b64_tr_b16 v[{B2 + 4}:{B2 + 5}], v22 offset:{L_W2 + 32 * 384}")
        e(f"ds_read_b64_tr_b16 v[{B2 + 6}:{B2 + 7}], v22 offset:{L_W2 + 36 * 384}")
        e("v_and_b32 v2, 1, v1")
        e("v_mul_u32_u24 v22, 96, v2")
        e(f"v_lshl_add_u32 v{V_H0}, v20, 4, v22")
        e("v_and_b32 v3, 1, v20")
        e(f"v_lshl_add_u32 v{V_H1}, v3, 4, v22")
        e(f"s_lshl_b32 s{S_T0}, s{S_WAVE}, 6")
        e(f"v_lshl_add_u32 v{V_SW}, v1, 2, s{S_T0}")
        e("v_and_b32 v3, 7, v1")
        e(f"s_lshl_b32 s{S_T0}, s{S_TY}, 8")
        e(f"v_lshl_add_u32 v{V_SR}, v3, 5, s{S_T0}")
        e("s_waitcnt lgkmcnt(0)")
        e("s_mov_b32 exec_lo, 0")
        for i in range(4):
            e(f"v_mov_b32 v{B2 + 4 + i}, 0")
        e("s_mov_b64 exec, -1")

        e(f"s_cmp_lt_u32 s{S_WAVE}, 3")
        e("s_cbranch_scc1 L_mlp1")
        e(f"s_cmp_ge_u32 s2, {NRED}")
        e("s_cbranch_scc1 L_join")
        e(f"s_cmp_eq_u32 s{S_WAVE}, 3")
        e("s_cbranch_scc1 L_rfinal")

        e("v_lshrrev_b32 v2, 3, v1")
        e("v_mul_u32_u24 v2, 1536, v2")
        e("v_and_b32 v3, 7, v1")
        e("v_lshl_add_u32 v2, v3, 4, v2")
        e(f"s_sub_u32 s{S_T0}, s{S_WAVE}, 4")
        e(f"s_lshl_b32 s{S_T1}, s{S_T0}, 7")
        e(f"v_lshl_add_u32 v3, v3, 4, s{S_T1}")
        e("v_lshl_add_u32 v3, v20, 2, v3")
        e(f"s_mul_i32 s{S_T0}, s{S_T0}, {32 * 1536}")
        e(f"s_lshl_b32 s{S_T1}, s2, 7")
        e(f"s_add_u32 s24, s{S_T0}, s{S_T1}")
        for k in range(1, 4):
            e(f"s_add_u32 s{24 + k}, s24, {k * 8 * 1536}")
        e(f"s_mov_b32 s{S_CNT}, {SPIN}")
        e("L_rpoll:")
        for k in range(4):
            e(f"buffer_load_dwordx4 v[{4 + 4 * k}:{7 + 4 * k}], v2, s[{S_WS}:{S_WS + 3}], s{24 + k} offen sc1")
        e(f"s_sub_u32 s{S_CNT}, s{S_CNT}, 1")
        e("s_cbranch_scc1 L_rgot")
        e("s_waitcnt vmcnt(2)")
        e("v_max3_u32 v21, v4, v5, v6")
        e("v_max3_u32 v22, v7, v8, v9")
        e("v_max3_u32 v21, v21, v10, v11")
        e("s_waitcnt vmcnt(1)")
        e("v_max3_u32 v22, v22, v12, v13")
        e("v_max3_u32 v21, v21, v14, v15")
        e("s_waitcnt vmcnt(0)")
        e("v_max3_u32 v22, v22, v16, v17")
        e("v_max3_u32 v21, v21, v18, v19")
        e("v_max_u32 v21, v21, v22")
        e("v_cmp_eq_u32 vcc, -1, v21")
        e("s_cbranch_vccnz L_rpoll")
        e("L_rgot:")
        e("s_waitcnt vmcnt(0)")
        self.stamp(9)
        e("s_cmp_ge_u32 s2, 6")
        e("s_cbranch_scc1 L_rmax")
        for kind in (0, 1):
            op = "v_add_f32" if kind == 0 else "v_max_f32"
            if kind == 1:
                e("L_rmax:")
                for i in range(4):
                    e(f"v_max3_f32 v{4 + i}, v{4 + i}, v{8 + i}, v{12 + i}")
                for i in (0, 2, 1, 3):
                    e(f"v_max_f32 v{4 + i}, v{4 + i}, v{16 + i}")
            else:
                e("v_pk_add_f32 v[4:5], v[4:5], v[8:9]")
                e("v_pk_add_f32 v[6:7], v[6:7], v[10:11]")
                e("v_pk_add_f32 v[12:13], v[12:13], v[16:17]")
                e("v_pk_add_f32 v[14:15], v[14:15], v[18:19]")
                e("v_pk_add_f32 v[4:5], v[4:5], v[12:13]")
                e("v_pk_add_f32 v[6:7], v[6:7], v[14:15]")
            e("s_nop 1")
            e("v_permlane32_swap_b32 v4, v6")
            e("v_permlane32_swap_b32 v5, v7")
            e(f"{op} v4, v4, v6")
            e(f"{op} v5, v5, v7")
            e("s_nop 1")
            e("v_permlane16_swap_b32 v4, v5")
            e(f"{op} v4, v4, v5")
            e("s_nop 1")
            e(f"{op}_dpp v4, v4, v4 row_ror:8 row_mask:0xf bank_mask:0xf")
            e(f"ds_write_b32 v3, v4 offset:{L_R2}")
            e("s_waitcnt lgkmcnt(0)")
            e("s_barrier")
            e("s_branch L_join")

        e("L_rfinal:")
        e("v_and_b32 v2, 15, v1")
        e("v_lshlrev_b32 v3, 3, v2")
        e("v_lshl_add_u32 v3, v20, 8, v3")
        e("v_lshlrev_b32 v2, 2, v2")
        e(f"s_lshl_b32 s{S_T1}, s2, 7")
        e(f"s_add_u32 s{S_T1}, s{S_T1}, {WS_F}")
        e("s_cmp_ge_u32 s2, 6")
        e("s_cbranch_scc1 L_rfmax")
        for kind in (0, 1):
            op = "v_add_f32" if kind == 0 else "v_max_f32"
            if kind == 1:
                e("L_rfmax:")
            e("s_barrier")
            e(f"ds_read_b64 v[4:5], v3 offset:{L_R2}")
            e(f"ds_read_b64 v[6:7], v3 offset:{L_R2 + 128}")
            e("s_waitcnt lgkmcnt(0)")
            e(f"{op} v4, v4, v6")
            e(f"{op} v5, v5, v7")
            e("s_nop 1")
            e("v_permlane32_swap_b32 v4, v5")
            e(f"{op} v4, v4, v5")
            e("v_mov_b32 v5, v4")
            e("s_nop 1")
            e("v_permlane16_swap_b32 v4, v5")
            e(f"{op} v4, v4, v5                        ; lanes <32: c0, lanes >=32: c1")
            if kind == 0:
                e("v_mul_f32 v4, 0x36800000, v4              ; 1/262144")
            e("v_mov_b32 v5, v4")
            e("s_nop 1")
            e("v_permlane32_swap_b32 v4, v5")
            e("v_cvt_pk_bf16_f32 v4, v4, v5")
            e("s_mov_b64 exec, 0xffff")
            e("v_min_u32 v4, -2, v4")
            e(f"buffer_store_dword v4, v2, s[{S_WS}:{S_WS + 3}], s{S_T1} offen sc1")
            self.stamp(9)
            e("s_mov_b64 exec, -1")
            e("s_branch L_join")

        e("L_mlp1:")
        SP0 = 136
        A1 = 144
        B1 = [4, 8, 12, 16, 136, 140]
        e(f"s_lshl_b32 s{S_T0}, s{S_WAVE}, 13")
        e(f"v_lshl_add_u32 v{V_AT}, v1, 4, s{S_T0}")
        for k in range(8):
            e(f"ds_write_b128 v{V_AT}, v[{SP0 + 4 * k}:{SP0 + 4 * k + 3}] offset:{L_SPILL + 1024 * k}")
        e("v_mov_b32 v3, 96")
        e("v_mad_u32_u24 v2, v21, v3, v23")
        e("s_waitcnt lgkmcnt(0)")
        for s in range(6):
            for h in range(2):
                r = A1 + 4 * s + 2 * h
                e(f"ds_read_b64_tr_b16 v[{r}:{r + 1}], v2 offset:{L_W1 + s * 3072 + h * 384}")
        e(f"v_lshl_add_u32 v3, v20, 3, v22")
        e(f"v_add_u32 v3, s{S_T2}, v3")
        e("v_lshlrev_b32 v2, 3, v22")
        e("v_lshl_add_u32 v2, v20, 4, v2")
        for b in B1:
            for i in range(4):
                e(f"v_mov_b32 v{b + i}, 0")
        e(f"s_mov_b32 s{S_T1}, {WS_F}")
        e(f"s_mov_b32 s{S_CNT}, {SPIN}")
        e("s_waitcnt lgkmcnt(0)")
        e(f"s_cmp_ge_u32 s2, {NRED}")
        e("s_cbranch_scc1 L_fpoll")
        e("s_barrier")
        e("L_fpoll:")
        e("s_mov_b32 exec_lo, 0x00030003")
        e("s_mov_b32 exec_hi, 0x00030003")
        for s in range(6):
            e(f"buffer_load_dwordx4 v[{B1[s]}:{B1[s] + 3}], v2, s[{S_WS}:{S_WS + 3}], s{S_T1} offen offset:{128 * s} sc1")
        e("s_mov_b64 exec, -1")
        e(f"s_sub_u32 s{S_CNT}, s{S_CNT}, 1")
        for s in range(6):
            c = "0" if s == 0 else "v[20:23]"
            b = B1[s]
            e(f"s_waitcnt vmcnt({5 - s})")
            e(f"v_mfma_f32_16x16x32_bf16 v[20:23], v[{A1 + 4 * s}:{A1 + 4 * s + 3}], v[{b}:{b + 3}], {c}")
            if s == 0:
                e(f"v_max3_u32 v1, v{b}, v{b + 1}, v{b + 2}")
                e(f"v_max_u32 v1, v1, v{b + 3}")
            else:
                e(f"v_max3_u32 v1, v1, v{b}, v{b + 1}")
                e(f"v_max3_u32 v1, v1, v{b + 2}, v{b + 3}")
        e("v_cmp_eq_u32 vcc, -1, v1")
        e("s_cbranch_scc1 L_fgot")
        e("s_cbranch_vccnz L_fpoll")
        e("L_fgot:")
        self.stamp(5)
        e("s_mov_b32 exec_lo, 0x00030003")
        e("s_mov_b32 exec_hi, 0x00030003")
        e("s_nop 1")
        for i in range(4):
            e(f"v_maximum3_f32 v{20 + i}, v{20 + i}, 0, 0")
        e("v_cvt_pk_bf16_f32 v20, v20, v21")
        e("v_cvt_pk_bf16_f32 v21, v22, v23")
        e(f"ds_write_b64 v3, v[20:21] offset:{L_H}")
        e("s_mov_b64 exec, -1")
        e("s_waitcnt lgkmcnt(0)")

        e("L_join:")
        e("s_barrier")
        self.stamp(6)
        e(f"ds_read_b128 v[4:7], v{V_H0} offset:{L_H}")
        e(f"ds_read_b128 v[8:11], v{V_H1} offset:{L_H + 64}")
        e("s_waitcnt lgkmcnt(1)")
        e(f"v_mfma_f32_16x16x32_bf16 v[12:15], v[4:7], v[{B2}:{B2 + 3}], 0")
        e("s_waitcnt lgkmcnt(0)")
        e(f"v_mfma_f32_16x16x32_bf16 v[12:15], v[8:11], v[{B2 + 4}:{B2 + 7}], v[12:15]")
        e("s_mov_b64 exec, 0xffff")
        e("s_nop 6")
        e("v_cvt_pk_bf16_f32 v12, v12, v13")
        e("v_lshlrev_b32 v13, 16, v12")
        e(f"v_and_b32 v12, s{S_MASK}, v12")
        e("v_add_f32 v12, v12, v13")
        e("v_cvt_pk_bf16_f32 v12, v12, v12")
        e("v_lshlrev_b32 v12, 16, v12")
        e("v_mul_f32 v12, 0xbfb8aa3b, v12            ; -log2(e)")
        e("v_exp_f32 v12, v12")
        e("s_nop 0")
        e("v_add_f32 v12, 1.0, v12")
        e("v_rcp_f32 v12, v12")
        e("s_nop 0")
        e("v_cvt_pk_bf16_f32 v12, v12, v12")
        e("v_lshlrev_b32 v12, 16, v12")
        e(f"ds_write_b32 v{V_SW}, v12 offset:{L_S}")
        e("s_mov_b64 exec, -1")
        e("s_waitcnt lgkmcnt(0)")
        e("s_barrier")
        e(f"ds_read_b128 v[4:7], v{V_SR} offset:{L_S}")
        e(f"ds_read_b128 v[8:11], v{V_SR} offset:{L_S + 16}")

        for j in range(32):
            a = D0 + 4 * j
            t0 = 12 + 8 * (j & 1)
            if j == 24:
                e("s_waitcnt lgkmcnt(0)")
            for i in range(4):
                t = t0 + 2 * i
                e(f"v_lshlrev_b32 v{t}, 16, v{a + i}")
                e(f"v_and_b32 v{t + 1}, s{S_MASK}, v{a + i}")
            if j == 0:
                e("s_waitcnt lgkmcnt(0)")
                self.stamp(7)
            for i in range(4):
                t = t0 + 2 * i
                e(f"v_pk_mul_f32 v[{t}:{t + 1}], v[{t}:{t + 1}], v[{4 + 2 * i}:{5 + 2 * i}]")
            for i in range(4):
                t = t0 + 2 * i
                e(f"v_cvt_pk_bf16_f32 v{a + i}, v{t}, v{t + 1}")
            self.mem(j, lambda va: e(f"buffer_store_dwordx4 v[{a}:{a + 3}], {va}, s[{S_OUT}:{S_OUT + 3}], s{S_OFF} offen{stf}"))
            if j == 1:
                e(f"s_cmp_ge_u32 s{S_WAVE}, 3")
                e("s_cbranch_scc1 L_norestore")
                for k in range(8):
                    e(f"ds_read_b128 v[{SP0 + 4 * k}:{SP0 + 4 * k + 3}], v{V_AT} offset:{L_SPILL + 1024 * k}")
                e("L_norestore:")
        if o.stamps:
            self.stamp(8)
            e("s_waitcnt vmcnt(0)")
            self.stamp(10)
            e("s_getreg_b32 s74, hwreg(HW_REG_XCC_ID)")
            e("s_getreg_b32 s75, hwreg(HW_REG_HW_ID)")
            e("s_waitcnt lgkmcnt(0)")
            e("v_mov_b32 v2, 0")
            for i in range(11):
                e(f"v_writelane_b32 v2, s{S_STAMP + 2 * i}, {i}")
            e("v_writelane_b32 v2, s74, 14")
            e("v_writelane_b32 v2, s75, 15")
            e(f"s_mul_i32 s{S_T0}, s2, 12")
            e(f"s_add_u32 s{S_T0}, s{S_T0}, s{S_WAVE}")
            e(f"s_lshl_b32 s{S_T0}, s{S_T0}, 6")
            e(f"s_add_u32 s{S_T0}, s{S_T0}, {WS_STAMP}")
            e("v_mbcnt_lo_u32_b32 v3, -1, 0")
            e("v_lshlrev_b32 v3, 2, v3")
            e("s_mov_b64 exec, 0xffff")
            e(f"buffer_store_dword v2, v3, s[{S_WS}:{S_WS + 3}], s{S_T0} offen")
        if o.probe:
            idx, K = [int(v) for v in o.probe.split(",")]
            e("s_cmp_lg_u32 s2, 0")
            e("s_cbranch_scc1 L_end")
            e(f"s_cmp_lg_u32 s{S_WAVE}, 0")
            e("s_cbranch_scc1 L_end")
            if idx < 0:
                e(f"s_mov_b32 s76, {K}")
            else:
                e(f"s_sub_u32 s76, s{S_STAMP + 2 * idx}, s{S_STAMP}")
                e(f"s_mul_i32 s76, s76, {K}")
            e("s_min_u32 s76, s76, 200000")
            e("L_probe:")
            e("s_memrealtime s[78:79]")
            e("s_waitcnt lgkmcnt(0)")
            e(f"s_sub_u32 s78, s78, s{S_STAMP}")
            e("s_cmp_lt_u32 s78, s76")
            e("s_cbranch_scc1 L_probe")
        e("L_end:")
        e("s_endpgm")

    def text(self):
        out = HEADER
        out += f"; @launch grid=({NWG},1,1) block=(768,1,1) lds={L_TOTAL}\n"
        out += '.amdgcn_target "amdgcn-amd-amdhsa--gfx950"\n.text\n'
        out += f".globl {KNAME}\n.p2align 8\n.type {KNAME},@function\n{KNAME}:\n"
        out += "\n".join(self.lines) + "\n"
        out += f""".section .rodata,"a"
.p2align 6
.amdhsa_kernel {KNAME}
  .amdhsa_next_free_vgpr 168
  .amdhsa_next_free_sgpr 80
  .amdhsa_accum_offset 168
  .amdhsa_group_segment_fixed_size 0
  .amdhsa_kernarg_size 48
  .amdhsa_user_sgpr_count 2
  .amdhsa_user_sgpr_kernarg_segment_ptr 1
  .amdhsa_system_sgpr_workgroup_id_x 1
  .amdhsa_float_denorm_mode_32 3
.end_amdhsa_kernel
"""
        return out


def main():
    p = argparse.ArgumentParser()
    p.add_argument("-o", default="standalone__channel_attn_cbam__vision.s")
    p.add_argument("--ldflags", default="nt")
    p.add_argument("--stflags", default="")
    p.add_argument("--stamps", action="store_true")
    p.add_argument("--probe", default="")
    p.add_argument("--depth", type=int, default=8)
    p.add_argument("--ctl", action="store_true")
    o = p.parse_args()
    g = G(o)
    g.build()
    open(o.o, "w").write(g.text())


if __name__ == "__main__":
    main()
```

```python
import argparse

KNAME = "standalone__channel_attn_cbam__vision_kernel"

HEADER = """; Kernarg layout for this problem (48 bytes, ptrs only, base s[0:1]):
"""

X_BYTES = 100663296
NWG = 256
NRED = 12
MiB = 1 << 20

L_RED = 0
L_H = 6144
L_DEC = 6336
L_S = 6400
L_R2 = 7168
L_W1 = 8192
L_W2 = L_W1 + 18432
L_SPILL = L_W2 + 18432
L_TOTAL = L_SPILL + 3 * 8192

WS_P = 0
WS_F = 256 * 1536
WS_STAMP = 1 << 20
WS_USED = WS_F + 12 * 128

S_X, S_OUT, S_WS, S_DBG, S_W = 4, 8, 12, 16, 20
S_WAVE, S_TY, S_SUB, S_OFF, S_MASK, S_CNT, S_T0, S_T1 = 28, 29, 30, 31, 32, 33, 34, 35
S_BASE, S_PM, S_P, S_T2 = 48, 49, 50, 51
S_STAMP = 52
S_V = 24

D0 = 40
SPIN = 400000
V_A0, V_A1, V_D0, V_D1, V_AT = 0, 39, 38, 37, 36

NAGN = 6
SPANS = [(0, 0), (0, 1), (1, 0), (1, 1), (2, 0), (2, 1),
         (3, 0), (6, 0), (3, 1), (6, 1), (4, 0), (7, 0), (4, 1), (7, 1), (5, 0), (5, 1)]
W_CLEAR, W_PROBE, W_READ = 10, 11, 0
DBG_RES, DBG_TAL, DBG_CNT = 0, 128, 192
NVOTE_WG = 64


def mask(pred):
    return sum(1 << z for z, s in enumerate(SPANS) if pred(z, s))


class G:
    def __init__(self, o):
        self.o = o
        self.lines = []

    def e(self, s=""):
        self.lines.append(("    " + s) if s and not s.endswith(":") else s)

    def stamp(self, idx, vote=False):
        if self.o.vdiag and idx in (1, 2, 3, 6) and not vote:
            return
        if vote and not self.o.vdiag:
            return
        if self.o.stamps and not (self.o.trace and idx > 10):
            self.e(f"s_memrealtime s[{S_STAMP + 2 * idx}:{S_STAMP + 2 * idx + 1}]")

    def srd(self, d, lo, nbytes):
        e = self.e
        e(f"s_mov_b64 s[{d}:{d + 1}], s[{lo}:{lo + 1}]")
        e(f"s_mov_b32 s{d + 2}, {nbytes}")
        e(f"s_mov_b32 s{d + 3}, 0x20000")

    def span_off(self, z):
        return SPANS[z][0] * 12 * MiB + SPANS[z][1] * 49152

    def mem(self, j, fn):
        e = self.e
        z, u = j >> 1, j & 1
        if u == 0:
            e(f"s_bfe_u32 s{S_P}, s{S_PM}, {(1 << 16) | z}")
            if self.span_off(z):
                e(f"s_add_u32 s{S_OFF}, s{S_BASE}, {self.span_off(z)}")
            else:
                e(f"s_mov_b32 s{S_OFF}, s{S_BASE}")
        at = 2 + u
        e(f"v_mad_i32_i24 v{at}, v{(V_D0, V_D1)[u]}, s{S_P}, v{(V_A0, V_A1)[u]}")
        fn(f"v{at}")

    def trace(self, kind, n):
        if self.o.trace == kind:
            if n > 0:
                self.e("s_waitcnt lgkmcnt(0)")
                self.e(f"s_mov_b32 s{76 + n - 1}, s92")
            self.e("s_memrealtime s[92:93]")

    def build(self):
        o, e = self.o, self.e
        NRACE = o.nrace
        ldf = (" " + o.ldflags) if o.ldflags else ""
        stf = (" " + o.stflags) if o.stflags else ""

        self.stamp(0)
        e("s_load_dwordx2 s[4:5], s[0:1], 0          ; x")
        e("s_load_dwordx4 s[36:39], s[0:1], 8        ; w1, w2")
        e("s_load_dwordx2 s[8:9], s[0:1], 24         ; out")
        e("s_load_dwordx4 s[44:47], s[0:1], 32")
        e("s_cmp_ge_u32 s2, %d" % NWG)
        e("s_cbranch_scc1 L_end")
        e("v_readfirstlane_b32 s%d, v0" % S_WAVE)
        e("v_and_b32 v1, 63, v0                      ; lane")
        e("v_lshrrev_b32 v2, 3, v1")
        e("v_mul_u32_u24 v2, 384, v2")
        e("v_and_b32 v3, 7, v1")
        e("v_lshl_add_u32 v0, v3, 4, v2")
        e(f"s_lshr_b32 s{S_WAVE}, s{S_WAVE}, 6")
        e(f"s_mul_i32 s{S_SUB}, s{S_WAVE}, 43")
        e(f"s_lshr_b32 s{S_SUB}, s{S_SUB}, 7")
        e(f"s_mul_i32 s{S_TY}, s{S_SUB}, 3")
        e(f"s_sub_u32 s{S_TY}, s{S_WAVE}, s{S_TY}        ; ty = wave % 3")
        e(f"s_mul_i32 s{S_T0}, s{S_SUB}, 3072")
        e(f"s_lshl_b32 s{S_T1}, s{S_TY}, 7")
        e(f"s_add_u32 s{S_T0}, s{S_T0}, s{S_T1}")
        e(f"v_add_u32 v{V_A0}, s{S_T0}, v0")
        e(f"v_add_u32 v{V_A1}, 12288, v{V_A0}")
        e(f"s_movk_i32 s{S_T2}, 24576")
        for a, d in ((V_A0, V_D0), (V_A1, V_D1)):
            e(f"v_bfe_u32 v2, v{a}, 13, 1                 ; 1 identifies k' = 1")
            e(f"v_mad_u32_u24 v{a}, v2, s{S_T2}, v{a}")
            e(f"v_mad_i32_i24 v2, v2, -2, 1")
            e(f"v_mul_i32_i24 v{d}, s{S_T2}, v2")
        e(f"s_lshr_b32 s{S_T0}, s2, 1")
        e(f"s_and_b32 s{S_T0}, s{S_T0}, 0x7c")
        e(f"s_and_b32 s{S_T1}, s2, 3")
        e(f"s_add_u32 s{S_T0}, s{S_T0}, s{S_T1}")
        e(f"s_mul_i32 s{S_BASE}, s{S_T0}, 98304")
        h1 = mask(lambda z, s: s[1] == 1)
        alt = mask(lambda z, s: z < NAGN and s[1] == 1)
        e(f"s_bfe_i32 s{S_PM}, s2, 0x10002              ; -side")
        e(f"s_bfe_u32 s{S_T0}, s2, 0x10003")
        e(f"s_lshr_b32 s{S_T0}, {alt}, s{S_T0}")
        e(f"s_xor_b32 s{S_PM}, s{S_PM}, s{S_T0}")
        e(f"s_add_u32 s{S_T0}, s{S_BASE}, s{S_T2}")
        e(f"s_bfe_i32 s{S_T1}, s{S_T0}, 0x10015")
        e(f"s_xor_b32 s{S_PM}, s{S_PM}, s{S_T1}")
        e(f"s_add_u32 s{S_T2}, s{S_T0}, 49152")
        e(f"s_xor_b32 s{S_T0}, s{S_T0}, s{S_T2}")
        e(f"s_bfe_i32 s{S_T0}, s{S_T0}, 0x10015")
        e(f"s_and_b32 s{S_T0}, s{S_T0}, {h1}")
        e(f"s_xor_b32 s{S_PM}, s{S_PM}, s{S_T0}")
        e(f"s_mov_b32 s{S_X + 2}, {X_BYTES}")
        e(f"s_mov_b32 s{S_X + 3}, 0x20000")
        e(f"s_mov_b32 s{S_OUT + 2}, s{S_X + 2}")
        e(f"s_mov_b32 s{S_OUT + 3}, s{S_X + 3}")
        e(f"s_mov_b32 s{S_WS + 2}, {(2 << 20) if o.stamps else WS_USED}")
        e(f"s_mov_b32 s{S_WS + 3}, s{S_X + 3}")
        e(f"s_movk_i32 s{S_DBG + 2}, 256")
        e(f"s_mov_b32 s{S_DBG + 3}, s{S_X + 3}")
        e(f"s_cmp_ge_u32 s{S_WAVE}, {W_CLEAR}")
        e("s_waitcnt lgkmcnt(0)")
        e(f"s_mov_b64 s[{S_WS}:{S_WS + 1}], s[46:47]")
        e(f"s_mov_b64 s[{S_DBG}:{S_DBG + 1}], s[44:45]")
        e("s_cbranch_scc1 L_special")
        e("L_stream:")

        SUM, MAX, T = 4, 12, 20
        DEPTH = o.depth
        assert DEPTH >= 2 * NAGN
        seq = []

        def issue(j):
            if j == 2 * NAGN:
                m1 = mask(lambda z, s: z >= NAGN and s[0] in (3, 4))
                z50 = SPANS.index((5, 0))
                z51 = SPANS.index((5, 1))
                dec = mask(lambda z, s: z >= NAGN)
                e(f"s_cmp_lt_u32 s{S_BASE}, {4 * MiB - 24576}")
                e(f"s_cselect_b32 s{S_T0}, {1 << z50}, 0")
                e(f"s_or_b32 s{S_T0}, s{S_T0}, {m1}")
                e(f"s_cmp_lt_u32 s{S_BASE}, {4 * MiB - 24576 - 49152}")
                e(f"s_cselect_b32 s{S_T1}, {1 << z51}, 0")
                e(f"s_or_b32 s{S_T0}, s{S_T0}, s{S_T1}            ; third 1")
                e(f"s_xor_b32 s{S_T1}, s{S_T0}, {dec}           ; third 2")
                per, pat = o.opp
                rep = sum(((pat >> (i % per)) & 1) << i for i in range(32))
                e(f"s_lshr_b32 s{S_P}, s2, 3")
                e(f"s_mul_i32 s{S_T2}, s{S_P}, {-(-256 // per)}")
                e(f"s_lshr_b32 s{S_T2}, s{S_T2}, 8")
                e(f"s_mul_i32 s{S_T2}, s{S_T2}, {per}")
                e(f"s_sub_u32 s{S_P}, s{S_P}, s{S_T2}             ; (b >> 3) % {per}")
                e(f"s_lshr_b32 s{S_P}, {rep}, s{S_P}")
                e(f"s_mov_b32 s{S_MASK}, 0xffff0000")
                e(f"s_cmp_lg_u32 s{S_WAVE}, {W_CLEAR}")
                self.stamp(11)
                e("s_barrier")
                e(f"s_load_dword s{S_T2}, s[44:45], {DBG_RES}")
                e("s_cbranch_scc1 L_nocnt")
                e("v_mov_b32 v3, 1")
                e("s_mov_b64 exec, 1")
                e(f"buffer_atomic_add v3, off, s[{S_DBG}:{S_DBG + 3}], 0 offset:{DBG_CNT}")
                e("s_mov_b64 exec, -1")
                e("L_nocnt:")
                e("s_waitcnt lgkmcnt(0)")
                e(f"s_cmp_eq_u32 s{S_T2}, 0")
                e("s_cbranch_scc1 L_dpoll")
                e("L_decided:")
                for i in range(4):
                    e(f"s_bitcmp1_b32 s{S_T2}, {7 + 6 * i + 5}")
                    e(f"s_cselect_b32 s{S_V + i}, s{(S_T0, S_T1)[i >> 1]}, 0")
                e(f"s_or_b32 s{S_V}, s{S_V}, s{S_V + 2}")
                e(f"s_or_b32 s{S_V + 1}, s{S_V + 1}, s{S_V + 3}")
                e(f"s_xor_b32 s{S_V}, s{S_V}, s{S_V + 1}")
                if o.nodec:
                    e(f"s_mov_b32 s{S_V}, {dec}")
                e(f"s_and_b32 s{S_V}, s{S_V}, s{S_P}")
                e(f"s_xor_b32 s{S_V}, s{S_V}, s{S_V + 1}")
                e(f"s_xor_b32 s{S_PM}, s{S_PM}, s{S_V}")
                self.stamp(12)
            if j == 30:
                e(f"s_cmp_lg_u32 s{S_WAVE}, {W_CLEAR}")
                e("s_cbranch_scc1 L_nosmp")
                e(f"buffer_load_dword v{V_AT}, off, s[{S_DBG}:{S_DBG + 3}], 0 offset:{DBG_CNT} sc1")
                e("L_nosmp:")
            r = D0 + 4 * j
            self.mem(j, lambda va: e(f"buffer_load_dwordx4 v[{r}:{r + 3}], {va}, s[{S_X}:{S_X + 3}], s{S_OFF} offen{ldf}"))
            seq.append(j)
            if j & 1:
                self.trace("ld", j >> 1)

        def wait_for(j):
            e(f"s_waitcnt vmcnt({len(seq) - 1 - seq.index(j)})")

        nxt = 0
        for jj in range(16):
            while nxt < 32 and nxt < 2 * jj + DEPTH + 2:
                issue(nxt)
                nxt += 1
                if nxt == 32:
                    self.stamp(1)
            a, b = D0 + 8 * jj, D0 + 8 * jj + 4
            if jj == 15:
                e("v_and_b32 v2, 7, v1")
                e("v_lshlrev_b32 v2, 5, v2                   ; (l&7)*32")
                e("v_lshrrev_b32 v3, 4, v1")
                e("v_lshl_add_u32 v2, v3, 3, v2              ; + (l>>4)*8")
                e("v_bfe_u32 v3, v1, 3, 1")
                e("v_mul_u32_u24 v3, 768, v3")
                e(f"s_mul_i32 s{S_T0}, s{S_SUB}, 1536")
                e(f"s_lshl_b32 s{S_T1}, s{S_TY}, 8")
                e(f"s_add_u32 s{S_T0}, s{S_T0}, s{S_T1}")
                e(f"v_add3_u32 v2, v2, v3, s{S_T0}")
                e(f"s_mul_i32 s{S_T0}, s{S_WAVE}, 768")
                e(f"v_lshl_add_u32 v3, v1, 4, s{S_T0}")
                e(f"s_mul_i32 s{S_T1}, s2, 1536")
                for r in (a, b):
                    wait_for((r - D0) // 4)
                    if r == b:
                        self.stamp(3)
                    for i in range(4):
                        t = T + 2 * i
                        e(f"v_lshlrev_b32 v{t}, 16, v{r + i}")
                        e(f"v_and_b32 v{t + 1}, s{S_MASK}, v{r + i}")
                    for i in range(8):
                        e(f"v_max_f32 v{MAX + i}, v{MAX + i}, v{T + i}")
                    for i in range(4):
                        t, s = T + 2 * i, SUM + 2 * i
                        e(f"v_pk_add_f32 v[{s}:{s + 1}], v[{s}:{s + 1}], v[{t}:{t + 1}]")
                continue
            wait_for(2 * jj + 1)
            if jj == 0:
                self.stamp(2)
            for i in range(4):
                t = T + 4 * i
                e(f"v_lshlrev_b32 v{t}, 16, v{a + i}")
                e(f"v_and_b32 v{t + 1}, s{S_MASK}, v{a + i}")
                e(f"v_lshlrev_b32 v{t + 2}, 16, v{b + i}")
                e(f"v_and_b32 v{t + 3}, s{S_MASK}, v{b + i}")
            for i in range(4):
                t = T + 4 * i
                s, m = SUM + 2 * i, MAX + 2 * i
                if jj == 0:
                    e(f"v_max_f32 v{m}, v{t}, v{t + 2}")
                    e(f"v_max_f32 v{m + 1}, v{t + 1}, v{t + 3}")
                    e(f"v_pk_add_f32 v[{s}:{s + 1}], v[{t}:{t + 1}], v[{t + 2}:{t + 3}]")
                else:
                    e(f"v_max3_f32 v{m}, v{m}, v{t}, v{t + 2}")
                    e(f"v_max3_f32 v{m + 1}, v{m + 1}, v{t + 1}, v{t + 3}")
                    e(f"v_pk_add_f32 v[{t}:{t + 1}], v[{t}:{t + 1}], v[{t + 2}:{t + 3}]")
            if jj:
                for i in range(4):
                    t = T + 4 * i
                    s = SUM + 2 * i
                    e(f"v_pk_add_f32 v[{s}:{s + 1}], v[{s}:{s + 1}], v[{t}:{t + 1}]")

        for base in (MAX, SUM):
            for i in range(4):
                e(f"v_permlane32_swap_b32 v{base + i}, v{base + 4 + i}")
        for i in range(4):
            e(f"v_max_f32 v{MAX + i}, v{MAX + i}, v{MAX + 4 + i}")
        for i in range(4):
            e(f"v_add_f32 v{SUM + i}, v{SUM + i}, v{SUM + 4 + i}")
        for i in range(2):
            e(f"v_permlane16_swap_b32 v{MAX + i}, v{MAX + 2 + i}")
        for i in range(2):
            e(f"v_permlane16_swap_b32 v{SUM + i}, v{SUM + 2 + i}")
        for i in range(2):
            e(f"v_add_f32 v{SUM + i}, v{SUM + i}, v{SUM + 2 + i}")
        for i in range(2):
            e(f"v_max_f32 v{MAX + i}, v{MAX + i}, v{MAX + 2 + i}")
        e(f"s_cmp_eq_u32 s{S_WAVE}, {W_CLEAR}")
        for i in range(2):
            e(f"v_add_f32_dpp v{SUM + i}, v{SUM + i}, v{SUM + i} row_ror:8 row_mask:0xf bank_mask:0x3")
        for i in range(2):
            e(f"v_max_f32_dpp v{SUM + i}, v{MAX + i}, v{MAX + i} row_ror:8 row_mask:0xf bank_mask:0xc")
        e(f"ds_write_b64 v2, v[{SUM}:{SUM + 1}] offset:{L_RED}")
        e("s_cbranch_scc1 L_cntchk")
        e("L_cntok:")
        e(f"s_cmp_ge_u32 s{S_WAVE}, 2")
        e("s_waitcnt lgkmcnt(0)")
        e("s_barrier")
        self.stamp(4)
        e("s_cbranch_scc1 L_nopub")

        e("s_mov_b32 exec_hi, 0xffff")
        for k in range(4):
            e(f"ds_read_b128 v[{4 + 4 * k}:{7 + 4 * k}], v3 offset:{L_RED + 1536 * k}")
        e(f"s_cmp_eq_u32 s{S_WAVE}, 0")
        e(f"s_cselect_b64 s[{S_W}:{S_W + 1}], s[36:37], s[38:39]")
        e("s_cbranch_scc0 L_pubmax")
        e("s_waitcnt lgkmcnt(2)")
        e("v_pk_add_f32 v[4:5], v[4:5], v[8:9]")
        e("v_pk_add_f32 v[6:7], v[6:7], v[10:11]")
        e("s_waitcnt lgkmcnt(0)")
        e("v_pk_add_f32 v[12:13], v[12:13], v[16:17]")
        e("v_pk_add_f32 v[14:15], v[14:15], v[18:19]")
        e("v_pk_add_f32 v[4:5], v[4:5], v[12:13]")
        e("v_pk_add_f32 v[6:7], v[6:7], v[14:15]")
        e("s_branch L_pub")
        e("L_pubmax:")
        e("s_waitcnt lgkmcnt(1)")
        for i in range(4):
            e(f"v_max3_f32 v{4 + i}, v{4 + i}, v{8 + i}, v{12 + i}")
        e("s_waitcnt lgkmcnt(0)")
        for i in range(4):
            e(f"v_max_f32 v{4 + i}, v{4 + i}, v{16 + i}")
        e("L_pub:")
        for i in range(4):
            e(f"v_min_u32 v{4 + i}, -2, v{4 + i}")
        e(f"buffer_store_dwordx4 v[4:7], v3, s[{S_WS}:{S_WS + 3}], s{S_T1} offen sc1")
        e("s_mov_b64 exec, -1")
        e(f"s_movk_i32 s{S_W + 2}, 18432")
        e(f"s_mov_b32 s{S_W + 3}, 0x20000")
        e(f"s_mul_i32 s{S_T0}, s{S_WAVE}, 18432")
        e(f"s_add_u32 s{S_T0}, s{S_T0}, {L_W1}")
        e(f"s_mov_b32 s{S_T1}, 0")
        e("v_lshlrev_b32 v2, 4, v1")
        e("L_wloop:")
        e(f"s_add_u32 m0, s{S_T0}, s{S_T1}")
        e(f"s_cmp_lt_u32 s{S_T1}, {18432 - 3072}")
        for k in range(3):
            e(f"buffer_load_dwordx4 v2, s[{S_W}:{S_W + 3}], s{S_T1} offen offset:{k * 1024} lds")
        e(f"s_cbranch_scc0 L_nopub")
        e(f"s_addk_i32 s{S_T1}, 3072")
        e("s_branch L_wloop")
        e("L_nopub:")

        B2 = 28
        V_H0, V_H1, V_SW, V_SR = 24, 25, 26, 27
        SP0 = 136
        A1 = 144
        B1 = [4, 8, 12, 16, 136, 140]
        e("v_lshrrev_b32 v20, 4, v1                  ; q")
        e(f"s_cmp_lt_u32 s{S_WAVE}, 3")
        e("s_cbranch_scc1 L_spill")
        e(f"s_cmp_ge_u32 s2, {NRED}")
        e("s_cbranch_scc1 L_barw")
        e(f"s_cmp_eq_u32 s{S_WAVE}, 3")
        e("s_cbranch_scc1 L_rfinal")

        e("v_lshrrev_b32 v2, 3, v1")
        e("v_mul_u32_u24 v2, 1536, v2")
        e("v_and_b32 v3, 7, v1")
        e("v_lshl_add_u32 v2, v3, 4, v2")
        e(f"s_sub_u32 s{S_T0}, s{S_WAVE}, 4")
        e(f"s_lshl_b32 s{S_T1}, s{S_T0}, 7")
        e(f"v_lshl_add_u32 v3, v3, 4, s{S_T1}")
        e("v_lshl_add_u32 v3, v20, 2, v3")
        e(f"s_mul_i32 s{S_T0}, s{S_T0}, {32 * 1536}")
        e(f"s_lshl_b32 s{S_T1}, s2, 7")
        e(f"s_add_u32 s{S_V}, s{S_T0}, s{S_T1}")
        for k in range(1, 4):
            e(f"s_add_u32 s{S_V + k}, s{S_V}, {k * 8 * 1536}")
        e(f"s_mov_b32 s{S_CNT}, {SPIN}")
        e("L_rpoll:")
        for k in range(4):
            e(f"buffer_load_dwordx4 v[{4 + 4 * k}:{7 + 4 * k}], v2, s[{S_WS}:{S_WS + 3}], s{S_V + k} offen {o.p1flags}")
        e(f"s_sub_u32 s{S_CNT}, s{S_CNT}, 1")
        e("s_cbranch_scc1 L_rgot")
        e("s_waitcnt vmcnt(2)")
        e("v_max3_u32 v21, v4, v5, v6")
        e("v_max3_u32 v22, v7, v8, v9")
        e("v_max3_u32 v21, v21, v10, v11")
        e("s_waitcnt vmcnt(1)")
        e("v_max3_u32 v22, v22, v12, v13")
        e("v_max3_u32 v21, v21, v14, v15")
        e("s_waitcnt vmcnt(0)")
        e("v_max3_u32 v22, v22, v16, v17")
        e("v_max3_u32 v21, v21, v18, v19")
        e("v_max_u32 v21, v21, v22")
        e("v_cmp_eq_u32 vcc, -1, v21")
        e("s_cbranch_vccnz L_rpoll")
        e("L_rgot:")
        e("s_waitcnt vmcnt(0)")
        self.stamp(9)
        e("s_cmp_ge_u32 s2, 6")
        e("s_cbranch_scc1 L_rmax")
        for kind in (0, 1):
            op = "v_add_f32" if kind == 0 else "v_max_f32"
            if kind == 1:
                e("L_rmax:")
                for i in range(4):
                    e(f"v_max3_f32 v{4 + i}, v{4 + i}, v{8 + i}, v{12 + i}")
                for i in (0, 2, 1, 3):
                    e(f"v_max_f32 v{4 + i}, v{4 + i}, v{16 + i}")
            else:
                e("v_pk_add_f32 v[4:5], v[4:5], v[8:9]")
                e("v_pk_add_f32 v[6:7], v[6:7], v[10:11]")
                e("v_pk_add_f32 v[12:13], v[12:13], v[16:17]")
                e("v_pk_add_f32 v[14:15], v[14:15], v[18:19]")
                e("v_pk_add_f32 v[4:5], v[4:5], v[12:13]")
                e("v_pk_add_f32 v[6:7], v[6:7], v[14:15]")
            e("s_nop 1")
            e("v_permlane32_swap_b32 v4, v6")
            e("v_permlane32_swap_b32 v5, v7")
            e(f"{op} v4, v4, v6")
            e(f"{op} v5, v5, v7")
            e("s_nop 1")
            e("v_permlane16_swap_b32 v4, v5")
            e(f"{op} v4, v4, v5")
            e("s_nop 1")
            e(f"{op}_dpp v4, v4, v4 row_ror:8 row_mask:0xf bank_mask:0xf")
            e(f"ds_write_b32 v3, v4 offset:{L_R2}")
            e("s_branch L_barw")

        e("L_rfinal:")
        e("v_and_b32 v2, 15, v1")
        e("v_lshlrev_b32 v3, 3, v2")
        e("v_lshl_add_u32 v3, v20, 8, v3")
        e("v_lshlrev_b32 v2, 2, v2")
        e(f"s_lshl_b32 s{S_T1}, s2, 7")
        e(f"s_add_u32 s{S_T1}, s{S_T1}, {WS_F}")
        e("s_cmp_ge_u32 s2, 6")
        e("s_cbranch_scc1 L_rfmax")
        for kind in (0, 1):
            op = "v_add_f32" if kind == 0 else "v_max_f32"
            if kind == 1:
                e("L_rfmax:")
            e("s_barrier")
            e(f"ds_read_b64 v[4:5], v3 offset:{L_R2}")
            e(f"ds_read_b64 v[6:7], v3 offset:{L_R2 + 128}")
            e("s_waitcnt lgkmcnt(0)")
            e(f"{op} v4, v4, v6")
            e(f"{op} v5, v5, v7")
            e("s_nop 1")
            e("v_permlane32_swap_b32 v4, v5")
            e(f"{op} v4, v4, v5")
            e("v_mov_b32 v5, v4")
            e("s_nop 1")
            e("v_permlane16_swap_b32 v4, v5")
            e(f"{op} v4, v4, v5                        ; lanes <32: c0, lanes >=32: c1")
            if kind == 0:
                e("v_mul_f32 v4, 0x36800000, v4              ; 1/262144")
            e("v_mov_b32 v5, v4")
            e("s_nop 1")
            e("v_permlane32_swap_b32 v4, v5")
            e("v_cvt_pk_bf16_f32 v4, v4, v5")
            e("s_mov_b64 exec, 0xffff")
            e("v_min_u32 v4, -2, v4")
            e(f"buffer_store_dword v4, v2, s[{S_WS}:{S_WS + 3}], s{S_T1} offen sc1")
            self.stamp(9)
            e("s_mov_b64 exec, -1")
            e("s_branch L_afterw")

        e("L_spill:")
        e(f"s_lshl_b32 s{S_T0}, s{S_WAVE}, 13")
        e(f"v_lshl_add_u32 v{V_AT}, v1, 4, s{S_T0}")
        for k in range(8):
            e(f"ds_write_b128 v{V_AT}, v[{SP0 + 4 * k}:{SP0 + 4 * k + 3}] offset:{L_SPILL + 1024 * k}")
        e("L_barw:")
        e("s_waitcnt vmcnt(0) lgkmcnt(0)")
        e("s_barrier")
        e("L_afterw:")
        e("v_bfe_u32 v3, v1, 2, 2")
        e("v_lshl_add_u32 v21, v20, 3, v3            ; row")
        e("v_and_b32 v22, 15, v21")
        e("v_and_b32 v3, 3, v1")
        e(f"s_lshl_b32 s{S_T2}, s{S_WAVE}, 5")
        e(f"v_lshl_add_u32 v23, v3, 3, s{S_T2}")
        e("v_mov_b32 v3, 384")
        e("v_mad_u32_u24 v2, v21, v3, v23")
        e("v_mad_u32_u24 v22, v22, v3, v23")
        e(f"ds_read_b64_tr_b16 v[{B2}:{B2 + 1}], v2 offset:{L_W2}")
        e(f"ds_read_b64_tr_b16 v[{B2 + 2}:{B2 + 3}], v2 offset:{L_W2 + 4 * 384}")
        e(f"ds_read_b64_tr_b16 v[{B2 + 4}:{B2 + 5}], v22 offset:{L_W2 + 32 * 384}")
        e(f"ds_read_b64_tr_b16 v[{B2 + 6}:{B2 + 7}], v22 offset:{L_W2 + 36 * 384}")
        e("v_and_b32 v2, 1, v1")
        e("v_mul_u32_u24 v22, 96, v2")
        e(f"v_lshl_add_u32 v{V_H0}, v20, 4, v22")
        e("v_and_b32 v3, 1, v20")
        e(f"v_lshl_add_u32 v{V_H1}, v3, 4, v22")
        e(f"s_lshl_b32 s{S_T0}, s{S_WAVE}, 6")
        e(f"v_lshl_add_u32 v{V_SW}, v1, 2, s{S_T0}")
        e("v_and_b32 v3, 7, v1")
        e(f"s_lshl_b32 s{S_T0}, s{S_TY}, 8")
        e(f"v_lshl_add_u32 v{V_SR}, v3, 5, s{S_T0}")
        e("s_waitcnt lgkmcnt(0)")
        e("s_mov_b32 exec_lo, 0")
        for i in range(4):
            e(f"v_mov_b32 v{B2 + 4 + i}, 0")
        e("s_mov_b64 exec, -1")
        e(f"s_cmp_ge_u32 s{S_WAVE}, 3")
        e("s_cbranch_scc1 L_join")

        e("v_mov_b32 v3, 96")
        e("v_mad_u32_u24 v2, v21, v3, v23")
        for s in range(6):
            for h in range(2):
                r = A1 + 4 * s + 2 * h
                e(f"ds_read_b64_tr_b16 v[{r}:{r + 1}], v2 offset:{L_W1 + s * 3072 + h * 384}")
        e(f"v_lshl_add_u32 v3, v20, 3, v22")
        e(f"v_add_u32 v3, s{S_T2}, v3")
        e("v_lshlrev_b32 v2, 3, v22")
        e("v_lshl_add_u32 v2, v20, 4, v2")
        for b in B1:
            for i in range(4):
                e(f"v_mov_b32 v{b + i}, 0")
        e(f"s_mov_b32 s{S_T1}, {WS_F}")
        e(f"s_mov_b32 s{S_CNT}, {SPIN}")
        e("s_waitcnt lgkmcnt(0)")
        e("L_fpoll:")
        e("s_mov_b32 exec_lo, 0x00030003")
        e("s_mov_b32 exec_hi, 0x00030003")
        for s in range(6):
            e(f"buffer_load_dwordx4 v[{B1[s]}:{B1[s] + 3}], v2, s[{S_WS}:{S_WS + 3}], s{S_T1} offen offset:{128 * s} sc1")
        e("s_mov_b64 exec, -1")
        e(f"s_sub_u32 s{S_CNT}, s{S_CNT}, 1")
        for s in range(6):
            c = "0" if s == 0 else "v[20:23]"
            b = B1[s]
            e(f"s_waitcnt vmcnt({5 - s})")
            e(f"v_mfma_f32_16x16x32_bf16 v[20:23], v[{A1 + 4 * s}:{A1 + 4 * s + 3}], v[{b}:{b + 3}], {c}")
            if s == 0:
                e(f"v_max3_u32 v1, v{b}, v{b + 1}, v{b + 2}")
                e(f"v_max_u32 v1, v1, v{b + 3}")
            else:
                e(f"v_max3_u32 v1, v1, v{b}, v{b + 1}")
                e(f"v_max3_u32 v1, v1, v{b + 2}, v{b + 3}")
        e("v_cmp_eq_u32 vcc, -1, v1")
        e("s_cbranch_scc1 L_fgot")
        e("s_cbranch_vccnz L_fpoll")
        e("L_fgot:")
        self.stamp(5)
        e("s_mov_b32 exec_lo, 0x00030003")
        e("s_mov_b32 exec_hi, 0x00030003")
        e("s_nop 1")
        for i in range(4):
            e(f"v_maximum3_f32 v{20 + i}, v{20 + i}, 0, 0")
        e("v_cvt_pk_bf16_f32 v20, v20, v21")
        e("v_cvt_pk_bf16_f32 v21, v22, v23")
        e(f"ds_write_b64 v3, v[20:21] offset:{L_H}")
        e("s_mov_b64 exec, -1")
        e("s_waitcnt lgkmcnt(0)")

        e("L_join:")
        e("s_barrier")
        self.stamp(6)
        e(f"ds_read_b128 v[4:7], v{V_H0} offset:{L_H}")
        e(f"ds_read_b128 v[8:11], v{V_H1} offset:{L_H + 64}")
        e("s_waitcnt lgkmcnt(1)")
        e(f"v_mfma_f32_16x16x32_bf16 v[12:15], v[4:7], v[{B2}:{B2 + 3}], 0")
        e("s_waitcnt lgkmcnt(0)")
        e(f"v_mfma_f32_16x16x32_bf16 v[12:15], v[8:11], v[{B2 + 4}:{B2 + 7}], v[12:15]")
        e("s_mov_b64 exec, 0xffff")
        e("s_nop 6")
        e("v_cvt_pk_bf16_f32 v12, v12, v13")
        e("v_lshlrev_b32 v13, 16, v12")
        e(f"v_and_b32 v12, s{S_MASK}, v12")
        e("v_add_f32 v12, v12, v13")
        e("v_cvt_pk_bf16_f32 v12, v12, v12")
        e("v_lshlrev_b32 v12, 16, v12")
        e("v_mul_f32 v12, 0xbfb8aa3b, v12            ; -log2(e)")
        e("v_exp_f32 v12, v12")
        e("s_nop 0")
        e("v_add_f32 v12, 1.0, v12")
        e("v_rcp_f32 v12, v12")
        e("s_nop 0")
        e("v_cvt_pk_bf16_f32 v12, v12, v12")
        e("v_lshlrev_b32 v12, 16, v12")
        e(f"ds_write_b32 v{V_SW}, v12 offset:{L_S}")
        e("s_mov_b64 exec, -1")
        e("s_waitcnt lgkmcnt(0)")
        e("s_barrier")
        e(f"ds_read_b128 v[4:7], v{V_SR} offset:{L_S}")
        e(f"ds_read_b128 v[8:11], v{V_SR} offset:{L_S + 16}")

        zorder = [int(v) for v in o.zorder.split(",")]
        assert sorted(zorder) == list(range(16))
        restored = False
        for n, j in enumerate([2 * z + u for z in zorder for u in (0, 1)]):
            a = D0 + 4 * j
            t0 = 12 + 8 * (n & 1)
            if a >= SP0 and not restored:
                assert n > 1
                e("s_waitcnt lgkmcnt(0)")
                restored = True
            for i in range(4):
                t = t0 + 2 * i
                e(f"v_lshlrev_b32 v{t}, 16, v{a + i}")
                e(f"v_and_b32 v{t + 1}, s{S_MASK}, v{a + i}")
            if n == 0:
                e("s_waitcnt lgkmcnt(0)")
                self.stamp(7)
            for i in range(4):
                t = t0 + 2 * i
                e(f"v_pk_mul_f32 v[{t}:{t + 1}], v[{t}:{t + 1}], v[{4 + 2 * i}:{5 + 2 * i}]")
            for i in range(4):
                t = t0 + 2 * i
                e(f"v_cvt_pk_bf16_f32 v{a + i}, v{t}, v{t + 1}")
            self.mem(j, lambda va: e(f"buffer_store_dwordx4 v[{a}:{a + 3}], {va}, s[{S_OUT}:{S_OUT + 3}], s{S_OFF} offen{stf}"))
            if n & 1:
                self.trace("st", n >> 1)
            if n == 1:
                e(f"s_cmp_ge_u32 s{S_WAVE}, 3")
                e("s_cbranch_scc1 L_norestore")
                for k in range(8):
                    e(f"ds_read_b128 v[{SP0 + 4 * k}:{SP0 + 4 * k + 3}], v{V_AT} offset:{L_SPILL + 1024 * k}")
                e("L_norestore:")
        if o.stamps:
            self.stamp(8)
            e("s_waitcnt vmcnt(0)")
            self.stamp(10)
            e("s_getreg_b32 s94, hwreg(HW_REG_XCC_ID)")
            e("s_getreg_b32 s95, hwreg(HW_REG_HW_ID)")
            e("s_waitcnt lgkmcnt(0)")
            e("v_mov_b32 v2, 0")
            for i in range(11 if o.trace else 13):
                e(f"v_writelane_b32 v2, s{S_STAMP + 2 * i}, {i}")
            e(f"v_writelane_b32 v2, s{S_PM}, 13")
            e("v_writelane_b32 v2, s94, 14")
            e("v_writelane_b32 v2, s95, 15")
            e(f"s_mul_i32 s{S_T0}, s2, 12")
            e(f"s_add_u32 s{S_T0}, s{S_T0}, s{S_WAVE}")
            e(f"s_lshl_b32 s{S_T0}, s{S_T0}, 6")
            e(f"s_add_u32 s{S_T0}, s{S_T0}, {WS_STAMP}")
            e("v_mbcnt_lo_u32_b32 v3, -1, 0")
            e("v_lshlrev_b32 v3, 2, v3")
            e("s_mov_b64 exec, 0xffff")
            e(f"buffer_store_dword v2, v3, s[{S_WS}:{S_WS + 3}], s{S_T0} offen")
            if o.trace:
                e("s_mov_b32 s91, s92")
                for i in range(16):
                    e(f"v_writelane_b32 v2, s{76 + i}, {i}")
                e(f"s_add_u32 s{S_T0}, s{S_T0}, {1 << 19}")
                e(f"buffer_store_dword v2, v3, s[{S_WS}:{S_WS + 3}], s{S_T0} offen")
        if o.probe:
            idx, K = [int(v) for v in o.probe.split(",")]
            e("s_cmp_lg_u32 s2, 0")
            e("s_cbranch_scc1 L_end")
            e(f"s_cmp_lg_u32 s{S_WAVE}, 0")
            e("s_cbranch_scc1 L_end")
            if idx < 0:
                e(f"s_mov_b32 s96, {K}")
            else:
                e(f"s_sub_u32 s96, s{S_STAMP + 2 * idx}, s{S_STAMP}")
                e(f"s_mul_i32 s96, s96, {K}")
            e("s_min_u32 s96, s96, 200000")
            e("L_probe:")
            e("s_memrealtime s[98:99]")
            e("s_waitcnt lgkmcnt(0)")
            e(f"s_sub_u32 s98, s98, s{S_STAMP}")
            e("s_cmp_lt_u32 s98, s96")
            e("s_cbranch_scc1 L_probe")
        e("L_end:")
        e("s_endpgm")

        e("L_special:")
        e(f"s_cmp_eq_u32 s{S_WAVE}, {W_PROBE}")
        e("s_cbranch_scc1 L_vote")
        for i in range(4):
            e(f"v_mov_b32 v{4 + i}, -1")
        e("v_lshlrev_b32 v2, 4, v1")
        e(f"s_mul_i32 s{S_T0}, s2, 1536")
        e(f"buffer_store_dwordx4 v[4:7], v2, s[{S_WS}:{S_WS + 3}], s{S_T0} offen sc1")
        e("s_mov_b32 exec_hi, 0")
        e(f"buffer_store_dwordx4 v[4:7], v2, s[{S_WS}:{S_WS + 3}], s{S_T0} offen offset:1024 sc1")
        e(f"s_cmp_ge_u32 s2, {NRED}")
        e("s_cbranch_scc1 L_noclearF")
        e("s_mov_b32 exec_lo, 0xff")
        e(f"s_lshl_b32 s{S_T0}, s2, 7")
        e(f"s_add_u32 s{S_T0}, s{S_T0}, {WS_F}")
        e(f"buffer_store_dwordx4 v[4:7], v2, s[{S_WS}:{S_WS + 3}], s{S_T0} offen sc1")
        e("L_noclearF:")
        e("s_mov_b64 exec, -1")
        e("s_waitcnt vmcnt(0)")
        e("s_branch L_stream")

        e("L_vote:")
        e(f"s_cmp_ge_u32 s2, {NVOTE_WG}")
        e("s_cbranch_scc1 L_stream")
        e("s_bitcmp1_b32 s2, 3")
        e("s_cselect_b64 s[40:41], s[8:9], s[4:5]")
        e(f"s_bfe_u32 s{S_T0}, s2, 0x10004")
        e(f"s_add_u32 s{S_T0}, s{S_T0}, 1")
        e(f"s_lshl_b32 s{S_T0}, s{S_T0}, 25")
        e(f"s_and_b32 s{S_T1}, s2, 7")
        e(f"s_lshl_b32 s{S_T2}, s{S_T1}, 22")
        e(f"s_add_u32 s{S_T0}, s{S_T0}, s{S_T2}")
        e(f"s_lshr_b32 s{S_T2}, s2, 5")
        e(f"s_lshl3_add_u32 s{S_T1}, s{S_T2}, s{S_T1}      ; voter 0..15")
        e(f"s_mul_i32 s{S_T1}, s{S_T1}, {16384 + 512}")
        e(f"s_add_u32 s{S_T0}, s{S_T0}, s{S_T1}")
        e(f"s_add_u32 s{S_T1}, s{S_T0}, 8192")
        self.stamp(1, True)
        e(f"s_load_dword s42, s[40:41], s{S_T0} glc")
        e(f"s_load_dword s43, s[40:41], s{S_T1} glc")
        e(f"s_mov_b32 s{S_CNT}, 0")
        for k in range(NRACE):
            e("s_waitcnt lgkmcnt(0)")
            if k < 2:
                self.stamp(2 + k, True)
                if o.vdiag:
                    e("s_waitcnt lgkmcnt(0)")
            first, second = (S_T0, S_T1) if k % 2 == 0 else (S_T1, S_T0)
            e(f"s_load_dword s42, s[40:41], s{first} glc")
            e(f"s_load_dword s43, s[40:41], s{second} glc")
            e("s_waitcnt lgkmcnt(1)")
            e("s_nop 7")
            e(f"s_getreg_b32 s{S_T2}, hwreg(HW_REG_IB_STS, 8, 4)")
            if k % 2 == 0:
                e(f"s_xor_b32 s{S_T2}, s{S_T2}, 1")
            e(f"s_add_u32 s{S_CNT}, s{S_CNT}, s{S_T2}")
        assert NVOTE_WG // 4 * NRACE // 2 < 32 and NRACE % 2 == 0
        e(f"s_sub_u32 s{S_CNT}, s{S_CNT}, {NRACE // 2}")
        e(f"s_sub_u32 s{S_T2}, 0, s{S_CNT}")
        e("s_bitcmp1_b32 s2, 2")
        e(f"s_cselect_b32 s{S_CNT}, s{S_T2}, s{S_CNT}")
        e(f"s_bfe_u32 s{S_T0}, s2, 0x20003")
        e(f"s_mul_i32 s{S_T0}, s{S_T0}, 6")
        e(f"s_add_u32 s{S_T0}, s{S_T0}, 7")
        e(f"s_lshl_b32 s{S_CNT}, s{S_CNT}, s{S_T0}")
        e(f"s_or_b32 s{S_CNT}, s{S_CNT}, 1")
        e(f"s_mov_b32 s{S_T1}, s{S_CNT}")
        self.stamp(6, True)
        e(f"s_atomic_add s{S_T1}, s[44:45], {DBG_TAL} glc")
        e(f"s_add_u32 s{S_CNT}, s{S_CNT}, {sum(31 << (7 + 6 * t) for t in range(4))}")
        e("s_waitcnt lgkmcnt(0)")
        e(f"s_add_u32 s{S_T1}, s{S_T1}, s{S_CNT}")
        self.stamp(5)
        e(f"s_and_b32 s{S_T0}, s{S_T1}, 0x7f")
        e(f"s_cmp_lg_u32 s{S_T0}, {o.quorum}")
        e("s_cbranch_scc1 L_stream")
        e(f"s_atomic_add s{S_T1}, s[44:45], {DBG_RES}")
        e("s_waitcnt lgkmcnt(0)")
        e("s_branch L_stream")

        e("L_dpoll:")
        e(f"s_mov_b32 s{S_CNT}, {SPIN}")
        e(f"v_mov_b32 v{V_AT}, 0")
        e("s_mov_b64 exec, 1")
        e("L_dloop:")
        e(f"buffer_load_dword v{V_AT}, off, s[{S_DBG}:{S_DBG + 3}], 0 offset:{DBG_RES} sc1")
        e(f"s_sleep {o.dsleep}")
        e("s_waitcnt vmcnt(24)")
        e(f"v_readfirstlane_b32 s{S_T2}, v{V_AT}")
        e(f"s_sub_u32 s{S_CNT}, s{S_CNT}, 1")
        e("s_cbranch_scc1 L_dgot")
        e(f"s_cmp_eq_u32 s{S_T2}, 0")
        e("s_cbranch_scc1 L_dloop")
        e("L_dgot:")
        e("s_mov_b64 exec, -1")
        e("s_branch L_decided")

        e("L_cntchk:")
        e(f"s_mov_b32 s{S_CNT}, {SPIN}")
        e("L_cntloop:")
        e(f"v_readfirstlane_b32 s{S_T0}, v{V_AT}")
        e(f"s_sub_u32 s{S_CNT}, s{S_CNT}, 1")
        e("s_cbranch_scc1 L_cntok")
        e(f"s_cmp_ge_u32 s{S_T0}, {NWG}")
        e("s_cbranch_scc1 L_cntok")
        e(f"buffer_load_dword v{V_AT}, off, s[{S_DBG}:{S_DBG + 3}], 0 offset:{DBG_CNT} sc1")
        e("s_waitcnt vmcnt(0)")
        e("s_branch L_cntloop")

    def text(self):
        out = HEADER
        out += f"; @launch grid=({NWG},1,1) block=(768,1,1) lds={L_TOTAL}\n"
        out += '.amdgcn_target "amdgcn-amd-amdhsa--gfx950"\n.text\n'
        out += f".globl {KNAME}\n.p2align 8\n.type {KNAME},@function\n{KNAME}:\n"
        out += "\n".join(self.lines) + "\n"
        out += f""".section .rodata,"a"
.p2align 6
.amdhsa_kernel {KNAME}
  .amdhsa_next_free_vgpr 168
  .amdhsa_next_free_sgpr {100 if self.o.stamps else 56}
  .amdhsa_accum_offset 168
  .amdhsa_group_segment_fixed_size 0
  .amdhsa_kernarg_size 48
  .amdhsa_user_sgpr_count 2
  .amdhsa_user_sgpr_kernarg_segment_ptr 1
  .amdhsa_system_sgpr_workgroup_id_x 1
  .amdhsa_float_denorm_mode_32 3
.end_amdhsa_kernel
"""
        return out


def main():
    p = argparse.ArgumentParser()
    p.add_argument("-o", default="standalone__channel_attn_cbam__vision.s")
    p.add_argument("--ldflags", default="nt")
    p.add_argument("--stflags", default="sc1")
    p.add_argument("--p1flags", default="sc1")
    p.add_argument("--stamps", action="store_true")
    p.add_argument("--probe", default="")
    p.add_argument("--depth", type=int, default=12)
    p.add_argument("--nrace", type=int, default=2)
    p.add_argument("--dsleep", type=int, default=8)
    p.add_argument("--trace", default="")
    p.add_argument("--nodec", action="store_true")
    p.add_argument("--vdiag", action="store_true")
    p.add_argument("--opp", default="5,9", type=lambda v: [int(x) for x in v.split(",")])
    p.add_argument("--quorum", type=int, default=32)
    p.add_argument("--zorder", default="6,0,7,8,1,9,2,10,11,3,12,4,13,14,5,15")
    o = p.parse_args()
    g = G(o)
    g.build()
    open(o.o, "w").write(g.text())


if __name__ == "__main__":
    main()
```

```python
import argparse

KNAME = "standalone__channel_attn_cbam__vision_kernel"

HEADER = """; Kernarg layout for this problem (48 bytes, ptrs only, base s[0:1]):
"""

X_BYTES = 100663296
NWG = 256
NRED = 12
MiB = 1 << 20

L_RED = 0
L_H = 6144
L_DEC = 6336
L_S = 6400
L_R2 = 7168
L_W1 = 8192
L_W2 = L_W1 + 18432
L_SPILL = L_W2 + 18432
L_TOTAL = L_SPILL + 3 * 8192

WS_P = 0
WS_F = 256 * 1536
WS_STAMP = 1 << 20
WS_USED = WS_F + 12 * 128

S_X, S_OUT, S_WS, S_DBG, S_W = 4, 8, 12, 16, 20
S_WAVE, S_TY, S_SUB, S_OFF, S_MASK, S_CNT, S_T0, S_T1 = 28, 29, 30, 31, 32, 33, 34, 35
S_BASE, S_PM, S_P, S_T2 = 48, 49, 50, 51
S_STAMP = 52
S_V = 24

D0 = 40
SPIN = 400000
V_A0, V_A1, V_D0, V_D1, V_AT = 0, 39, 38, 37, 36

NAGN = 6
SPANS = [(0, 0), (0, 1), (1, 0), (1, 1), (2, 0), (2, 1),
         (3, 0), (6, 0), (3, 1), (6, 1), (4, 0), (7, 0), (4, 1), (7, 1), (5, 0), (5, 1)]
W_CLEAR, W_PROBE, W_READ = 10, 11, 0
DBG_RES, DBG_TAL, DBG_CNT = 0, 128, 192
NVOTE_WG = 64


def mask(pred):
    return sum(1 << z for z, s in enumerate(SPANS) if pred(z, s))


class G:
    def __init__(self, o):
        self.o = o
        self.lines = []

    def e(self, s=""):
        self.lines.append(("    " + s) if s and not s.endswith(":") else s)

    def stamp(self, idx, vote=False):
        if self.o.vdiag and idx in (1, 2, 3, 6) and not vote:
            return
        if vote and not self.o.vdiag:
            return
        if self.o.stamps and not (self.o.trace and idx > 10):
            self.e(f"s_memrealtime s[{S_STAMP + 2 * idx}:{S_STAMP + 2 * idx + 1}]")

    def srd(self, d, lo, nbytes):
        e = self.e
        e(f"s_mov_b64 s[{d}:{d + 1}], s[{lo}:{lo + 1}]")
        e(f"s_mov_b32 s{d + 2}, {nbytes}")
        e(f"s_mov_b32 s{d + 3}, 0x20000")

    def span_off(self, z):
        return SPANS[z][0] * 12 * MiB + SPANS[z][1] * 49152

    def mem(self, j, fn):
        e = self.e
        z, u = j >> 1, j & 1
        if u == 0:
            e(f"s_bfe_u32 s{S_P}, s{S_PM}, {(1 << 16) | z}")
            if self.span_off(z):
                e(f"s_add_u32 s{S_OFF}, s{S_BASE}, {self.span_off(z)}")
            else:
                e(f"s_mov_b32 s{S_OFF}, s{S_BASE}")
        at = 2 + u
        e(f"v_mad_i32_i24 v{at}, v{(V_D0, V_D1)[u]}, s{S_P}, v{(V_A0, V_A1)[u]}")
        fn(f"v{at}")

    def trace(self, kind, n):
        if self.o.trace == kind:
            if n > 0:
                self.e("s_waitcnt lgkmcnt(0)")
                self.e(f"s_mov_b32 s{76 + n - 1}, s92")
            self.e("s_memrealtime s[92:93]")

    def build(self):
        o, e = self.o, self.e
        NRACE = o.nrace
        ldf = (" " + o.ldflags) if o.ldflags else ""
        stf = (" " + o.stflags) if o.stflags else ""

        self.stamp(0)
        e("s_load_dwordx2 s[4:5], s[0:1], 0          ; x")
        e("s_load_dwordx4 s[36:39], s[0:1], 8        ; w1, w2")
        e("s_load_dwordx2 s[8:9], s[0:1], 24         ; out")
        e("s_load_dwordx4 s[44:47], s[0:1], 32")
        e("s_cmp_ge_u32 s2, %d" % NWG)
        e("s_cbranch_scc1 L_end")
        e("v_readfirstlane_b32 s%d, v0" % S_WAVE)
        e("v_and_b32 v1, 63, v0                      ; lane")
        e("v_lshrrev_b32 v2, 3, v1")
        e("v_mul_u32_u24 v2, 384, v2")
        e("v_and_b32 v3, 7, v1")
        e("v_lshl_add_u32 v0, v3, 4, v2")
        e(f"s_lshr_b32 s{S_WAVE}, s{S_WAVE}, 6")
        e(f"s_mul_i32 s{S_SUB}, s{S_WAVE}, 43")
        e(f"s_lshr_b32 s{S_SUB}, s{S_SUB}, 7")
        e(f"s_mul_i32 s{S_TY}, s{S_SUB}, 3")
        e(f"s_sub_u32 s{S_TY}, s{S_WAVE}, s{S_TY}        ; ty = wave % 3")
        e(f"s_mul_i32 s{S_T0}, s{S_SUB}, 3072")
        e(f"s_lshl_b32 s{S_T1}, s{S_TY}, 7")
        e(f"s_add_u32 s{S_T0}, s{S_T0}, s{S_T1}")
        e(f"v_add_u32 v{V_A0}, s{S_T0}, v0")
        e(f"v_add_u32 v{V_A1}, 12288, v{V_A0}")
        e(f"s_movk_i32 s{S_T2}, 24576")
        for a, d in ((V_A0, V_D0), (V_A1, V_D1)):
            e(f"v_bfe_u32 v2, v{a}, 13, 1                 ; 1 identifies k' = 1")
            e(f"v_mad_u32_u24 v{a}, v2, s{S_T2}, v{a}")
            e(f"v_mad_i32_i24 v2, v2, -2, 1")
            e(f"v_mul_i32_i24 v{d}, s{S_T2}, v2")
        e(f"s_lshr_b32 s{S_T0}, s2, 1")
        e(f"s_and_b32 s{S_T0}, s{S_T0}, 0x7c")
        e(f"s_and_b32 s{S_T1}, s2, 3")
        e(f"s_add_u32 s{S_T0}, s{S_T0}, s{S_T1}")
        e(f"s_mul_i32 s{S_BASE}, s{S_T0}, 98304")
        h1 = mask(lambda z, s: s[1] == 1)
        alt = mask(lambda z, s: z < NAGN and s[1] == 1)
        e(f"s_bfe_i32 s{S_PM}, s2, 0x10002              ; -side")
        e(f"s_bfe_u32 s{S_T0}, s2, 0x10003")
        e(f"s_lshr_b32 s{S_T0}, {alt}, s{S_T0}")
        e(f"s_xor_b32 s{S_PM}, s{S_PM}, s{S_T0}")
        e(f"s_add_u32 s{S_T0}, s{S_BASE}, s{S_T2}")
        e(f"s_bfe_i32 s{S_T1}, s{S_T0}, 0x10015")
        e(f"s_xor_b32 s{S_PM}, s{S_PM}, s{S_T1}")
        e(f"s_add_u32 s{S_T2}, s{S_T0}, 49152")
        e(f"s_xor_b32 s{S_T0}, s{S_T0}, s{S_T2}")
        e(f"s_bfe_i32 s{S_T0}, s{S_T0}, 0x10015")
        e(f"s_and_b32 s{S_T0}, s{S_T0}, {h1}")
        e(f"s_xor_b32 s{S_PM}, s{S_PM}, s{S_T0}")
        e(f"s_mov_b32 s{S_X + 2}, {X_BYTES}")
        e(f"s_mov_b32 s{S_X + 3}, 0x20000")
        e(f"s_mov_b32 s{S_OUT + 2}, s{S_X + 2}")
        e(f"s_mov_b32 s{S_OUT + 3}, s{S_X + 3}")
        e(f"s_mov_b32 s{S_WS + 2}, {(2 << 20) if o.stamps else WS_USED}")
        e(f"s_mov_b32 s{S_WS + 3}, s{S_X + 3}")
        e(f"s_movk_i32 s{S_DBG + 2}, 256")
        e(f"s_mov_b32 s{S_DBG + 3}, s{S_X + 3}")
        e(f"s_cmp_ge_u32 s{S_WAVE}, {W_CLEAR}")
        e("s_waitcnt lgkmcnt(0)")
        e(f"s_mov_b64 s[{S_WS}:{S_WS + 1}], s[46:47]")
        e(f"s_mov_b64 s[{S_DBG}:{S_DBG + 1}], s[44:45]")
        e("s_cbranch_scc1 L_special")
        e("L_stream:")

        SUM, MAX, T = 4, 12, 20
        DEPTH = o.depth
        assert DEPTH >= 2 * NAGN
        seq = []

        def issue(j):
            if j == 2 * NAGN:
                m1 = mask(lambda z, s: z >= NAGN and s[0] in (3, 4))
                z50 = SPANS.index((5, 0))
                z51 = SPANS.index((5, 1))
                dec = mask(lambda z, s: z >= NAGN)
                e(f"s_cmp_lt_u32 s{S_BASE}, {4 * MiB - 24576}")
                e(f"s_cselect_b32 s{S_T0}, {1 << z50}, 0")
                e(f"s_or_b32 s{S_T0}, s{S_T0}, {m1}")
                e(f"s_cmp_lt_u32 s{S_BASE}, {4 * MiB - 24576 - 49152}")
                e(f"s_cselect_b32 s{S_T1}, {1 << z51}, 0")
                e(f"s_or_b32 s{S_T0}, s{S_T0}, s{S_T1}            ; third 1")
                e(f"s_xor_b32 s{S_T1}, s{S_T0}, {dec}           ; third 2")
                per, pat = o.opp
                rep = sum(((pat >> (i % per)) & 1) << i for i in range(32))
                e(f"s_lshr_b32 s{S_P}, s2, 3")
                e(f"s_mul_i32 s{S_T2}, s{S_P}, {-(-256 // per)}")
                e(f"s_lshr_b32 s{S_T2}, s{S_T2}, 8")
                e(f"s_mul_i32 s{S_T2}, s{S_T2}, {per}")
                e(f"s_sub_u32 s{S_P}, s{S_P}, s{S_T2}             ; (b >> 3) % {per}")
                e(f"s_lshr_b32 s{S_P}, {rep}, s{S_P}")
                e(f"s_mov_b32 s{S_MASK}, 0xffff0000")
                e(f"s_cmp_lg_u32 s{S_WAVE}, {W_CLEAR}")
                self.stamp(11)
                e("s_barrier")
                e(f"s_load_dword s{S_T2}, s[44:45], {DBG_RES}")
                e("s_cbranch_scc1 L_nocnt")
                e("v_mov_b32 v3, 1")
                e("s_mov_b64 exec, 1")
                e(f"buffer_atomic_add v3, off, s[{S_DBG}:{S_DBG + 3}], 0 offset:{DBG_CNT}")
                e("s_mov_b64 exec, -1")
                e("L_nocnt:")
                e("s_waitcnt lgkmcnt(0)")
                e(f"s_cmp_eq_u32 s{S_T2}, 0")
                e("s_cbranch_scc1 L_dpoll")
                e("L_decided:")
                for i in range(4):
                    e(f"s_bitcmp1_b32 s{S_T2}, {7 + 6 * i + 5}")
                    e(f"s_cselect_b32 s{S_V + i}, s{(S_T0, S_T1)[i >> 1]}, 0")
                e(f"s_or_b32 s{S_V}, s{S_V}, s{S_V + 2}")
                e(f"s_or_b32 s{S_V + 1}, s{S_V + 1}, s{S_V + 3}")
                e(f"s_xor_b32 s{S_V}, s{S_V}, s{S_V + 1}")
                if o.nodec:
                    e(f"s_mov_b32 s{S_V}, {dec}")
                e(f"s_and_b32 s{S_V}, s{S_V}, s{S_P}")
                e(f"s_xor_b32 s{S_V}, s{S_V}, s{S_V + 1}")
                e(f"s_xor_b32 s{S_PM}, s{S_PM}, s{S_V}")
                self.stamp(12)
            if j == 30:
                e(f"s_cmp_lg_u32 s{S_WAVE}, {W_CLEAR}")
                e("s_cbranch_scc1 L_nosmp")
                e(f"buffer_load_dword v{V_AT}, off, s[{S_DBG}:{S_DBG + 3}], 0 offset:{DBG_CNT} sc1")
                e("L_nosmp:")
            r = D0 + 4 * j
            self.mem(j, lambda va: e(f"buffer_load_dwordx4 v[{r}:{r + 3}], {va}, s[{S_X}:{S_X + 3}], s{S_OFF} offen{ldf}"))
            seq.append(j)
            if j & 1:
                self.trace("ld", j >> 1)

        def wait_for(j):
            e(f"s_waitcnt vmcnt({len(seq) - 1 - seq.index(j)})")

        nxt = 0
        for jj in range(16):
            while nxt < 32 and nxt < 2 * jj + DEPTH + 2:
                issue(nxt)
                nxt += 1
                if nxt == 32:
                    self.stamp(1)
            a, b = D0 + 8 * jj, D0 + 8 * jj + 4
            if jj == 15:
                e("v_and_b32 v2, 7, v1")
                e("v_lshlrev_b32 v2, 5, v2                   ; (l&7)*32")
                e("v_lshrrev_b32 v3, 4, v1")
                e("v_lshl_add_u32 v2, v3, 3, v2              ; + (l>>4)*8")
                e("v_bfe_u32 v3, v1, 3, 1")
                e("v_mul_u32_u24 v3, 768, v3")
                e(f"s_mul_i32 s{S_T0}, s{S_SUB}, 1536")
                e(f"s_lshl_b32 s{S_T1}, s{S_TY}, 8")
                e(f"s_add_u32 s{S_T0}, s{S_T0}, s{S_T1}")
                e(f"v_add3_u32 v2, v2, v3, s{S_T0}")
                e(f"s_mul_i32 s{S_T0}, s{S_WAVE}, 768")
                e(f"v_lshl_add_u32 v3, v1, 4, s{S_T0}")
                e(f"s_mul_i32 s{S_T1}, s2, 1536")
                for r in (a, b):
                    wait_for((r - D0) // 4)
                    if r == b:
                        self.stamp(3)
                    for i in range(4):
                        t = T + 2 * i
                        e(f"v_lshlrev_b32 v{t}, 16, v{r + i}")
                        e(f"v_and_b32 v{t + 1}, s{S_MASK}, v{r + i}")
                    for i in range(8):
                        e(f"v_max_f32 v{MAX + i}, v{MAX + i}, v{T + i}")
                    for i in range(4):
                        t, s = T + 2 * i, SUM + 2 * i
                        e(f"v_pk_add_f32 v[{s}:{s + 1}], v[{s}:{s + 1}], v[{t}:{t + 1}]")
                continue
            wait_for(2 * jj + 1)
            if jj == 0:
                self.stamp(2)
            for i in range(4):
                t = T + 4 * i
                e(f"v_lshlrev_b32 v{t}, 16, v{a + i}")
                e(f"v_and_b32 v{t + 1}, s{S_MASK}, v{a + i}")
                e(f"v_lshlrev_b32 v{t + 2}, 16, v{b + i}")
                e(f"v_and_b32 v{t + 3}, s{S_MASK}, v{b + i}")
            for i in range(4):
                t = T + 4 * i
                s, m = SUM + 2 * i, MAX + 2 * i
                if jj == 0:
                    e(f"v_max_f32 v{m}, v{t}, v{t + 2}")
                    e(f"v_max_f32 v{m + 1}, v{t + 1}, v{t + 3}")
                    e(f"v_pk_add_f32 v[{s}:{s + 1}], v[{t}:{t + 1}], v[{t + 2}:{t + 3}]")
                else:
                    e(f"v_max3_f32 v{m}, v{m}, v{t}, v{t + 2}")
                    e(f"v_max3_f32 v{m + 1}, v{m + 1}, v{t + 1}, v{t + 3}")
                    e(f"v_pk_add_f32 v[{t}:{t + 1}], v[{t}:{t + 1}], v[{t + 2}:{t + 3}]")
            if jj:
                for i in range(4):
                    t = T + 4 * i
                    s = SUM + 2 * i
                    e(f"v_pk_add_f32 v[{s}:{s + 1}], v[{s}:{s + 1}], v[{t}:{t + 1}]")

        for base in (MAX, SUM):
            for i in range(4):
                e(f"v_permlane32_swap_b32 v{base + i}, v{base + 4 + i}")
        for i in range(4):
            e(f"v_max_f32 v{MAX + i}, v{MAX + i}, v{MAX + 4 + i}")
        for i in range(4):
            e(f"v_add_f32 v{SUM + i}, v{SUM + i}, v{SUM + 4 + i}")
        for i in range(2):
            e(f"v_permlane16_swap_b32 v{MAX + i}, v{MAX + 2 + i}")
        for i in range(2):
            e(f"v_permlane16_swap_b32 v{SUM + i}, v{SUM + 2 + i}")
        for i in range(2):
            e(f"v_add_f32 v{SUM + i}, v{SUM + i}, v{SUM + 2 + i}")
        for i in range(2):
            e(f"v_max_f32 v{MAX + i}, v{MAX + i}, v{MAX + 2 + i}")
        e(f"s_cmp_eq_u32 s{S_WAVE}, {W_CLEAR}")
        for i in range(2):
            e(f"v_add_f32_dpp v{SUM + i}, v{SUM + i}, v{SUM + i} row_ror:8 row_mask:0xf bank_mask:0x3")
        for i in range(2):
            e(f"v_max_f32_dpp v{SUM + i}, v{MAX + i}, v{MAX + i} row_ror:8 row_mask:0xf bank_mask:0xc")
        e(f"ds_write_b64 v2, v[{SUM}:{SUM + 1}] offset:{L_RED}")
        e("s_cbranch_scc1 L_cntchk")
        e("L_cntok:")
        e(f"s_cmp_ge_u32 s{S_WAVE}, 2")
        e("s_waitcnt lgkmcnt(0)")
        e("s_barrier")
        self.stamp(4)
        e("s_cbranch_scc1 L_nopub")

        e("s_mov_b32 exec_hi, 0xffff")
        for k in range(4):
            e(f"ds_read_b128 v[{4 + 4 * k}:{7 + 4 * k}], v3 offset:{L_RED + 1536 * k}")
        e(f"s_cmp_eq_u32 s{S_WAVE}, 0")
        e(f"s_cselect_b64 s[{S_W}:{S_W + 1}], s[36:37], s[38:39]")
        e("s_cbranch_scc0 L_pubmax")
        e("s_waitcnt lgkmcnt(2)")
        e("v_pk_add_f32 v[4:5], v[4:5], v[8:9]")
        e("v_pk_add_f32 v[6:7], v[6:7], v[10:11]")
        e("s_waitcnt lgkmcnt(0)")
        e("v_pk_add_f32 v[12:13], v[12:13], v[16:17]")
        e("v_pk_add_f32 v[14:15], v[14:15], v[18:19]")
        e("v_pk_add_f32 v[4:5], v[4:5], v[12:13]")
        e("v_pk_add_f32 v[6:7], v[6:7], v[14:15]")
        e("s_branch L_pub")
        e("L_pubmax:")
        e("s_waitcnt lgkmcnt(1)")
        for i in range(4):
            e(f"v_max3_f32 v{4 + i}, v{4 + i}, v{8 + i}, v{12 + i}")
        e("s_waitcnt lgkmcnt(0)")
        for i in range(4):
            e(f"v_max_f32 v{4 + i}, v{4 + i}, v{16 + i}")
        e("L_pub:")
        for i in range(4):
            e(f"v_min_u32 v{4 + i}, -2, v{4 + i}")
        e(f"buffer_store_dwordx4 v[4:7], v3, s[{S_WS}:{S_WS + 3}], s{S_T1} offen sc1")
        e("s_mov_b64 exec, -1")
        e(f"s_movk_i32 s{S_W + 2}, 18432")
        e(f"s_mov_b32 s{S_W + 3}, 0x20000")
        e(f"s_mul_i32 s{S_T0}, s{S_WAVE}, 18432")
        e(f"s_add_u32 s{S_T0}, s{S_T0}, {L_W1}")
        e(f"s_mov_b32 s{S_T1}, 0")
        e("v_lshlrev_b32 v2, 4, v1")
        e("L_wloop:")
        e(f"s_add_u32 m0, s{S_T0}, s{S_T1}")
        e(f"s_cmp_lt_u32 s{S_T1}, {18432 - 3072}")
        for k in range(3):
            e(f"buffer_load_dwordx4 v2, s[{S_W}:{S_W + 3}], s{S_T1} offen offset:{k * 1024} lds")
        e(f"s_cbranch_scc0 L_nopub")
        e(f"s_addk_i32 s{S_T1}, 3072")
        e("s_branch L_wloop")
        e("L_nopub:")

        B2 = 28
        V_H0, V_H1, V_SW, V_SR = 24, 25, 26, 27
        SP0 = 136
        A1 = 144
        B1 = [4, 8, 12, 16, 136, 140]
        e("v_lshrrev_b32 v20, 4, v1                  ; q")
        e(f"s_cmp_lt_u32 s{S_WAVE}, 3")
        e("s_cbranch_scc1 L_spill")
        e(f"s_cmp_ge_u32 s2, {NRED}")
        e("s_cbranch_scc1 L_barw")
        e(f"s_cmp_eq_u32 s{S_WAVE}, 3")
        e("s_cbranch_scc1 L_rfinal")

        e("v_lshrrev_b32 v2, 3, v1")
        e("v_mul_u32_u24 v2, 1536, v2")
        e("v_and_b32 v3, 7, v1")
        e("v_lshl_add_u32 v2, v3, 4, v2")
        e(f"s_sub_u32 s{S_T0}, s{S_WAVE}, 4")
        e(f"s_lshl_b32 s{S_T1}, s{S_T0}, 7")
        e(f"v_lshl_add_u32 v3, v3, 4, s{S_T1}")
        e("v_lshl_add_u32 v3, v20, 2, v3")
        e(f"s_mul_i32 s{S_T0}, s{S_T0}, {32 * 1536}")
        e(f"s_lshl_b32 s{S_T1}, s2, 7")
        e(f"s_add_u32 s{S_V}, s{S_T0}, s{S_T1}")
        for k in range(1, 4):
            e(f"s_add_u32 s{S_V + k}, s{S_V}, {k * 8 * 1536}")
        e(f"s_mov_b32 s{S_CNT}, {SPIN}")
        e("L_rpoll:")
        for k in range(4):
            e(f"buffer_load_dwordx4 v[{4 + 4 * k}:{7 + 4 * k}], v2, s[{S_WS}:{S_WS + 3}], s{S_V + k} offen {o.p1flags}")
        e(f"s_sub_u32 s{S_CNT}, s{S_CNT}, 1")
        e("s_cbranch_scc1 L_rgot")
        e("s_waitcnt vmcnt(2)")
        e("v_max3_u32 v21, v4, v5, v6")
        e("v_max3_u32 v22, v7, v8, v9")
        e("v_max3_u32 v21, v21, v10, v11")
        e("s_waitcnt vmcnt(1)")
        e("v_max3_u32 v22, v22, v12, v13")
        e("v_max3_u32 v21, v21, v14, v15")
        e("s_waitcnt vmcnt(0)")
        e("v_max3_u32 v22, v22, v16, v17")
        e("v_max3_u32 v21, v21, v18, v19")
        e("v_max_u32 v21, v21, v22")
        e("v_cmp_eq_u32 vcc, -1, v21")
        e("s_cbranch_vccnz L_rpoll")
        e("L_rgot:")
        e("s_waitcnt vmcnt(0)")
        self.stamp(9)
        e("s_cmp_ge_u32 s2, 6")
        e("s_cbranch_scc1 L_rmax")
        for kind in (0, 1):
            op = "v_add_f32" if kind == 0 else "v_max_f32"
            if kind == 1:
                e("L_rmax:")
                for i in range(4):
                    e(f"v_max3_f32 v{4 + i}, v{4 + i}, v{8 + i}, v{12 + i}")
                for i in (0, 2, 1, 3):
                    e(f"v_max_f32 v{4 + i}, v{4 + i}, v{16 + i}")
            else:
                e("v_pk_add_f32 v[4:5], v[4:5], v[8:9]")
                e("v_pk_add_f32 v[6:7], v[6:7], v[10:11]")
                e("v_pk_add_f32 v[12:13], v[12:13], v[16:17]")
                e("v_pk_add_f32 v[14:15], v[14:15], v[18:19]")
                e("v_pk_add_f32 v[4:5], v[4:5], v[12:13]")
                e("v_pk_add_f32 v[6:7], v[6:7], v[14:15]")
            e("s_nop 1")
            e("v_permlane32_swap_b32 v4, v6")
            e("v_permlane32_swap_b32 v5, v7")
            e(f"{op} v4, v4, v6")
            e(f"{op} v5, v5, v7")
            e("s_nop 1")
            e("v_permlane16_swap_b32 v4, v5")
            e(f"{op} v4, v4, v5")
            e("s_nop 1")
            e(f"{op}_dpp v4, v4, v4 row_ror:8 row_mask:0xf bank_mask:0xf")
            e(f"ds_write_b32 v3, v4 offset:{L_R2}")
            e("s_branch L_barw")

        e("L_rfinal:")
        e("v_and_b32 v2, 15, v1")
        e("v_lshlrev_b32 v3, 3, v2")
        e("v_lshl_add_u32 v3, v20, 8, v3")
        e("v_lshlrev_b32 v2, 2, v2")
        e(f"s_lshl_b32 s{S_T1}, s2, 7")
        e(f"s_add_u32 s{S_T1}, s{S_T1}, {WS_F}")
        e("s_cmp_ge_u32 s2, 6")
        e("s_cbranch_scc1 L_rfmax")
        for kind in (0, 1):
            op = "v_add_f32" if kind == 0 else "v_max_f32"
            if kind == 1:
                e("L_rfmax:")
            e("s_barrier")
            e(f"ds_read_b64 v[4:5], v3 offset:{L_R2}")
            e(f"ds_read_b64 v[6:7], v3 offset:{L_R2 + 128}")
            e("s_waitcnt lgkmcnt(0)")
            e(f"{op} v4, v4, v6")
            e(f"{op} v5, v5, v7")
            e("s_nop 1")
            e("v_permlane32_swap_b32 v4, v5")
            e(f"{op} v4, v4, v5")
            e("v_mov_b32 v5, v4")
            e("s_nop 1")
            e("v_permlane16_swap_b32 v4, v5")
            e(f"{op} v4, v4, v5                        ; lanes <32: c0, lanes >=32: c1")
            if kind == 0:
                e("v_mul_f32 v4, 0x36800000, v4              ; 1/262144")
            e("v_mov_b32 v5, v4")
            e("s_nop 1")
            e("v_permlane32_swap_b32 v4, v5")
            e("v_cvt_pk_bf16_f32 v4, v4, v5")
            e("s_mov_b64 exec, 0xffff")
            e("v_min_u32 v4, -2, v4")
            e(f"buffer_store_dword v4, v2, s[{S_WS}:{S_WS + 3}], s{S_T1} offen sc1")
            self.stamp(9)
            e("s_mov_b64 exec, -1")
            e("s_branch L_afterw")

        e("L_spill:")
        e(f"s_lshl_b32 s{S_T0}, s{S_WAVE}, 13")
        e(f"v_lshl_add_u32 v{V_AT}, v1, 4, s{S_T0}")
        for k in range(8):
            e(f"ds_write_b128 v{V_AT}, v[{SP0 + 4 * k}:{SP0 + 4 * k + 3}] offset:{L_SPILL + 1024 * k}")
        e("L_barw:")
        e("s_waitcnt vmcnt(0) lgkmcnt(0)")
        e("s_barrier")
        e("L_afterw:")
        e("v_bfe_u32 v3, v1, 2, 2")
        e("v_lshl_add_u32 v21, v20, 3, v3            ; row")
        e("v_and_b32 v22, 15, v21")
        e("v_and_b32 v3, 3, v1")
        e(f"s_lshl_b32 s{S_T2}, s{S_WAVE}, 5")
        e(f"v_lshl_add_u32 v23, v3, 3, s{S_T2}")
        e("v_mov_b32 v3, 384")
        e("v_mad_u32_u24 v2, v21, v3, v23")
        e("v_mad_u32_u24 v22, v22, v3, v23")
        e(f"ds_read_b64_tr_b16 v[{B2}:{B2 + 1}], v2 offset:{L_W2}")
        e(f"ds_read_b64_tr_b16 v[{B2 + 2}:{B2 + 3}], v2 offset:{L_W2 + 4 * 384}")
        e(f"ds_read_b64_tr_b16 v[{B2 + 4}:{B2 + 5}], v22 offset:{L_W2 + 32 * 384}")
        e(f"ds_read_b64_tr_b16 v[{B2 + 6}:{B2 + 7}], v22 offset:{L_W2 + 36 * 384}")
        e("v_and_b32 v2, 1, v1")
        e("v_mul_u32_u24 v22, 96, v2")
        e(f"v_lshl_add_u32 v{V_H0}, v20, 4, v22")
        e("v_and_b32 v3, 1, v20")
        e(f"v_lshl_add_u32 v{V_H1}, v3, 4, v22")
        e(f"s_lshl_b32 s{S_T0}, s{S_WAVE}, 6")
        e(f"v_lshl_add_u32 v{V_SW}, v1, 2, s{S_T0}")
        e("v_and_b32 v3, 7, v1")
        e(f"s_lshl_b32 s{S_T0}, s{S_TY}, 8")
        e(f"v_lshl_add_u32 v{V_SR}, v3, 5, s{S_T0}")
        e("s_waitcnt lgkmcnt(0)")
        e("s_mov_b32 exec_lo, 0")
        for i in range(4):
            e(f"v_mov_b32 v{B2 + 4 + i}, 0")
        e("s_mov_b64 exec, -1")
        e(f"s_cmp_ge_u32 s{S_WAVE}, 3")
        e("s_cbranch_scc1 L_join")

        e("v_mov_b32 v3, 96")
        e("v_mad_u32_u24 v2, v21, v3, v23")
        for s in range(6):
            for h in range(2):
                r = A1 + 4 * s + 2 * h
                e(f"ds_read_b64_tr_b16 v[{r}:{r + 1}], v2 offset:{L_W1 + s * 3072 + h * 384}")
        e(f"v_lshl_add_u32 v3, v20, 3, v22")
        e(f"v_add_u32 v3, s{S_T2}, v3")
        e("v_lshlrev_b32 v2, 3, v22")
        e("v_lshl_add_u32 v2, v20, 4, v2")
        for b in B1:
            for i in range(4):
                e(f"v_mov_b32 v{b + i}, 0")
        e(f"s_mov_b32 s{S_T1}, {WS_F}")
        e(f"s_mov_b32 s{S_CNT}, {SPIN}")
        e("s_waitcnt lgkmcnt(0)")
        e("L_fpoll:")
        e("s_mov_b32 exec_lo, 0x00030003")
        e("s_mov_b32 exec_hi, 0x00030003")
        for s in range(6):
            e(f"buffer_load_dwordx4 v[{B1[s]}:{B1[s] + 3}], v2, s[{S_WS}:{S_WS + 3}], s{S_T1} offen offset:{128 * s} sc1")
        e("s_mov_b64 exec, -1")
        e(f"s_sub_u32 s{S_CNT}, s{S_CNT}, 1")
        for s in range(6):
            c = "0" if s == 0 else "v[20:23]"
            b = B1[s]
            e(f"s_waitcnt vmcnt({5 - s})")
            e(f"v_mfma_f32_16x16x32_bf16 v[20:23], v[{A1 + 4 * s}:{A1 + 4 * s + 3}], v[{b}:{b + 3}], {c}")
            if s == 0:
                e(f"v_max3_u32 v1, v{b}, v{b + 1}, v{b + 2}")
                e(f"v_max_u32 v1, v1, v{b + 3}")
            else:
                e(f"v_max3_u32 v1, v1, v{b}, v{b + 1}")
                e(f"v_max3_u32 v1, v1, v{b + 2}, v{b + 3}")
        e("v_cmp_eq_u32 vcc, -1, v1")
        e("s_cbranch_scc1 L_fgot")
        e("s_cbranch_vccnz L_fpoll")
        e("L_fgot:")
        self.stamp(5)
        e("s_mov_b32 exec_lo, 0x00030003")
        e("s_mov_b32 exec_hi, 0x00030003")
        e("s_nop 1")
        for i in range(4):
            e(f"v_maximum3_f32 v{20 + i}, v{20 + i}, 0, 0")
        e("v_cvt_pk_bf16_f32 v20, v20, v21")
        e("v_cvt_pk_bf16_f32 v21, v22, v23")
        e(f"ds_write_b64 v3, v[20:21] offset:{L_H}")
        e("s_mov_b64 exec, -1")
        e("s_waitcnt lgkmcnt(0)")

        e("L_join:")
        e("s_barrier")
        self.stamp(6)
        e(f"ds_read_b128 v[4:7], v{V_H0} offset:{L_H}")
        e(f"ds_read_b128 v[8:11], v{V_H1} offset:{L_H + 64}")
        e("s_waitcnt lgkmcnt(1)")
        e(f"v_mfma_f32_16x16x32_bf16 v[12:15], v[4:7], v[{B2}:{B2 + 3}], 0")
        e("s_waitcnt lgkmcnt(0)")
        e(f"v_mfma_f32_16x16x32_bf16 v[12:15], v[8:11], v[{B2 + 4}:{B2 + 7}], v[12:15]")
        e("s_mov_b64 exec, 0xffff")
        e("s_nop 6")
        e("v_cvt_pk_bf16_f32 v12, v12, v13")
        e("v_lshlrev_b32 v13, 16, v12")
        e(f"v_and_b32 v12, s{S_MASK}, v12")
        e("v_add_f32 v12, v12, v13")
        e("v_cvt_pk_bf16_f32 v12, v12, v12")
        e("v_lshlrev_b32 v12, 16, v12")
        e("v_mul_f32 v12, 0xbfb8aa3b, v12            ; -log2(e)")
        e("v_exp_f32 v12, v12")
        e("s_nop 0")
        e("v_add_f32 v12, 1.0, v12")
        e("v_rcp_f32 v12, v12")
        e("s_nop 0")
        e("v_cvt_pk_bf16_f32 v12, v12, v12")
        e("v_lshlrev_b32 v12, 16, v12")
        e(f"ds_write_b32 v{V_SW}, v12 offset:{L_S}")
        e("s_mov_b64 exec, -1")
        e("s_waitcnt lgkmcnt(0)")
        e("s_barrier")
        e(f"ds_read_b128 v[4:7], v{V_SR} offset:{L_S}")
        e(f"ds_read_b128 v[8:11], v{V_SR} offset:{L_S + 16}")

        zorder = [int(v) for v in o.zorder.split(",")]
        assert sorted(zorder) == list(range(16))
        restored = False
        for n, j in enumerate([2 * z + u for z in zorder for u in (0, 1)]):
            a = D0 + 4 * j
            t0 = 12 + 8 * (n & 1)
            if a >= SP0 and not restored:
                assert n > 1
                e("s_waitcnt lgkmcnt(0)")
                restored = True
            for i in range(4):
                t = t0 + 2 * i
                e(f"v_lshlrev_b32 v{t}, 16, v{a + i}")
                e(f"v_and_b32 v{t + 1}, s{S_MASK}, v{a + i}")
            if n == 0:
                e("s_waitcnt lgkmcnt(0)")
                self.stamp(7)
            for i in range(4):
                t = t0 + 2 * i
                e(f"v_pk_mul_f32 v[{t}:{t + 1}], v[{t}:{t + 1}], v[{4 + 2 * i}:{5 + 2 * i}]")
            for i in range(4):
                t = t0 + 2 * i
                e(f"v_cvt_pk_bf16_f32 v{a + i}, v{t}, v{t + 1}")
            self.mem(j, lambda va: e(f"buffer_store_dwordx4 v[{a}:{a + 3}], {va}, s[{S_OUT}:{S_OUT + 3}], s{S_OFF} offen{stf}"))
            if n & 1:
                self.trace("st", n >> 1)
            if n == 1:
                e(f"s_cmp_ge_u32 s{S_WAVE}, 3")
                e("s_cbranch_scc1 L_norestore")
                for k in range(8):
                    e(f"ds_read_b128 v[{SP0 + 4 * k}:{SP0 + 4 * k + 3}], v{V_AT} offset:{L_SPILL + 1024 * k}")
                e("L_norestore:")
        if o.stamps:
            self.stamp(8)
            e("s_waitcnt vmcnt(0)")
            self.stamp(10)
            e("s_getreg_b32 s94, hwreg(HW_REG_XCC_ID)")
            e("s_getreg_b32 s95, hwreg(HW_REG_HW_ID)")
            e("s_waitcnt lgkmcnt(0)")
            e("v_mov_b32 v2, 0")
            for i in range(11 if o.trace else 13):
                e(f"v_writelane_b32 v2, s{S_STAMP + 2 * i}, {i}")
            e(f"v_writelane_b32 v2, s{S_PM}, 13")
            e("v_writelane_b32 v2, s94, 14")
            e("v_writelane_b32 v2, s95, 15")
            e(f"s_mul_i32 s{S_T0}, s2, 12")
            e(f"s_add_u32 s{S_T0}, s{S_T0}, s{S_WAVE}")
            e(f"s_lshl_b32 s{S_T0}, s{S_T0}, 6")
            e(f"s_add_u32 s{S_T0}, s{S_T0}, {WS_STAMP}")
            e("v_mbcnt_lo_u32_b32 v3, -1, 0")
            e("v_lshlrev_b32 v3, 2, v3")
            e("s_mov_b64 exec, 0xffff")
            e(f"buffer_store_dword v2, v3, s[{S_WS}:{S_WS + 3}], s{S_T0} offen")
            if o.trace:
                e("s_mov_b32 s91, s92")
                for i in range(16):
                    e(f"v_writelane_b32 v2, s{76 + i}, {i}")
                e(f"s_add_u32 s{S_T0}, s{S_T0}, {1 << 19}")
                e(f"buffer_store_dword v2, v3, s[{S_WS}:{S_WS + 3}], s{S_T0} offen")
        if o.probe:
            idx, K = [int(v) for v in o.probe.split(",")]
            if idx == -2:
                e("s_getreg_b32 s94, hwreg(HW_REG_XCC_ID)")
                e("s_xor_b32 s94, s94, s2")
                e("s_and_b32 s94, s94, 7")
                e("s_cbranch_scc0 L_end")
            elif idx == -3:
                e("s_cmp_lg_u32 s2, 0")
                e("s_cbranch_scc1 L_end")
            else:
                e("s_cmp_lg_u32 s2, 0")
                e("s_cbranch_scc1 L_end")
            e(f"s_cmp_lg_u32 s{S_WAVE}, 0")
            e("s_cbranch_scc1 L_end")
            if idx == -3:
                e("s_getreg_b32 s94, hwreg(HW_REG_XCC_ID)")
                e("s_and_b32 s94, s94, 7")
                e(f"s_mul_i32 s96, s94, {K}")
                e("s_add_u32 s96, s96, 5000")
            elif idx < 0:
                e(f"s_mov_b32 s96, {K}")
            else:
                e(f"s_sub_u32 s96, s{S_STAMP + 2 * idx}, s{S_STAMP}")
                e(f"s_mul_i32 s96, s96, {K}")
            e("s_min_u32 s96, s96, 200000")
            e("L_probe:")
            e("s_memrealtime s[98:99]")
            e("s_waitcnt lgkmcnt(0)")
            e(f"s_sub_u32 s98, s98, s{S_STAMP}")
            e("s_cmp_lt_u32 s98, s96")
            e("s_cbranch_scc1 L_probe")
        e("L_end:")
        e("s_endpgm")

        e("L_special:")
        e(f"s_cmp_eq_u32 s{S_WAVE}, {W_PROBE}")
        e("s_cbranch_scc1 L_vote")
        for i in range(4):
            e(f"v_mov_b32 v{4 + i}, -1")
        e("v_lshlrev_b32 v2, 4, v1")
        e(f"s_mul_i32 s{S_T0}, s2, 1536")
        e(f"buffer_store_dwordx4 v[4:7], v2, s[{S_WS}:{S_WS + 3}], s{S_T0} offen sc1")
        e("s_mov_b32 exec_hi, 0")
        e(f"buffer_store_dwordx4 v[4:7], v2, s[{S_WS}:{S_WS + 3}], s{S_T0} offen offset:1024 sc1")
        e(f"s_cmp_ge_u32 s2, {NRED}")
        e("s_cbranch_scc1 L_noclearF")
        e("s_mov_b32 exec_lo, 0xff")
        e(f"s_lshl_b32 s{S_T0}, s2, 7")
        e(f"s_add_u32 s{S_T0}, s{S_T0}, {WS_F}")
        e(f"buffer_store_dwordx4 v[4:7], v2, s[{S_WS}:{S_WS + 3}], s{S_T0} offen sc1")
        e("L_noclearF:")
        e("s_mov_b64 exec, -1")
        e("s_waitcnt vmcnt(0)")
        e("s_branch L_stream")

        e("L_vote:")
        e(f"s_cmp_ge_u32 s2, {NVOTE_WG}")
        e("s_cbranch_scc1 L_stream")
        e("s_bitcmp1_b32 s2, 3")
        e("s_cselect_b64 s[40:41], s[8:9], s[4:5]")
        e(f"s_bfe_u32 s{S_T0}, s2, 0x10004")
        e(f"s_add_u32 s{S_T0}, s{S_T0}, 1")
        e(f"s_lshl_b32 s{S_T0}, s{S_T0}, 25")
        e(f"s_and_b32 s{S_T1}, s2, 7")
        e(f"s_lshl_b32 s{S_T2}, s{S_T1}, 22")
        e(f"s_add_u32 s{S_T0}, s{S_T0}, s{S_T2}")
        e(f"s_lshr_b32 s{S_T2}, s2, 5")
        e(f"s_lshl3_add_u32 s{S_T1}, s{S_T2}, s{S_T1}      ; voter 0..15")
        e(f"s_mul_i32 s{S_T1}, s{S_T1}, {16384 + 512}")
        e(f"s_add_u32 s{S_T0}, s{S_T0}, s{S_T1}")
        e(f"s_add_u32 s{S_T1}, s{S_T0}, 8192")
        self.stamp(1, True)
        e(f"s_load_dword s42, s[40:41], s{S_T0} glc")
        e(f"s_load_dword s43, s[40:41], s{S_T1} glc")
        e(f"s_mov_b32 s{S_CNT}, 0")
        for k in range(NRACE):
            e("s_waitcnt lgkmcnt(0)")
            if k < 2:
                self.stamp(2 + k, True)
                if o.vdiag:
                    e("s_waitcnt lgkmcnt(0)")
            first, second = (S_T0, S_T1) if k % 2 == 0 else (S_T1, S_T0)
            e(f"s_load_dword s42, s[40:41], s{first} glc")
            e(f"s_load_dword s43, s[40:41], s{second} glc")
            e("s_waitcnt lgkmcnt(1)")
            e("s_nop 7")
            e(f"s_getreg_b32 s{S_T2}, hwreg(HW_REG_IB_STS, 8, 4)")
            if k % 2 == 0:
                e(f"s_xor_b32 s{S_T2}, s{S_T2}, 1")
            e(f"s_add_u32 s{S_CNT}, s{S_CNT}, s{S_T2}")
        assert NVOTE_WG // 4 * NRACE // 2 < 32 and NRACE % 2 == 0
        e(f"s_sub_u32 s{S_CNT}, s{S_CNT}, {NRACE // 2}")
        e(f"s_sub_u32 s{S_T2}, 0, s{S_CNT}")
        e("s_bitcmp1_b32 s2, 2")
        e(f"s_cselect_b32 s{S_CNT}, s{S_T2}, s{S_CNT}")
        e(f"s_bfe_u32 s{S_T0}, s2, 0x20003")
        e(f"s_mul_i32 s{S_T0}, s{S_T0}, 6")
        e(f"s_add_u32 s{S_T0}, s{S_T0}, 7")
        e(f"s_lshl_b32 s{S_CNT}, s{S_CNT}, s{S_T0}")
        e(f"s_or_b32 s{S_CNT}, s{S_CNT}, 1")
        e(f"s_mov_b32 s{S_T1}, s{S_CNT}")
        self.stamp(6, True)
        e(f"s_atomic_add s{S_T1}, s[44:45], {DBG_TAL} glc")
        e(f"s_add_u32 s{S_CNT}, s{S_CNT}, {sum(31 << (7 + 6 * t) for t in range(4))}")
        e("s_waitcnt lgkmcnt(0)")
        e(f"s_add_u32 s{S_T1}, s{S_T1}, s{S_CNT}")
        self.stamp(5)
        e(f"s_and_b32 s{S_T0}, s{S_T1}, 0x7f")
        e(f"s_cmp_lg_u32 s{S_T0}, {o.quorum}")
        e("s_cbranch_scc1 L_stream")
        e(f"s_atomic_add s{S_T1}, s[44:45], {DBG_RES}")
        e("s_waitcnt lgkmcnt(0)")
        e("s_branch L_stream")

        e("L_dpoll:")
        e(f"s_mov_b32 s{S_CNT}, {SPIN}")
        e(f"v_mov_b32 v{V_AT}, 0")
        e("s_mov_b64 exec, 1")
        e("L_dloop:")
        e(f"buffer_load_dword v{V_AT}, off, s[{S_DBG}:{S_DBG + 3}], 0 offset:{DBG_RES} sc1")
        e(f"s_sleep {o.dsleep}")
        e("s_waitcnt vmcnt(24)")
        e(f"v_readfirstlane_b32 s{S_T2}, v{V_AT}")
        e(f"s_sub_u32 s{S_CNT}, s{S_CNT}, 1")
        e("s_cbranch_scc1 L_dgot")
        e(f"s_cmp_eq_u32 s{S_T2}, 0")
        e("s_cbranch_scc1 L_dloop")
        e("L_dgot:")
        e("s_mov_b64 exec, -1")
        e("s_branch L_decided")

        e("L_cntchk:")
        e(f"s_mov_b32 s{S_CNT}, {SPIN}")
        e("L_cntloop:")
        e(f"v_readfirstlane_b32 s{S_T0}, v{V_AT}")
        e(f"s_sub_u32 s{S_CNT}, s{S_CNT}, 1")
        e("s_cbranch_scc1 L_cntok")
        e(f"s_cmp_ge_u32 s{S_T0}, {NWG}")
        e("s_cbranch_scc1 L_cntok")
        e(f"buffer_load_dword v{V_AT}, off, s[{S_DBG}:{S_DBG + 3}], 0 offset:{DBG_CNT} sc1")
        e("s_waitcnt vmcnt(0)")
        e("s_branch L_cntloop")

    def text(self):
        out = HEADER
        out += f"; @launch grid=({NWG},1,1) block=(768,1,1) lds={L_TOTAL}\n"
        out += '.amdgcn_target "amdgcn-amd-amdhsa--gfx950"\n.text\n'
        out += f".globl {KNAME}\n.p2align 8\n.type {KNAME},@function\n{KNAME}:\n"
        out += "\n".join(self.lines) + "\n"
        out += f""".section .rodata,"a"
.p2align 6
.amdhsa_kernel {KNAME}
  .amdhsa_next_free_vgpr 168
  .amdhsa_next_free_sgpr {100 if self.o.stamps else 56}
  .amdhsa_accum_offset 168
  .amdhsa_group_segment_fixed_size 0
  .amdhsa_kernarg_size 48
  .amdhsa_user_sgpr_count 2
  .amdhsa_user_sgpr_kernarg_segment_ptr 1
  .amdhsa_system_sgpr_workgroup_id_x 1
  .amdhsa_float_denorm_mode_32 3
.end_amdhsa_kernel
"""
        return out


def main():
    p = argparse.ArgumentParser()
    p.add_argument("-o", default="standalone__channel_attn_cbam__vision.s")
    p.add_argument("--ldflags", default="nt")
    p.add_argument("--stflags", default="sc1")
    p.add_argument("--p1flags", default="sc1")
    p.add_argument("--stamps", action="store_true")
    p.add_argument("--probe", default="")
    p.add_argument("--depth", type=int, default=12)
    p.add_argument("--nrace", type=int, default=2)
    p.add_argument("--dsleep", type=int, default=8)
    p.add_argument("--trace", default="")
    p.add_argument("--nodec", action="store_true")
    p.add_argument("--vdiag", action="store_true")
    p.add_argument("--opp", default="5,9", type=lambda v: [int(x) for x in v.split(",")])
    p.add_argument("--quorum", type=int, default=32)
    p.add_argument("--zorder", default="6,0,7,8,1,9,2,10,11,3,12,4,13,14,5,15")
    o = p.parse_args()
    g = G(o)
    g.build()
    open(o.o, "w").write(g.text())


if __name__ == "__main__":
    main()
```

```python
import argparse

KNAME = "standalone__channel_attn_cbam__vision_kernel"

HEADER = """; Kernarg layout for this problem (48 bytes, ptrs only, base s[0:1]):
"""

X_BYTES = 100663296
NWG = 256
NRED = 12
MiB = 1 << 20

L_RED = 0
L_H = 6144
L_DEC = 6336
L_S = 6400
L_R2 = 7168
L_W1 = 8192
L_W2 = L_W1 + 18432
L_SPILL = L_W2 + 18432
L_TOTAL = L_SPILL + 3 * 8192

WS_P = 0
WS_F = 256 * 1536
WS_STAMP = 1 << 20
WS_USED = WS_F + 12 * 128

S_X, S_OUT, S_WS, S_DBG, S_W = 4, 8, 12, 16, 20
S_WAVE, S_TY, S_SUB, S_OFF, S_MASK, S_CNT, S_T0, S_T1 = 28, 29, 30, 31, 32, 33, 34, 35
S_BASE, S_PM, S_P, S_T2 = 48, 49, 50, 51
S_STAMP = 52
S_V = 24

D0 = 40
SPIN = 400000
V_A0, V_A1, V_D0, V_D1, V_AT = 0, 39, 38, 37, 36

NAGN = 6
SPANS = [(0, 0), (0, 1), (1, 0), (1, 1), (2, 0), (2, 1),
         (3, 0), (6, 0), (3, 1), (6, 1), (4, 0), (7, 0), (4, 1), (7, 1), (5, 0), (5, 1)]
W_CLEAR, W_PROBE, W_READ = 10, 11, 0
DBG_RES, DBG_TAL, DBG_CNT = 0, 128, 192
NVOTE_WG = 64


def mask(pred):
    return sum(1 << z for z, s in enumerate(SPANS) if pred(z, s))


class G:
    def __init__(self, o):
        self.o = o
        self.lines = []

    def e(self, s=""):
        self.lines.append(("    " + s) if s and not s.endswith(":") else s)

    def stamp(self, idx, vote=False):
        if self.o.vdiag and idx in (1, 2, 3, 6) and not vote:
            return
        if vote and not self.o.vdiag:
            return
        if self.o.stamps and not (self.o.trace and idx > 10):
            self.e(f"s_memrealtime s[{S_STAMP + 2 * idx}:{S_STAMP + 2 * idx + 1}]")

    def srd(self, d, lo, nbytes):
        e = self.e
        e(f"s_mov_b64 s[{d}:{d + 1}], s[{lo}:{lo + 1}]")
        e(f"s_mov_b32 s{d + 2}, {nbytes}")
        e(f"s_mov_b32 s{d + 3}, 0x20000")

    def span_off(self, z):
        return SPANS[z][0] * 12 * MiB + SPANS[z][1] * 49152

    def mem(self, j, fn):
        e = self.e
        z, u = j >> 1, j & 1
        if u == 0:
            e(f"s_bfe_u32 s{S_P}, s{S_PM}, {(1 << 16) | z}")
            if self.span_off(z):
                e(f"s_add_u32 s{S_OFF}, s{S_BASE}, {self.span_off(z)}")
            else:
                e(f"s_mov_b32 s{S_OFF}, s{S_BASE}")
        at = 2 + u
        e(f"v_mad_i32_i24 v{at}, v{(V_D0, V_D1)[u]}, s{S_P}, v{(V_A0, V_A1)[u]}")
        fn(f"v{at}")

    def trace(self, kind, n):
        if self.o.trace == kind:
            if n > 0:
                self.e("s_waitcnt lgkmcnt(0)")
                self.e(f"s_mov_b32 s{76 + n - 1}, s92")
            self.e("s_memrealtime s[92:93]")

    def build(self):
        o, e = self.o, self.e
        NRACE = o.nrace
        ldf = (" " + o.ldflags) if o.ldflags else ""
        stf = (" " + o.stflags) if o.stflags else ""

        self.stamp(0)
        e("s_load_dwordx2 s[4:5], s[0:1], 0          ; x")
        e("s_load_dwordx4 s[36:39], s[0:1], 8        ; w1, w2")
        e("s_load_dwordx2 s[8:9], s[0:1], 24         ; out")
        e("s_load_dwordx4 s[44:47], s[0:1], 32")
        e("s_cmp_ge_u32 s2, %d" % NWG)
        e("s_cbranch_scc1 L_end")
        e("v_readfirstlane_b32 s%d, v0" % S_WAVE)
        e("v_and_b32 v1, 63, v0                      ; lane")
        e("v_lshrrev_b32 v2, 3, v1")
        e("v_mul_u32_u24 v2, 384, v2")
        e("v_and_b32 v3, 7, v1")
        e("v_lshl_add_u32 v0, v3, 4, v2")
        e(f"s_lshr_b32 s{S_WAVE}, s{S_WAVE}, 6")
        e(f"s_mul_i32 s{S_SUB}, s{S_WAVE}, 43")
        e(f"s_lshr_b32 s{S_SUB}, s{S_SUB}, 7")
        e(f"s_mul_i32 s{S_TY}, s{S_SUB}, 3")
        e(f"s_sub_u32 s{S_TY}, s{S_WAVE}, s{S_TY}        ; ty = wave % 3")
        e(f"s_mul_i32 s{S_T0}, s{S_SUB}, 3072")
        e(f"s_lshl_b32 s{S_T1}, s{S_TY}, 7")
        e(f"s_add_u32 s{S_T0}, s{S_T0}, s{S_T1}")
        e(f"v_add_u32 v{V_A0}, s{S_T0}, v0")
        e(f"v_add_u32 v{V_A1}, 12288, v{V_A0}")
        e(f"s_movk_i32 s{S_T2}, 24576")
        for a, d in ((V_A0, V_D0), (V_A1, V_D1)):
            e(f"v_bfe_u32 v2, v{a}, 13, 1                 ; 1 identifies k' = 1")
            e(f"v_mad_u32_u24 v{a}, v2, s{S_T2}, v{a}")
            e(f"v_mad_i32_i24 v2, v2, -2, 1")
            e(f"v_mul_i32_i24 v{d}, s{S_T2}, v2")
        e(f"s_lshr_b32 s{S_T0}, s2, 1")
        e(f"s_and_b32 s{S_T0}, s{S_T0}, 0x7c")
        e(f"s_and_b32 s{S_T1}, s2, 3")
        e(f"s_add_u32 s{S_T0}, s{S_T0}, s{S_T1}")
        e(f"s_mul_i32 s{S_BASE}, s{S_T0}, 98304")
        h1 = mask(lambda z, s: s[1] == 1)
        alt = mask(lambda z, s: z < NAGN and s[1] == 1)
        e(f"s_bfe_i32 s{S_PM}, s2, 0x10002              ; -side")
        e(f"s_bfe_u32 s{S_T0}, s2, 0x10003")
        e(f"s_lshr_b32 s{S_T0}, {alt}, s{S_T0}")
        e(f"s_xor_b32 s{S_PM}, s{S_PM}, s{S_T0}")
        e(f"s_add_u32 s{S_T0}, s{S_BASE}, s{S_T2}")
        e(f"s_bfe_i32 s{S_T1}, s{S_T0}, 0x10015")
        e(f"s_xor_b32 s{S_PM}, s{S_PM}, s{S_T1}")
        e(f"s_add_u32 s{S_T2}, s{S_T0}, 49152")
        e(f"s_xor_b32 s{S_T0}, s{S_T0}, s{S_T2}")
        e(f"s_bfe_i32 s{S_T0}, s{S_T0}, 0x10015")
        e(f"s_and_b32 s{S_T0}, s{S_T0}, {h1}")
        e(f"s_xor_b32 s{S_PM}, s{S_PM}, s{S_T0}")
        e(f"s_mov_b32 s{S_X + 2}, {X_BYTES}")
        e(f"s_mov_b32 s{S_X + 3}, 0x20000")
        e(f"s_mov_b32 s{S_OUT + 2}, s{S_X + 2}")
        e(f"s_mov_b32 s{S_OUT + 3}, s{S_X + 3}")
        e(f"s_mov_b32 s{S_WS + 2}, {(2 << 20) if o.stamps else WS_USED}")
        e(f"s_mov_b32 s{S_WS + 3}, s{S_X + 3}")
        e(f"s_movk_i32 s{S_DBG + 2}, 256")
        e(f"s_mov_b32 s{S_DBG + 3}, s{S_X + 3}")
        e(f"s_cmp_ge_u32 s{S_WAVE}, {W_CLEAR}")
        e("s_waitcnt lgkmcnt(0)")
        e(f"s_mov_b64 s[{S_WS}:{S_WS + 1}], s[46:47]")
        e(f"s_mov_b64 s[{S_DBG}:{S_DBG + 1}], s[44:45]")
        e("s_cbranch_scc1 L_special")
        e("L_stream:")

        SUM, MAX, T = 4, 12, 20
        DEPTH = o.depth
        assert DEPTH >= 2 * NAGN
        seq = []

        def issue(j):
            if j == 2 * NAGN:
                m1 = mask(lambda z, s: z >= NAGN and s[0] in (3, 4))
                z50 = SPANS.index((5, 0))
                z51 = SPANS.index((5, 1))
                dec = mask(lambda z, s: z >= NAGN)
                e(f"s_cmp_lt_u32 s{S_BASE}, {4 * MiB - 24576}")
                e(f"s_cselect_b32 s{S_T0}, {1 << z50}, 0")
                e(f"s_or_b32 s{S_T0}, s{S_T0}, {m1}")
                e(f"s_cmp_lt_u32 s{S_BASE}, {4 * MiB - 24576 - 49152}")
                e(f"s_cselect_b32 s{S_T1}, {1 << z51}, 0")
                e(f"s_or_b32 s{S_T0}, s{S_T0}, s{S_T1}            ; third 1")
                e(f"s_xor_b32 s{S_T1}, s{S_T0}, {dec}           ; third 2")
                per, pat = o.opp
                rep = sum(((pat >> (i % per)) & 1) << i for i in range(32))
                e(f"s_lshr_b32 s{S_P}, s2, 3")
                e(f"s_mul_i32 s{S_T2}, s{S_P}, {-(-256 // per)}")
                e(f"s_lshr_b32 s{S_T2}, s{S_T2}, 8")
                e(f"s_mul_i32 s{S_T2}, s{S_T2}, {per}")
                e(f"s_sub_u32 s{S_P}, s{S_P}, s{S_T2}             ; (b >> 3) % {per}")
                e(f"s_lshr_b32 s{S_P}, {rep}, s{S_P}")
                e(f"s_mov_b32 s{S_MASK}, 0xffff0000")
                e(f"s_cmp_lg_u32 s{S_WAVE}, {W_CLEAR}")
                self.stamp(11)
                e("s_barrier")
                e(f"s_load_dword s{S_T2}, s[44:45], {DBG_RES}")
                e("s_cbranch_scc1 L_nocnt")
                e("v_mov_b32 v3, 1")
                e("s_mov_b64 exec, 1")
                e(f"buffer_atomic_add v3, off, s[{S_DBG}:{S_DBG + 3}], 0 offset:{DBG_CNT}")
                e("s_mov_b64 exec, -1")
                e("L_nocnt:")
                e("s_waitcnt lgkmcnt(0)")
                e(f"s_cmp_eq_u32 s{S_T2}, 0")
                e("s_cbranch_scc1 L_dpoll")
                e("L_decided:")
                for i in range(4):
                    e(f"s_bitcmp1_b32 s{S_T2}, {7 + 6 * i + 5}")
                    e(f"s_cselect_b32 s{S_V + i}, s{(S_T0, S_T1)[i >> 1]}, 0")
                e(f"s_or_b32 s{S_V}, s{S_V}, s{S_V + 2}")
                e(f"s_or_b32 s{S_V + 1}, s{S_V + 1}, s{S_V + 3}")
                e(f"s_xor_b32 s{S_V}, s{S_V}, s{S_V + 1}")
                if o.nodec:
                    e(f"s_mov_b32 s{S_V}, {dec}")
                e(f"s_and_b32 s{S_V}, s{S_V}, s{S_P}")
                e(f"s_xor_b32 s{S_V}, s{S_V}, s{S_V + 1}")
                e(f"s_xor_b32 s{S_PM}, s{S_PM}, s{S_V}")
                self.stamp(12)
            if j == 30:
                e(f"s_cmp_lg_u32 s{S_WAVE}, {W_CLEAR}")
                e("s_cbranch_scc1 L_nosmp")
                e(f"buffer_load_dword v{V_AT}, off, s[{S_DBG}:{S_DBG + 3}], 0 offset:{DBG_CNT} sc1")
                e("L_nosmp:")
            r = D0 + 4 * j
            self.mem(j, lambda va: e(f"buffer_load_dwordx4 v[{r}:{r + 3}], {va}, s[{S_X}:{S_X + 3}], s{S_OFF} offen{ldf}"))
            seq.append(j)
            if j & 1:
                self.trace("ld", j >> 1)

        def wait_for(j):
            e(f"s_waitcnt vmcnt({len(seq) - 1 - seq.index(j)})")

        nxt = 0
        for jj in range(16):
            while nxt < 32 and nxt < 2 * jj + DEPTH + 2:
                issue(nxt)
                nxt += 1
                if nxt == 32:
                    self.stamp(1)
            a, b = D0 + 8 * jj, D0 + 8 * jj + 4
            if jj == 15:
                e("v_and_b32 v2, 7, v1")
                e("v_lshlrev_b32 v2, 5, v2                   ; (l&7)*32")
                e("v_lshrrev_b32 v3, 4, v1")
                e("v_lshl_add_u32 v2, v3, 3, v2              ; + (l>>4)*8")
                e("v_bfe_u32 v3, v1, 3, 1")
                e("v_mul_u32_u24 v3, 768, v3")
                e(f"s_mul_i32 s{S_T0}, s{S_SUB}, 1536")
                e(f"s_lshl_b32 s{S_T1}, s{S_TY}, 8")
                e(f"s_add_u32 s{S_T0}, s{S_T0}, s{S_T1}")
                e(f"v_add3_u32 v2, v2, v3, s{S_T0}")
                e(f"s_mul_i32 s{S_T0}, s{S_WAVE}, 768")
                e(f"v_lshl_add_u32 v3, v1, 4, s{S_T0}")
                e(f"s_mul_i32 s{S_T1}, s2, 1536")
                for r in (a, b):
                    wait_for((r - D0) // 4)
                    if r == b:
                        self.stamp(3)
                    for i in range(4):
                        t = T + 2 * i
                        e(f"v_lshlrev_b32 v{t}, 16, v{r + i}")
                        e(f"v_and_b32 v{t + 1}, s{S_MASK}, v{r + i}")
                    for i in range(8):
                        e(f"v_max_f32 v{MAX + i}, v{MAX + i}, v{T + i}")
                    for i in range(4):
                        t, s = T + 2 * i, SUM + 2 * i
                        e(f"v_pk_add_f32 v[{s}:{s + 1}], v[{s}:{s + 1}], v[{t}:{t + 1}]")
                continue
            wait_for(2 * jj + 1)
            if jj == 0:
                self.stamp(2)
            for i in range(4):
                t = T + 4 * i
                e(f"v_lshlrev_b32 v{t}, 16, v{a + i}")
                e(f"v_and_b32 v{t + 1}, s{S_MASK}, v{a + i}")
                e(f"v_lshlrev_b32 v{t + 2}, 16, v{b + i}")
                e(f"v_and_b32 v{t + 3}, s{S_MASK}, v{b + i}")
            for i in range(4):
                t = T + 4 * i
                s, m = SUM + 2 * i, MAX + 2 * i
                if jj == 0:
                    e(f"v_max_f32 v{m}, v{t}, v{t + 2}")
                    e(f"v_max_f32 v{m + 1}, v{t + 1}, v{t + 3}")
                    e(f"v_pk_add_f32 v[{s}:{s + 1}], v[{t}:{t + 1}], v[{t + 2}:{t + 3}]")
                else:
                    e(f"v_max3_f32 v{m}, v{m}, v{t}, v{t + 2}")
                    e(f"v_max3_f32 v{m + 1}, v{m + 1}, v{t + 1}, v{t + 3}")
                    e(f"v_pk_add_f32 v[{t}:{t + 1}], v[{t}:{t + 1}], v[{t + 2}:{t + 3}]")
            if jj:
                for i in range(4):
                    t = T + 4 * i
                    s = SUM + 2 * i
                    e(f"v_pk_add_f32 v[{s}:{s + 1}], v[{s}:{s + 1}], v[{t}:{t + 1}]")

        for base in (MAX, SUM):
            for i in range(4):
                e(f"v_permlane32_swap_b32 v{base + i}, v{base + 4 + i}")
        for i in range(4):
            e(f"v_max_f32 v{MAX + i}, v{MAX + i}, v{MAX + 4 + i}")
        for i in range(4):
            e(f"v_add_f32 v{SUM + i}, v{SUM + i}, v{SUM + 4 + i}")
        for i in range(2):
            e(f"v_permlane16_swap_b32 v{MAX + i}, v{MAX + 2 + i}")
        for i in range(2):
            e(f"v_permlane16_swap_b32 v{SUM + i}, v{SUM + 2 + i}")
        for i in range(2):
            e(f"v_add_f32 v{SUM + i}, v{SUM + i}, v{SUM + 2 + i}")
        for i in range(2):
            e(f"v_max_f32 v{MAX + i}, v{MAX + i}, v{MAX + 2 + i}")
        e(f"s_cmp_eq_u32 s{S_WAVE}, {W_CLEAR}")
        for i in range(2):
            e(f"v_add_f32_dpp v{SUM + i}, v{SUM + i}, v{SUM + i} row_ror:8 row_mask:0xf bank_mask:0x3")
        for i in range(2):
            e(f"v_max_f32_dpp v{SUM + i}, v{MAX + i}, v{MAX + i} row_ror:8 row_mask:0xf bank_mask:0xc")
        e(f"ds_write_b64 v2, v[{SUM}:{SUM + 1}] offset:{L_RED}")
        e("s_cbranch_scc1 L_cntchk")
        e("L_cntok:")
        e(f"s_cmp_ge_u32 s{S_WAVE}, 2")
        e("s_waitcnt lgkmcnt(0)")
        e("s_barrier")
        self.stamp(4)
        e("s_cbranch_scc1 L_nopub")

        e("s_mov_b32 exec_hi, 0xffff")
        for k in range(4):
            e(f"ds_read_b128 v[{4 + 4 * k}:{7 + 4 * k}], v3 offset:{L_RED + 1536 * k}")
        e(f"s_cmp_eq_u32 s{S_WAVE}, 0")
        e(f"s_cselect_b64 s[{S_W}:{S_W + 1}], s[36:37], s[38:39]")
        e("s_cbranch_scc0 L_pubmax")
        e("s_waitcnt lgkmcnt(2)")
        e("v_pk_add_f32 v[4:5], v[4:5], v[8:9]")
        e("v_pk_add_f32 v[6:7], v[6:7], v[10:11]")
        e("s_waitcnt lgkmcnt(0)")
        e("v_pk_add_f32 v[12:13], v[12:13], v[16:17]")
        e("v_pk_add_f32 v[14:15], v[14:15], v[18:19]")
        e("v_pk_add_f32 v[4:5], v[4:5], v[12:13]")
        e("v_pk_add_f32 v[6:7], v[6:7], v[14:15]")
        e("s_branch L_pub")
        e("L_pubmax:")
        e("s_waitcnt lgkmcnt(1)")
        for i in range(4):
            e(f"v_max3_f32 v{4 + i}, v{4 + i}, v{8 + i}, v{12 + i}")
        e("s_waitcnt lgkmcnt(0)")
        for i in range(4):
            e(f"v_max_f32 v{4 + i}, v{4 + i}, v{16 + i}")
        e("L_pub:")
        for i in range(4):
            e(f"v_min_u32 v{4 + i}, -2, v{4 + i}")
        e(f"buffer_store_dwordx4 v[4:7], v3, s[{S_WS}:{S_WS + 3}], s{S_T1} offen sc1")
        e("s_mov_b64 exec, -1")
        e(f"s_movk_i32 s{S_W + 2}, 18432")
        e(f"s_mov_b32 s{S_W + 3}, 0x20000")
        e(f"s_mul_i32 s{S_T0}, s{S_WAVE}, 18432")
        e(f"s_add_u32 s{S_T0}, s{S_T0}, {L_W1}")
        e(f"s_mov_b32 s{S_T1}, 0")
        e("v_lshlrev_b32 v2, 4, v1")
        e("L_wloop:")
        e(f"s_add_u32 m0, s{S_T0}, s{S_T1}")
        e(f"s_cmp_lt_u32 s{S_T1}, {18432 - 3072}")
        for k in range(3):
            e(f"buffer_load_dwordx4 v2, s[{S_W}:{S_W + 3}], s{S_T1} offen offset:{k * 1024} lds")
        e(f"s_cbranch_scc0 L_nopub")
        e(f"s_addk_i32 s{S_T1}, 3072")
        e("s_branch L_wloop")
        e("L_nopub:")

        B2 = 28
        V_H0, V_H1, V_SW, V_SR = 24, 25, 26, 27
        SP0 = 136
        A1 = 144
        B1 = [4, 8, 12, 16, 136, 140]
        e("v_lshrrev_b32 v20, 4, v1                  ; q")
        e(f"s_cmp_lt_u32 s{S_WAVE}, 3")
        e("s_cbranch_scc1 L_spill")
        e(f"s_cmp_ge_u32 s2, {NRED}")
        e("s_cbranch_scc1 L_barw")
        e(f"s_cmp_eq_u32 s{S_WAVE}, 3")
        e("s_cbranch_scc1 L_rfinal")

        e("v_lshrrev_b32 v2, 3, v1")
        e("v_mul_u32_u24 v2, 1536, v2")
        e("v_and_b32 v3, 7, v1")
        e("v_lshl_add_u32 v2, v3, 4, v2")
        e(f"s_sub_u32 s{S_T0}, s{S_WAVE}, 4")
        e(f"s_lshl_b32 s{S_T1}, s{S_T0}, 7")
        e(f"v_lshl_add_u32 v3, v3, 4, s{S_T1}")
        e("v_lshl_add_u32 v3, v20, 2, v3")
        e(f"s_mul_i32 s{S_T0}, s{S_T0}, {32 * 1536}")
        e(f"s_lshl_b32 s{S_T1}, s2, 7")
        e(f"s_add_u32 s{S_V}, s{S_T0}, s{S_T1}")
        for k in range(1, 4):
            e(f"s_add_u32 s{S_V + k}, s{S_V}, {k * 8 * 1536}")
        e(f"s_mov_b32 s{S_CNT}, {SPIN}")
        e("L_rpoll:")
        for k in range(4):
            e(f"buffer_load_dwordx4 v[{4 + 4 * k}:{7 + 4 * k}], v2, s[{S_WS}:{S_WS + 3}], s{S_V + k} offen {o.p1flags}")
        e(f"s_sub_u32 s{S_CNT}, s{S_CNT}, 1")
        e("s_cbranch_scc1 L_rgot")
        e("s_waitcnt vmcnt(2)")
        e("v_max3_u32 v21, v4, v5, v6")
        e("v_max3_u32 v22, v7, v8, v9")
        e("v_max3_u32 v21, v21, v10, v11")
        e("s_waitcnt vmcnt(1)")
        e("v_max3_u32 v22, v22, v12, v13")
        e("v_max3_u32 v21, v21, v14, v15")
        e("s_waitcnt vmcnt(0)")
        e("v_max3_u32 v22, v22, v16, v17")
        e("v_max3_u32 v21, v21, v18, v19")
        e("v_max_u32 v21, v21, v22")
        e("v_cmp_eq_u32 vcc, -1, v21")
        e("s_cbranch_vccnz L_rpoll")
        e("L_rgot:")
        e("s_waitcnt vmcnt(0)")
        self.stamp(9)
        e("s_cmp_ge_u32 s2, 6")
        e("s_cbranch_scc1 L_rmax")
        for kind in (0, 1):
            op = "v_add_f32" if kind == 0 else "v_max_f32"
            if kind == 1:
                e("L_rmax:")
                for i in range(4):
                    e(f"v_max3_f32 v{4 + i}, v{4 + i}, v{8 + i}, v{12 + i}")
                for i in (0, 2, 1, 3):
                    e(f"v_max_f32 v{4 + i}, v{4 + i}, v{16 + i}")
            else:
                e("v_pk_add_f32 v[4:5], v[4:5], v[8:9]")
                e("v_pk_add_f32 v[6:7], v[6:7], v[10:11]")
                e("v_pk_add_f32 v[12:13], v[12:13], v[16:17]")
                e("v_pk_add_f32 v[14:15], v[14:15], v[18:19]")
                e("v_pk_add_f32 v[4:5], v[4:5], v[12:13]")
                e("v_pk_add_f32 v[6:7], v[6:7], v[14:15]")
            e("s_nop 1")
            e("v_permlane32_swap_b32 v4, v6")
            e("v_permlane32_swap_b32 v5, v7")
            e(f"{op} v4, v4, v6")
            e(f"{op} v5, v5, v7")
            e("s_nop 1")
            e("v_permlane16_swap_b32 v4, v5")
            e(f"{op} v4, v4, v5")
            e("s_nop 1")
            e(f"{op}_dpp v4, v4, v4 row_ror:8 row_mask:0xf bank_mask:0xf")
            e(f"ds_write_b32 v3, v4 offset:{L_R2}")
            e("s_branch L_barw")

        e("L_rfinal:")
        e("v_and_b32 v2, 15, v1")
        e("v_lshlrev_b32 v3, 3, v2")
        e("v_lshl_add_u32 v3, v20, 8, v3")
        e("v_lshlrev_b32 v2, 2, v2")
        e(f"s_lshl_b32 s{S_T1}, s2, 7")
        e(f"s_add_u32 s{S_T1}, s{S_T1}, {WS_F}")
        e("s_cmp_ge_u32 s2, 6")
        e("s_cbranch_scc1 L_rfmax")
        for kind in (0, 1):
            op = "v_add_f32" if kind == 0 else "v_max_f32"
            if kind == 1:
                e("L_rfmax:")
            e("s_barrier")
            e(f"ds_read_b64 v[4:5], v3 offset:{L_R2}")
            e(f"ds_read_b64 v[6:7], v3 offset:{L_R2 + 128}")
            e("s_waitcnt lgkmcnt(0)")
            e(f"{op} v4, v4, v6")
            e(f"{op} v5, v5, v7")
            e("s_nop 1")
            e("v_permlane32_swap_b32 v4, v5")
            e(f"{op} v4, v4, v5")
            e("v_mov_b32 v5, v4")
            e("s_nop 1")
            e("v_permlane16_swap_b32 v4, v5")
            e(f"{op} v4, v4, v5                        ; lanes <32: c0, lanes >=32: c1")
            if kind == 0:
                e("v_mul_f32 v4, 0x36800000, v4              ; 1/262144")
            e("v_mov_b32 v5, v4")
            e("s_nop 1")
            e("v_permlane32_swap_b32 v4, v5")
            e("v_cvt_pk_bf16_f32 v4, v4, v5")
            e("s_mov_b64 exec, 0xffff")
            e("v_min_u32 v4, -2, v4")
            e(f"buffer_store_dword v4, v2, s[{S_WS}:{S_WS + 3}], s{S_T1} offen sc1")
            self.stamp(9)
            e("s_mov_b64 exec, -1")
            e("s_branch L_afterw")

        e("L_spill:")
        e(f"s_lshl_b32 s{S_T0}, s{S_WAVE}, 13")
        e(f"v_lshl_add_u32 v{V_AT}, v1, 4, s{S_T0}")
        for k in range(8):
            e(f"ds_write_b128 v{V_AT}, v[{SP0 + 4 * k}:{SP0 + 4 * k + 3}] offset:{L_SPILL + 1024 * k}")
        e("L_barw:")
        e("s_waitcnt vmcnt(0) lgkmcnt(0)")
        e("s_barrier")
        e("L_afterw:")
        e("v_bfe_u32 v3, v1, 2, 2")
        e("v_lshl_add_u32 v21, v20, 3, v3            ; row")
        e("v_and_b32 v22, 15, v21")
        e("v_and_b32 v3, 3, v1")
        e(f"s_lshl_b32 s{S_T2}, s{S_WAVE}, 5")
        e(f"v_lshl_add_u32 v23, v3, 3, s{S_T2}")
        e("v_mov_b32 v3, 384")
        e("v_mad_u32_u24 v2, v21, v3, v23")
        e("v_mad_u32_u24 v22, v22, v3, v23")
        e(f"ds_read_b64_tr_b16 v[{B2}:{B2 + 1}], v2 offset:{L_W2}")
        e(f"ds_read_b64_tr_b16 v[{B2 + 2}:{B2 + 3}], v2 offset:{L_W2 + 4 * 384}")
        e(f"ds_read_b64_tr_b16 v[{B2 + 4}:{B2 + 5}], v22 offset:{L_W2 + 32 * 384}")
        e(f"ds_read_b64_tr_b16 v[{B2 + 6}:{B2 + 7}], v22 offset:{L_W2 + 36 * 384}")
        e("v_and_b32 v2, 1, v1")
        e("v_mul_u32_u24 v22, 96, v2")
        e(f"v_lshl_add_u32 v{V_H0}, v20, 4, v22")
        e("v_and_b32 v3, 1, v20")
        e(f"v_lshl_add_u32 v{V_H1}, v3, 4, v22")
        e(f"s_lshl_b32 s{S_T0}, s{S_WAVE}, 6")
        e(f"v_lshl_add_u32 v{V_SW}, v1, 2, s{S_T0}")
        e("v_and_b32 v3, 7, v1")
        e(f"s_lshl_b32 s{S_T0}, s{S_TY}, 8")
        e(f"v_lshl_add_u32 v{V_SR}, v3, 5, s{S_T0}")
        e("s_waitcnt lgkmcnt(0)")
        e("s_mov_b32 exec_lo, 0")
        for i in range(4):
            e(f"v_mov_b32 v{B2 + 4 + i}, 0")
        e("s_mov_b64 exec, -1")
        e(f"s_cmp_ge_u32 s{S_WAVE}, 3")
        e("s_cbranch_scc1 L_join")

        e("v_mov_b32 v3, 96")
        e("v_mad_u32_u24 v2, v21, v3, v23")
        for s in range(6):
            for h in range(2):
                r = A1 + 4 * s + 2 * h
                e(f"ds_read_b64_tr_b16 v[{r}:{r + 1}], v2 offset:{L_W1 + s * 3072 + h * 384}")
        e(f"v_lshl_add_u32 v3, v20, 3, v22")
        e(f"v_add_u32 v3, s{S_T2}, v3")
        e("v_lshlrev_b32 v2, 3, v22")
        e("v_lshl_add_u32 v2, v20, 4, v2")
        for b in B1:
            for i in range(4):
                e(f"v_mov_b32 v{b + i}, 0")
        e(f"s_mov_b32 s{S_T1}, {WS_F}")
        e(f"s_mov_b32 s{S_CNT}, {SPIN}")
        e("s_waitcnt lgkmcnt(0)")
        e("L_fpoll:")
        e("s_mov_b32 exec_lo, 0x00030003")
        e("s_mov_b32 exec_hi, 0x00030003")
        for s in range(6):
            e(f"buffer_load_dwordx4 v[{B1[s]}:{B1[s] + 3}], v2, s[{S_WS}:{S_WS + 3}], s{S_T1} offen offset:{128 * s} sc1")
        e("s_mov_b64 exec, -1")
        e(f"s_sub_u32 s{S_CNT}, s{S_CNT}, 1")
        for s in range(6):
            c = "0" if s == 0 else "v[20:23]"
            b = B1[s]
            e(f"s_waitcnt vmcnt({5 - s})")
            e(f"v_mfma_f32_16x16x32_bf16 v[20:23], v[{A1 + 4 * s}:{A1 + 4 * s + 3}], v[{b}:{b + 3}], {c}")
            if s == 0:
                e(f"v_max3_u32 v1, v{b}, v{b + 1}, v{b + 2}")
                e(f"v_max_u32 v1, v1, v{b + 3}")
            else:
                e(f"v_max3_u32 v1, v1, v{b}, v{b + 1}")
                e(f"v_max3_u32 v1, v1, v{b + 2}, v{b + 3}")
        e("v_cmp_eq_u32 vcc, -1, v1")
        e("s_cbranch_scc1 L_fgot")
        e("s_cbranch_vccnz L_fpoll")
        e("L_fgot:")
        self.stamp(5)
        e("s_mov_b32 exec_lo, 0x00030003")
        e("s_mov_b32 exec_hi, 0x00030003")
        e("s_nop 1")
        for i in range(4):
            e(f"v_maximum3_f32 v{20 + i}, v{20 + i}, 0, 0")
        e("v_cvt_pk_bf16_f32 v20, v20, v21")
        e("v_cvt_pk_bf16_f32 v21, v22, v23")
        e(f"ds_write_b64 v3, v[20:21] offset:{L_H}")
        e("s_mov_b64 exec, -1")
        e("s_waitcnt lgkmcnt(0)")

        e("L_join:")
        e("s_barrier")
        self.stamp(6)
        e(f"ds_read_b128 v[4:7], v{V_H0} offset:{L_H}")
        e(f"ds_read_b128 v[8:11], v{V_H1} offset:{L_H + 64}")
        e("s_waitcnt lgkmcnt(1)")
        e(f"v_mfma_f32_16x16x32_bf16 v[12:15], v[4:7], v[{B2}:{B2 + 3}], 0")
        e("s_waitcnt lgkmcnt(0)")
        e(f"v_mfma_f32_16x16x32_bf16 v[12:15], v[8:11], v[{B2 + 4}:{B2 + 7}], v[12:15]")
        e("s_mov_b64 exec, 0xffff")
        e("s_nop 6")
        e("v_cvt_pk_bf16_f32 v12, v12, v13")
        e("v_lshlrev_b32 v13, 16, v12")
        e(f"v_and_b32 v12, s{S_MASK}, v12")
        e("v_add_f32 v12, v12, v13")
        e("v_cvt_pk_bf16_f32 v12, v12, v12")
        e("v_lshlrev_b32 v12, 16, v12")
        e("v_mul_f32 v12, 0xbfb8aa3b, v12            ; -log2(e)")
        e("v_exp_f32 v12, v12")
        e("s_nop 0")
        e("v_add_f32 v12, 1.0, v12")
        e("v_rcp_f32 v12, v12")
        e("s_nop 0")
        e("v_cvt_pk_bf16_f32 v12, v12, v12")
        e("v_lshlrev_b32 v12, 16, v12")
        e(f"ds_write_b32 v{V_SW}, v12 offset:{L_S}")
        e("s_mov_b64 exec, -1")
        e("s_waitcnt lgkmcnt(0)")
        e("s_barrier")
        e(f"ds_read_b128 v[4:7], v{V_SR} offset:{L_S}")
        e(f"ds_read_b128 v[8:11], v{V_SR} offset:{L_S + 16}")

        zorder = [int(v) for v in o.zorder.split(",")]
        assert sorted(zorder) == list(range(16))
        restored = False
        for n, j in enumerate([2 * z + u for z in zorder for u in (0, 1)]):
            a = D0 + 4 * j
            t0 = 12 + 8 * (n & 1)
            if a >= SP0 and not restored:
                assert n > 1
                e("s_waitcnt lgkmcnt(0)")
                restored = True
            for i in range(4):
                t = t0 + 2 * i
                e(f"v_lshlrev_b32 v{t}, 16, v{a + i}")
                e(f"v_and_b32 v{t + 1}, s{S_MASK}, v{a + i}")
            if n == 0:
                e("s_waitcnt lgkmcnt(0)")
                self.stamp(7)
            for i in range(4):
                t = t0 + 2 * i
                e(f"v_pk_mul_f32 v[{t}:{t + 1}], v[{t}:{t + 1}], v[{4 + 2 * i}:{5 + 2 * i}]")
            for i in range(4):
                t = t0 + 2 * i
                e(f"v_cvt_pk_bf16_f32 v{a + i}, v{t}, v{t + 1}")
            self.mem(j, lambda va: e(f"buffer_store_dwordx4 v[{a}:{a + 3}], {va}, s[{S_OUT}:{S_OUT + 3}], s{S_OFF} offen{stf}"))
            if n & 1:
                self.trace("st", n >> 1)
            if n == 1:
                e(f"s_cmp_ge_u32 s{S_WAVE}, 3")
                e("s_cbranch_scc1 L_norestore")
                for k in range(8):
                    e(f"ds_read_b128 v[{SP0 + 4 * k}:{SP0 + 4 * k + 3}], v{V_AT} offset:{L_SPILL + 1024 * k}")
                e("L_norestore:")
        if o.stamps:
            self.stamp(8)
            e("s_waitcnt vmcnt(0)")
            self.stamp(10)
            e("s_getreg_b32 s94, hwreg(HW_REG_XCC_ID)")
            e("s_getreg_b32 s95, hwreg(HW_REG_HW_ID)")
            e("s_waitcnt lgkmcnt(0)")
            e("v_mov_b32 v2, 0")
            for i in range(11 if o.trace else 13):
                e(f"v_writelane_b32 v2, s{S_STAMP + 2 * i}, {i}")
            e(f"v_writelane_b32 v2, s{S_PM}, 13")
            e("v_writelane_b32 v2, s94, 14")
            e("v_writelane_b32 v2, s95, 15")
            e(f"s_mul_i32 s{S_T0}, s2, 12")
            e(f"s_add_u32 s{S_T0}, s{S_T0}, s{S_WAVE}")
            e(f"s_lshl_b32 s{S_T0}, s{S_T0}, 6")
            e(f"s_add_u32 s{S_T0}, s{S_T0}, {WS_STAMP}")
            e("v_mbcnt_lo_u32_b32 v3, -1, 0")
            e("v_lshlrev_b32 v3, 2, v3")
            e("s_mov_b64 exec, 0xffff")
            e(f"buffer_store_dword v2, v3, s[{S_WS}:{S_WS + 3}], s{S_T0} offen")
            if o.trace:
                e("s_mov_b32 s91, s92")
                for i in range(16):
                    e(f"v_writelane_b32 v2, s{76 + i}, {i}")
                e(f"s_add_u32 s{S_T0}, s{S_T0}, {1 << 19}")
                e(f"buffer_store_dword v2, v3, s[{S_WS}:{S_WS + 3}], s{S_T0} offen")
        if o.dbgptr:
            e("s_cmp_lg_u32 s2, 0")
            e("s_cbranch_scc1 L_nodp")
            e("s_mov_b64 exec, -1")
            e("v_mov_b32 v2, 0")
            for i, r in enumerate((4, 5, 8, 9, 12, 13, 16, 17, 0, 1)):
                e(f"v_writelane_b32 v2, s{r}, {i}")
            e("v_mbcnt_lo_u32_b32 v3, -1, 0")
            e("v_lshlrev_b32 v3, 2, v3")
            e("s_mov_b64 exec, 0x3ff")
            e(f"buffer_store_dword v2, v3, s[{S_DBG}:{S_DBG + 3}], 0 offen offset:8")
            e("L_nodp:")
        if o.probe:
            idx, K = [int(v) for v in o.probe.split(",")]
            if idx == -2:
                e("s_getreg_b32 s94, hwreg(HW_REG_XCC_ID)")
                e("s_xor_b32 s94, s94, s2")
                e("s_and_b32 s94, s94, 7")
                e("s_cbranch_scc0 L_end")
            elif idx == -3:
                e("s_cmp_lg_u32 s2, 0")
                e("s_cbranch_scc1 L_end")
            else:
                e("s_cmp_lg_u32 s2, 0")
                e("s_cbranch_scc1 L_end")
            e(f"s_cmp_lg_u32 s{S_WAVE}, 0")
            e("s_cbranch_scc1 L_end")
            if idx <= -10:
                e(f"s_bfe_u32 s94, s{-idx - 10}, {(7 << 16)} + {K}")
                e("s_mul_i32 s96, s94, 200")
                e("s_add_u32 s96, s96, 5000")
            elif idx == -3:
                e("s_getreg_b32 s94, hwreg(HW_REG_XCC_ID)")
                e("s_and_b32 s94, s94, 7")
                e(f"s_mul_i32 s96, s94, {K}")
                e("s_add_u32 s96, s96, 5000")
            elif idx < 0:
                e(f"s_mov_b32 s96, {K}")
            else:
                e(f"s_sub_u32 s96, s{S_STAMP + 2 * idx}, s{S_STAMP}")
                e(f"s_mul_i32 s96, s96, {K}")
            e("s_min_u32 s96, s96, 200000")
            e("L_probe:")
            e("s_memrealtime s[98:99]")
            e("s_waitcnt lgkmcnt(0)")
            e(f"s_sub_u32 s98, s98, s{S_STAMP}")
            e("s_cmp_lt_u32 s98, s96")
            e("s_cbranch_scc1 L_probe")
        e("L_end:")
        e("s_endpgm")

        e("L_special:")
        e(f"s_cmp_eq_u32 s{S_WAVE}, {W_PROBE}")
        e("s_cbranch_scc1 L_vote")
        for i in range(4):
            e(f"v_mov_b32 v{4 + i}, -1")
        e("v_lshlrev_b32 v2, 4, v1")
        e(f"s_mul_i32 s{S_T0}, s2, 1536")
        e(f"buffer_store_dwordx4 v[4:7], v2, s[{S_WS}:{S_WS + 3}], s{S_T0} offen sc1")
        e("s_mov_b32 exec_hi, 0")
        e(f"buffer_store_dwordx4 v[4:7], v2, s[{S_WS}:{S_WS + 3}], s{S_T0} offen offset:1024 sc1")
        e(f"s_cmp_ge_u32 s2, {NRED}")
        e("s_cbranch_scc1 L_noclearF")
        e("s_mov_b32 exec_lo, 0xff")
        e(f"s_lshl_b32 s{S_T0}, s2, 7")
        e(f"s_add_u32 s{S_T0}, s{S_T0}, {WS_F}")
        e(f"buffer_store_dwordx4 v[4:7], v2, s[{S_WS}:{S_WS + 3}], s{S_T0} offen sc1")
        e("L_noclearF:")
        e("s_mov_b64 exec, -1")
        e("s_waitcnt vmcnt(0)")
        e("s_branch L_stream")

        e("L_vote:")
        e(f"s_cmp_ge_u32 s2, {NVOTE_WG}")
        e("s_cbranch_scc1 L_stream")
        e("s_bitcmp1_b32 s2, 3")
        e("s_cselect_b64 s[40:41], s[8:9], s[4:5]")
        e(f"s_bfe_u32 s{S_T0}, s2, 0x10004")
        e(f"s_add_u32 s{S_T0}, s{S_T0}, 1")
        e(f"s_lshl_b32 s{S_T0}, s{S_T0}, 25")
        e(f"s_and_b32 s{S_T1}, s2, 7")
        e(f"s_lshl_b32 s{S_T2}, s{S_T1}, 22")
        e(f"s_add_u32 s{S_T0}, s{S_T0}, s{S_T2}")
        e(f"s_lshr_b32 s{S_T2}, s2, 5")
        e(f"s_lshl3_add_u32 s{S_T1}, s{S_T2}, s{S_T1}      ; voter 0..15")
        e(f"s_mul_i32 s{S_T1}, s{S_T1}, {16384 + 512}")
        e(f"s_add_u32 s{S_T0}, s{S_T0}, s{S_T1}")
        e(f"s_add_u32 s{S_T1}, s{S_T0}, 8192")
        self.stamp(1, True)
        e(f"s_load_dword s42, s[40:41], s{S_T0} glc")
        e(f"s_load_dword s43, s[40:41], s{S_T1} glc")
        e(f"s_mov_b32 s{S_CNT}, 0")
        for k in range(NRACE):
            e("s_waitcnt lgkmcnt(0)")
            if k < 2:
                self.stamp(2 + k, True)
                if o.vdiag:
                    e("s_waitcnt lgkmcnt(0)")
            first, second = (S_T0, S_T1) if k % 2 == 0 else (S_T1, S_T0)
            e(f"s_load_dword s42, s[40:41], s{first} glc")
            e(f"s_load_dword s43, s[40:41], s{second} glc")
            e("s_waitcnt lgkmcnt(1)")
            e("s_nop 7")
            e(f"s_getreg_b32 s{S_T2}, hwreg(HW_REG_IB_STS, 8, 4)")
            if k % 2 == 0:
                e(f"s_xor_b32 s{S_T2}, s{S_T2}, 1")
            e(f"s_add_u32 s{S_CNT}, s{S_CNT}, s{S_T2}")
        assert NVOTE_WG // 4 * NRACE // 2 < 32 and NRACE % 2 == 0
        e(f"s_sub_u32 s{S_CNT}, s{S_CNT}, {NRACE // 2}")
        e(f"s_sub_u32 s{S_T2}, 0, s{S_CNT}")
        e("s_bitcmp1_b32 s2, 2")
        e(f"s_cselect_b32 s{S_CNT}, s{S_T2}, s{S_CNT}")
        e(f"s_bfe_u32 s{S_T0}, s2, 0x20003")
        e(f"s_mul_i32 s{S_T0}, s{S_T0}, 6")
        e(f"s_add_u32 s{S_T0}, s{S_T0}, 7")
        e(f"s_lshl_b32 s{S_CNT}, s{S_CNT}, s{S_T0}")
        e(f"s_or_b32 s{S_CNT}, s{S_CNT}, 1")
        e(f"s_mov_b32 s{S_T1}, s{S_CNT}")
        self.stamp(6, True)
        e(f"s_atomic_add s{S_T1}, s[44:45], {DBG_TAL} glc")
        e(f"s_add_u32 s{S_CNT}, s{S_CNT}, {sum(31 << (7 + 6 * t) for t in range(4))}")
        e("s_waitcnt lgkmcnt(0)")
        e(f"s_add_u32 s{S_T1}, s{S_T1}, s{S_CNT}")
        self.stamp(5)
        e(f"s_and_b32 s{S_T0}, s{S_T1}, 0x7f")
        e(f"s_cmp_lg_u32 s{S_T0}, {o.quorum}")
        e("s_cbranch_scc1 L_stream")
        e(f"s_atomic_add s{S_T1}, s[44:45], {DBG_RES}")
        e("s_waitcnt lgkmcnt(0)")
        e("s_branch L_stream")

        e("L_dpoll:")
        e(f"s_mov_b32 s{S_CNT}, {SPIN}")
        e(f"v_mov_b32 v{V_AT}, 0")
        e("s_mov_b64 exec, 1")
        e("L_dloop:")
        e(f"buffer_load_dword v{V_AT}, off, s[{S_DBG}:{S_DBG + 3}], 0 offset:{DBG_RES} sc1")
        e(f"s_sleep {o.dsleep}")
        e("s_waitcnt vmcnt(24)")
        e(f"v_readfirstlane_b32 s{S_T2}, v{V_AT}")
        e(f"s_sub_u32 s{S_CNT}, s{S_CNT}, 1")
        e("s_cbranch_scc1 L_dgot")
        e(f"s_cmp_eq_u32 s{S_T2}, 0")
        e("s_cbranch_scc1 L_dloop")
        e("L_dgot:")
        e("s_mov_b64 exec, -1")
        e("s_branch L_decided")

        e("L_cntchk:")
        e(f"s_mov_b32 s{S_CNT}, {SPIN}")
        e("L_cntloop:")
        e(f"v_readfirstlane_b32 s{S_T0}, v{V_AT}")
        e(f"s_sub_u32 s{S_CNT}, s{S_CNT}, 1")
        e("s_cbranch_scc1 L_cntok")
        e(f"s_cmp_ge_u32 s{S_T0}, {NWG}")
        e("s_cbranch_scc1 L_cntok")
        e(f"buffer_load_dword v{V_AT}, off, s[{S_DBG}:{S_DBG + 3}], 0 offset:{DBG_CNT} sc1")
        e("s_waitcnt vmcnt(0)")
        e("s_branch L_cntloop")

    def text(self):
        out = HEADER
        out += f"; @launch grid=({NWG},1,1) block=(768,1,1) lds={L_TOTAL}\n"
        out += '.amdgcn_target "amdgcn-amd-amdhsa--gfx950"\n.text\n'
        out += f".globl {KNAME}\n.p2align 8\n.type {KNAME},@function\n{KNAME}:\n"
        out += "\n".join(self.lines) + "\n"
        out += f""".section .rodata,"a"
.p2align 6
.amdhsa_kernel {KNAME}
  .amdhsa_next_free_vgpr 168
  .amdhsa_next_free_sgpr {100 if self.o.stamps else 56}
  .amdhsa_accum_offset 168
  .amdhsa_group_segment_fixed_size 0
  .amdhsa_kernarg_size 48
  .amdhsa_user_sgpr_count 2
  .amdhsa_user_sgpr_kernarg_segment_ptr 1
  .amdhsa_system_sgpr_workgroup_id_x 1
  .amdhsa_float_denorm_mode_32 3
.end_amdhsa_kernel
"""
        return out


def main():
    p = argparse.ArgumentParser()
    p.add_argument("-o", default="standalone__channel_attn_cbam__vision.s")
    p.add_argument("--ldflags", default="nt")
    p.add_argument("--stflags", default="sc1")
    p.add_argument("--p1flags", default="sc1")
    p.add_argument("--stamps", action="store_true")
    p.add_argument("--probe", default="")
    p.add_argument("--depth", type=int, default=12)
    p.add_argument("--nrace", type=int, default=2)
    p.add_argument("--dsleep", type=int, default=8)
    p.add_argument("--trace", default="")
    p.add_argument("--nodec", action="store_true")
    p.add_argument("--vdiag", action="store_true")
    p.add_argument("--dbgptr", action="store_true")
    p.add_argument("--opp", default="5,9", type=lambda v: [int(x) for x in v.split(",")])
    p.add_argument("--quorum", type=int, default=32)
    p.add_argument("--zorder", default="6,0,7,8,1,9,2,10,11,3,12,4,13,14,5,15")
    o = p.parse_args()
    g = G(o)
    g.build()
    open(o.o, "w").write(g.text())


if __name__ == "__main__":
    main()
```

```python
import argparse

KNAME = "standalone__channel_attn_cbam__vision_kernel"

HEADER = """; Kernarg layout for this problem (48 bytes, ptrs only, base s[0:1]):
"""

X_BYTES = 100663296
NWG = 256
NRED = 12
MiB = 1 << 20

L_RED = 0
L_H = 6144
L_DEC = 6336
L_S = 6400
L_R2 = 7168
L_W1 = 8192
L_W2 = L_W1 + 18432
L_SPILL = L_W2 + 18432
L_TOTAL = L_SPILL + 3 * 8192

WS_P = 0
WS_F = 256 * 1536
WS_STAMP = 1 << 20
WS_USED = WS_F + 12 * 128

S_X, S_OUT, S_WS, S_DBG, S_W = 4, 8, 12, 16, 20
S_WAVE, S_TY, S_SUB, S_OFF, S_MASK, S_CNT, S_T0, S_T1 = 28, 29, 30, 31, 32, 33, 34, 35
S_BASE, S_PM, S_P, S_T2, S_E = 48, 49, 50, 51, 3
S_STAMP = 52
S_V = 24

D0 = 40
SPIN = 400000
V_A0, V_A1, V_D0, V_D1, V_AT = 0, 39, 38, 37, 36

NAGN = 6
SPANS = [(0, 0), (0, 1), (1, 0), (1, 1), (2, 0), (2, 1),
         (3, 0), (6, 0), (3, 1), (6, 1), (4, 0), (7, 0), (4, 1), (7, 1), (5, 0), (5, 1)]
W_CLEAR, W_PROBE, W_CHK = 0, 11, 10
DBG_RES, DBG_TAL, DBG_CNT = 0, 128, 192
NVOTE_WG = 64


def mask(pred):
    return sum(1 << z for z, s in enumerate(SPANS) if pred(z, s))


class G:
    def __init__(self, o):
        self.o = o
        self.lines = []

    def e(self, s=""):
        self.lines.append(("    " + s) if s and not s.endswith(":") else s)

    def stamp(self, idx, vote=False):
        if self.o.vdiag and idx in (1, 2, 3, 6) and not vote:
            return
        if vote and not self.o.vdiag:
            return
        if self.o.stamps and not (self.o.trace and idx > 10):
            self.e(f"s_memrealtime s[{S_STAMP + 2 * idx}:{S_STAMP + 2 * idx + 1}]")

    def srd(self, d, lo, nbytes):
        e = self.e
        e(f"s_mov_b64 s[{d}:{d + 1}], s[{lo}:{lo + 1}]")
        e(f"s_mov_b32 s{d + 2}, {nbytes}")
        e(f"s_mov_b32 s{d + 3}, 0x20000")

    def span_off(self, z):
        return SPANS[z][0] * 12 * MiB + SPANS[z][1] * 49152

    def mem(self, j, fn):
        e = self.e
        z, u = j >> 1, j & 1
        if u == 0:
            e(f"s_bfe_u32 s{S_P}, s{S_PM}, {(1 << 16) | z}")
            if self.span_off(z):
                e(f"s_add_u32 s{S_OFF}, s{S_BASE}, {self.span_off(z)}")
            else:
                e(f"s_mov_b32 s{S_OFF}, s{S_BASE}")
        at = 2 + u
        e(f"v_mad_i32_i24 v{at}, v{(V_D0, V_D1)[u]}, s{S_P}, v{(V_A0, V_A1)[u]}")
        if SPANS[z] == (7, 1):
            e(f"v_add_u32 v{at}, s{S_OFF}, v{at}")
            e(f"v_subrev_u32 v{5 - at}, s{S_X + 2}, v{at}")
            e(f"v_min_u32 v{at}, v{at}, v{5 - at}")
            fn(f"v{at}", "0")
        else:
            fn(f"v{at}", f"s{S_OFF}")

    def trace(self, kind, n):
        if self.o.trace == kind:
            if n > 0:
                self.e("s_waitcnt lgkmcnt(0)")
                self.e(f"s_mov_b32 s{76 + n - 1}, s92")
            self.e("s_memrealtime s[92:93]")

    def build(self):
        o, e = self.o, self.e
        NRACE = o.nrace
        ldf = (" " + o.ldflags) if o.ldflags else ""
        stf = (" " + o.stflags) if o.stflags else ""

        self.stamp(0)
        e("s_load_dwordx2 s[4:5], s[0:1], 0          ; x")
        e("s_load_dwordx4 s[36:39], s[0:1], 8        ; w1, w2")
        e("s_load_dwordx2 s[8:9], s[0:1], 24         ; out")
        e("s_load_dwordx4 s[44:47], s[0:1], 32")
        e("s_cmp_ge_u32 s2, %d" % NWG)
        e("s_cbranch_scc1 L_end")
        e("v_readfirstlane_b32 s%d, v0" % S_WAVE)
        e("v_and_b32 v1, 63, v0                      ; lane")
        e("v_lshrrev_b32 v2, 3, v1")
        e("v_mul_u32_u24 v2, 384, v2")
        e("v_and_b32 v3, 7, v1")
        e("v_lshl_add_u32 v0, v3, 4, v2")
        e(f"s_lshr_b32 s{S_WAVE}, s{S_WAVE}, 6")
        e(f"s_mul_i32 s{S_SUB}, s{S_WAVE}, 43")
        e(f"s_lshr_b32 s{S_SUB}, s{S_SUB}, 7")
        e(f"s_mul_i32 s{S_TY}, s{S_SUB}, 3")
        e(f"s_sub_u32 s{S_TY}, s{S_WAVE}, s{S_TY}        ; ty = wave % 3")
        e(f"s_mul_i32 s{S_T0}, s{S_SUB}, 3072")
        e(f"s_lshl_b32 s{S_T1}, s{S_TY}, 7")
        e(f"s_add_u32 s{S_T0}, s{S_T0}, s{S_T1}")
        e(f"v_add_u32 v{V_A0}, s{S_T0}, v0")
        e(f"v_add_u32 v{V_A1}, 12288, v{V_A0}")
        e(f"s_movk_i32 s{S_T2}, 24576")
        for a, d in ((V_A0, V_D0), (V_A1, V_D1)):
            e(f"v_bfe_u32 v2, v{a}, 13, 1                 ; 1 identifies k' = 1")
            e(f"v_mad_u32_u24 v{a}, v2, s{S_T2}, v{a}")
            e(f"v_mad_i32_i24 v2, v2, -2, 1")
            e(f"v_mul_i32_i24 v{d}, s{S_T2}, v2")
        e(f"s_lshr_b32 s{S_T0}, s2, 1")
        e(f"s_and_b32 s{S_T0}, s{S_T0}, 0x7c")
        e(f"s_and_b32 s{S_T1}, s2, 3")
        e(f"s_add_u32 s{S_T0}, s{S_T0}, s{S_T1}")
        e(f"s_mul_i32 s{S_BASE}, s{S_T0}, 98304")
        h1 = mask(lambda z, s: s[1] == 1)
        alt = mask(lambda z, s: z < NAGN and s[1] == 1)
        e(f"s_bfe_i32 s{S_PM}, s2, 0x10002              ; -side")
        e(f"s_bfe_u32 s{S_T0}, s2, 0x10003")
        e(f"s_lshr_b32 s{S_T0}, {alt}, s{S_T0}")
        e(f"s_xor_b32 s{S_PM}, s{S_PM}, s{S_T0}")
        e(f"s_mov_b32 s{S_X + 2}, {X_BYTES}")
        e(f"s_mov_b32 s{S_X + 3}, 0x20000")
        e(f"s_mov_b32 s{S_OUT + 2}, s{S_X + 2}")
        e(f"s_mov_b32 s{S_OUT + 3}, s{S_X + 3}")
        e(f"s_mov_b32 s{S_WS + 2}, {(2 << 20) if o.stamps else WS_USED}")
        e(f"s_mov_b32 s{S_WS + 3}, s{S_X + 3}")
        e(f"s_movk_i32 s{S_DBG + 2}, 256")
        e(f"s_mov_b32 s{S_DBG + 3}, s{S_X + 3}")
        e("s_waitcnt lgkmcnt(0)")
        e(f"s_lshr_b32 s{S_T0}, s{S_OUT}, 7")
        e(f"s_mul_i32 s{S_T0}, s{S_T0}, 21              ; -43 mod 64")
        e(f"s_and_b32 s{S_T0}, s{S_T0}, 63")
        e(f"s_mul_i32 s{S_E}, s{S_T0}, 384")
        e(f"s_add_u32 s{S_BASE}, s{S_BASE}, s{S_E}")
        e(f"s_add_u32 s{S_T0}, s{S_BASE}, s{S_T2}")
        e(f"s_add_u32 s{S_T0}, s{S_T0}, s{S_OUT}")
        e(f"s_bfe_i32 s{S_T1}, s{S_T0}, 0x10015")
        e(f"s_xor_b32 s{S_PM}, s{S_PM}, s{S_T1}")
        e(f"s_add_u32 s{S_T2}, s{S_T0}, 49152")
        e(f"s_xor_b32 s{S_T0}, s{S_T0}, s{S_T2}")
        e(f"s_bfe_i32 s{S_T0}, s{S_T0}, 0x10015")
        e(f"s_and_b32 s{S_T0}, s{S_T0}, {h1}")
        e(f"s_xor_b32 s{S_PM}, s{S_PM}, s{S_T0}")
        e(f"s_mov_b64 s[{S_WS}:{S_WS + 1}], s[46:47]")
        e(f"s_mov_b64 s[{S_DBG}:{S_DBG + 1}], s[44:45]")
        e(f"s_cmp_eq_u32 s{S_WAVE}, {W_PROBE}")
        e("s_cbranch_scc1 L_vote")
        e("L_stream:")

        SUM, MAX, T = 4, 12, 20
        DEPTH = o.depth
        assert DEPTH >= 2 * NAGN
        seq = []

        def issue(j):
            if j == 2 * NAGN:
                e(f"s_cmp_eq_u32 s{S_WAVE}, {W_CLEAR}")
                e("s_cbranch_scc1 L_clear")
                e("L_cleared:")
                m1 = mask(lambda z, s: z >= NAGN and s[0] in (3, 4))
                z50 = SPANS.index((5, 0))
                z51 = SPANS.index((5, 1))
                dec = mask(lambda z, s: z >= NAGN)
                e(f"s_cmp_lt_u32 s{S_BASE}, {4 * MiB - 24576}")
                e(f"s_cselect_b32 s{S_T0}, {1 << z50}, 0")
                e(f"s_or_b32 s{S_T0}, s{S_T0}, {m1}")
                e(f"s_cmp_lt_u32 s{S_BASE}, {4 * MiB - 24576 - 49152}")
                e(f"s_cselect_b32 s{S_T1}, {1 << z51}, 0")
                e(f"s_or_b32 s{S_T0}, s{S_T0}, s{S_T1}            ; third 1")
                e(f"s_xor_b32 s{S_T1}, s{S_T0}, {dec}           ; third 2")
                per, pat = o.opp
                rep = sum(((pat >> (i % per)) & 1) << i for i in range(32))
                e(f"s_lshr_b32 s{S_P}, s2, 3")
                e(f"s_mul_i32 s{S_T2}, s{S_P}, {-(-256 // per)}")
                e(f"s_lshr_b32 s{S_T2}, s{S_T2}, 8")
                e(f"s_mul_i32 s{S_T2}, s{S_T2}, {per}")
                e(f"s_sub_u32 s{S_P}, s{S_P}, s{S_T2}             ; (b >> 3) % {per}")
                e(f"s_lshr_b32 s{S_P}, {rep}, s{S_P}")
                e(f"s_sub_u32 s{S_T2}, s{S_OUT}, s{S_X}")
                e(f"s_add_u32 s{S_T2}, s{S_T2}, 2048")
                e(f"s_bitcmp1_b32 s{S_T2}, 12")
                e(f"s_cselect_b32 s{S_P}, 0, s{S_P}")
                e(f"s_mov_b32 s{S_MASK}, 0xffff0000")
                self.stamp(11)
                e("s_barrier")
                e(f"s_load_dword s{S_T2}, s[44:45], {DBG_RES}")
                e("s_waitcnt lgkmcnt(0)")
                e(f"s_cmp_eq_u32 s{S_T2}, 0")
                e("s_cbranch_scc1 L_dpoll")
                e("L_decided:")
                for i in range(4):
                    e(f"s_bitcmp1_b32 s{S_T2}, {7 + 6 * i + 5}")
                    e(f"s_cselect_b32 s{S_V + i}, s{(S_T0, S_T1)[i >> 1]}, 0")
                e(f"s_or_b32 s{S_V}, s{S_V}, s{S_V + 2}")
                e(f"s_or_b32 s{S_V + 1}, s{S_V + 1}, s{S_V + 3}")
                e(f"s_xor_b32 s{S_V}, s{S_V}, s{S_V + 1}")
                if o.nodec:
                    e(f"s_mov_b32 s{S_V}, {dec}")
                e(f"s_and_b32 s{S_V}, s{S_V}, s{S_P}")
                e(f"s_xor_b32 s{S_V}, s{S_V}, s{S_V + 1}")
                e(f"s_xor_b32 s{S_PM}, s{S_PM}, s{S_V}")
                self.stamp(12)
            if j == o.cntpos:
                e(f"s_cmp_lg_u32 s{S_WAVE}, {W_CLEAR}")
                e("s_cbranch_scc1 L_nocnt")
                e(f"v_mov_b32 v3, 1")
                e("s_mov_b64 exec, 1")
                e(f"buffer_atomic_add v3, off, s[{S_DBG}:{S_DBG + 3}], 0 offset:{DBG_CNT}")
                e("s_mov_b64 exec, -1")
                e("L_nocnt:")
            if j == 30:
                e(f"s_cmp_lg_u32 s{S_WAVE}, {W_CHK}")
                e("s_cbranch_scc1 L_nosmp")
                e(f"buffer_load_dword v{V_AT}, off, s[{S_DBG}:{S_DBG + 3}], 0 offset:{DBG_CNT} sc1")
                e("L_nosmp:")
            r = D0 + 4 * j
            self.mem(j, lambda va, so: e(f"buffer_load_dwordx4 v[{r}:{r + 3}], {va}, s[{S_X}:{S_X + 3}], {so} offen{ldf}"))
            seq.append(j)
            if j & 1:
                self.trace("ld", j >> 1)

        def wait_for(j):
            e(f"s_waitcnt vmcnt({len(seq) - 1 - seq.index(j)})")

        nxt = 0
        for jj in range(16):
            while nxt < 32 and nxt < 2 * jj + DEPTH + 2:
                issue(nxt)
                nxt += 1
                if nxt == 32:
                    self.stamp(1)
            a, b = D0 + 8 * jj, D0 + 8 * jj + 4
            if jj == 15:
                e("v_and_b32 v2, 7, v1")
                e("v_lshlrev_b32 v2, 5, v2                   ; (l&7)*32")
                e("v_lshrrev_b32 v3, 4, v1")
                e("v_lshl_add_u32 v2, v3, 3, v2              ; + (l>>4)*8")
                e("v_bfe_u32 v3, v1, 3, 1")
                e("v_mul_u32_u24 v3, 768, v3")
                e(f"s_mul_i32 s{S_T0}, s{S_SUB}, 1536")
                e(f"s_lshl_b32 s{S_T1}, s{S_TY}, 8")
                e(f"s_add_u32 s{S_T0}, s{S_T0}, s{S_T1}")
                e(f"v_add3_u32 v2, v2, v3, s{S_T0}")
                e(f"s_mul_i32 s{S_T0}, s{S_WAVE}, 768")
                e(f"v_lshl_add_u32 v3, v1, 4, s{S_T0}")
                e(f"s_mul_i32 s{S_T1}, s2, 1536")
                for r in (a, b):
                    wait_for((r - D0) // 4)
                    if r == b:
                        self.stamp(3)
                    for i in range(4):
                        t = T + 2 * i
                        e(f"v_lshlrev_b32 v{t}, 16, v{r + i}")
                        e(f"v_and_b32 v{t + 1}, s{S_MASK}, v{r + i}")
                    for i in range(8):
                        e(f"v_max_f32 v{MAX + i}, v{MAX + i}, v{T + i}")
                    for i in range(4):
                        t, s = T + 2 * i, SUM + 2 * i
                        e(f"v_pk_add_f32 v[{s}:{s + 1}], v[{s}:{s + 1}], v[{t}:{t + 1}]")
                continue
            wait_for(2 * jj + 1)
            if jj == 0:
                self.stamp(2)
            for i in range(4):
                t = T + 4 * i
                e(f"v_lshlrev_b32 v{t}, 16, v{a + i}")
                e(f"v_and_b32 v{t + 1}, s{S_MASK}, v{a + i}")
                e(f"v_lshlrev_b32 v{t + 2}, 16, v{b + i}")
                e(f"v_and_b32 v{t + 3}, s{S_MASK}, v{b + i}")
            for i in range(4):
                t = T + 4 * i
                s, m = SUM + 2 * i, MAX + 2 * i
                if jj == 0:
                    e(f"v_max_f32 v{m}, v{t}, v{t + 2}")
                    e(f"v_max_f32 v{m + 1}, v{t + 1}, v{t + 3}")
                    e(f"v_pk_add_f32 v[{s}:{s + 1}], v[{t}:{t + 1}], v[{t + 2}:{t + 3}]")
                else:
                    e(f"v_max3_f32 v{m}, v{m}, v{t}, v{t + 2}")
                    e(f"v_max3_f32 v{m + 1}, v{m + 1}, v{t + 1}, v{t + 3}")
                    e(f"v_pk_add_f32 v[{t}:{t + 1}], v[{t}:{t + 1}], v[{t + 2}:{t + 3}]")
            if jj:
                for i in range(4):
                    t = T + 4 * i
                    s = SUM + 2 * i
                    e(f"v_pk_add_f32 v[{s}:{s + 1}], v[{s}:{s + 1}], v[{t}:{t + 1}]")

        for base in (MAX, SUM):
            for i in range(4):
                e(f"v_permlane32_swap_b32 v{base + i}, v{base + 4 + i}")
        for i in range(4):
            e(f"v_max_f32 v{MAX + i}, v{MAX + i}, v{MAX + 4 + i}")
        for i in range(4):
            e(f"v_add_f32 v{SUM + i}, v{SUM + i}, v{SUM + 4 + i}")
        for i in range(2):
            e(f"v_permlane16_swap_b32 v{MAX + i}, v{MAX + 2 + i}")
        for i in range(2):
            e(f"v_permlane16_swap_b32 v{SUM + i}, v{SUM + 2 + i}")
        for i in range(2):
            e(f"v_add_f32 v{SUM + i}, v{SUM + i}, v{SUM + 2 + i}")
        for i in range(2):
            e(f"v_max_f32 v{MAX + i}, v{MAX + i}, v{MAX + 2 + i}")
        e(f"s_cmp_eq_u32 s{S_WAVE}, {W_CHK}")
        for i in range(2):
            e(f"v_add_f32_dpp v{SUM + i}, v{SUM + i}, v{SUM + i} row_ror:8 row_mask:0xf bank_mask:0x3")
        for i in range(2):
            e(f"v_max_f32_dpp v{SUM + i}, v{MAX + i}, v{MAX + i} row_ror:8 row_mask:0xf bank_mask:0xc")
        e(f"ds_write_b64 v2, v[{SUM}:{SUM + 1}] offset:{L_RED}")
        e("s_cbranch_scc1 L_cntchk")
        e("L_cntok:")
        e(f"s_cmp_ge_u32 s{S_WAVE}, 2")
        e("s_waitcnt lgkmcnt(0)")
        e("s_barrier")
        self.stamp(4)
        e("s_cbranch_scc1 L_nopub")

        e("s_mov_b32 exec_hi, 0xffff")
        for k in range(4):
            e(f"ds_read_b128 v[{4 + 4 * k}:{7 + 4 * k}], v3 offset:{L_RED + 1536 * k}")
        e(f"s_cmp_eq_u32 s{S_WAVE}, 0")
        e(f"s_cselect_b64 s[{S_W}:{S_W + 1}], s[36:37], s[38:39]")
        e("s_cbranch_scc0 L_pubmax")
        e("s_waitcnt lgkmcnt(2)")
        e("v_pk_add_f32 v[4:5], v[4:5], v[8:9]")
        e("v_pk_add_f32 v[6:7], v[6:7], v[10:11]")
        e("s_waitcnt lgkmcnt(0)")
        e("v_pk_add_f32 v[12:13], v[12:13], v[16:17]")
        e("v_pk_add_f32 v[14:15], v[14:15], v[18:19]")
        e("v_pk_add_f32 v[4:5], v[4:5], v[12:13]")
        e("v_pk_add_f32 v[6:7], v[6:7], v[14:15]")
        e("s_branch L_pub")
        e("L_pubmax:")
        e("s_waitcnt lgkmcnt(1)")
        for i in range(4):
            e(f"v_max3_f32 v{4 + i}, v{4 + i}, v{8 + i}, v{12 + i}")
        e("s_waitcnt lgkmcnt(0)")
        for i in range(4):
            e(f"v_max_f32 v{4 + i}, v{4 + i}, v{16 + i}")
        e("L_pub:")
        for i in range(4):
            e(f"v_min_u32 v{4 + i}, -2, v{4 + i}")
        e(f"buffer_store_dwordx4 v[4:7], v3, s[{S_WS}:{S_WS + 3}], s{S_T1} offen sc1")
        e("s_mov_b64 exec, -1")
        e(f"s_movk_i32 s{S_W + 2}, 18432")
        e(f"s_mov_b32 s{S_W + 3}, 0x20000")
        e(f"s_mul_i32 s{S_T0}, s{S_WAVE}, 18432")
        e(f"s_add_u32 s{S_T0}, s{S_T0}, {L_W1}")
        e(f"s_mov_b32 s{S_T1}, 0")
        e("v_lshlrev_b32 v2, 4, v1")
        e("L_wloop:")
        e(f"s_add_u32 m0, s{S_T0}, s{S_T1}")
        e(f"s_cmp_lt_u32 s{S_T1}, {18432 - 3072}")
        for k in range(3):
            e(f"buffer_load_dwordx4 v2, s[{S_W}:{S_W + 3}], s{S_T1} offen offset:{k * 1024} lds")
        e(f"s_cbranch_scc0 L_nopub")
        e(f"s_addk_i32 s{S_T1}, 3072")
        e("s_branch L_wloop")
        e("L_nopub:")

        B2 = 28
        V_H0, V_H1, V_SW, V_SR = 24, 25, 26, 27
        SP0 = 136
        A1 = 144
        B1 = [4, 8, 12, 16, 136, 140]
        e("v_lshrrev_b32 v20, 4, v1                  ; q")
        e(f"s_cmp_lt_u32 s{S_WAVE}, 3")
        e("s_cbranch_scc1 L_spill")
        e(f"s_cmp_ge_u32 s2, {NRED}")
        e("s_cbranch_scc1 L_barw")
        e(f"s_cmp_eq_u32 s{S_WAVE}, 3")
        e("s_cbranch_scc1 L_rfinal")

        e("v_lshrrev_b32 v2, 3, v1")
        e("v_mul_u32_u24 v2, 1536, v2")
        e("v_and_b32 v3, 7, v1")
        e("v_lshl_add_u32 v2, v3, 4, v2")
        e(f"s_sub_u32 s{S_T0}, s{S_WAVE}, 4")
        e(f"s_lshl_b32 s{S_T1}, s{S_T0}, 7")
        e(f"v_lshl_add_u32 v3, v3, 4, s{S_T1}")
        e("v_lshl_add_u32 v3, v20, 2, v3")
        e(f"s_mul_i32 s{S_T0}, s{S_T0}, {32 * 1536}")
        e(f"s_lshl_b32 s{S_T1}, s2, 7")
        e(f"s_add_u32 s{S_V}, s{S_T0}, s{S_T1}")
        for k in range(1, 4):
            e(f"s_add_u32 s{S_V + k}, s{S_V}, {k * 8 * 1536}")
        e(f"s_mov_b32 s{S_CNT}, {SPIN}")
        e("L_rpoll:")
        for k in range(4):
            e(f"buffer_load_dwordx4 v[{4 + 4 * k}:{7 + 4 * k}], v2, s[{S_WS}:{S_WS + 3}], s{S_V + k} offen {o.p1flags}")
        e(f"s_sub_u32 s{S_CNT}, s{S_CNT}, 1")
        e("s_cbranch_scc1 L_rgot")
        e("s_waitcnt vmcnt(2)")
        e("v_max3_u32 v21, v4, v5, v6")
        e("v_max3_u32 v22, v7, v8, v9")
        e("v_max3_u32 v21, v21, v10, v11")
        e("s_waitcnt vmcnt(1)")
        e("v_max3_u32 v22, v22, v12, v13")
        e("v_max3_u32 v21, v21, v14, v15")
        e("s_waitcnt vmcnt(0)")
        e("v_max3_u32 v22, v22, v16, v17")
        e("v_max3_u32 v21, v21, v18, v19")
        e("v_max_u32 v21, v21, v22")
        e("v_cmp_eq_u32 vcc, -1, v21")
        e("s_cbranch_vccnz L_rpoll")
        e("L_rgot:")
        e("s_waitcnt vmcnt(0)")
        self.stamp(9)
        e("s_cmp_ge_u32 s2, 6")
        e("s_cbranch_scc1 L_rmax")
        for kind in (0, 1):
            op = "v_add_f32" if kind == 0 else "v_max_f32"
            if kind == 1:
                e("L_rmax:")
                for i in range(4):
                    e(f"v_max3_f32 v{4 + i}, v{4 + i}, v{8 + i}, v{12 + i}")
                for i in (0, 2, 1, 3):
                    e(f"v_max_f32 v{4 + i}, v{4 + i}, v{16 + i}")
            else:
                e("v_pk_add_f32 v[4:5], v[4:5], v[8:9]")
                e("v_pk_add_f32 v[6:7], v[6:7], v[10:11]")
                e("v_pk_add_f32 v[12:13], v[12:13], v[16:17]")
                e("v_pk_add_f32 v[14:15], v[14:15], v[18:19]")
                e("v_pk_add_f32 v[4:5], v[4:5], v[12:13]")
                e("v_pk_add_f32 v[6:7], v[6:7], v[14:15]")
            e("s_nop 1")
            e("v_permlane32_swap_b32 v4, v6")
            e("v_permlane32_swap_b32 v5, v7")
            e(f"{op} v4, v4, v6")
            e(f"{op} v5, v5, v7")
            e("s_nop 1")
            e("v_permlane16_swap_b32 v4, v5")
            e(f"{op} v4, v4, v5")
            e("s_nop 1")
            e(f"{op}_dpp v4, v4, v4 row_ror:8 row_mask:0xf bank_mask:0xf")
            e(f"ds_write_b32 v3, v4 offset:{L_R2}")
            e("s_branch L_barw")

        e("L_rfinal:")
        e("v_and_b32 v2, 15, v1")
        e("v_lshlrev_b32 v3, 3, v2")
        e("v_lshl_add_u32 v3, v20, 8, v3")
        e("v_lshlrev_b32 v2, 2, v2")
        e(f"s_lshl_b32 s{S_T1}, s2, 7")
        e(f"s_add_u32 s{S_T1}, s{S_T1}, {WS_F}")
        e("s_cmp_ge_u32 s2, 6")
        e("s_cbranch_scc1 L_rfmax")
        for kind in (0, 1):
            op = "v_add_f32" if kind == 0 else "v_max_f32"
            if kind == 1:
                e("L_rfmax:")
            e("s_barrier")
            e(f"ds_read_b64 v[4:5], v3 offset:{L_R2}")
            e(f"ds_read_b64 v[6:7], v3 offset:{L_R2 + 128}")
            e("s_waitcnt lgkmcnt(0)")
            e(f"{op} v4, v4, v6")
            e(f"{op} v5, v5, v7")
            e("s_nop 1")
            e("v_permlane32_swap_b32 v4, v5")
            e(f"{op} v4, v4, v5")
            e("v_mov_b32 v5, v4")
            e("s_nop 1")
            e("v_permlane16_swap_b32 v4, v5")
            e(f"{op} v4, v4, v5                        ; lanes <32: c0, lanes >=32: c1")
            if kind == 0:
                e("v_mul_f32 v4, 0x36800000, v4              ; 1/262144")
            e("v_mov_b32 v5, v4")
            e("s_nop 1")
            e("v_permlane32_swap_b32 v4, v5")
            e("v_cvt_pk_bf16_f32 v4, v4, v5")
            e("s_mov_b64 exec, 0xffff")
            e("v_min_u32 v4, -2, v4")
            e(f"buffer_store_dword v4, v2, s[{S_WS}:{S_WS + 3}], s{S_T1} offen sc1")
            self.stamp(9)
            e("s_mov_b64 exec, -1")
            e("s_branch L_afterw")

        e("L_spill:")
        e(f"s_lshl_b32 s{S_T0}, s{S_WAVE}, 13")
        e(f"v_lshl_add_u32 v{V_AT}, v1, 4, s{S_T0}")
        for k in range(8):
            e(f"ds_write_b128 v{V_AT}, v[{SP0 + 4 * k}:{SP0 + 4 * k + 3}] offset:{L_SPILL + 1024 * k}")
        e("L_barw:")
        e("s_waitcnt vmcnt(0) lgkmcnt(0)")
        e("s_barrier")
        e("L_afterw:")
        e("v_bfe_u32 v3, v1, 2, 2")
        e("v_lshl_add_u32 v21, v20, 3, v3            ; row")
        e("v_and_b32 v22, 15, v21")
        e("v_and_b32 v3, 3, v1")
        e(f"s_lshl_b32 s{S_T2}, s{S_WAVE}, 5")
        e(f"v_lshl_add_u32 v23, v3, 3, s{S_T2}")
        e("v_mov_b32 v3, 384")
        e("v_mad_u32_u24 v2, v21, v3, v23")
        e("v_mad_u32_u24 v22, v22, v3, v23")
        e(f"ds_read_b64_tr_b16 v[{B2}:{B2 + 1}], v2 offset:{L_W2}")
        e(f"ds_read_b64_tr_b16 v[{B2 + 2}:{B2 + 3}], v2 offset:{L_W2 + 4 * 384}")
        e(f"ds_read_b64_tr_b16 v[{B2 + 4}:{B2 + 5}], v22 offset:{L_W2 + 32 * 384}")
        e(f"ds_read_b64_tr_b16 v[{B2 + 6}:{B2 + 7}], v22 offset:{L_W2 + 36 * 384}")
        e("v_and_b32 v2, 1, v1")
        e("v_mul_u32_u24 v22, 96, v2")
        e(f"v_lshl_add_u32 v{V_H0}, v20, 4, v22")
        e("v_and_b32 v3, 1, v20")
        e(f"v_lshl_add_u32 v{V_H1}, v3, 4, v22")
        e(f"s_lshl_b32 s{S_T0}, s{S_WAVE}, 6")
        e(f"v_lshl_add_u32 v{V_SW}, v1, 2, s{S_T0}")
        e("v_and_b32 v3, 7, v1")
        e(f"s_lshl_b32 s{S_T0}, s{S_TY}, 8")
        e(f"v_lshl_add_u32 v{V_SR}, v3, 5, s{S_T0}")
        e("s_waitcnt lgkmcnt(0)")
        e("s_mov_b32 exec_lo, 0")
        for i in range(4):
            e(f"v_mov_b32 v{B2 + 4 + i}, 0")
        e("s_mov_b64 exec, -1")
        e(f"s_cmp_ge_u32 s{S_WAVE}, 3")
        e("s_cbranch_scc1 L_join")

        e("v_mov_b32 v3, 96")
        e("v_mad_u32_u24 v2, v21, v3, v23")
        for s in range(6):
            for h in range(2):
                r = A1 + 4 * s + 2 * h
                e(f"ds_read_b64_tr_b16 v[{r}:{r + 1}], v2 offset:{L_W1 + s * 3072 + h * 384}")
        e(f"v_lshl_add_u32 v3, v20, 3, v22")
        e(f"v_add_u32 v3, s{S_T2}, v3")
        e("v_lshlrev_b32 v2, 3, v22")
        e("v_lshl_add_u32 v2, v20, 4, v2")
        for b in B1:
            for i in range(4):
                e(f"v_mov_b32 v{b + i}, 0")
        e(f"s_mov_b32 s{S_T1}, {WS_F}")
        e(f"s_mov_b32 s{S_CNT}, {SPIN}")
        e("s_waitcnt lgkmcnt(0)")
        e("L_fpoll:")
        e("s_mov_b32 exec_lo, 0x00030003")
        e("s_mov_b32 exec_hi, 0x00030003")
        for s in range(6):
            e(f"buffer_load_dwordx4 v[{B1[s]}:{B1[s] + 3}], v2, s[{S_WS}:{S_WS + 3}], s{S_T1} offen offset:{128 * s} sc1")
        e("s_mov_b64 exec, -1")
        e(f"s_sub_u32 s{S_CNT}, s{S_CNT}, 1")
        for s in range(6):
            c = "0" if s == 0 else "v[20:23]"
            b = B1[s]
            e(f"s_waitcnt vmcnt({5 - s})")
            e(f"v_mfma_f32_16x16x32_bf16 v[20:23], v[{A1 + 4 * s}:{A1 + 4 * s + 3}], v[{b}:{b + 3}], {c}")
            if s == 0:
                e(f"v_max3_u32 v1, v{b}, v{b + 1}, v{b + 2}")
                e(f"v_max_u32 v1, v1, v{b + 3}")
            else:
                e(f"v_max3_u32 v1, v1, v{b}, v{b + 1}")
                e(f"v_max3_u32 v1, v1, v{b + 2}, v{b + 3}")
        e("v_cmp_eq_u32 vcc, -1, v1")
        e("s_cbranch_scc1 L_fgot")
        e("s_cbranch_vccnz L_fpoll")
        e("L_fgot:")
        self.stamp(5)
        e("s_mov_b32 exec_lo, 0x00030003")
        e("s_mov_b32 exec_hi, 0x00030003")
        e("s_nop 1")
        for i in range(4):
            e(f"v_maximum3_f32 v{20 + i}, v{20 + i}, 0, 0")
        e("v_cvt_pk_bf16_f32 v20, v20, v21")
        e("v_cvt_pk_bf16_f32 v21, v22, v23")
        e(f"ds_write_b64 v3, v[20:21] offset:{L_H}")
        e("s_mov_b64 exec, -1")
        e("s_waitcnt lgkmcnt(0)")

        e("L_join:")
        e("s_barrier")
        self.stamp(6)
        e(f"ds_read_b128 v[4:7], v{V_H0} offset:{L_H}")
        e(f"ds_read_b128 v[8:11], v{V_H1} offset:{L_H + 64}")
        e("s_waitcnt lgkmcnt(1)")
        e(f"v_mfma_f32_16x16x32_bf16 v[12:15], v[4:7], v[{B2}:{B2 + 3}], 0")
        e("s_waitcnt lgkmcnt(0)")
        e(f"v_mfma_f32_16x16x32_bf16 v[12:15], v[8:11], v[{B2 + 4}:{B2 + 7}], v[12:15]")
        e("s_mov_b64 exec, 0xffff")
        e("s_nop 6")
        e("v_cvt_pk_bf16_f32 v12, v12, v13")
        e("v_lshlrev_b32 v13, 16, v12")
        e(f"v_and_b32 v12, s{S_MASK}, v12")
        e("v_add_f32 v12, v12, v13")
        e("v_cvt_pk_bf16_f32 v12, v12, v12")
        e("v_lshlrev_b32 v12, 16, v12")
        e("v_mul_f32 v12, 0xbfb8aa3b, v12            ; -log2(e)")
        e("v_exp_f32 v12, v12")
        e("s_nop 0")
        e("v_add_f32 v12, 1.0, v12")
        e("v_rcp_f32 v12, v12")
        e("s_nop 0")
        e("v_cvt_pk_bf16_f32 v12, v12, v12")
        e("v_lshlrev_b32 v12, 16, v12")
        e(f"ds_write_b32 v{V_SW}, v12 offset:{L_S}")
        e("s_mov_b64 exec, -1")
        e("s_waitcnt lgkmcnt(0)")
        e("s_barrier")
        e(f"ds_read_b128 v[4:7], v{V_SR} offset:{L_S}")
        e(f"ds_read_b128 v[8:11], v{V_SR} offset:{L_S + 16}")

        zorder = [int(v) for v in o.zorder.split(",")]
        assert sorted(zorder) == list(range(16))
        restored = False
        for n, j in enumerate([2 * z + u for z in zorder for u in (0, 1)]):
            a = D0 + 4 * j
            t0 = 12 + 8 * (n & 1)
            if a >= SP0 and not restored:
                assert n > 1
                e("s_waitcnt lgkmcnt(0)")
                restored = True
            for i in range(4):
                t = t0 + 2 * i
                e(f"v_lshlrev_b32 v{t}, 16, v{a + i}")
                e(f"v_and_b32 v{t + 1}, s{S_MASK}, v{a + i}")
            if n == 0:
                e("s_waitcnt lgkmcnt(0)")
                self.stamp(7)
            for i in range(4):
                t = t0 + 2 * i
                e(f"v_pk_mul_f32 v[{t}:{t + 1}], v[{t}:{t + 1}], v[{4 + 2 * i}:{5 + 2 * i}]")
            for i in range(4):
                t = t0 + 2 * i
                e(f"v_cvt_pk_bf16_f32 v{a + i}, v{t}, v{t + 1}")
            self.mem(j, lambda va, so: e(f"buffer_store_dwordx4 v[{a}:{a + 3}], {va}, s[{S_OUT}:{S_OUT + 3}], {so} offen{stf}"))
            if n & 1:
                self.trace("st", n >> 1)
            if n == 1:
                e(f"s_cmp_ge_u32 s{S_WAVE}, 3")
                e("s_cbranch_scc1 L_norestore")
                for k in range(8):
                    e(f"ds_read_b128 v[{SP0 + 4 * k}:{SP0 + 4 * k + 3}], v{V_AT} offset:{L_SPILL + 1024 * k}")
                e("L_norestore:")
        if o.stamps:
            self.stamp(8)
            e("s_waitcnt vmcnt(0)")
            self.stamp(10)
            e("s_getreg_b32 s94, hwreg(HW_REG_XCC_ID)")
            e("s_getreg_b32 s95, hwreg(HW_REG_HW_ID)")
            e("s_waitcnt lgkmcnt(0)")
            e("v_mov_b32 v2, 0")
            for i in range(11 if o.trace else 13):
                e(f"v_writelane_b32 v2, s{S_STAMP + 2 * i}, {i}")
            e(f"v_writelane_b32 v2, s{S_PM}, 13")
            e("v_writelane_b32 v2, s94, 14")
            e("v_writelane_b32 v2, s95, 15")
            e(f"s_mul_i32 s{S_T0}, s2, 12")
            e(f"s_add_u32 s{S_T0}, s{S_T0}, s{S_WAVE}")
            e(f"s_lshl_b32 s{S_T0}, s{S_T0}, 6")
            e(f"s_add_u32 s{S_T0}, s{S_T0}, {WS_STAMP}")
            e("v_mbcnt_lo_u32_b32 v3, -1, 0")
            e("v_lshlrev_b32 v3, 2, v3")
            e("s_mov_b64 exec, 0xffff")
            e(f"buffer_store_dword v2, v3, s[{S_WS}:{S_WS + 3}], s{S_T0} offen")
            if o.trace:
                e("s_mov_b32 s91, s92")
                for i in range(16):
                    e(f"v_writelane_b32 v2, s{76 + i}, {i}")
                e(f"s_add_u32 s{S_T0}, s{S_T0}, {1 << 19}")
                e(f"buffer_store_dword v2, v3, s[{S_WS}:{S_WS + 3}], s{S_T0} offen")
        if o.dbgptr:
            e("s_cmp_lg_u32 s2, 0")
            e("s_cbranch_scc1 L_nodp")
            e("s_mov_b64 exec, -1")
            e("v_mov_b32 v2, 0")
            for i, r in enumerate((4, 5, 8, 9, 12, 13, 16, 17, 0, 1)):
                e(f"v_writelane_b32 v2, s{r}, {i}")
            e("v_mbcnt_lo_u32_b32 v3, -1, 0")
            e("v_lshlrev_b32 v3, 2, v3")
            e("s_mov_b64 exec, 0x3ff")
            e(f"buffer_store_dword v2, v3, s[{S_DBG}:{S_DBG + 3}], 0 offen offset:8")
            e("L_nodp:")
        if o.probe:
            idx, K = [int(v) for v in o.probe.split(",")]
            if idx == -2:
                e("s_getreg_b32 s94, hwreg(HW_REG_XCC_ID)")
                e("s_xor_b32 s94, s94, s2")
                e("s_and_b32 s94, s94, 7")
                e("s_cbranch_scc0 L_end")
            elif idx == -3:
                e("s_cmp_lg_u32 s2, 0")
                e("s_cbranch_scc1 L_end")
            else:
                e("s_cmp_lg_u32 s2, 0")
                e("s_cbranch_scc1 L_end")
            e(f"s_cmp_lg_u32 s{S_WAVE}, 0")
            e("s_cbranch_scc1 L_end")
            if idx <= -10:
                e(f"s_bfe_u32 s94, s{-idx - 10}, {(7 << 16)} + {K}")
                e("s_mul_i32 s96, s94, 200")
                e("s_add_u32 s96, s96, 5000")
            elif idx == -3:
                e("s_getreg_b32 s94, hwreg(HW_REG_XCC_ID)")
                e("s_and_b32 s94, s94, 7")
                e(f"s_mul_i32 s96, s94, {K}")
                e("s_add_u32 s96, s96, 5000")
            elif idx < 0:
                e(f"s_mov_b32 s96, {K}")
            else:
                e(f"s_sub_u32 s96, s{S_STAMP + 2 * idx}, s{S_STAMP}")
                e(f"s_mul_i32 s96, s96, {K}")
            e("s_min_u32 s96, s96, 200000")
            e("L_probe:")
            e("s_memrealtime s[98:99]")
            e("s_waitcnt lgkmcnt(0)")
            e(f"s_sub_u32 s98, s98, s{S_STAMP}")
            e("s_cmp_lt_u32 s98, s96")
            e("s_cbranch_scc1 L_probe")
        e("L_end:")
        e("s_endpgm")

        e("L_clear:")
        for i in range(4):
            e(f"v_mov_b32 v{4 + i}, -1")
        e("v_lshlrev_b32 v2, 4, v1")
        e(f"s_mul_i32 s{S_T0}, s2, 1536")
        e(f"buffer_store_dwordx4 v[4:7], v2, s[{S_WS}:{S_WS + 3}], s{S_T0} offen sc1")
        e("s_mov_b32 exec_hi, 0")
        e(f"buffer_store_dwordx4 v[4:7], v2, s[{S_WS}:{S_WS + 3}], s{S_T0} offen offset:1024 sc1")
        e(f"s_cmp_ge_u32 s2, {NRED}")
        e("s_cbranch_scc1 L_noclearF")
        e("s_mov_b32 exec_lo, 0xff")
        e(f"s_lshl_b32 s{S_T0}, s2, 7")
        e(f"s_add_u32 s{S_T0}, s{S_T0}, {WS_F}")
        e(f"buffer_store_dwordx4 v[4:7], v2, s[{S_WS}:{S_WS + 3}], s{S_T0} offen sc1")
        e("L_noclearF:")
        e("s_mov_b64 exec, -1")
        e("s_waitcnt vmcnt(0)")
        e("s_branch L_cleared")

        e("L_vote:")
        e(f"s_cmp_ge_u32 s2, {NVOTE_WG}")
        e("s_cbranch_scc1 L_stream")
        e(f"s_sub_u32 s{S_T0}, s{S_OUT}, s{S_X}")
        e(f"s_add_u32 s{S_T0}, s{S_T0}, 2048")
        e(f"s_bitcmp1_b32 s{S_T0}, 12")
        e(f"s_cselect_b32 s{S_V}, {o.quorum // 2}, {o.quorum}")
        e(f"s_cselect_b32 s{S_V + 1}, 8, 0")
        e(f"s_or_b32 s{S_V + 1}, s{S_V + 1}, s2")
        e(f"s_bitcmp1_b32 s{S_V + 1}, 3")
        e("s_cselect_b64 s[40:41], s[8:9], s[4:5]")
        e(f"s_bfe_u32 s{S_T0}, s2, 0x10004")
        e(f"s_add_u32 s{S_T0}, s{S_T0}, 1")
        e(f"s_lshl_b32 s{S_T0}, s{S_T0}, 25")
        e(f"s_and_b32 s{S_T1}, s2, 7")
        e(f"s_lshl_b32 s{S_T2}, s{S_T1}, 22")
        e(f"s_add_u32 s{S_T0}, s{S_T0}, s{S_T2}")
        e(f"s_lshr_b32 s{S_T2}, s2, 5")
        e(f"s_lshl3_add_u32 s{S_T1}, s{S_T2}, s{S_T1}      ; voter 0..15")
        e(f"s_mul_i32 s{S_T1}, s{S_T1}, {16384 + 512}")
        e(f"s_and_b32 s{S_T2}, s2, 8")
        e(f"s_lshl_b32 s{S_T2}, s{S_T2}, 5")
        e(f"s_add_u32 s{S_T1}, s{S_T1}, s{S_T2}")
        e(f"s_add_u32 s{S_T0}, s{S_T0}, s{S_E}")
        e(f"s_add_u32 s{S_T0}, s{S_T0}, s{S_T1}")
        e(f"s_add_u32 s{S_T1}, s{S_T0}, 8192")
        self.stamp(1, True)
        e(f"s_load_dword s42, s[40:41], s{S_T0} glc")
        e(f"s_load_dword s43, s[40:41], s{S_T1} glc")
        e(f"s_mov_b32 s{S_CNT}, 0")
        for k in range(NRACE):
            e("s_waitcnt lgkmcnt(0)")
            if k < 2:
                self.stamp(2 + k, True)
                if o.vdiag:
                    e("s_waitcnt lgkmcnt(0)")
            first, second = (S_T0, S_T1) if k % 2 == 0 else (S_T1, S_T0)
            e(f"s_load_dword s42, s[40:41], s{first} glc")
            e(f"s_load_dword s43, s[40:41], s{second} glc")
            e("s_waitcnt lgkmcnt(1)")
            e("s_nop 7")
            e(f"s_getreg_b32 s{S_T2}, hwreg(HW_REG_IB_STS, 8, 4)")
            if k % 2 == 0:
                e(f"s_xor_b32 s{S_T2}, s{S_T2}, 1")
            e(f"s_add_u32 s{S_CNT}, s{S_CNT}, s{S_T2}")
        assert NVOTE_WG // 4 * NRACE // 2 < 32 and NRACE % 2 == 0
        e(f"s_sub_u32 s{S_CNT}, s{S_CNT}, {NRACE // 2}")
        e(f"s_sub_u32 s{S_T2}, 0, s{S_CNT}")
        e(f"s_add_u32 s{S_T0}, s{S_T0}, s{S_OUT}")
        e(f"s_lshr_b32 s{S_T0}, s{S_T0}, 19")
        e(f"s_xor_b32 s{S_T0}, s{S_T0}, s2")
        e(f"s_bitcmp1_b32 s{S_T0}, 2")
        e(f"s_cselect_b32 s{S_CNT}, s{S_T2}, s{S_CNT}")
        e(f"s_bfe_u32 s{S_T0}, s{S_V + 1}, 0x20003")
        e(f"s_mul_i32 s{S_T0}, s{S_T0}, 6")
        e(f"s_add_u32 s{S_T0}, s{S_T0}, 7")
        e(f"s_lshl_b32 s{S_CNT}, s{S_CNT}, s{S_T0}")
        e(f"s_or_b32 s{S_CNT}, s{S_CNT}, 1")
        e(f"s_mov_b32 s{S_T1}, s{S_CNT}")
        self.stamp(6, True)
        e(f"s_atomic_add s{S_T1}, s[44:45], {DBG_TAL} glc")
        e(f"s_add_u32 s{S_CNT}, s{S_CNT}, {sum(31 << (7 + 6 * t) for t in range(4))}")
        e("s_waitcnt lgkmcnt(0)")
        e(f"s_add_u32 s{S_T1}, s{S_T1}, s{S_CNT}")
        self.stamp(5)
        e(f"s_and_b32 s{S_T0}, s{S_T1}, 0x7f")
        e(f"s_cmp_lg_u32 s{S_T0}, s{S_V}")
        e("s_cbranch_scc1 L_stream")
        e(f"s_atomic_add s{S_T1}, s[44:45], {DBG_RES}")
        e("s_waitcnt lgkmcnt(0)")
        e("s_branch L_stream")

        e("L_dpoll:")
        e(f"s_mov_b32 s{S_CNT}, {SPIN}")
        e(f"v_mov_b32 v{V_AT}, 0")
        e("s_mov_b64 exec, 1")
        e("L_dloop:")
        e(f"buffer_load_dword v{V_AT}, off, s[{S_DBG}:{S_DBG + 3}], 0 offset:{DBG_RES} sc1")
        e(f"s_sleep {o.dsleep}")
        e("s_waitcnt vmcnt(24)")
        e(f"v_readfirstlane_b32 s{S_T2}, v{V_AT}")
        e(f"s_sub_u32 s{S_CNT}, s{S_CNT}, 1")
        e("s_cbranch_scc1 L_dgot")
        e(f"s_cmp_eq_u32 s{S_T2}, 0")
        e("s_cbranch_scc1 L_dloop")
        e("L_dgot:")
        e("s_mov_b64 exec, -1")
        e("s_branch L_decided")

        e("L_cntchk:")
        e(f"s_mov_b32 s{S_CNT}, {SPIN}")
        e("L_cntloop:")
        e(f"v_readfirstlane_b32 s{S_T0}, v{V_AT}")
        e(f"s_sub_u32 s{S_CNT}, s{S_CNT}, 1")
        e("s_cbranch_scc1 L_cntok")
        e(f"s_cmp_ge_u32 s{S_T0}, {NWG}")
        e("s_cbranch_scc1 L_cntok")
        e(f"buffer_load_dword v{V_AT}, off, s[{S_DBG}:{S_DBG + 3}], 0 offset:{DBG_CNT} sc1")
        e("s_waitcnt vmcnt(0)")
        e("s_branch L_cntloop")

    def text(self):
        out = HEADER
        out += f"; @launch grid=({NWG},1,1) block=(768,1,1) lds={L_TOTAL}\n"
        out += '.amdgcn_target "amdgcn-amd-amdhsa--gfx950"\n.text\n'
        out += f".globl {KNAME}\n.p2align 8\n.type {KNAME},@function\n{KNAME}:\n"
        out += "\n".join(self.lines) + "\n"
        out += f""".section .rodata,"a"
.p2align 6
.amdhsa_kernel {KNAME}
  .amdhsa_next_free_vgpr 168
  .amdhsa_next_free_sgpr {100 if self.o.stamps else 56}
  .amdhsa_accum_offset 168
  .amdhsa_group_segment_fixed_size 0
  .amdhsa_kernarg_size 48
  .amdhsa_user_sgpr_count 2
  .amdhsa_user_sgpr_kernarg_segment_ptr 1
  .amdhsa_system_sgpr_workgroup_id_x 1
  .amdhsa_float_denorm_mode_32 3
.end_amdhsa_kernel
"""
        return out


def main():
    p = argparse.ArgumentParser()
    p.add_argument("-o", default="standalone__channel_attn_cbam__vision.s")
    p.add_argument("--ldflags", default="nt")
    p.add_argument("--stflags", default="sc1")
    p.add_argument("--p1flags", default="sc1")
    p.add_argument("--stamps", action="store_true")
    p.add_argument("--probe", default="")
    p.add_argument("--depth", type=int, default=12)
    p.add_argument("--nrace", type=int, default=2)
    p.add_argument("--dsleep", type=int, default=8)
    p.add_argument("--trace", default="")
    p.add_argument("--nodec", action="store_true")
    p.add_argument("--vdiag", action="store_true")
    p.add_argument("--dbgptr", action="store_true")
    p.add_argument("--opp", default="5,9", type=lambda v: [int(x) for x in v.split(",")])
    p.add_argument("--quorum", type=int, default=32)
    p.add_argument("--cntpos", type=int, default=28)
    p.add_argument("--nagn", type=int, default=6)
    p.add_argument("--zorder", default="6,0,7,8,1,9,2,10,11,3,12,4,13,14,5,15")
    o = p.parse_args()
    global NAGN, SPANS
    NAGN = o.nagn
    if NAGN == 8:
        SPANS = [(0, 0), (0, 1), (1, 0), (1, 1), (2, 0), (2, 1), (3, 0), (3, 1),
                 (6, 0), (4, 0), (6, 1), (4, 1), (7, 0), (5, 0), (7, 1), (5, 1)]
        o.depth = max(o.depth, 16)
        if o.zorder == p.get_default("zorder"):
            o.zorder = "8,0,9,1,10,2,11,3,12,4,13,5,14,6,15,7"
    g = G(o)
    g.build()
    open(o.o, "w").write(g.text())


if __name__ == "__main__":
    main()
```

```python
import argparse

KNAME = "standalone__channel_attn_cbam__vision_kernel"

HEADER = """; Kernarg layout for this problem (48 bytes, ptrs only, base s[0:1]):
"""

X_BYTES = 100663296
NWG = 256
NRED = 12
MiB = 1 << 20

L_RED = 0
L_H = 6144
L_DEC = 6336
L_S = 6400
L_R2 = 7168
L_W1 = 8192
L_W2 = L_W1 + 18432
L_SPILL = L_W2 + 18432
L_TOTAL = L_SPILL + 3 * 8192

WS_P = 0
WS_F = 256 * 1536
WS_STAMP = 1 << 20
WS_USED = WS_F + 12 * 128

S_X, S_OUT, S_WS, S_DBG, S_W = 4, 8, 12, 16, 20
S_WAVE, S_TY, S_SUB, S_OFF, S_MASK, S_CNT, S_T0, S_T1 = 28, 29, 30, 31, 32, 33, 34, 35
S_BASE, S_PM, S_P, S_T2, S_E = 48, 49, 50, 51, 3
S_STAMP = 52
S_V = 24

D0 = 40
SPIN = 400000
V_A0, V_A1, V_D0, V_D1, V_AT = 0, 39, 38, 37, 36

NAGN = 6
SPANS = [(0, 0), (0, 1), (1, 0), (1, 1), (2, 0), (2, 1),
         (3, 0), (6, 0), (3, 1), (6, 1), (4, 0), (7, 0), (4, 1), (7, 1), (5, 0), (5, 1)]
W_PROBE, W_CHK = 11, 0
DBG_RES, DBG_CLR, DBG_TAL = 0, 64, 128
NVOTE_WG = 32


def mask(pred):
    return sum(1 << z for z, s in enumerate(SPANS) if pred(z, s))


class G:
    def __init__(self, o):
        self.o = o
        self.lines = []

    def e(self, s=""):
        self.lines.append(("    " + s) if s and not s.endswith(":") else s)

    def stamp(self, idx, vote=False):
        if self.o.vdiag and idx in (1, 2, 3, 6) and not vote:
            return
        if vote and not self.o.vdiag:
            return
        if self.o.stamps and not (self.o.trace and idx > 10):
            self.e(f"s_memrealtime s[{S_STAMP + 2 * idx}:{S_STAMP + 2 * idx + 1}]")

    def srd(self, d, lo, nbytes):
        e = self.e
        e(f"s_mov_b64 s[{d}:{d + 1}], s[{lo}:{lo + 1}]")
        e(f"s_mov_b32 s{d + 2}, {nbytes}")
        e(f"s_mov_b32 s{d + 3}, 0x20000")

    def span_off(self, z):
        return SPANS[z][0] * 12 * MiB + SPANS[z][1] * 49152

    def mem(self, j, fn):
        e = self.e
        z, u = j >> 1, j & 1
        if u == 0:
            e(f"s_bfe_u32 s{S_P}, s{S_PM}, {(1 << 16) | z}")
            if self.span_off(z):
                e(f"s_add_u32 s{S_OFF}, s{S_BASE}, {self.span_off(z)}")
            else:
                e(f"s_mov_b32 s{S_OFF}, s{S_BASE}")
        at = 2 + u
        e(f"v_mad_i32_i24 v{at}, v{(V_D0, V_D1)[u]}, s{S_P}, v{(V_A0, V_A1)[u]}")
        if SPANS[z] == (7, 1):
            e(f"v_add_u32 v{at}, s{S_OFF}, v{at}")
            e(f"v_subrev_u32 v{5 - at}, s{S_X + 2}, v{at}")
            e(f"v_min_u32 v{at}, v{at}, v{5 - at}")
            fn(f"v{at}", "0")
        else:
            fn(f"v{at}", f"s{S_OFF}")

    def trace(self, kind, n):
        if self.o.trace == kind:
            if n > 0:
                self.e("s_waitcnt lgkmcnt(0)")
                self.e(f"s_mov_b32 s{76 + n - 1}, s92")
            self.e("s_memrealtime s[92:93]")

    def build(self):
        o, e = self.o, self.e
        NRACE = o.nrace
        ldf = (" " + o.ldflags) if o.ldflags else ""
        stf = (" " + o.stflags) if o.stflags else ""

        self.stamp(0)
        e("s_load_dwordx2 s[4:5], s[0:1], 0          ; x")
        e("s_load_dwordx4 s[36:39], s[0:1], 8        ; w1, w2")
        e("s_load_dwordx2 s[8:9], s[0:1], 24         ; out")
        e("s_load_dwordx4 s[44:47], s[0:1], 32")
        e("s_cmp_ge_u32 s2, %d" % NWG)
        e("s_cbranch_scc1 L_end")
        e("v_readfirstlane_b32 s%d, v0" % S_WAVE)
        e("v_and_b32 v1, 63, v0                      ; lane")
        e("v_lshrrev_b32 v2, 3, v1")
        e("v_mul_u32_u24 v2, 384, v2")
        e("v_and_b32 v3, 7, v1")
        e("v_lshl_add_u32 v0, v3, 4, v2")
        e(f"s_lshr_b32 s{S_WAVE}, s{S_WAVE}, 6")
        e(f"s_mul_i32 s{S_SUB}, s{S_WAVE}, 43")
        e(f"s_lshr_b32 s{S_SUB}, s{S_SUB}, 7")
        e(f"s_mul_i32 s{S_TY}, s{S_SUB}, 3")
        e(f"s_sub_u32 s{S_TY}, s{S_WAVE}, s{S_TY}        ; ty = wave % 3")
        e(f"s_mul_i32 s{S_T0}, s{S_SUB}, 3072")
        e(f"s_lshl_b32 s{S_T1}, s{S_TY}, 7")
        e(f"s_add_u32 s{S_T0}, s{S_T0}, s{S_T1}")
        e(f"v_add_u32 v{V_A0}, s{S_T0}, v0")
        e(f"v_add_u32 v{V_A1}, 12288, v{V_A0}")
        e(f"s_movk_i32 s{S_T2}, 24576")
        for a, d in ((V_A0, V_D0), (V_A1, V_D1)):
            e(f"v_bfe_u32 v2, v{a}, 13, 1                 ; 1 identifies k' = 1")
            e(f"v_mad_u32_u24 v{a}, v2, s{S_T2}, v{a}")
            e(f"v_mad_i32_i24 v2, v2, -2, 1")
            e(f"v_mul_i32_i24 v{d}, s{S_T2}, v2")
        e(f"s_lshr_b32 s{S_T0}, s2, 1")
        e(f"s_and_b32 s{S_T0}, s{S_T0}, 0x7c")
        e(f"s_and_b32 s{S_T1}, s2, 3")
        e(f"s_add_u32 s{S_T0}, s{S_T0}, s{S_T1}")
        e(f"s_mul_i32 s{S_BASE}, s{S_T0}, 98304")
        h1 = mask(lambda z, s: s[1] == 1)
        alt = mask(lambda z, s: z < NAGN and s[1] == 1)
        e(f"s_bfe_i32 s{S_PM}, s2, 0x10002              ; -side")
        e(f"s_bfe_u32 s{S_T0}, s2, 0x10003")
        e(f"s_lshr_b32 s{S_T0}, {alt}, s{S_T0}")
        e(f"s_xor_b32 s{S_PM}, s{S_PM}, s{S_T0}")
        e(f"s_mov_b32 s{S_X + 2}, {X_BYTES}")
        e(f"s_mov_b32 s{S_X + 3}, 0x20000")
        e(f"s_mov_b32 s{S_OUT + 2}, s{S_X + 2}")
        e(f"s_mov_b32 s{S_OUT + 3}, s{S_X + 3}")
        e(f"s_mov_b32 s{S_WS + 2}, {(2 << 20) if o.stamps else WS_USED}")
        e(f"s_mov_b32 s{S_WS + 3}, s{S_X + 3}")
        e(f"s_movk_i32 s{S_DBG + 2}, 256")
        e(f"s_mov_b32 s{S_DBG + 3}, s{S_X + 3}")
        if o.thr:
            e(f"s_and_b32 s{S_T0}, s2, 7")
            e(f"s_lshr_b32 s{S_T0}, {o.thrmask}, s{S_T0}")
            e(f"s_and_b32 vcc_lo, s{S_T0}, 1")
            e("s_mov_b32 vcc_hi, 0")
        e("s_waitcnt lgkmcnt(0)")
        e(f"s_lshr_b32 s{S_T0}, s{S_OUT}, 7")
        e(f"s_mul_i32 s{S_T0}, s{S_T0}, 21              ; -43 mod 64")
        e(f"s_and_b32 s{S_T0}, s{S_T0}, 63")
        e(f"s_mul_i32 s{S_E}, s{S_T0}, 384")
        e(f"s_add_u32 s{S_BASE}, s{S_BASE}, s{S_E}")
        e(f"s_add_u32 s{S_T0}, s{S_BASE}, s{S_T2}")
        e(f"s_add_u32 s{S_T0}, s{S_T0}, s{S_OUT}")
        e(f"s_bfe_i32 s{S_T1}, s{S_T0}, 0x10015")
        e(f"s_xor_b32 s{S_PM}, s{S_PM}, s{S_T1}")
        e(f"s_add_u32 s{S_T2}, s{S_T0}, 49152")
        e(f"s_xor_b32 s{S_T0}, s{S_T0}, s{S_T2}")
        e(f"s_bfe_i32 s{S_T0}, s{S_T0}, 0x10015")
        e(f"s_and_b32 s{S_T0}, s{S_T0}, {h1}")
        e(f"s_xor_b32 s{S_PM}, s{S_PM}, s{S_T0}")
        e(f"s_mov_b64 s[{S_WS}:{S_WS + 1}], s[46:47]")
        e(f"s_mov_b64 s[{S_DBG}:{S_DBG + 1}], s[44:45]")
        e(f"s_cmp_eq_u32 s{S_WAVE}, {W_PROBE}")
        e("s_cbranch_scc1 L_vote")
        e("L_stream:")

        SUM, MAX, T = 4, 12, 20
        DEPTH = o.depth
        assert DEPTH >= 2 * NAGN
        seq = []

        def issue(j):
            if j == 2 * NAGN:
                m1 = mask(lambda z, s: z >= NAGN and s[0] in (3, 4))
                z50 = SPANS.index((5, 0))
                z51 = SPANS.index((5, 1))
                dec = mask(lambda z, s: z >= NAGN)
                e(f"s_cmp_lt_u32 s{S_BASE}, {4 * MiB - 24576}")
                e(f"s_cselect_b32 s{S_T0}, {1 << z50}, 0")
                e(f"s_or_b32 s{S_T0}, s{S_T0}, {m1}")
                e(f"s_cmp_lt_u32 s{S_BASE}, {4 * MiB - 24576 - 49152}")
                e(f"s_cselect_b32 s{S_T1}, {1 << z51}, 0")
                e(f"s_or_b32 s{S_T0}, s{S_T0}, s{S_T1}            ; third 1")
                e(f"s_xor_b32 s{S_T1}, s{S_T0}, {dec}           ; third 2")
                per, pat = o.opp
                rep = sum(((pat >> (i % per)) & 1) << i for i in range(32))
                e(f"s_lshr_b32 s{S_P}, s2, 3")
                e(f"s_mul_i32 s{S_T2}, s{S_P}, {-(-256 // per)}")
                e(f"s_lshr_b32 s{S_T2}, s{S_T2}, 8")
                e(f"s_mul_i32 s{S_T2}, s{S_T2}, {per}")
                e(f"s_sub_u32 s{S_P}, s{S_P}, s{S_T2}             ; (b >> 3) % {per}")
                e(f"s_lshr_b32 s{S_P}, {rep}, s{S_P}")
                e(f"s_sub_u32 s{S_T2}, s{S_OUT}, s{S_X}")
                e(f"s_add_u32 s{S_T2}, s{S_T2}, 2048")
                e(f"s_bitcmp1_b32 s{S_T2}, 12")
                e(f"s_cselect_b32 s{S_P}, 0, s{S_P}")
                e(f"s_mov_b32 s{S_MASK}, 0xffff0000")
                self.stamp(11)
                e("s_barrier")
                e(f"s_load_dword s{S_T2}, s[44:45], {DBG_RES}")
                e("s_waitcnt lgkmcnt(0)")
                e(f"s_cmp_eq_u32 s{S_T2}, 0")
                e("s_cbranch_scc1 L_dpoll")
                e("L_decided:")
                for i in range(4):
                    e(f"s_bitcmp1_b32 s{S_T2}, {7 + 6 * i + 5}")
                    e(f"s_cselect_b32 s{S_V + i}, s{(S_T0, S_T1)[i >> 1]}, 0")
                e(f"s_or_b32 s{S_V}, s{S_V}, s{S_V + 2}")
                e(f"s_or_b32 s{S_V + 1}, s{S_V + 1}, s{S_V + 3}")
                e(f"s_xor_b32 s{S_V}, s{S_V}, s{S_V + 1}")
                if o.nodec:
                    e(f"s_mov_b32 s{S_V}, {dec}")
                e(f"s_and_b32 s{S_V}, s{S_V}, s{S_P}")
                e(f"s_xor_b32 s{S_V}, s{S_V}, s{S_V + 1}")
                e(f"s_xor_b32 s{S_PM}, s{S_PM}, s{S_V}")
                self.stamp(12)
            if j == 30:
                e(f"s_cmp_lg_u32 s{S_WAVE}, {W_CHK}")
                e("s_cbranch_scc1 L_nosmp")
                e(f"s_load_dword s{S_V}, s[44:45], {DBG_CLR}")
                e("L_nosmp:")
            r = D0 + 4 * j
            if o.thr and j >= o.thrfrom:
                e(f"s_cbranch_vccz L_thr{j}")
                e(f"s_waitcnt vmcnt({o.thr - 1})")
                e(f"L_thr{j}:")
            self.mem(j, lambda va, so: e(f"buffer_load_dwordx4 v[{r}:{r + 3}], {va}, s[{S_X}:{S_X + 3}], {so} offen{ldf}"))
            seq.append(j)
            if j & 1:
                self.trace("ld", j >> 1)

        def wait_for(j):
            e(f"s_waitcnt vmcnt({len(seq) - 1 - seq.index(j)})")

        nxt = 0
        for jj in range(16):
            while nxt < 32 and nxt < 2 * jj + DEPTH + 2:
                issue(nxt)
                nxt += 1
                if nxt == 32:
                    self.stamp(1)
            a, b = D0 + 8 * jj, D0 + 8 * jj + 4
            if jj == 15:
                e("v_and_b32 v2, 7, v1")
                e("v_lshlrev_b32 v2, 5, v2                   ; (l&7)*32")
                e("v_lshrrev_b32 v3, 4, v1")
                e("v_lshl_add_u32 v2, v3, 3, v2              ; + (l>>4)*8")
                e("v_bfe_u32 v3, v1, 3, 1")
                e("v_mul_u32_u24 v3, 768, v3")
                e(f"s_mul_i32 s{S_T0}, s{S_SUB}, 1536")
                e(f"s_lshl_b32 s{S_T1}, s{S_TY}, 8")
                e(f"s_add_u32 s{S_T0}, s{S_T0}, s{S_T1}")
                e(f"v_add3_u32 v2, v2, v3, s{S_T0}")
                e(f"s_mul_i32 s{S_T0}, s{S_WAVE}, 768")
                e(f"v_lshl_add_u32 v3, v1, 4, s{S_T0}")
                e(f"s_mul_i32 s{S_T1}, s2, 1536")
                for r in (a, b):
                    wait_for((r - D0) // 4)
                    if r == b:
                        self.stamp(3)
                    for i in range(4):
                        t = T + 2 * i
                        e(f"v_lshlrev_b32 v{t}, 16, v{r + i}")
                        e(f"v_and_b32 v{t + 1}, s{S_MASK}, v{r + i}")
                    for i in range(8):
                        e(f"v_max_f32 v{MAX + i}, v{MAX + i}, v{T + i}")
                    for i in range(4):
                        t, s = T + 2 * i, SUM + 2 * i
                        e(f"v_pk_add_f32 v[{s}:{s + 1}], v[{s}:{s + 1}], v[{t}:{t + 1}]")
                continue
            wait_for(2 * jj + 1)
            if jj == 0:
                self.stamp(2)
            for i in range(4):
                t = T + 4 * i
                e(f"v_lshlrev_b32 v{t}, 16, v{a + i}")
                e(f"v_and_b32 v{t + 1}, s{S_MASK}, v{a + i}")
                e(f"v_lshlrev_b32 v{t + 2}, 16, v{b + i}")
                e(f"v_and_b32 v{t + 3}, s{S_MASK}, v{b + i}")
            for i in range(4):
                t = T + 4 * i
                s, m = SUM + 2 * i, MAX + 2 * i
                if jj == 0:
                    e(f"v_max_f32 v{m}, v{t}, v{t + 2}")
                    e(f"v_max_f32 v{m + 1}, v{t + 1}, v{t + 3}")
                    e(f"v_pk_add_f32 v[{s}:{s + 1}], v[{t}:{t + 1}], v[{t + 2}:{t + 3}]")
                else:
                    e(f"v_max3_f32 v{m}, v{m}, v{t}, v{t + 2}")
                    e(f"v_max3_f32 v{m + 1}, v{m + 1}, v{t + 1}, v{t + 3}")
                    e(f"v_pk_add_f32 v[{t}:{t + 1}], v[{t}:{t + 1}], v[{t + 2}:{t + 3}]")
            if jj:
                for i in range(4):
                    t = T + 4 * i
                    s = SUM + 2 * i
                    e(f"v_pk_add_f32 v[{s}:{s + 1}], v[{s}:{s + 1}], v[{t}:{t + 1}]")

        for base in (MAX, SUM):
            for i in range(4):
                e(f"v_permlane32_swap_b32 v{base + i}, v{base + 4 + i}")
        for i in range(4):
            e(f"v_max_f32 v{MAX + i}, v{MAX + i}, v{MAX + 4 + i}")
        for i in range(4):
            e(f"v_add_f32 v{SUM + i}, v{SUM + i}, v{SUM + 4 + i}")
        for i in range(2):
            e(f"v_permlane16_swap_b32 v{MAX + i}, v{MAX + 2 + i}")
        for i in range(2):
            e(f"v_permlane16_swap_b32 v{SUM + i}, v{SUM + 2 + i}")
        for i in range(2):
            e(f"v_add_f32 v{SUM + i}, v{SUM + i}, v{SUM + 2 + i}")
        for i in range(2):
            e(f"v_max_f32 v{MAX + i}, v{MAX + i}, v{MAX + 2 + i}")
        e(f"s_cmp_eq_u32 s{S_WAVE}, {W_CHK}")
        for i in range(2):
            e(f"v_add_f32_dpp v{SUM + i}, v{SUM + i}, v{SUM + i} row_ror:8 row_mask:0xf bank_mask:0x3")
        for i in range(2):
            e(f"v_max_f32_dpp v{SUM + i}, v{MAX + i}, v{MAX + i} row_ror:8 row_mask:0xf bank_mask:0xc")
        e(f"ds_write_b64 v2, v[{SUM}:{SUM + 1}] offset:{L_RED}")
        e("s_cbranch_scc1 L_cntchk")
        e("L_cntok:")
        e(f"s_cmp_ge_u32 s{S_WAVE}, 2")
        e("s_waitcnt lgkmcnt(0)")
        e("s_barrier")
        self.stamp(4)
        e("s_cbranch_scc1 L_nopub")

        e("s_mov_b32 exec_hi, 0xffff")
        for k in range(4):
            e(f"ds_read_b128 v[{4 + 4 * k}:{7 + 4 * k}], v3 offset:{L_RED + 1536 * k}")
        e(f"s_cmp_eq_u32 s{S_WAVE}, 0")
        e(f"s_cselect_b64 s[{S_W}:{S_W + 1}], s[36:37], s[38:39]")
        e("s_cbranch_scc0 L_pubmax")
        e("s_waitcnt lgkmcnt(2)")
        e("v_pk_add_f32 v[4:5], v[4:5], v[8:9]")
        e("v_pk_add_f32 v[6:7], v[6:7], v[10:11]")
        e("s_waitcnt lgkmcnt(0)")
        e("v_pk_add_f32 v[12:13], v[12:13], v[16:17]")
        e("v_pk_add_f32 v[14:15], v[14:15], v[18:19]")
        e("v_pk_add_f32 v[4:5], v[4:5], v[12:13]")
        e("v_pk_add_f32 v[6:7], v[6:7], v[14:15]")
        e("s_branch L_pub")
        e("L_pubmax:")
        e("s_waitcnt lgkmcnt(1)")
        for i in range(4):
            e(f"v_max3_f32 v{4 + i}, v{4 + i}, v{8 + i}, v{12 + i}")
        e("s_waitcnt lgkmcnt(0)")
        for i in range(4):
            e(f"v_max_f32 v{4 + i}, v{4 + i}, v{16 + i}")
        e("L_pub:")
        for i in range(4):
            e(f"v_min_u32 v{4 + i}, -2, v{4 + i}")
        e(f"buffer_store_dwordx4 v[4:7], v3, s[{S_WS}:{S_WS + 3}], s{S_T1} offen sc1")
        e("s_mov_b64 exec, -1")
        e(f"s_movk_i32 s{S_W + 2}, 18432")
        e(f"s_mov_b32 s{S_W + 3}, 0x20000")
        e(f"s_mul_i32 s{S_T0}, s{S_WAVE}, 18432")
        e(f"s_add_u32 s{S_T0}, s{S_T0}, {L_W1}")
        e(f"s_mov_b32 s{S_T1}, 0")
        e("v_lshlrev_b32 v2, 4, v1")
        e("L_wloop:")
        e(f"s_add_u32 m0, s{S_T0}, s{S_T1}")
        e(f"s_cmp_lt_u32 s{S_T1}, {18432 - 3072}")
        for k in range(3):
            e(f"buffer_load_dwordx4 v2, s[{S_W}:{S_W + 3}], s{S_T1} offen offset:{k * 1024} lds")
        e(f"s_cbranch_scc0 L_nopub")
        e(f"s_addk_i32 s{S_T1}, 3072")
        e("s_branch L_wloop")
        e("L_nopub:")

        B2 = 28
        V_H0, V_H1, V_SW, V_SR = 24, 25, 26, 27
        SP0 = 136
        A1 = 144
        B1 = [4, 8, 12, 16, 136, 140]
        e("v_lshrrev_b32 v20, 4, v1                  ; q")
        e(f"s_cmp_lt_u32 s{S_WAVE}, 3")
        e("s_cbranch_scc1 L_spill")
        e(f"s_cmp_ge_u32 s2, {NRED}")
        e("s_cbranch_scc1 L_barw")
        e(f"s_cmp_eq_u32 s{S_WAVE}, 3")
        e("s_cbranch_scc1 L_rfinal")

        e("v_lshrrev_b32 v2, 3, v1")
        e("v_mul_u32_u24 v2, 1536, v2")
        e("v_and_b32 v3, 7, v1")
        e("v_lshl_add_u32 v2, v3, 4, v2")
        e(f"s_sub_u32 s{S_T0}, s{S_WAVE}, 4")
        e(f"s_lshl_b32 s{S_T1}, s{S_T0}, 7")
        e(f"v_lshl_add_u32 v3, v3, 4, s{S_T1}")
        e("v_lshl_add_u32 v3, v20, 2, v3")
        e(f"s_mul_i32 s{S_T0}, s{S_T0}, {32 * 1536}")
        e(f"s_lshl_b32 s{S_T1}, s2, 7")
        e(f"s_add_u32 s{S_V}, s{S_T0}, s{S_T1}")
        for k in range(1, 4):
            e(f"s_add_u32 s{S_V + k}, s{S_V}, {k * 8 * 1536}")
        e(f"s_mov_b32 s{S_CNT}, {SPIN}")
        e("L_rpoll:")
        for k in range(4):
            e(f"buffer_load_dwordx4 v[{4 + 4 * k}:{7 + 4 * k}], v2, s[{S_WS}:{S_WS + 3}], s{S_V + k} offen {o.p1flags}")
        e(f"s_sub_u32 s{S_CNT}, s{S_CNT}, 1")
        e("s_cbranch_scc1 L_rgot")
        e("s_waitcnt vmcnt(2)")
        e("v_max3_u32 v21, v4, v5, v6")
        e("v_max3_u32 v22, v7, v8, v9")
        e("v_max3_u32 v21, v21, v10, v11")
        e("s_waitcnt vmcnt(1)")
        e("v_max3_u32 v22, v22, v12, v13")
        e("v_max3_u32 v21, v21, v14, v15")
        e("s_waitcnt vmcnt(0)")
        e("v_max3_u32 v22, v22, v16, v17")
        e("v_max3_u32 v21, v21, v18, v19")
        e("v_max_u32 v21, v21, v22")
        e("v_cmp_eq_u32 vcc, -1, v21")
        e("s_cbranch_vccnz L_rpoll")
        e("L_rgot:")
        e("s_waitcnt vmcnt(0)")
        self.stamp(9)
        e("s_cmp_ge_u32 s2, 6")
        e("s_cbranch_scc1 L_rmax")
        for kind in (0, 1):
            op = "v_add_f32" if kind == 0 else "v_max_f32"
            if kind == 1:
                e("L_rmax:")
                for i in range(4):
                    e(f"v_max3_f32 v{4 + i}, v{4 + i}, v{8 + i}, v{12 + i}")
                for i in (0, 2, 1, 3):
                    e(f"v_max_f32 v{4 + i}, v{4 + i}, v{16 + i}")
            else:
                e("v_pk_add_f32 v[4:5], v[4:5], v[8:9]")
                e("v_pk_add_f32 v[6:7], v[6:7], v[10:11]")
                e("v_pk_add_f32 v[12:13], v[12:13], v[16:17]")
                e("v_pk_add_f32 v[14:15], v[14:15], v[18:19]")
                e("v_pk_add_f32 v[4:5], v[4:5], v[12:13]")
                e("v_pk_add_f32 v[6:7], v[6:7], v[14:15]")
            e("s_nop 1")
            e("v_permlane32_swap_b32 v4, v6")
            e("v_permlane32_swap_b32 v5, v7")
            e(f"{op} v4, v4, v6")
            e(f"{op} v5, v5, v7")
            e("s_nop 1")
            e("v_permlane16_swap_b32 v4, v5")
            e(f"{op} v4, v4, v5")
            e("s_nop 1")
            e(f"{op}_dpp v4, v4, v4 row_ror:8 row_mask:0xf bank_mask:0xf")
            e(f"ds_write_b32 v3, v4 offset:{L_R2}")
            e("s_branch L_barw")

        e("L_rfinal:")
        e("v_and_b32 v2, 15, v1")
        e("v_lshlrev_b32 v3, 3, v2")
        e("v_lshl_add_u32 v3, v20, 8, v3")
        e("v_lshlrev_b32 v2, 2, v2")
        e(f"s_lshl_b32 s{S_T1}, s2, 7")
        e(f"s_add_u32 s{S_T1}, s{S_T1}, {WS_F}")
        e("s_cmp_ge_u32 s2, 6")
        e("s_cbranch_scc1 L_rfmax")
        for kind in (0, 1):
            op = "v_add_f32" if kind == 0 else "v_max_f32"
            if kind == 1:
                e("L_rfmax:")
            e("s_barrier")
            e(f"ds_read_b64 v[4:5], v3 offset:{L_R2}")
            e(f"ds_read_b64 v[6:7], v3 offset:{L_R2 + 128}")
            e("s_waitcnt lgkmcnt(0)")
            e(f"{op} v4, v4, v6")
            e(f"{op} v5, v5, v7")
            e("s_nop 1")
            e("v_permlane32_swap_b32 v4, v5")
            e(f"{op} v4, v4, v5")
            e("v_mov_b32 v5, v4")
            e("s_nop 1")
            e("v_permlane16_swap_b32 v4, v5")
            e(f"{op} v4, v4, v5                        ; lanes <32: c0, lanes >=32: c1")
            if kind == 0:
                e("v_mul_f32 v4, 0x36800000, v4              ; 1/262144")
            e("v_mov_b32 v5, v4")
            e("s_nop 1")
            e("v_permlane32_swap_b32 v4, v5")
            e("v_cvt_pk_bf16_f32 v4, v4, v5")
            e("s_mov_b64 exec, 0xffff")
            e("v_min_u32 v4, -2, v4")
            e(f"buffer_store_dword v4, v2, s[{S_WS}:{S_WS + 3}], s{S_T1} offen sc1")
            self.stamp(9)
            e("s_mov_b64 exec, -1")
            e("s_branch L_afterw")

        e("L_spill:")
        e(f"s_lshl_b32 s{S_T0}, s{S_WAVE}, 13")
        e(f"v_lshl_add_u32 v{V_AT}, v1, 4, s{S_T0}")
        for k in range(8):
            e(f"ds_write_b128 v{V_AT}, v[{SP0 + 4 * k}:{SP0 + 4 * k + 3}] offset:{L_SPILL + 1024 * k}")
        e("L_barw:")
        e("s_waitcnt vmcnt(0) lgkmcnt(0)")
        e("s_barrier")
        e("L_afterw:")
        e("v_bfe_u32 v3, v1, 2, 2")
        e("v_lshl_add_u32 v21, v20, 3, v3            ; row")
        e("v_and_b32 v22, 15, v21")
        e("v_and_b32 v3, 3, v1")
        e(f"s_lshl_b32 s{S_T2}, s{S_WAVE}, 5")
        e(f"v_lshl_add_u32 v23, v3, 3, s{S_T2}")
        e("v_mov_b32 v3, 384")
        e("v_mad_u32_u24 v2, v21, v3, v23")
        e("v_mad_u32_u24 v22, v22, v3, v23")
        e(f"ds_read_b64_tr_b16 v[{B2}:{B2 + 1}], v2 offset:{L_W2}")
        e(f"ds_read_b64_tr_b16 v[{B2 + 2}:{B2 + 3}], v2 offset:{L_W2 + 4 * 384}")
        e(f"ds_read_b64_tr_b16 v[{B2 + 4}:{B2 + 5}], v22 offset:{L_W2 + 32 * 384}")
        e(f"ds_read_b64_tr_b16 v[{B2 + 6}:{B2 + 7}], v22 offset:{L_W2 + 36 * 384}")
        e("v_and_b32 v2, 1, v1")
        e("v_mul_u32_u24 v22, 96, v2")
        e(f"v_lshl_add_u32 v{V_H0}, v20, 4, v22")
        e("v_and_b32 v3, 1, v20")
        e(f"v_lshl_add_u32 v{V_H1}, v3, 4, v22")
        e(f"s_lshl_b32 s{S_T0}, s{S_WAVE}, 6")
        e(f"v_lshl_add_u32 v{V_SW}, v1, 2, s{S_T0}")
        e("v_and_b32 v3, 7, v1")
        e(f"s_lshl_b32 s{S_T0}, s{S_TY}, 8")
        e(f"v_lshl_add_u32 v{V_SR}, v3, 5, s{S_T0}")
        e("s_waitcnt lgkmcnt(0)")
        e("s_mov_b32 exec_lo, 0")
        for i in range(4):
            e(f"v_mov_b32 v{B2 + 4 + i}, 0")
        e("s_mov_b64 exec, -1")
        e(f"s_cmp_ge_u32 s{S_WAVE}, 3")
        e("s_cbranch_scc1 L_join")

        e("v_mov_b32 v3, 96")
        e("v_mad_u32_u24 v2, v21, v3, v23")
        for s in range(6):
            for h in range(2):
                r = A1 + 4 * s + 2 * h
                e(f"ds_read_b64_tr_b16 v[{r}:{r + 1}], v2 offset:{L_W1 + s * 3072 + h * 384}")
        e(f"v_lshl_add_u32 v3, v20, 3, v22")
        e(f"v_add_u32 v3, s{S_T2}, v3")
        e("v_lshlrev_b32 v2, 3, v22")
        e("v_lshl_add_u32 v2, v20, 4, v2")
        for b in B1:
            for i in range(4):
                e(f"v_mov_b32 v{b + i}, 0")
        e(f"s_mov_b32 s{S_T1}, {WS_F}")
        e(f"s_mov_b32 s{S_CNT}, {SPIN}")
        e("s_waitcnt lgkmcnt(0)")
        e("L_fpoll:")
        e("s_mov_b32 exec_lo, 0x00030003")
        e("s_mov_b32 exec_hi, 0x00030003")
        for s in range(6):
            e(f"buffer_load_dwordx4 v[{B1[s]}:{B1[s] + 3}], v2, s[{S_WS}:{S_WS + 3}], s{S_T1} offen offset:{128 * s} sc1")
        e("s_mov_b64 exec, -1")
        e(f"s_sub_u32 s{S_CNT}, s{S_CNT}, 1")
        for s in range(6):
            c = "0" if s == 0 else "v[20:23]"
            b = B1[s]
            e(f"s_waitcnt vmcnt({5 - s})")
            e(f"v_mfma_f32_16x16x32_bf16 v[20:23], v[{A1 + 4 * s}:{A1 + 4 * s + 3}], v[{b}:{b + 3}], {c}")
            if s == 0:
                e(f"v_max3_u32 v1, v{b}, v{b + 1}, v{b + 2}")
                e(f"v_max_u32 v1, v1, v{b + 3}")
            else:
                e(f"v_max3_u32 v1, v1, v{b}, v{b + 1}")
                e(f"v_max3_u32 v1, v1, v{b + 2}, v{b + 3}")
        e("v_cmp_eq_u32 vcc, -1, v1")
        e("s_cbranch_scc1 L_fgot")
        e("s_cbranch_vccnz L_fpoll")
        e("L_fgot:")
        self.stamp(5)
        e("s_mov_b32 exec_lo, 0x00030003")
        e("s_mov_b32 exec_hi, 0x00030003")
        e("s_nop 1")
        for i in range(4):
            e(f"v_maximum3_f32 v{20 + i}, v{20 + i}, 0, 0")
        e("v_cvt_pk_bf16_f32 v20, v20, v21")
        e("v_cvt_pk_bf16_f32 v21, v22, v23")
        e(f"ds_write_b64 v3, v[20:21] offset:{L_H}")
        e("s_mov_b64 exec, -1")
        e("s_waitcnt lgkmcnt(0)")

        e("L_join:")
        e("s_barrier")
        self.stamp(6)
        e(f"ds_read_b128 v[4:7], v{V_H0} offset:{L_H}")
        e(f"ds_read_b128 v[8:11], v{V_H1} offset:{L_H + 64}")
        e("s_waitcnt lgkmcnt(1)")
        e(f"v_mfma_f32_16x16x32_bf16 v[12:15], v[4:7], v[{B2}:{B2 + 3}], 0")
        e("s_waitcnt lgkmcnt(0)")
        e(f"v_mfma_f32_16x16x32_bf16 v[12:15], v[8:11], v[{B2 + 4}:{B2 + 7}], v[12:15]")
        e("s_mov_b64 exec, 0xffff")
        e("s_nop 6")
        e("v_cvt_pk_bf16_f32 v12, v12, v13")
        e("v_lshlrev_b32 v13, 16, v12")
        e(f"v_and_b32 v12, s{S_MASK}, v12")
        e("v_add_f32 v12, v12, v13")
        e("v_cvt_pk_bf16_f32 v12, v12, v12")
        e("v_lshlrev_b32 v12, 16, v12")
        e("v_mul_f32 v12, 0xbfb8aa3b, v12            ; -log2(e)")
        e("v_exp_f32 v12, v12")
        e("s_nop 0")
        e("v_add_f32 v12, 1.0, v12")
        e("v_rcp_f32 v12, v12")
        e("s_nop 0")
        e("v_cvt_pk_bf16_f32 v12, v12, v12")
        e("v_lshlrev_b32 v12, 16, v12")
        e(f"ds_write_b32 v{V_SW}, v12 offset:{L_S}")
        e("s_mov_b64 exec, -1")
        e("s_waitcnt lgkmcnt(0)")
        e("s_barrier")
        e(f"ds_read_b128 v[4:7], v{V_SR} offset:{L_S}")
        e(f"ds_read_b128 v[8:11], v{V_SR} offset:{L_S + 16}")

        if o.stlim:
            e(f"s_cmp_lt_u32 s2, {o.stlim}")
            e(f"s_cselect_b32 s{S_OUT + 2}, s{S_OUT + 2}, 0")
        zorder = [int(v) for v in o.zorder.split(",")]
        assert sorted(zorder) == list(range(16))
        restored = False

        def wbl2():
            wv, lim, pos = [int(v) for v in o.wb.split(",")]
            e(f"s_cmp_lt_u32 s{S_WAVE}, {wv}")
            e("s_cbranch_scc1 L_nowb")
            e(f"s_cmp_ge_u32 s2, {lim}")
            e("s_cbranch_scc1 L_nowb")
            if pos == 33:
                e("s_waitcnt vmcnt(0)")
            e("buffer_wbl2 sc1")
            e("L_nowb:")
        for n, j in enumerate([2 * z + u for z in zorder for u in (0, 1)]):
            a = D0 + 4 * j
            t0 = 12 + 8 * (n & 1)
            if a >= SP0 and not restored:
                assert n > 1
                e("s_waitcnt lgkmcnt(0)")
                restored = True
            for i in range(4):
                t = t0 + 2 * i
                e(f"v_lshlrev_b32 v{t}, 16, v{a + i}")
                e(f"v_and_b32 v{t + 1}, s{S_MASK}, v{a + i}")
            if n == 0:
                e("s_waitcnt lgkmcnt(0)")
                self.stamp(7)
            for i in range(4):
                t = t0 + 2 * i
                e(f"v_pk_mul_f32 v[{t}:{t + 1}], v[{t}:{t + 1}], v[{4 + 2 * i}:{5 + 2 * i}]")
            for i in range(4):
                t = t0 + 2 * i
                e(f"v_cvt_pk_bf16_f32 v{a + i}, v{t}, v{t + 1}")
            self.mem(j, lambda va, so: e(f"buffer_store_dwordx4 v[{a}:{a + 3}], {va}, s[{S_OUT}:{S_OUT + 3}], {so} offen{'' if n >= 32 - o.nplain else stf}"))
            if o.wb and int(o.wb.split(",")[2]) == n:
                wbl2()
            if n & 1:
                self.trace("st", n >> 1)
            if n == 1:
                e(f"s_cmp_ge_u32 s{S_WAVE}, 3")
                e("s_cbranch_scc1 L_norestore")
                for k in range(8):
                    e(f"ds_read_b128 v[{SP0 + 4 * k}:{SP0 + 4 * k + 3}], v{V_AT} offset:{L_SPILL + 1024 * k}")
                e("L_norestore:")
        if o.wb and int(o.wb.split(",")[2]) >= 32:
            wbl2()
        if o.stamps:
            self.stamp(8)
            e("s_waitcnt vmcnt(0)")
            self.stamp(10)
            e("s_getreg_b32 s94, hwreg(HW_REG_XCC_ID)")
            e("s_getreg_b32 s95, hwreg(HW_REG_HW_ID)")
            e("s_waitcnt lgkmcnt(0)")
            e("v_mov_b32 v2, 0")
            for i in range(11 if o.trace else 13):
                e(f"v_writelane_b32 v2, s{S_STAMP + 2 * i}, {i}")
            e(f"v_writelane_b32 v2, s{S_PM}, 13")
            e("v_writelane_b32 v2, s94, 14")
            e("v_writelane_b32 v2, s95, 15")
            e(f"s_mul_i32 s{S_T0}, s2, 12")
            e(f"s_add_u32 s{S_T0}, s{S_T0}, s{S_WAVE}")
            e(f"s_lshl_b32 s{S_T0}, s{S_T0}, 6")
            e(f"s_add_u32 s{S_T0}, s{S_T0}, {WS_STAMP}")
            e("v_mbcnt_lo_u32_b32 v3, -1, 0")
            e("v_lshlrev_b32 v3, 2, v3")
            e("s_mov_b64 exec, 0xffff")
            e(f"buffer_store_dword v2, v3, s[{S_WS}:{S_WS + 3}], s{S_T0} offen")
            if o.trace:
                e("s_mov_b32 s91, s92")
                for i in range(16):
                    e(f"v_writelane_b32 v2, s{76 + i}, {i}")
                e(f"s_add_u32 s{S_T0}, s{S_T0}, {1 << 19}")
                e(f"buffer_store_dword v2, v3, s[{S_WS}:{S_WS + 3}], s{S_T0} offen")
        if o.dbgptr:
            e("s_cmp_lg_u32 s2, 0")
            e("s_cbranch_scc1 L_nodp")
            e("s_mov_b64 exec, -1")
            e("v_mov_b32 v2, 0")
            for i, r in enumerate((4, 5, 8, 9, 12, 13, 16, 17, 0, 1)):
                e(f"v_writelane_b32 v2, s{r}, {i}")
            e("v_mbcnt_lo_u32_b32 v3, -1, 0")
            e("v_lshlrev_b32 v3, 2, v3")
            e("s_mov_b64 exec, 0x3ff")
            e(f"buffer_store_dword v2, v3, s[{S_DBG}:{S_DBG + 3}], 0 offen offset:8")
            e("L_nodp:")
        if o.probe:
            idx, K = [int(v) for v in o.probe.split(",")]
            if idx == -2:
                e("s_getreg_b32 s94, hwreg(HW_REG_XCC_ID)")
                e("s_xor_b32 s94, s94, s2")
                e("s_and_b32 s94, s94, 7")
                e("s_cbranch_scc0 L_end")
            elif idx == -3:
                e("s_cmp_lg_u32 s2, 0")
                e("s_cbranch_scc1 L_end")
            else:
                e("s_cmp_lg_u32 s2, 0")
                e("s_cbranch_scc1 L_end")
            e(f"s_cmp_lg_u32 s{S_WAVE}, 0")
            e("s_cbranch_scc1 L_end")
            if idx <= -10:
                e(f"s_bfe_u32 s94, s{-idx - 10}, {(7 << 16)} + {K}")
                e("s_mul_i32 s96, s94, 200")
                e("s_add_u32 s96, s96, 5000")
            elif idx == -3:
                e("s_getreg_b32 s94, hwreg(HW_REG_XCC_ID)")
                e("s_and_b32 s94, s94, 7")
                e(f"s_mul_i32 s96, s94, {K}")
                e("s_add_u32 s96, s96, 5000")
            elif idx < 0:
                e(f"s_mov_b32 s96, {K}")
            else:
                e(f"s_sub_u32 s96, s{S_STAMP + 2 * idx}, s{S_STAMP}")
                e(f"s_mul_i32 s96, s96, {K}")
            e("s_min_u32 s96, s96, 200000")
            e("L_probe:")
            e("s_memrealtime s[98:99]")
            e("s_waitcnt lgkmcnt(0)")
            e(f"s_sub_u32 s98, s98, s{S_STAMP}")
            e("s_cmp_lt_u32 s98, s96")
            e("s_cbranch_scc1 L_probe")
        e("L_end:")
        e("s_endpgm")

        e("L_vote:")
        e(f"s_cmp_ge_u32 s2, {NVOTE_WG}")
        e("s_cbranch_scc1 L_stream")
        e("s_setprio 3")
        e(f"s_sub_u32 s{S_T0}, s{S_OUT}, s{S_X}")
        e(f"s_add_u32 s{S_T0}, s{S_T0}, 2048")
        e(f"s_bitcmp1_b32 s{S_T0}, 12")
        e(f"s_cselect_b32 s{S_V}, {o.quorum}, {o.quorum4}")
        e(f"s_cselect_b32 s{S_V + 1}, 8, 0")
        e(f"s_or_b32 s{S_V + 1}, s{S_V + 1}, s2")
        e(f"s_bitcmp1_b32 s{S_V + 1}, 3")
        e("s_cselect_b64 s[40:41], s[8:9], s[4:5]")
        e(f"s_bfe_u32 s{S_T0}, s2, 0x10004")
        e(f"s_add_u32 s{S_T0}, s{S_T0}, 1")
        e(f"s_lshl_b32 s{S_T0}, s{S_T0}, 25")
        e(f"s_and_b32 s{S_T1}, s2, 7")
        e(f"s_lshl_b32 s{S_T2}, s{S_T1}, 22")
        e(f"s_add_u32 s{S_T0}, s{S_T0}, s{S_T2}")
        e(f"s_and_b32 s{S_T1}, s2, 15")
        e(f"s_mul_i32 s{S_T1}, s{S_T1}, {16384 + 512}")
        e(f"s_add_u32 s{S_T0}, s{S_T0}, s{S_E}")
        e(f"s_add_u32 s{S_T0}, s{S_T0}, s{S_T1}")
        e(f"s_add_u32 s{S_T1}, s{S_T0}, 8192")
        self.stamp(1, True)
        e(f"s_load_dword s42, s[40:41], s{S_T0} glc")
        e(f"s_load_dword s43, s[40:41], s{S_T1} glc")
        share = -(-WS_USED // (NVOTE_WG * 1024))
        for i in range(4):
            e(f"v_mov_b32 v{4 + i}, -1")
        e("v_lshlrev_b32 v2, 4, v1")
        e(f"s_mul_i32 s{S_T2}, s2, {share * 1024}")
        e(f"s_mov_b32 s{S_WS + 2}, {WS_USED}")
        for k in range(share):
            if k and k % 4 == 0:
                e(f"s_addk_i32 s{S_T2}, 4096")
            e(f"buffer_store_dwordx4 v[4:7], v2, s[{S_WS}:{S_WS + 3}], s{S_T2} offen offset:{(k % 4) * 1024} sc1")
        if o.stamps:
            e(f"s_mov_b32 s{S_WS + 2}, {2 << 20}")
        e("s_setprio 0")
        e(f"s_mov_b32 s{S_CNT}, 0")
        for k in range(NRACE):
            e("s_waitcnt lgkmcnt(0)")
            if k < 2:
                self.stamp(2 + k, True)
                if o.vdiag:
                    e("s_waitcnt lgkmcnt(0)")
            first, second = (S_T0, S_T1) if k % 2 == 0 else (S_T1, S_T0)
            e(f"s_load_dword s42, s[40:41], s{first} glc")
            e(f"s_load_dword s43, s[40:41], s{second} glc")
            e("s_waitcnt lgkmcnt(1)")
            e("s_nop 7")
            e(f"s_getreg_b32 s{S_T2}, hwreg(HW_REG_IB_STS, 8, 4)")
            if k % 2 == 0:
                e(f"s_xor_b32 s{S_T2}, s{S_T2}, 1")
            e(f"s_add_u32 s{S_CNT}, s{S_CNT}, s{S_T2}")
        assert NVOTE_WG // 4 * NRACE // 2 < 32 and NRACE % 2 == 0
        e(f"s_sub_u32 s{S_CNT}, s{S_CNT}, {NRACE // 2}")
        e(f"s_sub_u32 s{S_T2}, 0, s{S_CNT}")
        e(f"s_add_u32 s{S_T0}, s{S_T0}, s{S_OUT}")
        e(f"s_lshr_b32 s{S_T0}, s{S_T0}, 19")
        e(f"s_xor_b32 s{S_T0}, s{S_T0}, s2")
        e(f"s_bitcmp1_b32 s{S_T0}, 2")
        e(f"s_cselect_b32 s{S_CNT}, s{S_T2}, s{S_CNT}")
        e(f"s_bfe_u32 s{S_T0}, s{S_V + 1}, 0x20003")
        e(f"s_mul_i32 s{S_T0}, s{S_T0}, 6")
        e(f"s_add_u32 s{S_T0}, s{S_T0}, 7")
        e(f"s_lshl_b32 s{S_CNT}, s{S_CNT}, s{S_T0}")
        e(f"s_or_b32 s{S_CNT}, s{S_CNT}, 1")
        e(f"s_mov_b32 s{S_T1}, s{S_CNT}")
        self.stamp(6, True)
        e("s_waitcnt vmcnt(0)")
        e(f"s_atomic_add s{S_T1}, s[44:45], {DBG_TAL} glc")
        e(f"s_add_u32 s{S_CNT}, s{S_CNT}, {sum(31 << (7 + 6 * t) for t in range(4))}")
        e("s_waitcnt lgkmcnt(0)")
        e(f"s_add_u32 s{S_T1}, s{S_T1}, s{S_CNT}")
        self.stamp(5)
        e(f"s_and_b32 s{S_T0}, s{S_T1}, 0x7f")
        assert o.quorum < NVOTE_WG and o.quorum4 < NVOTE_WG
        e(f"s_cmp_eq_u32 s{S_T0}, {NVOTE_WG}")
        e(f"s_cselect_b32 s{S_T2}, {DBG_CLR}, {DBG_RES}")
        e(f"s_cselect_b32 s{S_T0}, s{S_V}, s{S_T0}")
        e(f"s_cmp_lg_u32 s{S_T0}, s{S_V}")
        e("s_cbranch_scc1 L_stream")
        e(f"s_atomic_add s{S_T1}, s[44:45], s{S_T2}")
        e("s_waitcnt lgkmcnt(0)")
        e("s_branch L_stream")

        e("L_dpoll:")
        e(f"s_mov_b32 s{S_CNT}, {SPIN}")
        e(f"v_mov_b32 v{V_AT}, 0")
        e("s_mov_b64 exec, 1")
        e("L_dloop:")
        e(f"buffer_load_dword v{V_AT}, off, s[{S_DBG}:{S_DBG + 3}], 0 offset:{DBG_RES} sc1")
        e(f"s_sleep {o.dsleep}")
        e("s_waitcnt vmcnt(24)")
        e(f"v_readfirstlane_b32 s{S_T2}, v{V_AT}")
        e(f"s_sub_u32 s{S_CNT}, s{S_CNT}, 1")
        e("s_cbranch_scc1 L_dgot")
        e(f"s_cmp_eq_u32 s{S_T2}, 0")
        e("s_cbranch_scc1 L_dloop")
        e("L_dgot:")
        e("s_mov_b64 exec, -1")
        e("s_branch L_decided")

        e("L_cntchk:")
        e(f"s_mov_b32 s{S_CNT}, {SPIN}")
        e("s_waitcnt lgkmcnt(0)")
        e("L_cntloop:")
        e(f"s_cmp_lg_u32 s{S_V}, 0")
        e("s_cbranch_scc1 L_cntok")
        e(f"s_sub_u32 s{S_CNT}, s{S_CNT}, 1")
        e("s_cbranch_scc1 L_cntok")
        e(f"buffer_load_dword v{V_AT}, off, s[{S_DBG}:{S_DBG + 3}], 0 offset:{DBG_CLR} sc1")
        e("s_waitcnt vmcnt(0)")
        e(f"v_readfirstlane_b32 s{S_V}, v{V_AT}")
        e("s_branch L_cntloop")

    def text(self):
        out = HEADER
        out += f"; @launch grid=({NWG},1,1) block=(768,1,1) lds={L_TOTAL}\n"
        out += '.amdgcn_target "amdgcn-amd-amdhsa--gfx950"\n.text\n'
        out += f".globl {KNAME}\n.p2align 8\n.type {KNAME},@function\n{KNAME}:\n"
        out += "\n".join(self.lines) + "\n"
        out += f""".section .rodata,"a"
.p2align 6
.amdhsa_kernel {KNAME}
  .amdhsa_next_free_vgpr 168
  .amdhsa_next_free_sgpr {100 if self.o.stamps else 56}
  .amdhsa_accum_offset 168
  .amdhsa_group_segment_fixed_size 0
  .amdhsa_kernarg_size 48
  .amdhsa_user_sgpr_count 2
  .amdhsa_user_sgpr_kernarg_segment_ptr 1
  .amdhsa_system_sgpr_workgroup_id_x 1
  .amdhsa_float_denorm_mode_32 3
.end_amdhsa_kernel
"""
        return out


def main():
    p = argparse.ArgumentParser()
    p.add_argument("-o", default="standalone__channel_attn_cbam__vision.s")
    p.add_argument("--ldflags", default="nt")
    p.add_argument("--stflags", default="sc1")
    p.add_argument("--p1flags", default="sc1")
    p.add_argument("--stamps", action="store_true")
    p.add_argument("--probe", default="")
    p.add_argument("--depth", type=int, default=12)
    p.add_argument("--nrace", type=int, default=2)
    p.add_argument("--dsleep", type=int, default=8)
    p.add_argument("--trace", default="")
    p.add_argument("--nodec", action="store_true")
    p.add_argument("--vdiag", action="store_true")
    p.add_argument("--dbgptr", action="store_true")
    p.add_argument("--opp", default="5,9", type=lambda v: [int(x) for x in v.split(",")])
    p.add_argument("--quorum", type=int, default=16)
    p.add_argument("--quorum4", type=int, default=24)
    p.add_argument("--nvote", type=int, default=32)
    p.add_argument("--nagn", type=int, default=6)
    p.add_argument("--stlim", type=int, default=0)
    p.add_argument("--nplain", type=int, default=0)
    p.add_argument("--wb", default="", help="minwave,wglimit,pos")
    p.add_argument("--thr", type=int, default=0)
    p.add_argument("--thrfrom", type=int, default=12)
    p.add_argument("--thrmask", default="0x55")
    p.add_argument("--zorder", default="6,0,7,8,1,9,2,10,11,3,12,4,13,14,5,15")
    o = p.parse_args()
    global NAGN, SPANS, NVOTE_WG
    NVOTE_WG = o.nvote
    NAGN = o.nagn
    if NAGN == 8:
        SPANS = [(0, 0), (0, 1), (1, 0), (1, 1), (2, 0), (2, 1), (3, 0), (3, 1),
                 (6, 0), (4, 0), (6, 1), (4, 1), (7, 0), (5, 0), (7, 1), (5, 1)]
        o.depth = max(o.depth, 16)
        if o.zorder == p.get_default("zorder"):
            o.zorder = "8,0,9,1,10,2,11,3,12,4,13,5,14,6,15,7"
    g = G(o)
    g.build()
    open(o.o, "w").write(g.text())


if __name__ == "__main__":
    main()
```

```python
import argparse

KNAME = "standalone__channel_attn_cbam__vision_kernel"

HEADER = """; Kernarg layout for this problem (48 bytes, ptrs only, base s[0:1]):
;   offset   0: d_in[0] x  shape=(1, 512, 512, 192) dtype=bfloat16 strides=(100663296, 196608, 384, 2) contiguous=True
;   offset   8: d_in[1] w1  shape=(192, 48) dtype=bfloat16 strides=(96, 2) contiguous=True
;   offset  16: d_in[2] w2  shape=(48, 192) dtype=bfloat16 strides=(384, 2) contiguous=True
;   offset  40: d_ws      402653184 bytes workspace (unspecified values whenever your kernel or launch list starts; a list's later launches find what earlier ones wrote)
"""

X_BYTES = 100663296
NWG = 256
NRED = 12
MiB = 1 << 20

L_RED = 0
L_H = 6144
L_DEC = 6336
L_S = 6400
L_F = 7168
L_W1 = 8192
L_W2 = L_W1 + 18432
L_SPILL = L_W2 + 18432
L_TOTAL = L_SPILL + 3 * 8192

WS_P = 0
WS_Q = 256 * 1536
WS_E = WS_Q + 8 * 3072
WS_USED = WS_E + 128
WS_STAMP = 1 << 20

S_X, S_OUT, S_WS, S_DBG, S_W = 4, 8, 12, 16, 20
S_WAVE, S_TY, S_SUB, S_OFF, S_MASK, S_CNT, S_T0, S_T1 = 28, 29, 30, 31, 32, 33, 34, 35
S_BASE, S_PM, S_P, S_T2, S_E = 48, 49, 50, 51, 3
S_AGN, S_TAG, S_RID, S_PO = 40, 41, 42, 43
S_RET, S_HOOK = 44, 46
NFB = 48
S_STAMP = 52
S_V = 24

D0 = 40
SPIN = 400000
V_L, V_G0, V_G1, V_AT = 0, 39, 38, 36

NAGN = 8
SPANS = [(0, 0), (0, 1), (1, 0), (1, 1), (2, 0), (2, 1), (3, 0), (3, 1),
         (6, 0), (4, 0), (6, 1), (4, 1), (7, 0), (5, 0), (7, 1), (5, 1)]
W_ROLE = 0
DBG_RES, DBG_TAL = 0, 128
NVOTE_WG = 32
RES_OK = (1 << 7) | (1 << 4)


def mask(pred):
    return sum(1 << z for z, s in enumerate(SPANS) if pred(z, s))


class G:
    def __init__(self, o):
        self.o = o
        self.lines = []

    def e(self, s=""):
        self.lines.append(("    " + s) if s and not s.endswith(":") else s)

    def stamp(self, idx, vote=False):
        if vote == "r":
            vote = False
        if self.o.vdiag and idx in (1, 2, 3, 6) and not vote:
            return
        if vote and not self.o.vdiag:
            return
        if self.o.stamps and not (self.o.trace and idx > 10):
            self.e(f"s_memrealtime s[{S_STAMP + 2 * idx}:{S_STAMP + 2 * idx + 1}]")

    def srd(self, d, lo, nbytes):
        e = self.e
        e(f"s_mov_b64 s[{d}:{d + 1}], s[{lo}:{lo + 1}]")
        e(f"s_mov_b32 s{d + 2}, {nbytes}")
        e(f"s_mov_b32 s{d + 3}, 0x20000")

    def span_off(self, z):
        return SPANS[z][0] * 12 * MiB + SPANS[z][1] * 49152

    def mem(self, j, fn):
        e = self.e
        z, u = j >> 1, j & 1
        if z < NAGN:
            off = SPANS[z][0] * 12 * MiB + (SPANS[z][1] * 2 + u) * 12288
            if off:
                e(f"s_add_u32 s{S_OFF}, s{S_AGN}, {off}")
                fn(f"v{V_L}", f"s{S_OFF}")
            else:
                fn(f"v{V_L}", f"s{S_AGN}")
            return
        if u == 0:
            e(f"s_bitcmp1_b32 s{S_PM}, {z}")
            e(f"s_cselect_b32 s{S_P}, 24576, 0")
        e(f"s_add_u32 s{S_OFF}, s{S_BASE}, {self.span_off(z) + 12288 * u}")
        at = 2 + u
        e(f"v_xad_u32 v{at}, v{(V_G0, V_G1)[u]}, s{S_P}, v{V_L}")
        if SPANS[z] == (7, 1):
            e(f"v_add_u32 v{at}, s{S_OFF}, v{at}")
            e(f"v_subrev_u32 v{5 - at}, s{S_X + 2}, v{at}")
            e(f"v_min_u32 v{at}, v{at}, v{5 - at}             ; past the end: wrap to the rows the shift skipped")
            fn(f"v{at}", "0")
        else:
            fn(f"v{at}", f"s{S_OFF}")

    def trace(self, kind, n):
        if self.o.trace == kind:
            if n > 0:
                self.e("s_waitcnt lgkmcnt(0)")
                self.e(f"s_mov_b32 s{76 + n - 1}, s92")
            self.e("s_memrealtime s[92:93]")

    def build(self):
        o, e = self.o, self.e
        NRACE = o.nrace
        ldf = (" " + o.ldflags) if o.ldflags else ""
        stf = (" " + o.stflags) if o.stflags else ""

        self.stamp(0)
        e("s_load_dwordx2 s[4:5], s[0:1], 0          ; x")
        e("s_load_dwordx2 s[8:9], s[0:1], 24         ; out")
        e("v_readfirstlane_b32 s%d, v0" % S_WAVE)
        e("v_and_b32 v1, 63, v0                      ; lane")
        e("v_bfe_u32 v2, v0, 3, 3")
        e("v_mul_u32_u24 v2, 384, v2")
        e("v_and_b32 v3, 7, v0")
        e("s_cmpk_ge_u32 s2, %d" % NWG)
        e("s_cbranch_scc1 L_end")
        e(f"s_lshr_b32 s{S_WAVE}, s{S_WAVE}, 6")
        e(f"s_mul_i32 s{S_SUB}, s{S_WAVE}, 43")
        e(f"s_lshr_b32 s{S_SUB}, s{S_SUB}, 7")
        e(f"s_mul_i32 s{S_T0}, s{S_SUB}, 21")
        e(f"s_add_u32 s{S_T0}, s{S_T0}, s{S_WAVE}        ; sub*24 + wave % 3")
        e(f"s_lshl_b32 s{S_T0}, s{S_T0}, 7")
        e("v_lshl_add_u32 v0, v3, 4, v2")
        e(f"v_add_u32 v{V_L}, s{S_T0}, v0               ; + sub*3072 + (wave % 3)*128")
        e(f"s_and_b32 s{S_T0}, s2, 3")
        e(f"s_bfe_u32 s{S_T1}, s2, 0x10002")
        e(f"s_lshl1_add_u32 s{S_T0}, s{S_T0}, s{S_T1}")
        e(f"s_and_b32 s{S_T1}, s2, -8")
        e(f"s_add_u32 s{S_T0}, s{S_T0}, s{S_T1}")
        e(f"s_mul_i32 s{S_AGN}, s{S_T0}, 49152")
        e(f"s_mov_b32 s{S_X + 2}, {X_BYTES}")
        e(f"s_mov_b32 s{S_X + 3}, 0x20000")
        e(f"s_lshl_b32 s{S_T1}, s{S_WAVE}, 8")
        e(f"s_or_b32 s{S_T1}, s{S_T1}, s2")
        e("s_waitcnt lgkmcnt(0)")
        e(f"s_lshr_b32 s{S_T0}, s{S_OUT}, 7")
        e(f"s_mul_i32 s{S_T0}, s{S_T0}, 21              ; -43 mod 64")
        e(f"s_and_b32 s{S_T0}, s{S_T0}, 63")
        e(f"s_mulk_i32 s{S_T0}, 384")
        e(f"s_add_u32 s{S_AGN}, s{S_AGN}, s{S_T0}")
        assert W_ROLE == 0
        e(f"s_cmp_le_u32 s{S_T1}, {NVOTE_WG}              ; wave 0 of the first workgroups has a side job")
        e("s_cbranch_scc1 L_role")
        e("L_stream:")

        SUM, MAX, T = 4, 12, 20
        DEPTH = o.depth
        seq = []

        def issue(j):
            if j == 4:
                e("s_load_dwordx4 s[36:39], s[0:1], 8        ; w1, w2")
                e(f"s_load_dwordx2 s[{S_DBG}:{S_DBG + 1}], s[0:1], 32")
                e(f"s_load_dwordx2 s[{S_WS}:{S_WS + 1}], s[0:1], 40")
                e(f"s_mov_b32 s{S_MASK}, 0xffff0000")
            if j == 2 * NAGN:
                e(f"s_mul_i32 s{S_TY}, s{S_SUB}, 3")
                e(f"s_sub_u32 s{S_TY}, s{S_WAVE}, s{S_TY}        ; ty = wave % 3")
                e(f"s_mov_b32 s{S_OUT + 2}, s{S_X + 2}")
                e(f"s_mov_b32 s{S_OUT + 3}, s{S_X + 3}")
                e(f"s_mov_b32 s{S_WS + 2}, {(2 << 20) if o.stamps else WS_USED}")
                e(f"s_mov_b32 s{S_WS + 3}, s{S_X + 3}")
                e(f"s_movk_i32 s{S_DBG + 2}, 256")
                e(f"s_mov_b32 s{S_DBG + 3}, s{S_X + 3}")
                e(f"s_movk_i32 s{S_T2}, 24576")
                e(f"v_bfe_u32 v{V_G0}, v{V_L}, 13, 1")
                e(f"v_add_u32 v{V_G1}, 12288, v{V_L}")
                e(f"v_bfe_u32 v{V_G1}, v{V_G1}, 13, 1")
                e(f"v_mul_u32_u24 v{V_G0}, s{S_T2}, v{V_G0}")
                e(f"v_mul_u32_u24 v{V_G1}, s{S_T2}, v{V_G1}")
                e(f"s_bfe_i32 s{S_PM}, s2, 0x10002              ; -side")
                e(f"s_and_b32 s{S_T0}, s{S_PM}, 49152")
                e(f"s_sub_u32 s{S_BASE}, s{S_AGN}, s{S_T0}")
                h1 = mask(lambda z, s: s[1] == 1)
                e(f"s_add_u32 s{S_T0}, s{S_BASE}, s{S_T2}")
                e(f"s_add_u32 s{S_T0}, s{S_T0}, s{S_OUT}")
                e(f"s_bfe_i32 s{S_T1}, s{S_T0}, 0x10015")
                e(f"s_xor_b32 s{S_PM}, s{S_PM}, s{S_T1}")
                e(f"s_add_u32 s{S_T2}, s{S_T0}, 49152")
                e(f"s_xor_b32 s{S_T0}, s{S_T0}, s{S_T2}")
                e(f"s_bfe_i32 s{S_T0}, s{S_T0}, 0x10015")
                e(f"s_and_b32 s{S_T0}, s{S_T0}, {h1}")
                e(f"s_xor_b32 s{S_PM}, s{S_PM}, s{S_T0}")
                m1 = mask(lambda z, s: z >= NAGN and s[0] in (3, 4))
                z50 = SPANS.index((5, 0))
                z51 = SPANS.index((5, 1))
                dec = mask(lambda z, s: z >= NAGN)
                e(f"s_cmp_lt_u32 s{S_BASE}, {4 * MiB - 24576}")
                e(f"s_cselect_b32 s{S_T0}, {1 << z50}, 0")
                e(f"s_or_b32 s{S_T0}, s{S_T0}, {m1}")
                e(f"s_cmp_lt_u32 s{S_BASE}, {4 * MiB - 24576 - 49152}")
                e(f"s_cselect_b32 s{S_T1}, {1 << z51}, 0")
                e(f"s_or_b32 s{S_T0}, s{S_T0}, s{S_T1}            ; third 1")
                e(f"s_xor_b32 s{S_T1}, s{S_T0}, {dec}           ; third 2")
                per, pat = o.opp
                rep = sum(((pat >> (i % per)) & 1) << i for i in range(32))
                e(f"s_lshr_b32 s{S_P}, s2, 3")
                e(f"s_mul_i32 s{S_T2}, s{S_P}, {-(-256 // per)}")
                e(f"s_lshr_b32 s{S_T2}, s{S_T2}, 8")
                e(f"s_mul_i32 s{S_T2}, s{S_T2}, {per}")
                e(f"s_sub_u32 s{S_P}, s{S_P}, s{S_T2}             ; (b >> 3) % {per}")
                e(f"s_lshr_b32 s{S_P}, {rep}, s{S_P}")
                e(f"s_sub_u32 s{S_T2}, s{S_OUT}, s{S_X}")
                e(f"s_add_u32 s{S_T2}, s{S_T2}, 2048")
                e(f"s_bitcmp1_b32 s{S_T2}, 12")
                e(f"s_cselect_b32 s{S_P}, 0, s{S_P}")
                e(f"s_lshr_b32 s{S_T2}, s2, 3")
                e(f"s_sub_u32 s{S_RID}, s{S_T2}, {o.red0}")
                e(f"s_and_b32 s{S_PO}, s2, 7")
                e(f"s_lshl_b32 s{S_PO}, s{S_PO}, 5")
                e(f"s_add_u32 s{S_PO}, s{S_PO}, s{S_T2}")
                e(f"s_mulk_i32 s{S_PO}, 1536")
                e("s_waitcnt lgkmcnt(0)")
                self.stamp(11)
                e("s_barrier")
                e(f"s_load_dword s{S_T2}, s[{S_DBG}:{S_DBG + 1}], {DBG_RES}")
                e("s_waitcnt lgkmcnt(0)")
                e(f"s_andn2_b32 s{S_CNT}, {RES_OK}, s{S_T2}")
                e("s_cbranch_scc1 L_dpoll")
                e("L_decided:")
                for i in range(4):
                    e(f"s_bitcmp1_b32 s{S_T2}, {7 + 6 * i + 5}")
                    e(f"s_cselect_b32 s{S_V + i}, s{(S_T0, S_T1)[i >> 1]}, 0")
                e(f"s_or_b32 s{S_V}, s{S_V}, s{S_V + 2}")
                e(f"s_or_b32 s{S_V + 1}, s{S_V + 1}, s{S_V + 3}")
                e(f"s_xor_b32 s{S_V}, s{S_V}, s{S_V + 1}")
                e(f"s_and_b32 s{S_V}, s{S_V}, s{S_P}")
                e(f"s_xor_b32 s{S_V}, s{S_V}, s{S_V + 1}")
                e(f"s_xor_b32 s{S_PM}, s{S_PM}, s{S_V}")
                e(f"s_and_b32 s{S_TAG}, s{S_T2}, 15")
                self.stamp(12)
            if j == o.warm:
                e(f"s_cmp_lg_u32 s{S_WAVE}, {o.warmwave}")
                e("s_cbranch_scc1 L_nowarm")
                e("v_lshlrev_b32 v3, 7, v1")
                e("s_mov_b64 exec, 0xfff")
                e(f"buffer_load_dword v37, v3, s[{S_WS}:{S_WS + 3}], s{S_PO} offen")
                e("s_mov_b64 exec, -1")
                e("L_nowarm:")
            r = D0 + 4 * j
            if o.thr and j == min(o.thrfrom, 3):
                e(f"s_and_b32 s{S_T0}, s2, 7")
                e(f"s_lshr_b32 s{S_T0}, {o.thrmask}, s{S_T0}")
                e(f"s_and_b32 vcc_lo, s{S_T0}, 1")
                e("s_mov_b32 vcc_hi, 0")
            if o.thr and o.thrfrom <= j < o.thrto:
                e(f"s_cbranch_vccz L_thr{j}")
                e(f"s_waitcnt vmcnt({o.thr - 1})")
                e(f"L_thr{j}:")
            self.mem(j, lambda va, so: e(f"buffer_load_dwordx4 v[{r}:{r + 3}], {va}, s[{S_X}:{S_X + 3}], {so} offen{ldf}"))
            seq.append(j)
            if j & 1:
                self.trace("ld", j >> 1)

        def wait_for(j):
            e(f"s_waitcnt vmcnt({len(seq) - 1 - seq.index(j)})")

        nxt = 0
        for jj in range(16):
            while nxt < 32 and nxt < 2 * jj + DEPTH + 2:
                issue(nxt)
                nxt += 1
                if nxt == 32:
                    self.stamp(1)
            a, b = D0 + 8 * jj, D0 + 8 * jj + 4
            if jj == 15:
                e("v_and_b32 v2, 7, v1")
                e("v_lshlrev_b32 v2, 5, v2                   ; (l&7)*32")
                e("v_lshrrev_b32 v3, 4, v1")
                e("v_lshl_add_u32 v2, v3, 3, v2              ; + (l>>4)*8")
                e("v_bfe_u32 v3, v1, 3, 1")
                e("v_mul_u32_u24 v3, 768, v3")
                e(f"s_mul_i32 s{S_T0}, s{S_SUB}, 1536")
                e(f"s_lshl_b32 s{S_T1}, s{S_TY}, 8")
                e(f"s_add_u32 s{S_T0}, s{S_T0}, s{S_T1}")
                e(f"v_add3_u32 v2, v2, v3, s{S_T0}")
                e(f"s_mul_i32 s{S_T0}, s{S_WAVE}, 768")
                e(f"v_lshl_add_u32 v3, v1, 4, s{S_T0}")
                for r in (a, b):
                    wait_for((r - D0) // 4)
                    if r == b:
                        self.stamp(3)
                    for i in range(4):
                        t = T + 2 * i
                        e(f"v_lshlrev_b32 v{t}, 16, v{r + i}")
                        e(f"v_and_b32 v{t + 1}, s{S_MASK}, v{r + i}")
                    for i in range(8):
                        e(f"v_max_f32 v{MAX + i}, v{MAX + i}, v{T + i}")
                    for i in range(4):
                        t, s = T + 2 * i, SUM + 2 * i
                        e(f"v_pk_add_f32 v[{s}:{s + 1}], v[{s}:{s + 1}], v[{t}:{t + 1}]")
                continue
            wait_for(2 * jj + 1)
            if jj == 0:
                self.stamp(2)
            for i in range(4):
                t = T + 4 * i
                e(f"v_lshlrev_b32 v{t}, 16, v{a + i}")
                e(f"v_and_b32 v{t + 1}, s{S_MASK}, v{a + i}")
                e(f"v_lshlrev_b32 v{t + 2}, 16, v{b + i}")
                e(f"v_and_b32 v{t + 3}, s{S_MASK}, v{b + i}")
            for i in range(4):
                t = T + 4 * i
                s, m = SUM + 2 * i, MAX + 2 * i
                if jj == 0:
                    e(f"v_max_f32 v{m}, v{t}, v{t + 2}")
                    e(f"v_max_f32 v{m + 1}, v{t + 1}, v{t + 3}")
                    e(f"v_pk_add_f32 v[{s}:{s + 1}], v[{t}:{t + 1}], v[{t + 2}:{t + 3}]")
                else:
                    e(f"v_max3_f32 v{m}, v{m}, v{t}, v{t + 2}")
                    e(f"v_max3_f32 v{m + 1}, v{m + 1}, v{t + 1}, v{t + 3}")
                    e(f"v_pk_add_f32 v[{t}:{t + 1}], v[{t}:{t + 1}], v[{t + 2}:{t + 3}]")
            if jj:
                for i in range(4):
                    t = T + 4 * i
                    s = SUM + 2 * i
                    e(f"v_pk_add_f32 v[{s}:{s + 1}], v[{s}:{s + 1}], v[{t}:{t + 1}]")

        for base in (MAX, SUM):
            for i in range(4):
                e(f"v_permlane32_swap_b32 v{base + i}, v{base + 4 + i}")
        for i in range(4):
            e(f"v_max_f32 v{MAX + i}, v{MAX + i}, v{MAX + 4 + i}")
        for i in range(4):
            e(f"v_add_f32 v{SUM + i}, v{SUM + i}, v{SUM + 4 + i}")
        for i in range(2):
            e(f"v_permlane16_swap_b32 v{MAX + i}, v{MAX + 2 + i}")
        for i in range(2):
            e(f"v_permlane16_swap_b32 v{SUM + i}, v{SUM + 2 + i}")
        for i in range(2):
            e(f"v_add_f32 v{SUM + i}, v{SUM + i}, v{SUM + 2 + i}")
        for i in range(2):
            e(f"v_max_f32 v{MAX + i}, v{MAX + i}, v{MAX + 2 + i}")
        e(f"s_cmp_ge_u32 s{S_WAVE}, 2")
        for i in range(2):
            e(f"v_add_f32_dpp v{SUM + i}, v{SUM + i}, v{SUM + i} row_ror:8 row_mask:0xf bank_mask:0x3")
        for i in range(2):
            e(f"v_max_f32_dpp v{SUM + i}, v{MAX + i}, v{MAX + i} row_ror:8 row_mask:0xf bank_mask:0xc")
        e(f"ds_write_b64 v2, v[{SUM}:{SUM + 1}] offset:{L_RED}")
        e("s_waitcnt lgkmcnt(0)")
        e("s_barrier")
        self.stamp(4)
        e("s_cbranch_scc1 L_nopub")

        e("s_mov_b32 exec_hi, 0xffff")
        for k in range(4):
            e(f"ds_read_b128 v[{4 + 4 * k}:{7 + 4 * k}], v3 offset:{L_RED + 1536 * k}")
        e(f"s_cmp_eq_u32 s{S_WAVE}, 0")
        e(f"s_cselect_b64 s[{S_W}:{S_W + 1}], s[36:37], s[38:39]")
        e("s_cbranch_scc0 L_pubmax")
        e("s_waitcnt lgkmcnt(2)")
        e("v_pk_add_f32 v[4:5], v[4:5], v[8:9]")
        e("v_pk_add_f32 v[6:7], v[6:7], v[10:11]")
        e("s_waitcnt lgkmcnt(0)")
        e("v_pk_add_f32 v[12:13], v[12:13], v[16:17]")
        e("v_pk_add_f32 v[14:15], v[14:15], v[18:19]")
        e("v_pk_add_f32 v[4:5], v[4:5], v[12:13]")
        e("v_pk_add_f32 v[6:7], v[6:7], v[14:15]")
        e("s_branch L_pub")
        e("L_pubmax:")
        e("s_waitcnt lgkmcnt(1)")
        for i in range(4):
            e(f"v_max3_f32 v{4 + i}, v{4 + i}, v{8 + i}, v{12 + i}")
        e("s_waitcnt lgkmcnt(0)")
        for i in range(4):
            e(f"v_max_f32 v{4 + i}, v{4 + i}, v{16 + i}")
        e("L_pub:")
        for i in range(4):
            e(f"v_and_or_b32 v{4 + i}, v{4 + i}, -16, s{S_TAG}")
        e(f"buffer_store_dwordx4 v[4:7], v3, s[{S_WS}:{S_WS + 3}], s{S_PO} offen{' sc1' if o.psc1 else ''}")
        e("s_mov_b64 exec, -1")
        e(f"s_movk_i32 s{S_W + 2}, 18432")
        e(f"s_mov_b32 s{S_W + 3}, 0x20000")
        e(f"s_mul_i32 s{S_T0}, s{S_WAVE}, 18432")
        e(f"s_addk_i32 s{S_T0}, {L_W1}")
        e(f"s_mov_b32 s{S_T1}, 0")
        e("v_lshlrev_b32 v2, 4, v1")
        e("L_wloop:")
        e(f"s_add_u32 m0, s{S_T0}, s{S_T1}")
        e(f"s_cmp_ge_u32 s{S_RID}, {NRED}")
        for k in range(3):
            e(f"buffer_load_dwordx4 v2, s[{S_W}:{S_W + 3}], s{S_T1} offen offset:{k * 1024} lds")
        e("s_cbranch_scc1 L_wnext")
        e(f"s_waitcnt vmcnt({o.wpace})")
        e("L_wnext:")
        e(f"s_addk_i32 s{S_T1}, 3072")
        e(f"s_cmp_lt_u32 s{S_T1}, 18432")
        e("s_cbranch_scc1 L_wloop")
        e("L_nopub:")

        B2 = 28
        V_H0, V_H1, V_SW, V_SR, V_Q = 24, 25, 26, 27, 37
        SP0 = 136
        A1 = 144
        B1 = [4, 8, 12, 16, 136, 140]
        e("v_lshrrev_b32 v20, 4, v1                  ; q")
        e(f"s_cmp_eq_u32 s{S_WAVE}, 3")
        e(f"s_cselect_b32 s{S_HOOK}, {SPIN - NFB}, -1")
        e(f"s_cmp_lt_u32 s{S_WAVE}, 3")
        e("s_cbranch_scc1 L_spill")
        e(f"s_cmp_ge_u32 s{S_RID}, {NRED}")
        e("s_cbranch_scc1 L_barw")
        e(f"s_cmp_lg_u32 s{S_WAVE}, 3")
        e("s_cbranch_scc1 L_barw")

        def clean(lbl, d, a):
            e(f"s_cmp_lg_u32 s{S_WAVE}, 3")
            e(f"s_cbranch_scc1 {lbl}")
            for i in range(4):
                e(f"v_mov_b32 v{d + i}, s{S_TAG}")
            e(f"v_lshlrev_b32 v{a}, 4, v1")
            e("s_mov_b32 exec_hi, 0xffff")
            e(f"buffer_store_dwordx4 v[{d}:{d + 3}], v{a}, s[{S_WS}:{S_WS + 3}], s{S_PO} offen sc1")
            e(f"buffer_store_dwordx4 v[{d}:{d + 3}], v{a}, s[{S_WS}:{S_WS + 3}], s{S_PO} offen offset:768 sc1")
            e("s_mov_b64 exec, -1")

        def hook(lbl):
            e(f"s_cmp_lg_u32 s{S_CNT}, s{S_HOOK}")
            e(f"s_cbranch_scc1 {lbl}")
            e(f"s_call_b64 s[{S_RET}:{S_RET + 1}], L_flush")
            e(f"{lbl}:")

        e("v_lshrrev_b32 v2, 3, v1")
        e("v_mul_u32_u24 v2, 1536, v2")
        e("v_and_b32 v3, 7, v1")
        e(f"v_lshl_add_u32 v{V_Q}, v3, 4, v2")
        e(f"s_and_b32 s{S_T0}, s2, 7")
        e(f"s_mul_i32 s{S_V}, s{S_T0}, {32 * 1536}")
        e(f"s_lshl_b32 s{S_T1}, s{S_RID}, 7")
        e(f"s_add_u32 s{S_V}, s{S_V}, s{S_T1}")
        for k in range(1, 4):
            e(f"s_add_u32 s{S_V + k}, s{S_V}, {k * 8 * 1536}")
        e(f"s_mulk_i32 s{S_T0}, 3072")
        e(f"s_lshl1_add_u32 s{S_T1}, s{S_T1}, s{S_T0}")
        e(f"s_add_u32 s{S_T1}, s{S_T1}, {WS_Q}")
        e("v_lshlrev_b32 v3, 2, v1")
        e("v_lshl_add_u32 v3, v20, 6, v3             ; (l>>4)*128 + (l&15)*4")
        e(f"s_mov_b32 s{S_CNT}, {SPIN}")
        e("L_rpoll:")
        hook("L_rnohook")
        for k in range(4):
            e(f"buffer_load_dwordx4 v[{4 + 4 * k}:{7 + 4 * k}], v{V_Q}, s[{S_WS}:{S_WS + 3}], s{S_V + k} offen sc1")
        e(f"s_sub_u32 s{S_CNT}, s{S_CNT}, 1")
        e("s_cbranch_scc1 L_rgot")
        for k in range(4):
            e(f"s_waitcnt vmcnt({3 - k})")
            for i in range(4):
                r, acc = 4 + 4 * k + i, 21 + (i & 1)
                if k == 0 and i < 2:
                    e(f"v_xor_b32 v{acc}, s{S_TAG}, v{r}")
                else:
                    e(f"v_bitop3_b32 v{acc}, v{acc}, v{r}, s{S_TAG} bitop3:0xf6   ; a | (b ^ c)")
        e("v_bitop3_b32 v21, v21, v22, 15 bitop3:0xa8          ; (a | b) & c")
        e("v_cmpx_ne_u32 vcc, 0, v21                 ; lanes still waiting poll again")
        e("s_cbranch_execnz L_rpoll")
        e("L_rgot:")
        e("s_mov_b64 exec, -1")
        e("s_waitcnt vmcnt(0)")
        self.stamp(1, "r")
        e(f"s_cmp_ge_u32 s{S_RID}, 6")
        e("s_cbranch_scc1 L_rmax")
        for kind in (0, 1):
            op = "v_add_f32" if kind == 0 else "v_max_f32"
            if kind == 1:
                e("L_rmax:")
                for i in range(4):
                    e(f"v_max3_f32 v{4 + i}, v{4 + i}, v{8 + i}, v{12 + i}")
                for i in (0, 2, 1, 3):
                    e(f"v_max_f32 v{4 + i}, v{4 + i}, v{16 + i}")
            else:
                e("v_pk_add_f32 v[4:5], v[4:5], v[8:9]")
                e("v_pk_add_f32 v[6:7], v[6:7], v[10:11]")
                e("v_pk_add_f32 v[12:13], v[12:13], v[16:17]")
                e("v_pk_add_f32 v[14:15], v[14:15], v[18:19]")
                e("v_pk_add_f32 v[4:5], v[4:5], v[12:13]")
                e("v_pk_add_f32 v[6:7], v[6:7], v[14:15]")
                e("s_nop 0")
            e(f"{op}_dpp v4, v4, v4 row_ror:8 row_mask:0xf bank_mask:0x3")
            if kind == 0:
                e(f"{op}_dpp v5, v5, v5 row_ror:8 row_mask:0xf bank_mask:0x3")
                e(f"{op}_dpp v4, v6, v6 row_ror:8 row_mask:0xf bank_mask:0xc")
            else:
                e(f"{op}_dpp v4, v6, v6 row_ror:8 row_mask:0xf bank_mask:0xc")
                e(f"{op}_dpp v5, v5, v5 row_ror:8 row_mask:0xf bank_mask:0x3")
            e(f"{op}_dpp v5, v7, v7 row_ror:8 row_mask:0xf bank_mask:0xc")
            e("s_nop 1")
            e("v_permlane16_swap_b32 v4, v5")
            e(f"{op} v4, v4, v5")
            e("v_mov_b32 v5, v4")
            e("s_nop 1")
            e("v_permlane32_swap_b32 v4, v5")
            e(f"{op} v4, v4, v5                        ; lane 16a+8b+c: element 2b+a of piece c")
            if kind == 0:
                e("s_branch L_rpub")
        e("L_rpub:")
        e("s_mov_b32 exec_hi, 0")
        e(f"v_and_or_b32 v4, v4, -16, s{S_TAG}")
        e(f"buffer_store_dword v4, v3, s[{S_WS}:{S_WS + 3}], s{S_T1} offen sc1")
        self.stamp(9)
        e("s_mov_b64 exec, -1")
        if o.clean == "r":
            for i in range(4):
                e(f"v_mov_b32 v{8 + i}, s{S_TAG}")
            for k in range(4):
                e(f"buffer_store_dwordx4 v[8:11], v{V_Q}, s[{S_WS}:{S_WS + 3}], s{S_V + k} offen sc1")
        e("s_barrier")
        e("s_branch L_afterw")

        e("L_spill:")
        e(f"s_lshl_b32 s{S_T0}, s{S_WAVE}, 13")
        e(f"v_lshl_add_u32 v{V_AT}, v1, 4, s{S_T0}")
        for k in range(8):
            e(f"ds_write_b128 v{V_AT}, v[{SP0 + 4 * k}:{SP0 + 4 * k + 3}] offset:{L_SPILL + 1024 * k}")
        e("L_barw:")
        e("s_waitcnt vmcnt(0) lgkmcnt(0)")
        e("s_barrier")
        e("L_afterw:")
        e("v_bfe_u32 v3, v1, 2, 2")
        e("v_lshl_add_u32 v21, v20, 3, v3            ; row")
        e("v_and_b32 v22, 15, v21                    ; row of the half step (q&1)")
        e("v_and_b32 v3, 3, v1")
        e(f"s_lshl_b32 s{S_T2}, s{S_WAVE}, 5")
        e(f"v_lshl_add_u32 v23, v3, 3, s{S_T2}")
        e("v_mov_b32 v3, 384")
        e("v_mad_u32_u24 v2, v21, v3, v23")
        e("v_mad_u32_u24 v22, v22, v3, v23")
        e(f"ds_read_b64_tr_b16 v[{B2}:{B2 + 1}], v2 offset:{L_W2}")
        e(f"ds_read_b64_tr_b16 v[{B2 + 2}:{B2 + 3}], v2 offset:{L_W2 + 4 * 384}")
        e(f"ds_read_b64_tr_b16 v[{B2 + 4}:{B2 + 5}], v22 offset:{L_W2 + 32 * 384}")
        e(f"ds_read_b64_tr_b16 v[{B2 + 6}:{B2 + 7}], v22 offset:{L_W2 + 36 * 384}")
        e("v_and_b32 v2, 1, v1")
        e("v_mul_u32_u24 v22, 96, v2")
        e(f"v_lshl_add_u32 v{V_H0}, v20, 4, v22")
        e("v_and_b32 v3, 1, v20")
        e(f"v_lshl_add_u32 v{V_H1}, v3, 4, v22")
        e(f"s_lshl_b32 s{S_T0}, s{S_WAVE}, 6")
        e(f"v_lshl_add_u32 v{V_SW}, v1, 2, s{S_T0}")
        e("v_and_b32 v3, 7, v1")
        e(f"s_lshl_b32 s{S_T0}, s{S_TY}, 8")
        e(f"v_lshl_add_u32 v{V_SR}, v3, 5, s{S_T0}")
        e("s_waitcnt lgkmcnt(0)")
        e("s_mov_b32 exec_lo, 0")
        for i in range(4):
            e(f"v_mov_b32 v{B2 + 4 + i}, 0")
        e("s_mov_b64 exec, -1")
        e(f"s_cmp_ge_u32 s{S_WAVE}, 3")
        e("s_cbranch_scc1 L_noa1")
        e("v_mov_b32 v3, 96")
        e("v_mad_u32_u24 v2, v21, v3, v23")
        for s in range(6):
            for h in range(2):
                r = A1 + 4 * s + 2 * h
                e(f"ds_read_b64_tr_b16 v[{r}:{r + 1}], v2 offset:{L_W1 + s * 3072 + h * 384}")
        e("L_noa1:")
        e(f"v_lshl_add_u32 v3, v20, 3, v22")
        e(f"v_add_u32 v3, s{S_T2}, v3")
        e("v_lshlrev_b32 v2, 2, v22")
        e("v_lshl_add_u32 v2, v20, 4, v2")
        e("v_and_b32 v8, 1, v1")
        e("v_lshlrev_b32 v8, 4, v8")
        e("v_lshl_add_u32 v8, v20, 2, v8")
        e("v_and_b32 v9, 2, v1")
        e("v_bfe_u32 v10, v1, 2, 1")
        e("v_add3_u32 v8, v8, v9, v10")
        e(f"v_add_lshl_u32 v23, v8, s{S_T2}, 1")
        e("v_lshrrev_b32 v8, 3, v1")
        e("v_mul_u32_u24 v8, 3072, v8")
        e("v_lshl_add_u32 v8, v10, 7, v8")
        e("v_and_b32 v9, 3, v1")
        e(f"v_lshl_add_u32 v{V_Q}, v9, 4, v8")
        e(f"s_lshl_b32 s{S_T1}, s{S_WAVE}, 8")
        e(f"s_add_u32 s{S_T1}, s{S_T1}, {WS_Q}")
        e(f"s_mov_b32 s{S_CNT}, {SPIN}")
        e(f"s_cmp_ge_u32 s{S_WAVE}, 6")
        e("s_cbranch_scc1 L_qpoll1")

        for kind in (0, 1):
            op = "v_add_f32" if kind == 0 else "v_max_f32"
            e(f"L_qpoll{kind}:")
            if kind == 0:
                hook("L_qnohook")
            e(f"buffer_load_dwordx4 v[4:7], v{V_Q}, s[{S_WS}:{S_WS + 3}], s{S_T1} offen sc1")
            e(f"s_sub_u32 s{S_CNT}, s{S_CNT}, 1")
            e(f"s_cbranch_scc1 L_qgot{kind}")
            if o.qsleep:
                e(f"s_sleep {o.qsleep}")
            e("s_waitcnt vmcnt(0)")
            e(f"v_xor_b32 v21, s{S_TAG}, v4")
            e(f"v_xor_b32 v22, s{S_TAG}, v5")
            e(f"v_bitop3_b32 v21, v21, v6, s{S_TAG} bitop3:0xf6")
            e(f"v_bitop3_b32 v22, v22, v7, s{S_TAG} bitop3:0xf6")
            e("v_bitop3_b32 v21, v21, v22, 15 bitop3:0xa8")
            e("v_cmpx_ne_u32 vcc, 0, v21")
            e(f"s_cbranch_execnz L_qpoll{kind}")
            e(f"L_qgot{kind}:")
            e("s_mov_b64 exec, -1")
            e("s_waitcnt vmcnt(0)")
            self.stamp(5)
            e("s_nop 0")
            e("v_permlane32_swap_b32 v4, v6")
            e("v_permlane32_swap_b32 v5, v7")
            e(f"{op} v4, v4, v6")
            e(f"{op} v5, v5, v7")
            e("s_nop 1")
            e("v_permlane16_swap_b32 v4, v5")
            e(f"{op} v4, v4, v5")
            e(f"s_cmp_ge_u32 s{S_WAVE}, 3")
            e("s_nop 0")
            e(f"{op}_dpp v4, v4, v4 row_ror:8 row_mask:0xf bank_mask:0xf")
            if kind == 0:
                e("v_mul_f32 v4, 0x36800000, v4              ; 1/262144")
            e("v_cvt_pk_bf16_f32 v4, v4, v4")
            e(f"ds_write_b16 v23, v4 offset:{L_F}")
            e("s_waitcnt lgkmcnt(0)")
            e("s_barrier")
            if kind == 0:
                e("s_cbranch_scc0 L_mlp1")
                if o.clean == "f":
                    clean("L_join", 16, 12)
            e("s_branch L_join")

        e("L_mlp1:")
        for s in range(6):
            e(f"ds_read_b128 v[{B1[s]}:{B1[s] + 3}], v2 offset:{L_F + 64 * s}")
        for s in range(6):
            c = "0" if s == 0 else "v[20:23]"
            b = B1[s]
            e(f"s_waitcnt lgkmcnt({5 - s})")
            e(f"v_mfma_f32_16x16x32_bf16 v[20:23], v[{A1 + 4 * s}:{A1 + 4 * s + 3}], v[{b}:{b + 3}], {c}")
        e("s_nop 3")
        e("s_mov_b32 exec_lo, 0x00030003")
        e("s_mov_b32 exec_hi, 0x00030003")
        e("s_nop 1")
        for i in range(4):
            e(f"v_maximum3_f32 v{20 + i}, v{20 + i}, 0, 0")
        e("v_cvt_pk_bf16_f32 v20, v20, v21")
        e("v_cvt_pk_bf16_f32 v21, v22, v23")
        e(f"ds_write_b64 v3, v[20:21] offset:{L_H}")
        e("s_mov_b64 exec, -1")
        e("s_waitcnt lgkmcnt(0)")

        e("L_join:")
        e("s_barrier")
        self.stamp(6)
        e(f"ds_read_b128 v[4:7], v{V_H0} offset:{L_H}")
        e(f"ds_read_b128 v[8:11], v{V_H1} offset:{L_H + 64}")
        e("s_waitcnt lgkmcnt(1)")
        e(f"v_mfma_f32_16x16x32_bf16 v[12:15], v[4:7], v[{B2}:{B2 + 3}], 0")
        e("s_waitcnt lgkmcnt(0)")
        e(f"v_mfma_f32_16x16x32_bf16 v[12:15], v[8:11], v[{B2 + 4}:{B2 + 7}], v[12:15]")
        e("s_mov_b64 exec, 0xffff")
        e("s_nop 6")
        e("v_cvt_pk_bf16_f32 v12, v12, v13")
        e("v_lshlrev_b32 v13, 16, v12")
        e(f"v_and_b32 v12, s{S_MASK}, v12")
        e("v_add_f32 v12, v12, v13")
        e("v_cvt_pk_bf16_f32 v12, v12, v12")
        e("v_lshlrev_b32 v12, 16, v12")
        e("v_mul_f32 v12, 0xbfb8aa3b, v12            ; -log2(e)")
        e("v_exp_f32 v12, v12")
        e("s_nop 0")
        e("v_add_f32 v12, 1.0, v12")
        e("v_rcp_f32 v12, v12")
        e("s_nop 0")
        e("v_cvt_pk_bf16_f32 v12, v12, v12")
        e("v_lshlrev_b32 v12, 16, v12")
        e(f"ds_write_b32 v{V_SW}, v12 offset:{L_S}")
        e("s_mov_b64 exec, -1")
        e("s_waitcnt lgkmcnt(0)")
        e("s_barrier")
        e(f"ds_read_b128 v[4:7], v{V_SR} offset:{L_S}")
        e(f"ds_read_b128 v[8:11], v{V_SR} offset:{L_S + 16}")

        if o.stlim:
            e(f"s_cmp_lt_u32 s2, {o.stlim}")
            e(f"s_cselect_b32 s{S_OUT + 2}, s{S_OUT + 2}, 0")
        zorder = [int(v) for v in o.zorder.split(",")]
        assert sorted(zorder) == list(range(16))
        restored = False

        def wbl2():
            wv, lim, pos = [int(v) for v in o.wb.split(",")]
            e(f"s_cmp_lt_u32 s{S_WAVE}, {wv}")
            e("s_cbranch_scc1 L_nowb")
            e(f"s_cmp_ge_u32 s2, {lim}")
            e("s_cbranch_scc1 L_nowb")
            if pos == 33:
                e("s_waitcnt vmcnt(0)")
            e("buffer_wbl2 sc1")
            e("L_nowb:")
        for n, j in enumerate([2 * z + u for z in zorder for u in (0, 1)]):
            a = D0 + 4 * j
            t0 = 12 + 8 * (n & 1)
            if a >= SP0 and not restored:
                assert n > 1
                e("s_waitcnt lgkmcnt(0)")
                restored = True
            for i in range(4):
                t = t0 + 2 * i
                e(f"v_lshlrev_b32 v{t}, 16, v{a + i}")
                e(f"v_and_b32 v{t + 1}, s{S_MASK}, v{a + i}")
            if n == 0:
                e("s_waitcnt lgkmcnt(0)")
                self.stamp(7)
            for i in range(4):
                t = t0 + 2 * i
                e(f"v_pk_mul_f32 v[{t}:{t + 1}], v[{t}:{t + 1}], v[{4 + 2 * i}:{5 + 2 * i}]")
            for i in range(4):
                t = t0 + 2 * i
                e(f"v_cvt_pk_bf16_f32 v{a + i}, v{t}, v{t + 1}")
            self.mem(j, lambda va, so: e(f"buffer_store_dwordx4 v[{a}:{a + 3}], {va}, s[{S_OUT}:{S_OUT + 3}], {so} offen{'' if n >= 32 - o.nplain else stf}"))
            if o.wb and int(o.wb.split(",")[2]) == n:
                wbl2()
            if n & 1:
                self.trace("st", n >> 1)
            if n == 1:
                e(f"s_cmp_ge_u32 s{S_WAVE}, 3")
                e("s_cbranch_scc1 L_norestore")
                for k in range(8):
                    e(f"ds_read_b128 v[{SP0 + 4 * k}:{SP0 + 4 * k + 3}], v{V_AT} offset:{L_SPILL + 1024 * k}")
                e("L_norestore:")
                if o.clean == "st":
                    clean("L_noclean", 28, 32)
                    e("L_noclean:")
        if o.wb and int(o.wb.split(",")[2]) >= 32:
            wbl2()
        if o.stamps:
            self.stamp(8)
            e("s_waitcnt vmcnt(0)")
            self.stamp(10)
            e("s_getreg_b32 s94, hwreg(HW_REG_XCC_ID)")
            e("s_getreg_b32 s95, hwreg(HW_REG_HW_ID)")
            e("s_waitcnt lgkmcnt(0)")
            e("v_mov_b32 v2, 0")
            for i in range(11 if o.trace else 14):
                e(f"v_writelane_b32 v2, s{S_STAMP + 2 * i}, {i}")
            e("v_writelane_b32 v2, s94, 14")
            e("v_writelane_b32 v2, s95, 15")
            e(f"s_mul_i32 s{S_T0}, s2, 12")
            e(f"s_add_u32 s{S_T0}, s{S_T0}, s{S_WAVE}")
            e(f"s_lshl_b32 s{S_T0}, s{S_T0}, 6")
            e(f"s_add_u32 s{S_T0}, s{S_T0}, {WS_STAMP}")
            e("v_mbcnt_lo_u32_b32 v3, -1, 0")
            e("v_lshlrev_b32 v3, 2, v3")
            e("s_mov_b64 exec, 0xffff")
            e(f"buffer_store_dword v2, v3, s[{S_WS}:{S_WS + 3}], s{S_T0} offen")
            if o.trace:
                e("s_mov_b32 s91, s92")
                for i in range(16):
                    e(f"v_writelane_b32 v2, s{76 + i}, {i}")
                e(f"s_add_u32 s{S_T0}, s{S_T0}, {1 << 19}")
                e(f"buffer_store_dword v2, v3, s[{S_WS}:{S_WS + 3}], s{S_T0} offen")
        if o.dbgptr:
            e("s_cmp_lg_u32 s2, 0")
            e("s_cbranch_scc1 L_nodp")
            e("s_mov_b64 exec, -1")
            e("v_mov_b32 v2, 0")
            for i, r in enumerate((4, 5, 8, 9, 12, 13, 16, 17, 0, 1)):
                e(f"v_writelane_b32 v2, s{r}, {i}")
            e("v_mbcnt_lo_u32_b32 v3, -1, 0")
            e("v_lshlrev_b32 v3, 2, v3")
            e("s_mov_b64 exec, 0x3ff")
            e(f"buffer_store_dword v2, v3, s[{S_DBG}:{S_DBG + 3}], 0 offen offset:8")
            e("L_nodp:")
        if o.probe:
            idx, K = [int(v) for v in o.probe.split(",")]
            if idx == -2:
                e("s_getreg_b32 s94, hwreg(HW_REG_XCC_ID)")
                e("s_xor_b32 s94, s94, s2")
                e("s_and_b32 s94, s94, 7")
                e("s_cbranch_scc0 L_end")
            elif idx == -3:
                e("s_cmp_lg_u32 s2, 0")
                e("s_cbranch_scc1 L_end")
            else:
                e("s_cmp_lg_u32 s2, 0")
                e("s_cbranch_scc1 L_end")
            e(f"s_cmp_lg_u32 s{S_WAVE}, 0")
            e("s_cbranch_scc1 L_end")
            if idx <= -10:
                e(f"s_bfe_u32 s94, s{-idx - 10}, {(7 << 16)} + {K}")
                e("s_mul_i32 s96, s94, 200")
                e("s_add_u32 s96, s96, 5000")
            elif idx == -3:
                e("s_getreg_b32 s94, hwreg(HW_REG_XCC_ID)")
                e("s_and_b32 s94, s94, 7")
                e(f"s_mul_i32 s96, s94, {K}")
                e("s_add_u32 s96, s96, 5000")
            elif idx < 0:
                e(f"s_mov_b32 s96, {K}")
            else:
                e(f"s_sub_u32 s96, s{S_STAMP + 2 * idx}, s{S_STAMP}")
                e(f"s_mul_i32 s96, s96, {K}")
            e("s_min_u32 s96, s96, 200000")
            e("L_probe:")
            e("s_memrealtime s[98:99]")
            e("s_waitcnt lgkmcnt(0)")
            e(f"s_sub_u32 s98, s98, s{S_STAMP}")
            e("s_cmp_lt_u32 s98, s96")
            e("s_cbranch_scc1 L_probe")
        e("L_end:")
        e("s_endpgm")

        e("L_role:")
        e("s_load_dwordx4 s[44:47], s[0:1], 32")
        e(f"s_cmp_eq_u32 s2, {NVOTE_WG}")
        e("s_cbranch_scc1 L_tag")
        e(f"s_sub_u32 s{S_T1}, s{S_OUT}, s{S_X}")
        e(f"s_add_u32 s{S_T1}, s{S_T1}, 2048")
        e(f"s_bitcmp1_b32 s{S_T1}, 12")
        e(f"s_cselect_b32 s{S_V}, {o.quorum}, {o.quorum4}")
        e(f"s_cselect_b32 s{S_V + 1}, 8, 0")
        e(f"s_or_b32 s{S_V + 1}, s{S_V + 1}, s2")
        e(f"s_bitcmp1_b32 s{S_V + 1}, 3")
        e(f"s_cselect_b64 s[{S_W}:{S_W + 1}], s[8:9], s[4:5]")
        e(f"s_bfe_u32 s{S_T1}, s2, 0x10004")
        e(f"s_lshl3_add_u32 s{S_T1}, s{S_T1}, 8")
        e(f"s_and_b32 s{S_T2}, s2, 7")
        e(f"s_add_u32 s{S_T1}, s{S_T1}, s{S_T2}")
        e(f"s_lshl_b32 s{S_T1}, s{S_T1}, 22")
        e(f"s_add_u32 s{S_T0}, s{S_T0}, s{S_T1}")
        e(f"s_and_b32 s{S_T1}, s2, 15")
        e(f"s_mulk_i32 s{S_T1}, {16384 + 512}")
        e(f"s_add_u32 s{S_T0}, s{S_T0}, s{S_T1}")
        e(f"s_add_u32 s{S_T1}, s{S_T0}, 8192")
        self.stamp(1, True)
        e(f"s_load_dword s42, s[{S_W}:{S_W + 1}], s{S_T0} glc")
        e(f"s_load_dword s43, s[{S_W}:{S_W + 1}], s{S_T1} glc")
        e(f"s_mov_b32 s{S_CNT}, {-(NRACE // 2)}")
        for k in range(NRACE):
            e("s_waitcnt lgkmcnt(0)")
            if k < 2:
                self.stamp(2 + k, True)
                if o.vdiag:
                    e("s_waitcnt lgkmcnt(0)")
            first, second = (S_T0, S_T1) if k % 2 == 0 else (S_T1, S_T0)
            e(f"s_load_dword s42, s[{S_W}:{S_W + 1}], s{first} glc")
            e(f"s_load_dword s43, s[{S_W}:{S_W + 1}], s{second} glc")
            e("s_waitcnt lgkmcnt(1)")
            e("s_nop 7")
            e(f"s_getreg_b32 s{S_T2}, hwreg(HW_REG_IB_STS, 8, 4)   ; 1: the second answer is still out")
            if k % 2 == 0:
                e(f"s_xor_b32 s{S_T2}, s{S_T2}, 1")
            e(f"s_add_u32 s{S_CNT}, s{S_CNT}, s{S_T2}")
        assert NRACE % 2 == 0 and max(o.quorum, o.quorum4) * NRACE // 2 < 32 and max(o.quorum, o.quorum4) <= NVOTE_WG
        e(f"s_sub_u32 s{S_T2}, 0, s{S_CNT}")
        e(f"s_add_u32 s{S_T0}, s{S_T0}, s{S_OUT}")
        e(f"s_lshr_b32 s{S_T0}, s{S_T0}, 19")
        e(f"s_xor_b32 s{S_T0}, s{S_T0}, s2")
        e(f"s_bitcmp1_b32 s{S_T0}, 2")
        e(f"s_cselect_b32 s{S_CNT}, s{S_T2}, s{S_CNT}")
        e(f"s_bfe_u32 s{S_T0}, s{S_V + 1}, 0x20003")
        e(f"s_mul_i32 s{S_T0}, s{S_T0}, 6")
        e(f"s_add_u32 s{S_T0}, s{S_T0}, 7")
        e(f"s_lshl_b32 s{S_CNT}, s{S_CNT}, s{S_T0}")
        e(f"s_or_b32 s{S_CNT}, s{S_CNT}, 1")
        e(f"s_mov_b32 s{S_T1}, s{S_CNT}")
        self.stamp(6, True)
        e(f"s_atomic_add s{S_T1}, s[44:45], {DBG_TAL} glc")
        e(f"s_add_u32 s{S_CNT}, s{S_CNT}, {sum(31 << (7 + 6 * t) for t in range(4))}")
        e("s_waitcnt lgkmcnt(0)")
        e(f"s_add_u32 s{S_T1}, s{S_T1}, s{S_CNT}")
        self.stamp(13)
        e(f"s_and_b32 s{S_T0}, s{S_T1}, 0x7f")
        e(f"s_cmp_lg_u32 s{S_T0}, s{S_V}")
        e("s_cbranch_scc1 L_stream")
        e(f"s_and_b32 s{S_T1}, s{S_T1}, {sum(32 << (7 + 6 * t) for t in range(4))}")
        e(f"s_bitset1_b32 s{S_T1}, 7")
        e("L_publish:")
        e(f"s_atomic_add s{S_T1}, s[44:45], {DBG_RES}")
        e("s_waitcnt lgkmcnt(0)")
        e("s_branch L_stream")

        e("L_tag:")
        e(f"s_mov_b32 s{S_T1}, 1")
        e("s_waitcnt lgkmcnt(0)")
        e(f"s_atomic_add s{S_T1}, s[46:47], {WS_E} glc")
        e("s_waitcnt lgkmcnt(0)")
        e(f"s_add_u32 s{S_T1}, s{S_T1}, 1")
        e(f"s_and_b32 s{S_T1}, s{S_T1}, 15")
        e(f"s_bitset1_b32 s{S_T1}, 4")
        self.stamp(13)
        e("s_branch L_publish")

        e("L_flush:")
        e(f"s_mov_b32 s{S_HOOK}, {SPIN}")
        e("s_mov_b32 exec_lo, -1")
        e("s_mov_b32 exec_hi, 0xffff")
        e("v_lshlrev_b32 v17, 4, v1")
        e("L_floop:")
        e(f"buffer_load_dwordx4 v[8:11], v17, s[{S_WS}:{S_WS + 3}], s{S_PO} offen sc1")
        e(f"buffer_load_dwordx4 v[12:15], v17, s[{S_WS}:{S_WS + 3}], s{S_PO} offen offset:768 sc1")
        e(f"s_sub_u32 s{S_HOOK}, s{S_HOOK}, 1")
        e("s_waitcnt vmcnt(0)")
        e(f"v_xor_b32 v16, s{S_TAG}, v8")
        for r in range(9, 16):
            e(f"v_bitop3_b32 v16, v16, v{r}, s{S_TAG} bitop3:0xf6")
        e("v_and_b32 v16, 15, v16")
        e("v_cmp_ne_u32 vcc, 0, v16")
        e("s_cbranch_scc1 L_fdone")
        e("s_cbranch_vccnz L_floop")
        e("L_fdone:")
        e(f"buffer_store_dwordx4 v[8:11], v17, s[{S_WS}:{S_WS + 3}], s{S_PO} offen sc1")
        e(f"buffer_store_dwordx4 v[12:15], v17, s[{S_WS}:{S_WS + 3}], s{S_PO} offen offset:768 sc1")
        e("s_waitcnt vmcnt(0)")
        e("s_mov_b64 exec, -1")
        e(f"s_mov_b32 s{S_HOOK}, -1")
        e(f"s_setpc_b64 s[{S_RET}:{S_RET + 1}]")

        e("L_dpoll:")
        e(f"s_mov_b32 s{S_CNT}, {SPIN}")
        e(f"v_mov_b32 v{V_AT}, 0")
        e("s_mov_b64 exec, 1")
        e("L_dloop:")
        e(f"buffer_load_dword v{V_AT}, off, s[{S_DBG}:{S_DBG + 3}], 0 offset:{DBG_RES} sc1")
        e(f"s_sleep {o.dsleep}")
        e("s_waitcnt vmcnt(24)")
        e(f"v_readfirstlane_b32 s{S_T2}, v{V_AT}          ; whatever poll has landed last")
        e(f"s_sub_u32 s{S_CNT}, s{S_CNT}, 1")
        e("s_cbranch_scc1 L_dgot")
        e(f"s_andn2_b32 s{S_OFF}, {RES_OK}, s{S_T2}")
        e("s_cbranch_scc1 L_dloop")
        e("L_dgot:")
        e("s_mov_b64 exec, -1")
        e("s_branch L_decided")

    def text(self):
        out = HEADER
        out += f"; @launch grid=({NWG},1,1) block=(768,1,1) lds={L_TOTAL}\n"
        out += '.amdgcn_target "amdgcn-amd-amdhsa--gfx950"\n.text\n'
        out += f".globl {KNAME}\n.p2align 8\n.type {KNAME},@function\n{KNAME}:\n"
        out += "\n".join(self.lines) + "\n"
        out += f""".section .rodata,"a"
.p2align 6
.amdhsa_kernel {KNAME}
  .amdhsa_next_free_vgpr 168
  .amdhsa_next_free_sgpr {100 if self.o.stamps else 56}
  .amdhsa_accum_offset 168
  .amdhsa_group_segment_fixed_size 0
  .amdhsa_kernarg_size 48
  .amdhsa_user_sgpr_count 2
  .amdhsa_user_sgpr_kernarg_segment_ptr 1
  .amdhsa_system_sgpr_workgroup_id_x 1
  .amdhsa_float_denorm_mode_32 3
.end_amdhsa_kernel
"""
        return out


def main():
    p = argparse.ArgumentParser()
    p.add_argument("-o", default="standalone__channel_attn_cbam__vision.s")
    p.add_argument("--ldflags", default="nt")
    p.add_argument("--stflags", default="sc1")
    p.add_argument("--p1flags", default="sc1")
    p.add_argument("--stamps", action="store_true")
    p.add_argument("--probe", default="")
    p.add_argument("--depth", type=int, default=12)
    p.add_argument("--nrace", type=int, default=2)
    p.add_argument("--dsleep", type=int, default=8)
    p.add_argument("--trace", default="")
    p.add_argument("--nodec", action="store_true")
    p.add_argument("--vdiag", action="store_true")
    p.add_argument("--dbgptr", action="store_true")
    p.add_argument("--opp", default="8,82", type=lambda v: [int(x) for x in v.split(",")])
    p.add_argument("--quorum", type=int, default=16)
    p.add_argument("--quorum4", type=int, default=24)
    p.add_argument("--nvote", type=int, default=32)
    p.add_argument("--nagn", type=int, default=8)
    p.add_argument("--stlim", type=int, default=0)
    p.add_argument("--psc1", action="store_true")
    p.add_argument("--wpace", type=int, default=3)
    p.add_argument("--clean", default="f")
    p.add_argument("--warm", type=int, default=30)
    p.add_argument("--warmwave", type=int, default=4)
    p.add_argument("--qsleep", type=int, default=0)
    p.add_argument("--red0", type=int, default=8)
    p.add_argument("--redstep", type=int, default=2)
    p.add_argument("--off", default="", help="diagnostics: v = no votes, c = no clears, r = result not read")
    p.add_argument("--spans", default="")
    p.add_argument("--split", action="store_true")
    p.add_argument("--pfback", type=int, default=0)
    p.add_argument("--nplain", type=int, default=0)
    p.add_argument("--wb", default="", help="minwave,wglimit,pos")
    p.add_argument("--thr", type=int, default=0)
    p.add_argument("--thrfrom", type=int, default=12)
    p.add_argument("--thrto", type=int, default=32)
    p.add_argument("--thrmask", default="0x55")
    p.add_argument("--zorder", default="8,0,9,1,10,2,11,3,12,4,13,5,14,6,15,7")
    o = p.parse_args()
    global NAGN, SPANS, NVOTE_WG
    NVOTE_WG = o.nvote
    NAGN = o.nagn
    if NAGN == 6:
        SPANS = [(0, 0), (0, 1), (1, 0), (1, 1), (2, 0), (2, 1),
                 (3, 0), (6, 0), (3, 1), (6, 1), (4, 0), (7, 0), (4, 1), (7, 1), (5, 0), (5, 1)]
        if o.zorder == p.get_default("zorder"):
            o.zorder = "6,0,7,8,1,9,2,10,11,3,12,4,13,14,5,15"
    if o.spans:
        SPANS = [(int(v[0]), int(v[1])) for v in o.spans.split(",")]
        assert sorted(SPANS) == [(a, b) for a in range(8) for b in range(2)]
    g = G(o)
    g.build()
    open(o.o, "w").write(g.text())


if __name__ == "__main__":
    main()
```

```python
import argparse

KNAME = "standalone__channel_attn_cbam__vision_kernel"

HEADER = """; Kernarg layout for this problem (48 bytes, ptrs only, base s[0:1]):
;   offset   0: d_in[0] x  shape=(1, 512, 512, 192) dtype=bfloat16 strides=(100663296, 196608, 384, 2) contiguous=True
;   offset   8: d_in[1] w1  shape=(192, 48) dtype=bfloat16 strides=(96, 2) contiguous=True
;   offset  16: d_in[2] w2  shape=(48, 192) dtype=bfloat16 strides=(384, 2) contiguous=True
;   offset  40: d_ws      402653184 bytes workspace (unspecified values whenever your kernel or launch list starts; a list's later launches find what earlier ones wrote)
"""

X_BYTES = 100663296
NWG = 256
NRED = 12
MiB = 1 << 20

L_RED = 0
L_H = 6144
L_DEC = 6336
L_S = 6400
L_F = 7168
L_W1 = 8192
L_W2 = L_W1 + 18432
L_SPILL = L_W2 + 18432
L_TOTAL = L_SPILL + 3 * 8192

WS_P = 0
WS_Q = 256 * 1536
WS_E = WS_Q + 8 * 3072
WS_USED = WS_E + 128
WS_STAMP = 1 << 20

S_X, S_OUT, S_WS, S_DBG, S_W = 4, 8, 12, 16, 20
S_WAVE, S_TY, S_SUB, S_OFF, S_MASK, S_CNT, S_T0, S_T1 = 28, 29, 30, 31, 32, 33, 34, 35
S_BASE, S_PM, S_P, S_T2 = 48, 49, 50, 51
S_AGN, S_RID, S_PO = 40, 42, 43
S_TG = [41, 47, 3, 0]
S_RET, S_HOOK = 44, 46
NFB = 48
S_STAMP = 52
S_V = 24

D0 = 40
SPIN = 400000
V_L, V_G0, V_G1, V_AT = 0, 39, 38, 36

NAGN = 8
SPANS = [(0, 0), (0, 1), (1, 0), (1, 1), (2, 0), (2, 1), (3, 0), (3, 1),
         (6, 0), (4, 0), (6, 1), (4, 1), (7, 0), (5, 0), (7, 1), (5, 1)]
W_ROLE = 0
DBG_RES, DBG_TAL = 0, 128
NVOTE_WG = 32
RES_OK = (1 << 9) | (1 << 8)


def mask(pred):
    return sum(1 << z for z, s in enumerate(SPANS) if pred(z, s))


class G:
    def __init__(self, o):
        self.o = o
        self.lines = []

    def e(self, s=""):
        self.lines.append(("    " + s) if s and not s.endswith(":") else s)

    def stamp(self, idx, vote=False):
        if vote == "r":
            vote = False
        if self.o.vdiag and idx in (1, 2, 3, 6) and not vote:
            return
        if vote and not self.o.vdiag:
            return
        if self.o.stamps and not (self.o.trace and idx > 10):
            self.e(f"s_memrealtime s[{S_STAMP + 2 * idx}:{S_STAMP + 2 * idx + 1}]")

    def srd(self, d, lo, nbytes):
        e = self.e
        e(f"s_mov_b64 s[{d}:{d + 1}], s[{lo}:{lo + 1}]")
        e(f"s_mov_b32 s{d + 2}, {nbytes}")
        e(f"s_mov_b32 s{d + 3}, 0x20000")

    def span_off(self, z):
        return SPANS[z][0] * 12 * MiB + SPANS[z][1] * 49152

    def mem(self, j, fn):
        e = self.e
        z, u = j >> 1, j & 1
        if z < NAGN:
            off = SPANS[z][0] * 12 * MiB + (SPANS[z][1] * 2 + u) * 12288
            if off:
                e(f"s_add_u32 s{S_OFF}, s{S_AGN}, {off}")
                fn(f"v{V_L}", f"s{S_OFF}")
            else:
                fn(f"v{V_L}", f"s{S_AGN}")
            return
        if u == 0:
            e(f"s_bitcmp1_b32 s{S_PM}, {z}")
            e(f"s_cselect_b32 s{S_P}, 24576, 0")
        e(f"s_add_u32 s{S_OFF}, s{S_BASE}, {self.span_off(z) + 12288 * u}")
        at = 2 + u
        e(f"v_xad_u32 v{at}, v{(V_G0, V_G1)[u]}, s{S_P}, v{V_L}")
        if SPANS[z] == (7, 1):
            e(f"v_add_u32 v{at}, s{S_OFF}, v{at}")
            e(f"v_subrev_u32 v{5 - at}, s{S_X + 2}, v{at}")
            e(f"v_min_u32 v{at}, v{at}, v{5 - at}             ; past the end: wrap to the rows the shift skipped")
            fn(f"v{at}", "0")
        else:
            fn(f"v{at}", f"s{S_OFF}")

    def trace(self, kind, n):
        if self.o.trace == kind:
            if n > 0:
                self.e("s_waitcnt lgkmcnt(0)")
                self.e(f"s_mov_b32 s{76 + n - 1}, s92")
            self.e("s_memrealtime s[92:93]")

    def build(self):
        o, e = self.o, self.e
        NRACE = o.nrace
        ldf = (" " + o.ldflags) if o.ldflags else ""
        stf = (" " + o.stflags) if o.stflags else ""

        self.stamp(0)
        e("s_load_dwordx2 s[4:5], s[0:1], 0          ; x")
        e("s_load_dwordx2 s[8:9], s[0:1], 24         ; out")
        e("v_readfirstlane_b32 s%d, v0" % S_WAVE)
        e("v_and_b32 v1, 63, v0                      ; lane")
        e("v_bfe_u32 v2, v0, 3, 3")
        e("v_mul_u32_u24 v2, 384, v2")
        e("v_and_b32 v3, 7, v0")
        e("s_cmpk_ge_u32 s2, %d" % NWG)
        e("s_cbranch_scc1 L_end")
        e(f"s_lshr_b32 s{S_WAVE}, s{S_WAVE}, 6")
        e(f"s_mul_i32 s{S_SUB}, s{S_WAVE}, 43")
        e(f"s_lshr_b32 s{S_SUB}, s{S_SUB}, 7")
        e(f"s_mul_i32 s{S_T0}, s{S_SUB}, 21")
        e(f"s_add_u32 s{S_T0}, s{S_T0}, s{S_WAVE}        ; sub*24 + wave % 3")
        e(f"s_lshl_b32 s{S_T0}, s{S_T0}, 7")
        e("v_lshl_add_u32 v0, v3, 4, v2")
        e(f"v_add_u32 v{V_L}, s{S_T0}, v0               ; + sub*3072 + (wave % 3)*128")
        e(f"s_and_b32 s{S_T0}, s2, 3")
        e(f"s_bfe_u32 s{S_T1}, s2, 0x10002")
        e(f"s_lshl1_add_u32 s{S_T0}, s{S_T0}, s{S_T1}")
        e(f"s_and_b32 s{S_T1}, s2, -8")
        e(f"s_add_u32 s{S_T0}, s{S_T0}, s{S_T1}")
        e(f"s_mul_i32 s{S_AGN}, s{S_T0}, 49152")
        e(f"s_mov_b32 s{S_X + 2}, {X_BYTES}")
        e(f"s_mov_b32 s{S_X + 3}, 0x20000")
        e(f"s_lshl_b32 s{S_T1}, s{S_WAVE}, 8")
        e(f"s_or_b32 s{S_T1}, s{S_T1}, s2")
        e("s_waitcnt lgkmcnt(0)")
        e(f"s_lshr_b32 s{S_T0}, s{S_OUT}, 7")
        e(f"s_mul_i32 s{S_T0}, s{S_T0}, 21              ; -43 mod 64")
        e(f"s_and_b32 s{S_T0}, s{S_T0}, 63")
        e(f"s_mulk_i32 s{S_T0}, 384")
        e(f"s_add_u32 s{S_AGN}, s{S_AGN}, s{S_T0}")
        assert W_ROLE == 0
        e(f"s_cmp_le_u32 s{S_T1}, {NVOTE_WG}              ; wave 0 of the first workgroups has a side job")
        e("s_cbranch_scc1 L_role")
        e("L_stream:")

        SUM, MAX, T = 4, 12, 20
        DEPTH = o.depth
        seq = []

        def issue(j):
            if j == 4:
                e("s_load_dwordx4 s[36:39], s[0:1], 8        ; w1, w2")
                e(f"s_load_dwordx2 s[{S_DBG}:{S_DBG + 1}], s[0:1], 32")
                e(f"s_load_dwordx2 s[{S_WS}:{S_WS + 1}], s[0:1], 40")
                e(f"s_mov_b32 s{S_MASK}, 0xffff0000")
            if j == 2 * NAGN:
                e(f"s_mul_i32 s{S_TY}, s{S_SUB}, 3")
                e(f"s_sub_u32 s{S_TY}, s{S_WAVE}, s{S_TY}        ; ty = wave % 3")
                e(f"s_mov_b32 s{S_OUT + 2}, s{S_X + 2}")
                e(f"s_mov_b32 s{S_OUT + 3}, s{S_X + 3}")
                e(f"s_mov_b32 s{S_WS + 2}, {(2 << 20) if o.stamps else WS_USED}")
                e(f"s_mov_b32 s{S_WS + 3}, s{S_X + 3}")
                e(f"s_movk_i32 s{S_DBG + 2}, 256")
                e(f"s_mov_b32 s{S_DBG + 3}, s{S_X + 3}")
                e(f"s_movk_i32 s{S_T2}, 24576")
                e(f"v_bfe_u32 v{V_G0}, v{V_L}, 13, 1")
                e(f"v_add_u32 v{V_G1}, 12288, v{V_L}")
                e(f"v_bfe_u32 v{V_G1}, v{V_G1}, 13, 1")
                e(f"v_mul_u32_u24 v{V_G0}, s{S_T2}, v{V_G0}")
                e(f"v_mul_u32_u24 v{V_G1}, s{S_T2}, v{V_G1}")
                e(f"s_bfe_i32 s{S_PM}, s2, 0x10002              ; -side")
                e(f"s_and_b32 s{S_T0}, s{S_PM}, 49152")
                e(f"s_sub_u32 s{S_BASE}, s{S_AGN}, s{S_T0}")
                h1 = mask(lambda z, s: s[1] == 1)
                e(f"s_add_u32 s{S_T0}, s{S_BASE}, s{S_T2}")
                e(f"s_add_u32 s{S_T0}, s{S_T0}, s{S_OUT}")
                e(f"s_bfe_i32 s{S_T1}, s{S_T0}, 0x10015")
                e(f"s_xor_b32 s{S_PM}, s{S_PM}, s{S_T1}")
                e(f"s_add_u32 s{S_T2}, s{S_T0}, 49152")
                e(f"s_xor_b32 s{S_T0}, s{S_T0}, s{S_T2}")
                e(f"s_bfe_i32 s{S_T0}, s{S_T0}, 0x10015")
                e(f"s_and_b32 s{S_T0}, s{S_T0}, {h1}")
                e(f"s_xor_b32 s{S_PM}, s{S_PM}, s{S_T0}")
                m1 = mask(lambda z, s: z >= NAGN and s[0] in (3, 4))
                z50 = SPANS.index((5, 0))
                z51 = SPANS.index((5, 1))
                dec = mask(lambda z, s: z >= NAGN)
                e(f"s_cmp_lt_u32 s{S_BASE}, {4 * MiB - 24576}")
                e(f"s_cselect_b32 s{S_T0}, {1 << z50}, 0")
                e(f"s_or_b32 s{S_T0}, s{S_T0}, {m1}")
                e(f"s_cmp_lt_u32 s{S_BASE}, {4 * MiB - 24576 - 49152}")
                e(f"s_cselect_b32 s{S_T1}, {1 << z51}, 0")
                e(f"s_or_b32 s{S_T0}, s{S_T0}, s{S_T1}            ; third 1")
                e(f"s_xor_b32 s{S_T1}, s{S_T0}, {dec}           ; third 2")
                per, pat = o.opp
                rep = sum(((pat >> (i % per)) & 1) << i for i in range(32))
                e(f"s_lshr_b32 s{S_P}, s2, 3")
                e(f"s_mul_i32 s{S_T2}, s{S_P}, {-(-256 // per)}")
                e(f"s_lshr_b32 s{S_T2}, s{S_T2}, 8")
                e(f"s_mul_i32 s{S_T2}, s{S_T2}, {per}")
                e(f"s_sub_u32 s{S_P}, s{S_P}, s{S_T2}             ; (b >> 3) % {per}")
                e(f"s_lshr_b32 s{S_P}, {rep}, s{S_P}")
                e(f"s_sub_u32 s{S_T2}, s{S_OUT}, s{S_X}")
                e(f"s_add_u32 s{S_T2}, s{S_T2}, 2048")
                e(f"s_bitcmp1_b32 s{S_T2}, 12")
                e(f"s_cselect_b32 s{S_P}, 0, s{S_P}")
                e(f"s_lshr_b32 s{S_T2}, s2, 3")
                e(f"s_sub_u32 s{S_RID}, s{S_T2}, {o.red0}")
                e(f"s_and_b32 s{S_PO}, s2, 7")
                e(f"s_lshl_b32 s{S_PO}, s{S_PO}, 5")
                e(f"s_add_u32 s{S_PO}, s{S_PO}, s{S_T2}")
                e(f"s_mulk_i32 s{S_PO}, 1536")
                e("s_waitcnt lgkmcnt(0)")
                self.stamp(11)
                e("s_barrier")
                e(f"s_load_dword s{S_T2}, s[{S_DBG}:{S_DBG + 1}], {DBG_RES}")
                e("s_waitcnt lgkmcnt(0)")
                e(f"s_andn2_b32 s{S_CNT}, {RES_OK}, s{S_T2}")
                e("s_cbranch_scc1 L_dpoll")
                e("L_decided:")
                for i in range(4):
                    e(f"s_bitcmp1_b32 s{S_T2}, {7 + 6 * i + 5}")
                    e(f"s_cselect_b32 s{S_V + i}, s{(S_T0, S_T1)[i >> 1]}, 0")
                e(f"s_or_b32 s{S_V}, s{S_V}, s{S_V + 2}")
                e(f"s_or_b32 s{S_V + 1}, s{S_V + 1}, s{S_V + 3}")
                e(f"s_xor_b32 s{S_V}, s{S_V}, s{S_V + 1}")
                e(f"s_and_b32 s{S_V}, s{S_V}, s{S_P}")
                e(f"s_xor_b32 s{S_V}, s{S_V}, s{S_V + 1}")
                e(f"s_xor_b32 s{S_PM}, s{S_PM}, s{S_V}")
                e(f"s_and_b32 s{S_TG[0]}, s{S_T2}, 15")
                e(f"s_bfe_u32 s{S_TG[1]}, s{S_T2}, 0x40004")
                e(f"s_xor_b32 s{S_TG[2]}, s{S_TG[0]}, 15")
                e(f"s_xor_b32 s{S_TG[3]}, s{S_TG[1]}, 15")
                self.stamp(12)
            if j == o.warm:
                e(f"s_cmp_lg_u32 s{S_WAVE}, {o.warmwave}")
                e("s_cbranch_scc1 L_nowarm")
                e("v_lshlrev_b32 v3, 7, v1")
                e("s_mov_b64 exec, 0xfff")
                e(f"buffer_load_dword v37, v3, s[{S_WS}:{S_WS + 3}], s{S_PO} offen")
                e("s_mov_b64 exec, -1")
                e("L_nowarm:")
            r = D0 + 4 * j
            if o.thr and j == min(o.thrfrom, 3):
                e(f"s_and_b32 s{S_T0}, s2, 7")
                e(f"s_lshr_b32 s{S_T0}, {o.thrmask}, s{S_T0}")
                e(f"s_and_b32 vcc_lo, s{S_T0}, 1")
                e("s_mov_b32 vcc_hi, 0")
            if o.thr and o.thrfrom <= j < o.thrto:
                e(f"s_cbranch_vccz L_thr{j}")
                e(f"s_waitcnt vmcnt({o.thr - 1})")
                e(f"L_thr{j}:")
            self.mem(j, lambda va, so: e(f"buffer_load_dwordx4 v[{r}:{r + 3}], {va}, s[{S_X}:{S_X + 3}], {so} offen{ldf}"))
            seq.append(j)
            if j & 1:
                self.trace("ld", j >> 1)

        def wait_for(j):
            e(f"s_waitcnt vmcnt({len(seq) - 1 - seq.index(j)})")

        nxt = 0
        for jj in range(16):
            while nxt < 32 and nxt < 2 * jj + DEPTH + 2:
                issue(nxt)
                nxt += 1
                if nxt == 32:
                    self.stamp(1)
            a, b = D0 + 8 * jj, D0 + 8 * jj + 4
            if jj == 15:
                e("v_and_b32 v2, 7, v1")
                e("v_lshlrev_b32 v2, 5, v2                   ; (l&7)*32")
                e("v_lshrrev_b32 v3, 4, v1")
                e("v_lshl_add_u32 v2, v3, 3, v2              ; + (l>>4)*8")
                e("v_bfe_u32 v3, v1, 3, 1")
                e("v_mul_u32_u24 v3, 768, v3")
                e(f"s_mul_i32 s{S_T0}, s{S_SUB}, 1536")
                e(f"s_lshl_b32 s{S_T1}, s{S_TY}, 8")
                e(f"s_add_u32 s{S_T0}, s{S_T0}, s{S_T1}")
                e(f"v_add3_u32 v2, v2, v3, s{S_T0}")
                e(f"s_mul_i32 s{S_T0}, s{S_WAVE}, 768")
                e(f"v_lshl_add_u32 v3, v1, 4, s{S_T0}")
                for r in (a, b):
                    wait_for((r - D0) // 4)
                    if r == b:
                        self.stamp(3)
                    for i in range(4):
                        t = T + 2 * i
                        e(f"v_lshlrev_b32 v{t}, 16, v{r + i}")
                        e(f"v_and_b32 v{t + 1}, s{S_MASK}, v{r + i}")
                    for i in range(8):
                        e(f"v_max_f32 v{MAX + i}, v{MAX + i}, v{T + i}")
                    for i in range(4):
                        t, s = T + 2 * i, SUM + 2 * i
                        e(f"v_pk_add_f32 v[{s}:{s + 1}], v[{s}:{s + 1}], v[{t}:{t + 1}]")
                continue
            wait_for(2 * jj + 1)
            if jj == 0:
                self.stamp(2)
            for i in range(4):
                t = T + 4 * i
                e(f"v_lshlrev_b32 v{t}, 16, v{a + i}")
                e(f"v_and_b32 v{t + 1}, s{S_MASK}, v{a + i}")
                e(f"v_lshlrev_b32 v{t + 2}, 16, v{b + i}")
                e(f"v_and_b32 v{t + 3}, s{S_MASK}, v{b + i}")
            for i in range(4):
                t = T + 4 * i
                s, m = SUM + 2 * i, MAX + 2 * i
                if jj == 0:
                    e(f"v_max_f32 v{m}, v{t}, v{t + 2}")
                    e(f"v_max_f32 v{m + 1}, v{t + 1}, v{t + 3}")
                    e(f"v_pk_add_f32 v[{s}:{s + 1}], v[{t}:{t + 1}], v[{t + 2}:{t + 3}]")
                else:
                    e(f"v_max3_f32 v{m}, v{m}, v{t}, v{t + 2}")
                    e(f"v_max3_f32 v{m + 1}, v{m + 1}, v{t + 1}, v{t + 3}")
                    e(f"v_pk_add_f32 v[{t}:{t + 1}], v[{t}:{t + 1}], v[{t + 2}:{t + 3}]")
            if jj:
                for i in range(4):
                    t = T + 4 * i
                    s = SUM + 2 * i
                    e(f"v_pk_add_f32 v[{s}:{s + 1}], v[{s}:{s + 1}], v[{t}:{t + 1}]")

        for base in (MAX, SUM):
            for i in range(4):
                e(f"v_permlane32_swap_b32 v{base + i}, v{base + 4 + i}")
        for i in range(4):
            e(f"v_max_f32 v{MAX + i}, v{MAX + i}, v{MAX + 4 + i}")
        for i in range(4):
            e(f"v_add_f32 v{SUM + i}, v{SUM + i}, v{SUM + 4 + i}")
        for i in range(2):
            e(f"v_permlane16_swap_b32 v{MAX + i}, v{MAX + 2 + i}")
        for i in range(2):
            e(f"v_permlane16_swap_b32 v{SUM + i}, v{SUM + 2 + i}")
        for i in range(2):
            e(f"v_add_f32 v{SUM + i}, v{SUM + i}, v{SUM + 2 + i}")
        for i in range(2):
            e(f"v_max_f32 v{MAX + i}, v{MAX + i}, v{MAX + 2 + i}")
        e(f"s_cmp_ge_u32 s{S_WAVE}, 2")
        for i in range(2):
            e(f"v_add_f32_dpp v{SUM + i}, v{SUM + i}, v{SUM + i} row_ror:8 row_mask:0xf bank_mask:0x3")
        for i in range(2):
            e(f"v_max_f32_dpp v{SUM + i}, v{MAX + i}, v{MAX + i} row_ror:8 row_mask:0xf bank_mask:0xc")
        e(f"ds_write_b64 v2, v[{SUM}:{SUM + 1}] offset:{L_RED}")
        e("s_waitcnt lgkmcnt(0)")
        e("s_barrier")
        self.stamp(4)
        e("s_cbranch_scc1 L_nopub")

        e("s_mov_b32 exec_hi, 0xffff")
        for k in range(4):
            e(f"ds_read_b128 v[{4 + 4 * k}:{7 + 4 * k}], v3 offset:{L_RED + 1536 * k}")
        e(f"s_cmp_eq_u32 s{S_WAVE}, 0")
        e(f"s_cselect_b64 s[{S_W}:{S_W + 1}], s[36:37], s[38:39]")
        e("s_cbranch_scc0 L_pubmax")
        e("s_waitcnt lgkmcnt(2)")
        e("v_pk_add_f32 v[4:5], v[4:5], v[8:9]")
        e("v_pk_add_f32 v[6:7], v[6:7], v[10:11]")
        e("s_waitcnt lgkmcnt(0)")
        e("v_pk_add_f32 v[12:13], v[12:13], v[16:17]")
        e("v_pk_add_f32 v[14:15], v[14:15], v[18:19]")
        e("v_pk_add_f32 v[4:5], v[4:5], v[12:13]")
        e("v_pk_add_f32 v[6:7], v[6:7], v[14:15]")
        e("s_branch L_pub")
        e("L_pubmax:")
        e("s_waitcnt lgkmcnt(1)")
        for i in range(4):
            e(f"v_max3_f32 v{4 + i}, v{4 + i}, v{8 + i}, v{12 + i}")
        e("s_waitcnt lgkmcnt(0)")
        for i in range(4):
            e(f"v_max_f32 v{4 + i}, v{4 + i}, v{16 + i}")
        e("L_pub:")
        for i in range(4):
            e(f"v_and_or_b32 v{4 + i}, v{4 + i}, -16, s{S_TG[i]}")
        e(f"buffer_store_dwordx4 v[4:7], v3, s[{S_WS}:{S_WS + 3}], s{S_PO} offen{' sc1' if o.psc1 else ''}")
        e("s_mov_b64 exec, -1")
        e(f"s_movk_i32 s{S_W + 2}, 18432")
        e(f"s_mov_b32 s{S_W + 3}, 0x20000")
        e(f"s_mul_i32 s{S_T0}, s{S_WAVE}, 18432")
        e(f"s_addk_i32 s{S_T0}, {L_W1}")
        e(f"s_mov_b32 s{S_T1}, 0")
        e("v_lshlrev_b32 v2, 4, v1")
        e("L_wloop:")
        e(f"s_add_u32 m0, s{S_T0}, s{S_T1}")
        e(f"s_cmp_ge_u32 s{S_RID}, {NRED}")
        for k in range(3):
            e(f"buffer_load_dwordx4 v2, s[{S_W}:{S_W + 3}], s{S_T1} offen offset:{k * 1024} lds")
        e("s_cbranch_scc1 L_wnext")
        e(f"s_waitcnt vmcnt({o.wpace})")
        e("L_wnext:")
        e(f"s_addk_i32 s{S_T1}, 3072")
        e(f"s_cmp_lt_u32 s{S_T1}, 18432")
        e("s_cbranch_scc1 L_wloop")
        e("L_nopub:")

        B2 = 28
        V_H0, V_H1, V_SW, V_SR, V_Q = 24, 25, 26, 27, 37
        SP0 = 136
        A1 = 144
        B1 = [4, 8, 12, 16, 136, 140]
        e("v_lshrrev_b32 v20, 4, v1                  ; q")
        e(f"s_mov_b32 s{S_HOOK}, {SPIN - NFB}")
        e(f"s_cmp_lt_u32 s{S_WAVE}, 3")
        e("s_cbranch_scc1 L_spill")
        e(f"s_cmp_ge_u32 s{S_RID}, {NRED}")
        e("s_cbranch_scc1 L_barw")
        e(f"s_cmp_lg_u32 s{S_WAVE}, 3")
        e("s_cbranch_scc1 L_barw")

        def clean(lbl, d, a):
            e(f"s_cmp_lg_u32 s{S_WAVE}, 3")
            e(f"s_cbranch_scc1 {lbl}")
            for i in range(4):
                e(f"v_mov_b32 v{d + i}, 0")
            e(f"v_lshlrev_b32 v{a}, 4, v1")
            e("s_mov_b32 exec_hi, 0xffff")
            e(f"buffer_store_dwordx4 v[{d}:{d + 3}], v{a}, s[{S_WS}:{S_WS + 3}], s{S_PO} offen sc1")
            e(f"buffer_store_dwordx4 v[{d}:{d + 3}], v{a}, s[{S_WS}:{S_WS + 3}], s{S_PO} offen offset:768 sc1")
            e("s_mov_b64 exec, -1")

        def hook(lbl):
            e(f"s_cmp_lg_u32 s{S_CNT}, s{S_HOOK}")
            e(f"s_cbranch_scc1 {lbl}")
            e(f"s_call_b64 s[{S_RET}:{S_RET + 1}], L_flush")
            e(f"{lbl}:")

        e("v_lshrrev_b32 v2, 3, v1")
        e("v_mul_u32_u24 v2, 1536, v2")
        e("v_and_b32 v3, 7, v1")
        e(f"v_lshl_add_u32 v{V_Q}, v3, 4, v2")
        e(f"s_and_b32 s{S_T0}, s2, 7")
        e(f"s_mul_i32 s{S_V}, s{S_T0}, {32 * 1536}")
        e(f"s_lshl_b32 s{S_T1}, s{S_RID}, 7")
        e(f"s_add_u32 s{S_V}, s{S_V}, s{S_T1}")
        for k in range(1, 4):
            e(f"s_add_u32 s{S_V + k}, s{S_V}, {k * 8 * 1536}")
        e(f"s_mulk_i32 s{S_T0}, 3072")
        e(f"s_lshl1_add_u32 s{S_T1}, s{S_T1}, s{S_T0}")
        e(f"s_add_u32 s{S_T1}, s{S_T1}, {WS_Q}")
        e("v_lshlrev_b32 v3, 2, v1")
        e("v_lshl_add_u32 v3, v20, 6, v3             ; (l>>4)*128 + (l&15)*4")
        e(f"s_lshl4_add_u32 s{S_T0}, s{S_TG[1]}, s{S_TG[0]}")
        e(f"s_xor_b32 s{S_CNT}, s{S_T0}, 0xff")
        e(f"s_lshl_b32 s{S_CNT}, s{S_CNT}, 8")
        e(f"s_or_b32 s{S_T0}, s{S_T0}, s{S_CNT}")
        e("v_and_b32 v2, 12, v3")
        e(f"v_bfe_u32 v23, s{S_T0}, v2, 4")
        e(f"s_mov_b32 s{S_CNT}, {SPIN}")
        e("L_rpoll:")
        hook("L_rnohook")
        for k in range(4):
            e(f"buffer_load_dwordx4 v[{4 + 4 * k}:{7 + 4 * k}], v{V_Q}, s[{S_WS}:{S_WS + 3}], s{S_V + k} offen sc1")
        e(f"s_sub_u32 s{S_CNT}, s{S_CNT}, 1")
        e("s_cbranch_scc1 L_rgot")
        for k in range(4):
            e(f"s_waitcnt vmcnt({3 - k})")
            for i in range(4):
                r, acc = 4 + 4 * k + i, 21 + (i & 1)
                if k == 0 and i < 2:
                    e(f"v_xor_b32 v{acc}, s{S_TG[i]}, v{r}")
                else:
                    e(f"v_bitop3_b32 v{acc}, v{acc}, v{r}, s{S_TG[i]} bitop3:0xf6   ; a | (b ^ c)")
        e("v_bitop3_b32 v21, v21, v22, 15 bitop3:0xa8          ; (a | b) & c")
        e("v_cmp_ne_u32 vcc, 0, v21")
        e("s_wqm_b64 exec, vcc                       ; 64-byte units still waiting poll again")
        e("s_cbranch_scc1 L_rpoll")
        e("L_rgot:")
        e("s_mov_b64 exec, -1")
        e("s_waitcnt vmcnt(0)")
        self.stamp(1, "r")
        e(f"s_cmp_ge_u32 s{S_RID}, 6")
        e("s_cbranch_scc1 L_rmax")
        for kind in (0, 1):
            op = "v_add_f32" if kind == 0 else "v_max_f32"
            if kind == 1:
                e("L_rmax:")
                for i in range(4):
                    e(f"v_max3_f32 v{4 + i}, v{4 + i}, v{8 + i}, v{12 + i}")
                for i in (0, 2, 1, 3):
                    e(f"v_max_f32 v{4 + i}, v{4 + i}, v{16 + i}")
            else:
                e("v_pk_add_f32 v[4:5], v[4:5], v[8:9]")
                e("v_pk_add_f32 v[6:7], v[6:7], v[10:11]")
                e("v_pk_add_f32 v[12:13], v[12:13], v[16:17]")
                e("v_pk_add_f32 v[14:15], v[14:15], v[18:19]")
                e("v_pk_add_f32 v[4:5], v[4:5], v[12:13]")
                e("v_pk_add_f32 v[6:7], v[6:7], v[14:15]")
                e("s_nop 0")
            e(f"{op}_dpp v4, v4, v4 row_ror:8 row_mask:0xf bank_mask:0x3")
            if kind == 0:
                e(f"{op}_dpp v5, v5, v5 row_ror:8 row_mask:0xf bank_mask:0x3")
                e(f"{op}_dpp v4, v6, v6 row_ror:8 row_mask:0xf bank_mask:0xc")
            else:
                e(f"{op}_dpp v4, v6, v6 row_ror:8 row_mask:0xf bank_mask:0xc")
                e(f"{op}_dpp v5, v5, v5 row_ror:8 row_mask:0xf bank_mask:0x3")
            e(f"{op}_dpp v5, v7, v7 row_ror:8 row_mask:0xf bank_mask:0xc")
            e("s_nop 1")
            e("v_permlane16_swap_b32 v4, v5")
            e(f"{op} v4, v4, v5")
            e("v_mov_b32 v5, v4")
            e("s_nop 1")
            e("v_permlane32_swap_b32 v4, v5")
            e(f"{op} v4, v4, v5                        ; lane 16a+8b+c: element 2b+a of piece c")
            if kind == 0:
                e("s_branch L_rpub")
        e("L_rpub:")
        e("s_mov_b32 exec_hi, 0")
        e("v_and_or_b32 v4, v4, -16, v23")
        e(f"buffer_store_dword v4, v3, s[{S_WS}:{S_WS + 3}], s{S_T1} offen sc1")
        self.stamp(9)
        e("s_mov_b64 exec, -1")
        if o.clean == "r":
            for i in range(4):
                e(f"v_mov_b32 v{8 + i}, 0")
            for k in range(4):
                e(f"buffer_store_dwordx4 v[8:11], v{V_Q}, s[{S_WS}:{S_WS + 3}], s{S_V + k} offen sc1")
        e("s_barrier")
        e("s_branch L_afterw")

        e("L_spill:")
        e(f"s_lshl_b32 s{S_T0}, s{S_WAVE}, 13")
        e(f"v_lshl_add_u32 v{V_AT}, v1, 4, s{S_T0}")
        for k in range(8):
            e(f"ds_write_b128 v{V_AT}, v[{SP0 + 4 * k}:{SP0 + 4 * k + 3}] offset:{L_SPILL + 1024 * k}")
        e("L_barw:")
        e("s_waitcnt vmcnt(0) lgkmcnt(0)")
        e("s_barrier")
        e("L_afterw:")
        e("v_bfe_u32 v3, v1, 2, 2")
        e("v_lshl_add_u32 v21, v20, 3, v3            ; row")
        e("v_and_b32 v22, 15, v21                    ; row of the half step (q&1)")
        e("v_and_b32 v3, 3, v1")
        e(f"s_lshl_b32 s{S_T2}, s{S_WAVE}, 5")
        e(f"v_lshl_add_u32 v23, v3, 3, s{S_T2}")
        e("v_mov_b32 v3, 384")
        e("v_mad_u32_u24 v2, v21, v3, v23")
        e("v_mad_u32_u24 v22, v22, v3, v23")
        e(f"ds_read_b64_tr_b16 v[{B2}:{B2 + 1}], v2 offset:{L_W2}")
        e(f"ds_read_b64_tr_b16 v[{B2 + 2}:{B2 + 3}], v2 offset:{L_W2 + 4 * 384}")
        e(f"ds_read_b64_tr_b16 v[{B2 + 4}:{B2 + 5}], v22 offset:{L_W2 + 32 * 384}")
        e(f"ds_read_b64_tr_b16 v[{B2 + 6}:{B2 + 7}], v22 offset:{L_W2 + 36 * 384}")
        e("v_and_b32 v2, 1, v1")
        e("v_mul_u32_u24 v22, 96, v2")
        e(f"v_lshl_add_u32 v{V_H0}, v20, 4, v22")
        e("v_and_b32 v3, 1, v20")
        e(f"v_lshl_add_u32 v{V_H1}, v3, 4, v22")
        e(f"s_lshl_b32 s{S_T0}, s{S_WAVE}, 6")
        e(f"v_lshl_add_u32 v{V_SW}, v1, 2, s{S_T0}")
        e("v_and_b32 v3, 7, v1")
        e(f"s_lshl_b32 s{S_T0}, s{S_TY}, 8")
        e(f"v_lshl_add_u32 v{V_SR}, v3, 5, s{S_T0}")
        e("s_waitcnt lgkmcnt(0)")
        e("s_mov_b32 exec_lo, 0")
        for i in range(4):
            e(f"v_mov_b32 v{B2 + 4 + i}, 0")
        e("s_mov_b64 exec, -1")
        e(f"s_cmp_ge_u32 s{S_WAVE}, 3")
        e("s_cbranch_scc1 L_noa1")
        e("v_mov_b32 v3, 96")
        e("v_mad_u32_u24 v2, v21, v3, v23")
        for s in range(6):
            for h in range(2):
                r = A1 + 4 * s + 2 * h
                e(f"ds_read_b64_tr_b16 v[{r}:{r + 1}], v2 offset:{L_W1 + s * 3072 + h * 384}")
        e("L_noa1:")
        e(f"v_lshl_add_u32 v3, v20, 3, v22")
        e(f"v_add_u32 v3, s{S_T2}, v3")
        e("v_lshlrev_b32 v2, 2, v22")
        e("v_lshl_add_u32 v2, v20, 4, v2")
        e("v_and_b32 v8, 1, v1")
        e("v_lshlrev_b32 v8, 4, v8")
        e("v_lshl_add_u32 v8, v20, 2, v8")
        e("v_and_b32 v9, 2, v1")
        e("v_bfe_u32 v10, v1, 2, 1")
        e("v_add3_u32 v8, v8, v9, v10")
        e(f"v_add_lshl_u32 v23, v8, s{S_T2}, 1")
        e("v_lshrrev_b32 v8, 3, v1")
        e("v_mul_u32_u24 v8, 3072, v8")
        e("v_lshl_add_u32 v8, v10, 7, v8")
        e("v_and_b32 v9, 3, v1")
        e(f"v_lshl_add_u32 v{V_Q}, v9, 4, v8")
        e(f"s_lshl_b32 s{S_T1}, s{S_WAVE}, 8")
        e(f"s_add_u32 s{S_T1}, s{S_T1}, {WS_Q}")
        e(f"s_mov_b32 s{S_CNT}, {SPIN}")
        e(f"s_cmp_ge_u32 s{S_WAVE}, 6")
        e("s_cbranch_scc1 L_qpoll1")

        for kind in (0, 1):
            op = "v_add_f32" if kind == 0 else "v_max_f32"
            e(f"L_qpoll{kind}:")
            hook(f"L_qnohook{kind}")
            e(f"buffer_load_dwordx4 v[4:7], v{V_Q}, s[{S_WS}:{S_WS + 3}], s{S_T1} offen sc1")
            e(f"s_sub_u32 s{S_CNT}, s{S_CNT}, 1")
            e(f"s_cbranch_scc1 L_qgot{kind}")
            if o.qsleep:
                e(f"s_sleep {o.qsleep}")
            e("s_waitcnt vmcnt(0)")
            e(f"v_xor_b32 v21, s{S_TG[0]}, v4")
            e(f"v_xor_b32 v22, s{S_TG[1]}, v5")
            e(f"v_bitop3_b32 v21, v21, v6, s{S_TG[2]} bitop3:0xf6")
            e(f"v_bitop3_b32 v22, v22, v7, s{S_TG[3]} bitop3:0xf6")
            e("v_bitop3_b32 v21, v21, v22, 15 bitop3:0xa8")
            e("v_cmp_ne_u32 vcc, 0, v21")
            e("s_wqm_b64 exec, vcc")
            e(f"s_cbranch_scc1 L_qpoll{kind}")
            e(f"L_qgot{kind}:")
            e("s_mov_b64 exec, -1")
            e("s_waitcnt vmcnt(0)")
            self.stamp(5)
            e("v_permlane32_swap_b32 v4, v6")
            e("v_permlane32_swap_b32 v5, v7")
            e(f"{op} v4, v4, v6")
            e(f"{op} v5, v5, v7")
            e("s_nop 1")
            e("v_permlane16_swap_b32 v4, v5")
            e(f"{op} v4, v4, v5")
            e(f"s_cmp_ge_u32 s{S_WAVE}, 3")
            e("s_nop 0")
            e(f"{op}_dpp v4, v4, v4 row_ror:8 row_mask:0xf bank_mask:0xf")
            if kind == 0:
                e("v_mul_f32 v4, 0x36800000, v4              ; 1/262144")
            e("v_cvt_pk_bf16_f32 v4, v4, v4")
            e(f"ds_write_b16 v23, v4 offset:{L_F}")
            e("s_waitcnt lgkmcnt(0)")
            e("s_barrier")
            if kind == 0:
                e("s_cbranch_scc0 L_mlp1")
                if o.clean == "f":
                    clean("L_join", 16, 12)
            e("s_branch L_join")

        e("L_mlp1:")
        for s in range(6):
            e(f"ds_read_b128 v[{B1[s]}:{B1[s] + 3}], v2 offset:{L_F + 64 * s}")
        for s in range(6):
            c = "0" if s == 0 else "v[20:23]"
            b = B1[s]
            e(f"s_waitcnt lgkmcnt({5 - s})")
            e(f"v_mfma_f32_16x16x32_bf16 v[20:23], v[{A1 + 4 * s}:{A1 + 4 * s + 3}], v[{b}:{b + 3}], {c}")
        e("s_nop 3")
        e("s_mov_b32 exec_lo, 0x00030003")
        e("s_mov_b32 exec_hi, 0x00030003")
        e("s_nop 1")
        for i in range(4):
            e(f"v_maximum3_f32 v{20 + i}, v{20 + i}, 0, 0")
        e("v_cvt_pk_bf16_f32 v20, v20, v21")
        e("v_cvt_pk_bf16_f32 v21, v22, v23")
        e(f"ds_write_b64 v3, v[20:21] offset:{L_H}")
        e("s_mov_b64 exec, -1")
        e("s_waitcnt lgkmcnt(0)")

        e("L_join:")
        e("s_barrier")
        self.stamp(6)
        e(f"ds_read_b128 v[4:7], v{V_H0} offset:{L_H}")
        e(f"ds_read_b128 v[8:11], v{V_H1} offset:{L_H + 64}")
        e("s_waitcnt lgkmcnt(1)")
        e(f"v_mfma_f32_16x16x32_bf16 v[12:15], v[4:7], v[{B2}:{B2 + 3}], 0")
        e("s_waitcnt lgkmcnt(0)")
        e(f"v_mfma_f32_16x16x32_bf16 v[12:15], v[8:11], v[{B2 + 4}:{B2 + 7}], v[12:15]")
        e("s_mov_b64 exec, 0xffff")
        e("s_nop 6")
        e("v_cvt_pk_bf16_f32 v12, v12, v13")
        e("v_lshlrev_b32 v13, 16, v12")
        e(f"v_and_b32 v12, s{S_MASK}, v12")
        e("v_add_f32 v12, v12, v13")
        e("v_cvt_pk_bf16_f32 v12, v12, v12")
        e("v_lshlrev_b32 v12, 16, v12")
        e("v_mul_f32 v12, 0xbfb8aa3b, v12            ; -log2(e)")
        e("v_exp_f32 v12, v12")
        e("s_nop 0")
        e("v_add_f32 v12, 1.0, v12")
        e("v_rcp_f32 v12, v12")
        e("s_nop 0")
        e("v_cvt_pk_bf16_f32 v12, v12, v12")
        e("v_lshlrev_b32 v12, 16, v12")
        e(f"ds_write_b32 v{V_SW}, v12 offset:{L_S}")
        e("s_mov_b64 exec, -1")
        e("s_waitcnt lgkmcnt(0)")
        e("s_barrier")
        e(f"ds_read_b128 v[4:7], v{V_SR} offset:{L_S}")
        e(f"ds_read_b128 v[8:11], v{V_SR} offset:{L_S + 16}")

        if o.stlim:
            e(f"s_cmp_lt_u32 s2, {o.stlim}")
            e(f"s_cselect_b32 s{S_OUT + 2}, s{S_OUT + 2}, 0")
        zorder = [int(v) for v in o.zorder.split(",")]
        assert sorted(zorder) == list(range(16))
        restored = False

        def wbl2():
            wv, lim, pos = [int(v) for v in o.wb.split(",")]
            e(f"s_cmp_lt_u32 s{S_WAVE}, {wv}")
            e("s_cbranch_scc1 L_nowb")
            e(f"s_cmp_ge_u32 s2, {lim}")
            e("s_cbranch_scc1 L_nowb")
            if pos == 33:
                e("s_waitcnt vmcnt(0)")
            e("buffer_wbl2 sc1")
            e("L_nowb:")
        for n, j in enumerate([2 * z + u for z in zorder for u in (0, 1)]):
            a = D0 + 4 * j
            t0 = 12 + 8 * (n & 1)
            if a >= SP0 and not restored:
                assert n > 1
                e("s_waitcnt lgkmcnt(0)")
                restored = True
            for i in range(4):
                t = t0 + 2 * i
                e(f"v_lshlrev_b32 v{t}, 16, v{a + i}")
                e(f"v_and_b32 v{t + 1}, s{S_MASK}, v{a + i}")
            if n == 0:
                e("s_waitcnt lgkmcnt(0)")
                self.stamp(7)
            for i in range(4):
                t = t0 + 2 * i
                e(f"v_pk_mul_f32 v[{t}:{t + 1}], v[{t}:{t + 1}], v[{4 + 2 * i}:{5 + 2 * i}]")
            for i in range(4):
                t = t0 + 2 * i
                e(f"v_cvt_pk_bf16_f32 v{a + i}, v{t}, v{t + 1}")
            self.mem(j, lambda va, so: e(f"buffer_store_dwordx4 v[{a}:{a + 3}], {va}, s[{S_OUT}:{S_OUT + 3}], {so} offen{'' if n >= 32 - o.nplain else stf}"))
            if o.wb and int(o.wb.split(",")[2]) == n:
                wbl2()
            if n & 1:
                self.trace("st", n >> 1)
            if n == 1:
                e(f"s_cmp_ge_u32 s{S_WAVE}, 3")
                e("s_cbranch_scc1 L_norestore")
                for k in range(8):
                    e(f"ds_read_b128 v[{SP0 + 4 * k}:{SP0 + 4 * k + 3}], v{V_AT} offset:{L_SPILL + 1024 * k}")
                e("L_norestore:")
                if o.clean == "st":
                    clean("L_noclean", 28, 32)
                    e("L_noclean:")
        if o.wb and int(o.wb.split(",")[2]) >= 32:
            wbl2()
        if o.stamps:
            self.stamp(8)
            e("s_waitcnt vmcnt(0)")
            self.stamp(10)
            e("s_getreg_b32 s94, hwreg(HW_REG_XCC_ID)")
            e("s_getreg_b32 s95, hwreg(HW_REG_HW_ID)")
            e("s_waitcnt lgkmcnt(0)")
            e("v_mov_b32 v2, 0")
            for i in range(11 if o.trace else 14):
                e(f"v_writelane_b32 v2, s{S_STAMP + 2 * i}, {i}")
            e("v_writelane_b32 v2, s94, 14")
            e("v_writelane_b32 v2, s95, 15")
            e(f"s_mul_i32 s{S_T0}, s2, 12")
            e(f"s_add_u32 s{S_T0}, s{S_T0}, s{S_WAVE}")
            e(f"s_lshl_b32 s{S_T0}, s{S_T0}, 6")
            e(f"s_add_u32 s{S_T0}, s{S_T0}, {WS_STAMP}")
            e("v_mbcnt_lo_u32_b32 v3, -1, 0")
            e("v_lshlrev_b32 v3, 2, v3")
            e("s_mov_b64 exec, 0xffff")
            e(f"buffer_store_dword v2, v3, s[{S_WS}:{S_WS + 3}], s{S_T0} offen sc1")
            if o.trace:
                e("s_mov_b32 s91, s92")
                for i in range(16):
                    e(f"v_writelane_b32 v2, s{76 + i}, {i}")
                e(f"s_add_u32 s{S_T0}, s{S_T0}, {1 << 19}")
                e(f"buffer_store_dword v2, v3, s[{S_WS}:{S_WS + 3}], s{S_T0} offen sc1")
        if o.dbgptr:
            e("s_cmp_lg_u32 s2, 0")
            e("s_cbranch_scc1 L_nodp")
            e("s_mov_b64 exec, -1")
            e("v_mov_b32 v2, 0")
            for i, r in enumerate((4, 5, 8, 9, 12, 13, 16, 17, 0, 1)):
                e(f"v_writelane_b32 v2, s{r}, {i}")
            e("v_mbcnt_lo_u32_b32 v3, -1, 0")
            e("v_lshlrev_b32 v3, 2, v3")
            e("s_mov_b64 exec, 0x3ff")
            e(f"buffer_store_dword v2, v3, s[{S_DBG}:{S_DBG + 3}], 0 offen offset:8")
            e("L_nodp:")
        if o.probe:
            idx, K = [int(v) for v in o.probe.split(",")]
            if idx == -2:
                e("s_getreg_b32 s94, hwreg(HW_REG_XCC_ID)")
                e("s_xor_b32 s94, s94, s2")
                e("s_and_b32 s94, s94, 7")
                e("s_cbranch_scc0 L_end")
            elif idx == -3:
                e("s_cmp_lg_u32 s2, 0")
                e("s_cbranch_scc1 L_end")
            else:
                e("s_cmp_lg_u32 s2, 0")
                e("s_cbranch_scc1 L_end")
            e(f"s_cmp_lg_u32 s{S_WAVE}, 0")
            e("s_cbranch_scc1 L_end")
            if idx <= -10:
                e(f"s_bfe_u32 s94, s{-idx - 10}, {(7 << 16)} + {K}")
                e("s_mul_i32 s96, s94, 200")
                e("s_add_u32 s96, s96, 5000")
            elif idx == -3:
                e("s_getreg_b32 s94, hwreg(HW_REG_XCC_ID)")
                e("s_and_b32 s94, s94, 7")
                e(f"s_mul_i32 s96, s94, {K}")
                e("s_add_u32 s96, s96, 5000")
            elif idx < 0:
                e(f"s_mov_b32 s96, {K}")
            else:
                e(f"s_sub_u32 s96, s{S_STAMP + 2 * idx}, s{S_STAMP}")
                e(f"s_mul_i32 s96, s96, {K}")
            e("s_min_u32 s96, s96, 200000")
            e("L_probe:")
            e("s_memrealtime s[98:99]")
            e("s_waitcnt lgkmcnt(0)")
            e(f"s_sub_u32 s98, s98, s{S_STAMP}")
            e("s_cmp_lt_u32 s98, s96")
            e("s_cbranch_scc1 L_probe")
        e("L_end:")
        e("s_endpgm")

        e("L_role:")
        e("s_load_dwordx4 s[44:47], s[0:1], 32")
        e(f"s_cmp_eq_u32 s2, {NVOTE_WG}")
        e("s_cbranch_scc1 L_tag")
        e(f"s_sub_u32 s{S_T1}, s{S_OUT}, s{S_X}")
        e(f"s_add_u32 s{S_T1}, s{S_T1}, 2048")
        e(f"s_bitcmp1_b32 s{S_T1}, 12")
        e(f"s_cselect_b32 s{S_V}, {o.quorum}, {o.quorum4}")
        e(f"s_cselect_b32 s{S_V + 1}, 8, 0")
        e(f"s_or_b32 s{S_V + 1}, s{S_V + 1}, s2")
        e(f"s_bitcmp1_b32 s{S_V + 1}, 3")
        e(f"s_cselect_b64 s[{S_W}:{S_W + 1}], s[8:9], s[4:5]")
        e(f"s_bfe_u32 s{S_T1}, s2, 0x10004")
        e(f"s_lshl3_add_u32 s{S_T1}, s{S_T1}, 8")
        e(f"s_and_b32 s{S_T2}, s2, 7")
        e(f"s_add_u32 s{S_T1}, s{S_T1}, s{S_T2}")
        e(f"s_lshl_b32 s{S_T1}, s{S_T1}, 22")
        e(f"s_add_u32 s{S_T0}, s{S_T0}, s{S_T1}")
        e(f"s_and_b32 s{S_T1}, s2, 15")
        e(f"s_mulk_i32 s{S_T1}, {16384 + 512}")
        e(f"s_add_u32 s{S_T0}, s{S_T0}, s{S_T1}")
        e(f"s_add_u32 s{S_T1}, s{S_T0}, 8192")
        self.stamp(1, True)
        e(f"s_load_dword s42, s[{S_W}:{S_W + 1}], s{S_T0} glc")
        e(f"s_load_dword s43, s[{S_W}:{S_W + 1}], s{S_T1} glc")
        e(f"s_mov_b32 s{S_CNT}, {-(NRACE // 2)}")
        for k in range(NRACE):
            e("s_waitcnt lgkmcnt(0)")
            if k < 2:
                self.stamp(2 + k, True)
                if o.vdiag:
                    e("s_waitcnt lgkmcnt(0)")
            first, second = (S_T0, S_T1) if k % 2 == 0 else (S_T1, S_T0)
            e(f"s_load_dword s42, s[{S_W}:{S_W + 1}], s{first} glc")
            e(f"s_load_dword s43, s[{S_W}:{S_W + 1}], s{second} glc")
            e("s_waitcnt lgkmcnt(1)")
            e("s_nop 7")
            e(f"s_getreg_b32 s{S_T2}, hwreg(HW_REG_IB_STS, 8, 4)   ; 1: the second answer is still out")
            if k % 2 == 0:
                e(f"s_xor_b32 s{S_T2}, s{S_T2}, 1")
            e(f"s_add_u32 s{S_CNT}, s{S_CNT}, s{S_T2}")
        assert NRACE % 2 == 0 and max(o.quorum, o.quorum4) * NRACE // 2 < 32 and max(o.quorum, o.quorum4) <= NVOTE_WG
        e(f"s_sub_u32 s{S_T2}, 0, s{S_CNT}")
        e(f"s_add_u32 s{S_T0}, s{S_T0}, s{S_OUT}")
        e(f"s_lshr_b32 s{S_T0}, s{S_T0}, 19")
        e(f"s_xor_b32 s{S_T0}, s{S_T0}, s2")
        e(f"s_bitcmp1_b32 s{S_T0}, 2")
        e(f"s_cselect_b32 s{S_CNT}, s{S_T2}, s{S_CNT}")
        e(f"s_bfe_u32 s{S_T0}, s{S_V + 1}, 0x20003")
        e(f"s_mul_i32 s{S_T0}, s{S_T0}, 6")
        e(f"s_add_u32 s{S_T0}, s{S_T0}, 7")
        e(f"s_lshl_b32 s{S_CNT}, s{S_CNT}, s{S_T0}")
        e(f"s_or_b32 s{S_CNT}, s{S_CNT}, 1")
        e(f"s_mov_b32 s{S_T1}, s{S_CNT}")
        self.stamp(6, True)
        e(f"s_atomic_add s{S_T1}, s[44:45], {DBG_TAL} glc")
        e(f"s_add_u32 s{S_CNT}, s{S_CNT}, {sum(31 << (7 + 6 * t) for t in range(4))}")
        e("s_waitcnt lgkmcnt(0)")
        e(f"s_add_u32 s{S_T1}, s{S_T1}, s{S_CNT}")
        self.stamp(13)
        e(f"s_and_b32 s{S_T0}, s{S_T1}, 0x7f")
        e(f"s_cmp_lg_u32 s{S_T0}, s{S_V}")
        e("s_cbranch_scc1 L_stream")
        e(f"s_and_b32 s{S_T1}, s{S_T1}, {sum(32 << (7 + 6 * t) for t in range(4))}")
        e(f"s_bitset1_b32 s{S_T1}, 9")
        e("L_publish:")
        e(f"s_atomic_add s{S_T1}, s[44:45], {DBG_RES}")
        e("s_waitcnt lgkmcnt(0)")
        e("s_branch L_stream")

        e("L_tag:")
        e(f"s_mov_b32 s{S_T1}, 1")
        e("s_waitcnt lgkmcnt(0)")
        e(f"s_atomic_add s{S_T1}, s[46:47], {WS_E} glc")
        e("s_waitcnt lgkmcnt(0)")
        e(f"s_add_u32 s{S_T1}, s{S_T1}, 1")
        e(f"s_and_b32 s{S_T1}, s{S_T1}, 0xff")
        e(f"s_bitset1_b32 s{S_T1}, 8")
        self.stamp(13)
        e("s_branch L_publish")

        e("L_flush:")
        e(f"s_mov_b32 s{S_HOOK}, {SPIN}")
        e("s_mov_b32 exec_lo, -1")
        e("s_mov_b32 exec_hi, 0xffff")
        e("v_lshlrev_b32 v17, 4, v1")
        e("L_floop:")
        e(f"buffer_load_dwordx4 v[8:11], v17, s[{S_WS}:{S_WS + 3}], s{S_PO} offen sc1")
        e(f"buffer_load_dwordx4 v[12:15], v17, s[{S_WS}:{S_WS + 3}], s{S_PO} offen offset:768 sc1")
        e(f"s_sub_u32 s{S_HOOK}, s{S_HOOK}, 1")
        e("s_waitcnt vmcnt(0)")
        e(f"v_xor_b32 v16, s{S_TG[0]}, v8")
        for r in range(9, 16):
            e(f"v_bitop3_b32 v16, v16, v{r}, s{S_TG[r & 3]} bitop3:0xf6")
        e("v_and_b32 v16, 15, v16")
        e("v_cmp_ne_u32 vcc, 0, v16")
        e("s_cbranch_scc1 L_fdone")
        e("s_cbranch_vccnz L_floop")
        e("L_fdone:")
        e(f"buffer_store_dwordx4 v[8:11], v17, s[{S_WS}:{S_WS + 3}], s{S_PO} offen sc1")
        e(f"buffer_store_dwordx4 v[12:15], v17, s[{S_WS}:{S_WS + 3}], s{S_PO} offen offset:768 sc1")
        e("s_waitcnt vmcnt(0)")
        e("s_mov_b64 exec, -1")
        e(f"s_mov_b32 s{S_HOOK}, -1")
        e(f"s_setpc_b64 s[{S_RET}:{S_RET + 1}]")

        e("L_dpoll:")
        e(f"s_mov_b32 s{S_CNT}, {SPIN}")
        e(f"v_mov_b32 v{V_AT}, 0")
        e("s_mov_b64 exec, 1")
        e("L_dloop:")
        e(f"buffer_load_dword v{V_AT}, off, s[{S_DBG}:{S_DBG + 3}], 0 offset:{DBG_RES} sc1")
        e(f"s_sleep {o.dsleep}")
        e("s_waitcnt vmcnt(24)")
        e(f"v_readfirstlane_b32 s{S_T2}, v{V_AT}          ; whatever poll has landed last")
        e(f"s_sub_u32 s{S_CNT}, s{S_CNT}, 1")
        e("s_cbranch_scc1 L_dgot")
        e(f"s_andn2_b32 s{S_OFF}, {RES_OK}, s{S_T2}")
        e("s_cbranch_scc1 L_dloop")
        e("L_dgot:")
        e("s_mov_b64 exec, -1")
        e("s_branch L_decided")

    def text(self):
        out = HEADER
        out += f"; @launch grid=({NWG},1,1) block=(768,1,1) lds={L_TOTAL}\n"
        out += '.amdgcn_target "amdgcn-amd-amdhsa--gfx950"\n.text\n'
        out += f".globl {KNAME}\n.p2align 8\n.type {KNAME},@function\n{KNAME}:\n"
        out += "\n".join(self.lines) + "\n"
        out += f""".section .rodata,"a"
.p2align 6
.amdhsa_kernel {KNAME}
  .amdhsa_next_free_vgpr 168
  .amdhsa_next_free_sgpr {100 if self.o.stamps else 56}
  .amdhsa_accum_offset 168
  .amdhsa_group_segment_fixed_size 0
  .amdhsa_kernarg_size 48
  .amdhsa_user_sgpr_count 2
  .amdhsa_user_sgpr_kernarg_segment_ptr 1
  .amdhsa_system_sgpr_workgroup_id_x 1
  .amdhsa_float_denorm_mode_32 3
.end_amdhsa_kernel
"""
        return out


def main():
    p = argparse.ArgumentParser()
    p.add_argument("-o", default="standalone__channel_attn_cbam__vision.s")
    p.add_argument("--ldflags", default="nt")
    p.add_argument("--stflags", default="sc1")
    p.add_argument("--p1flags", default="sc1")
    p.add_argument("--stamps", action="store_true")
    p.add_argument("--probe", default="")
    p.add_argument("--depth", type=int, default=12)
    p.add_argument("--nrace", type=int, default=2)
    p.add_argument("--dsleep", type=int, default=8)
    p.add_argument("--trace", default="")
    p.add_argument("--nodec", action="store_true")
    p.add_argument("--vdiag", action="store_true")
    p.add_argument("--dbgptr", action="store_true")
    p.add_argument("--opp", default="8,82", type=lambda v: [int(x) for x in v.split(",")])
    p.add_argument("--quorum", type=int, default=16)
    p.add_argument("--quorum4", type=int, default=24)
    p.add_argument("--nvote", type=int, default=32)
    p.add_argument("--nagn", type=int, default=8)
    p.add_argument("--stlim", type=int, default=0)
    p.add_argument("--psc1", action="store_true")
    p.add_argument("--wpace", type=int, default=40)
    p.add_argument("--clean", default="f")
    p.add_argument("--warm", type=int, default=30)
    p.add_argument("--warmwave", type=int, default=4)
    p.add_argument("--qsleep", type=int, default=0)
    p.add_argument("--red0", type=int, default=8)
    p.add_argument("--redstep", type=int, default=2)
    p.add_argument("--off", default="", help="diagnostics: v = no votes, c = no clears, r = result not read")
    p.add_argument("--spans", default="")
    p.add_argument("--split", action="store_true")
    p.add_argument("--pfback", type=int, default=0)
    p.add_argument("--nplain", type=int, default=0)
    p.add_argument("--wb", default="", help="minwave,wglimit,pos")
    p.add_argument("--thr", type=int, default=0)
    p.add_argument("--thrfrom", type=int, default=12)
    p.add_argument("--thrto", type=int, default=32)
    p.add_argument("--thrmask", default="0x55")
    p.add_argument("--zorder", default="8,0,9,1,10,2,11,3,12,4,13,5,14,6,15,7")
    o = p.parse_args()
    global NAGN, SPANS, NVOTE_WG
    NVOTE_WG = o.nvote
    NAGN = o.nagn
    if NAGN == 6:
        SPANS = [(0, 0), (0, 1), (1, 0), (1, 1), (2, 0), (2, 1),
                 (3, 0), (6, 0), (3, 1), (6, 1), (4, 0), (7, 0), (4, 1), (7, 1), (5, 0), (5, 1)]
        if o.zorder == p.get_default("zorder"):
            o.zorder = "6,0,7,8,1,9,2,10,11,3,12,4,13,14,5,15"
    if o.spans:
        SPANS = [(int(v[0]), int(v[1])) for v in o.spans.split(",")]
        assert sorted(SPANS) == [(a, b) for a in range(8) for b in range(2)]
    g = G(o)
    g.build()
    open(o.o, "w").write(g.text())


if __name__ == "__main__":
    main()
```

```python
import argparse

KNAME = "standalone__channel_attn_cbam__vision_kernel"

HEADER = """; Kernarg layout for this problem (48 bytes, ptrs only, base s[0:1]):
;   offset   0: d_in[0] x  shape=(1, 512, 512, 192) dtype=bfloat16 strides=(100663296, 196608, 384, 2) contiguous=True
;   offset   8: d_in[1] w1  shape=(192, 48) dtype=bfloat16 strides=(96, 2) contiguous=True
;   offset  16: d_in[2] w2  shape=(48, 192) dtype=bfloat16 strides=(384, 2) contiguous=True
;   offset  40: d_ws      402653184 bytes workspace (unspecified values whenever your kernel or launch list starts; a list's later launches find what earlier ones wrote)
"""

X_BYTES = 100663296
NWG = 256
NRED = 12
MiB = 1 << 20

L_RED = 0
L_H = 6144
L_DEC = 6336
L_S = 6400
L_F = 7168
L_W1 = 8192
L_W2 = L_W1 + 18432
L_SPILL = L_W2 + 18432
L_TOTAL = L_SPILL + 3 * 8192

WS_P = 0
WS_Q = 256 * 1536
WS_E = WS_Q + 8 * 3072
WS_USED = WS_E + 128
WS_STAMP = 1 << 20

S_X, S_OUT, S_WS, S_DBG, S_W = 4, 8, 12, 16, 20
S_WAVE, S_TY, S_SUB, S_OFF, S_MASK, S_CNT, S_T0, S_T1 = 28, 29, 30, 31, 32, 33, 34, 35
S_BASE, S_PM, S_P, S_T2 = 48, 49, 50, 51
S_AGN, S_RID, S_PO = 40, 42, 43
S_TG = [41, 47, 3, 0]
S_RET, S_HOOK = 44, 46
NFB = 48
S_STAMP = 52
S_V = 24

D0 = 40
SPIN = 400000
V_L, V_G0, V_G1, V_AT = 0, 39, 38, 36

NAGN = 8
SPANS = [(0, 0), (0, 1), (1, 0), (1, 1), (2, 0), (2, 1), (3, 0), (3, 1),
         (6, 0), (4, 0), (6, 1), (4, 1), (7, 0), (5, 0), (7, 1), (5, 1)]
W_ROLE = 0
DBG_RES, DBG_TAL = 0, 128
NVOTE_WG = 32
RES_OK = (1 << 9) | (1 << 8)


def mask(pred):
    return sum(1 << z for z, s in enumerate(SPANS) if pred(z, s))


class G:
    def __init__(self, o):
        self.o = o
        self.lines = []

    def e(self, s=""):
        self.lines.append(("    " + s) if s and not s.endswith(":") else s)

    def stamp(self, idx, vote=False):
        if vote == "r":
            vote = False
        if self.o.vdiag and idx in (1, 2, 3, 6) and not vote:
            return
        if vote and not self.o.vdiag:
            return
        if self.o.stamps and not (self.o.trace and idx > 10):
            self.e(f"s_memrealtime s[{S_STAMP + 2 * idx}:{S_STAMP + 2 * idx + 1}]")

    def srd(self, d, lo, nbytes):
        e = self.e
        e(f"s_mov_b64 s[{d}:{d + 1}], s[{lo}:{lo + 1}]")
        e(f"s_mov_b32 s{d + 2}, {nbytes}")
        e(f"s_mov_b32 s{d + 3}, 0x20000")

    def span_off(self, z):
        return SPANS[z][0] * 12 * MiB + SPANS[z][1] * 49152

    def mem(self, j, fn):
        e = self.e
        z, u = j >> 1, j & 1
        if z < NAGN:
            off = SPANS[z][0] * 12 * MiB + (SPANS[z][1] * 2 + u) * 12288
            if off:
                e(f"s_add_u32 s{S_OFF}, s{S_AGN}, {off}")
                fn(f"v{V_L}", f"s{S_OFF}")
            else:
                fn(f"v{V_L}", f"s{S_AGN}")
            return
        if u == 0:
            e(f"s_bitcmp1_b32 s{S_PM}, {z}")
            e(f"s_cselect_b32 s{S_P}, 24576, 0")
        e(f"s_add_u32 s{S_OFF}, s{S_BASE}, {self.span_off(z) + 12288 * u}")
        at = 2 + u
        e(f"v_xad_u32 v{at}, v{(V_G0, V_G1)[u]}, s{S_P}, v{V_L}")
        if SPANS[z] == (7, 1):
            e(f"v_add_u32 v{at}, s{S_OFF}, v{at}")
            e(f"v_subrev_u32 v{5 - at}, s{S_X + 2}, v{at}")
            e(f"v_min_u32 v{at}, v{at}, v{5 - at}             ; past the end: wrap to the rows the shift skipped")
            fn(f"v{at}", "0")
        else:
            fn(f"v{at}", f"s{S_OFF}")

    def trace(self, kind, n):
        if self.o.trace == kind:
            if n > 0:
                self.e("s_waitcnt lgkmcnt(0)")
                self.e(f"s_mov_b32 s{76 + n - 1}, s92")
            self.e("s_memrealtime s[92:93]")

    def build(self):
        o, e = self.o, self.e
        NRACE = o.nrace
        ldf = (" " + o.ldflags) if o.ldflags else ""
        stf = (" " + o.stflags) if o.stflags else ""

        self.stamp(0)
        e("s_load_dwordx2 s[4:5], s[0:1], 0          ; x")
        e("s_load_dwordx2 s[8:9], s[0:1], 24         ; out")
        e("v_readfirstlane_b32 s%d, v0" % S_WAVE)
        e("v_and_b32 v1, 63, v0                      ; lane")
        pl = (o.piece // 16).bit_length() - 1
        e(f"v_bfe_u32 v2, v0, {pl}, {6 - pl}")
        e(f"v_mul_u32_u24 v2, {3 * o.piece}, v2")
        e(f"v_and_b32 v3, {(1 << pl) - 1}, v0")
        e("s_cmpk_ge_u32 s2, %d" % NWG)
        e("s_cbranch_scc1 L_end")
        e(f"s_lshr_b32 s{S_WAVE}, s{S_WAVE}, 6")
        e(f"s_mul_i32 s{S_SUB}, s{S_WAVE}, 43")
        e(f"s_lshr_b32 s{S_SUB}, s{S_SUB}, 7")
        e(f"s_mul_i32 s{S_T0}, s{S_SUB}, {3072 // o.piece - 3}")
        e(f"s_add_u32 s{S_T0}, s{S_T0}, s{S_WAVE}        ; sub*24 + wave % 3")
        e(f"s_lshl_b32 s{S_T0}, s{S_T0}, {pl + 4}")
        e("v_lshl_add_u32 v0, v3, 4, v2")
        e(f"v_add_u32 v{V_L}, s{S_T0}, v0               ; + sub*3072 + (wave % 3)*128")
        e(f"s_and_b32 s{S_T0}, s2, 3")
        e(f"s_bfe_u32 s{S_T1}, s2, 0x10002")
        e(f"s_lshl1_add_u32 s{S_T0}, s{S_T0}, s{S_T1}")
        e(f"s_and_b32 s{S_T1}, s2, -8")
        e(f"s_add_u32 s{S_T0}, s{S_T0}, s{S_T1}")
        e(f"s_mul_i32 s{S_AGN}, s{S_T0}, 49152")
        e(f"s_mov_b32 s{S_X + 2}, {X_BYTES}")
        e(f"s_mov_b32 s{S_X + 3}, 0x20000")
        e(f"s_lshl_b32 s{S_T1}, s{S_WAVE}, 8")
        e(f"s_or_b32 s{S_T1}, s{S_T1}, s2")
        e("s_waitcnt lgkmcnt(0)")
        e(f"s_lshr_b32 s{S_T0}, s{S_OUT}, 7")
        e(f"s_mul_i32 s{S_T0}, s{S_T0}, 21              ; -43 mod 64")
        e(f"s_and_b32 s{S_T0}, s{S_T0}, 63")
        e(f"s_mulk_i32 s{S_T0}, 384")
        e(f"s_add_u32 s{S_AGN}, s{S_AGN}, s{S_T0}")
        assert W_ROLE == 0
        e(f"s_cmp_le_u32 s{S_T1}, {NVOTE_WG}              ; wave 0 of the first workgroups has a side job")
        e("s_cbranch_scc1 L_role")
        e("L_stream:")

        SUM, MAX, T = 4, 12, 20
        DEPTH = o.depth
        seq = []

        def issue(j):
            if o.cpf and j == o.cpfpos:
                e(f"s_sub_u32 s{S_T1}, s{S_T1}, 256")
                e(f"s_cmp_ge_u32 s{S_T1}, {o.cpf}")
                e("s_cbranch_scc1 L_nocpf")
                e("s_getpc_b64 s[20:21]")
                e("v_lshlrev_b32 v2, 7, v1")
                e("v_add_u32 v3, 8192, v2")
                e("v_min_u32 v3, L_codeend - L_nocpf, v3")
                e("global_load_dword v36, v2, s[20:21]")
                e("global_load_dword v37, v3, s[20:21]")
                e("L_nocpf:")
            if j == 4:
                e("s_load_dwordx4 s[36:39], s[0:1], 8        ; w1, w2")
                e(f"s_load_dwordx2 s[{S_DBG}:{S_DBG + 1}], s[0:1], 32")
                e(f"s_load_dwordx2 s[{S_WS}:{S_WS + 1}], s[0:1], 40")
                e(f"s_mov_b32 s{S_MASK}, 0xffff0000")
            if j == 2 * NAGN:
                e(f"s_mul_i32 s{S_TY}, s{S_SUB}, 3")
                e(f"s_sub_u32 s{S_TY}, s{S_WAVE}, s{S_TY}        ; ty = wave % 3")
                e(f"s_mov_b32 s{S_OUT + 2}, s{S_X + 2}")
                e(f"s_mov_b32 s{S_OUT + 3}, s{S_X + 3}")
                e(f"s_mov_b32 s{S_WS + 2}, {(2 << 20) if o.stamps else WS_USED}")
                e(f"s_mov_b32 s{S_WS + 3}, s{S_X + 3}")
                e(f"s_movk_i32 s{S_DBG + 2}, 256")
                e(f"s_mov_b32 s{S_DBG + 3}, s{S_X + 3}")
                e(f"s_movk_i32 s{S_T2}, 24576")
                e(f"v_bfe_u32 v{V_G0}, v{V_L}, 13, 1")
                e(f"v_add_u32 v{V_G1}, 12288, v{V_L}")
                e(f"v_bfe_u32 v{V_G1}, v{V_G1}, 13, 1")
                e(f"v_mul_u32_u24 v{V_G0}, s{S_T2}, v{V_G0}")
                e(f"v_mul_u32_u24 v{V_G1}, s{S_T2}, v{V_G1}")
                e(f"s_bfe_i32 s{S_PM}, s2, 0x10002              ; -side")
                e(f"s_and_b32 s{S_T0}, s{S_PM}, 49152")
                e(f"s_sub_u32 s{S_BASE}, s{S_AGN}, s{S_T0}")
                h1 = mask(lambda z, s: s[1] == 1)
                e(f"s_add_u32 s{S_T0}, s{S_BASE}, s{S_T2}")
                e(f"s_add_u32 s{S_T0}, s{S_T0}, s{S_OUT}")
                e(f"s_bfe_i32 s{S_T1}, s{S_T0}, 0x10015")
                e(f"s_xor_b32 s{S_PM}, s{S_PM}, s{S_T1}")
                e(f"s_add_u32 s{S_T2}, s{S_T0}, 49152")
                e(f"s_xor_b32 s{S_T0}, s{S_T0}, s{S_T2}")
                e(f"s_bfe_i32 s{S_T0}, s{S_T0}, 0x10015")
                e(f"s_and_b32 s{S_T0}, s{S_T0}, {h1}")
                e(f"s_xor_b32 s{S_PM}, s{S_PM}, s{S_T0}")
                m1 = mask(lambda z, s: z >= NAGN and s[0] in (3, 4))
                z50 = SPANS.index((5, 0))
                z51 = SPANS.index((5, 1))
                dec = mask(lambda z, s: z >= NAGN)
                e(f"s_cmp_lt_u32 s{S_BASE}, {4 * MiB - 24576}")
                e(f"s_cselect_b32 s{S_T0}, {1 << z50}, 0")
                e(f"s_or_b32 s{S_T0}, s{S_T0}, {m1}")
                e(f"s_cmp_lt_u32 s{S_BASE}, {4 * MiB - 24576 - 49152}")
                e(f"s_cselect_b32 s{S_T1}, {1 << z51}, 0")
                e(f"s_or_b32 s{S_T0}, s{S_T0}, s{S_T1}            ; third 1")
                e(f"s_xor_b32 s{S_T1}, s{S_T0}, {dec}           ; third 2")
                per, pat = o.opp
                rep = sum(((pat >> (i % per)) & 1) << i for i in range(32))
                e(f"s_lshr_b32 s{S_P}, s2, 3")
                e(f"s_mul_i32 s{S_T2}, s{S_P}, {-(-256 // per)}")
                e(f"s_lshr_b32 s{S_T2}, s{S_T2}, 8")
                e(f"s_mul_i32 s{S_T2}, s{S_T2}, {per}")
                e(f"s_sub_u32 s{S_P}, s{S_P}, s{S_T2}             ; (b >> 3) % {per}")
                e(f"s_lshr_b32 s{S_P}, {rep}, s{S_P}")
                e(f"s_sub_u32 s{S_T2}, s{S_OUT}, s{S_X}")
                e(f"s_add_u32 s{S_T2}, s{S_T2}, 2048")
                e(f"s_bitcmp1_b32 s{S_T2}, 12")
                e(f"s_cselect_b32 s{S_P}, 0, s{S_P}")
                e(f"s_lshr_b32 s{S_T2}, s2, 3")
                e(f"s_sub_u32 s{S_RID}, s{S_T2}, {o.red0}")
                e(f"s_and_b32 s{S_PO}, s2, 7")
                e(f"s_lshl_b32 s{S_PO}, s{S_PO}, 5")
                e(f"s_add_u32 s{S_PO}, s{S_PO}, s{S_T2}")
                e(f"s_mulk_i32 s{S_PO}, 1536")
                e("s_waitcnt lgkmcnt(0)")
                self.stamp(11)
                e("s_barrier")
                e(f"s_load_dword s{S_T2}, s[{S_DBG}:{S_DBG + 1}], {DBG_RES}")
                e("s_waitcnt lgkmcnt(0)")
                e(f"s_andn2_b32 s{S_CNT}, {RES_OK}, s{S_T2}")
                e("s_cbranch_scc1 L_dpoll")
                e("L_decided:")
                for i in range(4):
                    e(f"s_bitcmp1_b32 s{S_T2}, {7 + 6 * i + 5}")
                    e(f"s_cselect_b32 s{S_V + i}, s{(S_T0, S_T1)[i >> 1]}, 0")
                e(f"s_or_b32 s{S_V}, s{S_V}, s{S_V + 2}")
                e(f"s_or_b32 s{S_V + 1}, s{S_V + 1}, s{S_V + 3}")
                e(f"s_xor_b32 s{S_V}, s{S_V}, s{S_V + 1}")
                e(f"s_and_b32 s{S_V}, s{S_V}, s{S_P}")
                e(f"s_xor_b32 s{S_V}, s{S_V}, s{S_V + 1}")
                e(f"s_xor_b32 s{S_PM}, s{S_PM}, s{S_V}")
                e(f"s_and_b32 s{S_TG[0]}, s{S_T2}, 15")
                e(f"s_bfe_u32 s{S_TG[1]}, s{S_T2}, 0x40004")
                e(f"s_xor_b32 s{S_TG[2]}, s{S_TG[0]}, 15")
                e(f"s_xor_b32 s{S_TG[3]}, s{S_TG[1]}, 15")
                self.stamp(12)
            if j in o.xbar:
                e("s_barrier")
            if j == o.warm:
                e(f"s_cmp_lg_u32 s{S_WAVE}, {o.warmwave}")
                e("s_cbranch_scc1 L_nowarm")
                e("v_lshlrev_b32 v3, 7, v1")
                e("s_mov_b64 exec, 0xfff")
                e(f"buffer_load_dword v37, v3, s[{S_WS}:{S_WS + 3}], s{S_PO} offen")
                e("s_mov_b64 exec, -1")
                e("L_nowarm:")
            r = D0 + 4 * j
            if o.thr and j == 6:
                e(f"s_getreg_b32 s{S_T0}, hwreg(HW_REG_XCC_ID, 0, 1)")
                e(f"s_xor_b32 vcc_lo, s{S_T0}, 1")
                e("s_mov_b32 vcc_hi, 0")
            if o.thr and o.thrfrom <= j < o.thrto:
                e(f"s_cbranch_vccz L_thr{j}")
                e(f"s_waitcnt vmcnt({o.thr - 1})")
                e(f"L_thr{j}:")
            self.mem(j, lambda va, so: e(f"buffer_load_dwordx4 v[{r}:{r + 3}], {va}, s[{S_X}:{S_X + 3}], {so} offen{ldf}"))
            seq.append(j)
            if j & 1:
                self.trace("ld", j >> 1)

        def wait_for(j):
            e(f"s_waitcnt vmcnt({len(seq) - 1 - seq.index(j)})")

        nxt = 0
        for jj in range(16):
            while nxt < 32 and nxt < 2 * jj + DEPTH + 2:
                issue(nxt)
                nxt += 1
                if nxt == 32:
                    self.stamp(1)
            a, b = D0 + 8 * jj, D0 + 8 * jj + 4
            if jj == 15:
                e("v_and_b32 v2, 7, v1")
                e("v_lshlrev_b32 v2, 5, v2                   ; (l&7)*32")
                e("v_lshrrev_b32 v3, 4, v1")
                e("v_lshl_add_u32 v2, v3, 3, v2              ; + (l>>4)*8")
                e("v_bfe_u32 v3, v1, 3, 1")
                e("v_mul_u32_u24 v3, 768, v3")
                e(f"s_mul_i32 s{S_T0}, s{S_SUB}, 1536")
                e(f"s_lshl_b32 s{S_T1}, s{S_TY}, 8")
                e(f"s_add_u32 s{S_T0}, s{S_T0}, s{S_T1}")
                e(f"v_add3_u32 v2, v2, v3, s{S_T0}")
                e(f"s_mul_i32 s{S_T0}, s{S_WAVE}, 768")
                e(f"v_lshl_add_u32 v3, v1, 4, s{S_T0}")
                for r in (a, b):
                    wait_for((r - D0) // 4)
                    if r == b:
                        self.stamp(3)
                    for i in range(4):
                        t = T + 2 * i
                        e(f"v_lshlrev_b32 v{t}, 16, v{r + i}")
                        e(f"v_and_b32 v{t + 1}, s{S_MASK}, v{r + i}")
                    for i in range(8):
                        e(f"v_max_f32 v{MAX + i}, v{MAX + i}, v{T + i}")
                    for i in range(4):
                        t, s = T + 2 * i, SUM + 2 * i
                        e(f"v_pk_add_f32 v[{s}:{s + 1}], v[{s}:{s + 1}], v[{t}:{t + 1}]")
                continue
            wait_for(2 * jj + 1)
            if jj == 0:
                self.stamp(2)
            for i in range(4):
                t = T + 4 * i
                e(f"v_lshlrev_b32 v{t}, 16, v{a + i}")
                e(f"v_and_b32 v{t + 1}, s{S_MASK}, v{a + i}")
                e(f"v_lshlrev_b32 v{t + 2}, 16, v{b + i}")
                e(f"v_and_b32 v{t + 3}, s{S_MASK}, v{b + i}")
            for i in range(4):
                t = T + 4 * i
                s, m = SUM + 2 * i, MAX + 2 * i
                if jj == 0:
                    e(f"v_max_f32 v{m}, v{t}, v{t + 2}")
                    e(f"v_max_f32 v{m + 1}, v{t + 1}, v{t + 3}")
                    e(f"v_pk_add_f32 v[{s}:{s + 1}], v[{t}:{t + 1}], v[{t + 2}:{t + 3}]")
                else:
                    e(f"v_max3_f32 v{m}, v{m}, v{t}, v{t + 2}")
                    e(f"v_max3_f32 v{m + 1}, v{m + 1}, v{t + 1}, v{t + 3}")
                    e(f"v_pk_add_f32 v[{t}:{t + 1}], v[{t}:{t + 1}], v[{t + 2}:{t + 3}]")
            if jj:
                for i in range(4):
                    t = T + 4 * i
                    s = SUM + 2 * i
                    e(f"v_pk_add_f32 v[{s}:{s + 1}], v[{s}:{s + 1}], v[{t}:{t + 1}]")

        for base in (MAX, SUM):
            for i in range(4):
                e(f"v_permlane32_swap_b32 v{base + i}, v{base + 4 + i}")
        for i in range(4):
            e(f"v_max_f32 v{MAX + i}, v{MAX + i}, v{MAX + 4 + i}")
        for i in range(4):
            e(f"v_add_f32 v{SUM + i}, v{SUM + i}, v{SUM + 4 + i}")
        for i in range(2):
            e(f"v_permlane16_swap_b32 v{MAX + i}, v{MAX + 2 + i}")
        for i in range(2):
            e(f"v_permlane16_swap_b32 v{SUM + i}, v{SUM + 2 + i}")
        for i in range(2):
            e(f"v_add_f32 v{SUM + i}, v{SUM + i}, v{SUM + 2 + i}")
        for i in range(2):
            e(f"v_max_f32 v{MAX + i}, v{MAX + i}, v{MAX + 2 + i}")
        e(f"s_cmp_ge_u32 s{S_WAVE}, 2")
        for i in range(2):
            e(f"v_add_f32_dpp v{SUM + i}, v{SUM + i}, v{SUM + i} row_ror:8 row_mask:0xf bank_mask:0x3")
        for i in range(2):
            e(f"v_max_f32_dpp v{SUM + i}, v{MAX + i}, v{MAX + i} row_ror:8 row_mask:0xf bank_mask:0xc")
        e(f"ds_write_b64 v2, v[{SUM}:{SUM + 1}] offset:{L_RED}")
        e("s_waitcnt lgkmcnt(0)")
        e("s_barrier")
        self.stamp(4)
        e("s_cbranch_scc1 L_nopub")

        e("s_mov_b32 exec_hi, 0xffff")
        for k in range(4):
            e(f"ds_read_b128 v[{4 + 4 * k}:{7 + 4 * k}], v3 offset:{L_RED + 1536 * k}")
        e(f"s_cmp_eq_u32 s{S_WAVE}, 0")
        e(f"s_cselect_b64 s[{S_W}:{S_W + 1}], s[36:37], s[38:39]")
        e("s_cbranch_scc0 L_pubmax")
        e("s_waitcnt lgkmcnt(2)")
        e("v_pk_add_f32 v[4:5], v[4:5], v[8:9]")
        e("v_pk_add_f32 v[6:7], v[6:7], v[10:11]")
        e("s_waitcnt lgkmcnt(0)")
        e("v_pk_add_f32 v[12:13], v[12:13], v[16:17]")
        e("v_pk_add_f32 v[14:15], v[14:15], v[18:19]")
        e("v_pk_add_f32 v[4:5], v[4:5], v[12:13]")
        e("v_pk_add_f32 v[6:7], v[6:7], v[14:15]")
        e("s_branch L_pub")
        e("L_pubmax:")
        e("s_waitcnt lgkmcnt(1)")
        for i in range(4):
            e(f"v_max3_f32 v{4 + i}, v{4 + i}, v{8 + i}, v{12 + i}")
        e("s_waitcnt lgkmcnt(0)")
        for i in range(4):
            e(f"v_max_f32 v{4 + i}, v{4 + i}, v{16 + i}")
        e("L_pub:")
        for i in range(4):
            e(f"v_and_or_b32 v{4 + i}, v{4 + i}, -16, s{S_TG[i]}")
        e(f"buffer_store_dwordx4 v[4:7], v3, s[{S_WS}:{S_WS + 3}], s{S_PO} offen{' sc1' if o.psc1 else ''}")
        e("s_mov_b64 exec, -1")
        e(f"s_movk_i32 s{S_W + 2}, 18432")
        e(f"s_mov_b32 s{S_W + 3}, 0x20000")
        e(f"s_mul_i32 s{S_T0}, s{S_WAVE}, 18432")
        e(f"s_addk_i32 s{S_T0}, {L_W1}")
        e(f"s_mov_b32 s{S_T1}, 0")
        e("v_lshlrev_b32 v2, 4, v1")
        e("L_wloop:")
        e(f"s_add_u32 m0, s{S_T0}, s{S_T1}")
        e(f"s_cmp_ge_u32 s{S_RID}, {NRED}")
        for k in range(3):
            e(f"buffer_load_dwordx4 v2, s[{S_W}:{S_W + 3}], s{S_T1} offen offset:{k * 1024} lds")
        e("s_cbranch_scc1 L_wnext")
        e(f"s_waitcnt vmcnt({o.wpace})")
        e("L_wnext:")
        e(f"s_addk_i32 s{S_T1}, 3072")
        e(f"s_cmp_lt_u32 s{S_T1}, 18432")
        e("s_cbranch_scc1 L_wloop")
        e("L_nopub:")

        B2 = 28
        V_H0, V_H1, V_SW, V_SR, V_Q = 24, 25, 26, 27, 37
        SP0 = 136
        A1 = 144
        B1 = [4, 8, 12, 16, 136, 140]
        e("v_lshrrev_b32 v20, 4, v1                  ; q")
        e(f"s_mov_b32 s{S_HOOK}, {SPIN - NFB}")
        e(f"s_cmp_lt_u32 s{S_WAVE}, 3")
        e("s_cbranch_scc1 L_spill")
        e(f"s_cmp_ge_u32 s{S_RID}, {NRED}")
        e("s_cbranch_scc1 L_barw")
        e(f"s_cmp_lg_u32 s{S_WAVE}, 3")
        e("s_cbranch_scc1 L_barw")

        def clean(lbl, d, a):
            e(f"s_cmp_lg_u32 s{S_WAVE}, 3")
            e(f"s_cbranch_scc1 {lbl}")
            for i in range(4):
                e(f"v_mov_b32 v{d + i}, 0")
            e(f"v_lshlrev_b32 v{a}, 4, v1")
            e("s_mov_b32 exec_hi, 0xffff")
            e(f"buffer_store_dwordx4 v[{d}:{d + 3}], v{a}, s[{S_WS}:{S_WS + 3}], s{S_PO} offen sc1")
            e(f"buffer_store_dwordx4 v[{d}:{d + 3}], v{a}, s[{S_WS}:{S_WS + 3}], s{S_PO} offen offset:768 sc1")
            e("s_mov_b64 exec, -1")

        def hook(lbl):
            e(f"s_cmp_lg_u32 s{S_CNT}, s{S_HOOK}")
            e(f"s_cbranch_scc1 {lbl}")
            e(f"s_call_b64 s[{S_RET}:{S_RET + 1}], L_flush")
            e(f"{lbl}:")

        e("v_lshrrev_b32 v2, 3, v1")
        e("v_mul_u32_u24 v2, 1536, v2")
        e("v_and_b32 v3, 7, v1")
        e(f"v_lshl_add_u32 v{V_Q}, v3, 4, v2")
        e(f"s_and_b32 s{S_T0}, s2, 7")
        e(f"s_mul_i32 s{S_V}, s{S_T0}, {32 * 1536}")
        e(f"s_lshl_b32 s{S_T1}, s{S_RID}, 7")
        e(f"s_add_u32 s{S_V}, s{S_V}, s{S_T1}")
        for k in range(1, 4):
            e(f"s_add_u32 s{S_V + k}, s{S_V}, {k * 8 * 1536}")
        e(f"s_mulk_i32 s{S_T0}, 3072")
        e(f"s_lshl1_add_u32 s{S_T1}, s{S_T1}, s{S_T0}")
        e(f"s_add_u32 s{S_T1}, s{S_T1}, {WS_Q}")
        e("v_lshlrev_b32 v3, 2, v1")
        e("v_lshl_add_u32 v3, v20, 6, v3             ; (l>>4)*128 + (l&15)*4")
        e(f"s_lshl4_add_u32 s{S_T0}, s{S_TG[1]}, s{S_TG[0]}")
        e(f"s_xor_b32 s{S_CNT}, s{S_T0}, 0xff")
        e(f"s_lshl_b32 s{S_CNT}, s{S_CNT}, 8")
        e(f"s_or_b32 s{S_T0}, s{S_T0}, s{S_CNT}")
        e("v_and_b32 v2, 12, v3")
        e(f"v_bfe_u32 v23, s{S_T0}, v2, 4")
        e(f"s_mov_b32 s{S_CNT}, {SPIN}")
        e("L_rpoll:")
        hook("L_rnohook")
        for k in range(4):
            e(f"buffer_load_dwordx4 v[{4 + 4 * k}:{7 + 4 * k}], v{V_Q}, s[{S_WS}:{S_WS + 3}], s{S_V + k} offen sc1")
        e(f"s_sub_u32 s{S_CNT}, s{S_CNT}, 1")
        e("s_cbranch_scc1 L_rgot")
        for k in range(4):
            e(f"s_waitcnt vmcnt({3 - k})")
            for i in range(4):
                r, acc = 4 + 4 * k + i, 21 + (i & 1)
                if k == 0 and i < 2:
                    e(f"v_xor_b32 v{acc}, s{S_TG[i]}, v{r}")
                else:
                    e(f"v_bitop3_b32 v{acc}, v{acc}, v{r}, s{S_TG[i]} bitop3:0xf6   ; a | (b ^ c)")
        e("v_bitop3_b32 v21, v21, v22, 15 bitop3:0xa8          ; (a | b) & c")
        e("v_cmp_ne_u32 vcc, 0, v21")
        e("s_wqm_b64 exec, vcc                       ; 64-byte units still waiting poll again")
        e("s_cbranch_scc1 L_rpoll")
        e("L_rgot:")
        e("s_mov_b64 exec, -1")
        e("s_waitcnt vmcnt(0)")
        self.stamp(1, "r")
        e(f"s_cmp_ge_u32 s{S_RID}, 6")
        e("s_cbranch_scc1 L_rmax")
        for kind in (0, 1):
            op = "v_add_f32" if kind == 0 else "v_max_f32"
            if kind == 1:
                e("L_rmax:")
                for i in range(4):
                    e(f"v_max3_f32 v{4 + i}, v{4 + i}, v{8 + i}, v{12 + i}")
                for i in (0, 2, 1, 3):
                    e(f"v_max_f32 v{4 + i}, v{4 + i}, v{16 + i}")
            else:
                e("v_pk_add_f32 v[4:5], v[4:5], v[8:9]")
                e("v_pk_add_f32 v[6:7], v[6:7], v[10:11]")
                e("v_pk_add_f32 v[12:13], v[12:13], v[16:17]")
                e("v_pk_add_f32 v[14:15], v[14:15], v[18:19]")
                e("v_pk_add_f32 v[4:5], v[4:5], v[12:13]")
                e("v_pk_add_f32 v[6:7], v[6:7], v[14:15]")
                e("s_nop 0")
            e(f"{op}_dpp v4, v4, v4 row_ror:8 row_mask:0xf bank_mask:0x3")
            if kind == 0:
                e(f"{op}_dpp v5, v5, v5 row_ror:8 row_mask:0xf bank_mask:0x3")
                e(f"{op}_dpp v4, v6, v6 row_ror:8 row_mask:0xf bank_mask:0xc")
            else:
                e(f"{op}_dpp v4, v6, v6 row_ror:8 row_mask:0xf bank_mask:0xc")
                e(f"{op}_dpp v5, v5, v5 row_ror:8 row_mask:0xf bank_mask:0x3")
            e(f"{op}_dpp v5, v7, v7 row_ror:8 row_mask:0xf bank_mask:0xc")
            e("s_nop 1")
            e("v_permlane16_swap_b32 v4, v5")
            e(f"{op} v4, v4, v5")
            e("v_mov_b32 v5, v4")
            e("s_nop 1")
            e("v_permlane32_swap_b32 v4, v5")
            e(f"{op} v4, v4, v5                        ; lane 16a+8b+c: element 2b+a of piece c")
            if kind == 0:
                e("s_branch L_rpub")
        e("L_rpub:")
        e("s_mov_b32 exec_hi, 0")
        e("v_and_or_b32 v4, v4, -16, v23")
        e(f"buffer_store_dword v4, v3, s[{S_WS}:{S_WS + 3}], s{S_T1} offen sc1")
        self.stamp(9)
        e("s_mov_b64 exec, -1")
        if o.clean == "r":
            for i in range(4):
                e(f"v_mov_b32 v{8 + i}, 0")
            for k in range(4):
                e(f"buffer_store_dwordx4 v[8:11], v{V_Q}, s[{S_WS}:{S_WS + 3}], s{S_V + k} offen sc1")
        e("s_barrier")
        e("s_branch L_afterw")

        e("L_spill:")
        e(f"s_lshl_b32 s{S_T0}, s{S_WAVE}, 13")
        e(f"v_lshl_add_u32 v{V_AT}, v1, 4, s{S_T0}")
        for k in range(8):
            e(f"ds_write_b128 v{V_AT}, v[{SP0 + 4 * k}:{SP0 + 4 * k + 3}] offset:{L_SPILL + 1024 * k}")
        e("L_barw:")
        e("s_waitcnt vmcnt(0) lgkmcnt(0)")
        e("s_barrier")
        e("L_afterw:")
        e("v_bfe_u32 v3, v1, 2, 2")
        e("v_lshl_add_u32 v21, v20, 3, v3            ; row")
        e("v_and_b32 v22, 15, v21                    ; row of the half step (q&1)")
        e("v_and_b32 v3, 3, v1")
        e(f"s_lshl_b32 s{S_T2}, s{S_WAVE}, 5")
        e(f"v_lshl_add_u32 v23, v3, 3, s{S_T2}")
        e("v_mov_b32 v3, 384")
        e("v_mad_u32_u24 v2, v21, v3, v23")
        e("v_mad_u32_u24 v22, v22, v3, v23")
        e(f"ds_read_b64_tr_b16 v[{B2}:{B2 + 1}], v2 offset:{L_W2}")
        e(f"ds_read_b64_tr_b16 v[{B2 + 2}:{B2 + 3}], v2 offset:{L_W2 + 4 * 384}")
        e(f"ds_read_b64_tr_b16 v[{B2 + 4}:{B2 + 5}], v22 offset:{L_W2 + 32 * 384}")
        e(f"ds_read_b64_tr_b16 v[{B2 + 6}:{B2 + 7}], v22 offset:{L_W2 + 36 * 384}")
        e("v_and_b32 v2, 1, v1")
        e("v_mul_u32_u24 v22, 96, v2")
        e(f"v_lshl_add_u32 v{V_H0}, v20, 4, v22")
        e("v_and_b32 v3, 1, v20")
        e(f"v_lshl_add_u32 v{V_H1}, v3, 4, v22")
        e(f"s_lshl_b32 s{S_T0}, s{S_WAVE}, 6")
        e(f"v_lshl_add_u32 v{V_SW}, v1, 2, s{S_T0}")
        e("v_and_b32 v3, 7, v1")
        e(f"s_lshl_b32 s{S_T0}, s{S_TY}, 8")
        e(f"v_lshl_add_u32 v{V_SR}, v3, 5, s{S_T0}")
        e("s_waitcnt lgkmcnt(0)")
        e("s_mov_b32 exec_lo, 0")
        for i in range(4):
            e(f"v_mov_b32 v{B2 + 4 + i}, 0")
        e("s_mov_b64 exec, -1")
        e(f"s_cmp_ge_u32 s{S_WAVE}, 3")
        e("s_cbranch_scc1 L_noa1")
        e("v_mov_b32 v3, 96")
        e("v_mad_u32_u24 v2, v21, v3, v23")
        for s in range(6):
            for h in range(2):
                r = A1 + 4 * s + 2 * h
                e(f"ds_read_b64_tr_b16 v[{r}:{r + 1}], v2 offset:{L_W1 + s * 3072 + h * 384}")
        e("L_noa1:")
        e(f"v_lshl_add_u32 v3, v20, 3, v22")
        e(f"v_add_u32 v3, s{S_T2}, v3")
        e("v_lshlrev_b32 v2, 2, v22")
        e("v_lshl_add_u32 v2, v20, 4, v2")
        e("v_and_b32 v8, 1, v1")
        e("v_lshlrev_b32 v8, 4, v8")
        e("v_lshl_add_u32 v8, v20, 2, v8")
        e("v_and_b32 v9, 2, v1")
        e("v_bfe_u32 v10, v1, 2, 1")
        e("v_add3_u32 v8, v8, v9, v10")
        e(f"v_add_lshl_u32 v23, v8, s{S_T2}, 1")
        e("v_lshrrev_b32 v8, 3, v1")
        e("v_mul_u32_u24 v8, 3072, v8")
        e("v_lshl_add_u32 v8, v10, 7, v8")
        e("v_and_b32 v9, 3, v1")
        e(f"v_lshl_add_u32 v{V_Q}, v9, 4, v8")
        e(f"s_lshl_b32 s{S_T1}, s{S_WAVE}, 8")
        e(f"s_add_u32 s{S_T1}, s{S_T1}, {WS_Q}")
        e(f"s_mov_b32 s{S_CNT}, {SPIN}")
        e(f"s_cmp_ge_u32 s{S_WAVE}, 6")
        e("s_cbranch_scc1 L_qpoll1")

        for kind in (0, 1):
            op = "v_add_f32" if kind == 0 else "v_max_f32"
            e(f"L_qpoll{kind}:")
            hook(f"L_qnohook{kind}")
            e(f"buffer_load_dwordx4 v[4:7], v{V_Q}, s[{S_WS}:{S_WS + 3}], s{S_T1} offen sc1")
            e(f"s_sub_u32 s{S_CNT}, s{S_CNT}, 1")
            e(f"s_cbranch_scc1 L_qgot{kind}")
            if o.qsleep:
                e(f"s_sleep {o.qsleep}")
            e("s_waitcnt vmcnt(0)")
            e(f"v_xor_b32 v21, s{S_TG[0]}, v4")
            e(f"v_xor_b32 v22, s{S_TG[1]}, v5")
            e(f"v_bitop3_b32 v21, v21, v6, s{S_TG[2]} bitop3:0xf6")
            e(f"v_bitop3_b32 v22, v22, v7, s{S_TG[3]} bitop3:0xf6")
            e("v_bitop3_b32 v21, v21, v22, 15 bitop3:0xa8")
            e("v_cmp_ne_u32 vcc, 0, v21")
            e("s_wqm_b64 exec, vcc")
            e(f"s_cbranch_scc1 L_qpoll{kind}")
            e(f"L_qgot{kind}:")
            e("s_mov_b64 exec, -1")
            e("s_waitcnt vmcnt(0)")
            self.stamp(5)
            e("v_permlane32_swap_b32 v4, v6")
            e("v_permlane32_swap_b32 v5, v7")
            e(f"{op} v4, v4, v6")
            e(f"{op} v5, v5, v7")
            e("s_nop 1")
            e("v_permlane16_swap_b32 v4, v5")
            e(f"{op} v4, v4, v5")
            e(f"s_cmp_ge_u32 s{S_WAVE}, 3")
            e("s_nop 0")
            e(f"{op}_dpp v4, v4, v4 row_ror:8 row_mask:0xf bank_mask:0xf")
            if kind == 0:
                e("v_mul_f32 v4, 0x36800000, v4              ; 1/262144")
            e("v_cvt_pk_bf16_f32 v4, v4, v4")
            e(f"ds_write_b16 v23, v4 offset:{L_F}")
            e("s_waitcnt lgkmcnt(0)")
            e("s_barrier")
            if kind == 0:
                e("s_cbranch_scc0 L_mlp1")
                if o.clean == "f":
                    clean("L_join", 16, 12)
            e("s_branch L_join")

        e("L_mlp1:")
        for s in range(6):
            e(f"ds_read_b128 v[{B1[s]}:{B1[s] + 3}], v2 offset:{L_F + 64 * s}")
        for s in range(6):
            c = "0" if s == 0 else "v[20:23]"
            b = B1[s]
            e(f"s_waitcnt lgkmcnt({5 - s})")
            e(f"v_mfma_f32_16x16x32_bf16 v[20:23], v[{A1 + 4 * s}:{A1 + 4 * s + 3}], v[{b}:{b + 3}], {c}")
        e("s_nop 3")
        e("s_mov_b32 exec_lo, 0x00030003")
        e("s_mov_b32 exec_hi, 0x00030003")
        e("s_nop 1")
        for i in range(4):
            e(f"v_maximum3_f32 v{20 + i}, v{20 + i}, 0, 0")
        e("v_cvt_pk_bf16_f32 v20, v20, v21")
        e("v_cvt_pk_bf16_f32 v21, v22, v23")
        e(f"ds_write_b64 v3, v[20:21] offset:{L_H}")
        e("s_mov_b64 exec, -1")
        e("s_waitcnt lgkmcnt(0)")

        e("L_join:")
        e("s_barrier")
        self.stamp(6)
        e(f"ds_read_b128 v[4:7], v{V_H0} offset:{L_H}")
        e(f"ds_read_b128 v[8:11], v{V_H1} offset:{L_H + 64}")
        e("s_waitcnt lgkmcnt(1)")
        e(f"v_mfma_f32_16x16x32_bf16 v[12:15], v[4:7], v[{B2}:{B2 + 3}], 0")
        e("s_waitcnt lgkmcnt(0)")
        e(f"v_mfma_f32_16x16x32_bf16 v[12:15], v[8:11], v[{B2 + 4}:{B2 + 7}], v[12:15]")
        e("s_mov_b64 exec, 0xffff")
        e("s_nop 6")
        e("v_cvt_pk_bf16_f32 v12, 0, v12")
        e("v_cvt_pk_bf16_f32 v13, 0, v13")
        e("v_add_f32 v12, v12, v13")
        e("v_cvt_pk_bf16_f32 v12, 0, v12")
        e("v_mul_f32 v12, 0xbfb8aa3b, v12            ; -log2(e)")
        e("v_exp_f32 v12, v12")
        e("s_nop 0")
        e("v_add_f32 v12, 1.0, v12")
        e("v_rcp_f32 v12, v12")
        e("s_nop 0")
        e("v_cvt_pk_bf16_f32 v12, 0, v12")
        e(f"ds_write_b32 v{V_SW}, v12 offset:{L_S}")
        e("s_mov_b64 exec, -1")
        e("s_waitcnt lgkmcnt(0)")
        e("s_barrier")
        e(f"ds_read_b128 v[4:7], v{V_SR} offset:{L_S}")
        e(f"ds_read_b128 v[8:11], v{V_SR} offset:{L_S + 16}")

        if o.stlim:
            e(f"s_cmp_lt_u32 s2, {o.stlim}")
            e(f"s_cselect_b32 s{S_OUT + 2}, s{S_OUT + 2}, 0")
        zorder = [int(v) for v in o.zorder.split(",")]
        assert sorted(zorder) == list(range(16))
        restored = False

        def wbl2():
            wv, lim, pos = [int(v) for v in o.wb.split(",")]
            e(f"s_cmp_lt_u32 s{S_WAVE}, {wv}")
            e("s_cbranch_scc1 L_nowb")
            e(f"s_cmp_ge_u32 s2, {lim}")
            e("s_cbranch_scc1 L_nowb")
            if pos == 33:
                e("s_waitcnt vmcnt(0)")
            e("buffer_wbl2 sc1")
            e("L_nowb:")
        for n, j in enumerate([2 * z + u for z in zorder for u in (0, 1)]):
            a = D0 + 4 * j
            t0 = 12 + 8 * (n & 1)
            if a >= SP0 and not restored:
                assert n > 1
                e("s_waitcnt lgkmcnt(0)")
                restored = True
            for i in range(4):
                t = t0 + 2 * i
                e(f"v_lshlrev_b32 v{t}, 16, v{a + i}")
                e(f"v_and_b32 v{t + 1}, s{S_MASK}, v{a + i}")
            if n == 0:
                e("s_waitcnt lgkmcnt(0)")
                self.stamp(7)
            for i in range(4):
                t = t0 + 2 * i
                e(f"v_pk_mul_f32 v[{t}:{t + 1}], v[{t}:{t + 1}], v[{4 + 2 * i}:{5 + 2 * i}]")
            for i in range(4):
                t = t0 + 2 * i
                e(f"v_cvt_pk_bf16_f32 v{a + i}, v{t}, v{t + 1}")
            self.mem(j, lambda va, so: e(f"buffer_store_dwordx4 v[{a}:{a + 3}], {va}, s[{S_OUT}:{S_OUT + 3}], {so} offen{'' if n >= 32 - o.nplain else stf}"))
            if n + 1 in o.sbar:
                e("s_barrier")
            if o.sthr and n >= o.sthr:
                e(f"s_waitcnt vmcnt({o.sthr - 1})")
            if o.wb and int(o.wb.split(",")[2]) == n:
                wbl2()
            if n & 1:
                self.trace("st", n >> 1)
            if n == 1:
                e(f"s_cmp_ge_u32 s{S_WAVE}, 3")
                e("s_cbranch_scc1 L_norestore")
                for k in range(8):
                    e(f"ds_read_b128 v[{SP0 + 4 * k}:{SP0 + 4 * k + 3}], v{V_AT} offset:{L_SPILL + 1024 * k}")
                e("L_norestore:")
                if o.clean == "st":
                    clean("L_noclean", 28, 32)
                    e("L_noclean:")
        if o.wb and int(o.wb.split(",")[2]) >= 32:
            wbl2()
        if o.stamps:
            self.stamp(8)
            e("s_waitcnt vmcnt(0)")
            self.stamp(10)
            e("s_getreg_b32 s94, hwreg(HW_REG_XCC_ID)")
            e("s_getreg_b32 s95, hwreg(HW_REG_HW_ID)")
            e("s_waitcnt lgkmcnt(0)")
            e("v_mov_b32 v2, 0")
            for i in range(11 if o.trace else 14):
                e(f"v_writelane_b32 v2, s{S_STAMP + 2 * i}, {i}")
            e("v_writelane_b32 v2, s94, 14")
            e("v_writelane_b32 v2, s95, 15")
            e(f"s_mul_i32 s{S_T0}, s2, 12")
            e(f"s_add_u32 s{S_T0}, s{S_T0}, s{S_WAVE}")
            e(f"s_lshl_b32 s{S_T0}, s{S_T0}, 6")
            e(f"s_add_u32 s{S_T0}, s{S_T0}, {WS_STAMP}")
            e("v_mbcnt_lo_u32_b32 v3, -1, 0")
            e("v_lshlrev_b32 v3, 2, v3")
            e("s_mov_b64 exec, 0xffff")
            e(f"buffer_store_dword v2, v3, s[{S_WS}:{S_WS + 3}], s{S_T0} offen sc1")
            if o.trace:
                e("s_mov_b32 s91, s92")
                for i in range(16):
                    e(f"v_writelane_b32 v2, s{76 + i}, {i}")
                e(f"s_add_u32 s{S_T0}, s{S_T0}, {1 << 19}")
                e(f"buffer_store_dword v2, v3, s[{S_WS}:{S_WS + 3}], s{S_T0} offen sc1")
        if o.dbgptr:
            e("s_cmp_lg_u32 s2, 0")
            e("s_cbranch_scc1 L_nodp")
            e("s_mov_b64 exec, -1")
            e("v_mov_b32 v2, 0")
            for i, r in enumerate((4, 5, 8, 9, 12, 13, 16, 17, 0, 1)):
                e(f"v_writelane_b32 v2, s{r}, {i}")
            e("v_mbcnt_lo_u32_b32 v3, -1, 0")
            e("v_lshlrev_b32 v3, 2, v3")
            e("s_mov_b64 exec, 0x3ff")
            e(f"buffer_store_dword v2, v3, s[{S_DBG}:{S_DBG + 3}], 0 offen offset:8")
            e("L_nodp:")
        if o.probe:
            idx, K = [int(v) for v in o.probe.split(",")]
            if idx == -2:
                e("s_getreg_b32 s94, hwreg(HW_REG_XCC_ID)")
                e("s_xor_b32 s94, s94, s2")
                e("s_and_b32 s94, s94, 7")
                e("s_cbranch_scc0 L_end")
            elif idx == -3:
                e("s_cmp_lg_u32 s2, 0")
                e("s_cbranch_scc1 L_end")
            else:
                e("s_cmp_lg_u32 s2, 0")
                e("s_cbranch_scc1 L_end")
            e(f"s_cmp_lg_u32 s{S_WAVE}, 0")
            e("s_cbranch_scc1 L_end")
            if idx <= -10:
                e(f"s_bfe_u32 s94, s{-idx - 10}, {(7 << 16)} + {K}")
                e("s_mul_i32 s96, s94, 200")
                e("s_add_u32 s96, s96, 5000")
            elif idx == -3:
                e("s_getreg_b32 s94, hwreg(HW_REG_XCC_ID)")
                e("s_and_b32 s94, s94, 7")
                e(f"s_mul_i32 s96, s94, {K}")
                e("s_add_u32 s96, s96, 5000")
            elif idx < 0:
                e(f"s_mov_b32 s96, {K}")
            else:
                e(f"s_sub_u32 s96, s{S_STAMP + 2 * idx}, s{S_STAMP}")
                e(f"s_mul_i32 s96, s96, {K}")
            e("s_min_u32 s96, s96, 200000")
            e("L_probe:")
            e("s_memrealtime s[98:99]")
            e("s_waitcnt lgkmcnt(0)")
            e(f"s_sub_u32 s98, s98, s{S_STAMP}")
            e("s_cmp_lt_u32 s98, s96")
            e("s_cbranch_scc1 L_probe")
        e("L_end:")
        e("s_endpgm")

        e("L_role:")
        e("s_load_dwordx4 s[44:47], s[0:1], 32")
        e(f"s_cmp_eq_u32 s2, {NVOTE_WG}")
        e("s_cbranch_scc1 L_tag")
        e(f"s_sub_u32 s{S_T1}, s{S_OUT}, s{S_X}")
        e(f"s_add_u32 s{S_T1}, s{S_T1}, 2048")
        e(f"s_bitcmp1_b32 s{S_T1}, 12")
        e(f"s_cselect_b32 s{S_V}, {o.quorum}, {o.quorum4}")
        e(f"s_cselect_b32 s{S_V + 1}, 8, 0")
        e(f"s_or_b32 s{S_V + 1}, s{S_V + 1}, s2")
        e(f"s_bitcmp1_b32 s{S_V + 1}, 3")
        e(f"s_cselect_b64 s[{S_W}:{S_W + 1}], s[8:9], s[4:5]")
        e(f"s_bfe_u32 s{S_T1}, s2, 0x10004")
        e(f"s_lshl3_add_u32 s{S_T1}, s{S_T1}, 8")
        e(f"s_and_b32 s{S_T2}, s2, 7")
        e(f"s_add_u32 s{S_T1}, s{S_T1}, s{S_T2}")
        e(f"s_lshl_b32 s{S_T1}, s{S_T1}, 22")
        e(f"s_add_u32 s{S_T0}, s{S_T0}, s{S_T1}")
        e(f"s_and_b32 s{S_T1}, s2, 15")
        e(f"s_mulk_i32 s{S_T1}, {16384 + 512}")
        e(f"s_add_u32 s{S_T0}, s{S_T0}, s{S_T1}")
        e(f"s_add_u32 s{S_T1}, s{S_T0}, 8192")
        self.stamp(1, True)
        e(f"s_load_dword s42, s[{S_W}:{S_W + 1}], s{S_T0} glc")
        e(f"s_load_dword s43, s[{S_W}:{S_W + 1}], s{S_T1} glc")
        e(f"s_mov_b32 s{S_CNT}, {-(NRACE // 2)}")
        for k in range(NRACE):
            e("s_waitcnt lgkmcnt(0)")
            if k < 2:
                self.stamp(2 + k, True)
                if o.vdiag:
                    e("s_waitcnt lgkmcnt(0)")
            first, second = (S_T0, S_T1) if k % 2 == 0 else (S_T1, S_T0)
            e(f"s_load_dword s42, s[{S_W}:{S_W + 1}], s{first} glc")
            e(f"s_load_dword s43, s[{S_W}:{S_W + 1}], s{second} glc")
            e("s_waitcnt lgkmcnt(1)")
            e("s_nop 7")
            e(f"s_getreg_b32 s{S_T2}, hwreg(HW_REG_IB_STS, 8, 4)   ; 1: the second answer is still out")
            if k % 2 == 0:
                e(f"s_xor_b32 s{S_T2}, s{S_T2}, 1")
            e(f"s_add_u32 s{S_CNT}, s{S_CNT}, s{S_T2}")
        assert NRACE % 2 == 0 and max(o.quorum, o.quorum4) * NRACE // 2 < 32 and max(o.quorum, o.quorum4) <= NVOTE_WG
        e(f"s_sub_u32 s{S_T2}, 0, s{S_CNT}")
        e(f"s_add_u32 s{S_T0}, s{S_T0}, s{S_OUT}")
        e(f"s_lshr_b32 s{S_T0}, s{S_T0}, 19")
        e(f"s_xor_b32 s{S_T0}, s{S_T0}, s2")
        e(f"s_bitcmp1_b32 s{S_T0}, 2")
        e(f"s_cselect_b32 s{S_CNT}, s{S_T2}, s{S_CNT}")
        e(f"s_bfe_u32 s{S_T0}, s{S_V + 1}, 0x20003")
        e(f"s_mul_i32 s{S_T0}, s{S_T0}, 6")
        e(f"s_add_u32 s{S_T0}, s{S_T0}, 7")
        e(f"s_lshl_b32 s{S_CNT}, s{S_CNT}, s{S_T0}")
        e(f"s_or_b32 s{S_CNT}, s{S_CNT}, 1")
        e(f"s_mov_b32 s{S_T1}, s{S_CNT}")
        self.stamp(6, True)
        e(f"s_atomic_add s{S_T1}, s[44:45], {DBG_TAL} glc")
        e(f"s_add_u32 s{S_CNT}, s{S_CNT}, {sum(31 << (7 + 6 * t) for t in range(4))}")
        e("s_waitcnt lgkmcnt(0)")
        e(f"s_add_u32 s{S_T1}, s{S_T1}, s{S_CNT}")
        self.stamp(13)
        e(f"s_and_b32 s{S_T0}, s{S_T1}, 0x7f")
        e(f"s_cmp_lg_u32 s{S_T0}, s{S_V}")
        e("s_cbranch_scc1 L_stream")
        e(f"s_and_b32 s{S_T1}, s{S_T1}, {sum(32 << (7 + 6 * t) for t in range(4))}")
        e(f"s_bitset1_b32 s{S_T1}, 9")
        e("L_publish:")
        e(f"s_atomic_add s{S_T1}, s[44:45], {DBG_RES}")
        e("s_waitcnt lgkmcnt(0)")
        e("s_branch L_stream")

        e("L_tag:")
        e(f"s_mov_b32 s{S_T1}, 1")
        e("s_waitcnt lgkmcnt(0)")
        e(f"s_atomic_add s{S_T1}, s[46:47], {WS_E} glc")
        e("s_waitcnt lgkmcnt(0)")
        e(f"s_add_u32 s{S_T1}, s{S_T1}, 1")
        e(f"s_and_b32 s{S_T1}, s{S_T1}, 0xff")
        e(f"s_bitset1_b32 s{S_T1}, 8")
        self.stamp(13)
        e("s_branch L_publish")

        e("L_flush:")
        e(f"s_mov_b32 s{S_HOOK}, {SPIN}")
        e("s_mov_b32 exec_lo, -1")
        e("s_mov_b32 exec_hi, 0xffff")
        e("v_lshlrev_b32 v17, 4, v1")
        e("L_floop:")
        e(f"buffer_load_dwordx4 v[8:11], v17, s[{S_WS}:{S_WS + 3}], s{S_PO} offen sc1")
        e(f"buffer_load_dwordx4 v[12:15], v17, s[{S_WS}:{S_WS + 3}], s{S_PO} offen offset:768 sc1")
        e(f"s_sub_u32 s{S_HOOK}, s{S_HOOK}, 1")
        e("s_waitcnt vmcnt(0)")
        e(f"v_xor_b32 v16, s{S_TG[0]}, v8")
        for r in range(9, 16):
            e(f"v_bitop3_b32 v16, v16, v{r}, s{S_TG[r & 3]} bitop3:0xf6")
        e("v_and_b32 v16, 15, v16")
        e("v_cmp_ne_u32 vcc, 0, v16")
        e("s_cbranch_scc1 L_fdone")
        e("s_cbranch_vccnz L_floop")
        e("L_fdone:")
        e(f"buffer_store_dwordx4 v[8:11], v17, s[{S_WS}:{S_WS + 3}], s{S_PO} offen sc1")
        e(f"buffer_store_dwordx4 v[12:15], v17, s[{S_WS}:{S_WS + 3}], s{S_PO} offen offset:768 sc1")
        e("s_waitcnt vmcnt(0)")
        e("s_mov_b64 exec, -1")
        e(f"s_mov_b32 s{S_HOOK}, -1")
        e(f"s_setpc_b64 s[{S_RET}:{S_RET + 1}]")

        e("L_dpoll:")
        e(f"s_mov_b32 s{S_CNT}, {SPIN}")
        e(f"v_mov_b32 v{V_AT}, 0")
        e("s_mov_b64 exec, 1")
        e("L_dloop:")
        e(f"buffer_load_dword v{V_AT}, off, s[{S_DBG}:{S_DBG + 3}], 0 offset:{DBG_RES} sc1")
        e(f"s_sleep {o.dsleep}")
        e("s_waitcnt vmcnt(24)")
        e(f"v_readfirstlane_b32 s{S_T2}, v{V_AT}          ; whatever poll has landed last")
        e(f"s_sub_u32 s{S_CNT}, s{S_CNT}, 1")
        e("s_cbranch_scc1 L_dgot")
        e(f"s_andn2_b32 s{S_OFF}, {RES_OK}, s{S_T2}")
        e("s_cbranch_scc1 L_dloop")
        e("L_dgot:")
        e("s_mov_b64 exec, -1")
        e("s_branch L_decided")

        e("L_codeend:")
        e("s_endpgm")

    def text(self):
        out = HEADER
        out += f"; @launch grid=({NWG},1,1) block=(768,1,1) lds={L_TOTAL}\n"
        out += '.amdgcn_target "amdgcn-amd-amdhsa--gfx950"\n.text\n'
        out += f".globl {KNAME}\n.p2align 8\n.type {KNAME},@function\n{KNAME}:\n"
        out += "\n".join(self.lines) + "\n"
        out += f""".section .rodata,"a"
.p2align 6
.amdhsa_kernel {KNAME}
  .amdhsa_next_free_vgpr 168
  .amdhsa_next_free_sgpr {100 if self.o.stamps else 56}
  .amdhsa_accum_offset 168
  .amdhsa_group_segment_fixed_size 0
  .amdhsa_kernarg_size 48
  .amdhsa_user_sgpr_count 2
  .amdhsa_user_sgpr_kernarg_segment_ptr 1
  .amdhsa_system_sgpr_workgroup_id_x 1
  .amdhsa_float_denorm_mode_32 3
.end_amdhsa_kernel
"""
        return out


def main():
    p = argparse.ArgumentParser()
    p.add_argument("-o", default="standalone__channel_attn_cbam__vision.s")
    p.add_argument("--ldflags", default="nt")
    p.add_argument("--stflags", default="sc1")
    p.add_argument("--p1flags", default="sc1")
    p.add_argument("--stamps", action="store_true")
    p.add_argument("--probe", default="")
    p.add_argument("--depth", type=int, default=10)
    p.add_argument("--nrace", type=int, default=2)
    p.add_argument("--dsleep", type=int, default=8)
    p.add_argument("--trace", default="")
    p.add_argument("--nodec", action="store_true")
    p.add_argument("--vdiag", action="store_true")
    p.add_argument("--dbgptr", action="store_true")
    p.add_argument("--opp", default="5,9", type=lambda v: [int(x) for x in v.split(",")])
    p.add_argument("--quorum", type=int, default=12)
    p.add_argument("--quorum4", type=int, default=24)
    p.add_argument("--nvote", type=int, default=32)
    p.add_argument("--nagn", type=int, default=6)
    p.add_argument("--stlim", type=int, default=0)
    p.add_argument("--psc1", action="store_true")
    p.add_argument("--sthr", type=int, default=0)
    p.add_argument("--sbar", default=[], type=lambda v: [int(x) for x in v.split(",")])
    p.add_argument("--piece", type=int, default=128)
    p.add_argument("--xbar", default=[24], type=lambda v: [int(x) for x in v.split(",")])
    p.add_argument("--cpf", type=int, default=0)
    p.add_argument("--cpfpos", type=int, default=0)
    p.add_argument("--wpace", type=int, default=40)
    p.add_argument("--clean", default="f")
    p.add_argument("--warm", type=int, default=30)
    p.add_argument("--warmwave", type=int, default=4)
    p.add_argument("--qsleep", type=int, default=0)
    p.add_argument("--red0", type=int, default=8)
    p.add_argument("--redstep", type=int, default=2)
    p.add_argument("--off", default="", help="diagnostics: v = no votes, c = no clears, r = result not read")
    p.add_argument("--spans", default="")
    p.add_argument("--split", action="store_true")
    p.add_argument("--pfback", type=int, default=0)
    p.add_argument("--nplain", type=int, default=0)
    p.add_argument("--wb", default="", help="minwave,wglimit,pos")
    p.add_argument("--thr", type=int, default=2)
    p.add_argument("--thrfrom", type=int, default=12)
    p.add_argument("--thrto", type=int, default=24)
    p.add_argument("--thrmask", default="0x55")
    p.add_argument("--zorder", default="8,0,9,1,10,2,11,3,12,4,13,5,14,6,15,7")
    o = p.parse_args()
    global NAGN, SPANS, NVOTE_WG
    NVOTE_WG = o.nvote
    NAGN = o.nagn
    if NAGN == 6:
        SPANS = [(0, 0), (0, 1), (1, 0), (1, 1), (2, 0), (2, 1),
                 (3, 0), (6, 0), (3, 1), (6, 1), (4, 0), (7, 0), (4, 1), (7, 1), (5, 0), (5, 1)]
        if o.zorder == p.get_default("zorder"):
            o.zorder = "6,0,7,8,1,9,2,10,11,3,12,4,13,14,5,15"
    if o.spans:
        SPANS = [(int(v[0]), int(v[1])) for v in o.spans.split(",")]
        assert sorted(SPANS) == [(a, b) for a in range(8) for b in range(2)]
    g = G(o)
    g.build()
    open(o.o, "w").write(g.text())


if __name__ == "__main__":
    main()
```

```python
import argparse

KNAME = "standalone__channel_attn_cbam__vision_kernel"

HEADER = """; Kernarg layout for this problem (48 bytes, ptrs only, base s[0:1]):
;   offset   0: d_in[0] x  shape=(1, 512, 512, 192) dtype=bfloat16 strides=(100663296, 196608, 384, 2) contiguous=True
;   offset   8: d_in[1] w1  shape=(192, 48) dtype=bfloat16 strides=(96, 2) contiguous=True
;   offset  16: d_in[2] w2  shape=(48, 192) dtype=bfloat16 strides=(384, 2) contiguous=True
;   offset  40: d_ws      402653184 bytes workspace (unspecified values whenever your kernel or launch list starts; a list's later launches find what earlier ones wrote)
"""

X_BYTES = 100663296
NWG = 256
NRED = 12
MiB = 1 << 20

L_RED = 0
L_H = 6144
L_DEC = 6336
L_S = 6400
L_F = 7168
L_W1 = 8192
L_W2 = L_W1 + 18432
L_SPILL = L_W2 + 18432
L_TOTAL = L_SPILL + 3 * 8192

WS_P = 0
WS_Q = 256 * 1536
WS_E = WS_Q + 8 * 3072
WS_USED = WS_E + 128
WS_STAMP = 1 << 20

S_X, S_OUT, S_WS, S_DBG, S_W = 4, 8, 12, 16, 20
S_WAVE, S_TY, S_SUB, S_OFF, S_MASK, S_CNT, S_T0, S_T1 = 28, 29, 30, 31, 32, 33, 34, 35
S_BASE, S_PM, S_P, S_T2 = 48, 49, 50, 51
S_AGN, S_RID, S_PO = 40, 42, 43
S_TG = [41, 47, 3, 0]
S_RET, S_HOOK = 44, 46
NFB = 48
S_STAMP = 52
S_V = 24

D0 = 40
SPIN = 400000
V_L, V_G0, V_G1, V_AT = 0, 39, 38, 36

NAGN = 8
SPANS = [(0, 0), (0, 1), (1, 0), (1, 1), (2, 0), (2, 1), (3, 0), (3, 1),
         (6, 0), (4, 0), (6, 1), (4, 1), (7, 0), (5, 0), (7, 1), (5, 1)]
W_ROLE = 0
DBG_RES, DBG_TAL = 0, 128
NVOTE_WG = 32
RES_OK = (1 << 9) | (1 << 8)


def mask(pred):
    return sum(1 << z for z, s in enumerate(SPANS) if pred(z, s))


class G:
    def __init__(self, o):
        self.o = o
        self.lines = []

    def e(self, s=""):
        self.lines.append(("    " + s) if s and not s.endswith(":") else s)

    def stamp(self, idx, vote=False):
        if self.o.clk:
            if idx in (11, 12, 13):
                return
            m = {0: 11, 7: 12, 10: 13}.get(idx)
            if m:
                self.e(f"s_memtime s[{S_STAMP + 2 * m}:{S_STAMP + 2 * m + 1}]")
        if vote == "r":
            vote = False
        if self.o.vdiag and idx in (1, 2, 3, 6) and not vote:
            return
        if vote and not self.o.vdiag:
            return
        if self.o.stamps and not (self.o.trace and idx > 10):
            self.e(f"s_memrealtime s[{S_STAMP + 2 * idx}:{S_STAMP + 2 * idx + 1}]")

    def srd(self, d, lo, nbytes):
        e = self.e
        e(f"s_mov_b64 s[{d}:{d + 1}], s[{lo}:{lo + 1}]")
        e(f"s_mov_b32 s{d + 2}, {nbytes}")
        e(f"s_mov_b32 s{d + 3}, 0x20000")

    def span_off(self, z):
        return SPANS[z][0] * 12 * MiB + SPANS[z][1] * 49152

    def mem(self, j, fn):
        e = self.e
        z, u = j >> 1, j & 1
        if z < NAGN:
            off = SPANS[z][0] * 12 * MiB + (SPANS[z][1] * 2 + u) * 12288
            if off:
                e(f"s_add_u32 s{S_OFF}, s{S_AGN}, {off}")
                fn(f"v{V_L}", f"s{S_OFF}")
            else:
                fn(f"v{V_L}", f"s{S_AGN}")
            return
        if u == 0:
            e(f"s_bitcmp1_b32 s{S_PM}, {z}")
            e(f"s_cselect_b32 s{S_P}, 24576, 0")
        e(f"s_add_u32 s{S_OFF}, s{S_BASE}, {self.span_off(z) + 12288 * u}")
        at = 2 + u
        e(f"v_xad_u32 v{at}, v{(V_G0, V_G1)[u]}, s{S_P}, v{V_L}")
        if SPANS[z] == (7, 1):
            e(f"v_add_u32 v{at}, s{S_OFF}, v{at}")
            e(f"v_subrev_u32 v{5 - at}, s{S_X + 2}, v{at}")
            e(f"v_min_u32 v{at}, v{at}, v{5 - at}             ; past the end: wrap to the rows the shift skipped")
            fn(f"v{at}", "0")
        else:
            fn(f"v{at}", f"s{S_OFF}")

    def trace(self, kind, n):
        if self.o.trace == kind:
            if n > 0:
                self.e("s_waitcnt lgkmcnt(0)")
                self.e(f"s_mov_b32 s{76 + n - 1}, s92")
            self.e("s_memrealtime s[92:93]")

    def build(self):
        o, e = self.o, self.e
        NRACE = o.nrace
        ldf = (" " + o.ldflags) if o.ldflags else ""
        stf = (" " + o.stflags) if o.stflags else ""

        self.stamp(0)
        e("s_load_dwordx2 s[4:5], s[0:1], 0          ; x")
        e("s_load_dwordx2 s[8:9], s[0:1], 24         ; out")
        e("v_readfirstlane_b32 s%d, v0" % S_WAVE)
        e("v_and_b32 v1, 63, v0                      ; lane")
        pl = (o.piece // 16).bit_length() - 1
        e(f"v_bfe_u32 v2, v0, {pl}, {6 - pl}")
        e(f"v_mul_u32_u24 v2, {3 * o.piece}, v2")
        e(f"v_and_b32 v3, {(1 << pl) - 1}, v0")
        e("s_cmpk_ge_u32 s2, %d" % NWG)
        e("s_cbranch_scc1 L_end")
        e(f"s_lshr_b32 s{S_WAVE}, s{S_WAVE}, 6")
        e(f"s_mul_i32 s{S_SUB}, s{S_WAVE}, 43")
        e(f"s_lshr_b32 s{S_SUB}, s{S_SUB}, 7")
        e(f"s_mul_i32 s{S_T0}, s{S_SUB}, {3072 // o.piece - 3}")
        e(f"s_add_u32 s{S_T0}, s{S_T0}, s{S_WAVE}        ; sub*24 + wave % 3")
        e(f"s_lshl_b32 s{S_T0}, s{S_T0}, {pl + 4}")
        e("v_lshl_add_u32 v0, v3, 4, v2")
        e(f"v_add_u32 v{V_L}, s{S_T0}, v0               ; + sub*3072 + (wave % 3)*128")
        e(f"s_and_b32 s{S_T0}, s2, 3")
        e(f"s_bfe_u32 s{S_T1}, s2, 0x10002")
        e(f"s_lshl1_add_u32 s{S_T0}, s{S_T0}, s{S_T1}")
        e(f"s_and_b32 s{S_T1}, s2, -8")
        e(f"s_add_u32 s{S_T0}, s{S_T0}, s{S_T1}")
        e(f"s_mul_i32 s{S_AGN}, s{S_T0}, 49152")
        e(f"s_mov_b32 s{S_X + 2}, {X_BYTES}")
        e(f"s_mov_b32 s{S_X + 3}, 0x20000")
        e(f"s_lshl_b32 s{S_T1}, s{S_WAVE}, 8")
        e(f"s_or_b32 s{S_T1}, s{S_T1}, s2")
        e("s_waitcnt lgkmcnt(0)")
        e(f"s_lshr_b32 s{S_T0}, s{S_OUT}, 7")
        e(f"s_mul_i32 s{S_T0}, s{S_T0}, 21              ; -43 mod 64")
        e(f"s_and_b32 s{S_T0}, s{S_T0}, 63")
        e(f"s_mulk_i32 s{S_T0}, 384")
        e(f"s_add_u32 s{S_AGN}, s{S_AGN}, s{S_T0}")
        assert W_ROLE == 0
        e(f"s_cmp_le_u32 s{S_T1}, {NVOTE_WG}              ; wave 0 of the first workgroups has a side job")
        e("s_cbranch_scc1 L_role")
        e("L_stream:")

        SUM, MAX, T = 4, 12, 20
        DEPTH = o.depth
        seq = []

        def issue(j):
            if o.cpf and j == o.cpfpos:
                e(f"s_sub_u32 s{S_T1}, s{S_T1}, 256")
                e(f"s_cmp_ge_u32 s{S_T1}, {o.cpf}")
                e("s_cbranch_scc1 L_nocpf")
                e("s_getpc_b64 s[20:21]")
                e("v_lshlrev_b32 v2, 7, v1")
                e("v_add_u32 v3, 8192, v2")
                e("v_min_u32 v3, L_codeend - L_nocpf, v3")
                e("global_load_dword v36, v2, s[20:21]")
                e("global_load_dword v37, v3, s[20:21]")
                e("L_nocpf:")
            if j == 4:
                e("s_load_dwordx4 s[36:39], s[0:1], 8        ; w1, w2")
                e(f"s_load_dwordx2 s[{S_DBG}:{S_DBG + 1}], s[0:1], 32")
                e(f"s_load_dwordx2 s[{S_WS}:{S_WS + 1}], s[0:1], 40")
                e(f"s_mov_b32 s{S_MASK}, 0xffff0000")
            if j == 2 * NAGN:
                e(f"s_mul_i32 s{S_TY}, s{S_SUB}, 3")
                e(f"s_sub_u32 s{S_TY}, s{S_WAVE}, s{S_TY}        ; ty = wave % 3")
                e(f"s_mov_b32 s{S_OUT + 2}, s{S_X + 2}")
                e(f"s_mov_b32 s{S_OUT + 3}, s{S_X + 3}")
                e(f"s_mov_b32 s{S_WS + 2}, {(2 << 20) if o.stamps else WS_USED}")
                e(f"s_mov_b32 s{S_WS + 3}, s{S_X + 3}")
                e(f"s_movk_i32 s{S_DBG + 2}, 256")
                e(f"s_mov_b32 s{S_DBG + 3}, s{S_X + 3}")
                e(f"s_movk_i32 s{S_T2}, 24576")
                e(f"v_bfe_u32 v{V_G0}, v{V_L}, 13, 1")
                e(f"v_add_u32 v{V_G1}, 12288, v{V_L}")
                e(f"v_bfe_u32 v{V_G1}, v{V_G1}, 13, 1")
                e(f"v_mul_u32_u24 v{V_G0}, s{S_T2}, v{V_G0}")
                e(f"v_mul_u32_u24 v{V_G1}, s{S_T2}, v{V_G1}")
                e(f"s_bfe_i32 s{S_PM}, s2, 0x10002              ; -side")
                e(f"s_and_b32 s{S_T0}, s{S_PM}, 49152")
                e(f"s_sub_u32 s{S_BASE}, s{S_AGN}, s{S_T0}")
                h1 = mask(lambda z, s: s[1] == 1)
                e(f"s_add_u32 s{S_T0}, s{S_BASE}, s{S_T2}")
                e(f"s_add_u32 s{S_T0}, s{S_T0}, s{S_OUT}")
                e(f"s_bfe_i32 s{S_T1}, s{S_T0}, 0x10015")
                e(f"s_xor_b32 s{S_PM}, s{S_PM}, s{S_T1}")
                e(f"s_add_u32 s{S_T2}, s{S_T0}, 49152")
                e(f"s_xor_b32 s{S_T0}, s{S_T0}, s{S_T2}")
                e(f"s_bfe_i32 s{S_T0}, s{S_T0}, 0x10015")
                e(f"s_and_b32 s{S_T0}, s{S_T0}, {h1}")
                e(f"s_xor_b32 s{S_PM}, s{S_PM}, s{S_T0}")
                m1 = mask(lambda z, s: z >= NAGN and s[0] in (3, 4))
                z50 = SPANS.index((5, 0))
                z51 = SPANS.index((5, 1))
                dec = mask(lambda z, s: z >= NAGN)
                e(f"s_cmp_lt_u32 s{S_BASE}, {4 * MiB - 24576}")
                e(f"s_cselect_b32 s{S_T0}, {1 << z50}, 0")
                e(f"s_or_b32 s{S_T0}, s{S_T0}, {m1}")
                e(f"s_cmp_lt_u32 s{S_BASE}, {4 * MiB - 24576 - 49152}")
                e(f"s_cselect_b32 s{S_T1}, {1 << z51}, 0")
                e(f"s_or_b32 s{S_T0}, s{S_T0}, s{S_T1}            ; third 1")
                e(f"s_xor_b32 s{S_T1}, s{S_T0}, {dec}           ; third 2")
                per, pat = o.opp
                rep = sum(((pat >> (i % per)) & 1) << i for i in range(32))
                e(f"s_lshr_b32 s{S_P}, s2, 3")
                e(f"s_mul_i32 s{S_T2}, s{S_P}, {-(-256 // per)}")
                e(f"s_lshr_b32 s{S_T2}, s{S_T2}, 8")
                e(f"s_mul_i32 s{S_T2}, s{S_T2}, {per}")
                e(f"s_sub_u32 s{S_P}, s{S_P}, s{S_T2}             ; (b >> 3) % {per}")
                e(f"s_lshr_b32 s{S_P}, {rep}, s{S_P}")
                e(f"s_sub_u32 s{S_T2}, s{S_OUT}, s{S_X}")
                e(f"s_add_u32 s{S_T2}, s{S_T2}, 2048")
                e(f"s_bitcmp1_b32 s{S_T2}, 12")
                e(f"s_cselect_b32 s{S_P}, 0, s{S_P}")
                e(f"s_lshr_b32 s{S_T2}, s2, 3")
                e(f"s_sub_u32 s{S_RID}, s{S_T2}, {o.red0}")
                e(f"s_and_b32 s{S_PO}, s2, 7")
                e(f"s_lshl_b32 s{S_PO}, s{S_PO}, 5")
                e(f"s_add_u32 s{S_PO}, s{S_PO}, s{S_T2}")
                e(f"s_mulk_i32 s{S_PO}, 1536")
                e("s_waitcnt lgkmcnt(0)")
                self.stamp(11)
                e("s_barrier")
                e(f"s_load_dword s{S_T2}, s[{S_DBG}:{S_DBG + 1}], {DBG_RES}")
                e("s_waitcnt lgkmcnt(0)")
                e(f"s_andn2_b32 s{S_CNT}, {RES_OK}, s{S_T2}")
                e("s_cbranch_scc1 L_dpoll")
                e("L_decided:")
                for i in range(4):
                    e(f"s_bitcmp1_b32 s{S_T2}, {7 + 6 * i + 5}")
                    e(f"s_cselect_b32 s{S_V + i}, s{(S_T0, S_T1)[i >> 1]}, 0")
                e(f"s_or_b32 s{S_V}, s{S_V}, s{S_V + 2}")
                e(f"s_or_b32 s{S_V + 1}, s{S_V + 1}, s{S_V + 3}")
                e(f"s_xor_b32 s{S_V}, s{S_V}, s{S_V + 1}")
                e(f"s_and_b32 s{S_V}, s{S_V}, s{S_P}")
                e(f"s_xor_b32 s{S_V}, s{S_V}, s{S_V + 1}")
                e(f"s_xor_b32 s{S_PM}, s{S_PM}, s{S_V}")
                e(f"s_and_b32 s{S_TG[0]}, s{S_T2}, 15")
                e(f"s_bfe_u32 s{S_TG[1]}, s{S_T2}, 0x40004")
                e(f"s_xor_b32 s{S_TG[2]}, s{S_TG[0]}, 15")
                e(f"s_xor_b32 s{S_TG[3]}, s{S_TG[1]}, 15")
                self.stamp(12)
            if j in o.xbar:
                e("s_barrier")
            if j == o.warm:
                e(f"s_cmp_lg_u32 s{S_WAVE}, {o.warmwave}")
                e("s_cbranch_scc1 L_nowarm")
                e("v_lshlrev_b32 v3, 7, v1")
                e("s_mov_b64 exec, 0xfff")
                e(f"buffer_load_dword v37, v3, s[{S_WS}:{S_WS + 3}], s{S_PO} offen")
                e("s_mov_b64 exec, -1")
                e("L_nowarm:")
            r = D0 + 4 * j
            if o.thr and j == 6:
                e(f"s_getreg_b32 s{S_T0}, hwreg(HW_REG_XCC_ID, 0, 1)")
                e(f"s_xor_b32 vcc_lo, s{S_T0}, 1")
                e("s_mov_b32 vcc_hi, 0")
            if o.thr and o.thrfrom <= j < o.thrto:
                e(f"s_cbranch_vccz L_thr{j}")
                e(f"s_waitcnt vmcnt({o.thr - 1})")
                e(f"L_thr{j}:")
            self.mem(j, lambda va, so: e(f"buffer_load_dwordx4 v[{r}:{r + 3}], {va}, s[{S_X}:{S_X + 3}], {so} offen{ldf}"))
            seq.append(j)
            if j & 1:
                self.trace("ld", j >> 1)

        def wait_for(j):
            e(f"s_waitcnt vmcnt({len(seq) - 1 - seq.index(j)})")

        nxt = 0
        for jj in range(16):
            while nxt < 32 and nxt < 2 * jj + DEPTH + 2:
                issue(nxt)
                nxt += 1
                if nxt == 32:
                    self.stamp(1)
            a, b = D0 + 8 * jj, D0 + 8 * jj + 4
            if jj == 15:
                e("v_and_b32 v2, 7, v1")
                e("v_lshlrev_b32 v2, 5, v2                   ; (l&7)*32")
                e("v_lshrrev_b32 v3, 4, v1")
                e("v_lshl_add_u32 v2, v3, 3, v2              ; + (l>>4)*8")
                e("v_bfe_u32 v3, v1, 3, 1")
                e("v_mul_u32_u24 v3, 768, v3")
                e(f"s_mul_i32 s{S_T0}, s{S_SUB}, 1536")
                e(f"s_lshl_b32 s{S_T1}, s{S_TY}, 8")
                e(f"s_add_u32 s{S_T0}, s{S_T0}, s{S_T1}")
                e(f"v_add3_u32 v2, v2, v3, s{S_T0}")
                e(f"s_mul_i32 s{S_T0}, s{S_WAVE}, 768")
                e(f"v_lshl_add_u32 v3, v1, 4, s{S_T0}")
                for r in (a, b):
                    wait_for((r - D0) // 4)
                    if r == b:
                        self.stamp(3)
                    for i in range(4):
                        t = T + 2 * i
                        e(f"v_lshlrev_b32 v{t}, 16, v{r + i}")
                        e(f"v_and_b32 v{t + 1}, s{S_MASK}, v{r + i}")
                    for i in range(8):
                        e(f"v_max_f32 v{MAX + i}, v{MAX + i}, v{T + i}")
                    for i in range(4):
                        t, s = T + 2 * i, SUM + 2 * i
                        e(f"v_pk_add_f32 v[{s}:{s + 1}], v[{s}:{s + 1}], v[{t}:{t + 1}]")
                continue
            wait_for(2 * jj + 1)
            if jj == 0:
                self.stamp(2)
            for i in range(4):
                t = T + 4 * i
                e(f"v_lshlrev_b32 v{t}, 16, v{a + i}")
                e(f"v_and_b32 v{t + 1}, s{S_MASK}, v{a + i}")
                e(f"v_lshlrev_b32 v{t + 2}, 16, v{b + i}")
                e(f"v_and_b32 v{t + 3}, s{S_MASK}, v{b + i}")
            for i in range(4):
                t = T + 4 * i
                s, m = SUM + 2 * i, MAX + 2 * i
                if jj == 0:
                    e(f"v_max_f32 v{m}, v{t}, v{t + 2}")
                    e(f"v_max_f32 v{m + 1}, v{t + 1}, v{t + 3}")
                    e(f"v_pk_add_f32 v[{s}:{s + 1}], v[{t}:{t + 1}], v[{t + 2}:{t + 3}]")
                else:
                    e(f"v_max3_f32 v{m}, v{m}, v{t}, v{t + 2}")
                    e(f"v_max3_f32 v{m + 1}, v{m + 1}, v{t + 1}, v{t + 3}")
                    e(f"v_pk_add_f32 v[{t}:{t + 1}], v[{t}:{t + 1}], v[{t + 2}:{t + 3}]")
            if jj:
                for i in range(4):
                    t = T + 4 * i
                    s = SUM + 2 * i
                    e(f"v_pk_add_f32 v[{s}:{s + 1}], v[{s}:{s + 1}], v[{t}:{t + 1}]")

        for base in (MAX, SUM):
            for i in range(4):
                e(f"v_permlane32_swap_b32 v{base + i}, v{base + 4 + i}")
        for i in range(4):
            e(f"v_max_f32 v{MAX + i}, v{MAX + i}, v{MAX + 4 + i}")
        for i in range(4):
            e(f"v_add_f32 v{SUM + i}, v{SUM + i}, v{SUM + 4 + i}")
        for i in range(2):
            e(f"v_permlane16_swap_b32 v{MAX + i}, v{MAX + 2 + i}")
        for i in range(2):
            e(f"v_permlane16_swap_b32 v{SUM + i}, v{SUM + 2 + i}")
        for i in range(2):
            e(f"v_add_f32 v{SUM + i}, v{SUM + i}, v{SUM + 2 + i}")
        for i in range(2):
            e(f"v_max_f32 v{MAX + i}, v{MAX + i}, v{MAX + 2 + i}")
        e(f"s_cmp_ge_u32 s{S_WAVE}, 2")
        for i in range(2):
            e(f"v_add_f32_dpp v{SUM + i}, v{SUM + i}, v{SUM + i} row_ror:8 row_mask:0xf bank_mask:0x3")
        for i in range(2):
            e(f"v_max_f32_dpp v{SUM + i}, v{MAX + i}, v{MAX + i} row_ror:8 row_mask:0xf bank_mask:0xc")
        e(f"ds_write_b64 v2, v[{SUM}:{SUM + 1}] offset:{L_RED}")
        e("s_waitcnt lgkmcnt(0)")
        e("s_barrier")
        self.stamp(4)
        e("s_cbranch_scc1 L_nopub")

        e("s_mov_b32 exec_hi, 0xffff")
        for k in range(4):
            e(f"ds_read_b128 v[{4 + 4 * k}:{7 + 4 * k}], v3 offset:{L_RED + 1536 * k}")
        e(f"s_cmp_eq_u32 s{S_WAVE}, 0")
        e(f"s_cselect_b64 s[{S_W}:{S_W + 1}], s[36:37], s[38:39]")
        e("s_cbranch_scc0 L_pubmax")
        e("s_waitcnt lgkmcnt(2)")
        e("v_pk_add_f32 v[4:5], v[4:5], v[8:9]")
        e("v_pk_add_f32 v[6:7], v[6:7], v[10:11]")
        e("s_waitcnt lgkmcnt(0)")
        e("v_pk_add_f32 v[12:13], v[12:13], v[16:17]")
        e("v_pk_add_f32 v[14:15], v[14:15], v[18:19]")
        e("v_pk_add_f32 v[4:5], v[4:5], v[12:13]")
        e("v_pk_add_f32 v[6:7], v[6:7], v[14:15]")
        e("s_branch L_pub")
        e("L_pubmax:")
        e("s_waitcnt lgkmcnt(1)")
        for i in range(4):
            e(f"v_max3_f32 v{4 + i}, v{4 + i}, v{8 + i}, v{12 + i}")
        e("s_waitcnt lgkmcnt(0)")
        for i in range(4):
            e(f"v_max_f32 v{4 + i}, v{4 + i}, v{16 + i}")
        e("L_pub:")
        for i in range(4):
            e(f"v_and_or_b32 v{4 + i}, v{4 + i}, -16, s{S_TG[i]}")
        e(f"buffer_store_dwordx4 v[4:7], v3, s[{S_WS}:{S_WS + 3}], s{S_PO} offen{' sc1' if o.psc1 else ''}")
        e("s_mov_b64 exec, -1")
        e(f"s_movk_i32 s{S_W + 2}, 18432")
        e(f"s_mov_b32 s{S_W + 3}, 0x20000")
        e(f"s_mul_i32 s{S_T0}, s{S_WAVE}, 18432")
        e(f"s_addk_i32 s{S_T0}, {L_W1}")
        e(f"s_mov_b32 s{S_T1}, 0")
        e("v_lshlrev_b32 v2, 4, v1")
        e("L_wloop:")
        e(f"s_add_u32 m0, s{S_T0}, s{S_T1}")
        e(f"s_cmp_ge_u32 s{S_RID}, {NRED}")
        for k in range(3):
            e(f"buffer_load_dwordx4 v2, s[{S_W}:{S_W + 3}], s{S_T1} offen offset:{k * 1024} lds")
        e("s_cbranch_scc1 L_wnext")
        e(f"s_waitcnt vmcnt({o.wpace})")
        e("L_wnext:")
        e(f"s_addk_i32 s{S_T1}, 3072")
        e(f"s_cmp_lt_u32 s{S_T1}, 18432")
        e("s_cbranch_scc1 L_wloop")
        e("L_nopub:")

        B2 = 28
        V_H0, V_H1, V_SW, V_SR, V_Q = 24, 25, 26, 27, 37
        SP0 = 136
        A1 = 144
        B1 = [4, 8, 12, 16, 136, 140]
        e("v_lshrrev_b32 v20, 4, v1                  ; q")
        e(f"s_mov_b32 s{S_HOOK}, {SPIN - NFB}")
        e(f"s_cmp_lt_u32 s{S_WAVE}, 3")
        e("s_cbranch_scc1 L_spill")
        e(f"s_cmp_ge_u32 s{S_RID}, {NRED}")
        e("s_cbranch_scc1 L_barw")
        e(f"s_cmp_lg_u32 s{S_WAVE}, 3")
        e("s_cbranch_scc1 L_barw")

        def clean(lbl, d, a):
            e(f"s_cmp_lg_u32 s{S_WAVE}, 3")
            e(f"s_cbranch_scc1 {lbl}")
            for i in range(4):
                e(f"v_mov_b32 v{d + i}, 0")
            e(f"v_lshlrev_b32 v{a}, 4, v1")
            e("s_mov_b32 exec_hi, 0xffff")
            e(f"buffer_store_dwordx4 v[{d}:{d + 3}], v{a}, s[{S_WS}:{S_WS + 3}], s{S_PO} offen sc1")
            e(f"buffer_store_dwordx4 v[{d}:{d + 3}], v{a}, s[{S_WS}:{S_WS + 3}], s{S_PO} offen offset:768 sc1")
            e("s_mov_b64 exec, -1")

        def hook(lbl):
            e(f"s_cmp_lg_u32 s{S_CNT}, s{S_HOOK}")
            e(f"s_cbranch_scc1 {lbl}")
            e(f"s_call_b64 s[{S_RET}:{S_RET + 1}], L_flush")
            e(f"{lbl}:")

        e("v_lshrrev_b32 v2, 3, v1")
        e("v_mul_u32_u24 v2, 1536, v2")
        e("v_and_b32 v3, 7, v1")
        e(f"v_lshl_add_u32 v{V_Q}, v3, 4, v2")
        e(f"s_and_b32 s{S_T0}, s2, 7")
        e(f"s_mul_i32 s{S_V}, s{S_T0}, {32 * 1536}")
        e(f"s_lshl_b32 s{S_T1}, s{S_RID}, 7")
        e(f"s_add_u32 s{S_V}, s{S_V}, s{S_T1}")
        for k in range(1, 4):
            e(f"s_add_u32 s{S_V + k}, s{S_V}, {k * 8 * 1536}")
        e(f"s_mulk_i32 s{S_T0}, 3072")
        e(f"s_lshl1_add_u32 s{S_T1}, s{S_T1}, s{S_T0}")
        e(f"s_add_u32 s{S_T1}, s{S_T1}, {WS_Q}")
        e("v_lshlrev_b32 v3, 2, v1")
        e("v_lshl_add_u32 v3, v20, 6, v3             ; (l>>4)*128 + (l&15)*4")
        e(f"s_lshl4_add_u32 s{S_T0}, s{S_TG[1]}, s{S_TG[0]}")
        e(f"s_xor_b32 s{S_CNT}, s{S_T0}, 0xff")
        e(f"s_lshl_b32 s{S_CNT}, s{S_CNT}, 8")
        e(f"s_or_b32 s{S_T0}, s{S_T0}, s{S_CNT}")
        e("v_and_b32 v2, 12, v3")
        e(f"v_bfe_u32 v23, s{S_T0}, v2, 4")
        e(f"s_mov_b32 s{S_CNT}, {SPIN}")
        e("L_rpoll:")
        hook("L_rnohook")
        for k in range(4):
            e(f"buffer_load_dwordx4 v[{4 + 4 * k}:{7 + 4 * k}], v{V_Q}, s[{S_WS}:{S_WS + 3}], s{S_V + k} offen sc1")
        e(f"s_sub_u32 s{S_CNT}, s{S_CNT}, 1")
        e("s_cbranch_scc1 L_rgot")
        for k in range(4):
            e(f"s_waitcnt vmcnt({3 - k})")
            for i in range(4):
                r, acc = 4 + 4 * k + i, 21 + (i & 1)
                if k == 0 and i < 2:
                    e(f"v_xor_b32 v{acc}, s{S_TG[i]}, v{r}")
                else:
                    e(f"v_bitop3_b32 v{acc}, v{acc}, v{r}, s{S_TG[i]} bitop3:0xf6   ; a | (b ^ c)")
        e("v_bitop3_b32 v21, v21, v22, 15 bitop3:0xa8          ; (a | b) & c")
        e("v_cmp_ne_u32 vcc, 0, v21")
        e("s_wqm_b64 exec, vcc                       ; 64-byte units still waiting poll again")
        e("s_cbranch_scc1 L_rpoll")
        e("L_rgot:")
        e("s_mov_b64 exec, -1")
        e("s_waitcnt vmcnt(0)")
        self.stamp(1, "r")
        e(f"s_cmp_ge_u32 s{S_RID}, 6")
        e("s_cbranch_scc1 L_rmax")
        for kind in (0, 1):
            op = "v_add_f32" if kind == 0 else "v_max_f32"
            if kind == 1:
                e("L_rmax:")
                for i in range(4):
                    e(f"v_max3_f32 v{4 + i}, v{4 + i}, v{8 + i}, v{12 + i}")
                for i in (0, 2, 1, 3):
                    e(f"v_max_f32 v{4 + i}, v{4 + i}, v{16 + i}")
            else:
                e("v_pk_add_f32 v[4:5], v[4:5], v[8:9]")
                e("v_pk_add_f32 v[6:7], v[6:7], v[10:11]")
                e("v_pk_add_f32 v[12:13], v[12:13], v[16:17]")
                e("v_pk_add_f32 v[14:15], v[14:15], v[18:19]")
                e("v_pk_add_f32 v[4:5], v[4:5], v[12:13]")
                e("v_pk_add_f32 v[6:7], v[6:7], v[14:15]")
                e("s_nop 0")
            e(f"{op}_dpp v4, v4, v4 row_ror:8 row_mask:0xf bank_mask:0x3")
            if kind == 0:
                e(f"{op}_dpp v5, v5, v5 row_ror:8 row_mask:0xf bank_mask:0x3")
                e(f"{op}_dpp v4, v6, v6 row_ror:8 row_mask:0xf bank_mask:0xc")
            else:
                e(f"{op}_dpp v4, v6, v6 row_ror:8 row_mask:0xf bank_mask:0xc")
                e(f"{op}_dpp v5, v5, v5 row_ror:8 row_mask:0xf bank_mask:0x3")
            e(f"{op}_dpp v5, v7, v7 row_ror:8 row_mask:0xf bank_mask:0xc")
            e("s_nop 1")
            e("v_permlane16_swap_b32 v4, v5")
            e(f"{op} v4, v4, v5")
            e("v_mov_b32 v5, v4")
            e("s_nop 1")
            e("v_permlane32_swap_b32 v4, v5")
            e(f"{op} v4, v4, v5                        ; lane 16a+8b+c: element 2b+a of piece c")
            if kind == 0:
                e("s_branch L_rpub")
        e("L_rpub:")
        e("s_mov_b32 exec_hi, 0")
        e("v_and_or_b32 v4, v4, -16, v23")
        e(f"buffer_store_dword v4, v3, s[{S_WS}:{S_WS + 3}], s{S_T1} offen sc1")
        self.stamp(9)
        e("s_mov_b64 exec, -1")
        if o.clean == "r":
            for i in range(4):
                e(f"v_mov_b32 v{8 + i}, 0")
            for k in range(4):
                e(f"buffer_store_dwordx4 v[8:11], v{V_Q}, s[{S_WS}:{S_WS + 3}], s{S_V + k} offen sc1")
        e("s_barrier")
        e("s_branch L_afterw")

        e("L_spill:")
        e(f"s_lshl_b32 s{S_T0}, s{S_WAVE}, 13")
        e(f"v_lshl_add_u32 v{V_AT}, v1, 4, s{S_T0}")
        for k in range(8):
            e(f"ds_write_b128 v{V_AT}, v[{SP0 + 4 * k}:{SP0 + 4 * k + 3}] offset:{L_SPILL + 1024 * k}")
        e("L_barw:")
        e("s_waitcnt vmcnt(0) lgkmcnt(0)")
        e("s_barrier")
        e("L_afterw:")
        e("v_bfe_u32 v3, v1, 2, 2")
        e("v_lshl_add_u32 v21, v20, 3, v3            ; row")
        e("v_and_b32 v22, 15, v21                    ; row of the half step (q&1)")
        e("v_and_b32 v3, 3, v1")
        e(f"s_lshl_b32 s{S_T2}, s{S_WAVE}, 5")
        e(f"v_lshl_add_u32 v23, v3, 3, s{S_T2}")
        e("v_mov_b32 v3, 384")
        e("v_mad_u32_u24 v2, v21, v3, v23")
        e("v_mad_u32_u24 v22, v22, v3, v23")
        e(f"ds_read_b64_tr_b16 v[{B2}:{B2 + 1}], v2 offset:{L_W2}")
        e(f"ds_read_b64_tr_b16 v[{B2 + 2}:{B2 + 3}], v2 offset:{L_W2 + 4 * 384}")
        e(f"ds_read_b64_tr_b16 v[{B2 + 4}:{B2 + 5}], v22 offset:{L_W2 + 32 * 384}")
        e(f"ds_read_b64_tr_b16 v[{B2 + 6}:{B2 + 7}], v22 offset:{L_W2 + 36 * 384}")
        e("v_and_b32 v2, 1, v1")
        e("v_mul_u32_u24 v22, 96, v2")
        e(f"v_lshl_add_u32 v{V_H0}, v20, 4, v22")
        e("v_and_b32 v3, 1, v20")
        e(f"v_lshl_add_u32 v{V_H1}, v3, 4, v22")
        e(f"s_lshl_b32 s{S_T0}, s{S_WAVE}, 6")
        e(f"v_lshl_add_u32 v{V_SW}, v1, 2, s{S_T0}")
        e("v_and_b32 v3, 7, v1")
        e(f"s_lshl_b32 s{S_T0}, s{S_TY}, 8")
        e(f"v_lshl_add_u32 v{V_SR}, v3, 5, s{S_T0}")
        e("s_waitcnt lgkmcnt(0)")
        e("s_mov_b32 exec_lo, 0")
        for i in range(4):
            e(f"v_mov_b32 v{B2 + 4 + i}, 0")
        e("s_mov_b64 exec, -1")
        e(f"s_cmp_ge_u32 s{S_WAVE}, 3")
        e("s_cbranch_scc1 L_noa1")
        e("v_mov_b32 v3, 96")
        e("v_mad_u32_u24 v2, v21, v3, v23")
        for s in range(6):
            for h in range(2):
                r = A1 + 4 * s + 2 * h
                e(f"ds_read_b64_tr_b16 v[{r}:{r + 1}], v2 offset:{L_W1 + s * 3072 + h * 384}")
        e("L_noa1:")
        e(f"v_lshl_add_u32 v3, v20, 3, v22")
        e(f"v_add_u32 v3, s{S_T2}, v3")
        e("v_lshlrev_b32 v2, 2, v22")
        e("v_lshl_add_u32 v2, v20, 4, v2")
        e("v_and_b32 v8, 1, v1")
        e("v_lshlrev_b32 v8, 4, v8")
        e("v_lshl_add_u32 v8, v20, 2, v8")
        e("v_and_b32 v9, 2, v1")
        e("v_bfe_u32 v10, v1, 2, 1")
        e("v_add3_u32 v8, v8, v9, v10")
        e(f"v_add_lshl_u32 v23, v8, s{S_T2}, 1")
        e("v_lshrrev_b32 v8, 3, v1")
        e("v_mul_u32_u24 v8, 3072, v8")
        e("v_lshl_add_u32 v8, v10, 7, v8")
        e("v_and_b32 v9, 3, v1")
        e(f"v_lshl_add_u32 v{V_Q}, v9, 4, v8")
        e(f"s_lshl_b32 s{S_T1}, s{S_WAVE}, 8")
        e(f"s_add_u32 s{S_T1}, s{S_T1}, {WS_Q}")
        e(f"s_mov_b32 s{S_CNT}, {SPIN}")
        e(f"s_cmp_ge_u32 s{S_WAVE}, 6")
        e("s_cbranch_scc1 L_qpoll1")

        for kind in (0, 1):
            op = "v_add_f32" if kind == 0 else "v_max_f32"
            e(f"L_qpoll{kind}:")
            hook(f"L_qnohook{kind}")
            e(f"buffer_load_dwordx4 v[4:7], v{V_Q}, s[{S_WS}:{S_WS + 3}], s{S_T1} offen sc1")
            e(f"s_sub_u32 s{S_CNT}, s{S_CNT}, 1")
            e(f"s_cbranch_scc1 L_qgot{kind}")
            if o.qsleep:
                e(f"s_sleep {o.qsleep}")
            e("s_waitcnt vmcnt(0)")
            e(f"v_xor_b32 v21, s{S_TG[0]}, v4")
            e(f"v_xor_b32 v22, s{S_TG[1]}, v5")
            e(f"v_bitop3_b32 v21, v21, v6, s{S_TG[2]} bitop3:0xf6")
            e(f"v_bitop3_b32 v22, v22, v7, s{S_TG[3]} bitop3:0xf6")
            e("v_bitop3_b32 v21, v21, v22, 15 bitop3:0xa8")
            e("v_cmp_ne_u32 vcc, 0, v21")
            e("s_wqm_b64 exec, vcc")
            e(f"s_cbranch_scc1 L_qpoll{kind}")
            e(f"L_qgot{kind}:")
            e("s_mov_b64 exec, -1")
            e("s_waitcnt vmcnt(0)")
            self.stamp(5)
            e("v_permlane32_swap_b32 v4, v6")
            e("v_permlane32_swap_b32 v5, v7")
            e(f"{op} v4, v4, v6")
            e(f"{op} v5, v5, v7")
            e("s_nop 1")
            e("v_permlane16_swap_b32 v4, v5")
            e(f"{op} v4, v4, v5")
            e(f"s_cmp_ge_u32 s{S_WAVE}, 3")
            e("s_nop 0")
            e(f"{op}_dpp v4, v4, v4 row_ror:8 row_mask:0xf bank_mask:0xf")
            if kind == 0:
                e("v_mul_f32 v4, 0x36800000, v4              ; 1/262144")
            e("v_cvt_pk_bf16_f32 v4, v4, v4")
            e(f"ds_write_b16 v23, v4 offset:{L_F}")
            e("s_waitcnt lgkmcnt(0)")
            e("s_barrier")
            if kind == 0:
                e("s_cbranch_scc0 L_mlp1")
                if o.clean == "f":
                    clean("L_join", 16, 12)
            e("s_branch L_join")

        e("L_mlp1:")
        for s in range(6):
            e(f"ds_read_b128 v[{B1[s]}:{B1[s] + 3}], v2 offset:{L_F + 64 * s}")
        for s in range(6):
            c = "0" if s == 0 else "v[20:23]"
            b = B1[s]
            e(f"s_waitcnt lgkmcnt({5 - s})")
            e(f"v_mfma_f32_16x16x32_bf16 v[20:23], v[{A1 + 4 * s}:{A1 + 4 * s + 3}], v[{b}:{b + 3}], {c}")
        e("s_nop 3")
        e("s_mov_b32 exec_lo, 0x00030003")
        e("s_mov_b32 exec_hi, 0x00030003")
        e("s_nop 1")
        for i in range(4):
            e(f"v_maximum3_f32 v{20 + i}, v{20 + i}, 0, 0")
        e("v_cvt_pk_bf16_f32 v20, v20, v21")
        e("v_cvt_pk_bf16_f32 v21, v22, v23")
        e(f"ds_write_b64 v3, v[20:21] offset:{L_H}")
        e("s_mov_b64 exec, -1")
        e("s_waitcnt lgkmcnt(0)")

        e("L_join:")
        e("s_barrier")
        self.stamp(6)
        e(f"ds_read_b128 v[4:7], v{V_H0} offset:{L_H}")
        e(f"ds_read_b128 v[8:11], v{V_H1} offset:{L_H + 64}")
        e("s_waitcnt lgkmcnt(1)")
        e(f"v_mfma_f32_16x16x32_bf16 v[12:15], v[4:7], v[{B2}:{B2 + 3}], 0")
        e("s_waitcnt lgkmcnt(0)")
        e(f"v_mfma_f32_16x16x32_bf16 v[12:15], v[8:11], v[{B2 + 4}:{B2 + 7}], v[12:15]")
        e("s_mov_b64 exec, 0xffff")
        e("s_nop 6")
        e("v_cvt_pk_bf16_f32 v12, 0, v12")
        e("v_cvt_pk_bf16_f32 v13, 0, v13")
        e("v_add_f32 v12, v12, v13")
        e("v_cvt_pk_bf16_f32 v12, 0, v12")
        e("v_mul_f32 v12, 0xbfb8aa3b, v12            ; -log2(e)")
        e("v_exp_f32 v12, v12")
        e("s_nop 0")
        e("v_add_f32 v12, 1.0, v12")
        e("v_rcp_f32 v12, v12")
        e("s_nop 0")
        e("v_cvt_pk_bf16_f32 v12, 0, v12")
        e(f"ds_write_b32 v{V_SW}, v12 offset:{L_S}")
        e("s_mov_b64 exec, -1")
        e("s_waitcnt lgkmcnt(0)")
        e("s_barrier")
        e(f"ds_read_b128 v[4:7], v{V_SR} offset:{L_S}")
        e(f"ds_read_b128 v[8:11], v{V_SR} offset:{L_S + 16}")

        if o.stlim:
            e(f"s_cmp_lt_u32 s2, {o.stlim}")
            e(f"s_cselect_b32 s{S_OUT + 2}, s{S_OUT + 2}, 0")
        zorder = [int(v) for v in o.zorder.split(",")]
        assert sorted(zorder) == list(range(16))
        restored = False

        def wbl2():
            wv, lim, pos = [int(v) for v in o.wb.split(",")]
            e(f"s_cmp_lt_u32 s{S_WAVE}, {wv}")
            e("s_cbranch_scc1 L_nowb")
            e(f"s_cmp_ge_u32 s2, {lim}")
            e("s_cbranch_scc1 L_nowb")
            if pos == 33:
                e("s_waitcnt vmcnt(0)")
            e("buffer_wbl2 sc1")
            e("L_nowb:")
        for n, j in enumerate([2 * z + u for z in zorder for u in (0, 1)]):
            a = D0 + 4 * j
            t0 = 12 + 8 * (n & 1)
            if a >= SP0 and not restored:
                assert n > 1
                e("s_waitcnt lgkmcnt(0)")
                restored = True
            for i in range(4):
                t = t0 + 2 * i
                e(f"v_lshlrev_b32 v{t}, 16, v{a + i}")
                e(f"v_and_b32 v{t + 1}, s{S_MASK}, v{a + i}")
            if n == 0:
                e("s_waitcnt lgkmcnt(0)")
                self.stamp(7)
            for i in range(4):
                t = t0 + 2 * i
                e(f"v_pk_mul_f32 v[{t}:{t + 1}], v[{t}:{t + 1}], v[{4 + 2 * i}:{5 + 2 * i}]")
            for i in range(4):
                t = t0 + 2 * i
                e(f"v_cvt_pk_bf16_f32 v{a + i}, v{t}, v{t + 1}")
            self.mem(j, lambda va, so: e(f"buffer_store_dwordx4 v[{a}:{a + 3}], {va}, s[{S_OUT}:{S_OUT + 3}], {so} offen{'' if n >= 32 - o.nplain else stf}"))
            if n + 1 in o.sbar:
                e("s_barrier")
            if o.sthr and n >= o.sthr:
                e(f"s_waitcnt vmcnt({o.sthr - 1})")
            if o.wb and int(o.wb.split(",")[2]) == n:
                wbl2()
            if n & 1:
                self.trace("st", n >> 1)
            if n == 1:
                e(f"s_cmp_ge_u32 s{S_WAVE}, 3")
                e("s_cbranch_scc1 L_norestore")
                for k in range(8):
                    e(f"ds_read_b128 v[{SP0 + 4 * k}:{SP0 + 4 * k + 3}], v{V_AT} offset:{L_SPILL + 1024 * k}")
                e("L_norestore:")
                if o.clean == "st":
                    clean("L_noclean", 28, 32)
                    e("L_noclean:")
        if o.wb and int(o.wb.split(",")[2]) >= 32:
            wbl2()
        if o.stamps:
            self.stamp(8)
            e("s_waitcnt vmcnt(0)")
            self.stamp(10)
            e("s_getreg_b32 s94, hwreg(HW_REG_XCC_ID)")
            e("s_getreg_b32 s95, hwreg(HW_REG_HW_ID)")
            e("s_waitcnt lgkmcnt(0)")
            e("v_mov_b32 v2, 0")
            for i in range(11 if o.trace else 14):
                e(f"v_writelane_b32 v2, s{S_STAMP + 2 * i}, {i}")
            e("v_writelane_b32 v2, s94, 14")
            e("v_writelane_b32 v2, s95, 15")
            e(f"s_mul_i32 s{S_T0}, s2, 12")
            e(f"s_add_u32 s{S_T0}, s{S_T0}, s{S_WAVE}")
            e(f"s_lshl_b32 s{S_T0}, s{S_T0}, 6")
            e(f"s_add_u32 s{S_T0}, s{S_T0}, {WS_STAMP}")
            e("v_mbcnt_lo_u32_b32 v3, -1, 0")
            e("v_lshlrev_b32 v3, 2, v3")
            e("s_mov_b64 exec, 0xffff")
            e(f"buffer_store_dword v2, v3, s[{S_WS}:{S_WS + 3}], s{S_T0} offen sc1")
            if o.trace:
                e("s_mov_b32 s91, s92")
                for i in range(16):
                    e(f"v_writelane_b32 v2, s{76 + i}, {i}")
                e(f"s_add_u32 s{S_T0}, s{S_T0}, {1 << 19}")
                e(f"buffer_store_dword v2, v3, s[{S_WS}:{S_WS + 3}], s{S_T0} offen sc1")
        if o.dbgptr:
            e("s_cmp_lg_u32 s2, 0")
            e("s_cbranch_scc1 L_nodp")
            e("s_mov_b64 exec, -1")
            e("v_mov_b32 v2, 0")
            for i, r in enumerate((4, 5, 8, 9, 12, 13, 16, 17, 0, 1)):
                e(f"v_writelane_b32 v2, s{r}, {i}")
            e("v_mbcnt_lo_u32_b32 v3, -1, 0")
            e("v_lshlrev_b32 v3, 2, v3")
            e("s_mov_b64 exec, 0x3ff")
            e(f"buffer_store_dword v2, v3, s[{S_DBG}:{S_DBG + 3}], 0 offen offset:8")
            e("L_nodp:")
        if o.probe:
            idx, K = [int(v) for v in o.probe.split(",")]
            if idx == -2:
                e("s_getreg_b32 s94, hwreg(HW_REG_XCC_ID)")
                e("s_xor_b32 s94, s94, s2")
                e("s_and_b32 s94, s94, 7")
                e("s_cbranch_scc0 L_end")
            elif idx == -3:
                e("s_cmp_lg_u32 s2, 0")
                e("s_cbranch_scc1 L_end")
            else:
                e("s_cmp_lg_u32 s2, 0")
                e("s_cbranch_scc1 L_end")
            e(f"s_cmp_lg_u32 s{S_WAVE}, 0")
            e("s_cbranch_scc1 L_end")
            if idx == -4:
                c0, c1, r0, r1 = ((11, 12, 0, 7), (12, 13, 7, 10))[K]
                e(f"s_sub_u32 s94, s{S_STAMP + 2 * c1}, s{S_STAMP + 2 * c0}")
                e(f"s_sub_u32 s95, s{S_STAMP + 2 * r1}, s{S_STAMP + 2 * r0}")
                e("v_cvt_f32_u32 v4, s94")
                e("v_cvt_f32_u32 v5, s95")
                e("v_rcp_f32 v5, v5")
                e("s_nop 1")
                e("v_mul_f32 v4, v4, v5")
                e("v_mul_f32 v4, 0x44fa0000, v4")
                e("v_cvt_u32_f32 v4, v4")
                e("s_nop 1")
                e("v_readfirstlane_b32 s96, v4")
                e("s_sub_u32 s96, s96, 31000")
            elif idx <= -10:
                e(f"s_bfe_u32 s94, s{-idx - 10}, {(7 << 16)} + {K}")
                e("s_mul_i32 s96, s94, 200")
                e("s_add_u32 s96, s96, 5000")
            elif idx == -3:
                e("s_getreg_b32 s94, hwreg(HW_REG_XCC_ID)")
                e("s_and_b32 s94, s94, 7")
                e(f"s_mul_i32 s96, s94, {K}")
                e("s_add_u32 s96, s96, 5000")
            elif idx < 0:
                e(f"s_mov_b32 s96, {K}")
            else:
                e(f"s_sub_u32 s96, s{S_STAMP + 2 * idx}, s{S_STAMP}")
                e(f"s_mul_i32 s96, s96, {K}")
            e("s_min_u32 s96, s96, 200000")
            e("L_probe:")
            e("s_memrealtime s[98:99]")
            e("s_waitcnt lgkmcnt(0)")
            e(f"s_sub_u32 s98, s98, s{S_STAMP}")
            e("s_cmp_lt_u32 s98, s96")
            e("s_cbranch_scc1 L_probe")
        e("L_end:")
        e("s_endpgm")

        e("L_role:")
        e("s_load_dwordx4 s[44:47], s[0:1], 32")
        e(f"s_cmp_eq_u32 s2, {NVOTE_WG}")
        e("s_cbranch_scc1 L_tag")
        e(f"s_sub_u32 s{S_T1}, s{S_OUT}, s{S_X}")
        e(f"s_add_u32 s{S_T1}, s{S_T1}, 2048")
        e(f"s_bitcmp1_b32 s{S_T1}, 12")
        e(f"s_cselect_b32 s{S_V}, {o.quorum}, {o.quorum4}")
        e(f"s_cselect_b32 s{S_V + 1}, 8, 0")
        e(f"s_or_b32 s{S_V + 1}, s{S_V + 1}, s2")
        e(f"s_bitcmp1_b32 s{S_V + 1}, 3")
        e(f"s_cselect_b64 s[{S_W}:{S_W + 1}], s[8:9], s[4:5]")
        e(f"s_bfe_u32 s{S_T1}, s2, 0x10004")
        e(f"s_lshl3_add_u32 s{S_T1}, s{S_T1}, 8")
        e(f"s_and_b32 s{S_T2}, s2, 7")
        e(f"s_add_u32 s{S_T1}, s{S_T1}, s{S_T2}")
        e(f"s_lshl_b32 s{S_T1}, s{S_T1}, 22")
        e(f"s_add_u32 s{S_T0}, s{S_T0}, s{S_T1}")
        e(f"s_and_b32 s{S_T1}, s2, 15")
        e(f"s_mulk_i32 s{S_T1}, {16384 + 512}")
        e(f"s_add_u32 s{S_T0}, s{S_T0}, s{S_T1}")
        e(f"s_add_u32 s{S_T1}, s{S_T0}, 8192")
        self.stamp(1, True)
        e(f"s_load_dword s42, s[{S_W}:{S_W + 1}], s{S_T0} glc")
        e(f"s_load_dword s43, s[{S_W}:{S_W + 1}], s{S_T1} glc")
        e(f"s_mov_b32 s{S_CNT}, {-(NRACE // 2)}")
        for k in range(NRACE):
            e("s_waitcnt lgkmcnt(0)")
            if k < 2:
                self.stamp(2 + k, True)
                if o.vdiag:
                    e("s_waitcnt lgkmcnt(0)")
            first, second = (S_T0, S_T1) if k % 2 == 0 else (S_T1, S_T0)
            e(f"s_load_dword s42, s[{S_W}:{S_W + 1}], s{first} glc")
            e(f"s_load_dword s43, s[{S_W}:{S_W + 1}], s{second} glc")
            e("s_waitcnt lgkmcnt(1)")
            e("s_nop 7")
            e(f"s_getreg_b32 s{S_T2}, hwreg(HW_REG_IB_STS, 8, 4)   ; 1: the second answer is still out")
            if k % 2 == 0:
                e(f"s_xor_b32 s{S_T2}, s{S_T2}, 1")
            e(f"s_add_u32 s{S_CNT}, s{S_CNT}, s{S_T2}")
        assert NRACE % 2 == 0 and max(o.quorum, o.quorum4) * NRACE // 2 < 32 and max(o.quorum, o.quorum4) <= NVOTE_WG
        e(f"s_sub_u32 s{S_T2}, 0, s{S_CNT}")
        e(f"s_add_u32 s{S_T0}, s{S_T0}, s{S_OUT}")
        e(f"s_lshr_b32 s{S_T0}, s{S_T0}, 19")
        e(f"s_xor_b32 s{S_T0}, s{S_T0}, s2")
        e(f"s_bitcmp1_b32 s{S_T0}, 2")
        e(f"s_cselect_b32 s{S_CNT}, s{S_T2}, s{S_CNT}")
        e(f"s_bfe_u32 s{S_T0}, s{S_V + 1}, 0x20003")
        e(f"s_mul_i32 s{S_T0}, s{S_T0}, 6")
        e(f"s_add_u32 s{S_T0}, s{S_T0}, 7")
        e(f"s_lshl_b32 s{S_CNT}, s{S_CNT}, s{S_T0}")
        e(f"s_or_b32 s{S_CNT}, s{S_CNT}, 1")
        e(f"s_mov_b32 s{S_T1}, s{S_CNT}")
        self.stamp(6, True)
        e(f"s_atomic_add s{S_T1}, s[44:45], {DBG_TAL} glc")
        e(f"s_add_u32 s{S_CNT}, s{S_CNT}, {sum(31 << (7 + 6 * t) for t in range(4))}")
        e("s_waitcnt lgkmcnt(0)")
        e(f"s_add_u32 s{S_T1}, s{S_T1}, s{S_CNT}")
        self.stamp(13)
        e(f"s_and_b32 s{S_T0}, s{S_T1}, 0x7f")
        e(f"s_cmp_lg_u32 s{S_T0}, s{S_V}")
        e("s_cbranch_scc1 L_stream")
        e(f"s_and_b32 s{S_T1}, s{S_T1}, {sum(32 << (7 + 6 * t) for t in range(4))}")
        e(f"s_bitset1_b32 s{S_T1}, 9")
        e("L_publish:")
        e(f"s_atomic_add s{S_T1}, s[44:45], {DBG_RES}")
        e("s_waitcnt lgkmcnt(0)")
        e("s_branch L_stream")

        e("L_tag:")
        e(f"s_mov_b32 s{S_T1}, 1")
        e("s_waitcnt lgkmcnt(0)")
        e(f"s_atomic_add s{S_T1}, s[46:47], {WS_E} glc")
        e("s_waitcnt lgkmcnt(0)")
        e(f"s_add_u32 s{S_T1}, s{S_T1}, 1")
        e(f"s_and_b32 s{S_T1}, s{S_T1}, 0xff")
        e(f"s_bitset1_b32 s{S_T1}, 8")
        self.stamp(13)
        e("s_branch L_publish")

        e("L_flush:")
        e(f"s_mov_b32 s{S_HOOK}, {SPIN}")
        e("s_mov_b32 exec_lo, -1")
        e("s_mov_b32 exec_hi, 0xffff")
        e("v_lshlrev_b32 v17, 4, v1")
        e("L_floop:")
        e(f"buffer_load_dwordx4 v[8:11], v17, s[{S_WS}:{S_WS + 3}], s{S_PO} offen sc1")
        e(f"buffer_load_dwordx4 v[12:15], v17, s[{S_WS}:{S_WS + 3}], s{S_PO} offen offset:768 sc1")
        e(f"s_sub_u32 s{S_HOOK}, s{S_HOOK}, 1")
        e("s_waitcnt vmcnt(0)")
        e(f"v_xor_b32 v16, s{S_TG[0]}, v8")
        for r in range(9, 16):
            e(f"v_bitop3_b32 v16, v16, v{r}, s{S_TG[r & 3]} bitop3:0xf6")
        e("v_and_b32 v16, 15, v16")
        e("v_cmp_ne_u32 vcc, 0, v16")
        e("s_cbranch_scc1 L_fdone")
        e("s_cbranch_vccnz L_floop")
        e("L_fdone:")
        e(f"buffer_store_dwordx4 v[8:11], v17, s[{S_WS}:{S_WS + 3}], s{S_PO} offen sc1")
        e(f"buffer_store_dwordx4 v[12:15], v17, s[{S_WS}:{S_WS + 3}], s{S_PO} offen offset:768 sc1")
        e("s_waitcnt vmcnt(0)")
        e("s_mov_b64 exec, -1")
        e(f"s_mov_b32 s{S_HOOK}, -1")
        e(f"s_setpc_b64 s[{S_RET}:{S_RET + 1}]")

        e("L_dpoll:")
        e(f"s_mov_b32 s{S_CNT}, {SPIN}")
        e(f"v_mov_b32 v{V_AT}, 0")
        e("s_mov_b64 exec, 1")
        e("L_dloop:")
        e(f"buffer_load_dword v{V_AT}, off, s[{S_DBG}:{S_DBG + 3}], 0 offset:{DBG_RES} sc1")
        e(f"s_sleep {o.dsleep}")
        e("s_waitcnt vmcnt(24)")
        e(f"v_readfirstlane_b32 s{S_T2}, v{V_AT}          ; whatever poll has landed last")
        e(f"s_sub_u32 s{S_CNT}, s{S_CNT}, 1")
        e("s_cbranch_scc1 L_dgot")
        e(f"s_andn2_b32 s{S_OFF}, {RES_OK}, s{S_T2}")
        e("s_cbranch_scc1 L_dloop")
        e("L_dgot:")
        e("s_mov_b64 exec, -1")
        e("s_branch L_decided")

        e("L_codeend:")
        e("s_endpgm")

    def text(self):
        out = HEADER
        out += f"; @launch grid=({NWG},1,1) block=(768,1,1) lds={L_TOTAL}\n"
        out += '.amdgcn_target "amdgcn-amd-amdhsa--gfx950"\n.text\n'
        out += f".globl {KNAME}\n.p2align 8\n.type {KNAME},@function\n{KNAME}:\n"
        out += "\n".join(self.lines) + "\n"
        out += f""".section .rodata,"a"
.p2align 6
.amdhsa_kernel {KNAME}
  .amdhsa_next_free_vgpr 168
  .amdhsa_next_free_sgpr {100 if self.o.stamps else 56}
  .amdhsa_accum_offset 168
  .amdhsa_group_segment_fixed_size 0
  .amdhsa_kernarg_size 48
  .amdhsa_user_sgpr_count 2
  .amdhsa_user_sgpr_kernarg_segment_ptr 1
  .amdhsa_system_sgpr_workgroup_id_x 1
  .amdhsa_float_denorm_mode_32 3
.end_amdhsa_kernel
"""
        return out


def main():
    p = argparse.ArgumentParser()
    p.add_argument("-o", default="standalone__channel_attn_cbam__vision.s")
    p.add_argument("--ldflags", default="nt")
    p.add_argument("--stflags", default="sc1")
    p.add_argument("--p1flags", default="sc1")
    p.add_argument("--stamps", action="store_true")
    p.add_argument("--probe", default="")
    p.add_argument("--depth", type=int, default=10)
    p.add_argument("--nrace", type=int, default=2)
    p.add_argument("--dsleep", type=int, default=8)
    p.add_argument("--trace", default="")
    p.add_argument("--nodec", action="store_true")
    p.add_argument("--vdiag", action="store_true")
    p.add_argument("--dbgptr", action="store_true")
    p.add_argument("--opp", default="5,9", type=lambda v: [int(x) for x in v.split(",")])
    p.add_argument("--quorum", type=int, default=12)
    p.add_argument("--quorum4", type=int, default=24)
    p.add_argument("--nvote", type=int, default=32)
    p.add_argument("--nagn", type=int, default=6)
    p.add_argument("--stlim", type=int, default=0)
    p.add_argument("--psc1", action="store_true")
    p.add_argument("--clk", action="store_true")
    p.add_argument("--sthr", type=int, default=0)
    p.add_argument("--sbar", default=[], type=lambda v: [int(x) for x in v.split(",")])
    p.add_argument("--piece", type=int, default=128)
    p.add_argument("--xbar", default=[24], type=lambda v: [int(x) for x in v.split(",")])
    p.add_argument("--cpf", type=int, default=0)
    p.add_argument("--cpfpos", type=int, default=0)
    p.add_argument("--wpace", type=int, default=40)
    p.add_argument("--clean", default="f")
    p.add_argument("--warm", type=int, default=30)
    p.add_argument("--warmwave", type=int, default=4)
    p.add_argument("--qsleep", type=int, default=0)
    p.add_argument("--red0", type=int, default=8)
    p.add_argument("--redstep", type=int, default=2)
    p.add_argument("--off", default="", help="diagnostics: v = no votes, c = no clears, r = result not read")
    p.add_argument("--spans", default="")
    p.add_argument("--split", action="store_true")
    p.add_argument("--pfback", type=int, default=0)
    p.add_argument("--nplain", type=int, default=0)
    p.add_argument("--wb", default="", help="minwave,wglimit,pos")
    p.add_argument("--thr", type=int, default=2)
    p.add_argument("--thrfrom", type=int, default=12)
    p.add_argument("--thrto", type=int, default=24)
    p.add_argument("--thrmask", default="0x55")
    p.add_argument("--zorder", default="8,0,9,1,10,2,11,3,12,4,13,5,14,6,15,7")
    o = p.parse_args()
    global NAGN, SPANS, NVOTE_WG
    NVOTE_WG = o.nvote
    NAGN = o.nagn
    if NAGN == 6:
        SPANS = [(0, 0), (0, 1), (1, 0), (1, 1), (2, 0), (2, 1),
                 (3, 0), (6, 0), (3, 1), (6, 1), (4, 0), (7, 0), (4, 1), (7, 1), (5, 0), (5, 1)]
        if o.zorder == p.get_default("zorder"):
            o.zorder = "6,0,7,8,1,9,2,10,11,3,12,4,13,14,5,15"
    if o.spans:
        SPANS = [(int(v[0]), int(v[1])) for v in o.spans.split(",")]
        assert sorted(SPANS) == [(a, b) for a in range(8) for b in range(2)]
    g = G(o)
    g.build()
    open(o.o, "w").write(g.text())


if __name__ == "__main__":
    main()
```

```python
import argparse

KNAME = "standalone__channel_attn_cbam__vision_kernel"

HEADER = """; Kernarg layout for this problem (48 bytes, ptrs only, base s[0:1]):
;   offset   0: d_in[0] x  shape=(1, 512, 512, 192) dtype=bfloat16 strides=(100663296, 196608, 384, 2) contiguous=True
;   offset   8: d_in[1] w1  shape=(192, 48) dtype=bfloat16 strides=(96, 2) contiguous=True
;   offset  16: d_in[2] w2  shape=(48, 192) dtype=bfloat16 strides=(384, 2) contiguous=True
;   offset  40: d_ws      402653184 bytes workspace (unspecified values whenever your kernel or launch list starts; a list's later launches find what earlier ones wrote)
"""

X_BYTES = 100663296
NWG = 256
NRED = 12
MiB = 1 << 20

L_RED = 0
L_H = 6144
L_DEC = 6336
L_S = 6400
L_F = 7168
L_W1 = 8192
L_W2 = L_W1 + 18432
L_SPILL = L_W2 + 18432
L_TOTAL = L_SPILL + 3 * 8192

WS_P = 0
WS_Q = 256 * 1536
WS_E = WS_Q + 4 * 49152
WS_USED = WS_E + 128
WS_PROBE = 640 * 1024
WS_STAMP = 1 << 20

S_X, S_OUT, S_WS, S_DBG, S_W = 4, 8, 12, 16, 20
S_WAVE, S_TY, S_SUB, S_OFF, S_MASK, S_CNT, S_T0, S_T1 = 28, 29, 30, 31, 32, 33, 34, 35
S_BASE, S_PM, S_P, S_T2 = 48, 49, 50, 51
S_AGN, S_RID, S_PO = 40, 42, 43
S_TG = [41, 47, 3, 0]
S_RET, S_HOOK, S_QC = 38, 46, 1
S_BASE1 = 45
NFB = 48
S_STAMP = 52
S_V = 24

D0 = 40
SPIN = 400000
V_L, V_G0, V_G1, V_AT = 0, 39, 38, 36

NAGN = 8
SPANS = [(0, 0), (0, 1), (1, 0), (1, 1), (2, 0), (2, 1), (3, 0), (3, 1),
         (6, 0), (4, 0), (6, 1), (4, 1), (7, 0), (5, 0), (7, 1), (5, 1)]
W_ROLE = 0
DBG_RES, DBG_TAL = 0, 128
NVOTE_WG = 32
RES_OK = (1 << 9) | (1 << 8)


def mask(pred):
    return sum(1 << z for z, s in enumerate(SPANS) if pred(z, s))


class G:
    def __init__(self, o):
        self.o = o
        self.lines = []

    def e(self, s=""):
        self.lines.append(("    " + s) if s and not s.endswith(":") else s)

    def stamp(self, idx, vote=False):
        if self.o.clk:
            if idx in (11, 12, 13):
                return
            m = {0: 11, 7: 12, 10: 13}.get(idx)
            if m:
                self.e(f"s_memtime s[{S_STAMP + 2 * m}:{S_STAMP + 2 * m + 1}]")
        if vote == "r":
            vote = False
        if self.o.vdiag and idx in (1, 2, 3, 6) and not vote:
            return
        if vote and not self.o.vdiag:
            return
        if self.o.stamps and not (self.o.trace and idx > 10):
            self.e(f"s_memrealtime s[{S_STAMP + 2 * idx}:{S_STAMP + 2 * idx + 1}]")

    def srd(self, d, lo, nbytes):
        e = self.e
        e(f"s_mov_b64 s[{d}:{d + 1}], s[{lo}:{lo + 1}]")
        e(f"s_mov_b32 s{d + 2}, {nbytes}")
        e(f"s_mov_b32 s{d + 3}, 0x20000")

    def span_off(self, z):
        return SPANS[z][0] * 12 * MiB + SPANS[z][1] * 49152

    def mem(self, j, fn):
        e = self.e
        z, u = j >> 1, j & 1
        if z < NAGN:
            off = (j // self.o.agnu) * self.o.agnu * 3 * MiB + (j % self.o.agnu) * 12288
            if off:
                e(f"s_add_u32 s{S_OFF}, s{S_AGN}, {off}")
                fn(f"v{V_L}", f"s{S_OFF}")
            else:
                fn(f"v{V_L}", f"s{S_AGN}")
            return
        if u == 0:
            e(f"s_bitcmp1_b32 s{S_PM}, {z}")
            e(f"s_cselect_b32 s{S_P}, 24576, 0")
        e(f"s_add_u32 s{S_OFF}, s{(S_BASE, S_BASE1)[SPANS[z][1]]}, {SPANS[z][0] * 12 * MiB + 12288 * u}")
        at = 2 + u
        e(f"v_xad_u32 v{at}, v{(V_G0, V_G1)[u]}, s{S_P}, v{V_L}")
        if SPANS[z] == (7, 1):
            e(f"v_add_u32 v{at}, s{S_OFF}, v{at}")
            e(f"v_subrev_u32 v{5 - at}, s{S_X + 2}, v{at}")
            e(f"v_min_u32 v{at}, v{at}, v{5 - at}             ; past the end: wrap to the rows the shift skipped")
            fn(f"v{at}", "0")
        else:
            fn(f"v{at}", f"s{S_OFF}")

    def trace(self, kind, n):
        if self.o.trace == kind:
            if n > 0:
                self.e("s_waitcnt lgkmcnt(0)")
                self.e(f"s_mov_b32 s{76 + n - 1}, s92")
            self.e("s_memrealtime s[92:93]")

    def build(self):
        o, e = self.o, self.e
        NRACE = o.nrace
        ldf = (" " + o.ldflags) if o.ldflags else ""
        stf = (" " + o.stflags) if o.stflags else ""

        self.stamp(0)
        e("s_load_dwordx2 s[4:5], s[0:1], 0          ; x")
        e("s_load_dwordx2 s[8:9], s[0:1], 24         ; out")
        e("v_readfirstlane_b32 s%d, v0" % S_WAVE)
        e("v_and_b32 v1, 63, v0                      ; lane")
        pl = (o.piece // 16).bit_length() - 1
        e(f"v_bfe_u32 v2, v0, {pl}, {6 - pl}")
        e(f"v_mul_u32_u24 v2, {3 * o.piece}, v2")
        e(f"v_and_b32 v3, {(1 << pl) - 1}, v0")
        e("s_cmpk_ge_u32 s2, %d" % NWG)
        e("s_cbranch_scc1 L_end")
        e(f"s_lshr_b32 s{S_WAVE}, s{S_WAVE}, 6")
        e(f"s_mul_i32 s{S_SUB}, s{S_WAVE}, 43")
        e(f"s_lshr_b32 s{S_SUB}, s{S_SUB}, 7")
        e(f"s_mul_i32 s{S_T0}, s{S_SUB}, {3072 // o.piece - 3}")
        e(f"s_add_u32 s{S_T0}, s{S_T0}, s{S_WAVE}        ; sub*24 + wave % 3")
        e(f"s_lshl_b32 s{S_T0}, s{S_T0}, {pl + 4}")
        e("v_lshl_add_u32 v0, v3, 4, v2")
        e(f"v_add_u32 v{V_L}, s{S_T0}, v0               ; + sub*3072 + (wave % 3)*128")
        if o.qmap == 0:
            e(f"s_and_b32 s{S_T0}, s2, 3")
            e(f"s_bfe_u32 s{S_T1}, s2, 0x10002")
            e(f"s_lshl1_add_u32 s{S_T0}, s{S_T0}, s{S_T1}")
            e(f"s_and_b32 s{S_T1}, s2, -8")
            e(f"s_add_u32 s{S_T0}, s{S_T0}, s{S_T1}")
        else:
            e(f"s_and_b32 s{S_T0}, s2, 7")
            e(f"s_lshl_b32 s{S_T0}, s{S_T0}, 5")
            e(f"s_lshr_b32 s{S_T1}, s2, 3")
            e(f"s_add_u32 s{S_T0}, s{S_T0}, s{S_T1}")
        e(f"s_mul_i32 s{S_AGN}, s{S_T0}, {o.agnu * 12288}")
        e(f"s_mov_b32 s{S_X + 2}, {X_BYTES}")
        e(f"s_mov_b32 s{S_X + 3}, 0x20000")
        e(f"s_lshl_b32 s{S_T1}, s{S_WAVE}, 8")
        e(f"s_or_b32 s{S_T1}, s{S_T1}, s2")
        e("s_waitcnt lgkmcnt(0)")
        e(f"s_lshr_b32 s{S_T0}, s{S_OUT}, 7")
        e(f"s_mul_i32 s{S_T0}, s{S_T0}, 21              ; -43 mod 64")
        e(f"s_and_b32 s{S_T0}, s{S_T0}, 63")
        e(f"s_mulk_i32 s{S_T0}, 384")
        e(f"s_add_u32 s{S_AGN}, s{S_AGN}, s{S_T0}")
        assert W_ROLE == 0

        SUM, MAX, T = 4, 12, 20
        DEPTH = o.depth
        seq = []

        def issue(j):
            if j == o.rolepos:
                e(f"s_cmp_le_u32 s{S_T1}, {NVOTE_WG}              ; wave 0 of the first workgroups has a side job")
                e("s_cbranch_scc1 L_role")
                e("L_stream:")
            if o.cpf and j == o.cpfpos:
                e(f"s_sub_u32 s{S_T1}, s{S_T1}, 256")
                e(f"s_cmp_ge_u32 s{S_T1}, {o.cpf}")
                e("s_cbranch_scc1 L_nocpf")
                e("s_getpc_b64 s[20:21]")
                e("v_lshlrev_b32 v2, 7, v1")
                e("v_add_u32 v3, 8192, v2")
                e("v_min_u32 v3, L_codeend - L_nocpf, v3")
                e("global_load_dword v36, v2, s[20:21]")
                e("global_load_dword v37, v3, s[20:21]")
                e("L_nocpf:")
            if j == max(4, o.rolepos):
                e("s_load_dwordx4 s[36:39], s[0:1], 8        ; w1, w2")
                e(f"s_load_dwordx2 s[{S_DBG}:{S_DBG + 1}], s[0:1], 32")
                e(f"s_load_dwordx2 s[{S_WS}:{S_WS + 1}], s[0:1], 40")
                e(f"s_mov_b32 s{S_MASK}, 0xffff0000")
            if j == 2 * NAGN:
                e(f"s_mul_i32 s{S_TY}, s{S_SUB}, 3")
                e(f"s_sub_u32 s{S_TY}, s{S_WAVE}, s{S_TY}        ; ty = wave % 3")
                e(f"s_mov_b32 s{S_OUT + 2}, s{S_X + 2}")
                e(f"s_mov_b32 s{S_OUT + 3}, s{S_X + 3}")
                e(f"s_mov_b32 s{S_WS + 2}, {(2 << 20) if o.stamps else WS_USED}")
                e(f"s_mov_b32 s{S_WS + 3}, s{S_X + 3}")
                e(f"s_movk_i32 s{S_DBG + 2}, 256")
                e(f"s_mov_b32 s{S_DBG + 3}, s{S_X + 3}")
                e(f"s_movk_i32 s{S_T2}, 24576")
                e(f"v_bfe_u32 v{V_G0}, v{V_L}, 13, 1")
                e(f"v_add_u32 v{V_G1}, 12288, v{V_L}")
                e(f"v_bfe_u32 v{V_G1}, v{V_G1}, 13, 1")
                e(f"v_mul_u32_u24 v{V_G0}, s{S_T2}, v{V_G0}")
                e(f"v_mul_u32_u24 v{V_G1}, s{S_T2}, v{V_G1}")
                e(f"s_bfe_i32 s{S_PM}, s2, 0x10002              ; -side")
                e(f"s_lshr_b32 s{S_T0}, s{S_OUT}, 7")
                e(f"s_mul_i32 s{S_T0}, s{S_T0}, 21")
                e(f"s_and_b32 s{S_T0}, s{S_T0}, 63")
                e(f"s_mulk_i32 s{S_T0}, 384")
                e(f"s_and_b32 s{S_T1}, s2, 3")
                e(f"s_lshr_b32 s{S_BASE}, s2, 3")
                if o.qmap == 0:
                    e(f"s_lshl2_add_u32 s{S_BASE}, s{S_BASE}, s{S_T1}")
                else:
                    e(f"s_lshl_b32 s{S_T1}, s{S_T1}, 5")
                    e(f"s_add_u32 s{S_BASE}, s{S_BASE}, s{S_T1}")
                e(f"s_add_u32 s{S_BASE1}, s{S_BASE}, {o.qshift}")
                e(f"s_and_b32 s{S_BASE1}, s{S_BASE1}, 127")
                e(f"s_mul_i32 s{S_BASE}, s{S_BASE}, 98304")
                e(f"s_add_u32 s{S_BASE}, s{S_BASE}, s{S_T0}        ; the pair's first span of a step")
                e(f"s_mul_i32 s{S_BASE1}, s{S_BASE1}, 98304")
                e(f"s_add_u32 s{S_BASE1}, s{S_BASE1}, s{S_T0}")
                e(f"s_add_u32 s{S_BASE1}, s{S_BASE1}, 49152      ; its second span: 3 MiB on, where the memory stacks swap")
                h1 = mask(lambda z, s: s[1] == 1)
                e(f"s_add_u32 s{S_T2}, s{S_T2}, s{S_OUT}")
                e(f"s_add_u32 s{S_T0}, s{S_BASE}, s{S_T2}")
                e(f"s_bfe_i32 s{S_T1}, s{S_T0}, 0x10015")
                e(f"s_xor_b32 s{S_PM}, s{S_PM}, s{S_T1}")
                e(f"s_add_u32 s{S_T2}, s{S_BASE1}, s{S_T2}")
                e(f"s_xor_b32 s{S_T0}, s{S_T0}, s{S_T2}")
                e(f"s_bfe_i32 s{S_T0}, s{S_T0}, 0x10015")
                e(f"s_and_b32 s{S_T0}, s{S_T0}, {h1}")
                e(f"s_xor_b32 s{S_PM}, s{S_PM}, s{S_T0}")
                m1 = mask(lambda z, s: z >= NAGN and s[0] in (3, 4))
                z50 = SPANS.index((5, 0))
                z51 = SPANS.index((5, 1))
                dec = mask(lambda z, s: z >= NAGN)
                e(f"s_cmp_lt_u32 s{S_BASE}, {4 * MiB - 24576}")
                e(f"s_cselect_b32 s{S_T0}, {1 << z50}, 0")
                e(f"s_or_b32 s{S_T0}, s{S_T0}, {m1}")
                e(f"s_cmp_lt_u32 s{S_BASE1}, {4 * MiB - 24576}")
                e(f"s_cselect_b32 s{S_T1}, {1 << z51}, 0")
                e(f"s_or_b32 s{S_T0}, s{S_T0}, s{S_T1}            ; third 1")
                e(f"s_xor_b32 s{S_T1}, s{S_T0}, {dec}           ; third 2")
                per, pat = o.opp
                rep = sum(((pat >> (i % per)) & 1) << i for i in range(32))
                e(f"s_lshr_b32 s{S_P}, s2, 3")
                e(f"s_mul_i32 s{S_T2}, s{S_P}, {-(-256 // per)}")
                e(f"s_lshr_b32 s{S_T2}, s{S_T2}, 8")
                e(f"s_mul_i32 s{S_T2}, s{S_T2}, {per}")
                e(f"s_sub_u32 s{S_P}, s{S_P}, s{S_T2}             ; (b >> 3) % {per}")
                e(f"s_lshr_b32 s{S_P}, {rep}, s{S_P}")
                e(f"s_sub_u32 s{S_T2}, s{S_OUT}, s{S_X}")
                e(f"s_add_u32 s{S_T2}, s{S_T2}, 2048")
                e(f"s_bitcmp1_b32 s{S_T2}, 12")
                e(f"s_cselect_b32 s{S_P}, 0, s{S_P}")
                e(f"s_lshr_b32 s{S_T2}, s2, 3")
                e(f"s_sub_u32 s{S_RID}, s{S_T2}, {o.red0}")
                e(f"s_and_b32 s{S_PO}, s2, 7")
                e(f"s_lshl_b32 s{S_PO}, s{S_PO}, 5")
                e(f"s_add_u32 s{S_PO}, s{S_PO}, s{S_T2}")
                e(f"s_mulk_i32 s{S_PO}, 1536")
                e("s_waitcnt lgkmcnt(0)")
                self.stamp(11)
                e("s_barrier")
                e(f"s_load_dword s{S_T2}, s[{S_DBG}:{S_DBG + 1}], {DBG_RES}")
                e("s_waitcnt lgkmcnt(0)")
                e(f"s_andn2_b32 s{S_CNT}, {RES_OK}, s{S_T2}")
                e("s_cbranch_scc1 L_dpoll")
                e("L_decided:")
                for i in range(4):
                    e(f"s_bitcmp1_b32 s{S_T2}, {7 + 6 * i + 5}")
                    e(f"s_cselect_b32 s{S_V + i}, s{(S_T0, S_T1)[i >> 1]}, 0")
                e(f"s_or_b32 s{S_V}, s{S_V}, s{S_V + 2}")
                e(f"s_or_b32 s{S_V + 1}, s{S_V + 1}, s{S_V + 3}")
                e(f"s_xor_b32 s{S_V}, s{S_V}, s{S_V + 1}")
                e(f"s_and_b32 s{S_V}, s{S_V}, s{S_P}")
                e(f"s_xor_b32 s{S_V}, s{S_V}, s{S_V + 1}")
                e(f"s_xor_b32 s{S_PM}, s{S_PM}, s{S_V}")
                e(f"s_and_b32 s{S_TG[0]}, s{S_T2}, 15")
                e(f"s_bfe_u32 s{S_TG[1]}, s{S_T2}, 0x40004")
                e(f"s_xor_b32 s{S_TG[2]}, s{S_TG[0]}, 15")
                e(f"s_xor_b32 s{S_TG[3]}, s{S_TG[1]}, 15")
                e(f"s_lshr_b32 s{S_QC}, s{S_T2}, 10")
                e(f"s_and_b32 s{S_QC}, s{S_QC}, 4")
                e(f"s_xor_b32 s{S_QC}, s{S_QC}, s2             ; bits 2:0: the second-stage copy near this die")
                self.stamp(12)
            if j in o.xbar:
                e("s_barrier")
                if j == o.xbar[-1]:
                    self.stamp(2, "r")
            if j == o.warm and o.warmst:
                e(f"s_cmp_ge_u32 s{S_WAVE}, 2")
                e("s_cbranch_scc1 L_nowarm")
                for i in range(4):
                    e(f"v_mov_b32 v{20 + i}, 0")
                e(f"s_mul_i32 s{S_T0}, s{S_WAVE}, 768")
                e(f"v_lshl_add_u32 v3, v1, 4, s{S_T0}")
                e("s_mov_b32 exec_hi, 0xffff")
                e(f"buffer_store_dwordx4 v[20:23], v3, s[{S_WS}:{S_WS + 3}], s{S_PO} offen")
                e("s_mov_b64 exec, -1")
                e("L_nowarm:")
            if j == o.warm and not o.warmst:
                e(f"s_cmp_lg_u32 s{S_WAVE}, {o.warmwave}")
                e("s_cbranch_scc1 L_nowarm")
                e("v_lshlrev_b32 v3, 7, v1")
                e("s_mov_b64 exec, 0xfff")
                e(f"buffer_load_dword v37, v3, s[{S_WS}:{S_WS + 3}], s{S_PO} offen")
                e("s_mov_b64 exec, -1")
                e("L_nowarm:")
            r = D0 + 4 * j
            if o.thr and j == 10:
                e(f"s_getreg_b32 s{S_T0}, hwreg(HW_REG_XCC_ID, 0, 1)")
                e(f"s_xor_b32 vcc_lo, s{S_T0}, 1")
                e("s_mov_b32 vcc_hi, 0")
            if o.thr and o.thrfrom <= j < o.thrto:
                e(f"s_cbranch_vccz L_thr{j}")
                e(f"s_waitcnt vmcnt({o.thr - 1})")
                e(f"L_thr{j}:")
            self.mem(j, lambda va, so: e(f"buffer_load_dwordx4 v[{r}:{r + 3}], {va}, s[{S_X}:{S_X + 3}], {so} offen{ldf}"))
            seq.append(j)
            if j & 1:
                self.trace("ld", j >> 1)

        def wait_for(j):
            e(f"s_waitcnt vmcnt({len(seq) - 1 - seq.index(j)})")

        nxt = 0
        for jj in range(16):
            while nxt < 32 and nxt < max(2 * jj + DEPTH + 2, 2 * NAGN + 2 if o.prebar else 0):
                issue(nxt)
                nxt += 1
                if nxt == 32:
                    self.stamp(1)
            a, b = D0 + 8 * jj, D0 + 8 * jj + 4
            if jj == 15:
                e("v_and_b32 v2, 7, v1")
                e("v_lshlrev_b32 v2, 5, v2                   ; (l&7)*32")
                e("v_lshrrev_b32 v3, 4, v1")
                e("v_lshl_add_u32 v2, v3, 3, v2              ; + (l>>4)*8")
                e("v_bfe_u32 v3, v1, 3, 1")
                e("v_mul_u32_u24 v3, 768, v3")
                e(f"s_mul_i32 s{S_T0}, s{S_SUB}, 1536")
                e(f"s_lshl_b32 s{S_T1}, s{S_TY}, 8")
                e(f"s_add_u32 s{S_T0}, s{S_T0}, s{S_T1}")
                e(f"v_add3_u32 v2, v2, v3, s{S_T0}")
                e(f"s_mul_i32 s{S_T0}, s{S_WAVE}, 768")
                e(f"v_lshl_add_u32 v3, v1, 4, s{S_T0}")
                for r in (a, b):
                    wait_for((r - D0) // 4)
                    if r == b:
                        self.stamp(3)
                    for i in range(4):
                        t = T + 2 * i
                        e(f"v_lshlrev_b32 v{t}, 16, v{r + i}")
                        e(f"v_and_b32 v{t + 1}, s{S_MASK}, v{r + i}")
                    for i in range(8):
                        e(f"v_max_f32 v{MAX + i}, v{MAX + i}, v{T + i}")
                    for i in range(4):
                        t, s = T + 2 * i, SUM + 2 * i
                        e(f"v_pk_add_f32 v[{s}:{s + 1}], v[{s}:{s + 1}], v[{t}:{t + 1}]")
                continue
            wait_for(2 * jj + 1)
            if jj == 0 and not o.xbar:
                self.stamp(2)
            for i in range(4):
                t = T + 4 * i
                e(f"v_lshlrev_b32 v{t}, 16, v{a + i}")
                e(f"v_and_b32 v{t + 1}, s{S_MASK}, v{a + i}")
                e(f"v_lshlrev_b32 v{t + 2}, 16, v{b + i}")
                e(f"v_and_b32 v{t + 3}, s{S_MASK}, v{b + i}")
            for i in range(4):
                t = T + 4 * i
                s, m = SUM + 2 * i, MAX + 2 * i
                if jj == 0:
                    e(f"v_max_f32 v{m}, v{t}, v{t + 2}")
                    e(f"v_max_f32 v{m + 1}, v{t + 1}, v{t + 3}")
                    e(f"v_pk_add_f32 v[{s}:{s + 1}], v[{t}:{t + 1}], v[{t + 2}:{t + 3}]")
                else:
                    e(f"v_max3_f32 v{m}, v{m}, v{t}, v{t + 2}")
                    e(f"v_max3_f32 v{m + 1}, v{m + 1}, v{t + 1}, v{t + 3}")
                    e(f"v_pk_add_f32 v[{t}:{t + 1}], v[{t}:{t + 1}], v[{t + 2}:{t + 3}]")
            if jj:
                for i in range(4):
                    t = T + 4 * i
                    s = SUM + 2 * i
                    e(f"v_pk_add_f32 v[{s}:{s + 1}], v[{s}:{s + 1}], v[{t}:{t + 1}]")

        for base in (MAX, SUM):
            for i in range(4):
                e(f"v_permlane32_swap_b32 v{base + i}, v{base + 4 + i}")
        for i in range(4):
            e(f"v_max_f32 v{MAX + i}, v{MAX + i}, v{MAX + 4 + i}")
        for i in range(4):
            e(f"v_add_f32 v{SUM + i}, v{SUM + i}, v{SUM + 4 + i}")
        for i in range(2):
            e(f"v_permlane16_swap_b32 v{MAX + i}, v{MAX + 2 + i}")
        for i in range(2):
            e(f"v_permlane16_swap_b32 v{SUM + i}, v{SUM + 2 + i}")
        for i in range(2):
            e(f"v_add_f32 v{SUM + i}, v{SUM + i}, v{SUM + 2 + i}")
        for i in range(2):
            e(f"v_max_f32 v{MAX + i}, v{MAX + i}, v{MAX + 2 + i}")
        e(f"s_cmp_ge_u32 s{S_WAVE}, 2")
        for i in range(2):
            e(f"v_add_f32_dpp v{SUM + i}, v{SUM + i}, v{SUM + i} row_ror:8 row_mask:0xf bank_mask:0x3")
        for i in range(2):
            e(f"v_max_f32_dpp v{SUM + i}, v{MAX + i}, v{MAX + i} row_ror:8 row_mask:0xf bank_mask:0xc")
        e(f"ds_write_b64 v2, v[{SUM}:{SUM + 1}] offset:{L_RED}")
        e("s_waitcnt lgkmcnt(0)")
        e("s_barrier")
        self.stamp(4)
        e("s_cbranch_scc1 L_nopub")

        e("s_mov_b32 exec_hi, 0xffff")
        for k in range(4):
            e(f"ds_read_b128 v[{4 + 4 * k}:{7 + 4 * k}], v3 offset:{L_RED + 1536 * k}")
        e(f"s_cmp_eq_u32 s{S_WAVE}, 0")
        e(f"s_cselect_b64 s[{S_W}:{S_W + 1}], s[36:37], s[38:39]")
        e("s_cbranch_scc0 L_pubmax")
        e("s_waitcnt lgkmcnt(2)")
        e("v_pk_add_f32 v[4:5], v[4:5], v[8:9]")
        e("v_pk_add_f32 v[6:7], v[6:7], v[10:11]")
        e("s_waitcnt lgkmcnt(0)")
        e("v_pk_add_f32 v[12:13], v[12:13], v[16:17]")
        e("v_pk_add_f32 v[14:15], v[14:15], v[18:19]")
        e("v_pk_add_f32 v[4:5], v[4:5], v[12:13]")
        e("v_pk_add_f32 v[6:7], v[6:7], v[14:15]")
        e("s_branch L_pub")
        e("L_pubmax:")
        e("s_waitcnt lgkmcnt(1)")
        for i in range(4):
            e(f"v_max3_f32 v{4 + i}, v{4 + i}, v{8 + i}, v{12 + i}")
        e("s_waitcnt lgkmcnt(0)")
        for i in range(4):
            e(f"v_max_f32 v{4 + i}, v{4 + i}, v{16 + i}")
        e("L_pub:")
        for i in range(4):
            e(f"v_and_or_b32 v{4 + i}, v{4 + i}, -16, s{S_TG[i]}")
        e(f"buffer_store_dwordx4 v[4:7], v3, s[{S_WS}:{S_WS + 3}], s{S_PO} offen{' sc1' if o.psc1 else ' nt' if o.pnt else ''}")
        e("s_mov_b64 exec, -1")
        e(f"s_movk_i32 s{S_W + 2}, 18432")
        e(f"s_mov_b32 s{S_W + 3}, 0x20000")
        e(f"s_mul_i32 s{S_T0}, s{S_WAVE}, 18432")
        e(f"s_addk_i32 s{S_T0}, {L_W1}")
        e(f"s_mov_b32 s{S_T1}, 0")
        e("v_lshlrev_b32 v2, 4, v1")
        e("L_wloop:")
        e(f"s_add_u32 m0, s{S_T0}, s{S_T1}")
        e(f"s_cmp_ge_u32 s{S_RID}, {NRED}")
        for k in range(3):
            e(f"buffer_load_dwordx4 v2, s[{S_W}:{S_W + 3}], s{S_T1} offen offset:{k * 1024} lds")
        e("s_cbranch_scc1 L_wnext")
        e(f"s_waitcnt vmcnt({o.wpace})")
        e("L_wnext:")
        e(f"s_addk_i32 s{S_T1}, 3072")
        e(f"s_cmp_lt_u32 s{S_T1}, 18432")
        e("s_cbranch_scc1 L_wloop")
        e("L_nopub:")

        B2 = 28
        V_H0, V_H1, V_SW, V_SR, V_Q = 24, 25, 26, 27, 37
        SP0 = 136
        A1 = 144
        B1 = [4, 8, 12, 16, 136, 140]
        e("v_lshrrev_b32 v20, 4, v1                  ; q")
        e(f"s_mov_b32 s{S_HOOK}, {SPIN - NFB}")
        e(f"s_cmp_lt_u32 s{S_WAVE}, 3")
        e("s_cbranch_scc1 L_spill")
        e(f"s_cmp_ge_u32 s{S_RID}, {NRED}")
        e("s_cbranch_scc1 L_barw")
        e(f"s_cmp_lg_u32 s{S_WAVE}, 3")
        e("s_cbranch_scc1 L_barw")

        def clean(lbl, d, a):
            e(f"s_cmp_lg_u32 s{S_WAVE}, 3")
            e(f"s_cbranch_scc1 {lbl}")
            if o.cw:
                e(f"v_mov_b32 v{d}, 0")
                e(f"v_lshlrev_b32 v{a}, {o.cw}, v1")
                e(f"s_mov_b64 exec, {(1 << (1536 >> o.cw)) - 1}")
                if o.cld:
                    e(f"buffer_atomic_or v{d}, v{a}, s[{S_WS}:{S_WS + 3}], s{S_PO} offen")
                else:
                    e(f"buffer_store_dword v{d}, v{a}, s[{S_WS}:{S_WS + 3}], s{S_PO} offen sc1")
                e("s_mov_b64 exec, -1")
                return
            for i in range(4):
                e(f"v_mov_b32 v{d + i}, 0")
            e(f"v_lshlrev_b32 v{a}, 4, v1")
            e("s_mov_b32 exec_hi, 0xffff")
            e(f"buffer_store_dwordx4 v[{d}:{d + 3}], v{a}, s[{S_WS}:{S_WS + 3}], s{S_PO} offen sc1")
            e(f"buffer_store_dwordx4 v[{d}:{d + 3}], v{a}, s[{S_WS}:{S_WS + 3}], s{S_PO} offen offset:768 sc1")
            e("s_mov_b64 exec, -1")

        def hook(lbl):
            e(f"s_cmp_lg_u32 s{S_CNT}, s{S_HOOK}")
            e(f"s_cbranch_scc1 {lbl}")
            e(f"s_call_b64 s[{S_RET}:{S_RET + 1}], L_flush")
            e(f"{lbl}:")

        e("v_lshrrev_b32 v2, 3, v1")
        e("v_mul_u32_u24 v2, 1536, v2")
        e("v_and_b32 v3, 7, v1")
        e(f"v_lshl_add_u32 v{V_Q}, v3, 4, v2")
        e(f"s_and_b32 s{S_T0}, s2, 7")
        e(f"s_mul_i32 s{S_V}, s{S_T0}, {32 * 1536}")
        e(f"s_lshl_b32 s{S_T1}, s{S_RID}, 7")
        e(f"s_add_u32 s{S_V}, s{S_V}, s{S_T1}")
        for k in range(1, 4):
            e(f"s_add_u32 s{S_V + k}, s{S_V}, {k * 8 * 1536}")
        e(f"s_lshl_b32 s{S_T0}, s{S_T0}, 8              ; group*256")
        e(f"s_lshr_b32 s{S_T1}, s{S_RID}, 2")
        e(f"s_lshl2_add_u32 s{S_T1}, s{S_T1}, s{S_RID}")
        e(f"s_lshl_b32 s{S_T1}, s{S_T1}, 11")
        e(f"s_add_u32 s{S_T1}, s{S_T1}, s{S_T0}")
        for k in range(o.qcopy // 2):
            e(f"s_add_u32 s{S_W + k}, s{S_T1}, {WS_Q + k * 49152}")
        e("v_and_b32 v2, 15, v1")
        e("v_lshlrev_b32 v3, 2, v2")
        e("v_bfe_u32 v2, v1, 4, 1")
        e("v_lshl_add_u32 v3, v2, 7, v3")
        e("v_lshrrev_b32 v2, 5, v1")
        e("v_lshl_add_u32 v3, v2, 13, v3             ; (l>>5)*8192 + ((l>>4)&1)*128 + (l&15)*4")
        e(f"s_lshl4_add_u32 s{S_T0}, s{S_TG[1]}, s{S_TG[0]}")
        e(f"s_xor_b32 s{S_CNT}, s{S_T0}, 0xff")
        e(f"s_lshl_b32 s{S_CNT}, s{S_CNT}, 8")
        e(f"s_or_b32 s{S_T0}, s{S_T0}, s{S_CNT}")
        e("v_and_b32 v2, 12, v3")
        e(f"v_bfe_u32 v23, s{S_T0}, v2, 4")
        e(f"s_mov_b32 s{S_CNT}, {SPIN}")
        e("L_rpoll:")
        hook("L_rnohook")
        for k in range(4):
            e(f"buffer_load_dwordx4 v[{4 + 4 * k}:{7 + 4 * k}], v{V_Q}, s[{S_WS}:{S_WS + 3}], s{S_V + k} offen sc1")
        e(f"s_sub_u32 s{S_CNT}, s{S_CNT}, 1")
        e("s_cbranch_scc1 L_rgot")
        for k in range(4):
            e(f"s_waitcnt vmcnt({3 - k})")
            for i in range(4):
                r, acc = 4 + 4 * k + i, 21 + (i & 1)
                if k == 0 and i < 2:
                    e(f"v_xor_b32 v{acc}, s{S_TG[i]}, v{r}")
                else:
                    e(f"v_bitop3_b32 v{acc}, v{acc}, v{r}, s{S_TG[i]} bitop3:0xf6   ; a | (b ^ c)")
        e("v_bitop3_b32 v21, v21, v22, 15 bitop3:0xa8          ; (a | b) & c")
        e("v_cmp_ne_u32 vcc, 0, v21")
        e("s_wqm_b64 exec, vcc                       ; 64-byte units still waiting poll again")
        e("s_cbranch_scc1 L_rpoll")
        e("L_rgot:")
        e("s_mov_b64 exec, -1")
        e("s_waitcnt vmcnt(0)")
        self.stamp(1, "r")
        e(f"s_cmp_ge_u32 s{S_RID}, 6")
        e("s_cbranch_scc1 L_rmax")
        for kind in (0, 1):
            op = "v_add_f32" if kind == 0 else "v_max_f32"
            if kind == 1:
                e("L_rmax:")
                for i in range(4):
                    e(f"v_max3_f32 v{4 + i}, v{4 + i}, v{8 + i}, v{12 + i}")
                for i in (0, 2, 1, 3):
                    e(f"v_max_f32 v{4 + i}, v{4 + i}, v{16 + i}")
            else:
                e("v_pk_add_f32 v[4:5], v[4:5], v[8:9]")
                e("v_pk_add_f32 v[6:7], v[6:7], v[10:11]")
                e("v_pk_add_f32 v[12:13], v[12:13], v[16:17]")
                e("v_pk_add_f32 v[14:15], v[14:15], v[18:19]")
                e("v_pk_add_f32 v[4:5], v[4:5], v[12:13]")
                e("v_pk_add_f32 v[6:7], v[6:7], v[14:15]")
                e("s_nop 0")
            e(f"{op}_dpp v4, v4, v4 row_ror:8 row_mask:0xf bank_mask:0x3")
            if kind == 0:
                e(f"{op}_dpp v5, v5, v5 row_ror:8 row_mask:0xf bank_mask:0x3")
                e(f"{op}_dpp v4, v6, v6 row_ror:8 row_mask:0xf bank_mask:0xc")
            else:
                e(f"{op}_dpp v4, v6, v6 row_ror:8 row_mask:0xf bank_mask:0xc")
                e(f"{op}_dpp v5, v5, v5 row_ror:8 row_mask:0xf bank_mask:0x3")
            e(f"{op}_dpp v5, v7, v7 row_ror:8 row_mask:0xf bank_mask:0xc")
            e("s_nop 1")
            e("v_permlane16_swap_b32 v4, v5")
            e(f"{op} v4, v4, v5")
            e("v_mov_b32 v5, v4")
            e("s_nop 1")
            e("v_permlane32_swap_b32 v4, v5")
            e(f"{op} v4, v4, v5                        ; lane 16a+8b+c: element 2b+a of piece c")
            if kind == 0:
                e("s_branch L_rpub")
        e("L_rpub:")
        e("v_and_or_b32 v4, v4, -16, v23")
        for k in range(o.qcopy // 2):
            e(f"buffer_store_dword v4, v3, s[{S_WS}:{S_WS + 3}], s{S_W + k} offen sc1")
            if k == 0:
                self.stamp(9)
        if o.clean == "r":
            for i in range(4):
                e(f"v_mov_b32 v{8 + i}, 0")
            for k in range(4):
                e(f"buffer_store_dwordx4 v[8:11], v{V_Q}, s[{S_WS}:{S_WS + 3}], s{S_V + k} offen sc1")
        e("s_barrier")
        e("s_branch L_afterw")

        e("L_spill:")
        e(f"s_lshl_b32 s{S_T0}, s{S_WAVE}, 13")
        e(f"v_lshl_add_u32 v{V_AT}, v1, 4, s{S_T0}")
        for k in range(8):
            e(f"ds_write_b128 v{V_AT}, v[{SP0 + 4 * k}:{SP0 + 4 * k + 3}] offset:{L_SPILL + 1024 * k}")
        e("L_barw:")
        e("s_waitcnt vmcnt(0) lgkmcnt(0)")
        e("s_barrier")
        e("L_afterw:")
        e("v_bfe_u32 v3, v1, 2, 2")
        e("v_lshl_add_u32 v21, v20, 3, v3            ; row")
        e("v_and_b32 v22, 15, v21                    ; row of the half step (q&1)")
        e("v_and_b32 v3, 3, v1")
        e(f"s_lshl_b32 s{S_T2}, s{S_WAVE}, 5")
        e(f"v_lshl_add_u32 v23, v3, 3, s{S_T2}          ; column bytes")
        e("v_mov_b32 v3, 384")
        e("v_mad_u32_u24 v2, v21, v3, v23")
        e("v_mad_u32_u24 v22, v22, v3, v23")
        e(f"ds_read_b64_tr_b16 v[{B2}:{B2 + 1}], v2 offset:{L_W2}")
        e(f"ds_read_b64_tr_b16 v[{B2 + 2}:{B2 + 3}], v2 offset:{L_W2 + 4 * 384}")
        e(f"ds_read_b64_tr_b16 v[{B2 + 4}:{B2 + 5}], v22 offset:{L_W2 + 32 * 384}")
        e(f"ds_read_b64_tr_b16 v[{B2 + 6}:{B2 + 7}], v22 offset:{L_W2 + 36 * 384}")
        e("v_and_b32 v2, 1, v1")
        e("v_mul_u32_u24 v22, 96, v2")
        e(f"v_lshl_add_u32 v{V_H0}, v20, 4, v22")
        e("v_and_b32 v3, 1, v20")
        e(f"v_lshl_add_u32 v{V_H1}, v3, 4, v22")
        e(f"s_lshl_b32 s{S_T0}, s{S_WAVE}, 6")
        e(f"v_lshl_add_u32 v{V_SW}, v1, 2, s{S_T0}")
        e("v_and_b32 v3, 7, v1")
        e(f"s_lshl_b32 s{S_T0}, s{S_TY}, 8")
        e(f"v_lshl_add_u32 v{V_SR}, v3, 5, s{S_T0}")
        e("s_waitcnt lgkmcnt(0)")
        e("s_mov_b32 exec_lo, 0")
        for i in range(4):
            e(f"v_mov_b32 v{B2 + 4 + i}, 0")
        e("s_mov_b64 exec, -1")
        e(f"s_cmp_ge_u32 s{S_WAVE}, 3")
        e("s_cbranch_scc1 L_noa1")
        e("v_mov_b32 v3, 96")
        e("v_mad_u32_u24 v2, v21, v3, v23")
        for s in range(6):
            for h in range(2):
                r = A1 + 4 * s + 2 * h
                e(f"ds_read_b64_tr_b16 v[{r}:{r + 1}], v2 offset:{L_W1 + s * 3072 + h * 384}")
        e("L_noa1:")
        e(f"v_lshl_add_u32 v3, v20, 3, v22")
        e(f"v_add_u32 v3, s{S_T2}, v3")
        e("v_lshlrev_b32 v2, 2, v22")
        e("v_lshl_add_u32 v2, v20, 4, v2")
        e("v_and_b32 v8, 1, v1")
        e("v_lshlrev_b32 v8, 4, v8")
        e("v_lshl_add_u32 v8, v20, 2, v8")
        e("v_and_b32 v9, 2, v1")
        e("v_bfe_u32 v10, v1, 2, 1")
        e("v_add3_u32 v8, v8, v9, v10")
        e(f"v_add_lshl_u32 v23, v8, s{S_T2}, 1")
        e("v_lshrrev_b32 v8, 2, v1")
        e("v_lshlrev_b32 v8, 7, v8")
        e("v_and_b32 v9, 3, v1")
        e(f"v_lshl_add_u32 v{V_Q}, v9, 4, v8")
        e(f"s_and_b32 s{S_T0}, s{S_QC}, 4")
        if o.qcopy > 2:
            e(f"s_and_b32 s{S_CNT}, s{S_QC}, {o.qcopy // 2 - 1}")
            e(f"s_mul_i32 s{S_CNT}, s{S_CNT}, 24")
            e(f"s_add_u32 s{S_T0}, s{S_T0}, s{S_CNT}")
        e(f"s_lshr_b32 s{S_T1}, s{S_WAVE}, 2")
        e(f"s_lshl2_add_u32 s{S_T1}, s{S_T1}, s{S_WAVE}")
        e(f"s_add_u32 s{S_T1}, s{S_T1}, s{S_T0}")
        e(f"s_lshl_b32 s{S_T1}, s{S_T1}, 11")
        e(f"s_add_u32 s{S_T1}, s{S_T1}, {WS_Q}")
        if o.clean in ("q", "p"):
            e(f"v_mov_b32 v19, s{S_TG[0]}")
            e(f"s_lshl_b32 s{S_V}, s{S_WAVE}, 7")
            e(f"s_add_u32 s{S_V}, s{S_V}, s{S_PO}")
        e(f"s_mov_b32 s{S_CNT}, {SPIN}")
        e(f"s_cmp_ge_u32 s{S_WAVE}, 6")
        e("s_cbranch_scc1 L_qpoll1")

        for kind in (0, 1):
            op = "v_add_f32" if kind == 0 else "v_max_f32"
            e(f"L_qpoll{kind}:")
            hook(f"L_qnohook{kind}")
            e(f"buffer_load_dwordx4 v[4:7], v{V_Q}, s[{S_WS}:{S_WS + 3}], s{S_T1} offen sc1")
            e(f"s_sub_u32 s{S_CNT}, s{S_CNT}, 1")
            e(f"s_cbranch_scc1 L_qgot{kind}")
            if o.qsleep:
                e(f"s_sleep {o.qsleep}")
            e("s_waitcnt vmcnt(0)")
            e(f"v_xor_b32 v21, s{S_TG[0]}, v4")
            e(f"v_xor_b32 v22, s{S_TG[1]}, v5")
            e(f"v_bitop3_b32 v21, v21, v6, s{S_TG[2]} bitop3:0xf6")
            e(f"v_bitop3_b32 v22, v22, v7, s{S_TG[3]} bitop3:0xf6")
            e("v_bitop3_b32 v21, v21, v22, 15 bitop3:0xa8")
            e("v_cmp_ne_u32 vcc, 0, v21")
            e("s_wqm_b64 exec, vcc")
            e(f"s_cbranch_scc1 L_qpoll{kind}")
            e(f"L_qgot{kind}:")
            if o.clean == "p":
                e("s_mov_b64 exec, 1")
                e(f"buffer_store_dword v19, off, s[{S_WS}:{S_WS + 3}], s{S_V} sc1")
            e("s_mov_b64 exec, -1")
            e(f"s_waitcnt vmcnt({1 if o.clean == 'p' else 0})")
            self.stamp(5)
            e("v_permlane32_swap_b32 v4, v6")
            e("v_permlane32_swap_b32 v5, v7")
            e(f"{op} v4, v4, v6")
            e(f"{op} v5, v5, v7")
            e("s_nop 1")
            e("v_permlane16_swap_b32 v4, v5")
            e(f"{op} v4, v4, v5")
            e(f"s_cmp_ge_u32 s{S_WAVE}, 3")
            e("s_nop 0")
            e(f"{op}_dpp v4, v4, v4 row_ror:8 row_mask:0xf bank_mask:0xf")
            if kind == 0:
                e("v_mul_f32 v4, 0x36800000, v4              ; 1/262144")
            e("v_cvt_pk_bf16_f32 v4, v4, v4")
            e(f"ds_write_b16 v23, v4 offset:{L_F}")
            if o.clean == "q":
                e("s_mov_b64 exec, 1")
                e(f"buffer_store_dword v19, off, s[{S_WS}:{S_WS + 3}], s{S_V} sc1")
                e("s_mov_b64 exec, -1")
            e("s_waitcnt lgkmcnt(0)")
            e("s_barrier")
            if kind == 0:
                e("s_cbranch_scc0 L_mlp1")
                if o.clean == "f":
                    clean("L_join", 16, 12)
            e("s_branch L_join")

        e("L_mlp1:")
        for s in range(6):
            e(f"ds_read_b128 v[{B1[s]}:{B1[s] + 3}], v2 offset:{L_F + 64 * s}")
        for s in range(6):
            c = "0" if s == 0 else "v[20:23]"
            b = B1[s]
            e(f"s_waitcnt lgkmcnt({5 - s})")
            e(f"v_mfma_f32_16x16x32_bf16 v[20:23], v[{A1 + 4 * s}:{A1 + 4 * s + 3}], v[{b}:{b + 3}], {c}")
        e("s_nop 3")
        e("s_mov_b32 exec_lo, 0x00030003")
        e("s_mov_b32 exec_hi, 0x00030003")
        e("s_nop 1")
        for i in range(4):
            e(f"v_maximum3_f32 v{20 + i}, v{20 + i}, 0, 0")
        e("v_cvt_pk_bf16_f32 v20, v20, v21")
        e("v_cvt_pk_bf16_f32 v21, v22, v23")
        e(f"ds_write_b64 v3, v[20:21] offset:{L_H}")
        e("s_mov_b64 exec, -1")
        e("s_waitcnt lgkmcnt(0)")

        e("L_join:")
        e("s_barrier")
        self.stamp(6)
        e(f"ds_read_b128 v[4:7], v{V_H0} offset:{L_H}")
        e(f"ds_read_b128 v[8:11], v{V_H1} offset:{L_H + 64}")
        e("s_waitcnt lgkmcnt(1)")
        e(f"v_mfma_f32_16x16x32_bf16 v[12:15], v[4:7], v[{B2}:{B2 + 3}], 0")
        e("s_waitcnt lgkmcnt(0)")
        e(f"v_mfma_f32_16x16x32_bf16 v[12:15], v[8:11], v[{B2 + 4}:{B2 + 7}], v[12:15]")
        e("s_mov_b64 exec, 0xffff")
        e("s_nop 6")
        e("v_cvt_pk_bf16_f32 v12, 0, v12")
        e("v_cvt_pk_bf16_f32 v13, 0, v13")
        e("v_add_f32 v12, v12, v13")
        e("v_cvt_pk_bf16_f32 v12, 0, v12")
        e("v_mul_f32 v12, 0xbfb8aa3b, v12            ; -log2(e)")
        e("v_exp_f32 v12, v12")
        e("s_nop 0")
        e("v_add_f32 v12, 1.0, v12")
        e("v_rcp_f32 v12, v12")
        e("s_nop 0")
        e("v_cvt_pk_bf16_f32 v12, 0, v12")
        e(f"ds_write_b32 v{V_SW}, v12 offset:{L_S}")
        e("s_mov_b64 exec, -1")
        e("s_waitcnt lgkmcnt(0)")
        e("s_barrier")
        e(f"ds_read_b128 v[4:7], v{V_SR} offset:{L_S}")
        e(f"ds_read_b128 v[8:11], v{V_SR} offset:{L_S + 16}")

        if o.stlim:
            e(f"s_cmp_lt_u32 s2, {o.stlim}")
            e(f"s_cselect_b32 s{S_OUT + 2}, s{S_OUT + 2}, 0")
        zorder = [int(v) for v in o.zorder.split(",")]
        assert sorted(zorder) == list(range(16))
        restored = False
        late = []

        def wbl2():
            wv, lim, pos = [int(v) for v in o.wb.split(",")]
            e(f"s_cmp_lt_u32 s{S_WAVE}, {wv}")
            e("s_cbranch_scc1 L_nowb")
            e(f"s_cmp_ge_u32 s2, {lim}")
            e("s_cbranch_scc1 L_nowb")
            if pos == 33:
                e("s_waitcnt vmcnt(0)")
            e("buffer_wbl2 sc1")
            e("L_nowb:")
        for n, j in enumerate([2 * z + u for z in zorder for u in (0, 1)]):
            a = D0 + 4 * j
            t0 = 12 + 8 * (n & 1)
            if a >= SP0 and not restored:
                assert n > 1
                e("s_waitcnt lgkmcnt(0)")
                restored = True
            md = o.mul
            for i in range(4 if md in ("pk", "mul", "u", "um") else 0):
                t = t0 + 2 * i
                e(f"v_lshlrev_b32 v{t}, 16, v{a + i}")
                e(f"v_and_b32 v{t + 1}, s{S_MASK}, v{a + i}")
            if n == 0:
                e("s_waitcnt lgkmcnt(0)")
                self.stamp(7)
                if md == "dot":
                    for i in range(4):
                        e(f"v_lshrrev_b32 v{4 + 2 * i}, 16, v{4 + 2 * i}")
            for i in range(4):
                t = t0 + 2 * i
                if md in ("pk", "um"):
                    e(f"v_pk_mul_f32 v[{t}:{t + 1}], v[{t}:{t + 1}], v[{4 + 2 * i}:{5 + 2 * i}]")
                if md == "mul":
                    e(f"v_mul_f32 v{t}, v{t}, v{4 + 2 * i}")
                    e(f"v_mul_f32 v{t + 1}, v{t + 1}, v{5 + 2 * i}")
                if md == "dot":
                    e(f"v_dot2_f32_bf16 v{t}, v{a + i}, v{4 + 2 * i}, 0")
                    e(f"v_dot2_f32_bf16 v{t + 1}, v{a + i}, v{5 + 2 * i}, 0")
            for i in range(4):
                t = t0 + 2 * i
                if md in ("pk", "mul", "dot"):
                    e(f"v_cvt_pk_bf16_f32 v{a + i}, v{t}, v{t + 1}")
                if md == "c":
                    e(f"v_cvt_pk_bf16_f32 v{a + i}, v{a + i}, v{a + (i ^ 1)}")
            def st(j=j, a=a, n=n):
                self.mem(j, lambda va, so: e(f"buffer_store_dwordx4 v[{a}:{a + 3}], {va}, s[{S_OUT}:{S_OUT + 3}], {so} offen{'' if n >= 32 - o.nplain else stf}"))
            if n < o.burst:
                st()
            else:
                late.append(st)
            if n == 31:
                for f in late:
                    f()
            if n + 1 in o.sbar:
                e("s_barrier")
            if o.sthr and n >= o.sthr:
                e(f"s_waitcnt vmcnt({o.sthr - 1})")
            if o.wb and int(o.wb.split(",")[2]) == n:
                wbl2()
            if n & 1:
                self.trace("st", n >> 1)
            if n == 1:
                e(f"s_cmp_ge_u32 s{S_WAVE}, 3")
                e("s_cbranch_scc1 L_norestore")
                for k in range(8):
                    e(f"ds_read_b128 v[{SP0 + 4 * k}:{SP0 + 4 * k + 3}], v{V_AT} offset:{L_SPILL + 1024 * k}")
                e("L_norestore:")
                if o.clean == "st":
                    clean("L_noclean", 28, 32)
                    e("L_noclean:")
        if o.clean == "e":
            clean("L_noclean", 28, 32)
            e("L_noclean:")
        if o.wb and int(o.wb.split(",")[2]) >= 32:
            wbl2()
        if o.stamps:
            self.stamp(8)
            e("s_waitcnt vmcnt(0)")
            self.stamp(10)
            if o.idleclk:
                e(f"s_cmp_lg_u32 s{S_WAVE}, 11")
                e("s_cbranch_scc1 L_noidle")
                for lbl, dur, m, r in (("a", o.idleclk, 1, 3), ("b", 2000, 2, 6)):
                    e("s_memrealtime s[96:97]")
                    e("s_waitcnt lgkmcnt(0)")
                    e(f"L_idle{lbl}:")
                    e("s_sleep 4")
                    e("s_memrealtime s[98:99]")
                    e("s_waitcnt lgkmcnt(0)")
                    e("s_sub_u32 s98, s98, s96")
                    e(f"s_cmp_lt_u32 s98, {dur}")
                    e(f"s_cbranch_scc1 L_idle{lbl}")
                    e(f"s_memtime s[{S_STAMP + 2 * m}:{S_STAMP + 2 * m + 1}]")
                    e(f"s_memrealtime s[{S_STAMP + 2 * r}:{S_STAMP + 2 * r + 1}]")
                e("L_noidle:")
            e("s_getreg_b32 s94, hwreg(HW_REG_XCC_ID)")
            e("s_getreg_b32 s95, hwreg(HW_REG_HW_ID)")
            e("s_waitcnt lgkmcnt(0)")
            e("v_mov_b32 v2, 0")
            for i in range(11 if o.trace else 14):
                e(f"v_writelane_b32 v2, s{S_STAMP + 2 * i}, {i}")
            e("v_writelane_b32 v2, s94, 14")
            e("v_writelane_b32 v2, s95, 15")
            e(f"s_mul_i32 s{S_T0}, s2, 12")
            e(f"s_add_u32 s{S_T0}, s{S_T0}, s{S_WAVE}")
            e(f"s_lshl_b32 s{S_T0}, s{S_T0}, 6")
            e(f"s_add_u32 s{S_T0}, s{S_T0}, {WS_STAMP}")
            e("v_mbcnt_lo_u32_b32 v3, -1, 0")
            e("v_lshlrev_b32 v3, 2, v3")
            e("s_mov_b64 exec, 0xffff")
            e(f"buffer_store_dword v2, v3, s[{S_WS}:{S_WS + 3}], s{S_T0} offen sc1")
            if o.trace:
                e("s_mov_b32 s91, s92")
                for i in range(16):
                    e(f"v_writelane_b32 v2, s{76 + i}, {i}")
                e(f"s_add_u32 s{S_T0}, s{S_T0}, {1 << 19}")
                e(f"buffer_store_dword v2, v3, s[{S_WS}:{S_WS + 3}], s{S_T0} offen sc1")
        if o.dbgptr:
            e("s_cmp_lg_u32 s2, 0")
            e("s_cbranch_scc1 L_nodp")
            e("s_mov_b64 exec, -1")
            e("v_mov_b32 v2, 0")
            for i, r in enumerate((4, 5, 8, 9, 12, 13, 16, 17, 0, 1)):
                e(f"v_writelane_b32 v2, s{r}, {i}")
            e("v_mbcnt_lo_u32_b32 v3, -1, 0")
            e("v_lshlrev_b32 v3, 2, v3")
            e("s_mov_b64 exec, 0x3ff")
            e(f"buffer_store_dword v2, v3, s[{S_DBG}:{S_DBG + 3}], 0 offen offset:8")
            e("L_nodp:")
        if o.probe:
            idx, K = [int(v) for v in o.probe.split(",")]
            if idx == -2:
                e("s_getreg_b32 s94, hwreg(HW_REG_XCC_ID)")
                e("s_xor_b32 s94, s94, s2")
                e("s_and_b32 s94, s94, 7")
                e("s_cbranch_scc0 L_end")
            elif idx == -3:
                e("s_cmp_lg_u32 s2, 0")
                e("s_cbranch_scc1 L_end")
            else:
                e("s_cmp_lg_u32 s2, 0")
                e("s_cbranch_scc1 L_end")
            e(f"s_cmp_lg_u32 s{S_WAVE}, 0")
            e("s_cbranch_scc1 L_end")
            if idx == -4:
                c0, c1, r0, r1 = ((11, 12, 0, 7), (12, 13, 7, 10))[K]
                e(f"s_sub_u32 s94, s{S_STAMP + 2 * c1}, s{S_STAMP + 2 * c0}")
                e(f"s_sub_u32 s95, s{S_STAMP + 2 * r1}, s{S_STAMP + 2 * r0}")
                e("v_cvt_f32_u32 v4, s94")
                e("v_cvt_f32_u32 v5, s95")
                e("v_rcp_f32 v5, v5")
                e("s_nop 1")
                e("v_mul_f32 v4, v4, v5")
                e("v_mul_f32 v4, 0x44fa0000, v4")
                e("v_cvt_u32_f32 v4, v4")
                e("s_nop 1")
                e("v_readfirstlane_b32 s96, v4")
                e("s_sub_u32 s96, s96, 31000")
            elif idx <= -10:
                e(f"s_bfe_u32 s94, s{-idx - 10}, {(7 << 16)} + {K}")
                e("s_mul_i32 s96, s94, 200")
                e("s_add_u32 s96, s96, 5000")
            elif idx == -3:
                e("s_getreg_b32 s94, hwreg(HW_REG_XCC_ID)")
                e("s_and_b32 s94, s94, 7")
                e(f"s_mul_i32 s96, s94, {K}")
                e("s_add_u32 s96, s96, 5000")
            elif idx < 0:
                e(f"s_mov_b32 s96, {K}")
            else:
                e(f"s_sub_u32 s96, s{S_STAMP + 2 * idx}, s{S_STAMP}")
                e(f"s_mul_i32 s96, s96, {K}")
            e("s_min_u32 s96, s96, 200000")
            e("L_probe:")
            e("s_memrealtime s[98:99]")
            e("s_waitcnt lgkmcnt(0)")
            e(f"s_sub_u32 s98, s98, s{S_STAMP}")
            e("s_cmp_lt_u32 s98, s96")
            e("s_cbranch_scc1 L_probe")
        e("L_end:")
        e("s_endpgm")

        e("L_role:")
        e("s_load_dwordx4 s[44:47], s[0:1], 32")
        e(f"s_cmp_eq_u32 s2, {NVOTE_WG}")
        e("s_cbranch_scc1 L_tag")
        e(f"s_bfe_u32 s{S_V + 1}, s2, 0x20003")
        e(f"s_sub_u32 s{S_T1}, s{S_OUT}, s{S_X}")
        e(f"s_add_u32 s{S_T1}, s{S_T1}, 2048")
        e(f"s_bitcmp1_b32 s{S_T1}, 12")
        e(f"s_cselect_b32 s{S_V}, {o.quorum}, {o.quorum4}")
        e(f"s_cselect_b32 s{S_V + 2}, s{S_V + 1}, 1")
        e(f"s_and_b32 s{S_T1}, s2, 1")
        e(f"s_lshl1_add_u32 s{S_T1}, s{S_T1}, 1")
        e(f"s_cmp_eq_u32 s{S_V + 2}, 2")
        e(f"s_cselect_b32 s{S_V + 1}, s{S_T1}, s{S_V + 1}")
        e(f"s_bitcmp1_b32 s{S_V + 1}, 0")
        e(f"s_cselect_b64 s[{S_W}:{S_W + 1}], s[8:9], s[4:5]")
        e(f"s_lshr_b32 s{S_T1}, s{S_V + 1}, 1")
        e(f"s_lshl3_add_u32 s{S_T1}, s{S_T1}, 8")
        e(f"s_and_b32 s{S_T2}, s2, 7")
        e(f"s_add_u32 s{S_T1}, s{S_T1}, s{S_T2}")
        e(f"s_lshl_b32 s{S_T1}, s{S_T1}, 22")
        e(f"s_add_u32 s{S_T0}, s{S_T0}, s{S_T1}")
        e(f"s_cmp_lg_u32 s{S_V + 2}, 0")
        e(f"s_cselect_b32 s{S_V + 3}, s{S_OUT}, 0")
        e("s_cbranch_scc1 L_notws")
        e("s_waitcnt lgkmcnt(0)")
        e(f"s_mov_b64 s[{S_W}:{S_W + 1}], s[46:47]")
        e(f"s_mov_b32 s{S_T0}, {WS_PROBE}")
        e("L_notws:")
        e(f"s_lshl_b32 s{S_T1}, s2, 4")
        e(f"s_and_b32 s{S_T1}, s{S_T1}, 256")
        e(f"s_add_u32 s{S_T0}, s{S_T0}, s{S_T1}")
        e(f"s_and_b32 s{S_T1}, s2, 15")
        e(f"s_mulk_i32 s{S_T1}, {16384 + 512}")
        e(f"s_add_u32 s{S_T0}, s{S_T0}, s{S_T1}")
        e(f"s_add_u32 s{S_T1}, s{S_T0}, 8192")
        self.stamp(1, True)
        e(f"s_load_dword s42, s[{S_W}:{S_W + 1}], s{S_T0} glc")
        e(f"s_load_dword s43, s[{S_W}:{S_W + 1}], s{S_T1} glc")
        e(f"s_mov_b32 s{S_CNT}, {-(NRACE // 2)}")
        for k in range(NRACE):
            e("s_waitcnt lgkmcnt(0)")
            if k < 2:
                self.stamp(2 + k, True)
                if o.vdiag:
                    e("s_waitcnt lgkmcnt(0)")
            first, second = (S_T0, S_T1) if k % 2 == 0 else (S_T1, S_T0)
            e(f"s_load_dword s42, s[{S_W}:{S_W + 1}], s{first} glc")
            e(f"s_load_dword s43, s[{S_W}:{S_W + 1}], s{second} glc")
            e("s_waitcnt lgkmcnt(1)")
            e("s_nop 7")
            e(f"s_getreg_b32 s{S_T2}, hwreg(HW_REG_IB_STS, 8, 4)   ; 1: the second answer is still out")
            if k % 2 == 0:
                e(f"s_xor_b32 s{S_T2}, s{S_T2}, 1")
            e(f"s_add_u32 s{S_CNT}, s{S_CNT}, s{S_T2}")
        assert NRACE % 2 == 0 and max(o.quorum, o.quorum4) * NRACE // 2 < 32 and max(o.quorum, o.quorum4) <= NVOTE_WG
        e(f"s_sub_u32 s{S_T2}, 0, s{S_CNT}")
        e(f"s_add_u32 s{S_T0}, s{S_T0}, s{S_V + 3}")
        e(f"s_lshr_b32 s{S_T0}, s{S_T0}, 19")
        e(f"s_xor_b32 s{S_T0}, s{S_T0}, s2")
        e(f"s_bitcmp1_b32 s{S_T0}, 2")
        e(f"s_cselect_b32 s{S_CNT}, s{S_T2}, s{S_CNT}")
        e(f"s_mul_i32 s{S_T0}, s{S_V + 1}, 6")
        e(f"s_add_u32 s{S_T0}, s{S_T0}, 7")
        e(f"s_lshl_b32 s{S_CNT}, s{S_CNT}, s{S_T0}")
        e(f"s_or_b32 s{S_CNT}, s{S_CNT}, 1")
        e(f"s_mov_b32 s{S_T1}, s{S_CNT}")
        self.stamp(6, True)
        e(f"s_atomic_add s{S_T1}, s[44:45], {DBG_TAL} glc")
        e(f"s_add_u32 s{S_CNT}, s{S_CNT}, {sum(31 << (7 + 6 * t) for t in range(4))}")
        e("s_waitcnt lgkmcnt(0)")
        e(f"s_add_u32 s{S_T1}, s{S_T1}, s{S_CNT}")
        self.stamp(13)
        e(f"s_and_b32 s{S_T0}, s{S_T1}, 0x7f")
        e(f"s_cmp_lg_u32 s{S_T0}, s{S_V}")
        e("s_cbranch_scc1 L_stream")
        e(f"s_and_b32 s{S_T1}, s{S_T1}, {sum(32 << (7 + 6 * t) for t in range(4))}")
        e(f"s_bitset1_b32 s{S_T1}, 9")
        e("L_publish:")
        e(f"s_atomic_add s{S_T1}, s[44:45], {DBG_RES}")
        e("s_waitcnt lgkmcnt(0)")
        e("s_branch L_stream")

        e("L_tag:")
        e(f"s_mov_b32 s{S_T1}, 1")
        e("s_waitcnt lgkmcnt(0)")
        e(f"s_atomic_add s{S_T1}, s[46:47], {WS_E} glc")
        e("s_waitcnt lgkmcnt(0)")
        e(f"s_add_u32 s{S_T1}, s{S_T1}, 1")
        e(f"s_and_b32 s{S_T1}, s{S_T1}, 0xff")
        e(f"s_bitset1_b32 s{S_T1}, 8")
        self.stamp(13)
        e("s_branch L_publish")

        e("L_flush:")
        e(f"s_mov_b32 s{S_HOOK}, {SPIN}")
        e("s_mov_b32 exec_lo, -1")
        e("s_mov_b32 exec_hi, 0xffff")
        e("v_lshlrev_b32 v17, 4, v1")
        e("L_floop:")
        e(f"buffer_load_dwordx4 v[8:11], v17, s[{S_WS}:{S_WS + 3}], s{S_PO} offen sc1")
        e(f"buffer_load_dwordx4 v[12:15], v17, s[{S_WS}:{S_WS + 3}], s{S_PO} offen offset:768 sc1")
        e(f"s_sub_u32 s{S_HOOK}, s{S_HOOK}, 1")
        e("s_waitcnt vmcnt(0)")
        e(f"v_xor_b32 v16, s{S_TG[0]}, v8")
        for r in range(9, 16):
            e(f"v_bitop3_b32 v16, v16, v{r}, s{S_TG[r & 3]} bitop3:0xf6")
        e("v_and_b32 v16, 15, v16")
        e("v_cmp_ne_u32 vcc, 0, v16")
        e("s_cbranch_scc1 L_fdone")
        e("s_cbranch_vccnz L_floop")
        e("L_fdone:")
        e(f"buffer_store_dwordx4 v[8:11], v17, s[{S_WS}:{S_WS + 3}], s{S_PO} offen sc1")
        e(f"buffer_store_dwordx4 v[12:15], v17, s[{S_WS}:{S_WS + 3}], s{S_PO} offen offset:768 sc1")
        e("s_waitcnt vmcnt(0)")
        e("s_mov_b64 exec, -1")
        e(f"s_mov_b32 s{S_HOOK}, -1")
        e(f"s_setpc_b64 s[{S_RET}:{S_RET + 1}]")

        e("L_dpoll:")
        e(f"s_mov_b32 s{S_CNT}, {SPIN}")
        e(f"v_mov_b32 v{V_AT}, 0")
        e("s_mov_b64 exec, 1")
        e("L_dloop:")
        e(f"buffer_load_dword v{V_AT}, off, s[{S_DBG}:{S_DBG + 3}], 0 offset:{DBG_RES} sc1")
        e(f"s_sleep {o.dsleep}")
        e("s_waitcnt vmcnt(24)")
        e(f"v_readfirstlane_b32 s{S_T2}, v{V_AT}          ; whatever poll has landed last")
        e(f"s_sub_u32 s{S_CNT}, s{S_CNT}, 1")
        e("s_cbranch_scc1 L_dgot")
        e(f"s_andn2_b32 s{S_OFF}, {RES_OK}, s{S_T2}")
        e("s_cbranch_scc1 L_dloop")
        e("L_dgot:")
        e("s_mov_b64 exec, -1")
        e("s_branch L_decided")

        e("L_codeend:")
        e("s_endpgm")

    def text(self):
        out = HEADER
        out += f"; @launch grid=({NWG},1,1) block=(768,1,1) lds={L_TOTAL}\n"
        out += '.amdgcn_target "amdgcn-amd-amdhsa--gfx950"\n.text\n'
        out += f".globl {KNAME}\n.p2align 8\n.type {KNAME},@function\n{KNAME}:\n"
        out += "\n".join(self.lines) + "\n"
        out += f""".section .rodata,"a"
.p2align 6
.amdhsa_kernel {KNAME}
  .amdhsa_next_free_vgpr 168
  .amdhsa_next_free_sgpr {100 if self.o.stamps else 56}
  .amdhsa_accum_offset 168
  .amdhsa_group_segment_fixed_size 0
  .amdhsa_kernarg_size 48
  .amdhsa_user_sgpr_count 2
  .amdhsa_user_sgpr_kernarg_segment_ptr 1
  .amdhsa_system_sgpr_workgroup_id_x 1
  .amdhsa_float_denorm_mode_32 3
.end_amdhsa_kernel
"""
        return out


def main():
    p = argparse.ArgumentParser()
    p.add_argument("-o", default="standalone__channel_attn_cbam__vision.s")
    p.add_argument("--ldflags", default="nt")
    p.add_argument("--stflags", default="sc1")
    p.add_argument("--p1flags", default="sc1")
    p.add_argument("--stamps", action="store_true")
    p.add_argument("--probe", default="")
    p.add_argument("--depth", type=int, default=10)
    p.add_argument("--nrace", type=int, default=2)
    p.add_argument("--dsleep", type=int, default=8)
    p.add_argument("--trace", default="")
    p.add_argument("--nodec", action="store_true")
    p.add_argument("--vdiag", action="store_true")
    p.add_argument("--dbgptr", action="store_true")
    p.add_argument("--opp", default="5,9", type=lambda v: [int(x) for x in v.split(",")])
    p.add_argument("--quorum", type=int, default=16)
    p.add_argument("--quorum4", type=int, default=24)
    p.add_argument("--nvote", type=int, default=32)
    p.add_argument("--nagn", type=int, default=6)
    p.add_argument("--stlim", type=int, default=0)
    p.add_argument("--psc1", action="store_true")
    p.add_argument("--pnt", action="store_true")
    p.add_argument("--qshift", type=int, default=32)
    p.add_argument("--rolepos", type=int, default=8)
    p.add_argument("--prebar", type=int, default=1)
    p.add_argument("--qmap", type=int, default=0)
    p.add_argument("--agnu", type=int, default=4)
    p.add_argument("--warmst", type=int, default=0)
    p.add_argument("--cw", type=int, default=0)
    p.add_argument("--cld", action="store_true")
    p.add_argument("--qflip", type=int, default=0)
    p.add_argument("--qcopy", type=int, default=4)
    p.add_argument("--mul", default="pk")
    p.add_argument("--burst", type=int, default=32)
    p.add_argument("--idleclk", type=int, default=0)
    p.add_argument("--clk", action="store_true")
    p.add_argument("--sthr", type=int, default=0)
    p.add_argument("--sbar", default=[], type=lambda v: [int(x) for x in v.split(",")])
    p.add_argument("--piece", type=int, default=128)
    p.add_argument("--xbar", default=[24], type=lambda v: [int(x) for x in v.split(",")])
    p.add_argument("--cpf", type=int, default=0)
    p.add_argument("--cpfpos", type=int, default=0)
    p.add_argument("--wpace", type=int, default=40)
    p.add_argument("--clean", default="q")
    p.add_argument("--warm", type=int, default=30)
    p.add_argument("--warmwave", type=int, default=4)
    p.add_argument("--qsleep", type=int, default=0)
    p.add_argument("--red0", type=int, default=8)
    p.add_argument("--redstep", type=int, default=2)
    p.add_argument("--off", default="", help="diagnostics: v = no votes, c = no clears, r = result not read")
    p.add_argument("--spans", default="")
    p.add_argument("--split", action="store_true")
    p.add_argument("--pfback", type=int, default=0)
    p.add_argument("--nplain", type=int, default=0)
    p.add_argument("--wb", default="", help="minwave,wglimit,pos")
    p.add_argument("--thr", type=int, default=2)
    p.add_argument("--thrfrom", type=int, default=12)
    p.add_argument("--thrto", type=int, default=24)
    p.add_argument("--thrmask", default="0x55")
    p.add_argument("--zorder", default="8,0,9,1,10,2,11,3,12,4,13,5,14,6,15,7")
    o = p.parse_args()
    global NAGN, SPANS, NVOTE_WG
    NVOTE_WG = o.nvote
    NAGN = o.nagn
    if NAGN == 6:
        SPANS = [(0, 0), (0, 1), (1, 0), (1, 1), (2, 0), (2, 1),
                 (3, 0), (3, 1), (4, 0), (4, 1), (5, 0), (5, 1), (6, 0), (6, 1), (7, 0), (7, 1)]
        if o.zorder == p.get_default("zorder"):
            o.zorder = "6,0,7,8,1,9,2,10,11,3,12,4,13,14,5,15"
    if o.spans:
        SPANS = [(int(v[0]), int(v[1])) for v in o.spans.split(",")]
        assert sorted(SPANS) == [(a, b) for a in range(8) for b in range(2)]
    g = G(o)
    g.build()
    open(o.o, "w").write(g.text())


if __name__ == "__main__":
    main()
```

```python
import argparse

KNAME = "standalone__channel_attn_cbam__vision_kernel"

HEADER = """; Kernarg layout for this problem (48 bytes, ptrs only, base s[0:1]):
;   offset   0: d_in[0] x  shape=(1, 512, 512, 192) dtype=bfloat16 strides=(100663296, 196608, 384, 2) contiguous=True
;   offset   8: d_in[1] w1  shape=(192, 48) dtype=bfloat16 strides=(96, 2) contiguous=True
;   offset  16: d_in[2] w2  shape=(48, 192) dtype=bfloat16 strides=(384, 2) contiguous=True
;   offset  40: d_ws      402653184 bytes workspace (unspecified values whenever your kernel or launch list starts; a list's later launches find what earlier ones wrote)
"""

X_BYTES = 100663296
NWG = 256
NRED = 12
MiB = 1 << 20

L_RED = 0
L_H = 6144
L_DEC = 6336
L_S = 6400
L_F = 7168
L_W1 = 8192
L_W2 = L_W1 + 18432
L_SPILL = L_W2 + 18432
L_TOTAL = L_SPILL + 3 * 8192

WS_P = 0
WS_Q = 256 * 1536
WS_E = WS_Q + 4 * 49152
WS_USED = WS_E + 128
WS_PROBE = 640 * 1024
WS_STAMP = 1 << 20

S_X, S_OUT, S_WS, S_DBG, S_W = 4, 8, 12, 16, 20
S_WAVE, S_TY, S_SUB, S_OFF, S_MASK, S_CNT, S_T0, S_T1 = 28, 29, 30, 31, 32, 33, 34, 35
S_BASE, S_PM, S_P, S_T2 = 48, 49, 50, 51
S_AGN, S_RID, S_PO = 40, 42, 43
S_TG = [41, 47, 3, 0]
S_RET, S_HOOK, S_QC = 38, 46, 1
S_BASE1 = 45
NFB = 48
S_STAMP = 52
S_V = 24

D0 = 40
SPIN = 400000
V_L, V_G0, V_G1, V_AT = 0, 39, 38, 36

NAGN = 8
SPANS = [(0, 0), (0, 1), (1, 0), (1, 1), (2, 0), (2, 1), (3, 0), (3, 1),
         (6, 0), (4, 0), (6, 1), (4, 1), (7, 0), (5, 0), (7, 1), (5, 1)]
W_ROLE = 0
DBG_RES, DBG_TAL = 0, 128
NVOTE_WG = 32
RES_OK = (1 << 9) | (1 << 8)


def mask(pred):
    return sum(1 << z for z, s in enumerate(SPANS) if pred(z, s))


class G:
    def __init__(self, o):
        self.o = o
        self.lines = []

    def e(self, s=""):
        self.lines.append(("    " + s) if s and not s.endswith(":") else s)

    def stamp(self, idx, vote=False):
        if self.o.clk:
            if idx in (11, 12, 13):
                return
            m = {0: 11, 7: 12, 10: 13}.get(idx)
            if m:
                self.e(f"s_memtime s[{S_STAMP + 2 * m}:{S_STAMP + 2 * m + 1}]")
        if vote == "r":
            vote = False
        if self.o.vdiag and idx in (1, 2, 3, 6) and not vote:
            return
        if vote and not self.o.vdiag:
            return
        if self.o.stamps and not (self.o.trace and idx > 10):
            self.e(f"s_memrealtime s[{S_STAMP + 2 * idx}:{S_STAMP + 2 * idx + 1}]")

    def srd(self, d, lo, nbytes):
        e = self.e
        e(f"s_mov_b64 s[{d}:{d + 1}], s[{lo}:{lo + 1}]")
        e(f"s_mov_b32 s{d + 2}, {nbytes}")
        e(f"s_mov_b32 s{d + 3}, 0x20000")

    def span_off(self, z):
        return SPANS[z][0] * 12 * MiB + SPANS[z][1] * 49152

    def mem(self, j, fn):
        e = self.e
        z, u = j >> 1, j & 1
        if z < NAGN:
            off = (j // self.o.agnu) * self.o.agnu * 3 * MiB + (j % self.o.agnu) * 12288
            if off:
                e(f"s_add_u32 s{S_OFF}, s{S_AGN}, {off}")
                fn(f"v{V_L}", f"s{S_OFF}")
            else:
                fn(f"v{V_L}", f"s{S_AGN}")
            return
        if u == 0:
            e(f"s_bitcmp1_b32 s{S_PM}, {z}")
            e(f"s_cselect_b32 s{S_P}, 24576, 0")
        e(f"s_add_u32 s{S_OFF}, s{(S_BASE, S_BASE1)[SPANS[z][1]]}, {SPANS[z][0] * 12 * MiB + 12288 * u}")
        at = 2 + u
        e(f"v_xad_u32 v{at}, v{(V_G0, V_G1)[u]}, s{S_P}, v{V_L}")
        if SPANS[z] == (7, 1):
            e(f"v_add_u32 v{at}, s{S_OFF}, v{at}")
            e(f"v_subrev_u32 v{5 - at}, s{S_X + 2}, v{at}")
            e(f"v_min_u32 v{at}, v{at}, v{5 - at}             ; past the end: wrap to the rows the shift skipped")
            fn(f"v{at}", "0")
        else:
            fn(f"v{at}", f"s{S_OFF}")

    def trace(self, kind, n):
        if self.o.trace == kind:
            if n > 0:
                self.e("s_waitcnt lgkmcnt(0)")
                self.e(f"s_mov_b32 s{76 + n - 1}, s92")
            self.e("s_memrealtime s[92:93]")

    def build(self):
        o, e = self.o, self.e
        NRACE = o.nrace
        ldf = (" " + o.ldflags) if o.ldflags else ""
        stf = (" " + o.stflags) if o.stflags else ""

        self.stamp(0)
        e("s_load_dwordx2 s[4:5], s[0:1], 0          ; x")
        e("s_load_dwordx2 s[8:9], s[0:1], 24         ; out")
        e("v_readfirstlane_b32 s%d, v0" % S_WAVE)
        e("v_and_b32 v1, 63, v0                      ; lane")
        pl = (o.piece // 16).bit_length() - 1
        e(f"v_bfe_u32 v2, v0, {pl}, {6 - pl}")
        e(f"v_mul_u32_u24 v2, {3 * o.piece}, v2")
        e(f"v_and_b32 v3, {(1 << pl) - 1}, v0")
        e("s_cmpk_ge_u32 s2, %d" % NWG)
        e("s_cbranch_scc1 L_end")
        e(f"s_lshr_b32 s{S_WAVE}, s{S_WAVE}, 6")
        e(f"s_mul_i32 s{S_SUB}, s{S_WAVE}, 43")
        e(f"s_lshr_b32 s{S_SUB}, s{S_SUB}, 7")
        e(f"s_mul_i32 s{S_T0}, s{S_SUB}, {3072 // o.piece - 3}")
        e(f"s_add_u32 s{S_T0}, s{S_T0}, s{S_WAVE}        ; sub*24 + wave % 3")
        e(f"s_lshl_b32 s{S_T0}, s{S_T0}, {pl + 4}")
        e("v_lshl_add_u32 v0, v3, 4, v2")
        e(f"v_add_u32 v{V_L}, s{S_T0}, v0               ; + sub*3072 + (wave % 3)*128")
        if o.qmap == 0:
            e(f"s_and_b32 s{S_T0}, s2, 3")
            e(f"s_bfe_u32 s{S_T1}, s2, 0x10002")
            e(f"s_lshl1_add_u32 s{S_T0}, s{S_T0}, s{S_T1}")
            e(f"s_and_b32 s{S_T1}, s2, -8")
            e(f"s_add_u32 s{S_T0}, s{S_T0}, s{S_T1}")
        else:
            e(f"s_and_b32 s{S_T0}, s2, 7")
            e(f"s_lshl_b32 s{S_T0}, s{S_T0}, 5")
            e(f"s_lshr_b32 s{S_T1}, s2, 3")
            e(f"s_add_u32 s{S_T0}, s{S_T0}, s{S_T1}")
        e(f"s_mul_i32 s{S_AGN}, s{S_T0}, {o.agnu * 12288}")
        e(f"s_mov_b32 s{S_X + 2}, {X_BYTES}")
        e(f"s_mov_b32 s{S_X + 3}, 0x20000")
        e(f"s_lshl_b32 s{S_T1}, s{S_WAVE}, 8")
        e(f"s_or_b32 s{S_T1}, s{S_T1}, s2")
        e("s_waitcnt lgkmcnt(0)")
        e(f"s_lshr_b32 s{S_T0}, s{S_OUT}, 7")
        e(f"s_mul_i32 s{S_T0}, s{S_T0}, 21              ; -43 mod 64")
        e(f"s_and_b32 s{S_T0}, s{S_T0}, 63")
        e(f"s_mulk_i32 s{S_T0}, 384")
        e(f"s_add_u32 s{S_AGN}, s{S_AGN}, s{S_T0}")
        assert W_ROLE == 0

        SUM, MAX, T = 4, 12, 20
        DEPTH = o.depth
        seq = []

        def issue(j):
            if j == o.rolepos:
                e(f"s_cmp_le_u32 s{S_T1}, {NVOTE_WG}              ; wave 0 of the first workgroups has a side job")
                e("s_cbranch_scc1 L_role")
                e("L_stream:")
            if o.cpf and j == o.cpfpos:
                e(f"s_sub_u32 s{S_T1}, s{S_T1}, 256")
                e(f"s_cmp_ge_u32 s{S_T1}, {o.cpf}")
                e("s_cbranch_scc1 L_nocpf")
                e("s_getpc_b64 s[20:21]")
                e("v_lshlrev_b32 v2, 7, v1")
                e("v_add_u32 v3, 8192, v2")
                e("v_min_u32 v3, L_codeend - L_nocpf, v3")
                e("global_load_dword v36, v2, s[20:21]")
                e("global_load_dword v37, v3, s[20:21]")
                e("L_nocpf:")
            if j == max(4, o.rolepos):
                e("s_load_dwordx4 s[36:39], s[0:1], 8        ; w1, w2")
                e(f"s_load_dwordx2 s[{S_DBG}:{S_DBG + 1}], s[0:1], 32")
                e(f"s_load_dwordx2 s[{S_WS}:{S_WS + 1}], s[0:1], 40")
                e(f"s_mov_b32 s{S_MASK}, 0xffff0000")
            if j == 2 * NAGN:
                e(f"s_mul_i32 s{S_TY}, s{S_SUB}, 3")
                e(f"s_sub_u32 s{S_TY}, s{S_WAVE}, s{S_TY}        ; ty = wave % 3")
                e(f"s_mov_b32 s{S_OUT + 2}, s{S_X + 2}")
                e(f"s_mov_b32 s{S_OUT + 3}, s{S_X + 3}")
                e(f"s_mov_b32 s{S_WS + 2}, {(2 << 20) if o.stamps else WS_USED}")
                e(f"s_mov_b32 s{S_WS + 3}, s{S_X + 3}")
                e(f"s_movk_i32 s{S_DBG + 2}, 256")
                e(f"s_mov_b32 s{S_DBG + 3}, s{S_X + 3}")
                e(f"s_movk_i32 s{S_T2}, 24576")
                e(f"v_bfe_u32 v{V_G0}, v{V_L}, 13, 1")
                e(f"v_add_u32 v{V_G1}, 12288, v{V_L}")
                e(f"v_bfe_u32 v{V_G1}, v{V_G1}, 13, 1")
                e(f"v_mul_u32_u24 v{V_G0}, s{S_T2}, v{V_G0}")
                e(f"v_mul_u32_u24 v{V_G1}, s{S_T2}, v{V_G1}")
                e(f"s_bfe_i32 s{S_PM}, s2, 0x10002              ; -side")
                e(f"s_lshr_b32 s{S_T0}, s{S_OUT}, 7")
                e(f"s_mul_i32 s{S_T0}, s{S_T0}, 21")
                e(f"s_and_b32 s{S_T0}, s{S_T0}, 63")
                e(f"s_mulk_i32 s{S_T0}, 384")
                e(f"s_and_b32 s{S_T1}, s2, 3")
                e(f"s_lshr_b32 s{S_BASE}, s2, 3")
                if o.qmap == 0:
                    e(f"s_lshl2_add_u32 s{S_BASE}, s{S_BASE}, s{S_T1}")
                else:
                    e(f"s_lshl_b32 s{S_T1}, s{S_T1}, 5")
                    e(f"s_add_u32 s{S_BASE}, s{S_BASE}, s{S_T1}")
                e(f"s_add_u32 s{S_BASE1}, s{S_BASE}, {o.qshift}")
                e(f"s_and_b32 s{S_BASE1}, s{S_BASE1}, 127")
                e(f"s_mul_i32 s{S_BASE}, s{S_BASE}, 98304")
                e(f"s_add_u32 s{S_BASE}, s{S_BASE}, s{S_T0}        ; the pair's first span of a step")
                e(f"s_mul_i32 s{S_BASE1}, s{S_BASE1}, 98304")
                e(f"s_add_u32 s{S_BASE1}, s{S_BASE1}, s{S_T0}")
                e(f"s_add_u32 s{S_BASE1}, s{S_BASE1}, 49152      ; its second span: 3 MiB on, where the memory stacks swap")
                h1 = mask(lambda z, s: s[1] == 1)
                e(f"s_add_u32 s{S_T2}, s{S_T2}, s{S_OUT}")
                e(f"s_add_u32 s{S_T0}, s{S_BASE}, s{S_T2}")
                e(f"s_bfe_i32 s{S_T1}, s{S_T0}, 0x10015")
                e(f"s_xor_b32 s{S_PM}, s{S_PM}, s{S_T1}")
                e(f"s_add_u32 s{S_T2}, s{S_BASE1}, s{S_T2}")
                e(f"s_xor_b32 s{S_T0}, s{S_T0}, s{S_T2}")
                e(f"s_bfe_i32 s{S_T0}, s{S_T0}, 0x10015")
                e(f"s_and_b32 s{S_T0}, s{S_T0}, {h1}")
                e(f"s_xor_b32 s{S_PM}, s{S_PM}, s{S_T0}")
                m1 = mask(lambda z, s: z >= NAGN and s[0] in (3, 4))
                z50 = SPANS.index((5, 0))
                z51 = SPANS.index((5, 1))
                dec = mask(lambda z, s: z >= NAGN)
                e(f"s_cmp_lt_u32 s{S_BASE}, {4 * MiB - 24576}")
                e(f"s_cselect_b32 s{S_T0}, {1 << z50}, 0")
                e(f"s_or_b32 s{S_T0}, s{S_T0}, {m1}")
                e(f"s_cmp_lt_u32 s{S_BASE1}, {4 * MiB - 24576}")
                e(f"s_cselect_b32 s{S_T1}, {1 << z51}, 0")
                e(f"s_or_b32 s{S_T0}, s{S_T0}, s{S_T1}            ; third 1")
                e(f"s_xor_b32 s{S_T1}, s{S_T0}, {dec}           ; third 2")
                per, pat = o.opp
                rep = sum(((pat >> (i % per)) & 1) << i for i in range(32))
                e(f"s_lshr_b32 s{S_P}, s2, 3")
                e(f"s_mul_i32 s{S_T2}, s{S_P}, {-(-256 // per)}")
                e(f"s_lshr_b32 s{S_T2}, s{S_T2}, 8")
                e(f"s_mul_i32 s{S_T2}, s{S_T2}, {per}")
                e(f"s_sub_u32 s{S_P}, s{S_P}, s{S_T2}             ; (b >> 3) % {per}")
                e(f"s_lshr_b32 s{S_P}, {rep}, s{S_P}")
                e(f"s_sub_u32 s{S_T2}, s{S_OUT}, s{S_X}")
                e(f"s_add_u32 s{S_T2}, s{S_T2}, 2048")
                e(f"s_bitcmp1_b32 s{S_T2}, 12")
                e(f"s_cselect_b32 s{S_P}, 0, s{S_P}")
                e(f"s_lshr_b32 s{S_T2}, s2, 3")
                e(f"s_sub_u32 s{S_RID}, s{S_T2}, {o.red0}")
                e(f"s_and_b32 s{S_PO}, s2, 7")
                e(f"s_lshl_b32 s{S_PO}, s{S_PO}, 5")
                e(f"s_add_u32 s{S_PO}, s{S_PO}, s{S_T2}")
                e(f"s_mulk_i32 s{S_PO}, 1536")
                e("s_waitcnt lgkmcnt(0)")
                self.stamp(11)
                e("s_barrier")
                e(f"s_load_dword s{S_T2}, s[{S_DBG}:{S_DBG + 1}], {DBG_RES}")
                e("s_waitcnt lgkmcnt(0)")
                e(f"s_andn2_b32 s{S_CNT}, {RES_OK}, s{S_T2}")
                e("s_cbranch_scc1 L_dpoll")
                e("L_decided:")
                for i in range(4):
                    e(f"s_bitcmp1_b32 s{S_T2}, {7 + 6 * i + 5}")
                    e(f"s_cselect_b32 s{S_V + i}, s{(S_T0, S_T1)[i >> 1]}, 0")
                e(f"s_or_b32 s{S_V}, s{S_V}, s{S_V + 2}")
                e(f"s_or_b32 s{S_V + 1}, s{S_V + 1}, s{S_V + 3}")
                e(f"s_xor_b32 s{S_V}, s{S_V}, s{S_V + 1}")
                e(f"s_and_b32 s{S_V}, s{S_V}, s{S_P}")
                e(f"s_xor_b32 s{S_V}, s{S_V}, s{S_V + 1}")
                e(f"s_xor_b32 s{S_PM}, s{S_PM}, s{S_V}")
                e(f"s_and_b32 s{S_TG[0]}, s{S_T2}, 15")
                e(f"s_bfe_u32 s{S_TG[1]}, s{S_T2}, 0x40004")
                e(f"s_xor_b32 s{S_TG[2]}, s{S_TG[0]}, 15")
                e(f"s_xor_b32 s{S_TG[3]}, s{S_TG[1]}, 15")
                e(f"s_lshr_b32 s{S_QC}, s{S_T2}, 10")
                e(f"s_and_b32 s{S_QC}, s{S_QC}, 4")
                e(f"s_xor_b32 s{S_QC}, s{S_QC}, s2             ; bits 2:0: the second-stage copy near this die")
                self.stamp(12)
            if j in o.xbar:
                e("s_barrier")
                if j == o.xbar[-1]:
                    self.stamp(2, "r")
            if j == o.warm and o.warmst:
                e(f"s_cmp_ge_u32 s{S_WAVE}, 2")
                e("s_cbranch_scc1 L_nowarm")
                for i in range(4):
                    e(f"v_mov_b32 v{20 + i}, 0")
                e(f"s_mul_i32 s{S_T0}, s{S_WAVE}, 768")
                e(f"v_lshl_add_u32 v3, v1, 4, s{S_T0}")
                e("s_mov_b32 exec_hi, 0xffff")
                e(f"buffer_store_dwordx4 v[20:23], v3, s[{S_WS}:{S_WS + 3}], s{S_PO} offen")
                e("s_mov_b64 exec, -1")
                e("L_nowarm:")
            if j == o.warm and not o.warmst:
                e(f"s_cmp_lg_u32 s{S_WAVE}, {o.warmwave}")
                e("s_cbranch_scc1 L_nowarm")
                e("v_lshlrev_b32 v3, 7, v1")
                e("s_mov_b64 exec, 0xfff")
                e(f"buffer_load_dword v37, v3, s[{S_WS}:{S_WS + 3}], s{S_PO} offen")
                e("s_mov_b64 exec, -1")
                e("L_nowarm:")
            r = D0 + 4 * j
            if o.thr and j == 10:
                e(f"s_getreg_b32 s{S_T0}, hwreg(HW_REG_XCC_ID, 0, 3)")
                e(f"s_lshr_b32 s{S_T0}, {o.thrmask}, s{S_T0}")
                e(f"s_and_b32 vcc_lo, s{S_T0}, 1")
                e("s_mov_b32 vcc_hi, 0")
            if o.thr and o.thrfrom <= j < o.thrto:
                e(f"s_cbranch_vccz L_thr{j}")
                e(f"s_waitcnt vmcnt({o.thr - 1})")
                e(f"L_thr{j}:")
            self.mem(j, lambda va, so: e(f"buffer_load_dwordx4 v[{r}:{r + 3}], {va}, s[{S_X}:{S_X + 3}], {so} offen{ldf}"))
            seq.append(j)
            if j & 1:
                self.trace("ld", j >> 1)

        def wait_for(j):
            e(f"s_waitcnt vmcnt({len(seq) - 1 - seq.index(j)})")

        nxt = 0
        for jj in range(16):
            while nxt < 32 and nxt < max(2 * jj + DEPTH + 2, 2 * NAGN + 2 if o.prebar else 0):
                issue(nxt)
                nxt += 1
                if nxt == 32:
                    self.stamp(1)
            a, b = D0 + 8 * jj, D0 + 8 * jj + 4
            if jj == 15:
                e("v_and_b32 v2, 7, v1")
                e("v_lshlrev_b32 v2, 5, v2                   ; (l&7)*32")
                e("v_lshrrev_b32 v3, 4, v1")
                e("v_lshl_add_u32 v2, v3, 3, v2              ; + (l>>4)*8")
                e("v_bfe_u32 v3, v1, 3, 1")
                e("v_mul_u32_u24 v3, 768, v3")
                e(f"s_mul_i32 s{S_T0}, s{S_SUB}, 1536")
                e(f"s_lshl_b32 s{S_T1}, s{S_TY}, 8")
                e(f"s_add_u32 s{S_T0}, s{S_T0}, s{S_T1}")
                e(f"v_add3_u32 v2, v2, v3, s{S_T0}")
                e(f"s_mul_i32 s{S_T0}, s{S_WAVE}, 768")
                e(f"v_lshl_add_u32 v3, v1, 4, s{S_T0}")
                for r in (a, b):
                    wait_for((r - D0) // 4)
                    if r == b:
                        self.stamp(3)
                    for i in range(4):
                        t = T + 2 * i
                        e(f"v_lshlrev_b32 v{t}, 16, v{r + i}")
                        e(f"v_and_b32 v{t + 1}, s{S_MASK}, v{r + i}")
                    for i in range(8):
                        e(f"v_max_f32 v{MAX + i}, v{MAX + i}, v{T + i}")
                    for i in range(4):
                        t, s = T + 2 * i, SUM + 2 * i
                        e(f"v_pk_add_f32 v[{s}:{s + 1}], v[{s}:{s + 1}], v[{t}:{t + 1}]")
                continue
            wait_for(2 * jj + 1)
            if jj == 0 and not o.xbar:
                self.stamp(2)
            for i in range(4):
                t = T + 4 * i
                e(f"v_lshlrev_b32 v{t}, 16, v{a + i}")
                e(f"v_and_b32 v{t + 1}, s{S_MASK}, v{a + i}")
                e(f"v_lshlrev_b32 v{t + 2}, 16, v{b + i}")
                e(f"v_and_b32 v{t + 3}, s{S_MASK}, v{b + i}")
            for i in range(4):
                t = T + 4 * i
                s, m = SUM + 2 * i, MAX + 2 * i
                if jj == 0:
                    e(f"v_max_f32 v{m}, v{t}, v{t + 2}")
                    e(f"v_max_f32 v{m + 1}, v{t + 1}, v{t + 3}")
                    e(f"v_pk_add_f32 v[{s}:{s + 1}], v[{t}:{t + 1}], v[{t + 2}:{t + 3}]")
                else:
                    e(f"v_max3_f32 v{m}, v{m}, v{t}, v{t + 2}")
                    e(f"v_max3_f32 v{m + 1}, v{m + 1}, v{t + 1}, v{t + 3}")
                    e(f"v_pk_add_f32 v[{t}:{t + 1}], v[{t}:{t + 1}], v[{t + 2}:{t + 3}]")
            if jj:
                for i in range(4):
                    t = T + 4 * i
                    s = SUM + 2 * i
                    e(f"v_pk_add_f32 v[{s}:{s + 1}], v[{s}:{s + 1}], v[{t}:{t + 1}]")

        for base in (MAX, SUM):
            for i in range(4):
                e(f"v_permlane32_swap_b32 v{base + i}, v{base + 4 + i}")
        for i in range(4):
            e(f"v_max_f32 v{MAX + i}, v{MAX + i}, v{MAX + 4 + i}")
        for i in range(4):
            e(f"v_add_f32 v{SUM + i}, v{SUM + i}, v{SUM + 4 + i}")
        for i in range(2):
            e(f"v_permlane16_swap_b32 v{MAX + i}, v{MAX + 2 + i}")
        for i in range(2):
            e(f"v_permlane16_swap_b32 v{SUM + i}, v{SUM + 2 + i}")
        for i in range(2):
            e(f"v_add_f32 v{SUM + i}, v{SUM + i}, v{SUM + 2 + i}")
        for i in range(2):
            e(f"v_max_f32 v{MAX + i}, v{MAX + i}, v{MAX + 2 + i}")
        e(f"s_cmp_ge_u32 s{S_WAVE}, 2")
        for i in range(2):
            e(f"v_add_f32_dpp v{SUM + i}, v{SUM + i}, v{SUM + i} row_ror:8 row_mask:0xf bank_mask:0x3")
        for i in range(2):
            e(f"v_max_f32_dpp v{SUM + i}, v{MAX + i}, v{MAX + i} row_ror:8 row_mask:0xf bank_mask:0xc")
        e(f"ds_write_b64 v2, v[{SUM}:{SUM + 1}] offset:{L_RED}")
        e("s_waitcnt lgkmcnt(0)")
        e("s_barrier")
        self.stamp(4)
        e("s_cbranch_scc1 L_nopub")

        e("s_mov_b32 exec_hi, 0xffff")
        for k in range(4):
            e(f"ds_read_b128 v[{4 + 4 * k}:{7 + 4 * k}], v3 offset:{L_RED + 1536 * k}")
        e(f"s_cmp_eq_u32 s{S_WAVE}, 0")
        e(f"s_cselect_b64 s[{S_W}:{S_W + 1}], s[36:37], s[38:39]")
        e("s_cbranch_scc0 L_pubmax")
        e("s_waitcnt lgkmcnt(2)")
        e("v_pk_add_f32 v[4:5], v[4:5], v[8:9]")
        e("v_pk_add_f32 v[6:7], v[6:7], v[10:11]")
        e("s_waitcnt lgkmcnt(0)")
        e("v_pk_add_f32 v[12:13], v[12:13], v[16:17]")
        e("v_pk_add_f32 v[14:15], v[14:15], v[18:19]")
        e("v_pk_add_f32 v[4:5], v[4:5], v[12:13]")
        e("v_pk_add_f32 v[6:7], v[6:7], v[14:15]")
        e("s_branch L_pub")
        e("L_pubmax:")
        e("s_waitcnt lgkmcnt(1)")
        for i in range(4):
            e(f"v_max3_f32 v{4 + i}, v{4 + i}, v{8 + i}, v{12 + i}")
        e("s_waitcnt lgkmcnt(0)")
        for i in range(4):
            e(f"v_max_f32 v{4 + i}, v{4 + i}, v{16 + i}")
        e("L_pub:")
        for i in range(4):
            e(f"v_and_or_b32 v{4 + i}, v{4 + i}, -16, s{S_TG[i]}")
        e(f"buffer_store_dwordx4 v[4:7], v3, s[{S_WS}:{S_WS + 3}], s{S_PO} offen{' sc1' if o.psc1 else ' nt' if o.pnt else ''}")
        e("s_mov_b64 exec, -1")
        e(f"s_movk_i32 s{S_W + 2}, 18432")
        e(f"s_mov_b32 s{S_W + 3}, 0x20000")
        e(f"s_mul_i32 s{S_T0}, s{S_WAVE}, 18432")
        e(f"s_addk_i32 s{S_T0}, {L_W1}")
        e(f"s_mov_b32 s{S_T1}, 0")
        e("v_lshlrev_b32 v2, 4, v1")
        e("L_wloop:")
        e(f"s_add_u32 m0, s{S_T0}, s{S_T1}")
        e(f"s_cmp_ge_u32 s{S_RID}, {NRED}")
        for k in range(3):
            e(f"buffer_load_dwordx4 v2, s[{S_W}:{S_W + 3}], s{S_T1} offen offset:{k * 1024} lds")
        e("s_cbranch_scc1 L_wnext")
        e(f"s_waitcnt vmcnt({o.wpace})")
        e("L_wnext:")
        e(f"s_addk_i32 s{S_T1}, 3072")
        e(f"s_cmp_lt_u32 s{S_T1}, 18432")
        e("s_cbranch_scc1 L_wloop")
        e("L_nopub:")

        B2 = 28
        V_H0, V_H1, V_SW, V_SR, V_Q = 24, 25, 26, 27, 37
        SP0 = 136
        A1 = 144
        B1 = [4, 8, 12, 16, 136, 140]
        e("v_lshrrev_b32 v20, 4, v1                  ; q")
        e(f"s_mov_b32 s{S_HOOK}, {SPIN - NFB}")
        e(f"s_cmp_lt_u32 s{S_WAVE}, 3")
        e("s_cbranch_scc1 L_spill")
        e(f"s_cmp_ge_u32 s{S_RID}, {NRED}")
        e("s_cbranch_scc1 L_barw")
        e(f"s_cmp_lg_u32 s{S_WAVE}, 3")
        e("s_cbranch_scc1 L_barw")

        def clean(lbl, d, a):
            e(f"s_cmp_lg_u32 s{S_WAVE}, 3")
            e(f"s_cbranch_scc1 {lbl}")
            if o.cw:
                e(f"v_mov_b32 v{d}, 0")
                e(f"v_lshlrev_b32 v{a}, {o.cw}, v1")
                e(f"s_mov_b64 exec, {(1 << (1536 >> o.cw)) - 1}")
                if o.cld:
                    e(f"buffer_atomic_or v{d}, v{a}, s[{S_WS}:{S_WS + 3}], s{S_PO} offen")
                else:
                    e(f"buffer_store_dword v{d}, v{a}, s[{S_WS}:{S_WS + 3}], s{S_PO} offen sc1")
                e("s_mov_b64 exec, -1")
                return
            for i in range(4):
                e(f"v_mov_b32 v{d + i}, 0")
            e(f"v_lshlrev_b32 v{a}, 4, v1")
            e("s_mov_b32 exec_hi, 0xffff")
            e(f"buffer_store_dwordx4 v[{d}:{d + 3}], v{a}, s[{S_WS}:{S_WS + 3}], s{S_PO} offen sc1")
            e(f"buffer_store_dwordx4 v[{d}:{d + 3}], v{a}, s[{S_WS}:{S_WS + 3}], s{S_PO} offen offset:768 sc1")
            e("s_mov_b64 exec, -1")

        def hook(lbl):
            e(f"s_cmp_lg_u32 s{S_CNT}, s{S_HOOK}")
            e(f"s_cbranch_scc1 {lbl}")
            e(f"s_call_b64 s[{S_RET}:{S_RET + 1}], L_flush")
            e(f"{lbl}:")

        e("v_lshrrev_b32 v2, 3, v1")
        e("v_mul_u32_u24 v2, 1536, v2")
        e("v_and_b32 v3, 7, v1")
        e(f"v_lshl_add_u32 v{V_Q}, v3, 4, v2")
        e(f"s_and_b32 s{S_T0}, s2, 7")
        e(f"s_mul_i32 s{S_V}, s{S_T0}, {32 * 1536}")
        e(f"s_lshl_b32 s{S_T1}, s{S_RID}, 7")
        e(f"s_add_u32 s{S_V}, s{S_V}, s{S_T1}")
        for k in range(1, 4):
            e(f"s_add_u32 s{S_V + k}, s{S_V}, {k * 8 * 1536}")
        e(f"s_lshl_b32 s{S_T0}, s{S_T0}, 8              ; group*256")
        e(f"s_lshr_b32 s{S_T1}, s{S_RID}, 2")
        e(f"s_lshl2_add_u32 s{S_T1}, s{S_T1}, s{S_RID}")
        e(f"s_lshl_b32 s{S_T1}, s{S_T1}, 11")
        e(f"s_add_u32 s{S_T1}, s{S_T1}, s{S_T0}")
        for k in range(o.qcopy // 2):
            e(f"s_add_u32 s{S_W + k}, s{S_T1}, {WS_Q + k * 49152}")
        e("v_and_b32 v2, 15, v1")
        e("v_lshlrev_b32 v3, 2, v2")
        e("v_bfe_u32 v2, v1, 4, 1")
        e("v_lshl_add_u32 v3, v2, 7, v3")
        e("v_lshrrev_b32 v2, 5, v1")
        e("v_lshl_add_u32 v3, v2, 13, v3             ; (l>>5)*8192 + ((l>>4)&1)*128 + (l&15)*4")
        e(f"s_lshl4_add_u32 s{S_T0}, s{S_TG[1]}, s{S_TG[0]}")
        e(f"s_xor_b32 s{S_CNT}, s{S_T0}, 0xff")
        e(f"s_lshl_b32 s{S_CNT}, s{S_CNT}, 8")
        e(f"s_or_b32 s{S_T0}, s{S_T0}, s{S_CNT}")
        e("v_and_b32 v2, 12, v3")
        e(f"v_bfe_u32 v23, s{S_T0}, v2, 4")
        e(f"s_mov_b32 s{S_CNT}, {SPIN}")
        e("L_rpoll:")
        hook("L_rnohook")
        for k in range(4):
            e(f"buffer_load_dwordx4 v[{4 + 4 * k}:{7 + 4 * k}], v{V_Q}, s[{S_WS}:{S_WS + 3}], s{S_V + k} offen sc1")
        e(f"s_sub_u32 s{S_CNT}, s{S_CNT}, 1")
        e("s_cbranch_scc1 L_rgot")
        for k in range(4):
            e(f"s_waitcnt vmcnt({3 - k})")
            for i in range(4):
                r, acc = 4 + 4 * k + i, 21 + (i & 1)
                if k == 0 and i < 2:
                    e(f"v_xor_b32 v{acc}, s{S_TG[i]}, v{r}")
                else:
                    e(f"v_bitop3_b32 v{acc}, v{acc}, v{r}, s{S_TG[i]} bitop3:0xf6   ; a | (b ^ c)")
        e("v_bitop3_b32 v21, v21, v22, 15 bitop3:0xa8          ; (a | b) & c")
        e("v_cmp_ne_u32 vcc, 0, v21")
        e("s_wqm_b64 exec, vcc                       ; 64-byte units still waiting poll again")
        e("s_cbranch_scc1 L_rpoll")
        e("L_rgot:")
        e("s_mov_b64 exec, -1")
        e("s_waitcnt vmcnt(0)")
        self.stamp(1, "r")
        e(f"s_cmp_ge_u32 s{S_RID}, 6")
        e("s_cbranch_scc1 L_rmax")
        for kind in (0, 1):
            op = "v_add_f32" if kind == 0 else "v_max_f32"
            if kind == 1:
                e("L_rmax:")
                for i in range(4):
                    e(f"v_max3_f32 v{4 + i}, v{4 + i}, v{8 + i}, v{12 + i}")
                for i in (0, 2, 1, 3):
                    e(f"v_max_f32 v{4 + i}, v{4 + i}, v{16 + i}")
            else:
                e("v_pk_add_f32 v[4:5], v[4:5], v[8:9]")
                e("v_pk_add_f32 v[6:7], v[6:7], v[10:11]")
                e("v_pk_add_f32 v[12:13], v[12:13], v[16:17]")
                e("v_pk_add_f32 v[14:15], v[14:15], v[18:19]")
                e("v_pk_add_f32 v[4:5], v[4:5], v[12:13]")
                e("v_pk_add_f32 v[6:7], v[6:7], v[14:15]")
                e("s_nop 0")
            e(f"{op}_dpp v4, v4, v4 row_ror:8 row_mask:0xf bank_mask:0x3")
            if kind == 0:
                e(f"{op}_dpp v5, v5, v5 row_ror:8 row_mask:0xf bank_mask:0x3")
                e(f"{op}_dpp v4, v6, v6 row_ror:8 row_mask:0xf bank_mask:0xc")
            else:
                e(f"{op}_dpp v4, v6, v6 row_ror:8 row_mask:0xf bank_mask:0xc")
                e(f"{op}_dpp v5, v5, v5 row_ror:8 row_mask:0xf bank_mask:0x3")
            e(f"{op}_dpp v5, v7, v7 row_ror:8 row_mask:0xf bank_mask:0xc")
            e("s_nop 1")
            e("v_permlane16_swap_b32 v4, v5")
            e(f"{op} v4, v4, v5")
            e("v_mov_b32 v5, v4")
            e("s_nop 1")
            e("v_permlane32_swap_b32 v4, v5")
            e(f"{op} v4, v4, v5                        ; lane 16a+8b+c: element 2b+a of piece c")
            if kind == 0:
                e("s_branch L_rpub")
        e("L_rpub:")
        e("v_and_or_b32 v4, v4, -16, v23")
        for k in range(o.qcopy // 2):
            e(f"buffer_store_dword v4, v3, s[{S_WS}:{S_WS + 3}], s{S_W + k} offen sc1")
            if k == 0:
                self.stamp(9)
        if o.clean == "r":
            for i in range(4):
                e(f"v_mov_b32 v{8 + i}, 0")
            for k in range(4):
                e(f"buffer_store_dwordx4 v[8:11], v{V_Q}, s[{S_WS}:{S_WS + 3}], s{S_V + k} offen sc1")
        e("s_barrier")
        e("s_branch L_afterw")

        e("L_spill:")
        e(f"s_lshl_b32 s{S_T0}, s{S_WAVE}, 13")
        e(f"v_lshl_add_u32 v{V_AT}, v1, 4, s{S_T0}")
        for k in range(8):
            e(f"ds_write_b128 v{V_AT}, v[{SP0 + 4 * k}:{SP0 + 4 * k + 3}] offset:{L_SPILL + 1024 * k}")
        e("L_barw:")
        e("s_waitcnt vmcnt(0) lgkmcnt(0)")
        e("s_barrier")
        e("L_afterw:")
        e("v_bfe_u32 v3, v1, 2, 2")
        e("v_lshl_add_u32 v21, v20, 3, v3            ; row")
        e("v_and_b32 v22, 15, v21                    ; row of the half step (q&1)")
        e("v_and_b32 v3, 3, v1")
        e(f"s_lshl_b32 s{S_T2}, s{S_WAVE}, 5")
        e(f"v_lshl_add_u32 v23, v3, 3, s{S_T2}          ; column bytes")
        e("v_mov_b32 v3, 384")
        e("v_mad_u32_u24 v2, v21, v3, v23")
        e("v_mad_u32_u24 v22, v22, v3, v23")
        e(f"ds_read_b64_tr_b16 v[{B2}:{B2 + 1}], v2 offset:{L_W2}")
        e(f"ds_read_b64_tr_b16 v[{B2 + 2}:{B2 + 3}], v2 offset:{L_W2 + 4 * 384}")
        e(f"ds_read_b64_tr_b16 v[{B2 + 4}:{B2 + 5}], v22 offset:{L_W2 + 32 * 384}")
        e(f"ds_read_b64_tr_b16 v[{B2 + 6}:{B2 + 7}], v22 offset:{L_W2 + 36 * 384}")
        e("v_and_b32 v2, 1, v1")
        e("v_mul_u32_u24 v22, 96, v2")
        e(f"v_lshl_add_u32 v{V_H0}, v20, 4, v22")
        e("v_and_b32 v3, 1, v20")
        e(f"v_lshl_add_u32 v{V_H1}, v3, 4, v22")
        e(f"s_lshl_b32 s{S_T0}, s{S_WAVE}, 6")
        e(f"v_lshl_add_u32 v{V_SW}, v1, 2, s{S_T0}")
        if o.mul == "dot":
            e("v_mov_b32 v3, 0")
            e("s_mov_b64 exec, 0xffff")
            e(f"ds_write_b32 v{V_SW}, v3 offset:{L_S}")
            e("s_mov_b64 exec, -1")
            e(f"v_lshl_add_u32 v{V_SW}, v2, 1, v{V_SW}")
        e("v_and_b32 v3, 7, v1")
        e(f"s_lshl_b32 s{S_T0}, s{S_TY}, 8")
        e(f"v_lshl_add_u32 v{V_SR}, v3, 5, s{S_T0}")
        e("s_waitcnt lgkmcnt(0)")
        e("s_mov_b32 exec_lo, 0")
        for i in range(4):
            e(f"v_mov_b32 v{B2 + 4 + i}, 0")
        e("s_mov_b64 exec, -1")
        e(f"s_cmp_ge_u32 s{S_WAVE}, 3")
        e("s_cbranch_scc1 L_noa1")
        e("v_mov_b32 v3, 96")
        e("v_mad_u32_u24 v2, v21, v3, v23")
        for s in range(6):
            for h in range(2):
                r = A1 + 4 * s + 2 * h
                e(f"ds_read_b64_tr_b16 v[{r}:{r + 1}], v2 offset:{L_W1 + s * 3072 + h * 384}")
        e("L_noa1:")
        e(f"v_lshl_add_u32 v3, v20, 3, v22")
        e(f"v_add_u32 v3, s{S_T2}, v3")
        e("v_lshlrev_b32 v2, 2, v22")
        e("v_lshl_add_u32 v2, v20, 4, v2")
        e("v_and_b32 v8, 1, v1")
        e("v_lshlrev_b32 v8, 4, v8")
        e("v_lshl_add_u32 v8, v20, 2, v8")
        e("v_and_b32 v9, 2, v1")
        e("v_bfe_u32 v10, v1, 2, 1")
        e("v_add3_u32 v8, v8, v9, v10")
        e(f"v_add_lshl_u32 v23, v8, s{S_T2}, 1")
        e("v_lshrrev_b32 v8, 2, v1")
        e("v_lshlrev_b32 v8, 7, v8")
        e("v_and_b32 v9, 3, v1")
        e(f"v_lshl_add_u32 v{V_Q}, v9, 4, v8")
        e(f"s_and_b32 s{S_T0}, s{S_QC}, 4")
        if o.qcopy > 2:
            e(f"s_and_b32 s{S_CNT}, s{S_QC}, {o.qcopy // 2 - 1}")
            e(f"s_mul_i32 s{S_CNT}, s{S_CNT}, 24")
            e(f"s_add_u32 s{S_T0}, s{S_T0}, s{S_CNT}")
        e(f"s_lshr_b32 s{S_T1}, s{S_WAVE}, 2")
        e(f"s_lshl2_add_u32 s{S_T1}, s{S_T1}, s{S_WAVE}")
        e(f"s_add_u32 s{S_T1}, s{S_T1}, s{S_T0}")
        e(f"s_lshl_b32 s{S_T1}, s{S_T1}, 11")
        e(f"s_add_u32 s{S_T1}, s{S_T1}, {WS_Q}")
        if o.clean in ("q", "p"):
            e(f"v_mov_b32 v19, s{S_TG[0]}")
            e(f"s_lshl_b32 s{S_V}, s{S_WAVE}, 7")
            e(f"s_add_u32 s{S_V}, s{S_V}, s{S_PO}")
        e(f"s_mov_b32 s{S_CNT}, {SPIN}")
        e(f"s_cmp_ge_u32 s{S_WAVE}, 6")
        e("s_cbranch_scc1 L_qpoll1")

        for kind in (0, 1):
            op = "v_add_f32" if kind == 0 else "v_max_f32"
            e(f"L_qpoll{kind}:")
            hook(f"L_qnohook{kind}")
            e(f"buffer_load_dwordx4 v[4:7], v{V_Q}, s[{S_WS}:{S_WS + 3}], s{S_T1} offen sc1")
            e(f"s_sub_u32 s{S_CNT}, s{S_CNT}, 1")
            e(f"s_cbranch_scc1 L_qgot{kind}")
            if o.qsleep:
                e(f"s_sleep {o.qsleep}")
            e("s_waitcnt vmcnt(0)")
            e(f"v_xor_b32 v21, s{S_TG[0]}, v4")
            e(f"v_xor_b32 v22, s{S_TG[1]}, v5")
            e(f"v_bitop3_b32 v21, v21, v6, s{S_TG[2]} bitop3:0xf6")
            e(f"v_bitop3_b32 v22, v22, v7, s{S_TG[3]} bitop3:0xf6")
            e("v_bitop3_b32 v21, v21, v22, 15 bitop3:0xa8")
            e("v_cmp_ne_u32 vcc, 0, v21")
            e("s_wqm_b64 exec, vcc")
            e(f"s_cbranch_scc1 L_qpoll{kind}")
            e(f"L_qgot{kind}:")
            if o.clean == "p":
                e("s_mov_b64 exec, 1")
                e(f"buffer_store_dword v19, off, s[{S_WS}:{S_WS + 3}], s{S_V} sc1")
            e("s_mov_b64 exec, -1")
            e(f"s_waitcnt vmcnt({1 if o.clean == 'p' else 0})")
            self.stamp(5)
            e("v_permlane32_swap_b32 v4, v6")
            e("v_permlane32_swap_b32 v5, v7")
            e(f"{op} v4, v4, v6")
            e(f"{op} v5, v5, v7")
            e("s_nop 1")
            e("v_permlane16_swap_b32 v4, v5")
            e(f"{op} v4, v4, v5")
            e(f"s_cmp_ge_u32 s{S_WAVE}, 3")
            e("s_nop 0")
            e(f"{op}_dpp v4, v4, v4 row_ror:8 row_mask:0xf bank_mask:0xf")
            if kind == 0:
                e("v_mul_f32 v4, 0x36800000, v4              ; 1/262144")
            e("v_cvt_pk_bf16_f32 v4, v4, v4")
            e(f"ds_write_b16 v23, v4 offset:{L_F}")
            if o.clean == "q":
                e("s_mov_b64 exec, 1")
                e(f"buffer_store_dword v19, off, s[{S_WS}:{S_WS + 3}], s{S_V} sc1")
                e("s_mov_b64 exec, -1")
            e("s_waitcnt lgkmcnt(0)")
            e("s_barrier")
            if kind == 0:
                e("s_cbranch_scc0 L_mlp1")
                if o.clean == "f":
                    clean("L_join", 16, 12)
            e("s_branch L_join")

        e("L_mlp1:")
        for s in range(6):
            e(f"ds_read_b128 v[{B1[s]}:{B1[s] + 3}], v2 offset:{L_F + 64 * s}")
        for s in range(6):
            c = "0" if s == 0 else "v[20:23]"
            b = B1[s]
            e(f"s_waitcnt lgkmcnt({5 - s})")
            e(f"v_mfma_f32_16x16x32_bf16 v[20:23], v[{A1 + 4 * s}:{A1 + 4 * s + 3}], v[{b}:{b + 3}], {c}")
        e("s_nop 3")
        e("s_mov_b32 exec_lo, 0x00030003")
        e("s_mov_b32 exec_hi, 0x00030003")
        e("s_nop 1")
        for i in range(4):
            e(f"v_maximum3_f32 v{20 + i}, v{20 + i}, 0, 0")
        e("v_cvt_pk_bf16_f32 v20, v20, v21")
        e("v_cvt_pk_bf16_f32 v21, v22, v23")
        e(f"ds_write_b64 v3, v[20:21] offset:{L_H}")
        e("s_mov_b64 exec, -1")
        e("s_waitcnt lgkmcnt(0)")

        e("L_join:")
        e("s_barrier")
        self.stamp(6)
        e(f"ds_read_b128 v[4:7], v{V_H0} offset:{L_H}")
        e(f"ds_read_b128 v[8:11], v{V_H1} offset:{L_H + 64}")
        e("s_waitcnt lgkmcnt(1)")
        e(f"v_mfma_f32_16x16x32_bf16 v[12:15], v[4:7], v[{B2}:{B2 + 3}], 0")
        e("s_waitcnt lgkmcnt(0)")
        e(f"v_mfma_f32_16x16x32_bf16 v[12:15], v[8:11], v[{B2 + 4}:{B2 + 7}], v[12:15]")
        e("s_mov_b64 exec, 0xffff")
        e("s_nop 6")
        e("v_cvt_pk_bf16_f32 v12, 0, v12")
        e("v_cvt_pk_bf16_f32 v13, 0, v13")
        e("v_add_f32 v12, v12, v13")
        e("v_cvt_pk_bf16_f32 v12, 0, v12")
        e("v_mul_f32 v12, 0xbfb8aa3b, v12            ; -log2(e)")
        e("v_exp_f32 v12, v12")
        e("s_nop 0")
        e("v_add_f32 v12, 1.0, v12")
        e("v_rcp_f32 v12, v12")
        e("s_nop 0")
        if o.mul == "dot":
            e("v_cvt_pk_bf16_f32 v12, v12, v12")
            e(f"ds_write_b16 v{V_SW}, v12 offset:{L_S}")
        else:
            e("v_cvt_pk_bf16_f32 v12, 0, v12")
            e(f"ds_write_b32 v{V_SW}, v12 offset:{L_S}")
        e("s_mov_b64 exec, -1")
        e("s_waitcnt lgkmcnt(0)")
        e("s_barrier")
        e(f"ds_read_b128 v[4:7], v{V_SR} offset:{L_S}")
        e(f"ds_read_b128 v[8:11], v{V_SR} offset:{L_S + 16}")

        if o.stlim:
            e(f"s_cmp_lt_u32 s2, {o.stlim}")
            e(f"s_cselect_b32 s{S_OUT + 2}, s{S_OUT + 2}, 0")
        zorder = [int(v) for v in o.zorder.split(",")]
        assert sorted(zorder) == list(range(16))
        restored = False
        late = []

        def wbl2():
            wv, lim, pos = [int(v) for v in o.wb.split(",")]
            e(f"s_cmp_lt_u32 s{S_WAVE}, {wv}")
            e("s_cbranch_scc1 L_nowb")
            e(f"s_cmp_ge_u32 s2, {lim}")
            e("s_cbranch_scc1 L_nowb")
            if pos == 33:
                e("s_waitcnt vmcnt(0)")
            e("buffer_wbl2 sc1")
            e("L_nowb:")
        for n, j in enumerate([2 * z + u for z in zorder for u in (0, 1)]):
            a = D0 + 4 * j
            t0 = 12 + 8 * (n & 1)
            if a >= SP0 and not restored:
                assert n > 1
                e("s_waitcnt lgkmcnt(0)")
                restored = True
            md = o.mul
            for i in range(4 if md in ("pk", "mul", "u", "um") else 0):
                t = t0 + 2 * i
                e(f"v_lshlrev_b32 v{t}, 16, v{a + i}")
                e(f"v_and_b32 v{t + 1}, s{S_MASK}, v{a + i}")
            if n == 0:
                e("s_waitcnt lgkmcnt(0)")
                self.stamp(7)
            for i in range(4):
                t = t0 + 2 * i
                if md in ("pk", "um"):
                    e(f"v_pk_mul_f32 v[{t}:{t + 1}], v[{t}:{t + 1}], v[{4 + 2 * i}:{5 + 2 * i}]")
                if md == "mul":
                    e(f"v_mul_f32 v{t}, v{t}, v{4 + 2 * i}")
                    e(f"v_mul_f32 v{t + 1}, v{t + 1}, v{5 + 2 * i}")
                if md == "dot":
                    e(f"v_dot2_f32_bf16 v{t}, v{a + i}, v{4 + 2 * i}, 0")
                    e(f"v_dot2_f32_bf16 v{t + 1}, v{a + i}, v{5 + 2 * i}, 0")
            for i in range(4):
                t = t0 + 2 * i
                if md in ("pk", "mul", "dot"):
                    e(f"v_cvt_pk_bf16_f32 v{a + i}, v{t}, v{t + 1}")
                if md == "c":
                    e(f"v_cvt_pk_bf16_f32 v{a + i}, v{a + i}, v{a + (i ^ 1)}")
            def st(j=j, a=a, n=n):
                self.mem(j, lambda va, so: e(f"buffer_store_dwordx4 v[{a}:{a + 3}], {va}, s[{S_OUT}:{S_OUT + 3}], {so} offen{'' if n >= 32 - o.nplain else stf}"))
            if n < o.burst:
                st()
            else:
                late.append(st)
            if n == 31:
                for f in late:
                    f()
            if n + 1 in o.sbar:
                e("s_barrier")
            if o.sthr and n >= o.sthr:
                e(f"s_waitcnt vmcnt({o.sthr - 1})")
            if o.wb and int(o.wb.split(",")[2]) == n:
                wbl2()
            if n & 1:
                self.trace("st", n >> 1)
            if n == 1:
                e(f"s_cmp_ge_u32 s{S_WAVE}, 3")
                e("s_cbranch_scc1 L_norestore")
                for k in range(8):
                    e(f"ds_read_b128 v[{SP0 + 4 * k}:{SP0 + 4 * k + 3}], v{V_AT} offset:{L_SPILL + 1024 * k}")
                e("L_norestore:")
                if o.clean == "st":
                    clean("L_noclean", 28, 32)
                    e("L_noclean:")
        if o.clean == "e":
            clean("L_noclean", 28, 32)
            e("L_noclean:")
        if o.wb and int(o.wb.split(",")[2]) >= 32:
            wbl2()
        if o.stamps:
            self.stamp(8)
            e("s_waitcnt vmcnt(0)")
            self.stamp(10)
            if o.idleclk:
                e(f"s_cmp_lg_u32 s{S_WAVE}, 11")
                e("s_cbranch_scc1 L_noidle")
                for lbl, dur, m, r in (("a", o.idleclk, 1, 3), ("b", 2000, 2, 6)):
                    e("s_memrealtime s[96:97]")
                    e("s_waitcnt lgkmcnt(0)")
                    e(f"L_idle{lbl}:")
                    e("s_sleep 4")
                    e("s_memrealtime s[98:99]")
                    e("s_waitcnt lgkmcnt(0)")
                    e("s_sub_u32 s98, s98, s96")
                    e(f"s_cmp_lt_u32 s98, {dur}")
                    e(f"s_cbranch_scc1 L_idle{lbl}")
                    e(f"s_memtime s[{S_STAMP + 2 * m}:{S_STAMP + 2 * m + 1}]")
                    e(f"s_memrealtime s[{S_STAMP + 2 * r}:{S_STAMP + 2 * r + 1}]")
                e("L_noidle:")
            e("s_getreg_b32 s94, hwreg(HW_REG_XCC_ID)")
            e("s_getreg_b32 s95, hwreg(HW_REG_HW_ID)")
            e("s_waitcnt lgkmcnt(0)")
            e("v_mov_b32 v2, 0")
            for i in range(11 if o.trace else 14):
                e(f"v_writelane_b32 v2, s{S_STAMP + 2 * i}, {i}")
            e("v_writelane_b32 v2, s94, 14")
            e("v_writelane_b32 v2, s95, 15")
            e(f"s_mul_i32 s{S_T0}, s2, 12")
            e(f"s_add_u32 s{S_T0}, s{S_T0}, s{S_WAVE}")
            e(f"s_lshl_b32 s{S_T0}, s{S_T0}, 6")
            e(f"s_add_u32 s{S_T0}, s{S_T0}, {WS_STAMP}")
            e("v_mbcnt_lo_u32_b32 v3, -1, 0")
            e("v_lshlrev_b32 v3, 2, v3")
            e("s_mov_b64 exec, 0xffff")
            e(f"buffer_store_dword v2, v3, s[{S_WS}:{S_WS + 3}], s{S_T0} offen sc1")
            if o.trace:
                e("s_mov_b32 s91, s92")
                for i in range(16):
                    e(f"v_writelane_b32 v2, s{76 + i}, {i}")
                e(f"s_add_u32 s{S_T0}, s{S_T0}, {1 << 19}")
                e(f"buffer_store_dword v2, v3, s[{S_WS}:{S_WS + 3}], s{S_T0} offen sc1")
        if o.dbgptr:
            e("s_cmp_lg_u32 s2, 0")
            e("s_cbranch_scc1 L_nodp")
            e("s_mov_b64 exec, -1")
            e("v_mov_b32 v2, 0")
            for i, r in enumerate((4, 5, 8, 9, 12, 13, 16, 17, 0, 1)):
                e(f"v_writelane_b32 v2, s{r}, {i}")
            e("v_mbcnt_lo_u32_b32 v3, -1, 0")
            e("v_lshlrev_b32 v3, 2, v3")
            e("s_mov_b64 exec, 0x3ff")
            e(f"buffer_store_dword v2, v3, s[{S_DBG}:{S_DBG + 3}], 0 offen offset:8")
            e("L_nodp:")
        if o.probe:
            idx, K = [int(v) for v in o.probe.split(",")]
            if idx == -5:
                e("s_cmp_ge_u32 s2, 8")
                e("s_cbranch_scc1 L_end")
            elif idx == -2:
                e("s_getreg_b32 s94, hwreg(HW_REG_XCC_ID)")
                e("s_xor_b32 s94, s94, s2")
                e("s_and_b32 s94, s94, 7")
                e("s_cbranch_scc0 L_end")
            elif idx == -3:
                e("s_cmp_lg_u32 s2, 0")
                e("s_cbranch_scc1 L_end")
            else:
                e("s_cmp_lg_u32 s2, 0")
                e("s_cbranch_scc1 L_end")
            e(f"s_cmp_lg_u32 s{S_WAVE}, 0")
            e("s_cbranch_scc1 L_end")
            if idx == -5:
                e("s_mov_b32 s96, 0")
                e("L_sk:")
                e("s_sleep 100")
                e("s_add_u32 s96, s96, 1")
                e("s_cmp_lt_u32 s96, 4")
                e("s_cbranch_scc1 L_sk")
                e(f"s_mov_b32 s94, {WS_STAMP}")
                e(f"buffer_load_dword v4, off, s[{S_WS}:{S_WS + 3}], s94 sc1")
                e("s_waitcnt vmcnt(0)")
                e("v_readfirstlane_b32 s94, v4")
                e(f"s_sub_u32 s95, s{S_STAMP}, s94")
                e(f"s_mul_i32 s95, s95, {K - 1}")
                e("s_add_u32 s96, s95, 8000")
            elif idx == -4:
                c0, c1, r0, r1 = ((11, 12, 0, 7), (12, 13, 7, 10))[K]
                e(f"s_sub_u32 s94, s{S_STAMP + 2 * c1}, s{S_STAMP + 2 * c0}")
                e(f"s_sub_u32 s95, s{S_STAMP + 2 * r1}, s{S_STAMP + 2 * r0}")
                e("v_cvt_f32_u32 v4, s94")
                e("v_cvt_f32_u32 v5, s95")
                e("v_rcp_f32 v5, v5")
                e("s_nop 1")
                e("v_mul_f32 v4, v4, v5")
                e("v_mul_f32 v4, 0x44fa0000, v4")
                e("v_cvt_u32_f32 v4, v4")
                e("s_nop 1")
                e("v_readfirstlane_b32 s96, v4")
                e("s_sub_u32 s96, s96, 31000")
            elif idx <= -10:
                e(f"s_bfe_u32 s94, s{-idx - 10}, {(7 << 16)} + {K}")
                e("s_mul_i32 s96, s94, 200")
                e("s_add_u32 s96, s96, 5000")
            elif idx == -3:
                e("s_getreg_b32 s94, hwreg(HW_REG_XCC_ID)")
                e("s_and_b32 s94, s94, 7")
                e(f"s_mul_i32 s96, s94, {K}")
                e("s_add_u32 s96, s96, 5000")
            elif idx < 0:
                e(f"s_mov_b32 s96, {K}")
            else:
                e(f"s_sub_u32 s96, s{S_STAMP + 2 * idx}, s{S_STAMP}")
                e(f"s_mul_i32 s96, s96, {K}")
            e("s_min_u32 s96, s96, 200000")
            e("L_probe:")
            e("s_memrealtime s[98:99]")
            e("s_waitcnt lgkmcnt(0)")
            e(f"s_sub_u32 s98, s98, s{S_STAMP}")
            e("s_cmp_lt_u32 s98, s96")
            e("s_cbranch_scc1 L_probe")
        e("L_end:")
        e("s_endpgm")

        e("L_role:")
        e("s_load_dwordx4 s[44:47], s[0:1], 32")
        e(f"s_cmp_eq_u32 s2, {NVOTE_WG}")
        e("s_cbranch_scc1 L_tag")
        e(f"s_bfe_u32 s{S_V + 1}, s2, 0x20003")
        e(f"s_sub_u32 s{S_T1}, s{S_OUT}, s{S_X}")
        e(f"s_add_u32 s{S_T1}, s{S_T1}, 2048")
        e(f"s_bitcmp1_b32 s{S_T1}, 12")
        e(f"s_cselect_b32 s{S_V}, {o.quorum}, {o.quorum4}")
        e(f"s_cselect_b32 s{S_V + 2}, s{S_V + 1}, 1")
        e(f"s_and_b32 s{S_T1}, s2, 1")
        e(f"s_lshl1_add_u32 s{S_T1}, s{S_T1}, 1")
        e(f"s_cmp_eq_u32 s{S_V + 2}, 2")
        e(f"s_cselect_b32 s{S_V + 1}, s{S_T1}, s{S_V + 1}")
        e(f"s_bitcmp1_b32 s{S_V + 1}, 0")
        e(f"s_cselect_b64 s[{S_W}:{S_W + 1}], s[8:9], s[4:5]")
        e(f"s_lshr_b32 s{S_T1}, s{S_V + 1}, 1")
        e(f"s_lshl3_add_u32 s{S_T1}, s{S_T1}, 8")
        e(f"s_and_b32 s{S_T2}, s2, 7")
        e(f"s_add_u32 s{S_T1}, s{S_T1}, s{S_T2}")
        e(f"s_lshl_b32 s{S_T1}, s{S_T1}, 22")
        e(f"s_add_u32 s{S_T0}, s{S_T0}, s{S_T1}")
        e(f"s_cmp_lg_u32 s{S_V + 2}, 0")
        e(f"s_cselect_b32 s{S_V + 3}, s{S_OUT}, 0")
        e("s_cbranch_scc1 L_notws")
        e("s_waitcnt lgkmcnt(0)")
        e(f"s_mov_b64 s[{S_W}:{S_W + 1}], s[46:47]")
        e(f"s_mov_b32 s{S_T0}, {WS_PROBE}")
        e("L_notws:")
        e(f"s_lshl_b32 s{S_T1}, s2, 4")
        e(f"s_and_b32 s{S_T1}, s{S_T1}, 256")
        e(f"s_add_u32 s{S_T0}, s{S_T0}, s{S_T1}")
        e(f"s_and_b32 s{S_T1}, s2, 15")
        e(f"s_mulk_i32 s{S_T1}, {16384 + 512}")
        e(f"s_add_u32 s{S_T0}, s{S_T0}, s{S_T1}")
        e(f"s_add_u32 s{S_T1}, s{S_T0}, 8192")
        self.stamp(1, True)
        e(f"s_load_dword s42, s[{S_W}:{S_W + 1}], s{S_T0} glc")
        e(f"s_load_dword s43, s[{S_W}:{S_W + 1}], s{S_T1} glc")
        e(f"s_mov_b32 s{S_CNT}, {-(NRACE // 2)}")
        for k in range(NRACE):
            e("s_waitcnt lgkmcnt(0)")
            if k < 2:
                self.stamp(2 + k, True)
                if o.vdiag:
                    e("s_waitcnt lgkmcnt(0)")
            first, second = (S_T0, S_T1) if k % 2 == 0 else (S_T1, S_T0)
            e(f"s_load_dword s42, s[{S_W}:{S_W + 1}], s{first} glc")
            e(f"s_load_dword s43, s[{S_W}:{S_W + 1}], s{second} glc")
            e("s_waitcnt lgkmcnt(1)")
            e("s_nop 7")
            e(f"s_getreg_b32 s{S_T2}, hwreg(HW_REG_IB_STS, 8, 4)   ; 1: the second answer is still out")
            if k % 2 == 0:
                e(f"s_xor_b32 s{S_T2}, s{S_T2}, 1")
            e(f"s_add_u32 s{S_CNT}, s{S_CNT}, s{S_T2}")
        assert NRACE % 2 == 0 and max(o.quorum, o.quorum4) * NRACE // 2 < 32 and max(o.quorum, o.quorum4) <= NVOTE_WG
        e(f"s_sub_u32 s{S_T2}, 0, s{S_CNT}")
        e(f"s_add_u32 s{S_T0}, s{S_T0}, s{S_V + 3}")
        e(f"s_lshr_b32 s{S_T0}, s{S_T0}, 19")
        e(f"s_xor_b32 s{S_T0}, s{S_T0}, s2")
        e(f"s_bitcmp1_b32 s{S_T0}, 2")
        e(f"s_cselect_b32 s{S_CNT}, s{S_T2}, s{S_CNT}")
        e(f"s_mul_i32 s{S_T0}, s{S_V + 1}, 6")
        e(f"s_add_u32 s{S_T0}, s{S_T0}, 7")
        e(f"s_lshl_b32 s{S_CNT}, s{S_CNT}, s{S_T0}")
        e(f"s_or_b32 s{S_CNT}, s{S_CNT}, 1")
        e(f"s_mov_b32 s{S_T1}, s{S_CNT}")
        self.stamp(6, True)
        e(f"s_atomic_add s{S_T1}, s[44:45], {DBG_TAL} glc")
        e(f"s_add_u32 s{S_CNT}, s{S_CNT}, {sum(31 << (7 + 6 * t) for t in range(4))}")
        e("s_waitcnt lgkmcnt(0)")
        e(f"s_add_u32 s{S_T1}, s{S_T1}, s{S_CNT}")
        self.stamp(13)
        e(f"s_and_b32 s{S_T0}, s{S_T1}, 0x7f")
        e(f"s_cmp_lg_u32 s{S_T0}, s{S_V}")
        e("s_cbranch_scc1 L_stream")
        e(f"s_and_b32 s{S_T1}, s{S_T1}, {sum(32 << (7 + 6 * t) for t in range(4))}")
        e(f"s_bitset1_b32 s{S_T1}, 9")
        e("L_publish:")
        e(f"s_atomic_add s{S_T1}, s[44:45], {DBG_RES}")
        e("s_waitcnt lgkmcnt(0)")
        e("s_branch L_stream")

        e("L_tag:")
        e(f"s_mov_b32 s{S_T1}, 1")
        e("s_waitcnt lgkmcnt(0)")
        e(f"s_atomic_add s{S_T1}, s[46:47], {WS_E} glc")
        e("s_waitcnt lgkmcnt(0)")
        e(f"s_add_u32 s{S_T1}, s{S_T1}, 1")
        e(f"s_and_b32 s{S_T1}, s{S_T1}, 0xff")
        e(f"s_bitset1_b32 s{S_T1}, 8")
        self.stamp(13)
        e("s_branch L_publish")

        e("L_flush:")
        e(f"s_mov_b32 s{S_HOOK}, {SPIN}")
        e("s_mov_b32 exec_lo, -1")
        e("s_mov_b32 exec_hi, 0xffff")
        e("v_lshlrev_b32 v17, 4, v1")
        e("L_floop:")
        e(f"buffer_load_dwordx4 v[8:11], v17, s[{S_WS}:{S_WS + 3}], s{S_PO} offen sc1")
        e(f"buffer_load_dwordx4 v[12:15], v17, s[{S_WS}:{S_WS + 3}], s{S_PO} offen offset:768 sc1")
        e(f"s_sub_u32 s{S_HOOK}, s{S_HOOK}, 1")
        e("s_waitcnt vmcnt(0)")
        e(f"v_xor_b32 v16, s{S_TG[0]}, v8")
        for r in range(9, 16):
            e(f"v_bitop3_b32 v16, v16, v{r}, s{S_TG[r & 3]} bitop3:0xf6")
        e("v_and_b32 v16, 15, v16")
        e("v_cmp_ne_u32 vcc, 0, v16")
        e("s_cbranch_scc1 L_fdone")
        e("s_cbranch_vccnz L_floop")
        e("L_fdone:")
        e(f"buffer_store_dwordx4 v[8:11], v17, s[{S_WS}:{S_WS + 3}], s{S_PO} offen sc1")
        e(f"buffer_store_dwordx4 v[12:15], v17, s[{S_WS}:{S_WS + 3}], s{S_PO} offen offset:768 sc1")
        e("s_waitcnt vmcnt(0)")
        e("s_mov_b64 exec, -1")
        e(f"s_mov_b32 s{S_HOOK}, -1")
        e(f"s_setpc_b64 s[{S_RET}:{S_RET + 1}]")

        e("L_dpoll:")
        e(f"s_mov_b32 s{S_CNT}, {SPIN}")
        e(f"v_mov_b32 v{V_AT}, 0")
        e("s_mov_b64 exec, 1")
        e("L_dloop:")
        e(f"buffer_load_dword v{V_AT}, off, s[{S_DBG}:{S_DBG + 3}], 0 offset:{DBG_RES} sc1")
        e(f"s_sleep {o.dsleep}")
        e("s_waitcnt vmcnt(24)")
        e(f"v_readfirstlane_b32 s{S_T2}, v{V_AT}          ; whatever poll has landed last")
        e(f"s_sub_u32 s{S_CNT}, s{S_CNT}, 1")
        e("s_cbranch_scc1 L_dgot")
        e(f"s_andn2_b32 s{S_OFF}, {RES_OK}, s{S_T2}")
        e("s_cbranch_scc1 L_dloop")
        e("L_dgot:")
        e("s_mov_b64 exec, -1")
        e("s_branch L_decided")

        e("L_codeend:")
        e("s_endpgm")

    def text(self):
        out = HEADER
        out += f"; @launch grid=({NWG},1,1) block=(768,1,1) lds={L_TOTAL}\n"
        out += '.amdgcn_target "amdgcn-amd-amdhsa--gfx950"\n.text\n'
        out += f".globl {KNAME}\n.p2align 8\n.type {KNAME},@function\n{KNAME}:\n"
        out += "\n".join(self.lines) + "\n"
        out += f""".section .rodata,"a"
.p2align 6
.amdhsa_kernel {KNAME}
  .amdhsa_next_free_vgpr 168
  .amdhsa_next_free_sgpr {100 if self.o.stamps else 56}
  .amdhsa_accum_offset 168
  .amdhsa_group_segment_fixed_size 0
  .amdhsa_kernarg_size 48
  .amdhsa_user_sgpr_count 2
  .amdhsa_user_sgpr_kernarg_segment_ptr 1
  .amdhsa_system_sgpr_workgroup_id_x 1
  .amdhsa_float_denorm_mode_32 3
.end_amdhsa_kernel
"""
        return out


def main():
    p = argparse.ArgumentParser()
    p.add_argument("-o", default="standalone__channel_attn_cbam__vision.s")
    p.add_argument("--ldflags", default="nt")
    p.add_argument("--stflags", default="sc1")
    p.add_argument("--p1flags", default="sc1")
    p.add_argument("--stamps", action="store_true")
    p.add_argument("--probe", default="")
    p.add_argument("--depth", type=int, default=10)
    p.add_argument("--nrace", type=int, default=2)
    p.add_argument("--dsleep", type=int, default=8)
    p.add_argument("--trace", default="")
    p.add_argument("--nodec", action="store_true")
    p.add_argument("--vdiag", action="store_true")
    p.add_argument("--dbgptr", action="store_true")
    p.add_argument("--opp", default="5,9", type=lambda v: [int(x) for x in v.split(",")])
    p.add_argument("--quorum", type=int, default=16)
    p.add_argument("--quorum4", type=int, default=24)
    p.add_argument("--nvote", type=int, default=32)
    p.add_argument("--nagn", type=int, default=6)
    p.add_argument("--stlim", type=int, default=0)
    p.add_argument("--psc1", action="store_true")
    p.add_argument("--pnt", action="store_true")
    p.add_argument("--qshift", type=int, default=32)
    p.add_argument("--rolepos", type=int, default=8)
    p.add_argument("--prebar", type=int, default=1)
    p.add_argument("--qmap", type=int, default=0)
    p.add_argument("--agnu", type=int, default=4)
    p.add_argument("--warmst", type=int, default=0)
    p.add_argument("--cw", type=int, default=0)
    p.add_argument("--cld", action="store_true")
    p.add_argument("--qflip", type=int, default=0)
    p.add_argument("--qcopy", type=int, default=4)
    p.add_argument("--mul", default="dot")
    p.add_argument("--burst", type=int, default=32)
    p.add_argument("--idleclk", type=int, default=0)
    p.add_argument("--clk", action="store_true")
    p.add_argument("--sthr", type=int, default=0)
    p.add_argument("--sbar", default=[24], type=lambda v: [int(x) for x in v.split(",")])
    p.add_argument("--piece", type=int, default=128)
    p.add_argument("--xbar", default=[24], type=lambda v: [int(x) for x in v.split(",")])
    p.add_argument("--cpf", type=int, default=0)
    p.add_argument("--cpfpos", type=int, default=0)
    p.add_argument("--wpace", type=int, default=40)
    p.add_argument("--clean", default="q")
    p.add_argument("--warm", type=int, default=30)
    p.add_argument("--warmwave", type=int, default=4)
    p.add_argument("--qsleep", type=int, default=0)
    p.add_argument("--red0", type=int, default=8)
    p.add_argument("--redstep", type=int, default=2)
    p.add_argument("--off", default="", help="diagnostics: v = no votes, c = no clears, r = result not read")
    p.add_argument("--spans", default="")
    p.add_argument("--split", action="store_true")
    p.add_argument("--pfback", type=int, default=0)
    p.add_argument("--nplain", type=int, default=0)
    p.add_argument("--wb", default="", help="minwave,wglimit,pos")
    p.add_argument("--thr", type=int, default=2)
    p.add_argument("--thrfrom", type=int, default=12)
    p.add_argument("--thrto", type=int, default=24)
    p.add_argument("--thrmask", default="0x55")
    p.add_argument("--zorder", default="8,0,9,1,10,2,11,3,12,4,13,5,14,6,15,7")
    o = p.parse_args()
    global NAGN, SPANS, NVOTE_WG
    NVOTE_WG = o.nvote
    NAGN = o.nagn
    if NAGN == 6:
        SPANS = [(0, 0), (0, 1), (1, 0), (1, 1), (2, 0), (2, 1),
                 (3, 0), (3, 1), (4, 0), (4, 1), (5, 0), (5, 1), (6, 0), (6, 1), (7, 0), (7, 1)]
        if o.zorder == p.get_default("zorder"):
            o.zorder = "6,0,7,1,8,2,9,3,10,4,11,5,12,13,14,15"
    if o.spans:
        SPANS = [(int(v[0]), int(v[1])) for v in o.spans.split(",")]
        assert sorted(SPANS) == [(a, b) for a in range(8) for b in range(2)]
    g = G(o)
    g.build()
    open(o.o, "w").write(g.text())


if __name__ == "__main__":
    main()
```

```python
import argparse

KNAME = "standalone__channel_attn_cbam__vision_kernel"

HEADER = """; Kernarg layout for this problem (48 bytes, ptrs only, base s[0:1]):
;   offset   0: d_in[0] x  shape=(1, 512, 512, 192) dtype=bfloat16 strides=(100663296, 196608, 384, 2) contiguous=True
;   offset   8: d_in[1] w1  shape=(192, 48) dtype=bfloat16 strides=(96, 2) contiguous=True
;   offset  16: d_in[2] w2  shape=(48, 192) dtype=bfloat16 strides=(384, 2) contiguous=True
;   offset  40: d_ws      402653184 bytes workspace (unspecified values whenever your kernel or launch list starts; a list's later launches find what earlier ones wrote)
"""

X_BYTES = 100663296
NWG = 256
NRED = 12
MiB = 1 << 20

L_RED = 0
L_H = 6144
L_DEC = 6336
L_S = 6400
L_F = 7168
L_W1 = 8192
L_W2 = L_W1 + 18432
L_SPILL = L_W2 + 18432
L_TOTAL = L_SPILL + 3 * 8192

WS_P = 0
WS_Q = 256 * 1536
WS_E = WS_Q + 4 * 49152
WS_USED = WS_E + 128
WS_PROBE = 640 * 1024
WS_STAMP = 1 << 20

S_X, S_OUT, S_WS, S_DBG, S_W = 4, 8, 12, 16, 20
S_WAVE, S_TY, S_SUB, S_OFF, S_MASK, S_CNT, S_T0, S_T1 = 28, 29, 30, 31, 32, 33, 34, 35
S_BASE, S_PM, S_P, S_T2 = 48, 49, 50, 51
S_AGN, S_RID, S_PO = 40, 42, 43
S_TG = [41, 47, 3, 0]
S_RET, S_HOOK, S_QC = 38, 46, 1
S_BASE1 = 45
NFB = 48
S_STAMP = 52
S_V = 24

D0 = 40
SPIN = 400000
V_L, V_G0, V_G1, V_AT = 0, 39, 38, 36

NAGN = 8
SPANS = [(0, 0), (0, 1), (1, 0), (1, 1), (2, 0), (2, 1), (3, 0), (3, 1),
         (6, 0), (4, 0), (6, 1), (4, 1), (7, 0), (5, 0), (7, 1), (5, 1)]
W_ROLE = 0
DBG_RES, DBG_TAL = 0, 128
NVOTE_WG = 32
RES_OK = (1 << 9) | (1 << 8)


def mask(pred):
    return sum(1 << z for z, s in enumerate(SPANS) if pred(z, s))


class G:
    def __init__(self, o):
        self.o = o
        self.lines = []

    def e(self, s=""):
        self.lines.append(("    " + s) if s and not s.endswith(":") else s)

    def stamp(self, idx, vote=False):
        if self.o.clk:
            if idx in (11, 12, 13):
                return
            m = {0: 11, 7: 12, 10: 13}.get(idx)
            if m:
                self.e(f"s_memtime s[{S_STAMP + 2 * m}:{S_STAMP + 2 * m + 1}]")
        if vote == "r":
            vote = False
        if self.o.vdiag and idx in (1, 2, 3, 6) and not vote:
            return
        if vote and not self.o.vdiag:
            return
        if self.o.stamps and not (self.o.trace and idx > 10):
            self.e(f"s_memrealtime s[{S_STAMP + 2 * idx}:{S_STAMP + 2 * idx + 1}]")

    def srd(self, d, lo, nbytes):
        e = self.e
        e(f"s_mov_b64 s[{d}:{d + 1}], s[{lo}:{lo + 1}]")
        e(f"s_mov_b32 s{d + 2}, {nbytes}")
        e(f"s_mov_b32 s{d + 3}, 0x20000")

    def span_off(self, z):
        return SPANS[z][0] * 12 * MiB + SPANS[z][1] * 49152

    def mem(self, j, fn):
        e = self.e
        z, u = j >> 1, j & 1
        if z < NAGN:
            off = (j // self.o.agnu) * self.o.agnu * 3 * MiB + (j % self.o.agnu) * 12288
            if off:
                e(f"s_add_u32 s{S_OFF}, s{S_AGN}, {off}")
                fn(f"v{V_L}", f"s{S_OFF}")
            else:
                fn(f"v{V_L}", f"s{S_AGN}")
            return
        if u == 0:
            e(f"s_bitcmp1_b32 s{S_PM}, {z}")
            e(f"s_cselect_b32 s{S_P}, 24576, 0")
        e(f"s_add_u32 s{S_OFF}, s{(S_BASE, S_BASE1)[SPANS[z][1]]}, {SPANS[z][0] * 12 * MiB + 12288 * u}")
        at = 2 + u
        e(f"v_xad_u32 v{at}, v{(V_G0, V_G1)[u]}, s{S_P}, v{V_L}")
        if SPANS[z] == (7, 1):
            e(f"v_add_u32 v{at}, s{S_OFF}, v{at}")
            e(f"v_subrev_u32 v{5 - at}, s{S_X + 2}, v{at}")
            e(f"v_min_u32 v{at}, v{at}, v{5 - at}             ; past the end: wrap to the rows the shift skipped")
            fn(f"v{at}", "0")
        else:
            fn(f"v{at}", f"s{S_OFF}")

    def trace(self, kind, n):
        if self.o.trace == kind:
            if n > 0:
                self.e("s_waitcnt lgkmcnt(0)")
                self.e(f"s_mov_b32 s{76 + n - 1}, s92")
            self.e("s_memrealtime s[92:93]")

    def build(self):
        o, e = self.o, self.e
        NRACE = o.nrace
        ldf = (" " + o.ldflags) if o.ldflags else ""
        stf = (" " + o.stflags) if o.stflags else ""

        self.stamp(0)
        e("s_load_dwordx2 s[4:5], s[0:1], 0          ; x")
        e("s_load_dwordx2 s[8:9], s[0:1], 24         ; out")
        e("v_readfirstlane_b32 s%d, v0" % S_WAVE)
        e("v_and_b32 v1, 63, v0                      ; lane")
        pl = (o.piece // 16).bit_length() - 1
        e(f"v_bfe_u32 v2, v0, {pl}, {6 - pl}")
        e(f"v_mul_u32_u24 v2, {3 * o.piece}, v2")
        e(f"v_and_b32 v3, {(1 << pl) - 1}, v0")
        e("s_cmpk_ge_u32 s2, %d" % NWG)
        e("s_cbranch_scc1 L_end")
        e(f"s_lshr_b32 s{S_WAVE}, s{S_WAVE}, 6")
        e(f"s_mul_i32 s{S_SUB}, s{S_WAVE}, 43")
        e(f"s_lshr_b32 s{S_SUB}, s{S_SUB}, 7")
        e(f"s_mul_i32 s{S_T0}, s{S_SUB}, {3072 // o.piece - 3}")
        e(f"s_add_u32 s{S_T0}, s{S_T0}, s{S_WAVE}        ; sub*24 + wave % 3")
        e(f"s_lshl_b32 s{S_T0}, s{S_T0}, {pl + 4}")
        e("v_lshl_add_u32 v0, v3, 4, v2")
        e(f"v_add_u32 v{V_L}, s{S_T0}, v0               ; + sub*3072 + (wave % 3)*128")
        if o.qmap == 0:
            e(f"s_and_b32 s{S_T0}, s2, 3")
            e(f"s_bfe_u32 s{S_T1}, s2, 0x10002")
            e(f"s_lshl1_add_u32 s{S_T0}, s{S_T0}, s{S_T1}")
            e(f"s_and_b32 s{S_T1}, s2, -8")
            e(f"s_add_u32 s{S_T0}, s{S_T0}, s{S_T1}")
        else:
            e(f"s_and_b32 s{S_T0}, s2, 7")
            e(f"s_lshl_b32 s{S_T0}, s{S_T0}, 5")
            e(f"s_lshr_b32 s{S_T1}, s2, 3")
            e(f"s_add_u32 s{S_T0}, s{S_T0}, s{S_T1}")
        e(f"s_mul_i32 s{S_AGN}, s{S_T0}, {o.agnu * 12288}")
        e(f"s_mov_b32 s{S_X + 2}, {X_BYTES}")
        e(f"s_mov_b32 s{S_X + 3}, 0x20000")
        e(f"s_lshl_b32 s{S_T1}, s{S_WAVE}, 8")
        e(f"s_or_b32 s{S_T1}, s{S_T1}, s2")
        e("s_waitcnt lgkmcnt(0)")
        e(f"s_lshr_b32 s{S_T0}, s{S_OUT}, 7")
        e(f"s_mul_i32 s{S_T0}, s{S_T0}, 21              ; -43 mod 64")
        e(f"s_and_b32 s{S_T0}, s{S_T0}, 63")
        e(f"s_mulk_i32 s{S_T0}, 384")
        e(f"s_add_u32 s{S_AGN}, s{S_AGN}, s{S_T0}")
        assert W_ROLE == 0

        SUM, MAX, T = 4, 12, 20
        DEPTH = o.depth
        seq = []

        def issue(j):
            if j == o.rolepos:
                e(f"s_cmp_le_u32 s{S_T1}, {NVOTE_WG}              ; wave 0 of the first workgroups has a side job")
                e("s_cbranch_scc1 L_role")
                e("L_stream:")
            if o.cpf and j == o.cpfpos:
                e(f"s_sub_u32 s{S_T1}, s{S_T1}, 256")
                e(f"s_cmp_ge_u32 s{S_T1}, {o.cpf}")
                e("s_cbranch_scc1 L_nocpf")
                e("s_getpc_b64 s[20:21]")
                e("v_lshlrev_b32 v2, 7, v1")
                e("v_add_u32 v3, 8192, v2")
                e("v_min_u32 v3, L_codeend - L_nocpf, v3")
                e("global_load_dword v36, v2, s[20:21]")
                e("global_load_dword v37, v3, s[20:21]")
                e("L_nocpf:")
            if j == max(4, o.rolepos):
                e("s_load_dwordx4 s[36:39], s[0:1], 8        ; w1, w2")
                e(f"s_load_dwordx2 s[{S_DBG}:{S_DBG + 1}], s[0:1], 32")
                e(f"s_load_dwordx2 s[{S_WS}:{S_WS + 1}], s[0:1], 40")
                e(f"s_mov_b32 s{S_MASK}, 0xffff0000")
            if j == 2 * NAGN:
                e(f"s_mul_i32 s{S_TY}, s{S_SUB}, 3")
                e(f"s_sub_u32 s{S_TY}, s{S_WAVE}, s{S_TY}        ; ty = wave % 3")
                e(f"s_mov_b32 s{S_OUT + 2}, s{S_X + 2}")
                e(f"s_mov_b32 s{S_OUT + 3}, s{S_X + 3}")
                e(f"s_mov_b32 s{S_WS + 2}, {(2 << 20) if o.stamps else WS_USED}")
                e(f"s_mov_b32 s{S_WS + 3}, s{S_X + 3}")
                e(f"s_movk_i32 s{S_DBG + 2}, 256")
                e(f"s_mov_b32 s{S_DBG + 3}, s{S_X + 3}")
                e(f"s_movk_i32 s{S_T2}, 24576")
                e(f"v_bfe_u32 v{V_G0}, v{V_L}, 13, 1")
                e(f"v_add_u32 v{V_G1}, 12288, v{V_L}")
                e(f"v_bfe_u32 v{V_G1}, v{V_G1}, 13, 1")
                e(f"v_mul_u32_u24 v{V_G0}, s{S_T2}, v{V_G0}")
                e(f"v_mul_u32_u24 v{V_G1}, s{S_T2}, v{V_G1}")
                e(f"s_bfe_i32 s{S_PM}, s2, 0x10002              ; -side")
                e(f"s_lshr_b32 s{S_T0}, s{S_OUT}, 7")
                e(f"s_mul_i32 s{S_T0}, s{S_T0}, 21")
                e(f"s_and_b32 s{S_T0}, s{S_T0}, 63")
                e(f"s_mulk_i32 s{S_T0}, 384")
                e(f"s_and_b32 s{S_T1}, s2, 3")
                e(f"s_lshr_b32 s{S_BASE}, s2, 3")
                if o.qmap == 0:
                    e(f"s_lshl2_add_u32 s{S_BASE}, s{S_BASE}, s{S_T1}")
                else:
                    e(f"s_lshl_b32 s{S_T1}, s{S_T1}, 5")
                    e(f"s_add_u32 s{S_BASE}, s{S_BASE}, s{S_T1}")
                e(f"s_add_u32 s{S_BASE1}, s{S_BASE}, {o.qshift}")
                e(f"s_and_b32 s{S_BASE1}, s{S_BASE1}, 127")
                e(f"s_mul_i32 s{S_BASE}, s{S_BASE}, 98304")
                e(f"s_add_u32 s{S_BASE}, s{S_BASE}, s{S_T0}        ; the pair's first span of a step")
                e(f"s_mul_i32 s{S_BASE1}, s{S_BASE1}, 98304")
                e(f"s_add_u32 s{S_BASE1}, s{S_BASE1}, s{S_T0}")
                e(f"s_add_u32 s{S_BASE1}, s{S_BASE1}, 49152      ; its second span: 3 MiB on, where the memory stacks swap")
                h1 = mask(lambda z, s: s[1] == 1)
                e(f"s_add_u32 s{S_T2}, s{S_T2}, s{S_OUT}")
                e(f"s_add_u32 s{S_T0}, s{S_BASE}, s{S_T2}")
                e(f"s_bfe_i32 s{S_T1}, s{S_T0}, 0x10015")
                e(f"s_xor_b32 s{S_PM}, s{S_PM}, s{S_T1}")
                e(f"s_add_u32 s{S_T2}, s{S_BASE1}, s{S_T2}")
                e(f"s_xor_b32 s{S_T0}, s{S_T0}, s{S_T2}")
                e(f"s_bfe_i32 s{S_T0}, s{S_T0}, 0x10015")
                e(f"s_and_b32 s{S_T0}, s{S_T0}, {h1}")
                e(f"s_xor_b32 s{S_PM}, s{S_PM}, s{S_T0}")
                m1 = mask(lambda z, s: z >= NAGN and s[0] in (3, 4))
                z50 = SPANS.index((5, 0))
                z51 = SPANS.index((5, 1))
                dec = mask(lambda z, s: z >= NAGN)
                e(f"s_cmp_lt_u32 s{S_BASE}, {4 * MiB - 24576}")
                e(f"s_cselect_b32 s{S_T0}, {1 << z50}, 0")
                e(f"s_or_b32 s{S_T0}, s{S_T0}, {m1}")
                e(f"s_cmp_lt_u32 s{S_BASE1}, {4 * MiB - 24576}")
                e(f"s_cselect_b32 s{S_T1}, {1 << z51}, 0")
                e(f"s_or_b32 s{S_T0}, s{S_T0}, s{S_T1}            ; third 1")
                e(f"s_xor_b32 s{S_T1}, s{S_T0}, {dec}           ; third 2")
                per, pat = o.opp
                rep = sum(((pat >> (i % per)) & 1) << i for i in range(32))
                e(f"s_lshr_b32 s{S_P}, s2, 3")
                e(f"s_mul_i32 s{S_T2}, s{S_P}, {-(-256 // per)}")
                e(f"s_lshr_b32 s{S_T2}, s{S_T2}, 8")
                e(f"s_mul_i32 s{S_T2}, s{S_T2}, {per}")
                e(f"s_sub_u32 s{S_P}, s{S_P}, s{S_T2}             ; (b >> 3) % {per}")
                e(f"s_lshr_b32 s{S_P}, {rep}, s{S_P}")
                e(f"s_sub_u32 s{S_T2}, s{S_OUT}, s{S_X}")
                e(f"s_add_u32 s{S_T2}, s{S_T2}, 2048")
                e(f"s_bitcmp1_b32 s{S_T2}, 12")
                e(f"s_cselect_b32 s{S_P}, 0, s{S_P}")
                e(f"s_lshr_b32 s{S_T2}, s2, 3")
                e(f"s_sub_u32 s{S_RID}, s{S_T2}, {o.red0}")
                e(f"s_and_b32 s{S_PO}, s2, 7")
                e(f"s_lshl_b32 s{S_PO}, s{S_PO}, 5")
                e(f"s_add_u32 s{S_PO}, s{S_PO}, s{S_T2}")
                e(f"s_mulk_i32 s{S_PO}, 1536")
                e("s_waitcnt lgkmcnt(0)")
                self.stamp(11)
                e("s_barrier")
                e(f"s_load_dword s{S_T2}, s[{S_DBG}:{S_DBG + 1}], {DBG_RES}")
                e("s_waitcnt lgkmcnt(0)")
                e(f"s_andn2_b32 s{S_CNT}, {RES_OK}, s{S_T2}")
                e("s_cbranch_scc1 L_dpoll")
                e("L_decided:")
                for i in range(4):
                    e(f"s_bitcmp1_b32 s{S_T2}, {7 + 6 * i + 5}")
                    e(f"s_cselect_b32 s{S_V + i}, s{(S_T0, S_T1)[i >> 1]}, 0")
                e(f"s_or_b32 s{S_V}, s{S_V}, s{S_V + 2}")
                e(f"s_or_b32 s{S_V + 1}, s{S_V + 1}, s{S_V + 3}")
                e(f"s_xor_b32 s{S_V}, s{S_V}, s{S_V + 1}")
                e(f"s_and_b32 s{S_V}, s{S_V}, s{S_P}")
                e(f"s_xor_b32 s{S_V}, s{S_V}, s{S_V + 1}")
                e(f"s_xor_b32 s{S_PM}, s{S_PM}, s{S_V}")
                e(f"s_and_b32 s{S_TG[0]}, s{S_T2}, 15")
                e(f"s_bfe_u32 s{S_TG[1]}, s{S_T2}, 0x40004")
                e(f"s_xor_b32 s{S_TG[2]}, s{S_TG[0]}, 15")
                e(f"s_xor_b32 s{S_TG[3]}, s{S_TG[1]}, 15")
                e(f"s_lshr_b32 s{S_QC}, s{S_T2}, 10")
                e(f"s_and_b32 s{S_QC}, s{S_QC}, 4")
                e(f"s_xor_b32 s{S_QC}, s{S_QC}, s2             ; bits 2:0: the second-stage copy near this die")
                self.stamp(12)
            if j in o.xbar:
                e("s_barrier")
                if j == o.xbar[-1]:
                    self.stamp(2, "r")
            if j == o.warm and o.warmst:
                e(f"s_cmp_ge_u32 s{S_WAVE}, 2")
                e("s_cbranch_scc1 L_nowarm")
                for i in range(4):
                    e(f"v_mov_b32 v{20 + i}, 0")
                e(f"s_mul_i32 s{S_T0}, s{S_WAVE}, 768")
                e(f"v_lshl_add_u32 v3, v1, 4, s{S_T0}")
                e("s_mov_b32 exec_hi, 0xffff")
                e(f"buffer_store_dwordx4 v[20:23], v3, s[{S_WS}:{S_WS + 3}], s{S_PO} offen")
                e("s_mov_b64 exec, -1")
                e("L_nowarm:")
            if j == o.warm and not o.warmst:
                e(f"s_cmp_lg_u32 s{S_WAVE}, {o.warmwave}")
                e("s_cbranch_scc1 L_nowarm")
                e("v_lshlrev_b32 v3, 7, v1")
                e("s_mov_b64 exec, 0xfff")
                e(f"buffer_load_dword v37, v3, s[{S_WS}:{S_WS + 3}], s{S_PO} offen")
                e("s_mov_b64 exec, -1")
                e("L_nowarm:")
            r = D0 + 4 * j
            if o.thr and j == 10:
                e(f"s_getreg_b32 s{S_T0}, hwreg(HW_REG_XCC_ID, 0, 3)")
                e(f"s_lshr_b32 s{S_T0}, {o.thrmask}, s{S_T0}")
                e(f"s_and_b32 vcc_lo, s{S_T0}, 1")
                e("s_mov_b32 vcc_hi, 0")
            if o.thr and o.thrfrom <= j < o.thrto:
                e(f"s_cbranch_vccz L_thr{j}")
                e(f"s_waitcnt vmcnt({o.thr - 1})")
                e(f"L_thr{j}:")
            self.mem(j, lambda va, so: e(f"buffer_load_dwordx4 v[{r}:{r + 3}], {va}, s[{S_X}:{S_X + 3}], {so} offen{ldf}"))
            seq.append(j)
            if j & 1:
                self.trace("ld", j >> 1)

        def wait_for(j):
            e(f"s_waitcnt vmcnt({len(seq) - 1 - seq.index(j)})")

        nxt = 0
        for jj in range(16):
            while nxt < 32 and nxt < max(2 * jj + DEPTH + 2, 2 * NAGN + 2 if o.prebar else 0):
                issue(nxt)
                nxt += 1
                if nxt == 32:
                    self.stamp(1)
            a, b = D0 + 8 * jj, D0 + 8 * jj + 4
            if jj == 15:
                e("v_and_b32 v2, 7, v1")
                e("v_lshlrev_b32 v2, 5, v2                   ; (l&7)*32")
                e("v_lshrrev_b32 v3, 4, v1")
                e("v_lshl_add_u32 v2, v3, 3, v2              ; + (l>>4)*8")
                e("v_bfe_u32 v3, v1, 3, 1")
                e("v_mul_u32_u24 v3, 768, v3")
                e(f"s_mul_i32 s{S_T0}, s{S_SUB}, 1536")
                e(f"s_lshl_b32 s{S_T1}, s{S_TY}, 8")
                e(f"s_add_u32 s{S_T0}, s{S_T0}, s{S_T1}")
                e(f"v_add3_u32 v2, v2, v3, s{S_T0}")
                e(f"s_mul_i32 s{S_T0}, s{S_WAVE}, 768")
                e(f"v_lshl_add_u32 v3, v1, 4, s{S_T0}")
                for r in (a, b):
                    wait_for((r - D0) // 4)
                    if r == b:
                        self.stamp(3)
                    for i in range(4):
                        t = T + 2 * i
                        e(f"v_lshlrev_b32 v{t}, 16, v{r + i}")
                        e(f"v_and_b32 v{t + 1}, s{S_MASK}, v{r + i}")
                    for i in range(8):
                        e(f"v_max_f32 v{MAX + i}, v{MAX + i}, v{T + i}")
                    for i in range(4):
                        t, s = T + 2 * i, SUM + 2 * i
                        e(f"v_pk_add_f32 v[{s}:{s + 1}], v[{s}:{s + 1}], v[{t}:{t + 1}]")
                continue
            wait_for(2 * jj + 1)
            if jj == 0 and not o.xbar:
                self.stamp(2)
            for i in range(4):
                t = T + 4 * i
                e(f"v_lshlrev_b32 v{t}, 16, v{a + i}")
                e(f"v_and_b32 v{t + 1}, s{S_MASK}, v{a + i}")
                e(f"v_lshlrev_b32 v{t + 2}, 16, v{b + i}")
                e(f"v_and_b32 v{t + 3}, s{S_MASK}, v{b + i}")
            for i in range(4):
                t = T + 4 * i
                s, m = SUM + 2 * i, MAX + 2 * i
                if jj == 0:
                    e(f"v_max_f32 v{m}, v{t}, v{t + 2}")
                    e(f"v_max_f32 v{m + 1}, v{t + 1}, v{t + 3}")
                    e(f"v_pk_add_f32 v[{s}:{s + 1}], v[{t}:{t + 1}], v[{t + 2}:{t + 3}]")
                else:
                    e(f"v_max3_f32 v{m}, v{m}, v{t}, v{t + 2}")
                    e(f"v_max3_f32 v{m + 1}, v{m + 1}, v{t + 1}, v{t + 3}")
                    e(f"v_pk_add_f32 v[{t}:{t + 1}], v[{t}:{t + 1}], v[{t + 2}:{t + 3}]")
            if jj:
                for i in range(4):
                    t = T + 4 * i
                    s = SUM + 2 * i
                    e(f"v_pk_add_f32 v[{s}:{s + 1}], v[{s}:{s + 1}], v[{t}:{t + 1}]")

        for base in (MAX, SUM):
            for i in range(4):
                e(f"v_permlane32_swap_b32 v{base + i}, v{base + 4 + i}")
        for i in range(4):
            e(f"v_max_f32 v{MAX + i}, v{MAX + i}, v{MAX + 4 + i}")
        for i in range(4):
            e(f"v_add_f32 v{SUM + i}, v{SUM + i}, v{SUM + 4 + i}")
        for i in range(2):
            e(f"v_permlane16_swap_b32 v{MAX + i}, v{MAX + 2 + i}")
        for i in range(2):
            e(f"v_permlane16_swap_b32 v{SUM + i}, v{SUM + 2 + i}")
        for i in range(2):
            e(f"v_add_f32 v{SUM + i}, v{SUM + i}, v{SUM + 2 + i}")
        for i in range(2):
            e(f"v_max_f32 v{MAX + i}, v{MAX + i}, v{MAX + 2 + i}")
        e(f"s_cmp_ge_u32 s{S_WAVE}, 2")
        for i in range(2):
            e(f"v_add_f32_dpp v{SUM + i}, v{SUM + i}, v{SUM + i} row_ror:8 row_mask:0xf bank_mask:0x3")
        for i in range(2):
            e(f"v_max_f32_dpp v{SUM + i}, v{MAX + i}, v{MAX + i} row_ror:8 row_mask:0xf bank_mask:0xc")
        e(f"ds_write_b64 v2, v[{SUM}:{SUM + 1}] offset:{L_RED}")
        e("s_waitcnt lgkmcnt(0)")
        e("s_barrier")
        self.stamp(4)
        e("s_cbranch_scc1 L_nopub")

        e("s_mov_b32 exec_hi, 0xffff")
        for k in range(4):
            e(f"ds_read_b128 v[{4 + 4 * k}:{7 + 4 * k}], v3 offset:{L_RED + 1536 * k}")
        e(f"s_cmp_eq_u32 s{S_WAVE}, 0")
        e(f"s_cselect_b64 s[{S_W}:{S_W + 1}], s[36:37], s[38:39]")
        e("s_cbranch_scc0 L_pubmax")
        e("s_waitcnt lgkmcnt(2)")
        e("v_pk_add_f32 v[4:5], v[4:5], v[8:9]")
        e("v_pk_add_f32 v[6:7], v[6:7], v[10:11]")
        e("s_waitcnt lgkmcnt(0)")
        e("v_pk_add_f32 v[12:13], v[12:13], v[16:17]")
        e("v_pk_add_f32 v[14:15], v[14:15], v[18:19]")
        e("v_pk_add_f32 v[4:5], v[4:5], v[12:13]")
        e("v_pk_add_f32 v[6:7], v[6:7], v[14:15]")
        e("s_branch L_pub")
        e("L_pubmax:")
        e("s_waitcnt lgkmcnt(1)")
        for i in range(4):
            e(f"v_max3_f32 v{4 + i}, v{4 + i}, v{8 + i}, v{12 + i}")
        e("s_waitcnt lgkmcnt(0)")
        for i in range(4):
            e(f"v_max_f32 v{4 + i}, v{4 + i}, v{16 + i}")
        e("L_pub:")
        for i in range(4):
            e(f"v_and_or_b32 v{4 + i}, v{4 + i}, -16, s{S_TG[i]}")
        e(f"buffer_store_dwordx4 v[4:7], v3, s[{S_WS}:{S_WS + 3}], s{S_PO} offen{' sc1' if o.psc1 else ' nt' if o.pnt else ''}")
        e("s_mov_b64 exec, -1")
        e(f"s_movk_i32 s{S_W + 2}, 18432")
        e(f"s_mov_b32 s{S_W + 3}, 0x20000")
        e(f"s_mul_i32 s{S_T0}, s{S_WAVE}, 18432")
        e(f"s_addk_i32 s{S_T0}, {L_W1}")
        e(f"s_mov_b32 s{S_T1}, 0")
        e("v_lshlrev_b32 v2, 4, v1")
        e("L_wloop:")
        e(f"s_add_u32 m0, s{S_T0}, s{S_T1}")
        e(f"s_cmp_ge_u32 s{S_RID}, {NRED}")
        for k in range(3):
            e(f"buffer_load_dwordx4 v2, s[{S_W}:{S_W + 3}], s{S_T1} offen offset:{k * 1024} lds")
        e("s_cbranch_scc1 L_wnext")
        e(f"s_waitcnt vmcnt({o.wpace})")
        e("L_wnext:")
        e(f"s_addk_i32 s{S_T1}, 3072")
        e(f"s_cmp_lt_u32 s{S_T1}, 18432")
        e("s_cbranch_scc1 L_wloop")
        e("L_nopub:")

        B2 = 28
        V_H0, V_H1, V_SW, V_SR, V_Q = 24, 25, 26, 27, 37
        SP0 = 136
        A1 = 144
        B1 = [4, 8, 12, 16, 136, 140]
        e("v_lshrrev_b32 v20, 4, v1                  ; q")
        e(f"s_mov_b32 s{S_HOOK}, {SPIN - NFB}")
        e(f"s_cmp_lt_u32 s{S_WAVE}, 3")
        e("s_cbranch_scc1 L_spill")
        e(f"s_cmp_ge_u32 s{S_RID}, {NRED}")
        e("s_cbranch_scc1 L_barw")
        e(f"s_cmp_lg_u32 s{S_WAVE}, 3")
        e("s_cbranch_scc1 L_barw")

        def clean(lbl, d, a):
            e(f"s_cmp_lg_u32 s{S_WAVE}, 3")
            e(f"s_cbranch_scc1 {lbl}")
            if o.cw:
                e(f"v_mov_b32 v{d}, 0")
                e(f"v_lshlrev_b32 v{a}, {o.cw}, v1")
                e(f"s_mov_b64 exec, {(1 << (1536 >> o.cw)) - 1}")
                if o.cld:
                    e(f"buffer_atomic_or v{d}, v{a}, s[{S_WS}:{S_WS + 3}], s{S_PO} offen")
                else:
                    e(f"buffer_store_dword v{d}, v{a}, s[{S_WS}:{S_WS + 3}], s{S_PO} offen sc1")
                e("s_mov_b64 exec, -1")
                return
            for i in range(4):
                e(f"v_mov_b32 v{d + i}, 0")
            e(f"v_lshlrev_b32 v{a}, 4, v1")
            e("s_mov_b32 exec_hi, 0xffff")
            e(f"buffer_store_dwordx4 v[{d}:{d + 3}], v{a}, s[{S_WS}:{S_WS + 3}], s{S_PO} offen sc1")
            e(f"buffer_store_dwordx4 v[{d}:{d + 3}], v{a}, s[{S_WS}:{S_WS + 3}], s{S_PO} offen offset:768 sc1")
            e("s_mov_b64 exec, -1")

        def hook(lbl):
            e(f"s_cmp_lg_u32 s{S_CNT}, s{S_HOOK}")
            e(f"s_cbranch_scc1 {lbl}")
            e(f"s_call_b64 s[{S_RET}:{S_RET + 1}], L_flush")
            e(f"{lbl}:")

        e("v_lshrrev_b32 v2, 3, v1")
        e("v_mul_u32_u24 v2, 1536, v2")
        e("v_and_b32 v3, 7, v1")
        e(f"v_lshl_add_u32 v{V_Q}, v3, 4, v2")
        e(f"s_and_b32 s{S_T0}, s2, 7")
        e(f"s_mul_i32 s{S_V}, s{S_T0}, {32 * 1536}")
        e(f"s_lshl_b32 s{S_T1}, s{S_RID}, 7")
        e(f"s_add_u32 s{S_V}, s{S_V}, s{S_T1}")
        for k in range(1, 4):
            e(f"s_add_u32 s{S_V + k}, s{S_V}, {k * 8 * 1536}")
        e(f"s_lshl_b32 s{S_T0}, s{S_T0}, 8              ; group*256")
        e(f"s_lshr_b32 s{S_T1}, s{S_RID}, 2")
        e(f"s_lshl2_add_u32 s{S_T1}, s{S_T1}, s{S_RID}")
        e(f"s_lshl_b32 s{S_T1}, s{S_T1}, 11")
        e(f"s_add_u32 s{S_T1}, s{S_T1}, s{S_T0}")
        for k in range(o.qcopy // 2):
            e(f"s_add_u32 s{S_W + k}, s{S_T1}, {WS_Q + k * 49152}")
        e("v_and_b32 v2, 15, v1")
        e("v_lshlrev_b32 v3, 2, v2")
        e("v_bfe_u32 v2, v1, 4, 1")
        e("v_lshl_add_u32 v3, v2, 7, v3")
        e("v_lshrrev_b32 v2, 5, v1")
        e("v_lshl_add_u32 v3, v2, 13, v3             ; (l>>5)*8192 + ((l>>4)&1)*128 + (l&15)*4")
        e(f"s_lshl4_add_u32 s{S_T0}, s{S_TG[1]}, s{S_TG[0]}")
        e(f"s_xor_b32 s{S_CNT}, s{S_T0}, 0xff")
        e(f"s_lshl_b32 s{S_CNT}, s{S_CNT}, 8")
        e(f"s_or_b32 s{S_T0}, s{S_T0}, s{S_CNT}")
        e("v_and_b32 v2, 12, v3")
        e(f"v_bfe_u32 v23, s{S_T0}, v2, 4")
        e(f"s_mov_b32 s{S_CNT}, {SPIN}")
        e("L_rpoll:")
        hook("L_rnohook")
        for k in range(4):
            e(f"buffer_load_dwordx4 v[{4 + 4 * k}:{7 + 4 * k}], v{V_Q}, s[{S_WS}:{S_WS + 3}], s{S_V + k} offen sc1")
        e(f"s_sub_u32 s{S_CNT}, s{S_CNT}, 1")
        e("s_cbranch_scc1 L_rgot")
        for k in range(4):
            e(f"s_waitcnt vmcnt({3 - k})")
            for i in range(4):
                r, acc = 4 + 4 * k + i, 21 + (i & 1)
                if k == 0 and i < 2:
                    e(f"v_xor_b32 v{acc}, s{S_TG[i]}, v{r}")
                else:
                    e(f"v_bitop3_b32 v{acc}, v{acc}, v{r}, s{S_TG[i]} bitop3:0xf6   ; a | (b ^ c)")
        e("v_bitop3_b32 v21, v21, v22, 15 bitop3:0xa8          ; (a | b) & c")
        e("v_cmp_ne_u32 vcc, 0, v21")
        e("s_wqm_b64 exec, vcc                       ; 64-byte units still waiting poll again")
        e("s_cbranch_scc1 L_rpoll")
        e("L_rgot:")
        e("s_mov_b64 exec, -1")
        e("s_waitcnt vmcnt(0)")
        self.stamp(1, "r")
        e(f"s_cmp_ge_u32 s{S_RID}, 6")
        e("s_cbranch_scc1 L_rmax")
        for kind in (0, 1):
            op = "v_add_f32" if kind == 0 else "v_max_f32"
            if kind == 1:
                e("L_rmax:")
                for i in range(4):
                    e(f"v_max3_f32 v{4 + i}, v{4 + i}, v{8 + i}, v{12 + i}")
                for i in (0, 2, 1, 3):
                    e(f"v_max_f32 v{4 + i}, v{4 + i}, v{16 + i}")
            else:
                e("v_pk_add_f32 v[4:5], v[4:5], v[8:9]")
                e("v_pk_add_f32 v[6:7], v[6:7], v[10:11]")
                e("v_pk_add_f32 v[12:13], v[12:13], v[16:17]")
                e("v_pk_add_f32 v[14:15], v[14:15], v[18:19]")
                e("v_pk_add_f32 v[4:5], v[4:5], v[12:13]")
                e("v_pk_add_f32 v[6:7], v[6:7], v[14:15]")
                e("s_nop 0")
            e(f"{op}_dpp v4, v4, v4 row_ror:8 row_mask:0xf bank_mask:0x3")
            if kind == 0:
                e(f"{op}_dpp v5, v5, v5 row_ror:8 row_mask:0xf bank_mask:0x3")
                e(f"{op}_dpp v4, v6, v6 row_ror:8 row_mask:0xf bank_mask:0xc")
            else:
                e(f"{op}_dpp v4, v6, v6 row_ror:8 row_mask:0xf bank_mask:0xc")
                e(f"{op}_dpp v5, v5, v5 row_ror:8 row_mask:0xf bank_mask:0x3")
            e(f"{op}_dpp v5, v7, v7 row_ror:8 row_mask:0xf bank_mask:0xc")
            e("s_nop 1")
            e("v_permlane16_swap_b32 v4, v5")
            e(f"{op} v4, v4, v5")
            e("v_mov_b32 v5, v4")
            e("s_nop 1")
            e("v_permlane32_swap_b32 v4, v5")
            e(f"{op} v4, v4, v5                        ; lane 16a+8b+c: element 2b+a of piece c")
            if kind == 0:
                e("s_branch L_rpub")
        e("L_rpub:")
        e("v_and_or_b32 v4, v4, -16, v23")
        for k in range(o.qcopy // 2):
            e(f"buffer_store_dword v4, v3, s[{S_WS}:{S_WS + 3}], s{S_W + k} offen sc1")
            if k == 0:
                self.stamp(9)
        if o.clean == "r":
            for i in range(4):
                e(f"v_mov_b32 v{8 + i}, 0")
            for k in range(4):
                e(f"buffer_store_dwordx4 v[8:11], v{V_Q}, s[{S_WS}:{S_WS + 3}], s{S_V + k} offen sc1")
        e("s_barrier")
        e("s_branch L_afterw")

        e("L_spill:")
        e(f"s_lshl_b32 s{S_T0}, s{S_WAVE}, 13")
        e(f"v_lshl_add_u32 v{V_AT}, v1, 4, s{S_T0}")
        for k in range(8):
            e(f"ds_write_b128 v{V_AT}, v[{SP0 + 4 * k}:{SP0 + 4 * k + 3}] offset:{L_SPILL + 1024 * k}")
        e("L_barw:")
        e("s_waitcnt vmcnt(0) lgkmcnt(0)")
        e("s_barrier")
        e("L_afterw:")
        e("v_bfe_u32 v3, v1, 2, 2")
        e("v_lshl_add_u32 v21, v20, 3, v3            ; row")
        e("v_and_b32 v22, 15, v21                    ; row of the half step (q&1)")
        e("v_and_b32 v3, 3, v1")
        e(f"s_lshl_b32 s{S_T2}, s{S_WAVE}, 5")
        e(f"v_lshl_add_u32 v23, v3, 3, s{S_T2}          ; column bytes")
        e("v_mov_b32 v3, 384")
        e("v_mad_u32_u24 v2, v21, v3, v23")
        e("v_mad_u32_u24 v22, v22, v3, v23")
        e(f"ds_read_b64_tr_b16 v[{B2}:{B2 + 1}], v2 offset:{L_W2}")
        e(f"ds_read_b64_tr_b16 v[{B2 + 2}:{B2 + 3}], v2 offset:{L_W2 + 4 * 384}")
        e(f"ds_read_b64_tr_b16 v[{B2 + 4}:{B2 + 5}], v22 offset:{L_W2 + 32 * 384}")
        e(f"ds_read_b64_tr_b16 v[{B2 + 6}:{B2 + 7}], v22 offset:{L_W2 + 36 * 384}")
        e("v_and_b32 v2, 1, v1")
        e("v_mul_u32_u24 v22, 96, v2")
        e(f"v_lshl_add_u32 v{V_H0}, v20, 4, v22")
        e("v_and_b32 v3, 1, v20")
        e(f"v_lshl_add_u32 v{V_H1}, v3, 4, v22")
        e(f"s_lshl_b32 s{S_T0}, s{S_WAVE}, 6")
        e(f"v_lshl_add_u32 v{V_SW}, v1, 2, s{S_T0}")
        if o.mul == "dot":
            e("v_mov_b32 v3, 0")
            e("s_mov_b64 exec, 0xffff")
            e(f"ds_write_b32 v{V_SW}, v3 offset:{L_S}")
            e("s_mov_b64 exec, -1")
            e(f"v_lshl_add_u32 v{V_SW}, v2, 1, v{V_SW}")
        e("v_and_b32 v3, 7, v1")
        e(f"s_lshl_b32 s{S_T0}, s{S_TY}, 8")
        e(f"v_lshl_add_u32 v{V_SR}, v3, 5, s{S_T0}")
        e("s_waitcnt lgkmcnt(0)")
        e("s_mov_b32 exec_lo, 0")
        for i in range(4):
            e(f"v_mov_b32 v{B2 + 4 + i}, 0")
        e("s_mov_b64 exec, -1")
        e(f"s_cmp_ge_u32 s{S_WAVE}, 3")
        e("s_cbranch_scc1 L_noa1")
        e("v_mov_b32 v3, 96")
        e("v_mad_u32_u24 v2, v21, v3, v23")
        for s in range(6):
            for h in range(2):
                r = A1 + 4 * s + 2 * h
                e(f"ds_read_b64_tr_b16 v[{r}:{r + 1}], v2 offset:{L_W1 + s * 3072 + h * 384}")
        e("L_noa1:")
        e(f"v_lshl_add_u32 v3, v20, 3, v22")
        e(f"v_add_u32 v3, s{S_T2}, v3")
        e("v_lshlrev_b32 v2, 2, v22")
        e("v_lshl_add_u32 v2, v20, 4, v2")
        e("v_and_b32 v8, 1, v1")
        e("v_lshlrev_b32 v8, 4, v8")
        e("v_lshl_add_u32 v8, v20, 2, v8")
        e("v_and_b32 v9, 2, v1")
        e("v_bfe_u32 v10, v1, 2, 1")
        e("v_add3_u32 v8, v8, v9, v10")
        e(f"v_add_lshl_u32 v23, v8, s{S_T2}, 1")
        e("v_lshrrev_b32 v8, 2, v1")
        e("v_lshlrev_b32 v8, 7, v8")
        e("v_and_b32 v9, 3, v1")
        e(f"v_lshl_add_u32 v{V_Q}, v9, 4, v8")
        e(f"s_and_b32 s{S_T0}, s{S_QC}, 4")
        if o.qcopy > 2:
            e(f"s_and_b32 s{S_CNT}, s{S_QC}, {o.qcopy // 2 - 1}")
            e(f"s_mul_i32 s{S_CNT}, s{S_CNT}, 24")
            e(f"s_add_u32 s{S_T0}, s{S_T0}, s{S_CNT}")
        e(f"s_lshr_b32 s{S_T1}, s{S_WAVE}, 2")
        e(f"s_lshl2_add_u32 s{S_T1}, s{S_T1}, s{S_WAVE}")
        e(f"s_add_u32 s{S_T1}, s{S_T1}, s{S_T0}")
        e(f"s_lshl_b32 s{S_T1}, s{S_T1}, 11")
        e(f"s_add_u32 s{S_T1}, s{S_T1}, {WS_Q}")
        if o.clean in ("q", "p"):
            e(f"v_mov_b32 v19, s{S_TG[0]}")
            e(f"s_lshl_b32 s{S_V}, s{S_WAVE}, 7")
            e(f"s_add_u32 s{S_V}, s{S_V}, s{S_PO}")
        e(f"s_mov_b32 s{S_CNT}, {SPIN}")
        e(f"s_cmp_ge_u32 s{S_WAVE}, 6")
        e("s_cbranch_scc1 L_qpoll1")

        for kind in (0, 1):
            op = "v_add_f32" if kind == 0 else "v_max_f32"
            e(f"L_qpoll{kind}:")
            hook(f"L_qnohook{kind}")
            e(f"buffer_load_dwordx4 v[4:7], v{V_Q}, s[{S_WS}:{S_WS + 3}], s{S_T1} offen sc1")
            e(f"s_sub_u32 s{S_CNT}, s{S_CNT}, 1")
            e(f"s_cbranch_scc1 L_qgot{kind}")
            if o.qsleep:
                e(f"s_sleep {o.qsleep}")
            e("s_waitcnt vmcnt(0)")
            e(f"v_xor_b32 v21, s{S_TG[0]}, v4")
            e(f"v_xor_b32 v22, s{S_TG[1]}, v5")
            e(f"v_bitop3_b32 v21, v21, v6, s{S_TG[2]} bitop3:0xf6")
            e(f"v_bitop3_b32 v22, v22, v7, s{S_TG[3]} bitop3:0xf6")
            e("v_bitop3_b32 v21, v21, v22, 15 bitop3:0xa8")
            e("v_cmp_ne_u32 vcc, 0, v21")
            e("s_wqm_b64 exec, vcc")
            e(f"s_cbranch_scc1 L_qpoll{kind}")
            e(f"L_qgot{kind}:")
            if o.clean == "p":
                e("s_mov_b64 exec, 1")
                e(f"buffer_store_dword v19, off, s[{S_WS}:{S_WS + 3}], s{S_V} sc1")
            e("s_mov_b64 exec, -1")
            e(f"s_waitcnt vmcnt({1 if o.clean == 'p' else 0})")
            self.stamp(5)
            e("v_permlane32_swap_b32 v4, v6")
            e("v_permlane32_swap_b32 v5, v7")
            e(f"{op} v4, v4, v6")
            e(f"{op} v5, v5, v7")
            e("s_nop 1")
            e("v_permlane16_swap_b32 v4, v5")
            e(f"{op} v4, v4, v5")
            e(f"s_cmp_ge_u32 s{S_WAVE}, 3")
            e("s_nop 0")
            e(f"{op}_dpp v4, v4, v4 row_ror:8 row_mask:0xf bank_mask:0xf")
            if kind == 0:
                e("v_mul_f32 v4, 0x36800000, v4              ; 1/262144")
            e("v_cvt_pk_bf16_f32 v4, v4, v4")
            e(f"ds_write_b16 v23, v4 offset:{L_F}")
            if o.clean == "q":
                e("s_mov_b64 exec, 1")
                e(f"buffer_store_dword v19, off, s[{S_WS}:{S_WS + 3}], s{S_V} sc1")
                e("s_mov_b64 exec, -1")
            e("s_waitcnt lgkmcnt(0)")
            e("s_barrier")
            if kind == 0:
                e("s_cbranch_scc0 L_mlp1")
                if o.clean == "f":
                    clean("L_join", 16, 12)
            e("s_branch L_join")

        e("L_mlp1:")
        for s in range(6):
            e(f"ds_read_b128 v[{B1[s]}:{B1[s] + 3}], v2 offset:{L_F + 64 * s}")
        for s in range(6):
            c = "0" if s == 0 else "v[20:23]"
            b = B1[s]
            e(f"s_waitcnt lgkmcnt({5 - s})")
            e(f"v_mfma_f32_16x16x32_bf16 v[20:23], v[{A1 + 4 * s}:{A1 + 4 * s + 3}], v[{b}:{b + 3}], {c}")
        e("s_nop 3")
        e("s_mov_b32 exec_lo, 0x00030003")
        e("s_mov_b32 exec_hi, 0x00030003")
        e("s_nop 1")
        for i in range(4):
            e(f"v_maximum3_f32 v{20 + i}, v{20 + i}, 0, 0")
        e("v_cvt_pk_bf16_f32 v20, v20, v21")
        e("v_cvt_pk_bf16_f32 v21, v22, v23")
        e(f"ds_write_b64 v3, v[20:21] offset:{L_H}")
        e("s_mov_b64 exec, -1")
        e("s_waitcnt lgkmcnt(0)")

        e("L_join:")
        e("s_barrier")
        self.stamp(6)
        e(f"ds_read_b128 v[4:7], v{V_H0} offset:{L_H}")
        e(f"ds_read_b128 v[8:11], v{V_H1} offset:{L_H + 64}")
        e("s_waitcnt lgkmcnt(1)")
        e(f"v_mfma_f32_16x16x32_bf16 v[12:15], v[4:7], v[{B2}:{B2 + 3}], 0")
        e("s_waitcnt lgkmcnt(0)")
        e(f"v_mfma_f32_16x16x32_bf16 v[12:15], v[8:11], v[{B2 + 4}:{B2 + 7}], v[12:15]")
        e("s_mov_b64 exec, 0xffff")
        e("s_nop 6")
        e("v_cvt_pk_bf16_f32 v12, 0, v12")
        e("v_cvt_pk_bf16_f32 v13, 0, v13")
        e("v_add_f32 v12, v12, v13")
        e("v_cvt_pk_bf16_f32 v12, 0, v12")
        e("v_mul_f32 v12, 0xbfb8aa3b, v12            ; -log2(e)")
        e("v_exp_f32 v12, v12")
        e("s_nop 0")
        e("v_add_f32 v12, 1.0, v12")
        e("v_rcp_f32 v12, v12")
        e("s_nop 0")
        if o.mul == "dot":
            e("v_cvt_pk_bf16_f32 v12, v12, v12")
            e(f"ds_write_b16 v{V_SW}, v12 offset:{L_S}")
        else:
            e("v_cvt_pk_bf16_f32 v12, 0, v12")
            e(f"ds_write_b32 v{V_SW}, v12 offset:{L_S}")
        e("s_mov_b64 exec, -1")
        e("s_waitcnt lgkmcnt(0)")
        e("s_barrier")
        e(f"ds_read_b128 v[4:7], v{V_SR} offset:{L_S}")
        e(f"ds_read_b128 v[8:11], v{V_SR} offset:{L_S + 16}")

        if o.stlim:
            e(f"s_cmp_lt_u32 s2, {o.stlim}")
            e(f"s_cselect_b32 s{S_OUT + 2}, s{S_OUT + 2}, 0")
        zorder = [int(v) for v in o.zorder.split(",")]
        assert sorted(zorder) == list(range(16))
        restored = False
        late = []

        def wbl2():
            wv, lim, pos = [int(v) for v in o.wb.split(",")]
            e(f"s_cmp_lt_u32 s{S_WAVE}, {wv}")
            e("s_cbranch_scc1 L_nowb")
            e(f"s_cmp_ge_u32 s2, {lim}")
            e("s_cbranch_scc1 L_nowb")
            if pos == 33:
                e("s_waitcnt vmcnt(0)")
            e("buffer_wbl2 sc1")
            e("L_nowb:")
        for n, j in enumerate([2 * z + u for z in zorder for u in (0, 1)]):
            a = D0 + 4 * j
            t0 = 12 + 8 * (n & 1)
            if a >= SP0 and not restored:
                assert n > 1
                e("s_waitcnt lgkmcnt(0)")
                restored = True
            md = o.mul
            for i in range(4 if md in ("pk", "mul", "u", "um") else 0):
                t = t0 + 2 * i
                e(f"v_lshlrev_b32 v{t}, 16, v{a + i}")
                e(f"v_and_b32 v{t + 1}, s{S_MASK}, v{a + i}")
            if n == 0:
                e("s_waitcnt lgkmcnt(0)")
                self.stamp(7)
            for i in range(4):
                t = t0 + 2 * i
                if md in ("pk", "um"):
                    e(f"v_pk_mul_f32 v[{t}:{t + 1}], v[{t}:{t + 1}], v[{4 + 2 * i}:{5 + 2 * i}]")
                if md == "mul":
                    e(f"v_mul_f32 v{t}, v{t}, v{4 + 2 * i}")
                    e(f"v_mul_f32 v{t + 1}, v{t + 1}, v{5 + 2 * i}")
                if md == "dot":
                    e(f"v_dot2_f32_bf16 v{t}, v{a + i}, v{4 + 2 * i}, 0")
                    e(f"v_dot2_f32_bf16 v{t + 1}, v{a + i}, v{5 + 2 * i}, 0")
            for i in range(4):
                t = t0 + 2 * i
                if md in ("pk", "mul", "dot"):
                    e(f"v_cvt_pk_bf16_f32 v{a + i}, v{t}, v{t + 1}")
                if md == "c":
                    e(f"v_cvt_pk_bf16_f32 v{a + i}, v{a + i}, v{a + (i ^ 1)}")
            def st(j=j, a=a, n=n):
                self.mem(j, lambda va, so: e(f"buffer_store_dwordx4 v[{a}:{a + 3}], {va}, s[{S_OUT}:{S_OUT + 3}], {so} offen{'' if n >= 32 - o.nplain else stf}"))
            if n < o.burst:
                st()
            else:
                late.append(st)
            if n == 31:
                for f in late:
                    f()
            if n + 1 in o.sbar:
                e("s_barrier")
            if o.sthr and n >= o.sthr:
                e(f"s_waitcnt vmcnt({o.sthr - 1})")
            if o.wb and int(o.wb.split(",")[2]) == n:
                wbl2()
            if n & 1:
                self.trace("st", n >> 1)
            if n == 1:
                e(f"s_cmp_ge_u32 s{S_WAVE}, 3")
                e("s_cbranch_scc1 L_norestore")
                for k in range(8):
                    e(f"ds_read_b128 v[{SP0 + 4 * k}:{SP0 + 4 * k + 3}], v{V_AT} offset:{L_SPILL + 1024 * k}")
                e("L_norestore:")
                if o.clean == "st":
                    clean("L_noclean", 28, 32)
                    e("L_noclean:")
        if o.clean == "e":
            clean("L_noclean", 28, 32)
            e("L_noclean:")
        if o.wb and int(o.wb.split(",")[2]) >= 32:
            wbl2()
        if o.stamps:
            self.stamp(8)
            e("s_waitcnt vmcnt(0)")
            self.stamp(10)
            if o.idleclk:
                e(f"s_cmp_lg_u32 s{S_WAVE}, 11")
                e("s_cbranch_scc1 L_noidle")
                for lbl, dur, m, r in (("a", o.idleclk, 1, 3), ("b", 2000, 2, 6)):
                    e("s_memrealtime s[96:97]")
                    e("s_waitcnt lgkmcnt(0)")
                    e(f"L_idle{lbl}:")
                    e("s_sleep 4")
                    e("s_memrealtime s[98:99]")
                    e("s_waitcnt lgkmcnt(0)")
                    e("s_sub_u32 s98, s98, s96")
                    e(f"s_cmp_lt_u32 s98, {dur}")
                    e(f"s_cbranch_scc1 L_idle{lbl}")
                    e(f"s_memtime s[{S_STAMP + 2 * m}:{S_STAMP + 2 * m + 1}]")
                    e(f"s_memrealtime s[{S_STAMP + 2 * r}:{S_STAMP + 2 * r + 1}]")
                e("L_noidle:")
            e("s_getreg_b32 s94, hwreg(HW_REG_XCC_ID)")
            e("s_getreg_b32 s95, hwreg(HW_REG_HW_ID)")
            e("s_waitcnt lgkmcnt(0)")
            e("v_mov_b32 v2, 0")
            for i in range(11 if o.trace else 14):
                e(f"v_writelane_b32 v2, s{S_STAMP + 2 * i}, {i}")
            e("v_writelane_b32 v2, s94, 14")
            e("v_writelane_b32 v2, s95, 15")
            e(f"s_mul_i32 s{S_T0}, s2, 12")
            e(f"s_add_u32 s{S_T0}, s{S_T0}, s{S_WAVE}")
            e(f"s_lshl_b32 s{S_T0}, s{S_T0}, 6")
            e(f"s_add_u32 s{S_T0}, s{S_T0}, {WS_STAMP}")
            e("v_mbcnt_lo_u32_b32 v3, -1, 0")
            e("v_lshlrev_b32 v3, 2, v3")
            e("s_mov_b64 exec, 0xffff")
            e(f"buffer_store_dword v2, v3, s[{S_WS}:{S_WS + 3}], s{S_T0} offen sc1")
            if o.trace:
                e("s_mov_b32 s91, s92")
                for i in range(16):
                    e(f"v_writelane_b32 v2, s{76 + i}, {i}")
                e(f"s_add_u32 s{S_T0}, s{S_T0}, {1 << 19}")
                e(f"buffer_store_dword v2, v3, s[{S_WS}:{S_WS + 3}], s{S_T0} offen sc1")
        if o.dbgptr:
            e("s_cmp_lg_u32 s2, 0")
            e("s_cbranch_scc1 L_nodp")
            e("s_mov_b64 exec, -1")
            e("v_mov_b32 v2, 0")
            for i, r in enumerate((4, 5, 8, 9, 12, 13, 16, 17, 0, 1)):
                e(f"v_writelane_b32 v2, s{r}, {i}")
            e("v_mbcnt_lo_u32_b32 v3, -1, 0")
            e("v_lshlrev_b32 v3, 2, v3")
            e("s_mov_b64 exec, 0x3ff")
            e(f"buffer_store_dword v2, v3, s[{S_DBG}:{S_DBG + 3}], 0 offen offset:8")
            e("L_nodp:")
        if o.probe:
            idx, K = [int(v) for v in o.probe.split(",")]
            if idx == -5:
                e("s_cmp_ge_u32 s2, 8")
                e("s_cbranch_scc1 L_end")
            elif idx == -2:
                e("s_getreg_b32 s94, hwreg(HW_REG_XCC_ID)")
                e("s_xor_b32 s94, s94, s2")
                e("s_and_b32 s94, s94, 7")
                e("s_cbranch_scc0 L_end")
            elif idx == -3:
                e("s_cmp_lg_u32 s2, 0")
                e("s_cbranch_scc1 L_end")
            else:
                e(f"s_cmp_lg_u32 s2, {o.pwg}")
                e("s_cbranch_scc1 L_end")
            e(f"s_cmp_lg_u32 s{S_WAVE}, {o.pwave}")
            e("s_cbranch_scc1 L_end")
            if idx == -5:
                e("s_mov_b32 s96, 0")
                e("L_sk:")
                e("s_sleep 100")
                e("s_add_u32 s96, s96, 1")
                e("s_cmp_lt_u32 s96, 4")
                e("s_cbranch_scc1 L_sk")
                e(f"s_mov_b32 s94, {WS_STAMP}")
                e(f"buffer_load_dword v4, off, s[{S_WS}:{S_WS + 3}], s94 sc1")
                e("s_waitcnt vmcnt(0)")
                e("v_readfirstlane_b32 s94, v4")
                e(f"s_sub_u32 s95, s{S_STAMP}, s94")
                e(f"s_mul_i32 s95, s95, {K - 1}")
                e("s_add_u32 s96, s95, 8000")
            elif idx == -4:
                c0, c1, r0, r1 = ((11, 12, 0, 7), (12, 13, 7, 10))[K]
                e(f"s_sub_u32 s94, s{S_STAMP + 2 * c1}, s{S_STAMP + 2 * c0}")
                e(f"s_sub_u32 s95, s{S_STAMP + 2 * r1}, s{S_STAMP + 2 * r0}")
                e("v_cvt_f32_u32 v4, s94")
                e("v_cvt_f32_u32 v5, s95")
                e("v_rcp_f32 v5, v5")
                e("s_nop 1")
                e("v_mul_f32 v4, v4, v5")
                e("v_mul_f32 v4, 0x44fa0000, v4")
                e("v_cvt_u32_f32 v4, v4")
                e("s_nop 1")
                e("v_readfirstlane_b32 s96, v4")
                e("s_sub_u32 s96, s96, 31000")
            elif idx <= -10:
                e(f"s_bfe_u32 s94, s{-idx - 10}, {(7 << 16)} + {K}")
                e("s_mul_i32 s96, s94, 200")
                e("s_add_u32 s96, s96, 5000")
            elif idx == -3:
                e("s_getreg_b32 s94, hwreg(HW_REG_XCC_ID)")
                e("s_and_b32 s94, s94, 7")
                e(f"s_mul_i32 s96, s94, {K}")
                e("s_add_u32 s96, s96, 5000")
            elif idx < 0:
                e(f"s_mov_b32 s96, {K}")
            else:
                e(f"s_sub_u32 s96, s{S_STAMP + 2 * idx}, s{S_STAMP + 2 * o.pref}")
                e(f"s_mul_i32 s96, s96, {K}")
                if o.pref:
                    e("s_add_u32 s96, s96, 5000")
            e("s_min_u32 s96, s96, 200000")
            e("L_probe:")
            e("s_memrealtime s[98:99]")
            e("s_waitcnt lgkmcnt(0)")
            e(f"s_sub_u32 s98, s98, s{S_STAMP}")
            e("s_cmp_lt_u32 s98, s96")
            e("s_cbranch_scc1 L_probe")
        e("L_end:")
        e("s_endpgm")

        e("L_role:")
        e("s_load_dwordx4 s[44:47], s[0:1], 32")
        e(f"s_cmp_eq_u32 s2, {NVOTE_WG}")
        e("s_cbranch_scc1 L_tag")
        e(f"s_bfe_u32 s{S_V + 1}, s2, 0x20003")
        e(f"s_sub_u32 s{S_T1}, s{S_OUT}, s{S_X}")
        e(f"s_add_u32 s{S_T1}, s{S_T1}, 2048")
        e(f"s_bitcmp1_b32 s{S_T1}, 12")
        e(f"s_cselect_b32 s{S_V}, {o.quorum}, {o.quorum4}")
        e(f"s_cselect_b32 s{S_V + 2}, s{S_V + 1}, 1")
        e(f"s_and_b32 s{S_T1}, s2, 1")
        e(f"s_lshl1_add_u32 s{S_T1}, s{S_T1}, 1")
        e(f"s_cmp_eq_u32 s{S_V + 2}, 2")
        e(f"s_cselect_b32 s{S_V + 1}, s{S_T1}, s{S_V + 1}")
        e(f"s_bitcmp1_b32 s{S_V + 1}, 0")
        e(f"s_cselect_b64 s[{S_W}:{S_W + 1}], s[8:9], s[4:5]")
        e(f"s_lshr_b32 s{S_T1}, s{S_V + 1}, 1")
        e(f"s_lshl3_add_u32 s{S_T1}, s{S_T1}, 8")
        e(f"s_and_b32 s{S_T2}, s2, 7")
        e(f"s_add_u32 s{S_T1}, s{S_T1}, s{S_T2}")
        e(f"s_lshl_b32 s{S_T1}, s{S_T1}, 22")
        e(f"s_add_u32 s{S_T0}, s{S_T0}, s{S_T1}")
        e(f"s_cmp_lg_u32 s{S_V + 2}, 0")
        e(f"s_cselect_b32 s{S_V + 3}, s{S_OUT}, 0")
        e("s_cbranch_scc1 L_notws")
        e("s_waitcnt lgkmcnt(0)")
        e(f"s_mov_b64 s[{S_W}:{S_W + 1}], s[46:47]")
        e(f"s_mov_b32 s{S_T0}, {WS_PROBE}")
        e("L_notws:")
        e(f"s_lshl_b32 s{S_T1}, s2, 4")
        e(f"s_and_b32 s{S_T1}, s{S_T1}, 256")
        e(f"s_add_u32 s{S_T0}, s{S_T0}, s{S_T1}")
        e(f"s_and_b32 s{S_T1}, s2, 15")
        e(f"s_mulk_i32 s{S_T1}, {16384 + 512}")
        e(f"s_add_u32 s{S_T0}, s{S_T0}, s{S_T1}")
        e(f"s_add_u32 s{S_T1}, s{S_T0}, 8192")
        self.stamp(1, True)
        e(f"s_load_dword s42, s[{S_W}:{S_W + 1}], s{S_T0} glc")
        e(f"s_load_dword s43, s[{S_W}:{S_W + 1}], s{S_T1} glc")
        e(f"s_mov_b32 s{S_CNT}, {-(NRACE // 2)}")
        for k in range(NRACE):
            e("s_waitcnt lgkmcnt(0)")
            if k < 2:
                self.stamp(2 + k, True)
                if o.vdiag:
                    e("s_waitcnt lgkmcnt(0)")
            first, second = (S_T0, S_T1) if k % 2 == 0 else (S_T1, S_T0)
            e(f"s_load_dword s42, s[{S_W}:{S_W + 1}], s{first} glc")
            e(f"s_load_dword s43, s[{S_W}:{S_W + 1}], s{second} glc")
            e("s_waitcnt lgkmcnt(1)")
            e("s_nop 7")
            e(f"s_getreg_b32 s{S_T2}, hwreg(HW_REG_IB_STS, 8, 4)   ; 1: the second answer is still out")
            if k % 2 == 0:
                e(f"s_xor_b32 s{S_T2}, s{S_T2}, 1")
            e(f"s_add_u32 s{S_CNT}, s{S_CNT}, s{S_T2}")
        assert NRACE % 2 == 0 and max(o.quorum, o.quorum4) * NRACE // 2 < 32 and max(o.quorum, o.quorum4) <= NVOTE_WG
        e(f"s_sub_u32 s{S_T2}, 0, s{S_CNT}")
        e(f"s_add_u32 s{S_T0}, s{S_T0}, s{S_V + 3}")
        e(f"s_lshr_b32 s{S_T0}, s{S_T0}, 19")
        e(f"s_xor_b32 s{S_T0}, s{S_T0}, s2")
        e(f"s_bitcmp1_b32 s{S_T0}, 2")
        e(f"s_cselect_b32 s{S_CNT}, s{S_T2}, s{S_CNT}")
        e(f"s_mul_i32 s{S_T0}, s{S_V + 1}, 6")
        e(f"s_add_u32 s{S_T0}, s{S_T0}, 7")
        e(f"s_lshl_b32 s{S_CNT}, s{S_CNT}, s{S_T0}")
        e(f"s_or_b32 s{S_CNT}, s{S_CNT}, 1")
        e(f"s_mov_b32 s{S_T1}, s{S_CNT}")
        self.stamp(6, True)
        e(f"s_atomic_add s{S_T1}, s[44:45], {DBG_TAL} glc")
        e(f"s_add_u32 s{S_CNT}, s{S_CNT}, {sum(31 << (7 + 6 * t) for t in range(4))}")
        e("s_waitcnt lgkmcnt(0)")
        e(f"s_add_u32 s{S_T1}, s{S_T1}, s{S_CNT}")
        self.stamp(13)
        e(f"s_and_b32 s{S_T0}, s{S_T1}, 0x7f")
        e(f"s_cmp_lg_u32 s{S_T0}, s{S_V}")
        e("s_cbranch_scc1 L_stream")
        e(f"s_and_b32 s{S_T1}, s{S_T1}, {sum(32 << (7 + 6 * t) for t in range(4))}")
        e(f"s_bitset1_b32 s{S_T1}, 9")
        e("L_publish:")
        e(f"s_atomic_add s{S_T1}, s[44:45], {DBG_RES}")
        e("s_waitcnt lgkmcnt(0)")
        e("s_branch L_stream")

        e("L_tag:")
        e(f"s_mov_b32 s{S_T1}, 1")
        e("s_waitcnt lgkmcnt(0)")
        e(f"s_atomic_add s{S_T1}, s[46:47], {WS_E} glc")
        e("s_waitcnt lgkmcnt(0)")
        e(f"s_add_u32 s{S_T1}, s{S_T1}, 1")
        e(f"s_and_b32 s{S_T1}, s{S_T1}, 0xff")
        e(f"s_bitset1_b32 s{S_T1}, 8")
        self.stamp(13)
        e("s_branch L_publish")

        e("L_flush:")
        e(f"s_mov_b32 s{S_HOOK}, {SPIN}")
        e("s_mov_b32 exec_lo, -1")
        e("s_mov_b32 exec_hi, 0xffff")
        e("v_lshlrev_b32 v17, 4, v1")
        e("L_floop:")
        e(f"buffer_load_dwordx4 v[8:11], v17, s[{S_WS}:{S_WS + 3}], s{S_PO} offen sc1")
        e(f"buffer_load_dwordx4 v[12:15], v17, s[{S_WS}:{S_WS + 3}], s{S_PO} offen offset:768 sc1")
        e(f"s_sub_u32 s{S_HOOK}, s{S_HOOK}, 1")
        e("s_waitcnt vmcnt(0)")
        e(f"v_xor_b32 v16, s{S_TG[0]}, v8")
        for r in range(9, 16):
            e(f"v_bitop3_b32 v16, v16, v{r}, s{S_TG[r & 3]} bitop3:0xf6")
        e("v_and_b32 v16, 15, v16")
        e("v_cmp_ne_u32 vcc, 0, v16")
        e("s_cbranch_scc1 L_fdone")
        e("s_cbranch_vccnz L_floop")
        e("L_fdone:")
        e(f"buffer_store_dwordx4 v[8:11], v17, s[{S_WS}:{S_WS + 3}], s{S_PO} offen sc1")
        e(f"buffer_store_dwordx4 v[12:15], v17, s[{S_WS}:{S_WS + 3}], s{S_PO} offen offset:768 sc1")
        e("s_waitcnt vmcnt(0)")
        e("s_mov_b64 exec, -1")
        e(f"s_mov_b32 s{S_HOOK}, -1")
        e(f"s_setpc_b64 s[{S_RET}:{S_RET + 1}]")

        e("L_dpoll:")
        e(f"s_mov_b32 s{S_CNT}, {SPIN}")
        e(f"v_mov_b32 v{V_AT}, 0")
        e("s_mov_b64 exec, 1")
        e("L_dloop:")
        e(f"buffer_load_dword v{V_AT}, off, s[{S_DBG}:{S_DBG + 3}], 0 offset:{DBG_RES} sc1")
        e(f"s_sleep {o.dsleep}")
        e("s_waitcnt vmcnt(24)")
        e(f"v_readfirstlane_b32 s{S_T2}, v{V_AT}          ; whatever poll has landed last")
        e(f"s_sub_u32 s{S_CNT}, s{S_CNT}, 1")
        e("s_cbranch_scc1 L_dgot")
        e(f"s_andn2_b32 s{S_OFF}, {RES_OK}, s{S_T2}")
        e("s_cbranch_scc1 L_dloop")
        e("L_dgot:")
        e("s_mov_b64 exec, -1")
        e("s_branch L_decided")

        e("L_codeend:")
        e("s_endpgm")

    def text(self):
        out = HEADER
        out += f"; @launch grid=({NWG},1,1) block=(768,1,1) lds={L_TOTAL}\n"
        out += '.amdgcn_target "amdgcn-amd-amdhsa--gfx950"\n.text\n'
        out += f".globl {KNAME}\n.p2align 8\n.type {KNAME},@function\n{KNAME}:\n"
        out += "\n".join(self.lines) + "\n"
        out += f""".section .rodata,"a"
.p2align 6
.amdhsa_kernel {KNAME}
  .amdhsa_next_free_vgpr 168
  .amdhsa_next_free_sgpr {100 if self.o.stamps else 56}
  .amdhsa_accum_offset 168
  .amdhsa_group_segment_fixed_size 0
  .amdhsa_kernarg_size 48
  .amdhsa_user_sgpr_count 2
  .amdhsa_user_sgpr_kernarg_segment_ptr 1
  .amdhsa_system_sgpr_workgroup_id_x 1
  .amdhsa_float_denorm_mode_32 3
.end_amdhsa_kernel
"""
        return out


def main():
    p = argparse.ArgumentParser()
    p.add_argument("-o", default="standalone__channel_attn_cbam__vision.s")
    p.add_argument("--ldflags", default="nt")
    p.add_argument("--stflags", default="sc1")
    p.add_argument("--p1flags", default="sc1")
    p.add_argument("--stamps", action="store_true")
    p.add_argument("--probe", default="")
    p.add_argument("--depth", type=int, default=10)
    p.add_argument("--nrace", type=int, default=2)
    p.add_argument("--dsleep", type=int, default=8)
    p.add_argument("--trace", default="")
    p.add_argument("--nodec", action="store_true")
    p.add_argument("--vdiag", action="store_true")
    p.add_argument("--dbgptr", action="store_true")
    p.add_argument("--opp", default="5,9", type=lambda v: [int(x) for x in v.split(",")])
    p.add_argument("--quorum", type=int, default=16)
    p.add_argument("--quorum4", type=int, default=24)
    p.add_argument("--nvote", type=int, default=32)
    p.add_argument("--nagn", type=int, default=6)
    p.add_argument("--stlim", type=int, default=0)
    p.add_argument("--psc1", action="store_true")
    p.add_argument("--pnt", action="store_true")
    p.add_argument("--pwg", type=int, default=0)
    p.add_argument("--pwave", type=int, default=0)
    p.add_argument("--pref", type=int, default=0)
    p.add_argument("--qshift", type=int, default=32)
    p.add_argument("--rolepos", type=int, default=8)
    p.add_argument("--prebar", type=int, default=1)
    p.add_argument("--qmap", type=int, default=0)
    p.add_argument("--agnu", type=int, default=4)
    p.add_argument("--warmst", type=int, default=0)
    p.add_argument("--cw", type=int, default=0)
    p.add_argument("--cld", action="store_true")
    p.add_argument("--qflip", type=int, default=0)
    p.add_argument("--qcopy", type=int, default=4)
    p.add_argument("--mul", default="dot")
    p.add_argument("--burst", type=int, default=32)
    p.add_argument("--idleclk", type=int, default=0)
    p.add_argument("--clk", action="store_true")
    p.add_argument("--sthr", type=int, default=0)
    p.add_argument("--sbar", default=[24], type=lambda v: [int(x) for x in v.split(",")])
    p.add_argument("--piece", type=int, default=128)
    p.add_argument("--xbar", default=[24], type=lambda v: [int(x) for x in v.split(",")])
    p.add_argument("--cpf", type=int, default=0)
    p.add_argument("--cpfpos", type=int, default=0)
    p.add_argument("--wpace", type=int, default=40)
    p.add_argument("--clean", default="q")
    p.add_argument("--warm", type=int, default=30)
    p.add_argument("--warmwave", type=int, default=4)
    p.add_argument("--qsleep", type=int, default=0)
    p.add_argument("--red0", type=int, default=8)
    p.add_argument("--redstep", type=int, default=2)
    p.add_argument("--off", default="", help="diagnostics: v = no votes, c = no clears, r = result not read")
    p.add_argument("--spans", default="")
    p.add_argument("--split", action="store_true")
    p.add_argument("--pfback", type=int, default=0)
    p.add_argument("--nplain", type=int, default=0)
    p.add_argument("--wb", default="", help="minwave,wglimit,pos")
    p.add_argument("--thr", type=int, default=2)
    p.add_argument("--thrfrom", type=int, default=12)
    p.add_argument("--thrto", type=int, default=24)
    p.add_argument("--thrmask", default="0x55")
    p.add_argument("--zorder", default="8,0,9,1,10,2,11,3,12,4,13,5,14,6,15,7")
    o = p.parse_args()
    global NAGN, SPANS, NVOTE_WG
    NVOTE_WG = o.nvote
    NAGN = o.nagn
    if NAGN == 6:
        SPANS = [(0, 0), (0, 1), (1, 0), (1, 1), (2, 0), (2, 1),
                 (3, 0), (3, 1), (4, 0), (4, 1), (5, 0), (5, 1), (6, 0), (6, 1), (7, 0), (7, 1)]
        if o.zorder == p.get_default("zorder"):
            o.zorder = "6,0,7,1,8,2,9,3,10,4,11,5,12,13,14,15"
    if o.spans:
        SPANS = [(int(v[0]), int(v[1])) for v in o.spans.split(",")]
        assert sorted(SPANS) == [(a, b) for a in range(8) for b in range(2)]
    g = G(o)
    g.build()
    open(o.o, "w").write(g.text())


if __name__ == "__main__":
    main()
```

```python
import argparse

KNAME = "standalone__channel_attn_cbam__vision_kernel"

HEADER = """; Kernarg layout for this problem (48 bytes, ptrs only, base s[0:1]):
;   offset   0: d_in[0] x  shape=(1, 512, 512, 192) dtype=bfloat16 strides=(100663296, 196608, 384, 2) contiguous=True
;   offset   8: d_in[1] w1  shape=(192, 48) dtype=bfloat16 strides=(96, 2) contiguous=True
;   offset  16: d_in[2] w2  shape=(48, 192) dtype=bfloat16 strides=(384, 2) contiguous=True
;   offset  40: d_ws      402653184 bytes workspace (unspecified values whenever your kernel or launch list starts; a list's later launches find what earlier ones wrote)
"""

X_BYTES = 100663296
NWG = 256
NRED = 12
MiB = 1 << 20

L_RED = 0
L_H = 6144
L_DEC = 6336
L_S = 6400
L_F = 7168
L_W1 = 8192
L_W2 = L_W1 + 18432
L_SPILL = L_W2 + 18432
L_TOTAL = L_SPILL + 3 * 8192

WS_P = 0
WS_Q = 256 * 1536
WS_E = WS_Q + 4 * 49152
WS_USED = WS_E + 128
WS_PROBE = 640 * 1024
WS_STAMP = 1 << 20

S_X, S_OUT, S_WS, S_DBG, S_W = 4, 8, 12, 16, 20
S_WAVE, S_TY, S_SUB, S_OFF, S_MASK, S_CNT, S_T0, S_T1 = 28, 29, 30, 31, 32, 33, 34, 35
S_BASE, S_PM, S_P, S_T2 = 48, 49, 50, 51
S_AGN, S_RID, S_PO = 40, 42, 43
S_TG = [41, 47, 3, 0]
S_RET, S_HOOK, S_QC = 38, 46, 1
S_BASE1 = 45
NFB = 48
S_STAMP = 52
S_V = 24

D0 = 40
SPIN = 400000
V_L, V_G0, V_G1, V_AT = 0, 39, 38, 36

NAGN = 8
SPANS = [(0, 0), (0, 1), (1, 0), (1, 1), (2, 0), (2, 1), (3, 0), (3, 1),
         (6, 0), (4, 0), (6, 1), (4, 1), (7, 0), (5, 0), (7, 1), (5, 1)]
W_ROLE = 0
DBG_RES, DBG_TAL = 0, 128
NVOTE_WG = 32
RES_OK = (1 << 9) | (1 << 8)


def mask(pred):
    return sum(1 << z for z, s in enumerate(SPANS) if pred(z, s))


class G:
    def __init__(self, o):
        self.o = o
        self.lines = []

    def e(self, s=""):
        self.lines.append(("    " + s) if s and not s.endswith(":") else s)

    def stamp(self, idx, vote=False):
        if self.o.clk:
            if idx in (11, 12, 13):
                return
            m = {0: 11, 7: 12, 10: 13}.get(idx)
            if m:
                self.e(f"s_memtime s[{S_STAMP + 2 * m}:{S_STAMP + 2 * m + 1}]")
        if vote == "r":
            vote = False
        if self.o.vdiag and idx in (1, 2, 3, 6) and not vote:
            return
        if vote and not self.o.vdiag:
            return
        if self.o.stamps and not (self.o.trace and idx > 10):
            self.e(f"s_memrealtime s[{S_STAMP + 2 * idx}:{S_STAMP + 2 * idx + 1}]")

    def srd(self, d, lo, nbytes):
        e = self.e
        e(f"s_mov_b64 s[{d}:{d + 1}], s[{lo}:{lo + 1}]")
        e(f"s_mov_b32 s{d + 2}, {nbytes}")
        e(f"s_mov_b32 s{d + 3}, 0x20000")

    def span_off(self, z):
        return SPANS[z][0] * 12 * MiB + SPANS[z][1] * 49152

    def mem(self, j, fn):
        e = self.e
        z, u = j >> 1, j & 1
        if z < NAGN:
            off = (j // self.o.agnu) * self.o.agnu * 3 * MiB + (j % self.o.agnu) * 12288
            if off:
                e(f"s_add_u32 s{S_OFF}, s{S_AGN}, {off}")
                fn(f"v{V_L}", f"s{S_OFF}")
            else:
                fn(f"v{V_L}", f"s{S_AGN}")
            return
        if u == 0:
            e(f"s_bitcmp1_b32 s{S_PM}, {z}")
            e(f"s_cselect_b32 s{S_P}, 24576, 0")
        e(f"s_add_u32 s{S_OFF}, s{(S_BASE, S_BASE1)[SPANS[z][1]]}, {SPANS[z][0] * 12 * MiB + 12288 * u}")
        at = 2 + u
        e(f"v_xad_u32 v{at}, v{(V_G0, V_G1)[u]}, s{S_P}, v{V_L}")
        if SPANS[z] == (7, 1):
            e(f"v_add_u32 v{at}, s{S_OFF}, v{at}")
            e(f"v_subrev_u32 v{5 - at}, s{S_X + 2}, v{at}")
            e(f"v_min_u32 v{at}, v{at}, v{5 - at}             ; past the end: wrap to the rows the shift skipped")
            fn(f"v{at}", "0")
        else:
            fn(f"v{at}", f"s{S_OFF}")

    def trace(self, kind, n):
        if self.o.trace == kind:
            if n > 0:
                self.e("s_waitcnt lgkmcnt(0)")
                self.e(f"s_mov_b32 s{76 + n - 1}, s92")
            self.e("s_memrealtime s[92:93]")

    def build(self):
        o, e = self.o, self.e
        NRACE = o.nrace
        ldf = (" " + o.ldflags) if o.ldflags else ""
        stf = (" " + o.stflags) if o.stflags else ""

        self.stamp(0)
        e("s_load_dwordx2 s[4:5], s[0:1], 0          ; x")
        e("s_load_dwordx2 s[8:9], s[0:1], 24         ; out")
        e("v_readfirstlane_b32 s%d, v0" % S_WAVE)
        e("v_and_b32 v1, 63, v0                      ; lane")
        pl = (o.piece // 16).bit_length() - 1
        e(f"v_bfe_u32 v2, v0, {pl}, {6 - pl}")
        e(f"v_mul_u32_u24 v2, {3 * o.piece}, v2")
        e(f"v_and_b32 v3, {(1 << pl) - 1}, v0")
        e("s_cmpk_ge_u32 s2, %d" % NWG)
        e("s_cbranch_scc1 L_end")
        e(f"s_lshr_b32 s{S_WAVE}, s{S_WAVE}, 6")
        e(f"s_mul_i32 s{S_SUB}, s{S_WAVE}, 43")
        e(f"s_lshr_b32 s{S_SUB}, s{S_SUB}, 7")
        e(f"s_mul_i32 s{S_T0}, s{S_SUB}, {3072 // o.piece - 3}")
        e(f"s_add_u32 s{S_T0}, s{S_T0}, s{S_WAVE}        ; sub*24 + wave % 3")
        e(f"s_lshl_b32 s{S_T0}, s{S_T0}, {pl + 4}")
        e("v_lshl_add_u32 v0, v3, 4, v2")
        e(f"v_add_u32 v{V_L}, s{S_T0}, v0               ; + sub*3072 + (wave % 3)*128")
        if o.qmap == 0:
            e(f"s_and_b32 s{S_T0}, s2, 3")
            e(f"s_bfe_u32 s{S_T1}, s2, 0x10002")
            e(f"s_lshl1_add_u32 s{S_T0}, s{S_T0}, s{S_T1}")
            e(f"s_and_b32 s{S_T1}, s2, -8")
            e(f"s_add_u32 s{S_T0}, s{S_T0}, s{S_T1}")
        else:
            e(f"s_and_b32 s{S_T0}, s2, 7")
            e(f"s_lshl_b32 s{S_T0}, s{S_T0}, 5")
            e(f"s_lshr_b32 s{S_T1}, s2, 3")
            e(f"s_add_u32 s{S_T0}, s{S_T0}, s{S_T1}")
        e(f"s_mul_i32 s{S_AGN}, s{S_T0}, {o.agnu * 12288}")
        e(f"s_mov_b32 s{S_X + 2}, {X_BYTES}")
        e(f"s_mov_b32 s{S_X + 3}, 0x20000")
        e(f"s_lshl_b32 s{S_T1}, s{S_WAVE}, 8")
        e(f"s_or_b32 s{S_T1}, s{S_T1}, s2")
        e("s_waitcnt lgkmcnt(0)")
        e(f"s_lshr_b32 s{S_T0}, s{S_OUT}, 7")
        e(f"s_mul_i32 s{S_T0}, s{S_T0}, 21              ; -43 mod 64")
        e(f"s_and_b32 s{S_T0}, s{S_T0}, 63")
        e(f"s_mulk_i32 s{S_T0}, 384")
        e(f"s_add_u32 s{S_AGN}, s{S_AGN}, s{S_T0}")
        assert W_ROLE == 0

        SUM, MAX, T = 4, 12, 20
        DEPTH = o.depth
        seq = []

        def issue(j):
            if j == o.rolepos:
                e(f"s_cmp_le_u32 s{S_T1}, {NVOTE_WG}              ; wave 0 of the first workgroups has a side job")
                e("s_cbranch_scc1 L_role")
                e("L_stream:")
            if o.cpf and j == o.cpfpos:
                e(f"s_sub_u32 s{S_T1}, s{S_T1}, 256")
                e(f"s_cmp_ge_u32 s{S_T1}, {o.cpf}")
                e("s_cbranch_scc1 L_nocpf")
                e("s_getpc_b64 s[20:21]")
                e("v_lshlrev_b32 v2, 7, v1")
                e("v_add_u32 v3, 8192, v2")
                e("v_min_u32 v3, L_codeend - L_nocpf, v3")
                e("global_load_dword v36, v2, s[20:21]")
                e("global_load_dword v37, v3, s[20:21]")
                e("L_nocpf:")
            if j == max(4, o.rolepos):
                e("s_load_dwordx4 s[36:39], s[0:1], 8        ; w1, w2")
                e(f"s_load_dwordx2 s[{S_DBG}:{S_DBG + 1}], s[0:1], 32")
                e(f"s_load_dwordx2 s[{S_WS}:{S_WS + 1}], s[0:1], 40")
                e(f"s_mov_b32 s{S_MASK}, 0xffff0000")
            if j == 2 * NAGN:
                e(f"s_mul_i32 s{S_TY}, s{S_SUB}, 3")
                e(f"s_sub_u32 s{S_TY}, s{S_WAVE}, s{S_TY}        ; ty = wave % 3")
                e(f"s_mov_b32 s{S_OUT + 2}, s{S_X + 2}")
                e(f"s_mov_b32 s{S_OUT + 3}, s{S_X + 3}")
                e(f"s_mov_b32 s{S_WS + 2}, {(2 << 20) if o.stamps else WS_USED}")
                e(f"s_mov_b32 s{S_WS + 3}, s{S_X + 3}")
                e(f"s_movk_i32 s{S_DBG + 2}, 256")
                e(f"s_mov_b32 s{S_DBG + 3}, s{S_X + 3}")
                e(f"s_movk_i32 s{S_T2}, 24576")
                e(f"v_bfe_u32 v{V_G0}, v{V_L}, 13, 1")
                e(f"v_add_u32 v{V_G1}, 12288, v{V_L}")
                e(f"v_bfe_u32 v{V_G1}, v{V_G1}, 13, 1")
                e(f"v_mul_u32_u24 v{V_G0}, s{S_T2}, v{V_G0}")
                e(f"v_mul_u32_u24 v{V_G1}, s{S_T2}, v{V_G1}")
                e(f"s_bfe_i32 s{S_PM}, s2, 0x10002              ; -side")
                e(f"s_lshr_b32 s{S_T0}, s{S_OUT}, 7")
                e(f"s_mul_i32 s{S_T0}, s{S_T0}, 21")
                e(f"s_and_b32 s{S_T0}, s{S_T0}, 63")
                e(f"s_mulk_i32 s{S_T0}, 384")
                e(f"s_and_b32 s{S_T1}, s2, 3")
                e(f"s_lshr_b32 s{S_BASE}, s2, 3")
                if o.qmap == 0:
                    e(f"s_lshl2_add_u32 s{S_BASE}, s{S_BASE}, s{S_T1}")
                else:
                    e(f"s_lshl_b32 s{S_T1}, s{S_T1}, 5")
                    e(f"s_add_u32 s{S_BASE}, s{S_BASE}, s{S_T1}")
                e(f"s_add_u32 s{S_BASE1}, s{S_BASE}, {o.qshift}")
                e(f"s_and_b32 s{S_BASE1}, s{S_BASE1}, 127")
                e(f"s_mul_i32 s{S_BASE}, s{S_BASE}, 98304")
                e(f"s_add_u32 s{S_BASE}, s{S_BASE}, s{S_T0}        ; the pair's first span of a step")
                e(f"s_mul_i32 s{S_BASE1}, s{S_BASE1}, 98304")
                e(f"s_add_u32 s{S_BASE1}, s{S_BASE1}, s{S_T0}")
                e(f"s_add_u32 s{S_BASE1}, s{S_BASE1}, 49152      ; its second span: 3 MiB on, where the memory stacks swap")
                h1 = mask(lambda z, s: s[1] == 1)
                e(f"s_add_u32 s{S_T2}, s{S_T2}, s{S_OUT}")
                e(f"s_add_u32 s{S_T0}, s{S_BASE}, s{S_T2}")
                e(f"s_bfe_i32 s{S_T1}, s{S_T0}, 0x10015")
                e(f"s_xor_b32 s{S_PM}, s{S_PM}, s{S_T1}")
                e(f"s_add_u32 s{S_T2}, s{S_BASE1}, s{S_T2}")
                e(f"s_xor_b32 s{S_T0}, s{S_T0}, s{S_T2}")
                e(f"s_bfe_i32 s{S_T0}, s{S_T0}, 0x10015")
                e(f"s_and_b32 s{S_T0}, s{S_T0}, {h1}")
                e(f"s_xor_b32 s{S_PM}, s{S_PM}, s{S_T0}")
                m1 = mask(lambda z, s: z >= NAGN and s[0] in (3, 4))
                z50 = SPANS.index((5, 0))
                z51 = SPANS.index((5, 1))
                dec = mask(lambda z, s: z >= NAGN)
                e(f"s_cmp_lt_u32 s{S_BASE}, {4 * MiB - 24576}")
                e(f"s_cselect_b32 s{S_T0}, {1 << z50}, 0")
                e(f"s_or_b32 s{S_T0}, s{S_T0}, {m1}")
                e(f"s_cmp_lt_u32 s{S_BASE1}, {4 * MiB - 24576}")
                e(f"s_cselect_b32 s{S_T1}, {1 << z51}, 0")
                e(f"s_or_b32 s{S_T0}, s{S_T0}, s{S_T1}            ; third 1")
                e(f"s_xor_b32 s{S_T1}, s{S_T0}, {dec}           ; third 2")
                per, pat = o.opp
                rep = sum(((pat >> (i % per)) & 1) << i for i in range(32))
                e(f"s_lshr_b32 s{S_P}, s2, 3")
                e(f"s_mul_i32 s{S_T2}, s{S_P}, {-(-256 // per)}")
                e(f"s_lshr_b32 s{S_T2}, s{S_T2}, 8")
                e(f"s_mul_i32 s{S_T2}, s{S_T2}, {per}")
                e(f"s_sub_u32 s{S_P}, s{S_P}, s{S_T2}             ; (b >> 3) % {per}")
                e(f"s_lshr_b32 s{S_P}, {rep}, s{S_P}")
                e(f"s_sub_u32 s{S_T2}, s{S_OUT}, s{S_X}")
                e(f"s_add_u32 s{S_T2}, s{S_T2}, 2048")
                e(f"s_bitcmp1_b32 s{S_T2}, 12")
                e(f"s_cselect_b32 s{S_P}, 0, s{S_P}")
                e(f"s_lshr_b32 s{S_T2}, s2, 3")
                e(f"s_sub_u32 s{S_RID}, s{S_T2}, {o.red0}")
                e(f"s_and_b32 s{S_PO}, s2, 7")
                e(f"s_lshl_b32 s{S_PO}, s{S_PO}, 5")
                e(f"s_add_u32 s{S_PO}, s{S_PO}, s{S_T2}")
                e(f"s_mulk_i32 s{S_PO}, 1536")
                e("s_waitcnt lgkmcnt(0)")
                self.stamp(11)
                e("s_barrier")
                e(f"s_load_dword s{S_T2}, s[{S_DBG}:{S_DBG + 1}], {DBG_RES}")
                e("s_waitcnt lgkmcnt(0)")
                e(f"s_andn2_b32 s{S_CNT}, {RES_OK}, s{S_T2}")
                e("s_cbranch_scc1 L_dpoll")
                e("L_decided:")
                for i in range(4):
                    e(f"s_bitcmp1_b32 s{S_T2}, {7 + 6 * i + 5}")
                    e(f"s_cselect_b32 s{S_V + i}, s{(S_T0, S_T1)[i >> 1]}, 0")
                e(f"s_or_b32 s{S_V}, s{S_V}, s{S_V + 2}")
                e(f"s_or_b32 s{S_V + 1}, s{S_V + 1}, s{S_V + 3}")
                e(f"s_xor_b32 s{S_V}, s{S_V}, s{S_V + 1}")
                e(f"s_and_b32 s{S_V}, s{S_V}, s{S_P}")
                e(f"s_xor_b32 s{S_V}, s{S_V}, s{S_V + 1}")
                e(f"s_xor_b32 s{S_PM}, s{S_PM}, s{S_V}")
                e(f"s_and_b32 s{S_TG[0]}, s{S_T2}, 15")
                e(f"s_bfe_u32 s{S_TG[1]}, s{S_T2}, 0x40004")
                e(f"s_xor_b32 s{S_TG[2]}, s{S_TG[0]}, 15")
                e(f"s_xor_b32 s{S_TG[3]}, s{S_TG[1]}, 15")
                e(f"s_lshr_b32 s{S_QC}, s{S_T2}, 10")
                e(f"s_and_b32 s{S_QC}, s{S_QC}, 4")
                e(f"s_xor_b32 s{S_QC}, s{S_QC}, s2             ; bits 2:0: the second-stage copy near this die")
                self.stamp(12)
            if j in o.xbar:
                e("s_barrier")
                if j == o.xbar[-1]:
                    self.stamp(2, "r")
            if j == o.warm and o.warmst:
                e(f"s_cmp_ge_u32 s{S_WAVE}, 2")
                e("s_cbranch_scc1 L_nowarm")
                for i in range(4):
                    e(f"v_mov_b32 v{20 + i}, 0")
                e(f"s_mul_i32 s{S_T0}, s{S_WAVE}, 768")
                e(f"v_lshl_add_u32 v3, v1, 4, s{S_T0}")
                e("s_mov_b32 exec_hi, 0xffff")
                e(f"buffer_store_dwordx4 v[20:23], v3, s[{S_WS}:{S_WS + 3}], s{S_PO} offen")
                e("s_mov_b64 exec, -1")
                e("L_nowarm:")
            if j == o.warm and not o.warmst:
                e(f"s_cmp_lg_u32 s{S_WAVE}, {o.warmwave}")
                e("s_cbranch_scc1 L_nowarm")
                e("v_lshlrev_b32 v3, 7, v1")
                e("s_mov_b64 exec, 0xfff")
                e(f"buffer_load_dword v37, v3, s[{S_WS}:{S_WS + 3}], s{S_PO} offen")
                e("s_mov_b64 exec, -1")
                e("L_nowarm:")
            r = D0 + 4 * j
            if o.thr and j == 10:
                e(f"s_getreg_b32 s{S_T0}, hwreg(HW_REG_XCC_ID, 0, 3)")
                e(f"s_lshr_b32 s{S_T0}, {o.thrmask}, s{S_T0}")
                e(f"s_and_b32 vcc_lo, s{S_T0}, 1")
                e("s_mov_b32 vcc_hi, 0")
            if o.thr and o.thrfrom <= j < o.thrto:
                e(f"s_cbranch_vccz L_thr{j}")
                e(f"s_waitcnt vmcnt({o.thr - 1})")
                e(f"L_thr{j}:")
            self.mem(j, lambda va, so: e(f"buffer_load_dwordx4 v[{r}:{r + 3}], {va}, s[{S_X}:{S_X + 3}], {so} offen{ldf}"))
            seq.append(j)
            if j & 1:
                self.trace("ld", j >> 1)

        def wait_for(j):
            e(f"s_waitcnt vmcnt({len(seq) - 1 - seq.index(j)})")

        nxt = 0
        for jj in range(16):
            while nxt < 32 and nxt < max(2 * jj + DEPTH + 2, 2 * NAGN + 2 if o.prebar else 0):
                issue(nxt)
                nxt += 1
                if nxt == 32:
                    self.stamp(1)
            a, b = D0 + 8 * jj, D0 + 8 * jj + 4
            if jj == 15:
                e("v_and_b32 v2, 7, v1")
                e("v_lshlrev_b32 v2, 5, v2                   ; (l&7)*32")
                e("v_lshrrev_b32 v3, 4, v1")
                e("v_lshl_add_u32 v2, v3, 3, v2              ; + (l>>4)*8")
                e("v_bfe_u32 v3, v1, 3, 1")
                e("v_mul_u32_u24 v3, 768, v3")
                e(f"s_mul_i32 s{S_T0}, s{S_SUB}, 1536")
                e(f"s_lshl_b32 s{S_T1}, s{S_TY}, 8")
                e(f"s_add_u32 s{S_T0}, s{S_T0}, s{S_T1}")
                e(f"v_add3_u32 v2, v2, v3, s{S_T0}")
                e(f"s_mul_i32 s{S_T0}, s{S_WAVE}, 768")
                e(f"v_lshl_add_u32 v3, v1, 4, s{S_T0}")
                for r in (a, b):
                    wait_for((r - D0) // 4)
                    if r == b:
                        self.stamp(3)
                    for i in range(4):
                        t = T + 2 * i
                        e(f"v_lshlrev_b32 v{t}, 16, v{r + i}")
                        e(f"v_and_b32 v{t + 1}, s{S_MASK}, v{r + i}")
                    for i in range(8):
                        e(f"v_max_f32 v{MAX + i}, v{MAX + i}, v{T + i}")
                    for i in range(4):
                        t, s = T + 2 * i, SUM + 2 * i
                        e(f"v_pk_add_f32 v[{s}:{s + 1}], v[{s}:{s + 1}], v[{t}:{t + 1}]")
                continue
            wait_for(2 * jj + 1)
            if jj == 0 and not o.xbar:
                self.stamp(2)
            for i in range(4):
                t = T + 4 * i
                e(f"v_lshlrev_b32 v{t}, 16, v{a + i}")
                e(f"v_and_b32 v{t + 1}, s{S_MASK}, v{a + i}")
                e(f"v_lshlrev_b32 v{t + 2}, 16, v{b + i}")
                e(f"v_and_b32 v{t + 3}, s{S_MASK}, v{b + i}")
            for i in range(4):
                t = T + 4 * i
                s, m = SUM + 2 * i, MAX + 2 * i
                if jj == 0:
                    e(f"v_max_f32 v{m}, v{t}, v{t + 2}")
                    e(f"v_max_f32 v{m + 1}, v{t + 1}, v{t + 3}")
                    e(f"v_pk_add_f32 v[{s}:{s + 1}], v[{t}:{t + 1}], v[{t + 2}:{t + 3}]")
                else:
                    e(f"v_max3_f32 v{m}, v{m}, v{t}, v{t + 2}")
                    e(f"v_max3_f32 v{m + 1}, v{m + 1}, v{t + 1}, v{t + 3}")
                    e(f"v_pk_add_f32 v[{t}:{t + 1}], v[{t}:{t + 1}], v[{t + 2}:{t + 3}]")
            if jj:
                for i in range(4):
                    t = T + 4 * i
                    s = SUM + 2 * i
                    e(f"v_pk_add_f32 v[{s}:{s + 1}], v[{s}:{s + 1}], v[{t}:{t + 1}]")

        for base in (MAX, SUM):
            for i in range(4):
                e(f"v_permlane32_swap_b32 v{base + i}, v{base + 4 + i}")
        for i in range(4):
            e(f"v_max_f32 v{MAX + i}, v{MAX + i}, v{MAX + 4 + i}")
        for i in range(4):
            e(f"v_add_f32 v{SUM + i}, v{SUM + i}, v{SUM + 4 + i}")
        for i in range(2):
            e(f"v_permlane16_swap_b32 v{MAX + i}, v{MAX + 2 + i}")
        for i in range(2):
            e(f"v_permlane16_swap_b32 v{SUM + i}, v{SUM + 2 + i}")
        for i in range(2):
            e(f"v_add_f32 v{SUM + i}, v{SUM + i}, v{SUM + 2 + i}")
        for i in range(2):
            e(f"v_max_f32 v{MAX + i}, v{MAX + i}, v{MAX + 2 + i}")
        e(f"s_cmp_ge_u32 s{S_WAVE}, 2")
        for i in range(2):
            e(f"v_add_f32_dpp v{SUM + i}, v{SUM + i}, v{SUM + i} row_ror:8 row_mask:0xf bank_mask:0x3")
        for i in range(2):
            e(f"v_max_f32_dpp v{SUM + i}, v{MAX + i}, v{MAX + i} row_ror:8 row_mask:0xf bank_mask:0xc")
        e(f"ds_write_b64 v2, v[{SUM}:{SUM + 1}] offset:{L_RED}")
        e("s_waitcnt lgkmcnt(0)")
        e("s_barrier")
        self.stamp(4)
        e("s_cbranch_scc1 L_nopub")

        e("s_mov_b32 exec_hi, 0xffff")
        for k in range(4):
            e(f"ds_read_b128 v[{4 + 4 * k}:{7 + 4 * k}], v3 offset:{L_RED + 1536 * k}")
        e(f"s_cmp_eq_u32 s{S_WAVE}, 0")
        e(f"s_cselect_b64 s[{S_W}:{S_W + 1}], s[36:37], s[38:39]")
        e("s_cbranch_scc0 L_pubmax")
        e("s_waitcnt lgkmcnt(2)")
        e("v_pk_add_f32 v[4:5], v[4:5], v[8:9]")
        e("v_pk_add_f32 v[6:7], v[6:7], v[10:11]")
        e("s_waitcnt lgkmcnt(0)")
        e("v_pk_add_f32 v[12:13], v[12:13], v[16:17]")
        e("v_pk_add_f32 v[14:15], v[14:15], v[18:19]")
        e("v_pk_add_f32 v[4:5], v[4:5], v[12:13]")
        e("v_pk_add_f32 v[6:7], v[6:7], v[14:15]")
        e("s_branch L_pub")
        e("L_pubmax:")
        e("s_waitcnt lgkmcnt(1)")
        for i in range(4):
            e(f"v_max3_f32 v{4 + i}, v{4 + i}, v{8 + i}, v{12 + i}")
        e("s_waitcnt lgkmcnt(0)")
        for i in range(4):
            e(f"v_max_f32 v{4 + i}, v{4 + i}, v{16 + i}")
        e("L_pub:")
        for i in range(4):
            e(f"v_and_or_b32 v{4 + i}, v{4 + i}, -16, s{S_TG[i]}")
        e(f"buffer_store_dwordx4 v[4:7], v3, s[{S_WS}:{S_WS + 3}], s{S_PO} offen{' sc1' if o.psc1 else ' nt' if o.pnt else ''}")
        e("s_mov_b64 exec, -1")
        e(f"s_movk_i32 s{S_W + 2}, 18432")
        e(f"s_mov_b32 s{S_W + 3}, 0x20000")
        e(f"s_mul_i32 s{S_T0}, s{S_WAVE}, 18432")
        e(f"s_addk_i32 s{S_T0}, {L_W1}")
        e(f"s_mov_b32 s{S_T1}, 0")
        e("v_lshlrev_b32 v2, 4, v1")
        e("L_wloop:")
        e(f"s_add_u32 m0, s{S_T0}, s{S_T1}")
        e(f"s_cmp_ge_u32 s{S_RID}, {NRED}")
        for k in range(3):
            e(f"buffer_load_dwordx4 v2, s[{S_W}:{S_W + 3}], s{S_T1} offen offset:{k * 1024} lds")
        e("s_cbranch_scc1 L_wnext")
        e(f"s_waitcnt vmcnt({o.wpace})")
        e("L_wnext:")
        e(f"s_addk_i32 s{S_T1}, 3072")
        e(f"s_cmp_lt_u32 s{S_T1}, 18432")
        e("s_cbranch_scc1 L_wloop")
        e("L_nopub:")

        B2 = 28
        V_H0, V_H1, V_SW, V_SR, V_Q = 24, 25, 26, 27, 37
        SP0 = 136
        A1 = 144
        B1 = [4, 8, 12, 16, 136, 140]
        e("v_lshrrev_b32 v20, 4, v1                  ; q")
        e(f"s_mov_b32 s{S_HOOK}, {SPIN - NFB}")
        e(f"s_cmp_lt_u32 s{S_WAVE}, 3")
        e("s_cbranch_scc1 L_spill")
        e(f"s_cmp_ge_u32 s{S_RID}, {NRED}")
        e("s_cbranch_scc1 L_barw")
        e(f"s_cmp_lg_u32 s{S_WAVE}, 3")
        e("s_cbranch_scc1 L_barw")

        def clean(lbl, d, a):
            e(f"s_cmp_lg_u32 s{S_WAVE}, 3")
            e(f"s_cbranch_scc1 {lbl}")
            if o.cw:
                e(f"v_mov_b32 v{d}, 0")
                e(f"v_lshlrev_b32 v{a}, {o.cw}, v1")
                e(f"s_mov_b64 exec, {(1 << (1536 >> o.cw)) - 1}")
                if o.cld:
                    e(f"buffer_atomic_or v{d}, v{a}, s[{S_WS}:{S_WS + 3}], s{S_PO} offen")
                else:
                    e(f"buffer_store_dword v{d}, v{a}, s[{S_WS}:{S_WS + 3}], s{S_PO} offen sc1")
                e("s_mov_b64 exec, -1")
                return
            for i in range(4):
                e(f"v_mov_b32 v{d + i}, 0")
            e(f"v_lshlrev_b32 v{a}, 4, v1")
            e("s_mov_b32 exec_hi, 0xffff")
            e(f"buffer_store_dwordx4 v[{d}:{d + 3}], v{a}, s[{S_WS}:{S_WS + 3}], s{S_PO} offen sc1")
            e(f"buffer_store_dwordx4 v[{d}:{d + 3}], v{a}, s[{S_WS}:{S_WS + 3}], s{S_PO} offen offset:768 sc1")
            e("s_mov_b64 exec, -1")

        def hook(lbl):
            e(f"s_cmp_lg_u32 s{S_CNT}, s{S_HOOK}")
            e(f"s_cbranch_scc1 {lbl}")
            e(f"s_call_b64 s[{S_RET}:{S_RET + 1}], L_flush")
            e(f"{lbl}:")

        e("v_lshrrev_b32 v2, 3, v1")
        e("v_mul_u32_u24 v2, 1536, v2")
        e("v_and_b32 v3, 7, v1")
        e(f"v_lshl_add_u32 v{V_Q}, v3, 4, v2")
        e(f"s_and_b32 s{S_T0}, s2, 7")
        e(f"s_mul_i32 s{S_V}, s{S_T0}, {32 * 1536}")
        e(f"s_lshl_b32 s{S_T1}, s{S_RID}, 7")
        e(f"s_add_u32 s{S_V}, s{S_V}, s{S_T1}")
        for k in range(1, 4):
            e(f"s_add_u32 s{S_V + k}, s{S_V}, {k * 8 * 1536}")
        e(f"s_lshl_b32 s{S_T0}, s{S_T0}, 8              ; group*256")
        e(f"s_lshr_b32 s{S_T1}, s{S_RID}, 2")
        e(f"s_lshl2_add_u32 s{S_T1}, s{S_T1}, s{S_RID}")
        e(f"s_lshl_b32 s{S_T1}, s{S_T1}, 11")
        e(f"s_add_u32 s{S_T1}, s{S_T1}, s{S_T0}")
        for k in range(o.qcopy // 2):
            e(f"s_add_u32 s{S_W + k}, s{S_T1}, {WS_Q + k * 49152}")
        e("v_and_b32 v2, 15, v1")
        e("v_lshlrev_b32 v3, 2, v2")
        e("v_bfe_u32 v2, v1, 4, 1")
        e("v_lshl_add_u32 v3, v2, 7, v3")
        e("v_lshrrev_b32 v2, 5, v1")
        e("v_lshl_add_u32 v3, v2, 13, v3             ; (l>>5)*8192 + ((l>>4)&1)*128 + (l&15)*4")
        e(f"s_lshl4_add_u32 s{S_T0}, s{S_TG[1]}, s{S_TG[0]}")
        e(f"s_xor_b32 s{S_CNT}, s{S_T0}, 0xff")
        e(f"s_lshl_b32 s{S_CNT}, s{S_CNT}, 8")
        e(f"s_or_b32 s{S_T0}, s{S_T0}, s{S_CNT}")
        e("v_and_b32 v2, 12, v3")
        e(f"v_bfe_u32 v23, s{S_T0}, v2, 4")
        e(f"s_mov_b32 s{S_CNT}, {SPIN}")
        e("L_rpoll:")
        hook("L_rnohook")
        for k in range(4):
            e(f"buffer_load_dwordx4 v[{4 + 4 * k}:{7 + 4 * k}], v{V_Q}, s[{S_WS}:{S_WS + 3}], s{S_V + k} offen sc1")
        e(f"s_sub_u32 s{S_CNT}, s{S_CNT}, 1")
        e("s_cbranch_scc1 L_rgot")
        for k in range(4):
            e(f"s_waitcnt vmcnt({3 - k})")
            for i in range(4):
                r, acc = 4 + 4 * k + i, 21 + (i & 1)
                if k == 0 and i < 2:
                    e(f"v_xor_b32 v{acc}, s{S_TG[i]}, v{r}")
                else:
                    e(f"v_bitop3_b32 v{acc}, v{acc}, v{r}, s{S_TG[i]} bitop3:0xf6   ; a | (b ^ c)")
        e("v_bitop3_b32 v21, v21, v22, 15 bitop3:0xa8          ; (a | b) & c")
        e("v_cmp_ne_u32 vcc, 0, v21")
        e("s_wqm_b64 exec, vcc                       ; 64-byte units still waiting poll again")
        e("s_cbranch_scc1 L_rpoll")
        e("L_rgot:")
        e("s_mov_b64 exec, -1")
        e("s_waitcnt vmcnt(0)")
        self.stamp(1, "r")
        e(f"s_cmp_ge_u32 s{S_RID}, 6")
        e("s_cbranch_scc1 L_rmax")
        for kind in (0, 1):
            op = "v_add_f32" if kind == 0 else "v_max_f32"
            if kind == 1:
                e("L_rmax:")
                for i in range(4):
                    e(f"v_max3_f32 v{4 + i}, v{4 + i}, v{8 + i}, v{12 + i}")
                for i in (0, 2, 1, 3):
                    e(f"v_max_f32 v{4 + i}, v{4 + i}, v{16 + i}")
            else:
                e("v_pk_add_f32 v[4:5], v[4:5], v[8:9]")
                e("v_pk_add_f32 v[6:7], v[6:7], v[10:11]")
                e("v_pk_add_f32 v[12:13], v[12:13], v[16:17]")
                e("v_pk_add_f32 v[14:15], v[14:15], v[18:19]")
                e("v_pk_add_f32 v[4:5], v[4:5], v[12:13]")
                e("v_pk_add_f32 v[6:7], v[6:7], v[14:15]")
                e("s_nop 0")
            e(f"{op}_dpp v4, v4, v4 row_ror:8 row_mask:0xf bank_mask:0x3")
            if kind == 0:
                e(f"{op}_dpp v5, v5, v5 row_ror:8 row_mask:0xf bank_mask:0x3")
                e(f"{op}_dpp v4, v6, v6 row_ror:8 row_mask:0xf bank_mask:0xc")
            else:
                e(f"{op}_dpp v4, v6, v6 row_ror:8 row_mask:0xf bank_mask:0xc")
                e(f"{op}_dpp v5, v5, v5 row_ror:8 row_mask:0xf bank_mask:0x3")
            e(f"{op}_dpp v5, v7, v7 row_ror:8 row_mask:0xf bank_mask:0xc")
            e("s_nop 1")
            e("v_permlane16_swap_b32 v4, v5")
            e(f"{op} v4, v4, v5")
            e("v_mov_b32 v5, v4")
            e("s_nop 1")
            e("v_permlane32_swap_b32 v4, v5")
            e(f"{op} v4, v4, v5                        ; lane 16a+8b+c: element 2b+a of piece c")
            if kind == 0:
                e("s_branch L_rpub")
        e("L_rpub:")
        e("v_and_or_b32 v4, v4, -16, v23")
        for k in range(o.qcopy // 2):
            e(f"buffer_store_dword v4, v3, s[{S_WS}:{S_WS + 3}], s{S_W + k} offen sc1")
            if k == 0:
                self.stamp(9)
        if o.clean == "r":
            for i in range(4):
                e(f"v_mov_b32 v{8 + i}, 0")
            for k in range(4):
                e(f"buffer_store_dwordx4 v[8:11], v{V_Q}, s[{S_WS}:{S_WS + 3}], s{S_V + k} offen sc1")
        e("s_barrier")
        e("s_branch L_afterw")

        e("L_spill:")
        e(f"s_lshl_b32 s{S_T0}, s{S_WAVE}, 13")
        e(f"v_lshl_add_u32 v{V_AT}, v1, 4, s{S_T0}")
        for k in range(8):
            e(f"ds_write_b128 v{V_AT}, v[{SP0 + 4 * k}:{SP0 + 4 * k + 3}] offset:{L_SPILL + 1024 * k}")
        e("L_barw:")
        e("s_waitcnt vmcnt(0) lgkmcnt(0)")
        e("s_barrier")
        e("L_afterw:")
        e("v_bfe_u32 v3, v1, 2, 2")
        e("v_lshl_add_u32 v21, v20, 3, v3            ; row")
        e("v_and_b32 v22, 15, v21                    ; row of the half step (q&1)")
        e("v_and_b32 v3, 3, v1")
        e(f"s_lshl_b32 s{S_T2}, s{S_WAVE}, 5")
        e(f"v_lshl_add_u32 v23, v3, 3, s{S_T2}          ; column bytes")
        e("v_mov_b32 v3, 384")
        e("v_mad_u32_u24 v2, v21, v3, v23")
        e("v_mad_u32_u24 v22, v22, v3, v23")
        e(f"ds_read_b64_tr_b16 v[{B2}:{B2 + 1}], v2 offset:{L_W2}")
        e(f"ds_read_b64_tr_b16 v[{B2 + 2}:{B2 + 3}], v2 offset:{L_W2 + 4 * 384}")
        e(f"ds_read_b64_tr_b16 v[{B2 + 4}:{B2 + 5}], v22 offset:{L_W2 + 32 * 384}")
        e(f"ds_read_b64_tr_b16 v[{B2 + 6}:{B2 + 7}], v22 offset:{L_W2 + 36 * 384}")
        e("v_and_b32 v2, 1, v1")
        e("v_mul_u32_u24 v22, 96, v2")
        e(f"v_lshl_add_u32 v{V_H0}, v20, 4, v22")
        e("v_and_b32 v3, 1, v20")
        e(f"v_lshl_add_u32 v{V_H1}, v3, 4, v22")
        e(f"s_lshl_b32 s{S_T0}, s{S_WAVE}, 6")
        e(f"v_lshl_add_u32 v{V_SW}, v1, 2, s{S_T0}")
        if o.mul == "dot":
            e("v_mov_b32 v3, 0")
            e("s_mov_b64 exec, 0xffff")
            e(f"ds_write_b32 v{V_SW}, v3 offset:{L_S}")
            e("s_mov_b64 exec, -1")
            e(f"v_lshl_add_u32 v{V_SW}, v2, 1, v{V_SW}")
        e("v_and_b32 v3, 7, v1")
        e(f"s_lshl_b32 s{S_T0}, s{S_TY}, 8")
        e(f"v_lshl_add_u32 v{V_SR}, v3, 5, s{S_T0}")
        e("s_waitcnt lgkmcnt(0)")
        e("s_mov_b32 exec_lo, 0")
        for i in range(4):
            e(f"v_mov_b32 v{B2 + 4 + i}, 0")
        e("s_mov_b64 exec, -1")
        e(f"s_cmp_ge_u32 s{S_WAVE}, 3")
        e("s_cbranch_scc1 L_noa1")
        e("v_mov_b32 v3, 96")
        e("v_mad_u32_u24 v2, v21, v3, v23")
        for s in range(6):
            for h in range(2):
                r = A1 + 4 * s + 2 * h
                e(f"ds_read_b64_tr_b16 v[{r}:{r + 1}], v2 offset:{L_W1 + s * 3072 + h * 384}")
        e("L_noa1:")
        e(f"v_lshl_add_u32 v3, v20, 3, v22")
        e(f"v_add_u32 v3, s{S_T2}, v3")
        e("v_lshlrev_b32 v2, 2, v22")
        e("v_lshl_add_u32 v2, v20, 4, v2")
        e("v_and_b32 v8, 1, v1")
        e("v_lshlrev_b32 v8, 4, v8")
        e("v_lshl_add_u32 v8, v20, 2, v8")
        e("v_and_b32 v9, 2, v1")
        e("v_bfe_u32 v10, v1, 2, 1")
        e("v_add3_u32 v8, v8, v9, v10")
        e(f"v_add_lshl_u32 v23, v8, s{S_T2}, 1")
        e("v_lshrrev_b32 v8, 2, v1")
        e("v_lshlrev_b32 v8, 7, v8")
        e("v_and_b32 v9, 3, v1")
        e(f"v_lshl_add_u32 v{V_Q}, v9, 4, v8")
        e(f"s_and_b32 s{S_T0}, s{S_QC}, 4")
        if o.qcopy > 2:
            e(f"s_and_b32 s{S_CNT}, s{S_QC}, {o.qcopy // 2 - 1}")
            e(f"s_mul_i32 s{S_CNT}, s{S_CNT}, 24")
            e(f"s_add_u32 s{S_T0}, s{S_T0}, s{S_CNT}")
        e(f"s_lshr_b32 s{S_T1}, s{S_WAVE}, 2")
        e(f"s_lshl2_add_u32 s{S_T1}, s{S_T1}, s{S_WAVE}")
        e(f"s_add_u32 s{S_T1}, s{S_T1}, s{S_T0}")
        e(f"s_lshl_b32 s{S_T1}, s{S_T1}, 11")
        e(f"s_add_u32 s{S_T1}, s{S_T1}, {WS_Q}")
        if o.clean in ("q", "p"):
            e(f"v_mov_b32 v19, s{S_TG[0]}")
            e(f"s_lshl_b32 s{S_V}, s{S_WAVE}, 7")
            e(f"s_add_u32 s{S_V}, s{S_V}, s{S_PO}")
        e(f"s_mov_b32 s{S_CNT}, {SPIN}")
        e(f"s_cmp_ge_u32 s{S_WAVE}, 6")
        e("s_cbranch_scc1 L_qpoll1")

        for kind in (0, 1):
            op = "v_add_f32" if kind == 0 else "v_max_f32"
            e(f"L_qpoll{kind}:")
            hook(f"L_qnohook{kind}")
            e(f"buffer_load_dwordx4 v[4:7], v{V_Q}, s[{S_WS}:{S_WS + 3}], s{S_T1} offen sc1")
            e(f"s_sub_u32 s{S_CNT}, s{S_CNT}, 1")
            e(f"s_cbranch_scc1 L_qgot{kind}")
            if o.qsleep:
                e(f"s_sleep {o.qsleep}")
            e("s_waitcnt vmcnt(0)")
            e(f"v_xor_b32 v21, s{S_TG[0]}, v4")
            e(f"v_xor_b32 v22, s{S_TG[1]}, v5")
            e(f"v_bitop3_b32 v21, v21, v6, s{S_TG[2]} bitop3:0xf6")
            e(f"v_bitop3_b32 v22, v22, v7, s{S_TG[3]} bitop3:0xf6")
            e("v_bitop3_b32 v21, v21, v22, 15 bitop3:0xa8")
            e("v_cmp_ne_u32 vcc, 0, v21")
            e("s_wqm_b64 exec, vcc")
            e(f"s_cbranch_scc1 L_qpoll{kind}")
            e(f"L_qgot{kind}:")
            if o.clean == "p":
                e("s_mov_b64 exec, 1")
                e(f"buffer_store_dword v19, off, s[{S_WS}:{S_WS + 3}], s{S_V} sc1")
            e("s_mov_b64 exec, -1")
            e(f"s_waitcnt vmcnt({1 if o.clean == 'p' else 0})")
            self.stamp(5)
            e("v_permlane32_swap_b32 v4, v6")
            e("v_permlane32_swap_b32 v5, v7")
            e(f"{op} v4, v4, v6")
            e(f"{op} v5, v5, v7")
            e("s_nop 1")
            e("v_permlane16_swap_b32 v4, v5")
            e(f"{op} v4, v4, v5")
            e(f"s_cmp_ge_u32 s{S_WAVE}, 3")
            e("s_nop 0")
            e(f"{op}_dpp v4, v4, v4 row_ror:8 row_mask:0xf bank_mask:0xf")
            if kind == 0:
                e("v_mul_f32 v4, 0x36800000, v4              ; 1/262144")
            e("v_cvt_pk_bf16_f32 v4, v4, v4")
            e(f"ds_write_b16 v23, v4 offset:{L_F}")
            if o.clean == "q":
                e("s_mov_b64 exec, 1")
                e(f"buffer_store_dword v19, off, s[{S_WS}:{S_WS + 3}], s{S_V} sc1")
                e("s_mov_b64 exec, -1")
            e("s_waitcnt lgkmcnt(0)")
            e("s_barrier")
            if kind == 0:
                e("s_cbranch_scc0 L_mlp1")
                if o.clean == "f":
                    clean("L_join", 16, 12)
            e("s_branch L_join")

        e("L_mlp1:")
        for s in range(6):
            e(f"ds_read_b128 v[{B1[s]}:{B1[s] + 3}], v2 offset:{L_F + 64 * s}")
        for s in range(6):
            c = "0" if s == 0 else "v[20:23]"
            b = B1[s]
            e(f"s_waitcnt lgkmcnt({5 - s})")
            e(f"v_mfma_f32_16x16x32_bf16 v[20:23], v[{A1 + 4 * s}:{A1 + 4 * s + 3}], v[{b}:{b + 3}], {c}")
        e("s_nop 3")
        e("s_mov_b32 exec_lo, 0x00030003")
        e("s_mov_b32 exec_hi, 0x00030003")
        e("s_nop 1")
        for i in range(4):
            e(f"v_maximum3_f32 v{20 + i}, v{20 + i}, 0, 0")
        e("v_cvt_pk_bf16_f32 v20, v20, v21")
        e("v_cvt_pk_bf16_f32 v21, v22, v23")
        e(f"ds_write_b64 v3, v[20:21] offset:{L_H}")
        e("s_mov_b64 exec, -1")
        e("s_waitcnt lgkmcnt(0)")

        e("L_join:")
        e("s_barrier")
        self.stamp(6)
        e(f"ds_read_b128 v[4:7], v{V_H0} offset:{L_H}")
        e(f"ds_read_b128 v[8:11], v{V_H1} offset:{L_H + 64}")
        e("s_waitcnt lgkmcnt(1)")
        e(f"v_mfma_f32_16x16x32_bf16 v[12:15], v[4:7], v[{B2}:{B2 + 3}], 0")
        e("s_waitcnt lgkmcnt(0)")
        e(f"v_mfma_f32_16x16x32_bf16 v[12:15], v[8:11], v[{B2 + 4}:{B2 + 7}], v[12:15]")
        e("s_mov_b64 exec, 0xffff")
        e("s_nop 6")
        e("v_cvt_pk_bf16_f32 v12, 0, v12")
        e("v_cvt_pk_bf16_f32 v13, 0, v13")
        e("v_add_f32 v12, v12, v13")
        e("v_cvt_pk_bf16_f32 v12, 0, v12")
        e("v_mul_f32 v12, 0xbfb8aa3b, v12            ; -log2(e)")
        e("v_exp_f32 v12, v12")
        e("s_nop 0")
        e("v_add_f32 v12, 1.0, v12")
        e("v_rcp_f32 v12, v12")
        e("s_nop 0")
        if o.mul == "dot":
            e("v_cvt_pk_bf16_f32 v12, v12, v12")
            e(f"ds_write_b16 v{V_SW}, v12 offset:{L_S}")
        else:
            e("v_cvt_pk_bf16_f32 v12, 0, v12")
            e(f"ds_write_b32 v{V_SW}, v12 offset:{L_S}")
        e("s_mov_b64 exec, -1")
        e("s_waitcnt lgkmcnt(0)")
        e("s_barrier")
        e(f"ds_read_b128 v[4:7], v{V_SR} offset:{L_S}")
        e(f"ds_read_b128 v[8:11], v{V_SR} offset:{L_S + 16}")

        if o.stlim:
            e(f"s_cmp_lt_u32 s2, {o.stlim}")
            e(f"s_cselect_b32 s{S_OUT + 2}, s{S_OUT + 2}, 0")
        zorder = [int(v) for v in o.zorder.split(",")]
        assert sorted(zorder) == list(range(16))
        restored = False
        late = []

        def wbl2():
            wv, lim, pos = [int(v) for v in o.wb.split(",")]
            e(f"s_cmp_lt_u32 s{S_WAVE}, {wv}")
            e("s_cbranch_scc1 L_nowb")
            e(f"s_cmp_ge_u32 s2, {lim}")
            e("s_cbranch_scc1 L_nowb")
            if pos == 33:
                e("s_waitcnt vmcnt(0)")
            e("buffer_wbl2 sc1")
            e("L_nowb:")
        for n, j in enumerate([2 * z + u for z in zorder for u in (0, 1)]):
            a = D0 + 4 * j
            t0 = 12 + 8 * (n & 1)
            if a >= SP0 and not restored:
                assert n > 1
                e("s_waitcnt lgkmcnt(0)")
                restored = True
            md = o.mul
            for i in range(4 if md in ("pk", "mul", "u", "um") else 0):
                t = t0 + 2 * i
                e(f"v_lshlrev_b32 v{t}, 16, v{a + i}")
                e(f"v_and_b32 v{t + 1}, s{S_MASK}, v{a + i}")
            if n == 0:
                e("s_waitcnt lgkmcnt(0)")
                self.stamp(7)
            for i in range(4):
                t = t0 + 2 * i
                if md in ("pk", "um"):
                    e(f"v_pk_mul_f32 v[{t}:{t + 1}], v[{t}:{t + 1}], v[{4 + 2 * i}:{5 + 2 * i}]")
                if md == "mul":
                    e(f"v_mul_f32 v{t}, v{t}, v{4 + 2 * i}")
                    e(f"v_mul_f32 v{t + 1}, v{t + 1}, v{5 + 2 * i}")
                if md == "dot":
                    e(f"v_dot2_f32_bf16 v{t}, v{a + i}, v{4 + 2 * i}, 0")
                    e(f"v_dot2_f32_bf16 v{t + 1}, v{a + i}, v{5 + 2 * i}, 0")
            for i in range(4):
                t = t0 + 2 * i
                if md in ("pk", "mul", "dot"):
                    e(f"v_cvt_pk_bf16_f32 v{a + i}, v{t}, v{t + 1}")
                if md == "c":
                    e(f"v_cvt_pk_bf16_f32 v{a + i}, v{a + i}, v{a + (i ^ 1)}")
            def st(j=j, a=a, n=n):
                self.mem(j, lambda va, so: e(f"buffer_store_dwordx4 v[{a}:{a + 3}], {va}, s[{S_OUT}:{S_OUT + 3}], {so} offen{'' if n >= 32 - o.nplain else stf}"))
            if n < o.burst:
                st()
            else:
                late.append(st)
            if n == 31:
                for f in late:
                    f()
            if n + 1 in o.sbar:
                e("s_barrier")
            if o.sthr and n >= o.sthr:
                e(f"s_waitcnt vmcnt({o.sthr - 1})")
            if o.wb and int(o.wb.split(",")[2]) == n:
                wbl2()
            if n & 1:
                self.trace("st", n >> 1)
            if n == 1:
                e(f"s_cmp_ge_u32 s{S_WAVE}, 3")
                e("s_cbranch_scc1 L_norestore")
                for k in range(8):
                    e(f"ds_read_b128 v[{SP0 + 4 * k}:{SP0 + 4 * k + 3}], v{V_AT} offset:{L_SPILL + 1024 * k}")
                e("L_norestore:")
                if o.clean == "st":
                    clean("L_noclean", 28, 32)
                    e("L_noclean:")
        if o.clean == "e":
            clean("L_noclean", 28, 32)
            e("L_noclean:")
        if o.wb and int(o.wb.split(",")[2]) >= 32:
            wbl2()
        if o.stamps:
            self.stamp(8)
            e("s_waitcnt vmcnt(0)")
            self.stamp(10)
            if o.idleclk:
                e(f"s_cmp_lg_u32 s{S_WAVE}, 11")
                e("s_cbranch_scc1 L_noidle")
                for lbl, dur, m, r in (("a", o.idleclk, 1, 3), ("b", 2000, 2, 6)):
                    e("s_memrealtime s[96:97]")
                    e("s_waitcnt lgkmcnt(0)")
                    e(f"L_idle{lbl}:")
                    e("s_sleep 4")
                    e("s_memrealtime s[98:99]")
                    e("s_waitcnt lgkmcnt(0)")
                    e("s_sub_u32 s98, s98, s96")
                    e(f"s_cmp_lt_u32 s98, {dur}")
                    e(f"s_cbranch_scc1 L_idle{lbl}")
                    e(f"s_memtime s[{S_STAMP + 2 * m}:{S_STAMP + 2 * m + 1}]")
                    e(f"s_memrealtime s[{S_STAMP + 2 * r}:{S_STAMP + 2 * r + 1}]")
                e("L_noidle:")
            e("s_getreg_b32 s94, hwreg(HW_REG_XCC_ID)")
            e("s_getreg_b32 s95, hwreg(HW_REG_HW_ID)")
            e("s_waitcnt lgkmcnt(0)")
            e("v_mov_b32 v2, 0")
            for i in range(11 if o.trace else 14):
                e(f"v_writelane_b32 v2, s{S_STAMP + 2 * i}, {i}")
            e("v_writelane_b32 v2, s94, 14")
            e("v_writelane_b32 v2, s95, 15")
            e(f"s_mul_i32 s{S_T0}, s2, 12")
            e(f"s_add_u32 s{S_T0}, s{S_T0}, s{S_WAVE}")
            e(f"s_lshl_b32 s{S_T0}, s{S_T0}, 6")
            e(f"s_add_u32 s{S_T0}, s{S_T0}, {WS_STAMP}")
            e("v_mbcnt_lo_u32_b32 v3, -1, 0")
            e("v_lshlrev_b32 v3, 2, v3")
            e("s_mov_b64 exec, 0xffff")
            e(f"buffer_store_dword v2, v3, s[{S_WS}:{S_WS + 3}], s{S_T0} offen sc1")
            if o.trace:
                e("s_mov_b32 s91, s92")
                for i in range(16):
                    e(f"v_writelane_b32 v2, s{76 + i}, {i}")
                e(f"s_add_u32 s{S_T0}, s{S_T0}, {1 << 19}")
                e(f"buffer_store_dword v2, v3, s[{S_WS}:{S_WS + 3}], s{S_T0} offen sc1")
        if o.dbgptr:
            e("s_cmp_lg_u32 s2, 0")
            e("s_cbranch_scc1 L_nodp")
            e("s_mov_b64 exec, -1")
            e("v_mov_b32 v2, 0")
            for i, r in enumerate((4, 5, 8, 9, 12, 13, 16, 17, 0, 1)):
                e(f"v_writelane_b32 v2, s{r}, {i}")
            e("v_mbcnt_lo_u32_b32 v3, -1, 0")
            e("v_lshlrev_b32 v3, 2, v3")
            e("s_mov_b64 exec, 0x3ff")
            e(f"buffer_store_dword v2, v3, s[{S_DBG}:{S_DBG + 3}], 0 offen offset:8")
            e("L_nodp:")
        if o.probe:
            idx, K = [int(v) for v in o.probe.split(",")]
            if idx == -5:
                e("s_cmp_ge_u32 s2, 8")
                e("s_cbranch_scc1 L_end")
            elif idx == -2:
                e("s_getreg_b32 s94, hwreg(HW_REG_XCC_ID)")
                e("s_xor_b32 s94, s94, s2")
                e("s_and_b32 s94, s94, 7")
                e("s_cbranch_scc0 L_end")
            elif idx == -3:
                e("s_cmp_lg_u32 s2, 0")
                e("s_cbranch_scc1 L_end")
            else:
                e(f"s_cmp_lg_u32 s2, {o.pwg}")
                e("s_cbranch_scc1 L_end")
            e(f"s_cmp_lg_u32 s{S_WAVE}, {o.pwave}")
            e("s_cbranch_scc1 L_end")
            if idx == -5:
                e("s_mov_b32 s96, 0")
                e("L_sk:")
                e("s_sleep 100")
                e("s_add_u32 s96, s96, 1")
                e("s_cmp_lt_u32 s96, 4")
                e("s_cbranch_scc1 L_sk")
                e(f"s_mov_b32 s94, {WS_STAMP}")
                e(f"buffer_load_dword v4, off, s[{S_WS}:{S_WS + 3}], s94 sc1")
                e("s_waitcnt vmcnt(0)")
                e("v_readfirstlane_b32 s94, v4")
                e(f"s_sub_u32 s95, s{S_STAMP}, s94")
                e(f"s_mul_i32 s95, s95, {K - 1}")
                e("s_add_u32 s96, s95, 8000")
            elif idx == -4:
                c0, c1, r0, r1 = ((11, 12, 0, 7), (12, 13, 7, 10))[K]
                e(f"s_sub_u32 s94, s{S_STAMP + 2 * c1}, s{S_STAMP + 2 * c0}")
                e(f"s_sub_u32 s95, s{S_STAMP + 2 * r1}, s{S_STAMP + 2 * r0}")
                e("v_cvt_f32_u32 v4, s94")
                e("v_cvt_f32_u32 v5, s95")
                e("v_rcp_f32 v5, v5")
                e("s_nop 1")
                e("v_mul_f32 v4, v4, v5")
                e("v_mul_f32 v4, 0x44fa0000, v4")
                e("v_cvt_u32_f32 v4, v4")
                e("s_nop 1")
                e("v_readfirstlane_b32 s96, v4")
                e("s_sub_u32 s96, s96, 31000")
            elif idx <= -10:
                e(f"s_bfe_u32 s94, s{-idx - 10}, {(7 << 16)} + {K}")
                e("s_mul_i32 s96, s94, 200")
                e("s_add_u32 s96, s96, 5000")
            elif idx == -3:
                e("s_getreg_b32 s94, hwreg(HW_REG_XCC_ID)")
                e("s_and_b32 s94, s94, 7")
                e(f"s_mul_i32 s96, s94, {K}")
                e("s_add_u32 s96, s96, 5000")
            elif idx < 0:
                e(f"s_mov_b32 s96, {K}")
            else:
                e(f"s_sub_u32 s96, s{S_STAMP + 2 * idx}, s{S_STAMP + 2 * o.pref}")
                e(f"s_mul_i32 s96, s96, {K}")
                if o.pref:
                    e("s_add_u32 s96, s96, 5000")
            e("s_min_u32 s96, s96, 200000")
            e("L_probe:")
            e("s_memrealtime s[98:99]")
            e("s_waitcnt lgkmcnt(0)")
            e(f"s_sub_u32 s98, s98, s{S_STAMP}")
            e("s_cmp_lt_u32 s98, s96")
            e("s_cbranch_scc1 L_probe")
        e("L_end:")
        e("s_endpgm")

        if o.rpf:
            e(".p2align 7")
        e("L_role:")
        e("s_load_dwordx4 s[44:47], s[0:1], 32")
        if o.rpf:
            e("s_getpc_b64 s[20:21]")
            for k in range(1, 1 + o.rpf):
                e(f"s_load_dword s22, s[20:21], {128 * k}")
        e(f"s_cmp_eq_u32 s2, {NVOTE_WG}")
        e("s_cbranch_scc1 L_tag")
        e(f"s_bfe_u32 s{S_V + 1}, s2, 0x20003")
        e(f"s_sub_u32 s{S_T1}, s{S_OUT}, s{S_X}")
        e(f"s_add_u32 s{S_T1}, s{S_T1}, 2048")
        e(f"s_bitcmp1_b32 s{S_T1}, 12")
        e(f"s_cselect_b32 s{S_V}, {o.quorum}, {o.quorum4}")
        e(f"s_cselect_b32 s{S_V + 2}, s{S_V + 1}, 1")
        e(f"s_and_b32 s{S_T1}, s2, 1")
        e(f"s_lshl1_add_u32 s{S_T1}, s{S_T1}, 1")
        e(f"s_cmp_eq_u32 s{S_V + 2}, 2")
        e(f"s_cselect_b32 s{S_V + 1}, s{S_T1}, s{S_V + 1}")
        e(f"s_bitcmp1_b32 s{S_V + 1}, 0")
        e(f"s_cselect_b64 s[{S_W}:{S_W + 1}], s[8:9], s[4:5]")
        e(f"s_lshr_b32 s{S_T1}, s{S_V + 1}, 1")
        e(f"s_lshl3_add_u32 s{S_T1}, s{S_T1}, 8")
        e(f"s_and_b32 s{S_T2}, s2, 7")
        e(f"s_add_u32 s{S_T1}, s{S_T1}, s{S_T2}")
        e(f"s_lshl_b32 s{S_T1}, s{S_T1}, 22")
        e(f"s_add_u32 s{S_T0}, s{S_T0}, s{S_T1}")
        e(f"s_cmp_lg_u32 s{S_V + 2}, 0")
        e(f"s_cselect_b32 s{S_V + 3}, s{S_OUT}, 0")
        e("s_cbranch_scc1 L_notws")
        e("s_waitcnt lgkmcnt(0)")
        e(f"s_mov_b64 s[{S_W}:{S_W + 1}], s[46:47]")
        e(f"s_mov_b32 s{S_T0}, {WS_PROBE}")
        e("L_notws:")
        e(f"s_lshl_b32 s{S_T1}, s2, 4")
        e(f"s_and_b32 s{S_T1}, s{S_T1}, 256")
        e(f"s_add_u32 s{S_T0}, s{S_T0}, s{S_T1}")
        e(f"s_and_b32 s{S_T1}, s2, 15")
        e(f"s_mulk_i32 s{S_T1}, {16384 + 512}")
        e(f"s_add_u32 s{S_T0}, s{S_T0}, s{S_T1}")
        e(f"s_add_u32 s{S_T1}, s{S_T0}, 8192")
        self.stamp(1, True)
        e(f"s_load_dword s42, s[{S_W}:{S_W + 1}], s{S_T0} glc")
        e(f"s_load_dword s43, s[{S_W}:{S_W + 1}], s{S_T1} glc")
        e(f"s_mov_b32 s{S_CNT}, {-(NRACE // 2)}")
        if o.dpf:
            e(f"s_waitcnt lgkmcnt({2 + o.rpf})")
            e(f"s_load_dword s23, s[44:45], 192 glc")
        for k in range(NRACE):
            e("s_waitcnt lgkmcnt(0)")
            if k < 2:
                self.stamp(2 + k, True)
                if o.vdiag:
                    e("s_waitcnt lgkmcnt(0)")
            first, second = (S_T0, S_T1) if k % 2 == 0 else (S_T1, S_T0)
            e(f"s_load_dword s42, s[{S_W}:{S_W + 1}], s{first} glc")
            e(f"s_load_dword s43, s[{S_W}:{S_W + 1}], s{second} glc")
            e("s_waitcnt lgkmcnt(1)")
            e("s_nop 7")
            e(f"s_getreg_b32 s{S_T2}, hwreg(HW_REG_IB_STS, 8, 4)   ; 1: the second answer is still out")
            if k % 2 == 0:
                e(f"s_xor_b32 s{S_T2}, s{S_T2}, 1")
            e(f"s_add_u32 s{S_CNT}, s{S_CNT}, s{S_T2}")
        assert NRACE % 2 == 0 and max(o.quorum, o.quorum4) * NRACE // 2 < 32 and max(o.quorum, o.quorum4) <= NVOTE_WG
        e(f"s_sub_u32 s{S_T2}, 0, s{S_CNT}")
        e(f"s_add_u32 s{S_T0}, s{S_T0}, s{S_V + 3}")
        e(f"s_lshr_b32 s{S_T0}, s{S_T0}, 19")
        e(f"s_xor_b32 s{S_T0}, s{S_T0}, s2")
        e(f"s_bitcmp1_b32 s{S_T0}, 2")
        e(f"s_cselect_b32 s{S_CNT}, s{S_T2}, s{S_CNT}")
        e(f"s_mul_i32 s{S_T0}, s{S_V + 1}, 6")
        e(f"s_add_u32 s{S_T0}, s{S_T0}, 7")
        e(f"s_lshl_b32 s{S_CNT}, s{S_CNT}, s{S_T0}")
        e(f"s_or_b32 s{S_CNT}, s{S_CNT}, 1")
        e(f"s_mov_b32 s{S_T1}, s{S_CNT}")
        self.stamp(6, True)
        e(f"s_atomic_add s{S_T1}, s[44:45], {DBG_TAL} glc")
        e(f"s_add_u32 s{S_CNT}, s{S_CNT}, {sum(31 << (7 + 6 * t) for t in range(4))}")
        e("s_waitcnt lgkmcnt(0)")
        e(f"s_add_u32 s{S_T1}, s{S_T1}, s{S_CNT}")
        self.stamp(13)
        e(f"s_and_b32 s{S_T0}, s{S_T1}, 0x7f")
        e(f"s_cmp_lg_u32 s{S_T0}, s{S_V}")
        e("s_cbranch_scc1 L_stream")
        e(f"s_and_b32 s{S_T1}, s{S_T1}, {sum(32 << (7 + 6 * t) for t in range(4))}")
        e(f"s_bitset1_b32 s{S_T1}, 9")
        e("L_publish:")
        e(f"s_atomic_add s{S_T1}, s[44:45], {DBG_RES}")
        e("s_waitcnt lgkmcnt(0)")
        e("s_branch L_stream")

        e("L_tag:")
        e(f"s_mov_b32 s{S_T1}, 1")
        e("s_waitcnt lgkmcnt(0)")
        e(f"s_atomic_add s{S_T1}, s[46:47], {WS_E} glc")
        e("s_waitcnt lgkmcnt(0)")
        e(f"s_add_u32 s{S_T1}, s{S_T1}, 1")
        e(f"s_and_b32 s{S_T1}, s{S_T1}, 0xff")
        e(f"s_bitset1_b32 s{S_T1}, 8")
        self.stamp(13)
        e("s_branch L_publish")

        e("L_flush:")
        e(f"s_mov_b32 s{S_HOOK}, {SPIN}")
        e("s_mov_b32 exec_lo, -1")
        e("s_mov_b32 exec_hi, 0xffff")
        e("v_lshlrev_b32 v17, 4, v1")
        e("L_floop:")
        e(f"buffer_load_dwordx4 v[8:11], v17, s[{S_WS}:{S_WS + 3}], s{S_PO} offen sc1")
        e(f"buffer_load_dwordx4 v[12:15], v17, s[{S_WS}:{S_WS + 3}], s{S_PO} offen offset:768 sc1")
        e(f"s_sub_u32 s{S_HOOK}, s{S_HOOK}, 1")
        e("s_waitcnt vmcnt(0)")
        e(f"v_xor_b32 v16, s{S_TG[0]}, v8")
        for r in range(9, 16):
            e(f"v_bitop3_b32 v16, v16, v{r}, s{S_TG[r & 3]} bitop3:0xf6")
        e("v_and_b32 v16, 15, v16")
        e("v_cmp_ne_u32 vcc, 0, v16")
        e("s_cbranch_scc1 L_fdone")
        e("s_cbranch_vccnz L_floop")
        e("L_fdone:")
        e(f"buffer_store_dwordx4 v[8:11], v17, s[{S_WS}:{S_WS + 3}], s{S_PO} offen sc1")
        e(f"buffer_store_dwordx4 v[12:15], v17, s[{S_WS}:{S_WS + 3}], s{S_PO} offen offset:768 sc1")
        e("s_waitcnt vmcnt(0)")
        e("s_mov_b64 exec, -1")
        e(f"s_mov_b32 s{S_HOOK}, -1")
        e(f"s_setpc_b64 s[{S_RET}:{S_RET + 1}]")

        e("L_dpoll:")
        e(f"s_mov_b32 s{S_CNT}, {SPIN}")
        e(f"v_mov_b32 v{V_AT}, 0")
        e("s_mov_b64 exec, 1")
        e("L_dloop:")
        e(f"buffer_load_dword v{V_AT}, off, s[{S_DBG}:{S_DBG + 3}], 0 offset:{DBG_RES} sc1")
        e(f"s_sleep {o.dsleep}")
        e("s_waitcnt vmcnt(24)")
        e(f"v_readfirstlane_b32 s{S_T2}, v{V_AT}          ; whatever poll has landed last")
        e(f"s_sub_u32 s{S_CNT}, s{S_CNT}, 1")
        e("s_cbranch_scc1 L_dgot")
        e(f"s_andn2_b32 s{S_OFF}, {RES_OK}, s{S_T2}")
        e("s_cbranch_scc1 L_dloop")
        e("L_dgot:")
        e("s_mov_b64 exec, -1")
        e("s_branch L_decided")

        e("L_codeend:")
        e("s_endpgm")

    def text(self):
        out = HEADER
        out += f"; @launch grid=({NWG},1,1) block=(768,1,1) lds={L_TOTAL}\n"
        out += '.amdgcn_target "amdgcn-amd-amdhsa--gfx950"\n.text\n'
        out += f".globl {KNAME}\n.p2align 8\n.type {KNAME},@function\n{KNAME}:\n"
        out += "\n".join(self.lines) + "\n"
        out += f""".section .rodata,"a"
.p2align 6
.amdhsa_kernel {KNAME}
  .amdhsa_next_free_vgpr 168
  .amdhsa_next_free_sgpr {100 if self.o.stamps else 56}
  .amdhsa_accum_offset 168
  .amdhsa_group_segment_fixed_size 0
  .amdhsa_kernarg_size 48
  .amdhsa_user_sgpr_count 2
  .amdhsa_user_sgpr_kernarg_segment_ptr 1
  .amdhsa_system_sgpr_workgroup_id_x 1
  .amdhsa_float_denorm_mode_32 3
.end_amdhsa_kernel
"""
        return out


def main():
    p = argparse.ArgumentParser()
    p.add_argument("-o", default="standalone__channel_attn_cbam__vision.s")
    p.add_argument("--ldflags", default="nt")
    p.add_argument("--stflags", default="sc1")
    p.add_argument("--p1flags", default="sc1")
    p.add_argument("--stamps", action="store_true")
    p.add_argument("--probe", default="")
    p.add_argument("--depth", type=int, default=10)
    p.add_argument("--nrace", type=int, default=2)
    p.add_argument("--dsleep", type=int, default=8)
    p.add_argument("--trace", default="")
    p.add_argument("--nodec", action="store_true")
    p.add_argument("--vdiag", action="store_true")
    p.add_argument("--dbgptr", action="store_true")
    p.add_argument("--opp", default="5,9", type=lambda v: [int(x) for x in v.split(",")])
    p.add_argument("--quorum", type=int, default=16)
    p.add_argument("--quorum4", type=int, default=24)
    p.add_argument("--nvote", type=int, default=32)
    p.add_argument("--nagn", type=int, default=6)
    p.add_argument("--stlim", type=int, default=0)
    p.add_argument("--psc1", action="store_true")
    p.add_argument("--pnt", action="store_true")
    p.add_argument("--rpf", type=int, default=0)
    p.add_argument("--dpf", type=int, default=0)
    p.add_argument("--pwg", type=int, default=0)
    p.add_argument("--pwave", type=int, default=0)
    p.add_argument("--pref", type=int, default=0)
    p.add_argument("--qshift", type=int, default=32)
    p.add_argument("--rolepos", type=int, default=8)
    p.add_argument("--prebar", type=int, default=1)
    p.add_argument("--qmap", type=int, default=0)
    p.add_argument("--agnu", type=int, default=4)
    p.add_argument("--warmst", type=int, default=0)
    p.add_argument("--cw", type=int, default=0)
    p.add_argument("--cld", action="store_true")
    p.add_argument("--qflip", type=int, default=0)
    p.add_argument("--qcopy", type=int, default=4)
    p.add_argument("--mul", default="dot")
    p.add_argument("--burst", type=int, default=32)
    p.add_argument("--idleclk", type=int, default=0)
    p.add_argument("--clk", action="store_true")
    p.add_argument("--sthr", type=int, default=0)
    p.add_argument("--sbar", default=[24], type=lambda v: [int(x) for x in v.split(",")])
    p.add_argument("--piece", type=int, default=128)
    p.add_argument("--xbar", default=[24], type=lambda v: [int(x) for x in v.split(",")])
    p.add_argument("--cpf", type=int, default=0)
    p.add_argument("--cpfpos", type=int, default=0)
    p.add_argument("--wpace", type=int, default=40)
    p.add_argument("--clean", default="q")
    p.add_argument("--warm", type=int, default=30)
    p.add_argument("--warmwave", type=int, default=4)
    p.add_argument("--qsleep", type=int, default=0)
    p.add_argument("--red0", type=int, default=8)
    p.add_argument("--redstep", type=int, default=2)
    p.add_argument("--off", default="", help="diagnostics: v = no votes, c = no clears, r = result not read")
    p.add_argument("--spans", default="")
    p.add_argument("--split", action="store_true")
    p.add_argument("--pfback", type=int, default=0)
    p.add_argument("--nplain", type=int, default=0)
    p.add_argument("--wb", default="", help="minwave,wglimit,pos")
    p.add_argument("--thr", type=int, default=2)
    p.add_argument("--thrfrom", type=int, default=12)
    p.add_argument("--thrto", type=int, default=24)
    p.add_argument("--thrmask", default="0x55")
    p.add_argument("--zorder", default="8,0,9,1,10,2,11,3,12,4,13,5,14,6,15,7")
    o = p.parse_args()
    global NAGN, SPANS, NVOTE_WG
    NVOTE_WG = o.nvote
    NAGN = o.nagn
    if NAGN == 6:
        SPANS = [(0, 0), (0, 1), (1, 0), (1, 1), (2, 0), (2, 1),
                 (3, 0), (3, 1), (4, 0), (4, 1), (5, 0), (5, 1), (6, 0), (6, 1), (7, 0), (7, 1)]
        if o.zorder == p.get_default("zorder"):
            o.zorder = "6,0,7,1,8,2,9,3,10,4,11,5,12,13,14,15"
    if o.spans:
        SPANS = [(int(v[0]), int(v[1])) for v in o.spans.split(",")]
        assert sorted(SPANS) == [(a, b) for a in range(8) for b in range(2)]
    g = G(o)
    g.build()
    open(o.o, "w").write(g.text())


if __name__ == "__main__":
    main()
```

```python
import argparse

KNAME = "standalone__channel_attn_cbam__vision_kernel"

HEADER = """; Kernarg layout for this problem (48 bytes, ptrs only, base s[0:1]):
;   offset   0: d_in[0] x  shape=(1, 512, 512, 192) dtype=bfloat16 strides=(100663296, 196608, 384, 2) contiguous=True
;   offset   8: d_in[1] w1  shape=(192, 48) dtype=bfloat16 strides=(96, 2) contiguous=True
;   offset  16: d_in[2] w2  shape=(48, 192) dtype=bfloat16 strides=(384, 2) contiguous=True
;   offset  40: d_ws      402653184 bytes workspace (unspecified values whenever your kernel or launch list starts; a list's later launches find what earlier ones wrote)
"""

X_BYTES = 100663296
NWG = 256
NRED = 12
MiB = 1 << 20

L_RED = 0
L_H = 6144
L_DEC = 6336
L_S = 6400
L_F = 7168
L_W1 = 8192
L_W2 = L_W1 + 18432
L_SPILL = L_W2 + 18432
L_TOTAL = L_SPILL + 3 * 8192

WS_P = 0
WS_Q = 256 * 1536
WS_E = WS_Q + 4 * 49152
WS_USED = WS_E + 128
WS_PROBE = 640 * 1024
WS_STAMP = 1 << 20

S_X, S_OUT, S_WS, S_DBG, S_W = 4, 8, 12, 16, 20
S_WAVE, S_TY, S_SUB, S_OFF, S_MASK, S_CNT, S_T0, S_T1 = 28, 29, 30, 31, 32, 33, 34, 35
S_BASE, S_PM, S_P, S_T2 = 48, 49, 50, 51
S_AGN, S_RID, S_PO = 40, 42, 43
S_TG = [41, 47, 3, 0]
S_RET, S_HOOK, S_QC = 38, 46, 1
S_BASE1 = 45
NFB = 48
S_STAMP = 52
S_V = 24

D0 = 40
SPIN = 400000
V_L, V_G0, V_G1, V_AT = 0, 39, 38, 36

NAGN = 8
SPANS = [(0, 0), (0, 1), (1, 0), (1, 1), (2, 0), (2, 1), (3, 0), (3, 1),
         (6, 0), (4, 0), (6, 1), (4, 1), (7, 0), (5, 0), (7, 1), (5, 1)]
W_ROLE = 0
DBG_RES, DBG_TAL = 0, 128
NVOTE_WG = 32
RES_OK = (1 << 9) | (1 << 8)


def mask(pred):
    return sum(1 << z for z, s in enumerate(SPANS) if pred(z, s))


class G:
    def __init__(self, o):
        self.o = o
        self.lines = []

    def e(self, s=""):
        self.lines.append(("    " + s) if s and not s.endswith(":") else s)

    def stamp(self, idx, vote=False):
        if self.o.clk:
            if idx in (11, 12, 13):
                return
            m = {0: 11, 7: 12, 10: 13}.get(idx)
            if m:
                self.e(f"s_memtime s[{S_STAMP + 2 * m}:{S_STAMP + 2 * m + 1}]")
        if vote == "r":
            vote = False
        if self.o.vdiag and idx in (1, 2, 3, 6) and not vote:
            return
        if vote and not self.o.vdiag:
            return
        if self.o.stamps and not (self.o.trace and idx > 10):
            self.e(f"s_memrealtime s[{S_STAMP + 2 * idx}:{S_STAMP + 2 * idx + 1}]")

    def srd(self, d, lo, nbytes):
        e = self.e
        e(f"s_mov_b64 s[{d}:{d + 1}], s[{lo}:{lo + 1}]")
        e(f"s_mov_b32 s{d + 2}, {nbytes}")
        e(f"s_mov_b32 s{d + 3}, 0x20000")

    def span_off(self, z):
        return SPANS[z][0] * 12 * MiB + SPANS[z][1] * 49152

    def mem(self, j, fn):
        e = self.e
        z, u = j >> 1, j & 1
        if z < NAGN:
            off = (j // self.o.agnu) * self.o.agnu * 3 * MiB + (j % self.o.agnu) * 12288
            if off:
                e(f"s_add_u32 s{S_OFF}, s{S_AGN}, {off}")
                fn(f"v{V_L}", f"s{S_OFF}")
            else:
                fn(f"v{V_L}", f"s{S_AGN}")
            return
        if u == 0:
            e(f"s_bitcmp1_b32 s{S_PM}, {z}")
            e(f"s_cselect_b32 s{S_P}, 24576, 0")
        e(f"s_add_u32 s{S_OFF}, s{(S_BASE, S_BASE1)[SPANS[z][1]]}, {SPANS[z][0] * 12 * MiB + 12288 * u}")
        at = 2 + u
        e(f"v_xad_u32 v{at}, v{(V_G0, V_G1)[u]}, s{S_P}, v{V_L}")
        if SPANS[z] == (7, 1):
            e(f"v_add_u32 v{at}, s{S_OFF}, v{at}")
            e(f"v_subrev_u32 v{5 - at}, s{S_X + 2}, v{at}")
            e(f"v_min_u32 v{at}, v{at}, v{5 - at}             ; past the end: wrap to the rows the shift skipped")
            fn(f"v{at}", "0")
        else:
            fn(f"v{at}", f"s{S_OFF}")

    def trace(self, kind, n):
        if self.o.trace == kind:
            if n > 0:
                self.e("s_waitcnt lgkmcnt(0)")
                self.e(f"s_mov_b32 s{76 + n - 1}, s92")
            self.e("s_memrealtime s[92:93]")

    def build(self):
        o, e = self.o, self.e
        NRACE = o.nrace
        ldf = (" " + o.ldflags) if o.ldflags else ""
        stf = (" " + o.stflags) if o.stflags else ""

        self.stamp(0)
        e("s_load_dwordx2 s[4:5], s[0:1], 0          ; x")
        e("s_load_dwordx2 s[8:9], s[0:1], 24         ; out")
        e("v_readfirstlane_b32 s%d, v0" % S_WAVE)
        e("v_and_b32 v1, 63, v0                      ; lane")
        pl = (o.piece // 16).bit_length() - 1
        e(f"v_bfe_u32 v2, v0, {pl}, {6 - pl}")
        e(f"v_mul_u32_u24 v2, {3 * o.piece}, v2")
        e(f"v_and_b32 v3, {(1 << pl) - 1}, v0")
        e("s_cmpk_ge_u32 s2, %d" % NWG)
        e("s_cbranch_scc1 L_end")
        if o.rolepos < 0:
            e(f"s_lshl2_add_u32 s{S_T1}, s{S_WAVE}, s2")
            e(f"s_cmp_le_u32 s{S_T1}, {NVOTE_WG}              ; wave 0 of the first workgroups has a side job")
            e("s_cbranch_scc1 L_role")
            e("L_stream:")
        e(f"s_lshr_b32 s{S_WAVE}, s{S_WAVE}, 6")
        e(f"s_mul_i32 s{S_SUB}, s{S_WAVE}, 43")
        e(f"s_lshr_b32 s{S_SUB}, s{S_SUB}, 7")
        e(f"s_mul_i32 s{S_T0}, s{S_SUB}, {3072 // o.piece - 3}")
        e(f"s_add_u32 s{S_T0}, s{S_T0}, s{S_WAVE}        ; sub*24 + wave % 3")
        e(f"s_lshl_b32 s{S_T0}, s{S_T0}, {pl + 4}")
        e("v_lshl_add_u32 v0, v3, 4, v2")
        e(f"v_add_u32 v{V_L}, s{S_T0}, v0               ; + sub*3072 + (wave % 3)*128")
        if o.qmap == 0:
            e(f"s_and_b32 s{S_T0}, s2, 3")
            e(f"s_bfe_u32 s{S_T1}, s2, 0x10002")
            e(f"s_lshl1_add_u32 s{S_T0}, s{S_T0}, s{S_T1}")
            e(f"s_and_b32 s{S_T1}, s2, -8")
            e(f"s_add_u32 s{S_T0}, s{S_T0}, s{S_T1}")
        else:
            e(f"s_and_b32 s{S_T0}, s2, 7")
            e(f"s_lshl_b32 s{S_T0}, s{S_T0}, 5")
            e(f"s_lshr_b32 s{S_T1}, s2, 3")
            e(f"s_add_u32 s{S_T0}, s{S_T0}, s{S_T1}")
        e(f"s_mul_i32 s{S_AGN}, s{S_T0}, {o.agnu * 12288}")
        e(f"s_mov_b32 s{S_X + 2}, {X_BYTES}")
        e(f"s_mov_b32 s{S_X + 3}, 0x20000")
        if o.rolepos >= 0:
            e(f"s_lshl_b32 s{S_T1}, s{S_WAVE}, 8")
            e(f"s_or_b32 s{S_T1}, s{S_T1}, s2")
        if o.sdiag:
            self.stamp(6, True)
        e("s_waitcnt lgkmcnt(0)")
        if o.sdiag:
            self.stamp(1, True)
        e(f"s_lshr_b32 s{S_T0}, s{S_OUT}, 7")
        e(f"s_mul_i32 s{S_T0}, s{S_T0}, 21              ; -43 mod 64")
        e(f"s_and_b32 s{S_T0}, s{S_T0}, 63")
        e(f"s_mulk_i32 s{S_T0}, 384")
        e(f"s_add_u32 s{S_AGN}, s{S_AGN}, s{S_T0}")
        assert W_ROLE == 0

        SUM, MAX, T = 4, 12, 20
        DEPTH = o.depth
        seq = []

        def issue(j):
            if j == o.rolepos:
                e(f"s_cmp_le_u32 s{S_T1}, {NVOTE_WG}              ; wave 0 of the first workgroups has a side job")
                e("s_cbranch_scc1 L_role")
                e("L_stream:")
            if o.cpf and j == o.cpfpos:
                e(f"s_sub_u32 s{S_T1}, s{S_T1}, 256")
                e(f"s_cmp_ge_u32 s{S_T1}, {o.cpf}")
                e("s_cbranch_scc1 L_nocpf")
                e("s_getpc_b64 s[20:21]")
                e("v_lshlrev_b32 v2, 7, v1")
                e("v_add_u32 v3, 8192, v2")
                e("v_min_u32 v3, L_codeend - L_nocpf, v3")
                e("global_load_dword v36, v2, s[20:21]")
                e("global_load_dword v37, v3, s[20:21]")
                e("L_nocpf:")
            if j == max(4, o.rolepos):
                e("s_load_dwordx4 s[36:39], s[0:1], 8        ; w1, w2")
                e(f"s_load_dwordx2 s[{S_DBG}:{S_DBG + 1}], s[0:1], 32")
                e(f"s_load_dwordx2 s[{S_WS}:{S_WS + 1}], s[0:1], 40")
                e(f"s_mov_b32 s{S_MASK}, 0xffff0000")
            if j == 2 * NAGN:
                e(f"s_mul_i32 s{S_TY}, s{S_SUB}, 3")
                e(f"s_sub_u32 s{S_TY}, s{S_WAVE}, s{S_TY}        ; ty = wave % 3")
                e(f"s_mov_b32 s{S_OUT + 2}, s{S_X + 2}")
                e(f"s_mov_b32 s{S_OUT + 3}, s{S_X + 3}")
                e(f"s_mov_b32 s{S_WS + 2}, {(2 << 20) if o.stamps else WS_USED}")
                e(f"s_mov_b32 s{S_WS + 3}, s{S_X + 3}")
                e(f"s_movk_i32 s{S_DBG + 2}, 256")
                e(f"s_mov_b32 s{S_DBG + 3}, s{S_X + 3}")
                e(f"s_movk_i32 s{S_T2}, 24576")
                e(f"v_bfe_u32 v{V_G0}, v{V_L}, 13, 1")
                e(f"v_add_u32 v{V_G1}, 12288, v{V_L}")
                e(f"v_bfe_u32 v{V_G1}, v{V_G1}, 13, 1")
                e(f"v_mul_u32_u24 v{V_G0}, s{S_T2}, v{V_G0}")
                e(f"v_mul_u32_u24 v{V_G1}, s{S_T2}, v{V_G1}")
                e(f"s_bfe_i32 s{S_PM}, s2, 0x10002              ; -side")
                e(f"s_lshr_b32 s{S_T0}, s{S_OUT}, 7")
                e(f"s_mul_i32 s{S_T0}, s{S_T0}, 21")
                e(f"s_and_b32 s{S_T0}, s{S_T0}, 63")
                e(f"s_mulk_i32 s{S_T0}, 384")
                e(f"s_and_b32 s{S_T1}, s2, 3")
                e(f"s_lshr_b32 s{S_BASE}, s2, 3")
                if o.qmap == 0:
                    e(f"s_lshl2_add_u32 s{S_BASE}, s{S_BASE}, s{S_T1}")
                else:
                    e(f"s_lshl_b32 s{S_T1}, s{S_T1}, 5")
                    e(f"s_add_u32 s{S_BASE}, s{S_BASE}, s{S_T1}")
                e(f"s_add_u32 s{S_BASE1}, s{S_BASE}, {o.qshift}")
                e(f"s_and_b32 s{S_BASE1}, s{S_BASE1}, 127")
                e(f"s_mul_i32 s{S_BASE}, s{S_BASE}, 98304")
                e(f"s_add_u32 s{S_BASE}, s{S_BASE}, s{S_T0}        ; the pair's first span of a step")
                e(f"s_mul_i32 s{S_BASE1}, s{S_BASE1}, 98304")
                e(f"s_add_u32 s{S_BASE1}, s{S_BASE1}, s{S_T0}")
                e(f"s_add_u32 s{S_BASE1}, s{S_BASE1}, 49152      ; its second span: 3 MiB on, where the memory stacks swap")
                h1 = mask(lambda z, s: s[1] == 1)
                e(f"s_add_u32 s{S_T2}, s{S_T2}, s{S_OUT}")
                e(f"s_add_u32 s{S_T0}, s{S_BASE}, s{S_T2}")
                e(f"s_bfe_i32 s{S_T1}, s{S_T0}, 0x10015")
                e(f"s_xor_b32 s{S_PM}, s{S_PM}, s{S_T1}")
                e(f"s_add_u32 s{S_T2}, s{S_BASE1}, s{S_T2}")
                e(f"s_xor_b32 s{S_T0}, s{S_T0}, s{S_T2}")
                e(f"s_bfe_i32 s{S_T0}, s{S_T0}, 0x10015")
                e(f"s_and_b32 s{S_T0}, s{S_T0}, {h1}")
                e(f"s_xor_b32 s{S_PM}, s{S_PM}, s{S_T0}")
                m1 = mask(lambda z, s: z >= NAGN and s[0] in (3, 4))
                z50 = SPANS.index((5, 0))
                z51 = SPANS.index((5, 1))
                dec = mask(lambda z, s: z >= NAGN)
                e(f"s_cmp_lt_u32 s{S_BASE}, {4 * MiB - 24576}")
                e(f"s_cselect_b32 s{S_T0}, {1 << z50}, 0")
                e(f"s_or_b32 s{S_T0}, s{S_T0}, {m1}")
                e(f"s_cmp_lt_u32 s{S_BASE1}, {4 * MiB - 24576}")
                e(f"s_cselect_b32 s{S_T1}, {1 << z51}, 0")
                e(f"s_or_b32 s{S_T0}, s{S_T0}, s{S_T1}            ; third 1")
                e(f"s_xor_b32 s{S_T1}, s{S_T0}, {dec}           ; third 2")
                per, pat = o.opp
                rep = sum(((pat >> (i % per)) & 1) << i for i in range(32))
                e(f"s_lshr_b32 s{S_P}, s2, 3")
                e(f"s_mul_i32 s{S_T2}, s{S_P}, {-(-256 // per)}")
                e(f"s_lshr_b32 s{S_T2}, s{S_T2}, 8")
                e(f"s_mul_i32 s{S_T2}, s{S_T2}, {per}")
                e(f"s_sub_u32 s{S_P}, s{S_P}, s{S_T2}             ; (b >> 3) % {per}")
                e(f"s_lshr_b32 s{S_P}, {rep}, s{S_P}")
                e(f"s_sub_u32 s{S_T2}, s{S_OUT}, s{S_X}")
                e(f"s_add_u32 s{S_T2}, s{S_T2}, 2048")
                e(f"s_bitcmp1_b32 s{S_T2}, 12")
                e(f"s_cselect_b32 s{S_P}, 0, s{S_P}")
                e(f"s_lshr_b32 s{S_T2}, s2, 3")
                e(f"s_sub_u32 s{S_RID}, s{S_T2}, {o.red0}")
                e(f"s_and_b32 s{S_PO}, s2, 7")
                e(f"s_lshl_b32 s{S_PO}, s{S_PO}, 5")
                e(f"s_add_u32 s{S_PO}, s{S_PO}, s{S_T2}")
                e(f"s_mulk_i32 s{S_PO}, 1536")
                e("s_waitcnt lgkmcnt(0)")
                self.stamp(11)
                e("s_barrier")
                e(f"s_load_dword s{S_T2}, s[{S_DBG}:{S_DBG + 1}], {DBG_RES}")
                e("s_waitcnt lgkmcnt(0)")
                e(f"s_andn2_b32 s{S_CNT}, {RES_OK}, s{S_T2}")
                e("s_cbranch_scc1 L_dpoll")
                e("L_decided:")
                for i in range(4):
                    e(f"s_bitcmp1_b32 s{S_T2}, {7 + 6 * i + 5}")
                    e(f"s_cselect_b32 s{S_V + i}, s{(S_T0, S_T1)[i >> 1]}, 0")
                e(f"s_or_b32 s{S_V}, s{S_V}, s{S_V + 2}")
                e(f"s_or_b32 s{S_V + 1}, s{S_V + 1}, s{S_V + 3}")
                e(f"s_xor_b32 s{S_V}, s{S_V}, s{S_V + 1}")
                e(f"s_and_b32 s{S_V}, s{S_V}, s{S_P}")
                e(f"s_xor_b32 s{S_V}, s{S_V}, s{S_V + 1}")
                e(f"s_xor_b32 s{S_PM}, s{S_PM}, s{S_V}")
                e(f"s_and_b32 s{S_TG[0]}, s{S_T2}, 15")
                e(f"s_bfe_u32 s{S_TG[1]}, s{S_T2}, 0x40004")
                e(f"s_xor_b32 s{S_TG[2]}, s{S_TG[0]}, 15")
                e(f"s_xor_b32 s{S_TG[3]}, s{S_TG[1]}, 15")
                e(f"s_lshr_b32 s{S_QC}, s{S_T2}, 10")
                e(f"s_and_b32 s{S_QC}, s{S_QC}, 4")
                e(f"s_xor_b32 s{S_QC}, s{S_QC}, s2             ; bits 2:0: the second-stage copy near this die")
                self.stamp(12)
            if j in o.xbar:
                e("s_barrier")
                if j == o.xbar[-1]:
                    self.stamp(2, "r")
            if j == o.warm and o.warmst:
                e(f"s_cmp_ge_u32 s{S_WAVE}, 2")
                e("s_cbranch_scc1 L_nowarm")
                for i in range(4):
                    e(f"v_mov_b32 v{20 + i}, 0")
                e(f"s_mul_i32 s{S_T0}, s{S_WAVE}, 768")
                e(f"v_lshl_add_u32 v3, v1, 4, s{S_T0}")
                e("s_mov_b32 exec_hi, 0xffff")
                e(f"buffer_store_dwordx4 v[20:23], v3, s[{S_WS}:{S_WS + 3}], s{S_PO} offen")
                e("s_mov_b64 exec, -1")
                e("L_nowarm:")
            if j == o.warm and not o.warmst:
                e(f"s_cmp_lg_u32 s{S_WAVE}, {o.warmwave}")
                e("s_cbranch_scc1 L_nowarm")
                e("v_lshlrev_b32 v3, 7, v1")
                e("s_mov_b64 exec, 0xfff")
                e(f"buffer_load_dword v37, v3, s[{S_WS}:{S_WS + 3}], s{S_PO} offen")
                e("s_mov_b64 exec, -1")
                e("L_nowarm:")
            r = D0 + 4 * j
            if o.thr and j == 10:
                e(f"s_getreg_b32 s{S_T0}, hwreg(HW_REG_XCC_ID, 0, 3)")
                e(f"s_lshr_b32 s{S_T0}, {o.thrmask}, s{S_T0}")
                e(f"s_and_b32 vcc_lo, s{S_T0}, 1")
                e("s_mov_b32 vcc_hi, 0")
            if o.thr and o.thrfrom <= j < o.thrto:
                e(f"s_cbranch_vccz L_thr{j}")
                e(f"s_waitcnt vmcnt({o.thr - 1})")
                e(f"L_thr{j}:")
            self.mem(j, lambda va, so: e(f"buffer_load_dwordx4 v[{r}:{r + 3}], {va}, s[{S_X}:{S_X + 3}], {so} offen{ldf}"))
            seq.append(j)
            if o.sdiag and j == 0:
                self.stamp(2, True)
            if o.sdiag and j == 2:
                e("s_waitcnt vmcnt(2)")
                self.stamp(3, True)
            if j & 1:
                self.trace("ld", j >> 1)

        def wait_for(j):
            e(f"s_waitcnt vmcnt({len(seq) - 1 - seq.index(j)})")

        nxt = 0
        for jj in range(16):
            while nxt < 32 and nxt < max(2 * jj + DEPTH + 2, 2 * NAGN + 2 if o.prebar else 0):
                issue(nxt)
                nxt += 1
                if nxt == 32:
                    self.stamp(1)
            a, b = D0 + 8 * jj, D0 + 8 * jj + 4
            if jj == 15:
                e("v_and_b32 v2, 7, v1")
                e("v_lshlrev_b32 v2, 5, v2                   ; (l&7)*32")
                e("v_lshrrev_b32 v3, 4, v1")
                e("v_lshl_add_u32 v2, v3, 3, v2              ; + (l>>4)*8")
                e("v_bfe_u32 v3, v1, 3, 1")
                e("v_mul_u32_u24 v3, 768, v3")
                e(f"s_mul_i32 s{S_T0}, s{S_SUB}, 1536")
                e(f"s_lshl_b32 s{S_T1}, s{S_TY}, 8")
                e(f"s_add_u32 s{S_T0}, s{S_T0}, s{S_T1}")
                e(f"v_add3_u32 v2, v2, v3, s{S_T0}")
                e(f"s_mul_i32 s{S_T0}, s{S_WAVE}, 768")
                e(f"v_lshl_add_u32 v3, v1, 4, s{S_T0}")
                for r in (a, b):
                    wait_for((r - D0) // 4)
                    if r == b:
                        self.stamp(3)
                    for i in range(4):
                        t = T + 2 * i
                        e(f"v_lshlrev_b32 v{t}, 16, v{r + i}")
                        e(f"v_and_b32 v{t + 1}, s{S_MASK}, v{r + i}")
                    for i in range(8):
                        e(f"v_max_f32 v{MAX + i}, v{MAX + i}, v{T + i}")
                    for i in range(4):
                        t, s = T + 2 * i, SUM + 2 * i
                        e(f"v_pk_add_f32 v[{s}:{s + 1}], v[{s}:{s + 1}], v[{t}:{t + 1}]")
                continue
            wait_for(2 * jj + 1)
            if jj == 0 and not o.xbar:
                self.stamp(2)
            for i in range(4):
                t = T + 4 * i
                e(f"v_lshlrev_b32 v{t}, 16, v{a + i}")
                e(f"v_and_b32 v{t + 1}, s{S_MASK}, v{a + i}")
                e(f"v_lshlrev_b32 v{t + 2}, 16, v{b + i}")
                e(f"v_and_b32 v{t + 3}, s{S_MASK}, v{b + i}")
            for i in range(4):
                t = T + 4 * i
                s, m = SUM + 2 * i, MAX + 2 * i
                if jj == 0:
                    e(f"v_max_f32 v{m}, v{t}, v{t + 2}")
                    e(f"v_max_f32 v{m + 1}, v{t + 1}, v{t + 3}")
                    e(f"v_pk_add_f32 v[{s}:{s + 1}], v[{t}:{t + 1}], v[{t + 2}:{t + 3}]")
                else:
                    e(f"v_max3_f32 v{m}, v{m}, v{t}, v{t + 2}")
                    e(f"v_max3_f32 v{m + 1}, v{m + 1}, v{t + 1}, v{t + 3}")
                    e(f"v_pk_add_f32 v[{t}:{t + 1}], v[{t}:{t + 1}], v[{t + 2}:{t + 3}]")
            if jj:
                for i in range(4):
                    t = T + 4 * i
                    s = SUM + 2 * i
                    e(f"v_pk_add_f32 v[{s}:{s + 1}], v[{s}:{s + 1}], v[{t}:{t + 1}]")

        for base in (MAX, SUM):
            for i in range(4):
                e(f"v_permlane32_swap_b32 v{base + i}, v{base + 4 + i}")
        for i in range(4):
            e(f"v_max_f32 v{MAX + i}, v{MAX + i}, v{MAX + 4 + i}")
        for i in range(4):
            e(f"v_add_f32 v{SUM + i}, v{SUM + i}, v{SUM + 4 + i}")
        for i in range(2):
            e(f"v_permlane16_swap_b32 v{MAX + i}, v{MAX + 2 + i}")
        for i in range(2):
            e(f"v_permlane16_swap_b32 v{SUM + i}, v{SUM + 2 + i}")
        for i in range(2):
            e(f"v_add_f32 v{SUM + i}, v{SUM + i}, v{SUM + 2 + i}")
        for i in range(2):
            e(f"v_max_f32 v{MAX + i}, v{MAX + i}, v{MAX + 2 + i}")
        e(f"s_cmp_ge_u32 s{S_WAVE}, 2")
        for i in range(2):
            e(f"v_add_f32_dpp v{SUM + i}, v{SUM + i}, v{SUM + i} row_ror:8 row_mask:0xf bank_mask:0x3")
        for i in range(2):
            e(f"v_max_f32_dpp v{SUM + i}, v{MAX + i}, v{MAX + i} row_ror:8 row_mask:0xf bank_mask:0xc")
        e(f"ds_write_b64 v2, v[{SUM}:{SUM + 1}] offset:{L_RED}")
        e("s_waitcnt lgkmcnt(0)")
        e("s_barrier")
        self.stamp(4)
        e("s_cbranch_scc1 L_nopub")

        e("s_mov_b32 exec_hi, 0xffff")
        for k in range(4):
            e(f"ds_read_b128 v[{4 + 4 * k}:{7 + 4 * k}], v3 offset:{L_RED + 1536 * k}")
        e(f"s_cmp_eq_u32 s{S_WAVE}, 0")
        e(f"s_cselect_b64 s[{S_W}:{S_W + 1}], s[36:37], s[38:39]")
        e("s_cbranch_scc0 L_pubmax")
        e("s_waitcnt lgkmcnt(2)")
        e("v_pk_add_f32 v[4:5], v[4:5], v[8:9]")
        e("v_pk_add_f32 v[6:7], v[6:7], v[10:11]")
        e("s_waitcnt lgkmcnt(0)")
        e("v_pk_add_f32 v[12:13], v[12:13], v[16:17]")
        e("v_pk_add_f32 v[14:15], v[14:15], v[18:19]")
        e("v_pk_add_f32 v[4:5], v[4:5], v[12:13]")
        e("v_pk_add_f32 v[6:7], v[6:7], v[14:15]")
        e("s_branch L_pub")
        e("L_pubmax:")
        e("s_waitcnt lgkmcnt(1)")
        for i in range(4):
            e(f"v_max3_f32 v{4 + i}, v{4 + i}, v{8 + i}, v{12 + i}")
        e("s_waitcnt lgkmcnt(0)")
        for i in range(4):
            e(f"v_max_f32 v{4 + i}, v{4 + i}, v{16 + i}")
        e("L_pub:")
        for i in range(4):
            e(f"v_and_or_b32 v{4 + i}, v{4 + i}, -16, s{S_TG[i]}")
        e(f"buffer_store_dwordx4 v[4:7], v3, s[{S_WS}:{S_WS + 3}], s{S_PO} offen{' sc1' if o.psc1 else ' nt' if o.pnt else ''}")
        e("s_mov_b64 exec, -1")
        e(f"s_movk_i32 s{S_W + 2}, 18432")
        e(f"s_mov_b32 s{S_W + 3}, 0x20000")
        e(f"s_mul_i32 s{S_T0}, s{S_WAVE}, 18432")
        e(f"s_addk_i32 s{S_T0}, {L_W1}")
        e(f"s_mov_b32 s{S_T1}, 0")
        e("v_lshlrev_b32 v2, 4, v1")
        e("L_wloop:")
        e(f"s_add_u32 m0, s{S_T0}, s{S_T1}")
        e(f"s_cmp_ge_u32 s{S_RID}, {NRED}")
        for k in range(3):
            e(f"buffer_load_dwordx4 v2, s[{S_W}:{S_W + 3}], s{S_T1} offen offset:{k * 1024} lds")
        e("s_cbranch_scc1 L_wnext")
        e(f"s_waitcnt vmcnt({o.wpace})")
        e("L_wnext:")
        e(f"s_addk_i32 s{S_T1}, 3072")
        e(f"s_cmp_lt_u32 s{S_T1}, 18432")
        e("s_cbranch_scc1 L_wloop")
        e("L_nopub:")

        B2 = 28
        V_H0, V_H1, V_SW, V_SR, V_Q = 24, 25, 26, 27, 37
        SP0 = 136
        A1 = 144
        B1 = [4, 8, 12, 16, 136, 140]
        e("v_lshrrev_b32 v20, 4, v1                  ; q")
        e(f"s_mov_b32 s{S_HOOK}, {SPIN - NFB}")
        e(f"s_cmp_lt_u32 s{S_WAVE}, 3")
        e("s_cbranch_scc1 L_spill")
        e(f"s_cmp_ge_u32 s{S_RID}, {NRED}")
        e("s_cbranch_scc1 L_barw")
        e(f"s_cmp_lg_u32 s{S_WAVE}, 3")
        e("s_cbranch_scc1 L_barw")

        def clean(lbl, d, a):
            e(f"s_cmp_lg_u32 s{S_WAVE}, 3")
            e(f"s_cbranch_scc1 {lbl}")
            if o.cw:
                e(f"v_mov_b32 v{d}, 0")
                e(f"v_lshlrev_b32 v{a}, {o.cw}, v1")
                e(f"s_mov_b64 exec, {(1 << (1536 >> o.cw)) - 1}")
                if o.cld:
                    e(f"buffer_atomic_or v{d}, v{a}, s[{S_WS}:{S_WS + 3}], s{S_PO} offen")
                else:
                    e(f"buffer_store_dword v{d}, v{a}, s[{S_WS}:{S_WS + 3}], s{S_PO} offen sc1")
                e("s_mov_b64 exec, -1")
                return
            for i in range(4):
                e(f"v_mov_b32 v{d + i}, 0")
            e(f"v_lshlrev_b32 v{a}, 4, v1")
            e("s_mov_b32 exec_hi, 0xffff")
            e(f"buffer_store_dwordx4 v[{d}:{d + 3}], v{a}, s[{S_WS}:{S_WS + 3}], s{S_PO} offen sc1")
            e(f"buffer_store_dwordx4 v[{d}:{d + 3}], v{a}, s[{S_WS}:{S_WS + 3}], s{S_PO} offen offset:768 sc1")
            e("s_mov_b64 exec, -1")

        def hook(lbl):
            e(f"s_cmp_lg_u32 s{S_CNT}, s{S_HOOK}")
            e(f"s_cbranch_scc1 {lbl}")
            e(f"s_call_b64 s[{S_RET}:{S_RET + 1}], L_flush")
            e(f"{lbl}:")

        e("v_lshrrev_b32 v2, 3, v1")
        e("v_mul_u32_u24 v2, 1536, v2")
        e("v_and_b32 v3, 7, v1")
        e(f"v_lshl_add_u32 v{V_Q}, v3, 4, v2")
        e(f"s_and_b32 s{S_T0}, s2, 7")
        e(f"s_mul_i32 s{S_V}, s{S_T0}, {32 * 1536}")
        e(f"s_lshl_b32 s{S_T1}, s{S_RID}, 7")
        e(f"s_add_u32 s{S_V}, s{S_V}, s{S_T1}")
        for k in range(1, 4):
            e(f"s_add_u32 s{S_V + k}, s{S_V}, {k * 8 * 1536}")
        e(f"s_lshl_b32 s{S_T0}, s{S_T0}, 8              ; group*256")
        e(f"s_lshr_b32 s{S_T1}, s{S_RID}, 2")
        e(f"s_lshl2_add_u32 s{S_T1}, s{S_T1}, s{S_RID}")
        e(f"s_lshl_b32 s{S_T1}, s{S_T1}, 11")
        e(f"s_add_u32 s{S_T1}, s{S_T1}, s{S_T0}")
        for k in range(o.qcopy // 2):
            e(f"s_add_u32 s{S_W + k}, s{S_T1}, {WS_Q + k * 49152}")
        e("v_and_b32 v2, 15, v1")
        e("v_lshlrev_b32 v3, 2, v2")
        e("v_bfe_u32 v2, v1, 4, 1")
        e("v_lshl_add_u32 v3, v2, 7, v3")
        e("v_lshrrev_b32 v2, 5, v1")
        e("v_lshl_add_u32 v3, v2, 13, v3             ; (l>>5)*8192 + ((l>>4)&1)*128 + (l&15)*4")
        e(f"s_lshl4_add_u32 s{S_T0}, s{S_TG[1]}, s{S_TG[0]}")
        e(f"s_xor_b32 s{S_CNT}, s{S_T0}, 0xff")
        e(f"s_lshl_b32 s{S_CNT}, s{S_CNT}, 8")
        e(f"s_or_b32 s{S_T0}, s{S_T0}, s{S_CNT}")
        e("v_and_b32 v2, 12, v3")
        e(f"v_bfe_u32 v23, s{S_T0}, v2, 4")
        e(f"s_mov_b32 s{S_CNT}, {SPIN}")
        e("L_rpoll:")
        hook("L_rnohook")
        for k in range(4):
            e(f"buffer_load_dwordx4 v[{4 + 4 * k}:{7 + 4 * k}], v{V_Q}, s[{S_WS}:{S_WS + 3}], s{S_V + k} offen sc1")
        e(f"s_sub_u32 s{S_CNT}, s{S_CNT}, 1")
        e("s_cbranch_scc1 L_rgot")
        for k in range(4):
            e(f"s_waitcnt vmcnt({3 - k})")
            for i in range(4):
                r, acc = 4 + 4 * k + i, 21 + (i & 1)
                if k == 0 and i < 2:
                    e(f"v_xor_b32 v{acc}, s{S_TG[i]}, v{r}")
                else:
                    e(f"v_bitop3_b32 v{acc}, v{acc}, v{r}, s{S_TG[i]} bitop3:0xf6   ; a | (b ^ c)")
        e("v_bitop3_b32 v21, v21, v22, 15 bitop3:0xa8          ; (a | b) & c")
        e("v_cmp_ne_u32 vcc, 0, v21")
        e("s_wqm_b64 exec, vcc                       ; 64-byte units still waiting poll again")
        e("s_cbranch_scc1 L_rpoll")
        e("L_rgot:")
        e("s_mov_b64 exec, -1")
        e("s_waitcnt vmcnt(0)")
        self.stamp(1, "r")
        e(f"s_cmp_ge_u32 s{S_RID}, 6")
        e("s_cbranch_scc1 L_rmax")
        for kind in (0, 1):
            op = "v_add_f32" if kind == 0 else "v_max_f32"
            if kind == 1:
                e("L_rmax:")
                for i in range(4):
                    e(f"v_max3_f32 v{4 + i}, v{4 + i}, v{8 + i}, v{12 + i}")
                for i in (0, 2, 1, 3):
                    e(f"v_max_f32 v{4 + i}, v{4 + i}, v{16 + i}")
            else:
                e("v_pk_add_f32 v[4:5], v[4:5], v[8:9]")
                e("v_pk_add_f32 v[6:7], v[6:7], v[10:11]")
                e("v_pk_add_f32 v[12:13], v[12:13], v[16:17]")
                e("v_pk_add_f32 v[14:15], v[14:15], v[18:19]")
                e("v_pk_add_f32 v[4:5], v[4:5], v[12:13]")
                e("v_pk_add_f32 v[6:7], v[6:7], v[14:15]")
                e("s_nop 0")
            e(f"{op}_dpp v4, v4, v4 row_ror:8 row_mask:0xf bank_mask:0x3")
            if kind == 0:
                e(f"{op}_dpp v5, v5, v5 row_ror:8 row_mask:0xf bank_mask:0x3")
                e(f"{op}_dpp v4, v6, v6 row_ror:8 row_mask:0xf bank_mask:0xc")
            else:
                e(f"{op}_dpp v4, v6, v6 row_ror:8 row_mask:0xf bank_mask:0xc")
                e(f"{op}_dpp v5, v5, v5 row_ror:8 row_mask:0xf bank_mask:0x3")
            e(f"{op}_dpp v5, v7, v7 row_ror:8 row_mask:0xf bank_mask:0xc")
            e("s_nop 1")
            e("v_permlane16_swap_b32 v4, v5")
            e(f"{op} v4, v4, v5")
            e("v_mov_b32 v5, v4")
            e("s_nop 1")
            e("v_permlane32_swap_b32 v4, v5")
            e(f"{op} v4, v4, v5                        ; lane 16a+8b+c: element 2b+a of piece c")
            if kind == 0:
                e("s_branch L_rpub")
        e("L_rpub:")
        e("v_and_or_b32 v4, v4, -16, v23")
        for k in range(o.qcopy // 2):
            e(f"buffer_store_dword v4, v3, s[{S_WS}:{S_WS + 3}], s{S_W + k} offen sc1")
            if k == 0:
                self.stamp(9)
        if o.clean == "r":
            for i in range(4):
                e(f"v_mov_b32 v{8 + i}, 0")
            for k in range(4):
                e(f"buffer_store_dwordx4 v[8:11], v{V_Q}, s[{S_WS}:{S_WS + 3}], s{S_V + k} offen sc1")
        e("s_barrier")
        e("s_branch L_afterw")

        e("L_spill:")
        e(f"s_lshl_b32 s{S_T0}, s{S_WAVE}, 13")
        e(f"v_lshl_add_u32 v{V_AT}, v1, 4, s{S_T0}")
        for k in range(8):
            e(f"ds_write_b128 v{V_AT}, v[{SP0 + 4 * k}:{SP0 + 4 * k + 3}] offset:{L_SPILL + 1024 * k}")
        e("L_barw:")
        e("s_waitcnt vmcnt(0) lgkmcnt(0)")
        e("s_barrier")
        e("L_afterw:")
        e("v_bfe_u32 v3, v1, 2, 2")
        e("v_lshl_add_u32 v21, v20, 3, v3            ; row")
        e("v_and_b32 v22, 15, v21                    ; row of the half step (q&1)")
        e("v_and_b32 v3, 3, v1")
        e(f"s_lshl_b32 s{S_T2}, s{S_WAVE}, 5")
        e(f"v_lshl_add_u32 v23, v3, 3, s{S_T2}          ; column bytes")
        e("v_mov_b32 v3, 384")
        e("v_mad_u32_u24 v2, v21, v3, v23")
        e("v_mad_u32_u24 v22, v22, v3, v23")
        e(f"ds_read_b64_tr_b16 v[{B2}:{B2 + 1}], v2 offset:{L_W2}")
        e(f"ds_read_b64_tr_b16 v[{B2 + 2}:{B2 + 3}], v2 offset:{L_W2 + 4 * 384}")
        e(f"ds_read_b64_tr_b16 v[{B2 + 4}:{B2 + 5}], v22 offset:{L_W2 + 32 * 384}")
        e(f"ds_read_b64_tr_b16 v[{B2 + 6}:{B2 + 7}], v22 offset:{L_W2 + 36 * 384}")
        e("v_and_b32 v2, 1, v1")
        e("v_mul_u32_u24 v22, 96, v2")
        e(f"v_lshl_add_u32 v{V_H0}, v20, 4, v22")
        e("v_and_b32 v3, 1, v20")
        e(f"v_lshl_add_u32 v{V_H1}, v3, 4, v22")
        e(f"s_lshl_b32 s{S_T0}, s{S_WAVE}, 6")
        e(f"v_lshl_add_u32 v{V_SW}, v1, 2, s{S_T0}")
        if o.mul == "dot":
            e("v_mov_b32 v3, 0")
            e("s_mov_b64 exec, 0xffff")
            e(f"ds_write_b32 v{V_SW}, v3 offset:{L_S}")
            e("s_mov_b64 exec, -1")
            e(f"v_lshl_add_u32 v{V_SW}, v2, 1, v{V_SW}")
        e("v_and_b32 v3, 7, v1")
        e(f"s_lshl_b32 s{S_T0}, s{S_TY}, 8")
        e(f"v_lshl_add_u32 v{V_SR}, v3, 5, s{S_T0}")
        e("s_waitcnt lgkmcnt(0)")
        e("s_mov_b32 exec_lo, 0")
        for i in range(4):
            e(f"v_mov_b32 v{B2 + 4 + i}, 0")
        e("s_mov_b64 exec, -1")
        e(f"s_cmp_ge_u32 s{S_WAVE}, 3")
        e("s_cbranch_scc1 L_noa1")
        e("v_mov_b32 v3, 96")
        e("v_mad_u32_u24 v2, v21, v3, v23")
        for s in range(6):
            for h in range(2):
                r = A1 + 4 * s + 2 * h
                e(f"ds_read_b64_tr_b16 v[{r}:{r + 1}], v2 offset:{L_W1 + s * 3072 + h * 384}")
        e("L_noa1:")
        e(f"v_lshl_add_u32 v3, v20, 3, v22")
        e(f"v_add_u32 v3, s{S_T2}, v3")
        e("v_lshlrev_b32 v2, 2, v22")
        e("v_lshl_add_u32 v2, v20, 4, v2")
        e("v_and_b32 v8, 1, v1")
        e("v_lshlrev_b32 v8, 4, v8")
        e("v_lshl_add_u32 v8, v20, 2, v8")
        e("v_and_b32 v9, 2, v1")
        e("v_bfe_u32 v10, v1, 2, 1")
        e("v_add3_u32 v8, v8, v9, v10")
        e(f"v_add_lshl_u32 v23, v8, s{S_T2}, 1")
        e("v_lshrrev_b32 v8, 2, v1")
        e("v_lshlrev_b32 v8, 7, v8")
        e("v_and_b32 v9, 3, v1")
        e(f"v_lshl_add_u32 v{V_Q}, v9, 4, v8")
        e(f"s_and_b32 s{S_T0}, s{S_QC}, 4")
        if o.qcopy > 2:
            e(f"s_and_b32 s{S_CNT}, s{S_QC}, {o.qcopy // 2 - 1}")
            e(f"s_mul_i32 s{S_CNT}, s{S_CNT}, 24")
            e(f"s_add_u32 s{S_T0}, s{S_T0}, s{S_CNT}")
        e(f"s_lshr_b32 s{S_T1}, s{S_WAVE}, 2")
        e(f"s_lshl2_add_u32 s{S_T1}, s{S_T1}, s{S_WAVE}")
        e(f"s_add_u32 s{S_T1}, s{S_T1}, s{S_T0}")
        e(f"s_lshl_b32 s{S_T1}, s{S_T1}, 11")
        e(f"s_add_u32 s{S_T1}, s{S_T1}, {WS_Q}")
        if o.clean in ("q", "p"):
            e(f"v_mov_b32 v19, s{S_TG[0]}")
            e(f"s_lshl_b32 s{S_V}, s{S_WAVE}, 7")
            e(f"s_add_u32 s{S_V}, s{S_V}, s{S_PO}")
        e(f"s_mov_b32 s{S_CNT}, {SPIN}")
        e(f"s_cmp_ge_u32 s{S_WAVE}, 6")
        e("s_cbranch_scc1 L_qpoll1")

        for kind in (0, 1):
            op = "v_add_f32" if kind == 0 else "v_max_f32"
            e(f"L_qpoll{kind}:")
            hook(f"L_qnohook{kind}")
            e(f"buffer_load_dwordx4 v[4:7], v{V_Q}, s[{S_WS}:{S_WS + 3}], s{S_T1} offen sc1")
            e(f"s_sub_u32 s{S_CNT}, s{S_CNT}, 1")
            e(f"s_cbranch_scc1 L_qgot{kind}")
            if o.qsleep:
                e(f"s_sleep {o.qsleep}")
            e("s_waitcnt vmcnt(0)")
            e(f"v_xor_b32 v21, s{S_TG[0]}, v4")
            e(f"v_xor_b32 v22, s{S_TG[1]}, v5")
            e(f"v_bitop3_b32 v21, v21, v6, s{S_TG[2]} bitop3:0xf6")
            e(f"v_bitop3_b32 v22, v22, v7, s{S_TG[3]} bitop3:0xf6")
            e("v_bitop3_b32 v21, v21, v22, 15 bitop3:0xa8")
            e("v_cmp_ne_u32 vcc, 0, v21")
            e("s_wqm_b64 exec, vcc")
            e(f"s_cbranch_scc1 L_qpoll{kind}")
            e(f"L_qgot{kind}:")
            if o.clean == "p":
                e("s_mov_b64 exec, 1")
                e(f"buffer_store_dword v19, off, s[{S_WS}:{S_WS + 3}], s{S_V} sc1")
            e("s_mov_b64 exec, -1")
            e(f"s_waitcnt vmcnt({1 if o.clean == 'p' else 0})")
            self.stamp(5)
            e("v_permlane32_swap_b32 v4, v6")
            e("v_permlane32_swap_b32 v5, v7")
            e(f"{op} v4, v4, v6")
            e(f"{op} v5, v5, v7")
            e("s_nop 1")
            e("v_permlane16_swap_b32 v4, v5")
            e(f"{op} v4, v4, v5")
            e(f"s_cmp_ge_u32 s{S_WAVE}, 3")
            e("s_nop 0")
            e(f"{op}_dpp v4, v4, v4 row_ror:8 row_mask:0xf bank_mask:0xf")
            if kind == 0:
                e("v_mul_f32 v4, 0x36800000, v4              ; 1/262144")
            e("v_cvt_pk_bf16_f32 v4, v4, v4")
            e(f"ds_write_b16 v23, v4 offset:{L_F}")
            if o.clean == "q":
                e("s_mov_b64 exec, 1")
                e(f"buffer_store_dword v19, off, s[{S_WS}:{S_WS + 3}], s{S_V} sc1")
                e("s_mov_b64 exec, -1")
            e("s_waitcnt lgkmcnt(0)")
            e("s_barrier")
            if kind == 0:
                e("s_cbranch_scc0 L_mlp1")
                if o.clean == "f":
                    clean("L_join", 16, 12)
            e("s_branch L_join")

        e("L_mlp1:")
        for s in range(6):
            e(f"ds_read_b128 v[{B1[s]}:{B1[s] + 3}], v2 offset:{L_F + 64 * s}")
        for s in range(6):
            c = "0" if s == 0 else "v[20:23]"
            b = B1[s]
            e(f"s_waitcnt lgkmcnt({5 - s})")
            e(f"v_mfma_f32_16x16x32_bf16 v[20:23], v[{A1 + 4 * s}:{A1 + 4 * s + 3}], v[{b}:{b + 3}], {c}")
        e("s_nop 3")
        e("s_mov_b32 exec_lo, 0x00030003")
        e("s_mov_b32 exec_hi, 0x00030003")
        e("s_nop 1")
        for i in range(4):
            e(f"v_maximum3_f32 v{20 + i}, v{20 + i}, 0, 0")
        e("v_cvt_pk_bf16_f32 v20, v20, v21")
        e("v_cvt_pk_bf16_f32 v21, v22, v23")
        e(f"ds_write_b64 v3, v[20:21] offset:{L_H}")
        e("s_mov_b64 exec, -1")
        e("s_waitcnt lgkmcnt(0)")

        e("L_join:")
        e("s_barrier")
        self.stamp(6)
        e(f"ds_read_b128 v[4:7], v{V_H0} offset:{L_H}")
        e(f"ds_read_b128 v[8:11], v{V_H1} offset:{L_H + 64}")
        e("s_waitcnt lgkmcnt(1)")
        e(f"v_mfma_f32_16x16x32_bf16 v[12:15], v[4:7], v[{B2}:{B2 + 3}], 0")
        e("s_waitcnt lgkmcnt(0)")
        e(f"v_mfma_f32_16x16x32_bf16 v[12:15], v[8:11], v[{B2 + 4}:{B2 + 7}], v[12:15]")
        e("s_mov_b64 exec, 0xffff")
        e("s_nop 6")
        e("v_cvt_pk_bf16_f32 v12, 0, v12")
        e("v_cvt_pk_bf16_f32 v13, 0, v13")
        e("v_add_f32 v12, v12, v13")
        e("v_cvt_pk_bf16_f32 v12, 0, v12")
        e("v_mul_f32 v12, 0xbfb8aa3b, v12            ; -log2(e)")
        e("v_exp_f32 v12, v12")
        e("s_nop 0")
        e("v_add_f32 v12, 1.0, v12")
        e("v_rcp_f32 v12, v12")
        e("s_nop 0")
        if o.mul == "dot":
            e("v_cvt_pk_bf16_f32 v12, v12, v12")
            e(f"ds_write_b16 v{V_SW}, v12 offset:{L_S}")
        else:
            e("v_cvt_pk_bf16_f32 v12, 0, v12")
            e(f"ds_write_b32 v{V_SW}, v12 offset:{L_S}")
        e("s_mov_b64 exec, -1")
        e("s_waitcnt lgkmcnt(0)")
        e("s_barrier")
        e(f"ds_read_b128 v[4:7], v{V_SR} offset:{L_S}")
        e(f"ds_read_b128 v[8:11], v{V_SR} offset:{L_S + 16}")

        if o.stlim:
            e(f"s_cmp_lt_u32 s2, {o.stlim}")
            e(f"s_cselect_b32 s{S_OUT + 2}, s{S_OUT + 2}, 0")
        zorder = [int(v) for v in o.zorder.split(",")]
        assert sorted(zorder) == list(range(16))
        restored = False
        late = []

        def wbl2():
            wv, lim, pos = [int(v) for v in o.wb.split(",")]
            e(f"s_cmp_lt_u32 s{S_WAVE}, {wv}")
            e("s_cbranch_scc1 L_nowb")
            e(f"s_cmp_ge_u32 s2, {lim}")
            e("s_cbranch_scc1 L_nowb")
            if pos == 33:
                e("s_waitcnt vmcnt(0)")
            e("buffer_wbl2 sc1")
            e("L_nowb:")
        for n, j in enumerate([2 * z + u for z in zorder for u in (0, 1)]):
            a = D0 + 4 * j
            t0 = 12 + 8 * (n & 1)
            if a >= SP0 and not restored:
                assert n > 1
                e("s_waitcnt lgkmcnt(0)")
                restored = True
            md = o.mul
            for i in range(4 if md in ("pk", "mul", "u", "um") else 0):
                t = t0 + 2 * i
                e(f"v_lshlrev_b32 v{t}, 16, v{a + i}")
                e(f"v_and_b32 v{t + 1}, s{S_MASK}, v{a + i}")
            if n == 0:
                e("s_waitcnt lgkmcnt(0)")
                self.stamp(7)
            for i in range(4):
                t = t0 + 2 * i
                if md in ("pk", "um"):
                    e(f"v_pk_mul_f32 v[{t}:{t + 1}], v[{t}:{t + 1}], v[{4 + 2 * i}:{5 + 2 * i}]")
                if md == "mul":
                    e(f"v_mul_f32 v{t}, v{t}, v{4 + 2 * i}")
                    e(f"v_mul_f32 v{t + 1}, v{t + 1}, v{5 + 2 * i}")
                if md == "dot":
                    e(f"v_dot2_f32_bf16 v{t}, v{a + i}, v{4 + 2 * i}, 0")
                    e(f"v_dot2_f32_bf16 v{t + 1}, v{a + i}, v{5 + 2 * i}, 0")
            for i in range(4):
                t = t0 + 2 * i
                if md in ("pk", "mul", "dot"):
                    e(f"v_cvt_pk_bf16_f32 v{a + i}, v{t}, v{t + 1}")
                if md == "c":
                    e(f"v_cvt_pk_bf16_f32 v{a + i}, v{a + i}, v{a + (i ^ 1)}")
            def st(j=j, a=a, n=n):
                self.mem(j, lambda va, so: e(f"buffer_store_dwordx4 v[{a}:{a + 3}], {va}, s[{S_OUT}:{S_OUT + 3}], {so} offen{'' if n >= 32 - o.nplain else stf}"))
            if n < o.burst:
                st()
            else:
                late.append(st)
            if n == 31:
                for f in late:
                    f()
            if n + 1 in o.sbar:
                e("s_barrier")
            if o.sthr and n >= o.sthr:
                e(f"s_waitcnt vmcnt({o.sthr - 1})")
            if o.wb and int(o.wb.split(",")[2]) == n:
                wbl2()
            if n & 1:
                self.trace("st", n >> 1)
            if n == 1:
                e(f"s_cmp_ge_u32 s{S_WAVE}, 3")
                e("s_cbranch_scc1 L_norestore")
                for k in range(8):
                    e(f"ds_read_b128 v[{SP0 + 4 * k}:{SP0 + 4 * k + 3}], v{V_AT} offset:{L_SPILL + 1024 * k}")
                e("L_norestore:")
                if o.clean == "st":
                    clean("L_noclean", 28, 32)
                    e("L_noclean:")
        if o.clean == "e":
            clean("L_noclean", 28, 32)
            e("L_noclean:")
        if o.wb and int(o.wb.split(",")[2]) >= 32:
            wbl2()
        if o.stamps:
            self.stamp(8)
            e("s_waitcnt vmcnt(0)")
            self.stamp(10)
            if o.idleclk:
                e(f"s_cmp_lg_u32 s{S_WAVE}, 11")
                e("s_cbranch_scc1 L_noidle")
                for lbl, dur, m, r in (("a", o.idleclk, 1, 3), ("b", 2000, 2, 6)):
                    e("s_memrealtime s[96:97]")
                    e("s_waitcnt lgkmcnt(0)")
                    e(f"L_idle{lbl}:")
                    e("s_sleep 4")
                    e("s_memrealtime s[98:99]")
                    e("s_waitcnt lgkmcnt(0)")
                    e("s_sub_u32 s98, s98, s96")
                    e(f"s_cmp_lt_u32 s98, {dur}")
                    e(f"s_cbranch_scc1 L_idle{lbl}")
                    e(f"s_memtime s[{S_STAMP + 2 * m}:{S_STAMP + 2 * m + 1}]")
                    e(f"s_memrealtime s[{S_STAMP + 2 * r}:{S_STAMP + 2 * r + 1}]")
                e("L_noidle:")
            e("s_getreg_b32 s94, hwreg(HW_REG_XCC_ID)")
            e("s_getreg_b32 s95, hwreg(HW_REG_HW_ID)")
            e("s_waitcnt lgkmcnt(0)")
            e("v_mov_b32 v2, 0")
            for i in range(11 if o.trace else 14):
                e(f"v_writelane_b32 v2, s{S_STAMP + 2 * i}, {i}")
            e("v_writelane_b32 v2, s94, 14")
            e("v_writelane_b32 v2, s95, 15")
            e(f"s_mul_i32 s{S_T0}, s2, 12")
            e(f"s_add_u32 s{S_T0}, s{S_T0}, s{S_WAVE}")
            e(f"s_lshl_b32 s{S_T0}, s{S_T0}, 6")
            e(f"s_add_u32 s{S_T0}, s{S_T0}, {WS_STAMP}")
            e("v_mbcnt_lo_u32_b32 v3, -1, 0")
            e("v_lshlrev_b32 v3, 2, v3")
            e("s_mov_b64 exec, 0xffff")
            e(f"buffer_store_dword v2, v3, s[{S_WS}:{S_WS + 3}], s{S_T0} offen sc1")
            if o.trace:
                e("s_mov_b32 s91, s92")
                for i in range(16):
                    e(f"v_writelane_b32 v2, s{76 + i}, {i}")
                e(f"s_add_u32 s{S_T0}, s{S_T0}, {1 << 19}")
                e(f"buffer_store_dword v2, v3, s[{S_WS}:{S_WS + 3}], s{S_T0} offen sc1")
        if o.dbgptr:
            e("s_cmp_lg_u32 s2, 0")
            e("s_cbranch_scc1 L_nodp")
            e("s_mov_b64 exec, -1")
            e("v_mov_b32 v2, 0")
            for i, r in enumerate((4, 5, 8, 9, 12, 13, 16, 17, 0, 1)):
                e(f"v_writelane_b32 v2, s{r}, {i}")
            e("v_mbcnt_lo_u32_b32 v3, -1, 0")
            e("v_lshlrev_b32 v3, 2, v3")
            e("s_mov_b64 exec, 0x3ff")
            e(f"buffer_store_dword v2, v3, s[{S_DBG}:{S_DBG + 3}], 0 offen offset:8")
            e("L_nodp:")
        if o.probe:
            idx, K = [int(v) for v in o.probe.split(",")]
            if idx == -5:
                e("s_cmp_ge_u32 s2, 8")
                e("s_cbranch_scc1 L_end")
            elif idx == -2:
                e("s_getreg_b32 s94, hwreg(HW_REG_XCC_ID)")
                e("s_xor_b32 s94, s94, s2")
                e("s_and_b32 s94, s94, 7")
                e("s_cbranch_scc0 L_end")
            elif idx == -3:
                e("s_cmp_lg_u32 s2, 0")
                e("s_cbranch_scc1 L_end")
            else:
                e(f"s_cmp_lg_u32 s2, {o.pwg}")
                e("s_cbranch_scc1 L_end")
            e(f"s_cmp_lg_u32 s{S_WAVE}, {o.pwave}")
            e("s_cbranch_scc1 L_end")
            if idx == -5:
                e("s_mov_b32 s96, 0")
                e("L_sk:")
                e("s_sleep 100")
                e("s_add_u32 s96, s96, 1")
                e("s_cmp_lt_u32 s96, 4")
                e("s_cbranch_scc1 L_sk")
                e(f"s_mov_b32 s94, {WS_STAMP}")
                e(f"buffer_load_dword v4, off, s[{S_WS}:{S_WS + 3}], s94 sc1")
                e("s_waitcnt vmcnt(0)")
                e("v_readfirstlane_b32 s94, v4")
                e(f"s_sub_u32 s95, s{S_STAMP}, s94")
                e(f"s_mul_i32 s95, s95, {K - 1}")
                e("s_add_u32 s96, s95, 8000")
            elif idx == -4:
                c0, c1, r0, r1 = ((11, 12, 0, 7), (12, 13, 7, 10))[K]
                e(f"s_sub_u32 s94, s{S_STAMP + 2 * c1}, s{S_STAMP + 2 * c0}")
                e(f"s_sub_u32 s95, s{S_STAMP + 2 * r1}, s{S_STAMP + 2 * r0}")
                e("v_cvt_f32_u32 v4, s94")
                e("v_cvt_f32_u32 v5, s95")
                e("v_rcp_f32 v5, v5")
                e("s_nop 1")
                e("v_mul_f32 v4, v4, v5")
                e("v_mul_f32 v4, 0x44fa0000, v4")
                e("v_cvt_u32_f32 v4, v4")
                e("s_nop 1")
                e("v_readfirstlane_b32 s96, v4")
                e("s_sub_u32 s96, s96, 31000")
            elif idx <= -10:
                e(f"s_bfe_u32 s94, s{-idx - 10}, {(7 << 16)} + {K}")
                e("s_mul_i32 s96, s94, 200")
                e("s_add_u32 s96, s96, 5000")
            elif idx == -3:
                e("s_getreg_b32 s94, hwreg(HW_REG_XCC_ID)")
                e("s_and_b32 s94, s94, 7")
                e(f"s_mul_i32 s96, s94, {K}")
                e("s_add_u32 s96, s96, 5000")
            elif idx < 0:
                e(f"s_mov_b32 s96, {K}")
            else:
                e(f"s_sub_u32 s96, s{S_STAMP + 2 * idx}, s{S_STAMP + 2 * o.pref}")
                e(f"s_mul_i32 s96, s96, {K}")
                if o.pref:
                    e("s_add_u32 s96, s96, 5000")
            e("s_min_u32 s96, s96, 200000")
            e("L_probe:")
            e("s_memrealtime s[98:99]")
            e("s_waitcnt lgkmcnt(0)")
            e(f"s_sub_u32 s98, s98, s{S_STAMP}")
            e("s_cmp_lt_u32 s98, s96")
            e("s_cbranch_scc1 L_probe")
        e("L_end:")
        e("s_endpgm")

        e(".p2align 7")
        e("L_role:")
        e("s_load_dwordx4 s[44:47], s[0:1], 32")
        e(f"s_lshr_b32 s{S_V + 1}, s2, 3")
        e(f"s_and_b32 s{S_T1}, s2, 1")
        e(f"s_lshl1_add_u32 s{S_T1}, s{S_T1}, 1")
        e(f"s_mul_i32 s{S_T2}, s2, 0x104100")
        e(f"s_cmp_eq_u32 s2, {NVOTE_WG}")
        e("s_waitcnt lgkmcnt(0)")
        e("s_cbranch_scc1 L_tag")
        e(f"s_sub_u32 s{S_T0}, s{S_OUT}, s{S_X}")
        e(f"s_addk_i32 s{S_T0}, 2048")
        e(f"s_bitcmp1_b32 s{S_T0}, 12")
        e(f"s_cselect_b32 s{S_V}, {o.quorum}, {o.quorum4}")
        e(f"s_cselect_b32 s{S_V + 2}, s{S_V + 1}, 1")
        e(f"s_cmp_eq_u32 s{S_V + 2}, 2")
        e(f"s_cselect_b32 s{S_V + 1}, s{S_T1}, s{S_V + 1}")
        e(f"s_bitcmp1_b32 s{S_V + 1}, 0")
        e(f"s_cselect_b64 s[{S_W}:{S_W + 1}], s[8:9], s[4:5]")
        e(f"s_lshr_b32 s{S_T1}, s{S_V + 1}, 1")
        e(f"s_lshl_b32 s{S_T1}, 0x2000000, s{S_T1}")
        e(f"s_add_u32 s{S_T2}, s{S_T2}, s{S_T1}")
        e(f"s_lshr_b32 s{S_T0}, s{S_OUT}, 7")
        e(f"s_mul_i32 s{S_T0}, s{S_T0}, 21")
        e(f"s_and_b32 s{S_T0}, s{S_T0}, 63")
        e(f"s_mulk_i32 s{S_T0}, 384")
        e(f"s_add_u32 s{S_T0}, s{S_T0}, s{S_T2}")
        e(f"s_cmp_lg_u32 s{S_V + 2}, 0")
        e(f"s_cselect_b32 s{S_V + 3}, s{S_OUT}, 0")
        e("s_cbranch_scc1 L_notws")
        e(f"s_mov_b64 s[{S_W}:{S_W + 1}], s[46:47]")
        e(f"s_and_b32 s{S_T0}, s{S_T2}, 0xfffff")
        e(f"s_add_u32 s{S_T0}, s{S_T0}, {WS_PROBE}")
        e("L_notws:")
        e(f"s_add_u32 s{S_T1}, s{S_T0}, 8192")
        self.stamp(1, True)
        e(f"s_load_dword s42, s[{S_W}:{S_W + 1}], s{S_T0} glc")
        e(f"s_load_dword s43, s[{S_W}:{S_W + 1}], s{S_T1} glc")
        e(f"s_mov_b32 s{S_CNT}, {-(NRACE // 2)}")
        if o.dpf:
            e(f"s_load_dword s23, s[44:45], 192 glc")
        for k in range(NRACE):
            e("s_waitcnt lgkmcnt(0)")
            if k < 2:
                self.stamp(2 + k, True)
                if o.vdiag:
                    e("s_waitcnt lgkmcnt(0)")
            first, second = (S_T0, S_T1) if k % 2 == 0 else (S_T1, S_T0)
            e(f"s_load_dword s42, s[{S_W}:{S_W + 1}], s{first} glc")
            e(f"s_load_dword s43, s[{S_W}:{S_W + 1}], s{second} glc")
            e("s_waitcnt lgkmcnt(1)")
            e("s_nop 7")
            e(f"s_getreg_b32 s{S_T2}, hwreg(HW_REG_IB_STS, 8, 4)   ; 1: the second answer is still out")
            if k % 2 == 0:
                e(f"s_xor_b32 s{S_T2}, s{S_T2}, 1")
            e(f"s_add_u32 s{S_CNT}, s{S_CNT}, s{S_T2}")
        assert NRACE % 2 == 0 and max(o.quorum, o.quorum4) * NRACE // 2 < 32 and max(o.quorum, o.quorum4) <= NVOTE_WG
        e(f"s_sub_u32 s{S_T2}, 0, s{S_CNT}")
        e(f"s_add_u32 s{S_T0}, s{S_T0}, s{S_V + 3}")
        e(f"s_lshr_b32 s{S_T0}, s{S_T0}, 19")
        e(f"s_xor_b32 s{S_T0}, s{S_T0}, s2")
        e(f"s_bitcmp1_b32 s{S_T0}, 2")
        e(f"s_cselect_b32 s{S_CNT}, s{S_T2}, s{S_CNT}")
        e(f"s_mul_i32 s{S_T0}, s{S_V + 1}, 6")
        e(f"s_add_u32 s{S_T0}, s{S_T0}, 7")
        e(f"s_lshl_b32 s{S_CNT}, s{S_CNT}, s{S_T0}")
        e(f"s_or_b32 s{S_CNT}, s{S_CNT}, 1")
        e(f"s_mov_b32 s{S_T1}, s{S_CNT}")
        self.stamp(6, True)
        e(f"s_atomic_add s{S_T1}, s[44:45], {DBG_TAL} glc")
        e(f"s_add_u32 s{S_CNT}, s{S_CNT}, {sum(31 << (7 + 6 * t) for t in range(4))}")
        e("s_waitcnt lgkmcnt(0)")
        e(f"s_add_u32 s{S_T1}, s{S_T1}, s{S_CNT}")
        self.stamp(13)
        e(f"s_and_b32 s{S_T0}, s{S_T1}, 0x7f")
        e(f"s_cmp_lg_u32 s{S_T0}, s{S_V}")
        e("s_cbranch_scc1 L_stream")
        e(f"s_and_b32 s{S_T1}, s{S_T1}, {sum(32 << (7 + 6 * t) for t in range(4))}")
        e(f"s_bitset1_b32 s{S_T1}, 9")
        e("L_publish:")
        e(f"s_atomic_add s{S_T1}, s[44:45], {DBG_RES}")
        e("s_waitcnt lgkmcnt(0)")
        e("s_branch L_stream")

        e("L_tag:")
        e(f"s_mov_b32 s{S_T1}, 1")
        e("s_waitcnt lgkmcnt(0)")
        e(f"s_atomic_add s{S_T1}, s[46:47], {WS_E} glc")
        e("s_waitcnt lgkmcnt(0)")
        e(f"s_add_u32 s{S_T1}, s{S_T1}, 1")
        e(f"s_and_b32 s{S_T1}, s{S_T1}, 0xff")
        e(f"s_bitset1_b32 s{S_T1}, 8")
        self.stamp(13)
        e("s_branch L_publish")

        e("L_flush:")
        e(f"s_mov_b32 s{S_HOOK}, {SPIN}")
        e("s_mov_b32 exec_lo, -1")
        e("s_mov_b32 exec_hi, 0xffff")
        e("v_lshlrev_b32 v17, 4, v1")
        e("L_floop:")
        e(f"buffer_load_dwordx4 v[8:11], v17, s[{S_WS}:{S_WS + 3}], s{S_PO} offen sc1")
        e(f"buffer_load_dwordx4 v[12:15], v17, s[{S_WS}:{S_WS + 3}], s{S_PO} offen offset:768 sc1")
        e(f"s_sub_u32 s{S_HOOK}, s{S_HOOK}, 1")
        e("s_waitcnt vmcnt(0)")
        e(f"v_xor_b32 v16, s{S_TG[0]}, v8")
        for r in range(9, 16):
            e(f"v_bitop3_b32 v16, v16, v{r}, s{S_TG[r & 3]} bitop3:0xf6")
        e("v_and_b32 v16, 15, v16")
        e("v_cmp_ne_u32 vcc, 0, v16")
        e("s_cbranch_scc1 L_fdone")
        e("s_cbranch_vccnz L_floop")
        e("L_fdone:")
        e(f"buffer_store_dwordx4 v[8:11], v17, s[{S_WS}:{S_WS + 3}], s{S_PO} offen sc1")
        e(f"buffer_store_dwordx4 v[12:15], v17, s[{S_WS}:{S_WS + 3}], s{S_PO} offen offset:768 sc1")
        e("s_waitcnt vmcnt(0)")
        e("s_mov_b64 exec, -1")
        e(f"s_mov_b32 s{S_HOOK}, -1")
        e(f"s_setpc_b64 s[{S_RET}:{S_RET + 1}]")

        e("L_dpoll:")
        e(f"s_mov_b32 s{S_CNT}, {SPIN}")
        e(f"v_mov_b32 v{V_AT}, 0")
        e("s_mov_b64 exec, 1")
        e("L_dloop:")
        e(f"buffer_load_dword v{V_AT}, off, s[{S_DBG}:{S_DBG + 3}], 0 offset:{DBG_RES} sc1")
        e(f"s_sleep {o.dsleep}")
        e("s_waitcnt vmcnt(24)")
        e(f"v_readfirstlane_b32 s{S_T2}, v{V_AT}          ; whatever poll has landed last")
        e(f"s_sub_u32 s{S_CNT}, s{S_CNT}, 1")
        e("s_cbranch_scc1 L_dgot")
        e(f"s_andn2_b32 s{S_OFF}, {RES_OK}, s{S_T2}")
        e("s_cbranch_scc1 L_dloop")
        e("L_dgot:")
        e("s_mov_b64 exec, -1")
        e("s_branch L_decided")

        e("L_codeend:")
        e("s_endpgm")

    def text(self):
        out = HEADER
        out += f"; @launch grid=({NWG},1,1) block=(768,1,1) lds={L_TOTAL}\n"
        out += '.amdgcn_target "amdgcn-amd-amdhsa--gfx950"\n.text\n'
        out += f".globl {KNAME}\n.p2align 8\n.type {KNAME},@function\n{KNAME}:\n"
        out += "\n".join(self.lines) + "\n"
        out += f""".section .rodata,"a"
.p2align 6
.amdhsa_kernel {KNAME}
  .amdhsa_next_free_vgpr 168
  .amdhsa_next_free_sgpr {100 if self.o.stamps else 56}
  .amdhsa_accum_offset 168
  .amdhsa_group_segment_fixed_size 0
  .amdhsa_kernarg_size 48
  .amdhsa_user_sgpr_count 2
  .amdhsa_user_sgpr_kernarg_segment_ptr 1
  .amdhsa_system_sgpr_workgroup_id_x 1
  .amdhsa_float_denorm_mode_32 3
.end_amdhsa_kernel
"""
        return out


def main():
    p = argparse.ArgumentParser()
    p.add_argument("-o", default="standalone__channel_attn_cbam__vision.s")
    p.add_argument("--ldflags", default="nt")
    p.add_argument("--stflags", default="sc1")
    p.add_argument("--p1flags", default="sc1")
    p.add_argument("--stamps", action="store_true")
    p.add_argument("--probe", default="")
    p.add_argument("--depth", type=int, default=10)
    p.add_argument("--nrace", type=int, default=2)
    p.add_argument("--dsleep", type=int, default=8)
    p.add_argument("--trace", default="")
    p.add_argument("--nodec", action="store_true")
    p.add_argument("--vdiag", action="store_true")
    p.add_argument("--dbgptr", action="store_true")
    p.add_argument("--opp", default="5,9", type=lambda v: [int(x) for x in v.split(",")])
    p.add_argument("--quorum", type=int, default=16)
    p.add_argument("--quorum4", type=int, default=24)
    p.add_argument("--nvote", type=int, default=32)
    p.add_argument("--nagn", type=int, default=6)
    p.add_argument("--stlim", type=int, default=0)
    p.add_argument("--psc1", action="store_true")
    p.add_argument("--pnt", action="store_true")
    p.add_argument("--sdiag", action="store_true")
    p.add_argument("--rpf", type=int, default=0)
    p.add_argument("--dpf", type=int, default=0)
    p.add_argument("--pwg", type=int, default=0)
    p.add_argument("--pwave", type=int, default=0)
    p.add_argument("--pref", type=int, default=0)
    p.add_argument("--qshift", type=int, default=32)
    p.add_argument("--rolepos", type=int, default=-1)
    p.add_argument("--prebar", type=int, default=1)
    p.add_argument("--qmap", type=int, default=0)
    p.add_argument("--agnu", type=int, default=4)
    p.add_argument("--warmst", type=int, default=0)
    p.add_argument("--cw", type=int, default=0)
    p.add_argument("--cld", action="store_true")
    p.add_argument("--qflip", type=int, default=0)
    p.add_argument("--qcopy", type=int, default=4)
    p.add_argument("--mul", default="dot")
    p.add_argument("--burst", type=int, default=32)
    p.add_argument("--idleclk", type=int, default=0)
    p.add_argument("--clk", action="store_true")
    p.add_argument("--sthr", type=int, default=0)
    p.add_argument("--sbar", default=[24], type=lambda v: [int(x) for x in v.split(",")])
    p.add_argument("--piece", type=int, default=128)
    p.add_argument("--xbar", default=[24], type=lambda v: [int(x) for x in v.split(",")])
    p.add_argument("--cpf", type=int, default=0)
    p.add_argument("--cpfpos", type=int, default=0)
    p.add_argument("--wpace", type=int, default=40)
    p.add_argument("--clean", default="q")
    p.add_argument("--warm", type=int, default=30)
    p.add_argument("--warmwave", type=int, default=4)
    p.add_argument("--qsleep", type=int, default=0)
    p.add_argument("--red0", type=int, default=8)
    p.add_argument("--redstep", type=int, default=2)
    p.add_argument("--off", default="", help="diagnostics: v = no votes, c = no clears, r = result not read")
    p.add_argument("--spans", default="")
    p.add_argument("--split", action="store_true")
    p.add_argument("--pfback", type=int, default=0)
    p.add_argument("--nplain", type=int, default=0)
    p.add_argument("--wb", default="", help="minwave,wglimit,pos")
    p.add_argument("--thr", type=int, default=2)
    p.add_argument("--thrfrom", type=int, default=12)
    p.add_argument("--thrto", type=int, default=24)
    p.add_argument("--thrmask", default="0x55")
    p.add_argument("--zorder", default="8,0,9,1,10,2,11,3,12,4,13,5,14,6,15,7")
    o = p.parse_args()
    global NAGN, SPANS, NVOTE_WG
    NVOTE_WG = o.nvote
    NAGN = o.nagn
    if NAGN == 6:
        SPANS = [(0, 0), (0, 1), (1, 0), (1, 1), (2, 0), (2, 1),
                 (3, 0), (3, 1), (4, 0), (4, 1), (5, 0), (5, 1), (6, 0), (6, 1), (7, 0), (7, 1)]
        if o.zorder == p.get_default("zorder"):
            o.zorder = "6,0,7,1,8,2,9,3,10,4,11,5,12,13,14,15"
    if o.spans:
        SPANS = [(int(v[0]), int(v[1])) for v in o.spans.split(",")]
        assert sorted(SPANS) == [(a, b) for a in range(8) for b in range(2)]
    g = G(o)
    g.build()
    open(o.o, "w").write(g.text())


if __name__ == "__main__":
    main()
```

```python
import argparse

KNAME = "standalone__channel_attn_cbam__vision_kernel"

HEADER = """; Kernarg layout for this problem (48 bytes, ptrs only, base s[0:1]):
;   offset   0: d_in[0] x  shape=(1, 512, 512, 192) dtype=bfloat16 strides=(100663296, 196608, 384, 2) contiguous=True
;   offset   8: d_in[1] w1  shape=(192, 48) dtype=bfloat16 strides=(96, 2) contiguous=True
;   offset  16: d_in[2] w2  shape=(48, 192) dtype=bfloat16 strides=(384, 2) contiguous=True
;   offset  40: d_ws      402653184 bytes workspace (unspecified values whenever your kernel or launch list starts; a list's later launches find what earlier ones wrote)
"""

X_BYTES = 100663296
NWG = 256
NRED = 12
MiB = 1 << 20

L_RED = 0
L_H = 6144
L_DEC = 6336
L_S = 6400
L_F = 7168
L_W1 = 8192
L_W2 = L_W1 + 18432
L_SPILL = L_W2 + 18432
L_TOTAL = L_SPILL + 3 * 8192

WS_P = 0
WS_Q = 256 * 1536
WS_E = WS_Q + 4 * 49152
WS_USED = WS_E + 128
WS_PROBE = 640 * 1024
WS_STAMP = 1 << 20

S_X, S_OUT, S_WS, S_DBG, S_W = 4, 8, 12, 16, 20
S_WAVE, S_TY, S_SUB, S_OFF, S_MASK, S_CNT, S_T0, S_T1 = 28, 29, 30, 31, 32, 33, 34, 35
S_BASE, S_PM, S_P, S_T2 = 48, 49, 50, 51
S_AGN, S_RID, S_PO = 40, 42, 43
S_TG = [41, 47, 3, 0]
S_RET, S_HOOK, S_QC = 38, 46, 1
S_BASE1 = 45
NFB = 48
S_STAMP = 52
S_V = 24

D0 = 40
SPIN = 400000
V_L, V_G0, V_G1, V_AT = 0, 39, 38, 36

NAGN = 8
SPANS = [(0, 0), (0, 1), (1, 0), (1, 1), (2, 0), (2, 1), (3, 0), (3, 1),
         (6, 0), (4, 0), (6, 1), (4, 1), (7, 0), (5, 0), (7, 1), (5, 1)]
W_ROLE = 0
DBG_RES, DBG_TAL = 0, 128
NVOTE_WG = 32
RES_OK = (1 << 9) | (1 << 8)


def mask(pred):
    return sum(1 << z for z, s in enumerate(SPANS) if pred(z, s))


class G:
    def __init__(self, o):
        self.o = o
        self.lines = []

    def e(self, s=""):
        self.lines.append(("    " + s) if s and not s.endswith(":") else s)

    def stamp(self, idx, vote=False):
        if self.o.clk:
            if idx in (11, 12, 13):
                return
            m = {0: 11, 7: 12, 10: 13}.get(idx)
            if m:
                self.e(f"s_memtime s[{S_STAMP + 2 * m}:{S_STAMP + 2 * m + 1}]")
        if vote == "r":
            vote = False
        if self.o.vdiag and idx in (1, 2, 3, 6) and not vote:
            return
        if vote and not self.o.vdiag:
            return
        if self.o.stamps and not (self.o.trace and idx > 10):
            self.e(f"s_memrealtime s[{S_STAMP + 2 * idx}:{S_STAMP + 2 * idx + 1}]")

    def srd(self, d, lo, nbytes):
        e = self.e
        e(f"s_mov_b64 s[{d}:{d + 1}], s[{lo}:{lo + 1}]")
        e(f"s_mov_b32 s{d + 2}, {nbytes}")
        e(f"s_mov_b32 s{d + 3}, 0x20000")

    def span_off(self, z):
        return SPANS[z][0] * 12 * MiB + SPANS[z][1] * 49152

    def mem(self, j, fn):
        e = self.e
        z, u = j >> 1, j & 1
        if z < NAGN:
            off = (j // self.o.agnu) * (self.o.agnu * 3 * MiB - (self.o.skew if self.o.skewa else 0)) + (j % self.o.agnu) * 12288
            if off:
                e(f"s_add_u32 s{S_OFF}, s{S_AGN}, {off}")
                fn(f"v{V_L}", f"s{S_OFF}")
            else:
                fn(f"v{V_L}", f"s{S_AGN}")
            return
        if u == 0:
            e(f"s_bitcmp1_b32 s{S_PM}, {z}")
            e(f"s_cselect_b32 s{S_P}, 24576, 0")
        e(f"s_add_u32 s{S_OFF}, s{(S_BASE, S_BASE1)[SPANS[z][1]]}, {SPANS[z][0] * 12 * MiB - self.o.skew * (SPANS[z][0] * self.o.skewd + self.o.skewc) + 12288 * u}")
        at = 2 + u
        e(f"v_xad_u32 v{at}, v{(V_G0, V_G1)[u]}, s{S_P}, v{V_L}")
        if SPANS[z] == (7, 1):
            e(f"v_add_u32 v{at}, s{S_OFF}, v{at}")
            e(f"v_subrev_u32 v{5 - at}, s{S_X + 2}, v{at}")
            e(f"v_min_u32 v{at}, v{at}, v{5 - at}             ; past the end: wrap to the rows the shift skipped")
            fn(f"v{at}", "0")
        else:
            fn(f"v{at}", f"s{S_OFF}")

    def trace(self, kind, n):
        if self.o.trace == kind:
            if n > 0:
                self.e("s_waitcnt lgkmcnt(0)")
                self.e(f"s_mov_b32 s{76 + n - 1}, s92")
            self.e("s_memrealtime s[92:93]")

    def build(self):
        o, e = self.o, self.e
        NRACE = o.nrace
        ldf = (" " + o.ldflags) if o.ldflags else ""
        stf = (" " + o.stflags) if o.stflags else ""

        self.stamp(0)
        e("s_load_dwordx2 s[4:5], s[0:1], 0          ; x")
        e("s_load_dwordx2 s[8:9], s[0:1], 24         ; out")
        e("v_readfirstlane_b32 s%d, v0" % S_WAVE)
        e("v_and_b32 v1, 63, v0                      ; lane")
        pl = (o.piece // 16).bit_length() - 1
        e(f"v_bfe_u32 v2, v0, {pl}, {6 - pl}")
        e(f"v_mul_u32_u24 v2, {3 * o.piece}, v2")
        e(f"v_and_b32 v3, {(1 << pl) - 1}, v0")
        e("s_cmpk_ge_u32 s2, %d" % NWG)
        e("s_cbranch_scc1 L_end")
        if o.rolepos < 0:
            e(f"s_lshl2_add_u32 s{S_T1}, s{S_WAVE}, s2")
            e(f"s_cmp_le_u32 s{S_T1}, {NVOTE_WG}              ; wave 0 of the first workgroups has a side job")
            e("s_cbranch_scc1 L_role")
            e("L_stream:")
        e(f"s_lshr_b32 s{S_WAVE}, s{S_WAVE}, 6")
        e(f"s_mul_i32 s{S_SUB}, s{S_WAVE}, 43")
        e(f"s_lshr_b32 s{S_SUB}, s{S_SUB}, 7")
        e(f"s_mul_i32 s{S_T0}, s{S_SUB}, {3072 // o.piece - 3}")
        e(f"s_add_u32 s{S_T0}, s{S_T0}, s{S_WAVE}        ; sub*24 + wave % 3")
        e(f"s_lshl_b32 s{S_T0}, s{S_T0}, {pl + 4}")
        e("v_lshl_add_u32 v0, v3, 4, v2")
        e(f"v_add_u32 v{V_L}, s{S_T0}, v0               ; + sub*3072 + (wave % 3)*128")
        if o.qmap == 0:
            e(f"s_and_b32 s{S_T0}, s2, 3")
            e(f"s_bfe_u32 s{S_T1}, s2, 0x10002")
            e(f"s_lshl1_add_u32 s{S_T0}, s{S_T0}, s{S_T1}")
            e(f"s_and_b32 s{S_T1}, s2, -8")
            e(f"s_add_u32 s{S_T0}, s{S_T0}, s{S_T1}")
        else:
            e(f"s_and_b32 s{S_T0}, s2, 7")
            e(f"s_lshl_b32 s{S_T0}, s{S_T0}, 5")
            e(f"s_lshr_b32 s{S_T1}, s2, 3")
            e(f"s_add_u32 s{S_T0}, s{S_T0}, s{S_T1}")
        e(f"s_mul_i32 s{S_AGN}, s{S_T0}, {o.agnu * 12288}")
        e(f"s_mov_b32 s{S_X + 2}, {X_BYTES}")
        e(f"s_mov_b32 s{S_X + 3}, 0x20000")
        if o.rolepos >= 0:
            e(f"s_lshl_b32 s{S_T1}, s{S_WAVE}, 8")
            e(f"s_or_b32 s{S_T1}, s{S_T1}, s2")
        if o.sdiag:
            self.stamp(6, True)
        e("s_waitcnt lgkmcnt(0)")
        if o.sdiag:
            self.stamp(1, True)
        e(f"s_lshr_b32 s{S_T0}, s{S_OUT}, 7")
        e(f"s_mul_i32 s{S_T0}, s{S_T0}, 21              ; -43 mod 64")
        e(f"s_and_b32 s{S_T0}, s{S_T0}, 63")
        e(f"s_mulk_i32 s{S_T0}, 384")
        e(f"s_add_u32 s{S_AGN}, s{S_AGN}, s{S_T0}")
        assert W_ROLE == 0

        SUM, MAX, T = 4, 12, 20
        DEPTH = o.depth
        seq = []

        def issue(j):
            if j == o.rolepos:
                e(f"s_cmp_le_u32 s{S_T1}, {NVOTE_WG}              ; wave 0 of the first workgroups has a side job")
                e("s_cbranch_scc1 L_role")
                e("L_stream:")
            if o.cpf and j == o.cpfpos:
                e(f"s_sub_u32 s{S_T1}, s{S_T1}, 256")
                e(f"s_cmp_ge_u32 s{S_T1}, {o.cpf}")
                e("s_cbranch_scc1 L_nocpf")
                e("s_getpc_b64 s[20:21]")
                e("v_lshlrev_b32 v2, 7, v1")
                e("v_add_u32 v3, 8192, v2")
                e("v_min_u32 v3, L_codeend - L_nocpf, v3")
                e("global_load_dword v36, v2, s[20:21]")
                e("global_load_dword v37, v3, s[20:21]")
                e("L_nocpf:")
            if j == max(4, o.rolepos):
                e("s_load_dwordx4 s[36:39], s[0:1], 8        ; w1, w2")
                e(f"s_load_dwordx2 s[{S_DBG}:{S_DBG + 1}], s[0:1], 32")
                e(f"s_load_dwordx2 s[{S_WS}:{S_WS + 1}], s[0:1], 40")
                e(f"s_mov_b32 s{S_MASK}, 0xffff0000")
            if j == 2 * NAGN:
                e(f"s_mul_i32 s{S_TY}, s{S_SUB}, 3")
                e(f"s_sub_u32 s{S_TY}, s{S_WAVE}, s{S_TY}        ; ty = wave % 3")
                e(f"s_mov_b32 s{S_OUT + 2}, s{S_X + 2}")
                e(f"s_mov_b32 s{S_OUT + 3}, s{S_X + 3}")
                e(f"s_mov_b32 s{S_WS + 2}, {(2 << 20) if o.stamps else WS_USED}")
                e(f"s_mov_b32 s{S_WS + 3}, s{S_X + 3}")
                e(f"s_movk_i32 s{S_DBG + 2}, 256")
                e(f"s_mov_b32 s{S_DBG + 3}, s{S_X + 3}")
                e(f"s_movk_i32 s{S_T2}, 24576")
                e(f"v_bfe_u32 v{V_G0}, v{V_L}, 13, 1")
                e(f"v_add_u32 v{V_G1}, 12288, v{V_L}")
                e(f"v_bfe_u32 v{V_G1}, v{V_G1}, 13, 1")
                e(f"v_mul_u32_u24 v{V_G0}, s{S_T2}, v{V_G0}")
                e(f"v_mul_u32_u24 v{V_G1}, s{S_T2}, v{V_G1}")
                e(f"s_bfe_i32 s{S_PM}, s2, 0x10002              ; -side")
                e(f"s_lshr_b32 s{S_T0}, s{S_OUT}, 7")
                e(f"s_mul_i32 s{S_T0}, s{S_T0}, 21")
                e(f"s_and_b32 s{S_T0}, s{S_T0}, 63")
                e(f"s_mulk_i32 s{S_T0}, 384")
                e(f"s_and_b32 s{S_T1}, s2, 3")
                e(f"s_lshr_b32 s{S_BASE}, s2, 3")
                if o.qmap == 0:
                    e(f"s_lshl2_add_u32 s{S_BASE}, s{S_BASE}, s{S_T1}")
                else:
                    e(f"s_lshl_b32 s{S_T1}, s{S_T1}, 5")
                    e(f"s_add_u32 s{S_BASE}, s{S_BASE}, s{S_T1}")
                e(f"s_add_u32 s{S_BASE1}, s{S_BASE}, {o.qshift}")
                e(f"s_and_b32 s{S_BASE1}, s{S_BASE1}, 127")
                e(f"s_mul_i32 s{S_BASE}, s{S_BASE}, 98304")
                e(f"s_add_u32 s{S_BASE}, s{S_BASE}, s{S_T0}        ; the pair's first span of a step")
                e(f"s_mul_i32 s{S_BASE1}, s{S_BASE1}, 98304")
                e(f"s_add_u32 s{S_BASE1}, s{S_BASE1}, s{S_T0}")
                e(f"s_add_u32 s{S_BASE1}, s{S_BASE1}, 49152      ; its second span: 3 MiB on, where the memory stacks swap")
                h1 = mask(lambda z, s: s[1] == 1)
                e(f"s_add_u32 s{S_T2}, s{S_T2}, s{S_OUT}")
                e(f"s_add_u32 s{S_T0}, s{S_BASE}, s{S_T2}")
                e(f"s_bfe_i32 s{S_T1}, s{S_T0}, 0x10015")
                e(f"s_xor_b32 s{S_PM}, s{S_PM}, s{S_T1}")
                e(f"s_add_u32 s{S_T2}, s{S_BASE1}, s{S_T2}")
                e(f"s_xor_b32 s{S_T0}, s{S_T0}, s{S_T2}")
                e(f"s_bfe_i32 s{S_T0}, s{S_T0}, 0x10015")
                e(f"s_and_b32 s{S_T0}, s{S_T0}, {h1}")
                e(f"s_xor_b32 s{S_PM}, s{S_PM}, s{S_T0}")
                m1 = mask(lambda z, s: z >= NAGN and s[0] in (3, 4))
                z50 = SPANS.index((5, 0))
                z51 = SPANS.index((5, 1))
                dec = mask(lambda z, s: z >= NAGN)
                e(f"s_cmp_lt_u32 s{S_BASE}, {4 * MiB - 24576}")
                e(f"s_cselect_b32 s{S_T0}, {1 << z50}, 0")
                e(f"s_or_b32 s{S_T0}, s{S_T0}, {m1}")
                e(f"s_cmp_lt_u32 s{S_BASE1}, {4 * MiB - 24576}")
                e(f"s_cselect_b32 s{S_T1}, {1 << z51}, 0")
                e(f"s_or_b32 s{S_T0}, s{S_T0}, s{S_T1}            ; third 1")
                e(f"s_xor_b32 s{S_T1}, s{S_T0}, {dec}           ; third 2")
                per, pat = o.opp
                rep = sum(((pat >> (i % per)) & 1) << i for i in range(32))
                e(f"s_lshr_b32 s{S_P}, s2, 3")
                e(f"s_mul_i32 s{S_T2}, s{S_P}, {-(-256 // per)}")
                e(f"s_lshr_b32 s{S_T2}, s{S_T2}, 8")
                e(f"s_mul_i32 s{S_T2}, s{S_T2}, {per}")
                e(f"s_sub_u32 s{S_P}, s{S_P}, s{S_T2}             ; (b >> 3) % {per}")
                e(f"s_lshr_b32 s{S_P}, {rep}, s{S_P}")
                e(f"s_sub_u32 s{S_T2}, s{S_OUT}, s{S_X}")
                e(f"s_add_u32 s{S_T2}, s{S_T2}, 2048")
                e(f"s_bitcmp1_b32 s{S_T2}, 12")
                e(f"s_cselect_b32 s{S_P}, 0, s{S_P}")
                e(f"s_lshr_b32 s{S_T2}, s2, 3")
                e(f"s_sub_u32 s{S_RID}, s{S_T2}, {o.red0}")
                e(f"s_and_b32 s{S_PO}, s2, 7")
                e(f"s_lshl_b32 s{S_PO}, s{S_PO}, 5")
                e(f"s_add_u32 s{S_PO}, s{S_PO}, s{S_T2}")
                e(f"s_mulk_i32 s{S_PO}, 1536")
                e("s_waitcnt lgkmcnt(0)")
                self.stamp(11)
                e("s_barrier")
                e(f"s_load_dword s{S_T2}, s[{S_DBG}:{S_DBG + 1}], {DBG_RES}")
                e("s_waitcnt lgkmcnt(0)")
                e(f"s_andn2_b32 s{S_CNT}, {RES_OK}, s{S_T2}")
                e("s_cbranch_scc1 L_dpoll")
                e("L_decided:")
                for i in range(4):
                    e(f"s_bitcmp1_b32 s{S_T2}, {7 + 6 * i + 5}")
                    e(f"s_cselect_b32 s{S_V + i}, s{(S_T0, S_T1)[i >> 1]}, 0")
                e(f"s_or_b32 s{S_V}, s{S_V}, s{S_V + 2}")
                e(f"s_or_b32 s{S_V + 1}, s{S_V + 1}, s{S_V + 3}")
                e(f"s_xor_b32 s{S_V}, s{S_V}, s{S_V + 1}")
                e(f"s_and_b32 s{S_V}, s{S_V}, s{S_P}")
                e(f"s_xor_b32 s{S_V}, s{S_V}, s{S_V + 1}")
                e(f"s_xor_b32 s{S_PM}, s{S_PM}, s{S_V}")
                e(f"s_and_b32 s{S_TG[0]}, s{S_T2}, 15")
                e(f"s_bfe_u32 s{S_TG[1]}, s{S_T2}, 0x40004")
                e(f"s_xor_b32 s{S_TG[2]}, s{S_TG[0]}, 15")
                e(f"s_xor_b32 s{S_TG[3]}, s{S_TG[1]}, 15")
                e(f"s_lshr_b32 s{S_QC}, s{S_T2}, 10")
                e(f"s_and_b32 s{S_QC}, s{S_QC}, 4")
                e(f"s_xor_b32 s{S_QC}, s{S_QC}, s2             ; bits 2:0: the second-stage copy near this die")
                self.stamp(12)
            if j in o.xbar:
                e("s_barrier")
                if j == o.xbar[-1]:
                    self.stamp(2, "r")
            if j == o.warm and o.warmst:
                e(f"s_cmp_ge_u32 s{S_WAVE}, 2")
                e("s_cbranch_scc1 L_nowarm")
                for i in range(4):
                    e(f"v_mov_b32 v{20 + i}, 0")
                e(f"s_mul_i32 s{S_T0}, s{S_WAVE}, 768")
                e(f"v_lshl_add_u32 v3, v1, 4, s{S_T0}")
                e("s_mov_b32 exec_hi, 0xffff")
                e(f"buffer_store_dwordx4 v[20:23], v3, s[{S_WS}:{S_WS + 3}], s{S_PO} offen")
                e("s_mov_b64 exec, -1")
                e("L_nowarm:")
            if j == o.warm and not o.warmst:
                e(f"s_cmp_lg_u32 s{S_WAVE}, {o.warmwave}")
                e("s_cbranch_scc1 L_nowarm")
                e("v_lshlrev_b32 v3, 7, v1")
                e("s_mov_b64 exec, 0xfff")
                e(f"buffer_load_dword v37, v3, s[{S_WS}:{S_WS + 3}], s{S_PO} offen {o.warmfl}")
                e("s_mov_b64 exec, -1")
                if o.lpf == 2:
                    e(f"s_cmp_lg_u32 s{S_RID}, {NRED}")
                    e("s_cbranch_scc1 L_nowarm")
                    e("s_getpc_b64 s[20:21]")
                    e("v_min_u32 v3, L_end - L_nowarm, v3")
                    e("global_load_dword v37, v3, s[20:21]")
                e("L_nowarm:")
            r = D0 + 4 * j
            if o.thr and j == 10:
                e(f"s_getreg_b32 s{S_T0}, hwreg(HW_REG_XCC_ID, 0, 3)")
                e(f"s_lshr_b32 s{S_T0}, {o.thrmask}, s{S_T0}")
                e(f"s_and_b32 vcc_lo, s{S_T0}, 1")
                e("s_mov_b32 vcc_hi, 0")
            if o.cap and o.capfrom <= j < o.capto:
                e(f"s_waitcnt vmcnt({o.cap - 1})")
            if o.thr and o.thrfrom <= j < o.thrto:
                e(f"s_cbranch_vccz L_thr{j}")
                e(f"s_waitcnt vmcnt({o.thr - 1})")
                e(f"L_thr{j}:")
            self.mem(j, lambda va, so: e(f"buffer_load_dwordx4 v[{r}:{r + 3}], {va}, s[{S_X}:{S_X + 3}], {so} offen{ldf}"))
            seq.append(j)
            if o.sdiag and j == 0:
                self.stamp(2, True)
            if o.sdiag and j == 2:
                e("s_waitcnt vmcnt(2)")
                self.stamp(3, True)
            if j & 1:
                self.trace("ld", j >> 1)

        def wait_for(j):
            e(f"s_waitcnt vmcnt({len(seq) - 1 - seq.index(j)})")

        nxt = 0
        for jj in range(16):
            while nxt < 32 and nxt < max(2 * jj + DEPTH + 2, 2 * NAGN + 2 if o.prebar else 0):
                issue(nxt)
                nxt += 1
                if nxt == 32:
                    self.stamp(1)
            a, b = D0 + 8 * jj, D0 + 8 * jj + 4
            if jj == 15:
                e("v_and_b32 v2, 7, v1")
                e("v_lshlrev_b32 v2, 5, v2                   ; (l&7)*32")
                e("v_lshrrev_b32 v3, 4, v1")
                e("v_lshl_add_u32 v2, v3, 3, v2              ; + (l>>4)*8")
                e("v_bfe_u32 v3, v1, 3, 1")
                e("v_mul_u32_u24 v3, 768, v3")
                e(f"s_mul_i32 s{S_T0}, s{S_SUB}, 1536")
                e(f"s_lshl_b32 s{S_T1}, s{S_TY}, 8")
                e(f"s_add_u32 s{S_T0}, s{S_T0}, s{S_T1}")
                e(f"v_add3_u32 v2, v2, v3, s{S_T0}")
                e(f"s_mul_i32 s{S_T0}, s{S_WAVE}, 768")
                e(f"v_lshl_add_u32 v3, v1, 4, s{S_T0}")
                for r in (a, b):
                    wait_for((r - D0) // 4)
                    if r == b:
                        self.stamp(3)
                    for i in range(4):
                        t = T + 2 * i
                        e(f"v_lshlrev_b32 v{t}, 16, v{r + i}")
                        e(f"v_and_b32 v{t + 1}, s{S_MASK}, v{r + i}")
                    for i in range(8):
                        e(f"v_max_f32 v{MAX + i}, v{MAX + i}, v{T + i}")
                    for i in range(4):
                        t, s = T + 2 * i, SUM + 2 * i
                        e(f"v_pk_add_f32 v[{s}:{s + 1}], v[{s}:{s + 1}], v[{t}:{t + 1}]")
                continue
            wait_for(2 * jj + 1)
            if jj == 0 and not o.xbar:
                self.stamp(2)
            for i in range(4):
                t = T + 4 * i
                e(f"v_lshlrev_b32 v{t}, 16, v{a + i}")
                e(f"v_and_b32 v{t + 1}, s{S_MASK}, v{a + i}")
                e(f"v_lshlrev_b32 v{t + 2}, 16, v{b + i}")
                e(f"v_and_b32 v{t + 3}, s{S_MASK}, v{b + i}")
            for i in range(4):
                t = T + 4 * i
                s, m = SUM + 2 * i, MAX + 2 * i
                if jj == 0:
                    e(f"v_max_f32 v{m}, v{t}, v{t + 2}")
                    e(f"v_max_f32 v{m + 1}, v{t + 1}, v{t + 3}")
                    e(f"v_pk_add_f32 v[{s}:{s + 1}], v[{t}:{t + 1}], v[{t + 2}:{t + 3}]")
                else:
                    e(f"v_max3_f32 v{m}, v{m}, v{t}, v{t + 2}")
                    e(f"v_max3_f32 v{m + 1}, v{m + 1}, v{t + 1}, v{t + 3}")
                    e(f"v_pk_add_f32 v[{t}:{t + 1}], v[{t}:{t + 1}], v[{t + 2}:{t + 3}]")
            if jj:
                for i in range(4):
                    t = T + 4 * i
                    s = SUM + 2 * i
                    e(f"v_pk_add_f32 v[{s}:{s + 1}], v[{s}:{s + 1}], v[{t}:{t + 1}]")

        for base in (MAX, SUM):
            for i in range(4):
                e(f"v_permlane32_swap_b32 v{base + i}, v{base + 4 + i}")
        for i in range(4):
            e(f"v_max_f32 v{MAX + i}, v{MAX + i}, v{MAX + 4 + i}")
        for i in range(4):
            e(f"v_add_f32 v{SUM + i}, v{SUM + i}, v{SUM + 4 + i}")
        for i in range(2):
            e(f"v_permlane16_swap_b32 v{MAX + i}, v{MAX + 2 + i}")
        for i in range(2):
            e(f"v_permlane16_swap_b32 v{SUM + i}, v{SUM + 2 + i}")
        for i in range(2):
            e(f"v_add_f32 v{SUM + i}, v{SUM + i}, v{SUM + 2 + i}")
        for i in range(2):
            e(f"v_max_f32 v{MAX + i}, v{MAX + i}, v{MAX + 2 + i}")
        e(f"s_cmp_ge_u32 s{S_WAVE}, 2")
        for i in range(2):
            e(f"v_add_f32_dpp v{SUM + i}, v{SUM + i}, v{SUM + i} row_ror:8 row_mask:0xf bank_mask:0x3")
        for i in range(2):
            e(f"v_max_f32_dpp v{SUM + i}, v{MAX + i}, v{MAX + i} row_ror:8 row_mask:0xf bank_mask:0xc")
        e(f"ds_write_b64 v2, v[{SUM}:{SUM + 1}] offset:{L_RED}")
        e("s_waitcnt lgkmcnt(0)")
        e("s_barrier")
        self.stamp(4)
        e("s_cbranch_scc1 L_nopub")

        e("s_mov_b32 exec_hi, 0xffff")
        for k in range(4):
            e(f"ds_read_b128 v[{4 + 4 * k}:{7 + 4 * k}], v3 offset:{L_RED + 1536 * k}")
        e(f"s_cmp_eq_u32 s{S_WAVE}, 0")
        e(f"s_cselect_b64 s[{S_W}:{S_W + 1}], s[36:37], s[38:39]")
        e("s_cbranch_scc0 L_pubmax")
        e("s_waitcnt lgkmcnt(2)")
        e("v_pk_add_f32 v[4:5], v[4:5], v[8:9]")
        e("v_pk_add_f32 v[6:7], v[6:7], v[10:11]")
        e("s_waitcnt lgkmcnt(0)")
        e("v_pk_add_f32 v[12:13], v[12:13], v[16:17]")
        e("v_pk_add_f32 v[14:15], v[14:15], v[18:19]")
        e("v_pk_add_f32 v[4:5], v[4:5], v[12:13]")
        e("v_pk_add_f32 v[6:7], v[6:7], v[14:15]")
        e("s_branch L_pub")
        e("L_pubmax:")
        e("s_waitcnt lgkmcnt(1)")
        for i in range(4):
            e(f"v_max3_f32 v{4 + i}, v{4 + i}, v{8 + i}, v{12 + i}")
        e("s_waitcnt lgkmcnt(0)")
        for i in range(4):
            e(f"v_max_f32 v{4 + i}, v{4 + i}, v{16 + i}")
        e("L_pub:")
        for i in range(4):
            e(f"v_and_or_b32 v{4 + i}, v{4 + i}, -16, s{S_TG[i]}")
        e(f"buffer_store_dwordx4 v[4:7], v3, s[{S_WS}:{S_WS + 3}], s{S_PO} offen{' sc1' if o.psc1 else ' nt' if o.pnt else ''}")
        e("s_mov_b64 exec, -1")
        e(f"s_movk_i32 s{S_W + 2}, 18432")
        e(f"s_mov_b32 s{S_W + 3}, 0x20000")
        e(f"s_mul_i32 s{S_T0}, s{S_WAVE}, 18432")
        e(f"s_addk_i32 s{S_T0}, {L_W1}")
        e(f"s_mov_b32 s{S_T1}, 0")
        e("v_lshlrev_b32 v2, 4, v1")
        e("L_wloop:")
        e(f"s_add_u32 m0, s{S_T0}, s{S_T1}")
        e(f"s_cmp_ge_u32 s{S_RID}, {NRED}")
        for k in range(3):
            e(f"buffer_load_dwordx4 v2, s[{S_W}:{S_W + 3}], s{S_T1} offen offset:{k * 1024} lds")
        e("s_cbranch_scc1 L_wnext")
        e(f"s_waitcnt vmcnt({o.wpace})")
        e("L_wnext:")
        e(f"s_addk_i32 s{S_T1}, 3072")
        e(f"s_cmp_lt_u32 s{S_T1}, 18432")
        e("s_cbranch_scc1 L_wloop")
        e("L_nopub:")

        B2 = 28
        V_H0, V_H1, V_SW, V_SR, V_Q = 24, 25, 26, 27, 37
        SP0 = 136
        A1 = 144
        B1 = [4, 8, 12, 16, 136, 140]
        e("v_lshrrev_b32 v20, 4, v1                  ; q")
        e(f"s_cmp_lt_u32 s{S_WAVE}, 3")
        e("s_cbranch_scc1 L_spill")
        e(f"s_cmp_ge_u32 s{S_RID}, {NRED}")
        e("s_cbranch_scc1 L_barw")
        e(f"s_cmp_lg_u32 s{S_WAVE}, 3")
        e("s_cbranch_scc1 L_barw")

        def clean(lbl, d, a):
            e(f"s_cmp_lg_u32 s{S_WAVE}, 3")
            e(f"s_cbranch_scc1 {lbl}")
            if o.cw:
                e(f"v_mov_b32 v{d}, 0")
                e(f"v_lshlrev_b32 v{a}, {o.cw}, v1")
                e(f"s_mov_b64 exec, {(1 << (1536 >> o.cw)) - 1}")
                if o.cld:
                    e(f"buffer_atomic_or v{d}, v{a}, s[{S_WS}:{S_WS + 3}], s{S_PO} offen")
                else:
                    e(f"buffer_store_dword v{d}, v{a}, s[{S_WS}:{S_WS + 3}], s{S_PO} offen sc1")
                e("s_mov_b64 exec, -1")
                return
            for i in range(4):
                e(f"v_mov_b32 v{d + i}, 0")
            e(f"v_lshlrev_b32 v{a}, 4, v1")
            e("s_mov_b32 exec_hi, 0xffff")
            e(f"buffer_store_dwordx4 v[{d}:{d + 3}], v{a}, s[{S_WS}:{S_WS + 3}], s{S_PO} offen sc1")
            e(f"buffer_store_dwordx4 v[{d}:{d + 3}], v{a}, s[{S_WS}:{S_WS + 3}], s{S_PO} offen offset:768 sc1")
            e("s_mov_b64 exec, -1")

        e("v_lshrrev_b32 v2, 3, v1")
        e("v_mul_u32_u24 v2, 1536, v2")
        e("v_and_b32 v3, 7, v1")
        e(f"v_lshl_add_u32 v{V_Q}, v3, 4, v2")
        e(f"s_and_b32 s{S_T0}, s2, 7")
        e(f"s_mul_i32 s{S_V}, s{S_T0}, {32 * 1536}")
        e(f"s_lshl_b32 s{S_T1}, s{S_RID}, 7")
        e(f"s_add_u32 s{S_V}, s{S_V}, s{S_T1}")
        for k in range(1, 4):
            e(f"s_add_u32 s{S_V + k}, s{S_V}, {k * 8 * 1536}")
        e(f"s_lshl_b32 s{S_T0}, s{S_T0}, 8              ; group*256")
        e(f"s_lshr_b32 s{S_T1}, s{S_RID}, 2")
        e(f"s_lshl2_add_u32 s{S_T1}, s{S_T1}, s{S_RID}")
        e(f"s_lshl_b32 s{S_T1}, s{S_T1}, 11")
        e(f"s_add_u32 s{S_T1}, s{S_T1}, s{S_T0}")
        for k in range(o.qcopy // 2):
            e(f"s_add_u32 s{S_W + k}, s{S_T1}, {WS_Q + k * 49152}")
        e("v_and_b32 v2, 15, v1")
        e("v_lshlrev_b32 v3, 2, v2")
        e("v_bfe_u32 v2, v1, 4, 1")
        e("v_lshl_add_u32 v3, v2, 7, v3")
        e("v_lshrrev_b32 v2, 5, v1")
        e("v_lshl_add_u32 v3, v2, 13, v3             ; (l>>5)*8192 + ((l>>4)&1)*128 + (l&15)*4")
        e(f"s_lshl4_add_u32 s{S_T0}, s{S_TG[1]}, s{S_TG[0]}")
        e(f"s_xor_b32 s{S_CNT}, s{S_T0}, 0xff")
        e(f"s_lshl_b32 s{S_CNT}, s{S_CNT}, 8")
        e(f"s_or_b32 s{S_T0}, s{S_T0}, s{S_CNT}")
        e("v_and_b32 v2, 12, v3")
        e(f"v_bfe_u32 v23, s{S_T0}, v2, 4")
        e(f"s_mov_b32 s{S_CNT}, {NFB}")
        e(f"s_mov_b32 s{S_HOOK}, 0")
        e("L_rpoll:")
        for k in range(4):
            e(f"buffer_load_dwordx4 v[{4 + 4 * k}:{7 + 4 * k}], v{V_Q}, s[{S_WS}:{S_WS + 3}], s{S_V + k} offen sc1")
        e(f"s_sub_u32 s{S_CNT}, s{S_CNT}, 1")
        e("s_cbranch_scc1 L_rlong")
        for k in range(4):
            e(f"s_waitcnt vmcnt({3 - k})")
            r = 4 + 4 * k
            for i in range(4):
                e(f"v_xor_b32 v{r + i}, s{S_TG[i]}, v{r + i}" + ("            ; a matching tag leaves four zero bits" if k + i == 0 else ""))
            if k == 0:
                e(f"v_or3_b32 v21, v{r}, v{r + 1}, v{r + 2}")
                e(f"v_or_b32 v21, v21, v{r + 3}")
            elif k < 3:
                e(f"v_or3_b32 v21, v21, v{r}, v{r + 1}")
                e(f"v_or3_b32 v21, v21, v{r + 2}, v{r + 3}")
            else:
                e(f"v_or3_b32 v21, v21, v{r}, v{r + 1}")
                e(f"v_or_b32 v22, v{r + 2}, v{r + 3}")
        e("v_bitop3_b32 v21, v21, v22, 15 bitop3:0xa8          ; (a | b) & c")
        e("v_cmp_ne_u32 vcc, 0, v21")
        e("s_wqm_b64 exec, vcc                       ; 64-byte units still waiting poll again")
        e("s_cbranch_scc1 L_rpoll")
        e("L_rgot:")
        e("s_mov_b64 exec, -1")
        self.stamp(1, "r")
        e(f"s_cmp_ge_u32 s{S_RID}, 6")
        e("s_cbranch_scc1 L_rmax")
        for kind in (0, 1):
            op = "v_add_f32" if kind == 0 else "v_max_f32"
            if kind == 1:
                e("L_rmax:")
                for i in range(4):
                    e(f"v_max3_f32 v{4 + i}, v{4 + i}, v{8 + i}, v{12 + i}")
                for i in (0, 2, 1, 3):
                    e(f"v_max_f32 v{4 + i}, v{4 + i}, v{16 + i}")
            else:
                e("v_pk_add_f32 v[4:5], v[4:5], v[8:9]")
                e("v_pk_add_f32 v[6:7], v[6:7], v[10:11]")
                e("v_pk_add_f32 v[12:13], v[12:13], v[16:17]")
                e("v_pk_add_f32 v[14:15], v[14:15], v[18:19]")
                e("v_pk_add_f32 v[4:5], v[4:5], v[12:13]")
                e("v_pk_add_f32 v[6:7], v[6:7], v[14:15]")
                e("s_nop 0")
            e(f"{op}_dpp v4, v4, v4 row_ror:8 row_mask:0xf bank_mask:0x3")
            if kind == 0:
                e(f"{op}_dpp v5, v5, v5 row_ror:8 row_mask:0xf bank_mask:0x3")
                e(f"{op}_dpp v4, v6, v6 row_ror:8 row_mask:0xf bank_mask:0xc")
            else:
                e(f"{op}_dpp v4, v6, v6 row_ror:8 row_mask:0xf bank_mask:0xc")
                e(f"{op}_dpp v5, v5, v5 row_ror:8 row_mask:0xf bank_mask:0x3")
            e(f"{op}_dpp v5, v7, v7 row_ror:8 row_mask:0xf bank_mask:0xc")
            e("s_nop 1")
            e("v_permlane16_swap_b32 v4, v5")
            e(f"{op} v4, v4, v5")
            e("v_mov_b32 v5, v4")
            e("s_nop 1")
            e("v_permlane32_swap_b32 v4, v5")
            e(f"{op} v4, v4, v5                        ; lane 16a+8b+c: element 2b+a of piece c")
            if kind == 0:
                e("s_branch L_rpub")
        e("L_rpub:")
        e("v_and_or_b32 v4, v4, -16, v23")
        for k in range(o.qcopy // 2):
            e(f"buffer_store_dword v4, v3, s[{S_WS}:{S_WS + 3}], s{S_W + k} offen sc1")
            if k == 0:
                self.stamp(9)
        if o.clean == "r":
            for i in range(4):
                e(f"v_mov_b32 v{8 + i}, 0")
            for k in range(4):
                e(f"buffer_store_dwordx4 v[8:11], v{V_Q}, s[{S_WS}:{S_WS + 3}], s{S_V + k} offen sc1")
        e("s_barrier")
        e("s_branch L_afterw")

        if o.pad:
            e(f".fill {o.pad // 4}, 4, 0xbf800000")
        e("L_spill:")
        e(f"s_lshl_b32 s{S_T0}, s{S_WAVE}, 13")
        e(f"v_lshl_add_u32 v{V_AT}, v1, 4, s{S_T0}")
        for k in range(8):
            e(f"ds_write_b128 v{V_AT}, v[{SP0 + 4 * k}:{SP0 + 4 * k + 3}] offset:{L_SPILL + 1024 * k}")
        e("L_barw:")
        if o.lpf == 1:
            e(f"s_cmp_lg_u32 s{S_WAVE}, 4")
            e("s_cbranch_scc1 L_nolpf")
            e("s_getpc_b64 s[20:21]")
            e("v_lshlrev_b32 v2, 7, v1")
            e("v_min_u32 v2, L_end - L_nolpf, v2")
            e("global_load_dword v4, v2, s[20:21]")
            e("L_nolpf:")
        e("s_waitcnt vmcnt(0) lgkmcnt(0)")
        e("s_barrier")
        e("L_afterw:")
        e("v_bfe_u32 v3, v1, 2, 2")
        e("v_lshl_add_u32 v21, v20, 3, v3            ; row")
        e("v_and_b32 v22, 15, v21                    ; row of the half step (q&1)")
        e("v_and_b32 v3, 3, v1")
        e(f"s_lshl_b32 s{S_T2}, s{S_WAVE}, 5")
        e(f"v_lshl_add_u32 v23, v3, 3, s{S_T2}          ; column bytes")
        e("v_mov_b32 v3, 384")
        e("v_mad_u32_u24 v2, v21, v3, v23")
        e("v_mad_u32_u24 v22, v22, v3, v23")
        e(f"ds_read_b64_tr_b16 v[{B2}:{B2 + 1}], v2 offset:{L_W2}")
        e(f"ds_read_b64_tr_b16 v[{B2 + 2}:{B2 + 3}], v2 offset:{L_W2 + 4 * 384}")
        e(f"ds_read_b64_tr_b16 v[{B2 + 4}:{B2 + 5}], v22 offset:{L_W2 + 32 * 384}")
        e(f"ds_read_b64_tr_b16 v[{B2 + 6}:{B2 + 7}], v22 offset:{L_W2 + 36 * 384}")
        e("v_and_b32 v2, 1, v1")
        e("v_mul_u32_u24 v22, 96, v2")
        e(f"v_lshl_add_u32 v{V_H0}, v20, 4, v22")
        e("v_and_b32 v3, 1, v20")
        e(f"v_lshl_add_u32 v{V_H1}, v3, 4, v22")
        e(f"s_lshl_b32 s{S_T0}, s{S_WAVE}, 6")
        e(f"v_lshl_add_u32 v{V_SW}, v1, 2, s{S_T0}")
        if o.mul == "dot":
            e("v_mov_b32 v3, 0")
            e("s_mov_b64 exec, 0xffff")
            e(f"ds_write_b32 v{V_SW}, v3 offset:{L_S}")
            e("s_mov_b64 exec, -1")
            e(f"v_lshl_add_u32 v{V_SW}, v2, 1, v{V_SW}")
        e("v_and_b32 v3, 7, v1")
        e(f"s_lshl_b32 s{S_T0}, s{S_TY}, 8")
        e(f"v_lshl_add_u32 v{V_SR}, v3, 5, s{S_T0}")
        e("s_waitcnt lgkmcnt(0)")
        e("s_mov_b32 exec_lo, 0")
        for i in range(4):
            e(f"v_mov_b32 v{B2 + 4 + i}, 0")
        e("s_mov_b64 exec, -1")
        e(f"s_cmp_ge_u32 s{S_WAVE}, 3")
        e("s_cbranch_scc1 L_noa1")
        e("v_mov_b32 v3, 96")
        e("v_mad_u32_u24 v2, v21, v3, v23")
        for s in range(6):
            for h in range(2):
                r = A1 + 4 * s + 2 * h
                e(f"ds_read_b64_tr_b16 v[{r}:{r + 1}], v2 offset:{L_W1 + s * 3072 + h * 384}")
        e("L_noa1:")
        e(f"v_lshl_add_u32 v3, v20, 3, v22")
        e(f"v_add_u32 v3, s{S_T2}, v3")
        e("v_lshlrev_b32 v2, 2, v22")
        e("v_lshl_add_u32 v2, v20, 4, v2")
        e("v_and_b32 v8, 1, v1")
        e("v_lshlrev_b32 v8, 4, v8")
        e("v_lshl_add_u32 v8, v20, 2, v8")
        e("v_and_b32 v9, 2, v1")
        e("v_bfe_u32 v10, v1, 2, 1")
        e("v_add3_u32 v8, v8, v9, v10")
        e(f"v_add_lshl_u32 v23, v8, s{S_T2}, 1")
        e("v_lshrrev_b32 v8, 2, v1")
        e("v_lshlrev_b32 v8, 7, v8")
        e("v_and_b32 v9, 3, v1")
        e(f"v_lshl_add_u32 v{V_Q}, v9, 4, v8")
        e(f"s_and_b32 s{S_T0}, s{S_QC}, 4")
        if o.qcopy > 2:
            e(f"s_and_b32 s{S_CNT}, s{S_QC}, {o.qcopy // 2 - 1}")
            e(f"s_mul_i32 s{S_CNT}, s{S_CNT}, 24")
            e(f"s_add_u32 s{S_T0}, s{S_T0}, s{S_CNT}")
        e(f"s_lshr_b32 s{S_T1}, s{S_WAVE}, 2")
        e(f"s_lshl2_add_u32 s{S_T1}, s{S_T1}, s{S_WAVE}")
        e(f"s_add_u32 s{S_T1}, s{S_T1}, s{S_T0}")
        e(f"s_lshl_b32 s{S_T1}, s{S_T1}, 11")
        e(f"s_add_u32 s{S_T1}, s{S_T1}, {WS_Q}")
        if o.clean in ("q", "p"):
            e(f"v_mov_b32 v19, s{S_TG[0]}")
            e(f"s_lshl_b32 s{S_V}, s{S_WAVE}, 7")
            e(f"s_add_u32 s{S_V}, s{S_V}, s{S_PO}")
        e(f"s_mov_b32 s{S_CNT}, {NFB}")
        e(f"s_mov_b32 s{S_HOOK}, 0")
        e(f"s_cmp_ge_u32 s{S_WAVE}, 6")
        e("s_cbranch_scc1 L_qpoll1")

        for kind in (0, 1):
            op = "v_add_f32" if kind == 0 else "v_max_f32"
            e(f"L_qpoll{kind}:")
            e(f"buffer_load_dwordx4 v[4:7], v{V_Q}, s[{S_WS}:{S_WS + 3}], s{S_T1} offen sc1")
            e(f"s_sub_u32 s{S_CNT}, s{S_CNT}, 1")
            e(f"s_cbranch_scc1 L_qlong{kind}")
            if o.qsleep:
                e(f"s_sleep {o.qsleep}")
            e("s_waitcnt vmcnt(0)")
            for i in range(4):
                e(f"v_xor_b32 v{4 + i}, s{S_TG[i]}, v{4 + i}")
            e("v_or3_b32 v21, v4, v5, v6")
            e("v_bitop3_b32 v21, v21, v7, 15 bitop3:0xa8")
            e("v_cmp_ne_u32 vcc, 0, v21")
            e("s_wqm_b64 exec, vcc")
            e(f"s_cbranch_scc1 L_qpoll{kind}")
            e(f"L_qgot{kind}:")
            if o.clean == "p":
                e("s_mov_b64 exec, 1")
                e(f"buffer_store_dword v19, off, s[{S_WS}:{S_WS + 3}], s{S_V} sc1")
            e("s_mov_b64 exec, -1")
            self.stamp(5)
            e("v_permlane32_swap_b32 v4, v6")
            e("v_permlane32_swap_b32 v5, v7")
            e(f"{op} v4, v4, v6")
            e(f"{op} v5, v5, v7")
            e("s_nop 1")
            e("v_permlane16_swap_b32 v4, v5")
            e(f"{op} v4, v4, v5")
            e(f"s_cmp_ge_u32 s{S_WAVE}, 3")
            e("s_nop 0")
            e(f"{op}_dpp v4, v4, v4 row_ror:8 row_mask:0xf bank_mask:0xf")
            if kind == 0:
                e("v_mul_f32 v4, 0x36800000, v4              ; 1/262144")
            e("v_cvt_pk_bf16_f32 v4, v4, v4")
            e(f"ds_write_b16 v23, v4 offset:{L_F}")
            if o.clean == "q":
                e("s_mov_b64 exec, 1")
                e(f"buffer_store_dword v19, off, s[{S_WS}:{S_WS + 3}], s{S_V} sc1")
                e("s_mov_b64 exec, -1")
            e("s_waitcnt lgkmcnt(0)")
            e("s_barrier")
            if kind == 0:
                e("s_cbranch_scc0 L_mlp1")
                if o.clean == "f":
                    clean("L_join", 16, 12)
            e("s_branch L_join")

        e("L_mlp1:")
        for s in range(6):
            e(f"ds_read_b128 v[{B1[s]}:{B1[s] + 3}], v2 offset:{L_F + 64 * s}")
        for s in range(6):
            c = "0" if s == 0 else "v[20:23]"
            b = B1[s]
            e(f"s_waitcnt lgkmcnt({5 - s})")
            e(f"v_mfma_f32_16x16x32_bf16 v[20:23], v[{A1 + 4 * s}:{A1 + 4 * s + 3}], v[{b}:{b + 3}], {c}")
        e("s_nop 3")
        e("s_mov_b32 exec_lo, 0x00030003")
        e("s_mov_b32 exec_hi, 0x00030003")
        e("s_nop 1")
        for i in range(4):
            e(f"v_maximum3_f32 v{20 + i}, v{20 + i}, 0, 0")
        e("v_cvt_pk_bf16_f32 v20, v20, v21")
        e("v_cvt_pk_bf16_f32 v21, v22, v23")
        e(f"ds_write_b64 v3, v[20:21] offset:{L_H}")
        e("s_mov_b64 exec, -1")
        e("s_waitcnt lgkmcnt(0)")

        e("L_join:")
        e("s_barrier")
        self.stamp(6)
        e(f"ds_read_b128 v[4:7], v{V_H0} offset:{L_H}")
        e(f"ds_read_b128 v[8:11], v{V_H1} offset:{L_H + 64}")
        e("s_waitcnt lgkmcnt(1)")
        e(f"v_mfma_f32_16x16x32_bf16 v[12:15], v[4:7], v[{B2}:{B2 + 3}], 0")
        e("s_waitcnt lgkmcnt(0)")
        e(f"v_mfma_f32_16x16x32_bf16 v[12:15], v[8:11], v[{B2 + 4}:{B2 + 7}], v[12:15]")
        e("s_mov_b64 exec, 0xffff")
        e("s_nop 6")
        e("v_cvt_pk_bf16_f32 v12, 0, v12")
        e("v_cvt_pk_bf16_f32 v13, 0, v13")
        e("v_add_f32 v12, v12, v13")
        e("v_cvt_pk_bf16_f32 v12, 0, v12")
        e("v_mul_f32 v12, 0xbfb8aa3b, v12            ; -log2(e)")
        e("v_exp_f32 v12, v12")
        e("s_nop 0")
        e("v_add_f32 v12, 1.0, v12")
        e("v_rcp_f32 v12, v12")
        e("s_nop 0")
        if o.mul == "dot":
            e("v_cvt_pk_bf16_f32 v12, v12, v12")
            e(f"ds_write_b16 v{V_SW}, v12 offset:{L_S}")
        else:
            e("v_cvt_pk_bf16_f32 v12, 0, v12")
            e(f"ds_write_b32 v{V_SW}, v12 offset:{L_S}")
        e("s_mov_b64 exec, -1")
        e("s_waitcnt lgkmcnt(0)")
        e("s_barrier")
        e(f"ds_read_b128 v[4:7], v{V_SR} offset:{L_S}")
        e(f"ds_read_b128 v[8:11], v{V_SR} offset:{L_S + 16}")

        if o.stlim:
            e(f"s_cmp_lt_u32 s2, {o.stlim}")
            e(f"s_cselect_b32 s{S_OUT + 2}, s{S_OUT + 2}, 0")
        zorder = [int(v) for v in o.zorder.split(",")]
        assert sorted(zorder) == list(range(16))
        restored = False
        late = []

        def wbl2():
            wv, lim, pos = [int(v) for v in o.wb.split(",")]
            e(f"s_cmp_lt_u32 s{S_WAVE}, {wv}")
            e("s_cbranch_scc1 L_nowb")
            e(f"s_cmp_ge_u32 s2, {lim}")
            e("s_cbranch_scc1 L_nowb")
            if pos == 33:
                e("s_waitcnt vmcnt(0)")
            e("buffer_wbl2 sc1")
            e("L_nowb:")
        for n, j in enumerate([2 * z + u for z in zorder for u in (0, 1)]):
            a = D0 + 4 * j
            t0 = 12 + 8 * (n & 1)
            if a >= SP0 and not restored:
                assert n > 1
                e("s_waitcnt lgkmcnt(0)")
                restored = True
            md = o.mul
            for i in range(4 if md in ("pk", "mul", "u", "um") else 0):
                t = t0 + 2 * i
                e(f"v_lshlrev_b32 v{t}, 16, v{a + i}")
                e(f"v_and_b32 v{t + 1}, s{S_MASK}, v{a + i}")
            if n == 0:
                e("s_waitcnt lgkmcnt(0)")
                self.stamp(7)
            if o.al:
                e(f".p2align {o.al & 15}")
                if o.al >> 4:
                    e("s_nop 0")
            for i in range(4):
                t = t0 + 2 * i
                if md in ("pk", "um"):
                    e(f"v_pk_mul_f32 v[{t}:{t + 1}], v[{t}:{t + 1}], v[{4 + 2 * i}:{5 + 2 * i}]")
                if md == "mul":
                    e(f"v_mul_f32 v{t}, v{t}, v{4 + 2 * i}")
                    e(f"v_mul_f32 v{t + 1}, v{t + 1}, v{5 + 2 * i}")
                if md == "dot":
                    e(f"v_dot2_f32_bf16 v{t}, v{a + i}, v{4 + 2 * i}, 0")
                    e(f"v_dot2_f32_bf16 v{t + 1}, v{a + i}, v{5 + 2 * i}, 0")
            for i in range(4):
                t = t0 + 2 * i
                if md in ("pk", "mul", "dot"):
                    e(f"v_cvt_pk_bf16_f32 v{a + i}, v{t}, v{t + 1}")
                if md == "c":
                    e(f"v_cvt_pk_bf16_f32 v{a + i}, v{a + i}, v{a + (i ^ 1)}")
            def st(j=j, a=a, n=n):
                self.mem(j, lambda va, so: e(f"buffer_store_dwordx4 v[{a}:{a + 3}], {va}, s[{S_OUT}:{S_OUT + 3}], {so} offen{'' if n >= 32 - o.nplain else stf}"))
            if n < o.burst:
                st()
            else:
                late.append(st)
            if n == 31:
                for f in late:
                    f()
            if n + 1 in o.sbar:
                e("s_barrier")
            if o.sthr and n >= o.sthr:
                e(f"s_waitcnt vmcnt({o.sthr - 1})")
            if o.wb and int(o.wb.split(",")[2]) == n:
                wbl2()
            if n & 1:
                self.trace("st", n >> 1)
            if n == 1:
                e(f"s_cmp_ge_u32 s{S_WAVE}, 3")
                e("s_cbranch_scc1 L_norestore")
                for k in range(8):
                    e(f"ds_read_b128 v[{SP0 + 4 * k}:{SP0 + 4 * k + 3}], v{V_AT} offset:{L_SPILL + 1024 * k}")
                e("L_norestore:")
                if o.clean == "st":
                    clean("L_noclean", 28, 32)
                    e("L_noclean:")
        if o.clean == "e":
            clean("L_noclean", 28, 32)
            e("L_noclean:")
        if o.wb and int(o.wb.split(",")[2]) >= 32:
            wbl2()
        if o.stamps:
            self.stamp(8)
            e("s_waitcnt vmcnt(0)")
            self.stamp(10)
            if o.idleclk:
                e(f"s_cmp_lg_u32 s{S_WAVE}, 11")
                e("s_cbranch_scc1 L_noidle")
                for lbl, dur, m, r in (("a", o.idleclk, 1, 3), ("b", 2000, 2, 6)):
                    e("s_memrealtime s[96:97]")
                    e("s_waitcnt lgkmcnt(0)")
                    e(f"L_idle{lbl}:")
                    e("s_sleep 4")
                    e("s_memrealtime s[98:99]")
                    e("s_waitcnt lgkmcnt(0)")
                    e("s_sub_u32 s98, s98, s96")
                    e(f"s_cmp_lt_u32 s98, {dur}")
                    e(f"s_cbranch_scc1 L_idle{lbl}")
                    e(f"s_memtime s[{S_STAMP + 2 * m}:{S_STAMP + 2 * m + 1}]")
                    e(f"s_memrealtime s[{S_STAMP + 2 * r}:{S_STAMP + 2 * r + 1}]")
                e("L_noidle:")
            e("s_getreg_b32 s94, hwreg(HW_REG_XCC_ID)")
            e("s_getreg_b32 s95, hwreg(HW_REG_HW_ID)")
            e("s_waitcnt lgkmcnt(0)")
            e("v_mov_b32 v2, 0")
            for i in range(11 if o.trace else 14):
                e(f"v_writelane_b32 v2, s{S_STAMP + 2 * i}, {i}")
            e("v_writelane_b32 v2, s94, 14")
            e("v_writelane_b32 v2, s95, 15")
            e(f"s_mul_i32 s{S_T0}, s2, 12")
            e(f"s_add_u32 s{S_T0}, s{S_T0}, s{S_WAVE}")
            e(f"s_lshl_b32 s{S_T0}, s{S_T0}, 6")
            e(f"s_add_u32 s{S_T0}, s{S_T0}, {WS_STAMP}")
            e("v_mbcnt_lo_u32_b32 v3, -1, 0")
            e("v_lshlrev_b32 v3, 2, v3")
            e("s_mov_b64 exec, 0xffff")
            e(f"buffer_store_dword v2, v3, s[{S_WS}:{S_WS + 3}], s{S_T0} offen sc1")
            if o.trace:
                e("s_mov_b32 s91, s92")
                for i in range(16):
                    e(f"v_writelane_b32 v2, s{76 + i}, {i}")
                e(f"s_add_u32 s{S_T0}, s{S_T0}, {1 << 19}")
                e(f"buffer_store_dword v2, v3, s[{S_WS}:{S_WS + 3}], s{S_T0} offen sc1")
        if o.dbgptr:
            e("s_cmp_lg_u32 s2, 0")
            e("s_cbranch_scc1 L_nodp")
            e("s_mov_b64 exec, -1")
            e("v_mov_b32 v2, 0")
            for i, r in enumerate((4, 5, 8, 9, 12, 13, 16, 17, 0, 1)):
                e(f"v_writelane_b32 v2, s{r}, {i}")
            e("v_mbcnt_lo_u32_b32 v3, -1, 0")
            e("v_lshlrev_b32 v3, 2, v3")
            e("s_mov_b64 exec, 0x3ff")
            e(f"buffer_store_dword v2, v3, s[{S_DBG}:{S_DBG + 3}], 0 offen offset:8")
            e("L_nodp:")
        if o.probe:
            idx, K = [int(v) for v in o.probe.split(",")]
            if idx == -5:
                e("s_cmp_ge_u32 s2, 8")
                e("s_cbranch_scc1 L_end")
            elif idx == -2:
                e("s_getreg_b32 s94, hwreg(HW_REG_XCC_ID)")
                e("s_xor_b32 s94, s94, s2")
                e("s_and_b32 s94, s94, 7")
                e("s_cbranch_scc0 L_end")
            elif idx == -3:
                e("s_cmp_lg_u32 s2, 0")
                e("s_cbranch_scc1 L_end")
            else:
                e(f"s_cmp_lg_u32 s2, {o.pwg}")
                e("s_cbranch_scc1 L_end")
            e(f"s_cmp_lg_u32 s{S_WAVE}, {o.pwave}")
            e("s_cbranch_scc1 L_end")
            if idx == -5:
                e("s_mov_b32 s96, 0")
                e("L_sk:")
                e("s_sleep 100")
                e("s_add_u32 s96, s96, 1")
                e("s_cmp_lt_u32 s96, 4")
                e("s_cbranch_scc1 L_sk")
                e(f"s_mov_b32 s94, {WS_STAMP}")
                e(f"buffer_load_dword v4, off, s[{S_WS}:{S_WS + 3}], s94 sc1")
                e("s_waitcnt vmcnt(0)")
                e("v_readfirstlane_b32 s94, v4")
                e(f"s_sub_u32 s95, s{S_STAMP}, s94")
                e(f"s_mul_i32 s95, s95, {K - 1}")
                e("s_add_u32 s96, s95, 8000")
            elif idx == -4:
                c0, c1, r0, r1 = ((11, 12, 0, 7), (12, 13, 7, 10))[K]
                e(f"s_sub_u32 s94, s{S_STAMP + 2 * c1}, s{S_STAMP + 2 * c0}")
                e(f"s_sub_u32 s95, s{S_STAMP + 2 * r1}, s{S_STAMP + 2 * r0}")
                e("v_cvt_f32_u32 v4, s94")
                e("v_cvt_f32_u32 v5, s95")
                e("v_rcp_f32 v5, v5")
                e("s_nop 1")
                e("v_mul_f32 v4, v4, v5")
                e("v_mul_f32 v4, 0x44fa0000, v4")
                e("v_cvt_u32_f32 v4, v4")
                e("s_nop 1")
                e("v_readfirstlane_b32 s96, v4")
                e("s_sub_u32 s96, s96, 31000")
            elif idx <= -10:
                e(f"s_bfe_u32 s94, s{-idx - 10}, {(7 << 16)} + {K}")
                e("s_mul_i32 s96, s94, 200")
                e("s_add_u32 s96, s96, 5000")
            elif idx == -3:
                e("s_getreg_b32 s94, hwreg(HW_REG_XCC_ID)")
                e("s_and_b32 s94, s94, 7")
                e(f"s_mul_i32 s96, s94, {K}")
                e("s_add_u32 s96, s96, 5000")
            elif idx < 0:
                e(f"s_mov_b32 s96, {K}")
            else:
                e(f"s_sub_u32 s96, s{S_STAMP + 2 * idx}, s{S_STAMP + 2 * o.pref}")
                e(f"s_mul_i32 s96, s96, {K}")
                if o.pref:
                    e("s_add_u32 s96, s96, 5000")
            e("s_min_u32 s96, s96, 200000")
            e("L_probe:")
            e("s_memrealtime s[98:99]")
            e("s_waitcnt lgkmcnt(0)")
            e(f"s_sub_u32 s98, s98, s{S_STAMP}")
            e("s_cmp_lt_u32 s98, s96")
            e("s_cbranch_scc1 L_probe")
        e("L_end:")
        e("s_endpgm")

        e(".p2align 7")
        e("L_role:")
        e("s_load_dwordx4 s[44:47], s[0:1], 32")
        e(f"s_lshr_b32 s{S_V + 1}, s2, 3")
        e(f"s_and_b32 s{S_T1}, s2, 1")
        e(f"s_lshl1_add_u32 s{S_T1}, s{S_T1}, 1")
        e(f"s_mul_i32 s{S_T2}, s2, 0x104100")
        e(f"s_cmp_eq_u32 s2, {NVOTE_WG}")
        e("s_waitcnt lgkmcnt(0)")
        e("s_cbranch_scc1 L_tag")
        e(f"s_sub_u32 s{S_T0}, s{S_OUT}, s{S_X}")
        e(f"s_addk_i32 s{S_T0}, 2048")
        e(f"s_bitcmp1_b32 s{S_T0}, 12")
        e(f"s_cselect_b32 s{S_V}, {o.quorum}, {o.quorum4}")
        e(f"s_cselect_b32 s{S_V + 2}, s{S_V + 1}, 1")
        e(f"s_cmp_eq_u32 s{S_V + 2}, 2")
        e(f"s_cselect_b32 s{S_V + 1}, s{S_T1}, s{S_V + 1}")
        e(f"s_bitcmp1_b32 s{S_V + 1}, 0")
        e(f"s_cselect_b64 s[{S_W}:{S_W + 1}], s[8:9], s[4:5]")
        e(f"s_lshr_b32 s{S_T1}, s{S_V + 1}, 1")
        e(f"s_lshl_b32 s{S_T1}, 0x2000000, s{S_T1}")
        e(f"s_add_u32 s{S_T2}, s{S_T2}, s{S_T1}")
        e(f"s_lshr_b32 s{S_T0}, s{S_OUT}, 7")
        e(f"s_mul_i32 s{S_T0}, s{S_T0}, 21")
        e(f"s_and_b32 s{S_T0}, s{S_T0}, 63")
        e(f"s_mulk_i32 s{S_T0}, 384")
        e(f"s_add_u32 s{S_T0}, s{S_T0}, s{S_T2}")
        e(f"s_cmp_lg_u32 s{S_V + 2}, 0")
        e(f"s_cselect_b32 s{S_V + 3}, s{S_OUT}, 0")
        e("s_cbranch_scc1 L_notws")
        e(f"s_mov_b64 s[{S_W}:{S_W + 1}], s[46:47]")
        e(f"s_and_b32 s{S_T0}, s{S_T2}, 0xfffff")
        e(f"s_add_u32 s{S_T0}, s{S_T0}, {WS_PROBE}")
        e("L_notws:")
        e(f"s_add_u32 s{S_T1}, s{S_T0}, 8192")
        self.stamp(1, True)
        e(f"s_load_dword s42, s[{S_W}:{S_W + 1}], s{S_T0} glc")
        e(f"s_load_dword s43, s[{S_W}:{S_W + 1}], s{S_T1} glc")
        e(f"s_mov_b32 s{S_CNT}, {-(NRACE // 2)}")
        if o.dpf:
            e(f"s_load_dword s23, s[44:45], 192 glc")
        for k in range(NRACE):
            e("s_waitcnt lgkmcnt(0)")
            if k < 2:
                self.stamp(2 + k, True)
                if o.vdiag:
                    e("s_waitcnt lgkmcnt(0)")
            first, second = (S_T0, S_T1) if k % 2 == 0 else (S_T1, S_T0)
            e(f"s_load_dword s42, s[{S_W}:{S_W + 1}], s{first} glc")
            e(f"s_load_dword s43, s[{S_W}:{S_W + 1}], s{second} glc")
            e("s_waitcnt lgkmcnt(1)")
            e("s_nop 7")
            e(f"s_getreg_b32 s{S_T2}, hwreg(HW_REG_IB_STS, 8, 4)   ; 1: the second answer is still out")
            if k % 2 == 0:
                e(f"s_xor_b32 s{S_T2}, s{S_T2}, 1")
            e(f"s_add_u32 s{S_CNT}, s{S_CNT}, s{S_T2}")
        assert NRACE % 2 == 0 and max(o.quorum, o.quorum4) * NRACE // 2 < 32 and max(o.quorum, o.quorum4) <= NVOTE_WG
        e(f"s_sub_u32 s{S_T2}, 0, s{S_CNT}")
        e(f"s_add_u32 s{S_T0}, s{S_T0}, s{S_V + 3}")
        e(f"s_lshr_b32 s{S_T0}, s{S_T0}, 19")
        e(f"s_xor_b32 s{S_T0}, s{S_T0}, s2")
        e(f"s_bitcmp1_b32 s{S_T0}, 2")
        e(f"s_cselect_b32 s{S_CNT}, s{S_T2}, s{S_CNT}")
        e(f"s_mul_i32 s{S_T0}, s{S_V + 1}, 6")
        e(f"s_add_u32 s{S_T0}, s{S_T0}, 7")
        e(f"s_lshl_b32 s{S_CNT}, s{S_CNT}, s{S_T0}")
        e(f"s_or_b32 s{S_CNT}, s{S_CNT}, 1")
        e(f"s_mov_b32 s{S_T1}, s{S_CNT}")
        self.stamp(6, True)
        e(f"s_atomic_add s{S_T1}, s[44:45], {DBG_TAL} glc")
        e(f"s_add_u32 s{S_CNT}, s{S_CNT}, {sum(31 << (7 + 6 * t) for t in range(4))}")
        e("s_waitcnt lgkmcnt(0)")
        e(f"s_add_u32 s{S_T1}, s{S_T1}, s{S_CNT}")
        self.stamp(13)
        e(f"s_and_b32 s{S_T0}, s{S_T1}, 0x7f")
        e(f"s_cmp_lg_u32 s{S_T0}, s{S_V}")
        e("s_cbranch_scc1 L_stream")
        e(f"s_and_b32 s{S_T1}, s{S_T1}, {sum(32 << (7 + 6 * t) for t in range(4))}")
        e(f"s_bitset1_b32 s{S_T1}, 9")
        e("L_publish:")
        e(f"s_atomic_add s{S_T1}, s[44:45], {DBG_RES}")
        e("s_waitcnt lgkmcnt(0)")
        e("s_branch L_stream")

        e("L_tag:")
        e(f"s_mov_b32 s{S_T1}, 1")
        e("s_waitcnt lgkmcnt(0)")
        e(f"s_atomic_add s{S_T1}, s[46:47], {WS_E} glc")
        e("s_waitcnt lgkmcnt(0)")
        e(f"s_add_u32 s{S_T1}, s{S_T1}, 1")
        e(f"s_and_b32 s{S_T1}, s{S_T1}, 0xff")
        e(f"s_bitset1_b32 s{S_T1}, 8")
        self.stamp(13)
        e("s_branch L_publish")

        for nm in ("r", "q0", "q1"):
            k = nm[1:]
            e(f"L_{nm[0]}long{k}:")
            e("s_waitcnt vmcnt(0)")
            e(f"s_cmp_lg_u32 s{S_HOOK}, 0")
            e(f"s_cbranch_scc1 L_{nm[0]}got{k}")
            e(f"s_call_b64 s[{S_RET}:{S_RET + 1}], L_flush")
            e(f"s_branch L_{nm[0]}poll{k}")
        e("L_flush:")
        e(f"s_mov_b32 s{S_CNT}, {SPIN}")
        e(f"s_mov_b32 s{S_HOOK}, {SPIN}")
        e("s_mov_b32 exec_lo, -1")
        e("s_mov_b32 exec_hi, 0xffff")
        e("v_lshlrev_b32 v17, 4, v1")
        e("L_floop:")
        e(f"buffer_load_dwordx4 v[8:11], v17, s[{S_WS}:{S_WS + 3}], s{S_PO} offen sc1")
        e(f"buffer_load_dwordx4 v[12:15], v17, s[{S_WS}:{S_WS + 3}], s{S_PO} offen offset:768 sc1")
        e(f"s_sub_u32 s{S_HOOK}, s{S_HOOK}, 1")
        e("s_waitcnt vmcnt(0)")
        e(f"v_xor_b32 v16, s{S_TG[0]}, v8")
        for r in range(9, 16):
            e(f"v_bitop3_b32 v16, v16, v{r}, s{S_TG[r & 3]} bitop3:0xf6")
        e("v_and_b32 v16, 15, v16")
        e("v_cmp_ne_u32 vcc, 0, v16")
        e("s_cbranch_scc1 L_fdone")
        e("s_cbranch_vccnz L_floop")
        e("L_fdone:")
        e(f"buffer_store_dwordx4 v[8:11], v17, s[{S_WS}:{S_WS + 3}], s{S_PO} offen sc1")
        e(f"buffer_store_dwordx4 v[12:15], v17, s[{S_WS}:{S_WS + 3}], s{S_PO} offen offset:768 sc1")
        e("s_waitcnt vmcnt(0)")
        e("s_mov_b64 exec, -1")
        e(f"s_mov_b32 s{S_HOOK}, -1")
        e(f"s_setpc_b64 s[{S_RET}:{S_RET + 1}]")

        e("L_dpoll:")
        e(f"s_mov_b32 s{S_CNT}, {SPIN}")
        e(f"v_mov_b32 v{V_AT}, 0")
        e("s_mov_b64 exec, 1")
        e("L_dloop:")
        e(f"buffer_load_dword v{V_AT}, off, s[{S_DBG}:{S_DBG + 3}], 0 offset:{DBG_RES} sc1")
        e(f"s_sleep {o.dsleep}")
        e("s_waitcnt vmcnt(24)")
        e(f"v_readfirstlane_b32 s{S_T2}, v{V_AT}          ; whatever poll has landed last")
        e(f"s_sub_u32 s{S_CNT}, s{S_CNT}, 1")
        e("s_cbranch_scc1 L_dgot")
        e(f"s_andn2_b32 s{S_OFF}, {RES_OK}, s{S_T2}")
        e("s_cbranch_scc1 L_dloop")
        e("L_dgot:")
        e("s_mov_b64 exec, -1")
        e("s_branch L_decided")

        e("L_codeend:")
        e("s_endpgm")

    def text(self):
        out = HEADER
        out += f"; @launch grid=({NWG},1,1) block=(768,1,1) lds={L_TOTAL}\n"
        out += '.amdgcn_target "amdgcn-amd-amdhsa--gfx950"\n.text\n'
        out += f".globl {KNAME}\n.p2align 8\n.type {KNAME},@function\n{KNAME}:\n"
        out += "\n".join(self.lines) + "\n"
        out += f""".section .rodata,"a"
.p2align 6
.amdhsa_kernel {KNAME}
  .amdhsa_next_free_vgpr 168
  .amdhsa_next_free_sgpr {100 if self.o.stamps else 56}
  .amdhsa_accum_offset 168
  .amdhsa_group_segment_fixed_size 0
  .amdhsa_kernarg_size 48
  .amdhsa_user_sgpr_count 2
  .amdhsa_user_sgpr_kernarg_segment_ptr 1
  .amdhsa_system_sgpr_workgroup_id_x 1
  .amdhsa_float_denorm_mode_32 3
.end_amdhsa_kernel
"""
        return out


def main():
    p = argparse.ArgumentParser()
    p.add_argument("-o", default="standalone__channel_attn_cbam__vision.s")
    p.add_argument("--ldflags", default="nt")
    p.add_argument("--stflags", default="sc1")
    p.add_argument("--p1flags", default="sc1")
    p.add_argument("--stamps", action="store_true")
    p.add_argument("--probe", default="")
    p.add_argument("--depth", type=int, default=10)
    p.add_argument("--nrace", type=int, default=2)
    p.add_argument("--dsleep", type=int, default=8)
    p.add_argument("--trace", default="")
    p.add_argument("--nodec", action="store_true")
    p.add_argument("--vdiag", action="store_true")
    p.add_argument("--dbgptr", action="store_true")
    p.add_argument("--opp", default="5,9", type=lambda v: [int(x) for x in v.split(",")])
    p.add_argument("--quorum", type=int, default=16)
    p.add_argument("--quorum4", type=int, default=24)
    p.add_argument("--nvote", type=int, default=32)
    p.add_argument("--nagn", type=int, default=6)
    p.add_argument("--stlim", type=int, default=0)
    p.add_argument("--psc1", action="store_true")
    p.add_argument("--pnt", action="store_true")
    p.add_argument("--pad", type=int, default=0)
    p.add_argument("--lpf", type=int, default=2)
    p.add_argument("--al", type=int, default=0)
    p.add_argument("--cap", type=int, default=0)
    p.add_argument("--capfrom", type=int, default=12)
    p.add_argument("--capto", type=int, default=32)
    p.add_argument("--skewa", type=int, default=1)
    p.add_argument("--skewd", type=int, default=1)
    p.add_argument("--skewc", type=int, default=0)
    p.add_argument("--skew", type=int, default=0, help="timing diagnostic only")
    p.add_argument("--warmfl", default="")
    p.add_argument("--sdiag", action="store_true")
    p.add_argument("--rpf", type=int, default=0)
    p.add_argument("--dpf", type=int, default=0)
    p.add_argument("--pwg", type=int, default=0)
    p.add_argument("--pwave", type=int, default=0)
    p.add_argument("--pref", type=int, default=0)
    p.add_argument("--qshift", type=int, default=32)
    p.add_argument("--rolepos", type=int, default=-1)
    p.add_argument("--prebar", type=int, default=1)
    p.add_argument("--qmap", type=int, default=0)
    p.add_argument("--agnu", type=int, default=4)
    p.add_argument("--warmst", type=int, default=0)
    p.add_argument("--cw", type=int, default=0)
    p.add_argument("--cld", action="store_true")
    p.add_argument("--qflip", type=int, default=0)
    p.add_argument("--qcopy", type=int, default=4)
    p.add_argument("--mul", default="dot")
    p.add_argument("--burst", type=int, default=32)
    p.add_argument("--idleclk", type=int, default=0)
    p.add_argument("--clk", action="store_true")
    p.add_argument("--sthr", type=int, default=0)
    p.add_argument("--sbar", default=[24], type=lambda v: [int(x) for x in v.split(",")])
    p.add_argument("--piece", type=int, default=128)
    p.add_argument("--xbar", default=[24], type=lambda v: [int(x) for x in v.split(",")])
    p.add_argument("--cpf", type=int, default=0)
    p.add_argument("--cpfpos", type=int, default=0)
    p.add_argument("--wpace", type=int, default=40)
    p.add_argument("--clean", default="q")
    p.add_argument("--warm", type=int, default=30)
    p.add_argument("--warmwave", type=int, default=4)
    p.add_argument("--qsleep", type=int, default=0)
    p.add_argument("--red0", type=int, default=8)
    p.add_argument("--redstep", type=int, default=2)
    p.add_argument("--off", default="", help="diagnostics: v = no votes, c = no clears, r = result not read")
    p.add_argument("--spans", default="")
    p.add_argument("--split", action="store_true")
    p.add_argument("--pfback", type=int, default=0)
    p.add_argument("--nplain", type=int, default=0)
    p.add_argument("--wb", default="", help="minwave,wglimit,pos")
    p.add_argument("--thr", type=int, default=2)
    p.add_argument("--thrfrom", type=int, default=12)
    p.add_argument("--thrto", type=int, default=24)
    p.add_argument("--thrmask", default="0x55")
    p.add_argument("--zorder", default="8,0,9,1,10,2,11,3,12,4,13,5,14,6,15,7")
    o = p.parse_args()
    global NAGN, SPANS, NVOTE_WG
    NVOTE_WG = o.nvote
    NAGN = o.nagn
    if NAGN == 6:
        SPANS = [(0, 0), (0, 1), (1, 0), (1, 1), (2, 0), (2, 1),
                 (3, 0), (3, 1), (4, 0), (4, 1), (5, 0), (5, 1), (6, 0), (6, 1), (7, 0), (7, 1)]
        if o.zorder == p.get_default("zorder"):
            o.zorder = "6,0,7,1,8,2,9,3,10,4,11,5,12,13,14,15"
    if o.spans:
        SPANS = [(int(v[0]), int(v[1])) for v in o.spans.split(",")]
        assert sorted(SPANS) == [(a, b) for a in range(8) for b in range(2)]
    g = G(o)
    g.build()
    open(o.o, "w").write(g.text())


if __name__ == "__main__":
    main()
```

```python
import argparse

KNAME = "standalone__channel_attn_cbam__vision_kernel"

HEADER = """; Kernarg layout for this problem (48 bytes, ptrs only, base s[0:1]):
;   offset   0: d_in[0] x  shape=(1, 512, 512, 192) dtype=bfloat16 strides=(100663296, 196608, 384, 2) contiguous=True
;   offset   8: d_in[1] w1  shape=(192, 48) dtype=bfloat16 strides=(96, 2) contiguous=True
;   offset  16: d_in[2] w2  shape=(48, 192) dtype=bfloat16 strides=(384, 2) contiguous=True
;   offset  40: d_ws      402653184 bytes workspace (unspecified values whenever your kernel or launch list starts; a list's later launches find what earlier ones wrote)
"""

X_BYTES = 100663296
NWG = 256
NRED = 12
MiB = 1 << 20

L_RED = 0
L_H = 6144
L_DEC = 6336
L_S = 6400
L_F = 7168
L_W1 = 8192
L_W2 = L_W1 + 18432
L_SPILL = L_W2 + 18432
L_TOTAL = L_SPILL + 3 * 8192

WS_P = 0
WS_Q = 256 * 1536
WS_E = WS_Q + 4 * 49152
WS_USED = WS_E + 128
WS_PROBE = 640 * 1024
WS_STAMP = 1 << 20

S_X, S_OUT, S_WS, S_DBG, S_W = 4, 8, 12, 16, 20
S_WAVE, S_TY, S_SUB, S_OFF, S_MASK, S_CNT, S_T0, S_T1 = 28, 29, 30, 31, 32, 33, 34, 35
S_BASE, S_PM, S_P, S_T2 = 48, 49, 50, 51
S_AGN, S_RID, S_PO = 40, 42, 43
S_TG = [41, 47, 3, 0]
S_RET, S_HOOK, S_QC = 38, 46, 1
S_BASE1 = 45
NFB = 48
S_STAMP = 52
S_V = 24

D0 = 40
SPIN = 400000
V_L, V_G0, V_G1, V_AT = 0, 39, 38, 36

NAGN = 8
SPANS = [(0, 0), (0, 1), (1, 0), (1, 1), (2, 0), (2, 1), (3, 0), (3, 1),
         (6, 0), (4, 0), (6, 1), (4, 1), (7, 0), (5, 0), (7, 1), (5, 1)]
W_ROLE = 0
DBG_RES, DBG_TAL = 0, 128
NVOTE_WG = 32
RES_OK = (1 << 9) | (1 << 8)


def mask(pred):
    return sum(1 << z for z, s in enumerate(SPANS) if pred(z, s))


class G:
    def __init__(self, o):
        self.o = o
        self.lines = []

    def e(self, s=""):
        self.lines.append(("    " + s) if s and not s.endswith(":") else s)

    def stamp(self, idx, vote=False):
        if self.o.clk:
            if idx in (11, 12, 13):
                return
            m = {0: 11, 7: 12, 10: 13}.get(idx)
            if m:
                self.e(f"s_memtime s[{S_STAMP + 2 * m}:{S_STAMP + 2 * m + 1}]")
        if vote == "r":
            vote = False
        if self.o.vdiag and idx in (1, 2, 3, 6) and not vote:
            return
        if vote and not self.o.vdiag:
            return
        if self.o.stamps and not (self.o.trace and idx > 10):
            self.e(f"s_memrealtime s[{S_STAMP + 2 * idx}:{S_STAMP + 2 * idx + 1}]")

    def srd(self, d, lo, nbytes):
        e = self.e
        e(f"s_mov_b64 s[{d}:{d + 1}], s[{lo}:{lo + 1}]")
        e(f"s_mov_b32 s{d + 2}, {nbytes}")
        e(f"s_mov_b32 s{d + 3}, 0x20000")

    def span_off(self, z):
        return SPANS[z][0] * 12 * MiB + SPANS[z][1] * 49152

    def mem(self, j, fn):
        e = self.e
        z, u = j >> 1, j & 1
        if z < NAGN:
            off = (j // self.o.agnu) * self.o.agnu * 3 * MiB + (j % self.o.agnu) * 12288
            if off:
                e(f"s_add_u32 s{S_OFF}, s{S_AGN}, {off}")
                fn(f"v{V_L}", f"s{S_OFF}")
            else:
                fn(f"v{V_L}", f"s{S_AGN}")
            return
        if u == 0:
            e(f"s_bitcmp1_b32 s{S_PM}, {z}")
            e(f"s_cselect_b32 s{S_P}, 24576, 0")
        e(f"s_add_u32 s{S_OFF}, s{(S_BASE, S_BASE1)[SPANS[z][1]]}, {SPANS[z][0] * 12 * MiB + 12288 * u}")
        at = 2 + u
        e(f"v_xad_u32 v{at}, v{(V_G0, V_G1)[u]}, s{S_P}, v{V_L}")
        if SPANS[z] == (7, 1):
            e(f"v_add_u32 v{at}, s{S_OFF}, v{at}")
            e(f"v_subrev_u32 v{5 - at}, s{S_X + 2}, v{at}")
            e(f"v_min_u32 v{at}, v{at}, v{5 - at}             ; past the end: wrap to the rows the shift skipped")
            fn(f"v{at}", "0")
        else:
            fn(f"v{at}", f"s{S_OFF}")

    def trace(self, kind, n):
        if self.o.trace == kind:
            if n > 0:
                self.e("s_waitcnt lgkmcnt(0)")
                self.e(f"s_mov_b32 s{76 + n - 1}, s92")
            self.e("s_memrealtime s[92:93]")

    def build(self):
        o, e = self.o, self.e
        NRACE = o.nrace
        ldf = (" " + o.ldflags) if o.ldflags else ""
        stf = (" " + o.stflags) if o.stflags else ""

        self.stamp(0)
        e("s_load_dwordx2 s[4:5], s[0:1], 0          ; x")
        e("s_load_dwordx2 s[8:9], s[0:1], 24         ; out")
        e("v_readfirstlane_b32 s%d, v0" % S_WAVE)
        e("v_and_b32 v1, 63, v0                      ; lane")
        pl = (o.piece // 16).bit_length() - 1
        e(f"v_bfe_u32 v2, v0, {pl}, {6 - pl}")
        e(f"v_mul_u32_u24 v2, {3 * o.piece}, v2")
        e(f"v_and_b32 v3, {(1 << pl) - 1}, v0")
        e("s_cmpk_ge_u32 s2, %d" % NWG)
        e("s_cbranch_scc1 L_end")
        if o.rolepos < 0:
            e(f"s_lshl2_add_u32 s{S_T1}, s{S_WAVE}, s2")
            e(f"s_cmp_le_u32 s{S_T1}, {NVOTE_WG}              ; wave 0 of the first workgroups has a side job")
            e("s_cbranch_scc1 L_role")
            e("L_stream:")
        e(f"s_lshr_b32 s{S_WAVE}, s{S_WAVE}, 6")
        e(f"s_mul_i32 s{S_SUB}, s{S_WAVE}, 43")
        e(f"s_lshr_b32 s{S_SUB}, s{S_SUB}, 7")
        e(f"s_mul_i32 s{S_T0}, s{S_SUB}, {3072 // o.piece - 3}")
        e(f"s_add_u32 s{S_T0}, s{S_T0}, s{S_WAVE}        ; sub*24 + wave % 3")
        e(f"s_lshl_b32 s{S_T0}, s{S_T0}, {pl + 4}")
        e("v_lshl_add_u32 v0, v3, 4, v2")
        e(f"v_add_u32 v{V_L}, s{S_T0}, v0               ; + sub*3072 + (wave % 3)*128")
        if o.qmap == 0:
            e(f"s_and_b32 s{S_T0}, s2, 3")
            e(f"s_bfe_u32 s{S_T1}, s2, 0x10002")
            e(f"s_lshl1_add_u32 s{S_T0}, s{S_T0}, s{S_T1}")
            e(f"s_and_b32 s{S_T1}, s2, -8")
            e(f"s_add_u32 s{S_T0}, s{S_T0}, s{S_T1}")
        else:
            e(f"s_and_b32 s{S_T0}, s2, 7")
            e(f"s_lshl_b32 s{S_T0}, s{S_T0}, 5")
            e(f"s_lshr_b32 s{S_T1}, s2, 3")
            e(f"s_add_u32 s{S_T0}, s{S_T0}, s{S_T1}")
        e(f"s_mul_i32 s{S_AGN}, s{S_T0}, {o.agnu * 12288}")
        e(f"s_mov_b32 s{S_X + 2}, {X_BYTES}")
        e(f"s_mov_b32 s{S_X + 3}, 0x20000")
        if o.rolepos >= 0:
            e(f"s_lshl_b32 s{S_T1}, s{S_WAVE}, 8")
            e(f"s_or_b32 s{S_T1}, s{S_T1}, s2")
        if o.sdiag:
            self.stamp(6, True)
        e("s_waitcnt lgkmcnt(0)")
        if o.sdiag:
            self.stamp(1, True)
        e(f"s_lshr_b32 s{S_T0}, s{S_OUT}, 7")
        e(f"s_mul_i32 s{S_T0}, s{S_T0}, 21              ; -43 mod 64")
        e(f"s_and_b32 s{S_T0}, s{S_T0}, 63")
        e(f"s_mulk_i32 s{S_T0}, 384")
        e(f"s_add_u32 s{S_AGN}, s{S_AGN}, s{S_T0}")
        assert W_ROLE == 0

        SUM, MAX, T = 4, 12, 20
        DEPTH = o.depth
        seq = []

        def issue(j):
            if j == o.rolepos:
                e(f"s_cmp_le_u32 s{S_T1}, {NVOTE_WG}              ; wave 0 of the first workgroups has a side job")
                e("s_cbranch_scc1 L_role")
                e("L_stream:")
            if o.cpf and j == o.cpfpos:
                e(f"s_sub_u32 s{S_T1}, s{S_T1}, 256")
                e(f"s_cmp_ge_u32 s{S_T1}, {o.cpf}")
                e("s_cbranch_scc1 L_nocpf")
                e("s_getpc_b64 s[20:21]")
                e("v_lshlrev_b32 v2, 7, v1")
                e("v_add_u32 v3, 8192, v2")
                e("v_min_u32 v3, L_codeend - L_nocpf, v3")
                e("global_load_dword v36, v2, s[20:21]")
                e("global_load_dword v37, v3, s[20:21]")
                e("L_nocpf:")
            if j == max(4, o.rolepos):
                e("s_load_dwordx4 s[36:39], s[0:1], 8        ; w1, w2")
                e(f"s_load_dwordx2 s[{S_DBG}:{S_DBG + 1}], s[0:1], 32")
                e(f"s_load_dwordx2 s[{S_WS}:{S_WS + 1}], s[0:1], 40")
                e(f"s_mov_b32 s{S_MASK}, 0xffff0000")
            if j == 2 * NAGN:
                e(f"s_mul_i32 s{S_TY}, s{S_SUB}, 3")
                e(f"s_sub_u32 s{S_TY}, s{S_WAVE}, s{S_TY}        ; ty = wave % 3")
                e(f"s_mov_b32 s{S_OUT + 2}, s{S_X + 2}")
                e(f"s_mov_b32 s{S_OUT + 3}, s{S_X + 3}")
                e(f"s_mov_b32 s{S_WS + 2}, {(2 << 20) if o.stamps else WS_USED}")
                e(f"s_mov_b32 s{S_WS + 3}, s{S_X + 3}")
                e(f"s_movk_i32 s{S_DBG + 2}, 256")
                e(f"s_mov_b32 s{S_DBG + 3}, s{S_X + 3}")
                e(f"s_movk_i32 s{S_T2}, 24576")
                e(f"v_bfe_u32 v{V_G0}, v{V_L}, 13, 1")
                e(f"v_add_u32 v{V_G1}, 12288, v{V_L}")
                e(f"v_bfe_u32 v{V_G1}, v{V_G1}, 13, 1")
                e(f"v_mul_u32_u24 v{V_G0}, s{S_T2}, v{V_G0}")
                e(f"v_mul_u32_u24 v{V_G1}, s{S_T2}, v{V_G1}")
                e(f"s_bfe_i32 s{S_PM}, s2, 0x10002              ; -side")
                e(f"s_lshr_b32 s{S_T0}, s{S_OUT}, 7")
                e(f"s_mul_i32 s{S_T0}, s{S_T0}, 21")
                e(f"s_and_b32 s{S_T0}, s{S_T0}, 63")
                e(f"s_mulk_i32 s{S_T0}, 384")
                e(f"s_and_b32 s{S_T1}, s2, 3")
                e(f"s_lshr_b32 s{S_BASE}, s2, 3")
                if o.qmap == 0:
                    e(f"s_lshl2_add_u32 s{S_BASE}, s{S_BASE}, s{S_T1}")
                else:
                    e(f"s_lshl_b32 s{S_T1}, s{S_T1}, 5")
                    e(f"s_add_u32 s{S_BASE}, s{S_BASE}, s{S_T1}")
                e(f"s_add_u32 s{S_BASE1}, s{S_BASE}, {o.qshift}")
                e(f"s_and_b32 s{S_BASE1}, s{S_BASE1}, 127")
                e(f"s_mul_i32 s{S_BASE}, s{S_BASE}, 98304")
                e(f"s_add_u32 s{S_BASE}, s{S_BASE}, s{S_T0}        ; the pair's first span of a step")
                e(f"s_mul_i32 s{S_BASE1}, s{S_BASE1}, 98304")
                e(f"s_add_u32 s{S_BASE1}, s{S_BASE1}, s{S_T0}")
                e(f"s_add_u32 s{S_BASE1}, s{S_BASE1}, 49152      ; its second span: 3 MiB on, where the memory stacks swap")
                h1 = mask(lambda z, s: s[1] == 1)
                e(f"s_add_u32 s{S_T2}, s{S_T2}, s{S_OUT}")
                e(f"s_add_u32 s{S_T0}, s{S_BASE}, s{S_T2}")
                e(f"s_bfe_i32 s{S_T1}, s{S_T0}, 0x10015")
                e(f"s_xor_b32 s{S_PM}, s{S_PM}, s{S_T1}")
                e(f"s_add_u32 s{S_T2}, s{S_BASE1}, s{S_T2}")
                e(f"s_xor_b32 s{S_T0}, s{S_T0}, s{S_T2}")
                e(f"s_bfe_i32 s{S_T0}, s{S_T0}, 0x10015")
                e(f"s_and_b32 s{S_T0}, s{S_T0}, {h1}")
                e(f"s_xor_b32 s{S_PM}, s{S_PM}, s{S_T0}")
                m1 = mask(lambda z, s: z >= NAGN and s[0] in (3, 4))
                z50 = SPANS.index((5, 0))
                z51 = SPANS.index((5, 1))
                dec = mask(lambda z, s: z >= NAGN)
                e(f"s_cmp_lt_u32 s{S_BASE}, {4 * MiB - 24576}")
                e(f"s_cselect_b32 s{S_T0}, {1 << z50}, 0")
                e(f"s_or_b32 s{S_T0}, s{S_T0}, {m1}")
                e(f"s_cmp_lt_u32 s{S_BASE1}, {4 * MiB - 24576}")
                e(f"s_cselect_b32 s{S_T1}, {1 << z51}, 0")
                e(f"s_or_b32 s{S_T0}, s{S_T0}, s{S_T1}            ; third 1")
                e(f"s_xor_b32 s{S_T1}, s{S_T0}, {dec}           ; third 2")
                per, pat = o.opp
                rep = sum(((pat >> (i % per)) & 1) << i for i in range(32))
                e(f"s_lshr_b32 s{S_P}, s2, 3")
                e(f"s_mul_i32 s{S_T2}, s{S_P}, {-(-256 // per)}")
                e(f"s_lshr_b32 s{S_T2}, s{S_T2}, 8")
                e(f"s_mul_i32 s{S_T2}, s{S_T2}, {per}")
                e(f"s_sub_u32 s{S_P}, s{S_P}, s{S_T2}             ; (b >> 3) % {per}")
                e(f"s_lshr_b32 s{S_P}, {rep}, s{S_P}")
                e(f"s_sub_u32 s{S_T2}, s{S_OUT}, s{S_X}")
                e(f"s_add_u32 s{S_T2}, s{S_T2}, 2048")
                e(f"s_bitcmp1_b32 s{S_T2}, 12")
                e(f"s_cselect_b32 s{S_P}, 0, s{S_P}")
                e(f"s_lshr_b32 s{S_T2}, s2, 3")
                e(f"s_sub_u32 s{S_RID}, s{S_T2}, {o.red0}")
                e(f"s_and_b32 s{S_PO}, s2, 7")
                e(f"s_lshl_b32 s{S_PO}, s{S_PO}, 5")
                e(f"s_add_u32 s{S_PO}, s{S_PO}, s{S_T2}")
                e(f"s_mulk_i32 s{S_PO}, 1536")
                e("s_waitcnt lgkmcnt(0)")
                self.stamp(11)
                e("s_barrier")
                e(f"s_load_dword s{S_T2}, s[{S_DBG}:{S_DBG + 1}], {DBG_RES}")
                e("s_waitcnt lgkmcnt(0)")
                e(f"s_andn2_b32 s{S_CNT}, {RES_OK}, s{S_T2}")
                e("s_cbranch_scc1 L_dpoll")
                e("L_decided:")
                for i in range(4):
                    e(f"s_bitcmp1_b32 s{S_T2}, {7 + 6 * i + 5}")
                    e(f"s_cselect_b32 s{S_V + i}, s{(S_T0, S_T1)[i >> 1]}, 0")
                e(f"s_or_b32 s{S_V}, s{S_V}, s{S_V + 2}")
                e(f"s_or_b32 s{S_V + 1}, s{S_V + 1}, s{S_V + 3}")
                e(f"s_xor_b32 s{S_V}, s{S_V}, s{S_V + 1}")
                e(f"s_and_b32 s{S_V}, s{S_V}, s{S_P}")
                e(f"s_xor_b32 s{S_V}, s{S_V}, s{S_V + 1}")
                e(f"s_xor_b32 s{S_PM}, s{S_PM}, s{S_V}")
                e(f"s_and_b32 s{S_TG[0]}, s{S_T2}, 15")
                e(f"s_bfe_u32 s{S_TG[1]}, s{S_T2}, 0x40004")
                e(f"s_xor_b32 s{S_TG[2]}, s{S_TG[0]}, 15")
                e(f"s_xor_b32 s{S_TG[3]}, s{S_TG[1]}, 15")
                e(f"s_lshr_b32 s{S_QC}, s{S_T2}, 10")
                e(f"s_and_b32 s{S_QC}, s{S_QC}, 4")
                e(f"s_xor_b32 s{S_QC}, s{S_QC}, s2             ; bits 2:0: the second-stage copy near this die")
                self.stamp(12)
            if j in o.xbar:
                e("s_barrier")
                if j == o.xbar[-1]:
                    self.stamp(2, "r")
            if j == o.warm and o.warmst:
                e(f"s_cmp_ge_u32 s{S_WAVE}, 2")
                e("s_cbranch_scc1 L_nowarm")
                for i in range(4):
                    e(f"v_mov_b32 v{20 + i}, 0")
                e(f"s_mul_i32 s{S_T0}, s{S_WAVE}, 768")
                e(f"v_lshl_add_u32 v3, v1, 4, s{S_T0}")
                e("s_mov_b32 exec_hi, 0xffff")
                e(f"buffer_store_dwordx4 v[20:23], v3, s[{S_WS}:{S_WS + 3}], s{S_PO} offen")
                e("s_mov_b64 exec, -1")
                e("L_nowarm:")
            if j == o.warm and not o.warmst:
                e(f"s_cmp_lg_u32 s{S_WAVE}, {o.warmwave}")
                e("s_cbranch_scc1 L_nowarm")
                e("v_lshlrev_b32 v3, 7, v1")
                e("s_mov_b64 exec, 0xfff")
                e(f"buffer_load_dword v37, v3, s[{S_WS}:{S_WS + 3}], s{S_PO} offen")
                e("s_mov_b64 exec, -1")
                e("L_nowarm:")
            r = D0 + 4 * j
            if o.thr and j == 10:
                e(f"s_getreg_b32 s{S_T0}, hwreg(HW_REG_XCC_ID, 0, 3)")
                e(f"s_lshr_b32 s{S_T0}, {o.thrmask}, s{S_T0}")
                e(f"s_and_b32 vcc_lo, s{S_T0}, 1")
                e("s_mov_b32 vcc_hi, 0")
            if o.thr and o.thrfrom <= j < o.thrto:
                e(f"s_cbranch_vccz L_thr{j}")
                e(f"s_waitcnt vmcnt({o.thr - 1})")
                e(f"L_thr{j}:")
            self.mem(j, lambda va, so: e(f"buffer_load_dwordx4 v[{r}:{r + 3}], {va}, s[{S_X}:{S_X + 3}], {so} offen{ldf}"))
            seq.append(j)
            if o.sdiag and j == 0:
                self.stamp(2, True)
            if o.sdiag and j == 2:
                e("s_waitcnt vmcnt(2)")
                self.stamp(3, True)
            if j & 1:
                self.trace("ld", j >> 1)

        def wait_for(j):
            e(f"s_waitcnt vmcnt({len(seq) - 1 - seq.index(j)})")

        nxt = 0
        for jj in range(16):
            while nxt < 32 and nxt < max(2 * jj + DEPTH + 2, 2 * NAGN + 2 if o.prebar else 0):
                issue(nxt)
                nxt += 1
                if nxt == 32:
                    self.stamp(1)
            a, b = D0 + 8 * jj, D0 + 8 * jj + 4
            if jj == 15:
                e("v_and_b32 v2, 7, v1")
                e("v_lshlrev_b32 v2, 5, v2                   ; (l&7)*32")
                e("v_lshrrev_b32 v3, 4, v1")
                e("v_lshl_add_u32 v2, v3, 3, v2              ; + (l>>4)*8")
                e("v_bfe_u32 v3, v1, 3, 1")
                e("v_mul_u32_u24 v3, 768, v3")
                e(f"s_mul_i32 s{S_T0}, s{S_SUB}, 1536")
                e(f"s_lshl_b32 s{S_T1}, s{S_TY}, 8")
                e(f"s_add_u32 s{S_T0}, s{S_T0}, s{S_T1}")
                e(f"v_add3_u32 v2, v2, v3, s{S_T0}")
                e(f"s_mul_i32 s{S_T0}, s{S_WAVE}, 768")
                e(f"v_lshl_add_u32 v3, v1, 4, s{S_T0}")
                for r in (a, b):
                    wait_for((r - D0) // 4)
                    if r == b:
                        self.stamp(3)
                    for i in range(4):
                        t = T + 2 * i
                        e(f"v_lshlrev_b32 v{t}, 16, v{r + i}")
                        e(f"v_and_b32 v{t + 1}, s{S_MASK}, v{r + i}")
                    for i in range(8):
                        e(f"v_max_f32 v{MAX + i}, v{MAX + i}, v{T + i}")
                    for i in range(4):
                        t, s = T + 2 * i, SUM + 2 * i
                        e(f"v_pk_add_f32 v[{s}:{s + 1}], v[{s}:{s + 1}], v[{t}:{t + 1}]")
                continue
            wait_for(2 * jj + 1)
            if jj == 0 and not o.xbar:
                self.stamp(2)
            for i in range(4):
                t = T + 4 * i
                e(f"v_lshlrev_b32 v{t}, 16, v{a + i}")
                e(f"v_and_b32 v{t + 1}, s{S_MASK}, v{a + i}")
                e(f"v_lshlrev_b32 v{t + 2}, 16, v{b + i}")
                e(f"v_and_b32 v{t + 3}, s{S_MASK}, v{b + i}")
            for i in range(4):
                t = T + 4 * i
                s, m = SUM + 2 * i, MAX + 2 * i
                if jj == 0:
                    e(f"v_max_f32 v{m}, v{t}, v{t + 2}")
                    e(f"v_max_f32 v{m + 1}, v{t + 1}, v{t + 3}")
                    e(f"v_pk_add_f32 v[{s}:{s + 1}], v[{t}:{t + 1}], v[{t + 2}:{t + 3}]")
                else:
                    e(f"v_max3_f32 v{m}, v{m}, v{t}, v{t + 2}")
                    e(f"v_max3_f32 v{m + 1}, v{m + 1}, v{t + 1}, v{t + 3}")
                    e(f"v_pk_add_f32 v[{t}:{t + 1}], v[{t}:{t + 1}], v[{t + 2}:{t + 3}]")
            if jj:
                for i in range(4):
                    t = T + 4 * i
                    s = SUM + 2 * i
                    e(f"v_pk_add_f32 v[{s}:{s + 1}], v[{s}:{s + 1}], v[{t}:{t + 1}]")

        for base in (MAX, SUM):
            for i in range(4):
                e(f"v_permlane32_swap_b32 v{base + i}, v{base + 4 + i}")
        for i in range(4):
            e(f"v_max_f32 v{MAX + i}, v{MAX + i}, v{MAX + 4 + i}")
        for i in range(4):
            e(f"v_add_f32 v{SUM + i}, v{SUM + i}, v{SUM + 4 + i}")
        for i in range(2):
            e(f"v_permlane16_swap_b32 v{MAX + i}, v{MAX + 2 + i}")
        for i in range(2):
            e(f"v_permlane16_swap_b32 v{SUM + i}, v{SUM + 2 + i}")
        for i in range(2):
            e(f"v_add_f32 v{SUM + i}, v{SUM + i}, v{SUM + 2 + i}")
        for i in range(2):
            e(f"v_max_f32 v{MAX + i}, v{MAX + i}, v{MAX + 2 + i}")
        e(f"s_cmp_ge_u32 s{S_WAVE}, 2")
        for i in range(2):
            e(f"v_add_f32_dpp v{SUM + i}, v{SUM + i}, v{SUM + i} row_ror:8 row_mask:0xf bank_mask:0x3")
        for i in range(2):
            e(f"v_max_f32_dpp v{SUM + i}, v{MAX + i}, v{MAX + i} row_ror:8 row_mask:0xf bank_mask:0xc")
        e(f"ds_write_b64 v2, v[{SUM}:{SUM + 1}] offset:{L_RED}")
        e("s_waitcnt lgkmcnt(0)")
        e("s_barrier")
        self.stamp(4)
        e("s_cbranch_scc1 L_nopub")

        e("s_mov_b32 exec_hi, 0xffff")
        for k in range(4):
            e(f"ds_read_b128 v[{4 + 4 * k}:{7 + 4 * k}], v3 offset:{L_RED + 1536 * k}")
        e(f"s_cmp_eq_u32 s{S_WAVE}, 0")
        e(f"s_cselect_b64 s[{S_W}:{S_W + 1}], s[36:37], s[38:39]")
        e("s_cbranch_scc0 L_pubmax")
        e("s_waitcnt lgkmcnt(2)")
        e("v_pk_add_f32 v[4:5], v[4:5], v[8:9]")
        e("v_pk_add_f32 v[6:7], v[6:7], v[10:11]")
        e("s_waitcnt lgkmcnt(0)")
        e("v_pk_add_f32 v[12:13], v[12:13], v[16:17]")
        e("v_pk_add_f32 v[14:15], v[14:15], v[18:19]")
        e("v_pk_add_f32 v[4:5], v[4:5], v[12:13]")
        e("v_pk_add_f32 v[6:7], v[6:7], v[14:15]")
        e("s_branch L_pub")
        e("L_pubmax:")
        e("s_waitcnt lgkmcnt(1)")
        for i in range(4):
            e(f"v_max3_f32 v{4 + i}, v{4 + i}, v{8 + i}, v{12 + i}")
        e("s_waitcnt lgkmcnt(0)")
        for i in range(4):
            e(f"v_max_f32 v{4 + i}, v{4 + i}, v{16 + i}")
        e("L_pub:")
        for i in range(4):
            e(f"v_and_or_b32 v{4 + i}, v{4 + i}, -16, s{S_TG[i]}")
        e(f"buffer_store_dwordx4 v[4:7], v3, s[{S_WS}:{S_WS + 3}], s{S_PO} offen{' sc1' if o.psc1 else ' nt' if o.pnt else ''}")
        e("s_mov_b64 exec, -1")
        e(f"s_movk_i32 s{S_W + 2}, 18432")
        e(f"s_mov_b32 s{S_W + 3}, 0x20000")
        e(f"s_mul_i32 s{S_T0}, s{S_WAVE}, 18432")
        e(f"s_addk_i32 s{S_T0}, {L_W1}")
        e(f"s_mov_b32 s{S_T1}, 0")
        e("v_lshlrev_b32 v2, 4, v1")
        e("L_wloop:")
        e(f"s_add_u32 m0, s{S_T0}, s{S_T1}")
        e(f"s_cmp_ge_u32 s{S_RID}, {NRED}")
        for k in range(3):
            e(f"buffer_load_dwordx4 v2, s[{S_W}:{S_W + 3}], s{S_T1} offen offset:{k * 1024} lds")
        e("s_cbranch_scc1 L_wnext")
        e(f"s_waitcnt vmcnt({o.wpace})")
        e("L_wnext:")
        e(f"s_addk_i32 s{S_T1}, 3072")
        e(f"s_cmp_lt_u32 s{S_T1}, 18432")
        e("s_cbranch_scc1 L_wloop")
        e("L_nopub:")

        B2 = 28
        V_H0, V_H1, V_SW, V_SR, V_Q = 24, 25, 26, 27, 37
        SP0 = 136
        A1 = 144
        B1 = [4, 8, 12, 16, 136, 140]
        e("v_lshrrev_b32 v20, 4, v1                  ; q")
        e(f"s_cmp_lt_u32 s{S_WAVE}, 3")
        e("s_cbranch_scc1 L_spill")
        e(f"s_cmp_ge_u32 s{S_RID}, {NRED}")
        e("s_cbranch_scc1 L_barw")
        e(f"s_cmp_lg_u32 s{S_WAVE}, 3")
        e("s_cbranch_scc1 L_barw")

        def clean(lbl, d, a):
            e(f"s_cmp_lg_u32 s{S_WAVE}, 3")
            e(f"s_cbranch_scc1 {lbl}")
            if o.cw:
                e(f"v_mov_b32 v{d}, 0")
                e(f"v_lshlrev_b32 v{a}, {o.cw}, v1")
                e(f"s_mov_b64 exec, {(1 << (1536 >> o.cw)) - 1}")
                if o.cld:
                    e(f"buffer_atomic_or v{d}, v{a}, s[{S_WS}:{S_WS + 3}], s{S_PO} offen")
                else:
                    e(f"buffer_store_dword v{d}, v{a}, s[{S_WS}:{S_WS + 3}], s{S_PO} offen sc1")
                e("s_mov_b64 exec, -1")
                return
            for i in range(4):
                e(f"v_mov_b32 v{d + i}, 0")
            e(f"v_lshlrev_b32 v{a}, 4, v1")
            e("s_mov_b32 exec_hi, 0xffff")
            e(f"buffer_store_dwordx4 v[{d}:{d + 3}], v{a}, s[{S_WS}:{S_WS + 3}], s{S_PO} offen sc1")
            e(f"buffer_store_dwordx4 v[{d}:{d + 3}], v{a}, s[{S_WS}:{S_WS + 3}], s{S_PO} offen offset:768 sc1")
            e("s_mov_b64 exec, -1")

        e("v_lshrrev_b32 v2, 3, v1")
        e("v_mul_u32_u24 v2, 1536, v2")
        e("v_and_b32 v3, 7, v1")
        e(f"v_lshl_add_u32 v{V_Q}, v3, 4, v2")
        e(f"s_and_b32 s{S_T0}, s2, 7")
        e(f"s_mul_i32 s{S_V}, s{S_T0}, {32 * 1536}")
        e(f"s_lshl_b32 s{S_T1}, s{S_RID}, 7")
        e(f"s_add_u32 s{S_V}, s{S_V}, s{S_T1}")
        for k in range(1, 4):
            e(f"s_add_u32 s{S_V + k}, s{S_V}, {k * 8 * 1536}")
        e(f"s_lshl_b32 s{S_T0}, s{S_T0}, 8              ; group*256")
        e(f"s_lshr_b32 s{S_T1}, s{S_RID}, 2")
        e(f"s_lshl2_add_u32 s{S_T1}, s{S_T1}, s{S_RID}")
        e(f"s_lshl_b32 s{S_T1}, s{S_T1}, 11")
        e(f"s_add_u32 s{S_T1}, s{S_T1}, s{S_T0}")
        for k in range(o.qcopy // 2):
            e(f"s_add_u32 s{S_W + k}, s{S_T1}, {WS_Q + k * 49152}")
        e("v_and_b32 v2, 15, v1")
        e("v_lshlrev_b32 v3, 2, v2")
        e("v_bfe_u32 v2, v1, 4, 1")
        e("v_lshl_add_u32 v3, v2, 7, v3")
        e("v_lshrrev_b32 v2, 5, v1")
        e("v_lshl_add_u32 v3, v2, 13, v3             ; (l>>5)*8192 + ((l>>4)&1)*128 + (l&15)*4")
        e(f"s_lshl4_add_u32 s{S_T0}, s{S_TG[1]}, s{S_TG[0]}")
        e(f"s_xor_b32 s{S_CNT}, s{S_T0}, 0xff")
        e(f"s_lshl_b32 s{S_CNT}, s{S_CNT}, 8")
        e(f"s_or_b32 s{S_T0}, s{S_T0}, s{S_CNT}")
        e("v_and_b32 v2, 12, v3")
        e(f"v_bfe_u32 v23, s{S_T0}, v2, 4")
        e(f"s_mov_b32 s{S_CNT}, {NFB}")
        e(f"s_mov_b32 s{S_HOOK}, 0")
        e("L_rpoll:")
        for k in range(4):
            e(f"buffer_load_dwordx4 v[{4 + 4 * k}:{7 + 4 * k}], v{V_Q}, s[{S_WS}:{S_WS + 3}], s{S_V + k} offen sc1")
        e(f"s_sub_u32 s{S_CNT}, s{S_CNT}, 1")
        e("s_cbranch_scc1 L_rlong")
        for k in range(4):
            e(f"s_waitcnt vmcnt({3 - k})")
            r = 4 + 4 * k
            for i in range(4):
                e(f"v_xor_b32 v{r + i}, s{S_TG[i]}, v{r + i}" + ("            ; a matching tag leaves four zero bits" if k + i == 0 else ""))
            if k == 0:
                e(f"v_or3_b32 v21, v{r}, v{r + 1}, v{r + 2}")
                e(f"v_or_b32 v21, v21, v{r + 3}")
            elif k < 3:
                e(f"v_or3_b32 v21, v21, v{r}, v{r + 1}")
                e(f"v_or3_b32 v21, v21, v{r + 2}, v{r + 3}")
            else:
                e(f"v_or3_b32 v21, v21, v{r}, v{r + 1}")
                e(f"v_or_b32 v22, v{r + 2}, v{r + 3}")
        e("v_bitop3_b32 v21, v21, v22, 15 bitop3:0xa8          ; (a | b) & c")
        e("v_cmp_ne_u32 vcc, 0, v21")
        e("s_wqm_b64 exec, vcc                       ; 64-byte units still waiting poll again")
        e("s_cbranch_scc1 L_rpoll")
        e("L_rgot:")
        e("s_mov_b64 exec, -1")
        self.stamp(1, "r")
        e(f"s_cmp_ge_u32 s{S_RID}, 6")
        e("s_cbranch_scc1 L_rmax")
        for kind in (0, 1):
            op = "v_add_f32" if kind == 0 else "v_max_f32"
            if kind == 1:
                e("L_rmax:")
                for i in range(4):
                    e(f"v_max3_f32 v{4 + i}, v{4 + i}, v{8 + i}, v{12 + i}")
                for i in (0, 2, 1, 3):
                    e(f"v_max_f32 v{4 + i}, v{4 + i}, v{16 + i}")
            else:
                e("v_pk_add_f32 v[4:5], v[4:5], v[8:9]")
                e("v_pk_add_f32 v[6:7], v[6:7], v[10:11]")
                e("v_pk_add_f32 v[12:13], v[12:13], v[16:17]")
                e("v_pk_add_f32 v[14:15], v[14:15], v[18:19]")
                e("v_pk_add_f32 v[4:5], v[4:5], v[12:13]")
                e("v_pk_add_f32 v[6:7], v[6:7], v[14:15]")
                e("s_nop 0")
            e(f"{op}_dpp v4, v4, v4 row_ror:8 row_mask:0xf bank_mask:0x3")
            if kind == 0:
                e(f"{op}_dpp v5, v5, v5 row_ror:8 row_mask:0xf bank_mask:0x3")
                e(f"{op}_dpp v4, v6, v6 row_ror:8 row_mask:0xf bank_mask:0xc")
            else:
                e(f"{op}_dpp v4, v6, v6 row_ror:8 row_mask:0xf bank_mask:0xc")
                e(f"{op}_dpp v5, v5, v5 row_ror:8 row_mask:0xf bank_mask:0x3")
            e(f"{op}_dpp v5, v7, v7 row_ror:8 row_mask:0xf bank_mask:0xc")
            e("s_nop 1")
            e("v_permlane16_swap_b32 v4, v5")
            e(f"{op} v4, v4, v5")
            e("v_mov_b32 v5, v4")
            e("s_nop 1")
            e("v_permlane32_swap_b32 v4, v5")
            e(f"{op} v4, v4, v5                        ; lane 16a+8b+c: element 2b+a of piece c")
            if kind == 0:
                e("s_branch L_rpub")
        e("L_rpub:")
        e("v_and_or_b32 v4, v4, -16, v23")
        for k in range(o.qcopy // 2):
            e(f"buffer_store_dword v4, v3, s[{S_WS}:{S_WS + 3}], s{S_W + k} offen sc1")
            if k == 0:
                self.stamp(9)
        if o.clean == "r":
            for i in range(4):
                e(f"v_mov_b32 v{8 + i}, 0")
            for k in range(4):
                e(f"buffer_store_dwordx4 v[8:11], v{V_Q}, s[{S_WS}:{S_WS + 3}], s{S_V + k} offen sc1")
        e("s_barrier")
        e("s_branch L_afterw")

        e("L_spill:")
        e(f"s_lshl_b32 s{S_T0}, s{S_WAVE}, 13")
        e(f"v_lshl_add_u32 v{V_AT}, v1, 4, s{S_T0}")
        for k in range(8):
            e(f"ds_write_b128 v{V_AT}, v[{SP0 + 4 * k}:{SP0 + 4 * k + 3}] offset:{L_SPILL + 1024 * k}")
        e("L_barw:")
        e("s_waitcnt vmcnt(0) lgkmcnt(0)")
        e("s_barrier")
        e("L_afterw:")
        e("v_bfe_u32 v3, v1, 2, 2")
        e("v_lshl_add_u32 v21, v20, 3, v3            ; row")
        e("v_and_b32 v22, 15, v21                    ; row of the half step (q&1)")
        e("v_and_b32 v3, 3, v1")
        e(f"s_lshl_b32 s{S_T2}, s{S_WAVE}, 5")
        e(f"v_lshl_add_u32 v23, v3, 3, s{S_T2}          ; column bytes")
        e("v_mov_b32 v3, 384")
        e("v_mad_u32_u24 v2, v21, v3, v23")
        e("v_mad_u32_u24 v22, v22, v3, v23")
        e(f"ds_read_b64_tr_b16 v[{B2}:{B2 + 1}], v2 offset:{L_W2}")
        e(f"ds_read_b64_tr_b16 v[{B2 + 2}:{B2 + 3}], v2 offset:{L_W2 + 4 * 384}")
        e(f"ds_read_b64_tr_b16 v[{B2 + 4}:{B2 + 5}], v22 offset:{L_W2 + 32 * 384}")
        e(f"ds_read_b64_tr_b16 v[{B2 + 6}:{B2 + 7}], v22 offset:{L_W2 + 36 * 384}")
        e("v_and_b32 v2, 1, v1")
        e("v_mul_u32_u24 v22, 96, v2")
        e(f"v_lshl_add_u32 v{V_H0}, v20, 4, v22")
        e("v_and_b32 v3, 1, v20")
        e(f"v_lshl_add_u32 v{V_H1}, v3, 4, v22")
        e(f"s_lshl_b32 s{S_T0}, s{S_WAVE}, 6")
        e(f"v_lshl_add_u32 v{V_SW}, v1, 2, s{S_T0}")
        if o.mul == "dot":
            e("v_mov_b32 v3, 0")
            e("s_mov_b64 exec, 0xffff")
            e(f"ds_write_b32 v{V_SW}, v3 offset:{L_S}")
            e("s_mov_b64 exec, -1")
            e(f"v_lshl_add_u32 v{V_SW}, v2, 1, v{V_SW}")
        e("v_and_b32 v3, 7, v1")
        e(f"s_lshl_b32 s{S_T0}, s{S_TY}, 8")
        e(f"v_lshl_add_u32 v{V_SR}, v3, 5, s{S_T0}")
        e("s_waitcnt lgkmcnt(0)")
        e("s_mov_b32 exec_lo, 0")
        for i in range(4):
            e(f"v_mov_b32 v{B2 + 4 + i}, 0")
        e("s_mov_b64 exec, -1")
        e(f"s_cmp_ge_u32 s{S_WAVE}, 3")
        e("s_cbranch_scc1 L_noa1")
        e("v_mov_b32 v3, 96")
        e("v_mad_u32_u24 v2, v21, v3, v23")
        for s in range(6):
            for h in range(2):
                r = A1 + 4 * s + 2 * h
                e(f"ds_read_b64_tr_b16 v[{r}:{r + 1}], v2 offset:{L_W1 + s * 3072 + h * 384}")
        e("L_noa1:")
        e(f"v_lshl_add_u32 v3, v20, 3, v22")
        e(f"v_add_u32 v3, s{S_T2}, v3")
        e("v_lshlrev_b32 v2, 2, v22")
        e("v_lshl_add_u32 v2, v20, 4, v2")
        e("v_and_b32 v8, 1, v1")
        e("v_lshlrev_b32 v8, 4, v8")
        e("v_lshl_add_u32 v8, v20, 2, v8")
        e("v_and_b32 v9, 2, v1")
        e("v_bfe_u32 v10, v1, 2, 1")
        e("v_add3_u32 v8, v8, v9, v10")
        e(f"v_add_lshl_u32 v23, v8, s{S_T2}, 1")
        e("v_lshrrev_b32 v8, 2, v1")
        e("v_lshlrev_b32 v8, 7, v8")
        e("v_and_b32 v9, 3, v1")
        e(f"v_lshl_add_u32 v{V_Q}, v9, 4, v8")
        e(f"s_and_b32 s{S_T0}, s{S_QC}, 4")
        if o.qcopy > 2:
            e(f"s_and_b32 s{S_CNT}, s{S_QC}, {o.qcopy // 2 - 1}")
            e(f"s_mul_i32 s{S_CNT}, s{S_CNT}, 24")
            e(f"s_add_u32 s{S_T0}, s{S_T0}, s{S_CNT}")
        e(f"s_lshr_b32 s{S_T1}, s{S_WAVE}, 2")
        e(f"s_lshl2_add_u32 s{S_T1}, s{S_T1}, s{S_WAVE}")
        e(f"s_add_u32 s{S_T1}, s{S_T1}, s{S_T0}")
        e(f"s_lshl_b32 s{S_T1}, s{S_T1}, 11")
        e(f"s_add_u32 s{S_T1}, s{S_T1}, {WS_Q}")
        if o.clean in ("q", "p"):
            e(f"v_mov_b32 v19, s{S_TG[0]}")
            e(f"s_lshl_b32 s{S_V}, s{S_WAVE}, 7")
            e(f"s_add_u32 s{S_V}, s{S_V}, s{S_PO}")
        e(f"s_mov_b32 s{S_CNT}, {NFB}")
        e(f"s_mov_b32 s{S_HOOK}, 0")
        e(f"s_cmp_ge_u32 s{S_WAVE}, 6")
        e("s_cbranch_scc1 L_qpoll1")

        for kind in (0, 1):
            op = "v_add_f32" if kind == 0 else "v_max_f32"
            e(f"L_qpoll{kind}:")
            e(f"buffer_load_dwordx4 v[4:7], v{V_Q}, s[{S_WS}:{S_WS + 3}], s{S_T1} offen sc1")
            e(f"s_sub_u32 s{S_CNT}, s{S_CNT}, 1")
            e(f"s_cbranch_scc1 L_qlong{kind}")
            if o.qsleep:
                e(f"s_sleep {o.qsleep}")
            e("s_waitcnt vmcnt(0)")
            for i in range(4):
                e(f"v_xor_b32 v{4 + i}, s{S_TG[i]}, v{4 + i}")
            e("v_or3_b32 v21, v4, v5, v6")
            e("v_bitop3_b32 v21, v21, v7, 15 bitop3:0xa8")
            e("v_cmp_ne_u32 vcc, 0, v21")
            e("s_wqm_b64 exec, vcc")
            e(f"s_cbranch_scc1 L_qpoll{kind}")
            e(f"L_qgot{kind}:")
            if o.clean == "p":
                e("s_mov_b64 exec, 1")
                e(f"buffer_store_dword v19, off, s[{S_WS}:{S_WS + 3}], s{S_V} sc1")
            e("s_mov_b64 exec, -1")
            self.stamp(5)
            e("v_permlane32_swap_b32 v4, v6")
            e("v_permlane32_swap_b32 v5, v7")
            e(f"{op} v4, v4, v6")
            e(f"{op} v5, v5, v7")
            e("s_nop 1")
            e("v_permlane16_swap_b32 v4, v5")
            e(f"{op} v4, v4, v5")
            e(f"s_cmp_ge_u32 s{S_WAVE}, 3")
            e("s_nop 0")
            e(f"{op}_dpp v4, v4, v4 row_ror:8 row_mask:0xf bank_mask:0xf")
            if kind == 0:
                e("v_mul_f32 v4, 0x36800000, v4              ; 1/262144")
            e("v_cvt_pk_bf16_f32 v4, v4, v4")
            e(f"ds_write_b16 v23, v4 offset:{L_F}")
            if o.clean == "q":
                e("s_mov_b64 exec, 1")
                e(f"buffer_store_dword v19, off, s[{S_WS}:{S_WS + 3}], s{S_V} sc1")
                e("s_mov_b64 exec, -1")
            e("s_waitcnt lgkmcnt(0)")
            e("s_barrier")
            if kind == 0:
                e("s_cbranch_scc0 L_mlp1")
                if o.clean == "f":
                    clean("L_join", 16, 12)
            e("s_branch L_join")

        e("L_mlp1:")
        for s in range(6):
            e(f"ds_read_b128 v[{B1[s]}:{B1[s] + 3}], v2 offset:{L_F + 64 * s}")
        for s in range(6):
            c = "0" if s == 0 else "v[20:23]"
            b = B1[s]
            e(f"s_waitcnt lgkmcnt({5 - s})")
            e(f"v_mfma_f32_16x16x32_bf16 v[20:23], v[{A1 + 4 * s}:{A1 + 4 * s + 3}], v[{b}:{b + 3}], {c}")
        e("s_nop 3")
        e("s_mov_b32 exec_lo, 0x00030003")
        e("s_mov_b32 exec_hi, 0x00030003")
        e("s_nop 1")
        for i in range(4):
            e(f"v_maximum3_f32 v{20 + i}, v{20 + i}, 0, 0")
        e("v_cvt_pk_bf16_f32 v20, v20, v21")
        e("v_cvt_pk_bf16_f32 v21, v22, v23")
        e(f"ds_write_b64 v3, v[20:21] offset:{L_H}")
        e("s_mov_b64 exec, -1")
        e("s_waitcnt lgkmcnt(0)")

        e("L_join:")
        e("s_barrier")
        self.stamp(6)
        e(f"ds_read_b128 v[4:7], v{V_H0} offset:{L_H}")
        e(f"ds_read_b128 v[8:11], v{V_H1} offset:{L_H + 64}")
        e("s_waitcnt lgkmcnt(1)")
        e(f"v_mfma_f32_16x16x32_bf16 v[12:15], v[4:7], v[{B2}:{B2 + 3}], 0")
        e("s_waitcnt lgkmcnt(0)")
        e(f"v_mfma_f32_16x16x32_bf16 v[12:15], v[8:11], v[{B2 + 4}:{B2 + 7}], v[12:15]")
        e("s_mov_b64 exec, 0xffff")
        e("s_nop 6")
        e("v_cvt_pk_bf16_f32 v12, 0, v12")
        e("v_cvt_pk_bf16_f32 v13, 0, v13")
        e("v_add_f32 v12, v12, v13")
        e("v_cvt_pk_bf16_f32 v12, 0, v12")
        e("v_mul_f32 v12, 0xbfb8aa3b, v12            ; -log2(e)")
        e("v_exp_f32 v12, v12")
        e("s_nop 0")
        e("v_add_f32 v12, 1.0, v12")
        e("v_rcp_f32 v12, v12")
        e("s_nop 0")
        if o.mul == "dot":
            e("v_cvt_pk_bf16_f32 v12, v12, v12")
            e(f"ds_write_b16 v{V_SW}, v12 offset:{L_S}")
        else:
            e("v_cvt_pk_bf16_f32 v12, 0, v12")
            e(f"ds_write_b32 v{V_SW}, v12 offset:{L_S}")
        e("s_mov_b64 exec, -1")
        e("s_waitcnt lgkmcnt(0)")
        e("s_barrier")
        e(f"ds_read_b128 v[4:7], v{V_SR} offset:{L_S}")
        e(f"ds_read_b128 v[8:11], v{V_SR} offset:{L_S + 16}")

        if o.stlim:
            e(f"s_cmp_lt_u32 s2, {o.stlim}")
            e(f"s_cselect_b32 s{S_OUT + 2}, s{S_OUT + 2}, 0")
        zorder = [int(v) for v in o.zorder.split(",")]
        assert sorted(zorder) == list(range(16))
        restored = False
        late = []

        def wbl2():
            wv, lim, pos = [int(v) for v in o.wb.split(",")]
            e(f"s_cmp_lt_u32 s{S_WAVE}, {wv}")
            e("s_cbranch_scc1 L_nowb")
            e(f"s_cmp_ge_u32 s2, {lim}")
            e("s_cbranch_scc1 L_nowb")
            if pos == 33:
                e("s_waitcnt vmcnt(0)")
            e("buffer_wbl2 sc1")
            e("L_nowb:")
        for n, j in enumerate([2 * z + u for z in zorder for u in (0, 1)]):
            a = D0 + 4 * j
            t0 = 12 + 8 * (n & 1)
            if a >= SP0 and not restored:
                assert n > 1
                e("s_waitcnt lgkmcnt(0)")
                restored = True
            md = o.mul
            for i in range(4 if md in ("pk", "mul", "u", "um") else 0):
                t = t0 + 2 * i
                e(f"v_lshlrev_b32 v{t}, 16, v{a + i}")
                e(f"v_and_b32 v{t + 1}, s{S_MASK}, v{a + i}")
            if n == 0:
                e("s_waitcnt lgkmcnt(0)")
                self.stamp(7)
            for i in range(4):
                t = t0 + 2 * i
                if md in ("pk", "um"):
                    e(f"v_pk_mul_f32 v[{t}:{t + 1}], v[{t}:{t + 1}], v[{4 + 2 * i}:{5 + 2 * i}]")
                if md == "mul":
                    e(f"v_mul_f32 v{t}, v{t}, v{4 + 2 * i}")
                    e(f"v_mul_f32 v{t + 1}, v{t + 1}, v{5 + 2 * i}")
                if md == "dot":
                    e(f"v_dot2_f32_bf16 v{t}, v{a + i}, v{4 + 2 * i}, 0")
                    e(f"v_dot2_f32_bf16 v{t + 1}, v{a + i}, v{5 + 2 * i}, 0")
            for i in range(4):
                t = t0 + 2 * i
                if md in ("pk", "mul", "dot"):
                    e(f"v_cvt_pk_bf16_f32 v{a + i}, v{t}, v{t + 1}")
                if md == "c":
                    e(f"v_cvt_pk_bf16_f32 v{a + i}, v{a + i}, v{a + (i ^ 1)}")
            def st(j=j, a=a, n=n):
                self.mem(j, lambda va, so: e(f"buffer_store_dwordx4 v[{a}:{a + 3}], {va}, s[{S_OUT}:{S_OUT + 3}], {so} offen{'' if n >= 32 - o.nplain else stf}"))
            if n < o.burst:
                st()
            else:
                late.append(st)
            if n == 31:
                for f in late:
                    f()
            if n + 1 in o.sbar:
                e("s_barrier")
            if o.sthr and n >= o.sthr:
                e(f"s_waitcnt vmcnt({o.sthr - 1})")
            if o.wb and int(o.wb.split(",")[2]) == n:
                wbl2()
            if n & 1:
                self.trace("st", n >> 1)
            if n == 1:
                e(f"s_cmp_ge_u32 s{S_WAVE}, 3")
                e("s_cbranch_scc1 L_norestore")
                for k in range(8):
                    e(f"ds_read_b128 v[{SP0 + 4 * k}:{SP0 + 4 * k + 3}], v{V_AT} offset:{L_SPILL + 1024 * k}")
                e("L_norestore:")
                if o.clean == "st":
                    clean("L_noclean", 28, 32)
                    e("L_noclean:")
        if o.clean == "e":
            clean("L_noclean", 28, 32)
            e("L_noclean:")
        if o.wb and int(o.wb.split(",")[2]) >= 32:
            wbl2()
        if o.stamps:
            self.stamp(8)
            e("s_waitcnt vmcnt(0)")
            self.stamp(10)
            if o.idleclk:
                e(f"s_cmp_lg_u32 s{S_WAVE}, 11")
                e("s_cbranch_scc1 L_noidle")
                for lbl, dur, m, r in (("a", o.idleclk, 1, 3), ("b", 2000, 2, 6)):
                    e("s_memrealtime s[96:97]")
                    e("s_waitcnt lgkmcnt(0)")
                    e(f"L_idle{lbl}:")
                    e("s_sleep 4")
                    e("s_memrealtime s[98:99]")
                    e("s_waitcnt lgkmcnt(0)")
                    e("s_sub_u32 s98, s98, s96")
                    e(f"s_cmp_lt_u32 s98, {dur}")
                    e(f"s_cbranch_scc1 L_idle{lbl}")
                    e(f"s_memtime s[{S_STAMP + 2 * m}:{S_STAMP + 2 * m + 1}]")
                    e(f"s_memrealtime s[{S_STAMP + 2 * r}:{S_STAMP + 2 * r + 1}]")
                e("L_noidle:")
            e("s_getreg_b32 s94, hwreg(HW_REG_XCC_ID)")
            e("s_getreg_b32 s95, hwreg(HW_REG_HW_ID)")
            e("s_waitcnt lgkmcnt(0)")
            e("v_mov_b32 v2, 0")
            for i in range(11 if o.trace else 14):
                e(f"v_writelane_b32 v2, s{S_STAMP + 2 * i}, {i}")
            e("v_writelane_b32 v2, s94, 14")
            e("v_writelane_b32 v2, s95, 15")
            e(f"s_mul_i32 s{S_T0}, s2, 12")
            e(f"s_add_u32 s{S_T0}, s{S_T0}, s{S_WAVE}")
            e(f"s_lshl_b32 s{S_T0}, s{S_T0}, 6")
            e(f"s_add_u32 s{S_T0}, s{S_T0}, {WS_STAMP}")
            e("v_mbcnt_lo_u32_b32 v3, -1, 0")
            e("v_lshlrev_b32 v3, 2, v3")
            e("s_mov_b64 exec, 0xffff")
            e(f"buffer_store_dword v2, v3, s[{S_WS}:{S_WS + 3}], s{S_T0} offen sc1")
            if o.trace:
                e("s_mov_b32 s91, s92")
                for i in range(16):
                    e(f"v_writelane_b32 v2, s{76 + i}, {i}")
                e(f"s_add_u32 s{S_T0}, s{S_T0}, {1 << 19}")
                e(f"buffer_store_dword v2, v3, s[{S_WS}:{S_WS + 3}], s{S_T0} offen sc1")
        if o.dbgptr:
            e("s_cmp_lg_u32 s2, 0")
            e("s_cbranch_scc1 L_nodp")
            e("s_mov_b64 exec, -1")
            e("v_mov_b32 v2, 0")
            for i, r in enumerate((4, 5, 8, 9, 12, 13, 16, 17, 0, 1)):
                e(f"v_writelane_b32 v2, s{r}, {i}")
            e("v_mbcnt_lo_u32_b32 v3, -1, 0")
            e("v_lshlrev_b32 v3, 2, v3")
            e("s_mov_b64 exec, 0x3ff")
            e(f"buffer_store_dword v2, v3, s[{S_DBG}:{S_DBG + 3}], 0 offen offset:8")
            e("L_nodp:")
        if o.probe:
            idx, K = [int(v) for v in o.probe.split(",")]
            if idx == -5:
                e("s_cmp_ge_u32 s2, 8")
                e("s_cbranch_scc1 L_end")
            elif idx == -2:
                e("s_getreg_b32 s94, hwreg(HW_REG_XCC_ID)")
                e("s_xor_b32 s94, s94, s2")
                e("s_and_b32 s94, s94, 7")
                e("s_cbranch_scc0 L_end")
            elif idx == -3:
                e("s_cmp_lg_u32 s2, 0")
                e("s_cbranch_scc1 L_end")
            else:
                e(f"s_cmp_lg_u32 s2, {o.pwg}")
                e("s_cbranch_scc1 L_end")
            e(f"s_cmp_lg_u32 s{S_WAVE}, {o.pwave}")
            e("s_cbranch_scc1 L_end")
            if idx == -5:
                e("s_mov_b32 s96, 0")
                e("L_sk:")
                e("s_sleep 100")
                e("s_add_u32 s96, s96, 1")
                e("s_cmp_lt_u32 s96, 4")
                e("s_cbranch_scc1 L_sk")
                e(f"s_mov_b32 s94, {WS_STAMP}")
                e(f"buffer_load_dword v4, off, s[{S_WS}:{S_WS + 3}], s94 sc1")
                e("s_waitcnt vmcnt(0)")
                e("v_readfirstlane_b32 s94, v4")
                e(f"s_sub_u32 s95, s{S_STAMP}, s94")
                e(f"s_mul_i32 s95, s95, {K - 1}")
                e("s_add_u32 s96, s95, 8000")
            elif idx == -4:
                c0, c1, r0, r1 = ((11, 12, 0, 7), (12, 13, 7, 10))[K]
                e(f"s_sub_u32 s94, s{S_STAMP + 2 * c1}, s{S_STAMP + 2 * c0}")
                e(f"s_sub_u32 s95, s{S_STAMP + 2 * r1}, s{S_STAMP + 2 * r0}")
                e("v_cvt_f32_u32 v4, s94")
                e("v_cvt_f32_u32 v5, s95")
                e("v_rcp_f32 v5, v5")
                e("s_nop 1")
                e("v_mul_f32 v4, v4, v5")
                e("v_mul_f32 v4, 0x44fa0000, v4")
                e("v_cvt_u32_f32 v4, v4")
                e("s_nop 1")
                e("v_readfirstlane_b32 s96, v4")
                e("s_sub_u32 s96, s96, 31000")
            elif idx <= -10:
                e(f"s_bfe_u32 s94, s{-idx - 10}, {(7 << 16)} + {K}")
                e("s_mul_i32 s96, s94, 200")
                e("s_add_u32 s96, s96, 5000")
            elif idx == -3:
                e("s_getreg_b32 s94, hwreg(HW_REG_XCC_ID)")
                e("s_and_b32 s94, s94, 7")
                e(f"s_mul_i32 s96, s94, {K}")
                e("s_add_u32 s96, s96, 5000")
            elif idx < 0:
                e(f"s_mov_b32 s96, {K}")
            else:
                e(f"s_sub_u32 s96, s{S_STAMP + 2 * idx}, s{S_STAMP + 2 * o.pref}")
                e(f"s_mul_i32 s96, s96, {K}")
                if o.pref:
                    e("s_add_u32 s96, s96, 5000")
            e("s_min_u32 s96, s96, 200000")
            e("L_probe:")
            e("s_memrealtime s[98:99]")
            e("s_waitcnt lgkmcnt(0)")
            e(f"s_sub_u32 s98, s98, s{S_STAMP}")
            e("s_cmp_lt_u32 s98, s96")
            e("s_cbranch_scc1 L_probe")
        e("L_end:")
        e("s_endpgm")

        e(".p2align 7")
        e("L_role:")
        e("s_load_dwordx4 s[44:47], s[0:1], 32")
        e(f"s_lshr_b32 s{S_V + 1}, s2, 3")
        e(f"s_and_b32 s{S_T1}, s2, 1")
        e(f"s_lshl1_add_u32 s{S_T1}, s{S_T1}, 1")
        e(f"s_mul_i32 s{S_T2}, s2, 0x104100")
        e(f"s_cmp_eq_u32 s2, {NVOTE_WG}")
        e("s_waitcnt lgkmcnt(0)")
        e("s_cbranch_scc1 L_tag")
        e(f"s_sub_u32 s{S_T0}, s{S_OUT}, s{S_X}")
        e(f"s_addk_i32 s{S_T0}, 2048")
        e(f"s_bitcmp1_b32 s{S_T0}, 12")
        e(f"s_cselect_b32 s{S_V}, {o.quorum}, {o.quorum4}")
        e(f"s_cselect_b32 s{S_V + 2}, s{S_V + 1}, 1")
        e(f"s_cmp_eq_u32 s{S_V + 2}, 2")
        e(f"s_cselect_b32 s{S_V + 1}, s{S_T1}, s{S_V + 1}")
        e(f"s_bitcmp1_b32 s{S_V + 1}, 0")
        e(f"s_cselect_b64 s[{S_W}:{S_W + 1}], s[8:9], s[4:5]")
        e(f"s_lshr_b32 s{S_T1}, s{S_V + 1}, 1")
        e(f"s_lshl_b32 s{S_T1}, 0x2000000, s{S_T1}")
        e(f"s_add_u32 s{S_T2}, s{S_T2}, s{S_T1}")
        e(f"s_lshr_b32 s{S_T0}, s{S_OUT}, 7")
        e(f"s_mul_i32 s{S_T0}, s{S_T0}, 21")
        e(f"s_and_b32 s{S_T0}, s{S_T0}, 63")
        e(f"s_mulk_i32 s{S_T0}, 384")
        e(f"s_add_u32 s{S_T0}, s{S_T0}, s{S_T2}")
        e(f"s_cmp_lg_u32 s{S_V + 2}, 0")
        e(f"s_cselect_b32 s{S_V + 3}, s{S_OUT}, 0")
        e("s_cbranch_scc1 L_notws")
        e(f"s_mov_b64 s[{S_W}:{S_W + 1}], s[46:47]")
        e(f"s_and_b32 s{S_T0}, s{S_T2}, 0xfffff")
        e(f"s_add_u32 s{S_T0}, s{S_T0}, {WS_PROBE}")
        e("L_notws:")
        e(f"s_add_u32 s{S_T1}, s{S_T0}, 8192")
        self.stamp(1, True)
        e(f"s_load_dword s42, s[{S_W}:{S_W + 1}], s{S_T0} glc")
        e(f"s_load_dword s43, s[{S_W}:{S_W + 1}], s{S_T1} glc")
        e(f"s_mov_b32 s{S_CNT}, {-(NRACE // 2)}")
        if o.dpf:
            e(f"s_load_dword s23, s[44:45], 192 glc")
        for k in range(NRACE):
            e("s_waitcnt lgkmcnt(0)")
            if k < 2:
                self.stamp(2 + k, True)
                if o.vdiag:
                    e("s_waitcnt lgkmcnt(0)")
            first, second = (S_T0, S_T1) if k % 2 == 0 else (S_T1, S_T0)
            e(f"s_load_dword s42, s[{S_W}:{S_W + 1}], s{first} glc")
            e(f"s_load_dword s43, s[{S_W}:{S_W + 1}], s{second} glc")
            e("s_waitcnt lgkmcnt(1)")
            e("s_nop 7")
            e(f"s_getreg_b32 s{S_T2}, hwreg(HW_REG_IB_STS, 8, 4)   ; 1: the second answer is still out")
            if k % 2 == 0:
                e(f"s_xor_b32 s{S_T2}, s{S_T2}, 1")
            e(f"s_add_u32 s{S_CNT}, s{S_CNT}, s{S_T2}")
        assert NRACE % 2 == 0 and max(o.quorum, o.quorum4) * NRACE // 2 < 32 and max(o.quorum, o.quorum4) <= NVOTE_WG
        e(f"s_sub_u32 s{S_T2}, 0, s{S_CNT}")
        e(f"s_add_u32 s{S_T0}, s{S_T0}, s{S_V + 3}")
        e(f"s_lshr_b32 s{S_T0}, s{S_T0}, 19")
        e(f"s_xor_b32 s{S_T0}, s{S_T0}, s2")
        e(f"s_bitcmp1_b32 s{S_T0}, 2")
        e(f"s_cselect_b32 s{S_CNT}, s{S_T2}, s{S_CNT}")
        e(f"s_mul_i32 s{S_T0}, s{S_V + 1}, 6")
        e(f"s_add_u32 s{S_T0}, s{S_T0}, 7")
        e(f"s_lshl_b32 s{S_CNT}, s{S_CNT}, s{S_T0}")
        e(f"s_or_b32 s{S_CNT}, s{S_CNT}, 1")
        e(f"s_mov_b32 s{S_T1}, s{S_CNT}")
        self.stamp(6, True)
        e(f"s_atomic_add s{S_T1}, s[44:45], {DBG_TAL} glc")
        e(f"s_add_u32 s{S_CNT}, s{S_CNT}, {sum(31 << (7 + 6 * t) for t in range(4))}")
        e("s_waitcnt lgkmcnt(0)")
        e(f"s_add_u32 s{S_T1}, s{S_T1}, s{S_CNT}")
        self.stamp(13)
        e(f"s_and_b32 s{S_T0}, s{S_T1}, 0x7f")
        e(f"s_cmp_lg_u32 s{S_T0}, s{S_V}")
        e("s_cbranch_scc1 L_stream")
        e(f"s_and_b32 s{S_T1}, s{S_T1}, {sum(32 << (7 + 6 * t) for t in range(4))}")
        e(f"s_bitset1_b32 s{S_T1}, 9")
        e("L_publish:")
        e(f"s_atomic_add s{S_T1}, s[44:45], {DBG_RES}")
        e("s_waitcnt lgkmcnt(0)")
        e("s_branch L_stream")

        e("L_tag:")
        e(f"s_mov_b32 s{S_T1}, 1")
        e("s_waitcnt lgkmcnt(0)")
        e(f"s_atomic_add s{S_T1}, s[46:47], {WS_E} glc")
        e("s_waitcnt lgkmcnt(0)")
        e(f"s_add_u32 s{S_T1}, s{S_T1}, 1")
        e(f"s_and_b32 s{S_T1}, s{S_T1}, 0xff")
        e(f"s_bitset1_b32 s{S_T1}, 8")
        self.stamp(13)
        e("s_branch L_publish")

        for nm in ("r", "q0", "q1"):
            k = nm[1:]
            e(f"L_{nm[0]}long{k}:")
            e("s_waitcnt vmcnt(0)")
            e(f"s_cmp_lg_u32 s{S_HOOK}, 0")
            e(f"s_cbranch_scc1 L_{nm[0]}got{k}")
            e(f"s_call_b64 s[{S_RET}:{S_RET + 1}], L_flush")
            e(f"s_branch L_{nm[0]}poll{k}")
        e("L_flush:")
        e(f"s_mov_b32 s{S_CNT}, {SPIN}")
        e(f"s_mov_b32 s{S_HOOK}, {SPIN}")
        e("s_mov_b32 exec_lo, -1")
        e("s_mov_b32 exec_hi, 0xffff")
        e("v_lshlrev_b32 v17, 4, v1")
        e("L_floop:")
        e(f"buffer_load_dwordx4 v[8:11], v17, s[{S_WS}:{S_WS + 3}], s{S_PO} offen sc1")
        e(f"buffer_load_dwordx4 v[12:15], v17, s[{S_WS}:{S_WS + 3}], s{S_PO} offen offset:768 sc1")
        e(f"s_sub_u32 s{S_HOOK}, s{S_HOOK}, 1")
        e("s_waitcnt vmcnt(0)")
        e(f"v_xor_b32 v16, s{S_TG[0]}, v8")
        for r in range(9, 16):
            e(f"v_bitop3_b32 v16, v16, v{r}, s{S_TG[r & 3]} bitop3:0xf6")
        e("v_and_b32 v16, 15, v16")
        e("v_cmp_ne_u32 vcc, 0, v16")
        e("s_cbranch_scc1 L_fdone")
        e("s_cbranch_vccnz L_floop")
        e("L_fdone:")
        e(f"buffer_store_dwordx4 v[8:11], v17, s[{S_WS}:{S_WS + 3}], s{S_PO} offen sc1")
        e(f"buffer_store_dwordx4 v[12:15], v17, s[{S_WS}:{S_WS + 3}], s{S_PO} offen offset:768 sc1")
        e("s_waitcnt vmcnt(0)")
        e("s_mov_b64 exec, -1")
        e(f"s_mov_b32 s{S_HOOK}, -1")
        e(f"s_setpc_b64 s[{S_RET}:{S_RET + 1}]")

        e("L_dpoll:")
        e(f"s_mov_b32 s{S_CNT}, {SPIN}")
        e(f"v_mov_b32 v{V_AT}, 0")
        e("s_mov_b64 exec, 1")
        e("L_dloop:")
        e(f"buffer_load_dword v{V_AT}, off, s[{S_DBG}:{S_DBG + 3}], 0 offset:{DBG_RES} sc1")
        e(f"s_sleep {o.dsleep}")
        e("s_waitcnt vmcnt(24)")
        e(f"v_readfirstlane_b32 s{S_T2}, v{V_AT}          ; whatever poll has landed last")
        e(f"s_sub_u32 s{S_CNT}, s{S_CNT}, 1")
        e("s_cbranch_scc1 L_dgot")
        e(f"s_andn2_b32 s{S_OFF}, {RES_OK}, s{S_T2}")
        e("s_cbranch_scc1 L_dloop")
        e("L_dgot:")
        e("s_mov_b64 exec, -1")
        e("s_branch L_decided")

        e("L_codeend:")
        e("s_endpgm")

    def text(self):
        out = HEADER
        out += f"; @launch grid=({NWG},1,1) block=(768,1,1) lds={L_TOTAL}\n"
        out += '.amdgcn_target "amdgcn-amd-amdhsa--gfx950"\n.text\n'
        out += f".globl {KNAME}\n.p2align 8\n.type {KNAME},@function\n{KNAME}:\n"
        out += "\n".join(self.lines) + "\n"
        out += f""".section .rodata,"a"
.p2align 6
.amdhsa_kernel {KNAME}
  .amdhsa_next_free_vgpr 168
  .amdhsa_next_free_sgpr {100 if self.o.stamps else 56}
  .amdhsa_accum_offset 168
  .amdhsa_group_segment_fixed_size 0
  .amdhsa_kernarg_size 48
  .amdhsa_user_sgpr_count 2
  .amdhsa_user_sgpr_kernarg_segment_ptr 1
  .amdhsa_system_sgpr_workgroup_id_x 1
  .amdhsa_float_denorm_mode_32 3
.end_amdhsa_kernel
"""
        return out


def main():
    p = argparse.ArgumentParser()
    p.add_argument("-o", default="standalone__channel_attn_cbam__vision.s")
    p.add_argument("--ldflags", default="nt")
    p.add_argument("--stflags", default="sc1")
    p.add_argument("--p1flags", default="sc1")
    p.add_argument("--stamps", action="store_true")
    p.add_argument("--probe", default="")
    p.add_argument("--depth", type=int, default=10)
    p.add_argument("--nrace", type=int, default=2)
    p.add_argument("--dsleep", type=int, default=8)
    p.add_argument("--trace", default="")
    p.add_argument("--nodec", action="store_true")
    p.add_argument("--vdiag", action="store_true")
    p.add_argument("--dbgptr", action="store_true")
    p.add_argument("--opp", default="5,9", type=lambda v: [int(x) for x in v.split(",")])
    p.add_argument("--quorum", type=int, default=16)
    p.add_argument("--quorum4", type=int, default=24)
    p.add_argument("--nvote", type=int, default=32)
    p.add_argument("--nagn", type=int, default=6)
    p.add_argument("--stlim", type=int, default=0)
    p.add_argument("--psc1", action="store_true")
    p.add_argument("--pnt", action="store_true")
    p.add_argument("--sdiag", action="store_true")
    p.add_argument("--rpf", type=int, default=0)
    p.add_argument("--dpf", type=int, default=0)
    p.add_argument("--pwg", type=int, default=0)
    p.add_argument("--pwave", type=int, default=0)
    p.add_argument("--pref", type=int, default=0)
    p.add_argument("--qshift", type=int, default=32)
    p.add_argument("--rolepos", type=int, default=-1)
    p.add_argument("--prebar", type=int, default=1)
    p.add_argument("--qmap", type=int, default=0)
    p.add_argument("--agnu", type=int, default=4)
    p.add_argument("--warmst", type=int, default=0)
    p.add_argument("--cw", type=int, default=0)
    p.add_argument("--cld", action="store_true")
    p.add_argument("--qflip", type=int, default=0)
    p.add_argument("--qcopy", type=int, default=4)
    p.add_argument("--mul", default="dot")
    p.add_argument("--burst", type=int, default=32)
    p.add_argument("--idleclk", type=int, default=0)
    p.add_argument("--clk", action="store_true")
    p.add_argument("--sthr", type=int, default=0)
    p.add_argument("--sbar", default=[24], type=lambda v: [int(x) for x in v.split(",")])
    p.add_argument("--piece", type=int, default=128)
    p.add_argument("--xbar", default=[24], type=lambda v: [int(x) for x in v.split(",")])
    p.add_argument("--cpf", type=int, default=0)
    p.add_argument("--cpfpos", type=int, default=0)
    p.add_argument("--wpace", type=int, default=40)
    p.add_argument("--clean", default="q")
    p.add_argument("--warm", type=int, default=30)
    p.add_argument("--warmwave", type=int, default=4)
    p.add_argument("--qsleep", type=int, default=0)
    p.add_argument("--red0", type=int, default=8)
    p.add_argument("--redstep", type=int, default=2)
    p.add_argument("--off", default="", help="diagnostics: v = no votes, c = no clears, r = result not read")
    p.add_argument("--spans", default="")
    p.add_argument("--split", action="store_true")
    p.add_argument("--pfback", type=int, default=0)
    p.add_argument("--nplain", type=int, default=0)
    p.add_argument("--wb", default="", help="minwave,wglimit,pos")
    p.add_argument("--thr", type=int, default=2)
    p.add_argument("--thrfrom", type=int, default=12)
    p.add_argument("--thrto", type=int, default=24)
    p.add_argument("--thrmask", default="0x55")
    p.add_argument("--zorder", default="8,0,9,1,10,2,11,3,12,4,13,5,14,6,15,7")
    o = p.parse_args()
    global NAGN, SPANS, NVOTE_WG
    NVOTE_WG = o.nvote
    NAGN = o.nagn
    if NAGN == 6:
        SPANS = [(0, 0), (0, 1), (1, 0), (1, 1), (2, 0), (2, 1),
                 (3, 0), (3, 1), (4, 0), (4, 1), (5, 0), (5, 1), (6, 0), (6, 1), (7, 0), (7, 1)]
        if o.zorder == p.get_default("zorder"):
            o.zorder = "6,0,7,1,8,2,9,3,10,4,11,5,12,13,14,15"
    if o.spans:
        SPANS = [(int(v[0]), int(v[1])) for v in o.spans.split(",")]
        assert sorted(SPANS) == [(a, b) for a in range(8) for b in range(2)]
    g = G(o)
    g.build()
    open(o.o, "w").write(g.text())


if __name__ == "__main__":
    main()
```

```python
import argparse

KNAME = "standalone__channel_attn_cbam__vision_kernel"

HEADER = """; Kernarg layout for this problem (48 bytes, ptrs only, base s[0:1]):
;   offset   0: d_in[0] x  shape=(1, 512, 512, 192) dtype=bfloat16 strides=(100663296, 196608, 384, 2) contiguous=True
;   offset   8: d_in[1] w1  shape=(192, 48) dtype=bfloat16 strides=(96, 2) contiguous=True
;   offset  16: d_in[2] w2  shape=(48, 192) dtype=bfloat16 strides=(384, 2) contiguous=True
;   offset  40: d_ws      402653184 bytes workspace (unspecified values whenever your kernel or launch list starts; a list's later launches find what earlier ones wrote)
"""

X_BYTES = 100663296
NWG = 256
NRED = 12
MiB = 1 << 20

L_RED = 0
L_H = 6144
L_DEC = 6336
L_S = 6400
L_F = 7168
L_W1 = 8192
L_W2 = L_W1 + 18432
L_SPILL = L_W2 + 18432
L_TOTAL = L_SPILL + 3 * 8192

WS_P = 0
WS_Q = 256 * 1536
WS_E = WS_Q + 4 * 49152
WS_USED = WS_E + 128
WS_PROBE = 640 * 1024
WS_STAMP = 1 << 20

S_X, S_OUT, S_WS, S_DBG, S_W = 4, 8, 12, 16, 20
S_WAVE, S_TY, S_SUB, S_OFF, S_MASK, S_CNT, S_T0, S_T1 = 28, 29, 30, 31, 32, 33, 34, 35
S_BASE, S_PM, S_P, S_T2 = 48, 49, 50, 51
S_AGN, S_RID, S_PO = 40, 42, 43
S_TG = [41, 47, 3, 0]
S_RET, S_HOOK, S_QC = 38, 46, 1
S_BASE1 = 45
NFB = 48
S_STAMP = 52
S_V = 24

D0 = 40
SPIN = 400000
V_L, V_G0, V_G1, V_AT = 0, 39, 38, 36

NAGN = 8
SPANS = [(0, 0), (0, 1), (1, 0), (1, 1), (2, 0), (2, 1), (3, 0), (3, 1),
         (6, 0), (4, 0), (6, 1), (4, 1), (7, 0), (5, 0), (7, 1), (5, 1)]
W_ROLE = 0
DBG_RES, DBG_TAL = 0, 128
NVOTE_WG = 32
RES_OK = (1 << 9) | (1 << 8)


def mask(pred):
    return sum(1 << z for z, s in enumerate(SPANS) if pred(z, s))


class G:
    def __init__(self, o):
        self.o = o
        self.lines = []

    def e(self, s=""):
        self.lines.append(("    " + s) if s and not s.endswith(":") else s)

    def stamp(self, idx, vote=False):
        if self.o.clk:
            if idx in (11, 12, 13):
                return
            m = {0: 11, 7: 12, 10: 13}.get(idx)
            if m:
                self.e(f"s_memtime s[{S_STAMP + 2 * m}:{S_STAMP + 2 * m + 1}]")
        if vote == "r":
            vote = False
        if self.o.vdiag and idx in (1, 2, 3, 6) and not vote:
            return
        if vote and not self.o.vdiag:
            return
        if self.o.stamps and not (self.o.trace and idx > 10):
            self.e(f"s_memrealtime s[{S_STAMP + 2 * idx}:{S_STAMP + 2 * idx + 1}]")

    def srd(self, d, lo, nbytes):
        e = self.e
        e(f"s_mov_b64 s[{d}:{d + 1}], s[{lo}:{lo + 1}]")
        e(f"s_mov_b32 s{d + 2}, {nbytes}")
        e(f"s_mov_b32 s{d + 3}, 0x20000")

    def span_off(self, z):
        return SPANS[z][0] * 12 * MiB + SPANS[z][1] * 49152

    def mem(self, j, fn):
        e = self.e
        z, u = j >> 1, j & 1
        if z < NAGN:
            off = (j // self.o.agnu) * (self.o.agnu * 3 * MiB - (self.o.skew if self.o.skewa else 0)) + (j % self.o.agnu) * 12288
            if off:
                e(f"s_add_u32 s{S_OFF}, s{S_AGN}, {off}")
                fn(f"v{V_L}", f"s{S_OFF}")
            else:
                fn(f"v{V_L}", f"s{S_AGN}")
            return
        if u == 0:
            e(f"s_bitcmp1_b32 s{S_PM}, {z}")
            e(f"s_cselect_b32 s{S_P}, 24576, 0")
        e(f"s_add_u32 s{S_OFF}, s{(S_BASE, S_BASE1)[SPANS[z][1]]}, {SPANS[z][0] * 12 * MiB - self.o.skew * (SPANS[z][0] * self.o.skewd + self.o.skewc) + 12288 * u}")
        at = 2 + u
        e(f"v_xad_u32 v{at}, v{(V_G0, V_G1)[u]}, s{S_P}, v{V_L}")
        if SPANS[z] == (7, 1):
            e(f"v_add_u32 v{at}, s{S_OFF}, v{at}")
            e(f"v_subrev_u32 v{5 - at}, s{S_X + 2}, v{at}")
            e(f"v_min_u32 v{at}, v{at}, v{5 - at}             ; past the end: wrap to the rows the shift skipped")
            fn(f"v{at}", "0")
        else:
            fn(f"v{at}", f"s{S_OFF}")

    def trace(self, kind, n):
        if self.o.trace == kind:
            if n > 0:
                self.e("s_waitcnt lgkmcnt(0)")
                self.e(f"s_mov_b32 s{76 + n - 1}, s92")
            self.e("s_memrealtime s[92:93]")

    def build(self):
        o, e = self.o, self.e
        NRACE = o.nrace
        ldf = (" " + o.ldflags) if o.ldflags else ""
        stf = (" " + o.stflags) if o.stflags else ""

        self.stamp(0)
        e("s_load_dwordx2 s[4:5], s[0:1], 0          ; x")
        e("s_load_dwordx2 s[8:9], s[0:1], 24         ; out")
        e("v_readfirstlane_b32 s%d, v0" % S_WAVE)
        e("v_and_b32 v1, 63, v0                      ; lane")
        pl = (o.piece // 16).bit_length() - 1
        e(f"v_bfe_u32 v2, v0, {pl}, {6 - pl}")
        e(f"v_mul_u32_u24 v2, {3 * o.piece}, v2")
        e(f"v_and_b32 v3, {(1 << pl) - 1}, v0")
        e("s_cmpk_ge_u32 s2, %d" % NWG)
        e("s_cbranch_scc1 L_end")
        if o.rot:
            e(f"s_add_u32 s2, s2, {o.rot}")
            e("s_and_b32 s2, s2, 255")
        if o.rolepos < 0:
            e(f"s_lshl2_add_u32 s{S_T1}, s{S_WAVE}, s2")
            e(f"s_cmp_le_u32 s{S_T1}, {NVOTE_WG}              ; wave 0 of the first workgroups has a side job")
            e("s_cbranch_scc1 L_role")
            e("L_stream:")
        e(f"s_lshr_b32 s{S_WAVE}, s{S_WAVE}, 6")
        e(f"s_mul_i32 s{S_SUB}, s{S_WAVE}, 43")
        e(f"s_lshr_b32 s{S_SUB}, s{S_SUB}, 7")
        e(f"s_mul_i32 s{S_T0}, s{S_SUB}, {3072 // o.piece - 3}")
        e(f"s_add_u32 s{S_T0}, s{S_T0}, s{S_WAVE}        ; sub*24 + wave % 3")
        e(f"s_lshl_b32 s{S_T0}, s{S_T0}, {pl + 4}")
        e("v_lshl_add_u32 v0, v3, 4, v2")
        e(f"v_add_u32 v{V_L}, s{S_T0}, v0               ; + sub*3072 + (wave % 3)*128")
        if o.qmap == 0:
            e(f"s_and_b32 s{S_T0}, s2, 3")
            e(f"s_bfe_u32 s{S_T1}, s2, 0x10002")
            e(f"s_lshl1_add_u32 s{S_T0}, s{S_T0}, s{S_T1}")
            e(f"s_and_b32 s{S_T1}, s2, -8")
            e(f"s_add_u32 s{S_T0}, s{S_T0}, s{S_T1}")
        else:
            e(f"s_and_b32 s{S_T0}, s2, 7")
            e(f"s_lshl_b32 s{S_T0}, s{S_T0}, 5")
            e(f"s_lshr_b32 s{S_T1}, s2, 3")
            e(f"s_add_u32 s{S_T0}, s{S_T0}, s{S_T1}")
        e(f"s_mul_i32 s{S_AGN}, s{S_T0}, {o.agnu * 12288}")
        e(f"s_mov_b32 s{S_X + 2}, {X_BYTES}")
        e(f"s_mov_b32 s{S_X + 3}, 0x20000")
        if o.rolepos >= 0:
            e(f"s_lshl_b32 s{S_T1}, s{S_WAVE}, 8")
            e(f"s_or_b32 s{S_T1}, s{S_T1}, s2")
        if o.sdiag:
            self.stamp(6, True)
        e("s_waitcnt lgkmcnt(0)")
        if o.sdiag:
            self.stamp(1, True)
        e(f"s_lshr_b32 s{S_T0}, s{S_OUT}, 7")
        e(f"s_mul_i32 s{S_T0}, s{S_T0}, 21              ; -43 mod 64")
        e(f"s_and_b32 s{S_T0}, s{S_T0}, 63")
        e(f"s_mulk_i32 s{S_T0}, 384")
        e(f"s_add_u32 s{S_AGN}, s{S_AGN}, s{S_T0}")
        assert W_ROLE == 0

        SUM, MAX, T = 4, 12, 20
        DEPTH = o.depth
        seq = []

        def issue(j):
            if j == o.rolepos:
                e(f"s_cmp_le_u32 s{S_T1}, {NVOTE_WG}              ; wave 0 of the first workgroups has a side job")
                e("s_cbranch_scc1 L_role")
                e("L_stream:")
            if o.cpf and j == o.cpfpos:
                e(f"s_sub_u32 s{S_T1}, s{S_T1}, 256")
                e(f"s_cmp_ge_u32 s{S_T1}, {o.cpf}")
                e("s_cbranch_scc1 L_nocpf")
                e("s_getpc_b64 s[20:21]")
                e("v_lshlrev_b32 v2, 7, v1")
                e("v_add_u32 v3, 8192, v2")
                e("v_min_u32 v3, L_codeend - L_nocpf, v3")
                e("global_load_dword v36, v2, s[20:21]")
                e("global_load_dword v37, v3, s[20:21]")
                e("L_nocpf:")
            if j == max(4, o.rolepos):
                e("s_load_dwordx4 s[36:39], s[0:1], 8        ; w1, w2")
                e(f"s_load_dwordx2 s[{S_DBG}:{S_DBG + 1}], s[0:1], 32")
                e(f"s_load_dwordx2 s[{S_WS}:{S_WS + 1}], s[0:1], 40")
                e(f"s_mov_b32 s{S_MASK}, 0xffff0000")
            if j == 2 * NAGN:
                e(f"s_mul_i32 s{S_TY}, s{S_SUB}, 3")
                e(f"s_sub_u32 s{S_TY}, s{S_WAVE}, s{S_TY}        ; ty = wave % 3")
                e(f"s_mov_b32 s{S_OUT + 2}, s{S_X + 2}")
                e(f"s_mov_b32 s{S_OUT + 3}, s{S_X + 3}")
                e(f"s_mov_b32 s{S_WS + 2}, {(2 << 20) if o.stamps else WS_USED}")
                e(f"s_mov_b32 s{S_WS + 3}, s{S_X + 3}")
                e(f"s_movk_i32 s{S_DBG + 2}, 256")
                e(f"s_mov_b32 s{S_DBG + 3}, s{S_X + 3}")
                e(f"s_movk_i32 s{S_T2}, 24576")
                e(f"v_bfe_u32 v{V_G0}, v{V_L}, 13, 1")
                e(f"v_add_u32 v{V_G1}, 12288, v{V_L}")
                e(f"v_bfe_u32 v{V_G1}, v{V_G1}, 13, 1")
                e(f"v_mul_u32_u24 v{V_G0}, s{S_T2}, v{V_G0}")
                e(f"v_mul_u32_u24 v{V_G1}, s{S_T2}, v{V_G1}")
                e(f"s_lshr_b32 s{S_T0}, s{S_OUT}, 7")
                e(f"s_mul_i32 s{S_T0}, s{S_T0}, 21")
                e(f"s_and_b32 s{S_T0}, s{S_T0}, 63")
                e(f"s_mulk_i32 s{S_T0}, 384")
                e(f"s_and_b32 s{S_T1}, s2, 3")
                e(f"s_lshr_b32 s{S_BASE}, s2, 3")
                if o.qmap == 0:
                    e(f"s_lshl2_add_u32 s{S_BASE}, s{S_BASE}, s{S_T1}")
                else:
                    e(f"s_lshl_b32 s{S_T1}, s{S_T1}, 5")
                    e(f"s_add_u32 s{S_BASE}, s{S_BASE}, s{S_T1}")
                e(f"s_add_u32 s{S_BASE1}, s{S_BASE}, {o.qshift}")
                e(f"s_and_b32 s{S_BASE1}, s{S_BASE1}, 127")
                e(f"s_mul_i32 s{S_BASE}, s{S_BASE}, 98304")
                e(f"s_add_u32 s{S_BASE}, s{S_BASE}, s{S_T0}        ; the pair's first span of a step")
                e(f"s_mul_i32 s{S_BASE1}, s{S_BASE1}, 98304")
                e(f"s_add_u32 s{S_BASE1}, s{S_BASE1}, s{S_T0}")
                e(f"s_add_u32 s{S_BASE1}, s{S_BASE1}, 49152      ; its second span: 3 MiB on, where the memory stacks swap")
                h1 = mask(lambda z, s: s[1] == 1)
                e(f"s_add_u32 s{S_T2}, s{S_T2}, s{S_OUT}")
                e(f"s_add_u32 s{S_T0}, s{S_BASE}, s{S_T2}")
                e(f"s_bfe_i32 s{S_PM}, s{S_T0}, 0x10015")
                e(f"s_add_u32 s{S_T2}, s{S_BASE1}, s{S_T2}")
                e(f"s_xor_b32 s{S_T0}, s{S_T0}, s{S_T2}")
                e(f"s_bfe_i32 s{S_T0}, s{S_T0}, 0x10015")
                e(f"s_and_b32 s{S_T0}, s{S_T0}, {h1}")
                e(f"s_xor_b32 s{S_PM}, s{S_PM}, s{S_T0}")
                m1 = mask(lambda z, s: z >= NAGN and s[0] in (3, 4))
                z50 = SPANS.index((5, 0))
                z51 = SPANS.index((5, 1))
                dec = mask(lambda z, s: z >= NAGN)
                e(f"s_cmp_lt_u32 s{S_BASE}, {4 * MiB - 24576}")
                e(f"s_cselect_b32 s{S_T0}, {1 << z50}, 0")
                e(f"s_or_b32 s{S_T0}, s{S_T0}, {m1}")
                e(f"s_cmp_lt_u32 s{S_BASE1}, {4 * MiB - 24576}")
                e(f"s_cselect_b32 s{S_T1}, {1 << z51}, 0")
                e(f"s_or_b32 s{S_T0}, s{S_T0}, s{S_T1}            ; third 1")
                e(f"s_xor_b32 s{S_T1}, s{S_T0}, {dec}           ; third 2")
                per, pat = o.opp
                rep = sum(((pat >> (i % per)) & 1) << i for i in range(32))
                e(f"s_lshr_b32 s{S_P}, s2, 3")
                e(f"s_mul_i32 s{S_T2}, s{S_P}, {-(-256 // per)}")
                e(f"s_lshr_b32 s{S_T2}, s{S_T2}, 8")
                e(f"s_mul_i32 s{S_T2}, s{S_T2}, {per}")
                e(f"s_sub_u32 s{S_P}, s{S_P}, s{S_T2}             ; (b >> 3) % {per}")
                e(f"s_lshr_b32 s{S_P}, {rep}, s{S_P}")
                e(f"s_sub_u32 s{S_T2}, s{S_OUT}, s{S_X}")
                e(f"s_add_u32 s{S_T2}, s{S_T2}, 2048")
                e(f"s_bitcmp1_b32 s{S_T2}, 12")
                e(f"s_cselect_b32 s{S_P}, 0, s{S_P}")
                e(f"s_lshr_b32 s{S_T2}, s2, 3")
                e(f"s_sub_u32 s{S_RID}, s{S_T2}, {o.red0}")
                e(f"s_and_b32 s{S_PO}, s2, 7")
                e(f"s_lshl_b32 s{S_PO}, s{S_PO}, 5")
                e(f"s_add_u32 s{S_PO}, s{S_PO}, s{S_T2}")
                e(f"s_mulk_i32 s{S_PO}, 1536")
                e("s_waitcnt lgkmcnt(0)")
                self.stamp(11)
                e("s_barrier")
                e(f"s_load_dword s{S_T2}, s[{S_DBG}:{S_DBG + 1}], {DBG_RES}")
                e("s_waitcnt lgkmcnt(0)")
                e(f"s_andn2_b32 s{S_CNT}, {RES_OK}, s{S_T2}")
                e("s_cbranch_scc1 L_dpoll")
                e("L_decided:")
                for i in range(4):
                    e(f"s_bitcmp1_b32 s{S_T2}, {7 + 6 * i + 5}")
                    e(f"s_cselect_b32 s{S_V + i}, s{(S_T0, S_T1)[i >> 1]}, 0")
                e(f"s_or_b32 s{S_V}, s{S_V}, s{S_V + 2}")
                e(f"s_or_b32 s{S_V + 1}, s{S_V + 1}, s{S_V + 3}")
                e(f"s_xor_b32 s{S_V}, s{S_V}, s{S_V + 1}")
                e(f"s_and_b32 s{S_V}, s{S_V}, s{S_P}")
                e(f"s_xor_b32 s{S_V}, s{S_V}, s{S_V + 1}")
                e(f"s_xor_b32 s{S_PM}, s{S_PM}, s{S_V}")
                e(f"s_lshr_b32 s{S_QC}, s{S_T2}, 13")
                e(f"s_add_u32 s{S_QC}, s{S_QC}, s2")
                e(f"s_bfe_i32 s{S_V}, s{S_QC}, 0x10002")
                e(f"s_xor_b32 s{S_PM}, s{S_PM}, s{S_V}")
                e(f"s_and_b32 s{S_TG[0]}, s{S_T2}, 15")
                e(f"s_bfe_u32 s{S_TG[1]}, s{S_T2}, 0x40004")
                e(f"s_xor_b32 s{S_TG[2]}, s{S_TG[0]}, 15")
                e(f"s_xor_b32 s{S_TG[3]}, s{S_TG[1]}, 15")
                e(f"s_lshr_b32 s{S_V}, s{S_T2}, 10")
                e(f"s_and_b32 s{S_V}, s{S_V}, 4")
                e(f"s_xor_b32 s{S_QC}, s{S_QC}, s{S_V}           ; bits 2:0: the second-stage copy near this die")
                self.stamp(12)
            if j in o.xbar:
                e("s_barrier")
                if j == o.xbar[-1]:
                    self.stamp(2, "r")
            if j == o.warm and o.warmst:
                e(f"s_cmp_ge_u32 s{S_WAVE}, 2")
                e("s_cbranch_scc1 L_nowarm")
                for i in range(4):
                    e(f"v_mov_b32 v{20 + i}, 0")
                e(f"s_mul_i32 s{S_T0}, s{S_WAVE}, 768")
                e(f"v_lshl_add_u32 v3, v1, 4, s{S_T0}")
                e("s_mov_b32 exec_hi, 0xffff")
                e(f"buffer_store_dwordx4 v[20:23], v3, s[{S_WS}:{S_WS + 3}], s{S_PO} offen")
                e("s_mov_b64 exec, -1")
                e("L_nowarm:")
            if j == o.warm and not o.warmst:
                e(f"s_cmp_lg_u32 s{S_WAVE}, {o.warmwave}")
                e("s_cbranch_scc1 L_nowarm")
                e("v_lshlrev_b32 v3, 7, v1")
                e("s_mov_b64 exec, 0xfff")
                e(f"buffer_load_dword v37, v3, s[{S_WS}:{S_WS + 3}], s{S_PO} offen {o.warmfl}")
                e("s_mov_b64 exec, -1")
                if o.lpf == 2:
                    e(f"s_cmp_lg_u32 s{S_RID}, {NRED}")
                    e("s_cbranch_scc1 L_nowarm")
                    e("s_getpc_b64 s[20:21]")
                    e("v_min_u32 v3, L_end - L_nowarm, v3")
                    e("global_load_dword v37, v3, s[20:21]")
                e("L_nowarm:")
            r = D0 + 4 * j
            if o.thr and j == 10:
                e(f"s_getreg_b32 s{S_T0}, hwreg(HW_REG_XCC_ID, 0, 3)")
                e(f"s_lshr_b32 s{S_T0}, {o.thrmask}, s{S_T0}")
                e(f"s_and_b32 vcc_lo, s{S_T0}, 1")
                e("s_mov_b32 vcc_hi, 0")
            if o.cap and o.capfrom <= j < o.capto:
                e(f"s_waitcnt vmcnt({o.cap - 1})")
            if o.thr and o.thrfrom <= j < o.thrto:
                e(f"s_cbranch_vccz L_thr{j}")
                e(f"s_waitcnt vmcnt({o.thr - 1})")
                e(f"L_thr{j}:")
            self.mem(j, lambda va, so: e(f"buffer_load_dwordx4 v[{r}:{r + 3}], {va}, s[{S_X}:{S_X + 3}], {so} offen{ldf}"))
            seq.append(j)
            if o.sdiag and j == 0:
                self.stamp(2, True)
            if o.sdiag and j == 2:
                e("s_waitcnt vmcnt(2)")
                self.stamp(3, True)
            if j & 1:
                self.trace("ld", j >> 1)

        def wait_for(j):
            e(f"s_waitcnt vmcnt({len(seq) - 1 - seq.index(j)})")

        nxt = 0
        for jj in range(16):
            while nxt < 32 and nxt < max(2 * jj + DEPTH + 2, 2 * NAGN + 2 if o.prebar else 0):
                issue(nxt)
                nxt += 1
                if nxt == 32:
                    self.stamp(1)
            a, b = D0 + 8 * jj, D0 + 8 * jj + 4
            if jj == 15:
                e("v_and_b32 v2, 7, v1")
                e("v_lshlrev_b32 v2, 5, v2                   ; (l&7)*32")
                e("v_lshrrev_b32 v3, 4, v1")
                e("v_lshl_add_u32 v2, v3, 3, v2              ; + (l>>4)*8")
                e("v_bfe_u32 v3, v1, 3, 1")
                e("v_mul_u32_u24 v3, 768, v3")
                e(f"s_mul_i32 s{S_T0}, s{S_SUB}, 1536")
                e(f"s_lshl_b32 s{S_T1}, s{S_TY}, 8")
                e(f"s_add_u32 s{S_T0}, s{S_T0}, s{S_T1}")
                e(f"v_add3_u32 v2, v2, v3, s{S_T0}")
                e(f"s_mul_i32 s{S_T0}, s{S_WAVE}, 768")
                e(f"v_lshl_add_u32 v3, v1, 4, s{S_T0}")
                for r in (a, b):
                    wait_for((r - D0) // 4)
                    if r == b:
                        self.stamp(3)
                    for i in range(4):
                        t = T + 2 * i
                        e(f"v_lshlrev_b32 v{t}, 16, v{r + i}")
                        e(f"v_and_b32 v{t + 1}, s{S_MASK}, v{r + i}")
                    for i in range(8):
                        e(f"v_max_f32 v{MAX + i}, v{MAX + i}, v{T + i}")
                    for i in range(4):
                        t, s = T + 2 * i, SUM + 2 * i
                        e(f"v_pk_add_f32 v[{s}:{s + 1}], v[{s}:{s + 1}], v[{t}:{t + 1}]")
                continue
            wait_for(2 * jj + 1)
            if jj == 0 and not o.xbar:
                self.stamp(2)
            for i in range(4):
                t = T + 4 * i
                e(f"v_lshlrev_b32 v{t}, 16, v{a + i}")
                e(f"v_and_b32 v{t + 1}, s{S_MASK}, v{a + i}")
                e(f"v_lshlrev_b32 v{t + 2}, 16, v{b + i}")
                e(f"v_and_b32 v{t + 3}, s{S_MASK}, v{b + i}")
            for i in range(4):
                t = T + 4 * i
                s, m = SUM + 2 * i, MAX + 2 * i
                if jj == 0:
                    e(f"v_max_f32 v{m}, v{t}, v{t + 2}")
                    e(f"v_max_f32 v{m + 1}, v{t + 1}, v{t + 3}")
                    e(f"v_pk_add_f32 v[{s}:{s + 1}], v[{t}:{t + 1}], v[{t + 2}:{t + 3}]")
                else:
                    e(f"v_max3_f32 v{m}, v{m}, v{t}, v{t + 2}")
                    e(f"v_max3_f32 v{m + 1}, v{m + 1}, v{t + 1}, v{t + 3}")
                    e(f"v_pk_add_f32 v[{t}:{t + 1}], v[{t}:{t + 1}], v[{t + 2}:{t + 3}]")
            if jj:
                for i in range(4):
                    t = T + 4 * i
                    s = SUM + 2 * i
                    e(f"v_pk_add_f32 v[{s}:{s + 1}], v[{s}:{s + 1}], v[{t}:{t + 1}]")

        for base in (MAX, SUM):
            for i in range(4):
                e(f"v_permlane32_swap_b32 v{base + i}, v{base + 4 + i}")
        for i in range(4):
            e(f"v_max_f32 v{MAX + i}, v{MAX + i}, v{MAX + 4 + i}")
        for i in range(4):
            e(f"v_add_f32 v{SUM + i}, v{SUM + i}, v{SUM + 4 + i}")
        for i in range(2):
            e(f"v_permlane16_swap_b32 v{MAX + i}, v{MAX + 2 + i}")
        for i in range(2):
            e(f"v_permlane16_swap_b32 v{SUM + i}, v{SUM + 2 + i}")
        for i in range(2):
            e(f"v_add_f32 v{SUM + i}, v{SUM + i}, v{SUM + 2 + i}")
        for i in range(2):
            e(f"v_max_f32 v{MAX + i}, v{MAX + i}, v{MAX + 2 + i}")
        e(f"s_cmp_ge_u32 s{S_WAVE}, 2")
        for i in range(2):
            e(f"v_add_f32_dpp v{SUM + i}, v{SUM + i}, v{SUM + i} row_ror:8 row_mask:0xf bank_mask:0x3")
        for i in range(2):
            e(f"v_max_f32_dpp v{SUM + i}, v{MAX + i}, v{MAX + i} row_ror:8 row_mask:0xf bank_mask:0xc")
        e(f"ds_write_b64 v2, v[{SUM}:{SUM + 1}] offset:{L_RED}")
        e("s_waitcnt lgkmcnt(0)")
        e("s_barrier")
        self.stamp(4)
        e("s_cbranch_scc1 L_nopub")

        e("s_mov_b32 exec_hi, 0xffff")
        for k in range(4):
            e(f"ds_read_b128 v[{4 + 4 * k}:{7 + 4 * k}], v3 offset:{L_RED + 1536 * k}")
        e(f"s_cmp_eq_u32 s{S_WAVE}, 0")
        e(f"s_cselect_b64 s[{S_W}:{S_W + 1}], s[36:37], s[38:39]")
        e("s_cbranch_scc0 L_pubmax")
        e("s_waitcnt lgkmcnt(2)")
        e("v_pk_add_f32 v[4:5], v[4:5], v[8:9]")
        e("v_pk_add_f32 v[6:7], v[6:7], v[10:11]")
        e("s_waitcnt lgkmcnt(0)")
        e("v_pk_add_f32 v[12:13], v[12:13], v[16:17]")
        e("v_pk_add_f32 v[14:15], v[14:15], v[18:19]")
        e("v_pk_add_f32 v[4:5], v[4:5], v[12:13]")
        e("v_pk_add_f32 v[6:7], v[6:7], v[14:15]")
        e("s_branch L_pub")
        e("L_pubmax:")
        e("s_waitcnt lgkmcnt(1)")
        for i in range(4):
            e(f"v_max3_f32 v{4 + i}, v{4 + i}, v{8 + i}, v{12 + i}")
        e("s_waitcnt lgkmcnt(0)")
        for i in range(4):
            e(f"v_max_f32 v{4 + i}, v{4 + i}, v{16 + i}")
        e("L_pub:")
        for i in range(4):
            e(f"v_and_or_b32 v{4 + i}, v{4 + i}, -16, s{S_TG[i]}")
        e(f"buffer_store_dwordx4 v[4:7], v3, s[{S_WS}:{S_WS + 3}], s{S_PO} offen{' sc1' if o.psc1 else ' nt' if o.pnt else ''}")
        e("s_mov_b64 exec, -1")
        e(f"s_movk_i32 s{S_W + 2}, 18432")
        e(f"s_mov_b32 s{S_W + 3}, 0x20000")
        e(f"s_mul_i32 s{S_T0}, s{S_WAVE}, 18432")
        e(f"s_addk_i32 s{S_T0}, {L_W1}")
        e(f"s_mov_b32 s{S_T1}, 0")
        e("v_lshlrev_b32 v2, 4, v1")
        e("L_wloop:")
        e(f"s_add_u32 m0, s{S_T0}, s{S_T1}")
        e(f"s_cmp_ge_u32 s{S_RID}, {NRED}")
        for k in range(3):
            e(f"buffer_load_dwordx4 v2, s[{S_W}:{S_W + 3}], s{S_T1} offen offset:{k * 1024} lds")
        e("s_cbranch_scc1 L_wnext")
        e(f"s_waitcnt vmcnt({o.wpace})")
        e("L_wnext:")
        e(f"s_addk_i32 s{S_T1}, 3072")
        e(f"s_cmp_lt_u32 s{S_T1}, 18432")
        e("s_cbranch_scc1 L_wloop")
        e("L_nopub:")

        B2 = 28
        V_H0, V_H1, V_SW, V_SR, V_Q = 24, 25, 26, 27, 37
        SP0 = 136
        A1 = 144
        B1 = [4, 8, 12, 16, 136, 140]
        e("v_lshrrev_b32 v20, 4, v1                  ; q")
        e(f"s_cmp_lt_u32 s{S_WAVE}, 3")
        e("s_cbranch_scc1 L_spill")
        e(f"s_cmp_ge_u32 s{S_RID}, {NRED}")
        e("s_cbranch_scc1 L_barw")
        e(f"s_cmp_lg_u32 s{S_WAVE}, 3")
        e("s_cbranch_scc1 L_barw")

        def clean(lbl, d, a):
            e(f"s_cmp_lg_u32 s{S_WAVE}, 3")
            e(f"s_cbranch_scc1 {lbl}")
            if o.cw:
                e(f"v_mov_b32 v{d}, 0")
                e(f"v_lshlrev_b32 v{a}, {o.cw}, v1")
                e(f"s_mov_b64 exec, {(1 << (1536 >> o.cw)) - 1}")
                if o.cld:
                    e(f"buffer_atomic_or v{d}, v{a}, s[{S_WS}:{S_WS + 3}], s{S_PO} offen")
                else:
                    e(f"buffer_store_dword v{d}, v{a}, s[{S_WS}:{S_WS + 3}], s{S_PO} offen sc1")
                e("s_mov_b64 exec, -1")
                return
            for i in range(4):
                e(f"v_mov_b32 v{d + i}, 0")
            e(f"v_lshlrev_b32 v{a}, 4, v1")
            e("s_mov_b32 exec_hi, 0xffff")
            e(f"buffer_store_dwordx4 v[{d}:{d + 3}], v{a}, s[{S_WS}:{S_WS + 3}], s{S_PO} offen sc1")
            e(f"buffer_store_dwordx4 v[{d}:{d + 3}], v{a}, s[{S_WS}:{S_WS + 3}], s{S_PO} offen offset:768 sc1")
            e("s_mov_b64 exec, -1")

        e("v_lshrrev_b32 v2, 3, v1")
        e("v_mul_u32_u24 v2, 1536, v2")
        e("v_and_b32 v3, 7, v1")
        e(f"v_lshl_add_u32 v{V_Q}, v3, 4, v2")
        e(f"s_and_b32 s{S_T0}, s2, 7")
        e(f"s_mul_i32 s{S_V}, s{S_T0}, {32 * 1536}")
        e(f"s_lshl_b32 s{S_T1}, s{S_RID}, 7")
        e(f"s_add_u32 s{S_V}, s{S_V}, s{S_T1}")
        for k in range(1, 4):
            e(f"s_add_u32 s{S_V + k}, s{S_V}, {k * 8 * 1536}")
        e(f"s_lshl_b32 s{S_T0}, s{S_T0}, 8              ; group*256")
        e(f"s_lshr_b32 s{S_T1}, s{S_RID}, 2")
        e(f"s_lshl2_add_u32 s{S_T1}, s{S_T1}, s{S_RID}")
        e(f"s_lshl_b32 s{S_T1}, s{S_T1}, 11")
        e(f"s_add_u32 s{S_T1}, s{S_T1}, s{S_T0}")
        for k in range(o.qcopy // 2):
            e(f"s_add_u32 s{S_W + k}, s{S_T1}, {WS_Q + k * 49152}")
        e("v_and_b32 v2, 15, v1")
        e("v_lshlrev_b32 v3, 2, v2")
        e("v_bfe_u32 v2, v1, 4, 1")
        e("v_lshl_add_u32 v3, v2, 7, v3")
        e("v_lshrrev_b32 v2, 5, v1")
        e("v_lshl_add_u32 v3, v2, 13, v3             ; (l>>5)*8192 + ((l>>4)&1)*128 + (l&15)*4")
        e(f"s_lshl4_add_u32 s{S_T0}, s{S_TG[1]}, s{S_TG[0]}")
        e(f"s_xor_b32 s{S_CNT}, s{S_T0}, 0xff")
        e(f"s_lshl_b32 s{S_CNT}, s{S_CNT}, 8")
        e(f"s_or_b32 s{S_T0}, s{S_T0}, s{S_CNT}")
        e("v_and_b32 v2, 12, v3")
        e(f"v_bfe_u32 v23, s{S_T0}, v2, 4")
        e(f"s_mov_b32 s{S_CNT}, {NFB}")
        e(f"s_mov_b32 s{S_HOOK}, 0")
        e("L_rpoll:")
        for k in range(4):
            e(f"buffer_load_dwordx4 v[{4 + 4 * k}:{7 + 4 * k}], v{V_Q}, s[{S_WS}:{S_WS + 3}], s{S_V + k} offen sc1")
        e(f"s_sub_u32 s{S_CNT}, s{S_CNT}, 1")
        e("s_cbranch_scc1 L_rlong")
        for k in range(4):
            e(f"s_waitcnt vmcnt({3 - k})")
            r = 4 + 4 * k
            for i in range(4):
                e(f"v_xor_b32 v{r + i}, s{S_TG[i]}, v{r + i}" + ("            ; a matching tag leaves four zero bits" if k + i == 0 else ""))
            if k == 0:
                e(f"v_or3_b32 v21, v{r}, v{r + 1}, v{r + 2}")
                e(f"v_or_b32 v21, v21, v{r + 3}")
            elif k < 3:
                e(f"v_or3_b32 v21, v21, v{r}, v{r + 1}")
                e(f"v_or3_b32 v21, v21, v{r + 2}, v{r + 3}")
            else:
                e(f"v_or3_b32 v21, v21, v{r}, v{r + 1}")
                e(f"v_or_b32 v22, v{r + 2}, v{r + 3}")
        e("v_bitop3_b32 v21, v21, v22, 15 bitop3:0xa8          ; (a | b) & c")
        e("v_cmp_ne_u32 vcc, 0, v21")
        e("s_wqm_b64 exec, vcc                       ; 64-byte units still waiting poll again")
        e("s_cbranch_scc1 L_rpoll")
        e("L_rgot:")
        e("s_mov_b64 exec, -1")
        self.stamp(1, "r")
        e(f"s_cmp_ge_u32 s{S_RID}, 6")
        e("s_cbranch_scc1 L_rmax")
        for kind in (0, 1):
            op = "v_add_f32" if kind == 0 else "v_max_f32"
            if kind == 1:
                e("L_rmax:")
                for i in range(4):
                    e(f"v_max3_f32 v{4 + i}, v{4 + i}, v{8 + i}, v{12 + i}")
                for i in (0, 2, 1, 3):
                    e(f"v_max_f32 v{4 + i}, v{4 + i}, v{16 + i}")
            else:
                e("v_pk_add_f32 v[4:5], v[4:5], v[8:9]")
                e("v_pk_add_f32 v[6:7], v[6:7], v[10:11]")
                e("v_pk_add_f32 v[12:13], v[12:13], v[16:17]")
                e("v_pk_add_f32 v[14:15], v[14:15], v[18:19]")
                e("v_pk_add_f32 v[4:5], v[4:5], v[12:13]")
                e("v_pk_add_f32 v[6:7], v[6:7], v[14:15]")
                e("s_nop 0")
            e(f"{op}_dpp v4, v4, v4 row_ror:8 row_mask:0xf bank_mask:0x3")
            if kind == 0:
                e(f"{op}_dpp v5, v5, v5 row_ror:8 row_mask:0xf bank_mask:0x3")
                e(f"{op}_dpp v4, v6, v6 row_ror:8 row_mask:0xf bank_mask:0xc")
            else:
                e(f"{op}_dpp v4, v6, v6 row_ror:8 row_mask:0xf bank_mask:0xc")
                e(f"{op}_dpp v5, v5, v5 row_ror:8 row_mask:0xf bank_mask:0x3")
            e(f"{op}_dpp v5, v7, v7 row_ror:8 row_mask:0xf bank_mask:0xc")
            e("s_nop 1")
            e("v_permlane16_swap_b32 v4, v5")
            e(f"{op} v4, v4, v5")
            e("v_mov_b32 v5, v4")
            e("s_nop 1")
            e("v_permlane32_swap_b32 v4, v5")
            e(f"{op} v4, v4, v5                        ; lane 16a+8b+c: element 2b+a of piece c")
            if kind == 0:
                e("s_branch L_rpub")
        e("L_rpub:")
        e("v_and_or_b32 v4, v4, -16, v23")
        for k in range(o.qcopy // 2):
            e(f"buffer_store_dword v4, v3, s[{S_WS}:{S_WS + 3}], s{S_W + k} offen sc1")
            if k == 0:
                self.stamp(9)
        if o.clean == "r":
            for i in range(4):
                e(f"v_mov_b32 v{8 + i}, 0")
            for k in range(4):
                e(f"buffer_store_dwordx4 v[8:11], v{V_Q}, s[{S_WS}:{S_WS + 3}], s{S_V + k} offen sc1")
        e("s_barrier")
        e("s_branch L_afterw")

        if o.pad:
            e(f".fill {o.pad // 4}, 4, 0xbf800000")
        e("L_spill:")
        e(f"s_lshl_b32 s{S_T0}, s{S_WAVE}, 13")
        e(f"v_lshl_add_u32 v{V_AT}, v1, 4, s{S_T0}")
        for k in range(8):
            e(f"ds_write_b128 v{V_AT}, v[{SP0 + 4 * k}:{SP0 + 4 * k + 3}] offset:{L_SPILL + 1024 * k}")
        e("L_barw:")
        if o.tlb:
            e(f"s_cmp_lg_u32 s{S_WAVE}, 5")
            e("s_cbranch_scc1 L_notlb")
            e(f"v_lshlrev_b32 v2, {o.tlb}, v1")
            e(f"buffer_load_dword v4, v2, s[{S_OUT}:{S_OUT + 3}], 0 offen")
            e("L_notlb:")
        if o.lpf == 1:
            e(f"s_cmp_lg_u32 s{S_WAVE}, 4")
            e("s_cbranch_scc1 L_nolpf")
            e("s_getpc_b64 s[20:21]")
            e("v_lshlrev_b32 v2, 7, v1")
            e("v_min_u32 v2, L_end - L_nolpf, v2")
            e("global_load_dword v4, v2, s[20:21]")
            e("L_nolpf:")
        e("s_waitcnt vmcnt(0) lgkmcnt(0)")
        e("s_barrier")
        e("L_afterw:")
        e("v_bfe_u32 v3, v1, 2, 2")
        e("v_lshl_add_u32 v21, v20, 3, v3            ; row")
        e("v_and_b32 v22, 15, v21                    ; row of the half step (q&1)")
        e("v_and_b32 v3, 3, v1")
        e(f"s_lshl_b32 s{S_T2}, s{S_WAVE}, 5")
        e(f"v_lshl_add_u32 v23, v3, 3, s{S_T2}          ; column bytes")
        e("v_mov_b32 v3, 384")
        e("v_mad_u32_u24 v2, v21, v3, v23")
        e("v_mad_u32_u24 v22, v22, v3, v23")
        e(f"ds_read_b64_tr_b16 v[{B2}:{B2 + 1}], v2 offset:{L_W2}")
        e(f"ds_read_b64_tr_b16 v[{B2 + 2}:{B2 + 3}], v2 offset:{L_W2 + 4 * 384}")
        e(f"ds_read_b64_tr_b16 v[{B2 + 4}:{B2 + 5}], v22 offset:{L_W2 + 32 * 384}")
        e(f"ds_read_b64_tr_b16 v[{B2 + 6}:{B2 + 7}], v22 offset:{L_W2 + 36 * 384}")
        e("v_and_b32 v2, 1, v1")
        e("v_mul_u32_u24 v22, 96, v2")
        e(f"v_lshl_add_u32 v{V_H0}, v20, 4, v22")
        e("v_and_b32 v3, 1, v20")
        e(f"v_lshl_add_u32 v{V_H1}, v3, 4, v22")
        e(f"s_lshl_b32 s{S_T0}, s{S_WAVE}, 6")
        e(f"v_lshl_add_u32 v{V_SW}, v1, 2, s{S_T0}")
        if o.mul == "dot":
            e("v_mov_b32 v3, 0")
            e("s_mov_b64 exec, 0xffff")
            e(f"ds_write_b32 v{V_SW}, v3 offset:{L_S}")
            e("s_mov_b64 exec, -1")
            e(f"v_lshl_add_u32 v{V_SW}, v2, 1, v{V_SW}")
        e("v_and_b32 v3, 7, v1")
        e(f"s_lshl_b32 s{S_T0}, s{S_TY}, 8")
        e(f"v_lshl_add_u32 v{V_SR}, v3, 5, s{S_T0}")
        e("s_waitcnt lgkmcnt(0)")
        e("s_mov_b32 exec_lo, 0")
        for i in range(4):
            e(f"v_mov_b32 v{B2 + 4 + i}, 0")
        e("s_mov_b64 exec, -1")
        e(f"s_cmp_ge_u32 s{S_WAVE}, 3")
        e("s_cbranch_scc1 L_noa1")
        e("v_mov_b32 v3, 96")
        e("v_mad_u32_u24 v2, v21, v3, v23")
        for s in range(6):
            for h in range(2):
                r = A1 + 4 * s + 2 * h
                e(f"ds_read_b64_tr_b16 v[{r}:{r + 1}], v2 offset:{L_W1 + s * 3072 + h * 384}")
        e("L_noa1:")
        e(f"v_lshl_add_u32 v3, v20, 3, v22")
        e(f"v_add_u32 v3, s{S_T2}, v3")
        e("v_lshlrev_b32 v2, 2, v22")
        e("v_lshl_add_u32 v2, v20, 4, v2")
        e("v_and_b32 v8, 1, v1")
        e("v_lshlrev_b32 v8, 4, v8")
        e("v_lshl_add_u32 v8, v20, 2, v8")
        e("v_and_b32 v9, 2, v1")
        e("v_bfe_u32 v10, v1, 2, 1")
        e("v_add3_u32 v8, v8, v9, v10")
        e(f"v_add_lshl_u32 v23, v8, s{S_T2}, 1")
        e("v_lshrrev_b32 v8, 2, v1")
        e("v_lshlrev_b32 v8, 7, v8")
        e("v_and_b32 v9, 3, v1")
        e(f"v_lshl_add_u32 v{V_Q}, v9, 4, v8")
        e(f"s_and_b32 s{S_T0}, s{S_QC}, 4")
        if o.qcopy > 2:
            e(f"s_and_b32 s{S_CNT}, s{S_QC}, {o.qcopy // 2 - 1}")
            e(f"s_mul_i32 s{S_CNT}, s{S_CNT}, 24")
            e(f"s_add_u32 s{S_T0}, s{S_T0}, s{S_CNT}")
        e(f"s_lshr_b32 s{S_T1}, s{S_WAVE}, 2")
        e(f"s_lshl2_add_u32 s{S_T1}, s{S_T1}, s{S_WAVE}")
        e(f"s_add_u32 s{S_T1}, s{S_T1}, s{S_T0}")
        e(f"s_lshl_b32 s{S_T1}, s{S_T1}, 11")
        e(f"s_add_u32 s{S_T1}, s{S_T1}, {WS_Q}")
        if o.clean in ("q", "p", "a", "h", "g"):
            e(f"v_mov_b32 v19, s{S_TG[0]}")
            e(f"s_lshl_b32 s{S_V}, s{S_WAVE}, 7")
            e(f"s_add_u32 s{S_V}, s{S_V}, s{S_PO}")
        e(f"s_mov_b32 s{S_CNT}, {NFB}")
        e(f"s_mov_b32 s{S_HOOK}, 0")
        e(f"s_cmp_lt_u32 s{S_WAVE}, 6")
        e("s_cbranch_scc1 L_qpoll0")

        def clean1():
            e("s_mov_b64 exec, 1")
            e(f"buffer_store_dword v{V_Q}, off, s[{S_WS}:{S_WS + 3}], s{S_V} sc1")
            e("s_mov_b64 exec, -1")

        for kind in (1, 0):
            op = "v_add_f32" if kind == 0 else "v_max_f32"
            e(f"L_qpoll{kind}:")
            e(f"buffer_load_dwordx4 v[4:7], v{V_Q}, s[{S_WS}:{S_WS + 3}], s{S_T1} offen sc1")
            e(f"s_sub_u32 s{S_CNT}, s{S_CNT}, 1")
            e(f"s_cbranch_scc1 L_qlong{kind}")
            if o.qsleep:
                e(f"s_sleep {o.qsleep}")
            e("s_waitcnt vmcnt(0)")
            for i in range(4):
                e(f"v_xor_b32 v{4 + i}, s{S_TG[i]}, v{4 + i}")
            e("v_or3_b32 v21, v4, v5, v6")
            e("v_bitop3_b32 v21, v21, v7, 15 bitop3:0xa8")
            e("v_cmp_ne_u32 vcc, 0, v21")
            e("s_wqm_b64 exec, vcc")
            e(f"s_cbranch_scc1 L_qpoll{kind}")
            e(f"L_qgot{kind}:")
            if o.clean == "p":
                e("s_mov_b64 exec, 1")
                e(f"buffer_store_dword v19, off, s[{S_WS}:{S_WS + 3}], s{S_V} sc1")
            e("s_mov_b64 exec, -1")
            self.stamp(5)
            e("v_permlane32_swap_b32 v4, v6")
            e("v_permlane32_swap_b32 v5, v7")
            e(f"{op} v4, v4, v6")
            e(f"{op} v5, v5, v7")
            e("s_nop 1")
            e("v_permlane16_swap_b32 v4, v5")
            e(f"{op} v4, v4, v5")
            e(f"s_cmp_ge_u32 s{S_WAVE}, 3")
            e("s_nop 0")
            e(f"{op}_dpp v4, v4, v4 row_ror:8 row_mask:0xf bank_mask:0xf")
            if kind == 0:
                e("v_mul_f32 v4, 0x36800000, v4              ; 1/262144")
            e("v_cvt_pk_bf16_f32 v4, v4, v4")
            e(f"ds_write_b16 v23, v4 offset:{L_F}")
            if o.clean == "q" or (o.clean == "h" and kind == 1) or (o.clean == "g" and kind == 0):
                e("s_mov_b64 exec, 1")
                e(f"buffer_store_dword v19, off, s[{S_WS}:{S_WS + 3}], s{S_V} sc1")
                e("s_mov_b64 exec, -1")
            e("s_waitcnt lgkmcnt(0)")
            e("s_barrier")
            if kind == 1:
                if o.clean in ("a", "g"):
                    clean1()
                e("s_branch L_join")
            else:
                e("s_cbranch_scc1 " + ("L_clean0" if o.clean in ("a", "h") else "L_join"))

        e("L_mlp1:")
        for s in range(6):
            e(f"ds_read_b128 v[{B1[s]}:{B1[s] + 3}], v2 offset:{L_F + 64 * s}")
        if o.clean in ("a", "h"):
            clean1()
        for s in range(6):
            c = "0" if s == 0 else "v[20:23]"
            b = B1[s]
            e(f"s_waitcnt lgkmcnt({5 - s})")
            e(f"v_mfma_f32_16x16x32_bf16 v[20:23], v[{A1 + 4 * s}:{A1 + 4 * s + 3}], v[{b}:{b + 3}], {c}")
        e("s_nop 3")
        e("s_mov_b32 exec_lo, 0x00030003")
        e("s_mov_b32 exec_hi, 0x00030003")
        e("s_nop 1")
        for i in range(4):
            e(f"v_maximum3_f32 v{20 + i}, v{20 + i}, 0, 0")
        e("v_cvt_pk_bf16_f32 v20, v20, v21")
        e("v_cvt_pk_bf16_f32 v21, v22, v23")
        e(f"ds_write_b64 v3, v[20:21] offset:{L_H}")
        e("s_mov_b64 exec, -1")
        e("s_waitcnt lgkmcnt(0)")

        e("L_join:")
        e("s_barrier")
        self.stamp(6)
        e(f"ds_read_b128 v[4:7], v{V_H0} offset:{L_H}")
        e(f"ds_read_b128 v[8:11], v{V_H1} offset:{L_H + 64}")
        e("s_waitcnt lgkmcnt(1)")
        e(f"v_mfma_f32_16x16x32_bf16 v[12:15], v[4:7], v[{B2}:{B2 + 3}], 0")
        e("s_waitcnt lgkmcnt(0)")
        e(f"v_mfma_f32_16x16x32_bf16 v[12:15], v[8:11], v[{B2 + 4}:{B2 + 7}], v[12:15]")
        e("s_mov_b64 exec, 0xffff")
        e("s_nop 6")
        e("v_cvt_pk_bf16_f32 v12, 0, v12")
        e("v_cvt_pk_bf16_f32 v13, 0, v13")
        e("v_add_f32 v12, v12, v13")
        e("v_cvt_pk_bf16_f32 v12, 0, v12")
        e("v_mul_f32 v12, 0xbfb8aa3b, v12            ; -log2(e)")
        e("v_exp_f32 v12, v12")
        e("s_nop 0")
        e("v_add_f32 v12, 1.0, v12")
        e("v_rcp_f32 v12, v12")
        e("s_nop 0")
        if o.mul == "dot":
            e("v_cvt_pk_bf16_f32 v12, v12, v12")
            e(f"ds_write_b16 v{V_SW}, v12 offset:{L_S}")
        else:
            e("v_cvt_pk_bf16_f32 v12, 0, v12")
            e(f"ds_write_b32 v{V_SW}, v12 offset:{L_S}")
        e("s_mov_b64 exec, -1")
        e("s_waitcnt lgkmcnt(0)")
        e("s_barrier")
        e(f"ds_read_b128 v[4:7], v{V_SR} offset:{L_S}")
        e(f"ds_read_b128 v[8:11], v{V_SR} offset:{L_S + 16}")

        if o.stlim:
            e(f"s_cmp_lt_u32 s2, {o.stlim}")
            e(f"s_cselect_b32 s{S_OUT + 2}, s{S_OUT + 2}, 0")
        zorder = [int(v) for v in o.zorder.split(",")]
        assert sorted(zorder) == list(range(16))
        restored = False
        late = []

        def wbl2():
            wv, lim, pos = [int(v) for v in o.wb.split(",")]
            e(f"s_cmp_lt_u32 s{S_WAVE}, {wv}")
            e("s_cbranch_scc1 L_nowb")
            e(f"s_cmp_ge_u32 s2, {lim}")
            e("s_cbranch_scc1 L_nowb")
            if pos == 33:
                e("s_waitcnt vmcnt(0)")
            e("buffer_wbl2 sc1")
            e("L_nowb:")
        for n, j in enumerate([2 * z + u for z in zorder for u in (0, 1)]):
            a = D0 + 4 * j
            t0 = 12 + 8 * (n & 1)
            if a >= SP0 and not restored:
                assert n > 1
                e("s_waitcnt lgkmcnt(0)")
                restored = True
            md = o.mul
            for i in range(4 if md in ("pk", "mul", "u", "um") else 0):
                t = t0 + 2 * i
                e(f"v_lshlrev_b32 v{t}, 16, v{a + i}")
                e(f"v_and_b32 v{t + 1}, s{S_MASK}, v{a + i}")
            if n == 0:
                e("s_waitcnt lgkmcnt(0)")
                self.stamp(7)
            if o.al:
                e(f".p2align {o.al & 15}")
                if o.al >> 4:
                    e("s_nop 0")
            for i in range(4):
                t = t0 + 2 * i
                if md in ("pk", "um"):
                    e(f"v_pk_mul_f32 v[{t}:{t + 1}], v[{t}:{t + 1}], v[{4 + 2 * i}:{5 + 2 * i}]")
                if md == "mul":
                    e(f"v_mul_f32 v{t}, v{t}, v{4 + 2 * i}")
                    e(f"v_mul_f32 v{t + 1}, v{t + 1}, v{5 + 2 * i}")
                if md == "dot":
                    e(f"v_dot2_f32_bf16 v{t}, v{a + i}, v{4 + 2 * i}, 0")
                    e(f"v_dot2_f32_bf16 v{t + 1}, v{a + i}, v{5 + 2 * i}, 0")
            for i in range(4):
                t = t0 + 2 * i
                if md in ("pk", "mul", "dot"):
                    e(f"v_cvt_pk_bf16_f32 v{a + i}, v{t}, v{t + 1}")
                if md == "c":
                    e(f"v_cvt_pk_bf16_f32 v{a + i}, v{a + i}, v{a + (i ^ 1)}")
            def st(j=j, a=a, n=n):
                self.mem(j, lambda va, so: e(f"buffer_store_dwordx4 v[{a}:{a + 3}], {va}, s[{S_OUT}:{S_OUT + 3}], {so} offen{'' if n >= 32 - o.nplain else stf}"))
            if n < o.burst:
                st()
            else:
                late.append(st)
            if n == 31:
                for f in late:
                    f()
            if n + 1 in o.sbar:
                e("s_barrier")
            if o.sthr and n >= o.sthr:
                e(f"s_waitcnt vmcnt({o.sthr - 1})")
            if o.wb and int(o.wb.split(",")[2]) == n:
                wbl2()
            if n & 1:
                self.trace("st", n >> 1)
            if n == 1:
                e(f"s_cmp_ge_u32 s{S_WAVE}, 3")
                e("s_cbranch_scc1 L_norestore")
                for k in range(8):
                    e(f"ds_read_b128 v[{SP0 + 4 * k}:{SP0 + 4 * k + 3}], v{V_AT} offset:{L_SPILL + 1024 * k}")
                e("L_norestore:")
                if o.clean == "st":
                    clean("L_noclean", 28, 32)
                    e("L_noclean:")
        if o.clean == "e":
            clean("L_noclean", 28, 32)
            e("L_noclean:")
        if o.wb and int(o.wb.split(",")[2]) >= 32:
            wbl2()
        if o.stamps:
            self.stamp(8)
            e("s_waitcnt vmcnt(0)")
            self.stamp(10)
            if o.idleclk:
                e(f"s_cmp_lg_u32 s{S_WAVE}, 11")
                e("s_cbranch_scc1 L_noidle")
                for lbl, dur, m, r in (("a", o.idleclk, 1, 3), ("b", 2000, 2, 6)):
                    e("s_memrealtime s[96:97]")
                    e("s_waitcnt lgkmcnt(0)")
                    e(f"L_idle{lbl}:")
                    e("s_sleep 4")
                    e("s_memrealtime s[98:99]")
                    e("s_waitcnt lgkmcnt(0)")
                    e("s_sub_u32 s98, s98, s96")
                    e(f"s_cmp_lt_u32 s98, {dur}")
                    e(f"s_cbranch_scc1 L_idle{lbl}")
                    e(f"s_memtime s[{S_STAMP + 2 * m}:{S_STAMP + 2 * m + 1}]")
                    e(f"s_memrealtime s[{S_STAMP + 2 * r}:{S_STAMP + 2 * r + 1}]")
                e("L_noidle:")
            e("s_getreg_b32 s94, hwreg(HW_REG_XCC_ID)")
            e("s_getreg_b32 s95, hwreg(HW_REG_HW_ID)")
            e("s_waitcnt lgkmcnt(0)")
            e("v_mov_b32 v2, 0")
            for i in range(11 if o.trace else 14):
                e(f"v_writelane_b32 v2, s{S_STAMP + 2 * i}, {i}")
            e("v_writelane_b32 v2, s94, 14")
            e("v_writelane_b32 v2, s95, 15")
            e(f"s_mul_i32 s{S_T0}, s2, 12")
            e(f"s_add_u32 s{S_T0}, s{S_T0}, s{S_WAVE}")
            e(f"s_lshl_b32 s{S_T0}, s{S_T0}, 6")
            e(f"s_add_u32 s{S_T0}, s{S_T0}, {WS_STAMP}")
            e("v_mbcnt_lo_u32_b32 v3, -1, 0")
            e("v_lshlrev_b32 v3, 2, v3")
            e("s_mov_b64 exec, 0xffff")
            e(f"buffer_store_dword v2, v3, s[{S_WS}:{S_WS + 3}], s{S_T0} offen sc1")
            if o.trace:
                e("s_mov_b32 s91, s92")
                for i in range(16):
                    e(f"v_writelane_b32 v2, s{76 + i}, {i}")
                e(f"s_add_u32 s{S_T0}, s{S_T0}, {1 << 19}")
                e(f"buffer_store_dword v2, v3, s[{S_WS}:{S_WS + 3}], s{S_T0} offen sc1")
        if o.dbgptr:
            e("s_cmp_lg_u32 s2, 0")
            e("s_cbranch_scc1 L_nodp")
            e("s_mov_b64 exec, -1")
            e("v_mov_b32 v2, 0")
            for i, r in enumerate((4, 5, 8, 9, 12, 13, 16, 17, 0, 1)):
                e(f"v_writelane_b32 v2, s{r}, {i}")
            e("v_mbcnt_lo_u32_b32 v3, -1, 0")
            e("v_lshlrev_b32 v3, 2, v3")
            e("s_mov_b64 exec, 0x3ff")
            e(f"buffer_store_dword v2, v3, s[{S_DBG}:{S_DBG + 3}], 0 offen offset:8")
            e("L_nodp:")
        if o.probe:
            idx, K = [int(v) for v in o.probe.split(",")]
            if idx == -5:
                e("s_cmp_ge_u32 s2, 8")
                e("s_cbranch_scc1 L_end")
            elif idx == -2:
                e("s_getreg_b32 s94, hwreg(HW_REG_XCC_ID)")
                e("s_xor_b32 s94, s94, s2")
                e("s_and_b32 s94, s94, 7")
                e("s_cbranch_scc0 L_end")
            elif idx == -3:
                e("s_cmp_lg_u32 s2, 0")
                e("s_cbranch_scc1 L_end")
            else:
                e(f"s_cmp_lg_u32 s2, {o.pwg}")
                e("s_cbranch_scc1 L_end")
            e(f"s_cmp_lg_u32 s{S_WAVE}, {o.pwave}")
            e("s_cbranch_scc1 L_end")
            if idx == -5:
                e("s_mov_b32 s96, 0")
                e("L_sk:")
                e("s_sleep 100")
                e("s_add_u32 s96, s96, 1")
                e("s_cmp_lt_u32 s96, 4")
                e("s_cbranch_scc1 L_sk")
                e(f"s_mov_b32 s94, {WS_STAMP}")
                e(f"buffer_load_dword v4, off, s[{S_WS}:{S_WS + 3}], s94 sc1")
                e("s_waitcnt vmcnt(0)")
                e("v_readfirstlane_b32 s94, v4")
                e(f"s_sub_u32 s95, s{S_STAMP}, s94")
                e(f"s_mul_i32 s95, s95, {K - 1}")
                e("s_add_u32 s96, s95, 8000")
            elif idx == -4:
                c0, c1, r0, r1 = ((11, 12, 0, 7), (12, 13, 7, 10))[K]
                e(f"s_sub_u32 s94, s{S_STAMP + 2 * c1}, s{S_STAMP + 2 * c0}")
                e(f"s_sub_u32 s95, s{S_STAMP + 2 * r1}, s{S_STAMP + 2 * r0}")
                e("v_cvt_f32_u32 v4, s94")
                e("v_cvt_f32_u32 v5, s95")
                e("v_rcp_f32 v5, v5")
                e("s_nop 1")
                e("v_mul_f32 v4, v4, v5")
                e("v_mul_f32 v4, 0x44fa0000, v4")
                e("v_cvt_u32_f32 v4, v4")
                e("s_nop 1")
                e("v_readfirstlane_b32 s96, v4")
                e("s_sub_u32 s96, s96, 31000")
            elif idx <= -10:
                e(f"s_bfe_u32 s94, s{-idx - 10}, {(7 << 16)} + {K}")
                e("s_mul_i32 s96, s94, 200")
                e("s_add_u32 s96, s96, 5000")
            elif idx == -3:
                e("s_getreg_b32 s94, hwreg(HW_REG_XCC_ID)")
                e("s_and_b32 s94, s94, 7")
                e(f"s_mul_i32 s96, s94, {K}")
                e("s_add_u32 s96, s96, 5000")
            elif idx < 0:
                e(f"s_mov_b32 s96, {K}")
            else:
                e(f"s_sub_u32 s96, s{S_STAMP + 2 * idx}, s{S_STAMP + 2 * o.pref}")
                e(f"s_mul_i32 s96, s96, {K}")
                if o.pref:
                    e("s_add_u32 s96, s96, 5000")
            e("s_min_u32 s96, s96, 200000")
            e("L_probe:")
            e("s_memrealtime s[98:99]")
            e("s_waitcnt lgkmcnt(0)")
            e(f"s_sub_u32 s98, s98, s{S_STAMP}")
            e("s_cmp_lt_u32 s98, s96")
            e("s_cbranch_scc1 L_probe")
        e("L_end:")
        e("s_endpgm")

        e(".p2align 7")
        e("L_role:")
        e("s_load_dwordx4 s[44:47], s[0:1], 32")
        e(f"s_lshr_b32 s{S_V + 1}, s2, 3")
        e(f"s_and_b32 s{S_T1}, s2, 1")
        e(f"s_lshl1_add_u32 s{S_T1}, s{S_T1}, 1")
        e(f"s_mul_i32 s{S_T2}, s2, 0x104100")
        e(f"s_cmp_eq_u32 s2, {NVOTE_WG}")
        e("s_waitcnt lgkmcnt(0)")
        e("s_cbranch_scc1 L_tag")
        e(f"s_sub_u32 s{S_T0}, s{S_OUT}, s{S_X}")
        e(f"s_addk_i32 s{S_T0}, 2048")
        e(f"s_bitcmp1_b32 s{S_T0}, 12")
        e(f"s_cselect_b32 s{S_V}, {o.quorum}, {o.quorum4}")
        e(f"s_cselect_b32 s{S_V + 2}, s{S_V + 1}, 1")
        e(f"s_cmp_eq_u32 s{S_V + 2}, 2")
        e(f"s_cselect_b32 s{S_V + 1}, s{S_T1}, s{S_V + 1}")
        e(f"s_bitcmp1_b32 s{S_V + 1}, 0")
        e(f"s_cselect_b64 s[{S_W}:{S_W + 1}], s[8:9], s[4:5]")
        e(f"s_lshr_b32 s{S_T1}, s{S_V + 1}, 1")
        e(f"s_lshl_b32 s{S_T1}, 0x2000000, s{S_T1}")
        e(f"s_add_u32 s{S_T2}, s{S_T2}, s{S_T1}")
        e(f"s_lshr_b32 s{S_T0}, s{S_OUT}, 7")
        e(f"s_mul_i32 s{S_T0}, s{S_T0}, 21")
        e(f"s_and_b32 s{S_T0}, s{S_T0}, 63")
        e(f"s_mulk_i32 s{S_T0}, 384")
        e(f"s_add_u32 s{S_T0}, s{S_T0}, s{S_T2}")
        e(f"s_cmp_lg_u32 s{S_V + 2}, 0")
        e(f"s_cselect_b32 s{S_V + 3}, s{S_OUT}, 0")
        e("s_cbranch_scc1 L_notws")
        e(f"s_mov_b64 s[{S_W}:{S_W + 1}], s[46:47]")
        e(f"s_and_b32 s{S_T0}, s{S_T2}, 0xfffff")
        e(f"s_add_u32 s{S_T0}, s{S_T0}, {WS_PROBE}")
        e("L_notws:")
        e(f"s_add_u32 s{S_T1}, s{S_T0}, 8192")
        self.stamp(1, True)
        e(f"s_load_dword s42, s[{S_W}:{S_W + 1}], s{S_T0} glc")
        e(f"s_load_dword s43, s[{S_W}:{S_W + 1}], s{S_T1} glc")
        e(f"s_mov_b32 s{S_CNT}, {-(NRACE // 2)}")
        if o.dpf:
            e(f"s_load_dword s23, s[44:45], 192 glc")
        for k in range(NRACE):
            e("s_waitcnt lgkmcnt(0)")
            if k < 2:
                self.stamp(2 + k, True)
                if o.vdiag:
                    e("s_waitcnt lgkmcnt(0)")
            first, second = (S_T0, S_T1) if k % 2 == 0 else (S_T1, S_T0)
            e(f"s_load_dword s42, s[{S_W}:{S_W + 1}], s{first} glc")
            e(f"s_load_dword s43, s[{S_W}:{S_W + 1}], s{second} glc")
            e("s_waitcnt lgkmcnt(1)")
            e("s_nop 7")
            e(f"s_getreg_b32 s{S_T2}, hwreg(HW_REG_IB_STS, 8, 4)   ; 1: the second answer is still out")
            if k % 2 == 0:
                e(f"s_xor_b32 s{S_T2}, s{S_T2}, 1")
            e(f"s_add_u32 s{S_CNT}, s{S_CNT}, s{S_T2}")
        assert NRACE % 2 == 0 and max(o.quorum, o.quorum4) * NRACE // 2 < 32 and max(o.quorum, o.quorum4) <= NVOTE_WG
        e(f"s_sub_u32 s{S_T2}, 0, s{S_CNT}")
        e(f"s_add_u32 s{S_T0}, s{S_T0}, s{S_V + 3}")
        e(f"s_lshr_b32 s{S_T0}, s{S_T0}, 19")
        e(f"s_getreg_b32 s{S_T1}, hwreg(HW_REG_XCC_ID, 0, 3)")
        e(f"s_xor_b32 s{S_T0}, s{S_T0}, s{S_T1}")
        e(f"s_bitcmp1_b32 s{S_T0}, 2")
        e(f"s_cselect_b32 s{S_CNT}, s{S_T2}, s{S_CNT}")
        e(f"s_mul_i32 s{S_T0}, s{S_V + 1}, 6")
        e(f"s_add_u32 s{S_T0}, s{S_T0}, 7")
        e(f"s_lshl_b32 s{S_CNT}, s{S_CNT}, s{S_T0}")
        e(f"s_or_b32 s{S_CNT}, s{S_CNT}, 1")
        e(f"s_mov_b32 s{S_T1}, s{S_CNT}")
        self.stamp(6, True)
        e(f"s_atomic_add s{S_T1}, s[44:45], {DBG_TAL} glc")
        e(f"s_add_u32 s{S_CNT}, s{S_CNT}, {sum(31 << (7 + 6 * t) for t in range(4))}")
        e("s_waitcnt lgkmcnt(0)")
        e(f"s_add_u32 s{S_T1}, s{S_T1}, s{S_CNT}")
        self.stamp(13)
        e(f"s_and_b32 s{S_T0}, s{S_T1}, 0x7f")
        e(f"s_cmp_lg_u32 s{S_T0}, s{S_V}")
        e("s_cbranch_scc1 L_stream")
        e(f"s_and_b32 s{S_T1}, s{S_T1}, {sum(32 << (7 + 6 * t) for t in range(4))}")
        e(f"s_bitset1_b32 s{S_T1}, 9")
        e("L_publish:")
        e(f"s_atomic_add s{S_T1}, s[44:45], {DBG_RES}")
        e("s_waitcnt lgkmcnt(0)")
        e("s_branch L_stream")

        e("L_tag:")
        e(f"s_mov_b32 s{S_T1}, 1")
        e("s_waitcnt lgkmcnt(0)")
        e(f"s_atomic_add s{S_T1}, s[46:47], {WS_E} glc")
        e("s_waitcnt lgkmcnt(0)")
        e(f"s_add_u32 s{S_T1}, s{S_T1}, 1")
        e(f"s_and_b32 s{S_T1}, s{S_T1}, 0xff")
        e(f"s_bitset1_b32 s{S_T1}, 8")
        assert NVOTE_WG % 8 == 0
        e(f"s_getreg_b32 s{S_T0}, hwreg(HW_REG_XCC_ID, 0, 3)")
        e(f"s_lshl_b32 s{S_T0}, s{S_T0}, 13")
        e(f"s_or_b32 s{S_T1}, s{S_T1}, s{S_T0}")
        self.stamp(13)
        e("s_branch L_publish")

        if o.clean in ("a", "h"):
            e("L_clean0:")
            clean1()
            e("s_branch L_join")
        for nm in ("r", "q0", "q1"):
            k = nm[1:]
            e(f"L_{nm[0]}long{k}:")
            e("s_waitcnt vmcnt(0)")
            e(f"s_cmp_lg_u32 s{S_HOOK}, 0")
            e(f"s_cbranch_scc1 L_{nm[0]}got{k}")
            e(f"s_call_b64 s[{S_RET}:{S_RET + 1}], L_flush")
            e(f"s_branch L_{nm[0]}poll{k}")
        e("L_flush:")
        e(f"s_mov_b32 s{S_CNT}, {SPIN}")
        e(f"s_mov_b32 s{S_HOOK}, {SPIN}")
        e("s_mov_b32 exec_lo, -1")
        e("s_mov_b32 exec_hi, 0xffff")
        e("v_lshlrev_b32 v17, 4, v1")
        e("L_floop:")
        e(f"buffer_load_dwordx4 v[8:11], v17, s[{S_WS}:{S_WS + 3}], s{S_PO} offen sc1")
        e(f"buffer_load_dwordx4 v[12:15], v17, s[{S_WS}:{S_WS + 3}], s{S_PO} offen offset:768 sc1")
        e(f"s_sub_u32 s{S_HOOK}, s{S_HOOK}, 1")
        e("s_waitcnt vmcnt(0)")
        e(f"v_xor_b32 v16, s{S_TG[0]}, v8")
        for r in range(9, 16):
            e(f"v_bitop3_b32 v16, v16, v{r}, s{S_TG[r & 3]} bitop3:0xf6")
        e("v_and_b32 v16, 15, v16")
        e("v_cmp_ne_u32 vcc, 0, v16")
        e("s_cbranch_scc1 L_fdone")
        e("s_cbranch_vccnz L_floop")
        e("L_fdone:")
        e(f"buffer_store_dwordx4 v[8:11], v17, s[{S_WS}:{S_WS + 3}], s{S_PO} offen sc1")
        e(f"buffer_store_dwordx4 v[12:15], v17, s[{S_WS}:{S_WS + 3}], s{S_PO} offen offset:768 sc1")
        e("s_waitcnt vmcnt(0)")
        e("s_mov_b64 exec, -1")
        e(f"s_mov_b32 s{S_HOOK}, -1")
        e(f"s_setpc_b64 s[{S_RET}:{S_RET + 1}]")

        e("L_dpoll:")
        e(f"s_mov_b32 s{S_CNT}, {SPIN}")
        e(f"v_mov_b32 v{V_AT}, 0")
        e("s_mov_b64 exec, 1")
        e("L_dloop:")
        e(f"buffer_load_dword v{V_AT}, off, s[{S_DBG}:{S_DBG + 3}], 0 offset:{DBG_RES} sc1")
        e(f"s_sleep {o.dsleep}")
        e("s_waitcnt vmcnt(24)")
        e(f"v_readfirstlane_b32 s{S_T2}, v{V_AT}          ; whatever poll has landed last")
        e(f"s_sub_u32 s{S_CNT}, s{S_CNT}, 1")
        e("s_cbranch_scc1 L_dgot")
        e(f"s_andn2_b32 s{S_OFF}, {RES_OK}, s{S_T2}")
        e("s_cbranch_scc1 L_dloop")
        e("L_dgot:")
        e("s_mov_b64 exec, -1")
        e("s_branch L_decided")

        e("L_codeend:")
        e("s_endpgm")

    def text(self):
        out = HEADER
        out += f"; @launch grid=({NWG},1,1) block=(768,1,1) lds={L_TOTAL}\n"
        out += '.amdgcn_target "amdgcn-amd-amdhsa--gfx950"\n.text\n'
        out += f".globl {KNAME}\n.p2align 8\n.type {KNAME},@function\n{KNAME}:\n"
        out += "\n".join(self.lines) + "\n"
        out += f""".section .rodata,"a"
.p2align 6
.amdhsa_kernel {KNAME}
  .amdhsa_next_free_vgpr 168
  .amdhsa_next_free_sgpr {100 if self.o.stamps else 56}
  .amdhsa_accum_offset 168
  .amdhsa_group_segment_fixed_size 0
  .amdhsa_kernarg_size 48
  .amdhsa_user_sgpr_count 2
  .amdhsa_user_sgpr_kernarg_segment_ptr 1
  .amdhsa_system_sgpr_workgroup_id_x 1
  .amdhsa_float_denorm_mode_32 3
.end_amdhsa_kernel
"""
        return out


def main():
    p = argparse.ArgumentParser()
    p.add_argument("-o", default="standalone__channel_attn_cbam__vision.s")
    p.add_argument("--ldflags", default="nt")
    p.add_argument("--stflags", default="sc1")
    p.add_argument("--p1flags", default="sc1")
    p.add_argument("--stamps", action="store_true")
    p.add_argument("--probe", default="")
    p.add_argument("--depth", type=int, default=10)
    p.add_argument("--nrace", type=int, default=2)
    p.add_argument("--dsleep", type=int, default=8)
    p.add_argument("--trace", default="")
    p.add_argument("--nodec", action="store_true")
    p.add_argument("--vdiag", action="store_true")
    p.add_argument("--dbgptr", action="store_true")
    p.add_argument("--opp", default="5,9", type=lambda v: [int(x) for x in v.split(",")])
    p.add_argument("--quorum", type=int, default=16)
    p.add_argument("--quorum4", type=int, default=24)
    p.add_argument("--nvote", type=int, default=32)
    p.add_argument("--nagn", type=int, default=6)
    p.add_argument("--stlim", type=int, default=0)
    p.add_argument("--psc1", action="store_true")
    p.add_argument("--pnt", action="store_true")
    p.add_argument("--tlb", type=int, default=0)
    p.add_argument("--rot", type=int, default=0)
    p.add_argument("--pad", type=int, default=0)
    p.add_argument("--lpf", type=int, default=2)
    p.add_argument("--al", type=int, default=0)
    p.add_argument("--cap", type=int, default=0)
    p.add_argument("--capfrom", type=int, default=12)
    p.add_argument("--capto", type=int, default=32)
    p.add_argument("--skewa", type=int, default=1)
    p.add_argument("--skewd", type=int, default=1)
    p.add_argument("--skewc", type=int, default=0)
    p.add_argument("--skew", type=int, default=0, help="timing diagnostic only")
    p.add_argument("--warmfl", default="")
    p.add_argument("--sdiag", action="store_true")
    p.add_argument("--rpf", type=int, default=0)
    p.add_argument("--dpf", type=int, default=0)
    p.add_argument("--pwg", type=int, default=0)
    p.add_argument("--pwave", type=int, default=0)
    p.add_argument("--pref", type=int, default=0)
    p.add_argument("--qshift", type=int, default=32)
    p.add_argument("--rolepos", type=int, default=-1)
    p.add_argument("--prebar", type=int, default=1)
    p.add_argument("--qmap", type=int, default=0)
    p.add_argument("--agnu", type=int, default=4)
    p.add_argument("--warmst", type=int, default=0)
    p.add_argument("--cw", type=int, default=0)
    p.add_argument("--cld", action="store_true")
    p.add_argument("--qflip", type=int, default=0)
    p.add_argument("--qcopy", type=int, default=4)
    p.add_argument("--mul", default="dot")
    p.add_argument("--burst", type=int, default=32)
    p.add_argument("--idleclk", type=int, default=0)
    p.add_argument("--clk", action="store_true")
    p.add_argument("--sthr", type=int, default=0)
    p.add_argument("--sbar", default=[24], type=lambda v: [int(x) for x in v.split(",")])
    p.add_argument("--piece", type=int, default=128)
    p.add_argument("--xbar", default=[24], type=lambda v: [int(x) for x in v.split(",")])
    p.add_argument("--cpf", type=int, default=0)
    p.add_argument("--cpfpos", type=int, default=0)
    p.add_argument("--wpace", type=int, default=40)
    p.add_argument("--clean", default="g")
    p.add_argument("--warm", type=int, default=30)
    p.add_argument("--warmwave", type=int, default=4)
    p.add_argument("--qsleep", type=int, default=0)
    p.add_argument("--red0", type=int, default=8)
    p.add_argument("--redstep", type=int, default=2)
    p.add_argument("--off", default="", help="diagnostics: v = no votes, c = no clears, r = result not read")
    p.add_argument("--spans", default="")
    p.add_argument("--split", action="store_true")
    p.add_argument("--pfback", type=int, default=0)
    p.add_argument("--nplain", type=int, default=0)
    p.add_argument("--wb", default="", help="minwave,wglimit,pos")
    p.add_argument("--thr", type=int, default=2)
    p.add_argument("--thrfrom", type=int, default=12)
    p.add_argument("--thrto", type=int, default=24)
    p.add_argument("--thrmask", default="0x55")
    p.add_argument("--zorder", default="8,0,9,1,10,2,11,3,12,4,13,5,14,6,15,7")
    o = p.parse_args()
    global NAGN, SPANS, NVOTE_WG
    NVOTE_WG = o.nvote
    NAGN = o.nagn
    if NAGN == 6:
        SPANS = [(0, 0), (0, 1), (1, 0), (1, 1), (2, 0), (2, 1),
                 (3, 0), (3, 1), (4, 0), (4, 1), (5, 0), (5, 1), (6, 0), (6, 1), (7, 0), (7, 1)]
        if o.zorder == p.get_default("zorder"):
            o.zorder = "6,0,7,1,8,2,9,3,10,4,11,5,12,13,14,15"
    if o.spans:
        SPANS = [(int(v[0]), int(v[1])) for v in o.spans.split(",")]
        assert sorted(SPANS) == [(a, b) for a in range(8) for b in range(2)]
    g = G(o)
    g.build()
    open(o.o, "w").write(g.text())


if __name__ == "__main__":
    main()
```

```python
import argparse

KNAME = "standalone__channel_attn_cbam__vision_kernel"

HEADER = """; Kernarg layout for this problem (48 bytes, ptrs only, base s[0:1]):
"""

X_BYTES = 100663296
NWG = 256
NRED = 12
MiB = 1 << 20

L_RED = 0
L_H = 6144
L_DEC = 6336
L_S = 6400
L_R2 = 7168
L_W1 = 8192
L_W2 = L_W1 + 18432
L_SPILL = L_W2 + 18432
L_TOTAL = L_SPILL + 3 * 8192

WS_P = 0
WS_F = 256 * 1536
WS_STAMP = 1 << 20
WS_E = WS_F + 12 * 128
WS_USED = WS_E + 128

S_X, S_OUT, S_WS, S_DBG, S_W = 4, 8, 12, 16, 20
S_WAVE, S_TY, S_SUB, S_OFF, S_MASK, S_CNT, S_T0, S_T1 = 28, 29, 30, 31, 32, 33, 34, 35
S_BASE, S_PM, S_P, S_T2, S_E = 48, 49, 50, 51, 3
S_AGN, S_TAG, S_RID = 40, 41, 42
S_STAMP = 52
S_V = 24

D0 = 40
SPIN = 400000
V_L, V_G0, V_G1, V_AT = 0, 39, 38, 36

NAGN = 8
SPANS = [(0, 0), (0, 1), (1, 0), (1, 1), (2, 0), (2, 1), (3, 0), (3, 1),
         (6, 0), (4, 0), (6, 1), (4, 1), (7, 0), (5, 0), (7, 1), (5, 1)]
W_ROLE = 0
DBG_RES, DBG_TAL = 0, 128
NVOTE_WG = 32
RES_OK = (1 << 7) | (1 << 4)


def mask(pred):
    return sum(1 << z for z, s in enumerate(SPANS) if pred(z, s))


class G:
    def __init__(self, o):
        self.o = o
        self.lines = []

    def e(self, s=""):
        self.lines.append(("    " + s) if s and not s.endswith(":") else s)

    def stamp(self, idx, vote=False):
        if self.o.vdiag and idx in (1, 2, 3, 6) and not vote:
            return
        if vote and not self.o.vdiag:
            return
        if self.o.stamps and not (self.o.trace and idx > 10):
            self.e(f"s_memrealtime s[{S_STAMP + 2 * idx}:{S_STAMP + 2 * idx + 1}]")

    def srd(self, d, lo, nbytes):
        e = self.e
        e(f"s_mov_b64 s[{d}:{d + 1}], s[{lo}:{lo + 1}]")
        e(f"s_mov_b32 s{d + 2}, {nbytes}")
        e(f"s_mov_b32 s{d + 3}, 0x20000")

    def span_off(self, z):
        return SPANS[z][0] * 12 * MiB + SPANS[z][1] * 49152

    def mem(self, j, fn):
        e = self.e
        z, u = j >> 1, j & 1
        if z < NAGN:
            off = SPANS[z][0] * 12 * MiB + (SPANS[z][1] * 2 + u) * 12288
            if off:
                e(f"s_add_u32 s{S_OFF}, s{S_AGN}, {off}")
                fn(f"v{V_L}", f"s{S_OFF}")
            else:
                fn(f"v{V_L}", f"s{S_AGN}")
            return
        if u == 0:
            e(f"s_bitcmp1_b32 s{S_PM}, {z}")
            e(f"s_cselect_b32 s{S_P}, 24576, 0")
        e(f"s_add_u32 s{S_OFF}, s{S_BASE}, {self.span_off(z) + 12288 * u}")
        at = 2 + u
        e(f"v_xad_u32 v{at}, v{(V_G0, V_G1)[u]}, s{S_P}, v{V_L}")
        if SPANS[z] == (7, 1):
            e(f"v_add_u32 v{at}, s{S_OFF}, v{at}")
            e(f"v_subrev_u32 v{5 - at}, s{S_X + 2}, v{at}")
            e(f"v_min_u32 v{at}, v{at}, v{5 - at}")
            fn(f"v{at}", "0")
        else:
            fn(f"v{at}", f"s{S_OFF}")

    def trace(self, kind, n):
        if self.o.trace == kind:
            if n > 0:
                self.e("s_waitcnt lgkmcnt(0)")
                self.e(f"s_mov_b32 s{76 + n - 1}, s92")
            self.e("s_memrealtime s[92:93]")

    def build(self):
        o, e = self.o, self.e
        NRACE = o.nrace
        ldf = (" " + o.ldflags) if o.ldflags else ""
        stf = (" " + o.stflags) if o.stflags else ""

        self.stamp(0)
        e("s_load_dwordx2 s[4:5], s[0:1], 0          ; x")
        e("s_load_dwordx2 s[8:9], s[0:1], 24         ; out")
        e("v_readfirstlane_b32 s%d, v0" % S_WAVE)
        e("v_and_b32 v1, 63, v0                      ; lane")
        e("v_bfe_u32 v2, v0, 3, 3")
        e("v_mul_u32_u24 v2, 384, v2")
        e("v_and_b32 v3, 7, v0")
        e("s_cmpk_ge_u32 s2, %d" % NWG)
        e("s_cbranch_scc1 L_end")
        e(f"s_lshr_b32 s{S_WAVE}, s{S_WAVE}, 6")
        e(f"s_mul_i32 s{S_SUB}, s{S_WAVE}, 43")
        e(f"s_lshr_b32 s{S_SUB}, s{S_SUB}, 7")
        e(f"s_mul_i32 s{S_T0}, s{S_SUB}, 21")
        e(f"s_add_u32 s{S_T0}, s{S_T0}, s{S_WAVE}        ; sub*24 + wave % 3")
        e(f"s_lshl_b32 s{S_T0}, s{S_T0}, 7")
        e("v_lshl_add_u32 v0, v3, 4, v2")
        e(f"v_add_u32 v{V_L}, s{S_T0}, v0               ; + sub*3072 + (wave % 3)*128")
        e(f"s_and_b32 s{S_T0}, s2, 3")
        e(f"s_bfe_u32 s{S_T1}, s2, 0x10002")
        e(f"s_lshl1_add_u32 s{S_T0}, s{S_T0}, s{S_T1}")
        e(f"s_and_b32 s{S_T1}, s2, -8")
        e(f"s_add_u32 s{S_T0}, s{S_T0}, s{S_T1}")
        e(f"s_mul_i32 s{S_AGN}, s{S_T0}, 49152")
        e(f"s_mov_b32 s{S_X + 2}, {X_BYTES}")
        e(f"s_mov_b32 s{S_X + 3}, 0x20000")
        e(f"s_lshl_b32 s{S_T1}, s{S_WAVE}, 8")
        e(f"s_or_b32 s{S_T1}, s{S_T1}, s2")
        e("s_waitcnt lgkmcnt(0)")
        e(f"s_lshr_b32 s{S_T0}, s{S_OUT}, 7")
        e(f"s_mul_i32 s{S_T0}, s{S_T0}, 21              ; -43 mod 64")
        e(f"s_and_b32 s{S_T0}, s{S_T0}, 63")
        e(f"s_mulk_i32 s{S_T0}, 384")
        e(f"s_add_u32 s{S_AGN}, s{S_AGN}, s{S_T0}")
        assert W_ROLE == 0
        e(f"s_cmp_le_u32 s{S_T1}, {NVOTE_WG}")
        e("s_cbranch_scc1 L_role")
        e("L_stream:")

        SUM, MAX, T = 4, 12, 20
        DEPTH = o.depth
        seq = []

        def issue(j):
            if j == 4:
                e("s_load_dwordx4 s[36:39], s[0:1], 8        ; w1, w2")
                e(f"s_load_dwordx2 s[{S_DBG}:{S_DBG + 1}], s[0:1], 32")
                e(f"s_load_dwordx2 s[{S_WS}:{S_WS + 1}], s[0:1], 40")
                e(f"s_mov_b32 s{S_MASK}, 0xffff0000")
            if j == 2 * NAGN:
                e(f"s_mul_i32 s{S_TY}, s{S_SUB}, 3")
                e(f"s_sub_u32 s{S_TY}, s{S_WAVE}, s{S_TY}        ; ty = wave % 3")
                e(f"s_mov_b32 s{S_OUT + 2}, s{S_X + 2}")
                e(f"s_mov_b32 s{S_OUT + 3}, s{S_X + 3}")
                e(f"s_mov_b32 s{S_WS + 2}, {(2 << 20) if o.stamps else WS_USED}")
                e(f"s_mov_b32 s{S_WS + 3}, s{S_X + 3}")
                e(f"s_movk_i32 s{S_DBG + 2}, 256")
                e(f"s_mov_b32 s{S_DBG + 3}, s{S_X + 3}")
                e(f"s_movk_i32 s{S_T2}, 24576")
                e(f"v_bfe_u32 v{V_G0}, v{V_L}, 13, 1")
                e(f"v_add_u32 v{V_G1}, 12288, v{V_L}")
                e(f"v_bfe_u32 v{V_G1}, v{V_G1}, 13, 1")
                e(f"v_mul_u32_u24 v{V_G0}, s{S_T2}, v{V_G0}")
                e(f"v_mul_u32_u24 v{V_G1}, s{S_T2}, v{V_G1}")
                e(f"s_bfe_i32 s{S_PM}, s2, 0x10002              ; -side")
                e(f"s_and_b32 s{S_T0}, s{S_PM}, 49152")
                e(f"s_sub_u32 s{S_BASE}, s{S_AGN}, s{S_T0}")
                h1 = mask(lambda z, s: s[1] == 1)
                e(f"s_add_u32 s{S_T0}, s{S_BASE}, s{S_T2}")
                e(f"s_add_u32 s{S_T0}, s{S_T0}, s{S_OUT}")
                e(f"s_bfe_i32 s{S_T1}, s{S_T0}, 0x10015")
                e(f"s_xor_b32 s{S_PM}, s{S_PM}, s{S_T1}")
                e(f"s_add_u32 s{S_T2}, s{S_T0}, 49152")
                e(f"s_xor_b32 s{S_T0}, s{S_T0}, s{S_T2}")
                e(f"s_bfe_i32 s{S_T0}, s{S_T0}, 0x10015")
                e(f"s_and_b32 s{S_T0}, s{S_T0}, {h1}")
                e(f"s_xor_b32 s{S_PM}, s{S_PM}, s{S_T0}")
                m1 = mask(lambda z, s: z >= NAGN and s[0] in (3, 4))
                z50 = SPANS.index((5, 0))
                z51 = SPANS.index((5, 1))
                dec = mask(lambda z, s: z >= NAGN)
                e(f"s_cmp_lt_u32 s{S_BASE}, {4 * MiB - 24576}")
                e(f"s_cselect_b32 s{S_T0}, {1 << z50}, 0")
                e(f"s_or_b32 s{S_T0}, s{S_T0}, {m1}")
                e(f"s_cmp_lt_u32 s{S_BASE}, {4 * MiB - 24576 - 49152}")
                e(f"s_cselect_b32 s{S_T1}, {1 << z51}, 0")
                e(f"s_or_b32 s{S_T0}, s{S_T0}, s{S_T1}            ; third 1")
                e(f"s_xor_b32 s{S_T1}, s{S_T0}, {dec}           ; third 2")
                per, pat = o.opp
                rep = sum(((pat >> (i % per)) & 1) << i for i in range(32))
                e(f"s_lshr_b32 s{S_P}, s2, 3")
                e(f"s_mul_i32 s{S_T2}, s{S_P}, {-(-256 // per)}")
                e(f"s_lshr_b32 s{S_T2}, s{S_T2}, 8")
                e(f"s_mul_i32 s{S_T2}, s{S_T2}, {per}")
                e(f"s_sub_u32 s{S_P}, s{S_P}, s{S_T2}             ; (b >> 3) % {per}")
                e(f"s_lshr_b32 s{S_P}, {rep}, s{S_P}")
                e(f"s_sub_u32 s{S_T2}, s{S_OUT}, s{S_X}")
                e(f"s_add_u32 s{S_T2}, s{S_T2}, 2048")
                e(f"s_bitcmp1_b32 s{S_T2}, 12")
                e(f"s_cselect_b32 s{S_P}, 0, s{S_P}")
                e(f"s_sub_u32 s{S_RID}, s2, {o.red0}")
                if o.redstep == 2:
                    e(f"s_lshr_b32 s{S_T2}, s{S_RID}, 1")
                    e(f"s_bitcmp1_b32 s{S_RID}, 0")
                    e(f"s_cselect_b32 s{S_RID}, -1, s{S_T2}")
                e("s_waitcnt lgkmcnt(0)")
                self.stamp(11)
                e("s_barrier")
                e(f"s_load_dword s{S_T2}, s[{S_DBG}:{S_DBG + 1}], {DBG_RES}")
                e("s_waitcnt lgkmcnt(0)")
                e(f"s_andn2_b32 s{S_CNT}, {RES_OK}, s{S_T2}")
                e("s_cbranch_scc1 L_dpoll")
                e("L_decided:")
                for i in range(4):
                    e(f"s_bitcmp1_b32 s{S_T2}, {7 + 6 * i + 5}")
                    e(f"s_cselect_b32 s{S_V + i}, s{(S_T0, S_T1)[i >> 1]}, 0")
                e(f"s_or_b32 s{S_V}, s{S_V}, s{S_V + 2}")
                e(f"s_or_b32 s{S_V + 1}, s{S_V + 1}, s{S_V + 3}")
                e(f"s_xor_b32 s{S_V}, s{S_V}, s{S_V + 1}")
                e(f"s_and_b32 s{S_V}, s{S_V}, s{S_P}")
                e(f"s_xor_b32 s{S_V}, s{S_V}, s{S_V + 1}")
                e(f"s_xor_b32 s{S_PM}, s{S_PM}, s{S_V}")
                e(f"s_and_b32 s{S_TAG}, s{S_T2}, 15")
                self.stamp(12)
            r = D0 + 4 * j
            if o.thr and j == min(o.thrfrom, 3):
                e(f"s_and_b32 s{S_T0}, s2, 7")
                e(f"s_lshr_b32 s{S_T0}, {o.thrmask}, s{S_T0}")
                e(f"s_and_b32 vcc_lo, s{S_T0}, 1")
                e("s_mov_b32 vcc_hi, 0")
            if o.thr and o.thrfrom <= j < o.thrto:
                e(f"s_cbranch_vccz L_thr{j}")
                e(f"s_waitcnt vmcnt({o.thr - 1})")
                e(f"L_thr{j}:")
            self.mem(j, lambda va, so: e(f"buffer_load_dwordx4 v[{r}:{r + 3}], {va}, s[{S_X}:{S_X + 3}], {so} offen{ldf}"))
            seq.append(j)
            if j & 1:
                self.trace("ld", j >> 1)

        def wait_for(j):
            e(f"s_waitcnt vmcnt({len(seq) - 1 - seq.index(j)})")

        nxt = 0
        for jj in range(16):
            while nxt < 32 and nxt < 2 * jj + DEPTH + 2:
                issue(nxt)
                nxt += 1
                if nxt == 32:
                    self.stamp(1)
            a, b = D0 + 8 * jj, D0 + 8 * jj + 4
            if jj == 15:
                e("v_and_b32 v2, 7, v1")
                e("v_lshlrev_b32 v2, 5, v2                   ; (l&7)*32")
                e("v_lshrrev_b32 v3, 4, v1")
                e("v_lshl_add_u32 v2, v3, 3, v2              ; + (l>>4)*8")
                e("v_bfe_u32 v3, v1, 3, 1")
                e("v_mul_u32_u24 v3, 768, v3")
                e(f"s_mul_i32 s{S_T0}, s{S_SUB}, 1536")
                e(f"s_lshl_b32 s{S_T1}, s{S_TY}, 8")
                e(f"s_add_u32 s{S_T0}, s{S_T0}, s{S_T1}")
                e(f"v_add3_u32 v2, v2, v3, s{S_T0}")
                e(f"s_mul_i32 s{S_T0}, s{S_WAVE}, 768")
                e(f"v_lshl_add_u32 v3, v1, 4, s{S_T0}")
                e(f"s_mul_i32 s{S_T1}, s2, 1536")
                for r in (a, b):
                    wait_for((r - D0) // 4)
                    if r == b:
                        self.stamp(3)
                    for i in range(4):
                        t = T + 2 * i
                        e(f"v_lshlrev_b32 v{t}, 16, v{r + i}")
                        e(f"v_and_b32 v{t + 1}, s{S_MASK}, v{r + i}")
                    for i in range(8):
                        e(f"v_max_f32 v{MAX + i}, v{MAX + i}, v{T + i}")
                    for i in range(4):
                        t, s = T + 2 * i, SUM + 2 * i
                        e(f"v_pk_add_f32 v[{s}:{s + 1}], v[{s}:{s + 1}], v[{t}:{t + 1}]")
                continue
            wait_for(2 * jj + 1)
            if jj == 0:
                self.stamp(2)
            for i in range(4):
                t = T + 4 * i
                e(f"v_lshlrev_b32 v{t}, 16, v{a + i}")
                e(f"v_and_b32 v{t + 1}, s{S_MASK}, v{a + i}")
                e(f"v_lshlrev_b32 v{t + 2}, 16, v{b + i}")
                e(f"v_and_b32 v{t + 3}, s{S_MASK}, v{b + i}")
            for i in range(4):
                t = T + 4 * i
                s, m = SUM + 2 * i, MAX + 2 * i
                if jj == 0:
                    e(f"v_max_f32 v{m}, v{t}, v{t + 2}")
                    e(f"v_max_f32 v{m + 1}, v{t + 1}, v{t + 3}")
                    e(f"v_pk_add_f32 v[{s}:{s + 1}], v[{t}:{t + 1}], v[{t + 2}:{t + 3}]")
                else:
                    e(f"v_max3_f32 v{m}, v{m}, v{t}, v{t + 2}")
                    e(f"v_max3_f32 v{m + 1}, v{m + 1}, v{t + 1}, v{t + 3}")
                    e(f"v_pk_add_f32 v[{t}:{t + 1}], v[{t}:{t + 1}], v[{t + 2}:{t + 3}]")
            if jj:
                for i in range(4):
                    t = T + 4 * i
                    s = SUM + 2 * i
                    e(f"v_pk_add_f32 v[{s}:{s + 1}], v[{s}:{s + 1}], v[{t}:{t + 1}]")

        for base in (MAX, SUM):
            for i in range(4):
                e(f"v_permlane32_swap_b32 v{base + i}, v{base + 4 + i}")
        for i in range(4):
            e(f"v_max_f32 v{MAX + i}, v{MAX + i}, v{MAX + 4 + i}")
        for i in range(4):
            e(f"v_add_f32 v{SUM + i}, v{SUM + i}, v{SUM + 4 + i}")
        for i in range(2):
            e(f"v_permlane16_swap_b32 v{MAX + i}, v{MAX + 2 + i}")
        for i in range(2):
            e(f"v_permlane16_swap_b32 v{SUM + i}, v{SUM + 2 + i}")
        for i in range(2):
            e(f"v_add_f32 v{SUM + i}, v{SUM + i}, v{SUM + 2 + i}")
        for i in range(2):
            e(f"v_max_f32 v{MAX + i}, v{MAX + i}, v{MAX + 2 + i}")
        e(f"s_cmp_ge_u32 s{S_WAVE}, 2")
        for i in range(2):
            e(f"v_add_f32_dpp v{SUM + i}, v{SUM + i}, v{SUM + i} row_ror:8 row_mask:0xf bank_mask:0x3")
        for i in range(2):
            e(f"v_max_f32_dpp v{SUM + i}, v{MAX + i}, v{MAX + i} row_ror:8 row_mask:0xf bank_mask:0xc")
        e(f"ds_write_b64 v2, v[{SUM}:{SUM + 1}] offset:{L_RED}")
        e("s_waitcnt lgkmcnt(0)")
        e("s_barrier")
        self.stamp(4)
        e("s_cbranch_scc1 L_nopub")

        e("s_mov_b32 exec_hi, 0xffff")
        for k in range(4):
            e(f"ds_read_b128 v[{4 + 4 * k}:{7 + 4 * k}], v3 offset:{L_RED + 1536 * k}")
        e(f"s_cmp_eq_u32 s{S_WAVE}, 0")
        e(f"s_cselect_b64 s[{S_W}:{S_W + 1}], s[36:37], s[38:39]")
        e("s_cbranch_scc0 L_pubmax")
        e("s_waitcnt lgkmcnt(2)")
        e("v_pk_add_f32 v[4:5], v[4:5], v[8:9]")
        e("v_pk_add_f32 v[6:7], v[6:7], v[10:11]")
        e("s_waitcnt lgkmcnt(0)")
        e("v_pk_add_f32 v[12:13], v[12:13], v[16:17]")
        e("v_pk_add_f32 v[14:15], v[14:15], v[18:19]")
        e("v_pk_add_f32 v[4:5], v[4:5], v[12:13]")
        e("v_pk_add_f32 v[6:7], v[6:7], v[14:15]")
        e("s_branch L_pub")
        e("L_pubmax:")
        e("s_waitcnt lgkmcnt(1)")
        for i in range(4):
            e(f"v_max3_f32 v{4 + i}, v{4 + i}, v{8 + i}, v{12 + i}")
        e("s_waitcnt lgkmcnt(0)")
        for i in range(4):
            e(f"v_max_f32 v{4 + i}, v{4 + i}, v{16 + i}")
        e("L_pub:")
        for i in range(4):
            e(f"v_and_or_b32 v{4 + i}, v{4 + i}, -16, s{S_TAG}")
        e(f"buffer_store_dwordx4 v[4:7], v3, s[{S_WS}:{S_WS + 3}], s{S_T1} offen sc1")
        e("s_mov_b64 exec, -1")
        e(f"s_movk_i32 s{S_W + 2}, 18432")
        e(f"s_mov_b32 s{S_W + 3}, 0x20000")
        e(f"s_mul_i32 s{S_T0}, s{S_WAVE}, 18432")
        e(f"s_add_u32 s{S_T0}, s{S_T0}, {L_W1}")
        e(f"s_mov_b32 s{S_T1}, 0")
        e("v_lshlrev_b32 v2, 4, v1")
        e("L_wloop:")
        e(f"s_add_u32 m0, s{S_T0}, s{S_T1}")
        e(f"s_cmp_lt_u32 s{S_T1}, {18432 - 3072}")
        for k in range(3):
            e(f"buffer_load_dwordx4 v2, s[{S_W}:{S_W + 3}], s{S_T1} offen offset:{k * 1024} lds")
        e(f"s_cbranch_scc0 L_nopub")
        e(f"s_addk_i32 s{S_T1}, 3072")
        e("s_branch L_wloop")
        e("L_nopub:")

        B2 = 28
        V_H0, V_H1, V_SW, V_SR = 24, 25, 26, 27
        SP0 = 136
        A1 = 144
        B1 = [4, 8, 12, 16, 136, 140]
        e("v_lshrrev_b32 v20, 4, v1                  ; q")
        e(f"s_cmp_lt_u32 s{S_WAVE}, 3")
        e("s_cbranch_scc1 L_spill")
        e(f"s_cmp_ge_u32 s{S_RID}, {NRED}")
        e("s_cbranch_scc1 L_barw")
        e(f"s_cmp_eq_u32 s{S_WAVE}, 3")
        e("s_cbranch_scc1 L_rfinal")

        e("v_lshrrev_b32 v2, 3, v1")
        e("v_mul_u32_u24 v2, 1536, v2")
        e("v_and_b32 v3, 7, v1")
        e("v_lshl_add_u32 v2, v3, 4, v2")
        e(f"s_sub_u32 s{S_T0}, s{S_WAVE}, 4")
        e(f"s_lshl_b32 s{S_T1}, s{S_T0}, 7")
        e(f"v_lshl_add_u32 v3, v3, 4, s{S_T1}")
        e("v_lshl_add_u32 v3, v20, 2, v3")
        e(f"s_mul_i32 s{S_T0}, s{S_T0}, {32 * 1536}")
        e(f"s_lshl_b32 s{S_T1}, s{S_RID}, 7")
        e(f"s_add_u32 s{S_V}, s{S_T0}, s{S_T1}")
        for k in range(1, 4):
            e(f"s_add_u32 s{S_V + k}, s{S_V}, {k * 8 * 1536}")
        e(f"s_mov_b32 s{S_CNT}, {SPIN}")
        e("L_rpoll:")
        for k in range(4):
            e(f"buffer_load_dwordx4 v[{4 + 4 * k}:{7 + 4 * k}], v2, s[{S_WS}:{S_WS + 3}], s{S_V + k} offen {o.p1flags}")
        e(f"s_sub_u32 s{S_CNT}, s{S_CNT}, 1")
        e("s_cbranch_scc1 L_rgot")
        for k in range(4):
            e(f"s_waitcnt vmcnt({3 - k})")
            for i in range(4):
                r, acc = 4 + 4 * k + i, 21 + (i & 1)
                if k == 0 and i < 2:
                    e(f"v_xor_b32 v{acc}, s{S_TAG}, v{r}")
                else:
                    e(f"v_bitop3_b32 v{acc}, v{acc}, v{r}, s{S_TAG} bitop3:0xf6   ; a | (b ^ c)")
        e("v_bitop3_b32 v21, v21, v22, 15 bitop3:0xa8          ; (a | b) & c")
        e("v_cmp_ne_u32 vcc, 0, v21")
        e("s_cbranch_vccnz L_rpoll")
        e("L_rgot:")
        e("s_waitcnt vmcnt(0)")
        self.stamp(9)
        e(f"s_cmp_ge_u32 s{S_RID}, 6")
        e("s_cbranch_scc1 L_rmax")
        for kind in (0, 1):
            op = "v_add_f32" if kind == 0 else "v_max_f32"
            if kind == 1:
                e("L_rmax:")
                for i in range(4):
                    e(f"v_max3_f32 v{4 + i}, v{4 + i}, v{8 + i}, v{12 + i}")
                for i in (0, 2, 1, 3):
                    e(f"v_max_f32 v{4 + i}, v{4 + i}, v{16 + i}")
            else:
                e("v_pk_add_f32 v[4:5], v[4:5], v[8:9]")
                e("v_pk_add_f32 v[6:7], v[6:7], v[10:11]")
                e("v_pk_add_f32 v[12:13], v[12:13], v[16:17]")
                e("v_pk_add_f32 v[14:15], v[14:15], v[18:19]")
                e("v_pk_add_f32 v[4:5], v[4:5], v[12:13]")
                e("v_pk_add_f32 v[6:7], v[6:7], v[14:15]")
            e("s_nop 1")
            e("v_permlane32_swap_b32 v4, v6")
            e("v_permlane32_swap_b32 v5, v7")
            e(f"{op} v4, v4, v6")
            e(f"{op} v5, v5, v7")
            e("s_nop 1")
            e("v_permlane16_swap_b32 v4, v5")
            e(f"{op} v4, v4, v5")
            e("s_nop 1")
            e(f"{op}_dpp v4, v4, v4 row_ror:8 row_mask:0xf bank_mask:0xf")
            e(f"ds_write_b32 v3, v4 offset:{L_R2}")
            e("s_branch L_barw")

        e("L_rfinal:")
        e("v_and_b32 v2, 15, v1")
        e("v_lshlrev_b32 v3, 3, v2")
        e("v_lshl_add_u32 v3, v20, 8, v3")
        e("v_lshlrev_b32 v2, 2, v2")
        e(f"s_lshl_b32 s{S_T1}, s{S_RID}, 7")
        e(f"s_add_u32 s{S_T1}, s{S_T1}, {WS_F}")
        e(f"s_cmp_ge_u32 s{S_RID}, 6")
        e("s_cbranch_scc1 L_rfmax")
        for kind in (0, 1):
            op = "v_add_f32" if kind == 0 else "v_max_f32"
            if kind == 1:
                e("L_rfmax:")
            e("s_barrier")
            e(f"ds_read_b64 v[4:5], v3 offset:{L_R2}")
            e(f"ds_read_b64 v[6:7], v3 offset:{L_R2 + 128}")
            e("s_waitcnt lgkmcnt(0)")
            e(f"{op} v4, v4, v6")
            e(f"{op} v5, v5, v7")
            e("s_nop 1")
            e("v_permlane32_swap_b32 v4, v5")
            e(f"{op} v4, v4, v5")
            e("v_mov_b32 v5, v4")
            e("s_nop 1")
            e("v_permlane16_swap_b32 v4, v5")
            e(f"{op} v4, v4, v5                        ; lanes <32: c0, lanes >=32: c1")
            if kind == 0:
                e("v_mul_f32 v4, 0x36800000, v4              ; 1/262144")
            e("v_mov_b32 v5, v4")
            e("s_nop 1")
            e("v_permlane32_swap_b32 v4, v5")
            e("v_cvt_pk_bf16_f32 v4, v4, v5")
            e("s_mov_b64 exec, 0xffff")
            e("v_min_u32 v4, -2, v4")
            e(f"buffer_store_dword v4, v2, s[{S_WS}:{S_WS + 3}], s{S_T1} offen sc1")
            self.stamp(9)
            e("s_mov_b64 exec, -1")
            e("s_branch L_afterw")

        e("L_spill:")
        e(f"s_lshl_b32 s{S_T0}, s{S_WAVE}, 13")
        e(f"v_lshl_add_u32 v{V_AT}, v1, 4, s{S_T0}")
        for k in range(8):
            e(f"ds_write_b128 v{V_AT}, v[{SP0 + 4 * k}:{SP0 + 4 * k + 3}] offset:{L_SPILL + 1024 * k}")
        e("L_barw:")
        e("s_waitcnt vmcnt(0) lgkmcnt(0)")
        e("s_barrier")
        e("L_afterw:")
        e("v_bfe_u32 v3, v1, 2, 2")
        e("v_lshl_add_u32 v21, v20, 3, v3            ; row")
        e("v_and_b32 v22, 15, v21")
        e("v_and_b32 v3, 3, v1")
        e(f"s_lshl_b32 s{S_T2}, s{S_WAVE}, 5")
        e(f"v_lshl_add_u32 v23, v3, 3, s{S_T2}")
        e("v_mov_b32 v3, 384")
        e("v_mad_u32_u24 v2, v21, v3, v23")
        e("v_mad_u32_u24 v22, v22, v3, v23")
        e(f"ds_read_b64_tr_b16 v[{B2}:{B2 + 1}], v2 offset:{L_W2}")
        e(f"ds_read_b64_tr_b16 v[{B2 + 2}:{B2 + 3}], v2 offset:{L_W2 + 4 * 384}")
        e(f"ds_read_b64_tr_b16 v[{B2 + 4}:{B2 + 5}], v22 offset:{L_W2 + 32 * 384}")
        e(f"ds_read_b64_tr_b16 v[{B2 + 6}:{B2 + 7}], v22 offset:{L_W2 + 36 * 384}")
        e("v_and_b32 v2, 1, v1")
        e("v_mul_u32_u24 v22, 96, v2")
        e(f"v_lshl_add_u32 v{V_H0}, v20, 4, v22")
        e("v_and_b32 v3, 1, v20")
        e(f"v_lshl_add_u32 v{V_H1}, v3, 4, v22")
        e(f"s_lshl_b32 s{S_T0}, s{S_WAVE}, 6")
        e(f"v_lshl_add_u32 v{V_SW}, v1, 2, s{S_T0}")
        e("v_and_b32 v3, 7, v1")
        e(f"s_lshl_b32 s{S_T0}, s{S_TY}, 8")
        e(f"v_lshl_add_u32 v{V_SR}, v3, 5, s{S_T0}")
        e("s_waitcnt lgkmcnt(0)")
        e("s_mov_b32 exec_lo, 0")
        for i in range(4):
            e(f"v_mov_b32 v{B2 + 4 + i}, 0")
        e("s_mov_b64 exec, -1")
        e(f"s_cmp_ge_u32 s{S_WAVE}, 3")
        e("s_cbranch_scc1 L_join")

        e("v_mov_b32 v3, 96")
        e("v_mad_u32_u24 v2, v21, v3, v23")
        for s in range(6):
            for h in range(2):
                r = A1 + 4 * s + 2 * h
                e(f"ds_read_b64_tr_b16 v[{r}:{r + 1}], v2 offset:{L_W1 + s * 3072 + h * 384}")
        e(f"v_lshl_add_u32 v3, v20, 3, v22")
        e(f"v_add_u32 v3, s{S_T2}, v3")
        e("v_lshlrev_b32 v2, 3, v22")
        e("v_lshl_add_u32 v2, v20, 4, v2")
        for b in B1:
            for i in range(4):
                e(f"v_mov_b32 v{b + i}, 0")
        e(f"s_mov_b32 s{S_T1}, {WS_F}")
        e(f"s_mov_b32 s{S_CNT}, {SPIN}")
        e("s_waitcnt lgkmcnt(0)")
        e("L_fpoll:")
        e("s_mov_b32 exec_lo, 0x00030003")
        e("s_mov_b32 exec_hi, 0x00030003")
        for s in range(6):
            e(f"buffer_load_dwordx4 v[{B1[s]}:{B1[s] + 3}], v2, s[{S_WS}:{S_WS + 3}], s{S_T1} offen offset:{128 * s} sc1")
        e("s_mov_b64 exec, -1")
        e(f"s_sub_u32 s{S_CNT}, s{S_CNT}, 1")
        for s in range(6):
            c = "0" if s == 0 else "v[20:23]"
            b = B1[s]
            e(f"s_waitcnt vmcnt({5 - s})")
            e(f"v_mfma_f32_16x16x32_bf16 v[20:23], v[{A1 + 4 * s}:{A1 + 4 * s + 3}], v[{b}:{b + 3}], {c}")
            if s == 0:
                e(f"v_max3_u32 v1, v{b}, v{b + 1}, v{b + 2}")
                e(f"v_max_u32 v1, v1, v{b + 3}")
            else:
                e(f"v_max3_u32 v1, v1, v{b}, v{b + 1}")
                e(f"v_max3_u32 v1, v1, v{b + 2}, v{b + 3}")
        e("v_cmp_eq_u32 vcc, -1, v1")
        e("s_cbranch_scc1 L_fgot")
        e("s_cbranch_vccnz L_fpoll")
        e("L_fgot:")
        self.stamp(5)
        e("s_mov_b32 exec_lo, 0x00030003")
        e("s_mov_b32 exec_hi, 0x00030003")
        e("s_nop 1")
        for i in range(4):
            e(f"v_maximum3_f32 v{20 + i}, v{20 + i}, 0, 0")
        e("v_cvt_pk_bf16_f32 v20, v20, v21")
        e("v_cvt_pk_bf16_f32 v21, v22, v23")
        e(f"ds_write_b64 v3, v[20:21] offset:{L_H}")
        e("s_mov_b64 exec, -1")
        e("s_waitcnt lgkmcnt(0)")

        e("L_join:")
        e("s_barrier")
        self.stamp(6)
        e(f"ds_read_b128 v[4:7], v{V_H0} offset:{L_H}")
        e(f"ds_read_b128 v[8:11], v{V_H1} offset:{L_H + 64}")
        e("s_waitcnt lgkmcnt(1)")
        e(f"v_mfma_f32_16x16x32_bf16 v[12:15], v[4:7], v[{B2}:{B2 + 3}], 0")
        e("s_waitcnt lgkmcnt(0)")
        e(f"v_mfma_f32_16x16x32_bf16 v[12:15], v[8:11], v[{B2 + 4}:{B2 + 7}], v[12:15]")
        e("s_mov_b64 exec, 0xffff")
        e("s_nop 6")
        e("v_cvt_pk_bf16_f32 v12, v12, v13")
        e("v_lshlrev_b32 v13, 16, v12")
        e(f"v_and_b32 v12, s{S_MASK}, v12")
        e("v_add_f32 v12, v12, v13")
        e("v_cvt_pk_bf16_f32 v12, v12, v12")
        e("v_lshlrev_b32 v12, 16, v12")
        e("v_mul_f32 v12, 0xbfb8aa3b, v12            ; -log2(e)")
        e("v_exp_f32 v12, v12")
        e("s_nop 0")
        e("v_add_f32 v12, 1.0, v12")
        e("v_rcp_f32 v12, v12")
        e("s_nop 0")
        e("v_cvt_pk_bf16_f32 v12, v12, v12")
        e("v_lshlrev_b32 v12, 16, v12")
        e(f"ds_write_b32 v{V_SW}, v12 offset:{L_S}")
        e("s_mov_b64 exec, -1")
        e("s_waitcnt lgkmcnt(0)")
        e("s_barrier")
        e(f"ds_read_b128 v[4:7], v{V_SR} offset:{L_S}")
        e(f"ds_read_b128 v[8:11], v{V_SR} offset:{L_S + 16}")

        if o.stlim:
            e(f"s_cmp_lt_u32 s2, {o.stlim}")
            e(f"s_cselect_b32 s{S_OUT + 2}, s{S_OUT + 2}, 0")
        zorder = [int(v) for v in o.zorder.split(",")]
        assert sorted(zorder) == list(range(16))
        restored = False

        def wbl2():
            wv, lim, pos = [int(v) for v in o.wb.split(",")]
            e(f"s_cmp_lt_u32 s{S_WAVE}, {wv}")
            e("s_cbranch_scc1 L_nowb")
            e(f"s_cmp_ge_u32 s2, {lim}")
            e("s_cbranch_scc1 L_nowb")
            if pos == 33:
                e("s_waitcnt vmcnt(0)")
            e("buffer_wbl2 sc1")
            e("L_nowb:")
        for n, j in enumerate([2 * z + u for z in zorder for u in (0, 1)]):
            a = D0 + 4 * j
            t0 = 12 + 8 * (n & 1)
            if a >= SP0 and not restored:
                assert n > 1
                e("s_waitcnt lgkmcnt(0)")
                restored = True
            for i in range(4):
                t = t0 + 2 * i
                e(f"v_lshlrev_b32 v{t}, 16, v{a + i}")
                e(f"v_and_b32 v{t + 1}, s{S_MASK}, v{a + i}")
            if n == 0:
                e("s_waitcnt lgkmcnt(0)")
                self.stamp(7)
            for i in range(4):
                t = t0 + 2 * i
                e(f"v_pk_mul_f32 v[{t}:{t + 1}], v[{t}:{t + 1}], v[{4 + 2 * i}:{5 + 2 * i}]")
            for i in range(4):
                t = t0 + 2 * i
                e(f"v_cvt_pk_bf16_f32 v{a + i}, v{t}, v{t + 1}")
            self.mem(j, lambda va, so: e(f"buffer_store_dwordx4 v[{a}:{a + 3}], {va}, s[{S_OUT}:{S_OUT + 3}], {so} offen{'' if n >= 32 - o.nplain else stf}"))
            if o.wb and int(o.wb.split(",")[2]) == n:
                wbl2()
            if n & 1:
                self.trace("st", n >> 1)
            if n == 1:
                e(f"s_cmp_ge_u32 s{S_WAVE}, 3")
                e("s_cbranch_scc1 L_norestore")
                for k in range(8):
                    e(f"ds_read_b128 v[{SP0 + 4 * k}:{SP0 + 4 * k + 3}], v{V_AT} offset:{L_SPILL + 1024 * k}")
                e("L_norestore:")
        if o.wb and int(o.wb.split(",")[2]) >= 32:
            wbl2()
        if o.stamps:
            self.stamp(8)
            e("s_waitcnt vmcnt(0)")
            self.stamp(10)
            e("s_getreg_b32 s94, hwreg(HW_REG_XCC_ID)")
            e("s_getreg_b32 s95, hwreg(HW_REG_HW_ID)")
            e("s_waitcnt lgkmcnt(0)")
            e("v_mov_b32 v2, 0")
            for i in range(11 if o.trace else 14):
                e(f"v_writelane_b32 v2, s{S_STAMP + 2 * i}, {i}")
            e("v_writelane_b32 v2, s94, 14")
            e("v_writelane_b32 v2, s95, 15")
            e(f"s_mul_i32 s{S_T0}, s2, 12")
            e(f"s_add_u32 s{S_T0}, s{S_T0}, s{S_WAVE}")
            e(f"s_lshl_b32 s{S_T0}, s{S_T0}, 6")
            e(f"s_add_u32 s{S_T0}, s{S_T0}, {WS_STAMP}")
            e("v_mbcnt_lo_u32_b32 v3, -1, 0")
            e("v_lshlrev_b32 v3, 2, v3")
            e("s_mov_b64 exec, 0xffff")
            e(f"buffer_store_dword v2, v3, s[{S_WS}:{S_WS + 3}], s{S_T0} offen")
            if o.trace:
                e("s_mov_b32 s91, s92")
                for i in range(16):
                    e(f"v_writelane_b32 v2, s{76 + i}, {i}")
                e(f"s_add_u32 s{S_T0}, s{S_T0}, {1 << 19}")
                e(f"buffer_store_dword v2, v3, s[{S_WS}:{S_WS + 3}], s{S_T0} offen")
        if o.dbgptr:
            e("s_cmp_lg_u32 s2, 0")
            e("s_cbranch_scc1 L_nodp")
            e("s_mov_b64 exec, -1")
            e("v_mov_b32 v2, 0")
            for i, r in enumerate((4, 5, 8, 9, 12, 13, 16, 17, 0, 1)):
                e(f"v_writelane_b32 v2, s{r}, {i}")
            e("v_mbcnt_lo_u32_b32 v3, -1, 0")
            e("v_lshlrev_b32 v3, 2, v3")
            e("s_mov_b64 exec, 0x3ff")
            e(f"buffer_store_dword v2, v3, s[{S_DBG}:{S_DBG + 3}], 0 offen offset:8")
            e("L_nodp:")
        if o.probe:
            idx, K = [int(v) for v in o.probe.split(",")]
            if idx == -2:
                e("s_getreg_b32 s94, hwreg(HW_REG_XCC_ID)")
                e("s_xor_b32 s94, s94, s2")
                e("s_and_b32 s94, s94, 7")
                e("s_cbranch_scc0 L_end")
            elif idx == -3:
                e("s_cmp_lg_u32 s2, 0")
                e("s_cbranch_scc1 L_end")
            else:
                e("s_cmp_lg_u32 s2, 0")
                e("s_cbranch_scc1 L_end")
            e(f"s_cmp_lg_u32 s{S_WAVE}, 0")
            e("s_cbranch_scc1 L_end")
            if idx <= -10:
                e(f"s_bfe_u32 s94, s{-idx - 10}, {(7 << 16)} + {K}")
                e("s_mul_i32 s96, s94, 200")
                e("s_add_u32 s96, s96, 5000")
            elif idx == -3:
                e("s_getreg_b32 s94, hwreg(HW_REG_XCC_ID)")
                e("s_and_b32 s94, s94, 7")
                e(f"s_mul_i32 s96, s94, {K}")
                e("s_add_u32 s96, s96, 5000")
            elif idx < 0:
                e(f"s_mov_b32 s96, {K}")
            else:
                e(f"s_sub_u32 s96, s{S_STAMP + 2 * idx}, s{S_STAMP}")
                e(f"s_mul_i32 s96, s96, {K}")
            e("s_min_u32 s96, s96, 200000")
            e("L_probe:")
            e("s_memrealtime s[98:99]")
            e("s_waitcnt lgkmcnt(0)")
            e(f"s_sub_u32 s98, s98, s{S_STAMP}")
            e("s_cmp_lt_u32 s98, s96")
            e("s_cbranch_scc1 L_probe")
        e("L_end:")
        e("s_endpgm")

        e("L_role:")
        e("s_load_dwordx4 s[44:47], s[0:1], 32")
        e(f"s_cmp_eq_u32 s2, {NVOTE_WG}")
        e("s_cbranch_scc1 L_tag")
        e(f"s_sub_u32 s{S_T1}, s{S_OUT}, s{S_X}")
        e(f"s_add_u32 s{S_T1}, s{S_T1}, 2048")
        e(f"s_bitcmp1_b32 s{S_T1}, 12")
        e(f"s_cselect_b32 s{S_V}, {o.quorum}, {o.quorum4}")
        e(f"s_cselect_b32 s{S_V + 1}, 8, 0")
        e(f"s_or_b32 s{S_V + 1}, s{S_V + 1}, s2")
        e(f"s_bitcmp1_b32 s{S_V + 1}, 3")
        e(f"s_cselect_b64 s[{S_W}:{S_W + 1}], s[8:9], s[4:5]")
        e(f"s_bfe_u32 s{S_T1}, s2, 0x10004")
        e(f"s_lshl3_add_u32 s{S_T1}, s{S_T1}, 8")
        e(f"s_and_b32 s{S_T2}, s2, 7")
        e(f"s_add_u32 s{S_T1}, s{S_T1}, s{S_T2}")
        e(f"s_lshl_b32 s{S_T1}, s{S_T1}, 22")
        e(f"s_add_u32 s{S_T0}, s{S_T0}, s{S_T1}")
        e(f"s_and_b32 s{S_T1}, s2, 15")
        e(f"s_mulk_i32 s{S_T1}, {16384 + 512}")
        e(f"s_add_u32 s{S_T0}, s{S_T0}, s{S_T1}")
        e(f"s_add_u32 s{S_T1}, s{S_T0}, 8192")
        self.stamp(1, True)
        e(f"s_load_dword s42, s[{S_W}:{S_W + 1}], s{S_T0} glc")
        e(f"s_load_dword s43, s[{S_W}:{S_W + 1}], s{S_T1} glc")
        e(f"s_mov_b32 s{S_CNT}, {-(NRACE // 2)}")
        for k in range(NRACE):
            e("s_waitcnt lgkmcnt(0)")
            if k < 2:
                self.stamp(2 + k, True)
                if o.vdiag:
                    e("s_waitcnt lgkmcnt(0)")
            first, second = (S_T0, S_T1) if k % 2 == 0 else (S_T1, S_T0)
            e(f"s_load_dword s42, s[{S_W}:{S_W + 1}], s{first} glc")
            e(f"s_load_dword s43, s[{S_W}:{S_W + 1}], s{second} glc")
            e("s_waitcnt lgkmcnt(1)")
            e("s_nop 7")
            e(f"s_getreg_b32 s{S_T2}, hwreg(HW_REG_IB_STS, 8, 4)")
            if k % 2 == 0:
                e(f"s_xor_b32 s{S_T2}, s{S_T2}, 1")
            e(f"s_add_u32 s{S_CNT}, s{S_CNT}, s{S_T2}")
        assert NRACE % 2 == 0 and max(o.quorum, o.quorum4) * NRACE // 2 < 32 and max(o.quorum, o.quorum4) <= NVOTE_WG
        e(f"s_sub_u32 s{S_T2}, 0, s{S_CNT}")
        e(f"s_add_u32 s{S_T0}, s{S_T0}, s{S_OUT}")
        e(f"s_lshr_b32 s{S_T0}, s{S_T0}, 19")
        e(f"s_xor_b32 s{S_T0}, s{S_T0}, s2")
        e(f"s_bitcmp1_b32 s{S_T0}, 2")
        e(f"s_cselect_b32 s{S_CNT}, s{S_T2}, s{S_CNT}")
        e(f"s_bfe_u32 s{S_T0}, s{S_V + 1}, 0x20003")
        e(f"s_mul_i32 s{S_T0}, s{S_T0}, 6")
        e(f"s_add_u32 s{S_T0}, s{S_T0}, 7")
        e(f"s_lshl_b32 s{S_CNT}, s{S_CNT}, s{S_T0}")
        e(f"s_or_b32 s{S_CNT}, s{S_CNT}, 1")
        e(f"s_mov_b32 s{S_T1}, s{S_CNT}")
        self.stamp(6, True)
        e(f"s_atomic_add s{S_T1}, s[44:45], {DBG_TAL} glc")
        e(f"s_add_u32 s{S_CNT}, s{S_CNT}, {sum(31 << (7 + 6 * t) for t in range(4))}")
        e("s_waitcnt lgkmcnt(0)")
        e(f"s_add_u32 s{S_T1}, s{S_T1}, s{S_CNT}")
        self.stamp(13)
        e(f"s_and_b32 s{S_T0}, s{S_T1}, 0x7f")
        e(f"s_cmp_lg_u32 s{S_T0}, s{S_V}")
        e("s_cbranch_scc1 L_stream")
        e(f"s_and_b32 s{S_T1}, s{S_T1}, {sum(32 << (7 + 6 * t) for t in range(4))}")
        e(f"s_bitset1_b32 s{S_T1}, 7")
        e("L_publish:")
        e(f"s_atomic_add s{S_T1}, s[44:45], {DBG_RES}")
        e("s_waitcnt lgkmcnt(0)")
        e("s_branch L_stream")

        e("L_tag:")
        for i in range(4):
            e(f"v_mov_b32 v{4 + i}, -1")
        e("v_lshlrev_b32 v2, 4, v1")
        e(f"s_mov_b32 s{S_WS + 2}, {WS_E}")
        e(f"s_mov_b32 s{S_WS + 3}, 0x20000")
        e(f"s_mov_b32 s{S_T0}, {WS_F}")
        e(f"s_mov_b32 s{S_T1}, 1")
        e("s_waitcnt lgkmcnt(0)")
        e(f"s_mov_b64 s[{S_WS}:{S_WS + 1}], s[46:47]")
        e(f"s_atomic_add s{S_T1}, s[46:47], {WS_E} glc")
        e(f"buffer_store_dwordx4 v[4:7], v2, s[{S_WS}:{S_WS + 3}], s{S_T0} offen sc1")
        e(f"buffer_store_dwordx4 v[4:7], v2, s[{S_WS}:{S_WS + 3}], s{S_T0} offen offset:1024 sc1")
        e("s_waitcnt vmcnt(0) lgkmcnt(0)")
        e(f"s_add_u32 s{S_T1}, s{S_T1}, 1")
        e(f"s_and_b32 s{S_T1}, s{S_T1}, 15")
        e(f"s_bitset1_b32 s{S_T1}, 4")
        self.stamp(13)
        e("s_branch L_publish")

        e("L_dpoll:")
        e(f"s_mov_b32 s{S_CNT}, {SPIN}")
        e(f"v_mov_b32 v{V_AT}, 0")
        e("s_mov_b64 exec, 1")
        e("L_dloop:")
        e(f"buffer_load_dword v{V_AT}, off, s[{S_DBG}:{S_DBG + 3}], 0 offset:{DBG_RES} sc1")
        e(f"s_sleep {o.dsleep}")
        e("s_waitcnt vmcnt(24)")
        e(f"v_readfirstlane_b32 s{S_T2}, v{V_AT}")
        e(f"s_sub_u32 s{S_CNT}, s{S_CNT}, 1")
        e("s_cbranch_scc1 L_dgot")
        e(f"s_andn2_b32 s{S_OFF}, {RES_OK}, s{S_T2}")
        e("s_cbranch_scc1 L_dloop")
        e("L_dgot:")
        e("s_mov_b64 exec, -1")
        e("s_branch L_decided")

    def text(self):
        out = HEADER
        out += f"; @launch grid=({NWG},1,1) block=(768,1,1) lds={L_TOTAL}\n"
        out += '.amdgcn_target "amdgcn-amd-amdhsa--gfx950"\n.text\n'
        out += f".globl {KNAME}\n.p2align 8\n.type {KNAME},@function\n{KNAME}:\n"
        out += "\n".join(self.lines) + "\n"
        out += f""".section .rodata,"a"
.p2align 6
.amdhsa_kernel {KNAME}
  .amdhsa_next_free_vgpr 168
  .amdhsa_next_free_sgpr {100 if self.o.stamps else 56}
  .amdhsa_accum_offset 168
  .amdhsa_group_segment_fixed_size 0
  .amdhsa_kernarg_size 48
  .amdhsa_user_sgpr_count 2
  .amdhsa_user_sgpr_kernarg_segment_ptr 1
  .amdhsa_system_sgpr_workgroup_id_x 1
  .amdhsa_float_denorm_mode_32 3
.end_amdhsa_kernel
"""
        return out


def main():
    p = argparse.ArgumentParser()
    p.add_argument("-o", default="standalone__channel_attn_cbam__vision.s")
    p.add_argument("--ldflags", default="nt")
    p.add_argument("--stflags", default="sc1")
    p.add_argument("--p1flags", default="sc1")
    p.add_argument("--stamps", action="store_true")
    p.add_argument("--probe", default="")
    p.add_argument("--depth", type=int, default=12)
    p.add_argument("--nrace", type=int, default=2)
    p.add_argument("--dsleep", type=int, default=8)
    p.add_argument("--trace", default="")
    p.add_argument("--nodec", action="store_true")
    p.add_argument("--vdiag", action="store_true")
    p.add_argument("--dbgptr", action="store_true")
    p.add_argument("--opp", default="8,82", type=lambda v: [int(x) for x in v.split(",")])
    p.add_argument("--quorum", type=int, default=16)
    p.add_argument("--quorum4", type=int, default=24)
    p.add_argument("--nvote", type=int, default=32)
    p.add_argument("--nagn", type=int, default=8)
    p.add_argument("--stlim", type=int, default=0)
    p.add_argument("--red0", type=int, default=64)
    p.add_argument("--redstep", type=int, default=2)
    p.add_argument("--off", default="", help="diagnostics: v = no votes, c = no clears, r = result not read")
    p.add_argument("--spans", default="")
    p.add_argument("--split", action="store_true")
    p.add_argument("--pfback", type=int, default=0)
    p.add_argument("--nplain", type=int, default=0)
    p.add_argument("--wb", default="", help="minwave,wglimit,pos")
    p.add_argument("--thr", type=int, default=0)
    p.add_argument("--thrfrom", type=int, default=12)
    p.add_argument("--thrto", type=int, default=32)
    p.add_argument("--thrmask", default="0x55")
    p.add_argument("--zorder", default="8,0,9,1,10,2,11,3,12,4,13,5,14,6,15,7")
    o = p.parse_args()
    global NAGN, SPANS, NVOTE_WG
    NVOTE_WG = o.nvote
    NAGN = o.nagn
    if NAGN == 6:
        SPANS = [(0, 0), (0, 1), (1, 0), (1, 1), (2, 0), (2, 1),
                 (3, 0), (6, 0), (3, 1), (6, 1), (4, 0), (7, 0), (4, 1), (7, 1), (5, 0), (5, 1)]
        if o.zorder == p.get_default("zorder"):
            o.zorder = "6,0,7,8,1,9,2,10,11,3,12,4,13,14,5,15"
    if o.spans:
        SPANS = [(int(v[0]), int(v[1])) for v in o.spans.split(",")]
        assert sorted(SPANS) == [(a, b) for a in range(8) for b in range(2)]
    g = G(o)
    g.build()
    open(o.o, "w").write(g.text())


if __name__ == "__main__":
    main()
```

```python
import argparse

KNAME = "standalone__channel_attn_cbam__vision_kernel"

HEADER = """; Kernarg layout for this problem (48 bytes, ptrs only, base s[0:1]):
;   offset   0: d_in[0] x  shape=(1, 512, 512, 192) dtype=bfloat16 strides=(100663296, 196608, 384, 2) contiguous=True
;   offset   8: d_in[1] w1  shape=(192, 48) dtype=bfloat16 strides=(96, 2) contiguous=True
;   offset  16: d_in[2] w2  shape=(48, 192) dtype=bfloat16 strides=(384, 2) contiguous=True
;   offset  40: d_ws      402653184 bytes workspace (unspecified values whenever your kernel or launch list starts; a list's later launches find what earlier ones wrote)
"""

X_BYTES = 100663296
NWG = 256
NRED = 12
MiB = 1 << 20

L_RED = 0
L_H = 6144
L_DEC = 6336
L_S = 6400
L_F = 7168
L_W1 = 8192
L_W2 = L_W1 + 18432
L_SPILL = L_W2 + 18432
L_TOTAL = L_SPILL + 3 * 8192

WS_P = 0
WS_Q = 256 * 1536
WS_E = WS_Q + 4 * 49152
WS_USED = WS_E + 128
WS_PROBE = 640 * 1024
WS_STAMP = 1 << 20

S_X, S_OUT, S_WS, S_DBG, S_W = 4, 8, 12, 16, 20
S_WAVE, S_TY, S_SUB, S_OFF, S_MASK, S_CNT, S_T0, S_T1 = 28, 29, 30, 31, 32, 33, 34, 35
S_BASE, S_PM, S_P, S_T2 = 48, 49, 50, 51
S_AGN, S_RID, S_PO = 40, 42, 43
S_TG = [41, 47, 3, 0]
S_RET, S_HOOK, S_QC = 38, 46, 1
S_BASE1 = 45
NFB = 48
S_STAMP = 52
S_V = 24

D0 = 40
SPIN = 400000
V_L, V_G0, V_G1, V_AT = 0, 39, 38, 36

NAGN = 8
SPANS = [(0, 0), (0, 1), (1, 0), (1, 1), (2, 0), (2, 1), (3, 0), (3, 1),
         (6, 0), (4, 0), (6, 1), (4, 1), (7, 0), (5, 0), (7, 1), (5, 1)]
W_ROLE = 0
DBG_RES, DBG_TAL = 0, 128
NVOTE_WG = 32
RES_OK = (1 << 9) | (1 << 8)


def mask(pred):
    return sum(1 << z for z, s in enumerate(SPANS) if pred(z, s))


class G:
    def __init__(self, o):
        self.o = o
        self.lines = []

    def e(self, s=""):
        self.lines.append(("    " + s) if s and not s.endswith(":") else s)

    def stamp(self, idx, vote=False):
        if self.o.clk:
            if idx in (11, 12, 13):
                return
            m = {0: 11, 7: 12, 10: 13}.get(idx)
            if m:
                self.e(f"s_memtime s[{S_STAMP + 2 * m}:{S_STAMP + 2 * m + 1}]")
        if vote == "r":
            vote = False
        if self.o.vdiag and idx in (1, 2, 3, 6) and not vote:
            return
        if vote and not self.o.vdiag:
            return
        if self.o.stamps and not (self.o.trace and idx > 10):
            self.e(f"s_memrealtime s[{S_STAMP + 2 * idx}:{S_STAMP + 2 * idx + 1}]")

    def srd(self, d, lo, nbytes):
        e = self.e
        e(f"s_mov_b64 s[{d}:{d + 1}], s[{lo}:{lo + 1}]")
        e(f"s_mov_b32 s{d + 2}, {nbytes}")
        e(f"s_mov_b32 s{d + 3}, 0x20000")

    def span_off(self, z):
        return SPANS[z][0] * 12 * MiB + SPANS[z][1] * 49152

    def mem(self, j, fn):
        e = self.e
        z, u = j >> 1, j & 1
        if z < NAGN:
            off = (j // self.o.agnu) * (self.o.agnu * 3 * MiB - (self.o.skew if self.o.skewa else 0)) + (j % self.o.agnu) * 12288
            if off:
                e(f"s_add_u32 s{S_OFF}, s{S_AGN}, {off}")
                fn(f"v{V_L}", f"s{S_OFF}")
            else:
                fn(f"v{V_L}", f"s{S_AGN}")
            return
        if u == 0:
            e(f"s_bitcmp1_b32 s{S_PM}, {z}")
            e(f"s_cselect_b32 s{S_P}, 24576, 0")
        e(f"s_add_u32 s{S_OFF}, s{(S_BASE, S_BASE1)[SPANS[z][1]]}, {SPANS[z][0] * 12 * MiB - self.o.skew * (SPANS[z][0] * self.o.skewd + self.o.skewc) + 12288 * u}")
        at = 2 + u
        e(f"v_xad_u32 v{at}, v{(V_G0, V_G1)[u]}, s{S_P}, v{V_L}")
        if SPANS[z] == (7, 1):
            e(f"v_add_u32 v{at}, s{S_OFF}, v{at}")
            e(f"v_subrev_u32 v{5 - at}, s{S_X + 2}, v{at}")
            e(f"v_min_u32 v{at}, v{at}, v{5 - at}             ; past the end: wrap to the rows the shift skipped")
            fn(f"v{at}", "0")
        else:
            fn(f"v{at}", f"s{S_OFF}")

    def trace(self, kind, n):
        if self.o.trace == kind:
            if n > 0:
                self.e("s_waitcnt lgkmcnt(0)")
                self.e(f"s_mov_b32 s{76 + n - 1}, s92")
            self.e("s_memrealtime s[92:93]")

    def build(self):
        o, e = self.o, self.e
        NRACE = o.nrace
        ldf = (" " + o.ldflags) if o.ldflags else ""
        stf = (" " + o.stflags) if o.stflags else ""

        self.stamp(0)
        e("s_load_dwordx2 s[4:5], s[0:1], 0          ; x")
        e("s_load_dwordx2 s[8:9], s[0:1], 24         ; out")
        e("v_readfirstlane_b32 s%d, v0" % S_WAVE)
        e("v_and_b32 v1, 63, v0                      ; lane")
        pl = (o.piece // 16).bit_length() - 1
        e(f"v_bfe_u32 v2, v0, {pl}, {6 - pl}")
        e(f"v_mul_u32_u24 v2, {3 * o.piece}, v2")
        e(f"v_and_b32 v3, {(1 << pl) - 1}, v0")
        e("s_cmpk_ge_u32 s2, %d" % NWG)
        e("s_cbranch_scc1 L_end")
        if o.rot:
            e(f"s_add_u32 s2, s2, {o.rot}")
            e("s_and_b32 s2, s2, 255")
        if o.rolepos < 0:
            e(f"s_lshl2_add_u32 s{S_T1}, s{S_WAVE}, s2")
            e(f"s_cmp_le_u32 s{S_T1}, {NVOTE_WG}              ; wave 0 of the first workgroups has a side job")
            e("s_cbranch_scc1 L_role")
            e("L_stream:")
        e(f"s_lshr_b32 s{S_WAVE}, s{S_WAVE}, 6")
        e(f"s_mul_i32 s{S_SUB}, s{S_WAVE}, 43")
        e(f"s_lshr_b32 s{S_SUB}, s{S_SUB}, 7")
        e(f"s_mul_i32 s{S_T0}, s{S_SUB}, {3072 // o.piece - 3}")
        e(f"s_add_u32 s{S_T0}, s{S_T0}, s{S_WAVE}        ; sub*24 + wave % 3")
        e(f"s_lshl_b32 s{S_T0}, s{S_T0}, {pl + 4}")
        e("v_lshl_add_u32 v0, v3, 4, v2")
        e(f"v_add_u32 v{V_L}, s{S_T0}, v0               ; + sub*3072 + (wave % 3)*128")
        if o.qmap == 0:
            e(f"s_and_b32 s{S_T0}, s2, 3")
            e(f"s_bfe_u32 s{S_T1}, s2, 0x10002")
            e(f"s_lshl1_add_u32 s{S_T0}, s{S_T0}, s{S_T1}")
            e(f"s_and_b32 s{S_T1}, s2, -8")
            e(f"s_add_u32 s{S_T0}, s{S_T0}, s{S_T1}")
        else:
            e(f"s_and_b32 s{S_T0}, s2, 7")
            e(f"s_lshl_b32 s{S_T0}, s{S_T0}, 5")
            e(f"s_lshr_b32 s{S_T1}, s2, 3")
            e(f"s_add_u32 s{S_T0}, s{S_T0}, s{S_T1}")
        e(f"s_mul_i32 s{S_AGN}, s{S_T0}, {o.agnu * 12288}")
        e(f"s_mov_b32 s{S_X + 2}, {X_BYTES}")
        e(f"s_mov_b32 s{S_X + 3}, 0x20000")
        if o.rolepos >= 0:
            e(f"s_lshl_b32 s{S_T1}, s{S_WAVE}, 8")
            e(f"s_or_b32 s{S_T1}, s{S_T1}, s2")
        if o.sdiag:
            self.stamp(6, True)
        e("s_waitcnt lgkmcnt(0)")
        if o.sdiag:
            self.stamp(1, True)
        e(f"s_lshr_b32 s{S_T0}, s{S_OUT}, 7")
        e(f"s_mul_i32 s{S_T0}, s{S_T0}, 21              ; -43 mod 64")
        e(f"s_and_b32 s{S_T0}, s{S_T0}, 63")
        e(f"s_mulk_i32 s{S_T0}, 384")
        e(f"s_add_u32 s{S_AGN}, s{S_AGN}, s{S_T0}")
        assert W_ROLE == 0

        SUM, MAX, T = 4, 12, 20
        DEPTH = o.depth
        seq = []

        def issue(j):
            if j == o.rolepos:
                e(f"s_cmp_le_u32 s{S_T1}, {NVOTE_WG}              ; wave 0 of the first workgroups has a side job")
                e("s_cbranch_scc1 L_role")
                e("L_stream:")
            if o.cpf and j == o.cpfpos:
                e(f"s_sub_u32 s{S_T1}, s{S_T1}, 256")
                e(f"s_cmp_ge_u32 s{S_T1}, {o.cpf}")
                e("s_cbranch_scc1 L_nocpf")
                e("s_getpc_b64 s[20:21]")
                e("v_lshlrev_b32 v2, 7, v1")
                e("v_add_u32 v3, 8192, v2")
                e("v_min_u32 v3, L_codeend - L_nocpf, v3")
                e("global_load_dword v36, v2, s[20:21]")
                e("global_load_dword v37, v3, s[20:21]")
                e("L_nocpf:")
            if j == max(4, o.rolepos):
                e("s_load_dwordx4 s[36:39], s[0:1], 8        ; w1, w2")
                e(f"s_load_dwordx2 s[{S_DBG}:{S_DBG + 1}], s[0:1], 32")
                e(f"s_load_dwordx2 s[{S_WS}:{S_WS + 1}], s[0:1], 40")
                e(f"s_mov_b32 s{S_MASK}, 0xffff0000")
            if j == 2 * NAGN:
                e(f"s_mul_i32 s{S_TY}, s{S_SUB}, 3")
                e(f"s_sub_u32 s{S_TY}, s{S_WAVE}, s{S_TY}        ; ty = wave % 3")
                e(f"s_mov_b32 s{S_OUT + 2}, s{S_X + 2}")
                e(f"s_mov_b32 s{S_OUT + 3}, s{S_X + 3}")
                e(f"s_mov_b32 s{S_WS + 2}, {(2 << 20) if o.stamps else WS_USED}")
                e(f"s_mov_b32 s{S_WS + 3}, s{S_X + 3}")
                e(f"s_movk_i32 s{S_DBG + 2}, 256")
                e(f"s_mov_b32 s{S_DBG + 3}, s{S_X + 3}")
                e(f"s_movk_i32 s{S_T2}, 24576")
                e(f"v_bfe_u32 v{V_G0}, v{V_L}, 13, 1")
                e(f"v_add_u32 v{V_G1}, 12288, v{V_L}")
                e(f"v_bfe_u32 v{V_G1}, v{V_G1}, 13, 1")
                e(f"v_mul_u32_u24 v{V_G0}, s{S_T2}, v{V_G0}")
                e(f"v_mul_u32_u24 v{V_G1}, s{S_T2}, v{V_G1}")
                e(f"s_lshr_b32 s{S_T0}, s{S_OUT}, 7")
                e(f"s_mul_i32 s{S_T0}, s{S_T0}, 21")
                e(f"s_and_b32 s{S_T0}, s{S_T0}, 63")
                e(f"s_mulk_i32 s{S_T0}, 384")
                e(f"s_and_b32 s{S_T1}, s2, 3")
                e(f"s_lshr_b32 s{S_BASE}, s2, 3")
                if o.qmap == 0:
                    e(f"s_lshl2_add_u32 s{S_BASE}, s{S_BASE}, s{S_T1}")
                else:
                    e(f"s_lshl_b32 s{S_T1}, s{S_T1}, 5")
                    e(f"s_add_u32 s{S_BASE}, s{S_BASE}, s{S_T1}")
                e(f"s_add_u32 s{S_BASE1}, s{S_BASE}, {o.qshift}")
                e(f"s_and_b32 s{S_BASE1}, s{S_BASE1}, 127")
                e(f"s_mul_i32 s{S_BASE}, s{S_BASE}, 98304")
                e(f"s_add_u32 s{S_BASE}, s{S_BASE}, s{S_T0}        ; the pair's first span of a step")
                e(f"s_mul_i32 s{S_BASE1}, s{S_BASE1}, 98304")
                e(f"s_add_u32 s{S_BASE1}, s{S_BASE1}, s{S_T0}")
                e(f"s_add_u32 s{S_BASE1}, s{S_BASE1}, 49152      ; its second span: 3 MiB on, where the memory stacks swap")
                h1 = mask(lambda z, s: s[1] == 1)
                e(f"s_add_u32 s{S_T2}, s{S_T2}, s{S_OUT}")
                e(f"s_add_u32 s{S_T0}, s{S_BASE}, s{S_T2}")
                e(f"s_bfe_i32 s{S_PM}, s{S_T0}, 0x10015")
                e(f"s_add_u32 s{S_T2}, s{S_BASE1}, s{S_T2}")
                e(f"s_xor_b32 s{S_T0}, s{S_T0}, s{S_T2}")
                e(f"s_bfe_i32 s{S_T0}, s{S_T0}, 0x10015")
                e(f"s_and_b32 s{S_T0}, s{S_T0}, {h1}")
                e(f"s_xor_b32 s{S_PM}, s{S_PM}, s{S_T0}")
                m1 = mask(lambda z, s: z >= NAGN and s[0] in (3, 4))
                z50 = SPANS.index((5, 0))
                z51 = SPANS.index((5, 1))
                dec = mask(lambda z, s: z >= NAGN)
                e(f"s_cmp_lt_u32 s{S_BASE}, {4 * MiB - 24576}")
                e(f"s_cselect_b32 s{S_T0}, {1 << z50}, 0")
                e(f"s_or_b32 s{S_T0}, s{S_T0}, {m1}")
                e(f"s_cmp_lt_u32 s{S_BASE1}, {4 * MiB - 24576}")
                e(f"s_cselect_b32 s{S_T1}, {1 << z51}, 0")
                e(f"s_or_b32 s{S_T0}, s{S_T0}, s{S_T1}            ; third 1")
                e(f"s_xor_b32 s{S_T1}, s{S_T0}, {dec}           ; third 2")
                per, pat = o.opp
                rep = sum(((pat >> (i % per)) & 1) << i for i in range(32))
                e(f"s_lshr_b32 s{S_P}, s2, 3")
                e(f"s_mul_i32 s{S_T2}, s{S_P}, {-(-256 // per)}")
                e(f"s_lshr_b32 s{S_T2}, s{S_T2}, 8")
                e(f"s_mul_i32 s{S_T2}, s{S_T2}, {per}")
                e(f"s_sub_u32 s{S_P}, s{S_P}, s{S_T2}             ; (b >> 3) % {per}")
                e(f"s_lshr_b32 s{S_P}, {rep}, s{S_P}")
                e(f"s_sub_u32 s{S_T2}, s{S_OUT}, s{S_X}")
                e(f"s_add_u32 s{S_T2}, s{S_T2}, 2048")
                e(f"s_bitcmp1_b32 s{S_T2}, 12")
                e(f"s_cselect_b32 s{S_P}, 0, s{S_P}")
                e(f"s_lshr_b32 s{S_T2}, s2, 3")
                e(f"s_sub_u32 s{S_RID}, s{S_T2}, {o.red0}")
                e(f"s_and_b32 s{S_PO}, s2, 7")
                e(f"s_lshl_b32 s{S_PO}, s{S_PO}, 5")
                e(f"s_add_u32 s{S_PO}, s{S_PO}, s{S_T2}")
                e(f"s_mulk_i32 s{S_PO}, 1536")
                e("s_waitcnt lgkmcnt(0)")
                self.stamp(11)
                e("s_barrier")
                e(f"s_load_dword s{S_T2}, s[{S_DBG}:{S_DBG + 1}], {DBG_RES}")
                e("s_waitcnt lgkmcnt(0)")
                e(f"s_andn2_b32 s{S_CNT}, {RES_OK}, s{S_T2}")
                e("s_cbranch_scc1 L_dpoll")
                e("L_decided:")
                for i in range(4):
                    e(f"s_bitcmp1_b32 s{S_T2}, {7 + 6 * i + 5}")
                    e(f"s_cselect_b32 s{S_V + i}, s{(S_T0, S_T1)[i >> 1]}, 0")
                e(f"s_or_b32 s{S_V}, s{S_V}, s{S_V + 2}")
                e(f"s_or_b32 s{S_V + 1}, s{S_V + 1}, s{S_V + 3}")
                e(f"s_xor_b32 s{S_V}, s{S_V}, s{S_V + 1}")
                e(f"s_and_b32 s{S_V}, s{S_V}, s{S_P}")
                e(f"s_xor_b32 s{S_V}, s{S_V}, s{S_V + 1}")
                e(f"s_xor_b32 s{S_PM}, s{S_PM}, s{S_V}")
                e(f"s_lshr_b32 s{S_QC}, s{S_T2}, 13")
                e(f"s_add_u32 s{S_QC}, s{S_QC}, s2")
                e(f"s_bfe_i32 s{S_V}, s{S_QC}, 0x10002")
                e(f"s_xor_b32 s{S_PM}, s{S_PM}, s{S_V}")
                e(f"s_and_b32 s{S_TG[0]}, s{S_T2}, 15")
                e(f"s_bfe_u32 s{S_TG[1]}, s{S_T2}, 0x40004")
                e(f"s_xor_b32 s{S_TG[2]}, s{S_TG[0]}, 15")
                e(f"s_xor_b32 s{S_TG[3]}, s{S_TG[1]}, 15")
                e(f"s_lshr_b32 s{S_V}, s{S_T2}, 10")
                e(f"s_and_b32 s{S_V}, s{S_V}, 4")
                e(f"s_xor_b32 s{S_QC}, s{S_QC}, s{S_V}           ; bits 2:0: the second-stage copy near this die")
                if o.wtouch:
                    e("s_load_dword s22, s[36:37], 0")
                    e("s_load_dword s23, s[38:39], 0")
                self.stamp(12)
            if j in o.xbar:
                e("s_barrier")
                if j == o.xbar[-1]:
                    self.stamp(2, "r")
            if j == o.warm and o.warmst:
                e(f"s_cmp_ge_u32 s{S_WAVE}, 2")
                e("s_cbranch_scc1 L_nowarm")
                for i in range(4):
                    e(f"v_mov_b32 v{20 + i}, 0")
                e(f"s_mul_i32 s{S_T0}, s{S_WAVE}, 768")
                e(f"v_lshl_add_u32 v3, v1, 4, s{S_T0}")
                e("s_mov_b32 exec_hi, 0xffff")
                e(f"buffer_store_dwordx4 v[20:23], v3, s[{S_WS}:{S_WS + 3}], s{S_PO} offen")
                e("s_mov_b64 exec, -1")
                e("L_nowarm:")
            if j == o.warm and not o.warmst:
                e(f"s_cmp_lg_u32 s{S_WAVE}, {o.warmwave}")
                e("s_cbranch_scc1 L_nowarm")
                e("v_lshlrev_b32 v3, 7, v1")
                e("s_mov_b64 exec, 0xfff")
                e(f"buffer_load_dword v37, v3, s[{S_WS}:{S_WS + 3}], s{S_PO} offen {o.warmfl}")
                e("s_mov_b64 exec, -1")
                if o.lpf == 2:
                    e(f"s_cmp_lg_u32 s{S_RID}, {NRED}")
                    e("s_cbranch_scc1 L_nowarm")
                    e("s_getpc_b64 s[20:21]")
                    if o.lay:
                        e("v_add_u32 v3, L_tail - L_nowarm + 32, v3")
                    e("v_min_u32 v3, L_end - L_nowarm, v3")
                    e("global_load_dword v37, v3, s[20:21]")
                e("L_nowarm:")
            r = D0 + 4 * j
            if o.thr and j == 10:
                e(f"s_getreg_b32 s{S_T0}, hwreg(HW_REG_XCC_ID, 0, 3)")
                e(f"s_lshr_b32 s{S_T0}, {o.thrmask}, s{S_T0}")
                e(f"s_and_b32 vcc_lo, s{S_T0}, 1")
                e("s_mov_b32 vcc_hi, 0")
            if o.cap and o.capfrom <= j < o.capto:
                e(f"s_waitcnt vmcnt({o.cap - 1})")
            if o.thr and o.thrfrom <= j < o.thrto:
                e(f"s_cbranch_vccz L_thr{j}")
                e(f"s_waitcnt vmcnt({o.thr - 1})")
                e(f"L_thr{j}:")
            self.mem(j, lambda va, so: e(f"buffer_load_dwordx4 v[{r}:{r + 3}], {va}, s[{S_X}:{S_X + 3}], {so} offen{ldf}"))
            seq.append(j)
            if o.sdiag and j == 0:
                self.stamp(2, True)
            if o.sdiag and j == 2:
                e("s_waitcnt vmcnt(2)")
                self.stamp(3, True)
            if j & 1:
                self.trace("ld", j >> 1)

        def wait_for(j):
            e(f"s_waitcnt vmcnt({len(seq) - 1 - seq.index(j)})")

        def scatter54():
            for base in (MAX, SUM):
                for i in range(4):
                    e(f"v_permlane32_swap_b32 v{base + i}, v{base + 4 + i}")
            for i in range(4):
                e(f"v_max_f32 v{MAX + i}, v{MAX + i}, v{MAX + 4 + i}")
            for i in range(4):
                e(f"v_add_f32 v{SUM + i}, v{SUM + i}, v{SUM + 4 + i}")
            for i in range(2):
                e(f"v_permlane16_swap_b32 v{MAX + i}, v{MAX + 2 + i}")
            for i in range(2):
                e(f"v_permlane16_swap_b32 v{SUM + i}, v{SUM + 2 + i}")
            for i in range(2):
                e(f"v_add_f32 v{SUM + i}, v{SUM + i}, v{SUM + 2 + i}")
            for i in range(2):
                e(f"v_max_f32 v{MAX + i}, v{MAX + i}, v{MAX + 2 + i}")

        nxt = 0
        for jj in range(16):
            while nxt < 32 and nxt < max(2 * jj + DEPTH + 2, 2 * NAGN + 2 if o.prebar else 0):
                issue(nxt)
                nxt += 1
                if nxt == 32:
                    self.stamp(1)
            a, b = D0 + 8 * jj, D0 + 8 * jj + 4
            if jj == 0:
                e("@@HERE1")
            if jj == 15:
                e("@@HERE2")
                e("v_and_b32 v2, 7, v1")
                e("v_lshlrev_b32 v2, 5, v2                   ; (l&7)*32")
                e("v_lshrrev_b32 v3, 4, v1")
                e("v_lshl_add_u32 v2, v3, 3, v2              ; + (l>>4)*8")
                e("v_bfe_u32 v3, v1, 3, 1")
                e("v_mul_u32_u24 v3, 768, v3")
                e(f"s_mul_i32 s{S_T0}, s{S_SUB}, 1536")
                e(f"s_lshl_b32 s{S_T1}, s{S_TY}, 8")
                e(f"s_add_u32 s{S_T0}, s{S_T0}, s{S_T1}")
                e(f"v_add3_u32 v2, v2, v3, s{S_T0}")
                e(f"s_mul_i32 s{S_T0}, s{S_WAVE}, 768")
                e(f"v_lshl_add_u32 v3, v1, 4, s{S_T0}")
                if o.ttail:
                    scatter54()
                    for r in (a, b):
                        wait_for((r - D0) // 4)
                        if r == b:
                            self.stamp(3)
                        C = T + 8
                        e(f"v_mov_b64 v[{C}:{C + 1}], v[{r}:{r + 1}]")
                        e(f"v_mov_b64 v[{C + 2}:{C + 3}], v[{r + 2}:{r + 3}]")
                        e("s_nop 1")
                        e(f"v_permlane32_swap_b32 v{C}, v{C + 2}")
                        e(f"v_permlane32_swap_b32 v{C + 1}, v{C + 3}")
                        e("s_nop 1")
                        e(f"v_permlane16_swap_b32 v{C}, v{C + 1}")
                        e(f"v_permlane16_swap_b32 v{C + 2}, v{C + 3}")
                        for i in range(4):
                            t = T + 2 * i
                            e(f"v_lshlrev_b32 v{t}, 16, v{C + i}")
                            e(f"v_and_b32 v{t + 1}, s{S_MASK}, v{C + i}")
                        e(f"v_pk_add_f32 v[{C}:{C + 1}], v[{T}:{T + 1}], v[{T + 2}:{T + 3}]")
                        e(f"v_pk_add_f32 v[{C + 2}:{C + 3}], v[{T + 4}:{T + 5}], v[{T + 6}:{T + 7}]")
                        e(f"v_max3_f32 v{MAX}, v{MAX}, v{T}, v{T + 2}")
                        e(f"v_pk_add_f32 v[{C}:{C + 1}], v[{C}:{C + 1}], v[{C + 2}:{C + 3}]")
                        e(f"v_max3_f32 v{MAX + 1}, v{MAX + 1}, v{T + 1}, v{T + 3}")
                        e(f"v_pk_add_f32 v[{SUM}:{SUM + 1}], v[{SUM}:{SUM + 1}], v[{C}:{C + 1}]")
                        e(f"v_max3_f32 v{MAX}, v{MAX}, v{T + 4}, v{T + 6}")
                        e(f"v_max3_f32 v{MAX + 1}, v{MAX + 1}, v{T + 5}, v{T + 7}")
                    continue
                for r in (a, b):
                    wait_for((r - D0) // 4)
                    if r == b:
                        self.stamp(3)
                    for i in range(4):
                        t = T + 2 * i
                        e(f"v_lshlrev_b32 v{t}, 16, v{r + i}")
                        e(f"v_and_b32 v{t + 1}, s{S_MASK}, v{r + i}")
                    for i in range(8):
                        e(f"v_max_f32 v{MAX + i}, v{MAX + i}, v{T + i}")
                    for i in range(4):
                        t, s = T + 2 * i, SUM + 2 * i
                        e(f"v_pk_add_f32 v[{s}:{s + 1}], v[{s}:{s + 1}], v[{t}:{t + 1}]")
                continue
            wait_for(2 * jj + 1)
            if jj == 0 and not o.xbar:
                self.stamp(2)
            if jj >= o.skipfrom:
                continue
            for i in range(4):
                t = T + 4 * i
                e(f"v_lshlrev_b32 v{t}, 16, v{a + i}")
                e(f"v_and_b32 v{t + 1}, s{S_MASK}, v{a + i}")
                e(f"v_lshlrev_b32 v{t + 2}, 16, v{b + i}")
                e(f"v_and_b32 v{t + 3}, s{S_MASK}, v{b + i}")
            for i in range(4):
                t = T + 4 * i
                s, m = SUM + 2 * i, MAX + 2 * i
                if jj == 0:
                    e(f"v_max_f32 v{m}, v{t}, v{t + 2}")
                    e(f"v_max_f32 v{m + 1}, v{t + 1}, v{t + 3}")
                    e(f"v_pk_add_f32 v[{s}:{s + 1}], v[{t}:{t + 1}], v[{t + 2}:{t + 3}]")
                else:
                    e(f"v_max3_f32 v{m}, v{m}, v{t}, v{t + 2}")
                    e(f"v_max3_f32 v{m + 1}, v{m + 1}, v{t + 1}, v{t + 3}")
                    e(f"v_pk_add_f32 v[{t}:{t + 1}], v[{t}:{t + 1}], v[{t + 2}:{t + 3}]")
            if jj:
                for i in range(4):
                    t = T + 4 * i
                    s = SUM + 2 * i
                    e(f"v_pk_add_f32 v[{s}:{s + 1}], v[{s}:{s + 1}], v[{t}:{t + 1}]")

        if not o.ttail:
            scatter54()
        e(f"s_cmp_ge_u32 s{S_WAVE}, 2")
        for i in range(2):
            e(f"v_add_f32_dpp v{SUM + i}, v{SUM + i}, v{SUM + i} row_ror:8 row_mask:0xf bank_mask:0x3")
        for i in range(2):
            e(f"v_max_f32_dpp v{SUM + i}, v{MAX + i}, v{MAX + i} row_ror:8 row_mask:0xf bank_mask:0xc")
        e(f"ds_write_b64 v2, v[{SUM}:{SUM + 1}] offset:{L_RED}")
        e("s_waitcnt lgkmcnt(0)")
        e("s_barrier")
        self.stamp(4)
        e("s_cbranch_scc1 L_nopub")

        e("s_mov_b32 exec_hi, 0xffff")
        for k in range(4):
            e(f"ds_read_b128 v[{4 + 4 * k}:{7 + 4 * k}], v3 offset:{L_RED + 1536 * k}")
        e(f"s_cmp_eq_u32 s{S_WAVE}, 0")
        e(f"s_cselect_b64 s[{S_W}:{S_W + 1}], s[36:37], s[38:39]")
        e("s_cbranch_scc0 L_pubmax")
        e("s_waitcnt lgkmcnt(2)")
        e("v_pk_add_f32 v[4:5], v[4:5], v[8:9]")
        e("v_pk_add_f32 v[6:7], v[6:7], v[10:11]")
        e("s_waitcnt lgkmcnt(0)")
        e("v_pk_add_f32 v[12:13], v[12:13], v[16:17]")
        e("v_pk_add_f32 v[14:15], v[14:15], v[18:19]")
        e("v_pk_add_f32 v[4:5], v[4:5], v[12:13]")
        e("v_pk_add_f32 v[6:7], v[6:7], v[14:15]")
        e("s_branch L_pub")
        e("L_pubmax:")
        e("s_waitcnt lgkmcnt(1)")
        for i in range(4):
            e(f"v_max3_f32 v{4 + i}, v{4 + i}, v{8 + i}, v{12 + i}")
        e("s_waitcnt lgkmcnt(0)")
        for i in range(4):
            e(f"v_max_f32 v{4 + i}, v{4 + i}, v{16 + i}")
        e("L_pub:")
        for i in range(4):
            e(f"v_and_or_b32 v{4 + i}, v{4 + i}, -16, s{S_TG[i]}")
        e(f"buffer_store_dwordx4 v[4:7], v3, s[{S_WS}:{S_WS + 3}], s{S_PO} offen{' sc1' if o.psc1 else ' nt' if o.pnt else ''}")
        e("s_mov_b64 exec, -1")
        e(f"s_movk_i32 s{S_W + 2}, 18432")
        e(f"s_mov_b32 s{S_W + 3}, 0x20000")
        e(f"s_mul_i32 s{S_T0}, s{S_WAVE}, 18432")
        e(f"s_addk_i32 s{S_T0}, {L_W1}")
        e(f"s_mov_b32 s{S_T1}, 0")
        e("v_lshlrev_b32 v2, 4, v1")
        e("L_wloop:")
        e(f"s_add_u32 m0, s{S_T0}, s{S_T1}")
        e(f"s_cmp_ge_u32 s{S_RID}, {NRED}")
        for k in range(3):
            e(f"buffer_load_dwordx4 v2, s[{S_W}:{S_W + 3}], s{S_T1} offen offset:{k * 1024} lds")
        e("s_cbranch_scc1 L_wnext")
        e(f"s_waitcnt vmcnt({o.wpace})")
        e("L_wnext:")
        e(f"s_addk_i32 s{S_T1}, 3072")
        e(f"s_cmp_lt_u32 s{S_T1}, 18432")
        e("s_cbranch_scc1 L_wloop")
        e("L_nopub:")

        B2 = 28
        V_H0, V_H1, V_SW, V_SR, V_Q = 24, 25, 26, 27, 37
        SP0 = 136
        A1 = 144
        B1 = [4, 8, 12, 16, 136, 140]
        e("v_lshrrev_b32 v20, 4, v1                  ; q")
        e(f"s_cmp_lt_u32 s{S_WAVE}, 3")
        e("s_cbranch_scc1 L_spill")
        e(f"s_cmp_ge_u32 s{S_RID}, {NRED}")
        e("s_cbranch_scc1 L_barw")
        e(f"s_cmp_lg_u32 s{S_WAVE}, 3")
        e("s_cbranch_scc1 L_barw")

        def clean(lbl, d, a):
            e(f"s_cmp_lg_u32 s{S_WAVE}, 3")
            e(f"s_cbranch_scc1 {lbl}")
            if o.cw:
                e(f"v_mov_b32 v{d}, 0")
                e(f"v_lshlrev_b32 v{a}, {o.cw}, v1")
                e(f"s_mov_b64 exec, {(1 << (1536 >> o.cw)) - 1}")
                if o.cld:
                    e(f"buffer_atomic_or v{d}, v{a}, s[{S_WS}:{S_WS + 3}], s{S_PO} offen")
                else:
                    e(f"buffer_store_dword v{d}, v{a}, s[{S_WS}:{S_WS + 3}], s{S_PO} offen sc1")
                e("s_mov_b64 exec, -1")
                return
            for i in range(4):
                e(f"v_mov_b32 v{d + i}, 0")
            e(f"v_lshlrev_b32 v{a}, 4, v1")
            e("s_mov_b32 exec_hi, 0xffff")
            e(f"buffer_store_dwordx4 v[{d}:{d + 3}], v{a}, s[{S_WS}:{S_WS + 3}], s{S_PO} offen sc1")
            e(f"buffer_store_dwordx4 v[{d}:{d + 3}], v{a}, s[{S_WS}:{S_WS + 3}], s{S_PO} offen offset:768 sc1")
            e("s_mov_b64 exec, -1")

        e("v_lshrrev_b32 v2, 3, v1")
        e("v_mul_u32_u24 v2, 1536, v2")
        e("v_and_b32 v3, 7, v1")
        e(f"v_lshl_add_u32 v{V_Q}, v3, 4, v2")
        e(f"s_and_b32 s{S_T0}, s2, 7")
        e(f"s_mul_i32 s{S_V}, s{S_T0}, {32 * 1536}")
        e(f"s_lshl_b32 s{S_T1}, s{S_RID}, 7")
        e(f"s_add_u32 s{S_V}, s{S_V}, s{S_T1}")
        for k in range(1, 4):
            e(f"s_add_u32 s{S_V + k}, s{S_V}, {k * 8 * 1536}")
        e(f"s_lshl_b32 s{S_T0}, s{S_T0}, 8              ; group*256")
        e(f"s_lshr_b32 s{S_T1}, s{S_RID}, 2")
        e(f"s_lshl2_add_u32 s{S_T1}, s{S_T1}, s{S_RID}")
        e(f"s_lshl_b32 s{S_T1}, s{S_T1}, 11")
        e(f"s_add_u32 s{S_T1}, s{S_T1}, s{S_T0}")
        for k in range(o.qcopy // 2):
            e(f"s_add_u32 s{S_W + k}, s{S_T1}, {WS_Q + k * 49152}")
        e("v_and_b32 v2, 15, v1")
        e("v_lshlrev_b32 v3, 2, v2")
        e("v_bfe_u32 v2, v1, 4, 1")
        e("v_lshl_add_u32 v3, v2, 7, v3")
        e("v_lshrrev_b32 v2, 5, v1")
        e("v_lshl_add_u32 v3, v2, 13, v3             ; (l>>5)*8192 + ((l>>4)&1)*128 + (l&15)*4")
        e(f"s_lshl4_add_u32 s{S_T0}, s{S_TG[1]}, s{S_TG[0]}")
        e(f"s_xor_b32 s{S_CNT}, s{S_T0}, 0xff")
        e(f"s_lshl_b32 s{S_CNT}, s{S_CNT}, 8")
        e(f"s_or_b32 s{S_T0}, s{S_T0}, s{S_CNT}")
        e("v_and_b32 v2, 12, v3")
        e(f"v_bfe_u32 v23, s{S_T0}, v2, 4")
        e(f"s_mov_b32 s{S_CNT}, {NFB}")
        e(f"s_mov_b32 s{S_HOOK}, 0")
        e("L_rpoll:")
        for k in range(4):
            e(f"buffer_load_dwordx4 v[{4 + 4 * k}:{7 + 4 * k}], v{V_Q}, s[{S_WS}:{S_WS + 3}], s{S_V + k} offen sc1")
        e(f"s_sub_u32 s{S_CNT}, s{S_CNT}, 1")
        e("s_cbranch_scc1 L_rlong")
        for k in range(4):
            e(f"s_waitcnt vmcnt({3 - k})")
            r = 4 + 4 * k
            for i in range(4):
                e(f"v_xor_b32 v{r + i}, s{S_TG[i]}, v{r + i}" + ("            ; a matching tag leaves four zero bits" if k + i == 0 else ""))
            if k == 0:
                e(f"v_or3_b32 v21, v{r}, v{r + 1}, v{r + 2}")
                e(f"v_or_b32 v21, v21, v{r + 3}")
            elif k < 3:
                e(f"v_or3_b32 v21, v21, v{r}, v{r + 1}")
                e(f"v_or3_b32 v21, v21, v{r + 2}, v{r + 3}")
            else:
                e(f"v_or3_b32 v21, v21, v{r}, v{r + 1}")
                e(f"v_or_b32 v22, v{r + 2}, v{r + 3}")
        e("v_bitop3_b32 v21, v21, v22, 15 bitop3:0xa8          ; (a | b) & c")
        e("v_cmp_ne_u32 vcc, 0, v21")
        e("s_wqm_b64 exec, vcc                       ; 64-byte units still waiting poll again")
        e("s_cbranch_scc1 L_rpoll")
        e("L_rgot:")
        e("s_mov_b64 exec, -1")
        self.stamp(1, "r")
        e(f"s_cmp_ge_u32 s{S_RID}, 6")
        e("s_cbranch_scc1 L_rmax")
        for kind in (0, 1):
            op = "v_add_f32" if kind == 0 else "v_max_f32"
            if kind == 1:
                e("L_rmax:")
                for i in range(4):
                    e(f"v_max3_f32 v{4 + i}, v{4 + i}, v{8 + i}, v{12 + i}")
                for i in (0, 2, 1, 3):
                    e(f"v_max_f32 v{4 + i}, v{4 + i}, v{16 + i}")
            else:
                e("v_pk_add_f32 v[4:5], v[4:5], v[8:9]")
                e("v_pk_add_f32 v[6:7], v[6:7], v[10:11]")
                e("v_pk_add_f32 v[12:13], v[12:13], v[16:17]")
                e("v_pk_add_f32 v[14:15], v[14:15], v[18:19]")
                e("v_pk_add_f32 v[4:5], v[4:5], v[12:13]")
                e("v_pk_add_f32 v[6:7], v[6:7], v[14:15]")
                e("s_nop 0")
            e(f"{op}_dpp v4, v4, v4 row_ror:8 row_mask:0xf bank_mask:0x3")
            if kind == 0:
                e(f"{op}_dpp v5, v5, v5 row_ror:8 row_mask:0xf bank_mask:0x3")
                e(f"{op}_dpp v4, v6, v6 row_ror:8 row_mask:0xf bank_mask:0xc")
            else:
                e(f"{op}_dpp v4, v6, v6 row_ror:8 row_mask:0xf bank_mask:0xc")
                e(f"{op}_dpp v5, v5, v5 row_ror:8 row_mask:0xf bank_mask:0x3")
            e(f"{op}_dpp v5, v7, v7 row_ror:8 row_mask:0xf bank_mask:0xc")
            e("s_nop 1")
            e("v_permlane16_swap_b32 v4, v5")
            e(f"{op} v4, v4, v5")
            e("v_mov_b32 v5, v4")
            e("s_nop 1")
            e("v_permlane32_swap_b32 v4, v5")
            e(f"{op} v4, v4, v5                        ; lane 16a+8b+c: element 2b+a of piece c")
            if kind == 0:
                e("s_branch L_rpub")
        e("L_rpub:")
        e("v_and_or_b32 v4, v4, -16, v23")
        for k in range(o.qcopy // 2):
            e(f"buffer_store_dword v4, v3, s[{S_WS}:{S_WS + 3}], s{S_W + k} offen sc1")
            if k == 0:
                self.stamp(9)
        if o.clean == "r":
            for i in range(4):
                e(f"v_mov_b32 v{8 + i}, 0")
            for k in range(4):
                e(f"buffer_store_dwordx4 v[8:11], v{V_Q}, s[{S_WS}:{S_WS + 3}], s{S_V + k} offen sc1")
        e("s_barrier")
        e("s_branch L_afterw")

        if o.pad:
            e(f".fill {o.pad // 4}, 4, 0xbf800000")
        e("L_spill:")
        e(f"s_lshl_b32 s{S_T0}, s{S_WAVE}, 13")
        e(f"v_lshl_add_u32 v{V_AT}, v1, 4, s{S_T0}")
        for k in range(8):
            e(f"ds_write_b128 v{V_AT}, v[{SP0 + 4 * k}:{SP0 + 4 * k + 3}] offset:{L_SPILL + 1024 * k}")
        e("L_barw:")
        if o.tlb:
            e(f"s_cmp_lg_u32 s{S_WAVE}, 5")
            e("s_cbranch_scc1 L_notlb")
            e(f"v_lshlrev_b32 v2, {o.tlb}, v1")
            e(f"buffer_load_dword v4, v2, s[{S_OUT}:{S_OUT + 3}], 0 offen")
            e("L_notlb:")
        if o.lpf == 1:
            e(f"s_cmp_lg_u32 s{S_WAVE}, 4")
            e("s_cbranch_scc1 L_nolpf")
            e("s_getpc_b64 s[20:21]")
            e("v_lshlrev_b32 v2, 7, v1")
            e("v_min_u32 v2, L_end - L_nolpf, v2")
            e("global_load_dword v4, v2, s[20:21]")
            e("L_nolpf:")
        e("s_waitcnt vmcnt(0) lgkmcnt(0)")
        e("s_barrier")
        e("L_afterw:")
        e("v_bfe_u32 v3, v1, 2, 2")
        e("v_lshl_add_u32 v21, v20, 3, v3            ; row")
        e("v_and_b32 v22, 15, v21                    ; row of the half step (q&1)")
        e("v_and_b32 v3, 3, v1")
        e(f"s_lshl_b32 s{S_T2}, s{S_WAVE}, 5")
        e(f"v_lshl_add_u32 v23, v3, 3, s{S_T2}          ; column bytes")
        e("v_mov_b32 v3, 384")
        e("v_mad_u32_u24 v2, v21, v3, v23")
        e("v_mad_u32_u24 v22, v22, v3, v23")
        e(f"ds_read_b64_tr_b16 v[{B2}:{B2 + 1}], v2 offset:{L_W2}")
        e(f"ds_read_b64_tr_b16 v[{B2 + 2}:{B2 + 3}], v2 offset:{L_W2 + 4 * 384}")
        e(f"ds_read_b64_tr_b16 v[{B2 + 4}:{B2 + 5}], v22 offset:{L_W2 + 32 * 384}")
        e(f"ds_read_b64_tr_b16 v[{B2 + 6}:{B2 + 7}], v22 offset:{L_W2 + 36 * 384}")
        e("v_and_b32 v2, 1, v1")
        e("v_mul_u32_u24 v22, 96, v2")
        e(f"v_lshl_add_u32 v{V_H0}, v20, 4, v22")
        e("v_and_b32 v3, 1, v20")
        e(f"v_lshl_add_u32 v{V_H1}, v3, 4, v22")
        e(f"s_lshl_b32 s{S_T0}, s{S_WAVE}, 6")
        e(f"v_lshl_add_u32 v{V_SW}, v1, 2, s{S_T0}")
        if o.mul == "dot":
            e("v_mov_b32 v3, 0")
            e("s_mov_b64 exec, 0xffff")
            e(f"ds_write_b32 v{V_SW}, v3 offset:{L_S}")
            e("s_mov_b64 exec, -1")
            e(f"v_lshl_add_u32 v{V_SW}, v2, 1, v{V_SW}")
        e("v_and_b32 v3, 7, v1")
        e(f"s_lshl_b32 s{S_T0}, s{S_TY}, 8")
        e(f"v_lshl_add_u32 v{V_SR}, v3, 5, s{S_T0}")
        e("s_waitcnt lgkmcnt(0)")
        e("s_mov_b32 exec_lo, 0")
        for i in range(4):
            e(f"v_mov_b32 v{B2 + 4 + i}, 0")
        e("s_mov_b64 exec, -1")
        e(f"s_cmp_ge_u32 s{S_WAVE}, 3")
        e("s_cbranch_scc1 L_noa1")
        e("v_mov_b32 v3, 96")
        e("v_mad_u32_u24 v2, v21, v3, v23")
        for s in range(6):
            for h in range(2):
                r = A1 + 4 * s + 2 * h
                e(f"ds_read_b64_tr_b16 v[{r}:{r + 1}], v2 offset:{L_W1 + s * 3072 + h * 384}")
        e("L_noa1:")
        e(f"v_lshl_add_u32 v3, v20, 3, v22")
        e(f"v_add_u32 v3, s{S_T2}, v3")
        e("v_lshlrev_b32 v2, 2, v22")
        e("v_lshl_add_u32 v2, v20, 4, v2")
        e("v_and_b32 v8, 1, v1")
        e("v_lshlrev_b32 v8, 4, v8")
        e("v_lshl_add_u32 v8, v20, 2, v8")
        e("v_and_b32 v9, 2, v1")
        e("v_bfe_u32 v10, v1, 2, 1")
        e("v_add3_u32 v8, v8, v9, v10")
        e(f"v_add_lshl_u32 v23, v8, s{S_T2}, 1")
        e("v_lshrrev_b32 v8, 2, v1")
        e("v_lshlrev_b32 v8, 7, v8")
        e("v_and_b32 v9, 3, v1")
        e(f"v_lshl_add_u32 v{V_Q}, v9, 4, v8")
        e(f"s_and_b32 s{S_T0}, s{S_QC}, 4")
        if o.qcopy > 2:
            e(f"s_and_b32 s{S_CNT}, s{S_QC}, {o.qcopy // 2 - 1}")
            e(f"s_mul_i32 s{S_CNT}, s{S_CNT}, 24")
            e(f"s_add_u32 s{S_T0}, s{S_T0}, s{S_CNT}")
        e(f"s_lshr_b32 s{S_T1}, s{S_WAVE}, 2")
        e(f"s_lshl2_add_u32 s{S_T1}, s{S_T1}, s{S_WAVE}")
        e(f"s_add_u32 s{S_T1}, s{S_T1}, s{S_T0}")
        e(f"s_lshl_b32 s{S_T1}, s{S_T1}, 11")
        e(f"s_add_u32 s{S_T1}, s{S_T1}, {WS_Q}")
        if o.clean in ("q", "p", "a", "h", "g"):
            e(f"v_mov_b32 v19, s{S_TG[0]}")
            e(f"s_lshl_b32 s{S_V}, s{S_WAVE}, 7")
            e(f"s_add_u32 s{S_V}, s{S_V}, s{S_PO}")
        e(f"s_mov_b32 s{S_CNT}, {NFB}")
        e(f"s_mov_b32 s{S_HOOK}, 0")
        e(f"s_cmp_lt_u32 s{S_WAVE}, 6")
        e("s_cbranch_scc1 L_qpoll0")

        def clean1():
            e("s_mov_b64 exec, 1")
            e(f"buffer_store_dword v{V_Q}, off, s[{S_WS}:{S_WS + 3}], s{S_V} sc1")
            e("s_mov_b64 exec, -1")

        for kind in (1, 0):
            op = "v_add_f32" if kind == 0 else "v_max_f32"
            e(f"L_qpoll{kind}:")
            e(f"buffer_load_dwordx4 v[4:7], v{V_Q}, s[{S_WS}:{S_WS + 3}], s{S_T1} offen sc1")
            e(f"s_sub_u32 s{S_CNT}, s{S_CNT}, 1")
            e(f"s_cbranch_scc1 L_qlong{kind}")
            if o.qsleep:
                e(f"s_sleep {o.qsleep}")
            e("s_waitcnt vmcnt(0)")
            for i in range(4):
                e(f"v_xor_b32 v{4 + i}, s{S_TG[i]}, v{4 + i}")
            e("v_or3_b32 v21, v4, v5, v6")
            e("v_bitop3_b32 v21, v21, v7, 15 bitop3:0xa8")
            e("v_cmp_ne_u32 vcc, 0, v21")
            e("s_wqm_b64 exec, vcc")
            e(f"s_cbranch_scc1 L_qpoll{kind}")
            e(f"L_qgot{kind}:")
            if o.clean == "p":
                e("s_mov_b64 exec, 1")
                e(f"buffer_store_dword v19, off, s[{S_WS}:{S_WS + 3}], s{S_V} sc1")
            e("s_mov_b64 exec, -1")
            self.stamp(5)
            e("v_permlane32_swap_b32 v4, v6")
            e("v_permlane32_swap_b32 v5, v7")
            e(f"{op} v4, v4, v6")
            e(f"{op} v5, v5, v7")
            e("s_nop 1")
            e("v_permlane16_swap_b32 v4, v5")
            e(f"{op} v4, v4, v5")
            e(f"s_cmp_ge_u32 s{S_WAVE}, 3")
            e("s_nop 0")
            e(f"{op}_dpp v4, v4, v4 row_ror:8 row_mask:0xf bank_mask:0xf")
            if kind == 0:
                e("v_mul_f32 v4, 0x36800000, v4              ; 1/262144")
            e("v_cvt_pk_bf16_f32 v4, v4, v4")
            e(f"ds_write_b16 v23, v4 offset:{L_F}")
            if o.clean == "q" or (o.clean == "h" and kind == 1) or (o.clean == "g" and kind == 0):
                e("s_mov_b64 exec, 1")
                e(f"buffer_store_dword v19, off, s[{S_WS}:{S_WS + 3}], s{S_V} sc1")
                e("s_mov_b64 exec, -1")
            e("s_waitcnt lgkmcnt(0)")
            e("s_barrier")
            if kind == 1:
                if o.clean in ("a", "g"):
                    clean1()
                e("s_branch L_join")
            else:
                e("s_cbranch_scc1 " + ("L_clean0" if o.clean in ("a", "h") else "L_join"))

        e("L_mlp1:")
        for s in range(6):
            e(f"ds_read_b128 v[{B1[s]}:{B1[s] + 3}], v2 offset:{L_F + 64 * s}")
        if o.clean in ("a", "h"):
            clean1()
        for s in range(6):
            c = "0" if s == 0 else "v[20:23]"
            b = B1[s]
            e(f"s_waitcnt lgkmcnt({5 - s})")
            e(f"v_mfma_f32_16x16x32_bf16 v[20:23], v[{A1 + 4 * s}:{A1 + 4 * s + 3}], v[{b}:{b + 3}], {c}")
        e("s_nop 3")
        e("s_mov_b32 exec_lo, 0x00030003")
        e("s_mov_b32 exec_hi, 0x00030003")
        e("s_nop 1")
        for i in range(4):
            e(f"v_maximum3_f32 v{20 + i}, v{20 + i}, 0, 0")
        e("v_cvt_pk_bf16_f32 v20, v20, v21")
        e("v_cvt_pk_bf16_f32 v21, v22, v23")
        e(f"ds_write_b64 v3, v[20:21] offset:{L_H}")
        e("s_mov_b64 exec, -1")
        e("s_waitcnt lgkmcnt(0)")

        e("L_join:")
        e("s_barrier")
        self.stamp(6)
        e(f"ds_read_b128 v[4:7], v{V_H0} offset:{L_H}")
        e(f"ds_read_b128 v[8:11], v{V_H1} offset:{L_H + 64}")
        e("s_waitcnt lgkmcnt(1)")
        e(f"v_mfma_f32_16x16x32_bf16 v[12:15], v[4:7], v[{B2}:{B2 + 3}], 0")
        e("s_waitcnt lgkmcnt(0)")
        e(f"v_mfma_f32_16x16x32_bf16 v[12:15], v[8:11], v[{B2 + 4}:{B2 + 7}], v[12:15]")
        e("s_mov_b64 exec, 0xffff")
        e("s_nop 6")
        e("v_cvt_pk_bf16_f32 v12, 0, v12")
        e("v_cvt_pk_bf16_f32 v13, 0, v13")
        e("v_add_f32 v12, v12, v13")
        e("v_cvt_pk_bf16_f32 v12, 0, v12")
        e("v_mul_f32 v12, 0xbfb8aa3b, v12            ; -log2(e)")
        e("v_exp_f32 v12, v12")
        e("s_nop 0")
        e("v_add_f32 v12, 1.0, v12")
        e("v_rcp_f32 v12, v12")
        e("s_nop 0")
        if o.mul == "dot":
            e("v_cvt_pk_bf16_f32 v12, v12, v12")
            e(f"ds_write_b16 v{V_SW}, v12 offset:{L_S}")
        else:
            e("v_cvt_pk_bf16_f32 v12, 0, v12")
            e(f"ds_write_b32 v{V_SW}, v12 offset:{L_S}")
        e("s_mov_b64 exec, -1")
        e("s_waitcnt lgkmcnt(0)")
        e("s_barrier")
        e(f"ds_read_b128 v[4:7], v{V_SR} offset:{L_S}")
        e(f"ds_read_b128 v[8:11], v{V_SR} offset:{L_S + 16}")

        if o.stlim:
            e(f"s_cmp_lt_u32 s2, {o.stlim}")
            e(f"s_cselect_b32 s{S_OUT + 2}, s{S_OUT + 2}, 0")
        zorder = [int(v) for v in o.zorder.split(",")]
        assert sorted(zorder) == list(range(16))
        restored = False
        late = []

        def wbl2():
            wv, lim, pos = [int(v) for v in o.wb.split(",")]
            e(f"s_cmp_lt_u32 s{S_WAVE}, {wv}")
            e("s_cbranch_scc1 L_nowb")
            e(f"s_cmp_ge_u32 s2, {lim}")
            e("s_cbranch_scc1 L_nowb")
            if pos == 33:
                e("s_waitcnt vmcnt(0)")
            e("buffer_wbl2 sc1")
            e("L_nowb:")
        for n, j in enumerate([2 * z + u for z in zorder for u in (0, 1)]):
            a = D0 + 4 * j
            t0 = 12 + 8 * (n & 1)
            if a >= SP0 and not restored:
                assert n > 1
                e("s_waitcnt lgkmcnt(0)")
                restored = True
            md = o.mul
            for i in range(4 if md in ("pk", "mul", "u", "um") else 0):
                t = t0 + 2 * i
                e(f"v_lshlrev_b32 v{t}, 16, v{a + i}")
                e(f"v_and_b32 v{t + 1}, s{S_MASK}, v{a + i}")
            if n == 0:
                e("s_waitcnt lgkmcnt(0)")
                self.stamp(7)
            if o.al:
                e(f".p2align {o.al & 15}")
                if o.al >> 4:
                    e("s_nop 0")
            for i in range(4):
                t = t0 + 2 * i
                if md in ("pk", "um"):
                    e(f"v_pk_mul_f32 v[{t}:{t + 1}], v[{t}:{t + 1}], v[{4 + 2 * i}:{5 + 2 * i}]")
                if md == "mul":
                    e(f"v_mul_f32 v{t}, v{t}, v{4 + 2 * i}")
                    e(f"v_mul_f32 v{t + 1}, v{t + 1}, v{5 + 2 * i}")
                if md == "dot":
                    e(f"v_dot2_f32_bf16 v{t}, v{a + i}, v{4 + 2 * i}, 0")
                    e(f"v_dot2_f32_bf16 v{t + 1}, v{a + i}, v{5 + 2 * i}, 0")
            for i in range(4):
                t = t0 + 2 * i
                if md in ("pk", "mul", "dot"):
                    e(f"v_cvt_pk_bf16_f32 v{a + i}, v{t}, v{t + 1}")
                if md == "c":
                    e(f"v_cvt_pk_bf16_f32 v{a + i}, v{a + i}, v{a + (i ^ 1)}")
            def st(j=j, a=a, n=n):
                self.mem(j, lambda va, so: e(f"buffer_store_dwordx4 v[{a}:{a + 3}], {va}, s[{S_OUT}:{S_OUT + 3}], {so} offen{'' if n >= 32 - o.nplain else stf}"))
            if n < o.burst:
                st()
            else:
                late.append(st)
            if n == 31:
                for f in late:
                    f()
            if n + 1 in o.sbar:
                e("s_barrier")
            if o.sthr and n >= o.sthr:
                e(f"s_waitcnt vmcnt({o.sthr - 1})")
            if o.wb and int(o.wb.split(",")[2]) == n:
                wbl2()
            if n & 1:
                self.trace("st", n >> 1)
            if n == 1:
                e(f"s_cmp_ge_u32 s{S_WAVE}, 3")
                e("s_cbranch_scc1 L_norestore")
                for k in range(8):
                    e(f"ds_read_b128 v[{SP0 + 4 * k}:{SP0 + 4 * k + 3}], v{V_AT} offset:{L_SPILL + 1024 * k}")
                e("L_norestore:")
                if o.clean == "st":
                    clean("L_noclean", 28, 32)
                    e("L_noclean:")
        if o.clean == "e":
            clean("L_noclean", 28, 32)
            e("L_noclean:")
        if o.wb and int(o.wb.split(",")[2]) >= 32:
            wbl2()
        if o.stamps:
            self.stamp(8)
            e("s_waitcnt vmcnt(0)")
            self.stamp(10)
            if o.idleclk:
                e(f"s_cmp_lg_u32 s{S_WAVE}, 11")
                e("s_cbranch_scc1 L_noidle")
                for lbl, dur, m, r in (("a", o.idleclk, 1, 3), ("b", 2000, 2, 6)):
                    e("s_memrealtime s[96:97]")
                    e("s_waitcnt lgkmcnt(0)")
                    e(f"L_idle{lbl}:")
                    e("s_sleep 4")
                    e("s_memrealtime s[98:99]")
                    e("s_waitcnt lgkmcnt(0)")
                    e("s_sub_u32 s98, s98, s96")
                    e(f"s_cmp_lt_u32 s98, {dur}")
                    e(f"s_cbranch_scc1 L_idle{lbl}")
                    e(f"s_memtime s[{S_STAMP + 2 * m}:{S_STAMP + 2 * m + 1}]")
                    e(f"s_memrealtime s[{S_STAMP + 2 * r}:{S_STAMP + 2 * r + 1}]")
                e("L_noidle:")
            e("s_getreg_b32 s94, hwreg(HW_REG_XCC_ID)")
            e("s_getreg_b32 s95, hwreg(HW_REG_HW_ID)")
            e("s_waitcnt lgkmcnt(0)")
            e("v_mov_b32 v2, 0")
            for i in range(11 if o.trace else 14):
                e(f"v_writelane_b32 v2, s{S_STAMP + 2 * i}, {i}")
            e("v_writelane_b32 v2, s94, 14")
            e("v_writelane_b32 v2, s95, 15")
            e(f"s_mul_i32 s{S_T0}, s2, 12")
            e(f"s_add_u32 s{S_T0}, s{S_T0}, s{S_WAVE}")
            e(f"s_lshl_b32 s{S_T0}, s{S_T0}, 6")
            e(f"s_add_u32 s{S_T0}, s{S_T0}, {WS_STAMP}")
            e("v_mbcnt_lo_u32_b32 v3, -1, 0")
            e("v_lshlrev_b32 v3, 2, v3")
            e("s_mov_b64 exec, 0xffff")
            e(f"buffer_store_dword v2, v3, s[{S_WS}:{S_WS + 3}], s{S_T0} offen sc1")
            if o.trace:
                e("s_mov_b32 s91, s92")
                for i in range(16):
                    e(f"v_writelane_b32 v2, s{76 + i}, {i}")
                e(f"s_add_u32 s{S_T0}, s{S_T0}, {1 << 19}")
                e(f"buffer_store_dword v2, v3, s[{S_WS}:{S_WS + 3}], s{S_T0} offen sc1")
        if o.dbgptr:
            e("s_cmp_lg_u32 s2, 0")
            e("s_cbranch_scc1 L_nodp")
            e("s_mov_b64 exec, -1")
            e("v_mov_b32 v2, 0")
            for i, r in enumerate((4, 5, 8, 9, 12, 13, 16, 17, 0, 1)):
                e(f"v_writelane_b32 v2, s{r}, {i}")
            e("v_mbcnt_lo_u32_b32 v3, -1, 0")
            e("v_lshlrev_b32 v3, 2, v3")
            e("s_mov_b64 exec, 0x3ff")
            e(f"buffer_store_dword v2, v3, s[{S_DBG}:{S_DBG + 3}], 0 offen offset:8")
            e("L_nodp:")
        if o.probe:
            idx, K = [int(v) for v in o.probe.split(",")]
            if idx == -6:
                pass
            elif idx == -5:
                e("s_cmp_ge_u32 s2, 8")
                e("s_cbranch_scc1 L_end")
            elif idx == -2:
                e("s_getreg_b32 s94, hwreg(HW_REG_XCC_ID)")
                e("s_xor_b32 s94, s94, s2")
                e("s_and_b32 s94, s94, 7")
                e("s_cbranch_scc0 L_end")
            elif idx == -3:
                e("s_cmp_lg_u32 s2, 0")
                e("s_cbranch_scc1 L_end")
            else:
                e(f"s_cmp_lg_u32 s2, {o.pwg}")
                e("s_cbranch_scc1 L_end")
            e(f"s_cmp_lg_u32 s{S_WAVE}, {o.pwave}")
            e("s_cbranch_scc1 L_end")
            if idx == -6:
                e(f"s_sub_u32 s96, s{S_STAMP + 20}, s{S_STAMP}")
                e(f"s_mul_i32 s96, s96, {K}")
            elif idx == -5:
                e("s_mov_b32 s96, 0")
                e("L_sk:")
                e("s_sleep 100")
                e("s_add_u32 s96, s96, 1")
                e("s_cmp_lt_u32 s96, 4")
                e("s_cbranch_scc1 L_sk")
                e(f"s_mov_b32 s94, {WS_STAMP}")
                e(f"buffer_load_dword v4, off, s[{S_WS}:{S_WS + 3}], s94 sc1")
                e("s_waitcnt vmcnt(0)")
                e("v_readfirstlane_b32 s94, v4")
                e(f"s_sub_u32 s95, s{S_STAMP}, s94")
                e(f"s_mul_i32 s95, s95, {K - 1}")
                e("s_add_u32 s96, s95, 8000")
            elif idx == -4:
                c0, c1, r0, r1 = ((11, 12, 0, 7), (12, 13, 7, 10))[K]
                e(f"s_sub_u32 s94, s{S_STAMP + 2 * c1}, s{S_STAMP + 2 * c0}")
                e(f"s_sub_u32 s95, s{S_STAMP + 2 * r1}, s{S_STAMP + 2 * r0}")
                e("v_cvt_f32_u32 v4, s94")
                e("v_cvt_f32_u32 v5, s95")
                e("v_rcp_f32 v5, v5")
                e("s_nop 1")
                e("v_mul_f32 v4, v4, v5")
                e("v_mul_f32 v4, 0x44fa0000, v4")
                e("v_cvt_u32_f32 v4, v4")
                e("s_nop 1")
                e("v_readfirstlane_b32 s96, v4")
                e("s_sub_u32 s96, s96, 31000")
            elif idx <= -10:
                e(f"s_bfe_u32 s94, s{-idx - 10}, {(7 << 16)} + {K}")
                e("s_mul_i32 s96, s94, 200")
                e("s_add_u32 s96, s96, 5000")
            elif idx == -3:
                e("s_getreg_b32 s94, hwreg(HW_REG_XCC_ID)")
                e("s_and_b32 s94, s94, 7")
                e(f"s_mul_i32 s96, s94, {K}")
                e("s_add_u32 s96, s96, 5000")
            elif idx < 0:
                e(f"s_mov_b32 s96, {K}")
            else:
                e(f"s_sub_u32 s96, s{S_STAMP + 2 * idx}, s{S_STAMP + 2 * o.pref}")
                e(f"s_mul_i32 s96, s96, {K}")
                if o.pref:
                    e("s_add_u32 s96, s96, 5000")
            e("s_min_u32 s96, s96, 200000")
            e("L_probe:")
            e("s_memrealtime s[98:99]")
            e("s_waitcnt lgkmcnt(0)")
            e(f"s_sub_u32 s98, s98, s{S_STAMP}")
            e("s_cmp_lt_u32 s98, s96")
            e("s_cbranch_scc1 L_probe")
        e("L_end:")
        e("s_endpgm")

        e("@@ROLE")
        e(".p2align 7")
        e("L_role:")
        e("s_load_dwordx4 s[44:47], s[0:1], 32")
        e(f"s_lshr_b32 s{S_V + 1}, s2, 3")
        e(f"s_and_b32 s{S_T1}, s2, 1")
        e(f"s_lshl1_add_u32 s{S_T1}, s{S_T1}, 1")
        e(f"s_mul_i32 s{S_T2}, s2, 0x104100")
        e(f"s_cmp_eq_u32 s2, {NVOTE_WG}")
        e("s_waitcnt lgkmcnt(0)")
        e("s_cbranch_scc1 L_tag")
        e(f"s_sub_u32 s{S_T0}, s{S_OUT}, s{S_X}")
        e(f"s_addk_i32 s{S_T0}, 2048")
        e(f"s_bitcmp1_b32 s{S_T0}, 12")
        e(f"s_cselect_b32 s{S_V}, {o.quorum}, {o.quorum4}")
        e(f"s_cselect_b32 s{S_V + 2}, s{S_V + 1}, 1")
        e(f"s_cmp_eq_u32 s{S_V + 2}, 2")
        e(f"s_cselect_b32 s{S_V + 1}, s{S_T1}, s{S_V + 1}")
        e(f"s_bitcmp1_b32 s{S_V + 1}, 0")
        e(f"s_cselect_b64 s[{S_W}:{S_W + 1}], s[8:9], s[4:5]")
        e(f"s_lshr_b32 s{S_T1}, s{S_V + 1}, 1")
        e(f"s_lshl_b32 s{S_T1}, 0x2000000, s{S_T1}")
        e(f"s_add_u32 s{S_T2}, s{S_T2}, s{S_T1}")
        e(f"s_lshr_b32 s{S_T0}, s{S_OUT}, 7")
        e(f"s_mul_i32 s{S_T0}, s{S_T0}, 21")
        e(f"s_and_b32 s{S_T0}, s{S_T0}, 63")
        e(f"s_mulk_i32 s{S_T0}, 384")
        e(f"s_add_u32 s{S_T0}, s{S_T0}, s{S_T2}")
        e(f"s_cmp_lg_u32 s{S_V + 2}, 0")
        e(f"s_cselect_b32 s{S_V + 3}, s{S_OUT}, 0")
        e("s_cbranch_scc1 L_notws")
        e(f"s_mov_b64 s[{S_W}:{S_W + 1}], s[46:47]")
        e(f"s_and_b32 s{S_T0}, s{S_T2}, 0xfffff")
        e(f"s_add_u32 s{S_T0}, s{S_T0}, {WS_PROBE}")
        e("L_notws:")
        e(f"s_add_u32 s{S_T1}, s{S_T0}, 8192")
        self.stamp(1, True)
        e(f"s_load_dword s42, s[{S_W}:{S_W + 1}], s{S_T0} glc")
        e(f"s_load_dword s43, s[{S_W}:{S_W + 1}], s{S_T1} glc")
        e(f"s_mov_b32 s{S_CNT}, {-(NRACE // 2)}")
        if o.dpf:
            e(f"s_load_dword s23, s[44:45], 192 glc")
        for k in range(NRACE):
            e("s_waitcnt lgkmcnt(0)")
            if k < 2:
                self.stamp(2 + k, True)
                if o.vdiag:
                    e("s_waitcnt lgkmcnt(0)")
            first, second = (S_T0, S_T1) if k % 2 == 0 else (S_T1, S_T0)
            e(f"s_load_dword s42, s[{S_W}:{S_W + 1}], s{first} glc")
            e(f"s_load_dword s43, s[{S_W}:{S_W + 1}], s{second} glc")
            e("s_waitcnt lgkmcnt(1)")
            e("s_nop 7")
            e(f"s_getreg_b32 s{S_T2}, hwreg(HW_REG_IB_STS, 8, 4)   ; 1: the second answer is still out")
            if k % 2 == 0:
                e(f"s_xor_b32 s{S_T2}, s{S_T2}, 1")
            e(f"s_add_u32 s{S_CNT}, s{S_CNT}, s{S_T2}")
        assert NRACE % 2 == 0 and max(o.quorum, o.quorum4) * NRACE // 2 < 32 and max(o.quorum, o.quorum4) <= NVOTE_WG
        e(f"s_sub_u32 s{S_T2}, 0, s{S_CNT}")
        e(f"s_add_u32 s{S_T0}, s{S_T0}, s{S_V + 3}")
        e(f"s_lshr_b32 s{S_T0}, s{S_T0}, 19")
        e(f"s_getreg_b32 s{S_T1}, hwreg(HW_REG_XCC_ID, 0, 3)")
        e(f"s_xor_b32 s{S_T0}, s{S_T0}, s{S_T1}")
        e(f"s_bitcmp1_b32 s{S_T0}, 2")
        e(f"s_cselect_b32 s{S_CNT}, s{S_T2}, s{S_CNT}")
        e(f"s_mul_i32 s{S_T0}, s{S_V + 1}, 6")
        e(f"s_add_u32 s{S_T0}, s{S_T0}, 7")
        e(f"s_lshl_b32 s{S_CNT}, s{S_CNT}, s{S_T0}")
        e(f"s_or_b32 s{S_CNT}, s{S_CNT}, 1")
        e(f"s_mov_b32 s{S_T1}, s{S_CNT}")
        self.stamp(6, True)
        e(f"s_atomic_add s{S_T1}, s[44:45], {DBG_TAL} glc")
        e(f"s_add_u32 s{S_CNT}, s{S_CNT}, {sum(31 << (7 + 6 * t) for t in range(4))}")
        e("s_waitcnt lgkmcnt(0)")
        e(f"s_add_u32 s{S_T1}, s{S_T1}, s{S_CNT}")
        self.stamp(13)
        e(f"s_and_b32 s{S_T0}, s{S_T1}, 0x7f")
        e(f"s_cmp_lg_u32 s{S_T0}, s{S_V}")
        e("s_cbranch_scc1 L_stream")
        e(f"s_and_b32 s{S_T1}, s{S_T1}, {sum(32 << (7 + 6 * t) for t in range(4))}")
        e(f"s_bitset1_b32 s{S_T1}, 9")
        e("L_publish:")
        e(f"s_atomic_add s{S_T1}, s[44:45], {DBG_RES}")
        e("s_waitcnt lgkmcnt(0)")
        e("s_branch L_stream")

        e("L_tag:")
        e(f"s_mov_b32 s{S_T1}, 1")
        e("s_waitcnt lgkmcnt(0)")
        e(f"s_atomic_add s{S_T1}, s[46:47], {WS_E} glc")
        e("s_waitcnt lgkmcnt(0)")
        e(f"s_add_u32 s{S_T1}, s{S_T1}, 1")
        e(f"s_and_b32 s{S_T1}, s{S_T1}, 0xff")
        e(f"s_bitset1_b32 s{S_T1}, 8")
        assert NVOTE_WG % 8 == 0
        e(f"s_getreg_b32 s{S_T0}, hwreg(HW_REG_XCC_ID, 0, 3)")
        e(f"s_lshl_b32 s{S_T0}, s{S_T0}, 13")
        e(f"s_or_b32 s{S_T1}, s{S_T1}, s{S_T0}")
        self.stamp(13)
        e("s_branch L_publish")

        e("@@RARE")
        if o.clean in ("a", "h"):
            e("L_clean0:")
            clean1()
            e("s_branch L_join")
        for nm in ("r", "q0", "q1"):
            k = nm[1:]
            e(f"L_{nm[0]}long{k}:")
            e("s_waitcnt vmcnt(0)")
            e(f"s_cmp_lg_u32 s{S_HOOK}, 0")
            e(f"s_cbranch_scc1 L_{nm[0]}got{k}")
            e(f"s_call_b64 s[{S_RET}:{S_RET + 1}], L_flush")
            e(f"s_branch L_{nm[0]}poll{k}")
        e("L_flush:")
        e(f"s_mov_b32 s{S_CNT}, {SPIN}")
        e(f"s_mov_b32 s{S_HOOK}, {SPIN}")
        e("s_mov_b32 exec_lo, -1")
        e("s_mov_b32 exec_hi, 0xffff")
        e("v_lshlrev_b32 v17, 4, v1")
        e("L_floop:")
        e(f"buffer_load_dwordx4 v[8:11], v17, s[{S_WS}:{S_WS + 3}], s{S_PO} offen sc1")
        e(f"buffer_load_dwordx4 v[12:15], v17, s[{S_WS}:{S_WS + 3}], s{S_PO} offen offset:768 sc1")
        e(f"s_sub_u32 s{S_HOOK}, s{S_HOOK}, 1")
        e("s_waitcnt vmcnt(0)")
        e(f"v_xor_b32 v16, s{S_TG[0]}, v8")
        for r in range(9, 16):
            e(f"v_bitop3_b32 v16, v16, v{r}, s{S_TG[r & 3]} bitop3:0xf6")
        e("v_and_b32 v16, 15, v16")
        e("v_cmp_ne_u32 vcc, 0, v16")
        e("s_cbranch_scc1 L_fdone")
        e("s_cbranch_vccnz L_floop")
        e("L_fdone:")
        e(f"buffer_store_dwordx4 v[8:11], v17, s[{S_WS}:{S_WS + 3}], s{S_PO} offen sc1")
        e(f"buffer_store_dwordx4 v[12:15], v17, s[{S_WS}:{S_WS + 3}], s{S_PO} offen offset:768 sc1")
        e("s_waitcnt vmcnt(0)")
        e("s_mov_b64 exec, -1")
        e(f"s_mov_b32 s{S_HOOK}, -1")
        e(f"s_setpc_b64 s[{S_RET}:{S_RET + 1}]")

        e("@@DPOLL")
        e("L_dpoll:")
        e(f"s_mov_b32 s{S_CNT}, {SPIN}")
        e(f"v_mov_b32 v{V_AT}, 0")
        e("s_mov_b64 exec, 1")
        e("L_dloop:")
        e(f"buffer_load_dword v{V_AT}, off, s[{S_DBG}:{S_DBG + 3}], 0 offset:{DBG_RES} sc1")
        e(f"s_sleep {o.dsleep}")
        e("s_waitcnt vmcnt(24)")
        e(f"v_readfirstlane_b32 s{S_T2}, v{V_AT}          ; whatever poll has landed last")
        e(f"s_sub_u32 s{S_CNT}, s{S_CNT}, 1")
        e("s_cbranch_scc1 L_dgot")
        e(f"s_andn2_b32 s{S_OFF}, {RES_OK}, s{S_T2}")
        e("s_cbranch_scc1 L_dloop")
        e("L_dgot:")
        e("s_mov_b64 exec, -1")
        e("s_branch L_decided")

        e("@@END")
        L = self.lines
        ix = {k: L.index("    @@" + k) for k in ("ROLE", "RARE", "DPOLL", "END")}
        role, rare, dpoll = L[ix["ROLE"] + 1:ix["RARE"]], L[ix["RARE"] + 1:ix["DPOLL"]], L[ix["DPOLL"] + 1:ix["END"]]
        main = L[:ix["ROLE"]]
        p1, p2 = main.index("    @@HERE1"), main.index("    @@HERE2")
        if o.lay:
            self.lines = (main[:p1] + ["    s_branch L_skip1"] + role + dpoll + ["L_skip1:"] + main[p1 + 1:p2]
                          + ["    s_branch L_tail"] + rare + ["    .p2align 12", "L_tail:"] + main[p2 + 1:])
        else:
            self.lines = main[:p1] + main[p1 + 1:p2] + main[p2 + 1:] + role + rare + dpoll

    def text(self):
        out = HEADER
        out += f"; @launch grid=({NWG},1,1) block=(768,1,1) lds={L_TOTAL}\n"
        out += '.amdgcn_target "amdgcn-amd-amdhsa--gfx950"\n.text\n'
        out += f".globl {KNAME}\n.p2align 8\n.type {KNAME},@function\n{KNAME}:\n"
        out += "\n".join(self.lines) + "\n"
        out += f""".section .rodata,"a"
.p2align 6
.amdhsa_kernel {KNAME}
  .amdhsa_next_free_vgpr 168
  .amdhsa_next_free_sgpr {100 if self.o.stamps else 56}
  .amdhsa_accum_offset 168
  .amdhsa_group_segment_fixed_size 0
  .amdhsa_kernarg_size 48
  .amdhsa_user_sgpr_count 2
  .amdhsa_user_sgpr_kernarg_segment_ptr 1
  .amdhsa_system_sgpr_workgroup_id_x 1
  .amdhsa_float_denorm_mode_32 3
.end_amdhsa_kernel
"""
        return out


def main():
    p = argparse.ArgumentParser()
    p.add_argument("-o", default="standalone__channel_attn_cbam__vision.s")
    p.add_argument("--ldflags", default="nt")
    p.add_argument("--stflags", default="sc1")
    p.add_argument("--p1flags", default="sc1")
    p.add_argument("--stamps", action="store_true")
    p.add_argument("--probe", default="")
    p.add_argument("--depth", type=int, default=10)
    p.add_argument("--nrace", type=int, default=2)
    p.add_argument("--dsleep", type=int, default=8)
    p.add_argument("--trace", default="")
    p.add_argument("--nodec", action="store_true")
    p.add_argument("--vdiag", action="store_true")
    p.add_argument("--dbgptr", action="store_true")
    p.add_argument("--opp", default="5,9", type=lambda v: [int(x) for x in v.split(",")])
    p.add_argument("--quorum", type=int, default=16)
    p.add_argument("--quorum4", type=int, default=24)
    p.add_argument("--nvote", type=int, default=32)
    p.add_argument("--nagn", type=int, default=6)
    p.add_argument("--stlim", type=int, default=0)
    p.add_argument("--psc1", action="store_true")
    p.add_argument("--pnt", action="store_true")
    p.add_argument("--wtouch", type=int, default=1)
    p.add_argument("--lay", type=int, default=1)
    p.add_argument("--skipfrom", type=int, default=99)
    p.add_argument("--ttail", type=int, default=0)
    p.add_argument("--tlb", type=int, default=0)
    p.add_argument("--rot", type=int, default=0)
    p.add_argument("--pad", type=int, default=0)
    p.add_argument("--lpf", type=int, default=0)
    p.add_argument("--al", type=int, default=0)
    p.add_argument("--cap", type=int, default=0)
    p.add_argument("--capfrom", type=int, default=12)
    p.add_argument("--capto", type=int, default=32)
    p.add_argument("--skewa", type=int, default=1)
    p.add_argument("--skewd", type=int, default=1)
    p.add_argument("--skewc", type=int, default=0)
    p.add_argument("--skew", type=int, default=0, help="timing diagnostic only")
    p.add_argument("--warmfl", default="")
    p.add_argument("--sdiag", action="store_true")
    p.add_argument("--rpf", type=int, default=0)
    p.add_argument("--dpf", type=int, default=0)
    p.add_argument("--pwg", type=int, default=0)
    p.add_argument("--pwave", type=int, default=0)
    p.add_argument("--pref", type=int, default=0)
    p.add_argument("--qshift", type=int, default=32)
    p.add_argument("--rolepos", type=int, default=-1)
    p.add_argument("--prebar", type=int, default=1)
    p.add_argument("--qmap", type=int, default=0)
    p.add_argument("--agnu", type=int, default=4)
    p.add_argument("--warmst", type=int, default=0)
    p.add_argument("--cw", type=int, default=0)
    p.add_argument("--cld", action="store_true")
    p.add_argument("--qflip", type=int, default=0)
    p.add_argument("--qcopy", type=int, default=4)
    p.add_argument("--mul", default="dot")
    p.add_argument("--burst", type=int, default=32)
    p.add_argument("--idleclk", type=int, default=0)
    p.add_argument("--clk", action="store_true")
    p.add_argument("--sthr", type=int, default=0)
    p.add_argument("--sbar", default=[24], type=lambda v: [int(x) for x in v.split(",")])
    p.add_argument("--piece", type=int, default=128)
    p.add_argument("--xbar", default=[24], type=lambda v: [int(x) for x in v.split(",")])
    p.add_argument("--cpf", type=int, default=0)
    p.add_argument("--cpfpos", type=int, default=0)
    p.add_argument("--wpace", type=int, default=40)
    p.add_argument("--clean", default="g")
    p.add_argument("--warm", type=int, default=30)
    p.add_argument("--warmwave", type=int, default=4)
    p.add_argument("--qsleep", type=int, default=0)
    p.add_argument("--red0", type=int, default=8)
    p.add_argument("--redstep", type=int, default=2)
    p.add_argument("--off", default="", help="diagnostics: v = no votes, c = no clears, r = result not read")
    p.add_argument("--spans", default="")
    p.add_argument("--split", action="store_true")
    p.add_argument("--pfback", type=int, default=0)
    p.add_argument("--nplain", type=int, default=0)
    p.add_argument("--wb", default="", help="minwave,wglimit,pos")
    p.add_argument("--thr", type=int, default=2)
    p.add_argument("--thrfrom", type=int, default=12)
    p.add_argument("--thrto", type=int, default=24)
    p.add_argument("--thrmask", default="0x55")
    p.add_argument("--zorder", default="8,0,9,1,10,2,11,3,12,4,13,5,14,6,15,7")
    o = p.parse_args()
    global NAGN, SPANS, NVOTE_WG
    NVOTE_WG = o.nvote
    NAGN = o.nagn
    if NAGN == 6:
        SPANS = [(0, 0), (0, 1), (1, 0), (1, 1), (2, 0), (2, 1),
                 (3, 0), (3, 1), (4, 0), (4, 1), (5, 0), (5, 1), (6, 0), (6, 1), (7, 0), (7, 1)]
        if o.zorder == p.get_default("zorder"):
            o.zorder = "6,0,7,1,8,2,9,3,10,4,11,5,12,13,14,15"
    if o.spans:
        SPANS = [(int(v[0]), int(v[1])) for v in o.spans.split(",")]
        assert sorted(SPANS) == [(a, b) for a in range(8) for b in range(2)]
    g = G(o)
    g.build()
    open(o.o, "w").write(g.text())


if __name__ == "__main__":
    main()
```

```python
import argparse

KNAME = "standalone__channel_attn_cbam__vision_kernel"

HEADER = """; Kernarg layout for this problem (48 bytes, ptrs only, base s[0:1]):
;   offset   0: d_in[0] x  shape=(1, 512, 512, 192) dtype=bfloat16 strides=(100663296, 196608, 384, 2) contiguous=True
;   offset   8: d_in[1] w1  shape=(192, 48) dtype=bfloat16 strides=(96, 2) contiguous=True
;   offset  16: d_in[2] w2  shape=(48, 192) dtype=bfloat16 strides=(384, 2) contiguous=True
;   offset  40: d_ws      402653184 bytes workspace (unspecified values whenever your kernel or launch list starts; a list's later launches find what earlier ones wrote)
"""

X_BYTES = 100663296
NWG = 256
NRED = 12
MiB = 1 << 20

L_RED = 0
L_H = 6144
L_DEC = 6336
L_S = 6400
L_F = 7168
L_W1 = 8192
L_W2 = L_W1 + 18432
L_SPILL = L_W2 + 18432
L_TOTAL = L_SPILL + 3 * 8192

WS_P = 0
WS_Q = 256 * 1536
WS_E = WS_Q + 4 * 49152
WS_USED = WS_E + 128
WS_PROBE = 640 * 1024
WS_STAMP = 1 << 20

S_X, S_OUT, S_WS, S_DBG, S_W = 4, 8, 12, 16, 20
S_WAVE, S_TY, S_SUB, S_OFF, S_MASK, S_CNT, S_T0, S_T1 = 28, 29, 30, 31, 32, 33, 34, 35
S_BASE, S_PM, S_P, S_T2 = 48, 49, 50, 51
S_AGN, S_RID, S_PO = 40, 42, 43
S_TG = [41, 47, 3, 0]
S_RET, S_HOOK, S_QC = 38, 46, 1
S_BASE1 = 45
NFB = 48
S_STAMP = 52
S_V = 24

D0 = 40
SPIN = 400000
V_L, V_G0, V_G1, V_AT = 0, 39, 38, 36

NAGN = 8
SPANS = [(0, 0), (0, 1), (1, 0), (1, 1), (2, 0), (2, 1), (3, 0), (3, 1),
         (6, 0), (4, 0), (6, 1), (4, 1), (7, 0), (5, 0), (7, 1), (5, 1)]
W_ROLE = 0
DBG_RES, DBG_TAL = 0, 128
NVOTE_WG = 32
RES_OK = (1 << 9) | (1 << 8)


def mask(pred):
    return sum(1 << z for z, s in enumerate(SPANS) if pred(z, s))


class G:
    def __init__(self, o):
        self.o = o
        self.lines = []

    def e(self, s=""):
        self.lines.append(("    " + s) if s and not s.endswith(":") else s)

    def stamp(self, idx, vote=False):
        if self.o.clk:
            if idx in (11, 12, 13):
                return
            m = {0: 11, 7: 12, 10: 13}.get(idx)
            if m:
                self.e(f"s_memtime s[{S_STAMP + 2 * m}:{S_STAMP + 2 * m + 1}]")
        if vote == "r":
            vote = False
        if self.o.vdiag and idx in (1, 2, 3, 6) and not vote:
            return
        if vote and not self.o.vdiag:
            return
        if self.o.stamps and not (self.o.trace and idx > 10):
            self.e(f"s_memrealtime s[{S_STAMP + 2 * idx}:{S_STAMP + 2 * idx + 1}]")

    def srd(self, d, lo, nbytes):
        e = self.e
        e(f"s_mov_b64 s[{d}:{d + 1}], s[{lo}:{lo + 1}]")
        e(f"s_mov_b32 s{d + 2}, {nbytes}")
        e(f"s_mov_b32 s{d + 3}, 0x20000")

    def span_off(self, z):
        return SPANS[z][0] * 12 * MiB + SPANS[z][1] * 49152

    def mem(self, j, fn):
        e = self.e
        z, u = j >> 1, j & 1
        if z < NAGN:
            off = (j // self.o.agnu) * (self.o.agnu * 3 * MiB - (self.o.skew if self.o.skewa else 0)) + (j % self.o.agnu) * 12288
            if off:
                e(f"s_add_u32 s{S_OFF}, s{S_AGN}, {off}")
                fn(f"v{V_L}", f"s{S_OFF}")
            else:
                fn(f"v{V_L}", f"s{S_AGN}")
            return
        if getattr(self, "pz", None) != z:
            e(f"s_bitcmp1_b32 s{S_PM}, {z}")
            e(f"s_cselect_b32 s{S_P}, 24576, 0")
            self.pz = z
        e(f"s_add_u32 s{S_OFF}, s{(S_BASE, S_BASE1)[SPANS[z][1]]}, {SPANS[z][0] * 12 * MiB - self.o.skew * (SPANS[z][0] * self.o.skewd + self.o.skewc) + 12288 * u}")
        at = 2 + u
        e(f"v_xad_u32 v{at}, v{(V_G0, V_G1)[u]}, s{S_P}, v{V_L}")
        if SPANS[z] == (7, 1):
            e(f"v_add_u32 v{at}, s{S_OFF}, v{at}")
            e(f"v_subrev_u32 v{5 - at}, s{S_X + 2}, v{at}")
            e(f"v_min_u32 v{at}, v{at}, v{5 - at}             ; past the end: wrap to the rows the shift skipped")
            fn(f"v{at}", "0")
        else:
            fn(f"v{at}", f"s{S_OFF}")

    def trace(self, kind, n):
        if self.o.trace == kind:
            if n > 0:
                self.e("s_waitcnt lgkmcnt(0)")
                self.e(f"s_mov_b32 s{76 + n - 1}, s92")
            self.e("s_memrealtime s[92:93]")

    def build(self):
        o, e = self.o, self.e
        NRACE = o.nrace
        ldf = (" " + o.ldflags) if o.ldflags else ""
        stf = (" " + o.stflags) if o.stflags else ""

        self.stamp(0)
        e("s_load_dwordx2 s[4:5], s[0:1], 0          ; x")
        e("s_load_dwordx2 s[8:9], s[0:1], 24         ; out")
        e("v_readfirstlane_b32 s%d, v0" % S_WAVE)
        e("v_and_b32 v1, 63, v0                      ; lane")
        pl = (o.piece // 16).bit_length() - 1
        e(f"v_bfe_u32 v2, v0, {pl}, {6 - pl}")
        e(f"v_mul_u32_u24 v2, {(3 * o.piece, 1536, 768, 384)[o.lmap]}, v2")
        e(f"v_and_b32 v3, {(1 << pl) - 1}, v0")
        e("s_cmpk_ge_u32 s2, %d" % NWG)
        e("s_cbranch_scc1 L_end")
        if o.rot:
            e(f"s_add_u32 s2, s2, {o.rot}")
            e("s_and_b32 s2, s2, 255")
        if o.rolepos < 0:
            e(f"s_lshl2_add_u32 s{S_T1}, s{S_WAVE}, s2")
            e(f"s_cmp_le_u32 s{S_T1}, {NVOTE_WG}              ; wave 0 of the first workgroups has a side job")
            e("s_cbranch_scc1 L_role")
            e("L_stream:")
        if o.lmap == 1:
            e("v_lshl_add_u32 v0, v3, 4, v2")
            e(f"v_lshl_add_u32 v{V_L}, s{S_WAVE}, 1, v0")
            e(f"s_lshr_b32 s{S_WAVE}, s{S_WAVE}, 6")
        elif o.lmap == 3:
            e(f"s_lshr_b32 s{S_TY}, s{S_WAVE}, 8")
            e(f"s_lshr_b32 s{S_WAVE}, s{S_WAVE}, 6")
            e(f"s_and_b32 s{S_SUB}, s{S_WAVE}, 3              ; sub = wave % 4")
            e(f"s_mul_i32 s{S_T0}, s{S_SUB}, 24")
            e(f"s_add_u32 s{S_T0}, s{S_T0}, s{S_TY}")
            e("v_lshl_add_u32 v0, v3, 4, v2")
            e(f"v_lshl_add_u32 v{V_L}, s{S_T0}, 7, v0")
        elif o.lmap == 2:
            e(f"s_lshr_b32 s{S_WAVE}, s{S_WAVE}, 6")
            e(f"s_cmp_ge_u32 s{S_WAVE}, 6")
            e(f"s_cselect_b32 s{S_T0}, 42, 0")
            e(f"s_add_u32 s{S_T0}, s{S_T0}, s{S_WAVE}")
            e("v_lshl_add_u32 v0, v3, 4, v2")
            e(f"v_lshl_add_u32 v{V_L}, s{S_T0}, 7, v0")
        else:
            e(f"s_lshr_b32 s{S_WAVE}, s{S_WAVE}, 6")
            e(f"s_mul_i32 s{S_SUB}, s{S_WAVE}, 43")
            e(f"s_lshr_b32 s{S_SUB}, s{S_SUB}, 7")
            e(f"s_mul_i32 s{S_T0}, s{S_SUB}, {3072 // o.piece - 3}")
            e(f"s_add_u32 s{S_T0}, s{S_T0}, s{S_WAVE}        ; sub*24 + wave % 3")
            e(f"s_lshl_b32 s{S_T0}, s{S_T0}, {pl + 4}")
            e("v_lshl_add_u32 v0, v3, 4, v2")
            e(f"v_add_u32 v{V_L}, s{S_T0}, v0               ; + sub*3072 + (wave % 3)*128")
        if o.umap == 1:
            pass
        elif o.umap >= 2:
            mul, rot = (o.umap >> 4) | 1, o.umap & 7
            e(f"s_lshr_b32 s{S_T1}, s2, 3")
            e(f"s_mul_i32 s{S_T1}, s{S_T1}, {rot}")
            e(f"s_mul_i32 s{S_T0}, s2, {mul}")
            e(f"s_add_u32 s{S_T0}, s{S_T0}, s{S_T1}")
            e(f"s_and_b32 s{S_T0}, s{S_T0}, 7")
            e(f"s_and_b32 s{S_T1}, s2, -8")
            e(f"s_add_u32 s{S_T0}, s{S_T0}, s{S_T1}")
        elif o.qmap == 0:
            e(f"s_and_b32 s{S_T0}, s2, 3")
            e(f"s_bfe_u32 s{S_T1}, s2, 0x10002")
            e(f"s_lshl1_add_u32 s{S_T0}, s{S_T0}, s{S_T1}")
            if o.urot:
                e(f"s_lshr_b32 s{S_T1}, s2, {o.urot & 15}")
                if o.urot >> 4:
                    e(f"s_lshl_b32 s{S_T1}, s{S_T1}, {o.urot >> 4}")
                e(f"s_add_u32 s{S_T0}, s{S_T0}, s{S_T1}")
                e(f"s_and_b32 s{S_T0}, s{S_T0}, 7")
            e(f"s_and_b32 s{S_T1}, s2, -8")
            e(f"s_add_u32 s{S_T0}, s{S_T0}, s{S_T1}")
        else:
            e(f"s_and_b32 s{S_T0}, s2, 7")
            e(f"s_lshl_b32 s{S_T0}, s{S_T0}, 5")
            e(f"s_lshr_b32 s{S_T1}, s2, 3")
            e(f"s_add_u32 s{S_T0}, s{S_T0}, s{S_T1}")
        e(f"s_mul_i32 s{S_AGN}, s{2 if o.umap == 1 else S_T0}, {o.agnu * 12288}")
        e(f"s_mov_b32 s{S_X + 2}, {X_BYTES}")
        e(f"s_mov_b32 s{S_X + 3}, 0x20000")
        if o.rolepos >= 0:
            e(f"s_lshl_b32 s{S_T1}, s{S_WAVE}, 8")
            e(f"s_or_b32 s{S_T1}, s{S_T1}, s2")
        if o.sdiag:
            self.stamp(6, True)
        e("s_waitcnt lgkmcnt(0)")
        if o.sdiag:
            self.stamp(1, True)
        e(f"s_lshr_b32 s{S_T0}, s{S_OUT}, 7")
        e(f"s_mul_i32 s{S_T0}, s{S_T0}, 21              ; -43 mod 64")
        e(f"s_and_b32 s{S_T0}, s{S_T0}, 63")
        e(f"s_mulk_i32 s{S_T0}, 384")
        e(f"s_add_u32 s{S_AGN}, s{S_AGN}, s{S_T0}")
        assert W_ROLE == 0

        SUM, MAX, T = 4, 12, 20
        DEPTH = o.depth
        seq = []

        def issue(j):
            if j == o.rolepos:
                e(f"s_cmp_le_u32 s{S_T1}, {NVOTE_WG}              ; wave 0 of the first workgroups has a side job")
                e("s_cbranch_scc1 L_role")
                e("L_stream:")
            if o.cpf and j == o.cpfpos:
                e(f"s_sub_u32 s{S_T1}, s{S_T1}, 256")
                e(f"s_cmp_ge_u32 s{S_T1}, {o.cpf}")
                e("s_cbranch_scc1 L_nocpf")
                e("s_getpc_b64 s[20:21]")
                e("v_lshlrev_b32 v2, 7, v1")
                e("v_add_u32 v3, 8192, v2")
                e("v_min_u32 v3, L_codeend - L_nocpf, v3")
                e("global_load_dword v36, v2, s[20:21]")
                e("global_load_dword v37, v3, s[20:21]")
                e("L_nocpf:")
            if j == max(4, o.rolepos):
                e("s_load_dwordx4 s[36:39], s[0:1], 8        ; w1, w2")
                e(f"s_load_dwordx2 s[{S_DBG}:{S_DBG + 1}], s[0:1], 32")
                e(f"s_load_dwordx2 s[{S_WS}:{S_WS + 1}], s[0:1], 40")
                e(f"s_mov_b32 s{S_MASK}, 0xffff0000")
            if j == 2 * NAGN:
                if o.lmap in (1, 2):
                    e(f"s_mul_i32 s{S_SUB}, s{S_WAVE}, 43")
                    e(f"s_lshr_b32 s{S_SUB}, s{S_SUB}, 7")
                if o.lmap != 3:
                    e(f"s_mul_i32 s{S_TY}, s{S_SUB}, 3")
                    e(f"s_sub_u32 s{S_TY}, s{S_WAVE}, s{S_TY}        ; ty = wave % 3")
                e(f"s_mov_b32 s{S_OUT + 2}, s{S_X + 2}")
                e(f"s_mov_b32 s{S_OUT + 3}, s{S_X + 3}")
                e(f"s_mov_b32 s{S_WS + 2}, {(2 << 20) if o.stamps else WS_USED}")
                e(f"s_mov_b32 s{S_WS + 3}, s{S_X + 3}")
                e(f"s_movk_i32 s{S_DBG + 2}, 256")
                e(f"s_mov_b32 s{S_DBG + 3}, s{S_X + 3}")
                e(f"s_movk_i32 s{S_T2}, 24576")
                e(f"v_bfe_u32 v{V_G0}, v{V_L}, 13, 1")
                e(f"v_add_u32 v{V_G1}, 12288, v{V_L}")
                e(f"v_bfe_u32 v{V_G1}, v{V_G1}, 13, 1")
                e(f"v_mul_u32_u24 v{V_G0}, s{S_T2}, v{V_G0}")
                e(f"v_mul_u32_u24 v{V_G1}, s{S_T2}, v{V_G1}")
                e(f"s_lshr_b32 s{S_T0}, s{S_OUT}, 7")
                e(f"s_mul_i32 s{S_T0}, s{S_T0}, 21")
                e(f"s_and_b32 s{S_T0}, s{S_T0}, 63")
                e(f"s_mulk_i32 s{S_T0}, 384")
                e(f"s_lshr_b32 s{S_BASE}, s2, 3")
                if o.qrot:
                    if o.qrot >= 16:
                        e(f"s_lshr_b32 s{S_T1}, s{S_BASE}, {o.qrot - 16}")
                    else:
                        e(f"s_mul_i32 s{S_T1}, s{S_BASE}, {o.qrot}")
                    e(f"s_add_u32 s{S_T1}, s{S_T1}, s2")
                    e(f"s_and_b32 s{S_T1}, s{S_T1}, 3")
                else:
                    e(f"s_and_b32 s{S_T1}, s2, 3")
                if o.qmap == 0:
                    e(f"s_lshl2_add_u32 s{S_BASE}, s{S_BASE}, s{S_T1}")
                else:
                    e(f"s_lshl_b32 s{S_T1}, s{S_T1}, 5")
                    e(f"s_add_u32 s{S_BASE}, s{S_BASE}, s{S_T1}")
                e(f"s_add_u32 s{S_BASE1}, s{S_BASE}, {o.qshift}")
                e(f"s_and_b32 s{S_BASE1}, s{S_BASE1}, 127")
                e(f"s_mul_i32 s{S_BASE}, s{S_BASE}, 98304")
                e(f"s_add_u32 s{S_BASE}, s{S_BASE}, s{S_T0}        ; the pair's first span of a step")
                e(f"s_mul_i32 s{S_BASE1}, s{S_BASE1}, 98304")
                e(f"s_add_u32 s{S_BASE1}, s{S_BASE1}, s{S_T0}")
                e(f"s_add_u32 s{S_BASE1}, s{S_BASE1}, 49152      ; its second span: 3 MiB on, where the memory stacks swap")
                h1 = mask(lambda z, s: s[1] == 1)
                e(f"s_add_u32 s{S_T2}, s{S_T2}, s{S_OUT}")
                e(f"s_add_u32 s{S_T0}, s{S_BASE}, s{S_T2}")
                e(f"s_bfe_i32 s{S_PM}, s{S_T0}, 0x10015")
                e(f"s_add_u32 s{S_T2}, s{S_BASE1}, s{S_T2}")
                e(f"s_xor_b32 s{S_T0}, s{S_T0}, s{S_T2}")
                e(f"s_bfe_i32 s{S_T0}, s{S_T0}, 0x10015")
                e(f"s_and_b32 s{S_T0}, s{S_T0}, {h1}")
                e(f"s_xor_b32 s{S_PM}, s{S_PM}, s{S_T0}")
                m1 = mask(lambda z, s: z >= NAGN and s[0] in (3, 4))
                z50 = SPANS.index((5, 0))
                z51 = SPANS.index((5, 1))
                dec = mask(lambda z, s: z >= NAGN)
                e(f"s_cmp_lt_u32 s{S_BASE}, {4 * MiB - 24576}")
                e(f"s_cselect_b32 s{S_T0}, {1 << z50}, 0")
                e(f"s_or_b32 s{S_T0}, s{S_T0}, {m1}")
                e(f"s_cmp_lt_u32 s{S_BASE1}, {4 * MiB - 24576}")
                e(f"s_cselect_b32 s{S_T1}, {1 << z51}, 0")
                e(f"s_or_b32 s{S_T0}, s{S_T0}, s{S_T1}            ; third 1")
                e(f"s_xor_b32 s{S_T1}, s{S_T0}, {dec}           ; third 2")
                per, pat = o.opp
                rep = sum(((pat >> (i % per)) & 1) << i for i in range(32))
                e(f"s_lshr_b32 s{S_P}, s2, 3")
                e(f"s_mul_i32 s{S_T2}, s{S_P}, {-(-256 // per)}")
                e(f"s_lshr_b32 s{S_T2}, s{S_T2}, 8")
                e(f"s_mul_i32 s{S_T2}, s{S_T2}, {per}")
                e(f"s_sub_u32 s{S_P}, s{S_P}, s{S_T2}             ; (b >> 3) % {per}")
                e(f"s_lshr_b32 s{S_P}, {rep}, s{S_P}")
                e(f"s_sub_u32 s{S_T2}, s{S_OUT}, s{S_X}")
                e(f"s_add_u32 s{S_T2}, s{S_T2}, 2048")
                e(f"s_bitcmp1_b32 s{S_T2}, 12")
                e(f"s_cselect_b32 s{S_P}, 0, s{S_P}")
                e(f"s_lshr_b32 s{S_T2}, s2, 3")
                e(f"s_sub_u32 s{S_RID}, s{S_T2}, {o.red0}")
                e(f"s_and_b32 s{S_PO}, s2, 7")
                e(f"s_lshl_b32 s{S_PO}, s{S_PO}, 5")
                e(f"s_add_u32 s{S_PO}, s{S_PO}, s{S_T2}")
                e(f"s_mulk_i32 s{S_PO}, 1536")
                e("s_waitcnt lgkmcnt(0)")
                self.stamp(11)
                e("s_barrier")
                e(f"s_load_dword s{S_T2}, s[{S_DBG}:{S_DBG + 1}], {DBG_RES}")
                e("s_waitcnt lgkmcnt(0)")
                e(f"s_andn2_b32 s{S_CNT}, {RES_OK}, s{S_T2}")
                e("s_cbranch_scc1 L_dpoll")
                e("L_decided:")
                for i in range(4):
                    e(f"s_bitcmp1_b32 s{S_T2}, {7 + 6 * i + 5}")
                    e(f"s_cselect_b32 s{S_V + i}, s{(S_T0, S_T1)[i >> 1]}, 0")
                e(f"s_or_b32 s{S_V}, s{S_V}, s{S_V + 2}")
                e(f"s_or_b32 s{S_V + 1}, s{S_V + 1}, s{S_V + 3}")
                e(f"s_xor_b32 s{S_V}, s{S_V}, s{S_V + 1}")
                e(f"s_and_b32 s{S_V}, s{S_V}, s{S_P}")
                e(f"s_xor_b32 s{S_V}, s{S_V}, s{S_V + 1}")
                e(f"s_xor_b32 s{S_PM}, s{S_PM}, s{S_V}")
                e(f"s_lshr_b32 s{S_QC}, s{S_T2}, 13")
                e(f"s_add_u32 s{S_QC}, s{S_QC}, s2")
                e(f"s_bfe_i32 s{S_V}, s{S_QC}, 0x10002")
                e(f"s_xor_b32 s{S_PM}, s{S_PM}, s{S_V}")
                e(f"s_and_b32 s{S_TG[0]}, s{S_T2}, 15")
                e(f"s_bfe_u32 s{S_TG[1]}, s{S_T2}, 0x40004")
                e(f"s_xor_b32 s{S_TG[2]}, s{S_TG[0]}, 15")
                e(f"s_xor_b32 s{S_TG[3]}, s{S_TG[1]}, 15")
                e(f"s_lshr_b32 s{S_V}, s{S_T2}, 10")
                e(f"s_and_b32 s{S_V}, s{S_V}, 4")
                e(f"s_xor_b32 s{S_QC}, s{S_QC}, s{S_V}           ; bits 2:0: the second-stage copy near this die")
                if o.wtouch:
                    e("s_load_dword s22, s[36:37], 0")
                    e("s_load_dword s23, s[38:39], 0")
                self.stamp(12)
            if j in o.xbar:
                e("s_barrier")
                if j == o.xbar[-1]:
                    self.stamp(2, "r")
            if j == o.warm and o.warmst:
                e(f"s_cmp_ge_u32 s{S_WAVE}, 2")
                e("s_cbranch_scc1 L_nowarm")
                for i in range(4):
                    e(f"v_mov_b32 v{20 + i}, 0")
                e(f"s_mul_i32 s{S_T0}, s{S_WAVE}, 768")
                e(f"v_lshl_add_u32 v3, v1, 4, s{S_T0}")
                e("s_mov_b32 exec_hi, 0xffff")
                e(f"buffer_store_dwordx4 v[20:23], v3, s[{S_WS}:{S_WS + 3}], s{S_PO} offen")
                e("s_mov_b64 exec, -1")
                e("L_nowarm:")
            if j == o.warm and not o.warmst:
                e(f"s_cmp_lg_u32 s{S_WAVE}, {o.warmwave}")
                e("s_cbranch_scc1 L_nowarm")
                e("v_lshlrev_b32 v3, 7, v1")
                e("s_mov_b64 exec, 0xfff")
                e(f"buffer_load_dword v37, v3, s[{S_WS}:{S_WS + 3}], s{S_PO} offen {o.warmfl}")
                e("s_mov_b64 exec, -1")
                if o.lpf == 2:
                    e(f"s_cmp_lg_u32 s{S_RID}, {NRED}")
                    e("s_cbranch_scc1 L_nowarm")
                    e("s_getpc_b64 s[20:21]")
                    if o.lay:
                        e("v_add_u32 v3, L_tail - L_nowarm + 32, v3")
                    e("v_min_u32 v3, L_end - L_nowarm, v3")
                    e("global_load_dword v37, v3, s[20:21]")
                e("L_nowarm:")
            r = D0 + 4 * j
            if o.thr and j == 10:
                e(f"s_getreg_b32 s{S_T0}, hwreg(HW_REG_XCC_ID, 0, 3)")
                e(f"s_lshr_b32 s{S_T0}, {o.thrmask}, s{S_T0}")
                e(f"s_and_b64 vcc, s[{S_T0}:{S_T0 + 1}], 1")
            if o.cap and o.capfrom <= j < o.capto:
                e(f"s_waitcnt vmcnt({o.cap - 1})")
            if o.thr and o.thrfrom <= j < o.thrto:
                e(f"s_cbranch_vccz L_thr{j}")
                e(f"s_waitcnt vmcnt({o.thr - 1})")
                e(f"L_thr{j}:")
            self.mem(j, lambda va, so: e(f"buffer_load_dwordx4 v[{r}:{r + 3}], {va}, s[{S_X}:{S_X + 3}], {so} offen{ldf}"))
            seq.append(j)
            if o.sdiag and j == 0:
                self.stamp(2, True)
            if o.sdiag and j == 2:
                e("s_waitcnt vmcnt(2)")
                self.stamp(3, True)
            if j & 1:
                self.trace("ld", j >> 1)

        def wait_for(j):
            e(f"s_waitcnt vmcnt({len(seq) - 1 - seq.index(j)})")

        def scatter54():
            for base in (MAX, SUM):
                for i in range(4):
                    e(f"v_permlane32_swap_b32 v{base + i}, v{base + 4 + i}")
            for i in range(4):
                e(f"v_max_f32 v{MAX + i}, v{MAX + i}, v{MAX + 4 + i}")
            for i in range(4):
                e(f"v_add_f32 v{SUM + i}, v{SUM + i}, v{SUM + 4 + i}")
            for i in range(2):
                e(f"v_permlane16_swap_b32 v{MAX + i}, v{MAX + 2 + i}")
            for i in range(2):
                e(f"v_permlane16_swap_b32 v{SUM + i}, v{SUM + 2 + i}")
            for i in range(2):
                e(f"v_add_f32 v{SUM + i}, v{SUM + i}, v{SUM + 2 + i}")
            for i in range(2):
                e(f"v_max_f32 v{MAX + i}, v{MAX + i}, v{MAX + 2 + i}")

        nxt = 0
        for jj in range(16):
            while nxt < 32 and nxt < max(2 * jj + DEPTH + 2, 2 * NAGN + 2 if o.prebar else 0):
                issue(nxt)
                nxt += 1
                if nxt == 32:
                    self.stamp(1)
            a, b = D0 + 8 * jj, D0 + 8 * jj + 4
            if jj == 0:
                e("@@HERE1")
            if jj == 15:
                e("@@HERE2")
                e("v_and_b32 v2, 7, v1")
                e("v_lshlrev_b32 v2, 5, v2                   ; (l&7)*32")
                e("v_lshrrev_b32 v3, 4, v1")
                e("v_lshl_add_u32 v2, v3, 3, v2              ; + (l>>4)*8")
                e("v_bfe_u32 v3, v1, 3, 1")
                e("v_mul_u32_u24 v3, 768, v3")
                e(f"s_mul_i32 s{S_T0}, s{S_SUB}, 1536")
                e(f"s_lshl_b32 s{S_T1}, s{S_TY}, 8")
                e(f"s_add_u32 s{S_T0}, s{S_T0}, s{S_T1}")
                e(f"v_add3_u32 v2, v2, v3, s{S_T0}")
                e(f"s_mul_i32 s{S_T0}, s{S_WAVE}, 768")
                e(f"v_lshl_add_u32 v3, v1, 4, s{S_T0}")
                if o.ttail:
                    scatter54()
                    for r in (a, b):
                        wait_for((r - D0) // 4)
                        if r == b:
                            self.stamp(3)
                        C = T + 8
                        e(f"v_mov_b64 v[{C}:{C + 1}], v[{r}:{r + 1}]")
                        e(f"v_mov_b64 v[{C + 2}:{C + 3}], v[{r + 2}:{r + 3}]")
                        e("s_nop 1")
                        e(f"v_permlane32_swap_b32 v{C}, v{C + 2}")
                        e(f"v_permlane32_swap_b32 v{C + 1}, v{C + 3}")
                        e("s_nop 1")
                        e(f"v_permlane16_swap_b32 v{C}, v{C + 1}")
                        e(f"v_permlane16_swap_b32 v{C + 2}, v{C + 3}")
                        for i in range(4):
                            t = T + 2 * i
                            e(f"v_lshlrev_b32 v{t}, 16, v{C + i}")
                            e(f"v_and_b32 v{t + 1}, s{S_MASK}, v{C + i}")
                        e(f"v_pk_add_f32 v[{C}:{C + 1}], v[{T}:{T + 1}], v[{T + 2}:{T + 3}]")
                        e(f"v_pk_add_f32 v[{C + 2}:{C + 3}], v[{T + 4}:{T + 5}], v[{T + 6}:{T + 7}]")
                        e(f"v_max3_f32 v{MAX}, v{MAX}, v{T}, v{T + 2}")
                        e(f"v_pk_add_f32 v[{C}:{C + 1}], v[{C}:{C + 1}], v[{C + 2}:{C + 3}]")
                        e(f"v_max3_f32 v{MAX + 1}, v{MAX + 1}, v{T + 1}, v{T + 3}")
                        e(f"v_pk_add_f32 v[{SUM}:{SUM + 1}], v[{SUM}:{SUM + 1}], v[{C}:{C + 1}]")
                        e(f"v_max3_f32 v{MAX}, v{MAX}, v{T + 4}, v{T + 6}")
                        e(f"v_max3_f32 v{MAX + 1}, v{MAX + 1}, v{T + 5}, v{T + 7}")
                    continue
                for r in (a, b):
                    wait_for((r - D0) // 4)
                    if r == b:
                        self.stamp(3)
                    for i in range(4):
                        t = T + 2 * i
                        e(f"v_lshlrev_b32 v{t}, 16, v{r + i}")
                        e(f"v_and_b32 v{t + 1}, s{S_MASK}, v{r + i}")
                    for i in range(8):
                        e(f"v_max_f32 v{MAX + i}, v{MAX + i}, v{T + i}")
                    for i in range(4):
                        t, s = T + 2 * i, SUM + 2 * i
                        e(f"v_pk_add_f32 v[{s}:{s + 1}], v[{s}:{s + 1}], v[{t}:{t + 1}]")
                continue
            wait_for(2 * jj + 1)
            if jj == 0 and not o.xbar:
                self.stamp(2)
            if jj >= o.skipfrom:
                continue
            for i in range(4):
                t = T + 4 * i
                e(f"v_lshlrev_b32 v{t}, 16, v{a + i}")
                e(f"v_and_b32 v{t + 1}, s{S_MASK}, v{a + i}")
                e(f"v_lshlrev_b32 v{t + 2}, 16, v{b + i}")
                e(f"v_and_b32 v{t + 3}, s{S_MASK}, v{b + i}")
            for i in range(4):
                t = T + 4 * i
                s, m = SUM + 2 * i, MAX + 2 * i
                if jj == 0:
                    e(f"v_max_f32 v{m}, v{t}, v{t + 2}")
                    e(f"v_max_f32 v{m + 1}, v{t + 1}, v{t + 3}")
                    e(f"v_pk_add_f32 v[{s}:{s + 1}], v[{t}:{t + 1}], v[{t + 2}:{t + 3}]")
                else:
                    e(f"v_max3_f32 v{m}, v{m}, v{t}, v{t + 2}")
                    e(f"v_max3_f32 v{m + 1}, v{m + 1}, v{t + 1}, v{t + 3}")
                    e(f"v_pk_add_f32 v[{t}:{t + 1}], v[{t}:{t + 1}], v[{t + 2}:{t + 3}]")
            if jj:
                for i in range(4):
                    t = T + 4 * i
                    s = SUM + 2 * i
                    e(f"v_pk_add_f32 v[{s}:{s + 1}], v[{s}:{s + 1}], v[{t}:{t + 1}]")

        if not o.ttail:
            scatter54()
        e(f"s_cmp_ge_u32 s{S_WAVE}, 2")
        for i in range(2):
            e(f"v_add_f32_dpp v{SUM + i}, v{SUM + i}, v{SUM + i} row_ror:8 row_mask:0xf bank_mask:0x3")
        for i in range(2):
            e(f"v_max_f32_dpp v{SUM + i}, v{MAX + i}, v{MAX + i} row_ror:8 row_mask:0xf bank_mask:0xc")
        e(f"ds_write_b64 v2, v[{SUM}:{SUM + 1}] offset:{L_RED}")
        e("s_waitcnt lgkmcnt(0)")
        e("s_barrier")
        self.stamp(4)
        e("s_cbranch_scc1 L_nopub")

        e("s_mov_b32 exec_hi, 0xffff")
        for k in range(4):
            e(f"ds_read_b128 v[{4 + 4 * k}:{7 + 4 * k}], v3 offset:{L_RED + 1536 * k}")
        e(f"s_cmp_eq_u32 s{S_WAVE}, 0")
        e(f"s_cselect_b64 s[{S_W}:{S_W + 1}], s[36:37], s[38:39]")
        e("s_cbranch_scc0 L_pubmax")
        e("s_waitcnt lgkmcnt(2)")
        e("v_pk_add_f32 v[4:5], v[4:5], v[8:9]")
        e("v_pk_add_f32 v[6:7], v[6:7], v[10:11]")
        e("s_waitcnt lgkmcnt(0)")
        e("v_pk_add_f32 v[12:13], v[12:13], v[16:17]")
        e("v_pk_add_f32 v[14:15], v[14:15], v[18:19]")
        e("v_pk_add_f32 v[4:5], v[4:5], v[12:13]")
        e("v_pk_add_f32 v[6:7], v[6:7], v[14:15]")
        e("s_branch L_pub")
        e("L_pubmax:")
        e("s_waitcnt lgkmcnt(1)")
        for i in range(4):
            e(f"v_max3_f32 v{4 + i}, v{4 + i}, v{8 + i}, v{12 + i}")
        e("s_waitcnt lgkmcnt(0)")
        for i in range(4):
            e(f"v_max_f32 v{4 + i}, v{4 + i}, v{16 + i}")
        e("L_pub:")
        for i in range(4):
            e(f"v_and_or_b32 v{4 + i}, v{4 + i}, -16, s{S_TG[i]}")
        e(f"buffer_store_dwordx4 v[4:7], v3, s[{S_WS}:{S_WS + 3}], s{S_PO} offen{' sc1' if o.psc1 else ' nt' if o.pnt else ''}")
        e("s_mov_b64 exec, -1")
        e(f"s_movk_i32 s{S_W + 2}, 18432")
        e(f"s_mov_b32 s{S_W + 3}, 0x20000")
        e(f"s_mul_i32 s{S_T0}, s{S_WAVE}, 18432")
        e(f"s_addk_i32 s{S_T0}, {L_W1}")
        e(f"s_mov_b32 s{S_T1}, 0")
        e("v_lshlrev_b32 v2, 4, v1")
        e("L_wloop:")
        e(f"s_add_u32 m0, s{S_T0}, s{S_T1}")
        e("s_nop 0")
        for k in range(3):
            e(f"buffer_load_dwordx4 v2, s[{S_W}:{S_W + 3}], s{S_T1} offen offset:{k * 1024} lds")
        e(f"s_addk_i32 s{S_T1}, 3072")
        e(f"s_cmp_lt_u32 s{S_T1}, 18432")
        e("s_cbranch_scc1 L_wloop")
        e("L_nopub:")

        B2 = 28
        V_H0, V_H1, V_SW, V_SR, V_Q = 24, 25, 26, 27, 37
        SP0 = 136
        A1 = 144
        B1 = [4, 8, 12, 16, 136, 140]
        e("v_lshrrev_b32 v20, 4, v1                  ; q")
        e(f"s_cmp_lt_u32 s{S_WAVE}, 3")
        e("s_cbranch_scc1 L_spill")
        e(f"s_cmp_ge_u32 s{S_RID}, {NRED}")
        e("s_cbranch_scc1 L_barw")
        e(f"s_cmp_lg_u32 s{S_WAVE}, 3")
        e("s_cbranch_scc1 L_barw")

        def clean(lbl, d, a):
            e(f"s_cmp_lg_u32 s{S_WAVE}, 3")
            e(f"s_cbranch_scc1 {lbl}")
            if o.cw:
                e(f"v_mov_b32 v{d}, 0")
                e(f"v_lshlrev_b32 v{a}, {o.cw}, v1")
                e(f"s_mov_b64 exec, {(1 << (1536 >> o.cw)) - 1}")
                if o.cld:
                    e(f"buffer_atomic_or v{d}, v{a}, s[{S_WS}:{S_WS + 3}], s{S_PO} offen")
                else:
                    e(f"buffer_store_dword v{d}, v{a}, s[{S_WS}:{S_WS + 3}], s{S_PO} offen sc1")
                e("s_mov_b64 exec, -1")
                return
            for i in range(4):
                e(f"v_mov_b32 v{d + i}, 0")
            e(f"v_lshlrev_b32 v{a}, 4, v1")
            e("s_mov_b32 exec_hi, 0xffff")
            e(f"buffer_store_dwordx4 v[{d}:{d + 3}], v{a}, s[{S_WS}:{S_WS + 3}], s{S_PO} offen sc1")
            e(f"buffer_store_dwordx4 v[{d}:{d + 3}], v{a}, s[{S_WS}:{S_WS + 3}], s{S_PO} offen offset:768 sc1")
            e("s_mov_b64 exec, -1")

        e("v_lshrrev_b32 v2, 3, v1")
        e("v_mul_u32_u24 v2, 1536, v2")
        e("v_and_b32 v3, 7, v1")
        e(f"v_lshl_add_u32 v{V_Q}, v3, 4, v2")
        e(f"s_and_b32 s{S_T0}, s2, 7")
        e(f"s_mul_i32 s{S_V}, s{S_T0}, {32 * 1536}")
        e(f"s_lshl_b32 s{S_T1}, s{S_RID}, 7")
        e(f"s_add_u32 s{S_V}, s{S_V}, s{S_T1}")
        for k in range(1, 4):
            e(f"s_add_u32 s{S_V + k}, s{S_V}, {k * 8 * 1536}")
        e(f"s_lshl_b32 s{S_T0}, s{S_T0}, 8              ; group*256")
        e(f"s_lshr_b32 s{S_T1}, s{S_RID}, 2")
        e(f"s_lshl2_add_u32 s{S_T1}, s{S_T1}, s{S_RID}")
        e(f"s_lshl_b32 s{S_T1}, s{S_T1}, 11")
        e(f"s_add_u32 s{S_T1}, s{S_T1}, s{S_T0}")
        for k in range(o.qcopy // 2):
            e(f"s_add_u32 s{S_W + k}, s{S_T1}, {WS_Q + k * 49152}")
        e("v_and_b32 v2, 15, v1")
        e("v_lshlrev_b32 v3, 2, v2")
        e("v_bfe_u32 v2, v1, 4, 1")
        e("v_lshl_add_u32 v3, v2, 7, v3")
        e("v_lshrrev_b32 v2, 5, v1")
        e("v_lshl_add_u32 v3, v2, 13, v3             ; (l>>5)*8192 + ((l>>4)&1)*128 + (l&15)*4")
        e(f"s_lshl4_add_u32 s{S_T0}, s{S_TG[1]}, s{S_TG[0]}")
        e(f"s_xor_b32 s{S_CNT}, s{S_T0}, 0xff")
        e(f"s_lshl_b32 s{S_CNT}, s{S_CNT}, 8")
        e(f"s_or_b32 s{S_T0}, s{S_T0}, s{S_CNT}")
        e("v_and_b32 v2, 12, v3")
        e(f"v_bfe_u32 v23, s{S_T0}, v2, 4")
        e(f"s_mov_b32 s{S_CNT}, {NFB}")
        e(f"s_mov_b32 s{S_HOOK}, 0")
        e("L_rpoll:")
        for k in range(4):
            e(f"buffer_load_dwordx4 v[{4 + 4 * k}:{7 + 4 * k}], v{V_Q}, s[{S_WS}:{S_WS + 3}], s{S_V + k} offen sc1")
        e(f"s_sub_u32 s{S_CNT}, s{S_CNT}, 1")
        e("s_cbranch_scc1 L_rlong")
        for k in range(4):
            e(f"s_waitcnt vmcnt({3 - k})")
            r = 4 + 4 * k
            for i in range(4):
                e(f"v_xor_b32 v{r + i}, s{S_TG[i]}, v{r + i}" + ("            ; a matching tag leaves four zero bits" if k + i == 0 else ""))
            if k == 0:
                e(f"v_or3_b32 v21, v{r}, v{r + 1}, v{r + 2}")
                e(f"v_or_b32 v21, v21, v{r + 3}")
            elif k < 3:
                e(f"v_or3_b32 v21, v21, v{r}, v{r + 1}")
                e(f"v_or3_b32 v21, v21, v{r + 2}, v{r + 3}")
            else:
                e(f"v_or3_b32 v21, v21, v{r}, v{r + 1}")
                e(f"v_or_b32 v22, v{r + 2}, v{r + 3}")
        e("v_bitop3_b32 v21, v21, v22, 15 bitop3:0xa8          ; (a | b) & c")
        e("v_cmp_ne_u32 vcc, 0, v21")
        e("s_wqm_b64 exec, vcc                       ; 64-byte units still waiting poll again")
        e("s_cbranch_scc1 L_rpoll")
        e("L_rgot:")
        e("s_mov_b64 exec, -1")
        self.stamp(1, "r")
        e(f"s_cmp_ge_u32 s{S_RID}, 6")
        e("s_cbranch_scc1 L_rmax")
        for kind in (0, 1):
            op = "v_add_f32" if kind == 0 else "v_max_f32"
            if kind == 1:
                e("L_rmax:")
                for i in range(4):
                    e(f"v_max3_f32 v{4 + i}, v{4 + i}, v{8 + i}, v{12 + i}")
                for i in (0, 2, 1, 3):
                    e(f"v_max_f32 v{4 + i}, v{4 + i}, v{16 + i}")
            else:
                e("v_pk_add_f32 v[4:5], v[4:5], v[8:9]")
                e("v_pk_add_f32 v[6:7], v[6:7], v[10:11]")
                e("v_pk_add_f32 v[12:13], v[12:13], v[16:17]")
                e("v_pk_add_f32 v[14:15], v[14:15], v[18:19]")
                e("v_pk_add_f32 v[4:5], v[4:5], v[12:13]")
                e("v_pk_add_f32 v[6:7], v[6:7], v[14:15]")
                e("s_nop 0")
            e(f"{op}_dpp v4, v4, v4 row_ror:8 row_mask:0xf bank_mask:0x3")
            if kind == 0:
                e(f"{op}_dpp v5, v5, v5 row_ror:8 row_mask:0xf bank_mask:0x3")
                e(f"{op}_dpp v4, v6, v6 row_ror:8 row_mask:0xf bank_mask:0xc")
            else:
                e(f"{op}_dpp v4, v6, v6 row_ror:8 row_mask:0xf bank_mask:0xc")
                e(f"{op}_dpp v5, v5, v5 row_ror:8 row_mask:0xf bank_mask:0x3")
            e(f"{op}_dpp v5, v7, v7 row_ror:8 row_mask:0xf bank_mask:0xc")
            e("s_nop 1")
            e("v_permlane16_swap_b32 v4, v5")
            e(f"{op} v4, v4, v5")
            e("v_mov_b32 v5, v4")
            e("s_nop 1")
            e("v_permlane32_swap_b32 v4, v5")
            e(f"{op} v4, v4, v5                        ; lane 16a+8b+c: element 2b+a of piece c")
            if kind == 0:
                e("s_branch L_rpub")
        e("L_rpub:")
        e("v_and_or_b32 v4, v4, -16, v23")
        for k in range(o.qcopy // 2):
            e(f"buffer_store_dword v4, v3, s[{S_WS}:{S_WS + 3}], s{S_W + k} offen sc1")
            if k == 0:
                self.stamp(9)
        if o.clean == "r":
            for i in range(4):
                e(f"v_mov_b32 v{8 + i}, 0")
            for k in range(4):
                e(f"buffer_store_dwordx4 v[8:11], v{V_Q}, s[{S_WS}:{S_WS + 3}], s{S_V + k} offen sc1")
        e("s_barrier")
        e("s_branch L_afterw")

        if o.pad:
            e(f".fill {o.pad // 4}, 4, 0xbf800000")
        e("L_spill:")
        e(f"s_lshl_b32 s{S_T0}, s{S_WAVE}, 13")
        e(f"v_lshl_add_u32 v{V_AT}, v1, 4, s{S_T0}")
        for k in range(8):
            e(f"ds_write_b128 v{V_AT}, v[{SP0 + 4 * k}:{SP0 + 4 * k + 3}] offset:{L_SPILL + 1024 * k}")
        e("L_barw:")
        if o.tlb:
            e(f"s_cmp_lg_u32 s{S_WAVE}, 5")
            e("s_cbranch_scc1 L_notlb")
            e(f"v_lshlrev_b32 v2, {o.tlb}, v1")
            e(f"buffer_load_dword v4, v2, s[{S_OUT}:{S_OUT + 3}], 0 offen")
            e("L_notlb:")
        if o.lpf == 1:
            e(f"s_cmp_lg_u32 s{S_WAVE}, 4")
            e("s_cbranch_scc1 L_nolpf")
            e("s_getpc_b64 s[20:21]")
            e("v_lshlrev_b32 v2, 7, v1")
            e("v_min_u32 v2, L_end - L_nolpf, v2")
            e("global_load_dword v4, v2, s[20:21]")
            e("L_nolpf:")
        e("s_waitcnt vmcnt(0) lgkmcnt(0)")
        e("s_barrier")
        e("L_afterw:")
        e("v_bfe_u32 v3, v1, 2, 2")
        e("v_lshl_add_u32 v21, v20, 3, v3            ; row")
        e("v_and_b32 v22, 15, v21                    ; row of the half step (q&1)")
        e("v_and_b32 v3, 3, v1")
        e(f"s_lshl_b32 s{S_T2}, s{S_WAVE}, 5")
        e(f"v_lshl_add_u32 v23, v3, 3, s{S_T2}          ; column bytes")
        e("v_mov_b32 v3, 384")
        e("v_mad_u32_u24 v2, v21, v3, v23")
        e("v_mad_u32_u24 v22, v22, v3, v23")
        e(f"ds_read_b64_tr_b16 v[{B2}:{B2 + 1}], v2 offset:{L_W2}")
        e(f"ds_read_b64_tr_b16 v[{B2 + 2}:{B2 + 3}], v2 offset:{L_W2 + 4 * 384}")
        e(f"ds_read_b64_tr_b16 v[{B2 + 4}:{B2 + 5}], v22 offset:{L_W2 + 32 * 384}")
        e(f"ds_read_b64_tr_b16 v[{B2 + 6}:{B2 + 7}], v22 offset:{L_W2 + 36 * 384}")
        e("v_and_b32 v2, 1, v1")
        e("v_mul_u32_u24 v22, 96, v2")
        e(f"v_lshl_add_u32 v{V_H0}, v20, 4, v22")
        e("v_and_b32 v3, 1, v20")
        e(f"v_lshl_add_u32 v{V_H1}, v3, 4, v22")
        e(f"s_lshl_b32 s{S_T0}, s{S_WAVE}, 6")
        e(f"v_lshl_add_u32 v{V_SW}, v1, 2, s{S_T0}")
        if o.mul == "dot":
            e("v_mov_b32 v3, 0")
            e("s_mov_b64 exec, 0xffff")
            e(f"ds_write_b32 v{V_SW}, v3 offset:{L_S}")
            e("s_mov_b64 exec, -1")
            e(f"v_lshl_add_u32 v{V_SW}, v2, 1, v{V_SW}")
        e("v_and_b32 v3, 7, v1")
        e(f"s_lshl_b32 s{S_T0}, s{S_TY}, 8")
        e(f"v_lshl_add_u32 v{V_SR}, v3, 5, s{S_T0}")
        e("s_waitcnt lgkmcnt(0)")
        e("s_mov_b32 exec_lo, 0")
        for i in range(4):
            e(f"v_mov_b32 v{B2 + 4 + i}, 0")
        e("s_mov_b64 exec, -1")
        e(f"s_cmp_ge_u32 s{S_WAVE}, 3")
        e("s_cbranch_scc1 L_noa1")
        e("v_mov_b32 v3, 96")
        e("v_mad_u32_u24 v2, v21, v3, v23")
        for s in range(6):
            for h in range(2):
                r = A1 + 4 * s + 2 * h
                e(f"ds_read_b64_tr_b16 v[{r}:{r + 1}], v2 offset:{L_W1 + s * 3072 + h * 384}")
        e("L_noa1:")
        e(f"v_lshl_add_u32 v3, v20, 3, v22")
        e(f"v_add_u32 v3, s{S_T2}, v3")
        e("v_lshlrev_b32 v2, 2, v22")
        e("v_lshl_add_u32 v2, v20, 4, v2")
        e("v_and_b32 v8, 1, v1")
        e("v_lshlrev_b32 v8, 4, v8")
        e("v_lshl_add_u32 v8, v20, 2, v8")
        e("v_and_b32 v9, 2, v1")
        e("v_bfe_u32 v10, v1, 2, 1")
        e("v_add3_u32 v8, v8, v9, v10")
        e(f"v_add_lshl_u32 v23, v8, s{S_T2}, 1")
        e("v_lshrrev_b32 v8, 2, v1")
        e("v_lshlrev_b32 v8, 7, v8")
        e("v_and_b32 v9, 3, v1")
        e(f"v_lshl_add_u32 v{V_Q}, v9, 4, v8")
        e(f"s_and_b32 s{S_T0}, s{S_QC}, 4")
        if o.qcopy > 2:
            e(f"s_and_b32 s{S_CNT}, s{S_QC}, {o.qcopy // 2 - 1}")
            e(f"s_mul_i32 s{S_CNT}, s{S_CNT}, 24")
            e(f"s_add_u32 s{S_T0}, s{S_T0}, s{S_CNT}")
        e(f"s_lshr_b32 s{S_T1}, s{S_WAVE}, 2")
        e(f"s_lshl2_add_u32 s{S_T1}, s{S_T1}, s{S_WAVE}")
        e(f"s_add_u32 s{S_T1}, s{S_T1}, s{S_T0}")
        e(f"s_lshl_b32 s{S_T1}, s{S_T1}, 11")
        e(f"s_add_u32 s{S_T1}, s{S_T1}, {WS_Q}")
        if o.clean in ("q", "p", "a", "h", "g"):
            if o.cfull:
                for i in range(4):
                    e(f"v_mov_b32 v{16 + i}, s{S_TG[i]}")
                e("v_lshlrev_b32 v15, 4, v1")
            else:
                e(f"v_mov_b32 v19, s{S_TG[0]}")
            e(f"s_lshl_b32 s{S_V}, s{S_WAVE}, 7")
            e(f"s_add_u32 s{S_V}, s{S_V}, s{S_PO}")
        e(f"s_mov_b32 s{S_CNT}, {NFB}")
        e(f"s_mov_b32 s{S_HOOK}, 0")
        e(f"s_cmp_lt_u32 s{S_WAVE}, 6")
        e("s_cbranch_scc1 L_qpoll0")

        def clean1():
            if o.cfull:
                e("s_mov_b64 exec, 0xff")
                e(f"buffer_store_dwordx4 v[16:19], v15, s[{S_WS}:{S_WS + 3}], s{S_V} offen sc1")
            else:
                e("s_mov_b64 exec, 1")
                e(f"buffer_store_dword v19, off, s[{S_WS}:{S_WS + 3}], s{S_V} sc1")
            e("s_mov_b64 exec, -1")

        for kind in (1, 0):
            op = "v_add_f32" if kind == 0 else "v_max_f32"
            e(f"L_qpoll{kind}:")
            e(f"buffer_load_dwordx4 v[4:7], v{V_Q}, s[{S_WS}:{S_WS + 3}], s{S_T1} offen sc1")
            e(f"s_sub_u32 s{S_CNT}, s{S_CNT}, 1")
            e(f"s_cbranch_scc1 L_qlong{kind}")
            if o.qsleep:
                e(f"s_sleep {o.qsleep}")
            e("s_waitcnt vmcnt(0)")
            for i in range(4):
                e(f"v_xor_b32 v{4 + i}, s{S_TG[i]}, v{4 + i}")
            e("v_or3_b32 v21, v4, v5, v6")
            e("v_bitop3_b32 v21, v21, v7, 15 bitop3:0xa8")
            e("v_cmp_ne_u32 vcc, 0, v21")
            e("s_wqm_b64 exec, vcc")
            e(f"s_cbranch_scc1 L_qpoll{kind}")
            e(f"L_qgot{kind}:")
            if o.clean == "p":
                e("s_mov_b64 exec, 1")
                e(f"buffer_store_dword v19, off, s[{S_WS}:{S_WS + 3}], s{S_V} sc1")
            e("s_mov_b64 exec, -1")
            self.stamp(5)
            e("v_permlane32_swap_b32 v4, v6")
            e("v_permlane32_swap_b32 v5, v7")
            e(f"{op} v4, v4, v6")
            e(f"{op} v5, v5, v7")
            e("s_nop 1")
            e("v_permlane16_swap_b32 v4, v5")
            e(f"{op} v4, v4, v5")
            e(f"s_cmp_ge_u32 s{S_WAVE}, 3")
            e("s_nop 0")
            e(f"{op}_dpp v4, v4, v4 row_ror:8 row_mask:0xf bank_mask:0xf")
            if kind == 0:
                e("v_mul_f32 v4, 0x36800000, v4              ; 1/262144")
            e("v_cvt_pk_bf16_f32 v4, v4, v4")
            e(f"ds_write_b16 v23, v4 offset:{L_F}")
            if o.clean == "q" or (o.clean == "h" and kind == 1) or (o.clean == "g" and kind == 0):
                clean1()
            e("s_waitcnt lgkmcnt(0)")
            e("s_barrier")
            if kind == 1:
                if o.clean in ("a", "g"):
                    clean1()
                e("s_branch L_join")
            else:
                e("s_cbranch_scc1 " + ("L_clean0" if o.clean in ("a", "h") else "L_join"))

        e("L_mlp1:")
        for s in range(6):
            e(f"ds_read_b128 v[{B1[s]}:{B1[s] + 3}], v2 offset:{L_F + 64 * s}")
        if o.clean in ("a", "h"):
            clean1()
        for s in range(6):
            c = "0" if s == 0 else "v[20:23]"
            b = B1[s]
            e(f"s_waitcnt lgkmcnt({5 - s})")
            e(f"v_mfma_f32_16x16x32_bf16 v[20:23], v[{A1 + 4 * s}:{A1 + 4 * s + 3}], v[{b}:{b + 3}], {c}")
        e("s_nop 3")
        e("s_mov_b32 exec_lo, 0x00030003")
        e("s_mov_b32 exec_hi, 0x00030003")
        e("s_nop 1")
        for i in range(4):
            e(f"v_maximum3_f32 v{20 + i}, v{20 + i}, 0, 0")
        e("v_cvt_pk_bf16_f32 v20, v20, v21")
        e("v_cvt_pk_bf16_f32 v21, v22, v23")
        e(f"ds_write_b64 v3, v[20:21] offset:{L_H}")
        e("s_mov_b64 exec, -1")
        e("s_waitcnt lgkmcnt(0)")

        e("L_join:")
        e("s_barrier")
        self.stamp(6)
        e(f"ds_read_b128 v[4:7], v{V_H0} offset:{L_H}")
        e(f"ds_read_b128 v[8:11], v{V_H1} offset:{L_H + 64}")
        e("s_waitcnt lgkmcnt(1)")
        e(f"v_mfma_f32_16x16x32_bf16 v[12:15], v[4:7], v[{B2}:{B2 + 3}], 0")
        e("s_waitcnt lgkmcnt(0)")
        e(f"v_mfma_f32_16x16x32_bf16 v[12:15], v[8:11], v[{B2 + 4}:{B2 + 7}], v[12:15]")
        e("s_mov_b64 exec, 0xffff")
        e("s_nop 6")
        e("v_cvt_pk_bf16_f32 v12, 0, v12")
        e("v_cvt_pk_bf16_f32 v13, 0, v13")
        e("v_add_f32 v12, v12, v13")
        e("v_cvt_pk_bf16_f32 v12, 0, v12")
        e("v_mul_f32 v12, 0xbfb8aa3b, v12            ; -log2(e)")
        e("v_exp_f32 v12, v12")
        e("s_nop 0")
        e("v_add_f32 v12, 1.0, v12")
        e("v_rcp_f32 v12, v12")
        e("s_nop 0")
        if o.mul == "dot":
            e("v_cvt_pk_bf16_f32 v12, v12, v12")
            e(f"ds_write_b16 v{V_SW}, v12 offset:{L_S}")
        else:
            e("v_cvt_pk_bf16_f32 v12, 0, v12")
            e(f"ds_write_b32 v{V_SW}, v12 offset:{L_S}")
        e("s_mov_b64 exec, -1")
        e("s_waitcnt lgkmcnt(0)")
        e("s_barrier")
        e(f"ds_read_b128 v[4:7], v{V_SR} offset:{L_S}")
        e(f"ds_read_b128 v[8:11], v{V_SR} offset:{L_S + 16}")

        if o.stlim:
            e(f"s_cmp_lt_u32 s2, {o.stlim}")
            e(f"s_cselect_b32 s{S_OUT + 2}, s{S_OUT + 2}, 0")
        zorder = [int(v) for v in o.zorder.split(",")]
        assert sorted(zorder) == list(range(16))
        restored = False
        late = []

        def wbl2():
            wv, lim, pos = [int(v) for v in o.wb.split(",")]
            e(f"s_cmp_lt_u32 s{S_WAVE}, {wv}")
            e("s_cbranch_scc1 L_nowb")
            e(f"s_cmp_ge_u32 s2, {lim}")
            e("s_cbranch_scc1 L_nowb")
            if pos == 33:
                e("s_waitcnt vmcnt(0)")
            e("buffer_wbl2 sc1")
            e("L_nowb:")
        jorder = [int(v) for v in o.jorder.split(",")] if o.jorder else [2 * z + u for z in zorder for u in (0, 1)]
        assert sorted(jorder) == list(range(32))
        self.pz = None
        for n, j in enumerate(jorder):
            a = D0 + 4 * j
            t0 = 12 + 8 * (n & 1)
            if a >= SP0 and not restored:
                assert n > 1
                e("s_waitcnt lgkmcnt(0)")
                restored = True
            md = o.mul
            for i in range(4 if md in ("pk", "mul", "u", "um") else 0):
                t = t0 + 2 * i
                e(f"v_lshlrev_b32 v{t}, 16, v{a + i}")
                e(f"v_and_b32 v{t + 1}, s{S_MASK}, v{a + i}")
            if n == 0:
                e("s_waitcnt lgkmcnt(0)")
                self.stamp(7)
            if o.al:
                e(f".p2align {o.al & 15}")
                if o.al >> 4:
                    e("s_nop 0")
            for i in range(4):
                t = t0 + 2 * i
                if md in ("pk", "um"):
                    e(f"v_pk_mul_f32 v[{t}:{t + 1}], v[{t}:{t + 1}], v[{4 + 2 * i}:{5 + 2 * i}]")
                if md == "mul":
                    e(f"v_mul_f32 v{t}, v{t}, v{4 + 2 * i}")
                    e(f"v_mul_f32 v{t + 1}, v{t + 1}, v{5 + 2 * i}")
                if md == "dot":
                    e(f"v_dot2_f32_bf16 v{t}, v{a + i}, v{4 + 2 * i}, 0")
                    e(f"v_dot2_f32_bf16 v{t + 1}, v{a + i}, v{5 + 2 * i}, 0")
            for i in range(4):
                t = t0 + 2 * i
                if md in ("pk", "mul", "dot"):
                    e(f"v_cvt_pk_bf16_f32 v{a + i}, v{t}, v{t + 1}")
                if md == "c":
                    e(f"v_cvt_pk_bf16_f32 v{a + i}, v{a + i}, v{a + (i ^ 1)}")
            def st(j=j, a=a, n=n):
                self.mem(j, lambda va, so: e(f"buffer_store_dwordx4 v[{a}:{a + 3}], {va}, s[{S_OUT}:{S_OUT + 3}], {so} offen{'' if n >= 32 - o.nplain else stf}"))
            if n < o.burst:
                st()
            else:
                late.append(st)
            if n == 31:
                for f in late:
                    f()
            if n + 1 in o.sbar:
                e("s_barrier")
            if o.sthr and n >= o.sthr:
                e(f"s_waitcnt vmcnt({o.sthr - 1})")
            if o.wb and int(o.wb.split(",")[2]) == n:
                wbl2()
            if n & 1:
                self.trace("st", n >> 1)
            if n == 1:
                e(f"s_cmp_ge_u32 s{S_WAVE}, 3")
                e("s_cbranch_scc1 L_norestore")
                for k in range(8):
                    e(f"ds_read_b128 v[{SP0 + 4 * k}:{SP0 + 4 * k + 3}], v{V_AT} offset:{L_SPILL + 1024 * k}")
                e("L_norestore:")
                if o.clean == "st":
                    clean("L_noclean", 28, 32)
                    e("L_noclean:")
        if o.clean == "e":
            clean("L_noclean", 28, 32)
            e("L_noclean:")
        if o.wb and int(o.wb.split(",")[2]) >= 32:
            wbl2()
        if o.stamps:
            self.stamp(8)
            e("s_waitcnt vmcnt(0)")
            self.stamp(10)
            if o.idleclk:
                e(f"s_cmp_lg_u32 s{S_WAVE}, 11")
                e("s_cbranch_scc1 L_noidle")
                for lbl, dur, m, r in (("a", o.idleclk, 1, 3), ("b", 2000, 2, 6)):
                    e("s_memrealtime s[96:97]")
                    e("s_waitcnt lgkmcnt(0)")
                    e(f"L_idle{lbl}:")
                    e("s_sleep 4")
                    e("s_memrealtime s[98:99]")
                    e("s_waitcnt lgkmcnt(0)")
                    e("s_sub_u32 s98, s98, s96")
                    e(f"s_cmp_lt_u32 s98, {dur}")
                    e(f"s_cbranch_scc1 L_idle{lbl}")
                    e(f"s_memtime s[{S_STAMP + 2 * m}:{S_STAMP + 2 * m + 1}]")
                    e(f"s_memrealtime s[{S_STAMP + 2 * r}:{S_STAMP + 2 * r + 1}]")
                e("L_noidle:")
            e("s_getreg_b32 s94, hwreg(HW_REG_XCC_ID)")
            e("s_getreg_b32 s95, hwreg(HW_REG_HW_ID)")
            e("s_waitcnt lgkmcnt(0)")
            e("v_mov_b32 v2, 0")
            for i in range(11 if o.trace else 14):
                e(f"v_writelane_b32 v2, s{S_STAMP + 2 * i}, {i}")
            e("v_writelane_b32 v2, s94, 14")
            e("v_writelane_b32 v2, s95, 15")
            e(f"s_mul_i32 s{S_T0}, s2, 12")
            e(f"s_add_u32 s{S_T0}, s{S_T0}, s{S_WAVE}")
            e(f"s_lshl_b32 s{S_T0}, s{S_T0}, 6")
            e(f"s_add_u32 s{S_T0}, s{S_T0}, {WS_STAMP}")
            e("v_mbcnt_lo_u32_b32 v3, -1, 0")
            e("v_lshlrev_b32 v3, 2, v3")
            e("s_mov_b64 exec, 0xffff")
            e(f"buffer_store_dword v2, v3, s[{S_WS}:{S_WS + 3}], s{S_T0} offen sc1")
            if o.trace:
                e("s_mov_b32 s91, s92")
                for i in range(16):
                    e(f"v_writelane_b32 v2, s{76 + i}, {i}")
                e(f"s_add_u32 s{S_T0}, s{S_T0}, {1 << 19}")
                e(f"buffer_store_dword v2, v3, s[{S_WS}:{S_WS + 3}], s{S_T0} offen sc1")
        if o.dbgptr:
            e("s_cmp_lg_u32 s2, 0")
            e("s_cbranch_scc1 L_nodp")
            e("s_mov_b64 exec, -1")
            e("v_mov_b32 v2, 0")
            for i, r in enumerate((4, 5, 8, 9, 12, 13, 16, 17, 0, 1)):
                e(f"v_writelane_b32 v2, s{r}, {i}")
            e("v_mbcnt_lo_u32_b32 v3, -1, 0")
            e("v_lshlrev_b32 v3, 2, v3")
            e("s_mov_b64 exec, 0x3ff")
            e(f"buffer_store_dword v2, v3, s[{S_DBG}:{S_DBG + 3}], 0 offen offset:8")
            e("L_nodp:")
        if o.probe:
            idx, K = [int(v) for v in o.probe.split(",")]
            if idx == -6:
                pass
            elif idx == -5:
                e("s_cmp_ge_u32 s2, 8")
                e("s_cbranch_scc1 L_end")
            elif idx == -2:
                e("s_getreg_b32 s94, hwreg(HW_REG_XCC_ID)")
                e("s_xor_b32 s94, s94, s2")
                e("s_and_b32 s94, s94, 7")
                e("s_cbranch_scc0 L_end")
            elif idx == -3:
                e("s_cmp_lg_u32 s2, 0")
                e("s_cbranch_scc1 L_end")
            else:
                e(f"s_cmp_lg_u32 s2, {o.pwg}")
                e("s_cbranch_scc1 L_end")
            e(f"s_cmp_lg_u32 s{S_WAVE}, {o.pwave}")
            e("s_cbranch_scc1 L_end")
            if idx == -6:
                e(f"s_sub_u32 s96, s{S_STAMP + 20}, s{S_STAMP}")
                e(f"s_mul_i32 s96, s96, {K}")
            elif idx == -5:
                e("s_mov_b32 s96, 0")
                e("L_sk:")
                e("s_sleep 100")
                e("s_add_u32 s96, s96, 1")
                e("s_cmp_lt_u32 s96, 4")
                e("s_cbranch_scc1 L_sk")
                e(f"s_mov_b32 s94, {WS_STAMP}")
                e(f"buffer_load_dword v4, off, s[{S_WS}:{S_WS + 3}], s94 sc1")
                e("s_waitcnt vmcnt(0)")
                e("v_readfirstlane_b32 s94, v4")
                e(f"s_sub_u32 s95, s{S_STAMP}, s94")
                e(f"s_mul_i32 s95, s95, {K - 1}")
                e("s_add_u32 s96, s95, 8000")
            elif idx == -4:
                c0, c1, r0, r1 = ((11, 12, 0, 7), (12, 13, 7, 10))[K]
                e(f"s_sub_u32 s94, s{S_STAMP + 2 * c1}, s{S_STAMP + 2 * c0}")
                e(f"s_sub_u32 s95, s{S_STAMP + 2 * r1}, s{S_STAMP + 2 * r0}")
                e("v_cvt_f32_u32 v4, s94")
                e("v_cvt_f32_u32 v5, s95")
                e("v_rcp_f32 v5, v5")
                e("s_nop 1")
                e("v_mul_f32 v4, v4, v5")
                e("v_mul_f32 v4, 0x44fa0000, v4")
                e("v_cvt_u32_f32 v4, v4")
                e("s_nop 1")
                e("v_readfirstlane_b32 s96, v4")
                e("s_sub_u32 s96, s96, 31000")
            elif idx <= -10:
                e(f"s_bfe_u32 s94, s{-idx - 10}, {(7 << 16)} + {K}")
                e("s_mul_i32 s96, s94, 200")
                e("s_add_u32 s96, s96, 5000")
            elif idx == -3:
                e("s_getreg_b32 s94, hwreg(HW_REG_XCC_ID)")
                e("s_and_b32 s94, s94, 7")
                e(f"s_mul_i32 s96, s94, {K}")
                e("s_add_u32 s96, s96, 5000")
            elif idx < 0:
                e(f"s_mov_b32 s96, {K}")
            else:
                e(f"s_sub_u32 s96, s{S_STAMP + 2 * idx}, s{S_STAMP + 2 * o.pref}")
                e(f"s_mul_i32 s96, s96, {K}")
                if o.pref:
                    e("s_add_u32 s96, s96, 5000")
            e("s_min_u32 s96, s96, 200000")
            e("L_probe:")
            e("s_memrealtime s[98:99]")
            e("s_waitcnt lgkmcnt(0)")
            e(f"s_sub_u32 s98, s98, s{S_STAMP}")
            e("s_cmp_lt_u32 s98, s96")
            e("s_cbranch_scc1 L_probe")
        e("L_end:")
        e("s_endpgm")

        e("@@ROLE")
        e(".p2align 7")
        e("L_role:")
        e("s_load_dwordx4 s[44:47], s[0:1], 32")
        e(f"s_lshr_b32 s{S_V + 1}, s2, 3")
        e(f"s_and_b32 s{S_T1}, s2, 1")
        e(f"s_lshl1_add_u32 s{S_T1}, s{S_T1}, 1")
        e(f"s_mul_i32 s{S_T2}, s2, 0x104100")
        e(f"s_cmp_eq_u32 s2, {NVOTE_WG}")
        e("s_waitcnt lgkmcnt(0)")
        e("s_cbranch_scc1 L_tag")
        e(f"s_sub_u32 s{S_T0}, s{S_OUT}, s{S_X}")
        e(f"s_addk_i32 s{S_T0}, 2048")
        e(f"s_bitcmp1_b32 s{S_T0}, 12")
        e(f"s_cselect_b32 s{S_V}, {o.quorum}, {o.quorum4}")
        e(f"s_cselect_b32 s{S_V + 2}, s{S_V + 1}, 1")
        e(f"s_cmp_eq_u32 s{S_V + 2}, 2")
        e(f"s_cselect_b32 s{S_V + 1}, s{S_T1}, s{S_V + 1}")
        e(f"s_bitcmp1_b32 s{S_V + 1}, 0")
        e(f"s_cselect_b64 s[{S_W}:{S_W + 1}], s[8:9], s[4:5]")
        e(f"s_lshr_b32 s{S_T1}, s{S_V + 1}, 1")
        e(f"s_lshl_b32 s{S_T1}, 0x2000000, s{S_T1}")
        e(f"s_add_u32 s{S_T2}, s{S_T2}, s{S_T1}")
        e(f"s_lshr_b32 s{S_T0}, s{S_OUT}, 7")
        e(f"s_mul_i32 s{S_T0}, s{S_T0}, 21")
        e(f"s_and_b32 s{S_T0}, s{S_T0}, 63")
        e(f"s_mulk_i32 s{S_T0}, 384")
        e(f"s_add_u32 s{S_T0}, s{S_T0}, s{S_T2}")
        e(f"s_cmp_lg_u32 s{S_V + 2}, 0")
        e(f"s_cselect_b32 s{S_V + 3}, s{S_OUT}, 0")
        e("s_cbranch_scc1 L_notws")
        e(f"s_mov_b64 s[{S_W}:{S_W + 1}], s[46:47]")
        e(f"s_and_b32 s{S_T0}, s{S_T2}, 0xfffff")
        e(f"s_add_u32 s{S_T0}, s{S_T0}, {WS_PROBE}")
        e("L_notws:")
        e(f"s_add_u32 s{S_T1}, s{S_T0}, 8192")
        self.stamp(1, True)
        e(f"s_load_dword s42, s[{S_W}:{S_W + 1}], s{S_T0} glc")
        e(f"s_load_dword s43, s[{S_W}:{S_W + 1}], s{S_T1} glc")
        e(f"s_mov_b32 s{S_CNT}, {-(NRACE // 2)}")
        if o.dpf:
            e(f"s_load_dword s23, s[44:45], 192 glc")
        for k in range(NRACE):
            e("s_waitcnt lgkmcnt(0)")
            if k < 2:
                self.stamp(2 + k, True)
                if o.vdiag:
                    e("s_waitcnt lgkmcnt(0)")
            first, second = (S_T0, S_T1) if k % 2 == 0 else (S_T1, S_T0)
            e(f"s_load_dword s42, s[{S_W}:{S_W + 1}], s{first} glc")
            e(f"s_load_dword s43, s[{S_W}:{S_W + 1}], s{second} glc")
            e("s_waitcnt lgkmcnt(1)")
            e("s_nop 7")
            e(f"s_getreg_b32 s{S_T2}, hwreg(HW_REG_IB_STS, 8, 4)   ; 1: the second answer is still out")
            if k % 2 == 0:
                e(f"s_xor_b32 s{S_T2}, s{S_T2}, 1")
            e(f"s_add_u32 s{S_CNT}, s{S_CNT}, s{S_T2}")
        assert NRACE % 2 == 0 and max(o.quorum, o.quorum4) * NRACE // 2 < 32 and max(o.quorum, o.quorum4) <= NVOTE_WG
        e(f"s_sub_u32 s{S_T2}, 0, s{S_CNT}")
        e(f"s_add_u32 s{S_T0}, s{S_T0}, s{S_V + 3}")
        e(f"s_lshr_b32 s{S_T0}, s{S_T0}, 19")
        e(f"s_getreg_b32 s{S_T1}, hwreg(HW_REG_XCC_ID, 0, 3)")
        e(f"s_xor_b32 s{S_T0}, s{S_T0}, s{S_T1}")
        e(f"s_bitcmp1_b32 s{S_T0}, 2")
        e(f"s_cselect_b32 s{S_CNT}, s{S_T2}, s{S_CNT}")
        e(f"s_mul_i32 s{S_T0}, s{S_V + 1}, 6")
        e(f"s_add_u32 s{S_T0}, s{S_T0}, 7")
        e(f"s_lshl_b32 s{S_CNT}, s{S_CNT}, s{S_T0}")
        e(f"s_or_b32 s{S_CNT}, s{S_CNT}, 1")
        e(f"s_mov_b32 s{S_T1}, s{S_CNT}")
        self.stamp(6, True)
        e(f"s_atomic_add s{S_T1}, s[44:45], {DBG_TAL} glc")
        e(f"s_add_u32 s{S_CNT}, s{S_CNT}, {sum(31 << (7 + 6 * t) for t in range(4))}")
        e("s_waitcnt lgkmcnt(0)")
        e(f"s_add_u32 s{S_T1}, s{S_T1}, s{S_CNT}")
        self.stamp(13)
        e(f"s_and_b32 s{S_T0}, s{S_T1}, 0x7f")
        e(f"s_cmp_lg_u32 s{S_T0}, s{S_V}")
        e("s_cbranch_scc1 L_stream")
        e(f"s_and_b32 s{S_T1}, s{S_T1}, {sum(32 << (7 + 6 * t) for t in range(4))}")
        e(f"s_bitset1_b32 s{S_T1}, 9")
        e("L_publish:")
        e(f"s_atomic_add s{S_T1}, s[44:45], {DBG_RES}")
        e("s_waitcnt lgkmcnt(0)")
        e("s_branch L_stream")

        e("L_tag:")
        e(f"s_mov_b32 s{S_T1}, 1")
        e("s_waitcnt lgkmcnt(0)")
        e(f"s_atomic_add s{S_T1}, s[46:47], {WS_E} glc")
        e("s_waitcnt lgkmcnt(0)")
        e(f"s_add_u32 s{S_T1}, s{S_T1}, 1")
        e(f"s_and_b32 s{S_T1}, s{S_T1}, 0xff")
        e(f"s_bitset1_b32 s{S_T1}, 8")
        assert NVOTE_WG % 8 == 0
        e(f"s_getreg_b32 s{S_T0}, hwreg(HW_REG_XCC_ID, 0, 3)")
        e(f"s_lshl_b32 s{S_T0}, s{S_T0}, 13")
        e(f"s_or_b32 s{S_T1}, s{S_T1}, s{S_T0}")
        self.stamp(13)
        e("s_branch L_publish")

        e("@@RARE")
        if o.clean in ("a", "h"):
            e("L_clean0:")
            clean1()
            e("s_branch L_join")
        for nm in ("r", "q0", "q1"):
            k = nm[1:]
            e(f"L_{nm[0]}long{k}:")
            e("s_waitcnt vmcnt(0)")
            e(f"s_cmp_lg_u32 s{S_HOOK}, 0")
            e(f"s_cbranch_scc1 L_{nm[0]}got{k}")
            e(f"s_call_b64 s[{S_RET}:{S_RET + 1}], L_flush")
            e(f"s_branch L_{nm[0]}poll{k}")
        e("L_flush:")
        e(f"s_mov_b32 s{S_CNT}, {SPIN}")
        e(f"s_mov_b32 s{S_HOOK}, {SPIN}")
        e("s_mov_b32 exec_lo, -1")
        e("s_mov_b32 exec_hi, 0xffff")
        e("v_lshlrev_b32 v13, 4, v1")
        e("L_floop:")
        e(f"buffer_load_dwordx4 v[8:11], v13, s[{S_WS}:{S_WS + 3}], s{S_PO} offen sc1")
        e(f"buffer_load_dwordx4 v[4:7], v13, s[{S_WS}:{S_WS + 3}], s{S_PO} offen offset:768 sc1")
        e(f"s_sub_u32 s{S_HOOK}, s{S_HOOK}, 1")
        e("s_waitcnt vmcnt(0)")
        e(f"v_xor_b32 v12, s{S_TG[0]}, v8")
        for r in (9, 10, 11, 4, 5, 6, 7):
            e(f"v_bitop3_b32 v12, v12, v{r}, s{S_TG[r & 3]} bitop3:0xf6")
        e("v_and_b32 v12, 15, v12")
        e("v_cmp_ne_u32 vcc, 0, v12")
        e("s_cbranch_scc1 L_fdone")
        e("s_cbranch_vccnz L_floop")
        e("L_fdone:")
        e(f"buffer_store_dwordx4 v[8:11], v13, s[{S_WS}:{S_WS + 3}], s{S_PO} offen sc1")
        e(f"buffer_store_dwordx4 v[4:7], v13, s[{S_WS}:{S_WS + 3}], s{S_PO} offen offset:768 sc1")
        e("s_waitcnt vmcnt(0)")
        e("s_mov_b64 exec, -1")
        e(f"s_mov_b32 s{S_HOOK}, -1")
        e(f"s_setpc_b64 s[{S_RET}:{S_RET + 1}]")

        e("@@DPOLL")
        e("L_dpoll:")
        e(f"s_mov_b32 s{S_CNT}, {SPIN}")
        e(f"v_mov_b32 v{V_AT}, 0")
        e("s_mov_b64 exec, 1")
        e("L_dloop:")
        e(f"buffer_load_dword v{V_AT}, off, s[{S_DBG}:{S_DBG + 3}], 0 offset:{DBG_RES} sc1")
        e(f"s_sleep {o.dsleep}")
        e("s_waitcnt vmcnt(24)")
        e(f"v_readfirstlane_b32 s{S_T2}, v{V_AT}          ; whatever poll has landed last")
        e(f"s_sub_u32 s{S_CNT}, s{S_CNT}, 1")
        e("s_cbranch_scc1 L_dgot")
        e(f"s_andn2_b32 s{S_OFF}, {RES_OK}, s{S_T2}")
        e("s_cbranch_scc1 L_dloop")
        e("L_dgot:")
        e("s_mov_b64 exec, -1")
        e("s_branch L_decided")

        e("@@END")
        L = self.lines
        ix = {k: L.index("    @@" + k) for k in ("ROLE", "RARE", "DPOLL", "END")}
        role, rare, dpoll = L[ix["ROLE"] + 1:ix["RARE"]], L[ix["RARE"] + 1:ix["DPOLL"]], L[ix["DPOLL"] + 1:ix["END"]]
        main = L[:ix["ROLE"]]
        p1, p2 = main.index("    @@HERE1"), main.index("    @@HERE2")
        if o.lay:
            self.lines = (main[:p1] + ["    s_branch L_skip1"] + role + dpoll + ["L_skip1:"] + main[p1 + 1:p2]
                          + ["    s_branch L_tail"] + rare + ["    .p2align 12", "L_tail:"] + main[p2 + 1:])
        else:
            self.lines = main[:p1] + main[p1 + 1:p2] + main[p2 + 1:] + role + rare + dpoll

    def text(self):
        out = HEADER
        out += f"; @launch grid=({NWG},1,1) block=(768,1,1) lds={L_TOTAL}\n"
        out += '.amdgcn_target "amdgcn-amd-amdhsa--gfx950"\n.text\n'
        out += f".globl {KNAME}\n.p2align 8\n.type {KNAME},@function\n{KNAME}:\n"
        out += "\n".join(self.lines) + "\n"
        out += f""".section .rodata,"a"
.p2align 6
.amdhsa_kernel {KNAME}
  .amdhsa_next_free_vgpr 168
  .amdhsa_next_free_sgpr {100 if self.o.stamps else 56}
  .amdhsa_accum_offset 168
  .amdhsa_group_segment_fixed_size 0
  .amdhsa_kernarg_size 48
  .amdhsa_user_sgpr_count 2
  .amdhsa_user_sgpr_kernarg_segment_ptr 1
  .amdhsa_system_sgpr_workgroup_id_x 1
  .amdhsa_float_denorm_mode_32 3
.end_amdhsa_kernel
"""
        return out


def main():
    p = argparse.ArgumentParser()
    p.add_argument("-o", default="standalone__channel_attn_cbam__vision.s")
    p.add_argument("--ldflags", default="nt")
    p.add_argument("--stflags", default="sc1")
    p.add_argument("--p1flags", default="sc1")
    p.add_argument("--stamps", action="store_true")
    p.add_argument("--probe", default="")
    p.add_argument("--depth", type=int, default=10)
    p.add_argument("--nrace", type=int, default=2)
    p.add_argument("--dsleep", type=int, default=8)
    p.add_argument("--trace", default="")
    p.add_argument("--nodec", action="store_true")
    p.add_argument("--vdiag", action="store_true")
    p.add_argument("--dbgptr", action="store_true")
    p.add_argument("--opp", default="5,9", type=lambda v: [int(x) for x in v.split(",")])
    p.add_argument("--quorum", type=int, default=16)
    p.add_argument("--quorum4", type=int, default=24)
    p.add_argument("--nvote", type=int, default=32)
    p.add_argument("--nagn", type=int, default=6)
    p.add_argument("--stlim", type=int, default=0)
    p.add_argument("--psc1", action="store_true")
    p.add_argument("--pnt", action="store_true")
    p.add_argument("--jorder", default="12,0,13,1,14,2,15,3,16,4,17,5,18,6,19,7,20,8,21,9,22,10,23,11,24,25,26,27,28,29,30,31")
    p.add_argument("--urot", type=int, default=0)
    p.add_argument("--lmap", type=int, default=0)
    p.add_argument("--qrot", type=int, default=0)
    p.add_argument("--umap", type=int, default=0)
    p.add_argument("--cfull", type=int, default=1)
    p.add_argument("--wtouch", type=int, default=1)
    p.add_argument("--lay", type=int, default=1)
    p.add_argument("--skipfrom", type=int, default=99)
    p.add_argument("--ttail", type=int, default=0)
    p.add_argument("--tlb", type=int, default=0)
    p.add_argument("--rot", type=int, default=0)
    p.add_argument("--pad", type=int, default=0)
    p.add_argument("--lpf", type=int, default=0)
    p.add_argument("--al", type=int, default=0)
    p.add_argument("--cap", type=int, default=0)
    p.add_argument("--capfrom", type=int, default=12)
    p.add_argument("--capto", type=int, default=32)
    p.add_argument("--skewa", type=int, default=1)
    p.add_argument("--skewd", type=int, default=1)
    p.add_argument("--skewc", type=int, default=0)
    p.add_argument("--skew", type=int, default=0, help="timing diagnostic only")
    p.add_argument("--warmfl", default="")
    p.add_argument("--sdiag", action="store_true")
    p.add_argument("--rpf", type=int, default=0)
    p.add_argument("--dpf", type=int, default=0)
    p.add_argument("--pwg", type=int, default=0)
    p.add_argument("--pwave", type=int, default=0)
    p.add_argument("--pref", type=int, default=0)
    p.add_argument("--qshift", type=int, default=32)
    p.add_argument("--rolepos", type=int, default=-1)
    p.add_argument("--prebar", type=int, default=1)
    p.add_argument("--qmap", type=int, default=0)
    p.add_argument("--agnu", type=int, default=4)
    p.add_argument("--warmst", type=int, default=0)
    p.add_argument("--cw", type=int, default=0)
    p.add_argument("--cld", action="store_true")
    p.add_argument("--qflip", type=int, default=0)
    p.add_argument("--qcopy", type=int, default=4)
    p.add_argument("--mul", default="dot")
    p.add_argument("--burst", type=int, default=32)
    p.add_argument("--idleclk", type=int, default=0)
    p.add_argument("--clk", action="store_true")
    p.add_argument("--sthr", type=int, default=0)
    p.add_argument("--sbar", default=[24], type=lambda v: [int(x) for x in v.split(",")])
    p.add_argument("--piece", type=int, default=128)
    p.add_argument("--xbar", default=[24], type=lambda v: [int(x) for x in v.split(",")])
    p.add_argument("--cpf", type=int, default=0)
    p.add_argument("--cpfpos", type=int, default=0)
    p.add_argument("--wpace", type=int, default=40)
    p.add_argument("--clean", default="g")
    p.add_argument("--warm", type=int, default=30)
    p.add_argument("--warmwave", type=int, default=4)
    p.add_argument("--qsleep", type=int, default=0)
    p.add_argument("--red0", type=int, default=8)
    p.add_argument("--redstep", type=int, default=2)
    p.add_argument("--off", default="", help="diagnostics: v = no votes, c = no clears, r = result not read")
    p.add_argument("--spans", default="")
    p.add_argument("--split", action="store_true")
    p.add_argument("--pfback", type=int, default=0)
    p.add_argument("--nplain", type=int, default=0)
    p.add_argument("--wb", default="", help="minwave,wglimit,pos")
    p.add_argument("--thr", type=int, default=2)
    p.add_argument("--thrfrom", type=int, default=12)
    p.add_argument("--thrto", type=int, default=24)
    p.add_argument("--thrmask", default="0x55")
    p.add_argument("--zorder", default="8,0,9,1,10,2,11,3,12,4,13,5,14,6,15,7")
    o = p.parse_args()
    global NAGN, SPANS, NVOTE_WG
    NVOTE_WG = o.nvote
    NAGN = o.nagn
    if NAGN == 6:
        SPANS = [(0, 0), (0, 1), (1, 0), (1, 1), (2, 0), (2, 1),
                 (3, 0), (3, 1), (4, 0), (4, 1), (5, 0), (5, 1), (6, 0), (6, 1), (7, 0), (7, 1)]
        if o.zorder == p.get_default("zorder"):
            o.zorder = "6,0,7,1,8,2,9,3,10,4,11,5,12,13,14,15"
    if o.spans:
        SPANS = [(int(v[0]), int(v[1])) for v in o.spans.split(",")]
        assert sorted(SPANS) == [(a, b) for a in range(8) for b in range(2)]
    g = G(o)
    g.build()
    open(o.o, "w").write(g.text())


if __name__ == "__main__":
    main()
```

```python
import sys
src,dst=sys.argv[1:3]
s=open(src).read().replace("; @launch grid","; @launch kernel=standalone__channel_attn_cbam__vision_kernel grid")
L=[]; e=L.append
e("L_end:")
e("    s_cmp_lg_u32 s28, 11"); e("    s_cbranch_scc1 L_end2")
e("    s_cmp_lg_u32 s2, 40"); e("    s_cbranch_scc1 L_end2")
e("    s_sub_u32 s34, s8, s4"); e("    s_addk_i32 s34, 2048"); e("    s_bitcmp1_b32 s34, 12"); e("    s_cbranch_scc0 L_end2")
e("    s_waitcnt vmcnt(0)")
e("    s_sleep 127"); e("    s_sleep 127")
e("    s_load_dword s52, s[16:17], 0 glc"); e("    s_load_dword s53, s[16:17], 132 glc"); e("    s_load_dword s54, s[16:17], 140 glc")
e("    s_mov_b32 s55, 0")
for t,bit in ((1,18),(2,30)):
    e(f"    s_mov_b32 s34, {t*(32<<20)+12288+(5<<20)+768}")
    e("    s_add_u32 s35, s34, 8192")
    e("    s_load_dword s42, s[8:9], s34 glc"); e("    s_load_dword s43, s[8:9], s35 glc")
    e("    s_mov_b32 s33, 0")
    for k in range(12):
        a,b=("s34","s35") if k%2==0 else ("s35","s34")
        e("    s_waitcnt lgkmcnt(0)")
        e(f"    s_load_dword s42, s[8:9], {a} glc"); e(f"    s_load_dword s43, s[8:9], {b} glc")
        e("    s_waitcnt lgkmcnt(1)"); e("    s_nop 7")
        e("    s_getreg_b32 s51, hwreg(HW_REG_IB_STS, 8, 4)")
        if k%2==0: e("    s_xor_b32 s51, s51, 1")
        e("    s_add_u32 s33, s33, s51")
    e("    s_waitcnt lgkmcnt(0)")
    e("    s_cmp_gt_u32 s33, 6"); e("    s_cselect_b32 s33, 4, 0")
    e("    s_add_u32 s34, s34, s8"); e("    s_lshr_b32 s34, s34, 19")
    e("    s_getreg_b32 s35, hwreg(HW_REG_XCC_ID, 0, 3)")
    e("    s_xor_b32 s34, s34, s35"); e("    s_xor_b32 s34, s34, s33")
    e(f"    s_lshr_b32 s35, s52, {bit-2}"); e("    s_xor_b32 s34, s34, s35")
    e("    s_bfe_u32 s34, s34, 0x10002"); e(f"    s_lshl_b32 s34, s34, {t-1}"); e("    s_or_b32 s55, s55, s34")
e("    s_cmp_eq_u32 s55, 0"); e("    s_cbranch_scc1 L_end2")
e("    s_ashr_i32 s34, s53, 8"); e("    s_ashr_i32 s35, s54, 8"); e("    s_add_u32 s34, s34, 50"); e("    s_add_u32 s35, s35, 50")
e("    s_mulk_i32 s34, 1000"); e("    s_add_u32 s34, s34, s35"); e("    s_mul_i32 s55, s55, 1000000"); e("    s_add_u32 s34, s34, s55"); e("    s_lshl_b32 s34, s34, 1")
e("    v_mov_b32 v4, 0x42c8"); e("    s_mov_b64 exec, 1")
e("    buffer_store_short v4, off, s[8:11], s34 sc1")
e("L_end2:"); e("L_end9:")
open(dst,'w').write(s.replace("L_end:\n","\n".join(L)+"\n").replace("s_cbranch_scc1 L_end\n","s_cbranch_scc1 L_end9\n",1))
```

```python
import sys
src,dst,n=sys.argv[1],sys.argv[2],int(sys.argv[3])
s=open(src).read().replace("; @launch grid","; @launch kernel=standalone__channel_attn_cbam__vision_kernel grid")
s=s.replace("    s_barrier\n    s_load_dword s51, s[16:17], 0\n","    s_mov_b32 s55, 0\n    s_barrier\n    s_load_dword s51, s[16:17], 0\n",1)
old="    s_andn2_b32 s31, s44, s51\n    s_cbranch_scc1 L_dloop\n"
assert old in s
s=s.replace(old,f"    s_andn2_b32 s31, s44, s51\n    s_cmp_eq_u32 s33, {400000-n}\n    s_cselect_b32 s55, s31, s55\n    s_cmp_lg_u32 s31, 0\n    s_cbranch_scc1 L_dloop\n")
L=[]; e=lambda x:L.append("    "+x if not x.endswith(":") else x)
e("L_end:")
e("s_cmp_lg_u32 s28, 11"); e("s_cbranch_scc1 L_end2")
e("s_cmp_eq_u32 s55, 0"); e("s_cbranch_scc1 L_end2")
e("s_sub_u32 s34, s8, s4"); e("s_addk_i32 s34, 2048"); e("s_bitcmp1_b32 s34, 12"); e("s_cbranch_scc0 L_end2")
e("s_lshl4_add_u32 s34, s47, s41"); e("s_cmp_eq_u32 s34, 1"); e("s_cbranch_scc1 L_end2")
e("s_getreg_b32 s35, hwreg(HW_REG_XCC_ID, 0, 3)"); e("s_xor_b32 s35, s35, s2"); e("s_and_b32 s35, s35, 7"); e("s_cbranch_scc1 L_end2")
e("s_mov_b32 s34, 10")
for bit,w in ((8,8),(29,4),(17,2),(11,1)):
    e(f"s_bitcmp1_b32 s55, {bit}"); e(f"s_cselect_b32 s35, {w}, 0"); e("s_add_u32 s34, s34, s35")
e("s_mulk_i32 s34, 1000"); e("v_cvt_f32_u32 v4, s34"); e("s_nop 1"); e("v_cvt_pk_bf16_f32 v4, v4, v4")
e("s_waitcnt vmcnt(0)"); e("s_mov_b64 exec, 1")
e("buffer_store_short v4, v0, s[8:11], s40 offen sc1")
e("L_end2:"); e("L_end9:")
open(dst,'w').write(s.replace("L_end:\n","\n".join(L)+"\n").replace("s_cbranch_scc1 L_end\n","s_cbranch_scc1 L_end9\n",1))
```

```python
import argparse

KNAME = "standalone__channel_attn_cbam__vision_kernel"

HEADER = """; Kernarg layout for this problem (48 bytes, ptrs only, base s[0:1]):
;   offset   0: d_in[0] x  shape=(1, 512, 512, 192) dtype=bfloat16 strides=(100663296, 196608, 384, 2) contiguous=True
;   offset   8: d_in[1] w1  shape=(192, 48) dtype=bfloat16 strides=(96, 2) contiguous=True
;   offset  16: d_in[2] w2  shape=(48, 192) dtype=bfloat16 strides=(384, 2) contiguous=True
;   offset  40: d_ws      402653184 bytes workspace (unspecified values whenever your kernel or launch list starts; a list's later launches find what earlier ones wrote)
"""

X_BYTES = 100663296
NWG = 256
NRED = 12
MiB = 1 << 20

L_RED = 0
L_H = 6144
L_DEC = 6336
L_S = 6400
L_F = 7168
L_W1 = 8192
L_W2 = L_W1 + 18432
L_SPILL = L_W2 + 18432
L_X = L_SPILL + 3 * 8192
L_TOTAL = L_X

WS_P = 0
WS_Q = 256 * 1536
WS_E = WS_Q + 4 * 49152
WS_USED = WS_E + 128
WS_PROBE = 640 * 1024
WS_STAMP = 1 << 20

S_X, S_OUT, S_WS, S_DBG, S_W = 4, 8, 12, 16, 20
S_WAVE, S_TY, S_SUB, S_OFF, S_MASK, S_CNT, S_T0, S_T1 = 28, 29, 30, 31, 32, 33, 34, 35
S_BASE, S_PM, S_P, S_T2 = 48, 49, 50, 51
S_AGN, S_RID, S_PO = 40, 42, 43
S_TG = [41, 47, 3, 0]
S_RET, S_HOOK, S_QC = 38, 46, 1
S_BASE1 = 45
NFB = 48
S_STAMP = 52
S_V = 24

D0 = 40
SPIN = 400000
V_L, V_G0, V_G1, V_AT = 0, 39, 38, 36

NAGN = 8
SPANS = [(0, 0), (0, 1), (1, 0), (1, 1), (2, 0), (2, 1), (3, 0), (3, 1),
         (6, 0), (4, 0), (6, 1), (4, 1), (7, 0), (5, 0), (7, 1), (5, 1)]
W_ROLE = 0
DBG_RES, DBG_TAL = 0, 128
NVOTE_WG = 32
RES_OK = (1 << 8) | (1 << 11) | (1 << 17) | (1 << 29)
S_OK = 44
S_XR, S_XO, S_XP = 92, 93, 91


def mask(pred):
    return sum(1 << z for z, s in enumerate(SPANS) if pred(z, s))


class G:
    def __init__(self, o):
        self.o = o
        self.lines = []

    def e(self, s=""):
        self.lines.append(("    " + s) if s and not s.endswith(":") else s)

    def stamp(self, idx, vote=False):
        if self.o.clk:
            if idx in (11, 12, 13):
                return
            m = {0: 11, 7: 12, 10: 13}.get(idx)
            if m:
                self.e(f"s_memtime s[{S_STAMP + 2 * m}:{S_STAMP + 2 * m + 1}]")
        if vote == "r":
            vote = False
        if self.o.vdiag and idx in (1, 2, 3, 6) and not vote:
            return
        if vote and not self.o.vdiag:
            return
        if self.o.stamps and not (self.o.trace and idx > 10):
            self.e(f"s_memrealtime s[{S_STAMP + 2 * idx}:{S_STAMP + 2 * idx + 1}]")

    def srd(self, d, lo, nbytes):
        e = self.e
        e(f"s_mov_b64 s[{d}:{d + 1}], s[{lo}:{lo + 1}]")
        e(f"s_mov_b32 s{d + 2}, {nbytes}")
        e(f"s_mov_b32 s{d + 3}, 0x20000")

    def span_off(self, z):
        return SPANS[z][0] * 12 * MiB + SPANS[z][1] * 49152

    def mem(self, j, fn):
        e = self.e
        z, u = j >> 1, j & 1
        if z < NAGN:
            off = (j // self.o.agnu) * (self.o.agnu * 3 * MiB - (self.o.skew if self.o.skewa else 0)) + (j % self.o.agnu) * 12288
            if off:
                e(f"s_add_u32 s{S_OFF}, s{S_AGN}, {off}")
                fn(f"v{V_L}", f"s{S_OFF}")
            else:
                fn(f"v{V_L}", f"s{S_AGN}")
            return
        if getattr(self, "pz", None) != z:
            e(f"s_bitcmp1_b32 s{S_PM}, {z}")
            e(f"s_cselect_b32 s{S_P}, 24576, 0")
            self.pz = z
        e(f"s_add_u32 s{S_OFF}, s{(S_BASE, S_BASE1)[SPANS[z][1]]}, {SPANS[z][0] * 12 * MiB - self.o.skew * (SPANS[z][0] * self.o.skewd + self.o.skewc) + 12288 * u}")
        at = 2 + u
        if self.o.xfer and j == 31:
            e(f"s_cmp_eq_u32 s{S_XR}, 1")
            e(f"s_cselect_b32 s{S_P}, 0x40000000, s{S_P}")
            self.pz = None
        e(f"v_xad_u32 v{at}, v{(V_G0, V_G1)[u]}, s{S_P}, v{V_L}")
        if SPANS[z] == (7, 1):
            e(f"v_add_u32 v{at}, s{S_OFF}, v{at}")
            e(f"v_subrev_u32 v{5 - at}, s{S_X + 2}, v{at}")
            e(f"v_min_u32 v{at}, v{at}, v{5 - at}             ; past the end: wrap to the rows the shift skipped")
            fn(f"v{at}", "0")
        else:
            fn(f"v{at}", f"s{S_OFF}")

    def trace(self, kind, n):
        if self.o.trace == kind:
            if n > 0:
                self.e("s_waitcnt lgkmcnt(0)")
                self.e(f"s_mov_b32 s{76 + n - 1}, s92")
            self.e("s_memrealtime s[92:93]")

    def build(self):
        o, e = self.o, self.e
        NRACE = o.nrace
        ldf = (" " + o.ldflags) if o.ldflags else ""
        stf = (" " + o.stflags) if o.stflags else ""

        self.stamp(0)
        e("s_load_dwordx2 s[4:5], s[0:1], 0          ; x")
        e("s_load_dwordx2 s[8:9], s[0:1], 24         ; out")
        e("v_readfirstlane_b32 s%d, v0" % S_WAVE)
        e("v_and_b32 v1, 63, v0                      ; lane")
        pl = (o.piece // 16).bit_length() - 1
        e(f"v_bfe_u32 v2, v0, {pl}, {6 - pl}")
        e(f"v_mul_u32_u24 v2, {(3 * o.piece, 1536, 768, 384)[o.lmap]}, v2")
        e(f"v_and_b32 v3, {(1 << pl) - 1}, v0")
        e("s_cmpk_ge_u32 s2, %d" % NWG)
        e("s_cbranch_scc1 L_end")
        if o.rot:
            e(f"s_add_u32 s2, s2, {o.rot}")
            e("s_and_b32 s2, s2, 255")
        if o.rolepos < 0:
            e(f"s_lshl2_add_u32 s{S_T1}, s{S_WAVE}, s2")
            e(f"s_cmp_le_u32 s{S_T1}, {NVOTE_WG}              ; wave 0 of the first workgroups has a side job")
            e("s_cbranch_scc1 L_role")
            e("L_stream:")
        if o.lmap == 1:
            e("v_lshl_add_u32 v0, v3, 4, v2")
            e(f"v_lshl_add_u32 v{V_L}, s{S_WAVE}, 1, v0")
            e(f"s_lshr_b32 s{S_WAVE}, s{S_WAVE}, 6")
        elif o.lmap == 3:
            e(f"s_lshr_b32 s{S_TY}, s{S_WAVE}, 8")
            e(f"s_lshr_b32 s{S_WAVE}, s{S_WAVE}, 6")
            e(f"s_and_b32 s{S_SUB}, s{S_WAVE}, 3              ; sub = wave % 4")
            e(f"s_mul_i32 s{S_T0}, s{S_SUB}, 24")
            e(f"s_add_u32 s{S_T0}, s{S_T0}, s{S_TY}")
            e("v_lshl_add_u32 v0, v3, 4, v2")
            e(f"v_lshl_add_u32 v{V_L}, s{S_T0}, 7, v0")
        elif o.lmap == 2:
            e(f"s_lshr_b32 s{S_WAVE}, s{S_WAVE}, 6")
            e(f"s_cmp_ge_u32 s{S_WAVE}, 6")
            e(f"s_cselect_b32 s{S_T0}, 42, 0")
            e(f"s_add_u32 s{S_T0}, s{S_T0}, s{S_WAVE}")
            e("v_lshl_add_u32 v0, v3, 4, v2")
            e(f"v_lshl_add_u32 v{V_L}, s{S_T0}, 7, v0")
        else:
            e(f"s_lshr_b32 s{S_WAVE}, s{S_WAVE}, 6")
            e(f"s_mul_i32 s{S_SUB}, s{S_WAVE}, 43")
            e(f"s_lshr_b32 s{S_SUB}, s{S_SUB}, 7")
            e(f"s_mul_i32 s{S_T0}, s{S_SUB}, {3072 // o.piece - 3}")
            e(f"s_add_u32 s{S_T0}, s{S_T0}, s{S_WAVE}        ; sub*24 + wave % 3")
            e(f"s_lshl_b32 s{S_T0}, s{S_T0}, {pl + 4}")
            e("v_lshl_add_u32 v0, v3, 4, v2")
            e(f"v_add_u32 v{V_L}, s{S_T0}, v0               ; + sub*3072 + (wave % 3)*128")
        if o.umap == 1:
            pass
        elif o.umap >= 2:
            mul, rot = (o.umap >> 4) | 1, o.umap & 7
            e(f"s_lshr_b32 s{S_T1}, s2, 3")
            e(f"s_mul_i32 s{S_T1}, s{S_T1}, {rot}")
            e(f"s_mul_i32 s{S_T0}, s2, {mul}")
            e(f"s_add_u32 s{S_T0}, s{S_T0}, s{S_T1}")
            e(f"s_and_b32 s{S_T0}, s{S_T0}, 7")
            e(f"s_and_b32 s{S_T1}, s2, -8")
            e(f"s_add_u32 s{S_T0}, s{S_T0}, s{S_T1}")
        elif o.qmap == 0:
            e(f"s_and_b32 s{S_T0}, s2, 3")
            e(f"s_bfe_u32 s{S_T1}, s2, 0x10002")
            e(f"s_lshl1_add_u32 s{S_T0}, s{S_T0}, s{S_T1}")
            if o.urot:
                e(f"s_lshr_b32 s{S_T1}, s2, {o.urot & 15}")
                if o.urot >> 4:
                    e(f"s_lshl_b32 s{S_T1}, s{S_T1}, {o.urot >> 4}")
                e(f"s_add_u32 s{S_T0}, s{S_T0}, s{S_T1}")
                e(f"s_and_b32 s{S_T0}, s{S_T0}, 7")
            e(f"s_and_b32 s{S_T1}, s2, -8")
            e(f"s_add_u32 s{S_T0}, s{S_T0}, s{S_T1}")
        else:
            e(f"s_and_b32 s{S_T0}, s2, 7")
            e(f"s_lshl_b32 s{S_T0}, s{S_T0}, 5")
            e(f"s_lshr_b32 s{S_T1}, s2, 3")
            e(f"s_add_u32 s{S_T0}, s{S_T0}, s{S_T1}")
        e(f"s_mul_i32 s{S_AGN}, s{2 if o.umap == 1 else S_T0}, {o.agnu * 12288}")
        e(f"s_mov_b32 s{S_X + 2}, {X_BYTES}")
        e(f"s_mov_b32 s{S_X + 3}, 0x20000")
        if o.rolepos >= 0:
            e(f"s_lshl_b32 s{S_T1}, s{S_WAVE}, 8")
            e(f"s_or_b32 s{S_T1}, s{S_T1}, s2")
        if o.sdiag:
            self.stamp(6, True)
        e("s_waitcnt lgkmcnt(0)")
        if o.sdiag:
            self.stamp(1, True)
        e(f"s_lshr_b32 s{S_T0}, s{S_OUT}, 7")
        e(f"s_mul_i32 s{S_T0}, s{S_T0}, 21              ; -43 mod 64")
        e(f"s_and_b32 s{S_T0}, s{S_T0}, 63")
        e(f"s_mulk_i32 s{S_T0}, 384")
        e(f"s_add_u32 s{S_AGN}, s{S_AGN}, s{S_T0}")
        assert W_ROLE == 0

        SUM, MAX, T = 4, 12, 20
        DEPTH = o.depth
        seq = []

        def issue(j):
            if j == o.rolepos:
                e(f"s_cmp_le_u32 s{S_T1}, {NVOTE_WG}              ; wave 0 of the first workgroups has a side job")
                e("s_cbranch_scc1 L_role")
                e("L_stream:")
            if o.cpf and j == o.cpfpos:
                e(f"s_sub_u32 s{S_T1}, s{S_T1}, 256")
                e(f"s_cmp_ge_u32 s{S_T1}, {o.cpf}")
                e("s_cbranch_scc1 L_nocpf")
                e("s_getpc_b64 s[20:21]")
                e("v_lshlrev_b32 v2, 7, v1")
                e("v_add_u32 v3, 8192, v2")
                e("v_min_u32 v3, L_codeend - L_nocpf, v3")
                e("global_load_dword v36, v2, s[20:21]")
                e("global_load_dword v37, v3, s[20:21]")
                e("L_nocpf:")
            if j == max(4, o.rolepos):
                e("s_load_dwordx4 s[36:39], s[0:1], 8        ; w1, w2")
                e(f"s_load_dwordx2 s[{S_DBG}:{S_DBG + 1}], s[0:1], 32")
                e(f"s_load_dwordx2 s[{S_WS}:{S_WS + 1}], s[0:1], 40")
                e(f"s_mov_b32 s{S_MASK}, 0xffff0000")
            if j == 2 * NAGN:
                if o.lmap in (1, 2):
                    e(f"s_mul_i32 s{S_SUB}, s{S_WAVE}, 43")
                    e(f"s_lshr_b32 s{S_SUB}, s{S_SUB}, 7")
                if o.lmap != 3:
                    e(f"s_mul_i32 s{S_TY}, s{S_SUB}, 3")
                    e(f"s_sub_u32 s{S_TY}, s{S_WAVE}, s{S_TY}        ; ty = wave % 3")
                e(f"s_mov_b32 s{S_OUT + 2}, s{S_X + 2}")
                e(f"s_mov_b32 s{S_OUT + 3}, s{S_X + 3}")
                e(f"s_mov_b32 s{S_WS + 2}, {(2 << 20) if o.stamps else WS_USED}")
                e(f"s_mov_b32 s{S_WS + 3}, s{S_X + 3}")
                e(f"s_movk_i32 s{S_DBG + 2}, 256")
                e(f"s_mov_b32 s{S_DBG + 3}, s{S_X + 3}")
                e(f"s_movk_i32 s{S_T2}, 24576")
                e(f"v_bfe_u32 v{V_G0}, v{V_L}, 13, 1")
                e(f"v_add_u32 v{V_G1}, 12288, v{V_L}")
                e(f"v_bfe_u32 v{V_G1}, v{V_G1}, 13, 1")
                e(f"v_mul_u32_u24 v{V_G0}, s{S_T2}, v{V_G0}")
                e(f"v_mul_u32_u24 v{V_G1}, s{S_T2}, v{V_G1}")
                e(f"s_lshr_b32 s{S_T0}, s{S_OUT}, 7")
                e(f"s_mul_i32 s{S_T0}, s{S_T0}, 21")
                e(f"s_and_b32 s{S_T0}, s{S_T0}, 63")
                e(f"s_mulk_i32 s{S_T0}, 384")
                e(f"s_lshr_b32 s{S_BASE}, s2, 3")
                if o.qrot:
                    if o.qrot >= 16:
                        e(f"s_lshr_b32 s{S_T1}, s{S_BASE}, {o.qrot - 16}")
                    else:
                        e(f"s_mul_i32 s{S_T1}, s{S_BASE}, {o.qrot}")
                    e(f"s_add_u32 s{S_T1}, s{S_T1}, s2")
                    e(f"s_and_b32 s{S_T1}, s{S_T1}, 3")
                else:
                    e(f"s_and_b32 s{S_T1}, s2, 3")
                if o.qmap == 0:
                    e(f"s_lshl2_add_u32 s{S_BASE}, s{S_BASE}, s{S_T1}")
                else:
                    e(f"s_lshl_b32 s{S_T1}, s{S_T1}, 5")
                    e(f"s_add_u32 s{S_BASE}, s{S_BASE}, s{S_T1}")
                e(f"s_add_u32 s{S_BASE1}, s{S_BASE}, {o.qshift}")
                e(f"s_and_b32 s{S_BASE1}, s{S_BASE1}, 127")
                e(f"s_mul_i32 s{S_BASE}, s{S_BASE}, 98304")
                e(f"s_add_u32 s{S_BASE}, s{S_BASE}, s{S_T0}        ; the pair's first span of a step")
                e(f"s_mul_i32 s{S_BASE1}, s{S_BASE1}, 98304")
                e(f"s_add_u32 s{S_BASE1}, s{S_BASE1}, s{S_T0}")
                e(f"s_add_u32 s{S_BASE1}, s{S_BASE1}, 49152      ; its second span: 3 MiB on, where the memory stacks swap")
                h1 = mask(lambda z, s: s[1] == 1)
                e(f"s_add_u32 s{S_T2}, s{S_T2}, s{S_OUT}")
                e(f"s_add_u32 s{S_T0}, s{S_BASE}, s{S_T2}")
                e(f"s_bfe_i32 s{S_PM}, s{S_T0}, 0x10015")
                e(f"s_add_u32 s{S_T2}, s{S_BASE1}, s{S_T2}")
                e(f"s_xor_b32 s{S_T0}, s{S_T0}, s{S_T2}")
                e(f"s_bfe_i32 s{S_T0}, s{S_T0}, 0x10015")
                e(f"s_and_b32 s{S_T0}, s{S_T0}, {h1}")
                e(f"s_xor_b32 s{S_PM}, s{S_PM}, s{S_T0}")
                m1 = mask(lambda z, s: z >= NAGN and s[0] in (3, 4))
                z50 = SPANS.index((5, 0))
                z51 = SPANS.index((5, 1))
                dec = mask(lambda z, s: z >= NAGN)
                e(f"s_cmp_lt_u32 s{S_BASE}, {4 * MiB - 24576}")
                e(f"s_cselect_b32 s{S_T0}, {1 << z50}, 0")
                e(f"s_or_b32 s{S_T0}, s{S_T0}, {m1}")
                e(f"s_cmp_lt_u32 s{S_BASE1}, {4 * MiB - 24576}")
                e(f"s_cselect_b32 s{S_T1}, {1 << z51}, 0")
                e(f"s_or_b32 s{S_T0}, s{S_T0}, s{S_T1}            ; third 1")
                e(f"s_xor_b32 s{S_T1}, s{S_T0}, {dec}           ; third 2")
                per, pat = o.opp
                rep = sum(((pat >> (i % per)) & 1) << i for i in range(32))
                e(f"s_lshr_b32 s{S_P}, s2, 3")
                e(f"s_mul_i32 s{S_T2}, s{S_P}, {-(-256 // per)}")
                e(f"s_lshr_b32 s{S_T2}, s{S_T2}, 8")
                e(f"s_mul_i32 s{S_T2}, s{S_T2}, {per}")
                e(f"s_sub_u32 s{S_P}, s{S_P}, s{S_T2}             ; (b >> 3) % {per}")
                e(f"s_lshr_b32 s{S_P}, {rep}, s{S_P}")
                e(f"s_sub_u32 s{S_T2}, s{S_OUT}, s{S_X}")
                e(f"s_add_u32 s{S_T2}, s{S_T2}, 2048")
                e(f"s_bitcmp1_b32 s{S_T2}, 12")
                e(f"s_cselect_b32 s{S_P}, 0, s{S_P}")
                e(f"s_cselect_b32 s{S_OK}, 0, {1 << 23}")
                e(f"s_or_b32 s{S_OK}, s{S_OK}, {RES_OK}       ; the parts of the result word that must be in")
                e(f"s_lshr_b32 s{S_T2}, s2, 3")
                e(f"s_sub_u32 s{S_RID}, s{S_T2}, {o.red0}")
                e(f"s_and_b32 s{S_PO}, s2, 7")
                e(f"s_lshl_b32 s{S_PO}, s{S_PO}, 5")
                e(f"s_add_u32 s{S_PO}, s{S_PO}, s{S_T2}")
                e(f"s_mulk_i32 s{S_PO}, 1536")
                e("s_waitcnt lgkmcnt(0)")
                self.stamp(11)
                e("s_barrier")
                e(f"s_load_dword s{S_T2}, s[{S_DBG}:{S_DBG + 1}], {DBG_RES}")
                e("s_waitcnt lgkmcnt(0)")
                e(f"s_andn2_b32 s{S_CNT}, s{S_OK}, s{S_T2}")
                e("s_cbranch_scc1 L_dpoll")
                e("L_decided:")
                for i in range(4):
                    e(f"s_bitcmp1_b32 s{S_T2}, {7 + 6 * i + 5}")
                    e(f"s_cselect_b32 s{S_V + i}, s{(S_T0, S_T1)[i >> 1]}, 0")
                e(f"s_or_b32 s{S_V}, s{S_V}, s{S_V + 2}")
                e(f"s_or_b32 s{S_V + 1}, s{S_V + 1}, s{S_V + 3}")
                e(f"s_xor_b32 s{S_V}, s{S_V}, s{S_V + 1}")
                e(f"s_and_b32 s{S_V}, s{S_V}, s{S_P}")
                e(f"s_xor_b32 s{S_V}, s{S_V}, s{S_V + 1}")
                e(f"s_xor_b32 s{S_PM}, s{S_PM}, s{S_V}")
                e(f"s_lshr_b32 s{S_QC}, s{S_T2}, 13")
                e(f"s_add_u32 s{S_QC}, s{S_QC}, s2")
                e(f"s_bfe_i32 s{S_V}, s{S_QC}, 0x10002")
                e(f"s_xor_b32 s{S_PM}, s{S_PM}, s{S_V}")
                e(f"s_and_b32 s{S_TG[0]}, s{S_T2}, 15")
                e(f"s_bfe_u32 s{S_TG[1]}, s{S_T2}, 0x40004")
                e(f"s_xor_b32 s{S_TG[2]}, s{S_TG[0]}, 15")
                e(f"s_xor_b32 s{S_TG[3]}, s{S_TG[1]}, 15")
                e(f"s_lshr_b32 s{S_V}, s{S_T2}, 10")
                e(f"s_and_b32 s{S_V}, s{S_V}, 4")
                e(f"s_xor_b32 s{S_QC}, s{S_QC}, s{S_V}           ; bits 2:0: the second-stage copy near this die")
                if o.xfer:
                    assert SPANS[15] == (7, 0)
                    e(f"s_lshr_b32 s{S_T0}, s{S_T2}, 13")
                    e(f"s_add_u32 s{S_T1}, s{S_T0}, s2")
                    e(f"s_and_b32 s{S_XR}, s{S_T1}, 1")
                    e(f"s_sub_u32 s{S_XR}, 2, s{S_XR}")
                    e(f"s_cmp_ge_u32 s{S_WAVE}, {12 - o.xfer}")
                    e(f"s_cselect_b32 s{S_XR}, s{S_XR}, 0")
                    e(f"s_xor_b32 s{S_T1}, s{S_T1}, 1")
                    e(f"s_sub_u32 s{S_T1}, s{S_T1}, s{S_T0}")
                    e(f"s_and_b32 s{S_T1}, s{S_T1}, 3")
                    e(f"s_and_b32 s{S_T0}, s2, 3")
                    e(f"s_sub_u32 s{S_T1}, s{S_T1}, s{S_T0}")
                    e(f"s_mul_i32 s{S_T1}, s{S_T1}, 98304")
                    e(f"s_add_u32 s{S_XO}, s{S_BASE}, s{S_T1}        ; the neighbour's first span of a step")
                    e(f"s_add_u32 s{S_T0}, s{S_OUT}, 24576")
                    e(f"s_add_u32 s{S_T1}, s{S_T0}, s{S_XO}")
                    e(f"s_add_u32 s{S_T0}, s{S_T0}, s{S_BASE}")
                    e(f"s_xor_b32 s{S_T0}, s{S_T0}, s{S_T1}")
                    e(f"s_lshr_b32 s{S_T0}, s{S_T0}, 6")
                    e(f"s_xor_b32 s{S_T0}, s{S_T0}, s{S_PM}")
                    e(f"s_bitcmp1_b32 s{S_T0}, 15")
                    e(f"s_cselect_b32 s{S_XP}, 24576, 0")
                    e(f"s_add_u32 s{S_XO}, s{S_XO}, {7 * 12 * MiB + 12288}")
                if o.wtouch:
                    e("s_load_dword s22, s[36:37], 0")
                    e("s_load_dword s23, s[38:39], 0")
                self.stamp(12)
            if j in o.xbar:
                e("s_barrier")
                if j == o.xbar[-1]:
                    self.stamp(2, "r")
            if o.xfer and j == o.xpos:
                e(f"s_cmp_lg_u32 s{S_XR}, 2")
                e("s_cbranch_scc1 L_nox1")
                e(f"s_lshl_b32 s{S_T0}, s{S_WAVE}, 10")
                e(f"s_add_u32 m0, s{S_T0}, {L_X}")
                e(f"v_xad_u32 v3, v{V_G1}, s{S_XP}, v{V_L}")
                e(f"buffer_load_dwordx4 v3, s[{S_X}:{S_X + 3}], s{S_XO} offen{ldf} lds")
                e("L_nox1:")
            if j == o.warm and o.warmst:
                e(f"s_cmp_ge_u32 s{S_WAVE}, 2")
                e("s_cbranch_scc1 L_nowarm")
                for i in range(4):
                    e(f"v_mov_b32 v{20 + i}, 0")
                e(f"s_mul_i32 s{S_T0}, s{S_WAVE}, 768")
                e(f"v_lshl_add_u32 v3, v1, 4, s{S_T0}")
                e("s_mov_b32 exec_hi, 0xffff")
                e(f"buffer_store_dwordx4 v[20:23], v3, s[{S_WS}:{S_WS + 3}], s{S_PO} offen")
                e("s_mov_b64 exec, -1")
                e("L_nowarm:")
            if j == o.warm and not o.warmst:
                e(f"s_cmp_lg_u32 s{S_WAVE}, {o.warmwave}")
                e("s_cbranch_scc1 L_nowarm")
                e("v_lshlrev_b32 v3, 7, v1")
                e("s_mov_b64 exec, 0xfff")
                e(f"buffer_load_dword v37, v3, s[{S_WS}:{S_WS + 3}], s{S_PO} offen {o.warmfl}")
                e("s_mov_b64 exec, -1")
                if o.lpf == 2:
                    e(f"s_cmp_lg_u32 s{S_RID}, {NRED}")
                    e("s_cbranch_scc1 L_nowarm")
                    e("s_getpc_b64 s[20:21]")
                    if o.lay:
                        e("v_add_u32 v3, L_tail - L_nowarm + 32, v3")
                    e("v_min_u32 v3, L_end - L_nowarm, v3")
                    e("global_load_dword v37, v3, s[20:21]")
                e("L_nowarm:")
            r = D0 + 4 * j
            if o.thr and j == 10:
                e(f"s_getreg_b32 s{S_T0}, hwreg(HW_REG_XCC_ID, 0, 3)")
                e(f"s_lshr_b32 s{S_T0}, {o.thrmask}, s{S_T0}")
                e(f"s_and_b64 vcc, s[{S_T0}:{S_T0 + 1}], 1")
            if o.cap and o.capfrom <= j < o.capto:
                e(f"s_waitcnt vmcnt({o.cap - 1})")
            if o.thr and o.thrfrom <= j < o.thrto:
                e(f"s_cbranch_vccz L_thr{j}")
                e(f"s_waitcnt vmcnt({o.thr - 1})")
                e(f"L_thr{j}:")
            self.mem(j, lambda va, so: e(f"buffer_load_dwordx4 v[{r}:{r + 3}], {va}, s[{S_X}:{S_X + 3}], {so} offen{ldf}"))
            seq.append(j)
            if o.sdiag and j == 0:
                self.stamp(2, True)
            if o.sdiag and j == 2:
                e("s_waitcnt vmcnt(2)")
                self.stamp(3, True)
            if j & 1:
                self.trace("ld", j >> 1)

        def wait_for(j):
            e(f"s_waitcnt vmcnt({len(seq) - 1 - seq.index(j)})")

        def scatter54():
            for base in (MAX, SUM):
                for i in range(4):
                    e(f"v_permlane32_swap_b32 v{base + i}, v{base + 4 + i}")
            for i in range(4):
                e(f"v_max_f32 v{MAX + i}, v{MAX + i}, v{MAX + 4 + i}")
            for i in range(4):
                e(f"v_add_f32 v{SUM + i}, v{SUM + i}, v{SUM + 4 + i}")
            for i in range(2):
                e(f"v_permlane16_swap_b32 v{MAX + i}, v{MAX + 2 + i}")
            for i in range(2):
                e(f"v_permlane16_swap_b32 v{SUM + i}, v{SUM + 2 + i}")
            for i in range(2):
                e(f"v_add_f32 v{SUM + i}, v{SUM + i}, v{SUM + 2 + i}")
            for i in range(2):
                e(f"v_max_f32 v{MAX + i}, v{MAX + i}, v{MAX + 2 + i}")

        nxt = 0
        for jj in range(16):
            while nxt < 32 and nxt < max(2 * jj + DEPTH + 2, 2 * NAGN + 2 if o.prebar else 0):
                issue(nxt)
                nxt += 1
                if nxt == 32:
                    self.stamp(1)
            a, b = D0 + 8 * jj, D0 + 8 * jj + 4
            if jj == 0:
                e("@@HERE1")
            if jj == 15:
                e("@@HERE2")
                e("v_and_b32 v2, 7, v1")
                e("v_lshlrev_b32 v2, 5, v2                   ; (l&7)*32")
                e("v_lshrrev_b32 v3, 4, v1")
                e("v_lshl_add_u32 v2, v3, 3, v2              ; + (l>>4)*8")
                e("v_bfe_u32 v3, v1, 3, 1")
                e("v_mul_u32_u24 v3, 768, v3")
                e(f"s_mul_i32 s{S_T0}, s{S_SUB}, 1536")
                e(f"s_lshl_b32 s{S_T1}, s{S_TY}, 8")
                e(f"s_add_u32 s{S_T0}, s{S_T0}, s{S_T1}")
                e(f"v_add3_u32 v2, v2, v3, s{S_T0}")
                e(f"s_mul_i32 s{S_T0}, s{S_WAVE}, 768")
                e(f"v_lshl_add_u32 v3, v1, 4, s{S_T0}")
                if o.ttail:
                    scatter54()
                    for r in (a, b):
                        wait_for((r - D0) // 4)
                        if r == b:
                            self.stamp(3)
                        C = T + 8
                        e(f"v_mov_b64 v[{C}:{C + 1}], v[{r}:{r + 1}]")
                        e(f"v_mov_b64 v[{C + 2}:{C + 3}], v[{r + 2}:{r + 3}]")
                        e("s_nop 1")
                        e(f"v_permlane32_swap_b32 v{C}, v{C + 2}")
                        e(f"v_permlane32_swap_b32 v{C + 1}, v{C + 3}")
                        e("s_nop 1")
                        e(f"v_permlane16_swap_b32 v{C}, v{C + 1}")
                        e(f"v_permlane16_swap_b32 v{C + 2}, v{C + 3}")
                        for i in range(4):
                            t = T + 2 * i
                            e(f"v_lshlrev_b32 v{t}, 16, v{C + i}")
                            e(f"v_and_b32 v{t + 1}, s{S_MASK}, v{C + i}")
                        e(f"v_pk_add_f32 v[{C}:{C + 1}], v[{T}:{T + 1}], v[{T + 2}:{T + 3}]")
                        e(f"v_pk_add_f32 v[{C + 2}:{C + 3}], v[{T + 4}:{T + 5}], v[{T + 6}:{T + 7}]")
                        e(f"v_max3_f32 v{MAX}, v{MAX}, v{T}, v{T + 2}")
                        e(f"v_pk_add_f32 v[{C}:{C + 1}], v[{C}:{C + 1}], v[{C + 2}:{C + 3}]")
                        e(f"v_max3_f32 v{MAX + 1}, v{MAX + 1}, v{T + 1}, v{T + 3}")
                        e(f"v_pk_add_f32 v[{SUM}:{SUM + 1}], v[{SUM}:{SUM + 1}], v[{C}:{C + 1}]")
                        e(f"v_max3_f32 v{MAX}, v{MAX}, v{T + 4}, v{T + 6}")
                        e(f"v_max3_f32 v{MAX + 1}, v{MAX + 1}, v{T + 5}, v{T + 7}")
                    continue
                def fold(r):
                    for i in range(4):
                        t = T + 2 * i
                        e(f"v_lshlrev_b32 v{t}, 16, v{r + i}")
                        e(f"v_and_b32 v{t + 1}, s{S_MASK}, v{r + i}")
                    for i in range(8):
                        e(f"v_max_f32 v{MAX + i}, v{MAX + i}, v{T + i}")
                    for i in range(4):
                        t, s = T + 2 * i, SUM + 2 * i
                        e(f"v_pk_add_f32 v[{s}:{s + 1}], v[{s}:{s + 1}], v[{t}:{t + 1}]")
                if o.xfer:
                    assert o.xpos <= 28
                    e(f"s_cmp_lg_u32 s{S_XR}, 2")
                    e("s_cbranch_scc1 L_nox2")
                    e(f"s_lshl_b32 s{S_T0}, s{S_WAVE}, 10")
                    e(f"s_add_u32 s{S_T0}, s{S_T0}, {L_X}")
                    e(f"v_lshl_add_u32 v{V_AT}, v1, 4, s{S_T0}")
                    e(f"ds_read_b128 v[28:31], v{V_AT}")
                    e("s_waitcnt lgkmcnt(0)")
                    fold(28)
                    e("L_nox2:")
                for r in (a, b):
                    wait_for((r - D0) // 4)
                    if r == b:
                        self.stamp(3)
                        if o.xfer:
                            e(f"s_cmp_eq_u32 s{S_XR}, 1")
                            e("s_cbranch_scc1 L_nox3")
                    fold(r)
                if o.xfer:
                    e("L_nox3:")
                continue
            wait_for(2 * jj + 1)
            if jj == 0 and not o.xbar:
                self.stamp(2)
            if jj >= o.skipfrom:
                continue
            for i in range(4):
                t = T + 4 * i
                e(f"v_lshlrev_b32 v{t}, 16, v{a + i}")
                e(f"v_and_b32 v{t + 1}, s{S_MASK}, v{a + i}")
                e(f"v_lshlrev_b32 v{t + 2}, 16, v{b + i}")
                e(f"v_and_b32 v{t + 3}, s{S_MASK}, v{b + i}")
            for i in range(4):
                t = T + 4 * i
                s, m = SUM + 2 * i, MAX + 2 * i
                if jj == 0:
                    e(f"v_max_f32 v{m}, v{t}, v{t + 2}")
                    e(f"v_max_f32 v{m + 1}, v{t + 1}, v{t + 3}")
                    e(f"v_pk_add_f32 v[{s}:{s + 1}], v[{t}:{t + 1}], v[{t + 2}:{t + 3}]")
                else:
                    e(f"v_max3_f32 v{m}, v{m}, v{t}, v{t + 2}")
                    e(f"v_max3_f32 v{m + 1}, v{m + 1}, v{t + 1}, v{t + 3}")
                    e(f"v_pk_add_f32 v[{t}:{t + 1}], v[{t}:{t + 1}], v[{t + 2}:{t + 3}]")
            if jj:
                for i in range(4):
                    t = T + 4 * i
                    s = SUM + 2 * i
                    e(f"v_pk_add_f32 v[{s}:{s + 1}], v[{s}:{s + 1}], v[{t}:{t + 1}]")

        if not o.ttail:
            scatter54()
        e(f"s_cmp_ge_u32 s{S_WAVE}, 2")
        for i in range(2):
            e(f"v_add_f32_dpp v{SUM + i}, v{SUM + i}, v{SUM + i} row_ror:8 row_mask:0xf bank_mask:0x3")
        for i in range(2):
            e(f"v_max_f32_dpp v{SUM + i}, v{MAX + i}, v{MAX + i} row_ror:8 row_mask:0xf bank_mask:0xc")
        e(f"ds_write_b64 v2, v[{SUM}:{SUM + 1}] offset:{L_RED}")
        e("s_waitcnt lgkmcnt(0)")
        e("s_barrier")
        self.stamp(4)
        e("s_cbranch_scc1 L_nopub")

        e("s_mov_b32 exec_hi, 0xffff")
        for k in range(4):
            e(f"ds_read_b128 v[{4 + 4 * k}:{7 + 4 * k}], v3 offset:{L_RED + 1536 * k}")
        e(f"s_cmp_eq_u32 s{S_WAVE}, 0")
        e(f"s_cselect_b64 s[{S_W}:{S_W + 1}], s[36:37], s[38:39]")
        e("s_cbranch_scc0 L_pubmax")
        e("s_waitcnt lgkmcnt(2)")
        e("v_pk_add_f32 v[4:5], v[4:5], v[8:9]")
        e("v_pk_add_f32 v[6:7], v[6:7], v[10:11]")
        e("s_waitcnt lgkmcnt(0)")
        e("v_pk_add_f32 v[12:13], v[12:13], v[16:17]")
        e("v_pk_add_f32 v[14:15], v[14:15], v[18:19]")
        e("v_pk_add_f32 v[4:5], v[4:5], v[12:13]")
        e("v_pk_add_f32 v[6:7], v[6:7], v[14:15]")
        e("s_branch L_pub")
        e("L_pubmax:")
        e("s_waitcnt lgkmcnt(1)")
        for i in range(4):
            e(f"v_max3_f32 v{4 + i}, v{4 + i}, v{8 + i}, v{12 + i}")
        e("s_waitcnt lgkmcnt(0)")
        for i in range(4):
            e(f"v_max_f32 v{4 + i}, v{4 + i}, v{16 + i}")
        e("L_pub:")
        for i in range(4):
            e(f"v_and_or_b32 v{4 + i}, v{4 + i}, -16, s{S_TG[i]}")
        e(f"buffer_store_dwordx4 v[4:7], v3, s[{S_WS}:{S_WS + 3}], s{S_PO} offen{' sc1' if o.psc1 else ' nt' if o.pnt else ''}")
        e("s_mov_b64 exec, -1")
        e(f"s_movk_i32 s{S_W + 2}, 18432")
        e(f"s_mov_b32 s{S_W + 3}, 0x20000")
        e(f"s_mul_i32 s{S_T0}, s{S_WAVE}, 18432")
        e(f"s_addk_i32 s{S_T0}, {L_W1}")
        e(f"s_mov_b32 s{S_T1}, 0")
        e("v_lshlrev_b32 v2, 4, v1")
        e("L_wloop:")
        e(f"s_add_u32 m0, s{S_T0}, s{S_T1}")
        e("s_nop 0")
        for k in range(3):
            e(f"buffer_load_dwordx4 v2, s[{S_W}:{S_W + 3}], s{S_T1} offen offset:{k * 1024} lds")
        e(f"s_addk_i32 s{S_T1}, 3072")
        e(f"s_cmp_lt_u32 s{S_T1}, 18432")
        e("s_cbranch_scc1 L_wloop")
        e("L_nopub:")

        B2 = 28
        V_H0, V_H1, V_SW, V_SR, V_Q = 24, 25, 26, 27, 37
        SP0 = 136
        A1 = 144
        B1 = [4, 8, 12, 16, 136, 140]
        e("v_lshrrev_b32 v20, 4, v1                  ; q")
        e(f"s_cmp_lt_u32 s{S_WAVE}, 3")
        e("s_cbranch_scc1 L_spill")
        e(f"s_cmp_ge_u32 s{S_RID}, {NRED}")
        e("s_cbranch_scc1 L_barw")
        e(f"s_cmp_lg_u32 s{S_WAVE}, 3")
        e("s_cbranch_scc1 L_barw")

        def clean(lbl, d, a):
            e(f"s_cmp_lg_u32 s{S_WAVE}, 3")
            e(f"s_cbranch_scc1 {lbl}")
            if o.cw:
                e(f"v_mov_b32 v{d}, 0")
                e(f"v_lshlrev_b32 v{a}, {o.cw}, v1")
                e(f"s_mov_b64 exec, {(1 << (1536 >> o.cw)) - 1}")
                if o.cld:
                    e(f"buffer_atomic_or v{d}, v{a}, s[{S_WS}:{S_WS + 3}], s{S_PO} offen")
                else:
                    e(f"buffer_store_dword v{d}, v{a}, s[{S_WS}:{S_WS + 3}], s{S_PO} offen sc1")
                e("s_mov_b64 exec, -1")
                return
            for i in range(4):
                e(f"v_mov_b32 v{d + i}, 0")
            e(f"v_lshlrev_b32 v{a}, 4, v1")
            e("s_mov_b32 exec_hi, 0xffff")
            e(f"buffer_store_dwordx4 v[{d}:{d + 3}], v{a}, s[{S_WS}:{S_WS + 3}], s{S_PO} offen sc1")
            e(f"buffer_store_dwordx4 v[{d}:{d + 3}], v{a}, s[{S_WS}:{S_WS + 3}], s{S_PO} offen offset:768 sc1")
            e("s_mov_b64 exec, -1")

        e("v_lshrrev_b32 v2, 3, v1")
        e("v_mul_u32_u24 v2, 1536, v2")
        e("v_and_b32 v3, 7, v1")
        e(f"v_lshl_add_u32 v{V_Q}, v3, 4, v2")
        e(f"s_and_b32 s{S_T0}, s2, 7")
        e(f"s_mul_i32 s{S_V}, s{S_T0}, {32 * 1536}")
        e(f"s_lshl_b32 s{S_T1}, s{S_RID}, 7")
        e(f"s_add_u32 s{S_V}, s{S_V}, s{S_T1}")
        for k in range(1, 4):
            e(f"s_add_u32 s{S_V + k}, s{S_V}, {k * 8 * 1536}")
        e(f"s_lshl_b32 s{S_T0}, s{S_T0}, 8              ; group*256")
        e(f"s_lshr_b32 s{S_T1}, s{S_RID}, 2")
        e(f"s_lshl2_add_u32 s{S_T1}, s{S_T1}, s{S_RID}")
        e(f"s_lshl_b32 s{S_T1}, s{S_T1}, 11")
        e(f"s_add_u32 s{S_T1}, s{S_T1}, s{S_T0}")
        for k in range(o.qcopy // 2):
            e(f"s_add_u32 s{S_W + k}, s{S_T1}, {WS_Q + k * 49152}")
        e("v_and_b32 v2, 15, v1")
        e("v_lshlrev_b32 v3, 2, v2")
        e("v_bfe_u32 v2, v1, 4, 1")
        e("v_lshl_add_u32 v3, v2, 7, v3")
        e("v_lshrrev_b32 v2, 5, v1")
        e("v_lshl_add_u32 v3, v2, 13, v3             ; (l>>5)*8192 + ((l>>4)&1)*128 + (l&15)*4")
        e(f"s_lshl4_add_u32 s{S_T0}, s{S_TG[1]}, s{S_TG[0]}")
        e(f"s_xor_b32 s{S_CNT}, s{S_T0}, 0xff")
        e(f"s_lshl_b32 s{S_CNT}, s{S_CNT}, 8")
        e(f"s_or_b32 s{S_T0}, s{S_T0}, s{S_CNT}")
        e("v_and_b32 v2, 12, v3")
        e(f"v_bfe_u32 v23, s{S_T0}, v2, 4")
        e(f"s_mov_b32 s{S_CNT}, {NFB}")
        e(f"s_mov_b32 s{S_HOOK}, 0")
        e("L_rpoll:")
        for k in range(4):
            e(f"buffer_load_dwordx4 v[{4 + 4 * k}:{7 + 4 * k}], v{V_Q}, s[{S_WS}:{S_WS + 3}], s{S_V + k} offen sc1")
        e(f"s_sub_u32 s{S_CNT}, s{S_CNT}, 1")
        e("s_cbranch_scc1 L_rlong")
        for k in range(4):
            e(f"s_waitcnt vmcnt({3 - k})")
            r = 4 + 4 * k
            for i in range(4):
                e(f"v_xor_b32 v{r + i}, s{S_TG[i]}, v{r + i}" + ("            ; a matching tag leaves four zero bits" if k + i == 0 else ""))
            if k == 0:
                e(f"v_or3_b32 v21, v{r}, v{r + 1}, v{r + 2}")
                e(f"v_or_b32 v21, v21, v{r + 3}")
            elif k < 3:
                e(f"v_or3_b32 v21, v21, v{r}, v{r + 1}")
                e(f"v_or3_b32 v21, v21, v{r + 2}, v{r + 3}")
            else:
                e(f"v_or3_b32 v21, v21, v{r}, v{r + 1}")
                e(f"v_or_b32 v22, v{r + 2}, v{r + 3}")
        e("v_bitop3_b32 v21, v21, v22, 15 bitop3:0xa8          ; (a | b) & c")
        e("v_cmp_ne_u32 vcc, 0, v21")
        e("s_wqm_b64 exec, vcc                       ; 64-byte units still waiting poll again")
        e("s_cbranch_scc1 L_rpoll")
        e("L_rgot:")
        e("s_mov_b64 exec, -1")
        self.stamp(1, "r")
        e(f"s_cmp_ge_u32 s{S_RID}, 6")
        e("s_cbranch_scc1 L_rmax")
        for kind in (0, 1):
            op = "v_add_f32" if kind == 0 else "v_max_f32"
            if kind == 1:
                e("L_rmax:")
                for i in range(4):
                    e(f"v_max3_f32 v{4 + i}, v{4 + i}, v{8 + i}, v{12 + i}")
                for i in (0, 2, 1, 3):
                    e(f"v_max_f32 v{4 + i}, v{4 + i}, v{16 + i}")
            else:
                e("v_pk_add_f32 v[4:5], v[4:5], v[8:9]")
                e("v_pk_add_f32 v[6:7], v[6:7], v[10:11]")
                e("v_pk_add_f32 v[12:13], v[12:13], v[16:17]")
                e("v_pk_add_f32 v[14:15], v[14:15], v[18:19]")
                e("v_pk_add_f32 v[4:5], v[4:5], v[12:13]")
                e("v_pk_add_f32 v[6:7], v[6:7], v[14:15]")
                e("s_nop 0")
            e(f"{op}_dpp v4, v4, v4 row_ror:8 row_mask:0xf bank_mask:0x3")
            if kind == 0:
                e(f"{op}_dpp v5, v5, v5 row_ror:8 row_mask:0xf bank_mask:0x3")
                e(f"{op}_dpp v4, v6, v6 row_ror:8 row_mask:0xf bank_mask:0xc")
            else:
                e(f"{op}_dpp v4, v6, v6 row_ror:8 row_mask:0xf bank_mask:0xc")
                e(f"{op}_dpp v5, v5, v5 row_ror:8 row_mask:0xf bank_mask:0x3")
            e(f"{op}_dpp v5, v7, v7 row_ror:8 row_mask:0xf bank_mask:0xc")
            e("s_nop 1")
            e("v_permlane16_swap_b32 v4, v5")
            e(f"{op} v4, v4, v5")
            e("v_mov_b32 v5, v4")
            e("s_nop 1")
            e("v_permlane32_swap_b32 v4, v5")
            e(f"{op} v4, v4, v5                        ; lane 16a+8b+c: element 2b+a of piece c")
            if kind == 0:
                e("s_branch L_rpub")
        e("L_rpub:")
        e("v_and_or_b32 v4, v4, -16, v23")
        for k in range(o.qcopy // 2):
            e(f"buffer_store_dword v4, v3, s[{S_WS}:{S_WS + 3}], s{S_W + k} offen sc1")
            if k == 0:
                self.stamp(9)
        if o.clean == "r":
            for i in range(4):
                e(f"v_mov_b32 v{8 + i}, 0")
            for k in range(4):
                e(f"buffer_store_dwordx4 v[8:11], v{V_Q}, s[{S_WS}:{S_WS + 3}], s{S_V + k} offen sc1")
        e("s_barrier")
        e("s_branch L_afterw")

        if o.pad:
            e(f".fill {o.pad // 4}, 4, 0xbf800000")
        e("L_spill:")
        e(f"s_lshl_b32 s{S_T0}, s{S_WAVE}, 13")
        e(f"v_lshl_add_u32 v{V_AT}, v1, 4, s{S_T0}")
        for k in range(8):
            e(f"ds_write_b128 v{V_AT}, v[{SP0 + 4 * k}:{SP0 + 4 * k + 3}] offset:{L_SPILL + 1024 * k}")
        e("L_barw:")
        if o.tlb:
            e(f"s_cmp_lg_u32 s{S_WAVE}, 5")
            e("s_cbranch_scc1 L_notlb")
            e(f"v_lshlrev_b32 v2, {o.tlb}, v1")
            e(f"buffer_load_dword v4, v2, s[{S_OUT}:{S_OUT + 3}], 0 offen")
            e("L_notlb:")
        if o.lpf == 1:
            e(f"s_cmp_lg_u32 s{S_WAVE}, 4")
            e("s_cbranch_scc1 L_nolpf")
            e("s_getpc_b64 s[20:21]")
            e("v_lshlrev_b32 v2, 7, v1")
            e("v_min_u32 v2, L_end - L_nolpf, v2")
            e("global_load_dword v4, v2, s[20:21]")
            e("L_nolpf:")
        e("s_waitcnt vmcnt(0) lgkmcnt(0)")
        e("s_barrier")
        e("L_afterw:")
        e("v_bfe_u32 v3, v1, 2, 2")
        e("v_lshl_add_u32 v21, v20, 3, v3            ; row")
        e("v_and_b32 v22, 15, v21                    ; row of the half step (q&1)")
        e("v_and_b32 v3, 3, v1")
        e(f"s_lshl_b32 s{S_T2}, s{S_WAVE}, 5")
        e(f"v_lshl_add_u32 v23, v3, 3, s{S_T2}          ; column bytes")
        e("v_mov_b32 v3, 384")
        e("v_mad_u32_u24 v2, v21, v3, v23")
        e("v_mad_u32_u24 v22, v22, v3, v23")
        e(f"ds_read_b64_tr_b16 v[{B2}:{B2 + 1}], v2 offset:{L_W2}")
        e(f"ds_read_b64_tr_b16 v[{B2 + 2}:{B2 + 3}], v2 offset:{L_W2 + 4 * 384}")
        e(f"ds_read_b64_tr_b16 v[{B2 + 4}:{B2 + 5}], v22 offset:{L_W2 + 32 * 384}")
        e(f"ds_read_b64_tr_b16 v[{B2 + 6}:{B2 + 7}], v22 offset:{L_W2 + 36 * 384}")
        e("v_and_b32 v2, 1, v1")
        e("v_mul_u32_u24 v22, 96, v2")
        e(f"v_lshl_add_u32 v{V_H0}, v20, 4, v22")
        e("v_and_b32 v3, 1, v20")
        e(f"v_lshl_add_u32 v{V_H1}, v3, 4, v22")
        e(f"s_lshl_b32 s{S_T0}, s{S_WAVE}, 6")
        e(f"v_lshl_add_u32 v{V_SW}, v1, 2, s{S_T0}")
        if o.mul == "dot":
            e("v_mov_b32 v3, 0")
            e("s_mov_b64 exec, 0xffff")
            e(f"ds_write_b32 v{V_SW}, v3 offset:{L_S}")
            e("s_mov_b64 exec, -1")
            e(f"v_lshl_add_u32 v{V_SW}, v2, 1, v{V_SW}")
        e("v_and_b32 v3, 7, v1")
        e(f"s_lshl_b32 s{S_T0}, s{S_TY}, 8")
        e(f"v_lshl_add_u32 v{V_SR}, v3, 5, s{S_T0}")
        e("s_waitcnt lgkmcnt(0)")
        e("s_mov_b32 exec_lo, 0")
        for i in range(4):
            e(f"v_mov_b32 v{B2 + 4 + i}, 0")
        e("s_mov_b64 exec, -1")
        e(f"s_cmp_ge_u32 s{S_WAVE}, 3")
        e("s_cbranch_scc1 L_noa1")
        e("v_mov_b32 v3, 96")
        e("v_mad_u32_u24 v2, v21, v3, v23")
        for s in range(6):
            for h in range(2):
                r = A1 + 4 * s + 2 * h
                e(f"ds_read_b64_tr_b16 v[{r}:{r + 1}], v2 offset:{L_W1 + s * 3072 + h * 384}")
        e("L_noa1:")
        e(f"v_lshl_add_u32 v3, v20, 3, v22")
        e(f"v_add_u32 v3, s{S_T2}, v3")
        e("v_lshlrev_b32 v2, 2, v22")
        e("v_lshl_add_u32 v2, v20, 4, v2")
        e("v_and_b32 v8, 1, v1")
        e("v_lshlrev_b32 v8, 4, v8")
        e("v_lshl_add_u32 v8, v20, 2, v8")
        e("v_and_b32 v9, 2, v1")
        e("v_bfe_u32 v10, v1, 2, 1")
        e("v_add3_u32 v8, v8, v9, v10")
        e(f"v_add_lshl_u32 v23, v8, s{S_T2}, 1")
        e("v_lshrrev_b32 v8, 2, v1")
        e("v_lshlrev_b32 v8, 7, v8")
        e("v_and_b32 v9, 3, v1")
        e(f"v_lshl_add_u32 v{V_Q}, v9, 4, v8")
        e(f"s_and_b32 s{S_T0}, s{S_QC}, 4")
        if o.qcopy > 2:
            e(f"s_and_b32 s{S_CNT}, s{S_QC}, {o.qcopy // 2 - 1}")
            e(f"s_mul_i32 s{S_CNT}, s{S_CNT}, 24")
            e(f"s_add_u32 s{S_T0}, s{S_T0}, s{S_CNT}")
        e(f"s_lshr_b32 s{S_T1}, s{S_WAVE}, 2")
        e(f"s_lshl2_add_u32 s{S_T1}, s{S_T1}, s{S_WAVE}")
        e(f"s_add_u32 s{S_T1}, s{S_T1}, s{S_T0}")
        e(f"s_lshl_b32 s{S_T1}, s{S_T1}, 11")
        e(f"s_add_u32 s{S_T1}, s{S_T1}, {WS_Q}")
        if o.clean in ("q", "p", "a", "h", "g"):
            if o.cfull:
                for i in range(4):
                    e(f"v_mov_b32 v{16 + i}, s{S_TG[i]}")
                e("v_lshlrev_b32 v22, 4, v1")
            else:
                e(f"v_mov_b32 v19, s{S_TG[0]}")
            e(f"s_lshl_b32 s{S_V}, s{S_WAVE}, 7")
            e(f"s_add_u32 s{S_V}, s{S_V}, s{S_PO}")
        e(f"s_mov_b32 s{S_CNT}, {NFB}")
        e(f"s_mov_b32 s{S_HOOK}, 0")
        e(f"s_cmp_lt_u32 s{S_WAVE}, 6")
        e("s_cbranch_scc1 L_qpoll0")

        def clean1():
            if o.cfull:
                e("s_mov_b64 exec, 0xff")
                e(f"buffer_store_dwordx4 v[16:19], v22, s[{S_WS}:{S_WS + 3}], s{S_V} offen sc1")
            else:
                e("s_mov_b64 exec, 1")
                e(f"buffer_store_dword v19, off, s[{S_WS}:{S_WS + 3}], s{S_V} sc1")
            e("s_mov_b64 exec, -1")

        for kind in (1, 0):
            op = "v_add_f32" if kind == 0 else "v_max_f32"
            if o.q2:
                def qld(r):
                    e(f"buffer_load_dwordx4 v[{r}:{r + 3}], v{V_Q}, s[{S_WS}:{S_WS + 3}], s{S_T1} offen sc1")

                def qchk(r):
                    e("s_waitcnt vmcnt(1)")
                    for i in range(4):
                        e(f"v_xor_b32 v{4 + i}, s{S_TG[i]}, v{r + i}")
                    e("v_or3_b32 v21, v4, v5, v6")
                    e("v_bitop3_b32 v21, v21, v7, 15 bitop3:0xa8")
                    e("v_cmp_ne_u32 vcc, 0, v21")
                    e("s_wqm_b64 exec, vcc")
                e(f"L_qpoll{kind}:")
                qld(8)
                e(f"s_sleep {o.q2}")
                e(f"L_qloop{kind}:")
                qld(12)
                e(f"s_sub_u32 s{S_CNT}, s{S_CNT}, 1")
                e(f"s_cbranch_scc1 L_qlong{kind}")
                qchk(8)
                e(f"s_cbranch_scc0 L_qgot{kind}")
                qld(8)
                qchk(12)
                e(f"s_cbranch_scc1 L_qloop{kind}")
            else:
                e(f"L_qpoll{kind}:")
                e(f"buffer_load_dwordx4 v[4:7], v{V_Q}, s[{S_WS}:{S_WS + 3}], s{S_T1} offen sc1")
                e(f"s_sub_u32 s{S_CNT}, s{S_CNT}, 1")
                e(f"s_cbranch_scc1 L_qlong{kind}")
                if o.qsleep:
                    e(f"s_sleep {o.qsleep}")
                e("s_waitcnt vmcnt(0)")
                for i in range(4):
                    e(f"v_xor_b32 v{4 + i}, s{S_TG[i]}, v{4 + i}")
                e("v_or3_b32 v21, v4, v5, v6")
                e("v_bitop3_b32 v21, v21, v7, 15 bitop3:0xa8")
                e("v_cmp_ne_u32 vcc, 0, v21")
                e("s_wqm_b64 exec, vcc")
                e(f"s_cbranch_scc1 L_qpoll{kind}")
            e(f"L_qgot{kind}:")
            if o.clean == "p":
                e("s_mov_b64 exec, 1")
                e(f"buffer_store_dword v19, off, s[{S_WS}:{S_WS + 3}], s{S_V} sc1")
            e("s_mov_b64 exec, -1")
            self.stamp(5)
            e("v_permlane32_swap_b32 v4, v6")
            e("v_permlane32_swap_b32 v5, v7")
            e(f"{op} v4, v4, v6")
            e(f"{op} v5, v5, v7")
            e("s_nop 1")
            e("v_permlane16_swap_b32 v4, v5")
            e(f"{op} v4, v4, v5")
            e(f"s_cmp_ge_u32 s{S_WAVE}, 3")
            e("s_nop 0")
            e(f"{op}_dpp v4, v4, v4 row_ror:8 row_mask:0xf bank_mask:0xf")
            if kind == 0:
                e("v_mul_f32 v4, 0x36800000, v4              ; 1/262144")
            e("v_cvt_pk_bf16_f32 v4, v4, v4")
            e(f"ds_write_b16 v23, v4 offset:{L_F}")
            if o.q2:
                e("s_waitcnt vmcnt(0)")
            if o.clean == "q" or (o.clean == "h" and kind == 1) or (o.clean == "g" and kind == 0):
                clean1()
            e("s_waitcnt lgkmcnt(0)")
            e("s_barrier")
            if kind == 1:
                if o.clean in ("a", "g"):
                    clean1()
                e("s_branch L_join")
            else:
                e("s_cbranch_scc1 " + ("L_clean0" if o.clean in ("a", "h") else "L_join"))

        e("L_mlp1:")
        for s in range(6):
            e(f"ds_read_b128 v[{B1[s]}:{B1[s] + 3}], v2 offset:{L_F + 64 * s}")
        if o.clean in ("a", "h"):
            clean1()
        for s in range(6):
            c = "0" if s == 0 else "v[20:23]"
            b = B1[s]
            e(f"s_waitcnt lgkmcnt({5 - s})")
            e(f"v_mfma_f32_16x16x32_bf16 v[20:23], v[{A1 + 4 * s}:{A1 + 4 * s + 3}], v[{b}:{b + 3}], {c}")
        e("s_nop 3")
        e("s_mov_b32 exec_lo, 0x00030003")
        e("s_mov_b32 exec_hi, 0x00030003")
        e("s_nop 1")
        for i in range(4):
            e(f"v_maximum3_f32 v{20 + i}, v{20 + i}, 0, 0")
        e("v_cvt_pk_bf16_f32 v20, v20, v21")
        e("v_cvt_pk_bf16_f32 v21, v22, v23")
        e(f"ds_write_b64 v3, v[20:21] offset:{L_H}")
        e("s_mov_b64 exec, -1")
        e("s_waitcnt lgkmcnt(0)")

        e("L_join:")
        e("s_barrier")
        self.stamp(6)
        e(f"ds_read_b128 v[4:7], v{V_H0} offset:{L_H}")
        e(f"ds_read_b128 v[8:11], v{V_H1} offset:{L_H + 64}")
        e("s_waitcnt lgkmcnt(1)")
        e(f"v_mfma_f32_16x16x32_bf16 v[12:15], v[4:7], v[{B2}:{B2 + 3}], 0")
        e("s_waitcnt lgkmcnt(0)")
        e(f"v_mfma_f32_16x16x32_bf16 v[12:15], v[8:11], v[{B2 + 4}:{B2 + 7}], v[12:15]")
        e("s_mov_b64 exec, 0xffff")
        e("s_nop 6")
        e("v_cvt_pk_bf16_f32 v12, 0, v12")
        e("v_cvt_pk_bf16_f32 v13, 0, v13")
        e("v_add_f32 v12, v12, v13")
        e("v_cvt_pk_bf16_f32 v12, 0, v12")
        e("v_mul_f32 v12, 0xbfb8aa3b, v12            ; -log2(e)")
        e("v_exp_f32 v12, v12")
        e("s_nop 0")
        e("v_add_f32 v12, 1.0, v12")
        e("v_rcp_f32 v12, v12")
        e("s_nop 0")
        if o.mul == "dot":
            e("v_cvt_pk_bf16_f32 v12, v12, v12")
            e(f"ds_write_b16 v{V_SW}, v12 offset:{L_S}")
        else:
            e("v_cvt_pk_bf16_f32 v12, 0, v12")
            e(f"ds_write_b32 v{V_SW}, v12 offset:{L_S}")
        e("s_mov_b64 exec, -1")
        e("s_waitcnt lgkmcnt(0)")
        e("s_barrier")
        e(f"ds_read_b128 v[4:7], v{V_SR} offset:{L_S}")
        e(f"ds_read_b128 v[8:11], v{V_SR} offset:{L_S + 16}")

        if o.stlim:
            e(f"s_cmp_lt_u32 s2, {o.stlim}")
            e(f"s_cselect_b32 s{S_OUT + 2}, s{S_OUT + 2}, 0")
        zorder = [int(v) for v in o.zorder.split(",")]
        assert sorted(zorder) == list(range(16))
        restored = False
        late = []

        def wbl2():
            wv, lim, pos = [int(v) for v in o.wb.split(",")]
            e(f"s_cmp_lt_u32 s{S_WAVE}, {wv}")
            e("s_cbranch_scc1 L_nowb")
            e(f"s_cmp_ge_u32 s2, {lim}")
            e("s_cbranch_scc1 L_nowb")
            if pos == 33:
                e("s_waitcnt vmcnt(0)")
            e("buffer_wbl2 sc1")
            e("L_nowb:")
        jorder = [int(v) for v in o.jorder.split(",")] if o.jorder else [2 * z + u for z in zorder for u in (0, 1)]
        assert sorted(jorder) == list(range(32))
        self.pz = None
        for n, j in enumerate(jorder):
            a = D0 + 4 * j
            t0 = 12 + 8 * (n & 1)
            if a >= SP0 and not restored:
                assert n > 1
                e("s_waitcnt lgkmcnt(0)")
                restored = True
            md = o.mul
            for i in range(4 if md in ("pk", "mul", "u", "um") else 0):
                t = t0 + 2 * i
                e(f"v_lshlrev_b32 v{t}, 16, v{a + i}")
                e(f"v_and_b32 v{t + 1}, s{S_MASK}, v{a + i}")
            if n == 0:
                e("s_waitcnt lgkmcnt(0)")
                self.stamp(7)
            if o.al:
                e(f".p2align {o.al & 15}")
                if o.al >> 4:
                    e("s_nop 0")
            for i in range(4):
                t = t0 + 2 * i
                if md in ("pk", "um"):
                    e(f"v_pk_mul_f32 v[{t}:{t + 1}], v[{t}:{t + 1}], v[{4 + 2 * i}:{5 + 2 * i}]")
                if md == "mul":
                    e(f"v_mul_f32 v{t}, v{t}, v{4 + 2 * i}")
                    e(f"v_mul_f32 v{t + 1}, v{t + 1}, v{5 + 2 * i}")
                if md == "dot":
                    e(f"v_dot2_f32_bf16 v{t}, v{a + i}, v{4 + 2 * i}, 0")
                    e(f"v_dot2_f32_bf16 v{t + 1}, v{a + i}, v{5 + 2 * i}, 0")
            for i in range(4):
                t = t0 + 2 * i
                if md in ("pk", "mul", "dot"):
                    e(f"v_cvt_pk_bf16_f32 v{a + i}, v{t}, v{t + 1}")
                if md == "c":
                    e(f"v_cvt_pk_bf16_f32 v{a + i}, v{a + i}, v{a + (i ^ 1)}")
            def st(j=j, a=a, n=n):
                self.mem(j, lambda va, so: e(f"buffer_store_dwordx4 v[{a}:{a + 3}], {va}, s[{S_OUT}:{S_OUT + 3}], {so} offen{'' if n >= 32 - o.nplain else stf}"))
            if n < o.burst:
                st()
            else:
                late.append(st)
            if n == 31:
                for f in late:
                    f()
            if o.xfer and n == o.xspos:
                e(f"s_cmp_lg_u32 s{S_XR}, 2")
                e("s_cbranch_scc1 L_nox4")
                e(f"ds_read_b128 v[28:31], v{V_AT}")
                e(f"v_xad_u32 v32, v{V_G1}, s{S_XP}, v{V_L}")
                e("s_waitcnt lgkmcnt(0)")
                for i in range(4):
                    e(f"v_dot2_f32_bf16 v{12 + 2 * i}, v{28 + i}, v{4 + 2 * i}, 0")
                    e(f"v_dot2_f32_bf16 v{13 + 2 * i}, v{28 + i}, v{5 + 2 * i}, 0")
                for i in range(4):
                    e(f"v_cvt_pk_bf16_f32 v{28 + i}, v{12 + 2 * i}, v{13 + 2 * i}")
                e(f"buffer_store_dwordx4 v[28:31], v32, s[{S_OUT}:{S_OUT + 3}], s{S_XO} offen{stf}")
                e("L_nox4:")
            if n + 1 in o.sbar:
                e("s_barrier")
            if o.sthr and n >= o.sthr:
                e(f"s_waitcnt vmcnt({o.sthr - 1})")
            if o.wb and int(o.wb.split(",")[2]) == n:
                wbl2()
            if n & 1:
                self.trace("st", n >> 1)
            if n == 1:
                e(f"s_cmp_ge_u32 s{S_WAVE}, 3")
                e("s_cbranch_scc1 L_norestore")
                for k in range(8):
                    e(f"ds_read_b128 v[{SP0 + 4 * k}:{SP0 + 4 * k + 3}], v{V_AT} offset:{L_SPILL + 1024 * k}")
                e("L_norestore:")
                if o.clean == "st":
                    clean("L_noclean", 28, 32)
                    e("L_noclean:")
        if o.clean == "e":
            clean("L_noclean", 28, 32)
            e("L_noclean:")
        if o.wb and int(o.wb.split(",")[2]) >= 32:
            wbl2()
        if o.stamps:
            self.stamp(8)
            e("s_waitcnt vmcnt(0)")
            self.stamp(10)
            if o.idleclk:
                e(f"s_cmp_lg_u32 s{S_WAVE}, 11")
                e("s_cbranch_scc1 L_noidle")
                for lbl, dur, m, r in (("a", o.idleclk, 1, 3), ("b", 2000, 2, 6)):
                    e("s_memrealtime s[96:97]")
                    e("s_waitcnt lgkmcnt(0)")
                    e(f"L_idle{lbl}:")
                    e("s_sleep 4")
                    e("s_memrealtime s[98:99]")
                    e("s_waitcnt lgkmcnt(0)")
                    e("s_sub_u32 s98, s98, s96")
                    e(f"s_cmp_lt_u32 s98, {dur}")
                    e(f"s_cbranch_scc1 L_idle{lbl}")
                    e(f"s_memtime s[{S_STAMP + 2 * m}:{S_STAMP + 2 * m + 1}]")
                    e(f"s_memrealtime s[{S_STAMP + 2 * r}:{S_STAMP + 2 * r + 1}]")
                e("L_noidle:")
            e("s_getreg_b32 s94, hwreg(HW_REG_XCC_ID)")
            e("s_getreg_b32 s95, hwreg(HW_REG_HW_ID)")
            e("s_waitcnt lgkmcnt(0)")
            e("v_mov_b32 v2, 0")
            for i in range(11 if o.trace else 14):
                e(f"v_writelane_b32 v2, s{S_STAMP + 2 * i}, {i}")
            e("v_writelane_b32 v2, s94, 14")
            e("v_writelane_b32 v2, s95, 15")
            e(f"s_mul_i32 s{S_T0}, s2, 12")
            e(f"s_add_u32 s{S_T0}, s{S_T0}, s{S_WAVE}")
            e(f"s_lshl_b32 s{S_T0}, s{S_T0}, 6")
            e(f"s_add_u32 s{S_T0}, s{S_T0}, {WS_STAMP}")
            e("v_mbcnt_lo_u32_b32 v3, -1, 0")
            e("v_lshlrev_b32 v3, 2, v3")
            e("s_mov_b64 exec, 0xffff")
            e(f"buffer_store_dword v2, v3, s[{S_WS}:{S_WS + 3}], s{S_T0} offen sc1")
            if o.trace:
                e("s_mov_b32 s91, s92")
                for i in range(16):
                    e(f"v_writelane_b32 v2, s{76 + i}, {i}")
                e(f"s_add_u32 s{S_T0}, s{S_T0}, {1 << 19}")
                e(f"buffer_store_dword v2, v3, s[{S_WS}:{S_WS + 3}], s{S_T0} offen sc1")
        if o.dbgptr:
            e("s_cmp_lg_u32 s2, 0")
            e("s_cbranch_scc1 L_nodp")
            e("s_mov_b64 exec, -1")
            e("v_mov_b32 v2, 0")
            for i, r in enumerate((4, 5, 8, 9, 12, 13, 16, 17, 0, 1)):
                e(f"v_writelane_b32 v2, s{r}, {i}")
            e("v_mbcnt_lo_u32_b32 v3, -1, 0")
            e("v_lshlrev_b32 v3, 2, v3")
            e("s_mov_b64 exec, 0x3ff")
            e(f"buffer_store_dword v2, v3, s[{S_DBG}:{S_DBG + 3}], 0 offen offset:8")
            e("L_nodp:")
        if o.probe:
            idx, K = [int(v) for v in o.probe.split(",")]
            if idx == -6:
                pass
            elif idx == -5:
                e("s_cmp_ge_u32 s2, 8")
                e("s_cbranch_scc1 L_end")
            elif idx == -2:
                e("s_getreg_b32 s94, hwreg(HW_REG_XCC_ID)")
                e("s_xor_b32 s94, s94, s2")
                e("s_and_b32 s94, s94, 7")
                e("s_cbranch_scc0 L_end")
            elif idx == -3:
                e("s_cmp_lg_u32 s2, 0")
                e("s_cbranch_scc1 L_end")
            else:
                e(f"s_cmp_lg_u32 s2, {o.pwg}")
                e("s_cbranch_scc1 L_end")
            e(f"s_cmp_lg_u32 s{S_WAVE}, {o.pwave}")
            e("s_cbranch_scc1 L_end")
            if idx == -6:
                e(f"s_sub_u32 s96, s{S_STAMP + 20}, s{S_STAMP}")
                e(f"s_mul_i32 s96, s96, {K}")
            elif idx == -5:
                e("s_mov_b32 s96, 0")
                e("L_sk:")
                e("s_sleep 100")
                e("s_add_u32 s96, s96, 1")
                e("s_cmp_lt_u32 s96, 4")
                e("s_cbranch_scc1 L_sk")
                e(f"s_mov_b32 s94, {WS_STAMP}")
                e(f"buffer_load_dword v4, off, s[{S_WS}:{S_WS + 3}], s94 sc1")
                e("s_waitcnt vmcnt(0)")
                e("v_readfirstlane_b32 s94, v4")
                e(f"s_sub_u32 s95, s{S_STAMP}, s94")
                e(f"s_mul_i32 s95, s95, {K - 1}")
                e("s_add_u32 s96, s95, 8000")
            elif idx == -4:
                c0, c1, r0, r1 = ((11, 12, 0, 7), (12, 13, 7, 10))[K]
                e(f"s_sub_u32 s94, s{S_STAMP + 2 * c1}, s{S_STAMP + 2 * c0}")
                e(f"s_sub_u32 s95, s{S_STAMP + 2 * r1}, s{S_STAMP + 2 * r0}")
                e("v_cvt_f32_u32 v4, s94")
                e("v_cvt_f32_u32 v5, s95")
                e("v_rcp_f32 v5, v5")
                e("s_nop 1")
                e("v_mul_f32 v4, v4, v5")
                e("v_mul_f32 v4, 0x44fa0000, v4")
                e("v_cvt_u32_f32 v4, v4")
                e("s_nop 1")
                e("v_readfirstlane_b32 s96, v4")
                e("s_sub_u32 s96, s96, 31000")
            elif idx <= -10:
                e(f"s_bfe_u32 s94, s{-idx - 10}, {(7 << 16)} + {K}")
                e("s_mul_i32 s96, s94, 200")
                e("s_add_u32 s96, s96, 5000")
            elif idx == -3:
                e("s_getreg_b32 s94, hwreg(HW_REG_XCC_ID)")
                e("s_and_b32 s94, s94, 7")
                e(f"s_mul_i32 s96, s94, {K}")
                e("s_add_u32 s96, s96, 5000")
            elif idx < 0:
                e(f"s_mov_b32 s96, {K}")
            else:
                e(f"s_sub_u32 s96, s{S_STAMP + 2 * idx}, s{S_STAMP + 2 * o.pref}")
                e(f"s_mul_i32 s96, s96, {K}")
                if o.pref:
                    e("s_add_u32 s96, s96, 5000")
            e("s_min_u32 s96, s96, 200000")
            e("L_probe:")
            e("s_memrealtime s[98:99]")
            e("s_waitcnt lgkmcnt(0)")
            e(f"s_sub_u32 s98, s98, s{S_STAMP}")
            e("s_cmp_lt_u32 s98, s96")
            e("s_cbranch_scc1 L_probe")
        e("L_end:")
        e("s_endpgm")

        e("@@ROLE")
        e(".p2align 7")
        e("L_role:")
        e("s_load_dwordx4 s[44:47], s[0:1], 32")
        e(f"s_lshr_b32 s{S_V + 1}, s2, 3")
        e(f"s_and_b32 s{S_T1}, s2, 1")
        e(f"s_lshl1_add_u32 s{S_T1}, s{S_T1}, 1")
        e(f"s_mul_i32 s{S_T2}, s2, 0x104100")
        e(f"s_cmp_eq_u32 s2, {NVOTE_WG}")
        e("s_waitcnt lgkmcnt(0)")
        e("s_cbranch_scc1 L_tag")
        e(f"s_sub_u32 s{S_T0}, s{S_OUT}, s{S_X}")
        e(f"s_addk_i32 s{S_T0}, 2048")
        e(f"s_bitcmp1_b32 s{S_T0}, 12")
        e(f"s_cselect_b32 s{S_V}, {o.qout}, {o.qgen}")
        e(f"s_cselect_b32 s{S_V + 2}, s{S_V + 1}, 1")
        e(f"s_cmp_eq_u32 s{S_V + 2}, 2")
        e(f"s_cselect_b32 s{S_V + 1}, s{S_T1}, s{S_V + 1}")
        e(f"s_bitcmp1_b32 s{S_V + 1}, 0")
        e(f"s_cselect_b64 s[{S_W}:{S_W + 1}], s[8:9], s[4:5]")
        e(f"s_lshr_b32 s{S_T1}, s{S_V + 1}, 1")
        e(f"s_lshl_b32 s{S_T1}, 0x2000000, s{S_T1}")
        e(f"s_add_u32 s{S_T2}, s{S_T2}, s{S_T1}")
        e(f"s_lshr_b32 s{S_T0}, s{S_OUT}, 7")
        e(f"s_mul_i32 s{S_T0}, s{S_T0}, 21")
        e(f"s_and_b32 s{S_T0}, s{S_T0}, 63")
        e(f"s_mulk_i32 s{S_T0}, 384")
        e(f"s_add_u32 s{S_T0}, s{S_T0}, s{S_T2}")
        e(f"s_cmp_lg_u32 s{S_V + 2}, 0")
        e(f"s_cselect_b32 s{S_V + 3}, s{S_OUT}, 0")
        e("s_cbranch_scc1 L_notws")
        e(f"s_mov_b64 s[{S_W}:{S_W + 1}], s[46:47]")
        e(f"s_mov_b32 s{S_V}, {o.qws}")
        e(f"s_and_b32 s{S_T0}, s{S_T2}, 0xfffff")
        e(f"s_add_u32 s{S_T0}, s{S_T0}, {WS_PROBE}")
        e("L_notws:")
        e(f"s_add_u32 s{S_T1}, s{S_T0}, 8192")
        self.stamp(1, True)
        e(f"s_load_dword s42, s[{S_W}:{S_W + 1}], s{S_T0} glc")
        e(f"s_load_dword s43, s[{S_W}:{S_W + 1}], s{S_T1} glc")
        e(f"s_mov_b32 s{S_CNT}, {-(NRACE // 2)}")
        if o.dpf:
            e(f"s_load_dword s23, s[44:45], 192 glc")
        for k in range(NRACE):
            e("s_waitcnt lgkmcnt(0)")
            if k < 2:
                self.stamp(2 + k, True)
                if o.vdiag:
                    e("s_waitcnt lgkmcnt(0)")
            first, second = (S_T0, S_T1) if k % 2 == 0 else (S_T1, S_T0)
            e(f"s_load_dword s42, s[{S_W}:{S_W + 1}], s{first} glc")
            e(f"s_load_dword s43, s[{S_W}:{S_W + 1}], s{second} glc")
            e("s_waitcnt lgkmcnt(1)")
            e("s_nop 7")
            e(f"s_getreg_b32 s{S_T2}, hwreg(HW_REG_IB_STS, 8, 4)   ; 1: the second answer is still out")
            if k % 2 == 0:
                e(f"s_xor_b32 s{S_T2}, s{S_T2}, 1")
            e(f"s_add_u32 s{S_CNT}, s{S_CNT}, s{S_T2}")
        assert NRACE % 2 == 0 and o.qout <= 12 and o.qws <= 8 and o.qgen <= 8 and NVOTE_WG == 32
        e(f"s_sub_u32 s{S_T2}, 0, s{S_CNT}")
        e(f"s_add_u32 s{S_T0}, s{S_T0}, s{S_V + 3}")
        e(f"s_lshr_b32 s{S_T0}, s{S_T0}, 19")
        e(f"s_getreg_b32 s{S_T1}, hwreg(HW_REG_XCC_ID, 0, 3)")
        e(f"s_xor_b32 s{S_T0}, s{S_T0}, s{S_T1}")
        e(f"s_bitcmp1_b32 s{S_T0}, 2")
        e(f"s_cselect_b32 s{S_CNT}, s{S_T2}, s{S_CNT}")
        e(f"s_lshl_b32 s{S_CNT}, s{S_CNT}, 8")
        e(f"s_or_b32 s{S_CNT}, s{S_CNT}, 1")
        e(f"s_mov_b32 s{S_T1}, s{S_CNT}")
        e(f"s_lshl2_add_u32 s{S_T0}, s{S_V + 1}, {DBG_TAL}")
        self.stamp(6, True)
        e(f"s_atomic_add s{S_T1}, s[44:45], s{S_T0} glc")
        e(f"s_mul_i32 s{S_T2}, s{S_V + 1}, 6")
        e("s_waitcnt lgkmcnt(0)")
        e(f"s_add_u32 s{S_T1}, s{S_T1}, s{S_CNT}")
        self.stamp(13)
        e(f"s_and_b32 s{S_T0}, s{S_T1}, 0xff")
        e(f"s_cmp_lg_u32 s{S_T0}, s{S_V}")
        e("s_cbranch_scc1 L_stream")
        e(f"s_cmp_gt_i32 s{S_T1}, 0xff")
        e(f"s_cselect_b32 s{S_T1}, 3, 1")
        e(f"s_add_u32 s{S_T2}, s{S_T2}, 11")
        e(f"s_lshl_b32 s{S_T1}, s{S_T1}, s{S_T2}")
        e("L_publish:")
        e(f"s_atomic_add s{S_T1}, s[44:45], {DBG_RES}")
        e("s_waitcnt lgkmcnt(0)")
        e("s_branch L_stream")

        e("L_tag:")
        e(f"s_mov_b32 s{S_T1}, 1")
        e("s_waitcnt lgkmcnt(0)")
        e(f"s_atomic_add s{S_T1}, s[46:47], {WS_E} glc")
        e("s_waitcnt lgkmcnt(0)")
        e(f"s_add_u32 s{S_T1}, s{S_T1}, 1")
        e(f"s_and_b32 s{S_T1}, s{S_T1}, 0xff")
        e(f"s_bitset1_b32 s{S_T1}, 8")
        assert NVOTE_WG % 8 == 0
        e(f"s_getreg_b32 s{S_T0}, hwreg(HW_REG_XCC_ID, 0, 3)")
        e(f"s_lshl_b32 s{S_T0}, s{S_T0}, 13")
        e(f"s_or_b32 s{S_T1}, s{S_T1}, s{S_T0}")
        self.stamp(13)
        e("s_branch L_publish")

        e("@@RARE")
        if o.clean in ("a", "h"):
            e("L_clean0:")
            clean1()
            e("s_branch L_join")
        for nm in ("r", "q0", "q1"):
            k = nm[1:]
            e(f"L_{nm[0]}long{k}:")
            e("s_waitcnt vmcnt(0)")
            e(f"s_cmp_lg_u32 s{S_HOOK}, 0")
            e(f"s_cbranch_scc1 L_{nm[0]}got{k}")
            e(f"s_call_b64 s[{S_RET}:{S_RET + 1}], L_flush")
            e(f"s_branch L_{nm[0]}poll{k}")
        e("L_flush:")
        e(f"s_mov_b32 s{S_CNT}, {SPIN}")
        e(f"s_mov_b32 s{S_HOOK}, {SPIN}")
        e("s_mov_b32 exec_lo, -1")
        e("s_mov_b32 exec_hi, 0xffff")
        e("v_lshlrev_b32 v13, 4, v1")
        e("L_floop:")
        e(f"buffer_load_dwordx4 v[8:11], v13, s[{S_WS}:{S_WS + 3}], s{S_PO} offen sc1")
        e(f"buffer_load_dwordx4 v[4:7], v13, s[{S_WS}:{S_WS + 3}], s{S_PO} offen offset:768 sc1")
        e(f"s_sub_u32 s{S_HOOK}, s{S_HOOK}, 1")
        e("s_waitcnt vmcnt(0)")
        e(f"v_xor_b32 v12, s{S_TG[0]}, v8")
        for r in (9, 10, 11, 4, 5, 6, 7):
            e(f"v_bitop3_b32 v12, v12, v{r}, s{S_TG[r & 3]} bitop3:0xf6")
        e("v_and_b32 v12, 15, v12")
        e("v_cmp_ne_u32 vcc, 0, v12")
        e("s_cbranch_scc1 L_fdone")
        e("s_cbranch_vccnz L_floop")
        e("L_fdone:")
        e(f"buffer_store_dwordx4 v[8:11], v13, s[{S_WS}:{S_WS + 3}], s{S_PO} offen sc1")
        e(f"buffer_store_dwordx4 v[4:7], v13, s[{S_WS}:{S_WS + 3}], s{S_PO} offen offset:768 sc1")
        e("s_waitcnt vmcnt(0)")
        e("s_mov_b64 exec, -1")
        e(f"s_mov_b32 s{S_HOOK}, -1")
        e(f"s_setpc_b64 s[{S_RET}:{S_RET + 1}]")

        e("@@DPOLL")
        e("L_dpoll:")
        e(f"s_mov_b32 s{S_CNT}, {SPIN}")
        e(f"v_mov_b32 v{V_AT}, 0")
        e("s_mov_b64 exec, 1")
        e("L_dloop:")
        e(f"buffer_load_dword v{V_AT}, off, s[{S_DBG}:{S_DBG + 3}], 0 offset:{DBG_RES} sc1")
        e(f"s_sleep {o.dsleep}")
        e("s_waitcnt vmcnt(24)")
        e(f"v_readfirstlane_b32 s{S_T2}, v{V_AT}          ; whatever poll has landed last")
        e(f"s_sub_u32 s{S_CNT}, s{S_CNT}, 1")
        e("s_cbranch_scc1 L_dgot")
        e(f"s_andn2_b32 s{S_OFF}, s{S_OK}, s{S_T2}")
        e("s_cbranch_scc1 L_dloop")
        e("L_dgot:")
        e("s_mov_b64 exec, -1")
        e("s_branch L_decided")

        e("@@END")
        L = self.lines
        ix = {k: L.index("    @@" + k) for k in ("ROLE", "RARE", "DPOLL", "END")}
        role, rare, dpoll = L[ix["ROLE"] + 1:ix["RARE"]], L[ix["RARE"] + 1:ix["DPOLL"]], L[ix["DPOLL"] + 1:ix["END"]]
        main = L[:ix["ROLE"]]
        p1, p2 = main.index("    @@HERE1"), main.index("    @@HERE2")
        if o.lay:
            self.lines = (main[:p1] + ["    s_branch L_skip1"] + role + dpoll + ["L_skip1:"] + main[p1 + 1:p2]
                          + ["    s_branch L_tail"] + rare + ["    .p2align 12", "L_tail:"] + main[p2 + 1:])
        else:
            self.lines = main[:p1] + main[p1 + 1:p2] + main[p2 + 1:] + role + rare + dpoll

    def text(self):
        out = HEADER
        out += f"; @launch grid=({NWG},1,1) block=(768,1,1) lds={L_TOTAL}\n"
        out += '.amdgcn_target "amdgcn-amd-amdhsa--gfx950"\n.text\n'
        out += f".globl {KNAME}\n.p2align 8\n.type {KNAME},@function\n{KNAME}:\n"
        out += "\n".join(self.lines) + "\n"
        out += f""".section .rodata,"a"
.p2align 6
.amdhsa_kernel {KNAME}
  .amdhsa_next_free_vgpr 168
  .amdhsa_next_free_sgpr {100 if self.o.stamps else 96 if self.o.xfer else 56}
  .amdhsa_accum_offset 168
  .amdhsa_group_segment_fixed_size 0
  .amdhsa_kernarg_size 48
  .amdhsa_user_sgpr_count 2
  .amdhsa_user_sgpr_kernarg_segment_ptr 1
  .amdhsa_system_sgpr_workgroup_id_x 1
  .amdhsa_float_denorm_mode_32 3
.end_amdhsa_kernel
"""
        return out


def main():
    p = argparse.ArgumentParser()
    p.add_argument("-o", default="standalone__channel_attn_cbam__vision.s")
    p.add_argument("--ldflags", default="nt")
    p.add_argument("--stflags", default="sc1")
    p.add_argument("--p1flags", default="sc1")
    p.add_argument("--stamps", action="store_true")
    p.add_argument("--probe", default="")
    p.add_argument("--depth", type=int, default=10)
    p.add_argument("--nrace", type=int, default=2)
    p.add_argument("--dsleep", type=int, default=8)
    p.add_argument("--trace", default="")
    p.add_argument("--nodec", action="store_true")
    p.add_argument("--vdiag", action="store_true")
    p.add_argument("--dbgptr", action="store_true")
    p.add_argument("--opp", default="5,9", type=lambda v: [int(x) for x in v.split(",")])
    p.add_argument("--quorum", type=int, default=16)
    p.add_argument("--quorum4", type=int, default=24)
    p.add_argument("--nvote", type=int, default=32)
    p.add_argument("--nagn", type=int, default=6)
    p.add_argument("--stlim", type=int, default=0)
    p.add_argument("--psc1", action="store_true")
    p.add_argument("--pnt", action="store_true")
    p.add_argument("--q2", type=int, default=0)
    p.add_argument("--xfer", type=int, default=0)
    p.add_argument("--xpos", type=int, default=26)
    p.add_argument("--xspos", type=int, default=26)
    p.add_argument("--qout", type=int, default=7)
    p.add_argument("--qws", type=int, default=4)
    p.add_argument("--qgen", type=int, default=5)
    p.add_argument("--jorder", default="12,0,13,1,14,2,15,3,16,4,17,5,18,6,19,7,20,8,21,9,22,10,23,11,24,25,26,27,28,29,30,31")
    p.add_argument("--urot", type=int, default=0)
    p.add_argument("--lmap", type=int, default=0)
    p.add_argument("--qrot", type=int, default=0)
    p.add_argument("--umap", type=int, default=0)
    p.add_argument("--cfull", type=int, default=1)
    p.add_argument("--wtouch", type=int, default=1)
    p.add_argument("--lay", type=int, default=1)
    p.add_argument("--skipfrom", type=int, default=99)
    p.add_argument("--ttail", type=int, default=0)
    p.add_argument("--tlb", type=int, default=0)
    p.add_argument("--rot", type=int, default=0)
    p.add_argument("--pad", type=int, default=0)
    p.add_argument("--lpf", type=int, default=0)
    p.add_argument("--al", type=int, default=0)
    p.add_argument("--cap", type=int, default=0)
    p.add_argument("--capfrom", type=int, default=12)
    p.add_argument("--capto", type=int, default=32)
    p.add_argument("--skewa", type=int, default=1)
    p.add_argument("--skewd", type=int, default=1)
    p.add_argument("--skewc", type=int, default=0)
    p.add_argument("--skew", type=int, default=0, help="timing diagnostic only")
    p.add_argument("--warmfl", default="")
    p.add_argument("--sdiag", action="store_true")
    p.add_argument("--rpf", type=int, default=0)
    p.add_argument("--dpf", type=int, default=0)
    p.add_argument("--pwg", type=int, default=0)
    p.add_argument("--pwave", type=int, default=0)
    p.add_argument("--pref", type=int, default=0)
    p.add_argument("--qshift", type=int, default=32)
    p.add_argument("--rolepos", type=int, default=-1)
    p.add_argument("--prebar", type=int, default=1)
    p.add_argument("--qmap", type=int, default=0)
    p.add_argument("--agnu", type=int, default=4)
    p.add_argument("--warmst", type=int, default=0)
    p.add_argument("--cw", type=int, default=0)
    p.add_argument("--cld", action="store_true")
    p.add_argument("--qflip", type=int, default=0)
    p.add_argument("--qcopy", type=int, default=4)
    p.add_argument("--mul", default="dot")
    p.add_argument("--burst", type=int, default=32)
    p.add_argument("--idleclk", type=int, default=0)
    p.add_argument("--clk", action="store_true")
    p.add_argument("--sthr", type=int, default=0)
    p.add_argument("--sbar", default=[24], type=lambda v: [int(x) for x in v.split(",")])
    p.add_argument("--piece", type=int, default=128)
    p.add_argument("--xbar", default=[24], type=lambda v: [int(x) for x in v.split(",")])
    p.add_argument("--cpf", type=int, default=0)
    p.add_argument("--cpfpos", type=int, default=0)
    p.add_argument("--wpace", type=int, default=40)
    p.add_argument("--clean", default="g")
    p.add_argument("--warm", type=int, default=30)
    p.add_argument("--warmwave", type=int, default=4)
    p.add_argument("--qsleep", type=int, default=0)
    p.add_argument("--red0", type=int, default=8)
    p.add_argument("--redstep", type=int, default=2)
    p.add_argument("--off", default="", help="diagnostics: v = no votes, c = no clears, r = result not read")
    p.add_argument("--spans", default="")
    p.add_argument("--split", action="store_true")
    p.add_argument("--pfback", type=int, default=0)
    p.add_argument("--nplain", type=int, default=0)
    p.add_argument("--wb", default="", help="minwave,wglimit,pos")
    p.add_argument("--thr", type=int, default=2)
    p.add_argument("--thrfrom", type=int, default=12)
    p.add_argument("--thrto", type=int, default=24)
    p.add_argument("--thrmask", default="0x55")
    p.add_argument("--zorder", default="8,0,9,1,10,2,11,3,12,4,13,5,14,6,15,7")
    o = p.parse_args()
    global NAGN, SPANS, NVOTE_WG
    NVOTE_WG = o.nvote
    NAGN = o.nagn
    if NAGN == 6:
        SPANS = [(0, 0), (0, 1), (1, 0), (1, 1), (2, 0), (2, 1),
                 (3, 0), (3, 1), (4, 0), (4, 1), (5, 0), (5, 1), (6, 0), (6, 1), (7, 0), (7, 1)]
        if o.zorder == p.get_default("zorder"):
            o.zorder = "6,0,7,1,8,2,9,3,10,4,11,5,12,13,14,15"
    if o.xfer:
        global L_TOTAL
        L_TOTAL = L_X + 12288
        SPANS[14], SPANS[15] = SPANS[15], SPANS[14]
    if o.spans:
        SPANS = [(int(v[0]), int(v[1])) for v in o.spans.split(",")]
        assert sorted(SPANS) == [(a, b) for a in range(8) for b in range(2)]
    g = G(o)
    g.build()
    open(o.o, "w").write(g.text())


if __name__ == "__main__":
    main()
```

```python
import argparse

KNAME = "standalone__channel_attn_cbam__vision_kernel"

HEADER = """; Kernarg layout for this problem (48 bytes, ptrs only, base s[0:1]):
;   offset   0: d_in[0] x  shape=(1, 512, 512, 192) dtype=bfloat16 strides=(100663296, 196608, 384, 2) contiguous=True
;   offset   8: d_in[1] w1  shape=(192, 48) dtype=bfloat16 strides=(96, 2) contiguous=True
;   offset  16: d_in[2] w2  shape=(48, 192) dtype=bfloat16 strides=(384, 2) contiguous=True
;   offset  40: d_ws      402653184 bytes workspace (unspecified values whenever your kernel or launch list starts; a list's later launches find what earlier ones wrote)
"""

DOC = '''; ---------------------------------------------------------------------------------------------
; x (96 MiB) is read once and stays in registers (128 VGPRs per lane) across a grid-wide
; all-reduce of the per-channel sum and max; every workgroup then runs the small MLP (MFMA),
; scales its registers and writes them out.  A lane always holds the same eight channels.
;
; Which rows a workgroup owns.  The first 36 MiB are dealt out statically.  The rest is shared by
; and writes across them are slow): wave 0 of the first 32 workgroups times two lines against
;
; All-reduce.  Stage 1: the 32 workgroups with the same b % 8 leave 12 lines each in d_ws and
; Stage 1 uses plain stores, which a reader on the same die sees in L2; if a wait lasts, every
; ---------------------------------------------------------------------------------------------
'''

X_BYTES = 100663296
NWG = 256
NRED = 12
MiB = 1 << 20

L_RED = 0
L_H = 6144
L_DEC = 6336
L_S = 6400
L_F = 7168
L_W1 = 8192
L_W2 = L_W1 + 18432
L_SPILL = L_W2 + 18432
L_X = L_SPILL + 3 * 8192
L_TOTAL = L_X

WS_P = 0
WS_Q = 256 * 1536
WS_E = WS_Q + 4 * 49152
WS_USED = WS_E + 128
WS_PROBE = 640 * 1024
WS_STAMP = 1 << 20

S_X, S_OUT, S_WS, S_DBG, S_W = 4, 8, 12, 16, 20
S_WAVE, S_TY, S_SUB, S_OFF, S_MASK, S_CNT, S_T0, S_T1 = 28, 29, 30, 31, 32, 33, 34, 35
S_BASE, S_PM, S_P, S_T2 = 48, 49, 50, 51
S_AGN, S_RID, S_PO = 40, 42, 43
S_TG = [41, 47, 3, 0]
S_RET, S_HOOK, S_QC = 38, 46, 1
S_BASE1 = 45
NFB = 48
S_STAMP = 52
S_V = 24

D0 = 40
SPIN = 400000
V_L, V_G0, V_G1, V_AT = 0, 39, 38, 36

NAGN = 8
SPANS = [(0, 0), (0, 1), (1, 0), (1, 1), (2, 0), (2, 1), (3, 0), (3, 1),
         (6, 0), (4, 0), (6, 1), (4, 1), (7, 0), (5, 0), (7, 1), (5, 1)]
W_ROLE = 0
DBG_RES, DBG_TAL = 0, 128
NVOTE_WG = 32
RES_OK = (1 << 8) | (1 << 11) | (1 << 17) | (1 << 29)
S_OK = 44
S_XR, S_XO, S_XP = 92, 93, 91


def mask(pred):
    return sum(1 << z for z, s in enumerate(SPANS) if pred(z, s))


class G:
    def __init__(self, o):
        self.o = o
        self.lines = []

    def e(self, s=""):
        self.lines.append(("    " + s) if s and not s.endswith(":") else s)

    def stamp(self, idx, vote=False):
        if self.o.clk:
            if idx in (11, 12, 13):
                return
            m = {0: 11, 7: 12, 10: 13}.get(idx)
            if m:
                self.e(f"s_memtime s[{S_STAMP + 2 * m}:{S_STAMP + 2 * m + 1}]")
        if vote == "r":
            vote = False
        if self.o.vdiag and idx in (1, 2, 3, 6) and not vote:
            return
        if vote and not self.o.vdiag:
            return
        if self.o.stamps and not (self.o.trace and idx > 10):
            self.e(f"s_memrealtime s[{S_STAMP + 2 * idx}:{S_STAMP + 2 * idx + 1}]")

    def srd(self, d, lo, nbytes):
        e = self.e
        e(f"s_mov_b64 s[{d}:{d + 1}], s[{lo}:{lo + 1}]")
        e(f"s_mov_b32 s{d + 2}, {nbytes}")
        e(f"s_mov_b32 s{d + 3}, 0x20000")

    def span_off(self, z):
        return SPANS[z][0] * 12 * MiB + SPANS[z][1] * 49152

    def mem(self, j, fn):
        e = self.e
        z, u = j >> 1, j & 1
        if z < NAGN:
            off = (j // self.o.agnu) * (self.o.agnu * 3 * MiB - (self.o.skew if self.o.skewa else 0)) + (j % self.o.agnu) * 12288
            if off:
                e(f"s_add_u32 s{S_OFF}, s{S_AGN}, {off}")
                fn(f"v{V_L}", f"s{S_OFF}")
            else:
                fn(f"v{V_L}", f"s{S_AGN}")
            return
        if getattr(self, "pz", None) != z:
            e(f"s_bitcmp1_b32 s{S_PM}, {z}")
            e(f"s_cselect_b32 s{S_P}, 24576, 0")
            self.pz = z
        e(f"s_add_u32 s{S_OFF}, s{(S_BASE, S_BASE1)[SPANS[z][1]]}, {SPANS[z][0] * 12 * MiB - self.o.skew * (SPANS[z][0] * self.o.skewd + self.o.skewc) + 12288 * u}")
        at = 2 + u
        if self.o.xfer and j == 31:
            e(f"s_cmp_eq_u32 s{S_XR}, 1")
            e(f"s_cselect_b32 s{S_P}, 0x40000000, s{S_P}")
            self.pz = None
        e(f"v_xad_u32 v{at}, v{(V_G0, V_G1)[u]}, s{S_P}, v{V_L}")
        if SPANS[z] == (7, 1):
            e(f"v_add_u32 v{at}, s{S_OFF}, v{at}")
            e(f"v_subrev_u32 v{5 - at}, s{S_X + 2}, v{at}")
            e(f"v_min_u32 v{at}, v{at}, v{5 - at}             ; past the end: wrap to the rows the shift skipped")
            fn(f"v{at}", "0")
        else:
            fn(f"v{at}", f"s{S_OFF}")

    def trace(self, kind, n):
        if self.o.trace == kind:
            if n > 0:
                self.e("s_waitcnt lgkmcnt(0)")
                self.e(f"s_mov_b32 s{76 + n - 1}, s92")
            self.e("s_memrealtime s[92:93]")

    def build(self):
        o, e = self.o, self.e
        NRACE = o.nrace
        ldf = (" " + o.ldflags) if o.ldflags else ""
        stf = (" " + o.stflags) if o.stflags else ""

        self.stamp(0)
        e("s_load_dwordx2 s[4:5], s[0:1], 0          ; x")
        e("s_load_dwordx2 s[8:9], s[0:1], 24         ; out")
        e("v_readfirstlane_b32 s%d, v0" % S_WAVE)
        e("v_and_b32 v1, 63, v0                      ; lane")
        pl = (o.piece // 16).bit_length() - 1
        e(f"v_bfe_u32 v2, v0, {pl}, {6 - pl}")
        e(f"v_mul_u32_u24 v2, {(3 * o.piece, 1536, 768, 384)[o.lmap]}, v2")
        e(f"v_and_b32 v3, {(1 << pl) - 1}, v0")
        e("s_cmpk_ge_u32 s2, %d" % NWG)
        e("s_cbranch_scc1 L_end")
        if o.rot:
            e(f"s_add_u32 s2, s2, {o.rot}")
            e("s_and_b32 s2, s2, 255")
        if o.rolepos < 0:
            e(f"s_lshl2_add_u32 s{S_T1}, s{S_WAVE}, s2")
            e(f"s_cmp_le_u32 s{S_T1}, {NVOTE_WG}              ; wave 0 of the first workgroups has a side job")
            e("s_cbranch_scc1 L_role")
            e("L_stream:")
        if o.lmap == 1:
            e("v_lshl_add_u32 v0, v3, 4, v2")
            e(f"v_lshl_add_u32 v{V_L}, s{S_WAVE}, 1, v0")
            e(f"s_lshr_b32 s{S_WAVE}, s{S_WAVE}, 6")
        elif o.lmap == 3:
            e(f"s_lshr_b32 s{S_TY}, s{S_WAVE}, 8")
            e(f"s_lshr_b32 s{S_WAVE}, s{S_WAVE}, 6")
            e(f"s_and_b32 s{S_SUB}, s{S_WAVE}, 3              ; sub = wave % 4")
            e(f"s_mul_i32 s{S_T0}, s{S_SUB}, 24")
            e(f"s_add_u32 s{S_T0}, s{S_T0}, s{S_TY}")
            e("v_lshl_add_u32 v0, v3, 4, v2")
            e(f"v_lshl_add_u32 v{V_L}, s{S_T0}, 7, v0")
        elif o.lmap == 2:
            e(f"s_lshr_b32 s{S_WAVE}, s{S_WAVE}, 6")
            e(f"s_cmp_ge_u32 s{S_WAVE}, 6")
            e(f"s_cselect_b32 s{S_T0}, 42, 0")
            e(f"s_add_u32 s{S_T0}, s{S_T0}, s{S_WAVE}")
            e("v_lshl_add_u32 v0, v3, 4, v2")
            e(f"v_lshl_add_u32 v{V_L}, s{S_T0}, 7, v0")
        else:
            e(f"s_lshr_b32 s{S_WAVE}, s{S_WAVE}, 6")
            e(f"s_mul_i32 s{S_SUB}, s{S_WAVE}, 43")
            e(f"s_lshr_b32 s{S_SUB}, s{S_SUB}, 7")
            e(f"s_mul_i32 s{S_T0}, s{S_SUB}, {3072 // o.piece - 3}")
            e(f"s_add_u32 s{S_T0}, s{S_T0}, s{S_WAVE}        ; sub*24 + wave % 3")
            e(f"s_lshl_b32 s{S_T0}, s{S_T0}, {pl + 4}")
            e("v_lshl_add_u32 v0, v3, 4, v2")
            e(f"v_add_u32 v{V_L}, s{S_T0}, v0               ; + sub*3072 + (wave % 3)*128")
        if o.umap == 1:
            pass
        elif o.umap >= 2:
            e("; unit = row*8 + ((b*mul + row*rot) & 7)")
            mul, rot = (o.umap >> 4) | 1, o.umap & 7
            e(f"s_lshr_b32 s{S_T1}, s2, 3")
            e(f"s_mul_i32 s{S_T1}, s{S_T1}, {rot}")
            e(f"s_mul_i32 s{S_T0}, s2, {mul}")
            e(f"s_add_u32 s{S_T0}, s{S_T0}, s{S_T1}")
            e(f"s_and_b32 s{S_T0}, s{S_T0}, 7")
            e(f"s_and_b32 s{S_T1}, s2, -8")
            e(f"s_add_u32 s{S_T0}, s{S_T0}, s{S_T1}")
        elif o.qmap == 0:
            e("; 48 KiB unit of this workgroup: pair q = (b>>3)*4 + (b&3), side = (b>>2)&1, unit = 2q + side")
            e(f"s_and_b32 s{S_T0}, s2, 3")
            e(f"s_bfe_u32 s{S_T1}, s2, 0x10002")
            e(f"s_lshl1_add_u32 s{S_T0}, s{S_T0}, s{S_T1}")
            if o.urot:
                e(f"s_lshr_b32 s{S_T1}, s2, {o.urot & 15}")
                if o.urot >> 4:
                    e(f"s_lshl_b32 s{S_T1}, s{S_T1}, {o.urot >> 4}")
                e(f"s_add_u32 s{S_T0}, s{S_T0}, s{S_T1}")
                e(f"s_and_b32 s{S_T0}, s{S_T0}, 7")
            e(f"s_and_b32 s{S_T1}, s2, -8")
            e(f"s_add_u32 s{S_T0}, s{S_T0}, s{S_T1}")
        else:
            e("; unit of this workgroup: neighbours in memory share b % 8")
            e(f"s_and_b32 s{S_T0}, s2, 7")
            e(f"s_lshl_b32 s{S_T0}, s{S_T0}, 5")
            e(f"s_lshr_b32 s{S_T1}, s2, 3")
            e(f"s_add_u32 s{S_T0}, s{S_T0}, s{S_T1}")
        e(f"s_mul_i32 s{S_AGN}, s{2 if o.umap == 1 else S_T0}, {o.agnu * 12288}")
        e(f"s_mov_b32 s{S_X + 2}, {X_BYTES}")
        e(f"s_mov_b32 s{S_X + 3}, 0x20000")
        if o.rolepos >= 0:
            e(f"s_lshl_b32 s{S_T1}, s{S_WAVE}, 8")
            e(f"s_or_b32 s{S_T1}, s{S_T1}, s2")
        if o.sdiag:
            self.stamp(6, True)
        e("s_waitcnt lgkmcnt(0)")
        if o.sdiag:
            self.stamp(1, True)
        e(f"s_lshr_b32 s{S_T0}, s{S_OUT}, 7")
        e(f"s_mul_i32 s{S_T0}, s{S_T0}, 21              ; -43 mod 64")
        e(f"s_and_b32 s{S_T0}, s{S_T0}, 63")
        e(f"s_mulk_i32 s{S_T0}, 384")
        e(f"s_add_u32 s{S_AGN}, s{S_AGN}, s{S_T0}")
        assert W_ROLE == 0

        e("; ---- load + reduce pipeline.  sums v[4:11], maxes v[12:19], temps v[20:35]")
        SUM, MAX, T = 4, 12, 20
        DEPTH = o.depth
        seq = []

        def issue(j):
            if j == o.rolepos:
                e(f"s_cmp_le_u32 s{S_T1}, {NVOTE_WG}              ; wave 0 of the first workgroups has a side job")
                e("s_cbranch_scc1 L_role")
                e("L_stream:")
            if o.cpf and j == o.cpfpos:
                e("; wave 1 of the first workgroups pulls the kernel's code into this die's L2 (values unused)")
                e(f"s_sub_u32 s{S_T1}, s{S_T1}, 256")
                e(f"s_cmp_ge_u32 s{S_T1}, {o.cpf}")
                e("s_cbranch_scc1 L_nocpf")
                e("s_getpc_b64 s[20:21]")
                e("v_lshlrev_b32 v2, 7, v1")
                e("v_add_u32 v3, 8192, v2")
                e("v_min_u32 v3, L_codeend - L_nocpf, v3")
                e("global_load_dword v36, v2, s[20:21]")
                e("global_load_dword v37, v3, s[20:21]")
                e("L_nocpf:")
            if j == max(4, o.rolepos):
                e("s_load_dwordx4 s[36:39], s[0:1], 8        ; w1, w2")
                e(f"s_load_dwordx2 s[{S_DBG}:{S_DBG + 1}], s[0:1], 32")
                e(f"s_load_dwordx2 s[{S_WS}:{S_WS + 1}], s[0:1], 40")
                e(f"s_mov_b32 s{S_MASK}, 0xffff0000")
            if j == 2 * NAGN:
                if o.lmap in (1, 2):
                    e(f"s_mul_i32 s{S_SUB}, s{S_WAVE}, 43")
                    e(f"s_lshr_b32 s{S_SUB}, s{S_SUB}, 7")
                if o.lmap != 3:
                    e(f"s_mul_i32 s{S_TY}, s{S_SUB}, 3")
                    e(f"s_sub_u32 s{S_TY}, s{S_WAVE}, s{S_TY}        ; ty = wave % 3")
                e(f"s_mov_b32 s{S_OUT + 2}, s{S_X + 2}")
                e(f"s_mov_b32 s{S_OUT + 3}, s{S_X + 3}")
                e(f"s_mov_b32 s{S_WS + 2}, {(2 << 20) if o.stamps else WS_USED}")
                e(f"s_mov_b32 s{S_WS + 3}, s{S_X + 3}")
                e(f"s_movk_i32 s{S_DBG + 2}, 256")
                e(f"s_mov_b32 s{S_DBG + 3}, s{S_X + 3}")
                e(f"s_movk_i32 s{S_T2}, 24576")
                e(f"v_bfe_u32 v{V_G0}, v{V_L}, 13, 1")
                e(f"v_add_u32 v{V_G1}, 12288, v{V_L}")
                e(f"v_bfe_u32 v{V_G1}, v{V_G1}, 13, 1")
                e(f"v_mul_u32_u24 v{V_G0}, s{S_T2}, v{V_G0}")
                e(f"v_mul_u32_u24 v{V_G1}, s{S_T2}, v{V_G1}")
                e(f"s_lshr_b32 s{S_T0}, s{S_OUT}, 7")
                e(f"s_mul_i32 s{S_T0}, s{S_T0}, 21")
                e(f"s_and_b32 s{S_T0}, s{S_T0}, 63")
                e(f"s_mulk_i32 s{S_T0}, 384")
                e(f"s_lshr_b32 s{S_BASE}, s2, 3")
                if o.qrot:
                    if o.qrot >= 16:
                        e(f"s_lshr_b32 s{S_T1}, s{S_BASE}, {o.qrot - 16}")
                    else:
                        e(f"s_mul_i32 s{S_T1}, s{S_BASE}, {o.qrot}")
                    e(f"s_add_u32 s{S_T1}, s{S_T1}, s2")
                    e(f"s_and_b32 s{S_T1}, s{S_T1}, 3")
                else:
                    e(f"s_and_b32 s{S_T1}, s2, 3")
                if o.qmap == 0:
                    e(f"s_lshl2_add_u32 s{S_BASE}, s{S_BASE}, s{S_T1}")
                else:
                    e(f"s_lshl_b32 s{S_T1}, s{S_T1}, 5")
                    e(f"s_add_u32 s{S_BASE}, s{S_BASE}, s{S_T1}")
                e(f"s_add_u32 s{S_BASE1}, s{S_BASE}, {o.qshift}")
                e(f"s_and_b32 s{S_BASE1}, s{S_BASE1}, 127")
                e(f"s_mul_i32 s{S_BASE}, s{S_BASE}, 98304")
                e(f"s_add_u32 s{S_BASE}, s{S_BASE}, s{S_T0}        ; the pair's first span of a step")
                e(f"s_mul_i32 s{S_BASE1}, s{S_BASE1}, 98304")
                e(f"s_add_u32 s{S_BASE1}, s{S_BASE1}, s{S_T0}")
                e(f"s_add_u32 s{S_BASE1}, s{S_BASE1}, 49152      ; its second span: 3 MiB on, where the memory stacks swap")
                h1 = mask(lambda z, s: s[1] == 1)
                e(f"s_add_u32 s{S_T2}, s{S_T2}, s{S_OUT}")
                e(f"s_add_u32 s{S_T0}, s{S_BASE}, s{S_T2}")
                e(f"s_bfe_i32 s{S_PM}, s{S_T0}, 0x10015")
                e(f"s_add_u32 s{S_T2}, s{S_BASE1}, s{S_T2}")
                e(f"s_xor_b32 s{S_T0}, s{S_T0}, s{S_T2}")
                e(f"s_bfe_i32 s{S_T0}, s{S_T0}, 0x10015")
                e(f"s_and_b32 s{S_T0}, s{S_T0}, {h1}")
                e(f"s_xor_b32 s{S_PM}, s{S_PM}, s{S_T0}")
                m1 = mask(lambda z, s: z >= NAGN and s[0] in (3, 4))
                z50 = SPANS.index((5, 0))
                z51 = SPANS.index((5, 1))
                dec = mask(lambda z, s: z >= NAGN)
                e(f"s_cmp_lt_u32 s{S_BASE}, {4 * MiB - 24576}")
                e(f"s_cselect_b32 s{S_T0}, {1 << z50}, 0")
                e(f"s_or_b32 s{S_T0}, s{S_T0}, {m1}")
                e(f"s_cmp_lt_u32 s{S_BASE1}, {4 * MiB - 24576}")
                e(f"s_cselect_b32 s{S_T1}, {1 << z51}, 0")
                e(f"s_or_b32 s{S_T0}, s{S_T0}, s{S_T1}            ; third 1")
                e(f"s_xor_b32 s{S_T1}, s{S_T0}, {dec}           ; third 2")
                per, pat = o.opp
                rep = sum(((pat >> (i % per)) & 1) << i for i in range(32))
                e(f"s_lshr_b32 s{S_P}, s2, 3")
                e(f"s_mul_i32 s{S_T2}, s{S_P}, {-(-256 // per)}")
                e(f"s_lshr_b32 s{S_T2}, s{S_T2}, 8")
                e(f"s_mul_i32 s{S_T2}, s{S_T2}, {per}")
                e(f"s_sub_u32 s{S_P}, s{S_P}, s{S_T2}             ; (b >> 3) % {per}")
                e(f"s_lshr_b32 s{S_P}, {rep}, s{S_P}")
                e(f"s_sub_u32 s{S_T2}, s{S_OUT}, s{S_X}")
                e(f"s_add_u32 s{S_T2}, s{S_T2}, 2048")
                e(f"s_bitcmp1_b32 s{S_T2}, 12")
                e(f"s_cselect_b32 s{S_P}, 0, s{S_P}")
                e(f"s_cselect_b32 s{S_OK}, 0, {1 << 23}")
                e(f"s_or_b32 s{S_OK}, s{S_OK}, {RES_OK}       ; the parts of the result word that must be in")
                e(f"s_lshr_b32 s{S_T2}, s2, 3")
                e(f"s_sub_u32 s{S_RID}, s{S_T2}, {o.red0}")
                e(f"s_and_b32 s{S_PO}, s2, 7")
                e(f"s_lshl_b32 s{S_PO}, s{S_PO}, 5")
                e(f"s_add_u32 s{S_PO}, s{S_PO}, s{S_T2}")
                e(f"s_mulk_i32 s{S_PO}, 1536")
                e("s_waitcnt lgkmcnt(0)")
                self.stamp(11)
                e("s_barrier")
                e(f"s_load_dword s{S_T2}, s[{S_DBG}:{S_DBG + 1}], {DBG_RES}")
                e("s_waitcnt lgkmcnt(0)")
                e(f"s_andn2_b32 s{S_CNT}, s{S_OK}, s{S_T2}")
                e("s_cbranch_scc1 L_dpoll")
                e("L_decided:")
                for i in range(4):
                    e(f"s_bitcmp1_b32 s{S_T2}, {7 + 6 * i + 5}")
                    e(f"s_cselect_b32 s{S_V + i}, s{(S_T0, S_T1)[i >> 1]}, 0")
                e(f"s_or_b32 s{S_V}, s{S_V}, s{S_V + 2}")
                e(f"s_or_b32 s{S_V + 1}, s{S_V + 1}, s{S_V + 3}")
                e(f"s_xor_b32 s{S_V}, s{S_V}, s{S_V + 1}")
                e(f"s_and_b32 s{S_V}, s{S_V}, s{S_P}")
                e(f"s_xor_b32 s{S_V}, s{S_V}, s{S_V + 1}")
                e(f"s_xor_b32 s{S_PM}, s{S_PM}, s{S_V}")
                e(f"s_lshr_b32 s{S_QC}, s{S_T2}, 13")
                e(f"s_add_u32 s{S_QC}, s{S_QC}, s2")
                e(f"s_bfe_i32 s{S_V}, s{S_QC}, 0x10002")
                e(f"s_xor_b32 s{S_PM}, s{S_PM}, s{S_V}")
                e(f"s_and_b32 s{S_TG[0]}, s{S_T2}, 15")
                e(f"s_bfe_u32 s{S_TG[1]}, s{S_T2}, 0x40004")
                e(f"s_xor_b32 s{S_TG[2]}, s{S_TG[0]}, 15")
                e(f"s_xor_b32 s{S_TG[3]}, s{S_TG[1]}, 15")
                e(f"s_lshr_b32 s{S_V}, s{S_T2}, 10")
                e(f"s_and_b32 s{S_V}, s{S_V}, 4")
                e(f"s_xor_b32 s{S_QC}, s{S_QC}, s{S_V}           ; bits 2:0: the second-stage copy near this die")
                if o.xfer:
                    e("; dies with an odd number run a little slower: some waves there leave their last slot to the even neighbour")
                    assert SPANS[15] == (7, 0)
                    e(f"s_lshr_b32 s{S_T0}, s{S_T2}, 13")
                    e(f"s_add_u32 s{S_T1}, s{S_T0}, s2")
                    e(f"s_and_b32 s{S_XR}, s{S_T1}, 1")
                    e(f"s_sub_u32 s{S_XR}, 2, s{S_XR}")
                    e(f"s_cmp_ge_u32 s{S_WAVE}, {12 - o.xfer}")
                    e(f"s_cselect_b32 s{S_XR}, s{S_XR}, 0")
                    e(f"s_xor_b32 s{S_T1}, s{S_T1}, 1")
                    e(f"s_sub_u32 s{S_T1}, s{S_T1}, s{S_T0}")
                    e(f"s_and_b32 s{S_T1}, s{S_T1}, 3")
                    e(f"s_and_b32 s{S_T0}, s2, 3")
                    e(f"s_sub_u32 s{S_T1}, s{S_T1}, s{S_T0}")
                    e(f"s_mul_i32 s{S_T1}, s{S_T1}, 98304")
                    e(f"s_add_u32 s{S_XO}, s{S_BASE}, s{S_T1}        ; the neighbour's first span of a step")
                    e(f"s_add_u32 s{S_T0}, s{S_OUT}, 24576")
                    e(f"s_add_u32 s{S_T1}, s{S_T0}, s{S_XO}")
                    e(f"s_add_u32 s{S_T0}, s{S_T0}, s{S_BASE}")
                    e(f"s_xor_b32 s{S_T0}, s{S_T0}, s{S_T1}")
                    e(f"s_lshr_b32 s{S_T0}, s{S_T0}, 6")
                    e(f"s_xor_b32 s{S_T0}, s{S_T0}, s{S_PM}")
                    e(f"s_bitcmp1_b32 s{S_T0}, 15")
                    e(f"s_cselect_b32 s{S_XP}, 24576, 0")
                    e(f"s_add_u32 s{S_XO}, s{S_XO}, {7 * 12 * MiB + 12288}")
                if o.wtouch:
                    e("s_load_dword s22, s[36:37], 0")
                    e("s_load_dword s23, s[38:39], 0")
                self.stamp(12)
            if j in o.xbar:
                e("s_barrier")
                if j == o.xbar[-1]:
                    self.stamp(2, "r")
            if o.xfer and j == o.xpos:
                e(f"s_cmp_lg_u32 s{S_XR}, 2")
                e("s_cbranch_scc1 L_nox1")
                e(f"s_lshl_b32 s{S_T0}, s{S_WAVE}, 10")
                e(f"s_add_u32 m0, s{S_T0}, {L_X}")
                e(f"v_xad_u32 v3, v{V_G1}, s{S_XP}, v{V_L}")
                e(f"buffer_load_dwordx4 v3, s[{S_X}:{S_X + 3}], s{S_XO} offen{ldf} lds")
                e("L_nox1:")
            if j == o.warm and o.warmst:
                e("; waves 0 and 1 claim their first-stage lines in L2 with a pattern that no tag matches")
                e(f"s_cmp_ge_u32 s{S_WAVE}, 2")
                e("s_cbranch_scc1 L_nowarm")
                for i in range(4):
                    e(f"v_mov_b32 v{20 + i}, 0")
                e(f"s_mul_i32 s{S_T0}, s{S_WAVE}, 768")
                e(f"v_lshl_add_u32 v3, v1, 4, s{S_T0}")
                e("s_mov_b32 exec_hi, 0xffff")
                e(f"buffer_store_dwordx4 v[20:23], v3, s[{S_WS}:{S_WS + 3}], s{S_PO} offen")
                e("s_mov_b64 exec, -1")
                e("L_nowarm:")
            if j == o.warm and not o.warmst:
                e("; one wave pulls this workgroup's first-stage lines into L2 (values unused)")
                e(f"s_cmp_lg_u32 s{S_WAVE}, {o.warmwave}")
                e("s_cbranch_scc1 L_nowarm")
                e("v_lshlrev_b32 v3, 7, v1")
                e("s_mov_b64 exec, 0xfff")
                e(f"buffer_load_dword v37, v3, s[{S_WS}:{S_WS + 3}], s{S_PO} offen {o.warmfl}")
                e("s_mov_b64 exec, -1")
                if o.lpf == 2:
                    e("; ... and, in one workgroup per group, the code that is still to run")
                    e(f"s_cmp_lg_u32 s{S_RID}, {NRED}")
                    e("s_cbranch_scc1 L_nowarm")
                    e("s_getpc_b64 s[20:21]")
                    if o.lay:
                        e("v_add_u32 v3, L_tail - L_nowarm + 32, v3")
                    e("v_min_u32 v3, L_end - L_nowarm, v3")
                    e("global_load_dword v37, v3, s[20:21]")
                e("L_nowarm:")
            r = D0 + 4 * j
            if o.thr and j == 10:
                e("; dies with an even number win the fabric arbitration: they keep fewer loads in flight for a while")
                e(f"s_getreg_b32 s{S_T0}, hwreg(HW_REG_XCC_ID, 0, 3)")
                e(f"s_lshr_b32 s{S_T0}, {o.thrmask}, s{S_T0}")
                e(f"s_and_b64 vcc, s[{S_T0}:{S_T0 + 1}], 1")
            if o.cap and o.capfrom <= j < o.capto:
                e(f"s_waitcnt vmcnt({o.cap - 1})")
            if o.thr and o.thrfrom <= j < o.thrto:
                e(f"s_cbranch_vccz L_thr{j}")
                e(f"s_waitcnt vmcnt({o.thr - 1})")
                e(f"L_thr{j}:")
            self.mem(j, lambda va, so: e(f"buffer_load_dwordx4 v[{r}:{r + 3}], {va}, s[{S_X}:{S_X + 3}], {so} offen{ldf}"))
            seq.append(j)
            if o.sdiag and j == 0:
                self.stamp(2, True)
            if o.sdiag and j == 2:
                e("s_waitcnt vmcnt(2)")
                self.stamp(3, True)
            if j & 1:
                self.trace("ld", j >> 1)

        def wait_for(j):
            e(f"s_waitcnt vmcnt({len(seq) - 1 - seq.index(j)})")

        def scatter54():
            e("; ---- in-wave reduce-scatter across lane bits 5, 4, 3")
            for base in (MAX, SUM):
                for i in range(4):
                    e(f"v_permlane32_swap_b32 v{base + i}, v{base + 4 + i}")
            for i in range(4):
                e(f"v_max_f32 v{MAX + i}, v{MAX + i}, v{MAX + 4 + i}")
            for i in range(4):
                e(f"v_add_f32 v{SUM + i}, v{SUM + i}, v{SUM + 4 + i}")
            for i in range(2):
                e(f"v_permlane16_swap_b32 v{MAX + i}, v{MAX + 2 + i}")
            for i in range(2):
                e(f"v_permlane16_swap_b32 v{SUM + i}, v{SUM + 2 + i}")
            for i in range(2):
                e(f"v_add_f32 v{SUM + i}, v{SUM + i}, v{SUM + 2 + i}")
            for i in range(2):
                e(f"v_max_f32 v{MAX + i}, v{MAX + i}, v{MAX + 2 + i}")

        nxt = 0
        for jj in range(16):
            while nxt < 32 and nxt < max(2 * jj + DEPTH + 2, 2 * NAGN + 2 if o.prebar else 0):
                issue(nxt)
                nxt += 1
                if nxt == 32:
                    self.stamp(1)
            a, b = D0 + 8 * jj, D0 + 8 * jj + 4
            if jj == 0:
                e("@@HERE1")
            if jj == 15:
                e("@@HERE2")
                e("v_and_b32 v2, 7, v1")
                e("v_lshlrev_b32 v2, 5, v2                   ; (l&7)*32")
                e("v_lshrrev_b32 v3, 4, v1")
                e("v_lshl_add_u32 v2, v3, 3, v2              ; + (l>>4)*8")
                e("v_bfe_u32 v3, v1, 3, 1")
                e("v_mul_u32_u24 v3, 768, v3")
                e(f"s_mul_i32 s{S_T0}, s{S_SUB}, 1536")
                e(f"s_lshl_b32 s{S_T1}, s{S_TY}, 8")
                e(f"s_add_u32 s{S_T0}, s{S_T0}, s{S_T1}")
                e(f"v_add3_u32 v2, v2, v3, s{S_T0}")
                e(f"s_mul_i32 s{S_T0}, s{S_WAVE}, 768")
                e(f"v_lshl_add_u32 v3, v1, 4, s{S_T0}")
                if o.ttail:
                    e("; the accumulators are folded across lane bits 5 and 4 now; the last two loads are")
                    e("; transposed the same way while still packed, which shortens the work behind the last arrival")
                    scatter54()
                    for r in (a, b):
                        wait_for((r - D0) // 4)
                        if r == b:
                            self.stamp(3)
                        C = T + 8
                        e(f"v_mov_b64 v[{C}:{C + 1}], v[{r}:{r + 1}]")
                        e(f"v_mov_b64 v[{C + 2}:{C + 3}], v[{r + 2}:{r + 3}]")
                        e("s_nop 1")
                        e(f"v_permlane32_swap_b32 v{C}, v{C + 2}")
                        e(f"v_permlane32_swap_b32 v{C + 1}, v{C + 3}")
                        e("s_nop 1")
                        e(f"v_permlane16_swap_b32 v{C}, v{C + 1}")
                        e(f"v_permlane16_swap_b32 v{C + 2}, v{C + 3}")
                        for i in range(4):
                            t = T + 2 * i
                            e(f"v_lshlrev_b32 v{t}, 16, v{C + i}")
                            e(f"v_and_b32 v{t + 1}, s{S_MASK}, v{C + i}")
                        e(f"v_pk_add_f32 v[{C}:{C + 1}], v[{T}:{T + 1}], v[{T + 2}:{T + 3}]")
                        e(f"v_pk_add_f32 v[{C + 2}:{C + 3}], v[{T + 4}:{T + 5}], v[{T + 6}:{T + 7}]")
                        e(f"v_max3_f32 v{MAX}, v{MAX}, v{T}, v{T + 2}")
                        e(f"v_pk_add_f32 v[{C}:{C + 1}], v[{C}:{C + 1}], v[{C + 2}:{C + 3}]")
                        e(f"v_max3_f32 v{MAX + 1}, v{MAX + 1}, v{T + 1}, v{T + 3}")
                        e(f"v_pk_add_f32 v[{SUM}:{SUM + 1}], v[{SUM}:{SUM + 1}], v[{C}:{C + 1}]")
                        e(f"v_max3_f32 v{MAX}, v{MAX}, v{T + 4}, v{T + 6}")
                        e(f"v_max3_f32 v{MAX + 1}, v{MAX + 1}, v{T + 5}, v{T + 7}")
                    continue
                def fold(r):
                    for i in range(4):
                        t = T + 2 * i
                        e(f"v_lshlrev_b32 v{t}, 16, v{r + i}")
                        e(f"v_and_b32 v{t + 1}, s{S_MASK}, v{r + i}")
                    for i in range(8):
                        e(f"v_max_f32 v{MAX + i}, v{MAX + i}, v{T + i}")
                    for i in range(4):
                        t, s = T + 2 * i, SUM + 2 * i
                        e(f"v_pk_add_f32 v[{s}:{s + 1}], v[{s}:{s + 1}], v[{t}:{t + 1}]")
                if o.xfer:
                    assert o.xpos <= 28
                    e(f"s_cmp_lg_u32 s{S_XR}, 2")
                    e("s_cbranch_scc1 L_nox2")
                    e(f"s_lshl_b32 s{S_T0}, s{S_WAVE}, 10")
                    e(f"s_add_u32 s{S_T0}, s{S_T0}, {L_X}")
                    e(f"v_lshl_add_u32 v{V_AT}, v1, 4, s{S_T0}")
                    e(f"ds_read_b128 v[28:31], v{V_AT}")
                    e("s_waitcnt lgkmcnt(0)")
                    fold(28)
                    e("L_nox2:")
                e("; the last two loads are folded in one at a time")
                for r in (a, b):
                    wait_for((r - D0) // 4)
                    if r == b:
                        self.stamp(3)
                        if o.xfer:
                            e(f"s_cmp_eq_u32 s{S_XR}, 1")
                            e("s_cbranch_scc1 L_nox3")
                    fold(r)
                if o.xfer:
                    e("L_nox3:")
                continue
            wait_for(2 * jj + 1)
            if jj == 0 and not o.xbar:
                self.stamp(2)
            if jj >= o.skipfrom:
                continue
            for i in range(4):
                t = T + 4 * i
                e(f"v_lshlrev_b32 v{t}, 16, v{a + i}")
                e(f"v_and_b32 v{t + 1}, s{S_MASK}, v{a + i}")
                e(f"v_lshlrev_b32 v{t + 2}, 16, v{b + i}")
                e(f"v_and_b32 v{t + 3}, s{S_MASK}, v{b + i}")
            for i in range(4):
                t = T + 4 * i
                s, m = SUM + 2 * i, MAX + 2 * i
                if jj == 0:
                    e(f"v_max_f32 v{m}, v{t}, v{t + 2}")
                    e(f"v_max_f32 v{m + 1}, v{t + 1}, v{t + 3}")
                    e(f"v_pk_add_f32 v[{s}:{s + 1}], v[{t}:{t + 1}], v[{t + 2}:{t + 3}]")
                else:
                    e(f"v_max3_f32 v{m}, v{m}, v{t}, v{t + 2}")
                    e(f"v_max3_f32 v{m + 1}, v{m + 1}, v{t + 1}, v{t + 3}")
                    e(f"v_pk_add_f32 v[{t}:{t + 1}], v[{t}:{t + 1}], v[{t + 2}:{t + 3}]")
            if jj:
                for i in range(4):
                    t = T + 4 * i
                    s = SUM + 2 * i
                    e(f"v_pk_add_f32 v[{s}:{s + 1}], v[{s}:{s + 1}], v[{t}:{t + 1}]")

        if not o.ttail:
            scatter54()
        e(f"s_cmp_ge_u32 s{S_WAVE}, 2")
        for i in range(2):
            e(f"v_add_f32_dpp v{SUM + i}, v{SUM + i}, v{SUM + i} row_ror:8 row_mask:0xf bank_mask:0x3")
        for i in range(2):
            e(f"v_max_f32_dpp v{SUM + i}, v{MAX + i}, v{MAX + i} row_ror:8 row_mask:0xf bank_mask:0xc")
        e(f"ds_write_b64 v2, v[{SUM}:{SUM + 1}] offset:{L_RED}")
        e("s_waitcnt lgkmcnt(0)")
        e("s_barrier")
        self.stamp(4)
        e("s_cbranch_scc1 L_nopub")

        e("; ---- waves 0 (sums) and 1 (maxes): combine the four row groups, publish, then stage the weights")
        e("s_mov_b32 exec_hi, 0xffff")
        for k in range(4):
            e(f"ds_read_b128 v[{4 + 4 * k}:{7 + 4 * k}], v3 offset:{L_RED + 1536 * k}")
        e(f"s_cmp_eq_u32 s{S_WAVE}, 0")
        e(f"s_cselect_b64 s[{S_W}:{S_W + 1}], s[36:37], s[38:39]")
        e("s_cbranch_scc0 L_pubmax")
        e("s_waitcnt lgkmcnt(2)")
        e("v_pk_add_f32 v[4:5], v[4:5], v[8:9]")
        e("v_pk_add_f32 v[6:7], v[6:7], v[10:11]")
        e("s_waitcnt lgkmcnt(0)")
        e("v_pk_add_f32 v[12:13], v[12:13], v[16:17]")
        e("v_pk_add_f32 v[14:15], v[14:15], v[18:19]")
        e("v_pk_add_f32 v[4:5], v[4:5], v[12:13]")
        e("v_pk_add_f32 v[6:7], v[6:7], v[14:15]")
        e("s_branch L_pub")
        e("L_pubmax:")
        e("s_waitcnt lgkmcnt(1)")
        for i in range(4):
            e(f"v_max3_f32 v{4 + i}, v{4 + i}, v{8 + i}, v{12 + i}")
        e("s_waitcnt lgkmcnt(0)")
        for i in range(4):
            e(f"v_max_f32 v{4 + i}, v{4 + i}, v{16 + i}")
        e("L_pub:")
        for i in range(4):
            e(f"v_and_or_b32 v{4 + i}, v{4 + i}, -16, s{S_TG[i]}")
        e(f"buffer_store_dwordx4 v[4:7], v3, s[{S_WS}:{S_WS + 3}], s{S_PO} offen{' sc1' if o.psc1 else ' nt' if o.pnt else ''}")
        e("s_mov_b64 exec, -1")
        e(f"s_movk_i32 s{S_W + 2}, 18432")
        e(f"s_mov_b32 s{S_W + 3}, 0x20000")
        e(f"s_mul_i32 s{S_T0}, s{S_WAVE}, 18432")
        e(f"s_addk_i32 s{S_T0}, {L_W1}")
        e(f"s_mov_b32 s{S_T1}, 0")
        e("v_lshlrev_b32 v2, 4, v1")
        e("L_wloop:")
        e(f"s_add_u32 m0, s{S_T0}, s{S_T1}")
        e("s_nop 0")
        for k in range(3):
            e(f"buffer_load_dwordx4 v2, s[{S_W}:{S_W + 3}], s{S_T1} offen offset:{k * 1024} lds")
        e(f"s_addk_i32 s{S_T1}, 3072")
        e(f"s_cmp_lt_u32 s{S_T1}, 18432")
        e("s_cbranch_scc1 L_wloop")
        e("L_nopub:")

        B2 = 28
        V_H0, V_H1, V_SW, V_SR, V_Q = 24, 25, 26, 27, 37
        SP0 = 136
        A1 = 144
        B1 = [4, 8, 12, 16, 136, 140]
        e("v_lshrrev_b32 v20, 4, v1                  ; q")
        e(f"s_cmp_lt_u32 s{S_WAVE}, 3")
        e("s_cbranch_scc1 L_spill")
        e(f"s_cmp_ge_u32 s{S_RID}, {NRED}")
        e("s_cbranch_scc1 L_barw")
        e(f"s_cmp_lg_u32 s{S_WAVE}, 3")
        e("s_cbranch_scc1 L_barw")

        def clean(lbl, d, a):
            e("; every reducer is done: wave 3 writes the first-stage lines through, so that no dirty line stays in L2")
            e(f"s_cmp_lg_u32 s{S_WAVE}, 3")
            e(f"s_cbranch_scc1 {lbl}")
            if o.cw:
                e(f"v_mov_b32 v{d}, 0")
                e(f"v_lshlrev_b32 v{a}, {o.cw}, v1")
                e(f"s_mov_b64 exec, {(1 << (1536 >> o.cw)) - 1}")
                if o.cld:
                    e(f"buffer_atomic_or v{d}, v{a}, s[{S_WS}:{S_WS + 3}], s{S_PO} offen")
                else:
                    e(f"buffer_store_dword v{d}, v{a}, s[{S_WS}:{S_WS + 3}], s{S_PO} offen sc1")
                e("s_mov_b64 exec, -1")
                return
            for i in range(4):
                e(f"v_mov_b32 v{d + i}, 0")
            e(f"v_lshlrev_b32 v{a}, 4, v1")
            e("s_mov_b32 exec_hi, 0xffff")
            e(f"buffer_store_dwordx4 v[{d}:{d + 3}], v{a}, s[{S_WS}:{S_WS + 3}], s{S_PO} offen sc1")
            e(f"buffer_store_dwordx4 v[{d}:{d + 3}], v{a}, s[{S_WS}:{S_WS + 3}], s{S_PO} offen offset:768 sc1")
            e("s_mov_b64 exec, -1")

        e("v_lshrrev_b32 v2, 3, v1")
        e("v_mul_u32_u24 v2, 1536, v2")
        e("v_and_b32 v3, 7, v1")
        e(f"v_lshl_add_u32 v{V_Q}, v3, 4, v2")
        e(f"s_and_b32 s{S_T0}, s2, 7")
        e(f"s_mul_i32 s{S_V}, s{S_T0}, {32 * 1536}")
        e(f"s_lshl_b32 s{S_T1}, s{S_RID}, 7")
        e(f"s_add_u32 s{S_V}, s{S_V}, s{S_T1}")
        for k in range(1, 4):
            e(f"s_add_u32 s{S_V + k}, s{S_V}, {k * 8 * 1536}")
        e(f"s_lshl_b32 s{S_T0}, s{S_T0}, 8              ; group*256")
        e(f"s_lshr_b32 s{S_T1}, s{S_RID}, 2")
        e(f"s_lshl2_add_u32 s{S_T1}, s{S_T1}, s{S_RID}")
        e(f"s_lshl_b32 s{S_T1}, s{S_T1}, 11")
        e(f"s_add_u32 s{S_T1}, s{S_T1}, s{S_T0}")
        for k in range(o.qcopy // 2):
            e(f"s_add_u32 s{S_W + k}, s{S_T1}, {WS_Q + k * 49152}")
        e("v_and_b32 v2, 15, v1")
        e("v_lshlrev_b32 v3, 2, v2")
        e("v_bfe_u32 v2, v1, 4, 1")
        e("v_lshl_add_u32 v3, v2, 7, v3")
        e("v_lshrrev_b32 v2, 5, v1")
        e("v_lshl_add_u32 v3, v2, 13, v3             ; (l>>5)*8192 + ((l>>4)&1)*128 + (l&15)*4")
        e(f"s_lshl4_add_u32 s{S_T0}, s{S_TG[1]}, s{S_TG[0]}")
        e(f"s_xor_b32 s{S_CNT}, s{S_T0}, 0xff")
        e(f"s_lshl_b32 s{S_CNT}, s{S_CNT}, 8")
        e(f"s_or_b32 s{S_T0}, s{S_T0}, s{S_CNT}")
        e("v_and_b32 v2, 12, v3")
        e(f"v_bfe_u32 v23, s{S_T0}, v2, 4")
        e(f"s_mov_b32 s{S_CNT}, {NFB}")
        e(f"s_mov_b32 s{S_HOOK}, 0")
        e("L_rpoll:")
        for k in range(4):
            e(f"buffer_load_dwordx4 v[{4 + 4 * k}:{7 + 4 * k}], v{V_Q}, s[{S_WS}:{S_WS + 3}], s{S_V + k} offen sc1")
        e(f"s_sub_u32 s{S_CNT}, s{S_CNT}, 1")
        e("s_cbranch_scc1 L_rlong")
        for k in range(4):
            e(f"s_waitcnt vmcnt({3 - k})")
            r = 4 + 4 * k
            for i in range(4):
                e(f"v_xor_b32 v{r + i}, s{S_TG[i]}, v{r + i}" + ("            ; a matching tag leaves four zero bits" if k + i == 0 else ""))
            if k == 0:
                e(f"v_or3_b32 v21, v{r}, v{r + 1}, v{r + 2}")
                e(f"v_or_b32 v21, v21, v{r + 3}")
            elif k < 3:
                e(f"v_or3_b32 v21, v21, v{r}, v{r + 1}")
                e(f"v_or3_b32 v21, v21, v{r + 2}, v{r + 3}")
            else:
                e(f"v_or3_b32 v21, v21, v{r}, v{r + 1}")
                e(f"v_or_b32 v22, v{r + 2}, v{r + 3}")
        e("v_bitop3_b32 v21, v21, v22, 15 bitop3:0xa8          ; (a | b) & c")
        e("v_cmp_ne_u32 vcc, 0, v21")
        e("s_wqm_b64 exec, vcc                       ; 64-byte units still waiting poll again")
        e("s_cbranch_scc1 L_rpoll")
        e("L_rgot:")
        e("s_mov_b64 exec, -1")
        self.stamp(1, "r")
        e(f"s_cmp_ge_u32 s{S_RID}, 6")
        e("s_cbranch_scc1 L_rmax")
        for kind in (0, 1):
            op = "v_add_f32" if kind == 0 else "v_max_f32"
            if kind == 1:
                e("L_rmax:")
                for i in range(4):
                    e(f"v_max3_f32 v{4 + i}, v{4 + i}, v{8 + i}, v{12 + i}")
                for i in (0, 2, 1, 3):
                    e(f"v_max_f32 v{4 + i}, v{4 + i}, v{16 + i}")
            else:
                e("v_pk_add_f32 v[4:5], v[4:5], v[8:9]")
                e("v_pk_add_f32 v[6:7], v[6:7], v[10:11]")
                e("v_pk_add_f32 v[12:13], v[12:13], v[16:17]")
                e("v_pk_add_f32 v[14:15], v[14:15], v[18:19]")
                e("v_pk_add_f32 v[4:5], v[4:5], v[12:13]")
                e("v_pk_add_f32 v[6:7], v[6:7], v[14:15]")
                e("s_nop 0")
            e(f"{op}_dpp v4, v4, v4 row_ror:8 row_mask:0xf bank_mask:0x3")
            if kind == 0:
                e(f"{op}_dpp v5, v5, v5 row_ror:8 row_mask:0xf bank_mask:0x3")
                e(f"{op}_dpp v4, v6, v6 row_ror:8 row_mask:0xf bank_mask:0xc")
            else:
                e(f"{op}_dpp v4, v6, v6 row_ror:8 row_mask:0xf bank_mask:0xc")
                e(f"{op}_dpp v5, v5, v5 row_ror:8 row_mask:0xf bank_mask:0x3")
            e(f"{op}_dpp v5, v7, v7 row_ror:8 row_mask:0xf bank_mask:0xc")
            e("s_nop 1")
            e("v_permlane16_swap_b32 v4, v5")
            e(f"{op} v4, v4, v5")
            e("v_mov_b32 v5, v4")
            e("s_nop 1")
            e("v_permlane32_swap_b32 v4, v5")
            e(f"{op} v4, v4, v5                        ; lane 16a+8b+c: element 2b+a of piece c")
            if kind == 0:
                e("s_branch L_rpub")
        e("L_rpub:")
        e("v_and_or_b32 v4, v4, -16, v23")
        for k in range(o.qcopy // 2):
            e(f"buffer_store_dword v4, v3, s[{S_WS}:{S_WS + 3}], s{S_W + k} offen sc1")
            if k == 0:
                self.stamp(9)
        if o.clean == "r":
            e("; this wave was the only reader of these lines: write them through, so that none stays dirty in L2")
            for i in range(4):
                e(f"v_mov_b32 v{8 + i}, 0")
            for k in range(4):
                e(f"buffer_store_dwordx4 v[8:11], v{V_Q}, s[{S_WS}:{S_WS + 3}], s{S_V + k} offen sc1")
        e("s_barrier")
        e("s_branch L_afterw")

        if o.pad:
            e(f".fill {o.pad // 4}, 4, 0xbf800000")
        e("; ---- waves 0..2 park 32 data registers in LDS to make room for the first layer's operands")
        e("L_spill:")
        e(f"s_lshl_b32 s{S_T0}, s{S_WAVE}, 13")
        e(f"v_lshl_add_u32 v{V_AT}, v1, 4, s{S_T0}")
        for k in range(8):
            e(f"ds_write_b128 v{V_AT}, v[{SP0 + 4 * k}:{SP0 + 4 * k + 3}] offset:{L_SPILL + 1024 * k}")
        e("L_barw:")
        if o.tlb:
            e("; wave 5 touches d_out once per region so that the first stores find their translations (values unused)")
            e(f"s_cmp_lg_u32 s{S_WAVE}, 5")
            e("s_cbranch_scc1 L_notlb")
            e(f"v_lshlrev_b32 v2, {o.tlb}, v1")
            e(f"buffer_load_dword v4, v2, s[{S_OUT}:{S_OUT + 3}], 0 offen")
            e("L_notlb:")
        if o.lpf == 1:
            e("; wave 4 pulls the code of the store phase into this die's L2 (values unused)")
            e(f"s_cmp_lg_u32 s{S_WAVE}, 4")
            e("s_cbranch_scc1 L_nolpf")
            e("s_getpc_b64 s[20:21]")
            e("v_lshlrev_b32 v2, 7, v1")
            e("v_min_u32 v2, L_end - L_nolpf, v2")
            e("global_load_dword v4, v2, s[20:21]")
            e("L_nolpf:")
        e("s_waitcnt vmcnt(0) lgkmcnt(0)")
        e("s_barrier")
        e("L_afterw:")
        e("v_bfe_u32 v3, v1, 2, 2")
        e("v_lshl_add_u32 v21, v20, 3, v3            ; row")
        e("v_and_b32 v22, 15, v21                    ; row of the half step (q&1)")
        e("v_and_b32 v3, 3, v1")
        e(f"s_lshl_b32 s{S_T2}, s{S_WAVE}, 5")
        e(f"v_lshl_add_u32 v23, v3, 3, s{S_T2}          ; column bytes")
        e("v_mov_b32 v3, 384")
        e("v_mad_u32_u24 v2, v21, v3, v23")
        e("v_mad_u32_u24 v22, v22, v3, v23")
        e(f"ds_read_b64_tr_b16 v[{B2}:{B2 + 1}], v2 offset:{L_W2}")
        e(f"ds_read_b64_tr_b16 v[{B2 + 2}:{B2 + 3}], v2 offset:{L_W2 + 4 * 384}")
        e(f"ds_read_b64_tr_b16 v[{B2 + 4}:{B2 + 5}], v22 offset:{L_W2 + 32 * 384}")
        e(f"ds_read_b64_tr_b16 v[{B2 + 6}:{B2 + 7}], v22 offset:{L_W2 + 36 * 384}")
        e("; H read addresses: kind*96 + q*16 ; half step: kind*96 + 64 + (q&1)*16")
        e("v_and_b32 v2, 1, v1")
        e("v_mul_u32_u24 v22, 96, v2")
        e(f"v_lshl_add_u32 v{V_H0}, v20, 4, v22")
        e("v_and_b32 v3, 1, v20")
        e(f"v_lshl_add_u32 v{V_H1}, v3, 4, v22")
        e(f"s_lshl_b32 s{S_T0}, s{S_WAVE}, 6")
        e(f"v_lshl_add_u32 v{V_SW}, v1, 2, s{S_T0}")
        if o.mul == "dot":
            e("; a scale sits in the half of its word that faces its channel, the other half is zero")
            e("v_mov_b32 v3, 0")
            e("s_mov_b64 exec, 0xffff")
            e(f"ds_write_b32 v{V_SW}, v3 offset:{L_S}")
            e("s_mov_b64 exec, -1")
            e(f"v_lshl_add_u32 v{V_SW}, v2, 1, v{V_SW}")
        e("v_and_b32 v3, 7, v1")
        e(f"s_lshl_b32 s{S_T0}, s{S_TY}, 8")
        e(f"v_lshl_add_u32 v{V_SR}, v3, 5, s{S_T0}")
        e("s_waitcnt lgkmcnt(0)")
        e("s_mov_b32 exec_lo, 0")
        for i in range(4):
            e(f"v_mov_b32 v{B2 + 4 + i}, 0")
        e("s_mov_b64 exec, -1")
        e(f"s_cmp_ge_u32 s{S_WAVE}, 3")
        e("s_cbranch_scc1 L_noa1")
        e("v_mov_b32 v3, 96")
        e("v_mad_u32_u24 v2, v21, v3, v23")
        for s in range(6):
            for h in range(2):
                r = A1 + 4 * s + 2 * h
                e(f"ds_read_b64_tr_b16 v[{r}:{r + 1}], v2 offset:{L_W1 + s * 3072 + h * 384}")
        e("L_noa1:")
        e(f"v_lshl_add_u32 v3, v20, 3, v22")
        e(f"v_add_u32 v3, s{S_T2}, v3")
        e("v_lshlrev_b32 v2, 2, v22")
        e("v_lshl_add_u32 v2, v20, 4, v2")
        e("v_and_b32 v8, 1, v1")
        e("v_lshlrev_b32 v8, 4, v8")
        e("v_lshl_add_u32 v8, v20, 2, v8")
        e("v_and_b32 v9, 2, v1")
        e("v_bfe_u32 v10, v1, 2, 1")
        e("v_add3_u32 v8, v8, v9, v10")
        e(f"v_add_lshl_u32 v23, v8, s{S_T2}, 1")
        e("; second-stage address: (l>>2)*128 + (l&3)*16 in the copy kept for this die")
        e("v_lshrrev_b32 v8, 2, v1")
        e("v_lshlrev_b32 v8, 7, v8")
        e("v_and_b32 v9, 3, v1")
        e(f"v_lshl_add_u32 v{V_Q}, v9, 4, v8")
        e(f"s_and_b32 s{S_T0}, s{S_QC}, 4")
        if o.qcopy > 2:
            e(f"s_and_b32 s{S_CNT}, s{S_QC}, {o.qcopy // 2 - 1}")
            e(f"s_mul_i32 s{S_CNT}, s{S_CNT}, 24")
            e(f"s_add_u32 s{S_T0}, s{S_T0}, s{S_CNT}")
        e(f"s_lshr_b32 s{S_T1}, s{S_WAVE}, 2")
        e(f"s_lshl2_add_u32 s{S_T1}, s{S_T1}, s{S_WAVE}")
        e(f"s_add_u32 s{S_T1}, s{S_T1}, s{S_T0}")
        e(f"s_lshl_b32 s{S_T1}, s{S_T1}, 11")
        e(f"s_add_u32 s{S_T1}, s{S_T1}, {WS_Q}")
        if o.clean in ("q", "p", "a", "h", "g"):
            if o.cfull:
                for i in range(4):
                    e(f"v_mov_b32 v{16 + i}, s{S_TG[i]}")
                e("v_lshlrev_b32 v22, 4, v1")
            else:
                e(f"v_mov_b32 v19, s{S_TG[0]}")
            e(f"s_lshl_b32 s{S_V}, s{S_WAVE}, 7")
            e(f"s_add_u32 s{S_V}, s{S_V}, s{S_PO}")
        e(f"s_mov_b32 s{S_CNT}, {NFB}")
        e(f"s_mov_b32 s{S_HOOK}, 0")
        e(f"s_cmp_lt_u32 s{S_WAVE}, 6")
        e("s_cbranch_scc1 L_qpoll0")

        def clean1():
            e("; the reducer of line w is done: a write-through keeps this workgroup's line from staying dirty in L2")
            if o.cfull:
                e("s_mov_b64 exec, 0xff")
                e(f"buffer_store_dwordx4 v[16:19], v22, s[{S_WS}:{S_WS + 3}], s{S_V} offen sc1")
            else:
                e("s_mov_b64 exec, 1")
                e(f"buffer_store_dword v19, off, s[{S_WS}:{S_WS + 3}], s{S_V} sc1")
            e("s_mov_b64 exec, -1")

        for kind in (1, 0):
            op = "v_add_f32" if kind == 0 else "v_max_f32"
            if o.q2:
                def qld(r):
                    e(f"buffer_load_dwordx4 v[{r}:{r + 3}], v{V_Q}, s[{S_WS}:{S_WS + 3}], s{S_T1} offen sc1")

                def qchk(r):
                    e("s_waitcnt vmcnt(1)")
                    for i in range(4):
                        e(f"v_xor_b32 v{4 + i}, s{S_TG[i]}, v{r + i}")
                    e("v_or3_b32 v21, v4, v5, v6")
                    e("v_bitop3_b32 v21, v21, v7, 15 bitop3:0xa8")
                    e("v_cmp_ne_u32 vcc, 0, v21")
                    e("s_wqm_b64 exec, vcc")
                e(f"L_qpoll{kind}:")
                qld(8)
                e(f"s_sleep {o.q2}")
                e(f"L_qloop{kind}:")
                qld(12)
                e(f"s_sub_u32 s{S_CNT}, s{S_CNT}, 1")
                e(f"s_cbranch_scc1 L_qlong{kind}")
                qchk(8)
                e(f"s_cbranch_scc0 L_qgot{kind}")
                qld(8)
                qchk(12)
                e(f"s_cbranch_scc1 L_qloop{kind}")
            else:
                e(f"L_qpoll{kind}:")
                e(f"buffer_load_dwordx4 v[4:7], v{V_Q}, s[{S_WS}:{S_WS + 3}], s{S_T1} offen sc1")
                e(f"s_sub_u32 s{S_CNT}, s{S_CNT}, 1")
                e(f"s_cbranch_scc1 L_qlong{kind}")
                if o.qsleep:
                    e(f"s_sleep {o.qsleep}")
                e("s_waitcnt vmcnt(0)")
                for i in range(4):
                    e(f"v_xor_b32 v{4 + i}, s{S_TG[i]}, v{4 + i}")
                e("v_or3_b32 v21, v4, v5, v6")
                e("v_bitop3_b32 v21, v21, v7, 15 bitop3:0xa8")
                e("v_cmp_ne_u32 vcc, 0, v21")
                e("s_wqm_b64 exec, vcc")
                e(f"s_cbranch_scc1 L_qpoll{kind}")
            e(f"L_qgot{kind}:")
            if o.clean == "p":
                e("s_mov_b64 exec, 1")
                e(f"buffer_store_dword v19, off, s[{S_WS}:{S_WS + 3}], s{S_V} sc1")
            e("s_mov_b64 exec, -1")
            self.stamp(5)
            e("v_permlane32_swap_b32 v4, v6")
            e("v_permlane32_swap_b32 v5, v7")
            e(f"{op} v4, v4, v6")
            e(f"{op} v5, v5, v7")
            e("s_nop 1")
            e("v_permlane16_swap_b32 v4, v5")
            e(f"{op} v4, v4, v5")
            e(f"s_cmp_ge_u32 s{S_WAVE}, 3")
            e("s_nop 0")
            e(f"{op}_dpp v4, v4, v4 row_ror:8 row_mask:0xf bank_mask:0xf")
            if kind == 0:
                e("v_mul_f32 v4, 0x36800000, v4              ; 1/262144")
            e("v_cvt_pk_bf16_f32 v4, v4, v4")
            e(f"ds_write_b16 v23, v4 offset:{L_F}")
            if o.q2:
                e("s_waitcnt vmcnt(0)")
            if o.clean == "q" or (o.clean == "h" and kind == 1) or (o.clean == "g" and kind == 0):
                clean1()
            e("s_waitcnt lgkmcnt(0)")
            e("s_barrier")
            if kind == 1:
                if o.clean in ("a", "g"):
                    clean1()
                e("s_branch L_join")
            else:
                e("s_cbranch_scc1 " + ("L_clean0" if o.clean in ("a", "h") else "L_join"))

        e("; ---- waves 0..2: first MLP layer")
        e("L_mlp1:")
        for s in range(6):
            e(f"ds_read_b128 v[{B1[s]}:{B1[s] + 3}], v2 offset:{L_F + 64 * s}")
        if o.clean in ("a", "h"):
            clean1()
        for s in range(6):
            c = "0" if s == 0 else "v[20:23]"
            b = B1[s]
            e(f"s_waitcnt lgkmcnt({5 - s})")
            e(f"v_mfma_f32_16x16x32_bf16 v[20:23], v[{A1 + 4 * s}:{A1 + 4 * s + 3}], v[{b}:{b + 3}], {c}")
        e("s_nop 3")
        e("s_mov_b32 exec_lo, 0x00030003")
        e("s_mov_b32 exec_hi, 0x00030003")
        e("s_nop 1")
        for i in range(4):
            e(f"v_maximum3_f32 v{20 + i}, v{20 + i}, 0, 0")
        e("v_cvt_pk_bf16_f32 v20, v20, v21")
        e("v_cvt_pk_bf16_f32 v21, v22, v23")
        e(f"ds_write_b64 v3, v[20:21] offset:{L_H}")
        e("s_mov_b64 exec, -1")
        e("s_waitcnt lgkmcnt(0)")

        e("L_join:")
        e("s_barrier")
        self.stamp(6)
        e(f"ds_read_b128 v[4:7], v{V_H0} offset:{L_H}")
        e(f"ds_read_b128 v[8:11], v{V_H1} offset:{L_H + 64}")
        e("s_waitcnt lgkmcnt(1)")
        e(f"v_mfma_f32_16x16x32_bf16 v[12:15], v[4:7], v[{B2}:{B2 + 3}], 0")
        e("s_waitcnt lgkmcnt(0)")
        e(f"v_mfma_f32_16x16x32_bf16 v[12:15], v[8:11], v[{B2 + 4}:{B2 + 7}], v[12:15]")
        e("s_mov_b64 exec, 0xffff")
        e("s_nop 6")
        e("v_cvt_pk_bf16_f32 v12, 0, v12")
        e("v_cvt_pk_bf16_f32 v13, 0, v13")
        e("v_add_f32 v12, v12, v13")
        e("v_cvt_pk_bf16_f32 v12, 0, v12")
        e("v_mul_f32 v12, 0xbfb8aa3b, v12            ; -log2(e)")
        e("v_exp_f32 v12, v12")
        e("s_nop 0")
        e("v_add_f32 v12, 1.0, v12")
        e("v_rcp_f32 v12, v12")
        e("s_nop 0")
        if o.mul == "dot":
            e("v_cvt_pk_bf16_f32 v12, v12, v12")
            e(f"ds_write_b16 v{V_SW}, v12 offset:{L_S}")
        else:
            e("v_cvt_pk_bf16_f32 v12, 0, v12")
            e(f"ds_write_b32 v{V_SW}, v12 offset:{L_S}")
        e("s_mov_b64 exec, -1")
        e("s_waitcnt lgkmcnt(0)")
        e("s_barrier")
        e(f"ds_read_b128 v[4:7], v{V_SR} offset:{L_S}")
        e(f"ds_read_b128 v[8:11], v{V_SR} offset:{L_S + 16}")

        e("; ---- scale and store")
        if o.stlim:
            e(f"s_cmp_lt_u32 s2, {o.stlim}")
            e(f"s_cselect_b32 s{S_OUT + 2}, s{S_OUT + 2}, 0")
        zorder = [int(v) for v in o.zorder.split(",")]
        assert sorted(zorder) == list(range(16))
        restored = False
        late = []

        def wbl2():
            wv, lim, pos = [int(v) for v in o.wb.split(",")]
            e(f"s_cmp_lt_u32 s{S_WAVE}, {wv}")
            e("s_cbranch_scc1 L_nowb")
            e(f"s_cmp_ge_u32 s2, {lim}")
            e("s_cbranch_scc1 L_nowb")
            if pos == 33:
                e("s_waitcnt vmcnt(0)")
            e("buffer_wbl2 sc1")
            e("L_nowb:")
        jorder = [int(v) for v in o.jorder.split(",")] if o.jorder else [2 * z + u for z in zorder for u in (0, 1)]
        assert sorted(jorder) == list(range(32))
        self.pz = None
        for n, j in enumerate(jorder):
            a = D0 + 4 * j
            t0 = 12 + 8 * (n & 1)
            if a >= SP0 and not restored:
                assert n > 1
                e("s_waitcnt lgkmcnt(0)")
                restored = True
            md = o.mul
            for i in range(4 if md in ("pk", "mul", "u", "um") else 0):
                t = t0 + 2 * i
                e(f"v_lshlrev_b32 v{t}, 16, v{a + i}")
                e(f"v_and_b32 v{t + 1}, s{S_MASK}, v{a + i}")
            if n == 0:
                e("s_waitcnt lgkmcnt(0)")
                self.stamp(7)
            if o.al:
                e(f".p2align {o.al & 15}")
                if o.al >> 4:
                    e("s_nop 0")
            for i in range(4):
                t = t0 + 2 * i
                if md in ("pk", "um"):
                    e(f"v_pk_mul_f32 v[{t}:{t + 1}], v[{t}:{t + 1}], v[{4 + 2 * i}:{5 + 2 * i}]")
                if md == "mul":
                    e(f"v_mul_f32 v{t}, v{t}, v{4 + 2 * i}")
                    e(f"v_mul_f32 v{t + 1}, v{t + 1}, v{5 + 2 * i}")
                if md == "dot":
                    e(f"v_dot2_f32_bf16 v{t}, v{a + i}, v{4 + 2 * i}, 0")
                    e(f"v_dot2_f32_bf16 v{t + 1}, v{a + i}, v{5 + 2 * i}, 0")
            for i in range(4):
                t = t0 + 2 * i
                if md in ("pk", "mul", "dot"):
                    e(f"v_cvt_pk_bf16_f32 v{a + i}, v{t}, v{t + 1}")
                if md == "c":
                    e(f"v_cvt_pk_bf16_f32 v{a + i}, v{a + i}, v{a + (i ^ 1)}")
            def st(j=j, a=a, n=n):
                self.mem(j, lambda va, so: e(f"buffer_store_dwordx4 v[{a}:{a + 3}], {va}, s[{S_OUT}:{S_OUT + 3}], {so} offen{'' if n >= 32 - o.nplain else stf}"))
            if n < o.burst:
                st()
            else:
                late.append(st)
            if n == 31:
                for f in late:
                    f()
            if o.xfer and n == o.xspos:
                e(f"s_cmp_lg_u32 s{S_XR}, 2")
                e("s_cbranch_scc1 L_nox4")
                e(f"ds_read_b128 v[28:31], v{V_AT}")
                e(f"v_xad_u32 v32, v{V_G1}, s{S_XP}, v{V_L}")
                e("s_waitcnt lgkmcnt(0)")
                for i in range(4):
                    e(f"v_dot2_f32_bf16 v{12 + 2 * i}, v{28 + i}, v{4 + 2 * i}, 0")
                    e(f"v_dot2_f32_bf16 v{13 + 2 * i}, v{28 + i}, v{5 + 2 * i}, 0")
                for i in range(4):
                    e(f"v_cvt_pk_bf16_f32 v{28 + i}, v{12 + 2 * i}, v{13 + 2 * i}")
                e(f"buffer_store_dwordx4 v[28:31], v32, s[{S_OUT}:{S_OUT + 3}], s{S_XO} offen{stf}")
                e("L_nox4:")
            if n + 1 in o.sbar:
                e("s_barrier")
            if o.sthr and n >= o.sthr:
                e(f"s_waitcnt vmcnt({o.sthr - 1})")
            if o.wb and int(o.wb.split(",")[2]) == n:
                wbl2()
            if n & 1:
                self.trace("st", n >> 1)
            if n == 1:
                e(f"s_cmp_ge_u32 s{S_WAVE}, 3")
                e("s_cbranch_scc1 L_norestore")
                for k in range(8):
                    e(f"ds_read_b128 v[{SP0 + 4 * k}:{SP0 + 4 * k + 3}], v{V_AT} offset:{L_SPILL + 1024 * k}")
                e("L_norestore:")
                if o.clean == "st":
                    clean("L_noclean", 28, 32)
                    e("L_noclean:")
        if o.clean == "e":
            clean("L_noclean", 28, 32)
            e("L_noclean:")
        if o.wb and int(o.wb.split(",")[2]) >= 32:
            wbl2()
        if o.stamps:
            self.stamp(8)
            e("s_waitcnt vmcnt(0)")
            self.stamp(10)
            if o.idleclk:
                e("; wave 11 idles 40 us, then measures the clock over another 20 us into slots 1,2 / 3,6")
                e(f"s_cmp_lg_u32 s{S_WAVE}, 11")
                e("s_cbranch_scc1 L_noidle")
                for lbl, dur, m, r in (("a", o.idleclk, 1, 3), ("b", 2000, 2, 6)):
                    e("s_memrealtime s[96:97]")
                    e("s_waitcnt lgkmcnt(0)")
                    e(f"L_idle{lbl}:")
                    e("s_sleep 4")
                    e("s_memrealtime s[98:99]")
                    e("s_waitcnt lgkmcnt(0)")
                    e("s_sub_u32 s98, s98, s96")
                    e(f"s_cmp_lt_u32 s98, {dur}")
                    e(f"s_cbranch_scc1 L_idle{lbl}")
                    e(f"s_memtime s[{S_STAMP + 2 * m}:{S_STAMP + 2 * m + 1}]")
                    e(f"s_memrealtime s[{S_STAMP + 2 * r}:{S_STAMP + 2 * r + 1}]")
                e("L_noidle:")
            e("s_getreg_b32 s94, hwreg(HW_REG_XCC_ID)")
            e("s_getreg_b32 s95, hwreg(HW_REG_HW_ID)")
            e("s_waitcnt lgkmcnt(0)")
            e("v_mov_b32 v2, 0")
            for i in range(11 if o.trace else 14):
                e(f"v_writelane_b32 v2, s{S_STAMP + 2 * i}, {i}")
            e("v_writelane_b32 v2, s94, 14")
            e("v_writelane_b32 v2, s95, 15")
            e(f"s_mul_i32 s{S_T0}, s2, 12")
            e(f"s_add_u32 s{S_T0}, s{S_T0}, s{S_WAVE}")
            e(f"s_lshl_b32 s{S_T0}, s{S_T0}, 6")
            e(f"s_add_u32 s{S_T0}, s{S_T0}, {WS_STAMP}")
            e("v_mbcnt_lo_u32_b32 v3, -1, 0")
            e("v_lshlrev_b32 v3, 2, v3")
            e("s_mov_b64 exec, 0xffff")
            e(f"buffer_store_dword v2, v3, s[{S_WS}:{S_WS + 3}], s{S_T0} offen sc1")
            if o.trace:
                e("s_mov_b32 s91, s92")
                for i in range(16):
                    e(f"v_writelane_b32 v2, s{76 + i}, {i}")
                e(f"s_add_u32 s{S_T0}, s{S_T0}, {1 << 19}")
                e(f"buffer_store_dword v2, v3, s[{S_WS}:{S_WS + 3}], s{S_T0} offen sc1")
        if o.dbgptr:
            e("s_cmp_lg_u32 s2, 0")
            e("s_cbranch_scc1 L_nodp")
            e("s_mov_b64 exec, -1")
            e("v_mov_b32 v2, 0")
            for i, r in enumerate((4, 5, 8, 9, 12, 13, 16, 17, 0, 1)):
                e(f"v_writelane_b32 v2, s{r}, {i}")
            e("v_mbcnt_lo_u32_b32 v3, -1, 0")
            e("v_lshlrev_b32 v3, 2, v3")
            e("s_mov_b64 exec, 0x3ff")
            e(f"buffer_store_dword v2, v3, s[{S_DBG}:{S_DBG + 3}], 0 offen offset:8")
            e("L_nodp:")
        if o.probe:
            idx, K = [int(v) for v in o.probe.split(",")]
            if idx == -6:
                pass
            elif idx == -5:
                e("; skew probe: after the stamps are out, workgroups 0..7 read workgroup 0's entry stamp")
                e("s_cmp_ge_u32 s2, 8")
                e("s_cbranch_scc1 L_end")
            elif idx == -2:
                e("s_getreg_b32 s94, hwreg(HW_REG_XCC_ID)")
                e("s_xor_b32 s94, s94, s2")
                e("s_and_b32 s94, s94, 7")
                e("s_cbranch_scc0 L_end")
            elif idx == -3:
                e("s_cmp_lg_u32 s2, 0")
                e("s_cbranch_scc1 L_end")
            else:
                e(f"s_cmp_lg_u32 s2, {o.pwg}")
                e("s_cbranch_scc1 L_end")
            e(f"s_cmp_lg_u32 s{S_WAVE}, {o.pwave}")
            e("s_cbranch_scc1 L_end")
            if idx == -6:
                e("; every workgroup stays K times its own whole duration")
                e(f"s_sub_u32 s96, s{S_STAMP + 20}, s{S_STAMP}")
                e(f"s_mul_i32 s96, s96, {K}")
            elif idx == -5:
                e("s_mov_b32 s96, 0")
                e("L_sk:")
                e("s_sleep 100")
                e("s_add_u32 s96, s96, 1")
                e("s_cmp_lt_u32 s96, 4")
                e("s_cbranch_scc1 L_sk")
                e(f"s_mov_b32 s94, {WS_STAMP}")
                e(f"buffer_load_dword v4, off, s[{S_WS}:{S_WS + 3}], s94 sc1")
                e("s_waitcnt vmcnt(0)")
                e("v_readfirstlane_b32 s94, v4")
                e(f"s_sub_u32 s95, s{S_STAMP}, s94")
                e(f"s_mul_i32 s95, s95, {K - 1}")
                e("s_add_u32 s96, s95, 8000")
            elif idx == -4:
                e("; report the shader clock of phase K (0 read, 1 write): stay 50us + (MHz - 1800) * 0.2us")
                c0, c1, r0, r1 = ((11, 12, 0, 7), (12, 13, 7, 10))[K]
                e(f"s_sub_u32 s94, s{S_STAMP + 2 * c1}, s{S_STAMP + 2 * c0}")
                e(f"s_sub_u32 s95, s{S_STAMP + 2 * r1}, s{S_STAMP + 2 * r0}")
                e("v_cvt_f32_u32 v4, s94")
                e("v_cvt_f32_u32 v5, s95")
                e("v_rcp_f32 v5, v5")
                e("s_nop 1")
                e("v_mul_f32 v4, v4, v5")
                e("v_mul_f32 v4, 0x44fa0000, v4")
                e("v_cvt_u32_f32 v4, v4")
                e("s_nop 1")
                e("v_readfirstlane_b32 s96, v4")
                e("s_sub_u32 s96, s96, 31000")
            elif idx <= -10:
                e("; report 7 bits (from bit K) of an SGPR: (-idx - 10) names the register")
                e(f"s_bfe_u32 s94, s{-idx - 10}, {(7 << 16)} + {K}")
                e("s_mul_i32 s96, s94, 200")
                e("s_add_u32 s96, s96, 5000")
            elif idx == -3:
                e("s_getreg_b32 s94, hwreg(HW_REG_XCC_ID)")
                e("s_and_b32 s94, s94, 7")
                e(f"s_mul_i32 s96, s94, {K}")
                e("s_add_u32 s96, s96, 5000")
            elif idx < 0:
                e(f"s_mov_b32 s96, {K}")
            else:
                e(f"s_sub_u32 s96, s{S_STAMP + 2 * idx}, s{S_STAMP + 2 * o.pref}")
                e(f"s_mul_i32 s96, s96, {K}")
                if o.pref:
                    e("s_add_u32 s96, s96, 5000")
            e("s_min_u32 s96, s96, 200000")
            e("L_probe:")
            e("s_memrealtime s[98:99]")
            e("s_waitcnt lgkmcnt(0)")
            e(f"s_sub_u32 s98, s98, s{S_STAMP}")
            e("s_cmp_lt_u32 s98, s96")
            e("s_cbranch_scc1 L_probe")
        e("L_end:")
        e("s_endpgm")

        e("@@ROLE")
        e(".p2align 7")
        e("L_role:")
        e("s_load_dwordx4 s[44:47], s[0:1], 32")
        e(f"s_lshr_b32 s{S_V + 1}, s2, 3")
        e(f"s_and_b32 s{S_T1}, s2, 1")
        e(f"s_lshl1_add_u32 s{S_T1}, s{S_T1}, 1")
        e(f"s_mul_i32 s{S_T2}, s2, 0x104100")
        e(f"s_cmp_eq_u32 s2, {NVOTE_WG}")
        e("s_waitcnt lgkmcnt(0)")
        e("s_cbranch_scc1 L_tag")
        e(f"s_sub_u32 s{S_T0}, s{S_OUT}, s{S_X}")
        e(f"s_addk_i32 s{S_T0}, 2048")
        e(f"s_bitcmp1_b32 s{S_T0}, 12")
        e(f"s_cselect_b32 s{S_V}, {o.qout}, {o.qgen}")
        e(f"s_cselect_b32 s{S_V + 2}, s{S_V + 1}, 1")
        e(f"s_cmp_eq_u32 s{S_V + 2}, 2")
        e(f"s_cselect_b32 s{S_V + 1}, s{S_T1}, s{S_V + 1}")
        e(f"s_bitcmp1_b32 s{S_V + 1}, 0")
        e(f"s_cselect_b64 s[{S_W}:{S_W + 1}], s[8:9], s[4:5]")
        e(f"s_lshr_b32 s{S_T1}, s{S_V + 1}, 1")
        e(f"s_lshl_b32 s{S_T1}, 0x2000000, s{S_T1}")
        e(f"s_add_u32 s{S_T2}, s{S_T2}, s{S_T1}")
        e(f"s_lshr_b32 s{S_T0}, s{S_OUT}, 7")
        e(f"s_mul_i32 s{S_T0}, s{S_T0}, 21")
        e(f"s_and_b32 s{S_T0}, s{S_T0}, 63")
        e(f"s_mulk_i32 s{S_T0}, 384")
        e(f"s_add_u32 s{S_T0}, s{S_T0}, s{S_T2}")
        e(f"s_cmp_lg_u32 s{S_V + 2}, 0")
        e(f"s_cselect_b32 s{S_V + 3}, s{S_OUT}, 0")
        e("s_cbranch_scc1 L_notws")
        e(f"s_mov_b64 s[{S_W}:{S_W + 1}], s[46:47]")
        e(f"s_mov_b32 s{S_V}, {o.qws}")
        e(f"s_and_b32 s{S_T0}, s{S_T2}, 0xfffff")
        e(f"s_add_u32 s{S_T0}, s{S_T0}, {WS_PROBE}")
        e("L_notws:")
        e(f"s_add_u32 s{S_T1}, s{S_T0}, 8192")
        self.stamp(1, True)
        e(f"s_load_dword s42, s[{S_W}:{S_W + 1}], s{S_T0} glc")
        e(f"s_load_dword s43, s[{S_W}:{S_W + 1}], s{S_T1} glc")
        e(f"s_mov_b32 s{S_CNT}, {-(NRACE // 2)}")
        if o.dpf:
            e(f"s_load_dword s23, s[44:45], 192 glc")
        for k in range(NRACE):
            e("s_waitcnt lgkmcnt(0)")
            if k < 2:
                self.stamp(2 + k, True)
                if o.vdiag:
                    e("s_waitcnt lgkmcnt(0)")
            first, second = (S_T0, S_T1) if k % 2 == 0 else (S_T1, S_T0)
            e(f"s_load_dword s42, s[{S_W}:{S_W + 1}], s{first} glc")
            e(f"s_load_dword s43, s[{S_W}:{S_W + 1}], s{second} glc")
            e("s_waitcnt lgkmcnt(1)")
            e("s_nop 7")
            e(f"s_getreg_b32 s{S_T2}, hwreg(HW_REG_IB_STS, 8, 4)   ; 1: the second answer is still out")
            if k % 2 == 0:
                e(f"s_xor_b32 s{S_T2}, s{S_T2}, 1")
            e(f"s_add_u32 s{S_CNT}, s{S_CNT}, s{S_T2}")
        assert NRACE % 2 == 0 and o.qout <= 12 and o.qws <= 8 and o.qgen <= 8 and NVOTE_WG == 32
        e(f"s_sub_u32 s{S_T2}, 0, s{S_CNT}")
        e(f"s_add_u32 s{S_T0}, s{S_T0}, s{S_V + 3}")
        e(f"s_lshr_b32 s{S_T0}, s{S_T0}, 19")
        e(f"s_getreg_b32 s{S_T1}, hwreg(HW_REG_XCC_ID, 0, 3)")
        e(f"s_xor_b32 s{S_T0}, s{S_T0}, s{S_T1}")
        e(f"s_bitcmp1_b32 s{S_T0}, 2")
        e(f"s_cselect_b32 s{S_CNT}, s{S_T2}, s{S_CNT}")
        e(f"s_lshl_b32 s{S_CNT}, s{S_CNT}, 8")
        e(f"s_or_b32 s{S_CNT}, s{S_CNT}, 1")
        e(f"s_mov_b32 s{S_T1}, s{S_CNT}")
        e(f"s_lshl2_add_u32 s{S_T0}, s{S_V + 1}, {DBG_TAL}")
        self.stamp(6, True)
        e(f"s_atomic_add s{S_T1}, s[44:45], s{S_T0} glc")
        e(f"s_mul_i32 s{S_T2}, s{S_V + 1}, 6")
        e("s_waitcnt lgkmcnt(0)")
        e(f"s_add_u32 s{S_T1}, s{S_T1}, s{S_CNT}")
        self.stamp(13)
        e(f"s_and_b32 s{S_T0}, s{S_T1}, 0xff")
        e(f"s_cmp_lg_u32 s{S_T0}, s{S_V}")
        e("s_cbranch_scc1 L_stream")
        e("; exactly one voter completes the tally's quorum: it publishes bit 11+6t (known) and bit 12+6t (margin > 0)")
        e(f"s_cmp_gt_i32 s{S_T1}, 0xff")
        e(f"s_cselect_b32 s{S_T1}, 3, 1")
        e(f"s_add_u32 s{S_T2}, s{S_T2}, 11")
        e(f"s_lshl_b32 s{S_T1}, s{S_T1}, s{S_T2}")
        e("L_publish:")
        e(f"s_atomic_add s{S_T1}, s[44:45], {DBG_RES}")
        e("s_waitcnt lgkmcnt(0)")
        e("s_branch L_stream")

        e("; ---- one wave draws this launch's hand-off tag: different from the one the last launch left behind")
        e("L_tag:")
        e(f"s_mov_b32 s{S_T1}, 1")
        e("s_waitcnt lgkmcnt(0)")
        e(f"s_atomic_add s{S_T1}, s[46:47], {WS_E} glc")
        e("s_waitcnt lgkmcnt(0)")
        e(f"s_add_u32 s{S_T1}, s{S_T1}, 1")
        e(f"s_and_b32 s{S_T1}, s{S_T1}, 0xff")
        e(f"s_bitset1_b32 s{S_T1}, 8")
        assert NVOTE_WG % 8 == 0
        e(f"s_getreg_b32 s{S_T0}, hwreg(HW_REG_XCC_ID, 0, 3)")
        e(f"s_lshl_b32 s{S_T0}, s{S_T0}, 13")
        e(f"s_or_b32 s{S_T1}, s{S_T1}, s{S_T0}")
        self.stamp(13)
        e("s_branch L_publish")

        e("@@RARE")
        e("; ---- a wait has lasted: the group's reducers may sit on another die, so write this")
        e(";      workgroup's first-stage lines through to memory")
        if o.clean in ("a", "h"):
            e("L_clean0:")
            clean1()
            e("s_branch L_join")
        for nm in ("r", "q0", "q1"):
            k = nm[1:]
            e(f"L_{nm[0]}long{k}:")
            e("s_waitcnt vmcnt(0)")
            e(f"s_cmp_lg_u32 s{S_HOOK}, 0")
            e(f"s_cbranch_scc1 L_{nm[0]}got{k}")
            e(f"s_call_b64 s[{S_RET}:{S_RET + 1}], L_flush")
            e(f"s_branch L_{nm[0]}poll{k}")
        e("L_flush:")
        e(f"s_mov_b32 s{S_CNT}, {SPIN}")
        e(f"s_mov_b32 s{S_HOOK}, {SPIN}")
        e("s_mov_b32 exec_lo, -1")
        e("s_mov_b32 exec_hi, 0xffff")
        e("v_lshlrev_b32 v13, 4, v1")
        e("L_floop:")
        e(f"buffer_load_dwordx4 v[8:11], v13, s[{S_WS}:{S_WS + 3}], s{S_PO} offen sc1")
        e(f"buffer_load_dwordx4 v[4:7], v13, s[{S_WS}:{S_WS + 3}], s{S_PO} offen offset:768 sc1")
        e(f"s_sub_u32 s{S_HOOK}, s{S_HOOK}, 1")
        e("s_waitcnt vmcnt(0)")
        e(f"v_xor_b32 v12, s{S_TG[0]}, v8")
        for r in (9, 10, 11, 4, 5, 6, 7):
            e(f"v_bitop3_b32 v12, v12, v{r}, s{S_TG[r & 3]} bitop3:0xf6")
        e("v_and_b32 v12, 15, v12")
        e("v_cmp_ne_u32 vcc, 0, v12")
        e("s_cbranch_scc1 L_fdone")
        e("s_cbranch_vccnz L_floop")
        e("L_fdone:")
        e(f"buffer_store_dwordx4 v[8:11], v13, s[{S_WS}:{S_WS + 3}], s{S_PO} offen sc1")
        e(f"buffer_store_dwordx4 v[4:7], v13, s[{S_WS}:{S_WS + 3}], s{S_PO} offen offset:768 sc1")
        e("s_waitcnt vmcnt(0)")
        e("s_mov_b64 exec, -1")
        e(f"s_mov_b32 s{S_HOOK}, -1")
        e(f"s_setpc_b64 s[{S_RET}:{S_RET + 1}]")

        e("@@DPOLL")
        e("; ---- result not there yet: poll past the scalar cache")
        e("L_dpoll:")
        e(f"s_mov_b32 s{S_CNT}, {SPIN}")
        e(f"v_mov_b32 v{V_AT}, 0")
        e("s_mov_b64 exec, 1")
        e("L_dloop:")
        e(f"buffer_load_dword v{V_AT}, off, s[{S_DBG}:{S_DBG + 3}], 0 offset:{DBG_RES} sc1")
        e(f"s_sleep {o.dsleep}")
        e("s_waitcnt vmcnt(24)")
        e(f"v_readfirstlane_b32 s{S_T2}, v{V_AT}          ; whatever poll has landed last")
        e(f"s_sub_u32 s{S_CNT}, s{S_CNT}, 1")
        e("s_cbranch_scc1 L_dgot")
        e(f"s_andn2_b32 s{S_OFF}, s{S_OK}, s{S_T2}")
        e("s_cbranch_scc1 L_dloop")
        e("L_dgot:")
        e("s_mov_b64 exec, -1")
        e("s_branch L_decided")

        e("@@END")
        L = self.lines
        ix = {k: L.index("    @@" + k) for k in ("ROLE", "RARE", "DPOLL", "END")}
        role, rare, dpoll = L[ix["ROLE"] + 1:ix["RARE"]], L[ix["RARE"] + 1:ix["DPOLL"]], L[ix["DPOLL"] + 1:ix["END"]]
        main = L[:ix["ROLE"]]
        p1, p2 = main.index("    @@HERE1"), main.index("    @@HERE2")
        if o.lay:
            self.lines = (main[:p1] + ["    s_branch L_skip1"] + role + dpoll + ["L_skip1:"] + main[p1 + 1:p2]
                          + ["    s_branch L_tail"] + rare + ["    .p2align 12", "L_tail:"] + main[p2 + 1:])
        else:
            self.lines = main[:p1] + main[p1 + 1:p2] + main[p2 + 1:] + role + rare + dpoll

    def text(self):
        out = HEADER
        out += f"; @launch grid=({NWG},1,1) block=(768,1,1) lds={L_TOTAL}\n"
        out += DOC
        out += '.amdgcn_target "amdgcn-amd-amdhsa--gfx950"\n.text\n'
        out += f".globl {KNAME}\n.p2align 8\n.type {KNAME},@function\n{KNAME}:\n"
        out += "\n".join(self.lines) + "\n"
        out += f""".section .rodata,"a"
.p2align 6
.amdhsa_kernel {KNAME}
  .amdhsa_next_free_vgpr 168
  .amdhsa_next_free_sgpr {100 if self.o.stamps else 96 if self.o.xfer else 56}
  .amdhsa_accum_offset 168
  .amdhsa_group_segment_fixed_size 0
  .amdhsa_kernarg_size 48
  .amdhsa_user_sgpr_count 2
  .amdhsa_user_sgpr_kernarg_segment_ptr 1
  .amdhsa_system_sgpr_workgroup_id_x 1
  .amdhsa_float_denorm_mode_32 3
.end_amdhsa_kernel
"""
        return out


def main():
    p = argparse.ArgumentParser()
    p.add_argument("-o", default="standalone__channel_attn_cbam__vision.s")
    p.add_argument("--ldflags", default="nt")
    p.add_argument("--stflags", default="sc1")
    p.add_argument("--p1flags", default="sc1")
    p.add_argument("--stamps", action="store_true")
    p.add_argument("--probe", default="")
    p.add_argument("--depth", type=int, default=10)
    p.add_argument("--nrace", type=int, default=2)
    p.add_argument("--dsleep", type=int, default=8)
    p.add_argument("--trace", default="")
    p.add_argument("--nodec", action="store_true")
    p.add_argument("--vdiag", action="store_true")
    p.add_argument("--dbgptr", action="store_true")
    p.add_argument("--opp", default="5,9", type=lambda v: [int(x) for x in v.split(",")])
    p.add_argument("--quorum", type=int, default=16)
    p.add_argument("--quorum4", type=int, default=24)
    p.add_argument("--nvote", type=int, default=32)
    p.add_argument("--nagn", type=int, default=6)
    p.add_argument("--stlim", type=int, default=0)
    p.add_argument("--psc1", action="store_true")
    p.add_argument("--pnt", action="store_true")
    p.add_argument("--q2", type=int, default=0)
    p.add_argument("--xfer", type=int, default=0)
    p.add_argument("--xpos", type=int, default=26)
    p.add_argument("--xspos", type=int, default=26)
    p.add_argument("--qout", type=int, default=7)
    p.add_argument("--qws", type=int, default=4)
    p.add_argument("--qgen", type=int, default=5)
    p.add_argument("--jorder", default="12,0,13,1,14,2,15,3,16,4,17,5,18,6,19,7,20,8,21,9,22,10,23,11,24,25,26,27,28,29,30,31")
    p.add_argument("--urot", type=int, default=0)
    p.add_argument("--lmap", type=int, default=0)
    p.add_argument("--qrot", type=int, default=0)
    p.add_argument("--umap", type=int, default=0)
    p.add_argument("--cfull", type=int, default=1)
    p.add_argument("--wtouch", type=int, default=1)
    p.add_argument("--lay", type=int, default=1)
    p.add_argument("--skipfrom", type=int, default=99)
    p.add_argument("--ttail", type=int, default=0)
    p.add_argument("--tlb", type=int, default=0)
    p.add_argument("--rot", type=int, default=0)
    p.add_argument("--pad", type=int, default=0)
    p.add_argument("--lpf", type=int, default=0)
    p.add_argument("--al", type=int, default=0)
    p.add_argument("--cap", type=int, default=0)
    p.add_argument("--capfrom", type=int, default=12)
    p.add_argument("--capto", type=int, default=32)
    p.add_argument("--skewa", type=int, default=1)
    p.add_argument("--skewd", type=int, default=1)
    p.add_argument("--skewc", type=int, default=0)
    p.add_argument("--skew", type=int, default=0, help="timing diagnostic only")
    p.add_argument("--warmfl", default="")
    p.add_argument("--sdiag", action="store_true")
    p.add_argument("--rpf", type=int, default=0)
    p.add_argument("--dpf", type=int, default=0)
    p.add_argument("--pwg", type=int, default=0)
    p.add_argument("--pwave", type=int, default=0)
    p.add_argument("--pref", type=int, default=0)
    p.add_argument("--qshift", type=int, default=32)
    p.add_argument("--rolepos", type=int, default=-1)
    p.add_argument("--prebar", type=int, default=1)
    p.add_argument("--qmap", type=int, default=0)
    p.add_argument("--agnu", type=int, default=4)
    p.add_argument("--warmst", type=int, default=0)
    p.add_argument("--cw", type=int, default=0)
    p.add_argument("--cld", action="store_true")
    p.add_argument("--qflip", type=int, default=0)
    p.add_argument("--qcopy", type=int, default=4)
    p.add_argument("--mul", default="dot")
    p.add_argument("--burst", type=int, default=32)
    p.add_argument("--idleclk", type=int, default=0)
    p.add_argument("--clk", action="store_true")
    p.add_argument("--sthr", type=int, default=0)
    p.add_argument("--sbar", default=[24], type=lambda v: [int(x) for x in v.split(",")])
    p.add_argument("--piece", type=int, default=128)
    p.add_argument("--xbar", default=[24], type=lambda v: [int(x) for x in v.split(",")])
    p.add_argument("--cpf", type=int, default=0)
    p.add_argument("--cpfpos", type=int, default=0)
    p.add_argument("--wpace", type=int, default=40)
    p.add_argument("--clean", default="g")
    p.add_argument("--warm", type=int, default=30)
    p.add_argument("--warmwave", type=int, default=4)
    p.add_argument("--qsleep", type=int, default=0)
    p.add_argument("--red0", type=int, default=8)
    p.add_argument("--redstep", type=int, default=2)
    p.add_argument("--off", default="", help="diagnostics: v = no votes, c = no clears, r = result not read")
    p.add_argument("--spans", default="")
    p.add_argument("--split", action="store_true")
    p.add_argument("--pfback", type=int, default=0)
    p.add_argument("--nplain", type=int, default=0)
    p.add_argument("--wb", default="", help="minwave,wglimit,pos")
    p.add_argument("--thr", type=int, default=2)
    p.add_argument("--thrfrom", type=int, default=12)
    p.add_argument("--thrto", type=int, default=26)
    p.add_argument("--thrmask", default="0x55")
    p.add_argument("--zorder", default="8,0,9,1,10,2,11,3,12,4,13,5,14,6,15,7")
    o = p.parse_args()
    global NAGN, SPANS, NVOTE_WG
    NVOTE_WG = o.nvote
    NAGN = o.nagn
    if NAGN == 6:
        SPANS = [(0, 0), (0, 1), (1, 0), (1, 1), (2, 0), (2, 1),
                 (3, 0), (3, 1), (4, 0), (4, 1), (5, 0), (5, 1), (6, 0), (6, 1), (7, 0), (7, 1)]
        if o.zorder == p.get_default("zorder"):
            o.zorder = "6,0,7,1,8,2,9,3,10,4,11,5,12,13,14,15"
    if o.xfer:
        global L_TOTAL
        L_TOTAL = L_X + 12288
        SPANS[14], SPANS[15] = SPANS[15], SPANS[14]
    if o.spans:
        SPANS = [(int(v[0]), int(v[1])) for v in o.spans.split(",")]
        assert sorted(SPANS) == [(a, b) for a in range(8) for b in range(2)]
    g = G(o)
    g.build()
    open(o.o, "w").write(g.text())


if __name__ == "__main__":
    main()
```

```python
import argparse

KNAME = "standalone__channel_attn_cbam__vision_kernel"

HEADER = """; Kernarg layout for this problem (48 bytes, ptrs only, base s[0:1]):
;   offset   0: d_in[0] x  shape=(1, 512, 512, 192) dtype=bfloat16 strides=(100663296, 196608, 384, 2) contiguous=True
;   offset   8: d_in[1] w1  shape=(192, 48) dtype=bfloat16 strides=(96, 2) contiguous=True
;   offset  16: d_in[2] w2  shape=(48, 192) dtype=bfloat16 strides=(384, 2) contiguous=True
;   offset  40: d_ws      402653184 bytes workspace (unspecified values whenever your kernel or launch list starts; a list's later launches find what earlier ones wrote)
"""

X_BYTES = 100663296
NWG = 256
NRED = 12
MiB = 1 << 20

L_RED = 0
L_H = 6144
L_DEC = 6336
L_S = 6400
L_F = 7168
L_W1 = 8192
L_W2 = L_W1 + 18432
L_SPILL = L_W2 + 18432
L_TOTAL = L_SPILL + 3 * 8192

WS_P = 0
WS_Q = 256 * 1536
WS_E = WS_Q + 4 * 49152
WS_USED = WS_E + 128
WS_PROBE = 640 * 1024
WS_STAMP = 1 << 20

S_X, S_OUT, S_WS, S_DBG, S_W = 4, 8, 12, 16, 20
S_WAVE, S_TY, S_SUB, S_OFF, S_MASK, S_CNT, S_T0, S_T1 = 28, 29, 30, 31, 32, 33, 34, 35
S_BASE, S_PM, S_P, S_T2 = 48, 49, 50, 51
S_AGN, S_RID, S_PO = 40, 42, 43
S_TG = [41, 47, 3, 0]
S_RET, S_HOOK, S_QC = 38, 46, 1
S_BASE1 = 45
NFB = 48
S_STAMP = 52
S_V = 24

D0 = 40
SPIN = 400000
V_L, V_G0, V_G1, V_AT = 0, 39, 38, 36

NAGN = 8
SPANS = [(0, 0), (0, 1), (1, 0), (1, 1), (2, 0), (2, 1), (3, 0), (3, 1),
         (6, 0), (4, 0), (6, 1), (4, 1), (7, 0), (5, 0), (7, 1), (5, 1)]
W_ROLE = 0
DBG_RES, DBG_TAL = 0, 128
NVOTE_WG = 32
RES_OK = (1 << 8) | (1 << 11) | (1 << 17) | (1 << 29)
S_OK = 44


def mask(pred):
    return sum(1 << z for z, s in enumerate(SPANS) if pred(z, s))


class G:
    def __init__(self, o):
        self.o = o
        self.lines = []

    def e(self, s=""):
        self.lines.append(("    " + s) if s and not s.endswith(":") else s)

    def stamp(self, idx, vote=False):
        if self.o.clk:
            if idx in (11, 12, 13):
                return
            m = {0: 11, 7: 12, 10: 13}.get(idx)
            if m:
                self.e(f"s_memtime s[{S_STAMP + 2 * m}:{S_STAMP + 2 * m + 1}]")
        if vote == "r":
            vote = False
        if self.o.vdiag and idx in (1, 2, 3, 6) and not vote:
            return
        if vote and not self.o.vdiag:
            return
        if self.o.stamps and not (self.o.trace and idx > 10):
            self.e(f"s_memrealtime s[{S_STAMP + 2 * idx}:{S_STAMP + 2 * idx + 1}]")

    def srd(self, d, lo, nbytes):
        e = self.e
        e(f"s_mov_b64 s[{d}:{d + 1}], s[{lo}:{lo + 1}]")
        e(f"s_mov_b32 s{d + 2}, {nbytes}")
        e(f"s_mov_b32 s{d + 3}, 0x20000")

    def span_off(self, z):
        return SPANS[z][0] * 12 * MiB + SPANS[z][1] * 49152

    def mem(self, j, fn):
        e = self.e
        z, u = j >> 1, j & 1
        if z < NAGN:
            off = (j // self.o.agnu) * (self.o.agnu * 3 * MiB - (self.o.skew if self.o.skewa else 0)) + (j % self.o.agnu) * 12288
            if off:
                e(f"s_add_u32 s{S_OFF}, s{S_AGN}, {off}")
                fn(f"v{V_L}", f"s{S_OFF}")
            else:
                fn(f"v{V_L}", f"s{S_AGN}")
            return
        if getattr(self, "pz", None) != z:
            e(f"s_bitcmp1_b32 s{S_PM}, {z}")
            e(f"s_cselect_b32 s{S_P}, 24576, 0")
            self.pz = z
        e(f"s_add_u32 s{S_OFF}, s{(S_BASE, S_BASE1)[SPANS[z][1]]}, {SPANS[z][0] * 12 * MiB - self.o.skew * (SPANS[z][0] * self.o.skewd + self.o.skewc) + 12288 * u}")
        at = 2 + u
        e(f"v_xad_u32 v{at}, v{(V_G0, V_G1)[u]}, s{S_P}, v{V_L}")
        if SPANS[z] == (7, 1):
            e(f"v_add_u32 v{at}, s{S_OFF}, v{at}")
            e(f"v_subrev_u32 v{5 - at}, s{S_X + 2}, v{at}")
            e(f"v_min_u32 v{at}, v{at}, v{5 - at}             ; past the end: wrap to the rows the shift skipped")
            fn(f"v{at}", "0")
        else:
            fn(f"v{at}", f"s{S_OFF}")

    def trace(self, kind, n):
        if self.o.trace == kind:
            if n > 0:
                self.e("s_waitcnt lgkmcnt(0)")
                self.e(f"s_mov_b32 s{76 + n - 1}, s92")
            self.e("s_memrealtime s[92:93]")

    def build(self):
        o, e = self.o, self.e
        NRACE = o.nrace
        ldf = (" " + o.ldflags) if o.ldflags else ""
        stf = (" " + o.stflags) if o.stflags else ""

        self.stamp(0)
        e("s_load_dwordx2 s[4:5], s[0:1], 0          ; x")
        e("s_load_dwordx2 s[8:9], s[0:1], 24         ; out")
        e("v_readfirstlane_b32 s%d, v0" % S_WAVE)
        e("v_and_b32 v1, 63, v0                      ; lane")
        pl = (o.piece // 16).bit_length() - 1
        e(f"v_bfe_u32 v2, v0, {pl}, {6 - pl}")
        e(f"v_mul_u32_u24 v2, {(3 * o.piece, 1536, 768, 384)[o.lmap]}, v2")
        e(f"v_and_b32 v3, {(1 << pl) - 1}, v0")
        e("s_cmpk_ge_u32 s2, %d" % NWG)
        e("s_cbranch_scc1 L_end")
        if o.rot:
            e(f"s_add_u32 s2, s2, {o.rot}")
            e("s_and_b32 s2, s2, 255")
        if o.rolepos < 0:
            e(f"s_lshl2_add_u32 s{S_T1}, s{S_WAVE}, s2")
            e(f"s_cmp_le_u32 s{S_T1}, {NVOTE_WG}              ; wave 0 of the first workgroups has a side job")
            e("s_cbranch_scc1 L_role")
            e("L_stream:")
        if o.lmap == 1:
            e("v_lshl_add_u32 v0, v3, 4, v2")
            e(f"v_lshl_add_u32 v{V_L}, s{S_WAVE}, 1, v0")
            e(f"s_lshr_b32 s{S_WAVE}, s{S_WAVE}, 6")
        elif o.lmap == 3:
            e(f"s_lshr_b32 s{S_TY}, s{S_WAVE}, 8")
            e(f"s_lshr_b32 s{S_WAVE}, s{S_WAVE}, 6")
            e(f"s_and_b32 s{S_SUB}, s{S_WAVE}, 3              ; sub = wave % 4")
            e(f"s_mul_i32 s{S_T0}, s{S_SUB}, 24")
            e(f"s_add_u32 s{S_T0}, s{S_T0}, s{S_TY}")
            e("v_lshl_add_u32 v0, v3, 4, v2")
            e(f"v_lshl_add_u32 v{V_L}, s{S_T0}, 7, v0")
        elif o.lmap == 2:
            e(f"s_lshr_b32 s{S_WAVE}, s{S_WAVE}, 6")
            e(f"s_cmp_ge_u32 s{S_WAVE}, 6")
            e(f"s_cselect_b32 s{S_T0}, 42, 0")
            e(f"s_add_u32 s{S_T0}, s{S_T0}, s{S_WAVE}")
            e("v_lshl_add_u32 v0, v3, 4, v2")
            e(f"v_lshl_add_u32 v{V_L}, s{S_T0}, 7, v0")
        else:
            e(f"s_lshr_b32 s{S_WAVE}, s{S_WAVE}, 6")
            e(f"s_mul_i32 s{S_SUB}, s{S_WAVE}, 43")
            e(f"s_lshr_b32 s{S_SUB}, s{S_SUB}, 7")
            e(f"s_mul_i32 s{S_T0}, s{S_SUB}, {3072 // o.piece - 3}")
            e(f"s_add_u32 s{S_T0}, s{S_T0}, s{S_WAVE}        ; sub*24 + wave % 3")
            e(f"s_lshl_b32 s{S_T0}, s{S_T0}, {pl + 4}")
            e("v_lshl_add_u32 v0, v3, 4, v2")
            e(f"v_add_u32 v{V_L}, s{S_T0}, v0               ; + sub*3072 + (wave % 3)*128")
        if o.umap == 1:
            pass
        elif o.umap >= 2:
            mul, rot = (o.umap >> 4) | 1, o.umap & 7
            e(f"s_lshr_b32 s{S_T1}, s2, 3")
            e(f"s_mul_i32 s{S_T1}, s{S_T1}, {rot}")
            e(f"s_mul_i32 s{S_T0}, s2, {mul}")
            e(f"s_add_u32 s{S_T0}, s{S_T0}, s{S_T1}")
            e(f"s_and_b32 s{S_T0}, s{S_T0}, 7")
            e(f"s_and_b32 s{S_T1}, s2, -8")
            e(f"s_add_u32 s{S_T0}, s{S_T0}, s{S_T1}")
        elif o.qmap == 0:
            e(f"s_and_b32 s{S_T0}, s2, 3")
            e(f"s_bfe_u32 s{S_T1}, s2, 0x10002")
            e(f"s_lshl1_add_u32 s{S_T0}, s{S_T0}, s{S_T1}")
            if o.urot:
                e(f"s_lshr_b32 s{S_T1}, s2, {o.urot & 15}")
                if o.urot >> 4:
                    e(f"s_lshl_b32 s{S_T1}, s{S_T1}, {o.urot >> 4}")
                e(f"s_add_u32 s{S_T0}, s{S_T0}, s{S_T1}")
                e(f"s_and_b32 s{S_T0}, s{S_T0}, 7")
            e(f"s_and_b32 s{S_T1}, s2, -8")
            e(f"s_add_u32 s{S_T0}, s{S_T0}, s{S_T1}")
        else:
            e(f"s_and_b32 s{S_T0}, s2, 7")
            e(f"s_lshl_b32 s{S_T0}, s{S_T0}, 5")
            e(f"s_lshr_b32 s{S_T1}, s2, 3")
            e(f"s_add_u32 s{S_T0}, s{S_T0}, s{S_T1}")
        e(f"s_mul_i32 s{S_AGN}, s{2 if o.umap == 1 else S_T0}, {o.agnu * 12288}")
        e(f"s_mov_b32 s{S_X + 2}, {X_BYTES}")
        e(f"s_mov_b32 s{S_X + 3}, 0x20000")
        if o.rolepos >= 0:
            e(f"s_lshl_b32 s{S_T1}, s{S_WAVE}, 8")
            e(f"s_or_b32 s{S_T1}, s{S_T1}, s2")
        if o.sdiag:
            self.stamp(6, True)
        e("s_waitcnt lgkmcnt(0)")
        if o.sdiag:
            self.stamp(1, True)
        e(f"s_lshr_b32 s{S_T0}, s{S_OUT}, 7")
        e(f"s_mul_i32 s{S_T0}, s{S_T0}, 21              ; -43 mod 64")
        e(f"s_and_b32 s{S_T0}, s{S_T0}, 63")
        e(f"s_mulk_i32 s{S_T0}, 384")
        e(f"s_add_u32 s{S_AGN}, s{S_AGN}, s{S_T0}")
        assert W_ROLE == 0

        SUM, MAX, T = 4, 12, 20
        DEPTH = o.depth
        seq = []

        def issue(j):
            if j == o.rolepos:
                e(f"s_cmp_le_u32 s{S_T1}, {NVOTE_WG}              ; wave 0 of the first workgroups has a side job")
                e("s_cbranch_scc1 L_role")
                e("L_stream:")
            if o.cpf and j == o.cpfpos:
                e(f"s_sub_u32 s{S_T1}, s{S_T1}, 256")
                e(f"s_cmp_ge_u32 s{S_T1}, {o.cpf}")
                e("s_cbranch_scc1 L_nocpf")
                e("s_getpc_b64 s[20:21]")
                e("v_lshlrev_b32 v2, 7, v1")
                e("v_add_u32 v3, 8192, v2")
                e("v_min_u32 v3, L_codeend - L_nocpf, v3")
                e("global_load_dword v36, v2, s[20:21]")
                e("global_load_dword v37, v3, s[20:21]")
                e("L_nocpf:")
            if j == max(4, o.rolepos):
                e("s_load_dwordx4 s[36:39], s[0:1], 8        ; w1, w2")
                e(f"s_load_dwordx2 s[{S_DBG}:{S_DBG + 1}], s[0:1], 32")
                e(f"s_load_dwordx2 s[{S_WS}:{S_WS + 1}], s[0:1], 40")
                e(f"s_mov_b32 s{S_MASK}, 0xffff0000")
            if j == 2 * NAGN:
                if o.lmap in (1, 2):
                    e(f"s_mul_i32 s{S_SUB}, s{S_WAVE}, 43")
                    e(f"s_lshr_b32 s{S_SUB}, s{S_SUB}, 7")
                if o.lmap != 3:
                    e(f"s_mul_i32 s{S_TY}, s{S_SUB}, 3")
                    e(f"s_sub_u32 s{S_TY}, s{S_WAVE}, s{S_TY}        ; ty = wave % 3")
                e(f"s_mov_b32 s{S_OUT + 2}, s{S_X + 2}")
                e(f"s_mov_b32 s{S_OUT + 3}, s{S_X + 3}")
                e(f"s_mov_b32 s{S_WS + 2}, {(2 << 20) if o.stamps else WS_USED}")
                e(f"s_mov_b32 s{S_WS + 3}, s{S_X + 3}")
                e(f"s_movk_i32 s{S_DBG + 2}, 256")
                e(f"s_mov_b32 s{S_DBG + 3}, s{S_X + 3}")
                e(f"s_movk_i32 s{S_T2}, 24576")
                e(f"v_bfe_u32 v{V_G0}, v{V_L}, 13, 1")
                e(f"v_add_u32 v{V_G1}, 12288, v{V_L}")
                e(f"v_bfe_u32 v{V_G1}, v{V_G1}, 13, 1")
                e(f"v_mul_u32_u24 v{V_G0}, s{S_T2}, v{V_G0}")
                e(f"v_mul_u32_u24 v{V_G1}, s{S_T2}, v{V_G1}")
                e(f"s_lshr_b32 s{S_T0}, s{S_OUT}, 7")
                e(f"s_mul_i32 s{S_T0}, s{S_T0}, 21")
                e(f"s_and_b32 s{S_T0}, s{S_T0}, 63")
                e(f"s_mulk_i32 s{S_T0}, 384")
                e(f"s_lshr_b32 s{S_BASE}, s2, 3")
                if o.qrot:
                    if o.qrot >= 16:
                        e(f"s_lshr_b32 s{S_T1}, s{S_BASE}, {o.qrot - 16}")
                    else:
                        e(f"s_mul_i32 s{S_T1}, s{S_BASE}, {o.qrot}")
                    e(f"s_add_u32 s{S_T1}, s{S_T1}, s2")
                    e(f"s_and_b32 s{S_T1}, s{S_T1}, 3")
                else:
                    e(f"s_and_b32 s{S_T1}, s2, 3")
                if o.qmap == 0:
                    e(f"s_lshl2_add_u32 s{S_BASE}, s{S_BASE}, s{S_T1}")
                else:
                    e(f"s_lshl_b32 s{S_T1}, s{S_T1}, 5")
                    e(f"s_add_u32 s{S_BASE}, s{S_BASE}, s{S_T1}")
                e(f"s_add_u32 s{S_BASE1}, s{S_BASE}, {o.qshift}")
                e(f"s_and_b32 s{S_BASE1}, s{S_BASE1}, 127")
                e(f"s_mul_i32 s{S_BASE}, s{S_BASE}, 98304")
                e(f"s_add_u32 s{S_BASE}, s{S_BASE}, s{S_T0}        ; the pair's first span of a step")
                e(f"s_mul_i32 s{S_BASE1}, s{S_BASE1}, 98304")
                e(f"s_add_u32 s{S_BASE1}, s{S_BASE1}, s{S_T0}")
                e(f"s_add_u32 s{S_BASE1}, s{S_BASE1}, 49152      ; its second span: 3 MiB on, where the memory stacks swap")
                h1 = mask(lambda z, s: s[1] == 1)
                e(f"s_add_u32 s{S_T2}, s{S_T2}, s{S_OUT}")
                e(f"s_add_u32 s{S_T0}, s{S_BASE}, s{S_T2}")
                e(f"s_bfe_i32 s{S_PM}, s{S_T0}, 0x10015")
                e(f"s_add_u32 s{S_T2}, s{S_BASE1}, s{S_T2}")
                e(f"s_xor_b32 s{S_T0}, s{S_T0}, s{S_T2}")
                e(f"s_bfe_i32 s{S_T0}, s{S_T0}, 0x10015")
                e(f"s_and_b32 s{S_T0}, s{S_T0}, {h1}")
                e(f"s_xor_b32 s{S_PM}, s{S_PM}, s{S_T0}")
                m1 = mask(lambda z, s: z >= NAGN and s[0] in (3, 4))
                z50 = SPANS.index((5, 0))
                z51 = SPANS.index((5, 1))
                dec = mask(lambda z, s: z >= NAGN)
                e(f"s_cmp_lt_u32 s{S_BASE}, {4 * MiB - 24576}")
                e(f"s_cselect_b32 s{S_T0}, {1 << z50}, 0")
                e(f"s_or_b32 s{S_T0}, s{S_T0}, {m1}")
                e(f"s_cmp_lt_u32 s{S_BASE1}, {4 * MiB - 24576}")
                e(f"s_cselect_b32 s{S_T1}, {1 << z51}, 0")
                e(f"s_or_b32 s{S_T0}, s{S_T0}, s{S_T1}            ; third 1")
                e(f"s_xor_b32 s{S_T1}, s{S_T0}, {dec}           ; third 2")
                per, pat = o.opp
                rep = sum(((pat >> (i % per)) & 1) << i for i in range(32))
                e(f"s_lshr_b32 s{S_P}, s2, 3")
                e(f"s_mul_i32 s{S_T2}, s{S_P}, {-(-256 // per)}")
                e(f"s_lshr_b32 s{S_T2}, s{S_T2}, 8")
                e(f"s_mul_i32 s{S_T2}, s{S_T2}, {per}")
                e(f"s_sub_u32 s{S_P}, s{S_P}, s{S_T2}             ; (b >> 3) % {per}")
                e(f"s_lshr_b32 s{S_P}, {rep}, s{S_P}")
                e(f"s_sub_u32 s{S_T2}, s{S_OUT}, s{S_X}")
                e(f"s_add_u32 s{S_T2}, s{S_T2}, 2048")
                e(f"s_bitcmp1_b32 s{S_T2}, 12")
                e(f"s_cselect_b32 s{S_P}, 0, s{S_P}")
                e(f"s_cselect_b32 s{S_OK}, 0, {1 << 23}")
                e(f"s_or_b32 s{S_OK}, s{S_OK}, {RES_OK}       ; the parts of the result word that must be in")
                e(f"s_lshr_b32 s{S_T2}, s2, 3")
                e(f"s_sub_u32 s{S_RID}, s{S_T2}, {o.red0}")
                e(f"s_and_b32 s{S_PO}, s2, 7")
                e(f"s_lshl_b32 s{S_PO}, s{S_PO}, 5")
                e(f"s_add_u32 s{S_PO}, s{S_PO}, s{S_T2}")
                e(f"s_mulk_i32 s{S_PO}, 1536")
                e("s_waitcnt lgkmcnt(0)")
                self.stamp(11)
                e("s_barrier")
                e(f"s_load_dword s{S_T2}, s[{S_DBG}:{S_DBG + 1}], {DBG_RES}")
                e("s_waitcnt lgkmcnt(0)")
                e(f"s_andn2_b32 s{S_CNT}, s{S_OK}, s{S_T2}")
                e("s_cbranch_scc1 L_dpoll")
                e("L_decided:")
                for i in range(4):
                    e(f"s_bitcmp1_b32 s{S_T2}, {7 + 6 * i + 5}")
                    e(f"s_cselect_b32 s{S_V + i}, s{(S_T0, S_T1)[i >> 1]}, 0")
                e(f"s_or_b32 s{S_V}, s{S_V}, s{S_V + 2}")
                e(f"s_or_b32 s{S_V + 1}, s{S_V + 1}, s{S_V + 3}")
                e(f"s_xor_b32 s{S_V}, s{S_V}, s{S_V + 1}")
                e(f"s_and_b32 s{S_V}, s{S_V}, s{S_P}")
                e(f"s_xor_b32 s{S_V}, s{S_V}, s{S_V + 1}")
                e(f"s_xor_b32 s{S_PM}, s{S_PM}, s{S_V}")
                e(f"s_lshr_b32 s{S_QC}, s{S_T2}, 13")
                e(f"s_add_u32 s{S_QC}, s{S_QC}, s2")
                e(f"s_bfe_i32 s{S_V}, s{S_QC}, 0x10002")
                e(f"s_xor_b32 s{S_PM}, s{S_PM}, s{S_V}")
                e(f"s_and_b32 s{S_TG[0]}, s{S_T2}, 15")
                e(f"s_bfe_u32 s{S_TG[1]}, s{S_T2}, 0x40004")
                e(f"s_xor_b32 s{S_TG[2]}, s{S_TG[0]}, 15")
                e(f"s_xor_b32 s{S_TG[3]}, s{S_TG[1]}, 15")
                e(f"s_lshr_b32 s{S_V}, s{S_T2}, 10")
                e(f"s_and_b32 s{S_V}, s{S_V}, 4")
                e(f"s_xor_b32 s{S_QC}, s{S_QC}, s{S_V}           ; bits 2:0: the second-stage copy near this die")
                if o.wtouch:
                    e("s_load_dword s22, s[36:37], 0")
                    e("s_load_dword s23, s[38:39], 0")
                self.stamp(12)
            if j in o.xbar:
                e("s_barrier")
                if j == o.xbar[-1]:
                    self.stamp(2, "r")
            if j == o.warm and o.warmst:
                e(f"s_cmp_ge_u32 s{S_WAVE}, 2")
                e("s_cbranch_scc1 L_nowarm")
                for i in range(4):
                    e(f"v_mov_b32 v{20 + i}, 0")
                e(f"s_mul_i32 s{S_T0}, s{S_WAVE}, 768")
                e(f"v_lshl_add_u32 v3, v1, 4, s{S_T0}")
                e("s_mov_b32 exec_hi, 0xffff")
                e(f"buffer_store_dwordx4 v[20:23], v3, s[{S_WS}:{S_WS + 3}], s{S_PO} offen")
                e("s_mov_b64 exec, -1")
                e("L_nowarm:")
            if j == o.warm and not o.warmst:
                e(f"s_cmp_lg_u32 s{S_WAVE}, {o.warmwave}")
                e("s_cbranch_scc1 L_nowarm")
                e("v_lshlrev_b32 v3, 7, v1")
                e("s_mov_b64 exec, 0xfff")
                e(f"buffer_load_dword v37, v3, s[{S_WS}:{S_WS + 3}], s{S_PO} offen {o.warmfl}")
                e("s_mov_b64 exec, -1")
                if o.lpf == 2:
                    e(f"s_cmp_lg_u32 s{S_RID}, {NRED}")
                    e("s_cbranch_scc1 L_nowarm")
                    e("s_getpc_b64 s[20:21]")
                    if o.lay:
                        e("v_add_u32 v3, L_tail - L_nowarm + 32, v3")
                    e("v_min_u32 v3, L_end - L_nowarm, v3")
                    e("global_load_dword v37, v3, s[20:21]")
                e("L_nowarm:")
            r = D0 + 4 * j
            if o.thr and j == 10:
                e(f"s_getreg_b32 s{S_T0}, hwreg(HW_REG_XCC_ID, 0, 3)")
                e(f"s_lshr_b32 s{S_T0}, {o.thrmask}, s{S_T0}")
                e(f"s_and_b64 vcc, s[{S_T0}:{S_T0 + 1}], 1")
            if o.cap and o.capfrom <= j < o.capto:
                e(f"s_waitcnt vmcnt({o.cap - 1})")
            if o.thr and o.thrfrom <= j < o.thrto:
                e(f"s_cbranch_vccz L_thr{j}")
                e(f"s_waitcnt vmcnt({o.thr - 1})")
                e(f"L_thr{j}:")
            self.mem(j, lambda va, so: e(f"buffer_load_dwordx4 v[{r}:{r + 3}], {va}, s[{S_X}:{S_X + 3}], {so} offen{ldf}"))
            seq.append(j)
            if o.sdiag and j == 0:
                self.stamp(2, True)
            if o.sdiag and j == 2:
                e("s_waitcnt vmcnt(2)")
                self.stamp(3, True)
            if j & 1:
                self.trace("ld", j >> 1)

        def wait_for(j):
            e(f"s_waitcnt vmcnt({len(seq) - 1 - seq.index(j)})")

        def scatter54():
            for base in (MAX, SUM):
                for i in range(4):
                    e(f"v_permlane32_swap_b32 v{base + i}, v{base + 4 + i}")
            for i in range(4):
                e(f"v_max_f32 v{MAX + i}, v{MAX + i}, v{MAX + 4 + i}")
            for i in range(4):
                e(f"v_add_f32 v{SUM + i}, v{SUM + i}, v{SUM + 4 + i}")
            for i in range(2):
                e(f"v_permlane16_swap_b32 v{MAX + i}, v{MAX + 2 + i}")
            for i in range(2):
                e(f"v_permlane16_swap_b32 v{SUM + i}, v{SUM + 2 + i}")
            for i in range(2):
                e(f"v_add_f32 v{SUM + i}, v{SUM + i}, v{SUM + 2 + i}")
            for i in range(2):
                e(f"v_max_f32 v{MAX + i}, v{MAX + i}, v{MAX + 2 + i}")

        nxt = 0
        for jj in range(16):
            while nxt < 32 and nxt < max(2 * jj + DEPTH + 2, 2 * NAGN + 2 if o.prebar else 0):
                issue(nxt)
                nxt += 1
                if nxt == 32:
                    self.stamp(1)
            a, b = D0 + 8 * jj, D0 + 8 * jj + 4
            if jj == 0:
                e("@@HERE1")
            if jj == 15:
                e("@@HERE2")
                e("v_and_b32 v2, 7, v1")
                e("v_lshlrev_b32 v2, 5, v2                   ; (l&7)*32")
                e("v_lshrrev_b32 v3, 4, v1")
                e("v_lshl_add_u32 v2, v3, 3, v2              ; + (l>>4)*8")
                e("v_bfe_u32 v3, v1, 3, 1")
                e("v_mul_u32_u24 v3, 768, v3")
                e(f"s_mul_i32 s{S_T0}, s{S_SUB}, 1536")
                e(f"s_lshl_b32 s{S_T1}, s{S_TY}, 8")
                e(f"s_add_u32 s{S_T0}, s{S_T0}, s{S_T1}")
                e(f"v_add3_u32 v2, v2, v3, s{S_T0}")
                e(f"s_mul_i32 s{S_T0}, s{S_WAVE}, 768")
                e(f"v_lshl_add_u32 v3, v1, 4, s{S_T0}")
                if o.ttail:
                    scatter54()
                    for r in (a, b):
                        wait_for((r - D0) // 4)
                        if r == b:
                            self.stamp(3)
                        C = T + 8
                        e(f"v_mov_b64 v[{C}:{C + 1}], v[{r}:{r + 1}]")
                        e(f"v_mov_b64 v[{C + 2}:{C + 3}], v[{r + 2}:{r + 3}]")
                        e("s_nop 1")
                        e(f"v_permlane32_swap_b32 v{C}, v{C + 2}")
                        e(f"v_permlane32_swap_b32 v{C + 1}, v{C + 3}")
                        e("s_nop 1")
                        e(f"v_permlane16_swap_b32 v{C}, v{C + 1}")
                        e(f"v_permlane16_swap_b32 v{C + 2}, v{C + 3}")
                        for i in range(4):
                            t = T + 2 * i
                            e(f"v_lshlrev_b32 v{t}, 16, v{C + i}")
                            e(f"v_and_b32 v{t + 1}, s{S_MASK}, v{C + i}")
                        e(f"v_pk_add_f32 v[{C}:{C + 1}], v[{T}:{T + 1}], v[{T + 2}:{T + 3}]")
                        e(f"v_pk_add_f32 v[{C + 2}:{C + 3}], v[{T + 4}:{T + 5}], v[{T + 6}:{T + 7}]")
                        e(f"v_max3_f32 v{MAX}, v{MAX}, v{T}, v{T + 2}")
                        e(f"v_pk_add_f32 v[{C}:{C + 1}], v[{C}:{C + 1}], v[{C + 2}:{C + 3}]")
                        e(f"v_max3_f32 v{MAX + 1}, v{MAX + 1}, v{T + 1}, v{T + 3}")
                        e(f"v_pk_add_f32 v[{SUM}:{SUM + 1}], v[{SUM}:{SUM + 1}], v[{C}:{C + 1}]")
                        e(f"v_max3_f32 v{MAX}, v{MAX}, v{T + 4}, v{T + 6}")
                        e(f"v_max3_f32 v{MAX + 1}, v{MAX + 1}, v{T + 5}, v{T + 7}")
                    continue
                for r in (a, b):
                    wait_for((r - D0) // 4)
                    if r == b:
                        self.stamp(3)
                    for i in range(4):
                        t = T + 2 * i
                        e(f"v_lshlrev_b32 v{t}, 16, v{r + i}")
                        e(f"v_and_b32 v{t + 1}, s{S_MASK}, v{r + i}")
                    for i in range(8):
                        e(f"v_max_f32 v{MAX + i}, v{MAX + i}, v{T + i}")
                    for i in range(4):
                        t, s = T + 2 * i, SUM + 2 * i
                        e(f"v_pk_add_f32 v[{s}:{s + 1}], v[{s}:{s + 1}], v[{t}:{t + 1}]")
                continue
            wait_for(2 * jj + 1)
            if jj == 0 and not o.xbar:
                self.stamp(2)
            if jj >= o.skipfrom:
                continue
            for i in range(4):
                t = T + 4 * i
                e(f"v_lshlrev_b32 v{t}, 16, v{a + i}")
                e(f"v_and_b32 v{t + 1}, s{S_MASK}, v{a + i}")
                e(f"v_lshlrev_b32 v{t + 2}, 16, v{b + i}")
                e(f"v_and_b32 v{t + 3}, s{S_MASK}, v{b + i}")
            for i in range(4):
                t = T + 4 * i
                s, m = SUM + 2 * i, MAX + 2 * i
                if jj == 0:
                    e(f"v_max_f32 v{m}, v{t}, v{t + 2}")
                    e(f"v_max_f32 v{m + 1}, v{t + 1}, v{t + 3}")
                    e(f"v_pk_add_f32 v[{s}:{s + 1}], v[{t}:{t + 1}], v[{t + 2}:{t + 3}]")
                else:
                    e(f"v_max3_f32 v{m}, v{m}, v{t}, v{t + 2}")
                    e(f"v_max3_f32 v{m + 1}, v{m + 1}, v{t + 1}, v{t + 3}")
                    e(f"v_pk_add_f32 v[{t}:{t + 1}], v[{t}:{t + 1}], v[{t + 2}:{t + 3}]")
            if jj:
                for i in range(4):
                    t = T + 4 * i
                    s = SUM + 2 * i
                    e(f"v_pk_add_f32 v[{s}:{s + 1}], v[{s}:{s + 1}], v[{t}:{t + 1}]")

        if not o.ttail:
            scatter54()
        e(f"s_cmp_ge_u32 s{S_WAVE}, 2")
        for i in range(2):
            e(f"v_add_f32_dpp v{SUM + i}, v{SUM + i}, v{SUM + i} row_ror:8 row_mask:0xf bank_mask:0x3")
        for i in range(2):
            e(f"v_max_f32_dpp v{SUM + i}, v{MAX + i}, v{MAX + i} row_ror:8 row_mask:0xf bank_mask:0xc")
        e(f"ds_write_b64 v2, v[{SUM}:{SUM + 1}] offset:{L_RED}")
        e("s_waitcnt lgkmcnt(0)")
        e("s_barrier")
        self.stamp(4)
        e("s_cbranch_scc1 L_nopub")

        e("s_mov_b32 exec_hi, 0xffff")
        for k in range(4):
            e(f"ds_read_b128 v[{4 + 4 * k}:{7 + 4 * k}], v3 offset:{L_RED + 1536 * k}")
        e(f"s_cmp_eq_u32 s{S_WAVE}, 0")
        e(f"s_cselect_b64 s[{S_W}:{S_W + 1}], s[36:37], s[38:39]")
        e("s_cbranch_scc0 L_pubmax")
        e("s_waitcnt lgkmcnt(2)")
        e("v_pk_add_f32 v[4:5], v[4:5], v[8:9]")
        e("v_pk_add_f32 v[6:7], v[6:7], v[10:11]")
        e("s_waitcnt lgkmcnt(0)")
        e("v_pk_add_f32 v[12:13], v[12:13], v[16:17]")
        e("v_pk_add_f32 v[14:15], v[14:15], v[18:19]")
        e("v_pk_add_f32 v[4:5], v[4:5], v[12:13]")
        e("v_pk_add_f32 v[6:7], v[6:7], v[14:15]")
        e("s_branch L_pub")
        e("L_pubmax:")
        e("s_waitcnt lgkmcnt(1)")
        for i in range(4):
            e(f"v_max3_f32 v{4 + i}, v{4 + i}, v{8 + i}, v{12 + i}")
        e("s_waitcnt lgkmcnt(0)")
        for i in range(4):
            e(f"v_max_f32 v{4 + i}, v{4 + i}, v{16 + i}")
        e("L_pub:")
        for i in range(4):
            e(f"v_and_or_b32 v{4 + i}, v{4 + i}, -16, s{S_TG[i]}")
        e(f"buffer_store_dwordx4 v[4:7], v3, s[{S_WS}:{S_WS + 3}], s{S_PO} offen{' sc1' if o.psc1 else ' nt' if o.pnt else ''}")
        e("s_mov_b64 exec, -1")
        e(f"s_movk_i32 s{S_W + 2}, 18432")
        e(f"s_mov_b32 s{S_W + 3}, 0x20000")
        e(f"s_mul_i32 s{S_T0}, s{S_WAVE}, 18432")
        e(f"s_addk_i32 s{S_T0}, {L_W1}")
        e(f"s_mov_b32 s{S_T1}, 0")
        e("v_lshlrev_b32 v2, 4, v1")
        e("L_wloop:")
        e(f"s_add_u32 m0, s{S_T0}, s{S_T1}")
        e("s_nop 0")
        for k in range(3):
            e(f"buffer_load_dwordx4 v2, s[{S_W}:{S_W + 3}], s{S_T1} offen offset:{k * 1024} lds")
        e(f"s_addk_i32 s{S_T1}, 3072")
        e(f"s_cmp_lt_u32 s{S_T1}, 18432")
        e("s_cbranch_scc1 L_wloop")
        e("L_nopub:")

        B2 = 28
        V_H0, V_H1, V_SW, V_SR, V_Q = 24, 25, 26, 27, 37
        SP0 = 136
        A1 = 144
        B1 = [4, 8, 12, 16, 136, 140]
        e("v_lshrrev_b32 v20, 4, v1                  ; q")
        e(f"s_cmp_lt_u32 s{S_WAVE}, 3")
        e("s_cbranch_scc1 L_spill")
        e(f"s_cmp_ge_u32 s{S_RID}, {NRED}")
        e("s_cbranch_scc1 L_barw")
        e(f"s_cmp_lg_u32 s{S_WAVE}, 3")
        e("s_cbranch_scc1 L_barw")

        def clean(lbl, d, a):
            e(f"s_cmp_lg_u32 s{S_WAVE}, 3")
            e(f"s_cbranch_scc1 {lbl}")
            if o.cw:
                e(f"v_mov_b32 v{d}, 0")
                e(f"v_lshlrev_b32 v{a}, {o.cw}, v1")
                e(f"s_mov_b64 exec, {(1 << (1536 >> o.cw)) - 1}")
                if o.cld:
                    e(f"buffer_atomic_or v{d}, v{a}, s[{S_WS}:{S_WS + 3}], s{S_PO} offen")
                else:
                    e(f"buffer_store_dword v{d}, v{a}, s[{S_WS}:{S_WS + 3}], s{S_PO} offen sc1")
                e("s_mov_b64 exec, -1")
                return
            for i in range(4):
                e(f"v_mov_b32 v{d + i}, 0")
            e(f"v_lshlrev_b32 v{a}, 4, v1")
            e("s_mov_b32 exec_hi, 0xffff")
            e(f"buffer_store_dwordx4 v[{d}:{d + 3}], v{a}, s[{S_WS}:{S_WS + 3}], s{S_PO} offen sc1")
            e(f"buffer_store_dwordx4 v[{d}:{d + 3}], v{a}, s[{S_WS}:{S_WS + 3}], s{S_PO} offen offset:768 sc1")
            e("s_mov_b64 exec, -1")

        e("v_lshrrev_b32 v2, 3, v1")
        e("v_mul_u32_u24 v2, 1536, v2")
        e("v_and_b32 v3, 7, v1")
        e(f"v_lshl_add_u32 v{V_Q}, v3, 4, v2")
        e(f"s_and_b32 s{S_T0}, s2, 7")
        e(f"s_mul_i32 s{S_V}, s{S_T0}, {32 * 1536}")
        e(f"s_lshl_b32 s{S_T1}, s{S_RID}, 7")
        e(f"s_add_u32 s{S_V}, s{S_V}, s{S_T1}")
        for k in range(1, 4):
            e(f"s_add_u32 s{S_V + k}, s{S_V}, {k * 8 * 1536}")
        e(f"s_lshl_b32 s{S_T0}, s{S_T0}, 8              ; group*256")
        e(f"s_lshr_b32 s{S_T1}, s{S_RID}, 2")
        e(f"s_lshl2_add_u32 s{S_T1}, s{S_T1}, s{S_RID}")
        e(f"s_lshl_b32 s{S_T1}, s{S_T1}, 11")
        e(f"s_add_u32 s{S_T1}, s{S_T1}, s{S_T0}")
        for k in range(o.qcopy // 2):
            e(f"s_add_u32 s{S_W + k}, s{S_T1}, {WS_Q + k * 49152}")
        e("v_and_b32 v2, 15, v1")
        e("v_lshlrev_b32 v3, 2, v2")
        e("v_bfe_u32 v2, v1, 4, 1")
        e("v_lshl_add_u32 v3, v2, 7, v3")
        e("v_lshrrev_b32 v2, 5, v1")
        e("v_lshl_add_u32 v3, v2, 13, v3             ; (l>>5)*8192 + ((l>>4)&1)*128 + (l&15)*4")
        e(f"s_lshl4_add_u32 s{S_T0}, s{S_TG[1]}, s{S_TG[0]}")
        e(f"s_xor_b32 s{S_CNT}, s{S_T0}, 0xff")
        e(f"s_lshl_b32 s{S_CNT}, s{S_CNT}, 8")
        e(f"s_or_b32 s{S_T0}, s{S_T0}, s{S_CNT}")
        e("v_and_b32 v2, 12, v3")
        e(f"v_bfe_u32 v23, s{S_T0}, v2, 4")
        e(f"s_mov_b32 s{S_CNT}, {NFB}")
        e(f"s_mov_b32 s{S_HOOK}, 0")
        e("L_rpoll:")
        for k in range(4):
            e(f"buffer_load_dwordx4 v[{4 + 4 * k}:{7 + 4 * k}], v{V_Q}, s[{S_WS}:{S_WS + 3}], s{S_V + k} offen sc1")
        e(f"s_sub_u32 s{S_CNT}, s{S_CNT}, 1")
        e("s_cbranch_scc1 L_rlong")
        for k in range(4):
            e(f"s_waitcnt vmcnt({3 - k})")
            r = 4 + 4 * k
            for i in range(4):
                e(f"v_xor_b32 v{r + i}, s{S_TG[i]}, v{r + i}" + ("            ; a matching tag leaves four zero bits" if k + i == 0 else ""))
            if k == 0:
                e(f"v_or3_b32 v21, v{r}, v{r + 1}, v{r + 2}")
                e(f"v_or_b32 v21, v21, v{r + 3}")
            elif k < 3:
                e(f"v_or3_b32 v21, v21, v{r}, v{r + 1}")
                e(f"v_or3_b32 v21, v21, v{r + 2}, v{r + 3}")
            else:
                e(f"v_or3_b32 v21, v21, v{r}, v{r + 1}")
                e(f"v_or_b32 v22, v{r + 2}, v{r + 3}")
        e("v_bitop3_b32 v21, v21, v22, 15 bitop3:0xa8          ; (a | b) & c")
        e("v_cmp_ne_u32 vcc, 0, v21")
        e("s_wqm_b64 exec, vcc                       ; 64-byte units still waiting poll again")
        e("s_cbranch_scc1 L_rpoll")
        e("L_rgot:")
        e("s_mov_b64 exec, -1")
        self.stamp(1, "r")
        e(f"s_cmp_ge_u32 s{S_RID}, 6")
        e("s_cbranch_scc1 L_rmax")
        for kind in (0, 1):
            op = "v_add_f32" if kind == 0 else "v_max_f32"
            if kind == 1:
                e("L_rmax:")
                for i in range(4):
                    e(f"v_max3_f32 v{4 + i}, v{4 + i}, v{8 + i}, v{12 + i}")
                for i in (0, 2, 1, 3):
                    e(f"v_max_f32 v{4 + i}, v{4 + i}, v{16 + i}")
            else:
                e("v_pk_add_f32 v[4:5], v[4:5], v[8:9]")
                e("v_pk_add_f32 v[6:7], v[6:7], v[10:11]")
                e("v_pk_add_f32 v[12:13], v[12:13], v[16:17]")
                e("v_pk_add_f32 v[14:15], v[14:15], v[18:19]")
                e("v_pk_add_f32 v[4:5], v[4:5], v[12:13]")
                e("v_pk_add_f32 v[6:7], v[6:7], v[14:15]")
                e("s_nop 0")
            e(f"{op}_dpp v4, v4, v4 row_ror:8 row_mask:0xf bank_mask:0x3")
            if kind == 0:
                e(f"{op}_dpp v5, v5, v5 row_ror:8 row_mask:0xf bank_mask:0x3")
                e(f"{op}_dpp v4, v6, v6 row_ror:8 row_mask:0xf bank_mask:0xc")
            else:
                e(f"{op}_dpp v4, v6, v6 row_ror:8 row_mask:0xf bank_mask:0xc")
                e(f"{op}_dpp v5, v5, v5 row_ror:8 row_mask:0xf bank_mask:0x3")
            e(f"{op}_dpp v5, v7, v7 row_ror:8 row_mask:0xf bank_mask:0xc")
            e("s_nop 1")
            e("v_permlane16_swap_b32 v4, v5")
            e(f"{op} v4, v4, v5")
            e("v_mov_b32 v5, v4")
            e("s_nop 1")
            e("v_permlane32_swap_b32 v4, v5")
            e(f"{op} v4, v4, v5                        ; lane 16a+8b+c: element 2b+a of piece c")
            if kind == 0:
                e("s_branch L_rpub")
        e("L_rpub:")
        e("v_and_or_b32 v4, v4, -16, v23")
        for k in range(o.qcopy // 2):
            e(f"buffer_store_dword v4, v3, s[{S_WS}:{S_WS + 3}], s{S_W + k} offen sc1")
            if k == 0:
                self.stamp(9)
        if o.clean == "r":
            for i in range(4):
                e(f"v_mov_b32 v{8 + i}, 0")
            for k in range(4):
                e(f"buffer_store_dwordx4 v[8:11], v{V_Q}, s[{S_WS}:{S_WS + 3}], s{S_V + k} offen sc1")
        e("s_barrier")
        e("s_branch L_afterw")

        if o.pad:
            e(f".fill {o.pad // 4}, 4, 0xbf800000")
        e("L_spill:")
        e(f"s_lshl_b32 s{S_T0}, s{S_WAVE}, 13")
        e(f"v_lshl_add_u32 v{V_AT}, v1, 4, s{S_T0}")
        for k in range(8):
            e(f"ds_write_b128 v{V_AT}, v[{SP0 + 4 * k}:{SP0 + 4 * k + 3}] offset:{L_SPILL + 1024 * k}")
        e("L_barw:")
        if o.tlb:
            e(f"s_cmp_lg_u32 s{S_WAVE}, 5")
            e("s_cbranch_scc1 L_notlb")
            e(f"v_lshlrev_b32 v2, {o.tlb}, v1")
            e(f"buffer_load_dword v4, v2, s[{S_OUT}:{S_OUT + 3}], 0 offen")
            e("L_notlb:")
        if o.lpf == 1:
            e(f"s_cmp_lg_u32 s{S_WAVE}, 4")
            e("s_cbranch_scc1 L_nolpf")
            e("s_getpc_b64 s[20:21]")
            e("v_lshlrev_b32 v2, 7, v1")
            e("v_min_u32 v2, L_end - L_nolpf, v2")
            e("global_load_dword v4, v2, s[20:21]")
            e("L_nolpf:")
        e("s_waitcnt vmcnt(0) lgkmcnt(0)")
        e("s_barrier")
        e("L_afterw:")
        e("v_bfe_u32 v3, v1, 2, 2")
        e("v_lshl_add_u32 v21, v20, 3, v3            ; row")
        e("v_and_b32 v22, 15, v21                    ; row of the half step (q&1)")
        e("v_and_b32 v3, 3, v1")
        e(f"s_lshl_b32 s{S_T2}, s{S_WAVE}, 5")
        e(f"v_lshl_add_u32 v23, v3, 3, s{S_T2}          ; column bytes")
        e("v_mov_b32 v3, 384")
        e("v_mad_u32_u24 v2, v21, v3, v23")
        e("v_mad_u32_u24 v22, v22, v3, v23")
        e(f"ds_read_b64_tr_b16 v[{B2}:{B2 + 1}], v2 offset:{L_W2}")
        e(f"ds_read_b64_tr_b16 v[{B2 + 2}:{B2 + 3}], v2 offset:{L_W2 + 4 * 384}")
        e(f"ds_read_b64_tr_b16 v[{B2 + 4}:{B2 + 5}], v22 offset:{L_W2 + 32 * 384}")
        e(f"ds_read_b64_tr_b16 v[{B2 + 6}:{B2 + 7}], v22 offset:{L_W2 + 36 * 384}")
        e("v_and_b32 v2, 1, v1")
        e("v_mul_u32_u24 v22, 96, v2")
        e(f"v_lshl_add_u32 v{V_H0}, v20, 4, v22")
        e("v_and_b32 v3, 1, v20")
        e(f"v_lshl_add_u32 v{V_H1}, v3, 4, v22")
        e(f"s_lshl_b32 s{S_T0}, s{S_WAVE}, 6")
        e(f"v_lshl_add_u32 v{V_SW}, v1, 2, s{S_T0}")
        if o.mul == "dot":
            e("v_mov_b32 v3, 0")
            e("s_mov_b64 exec, 0xffff")
            e(f"ds_write_b32 v{V_SW}, v3 offset:{L_S}")
            e("s_mov_b64 exec, -1")
            e(f"v_lshl_add_u32 v{V_SW}, v2, 1, v{V_SW}")
        e("v_and_b32 v3, 7, v1")
        e(f"s_lshl_b32 s{S_T0}, s{S_TY}, 8")
        e(f"v_lshl_add_u32 v{V_SR}, v3, 5, s{S_T0}")
        e("s_waitcnt lgkmcnt(0)")
        e("s_mov_b32 exec_lo, 0")
        for i in range(4):
            e(f"v_mov_b32 v{B2 + 4 + i}, 0")
        e("s_mov_b64 exec, -1")
        e(f"s_cmp_ge_u32 s{S_WAVE}, 3")
        e("s_cbranch_scc1 L_noa1")
        e("v_mov_b32 v3, 96")
        e("v_mad_u32_u24 v2, v21, v3, v23")
        for s in range(6):
            for h in range(2):
                r = A1 + 4 * s + 2 * h
                e(f"ds_read_b64_tr_b16 v[{r}:{r + 1}], v2 offset:{L_W1 + s * 3072 + h * 384}")
        e("L_noa1:")
        e(f"v_lshl_add_u32 v3, v20, 3, v22")
        e(f"v_add_u32 v3, s{S_T2}, v3")
        e("v_lshlrev_b32 v2, 2, v22")
        e("v_lshl_add_u32 v2, v20, 4, v2")
        e("v_and_b32 v8, 1, v1")
        e("v_lshlrev_b32 v8, 4, v8")
        e("v_lshl_add_u32 v8, v20, 2, v8")
        e("v_and_b32 v9, 2, v1")
        e("v_bfe_u32 v10, v1, 2, 1")
        e("v_add3_u32 v8, v8, v9, v10")
        e(f"v_add_lshl_u32 v23, v8, s{S_T2}, 1")
        e("v_lshrrev_b32 v8, 2, v1")
        e("v_lshlrev_b32 v8, 7, v8")
        e("v_and_b32 v9, 3, v1")
        e(f"v_lshl_add_u32 v{V_Q}, v9, 4, v8")
        e(f"s_and_b32 s{S_T0}, s{S_QC}, 4")
        if o.qcopy > 2:
            e(f"s_and_b32 s{S_CNT}, s{S_QC}, {o.qcopy // 2 - 1}")
            e(f"s_mul_i32 s{S_CNT}, s{S_CNT}, 24")
            e(f"s_add_u32 s{S_T0}, s{S_T0}, s{S_CNT}")
        e(f"s_lshr_b32 s{S_T1}, s{S_WAVE}, 2")
        e(f"s_lshl2_add_u32 s{S_T1}, s{S_T1}, s{S_WAVE}")
        e(f"s_add_u32 s{S_T1}, s{S_T1}, s{S_T0}")
        e(f"s_lshl_b32 s{S_T1}, s{S_T1}, 11")
        e(f"s_add_u32 s{S_T1}, s{S_T1}, {WS_Q}")
        if o.clean in ("q", "p", "a", "h", "g"):
            if o.cfull:
                for i in range(4):
                    e(f"v_mov_b32 v{16 + i}, s{S_TG[i]}")
                e("v_lshlrev_b32 v15, 4, v1")
            else:
                e(f"v_mov_b32 v19, s{S_TG[0]}")
            e(f"s_lshl_b32 s{S_V}, s{S_WAVE}, 7")
            e(f"s_add_u32 s{S_V}, s{S_V}, s{S_PO}")
        e(f"s_mov_b32 s{S_CNT}, {NFB}")
        e(f"s_mov_b32 s{S_HOOK}, 0")
        e(f"s_cmp_lt_u32 s{S_WAVE}, 6")
        e("s_cbranch_scc1 L_qpoll0")

        def clean1():
            if o.cfull:
                e("s_mov_b64 exec, 0xff")
                e(f"buffer_store_dwordx4 v[16:19], v15, s[{S_WS}:{S_WS + 3}], s{S_V} offen sc1")
            else:
                e("s_mov_b64 exec, 1")
                e(f"buffer_store_dword v19, off, s[{S_WS}:{S_WS + 3}], s{S_V} sc1")
            e("s_mov_b64 exec, -1")

        for kind in (1, 0):
            op = "v_add_f32" if kind == 0 else "v_max_f32"
            e(f"L_qpoll{kind}:")
            e(f"buffer_load_dwordx4 v[4:7], v{V_Q}, s[{S_WS}:{S_WS + 3}], s{S_T1} offen sc1")
            e(f"s_sub_u32 s{S_CNT}, s{S_CNT}, 1")
            e(f"s_cbranch_scc1 L_qlong{kind}")
            if o.qsleep:
                e(f"s_sleep {o.qsleep}")
            e("s_waitcnt vmcnt(0)")
            for i in range(4):
                e(f"v_xor_b32 v{4 + i}, s{S_TG[i]}, v{4 + i}")
            e("v_or3_b32 v21, v4, v5, v6")
            e("v_bitop3_b32 v21, v21, v7, 15 bitop3:0xa8")
            e("v_cmp_ne_u32 vcc, 0, v21")
            e("s_wqm_b64 exec, vcc")
            e(f"s_cbranch_scc1 L_qpoll{kind}")
            e(f"L_qgot{kind}:")
            if o.clean == "p":
                e("s_mov_b64 exec, 1")
                e(f"buffer_store_dword v19, off, s[{S_WS}:{S_WS + 3}], s{S_V} sc1")
            e("s_mov_b64 exec, -1")
            self.stamp(5)
            e("v_permlane32_swap_b32 v4, v6")
            e("v_permlane32_swap_b32 v5, v7")
            e(f"{op} v4, v4, v6")
            e(f"{op} v5, v5, v7")
            e("s_nop 1")
            e("v_permlane16_swap_b32 v4, v5")
            e(f"{op} v4, v4, v5")
            e(f"s_cmp_ge_u32 s{S_WAVE}, 3")
            e("s_nop 0")
            e(f"{op}_dpp v4, v4, v4 row_ror:8 row_mask:0xf bank_mask:0xf")
            if kind == 0:
                e("v_mul_f32 v4, 0x36800000, v4              ; 1/262144")
            e("v_cvt_pk_bf16_f32 v4, v4, v4")
            e(f"ds_write_b16 v23, v4 offset:{L_F}")
            if o.clean == "q" or (o.clean == "h" and kind == 1) or (o.clean == "g" and kind == 0):
                clean1()
            e("s_waitcnt lgkmcnt(0)")
            e("s_barrier")
            if kind == 1:
                if o.clean in ("a", "g"):
                    clean1()
                e("s_branch L_join")
            else:
                e("s_cbranch_scc1 " + ("L_clean0" if o.clean in ("a", "h") else "L_join"))

        e("L_mlp1:")
        for s in range(6):
            e(f"ds_read_b128 v[{B1[s]}:{B1[s] + 3}], v2 offset:{L_F + 64 * s}")
        if o.clean in ("a", "h"):
            clean1()
        for s in range(6):
            c = "0" if s == 0 else "v[20:23]"
            b = B1[s]
            e(f"s_waitcnt lgkmcnt({5 - s})")
            e(f"v_mfma_f32_16x16x32_bf16 v[20:23], v[{A1 + 4 * s}:{A1 + 4 * s + 3}], v[{b}:{b + 3}], {c}")
        e("s_nop 3")
        e("s_mov_b32 exec_lo, 0x00030003")
        e("s_mov_b32 exec_hi, 0x00030003")
        e("s_nop 1")
        for i in range(4):
            e(f"v_maximum3_f32 v{20 + i}, v{20 + i}, 0, 0")
        e("v_cvt_pk_bf16_f32 v20, v20, v21")
        e("v_cvt_pk_bf16_f32 v21, v22, v23")
        e(f"ds_write_b64 v3, v[20:21] offset:{L_H}")
        e("s_mov_b64 exec, -1")
        e("s_waitcnt lgkmcnt(0)")

        e("L_join:")
        e("s_barrier")
        self.stamp(6)
        e(f"ds_read_b128 v[4:7], v{V_H0} offset:{L_H}")
        e(f"ds_read_b128 v[8:11], v{V_H1} offset:{L_H + 64}")
        e("s_waitcnt lgkmcnt(1)")
        e(f"v_mfma_f32_16x16x32_bf16 v[12:15], v[4:7], v[{B2}:{B2 + 3}], 0")
        e("s_waitcnt lgkmcnt(0)")
        e(f"v_mfma_f32_16x16x32_bf16 v[12:15], v[8:11], v[{B2 + 4}:{B2 + 7}], v[12:15]")
        e("s_mov_b64 exec, 0xffff")
        e("s_nop 6")
        e("v_cvt_pk_bf16_f32 v12, 0, v12")
        e("v_cvt_pk_bf16_f32 v13, 0, v13")
        e("v_add_f32 v12, v12, v13")
        e("v_cvt_pk_bf16_f32 v12, 0, v12")
        e("v_mul_f32 v12, 0xbfb8aa3b, v12            ; -log2(e)")
        e("v_exp_f32 v12, v12")
        e("s_nop 0")
        e("v_add_f32 v12, 1.0, v12")
        e("v_rcp_f32 v12, v12")
        e("s_nop 0")
        if o.mul == "dot":
            e("v_cvt_pk_bf16_f32 v12, v12, v12")
            e(f"ds_write_b16 v{V_SW}, v12 offset:{L_S}")
        else:
            e("v_cvt_pk_bf16_f32 v12, 0, v12")
            e(f"ds_write_b32 v{V_SW}, v12 offset:{L_S}")
        e("s_mov_b64 exec, -1")
        e("s_waitcnt lgkmcnt(0)")
        e("s_barrier")
        e(f"ds_read_b128 v[4:7], v{V_SR} offset:{L_S}")
        e(f"ds_read_b128 v[8:11], v{V_SR} offset:{L_S + 16}")

        if o.stlim:
            e(f"s_cmp_lt_u32 s2, {o.stlim}")
            e(f"s_cselect_b32 s{S_OUT + 2}, s{S_OUT + 2}, 0")
        zorder = [int(v) for v in o.zorder.split(",")]
        assert sorted(zorder) == list(range(16))
        restored = False
        late = []

        def wbl2():
            wv, lim, pos = [int(v) for v in o.wb.split(",")]
            e(f"s_cmp_lt_u32 s{S_WAVE}, {wv}")
            e("s_cbranch_scc1 L_nowb")
            e(f"s_cmp_ge_u32 s2, {lim}")
            e("s_cbranch_scc1 L_nowb")
            if pos == 33:
                e("s_waitcnt vmcnt(0)")
            e("buffer_wbl2 sc1")
            e("L_nowb:")
        jorder = [int(v) for v in o.jorder.split(",")] if o.jorder else [2 * z + u for z in zorder for u in (0, 1)]
        assert sorted(jorder) == list(range(32))
        self.pz = None
        for n, j in enumerate(jorder):
            a = D0 + 4 * j
            t0 = 12 + 8 * (n & 1)
            if a >= SP0 and not restored:
                assert n > 1
                e("s_waitcnt lgkmcnt(0)")
                restored = True
            md = o.mul
            for i in range(4 if md in ("pk", "mul", "u", "um") else 0):
                t = t0 + 2 * i
                e(f"v_lshlrev_b32 v{t}, 16, v{a + i}")
                e(f"v_and_b32 v{t + 1}, s{S_MASK}, v{a + i}")
            if n == 0:
                e("s_waitcnt lgkmcnt(0)")
                self.stamp(7)
            if o.al:
                e(f".p2align {o.al & 15}")
                if o.al >> 4:
                    e("s_nop 0")
            for i in range(4):
                t = t0 + 2 * i
                if md in ("pk", "um"):
                    e(f"v_pk_mul_f32 v[{t}:{t + 1}], v[{t}:{t + 1}], v[{4 + 2 * i}:{5 + 2 * i}]")
                if md == "mul":
                    e(f"v_mul_f32 v{t}, v{t}, v{4 + 2 * i}")
                    e(f"v_mul_f32 v{t + 1}, v{t + 1}, v{5 + 2 * i}")
                if md == "dot":
                    e(f"v_dot2_f32_bf16 v{t}, v{a + i}, v{4 + 2 * i}, 0")
                    e(f"v_dot2_f32_bf16 v{t + 1}, v{a + i}, v{5 + 2 * i}, 0")
            for i in range(4):
                t = t0 + 2 * i
                if md in ("pk", "mul", "dot"):
                    e(f"v_cvt_pk_bf16_f32 v{a + i}, v{t}, v{t + 1}")
                if md == "c":
                    e(f"v_cvt_pk_bf16_f32 v{a + i}, v{a + i}, v{a + (i ^ 1)}")
            def st(j=j, a=a, n=n):
                self.mem(j, lambda va, so: e(f"buffer_store_dwordx4 v[{a}:{a + 3}], {va}, s[{S_OUT}:{S_OUT + 3}], {so} offen{'' if n >= 32 - o.nplain else stf}"))
            if n < o.burst:
                st()
            else:
                late.append(st)
            if n == 31:
                for f in late:
                    f()
            if n + 1 in o.sbar:
                e("s_barrier")
            if o.sthr and n >= o.sthr:
                e(f"s_waitcnt vmcnt({o.sthr - 1})")
            if o.wb and int(o.wb.split(",")[2]) == n:
                wbl2()
            if n & 1:
                self.trace("st", n >> 1)
            if n == 1:
                e(f"s_cmp_ge_u32 s{S_WAVE}, 3")
                e("s_cbranch_scc1 L_norestore")
                for k in range(8):
                    e(f"ds_read_b128 v[{SP0 + 4 * k}:{SP0 + 4 * k + 3}], v{V_AT} offset:{L_SPILL + 1024 * k}")
                e("L_norestore:")
                if o.clean == "st":
                    clean("L_noclean", 28, 32)
                    e("L_noclean:")
        if o.clean == "e":
            clean("L_noclean", 28, 32)
            e("L_noclean:")
        if o.wb and int(o.wb.split(",")[2]) >= 32:
            wbl2()
        if o.stamps:
            self.stamp(8)
            e("s_waitcnt vmcnt(0)")
            self.stamp(10)
            if o.idleclk:
                e(f"s_cmp_lg_u32 s{S_WAVE}, 11")
                e("s_cbranch_scc1 L_noidle")
                for lbl, dur, m, r in (("a", o.idleclk, 1, 3), ("b", 2000, 2, 6)):
                    e("s_memrealtime s[96:97]")
                    e("s_waitcnt lgkmcnt(0)")
                    e(f"L_idle{lbl}:")
                    e("s_sleep 4")
                    e("s_memrealtime s[98:99]")
                    e("s_waitcnt lgkmcnt(0)")
                    e("s_sub_u32 s98, s98, s96")
                    e(f"s_cmp_lt_u32 s98, {dur}")
                    e(f"s_cbranch_scc1 L_idle{lbl}")
                    e(f"s_memtime s[{S_STAMP + 2 * m}:{S_STAMP + 2 * m + 1}]")
                    e(f"s_memrealtime s[{S_STAMP + 2 * r}:{S_STAMP + 2 * r + 1}]")
                e("L_noidle:")
            e("s_getreg_b32 s94, hwreg(HW_REG_XCC_ID)")
            e("s_getreg_b32 s95, hwreg(HW_REG_HW_ID)")
            e("s_waitcnt lgkmcnt(0)")
            e("v_mov_b32 v2, 0")
            for i in range(11 if o.trace else 14):
                e(f"v_writelane_b32 v2, s{S_STAMP + 2 * i}, {i}")
            e("v_writelane_b32 v2, s94, 14")
            e("v_writelane_b32 v2, s95, 15")
            e(f"s_mul_i32 s{S_T0}, s2, 12")
            e(f"s_add_u32 s{S_T0}, s{S_T0}, s{S_WAVE}")
            e(f"s_lshl_b32 s{S_T0}, s{S_T0}, 6")
            e(f"s_add_u32 s{S_T0}, s{S_T0}, {WS_STAMP}")
            e("v_mbcnt_lo_u32_b32 v3, -1, 0")
            e("v_lshlrev_b32 v3, 2, v3")
            e("s_mov_b64 exec, 0xffff")
            e(f"buffer_store_dword v2, v3, s[{S_WS}:{S_WS + 3}], s{S_T0} offen sc1")
            if o.trace:
                e("s_mov_b32 s91, s92")
                for i in range(16):
                    e(f"v_writelane_b32 v2, s{76 + i}, {i}")
                e(f"s_add_u32 s{S_T0}, s{S_T0}, {1 << 19}")
                e(f"buffer_store_dword v2, v3, s[{S_WS}:{S_WS + 3}], s{S_T0} offen sc1")
        if o.dbgptr:
            e("s_cmp_lg_u32 s2, 0")
            e("s_cbranch_scc1 L_nodp")
            e("s_mov_b64 exec, -1")
            e("v_mov_b32 v2, 0")
            for i, r in enumerate((4, 5, 8, 9, 12, 13, 16, 17, 0, 1)):
                e(f"v_writelane_b32 v2, s{r}, {i}")
            e("v_mbcnt_lo_u32_b32 v3, -1, 0")
            e("v_lshlrev_b32 v3, 2, v3")
            e("s_mov_b64 exec, 0x3ff")
            e(f"buffer_store_dword v2, v3, s[{S_DBG}:{S_DBG + 3}], 0 offen offset:8")
            e("L_nodp:")
        if o.probe:
            idx, K = [int(v) for v in o.probe.split(",")]
            if idx == -6:
                pass
            elif idx == -5:
                e("s_cmp_ge_u32 s2, 8")
                e("s_cbranch_scc1 L_end")
            elif idx == -2:
                e("s_getreg_b32 s94, hwreg(HW_REG_XCC_ID)")
                e("s_xor_b32 s94, s94, s2")
                e("s_and_b32 s94, s94, 7")
                e("s_cbranch_scc0 L_end")
            elif idx == -3:
                e("s_cmp_lg_u32 s2, 0")
                e("s_cbranch_scc1 L_end")
            else:
                e(f"s_cmp_lg_u32 s2, {o.pwg}")
                e("s_cbranch_scc1 L_end")
            e(f"s_cmp_lg_u32 s{S_WAVE}, {o.pwave}")
            e("s_cbranch_scc1 L_end")
            if idx == -6:
                e(f"s_sub_u32 s96, s{S_STAMP + 20}, s{S_STAMP}")
                e(f"s_mul_i32 s96, s96, {K}")
            elif idx == -5:
                e("s_mov_b32 s96, 0")
                e("L_sk:")
                e("s_sleep 100")
                e("s_add_u32 s96, s96, 1")
                e("s_cmp_lt_u32 s96, 4")
                e("s_cbranch_scc1 L_sk")
                e(f"s_mov_b32 s94, {WS_STAMP}")
                e(f"buffer_load_dword v4, off, s[{S_WS}:{S_WS + 3}], s94 sc1")
                e("s_waitcnt vmcnt(0)")
                e("v_readfirstlane_b32 s94, v4")
                e(f"s_sub_u32 s95, s{S_STAMP}, s94")
                e(f"s_mul_i32 s95, s95, {K - 1}")
                e("s_add_u32 s96, s95, 8000")
            elif idx == -4:
                c0, c1, r0, r1 = ((11, 12, 0, 7), (12, 13, 7, 10))[K]
                e(f"s_sub_u32 s94, s{S_STAMP + 2 * c1}, s{S_STAMP + 2 * c0}")
                e(f"s_sub_u32 s95, s{S_STAMP + 2 * r1}, s{S_STAMP + 2 * r0}")
                e("v_cvt_f32_u32 v4, s94")
                e("v_cvt_f32_u32 v5, s95")
                e("v_rcp_f32 v5, v5")
                e("s_nop 1")
                e("v_mul_f32 v4, v4, v5")
                e("v_mul_f32 v4, 0x44fa0000, v4")
                e("v_cvt_u32_f32 v4, v4")
                e("s_nop 1")
                e("v_readfirstlane_b32 s96, v4")
                e("s_sub_u32 s96, s96, 31000")
            elif idx <= -10:
                e(f"s_bfe_u32 s94, s{-idx - 10}, {(7 << 16)} + {K}")
                e("s_mul_i32 s96, s94, 200")
                e("s_add_u32 s96, s96, 5000")
            elif idx == -3:
                e("s_getreg_b32 s94, hwreg(HW_REG_XCC_ID)")
                e("s_and_b32 s94, s94, 7")
                e(f"s_mul_i32 s96, s94, {K}")
                e("s_add_u32 s96, s96, 5000")
            elif idx < 0:
                e(f"s_mov_b32 s96, {K}")
            else:
                e(f"s_sub_u32 s96, s{S_STAMP + 2 * idx}, s{S_STAMP + 2 * o.pref}")
                e(f"s_mul_i32 s96, s96, {K}")
                if o.pref:
                    e("s_add_u32 s96, s96, 5000")
            e("s_min_u32 s96, s96, 200000")
            e("L_probe:")
            e("s_memrealtime s[98:99]")
            e("s_waitcnt lgkmcnt(0)")
            e(f"s_sub_u32 s98, s98, s{S_STAMP}")
            e("s_cmp_lt_u32 s98, s96")
            e("s_cbranch_scc1 L_probe")
        e("L_end:")
        e("s_endpgm")

        e("@@ROLE")
        e(".p2align 7")
        e("L_role:")
        e("s_load_dwordx4 s[44:47], s[0:1], 32")
        e(f"s_lshr_b32 s{S_V + 1}, s2, 3")
        e(f"s_and_b32 s{S_T1}, s2, 1")
        e(f"s_lshl1_add_u32 s{S_T1}, s{S_T1}, 1")
        e(f"s_mul_i32 s{S_T2}, s2, 0x104100")
        e(f"s_cmp_eq_u32 s2, {NVOTE_WG}")
        e("s_waitcnt lgkmcnt(0)")
        e("s_cbranch_scc1 L_tag")
        e(f"s_sub_u32 s{S_T0}, s{S_OUT}, s{S_X}")
        e(f"s_addk_i32 s{S_T0}, 2048")
        e(f"s_bitcmp1_b32 s{S_T0}, 12")
        e(f"s_cselect_b32 s{S_V}, {o.qout}, {o.qgen}")
        e(f"s_cselect_b32 s{S_V + 2}, s{S_V + 1}, 1")
        e(f"s_cmp_eq_u32 s{S_V + 2}, 2")
        e(f"s_cselect_b32 s{S_V + 1}, s{S_T1}, s{S_V + 1}")
        e(f"s_bitcmp1_b32 s{S_V + 1}, 0")
        e(f"s_cselect_b64 s[{S_W}:{S_W + 1}], s[8:9], s[4:5]")
        e(f"s_lshr_b32 s{S_T1}, s{S_V + 1}, 1")
        e(f"s_lshl_b32 s{S_T1}, 0x2000000, s{S_T1}")
        e(f"s_add_u32 s{S_T2}, s{S_T2}, s{S_T1}")
        e(f"s_lshr_b32 s{S_T0}, s{S_OUT}, 7")
        e(f"s_mul_i32 s{S_T0}, s{S_T0}, 21")
        e(f"s_and_b32 s{S_T0}, s{S_T0}, 63")
        e(f"s_mulk_i32 s{S_T0}, 384")
        e(f"s_add_u32 s{S_T0}, s{S_T0}, s{S_T2}")
        e(f"s_cmp_lg_u32 s{S_V + 2}, 0")
        e(f"s_cselect_b32 s{S_V + 3}, s{S_OUT}, 0")
        e("s_cbranch_scc1 L_notws")
        e(f"s_mov_b64 s[{S_W}:{S_W + 1}], s[46:47]")
        e(f"s_mov_b32 s{S_V}, {o.qws}")
        e(f"s_and_b32 s{S_T0}, s{S_T2}, 0xfffff")
        e(f"s_add_u32 s{S_T0}, s{S_T0}, {WS_PROBE}")
        e("L_notws:")
        e(f"s_add_u32 s{S_T1}, s{S_T0}, 8192")
        self.stamp(1, True)
        e(f"s_load_dword s42, s[{S_W}:{S_W + 1}], s{S_T0} glc")
        e(f"s_load_dword s43, s[{S_W}:{S_W + 1}], s{S_T1} glc")
        e(f"s_mov_b32 s{S_CNT}, {-(NRACE // 2)}")
        if o.dpf:
            e(f"s_load_dword s23, s[44:45], 192 glc")
        for k in range(NRACE):
            e("s_waitcnt lgkmcnt(0)")
            if k < 2:
                self.stamp(2 + k, True)
                if o.vdiag:
                    e("s_waitcnt lgkmcnt(0)")
            first, second = (S_T0, S_T1) if k % 2 == 0 else (S_T1, S_T0)
            e(f"s_load_dword s42, s[{S_W}:{S_W + 1}], s{first} glc")
            e(f"s_load_dword s43, s[{S_W}:{S_W + 1}], s{second} glc")
            e("s_waitcnt lgkmcnt(1)")
            e("s_nop 7")
            e(f"s_getreg_b32 s{S_T2}, hwreg(HW_REG_IB_STS, 8, 4)   ; 1: the second answer is still out")
            if k % 2 == 0:
                e(f"s_xor_b32 s{S_T2}, s{S_T2}, 1")
            e(f"s_add_u32 s{S_CNT}, s{S_CNT}, s{S_T2}")
        assert NRACE % 2 == 0 and o.qout <= 12 and o.qws <= 8 and o.qgen <= 8 and NVOTE_WG == 32
        e(f"s_sub_u32 s{S_T2}, 0, s{S_CNT}")
        e(f"s_add_u32 s{S_T0}, s{S_T0}, s{S_V + 3}")
        e(f"s_lshr_b32 s{S_T0}, s{S_T0}, 19")
        e(f"s_getreg_b32 s{S_T1}, hwreg(HW_REG_XCC_ID, 0, 3)")
        e(f"s_xor_b32 s{S_T0}, s{S_T0}, s{S_T1}")
        e(f"s_bitcmp1_b32 s{S_T0}, 2")
        e(f"s_cselect_b32 s{S_CNT}, s{S_T2}, s{S_CNT}")
        e(f"s_lshl_b32 s{S_CNT}, s{S_CNT}, 8")
        e(f"s_or_b32 s{S_CNT}, s{S_CNT}, 1")
        e(f"s_mov_b32 s{S_T1}, s{S_CNT}")
        e(f"s_lshl2_add_u32 s{S_T0}, s{S_V + 1}, {DBG_TAL}")
        self.stamp(6, True)
        e(f"s_atomic_add s{S_T1}, s[44:45], s{S_T0} glc")
        e(f"s_mul_i32 s{S_T2}, s{S_V + 1}, 6")
        e("s_waitcnt lgkmcnt(0)")
        e(f"s_add_u32 s{S_T1}, s{S_T1}, s{S_CNT}")
        self.stamp(13)
        e(f"s_and_b32 s{S_T0}, s{S_T1}, 0xff")
        e(f"s_cmp_lg_u32 s{S_T0}, s{S_V}")
        e("s_cbranch_scc1 L_stream")
        e(f"s_cmp_gt_i32 s{S_T1}, 0xff")
        e(f"s_cselect_b32 s{S_T1}, 3, 1")
        e(f"s_add_u32 s{S_T2}, s{S_T2}, 11")
        e(f"s_lshl_b32 s{S_T1}, s{S_T1}, s{S_T2}")
        e("L_publish:")
        e(f"s_atomic_add s{S_T1}, s[44:45], {DBG_RES}")
        e("s_waitcnt lgkmcnt(0)")
        e("s_branch L_stream")

        e("L_tag:")
        e(f"s_mov_b32 s{S_T1}, 1")
        e("s_waitcnt lgkmcnt(0)")
        e(f"s_atomic_add s{S_T1}, s[46:47], {WS_E} glc")
        e("s_waitcnt lgkmcnt(0)")
        e(f"s_add_u32 s{S_T1}, s{S_T1}, 1")
        e(f"s_and_b32 s{S_T1}, s{S_T1}, 0xff")
        e(f"s_bitset1_b32 s{S_T1}, 8")
        assert NVOTE_WG % 8 == 0
        e(f"s_getreg_b32 s{S_T0}, hwreg(HW_REG_XCC_ID, 0, 3)")
        e(f"s_lshl_b32 s{S_T0}, s{S_T0}, 13")
        e(f"s_or_b32 s{S_T1}, s{S_T1}, s{S_T0}")
        self.stamp(13)
        e("s_branch L_publish")

        e("@@RARE")
        if o.clean in ("a", "h"):
            e("L_clean0:")
            clean1()
            e("s_branch L_join")
        for nm in ("r", "q0", "q1"):
            k = nm[1:]
            e(f"L_{nm[0]}long{k}:")
            e("s_waitcnt vmcnt(0)")
            e(f"s_cmp_lg_u32 s{S_HOOK}, 0")
            e(f"s_cbranch_scc1 L_{nm[0]}got{k}")
            e(f"s_call_b64 s[{S_RET}:{S_RET + 1}], L_flush")
            e(f"s_branch L_{nm[0]}poll{k}")
        e("L_flush:")
        e(f"s_mov_b32 s{S_CNT}, {SPIN}")
        e(f"s_mov_b32 s{S_HOOK}, {SPIN}")
        e("s_mov_b32 exec_lo, -1")
        e("s_mov_b32 exec_hi, 0xffff")
        e("v_lshlrev_b32 v13, 4, v1")
        e("L_floop:")
        e(f"buffer_load_dwordx4 v[8:11], v13, s[{S_WS}:{S_WS + 3}], s{S_PO} offen sc1")
        e(f"buffer_load_dwordx4 v[4:7], v13, s[{S_WS}:{S_WS + 3}], s{S_PO} offen offset:768 sc1")
        e(f"s_sub_u32 s{S_HOOK}, s{S_HOOK}, 1")
        e("s_waitcnt vmcnt(0)")
        e(f"v_xor_b32 v12, s{S_TG[0]}, v8")
        for r in (9, 10, 11, 4, 5, 6, 7):
            e(f"v_bitop3_b32 v12, v12, v{r}, s{S_TG[r & 3]} bitop3:0xf6")
        e("v_and_b32 v12, 15, v12")
        e("v_cmp_ne_u32 vcc, 0, v12")
        e("s_cbranch_scc1 L_fdone")
        e("s_cbranch_vccnz L_floop")
        e("L_fdone:")
        e(f"buffer_store_dwordx4 v[8:11], v13, s[{S_WS}:{S_WS + 3}], s{S_PO} offen sc1")
        e(f"buffer_store_dwordx4 v[4:7], v13, s[{S_WS}:{S_WS + 3}], s{S_PO} offen offset:768 sc1")
        e("s_waitcnt vmcnt(0)")
        e("s_mov_b64 exec, -1")
        e(f"s_mov_b32 s{S_HOOK}, -1")
        e(f"s_setpc_b64 s[{S_RET}:{S_RET + 1}]")

        e("@@DPOLL")
        e("L_dpoll:")
        e(f"s_mov_b32 s{S_CNT}, {SPIN}")
        e(f"v_mov_b32 v{V_AT}, 0")
        e("s_mov_b64 exec, 1")
        e("L_dloop:")
        e(f"buffer_load_dword v{V_AT}, off, s[{S_DBG}:{S_DBG + 3}], 0 offset:{DBG_RES} sc1")
        e(f"s_sleep {o.dsleep}")
        e("s_waitcnt vmcnt(24)")
        e(f"v_readfirstlane_b32 s{S_T2}, v{V_AT}          ; whatever poll has landed last")
        e(f"s_sub_u32 s{S_CNT}, s{S_CNT}, 1")
        e("s_cbranch_scc1 L_dgot")
        e(f"s_andn2_b32 s{S_OFF}, s{S_OK}, s{S_T2}")
        e("s_cbranch_scc1 L_dloop")
        e("L_dgot:")
        e("s_mov_b64 exec, -1")
        e("s_branch L_decided")

        e("@@END")
        L = self.lines
        ix = {k: L.index("    @@" + k) for k in ("ROLE", "RARE", "DPOLL", "END")}
        role, rare, dpoll = L[ix["ROLE"] + 1:ix["RARE"]], L[ix["RARE"] + 1:ix["DPOLL"]], L[ix["DPOLL"] + 1:ix["END"]]
        main = L[:ix["ROLE"]]
        p1, p2 = main.index("    @@HERE1"), main.index("    @@HERE2")
        if o.lay:
            self.lines = (main[:p1] + ["    s_branch L_skip1"] + role + dpoll + ["L_skip1:"] + main[p1 + 1:p2]
                          + ["    s_branch L_tail"] + rare + ["    .p2align 12", "L_tail:"] + main[p2 + 1:])
        else:
            self.lines = main[:p1] + main[p1 + 1:p2] + main[p2 + 1:] + role + rare + dpoll

    def text(self):
        out = HEADER
        out += f"; @launch grid=({NWG},1,1) block=(768,1,1) lds={L_TOTAL}\n"
        out += '.amdgcn_target "amdgcn-amd-amdhsa--gfx950"\n.text\n'
        out += f".globl {KNAME}\n.p2align 8\n.type {KNAME},@function\n{KNAME}:\n"
        out += "\n".join(self.lines) + "\n"
        out += f""".section .rodata,"a"
.p2align 6
.amdhsa_kernel {KNAME}
  .amdhsa_next_free_vgpr 168
  .amdhsa_next_free_sgpr {100 if self.o.stamps else 56}
  .amdhsa_accum_offset 168
  .amdhsa_group_segment_fixed_size 0
  .amdhsa_kernarg_size 48
  .amdhsa_user_sgpr_count 2
  .amdhsa_user_sgpr_kernarg_segment_ptr 1
  .amdhsa_system_sgpr_workgroup_id_x 1
  .amdhsa_float_denorm_mode_32 3
.end_amdhsa_kernel
"""
        return out


def main():
    p = argparse.ArgumentParser()
    p.add_argument("-o", default="standalone__channel_attn_cbam__vision.s")
    p.add_argument("--ldflags", default="nt")
    p.add_argument("--stflags", default="sc1")
    p.add_argument("--p1flags", default="sc1")
    p.add_argument("--stamps", action="store_true")
    p.add_argument("--probe", default="")
    p.add_argument("--depth", type=int, default=10)
    p.add_argument("--nrace", type=int, default=2)
    p.add_argument("--dsleep", type=int, default=8)
    p.add_argument("--trace", default="")
    p.add_argument("--nodec", action="store_true")
    p.add_argument("--vdiag", action="store_true")
    p.add_argument("--dbgptr", action="store_true")
    p.add_argument("--opp", default="5,9", type=lambda v: [int(x) for x in v.split(",")])
    p.add_argument("--quorum", type=int, default=16)
    p.add_argument("--quorum4", type=int, default=24)
    p.add_argument("--nvote", type=int, default=32)
    p.add_argument("--nagn", type=int, default=6)
    p.add_argument("--stlim", type=int, default=0)
    p.add_argument("--psc1", action="store_true")
    p.add_argument("--pnt", action="store_true")
    p.add_argument("--qout", type=int, default=7)
    p.add_argument("--qws", type=int, default=4)
    p.add_argument("--qgen", type=int, default=5)
    p.add_argument("--jorder", default="12,0,13,1,14,2,15,3,16,4,17,5,18,6,19,7,20,8,21,9,22,10,23,11,24,25,26,27,28,29,30,31")
    p.add_argument("--urot", type=int, default=0)
    p.add_argument("--lmap", type=int, default=0)
    p.add_argument("--qrot", type=int, default=0)
    p.add_argument("--umap", type=int, default=0)
    p.add_argument("--cfull", type=int, default=1)
    p.add_argument("--wtouch", type=int, default=1)
    p.add_argument("--lay", type=int, default=1)
    p.add_argument("--skipfrom", type=int, default=99)
    p.add_argument("--ttail", type=int, default=0)
    p.add_argument("--tlb", type=int, default=0)
    p.add_argument("--rot", type=int, default=0)
    p.add_argument("--pad", type=int, default=0)
    p.add_argument("--lpf", type=int, default=0)
    p.add_argument("--al", type=int, default=0)
    p.add_argument("--cap", type=int, default=0)
    p.add_argument("--capfrom", type=int, default=12)
    p.add_argument("--capto", type=int, default=32)
    p.add_argument("--skewa", type=int, default=1)
    p.add_argument("--skewd", type=int, default=1)
    p.add_argument("--skewc", type=int, default=0)
    p.add_argument("--skew", type=int, default=0, help="timing diagnostic only")
    p.add_argument("--warmfl", default="")
    p.add_argument("--sdiag", action="store_true")
    p.add_argument("--rpf", type=int, default=0)
    p.add_argument("--dpf", type=int, default=0)
    p.add_argument("--pwg", type=int, default=0)
    p.add_argument("--pwave", type=int, default=0)
    p.add_argument("--pref", type=int, default=0)
    p.add_argument("--qshift", type=int, default=32)
    p.add_argument("--rolepos", type=int, default=-1)
    p.add_argument("--prebar", type=int, default=1)
    p.add_argument("--qmap", type=int, default=0)
    p.add_argument("--agnu", type=int, default=4)
    p.add_argument("--warmst", type=int, default=0)
    p.add_argument("--cw", type=int, default=0)
    p.add_argument("--cld", action="store_true")
    p.add_argument("--qflip", type=int, default=0)
    p.add_argument("--qcopy", type=int, default=4)
    p.add_argument("--mul", default="dot")
    p.add_argument("--burst", type=int, default=32)
    p.add_argument("--idleclk", type=int, default=0)
    p.add_argument("--clk", action="store_true")
    p.add_argument("--sthr", type=int, default=0)
    p.add_argument("--sbar", default=[24], type=lambda v: [int(x) for x in v.split(",")])
    p.add_argument("--piece", type=int, default=128)
    p.add_argument("--xbar", default=[24], type=lambda v: [int(x) for x in v.split(",")])
    p.add_argument("--cpf", type=int, default=0)
    p.add_argument("--cpfpos", type=int, default=0)
    p.add_argument("--wpace", type=int, default=40)
    p.add_argument("--clean", default="g")
    p.add_argument("--warm", type=int, default=30)
    p.add_argument("--warmwave", type=int, default=4)
    p.add_argument("--qsleep", type=int, default=0)
    p.add_argument("--red0", type=int, default=8)
    p.add_argument("--redstep", type=int, default=2)
    p.add_argument("--off", default="", help="diagnostics: v = no votes, c = no clears, r = result not read")
    p.add_argument("--spans", default="")
    p.add_argument("--split", action="store_true")
    p.add_argument("--pfback", type=int, default=0)
    p.add_argument("--nplain", type=int, default=0)
    p.add_argument("--wb", default="", help="minwave,wglimit,pos")
    p.add_argument("--thr", type=int, default=2)
    p.add_argument("--thrfrom", type=int, default=12)
    p.add_argument("--thrto", type=int, default=24)
    p.add_argument("--thrmask", default="0x55")
    p.add_argument("--zorder", default="8,0,9,1,10,2,11,3,12,4,13,5,14,6,15,7")
    o = p.parse_args()
    global NAGN, SPANS, NVOTE_WG
    NVOTE_WG = o.nvote
    NAGN = o.nagn
    if NAGN == 6:
        SPANS = [(0, 0), (0, 1), (1, 0), (1, 1), (2, 0), (2, 1),
                 (3, 0), (3, 1), (4, 0), (4, 1), (5, 0), (5, 1), (6, 0), (6, 1), (7, 0), (7, 1)]
        if o.zorder == p.get_default("zorder"):
            o.zorder = "6,0,7,1,8,2,9,3,10,4,11,5,12,13,14,15"
    if o.spans:
        SPANS = [(int(v[0]), int(v[1])) for v in o.spans.split(",")]
        assert sorted(SPANS) == [(a, b) for a in range(8) for b in range(2)]
    g = G(o)
    g.build()
    open(o.o, "w").write(g.text())


if __name__ == "__main__":
    main()
```

```python
import argparse

KNAME = "standalone__channel_attn_cbam__vision_kernel"

HEADER = """; Kernarg layout for this problem (48 bytes, ptrs only, base s[0:1]):
;   offset   0: d_in[0] x  shape=(1, 512, 512, 192) dtype=bfloat16 strides=(100663296, 196608, 384, 2) contiguous=True
;   offset   8: d_in[1] w1  shape=(192, 48) dtype=bfloat16 strides=(96, 2) contiguous=True
;   offset  16: d_in[2] w2  shape=(48, 192) dtype=bfloat16 strides=(384, 2) contiguous=True
;   offset  40: d_ws      402653184 bytes workspace (unspecified values whenever your kernel or launch list starts; a list's later launches find what earlier ones wrote)
"""

DOC = '''; ---------------------------------------------------------------------------------------------
; x (96 MiB) is read once and stays in registers (128 VGPRs per lane) across a grid-wide
; all-reduce of the per-channel sum and max; every workgroup then runs the small MLP (MFMA),
; scales its registers and writes them out.  A lane always holds the same eight channels.
;
; Which rows a workgroup owns.  The first 36 MiB are dealt out statically.  The rest is shared by
; and writes across them are slow): wave 0 of the first 32 workgroups times two lines against
;
; All-reduce.  Stage 1: the 32 workgroups with the same b % 8 leave 12 lines each in d_ws and
; Stage 1 uses plain stores, which a reader on the same die sees in L2; if a wait lasts, every
; ---------------------------------------------------------------------------------------------
'''

X_BYTES = 100663296
NWG = 256
NRED = 12
MiB = 1 << 20

L_RED = 0
L_H = 6144
L_DEC = 6336
L_S = 6400
L_F = 7168
L_W1 = 8192
L_W2 = L_W1 + 18432
L_SPILL = L_W2 + 18432
L_X = L_SPILL + 3 * 8192
L_TOTAL = L_X

WS_P = 0
WS_Q = 256 * 1536
WS_E = WS_Q + 4 * 49152
WS_USED = WS_E + 128
WS_PROBE = 640 * 1024
WS_STAMP = 1 << 20

S_X, S_OUT, S_WS, S_DBG, S_W = 4, 8, 12, 16, 20
S_WAVE, S_TY, S_SUB, S_OFF, S_MASK, S_CNT, S_T0, S_T1 = 28, 29, 30, 31, 32, 33, 34, 35
S_BASE, S_PM, S_P, S_T2 = 48, 49, 50, 51
S_AGN, S_RID, S_PO = 40, 42, 43
S_TG = [41, 47, 3, 0]
S_RET, S_HOOK, S_QC = 38, 46, 1
S_BASE1 = 45
NFB = 48
S_STAMP = 52
S_V = 24

D0 = 40
SPIN = 2000000
V_L, V_G0, V_G1, V_AT = 0, 39, 38, 36

NAGN = 8
SPANS = [(0, 0), (0, 1), (1, 0), (1, 1), (2, 0), (2, 1), (3, 0), (3, 1),
         (6, 0), (4, 0), (6, 1), (4, 1), (7, 0), (5, 0), (7, 1), (5, 1)]
W_ROLE = 0
DBG_RES, DBG_TAL = 0, 128
NVOTE_WG = 32
RES_OK = (1 << 8) | (1 << 11) | (1 << 17) | (1 << 29)
S_OK = 44
S_XR, S_XO, S_XP = 92, 93, 91


def mask(pred):
    return sum(1 << z for z, s in enumerate(SPANS) if pred(z, s))


class G:
    def __init__(self, o):
        self.o = o
        self.lines = []

    def e(self, s=""):
        self.lines.append(("    " + s) if s and not s.endswith(":") else s)

    def stamp(self, idx, vote=False):
        if self.o.clk:
            if idx in (11, 12, 13):
                return
            m = {0: 11, 7: 12, 10: 13}.get(idx)
            if m:
                self.e(f"s_memtime s[{S_STAMP + 2 * m}:{S_STAMP + 2 * m + 1}]")
        if vote == "r":
            vote = False
        if self.o.vdiag and idx in (1, 2, 3, 6) and not vote:
            return
        if vote and not self.o.vdiag:
            return
        if self.o.stamps and not (self.o.trace and idx > 10):
            self.e(f"s_memrealtime s[{S_STAMP + 2 * idx}:{S_STAMP + 2 * idx + 1}]")

    def srd(self, d, lo, nbytes):
        e = self.e
        e(f"s_mov_b64 s[{d}:{d + 1}], s[{lo}:{lo + 1}]")
        e(f"s_mov_b32 s{d + 2}, {nbytes}")
        e(f"s_mov_b32 s{d + 3}, 0x20000")

    def span_off(self, z):
        return SPANS[z][0] * 12 * MiB + SPANS[z][1] * 49152

    def mem(self, j, fn):
        e = self.e
        z, u = j >> 1, j & 1
        if z < NAGN:
            if self.o.bfirst:
                off = SPANS[z][0] * 12 * MiB + (j % 4) * 12288 - self.o.agn0
            else:
                off = (j // self.o.agnu) * (self.o.agnu * 3 * MiB - (self.o.skew if self.o.skewa else 0)) + (j % self.o.agnu) * 12288
            so = f"s{S_OFF}" if off else f"s{S_AGN}"
            if off:
                e(f"s_add_u32 s{S_OFF}, s{S_AGN}, {off}")
            if SPANS[z] == (7, 1):
                at = 2 + u
                e(f"v_add_u32 v{at}, {so}, v{V_L}")
                e(f"v_subrev_u32 v{5 - at}, s{S_X + 2}, v{at}")
                e(f"v_min_u32 v{at}, v{at}, v{5 - at}             ; past the end: wrap to the rows the shift skipped")
                fn(f"v{at}", "0")
            else:
                fn(f"v{V_L}", so)
            return
        if getattr(self, "pz", None) != z:
            e(f"s_bitcmp1_b32 s{S_PM}, {z}")
            e(f"s_cselect_b32 s{S_P}, 24576, 0")
            self.pz = z
        e(f"s_add_u32 s{S_OFF}, s{(S_BASE, S_BASE1)[SPANS[z][1]]}, {SPANS[z][0] * 12 * MiB - self.o.skew * (SPANS[z][0] * self.o.skewd + self.o.skewc) + 12288 * u}")
        at = 2 + u
        if self.o.xfer and j == 31:
            e(f"s_cmp_eq_u32 s{S_XR}, 1")
            e(f"s_cselect_b32 s{S_P}, 0x40000000, s{S_P}")
            self.pz = None
        e(f"v_xad_u32 v{at}, v{(V_G0, V_G1)[u]}, s{S_P}, v{V_L}")
        if SPANS[z] == (7, 1):
            e(f"v_add_u32 v{at}, s{S_OFF}, v{at}")
            e(f"v_subrev_u32 v{5 - at}, s{S_X + 2}, v{at}")
            e(f"v_min_u32 v{at}, v{at}, v{5 - at}             ; past the end: wrap to the rows the shift skipped")
            fn(f"v{at}", "0")
        else:
            fn(f"v{at}", f"s{S_OFF}")

    def trace(self, kind, n):
        if self.o.trace == kind:
            if n > 0:
                self.e("s_waitcnt lgkmcnt(0)")
                self.e(f"s_mov_b32 s{76 + n - 1}, s92")
            self.e("s_memrealtime s[92:93]")

    def build(self):
        o, e = self.o, self.e
        NRACE = o.nrace
        ldf = (" " + o.ldflags) if o.ldflags else ""
        stf = (" " + o.stflags) if o.stflags else ""

        self.stamp(0)
        e("s_load_dwordx2 s[4:5], s[0:1], 0          ; x")
        e("s_load_dwordx2 s[8:9], s[0:1], 24         ; out")
        e("v_readfirstlane_b32 s%d, v0" % S_WAVE)
        e("v_and_b32 v1, 63, v0                      ; lane")
        pl = (o.piece // 16).bit_length() - 1
        e(f"v_bfe_u32 v2, v0, {pl}, {6 - pl}")
        e(f"v_mul_u32_u24 v2, {(3 * o.piece, 1536, 768, 384)[o.lmap]}, v2")
        e(f"v_and_b32 v3, {(1 << pl) - 1}, v0")
        e("s_cmpk_ge_u32 s2, %d" % NWG)
        e("s_cbranch_scc1 L_end")
        if o.rot:
            e(f"s_add_u32 s2, s2, {o.rot}")
            e("s_and_b32 s2, s2, 255")
        if o.rolepos < 0:
            e(f"s_lshl2_add_u32 s{S_T1}, s{S_WAVE}, s2")
            e(f"s_cmp_le_u32 s{S_T1}, {NVOTE_WG}              ; wave 0 of the first workgroups has a side job")
            e("s_cbranch_scc1 L_role")
            e("L_stream:")
        if o.lmap == 1:
            e("v_lshl_add_u32 v0, v3, 4, v2")
            e(f"v_lshl_add_u32 v{V_L}, s{S_WAVE}, 1, v0")
            e(f"s_lshr_b32 s{S_WAVE}, s{S_WAVE}, 6")
        elif o.lmap == 3:
            e(f"s_lshr_b32 s{S_TY}, s{S_WAVE}, 8")
            e(f"s_lshr_b32 s{S_WAVE}, s{S_WAVE}, 6")
            e(f"s_and_b32 s{S_SUB}, s{S_WAVE}, 3              ; sub = wave % 4")
            e(f"s_mul_i32 s{S_T0}, s{S_SUB}, 24")
            e(f"s_add_u32 s{S_T0}, s{S_T0}, s{S_TY}")
            e("v_lshl_add_u32 v0, v3, 4, v2")
            e(f"v_lshl_add_u32 v{V_L}, s{S_T0}, 7, v0")
        elif o.lmap == 2:
            e(f"s_lshr_b32 s{S_WAVE}, s{S_WAVE}, 6")
            e(f"s_cmp_ge_u32 s{S_WAVE}, 6")
            e(f"s_cselect_b32 s{S_T0}, 42, 0")
            e(f"s_add_u32 s{S_T0}, s{S_T0}, s{S_WAVE}")
            e("v_lshl_add_u32 v0, v3, 4, v2")
            e(f"v_lshl_add_u32 v{V_L}, s{S_T0}, 7, v0")
        else:
            e(f"s_lshr_b32 s{S_WAVE}, s{S_WAVE}, 6")
            e(f"s_mul_i32 s{S_SUB}, s{S_WAVE}, 43")
            e(f"s_lshr_b32 s{S_SUB}, s{S_SUB}, 7")
            e(f"s_mul_i32 s{S_T0}, s{S_SUB}, {3072 // o.piece - 3}")
            e(f"s_add_u32 s{S_T0}, s{S_T0}, s{S_WAVE}        ; sub*24 + wave % 3")
            e(f"s_lshl_b32 s{S_T0}, s{S_T0}, {pl + 4}")
            e("v_lshl_add_u32 v0, v3, 4, v2")
            e(f"v_add_u32 v{V_L}, s{S_T0}, v0               ; + sub*3072 + (wave % 3)*128")
        if o.umap == 1:
            pass
        elif o.umap >= 2:
            e("; unit = row*8 + ((b*mul + row*rot) & 7)")
            mul, rot = (o.umap >> 4) | 1, o.umap & 7
            e(f"s_lshr_b32 s{S_T1}, s2, 3")
            e(f"s_mul_i32 s{S_T1}, s{S_T1}, {rot}")
            e(f"s_mul_i32 s{S_T0}, s2, {mul}")
            e(f"s_add_u32 s{S_T0}, s{S_T0}, s{S_T1}")
            e(f"s_and_b32 s{S_T0}, s{S_T0}, 7")
            e(f"s_and_b32 s{S_T1}, s2, -8")
            e(f"s_add_u32 s{S_T0}, s{S_T0}, s{S_T1}")
        elif o.qmap == 0:
            e("; 48 KiB unit of this workgroup: pair q = (b>>3)*4 + (b&3), side = (b>>2)&1, unit = 2q + side")
            e(f"s_and_b32 s{S_T0}, s2, 3")
            e(f"s_bfe_u32 s{S_T1}, s2, 0x10002")
            e(f"s_lshl1_add_u32 s{S_T0}, s{S_T0}, s{S_T1}")
            if o.urot:
                e(f"s_lshr_b32 s{S_T1}, s2, {o.urot & 15}")
                if o.urot >> 4:
                    e(f"s_lshl_b32 s{S_T1}, s{S_T1}, {o.urot >> 4}")
                e(f"s_add_u32 s{S_T0}, s{S_T0}, s{S_T1}")
                e(f"s_and_b32 s{S_T0}, s{S_T0}, 7")
            e(f"s_and_b32 s{S_T1}, s2, -8")
            e(f"s_add_u32 s{S_T0}, s{S_T0}, s{S_T1}")
        else:
            e("; unit of this workgroup: neighbours in memory share b % 8")
            e(f"s_and_b32 s{S_T0}, s2, 7")
            e(f"s_lshl_b32 s{S_T0}, s{S_T0}, 5")
            e(f"s_lshr_b32 s{S_T1}, s2, 3")
            e(f"s_add_u32 s{S_T0}, s{S_T0}, s{S_T1}")
        e(f"s_mul_i32 s{S_AGN}, s{2 if o.umap == 1 else S_T0}, {o.agnu * 12288}")
        if o.bfirst:
            e(f"s_add_u32 s{S_AGN}, s{S_AGN}, {o.agn0}")
        e(f"s_mov_b32 s{S_X + 2}, {X_BYTES}")
        e(f"s_mov_b32 s{S_X + 3}, 0x20000")
        if o.rolepos >= 0:
            e(f"s_lshl_b32 s{S_T1}, s{S_WAVE}, 8")
            e(f"s_or_b32 s{S_T1}, s{S_T1}, s2")
        if o.sdiag:
            self.stamp(6, True)
        e("s_waitcnt lgkmcnt(0)")
        if o.sdiag:
            self.stamp(1, True)
        e(f"s_lshr_b32 s{S_T0}, s{S_OUT}, 7")
        e(f"s_mul_i32 s{S_T0}, s{S_T0}, 21              ; -43 mod 64")
        e(f"s_and_b32 s{S_T0}, s{S_T0}, 63")
        e(f"s_mulk_i32 s{S_T0}, 384")
        e(f"s_add_u32 s{S_AGN}, s{S_AGN}, s{S_T0}")
        assert W_ROLE == 0

        e("; ---- load + reduce pipeline.  sums v[4:11], maxes v[12:19], temps v[20:35]")
        SUM, MAX, T = 4, 12, 20
        DEPTH = o.depth
        seq = []

        def issue(j):
            if j == o.rolepos:
                e(f"s_cmp_le_u32 s{S_T1}, {NVOTE_WG}              ; wave 0 of the first workgroups has a side job")
                e("s_cbranch_scc1 L_role")
                e("L_stream:")
            if o.cpf and j == o.cpfpos:
                e("; wave 1 of the first workgroups pulls the kernel's code into this die's L2 (values unused)")
                e(f"s_sub_u32 s{S_T1}, s{S_T1}, 256")
                e(f"s_cmp_ge_u32 s{S_T1}, {o.cpf}")
                e("s_cbranch_scc1 L_nocpf")
                e("s_getpc_b64 s[20:21]")
                e("v_lshlrev_b32 v2, 7, v1")
                e("v_add_u32 v3, 8192, v2")
                e("v_min_u32 v3, L_codeend - L_nocpf, v3")
                e("global_load_dword v36, v2, s[20:21]")
                e("global_load_dword v37, v3, s[20:21]")
                e("L_nocpf:")
            if j == max(4, o.rolepos):
                e("s_load_dwordx4 s[36:39], s[0:1], 8        ; w1, w2")
                e(f"s_load_dwordx2 s[{S_DBG}:{S_DBG + 1}], s[0:1], 32")
                e(f"s_load_dwordx2 s[{S_WS}:{S_WS + 1}], s[0:1], 40")
                e(f"s_mov_b32 s{S_MASK}, 0xffff0000")
            if j == 2 * NAGN:
                if o.lmap in (1, 2):
                    e(f"s_mul_i32 s{S_SUB}, s{S_WAVE}, 43")
                    e(f"s_lshr_b32 s{S_SUB}, s{S_SUB}, 7")
                if o.lmap != 3:
                    e(f"s_mul_i32 s{S_TY}, s{S_SUB}, 3")
                    e(f"s_sub_u32 s{S_TY}, s{S_WAVE}, s{S_TY}        ; ty = wave % 3")
                e(f"s_mov_b32 s{S_OUT + 2}, s{S_X + 2}")
                e(f"s_mov_b32 s{S_OUT + 3}, s{S_X + 3}")
                e(f"s_mov_b32 s{S_WS + 2}, {(2 << 20) if o.stamps else WS_USED}")
                e(f"s_mov_b32 s{S_WS + 3}, s{S_X + 3}")
                e(f"s_movk_i32 s{S_DBG + 2}, 256")
                e(f"s_mov_b32 s{S_DBG + 3}, s{S_X + 3}")
                e(f"s_movk_i32 s{S_T2}, 24576")
                e(f"v_bfe_u32 v{V_G0}, v{V_L}, 13, 1")
                e(f"v_add_u32 v{V_G1}, 12288, v{V_L}")
                e(f"v_bfe_u32 v{V_G1}, v{V_G1}, 13, 1")
                e(f"v_mul_u32_u24 v{V_G0}, s{S_T2}, v{V_G0}")
                e(f"v_mul_u32_u24 v{V_G1}, s{S_T2}, v{V_G1}")
                e(f"s_lshr_b32 s{S_T0}, s{S_OUT}, 7")
                e(f"s_mul_i32 s{S_T0}, s{S_T0}, 21")
                e(f"s_and_b32 s{S_T0}, s{S_T0}, 63")
                e(f"s_mulk_i32 s{S_T0}, 384")
                e(f"s_lshr_b32 s{S_BASE}, s2, 3")
                if o.qrot:
                    if o.qrot >= 16:
                        e(f"s_lshr_b32 s{S_T1}, s{S_BASE}, {o.qrot - 16}")
                    else:
                        e(f"s_mul_i32 s{S_T1}, s{S_BASE}, {o.qrot}")
                    e(f"s_add_u32 s{S_T1}, s{S_T1}, s2")
                    e(f"s_and_b32 s{S_T1}, s{S_T1}, 3")
                else:
                    e(f"s_and_b32 s{S_T1}, s2, 3")
                if o.qmap == 0:
                    e(f"s_lshl2_add_u32 s{S_BASE}, s{S_BASE}, s{S_T1}")
                else:
                    e(f"s_lshl_b32 s{S_T1}, s{S_T1}, 5")
                    e(f"s_add_u32 s{S_BASE}, s{S_BASE}, s{S_T1}")
                e(f"s_add_u32 s{S_BASE1}, s{S_BASE}, {64 if o.h6 else o.qshift}")
                e(f"s_and_b32 s{S_BASE1}, s{S_BASE1}, 127")
                e(f"s_mul_i32 s{S_BASE}, s{S_BASE}, {49152 if o.h6 else 98304}")
                e(f"s_add_u32 s{S_BASE}, s{S_BASE}, s{S_T0}        ; the pair's first span of a step")
                e(f"s_mul_i32 s{S_BASE1}, s{S_BASE1}, {49152 if o.h6 else 98304}")
                e(f"s_add_u32 s{S_BASE1}, s{S_BASE1}, s{S_T0}")
                e(f"s_add_u32 s{S_BASE1}, s{S_BASE1}, {6 * MiB if o.h6 else 49152}      ; its second span: 3 MiB on, where the memory stacks swap")
                h1 = mask(lambda z, s: s[1] == 1)
                e(f"s_add_u32 s{S_T2}, s{S_T2}, s{S_OUT}")
                e(f"s_add_u32 s{S_T0}, s{S_BASE}, s{S_T2}")
                e(f"s_bfe_i32 s{S_PM}, s{S_T0}, 0x10015")
                e(f"s_add_u32 s{S_T2}, s{S_BASE1}, s{S_T2}")
                e(f"s_xor_b32 s{S_T0}, s{S_T0}, s{S_T2}")
                e(f"s_bfe_i32 s{S_T0}, s{S_T0}, 0x10015")
                e(f"s_and_b32 s{S_T0}, s{S_T0}, {h1}")
                e(f"s_xor_b32 s{S_PM}, s{S_PM}, s{S_T0}")
                m1 = mask(lambda z, s: z >= NAGN and s[0] in ((0, 1) if o.bfirst else (3, 4)))
                z50 = SPANS.index((2 if o.bfirst else 5, 0))
                z51 = SPANS.index((2 if o.bfirst else 5, 1))
                edge = (8 if o.bfirst else 4) * MiB - 24576
                dec = mask(lambda z, s: z >= NAGN)
                e(f"s_cmp_lt_u32 s{S_BASE}, {edge}")
                e(f"s_cselect_b32 s{S_T0}, {1 << z50}, 0")
                e(f"s_or_b32 s{S_T0}, s{S_T0}, {m1}")
                e(f"s_cmp_lt_u32 s{S_BASE1}, {edge}")
                e(f"s_cselect_b32 s{S_T1}, {1 << z51}, 0")
                e(f"s_or_b32 s{S_T0}, s{S_T0}, s{S_T1}            ; third 1")
                e(f"s_xor_b32 s{S_T1}, s{S_T0}, {dec}           ; third 2")
                per, pat = o.opp
                rep = sum(((pat >> (i % per)) & 1) << i for i in range(32))
                e(f"s_lshr_b32 s{S_P}, s2, 3")
                e(f"s_mul_i32 s{S_T2}, s{S_P}, {-(-256 // per)}")
                e(f"s_lshr_b32 s{S_T2}, s{S_T2}, 8")
                e(f"s_mul_i32 s{S_T2}, s{S_T2}, {per}")
                e(f"s_sub_u32 s{S_P}, s{S_P}, s{S_T2}             ; (b >> 3) % {per}")
                e(f"s_lshr_b32 s{S_P}, {rep}, s{S_P}")
                e(f"s_sub_u32 s{S_T2}, s{S_OUT}, s{S_X}")
                e(f"s_add_u32 s{S_T2}, s{S_T2}, 2048")
                e(f"s_bitcmp1_b32 s{S_T2}, 12")
                e(f"s_cselect_b32 s{S_P}, 0, s{S_P}")
                e(f"s_cselect_b32 s{S_OK}, 0, {1 << 23}")
                e(f"s_or_b32 s{S_OK}, s{S_OK}, {RES_OK}       ; the parts of the result word that must be in")
                e(f"s_lshr_b32 s{S_T2}, s2, 3")
                e(f"s_sub_u32 s{S_RID}, s{S_T2}, {o.red0}")
                e(f"s_and_b32 s{S_PO}, s2, 7")
                e(f"s_lshl_b32 s{S_PO}, s{S_PO}, 5")
                e(f"s_add_u32 s{S_PO}, s{S_PO}, s{S_T2}")
                e(f"s_mulk_i32 s{S_PO}, 1536")
                e("s_waitcnt lgkmcnt(0)")
                self.stamp(11)
                e("s_barrier")
                e(f"s_load_dword s{S_T2}, s[{S_DBG}:{S_DBG + 1}], {DBG_RES}")
                e("s_waitcnt lgkmcnt(0)")
                e(f"s_andn2_b32 s{S_CNT}, s{S_OK}, s{S_T2}")
                e("s_cbranch_scc1 L_dpoll")
                e("L_decided:")
                for i in range(4):
                    e(f"s_bitcmp1_b32 s{S_T2}, {7 + 6 * i + 5}")
                    e(f"s_cselect_b32 s{S_V + i}, s{(S_T0, S_T1)[i >> 1]}, 0")
                e(f"s_or_b32 s{S_V}, s{S_V}, s{S_V + 2}")
                e(f"s_or_b32 s{S_V + 1}, s{S_V + 1}, s{S_V + 3}")
                e(f"s_xor_b32 s{S_V}, s{S_V}, s{S_V + 1}")
                e(f"s_and_b32 s{S_V}, s{S_V}, s{S_P}")
                e(f"s_xor_b32 s{S_V}, s{S_V}, s{S_V + 1}")
                e(f"s_xor_b32 s{S_PM}, s{S_PM}, s{S_V}")
                e(f"s_lshr_b32 s{S_QC}, s{S_T2}, 13")
                e(f"s_add_u32 s{S_QC}, s{S_QC}, s2")
                e(f"s_bfe_i32 s{S_V}, s{S_QC}, 0x10002")
                e(f"s_xor_b32 s{S_PM}, s{S_PM}, s{S_V}")
                e(f"s_and_b32 s{S_TG[0]}, s{S_T2}, 15")
                e(f"s_bfe_u32 s{S_TG[1]}, s{S_T2}, 0x40004")
                e(f"s_xor_b32 s{S_TG[2]}, s{S_TG[0]}, 15")
                e(f"s_xor_b32 s{S_TG[3]}, s{S_TG[1]}, 15")
                e(f"s_lshr_b32 s{S_V}, s{S_T2}, 10")
                e(f"s_and_b32 s{S_V}, s{S_V}, 4")
                e(f"s_xor_b32 s{S_QC}, s{S_QC}, s{S_V}           ; bits 2:0: the second-stage copy near this die")
                if o.xfer:
                    e("; dies with an odd number run a little slower: some waves there leave their last slot to the even neighbour")
                    assert SPANS[15] == (7, 0)
                    e(f"s_lshr_b32 s{S_T0}, s{S_T2}, 13")
                    e(f"s_add_u32 s{S_T1}, s{S_T0}, s2")
                    e(f"s_and_b32 s{S_XR}, s{S_T1}, 1")
                    e(f"s_sub_u32 s{S_XR}, 2, s{S_XR}")
                    e(f"s_cmp_ge_u32 s{S_WAVE}, {12 - o.xfer}")
                    e(f"s_cselect_b32 s{S_XR}, s{S_XR}, 0")
                    e(f"s_xor_b32 s{S_T1}, s{S_T1}, 1")
                    e(f"s_sub_u32 s{S_T1}, s{S_T1}, s{S_T0}")
                    e(f"s_and_b32 s{S_T1}, s{S_T1}, 3")
                    e(f"s_and_b32 s{S_T0}, s2, 3")
                    e(f"s_sub_u32 s{S_T1}, s{S_T1}, s{S_T0}")
                    e(f"s_mul_i32 s{S_T1}, s{S_T1}, 98304")
                    e(f"s_add_u32 s{S_XO}, s{S_BASE}, s{S_T1}        ; the neighbour's first span of a step")
                    e(f"s_add_u32 s{S_T0}, s{S_OUT}, 24576")
                    e(f"s_add_u32 s{S_T1}, s{S_T0}, s{S_XO}")
                    e(f"s_add_u32 s{S_T0}, s{S_T0}, s{S_BASE}")
                    e(f"s_xor_b32 s{S_T0}, s{S_T0}, s{S_T1}")
                    e(f"s_lshr_b32 s{S_T0}, s{S_T0}, 6")
                    e(f"s_xor_b32 s{S_T0}, s{S_T0}, s{S_PM}")
                    e(f"s_bitcmp1_b32 s{S_T0}, 15")
                    e(f"s_cselect_b32 s{S_XP}, 24576, 0")
                    e(f"s_add_u32 s{S_XO}, s{S_XO}, {7 * 12 * MiB + 12288}")
                if o.wtouch:
                    e("s_load_dword s22, s[36:37], 0")
                    e("s_load_dword s23, s[38:39], 0")
                self.stamp(12)
            if j in o.xbar:
                e("s_barrier")
                if j == o.xbar[-1]:
                    self.stamp(2, "r")
            if o.xfer and j == o.xpos:
                e(f"s_cmp_lg_u32 s{S_XR}, 2")
                e("s_cbranch_scc1 L_nox1")
                e(f"s_lshl_b32 s{S_T0}, s{S_WAVE}, 10")
                e(f"s_add_u32 m0, s{S_T0}, {L_X}")
                e(f"v_xad_u32 v3, v{V_G1}, s{S_XP}, v{V_L}")
                e(f"buffer_load_dwordx4 v3, s[{S_X}:{S_X + 3}], s{S_XO} offen{ldf} lds")
                e("L_nox1:")
            if j == o.warm and o.warmst:
                e("; waves 0 and 1 claim their first-stage lines in L2 with a pattern that no tag matches")
                e(f"s_cmp_ge_u32 s{S_WAVE}, 2")
                e("s_cbranch_scc1 L_nowarm")
                for i in range(4):
                    e(f"v_mov_b32 v{20 + i}, 0")
                e(f"s_mul_i32 s{S_T0}, s{S_WAVE}, 768")
                e(f"v_lshl_add_u32 v3, v1, 4, s{S_T0}")
                e("s_mov_b32 exec_hi, 0xffff")
                e(f"buffer_store_dwordx4 v[20:23], v3, s[{S_WS}:{S_WS + 3}], s{S_PO} offen")
                e("s_mov_b64 exec, -1")
                e("L_nowarm:")
            if j == o.warm and not o.warmst:
                e("; one wave pulls this workgroup's first-stage lines into L2 (values unused)")
                e(f"s_cmp_lg_u32 s{S_WAVE}, {o.warmwave}")
                e("s_cbranch_scc1 L_nowarm")
                e("v_lshlrev_b32 v3, 7, v1")
                e("s_mov_b64 exec, 0xfff")
                e(f"buffer_load_dword v37, v3, s[{S_WS}:{S_WS + 3}], s{S_PO} offen {o.warmfl}")
                e("s_mov_b64 exec, -1")
                if o.lpf == 2:
                    e("; ... and, in one workgroup per group, the code that is still to run")
                    e(f"s_cmp_lg_u32 s{S_RID}, {NRED}")
                    e("s_cbranch_scc1 L_nowarm")
                    e("s_getpc_b64 s[20:21]")
                    if o.lay:
                        e("v_add_u32 v3, L_tail - L_nowarm + 32, v3")
                    e("v_min_u32 v3, L_end - L_nowarm, v3")
                    e("global_load_dword v37, v3, s[20:21]")
                e("L_nowarm:")
            r = D0 + 4 * j
            if o.thr and j == 10:
                e("; dies with an even number win the fabric arbitration: they keep fewer loads in flight for a while")
                e(f"s_getreg_b32 s{S_T0}, hwreg(HW_REG_XCC_ID, 0, 3)")
                e(f"s_lshr_b32 s{S_T0}, {o.thrmask}, s{S_T0}")
                e(f"s_and_b64 vcc, s[{S_T0}:{S_T0 + 1}], 1")
            if o.cap and o.capfrom <= j < o.capto:
                e(f"s_waitcnt vmcnt({o.cap - 1})")
            if o.thr and o.thrfrom <= j < o.thrto:
                e(f"s_cbranch_vccz L_thr{j}")
                e(f"s_waitcnt vmcnt({o.thr - 1})")
                e(f"L_thr{j}:")
            self.mem(j, lambda va, so: e(f"buffer_load_dwordx4 v[{r}:{r + 3}], {va}, s[{S_X}:{S_X + 3}], {so} offen{ldf}"))
            seq.append(j)
            if o.sdiag and j == 0:
                self.stamp(2, True)
            if o.sdiag and j == 2:
                e("s_waitcnt vmcnt(2)")
                self.stamp(3, True)
            if j & 1:
                self.trace("ld", j >> 1)

        def wait_for(j):
            e(f"s_waitcnt vmcnt({len(seq) - 1 - seq.index(j)})")

        def scatter54():
            e("; ---- in-wave reduce-scatter across lane bits 5, 4, 3")
            for base in (MAX, SUM):
                for i in range(4):
                    e(f"v_permlane32_swap_b32 v{base + i}, v{base + 4 + i}")
            for i in range(4):
                e(f"v_max_f32 v{MAX + i}, v{MAX + i}, v{MAX + 4 + i}")
            for i in range(4):
                e(f"v_add_f32 v{SUM + i}, v{SUM + i}, v{SUM + 4 + i}")
            for i in range(2):
                e(f"v_permlane16_swap_b32 v{MAX + i}, v{MAX + 2 + i}")
            for i in range(2):
                e(f"v_permlane16_swap_b32 v{SUM + i}, v{SUM + 2 + i}")
            for i in range(2):
                e(f"v_add_f32 v{SUM + i}, v{SUM + i}, v{SUM + 2 + i}")
            for i in range(2):
                e(f"v_max_f32 v{MAX + i}, v{MAX + i}, v{MAX + 2 + i}")

        nxt = 0
        for jj in range(16):
            while nxt < 32 and nxt < max(2 * jj + DEPTH + 2, 2 * NAGN + 2 if o.prebar else 0):
                issue(nxt)
                nxt += 1
                if nxt == 32:
                    self.stamp(1)
            a, b = D0 + 8 * jj, D0 + 8 * jj + 4
            if jj == 0:
                e("@@HERE1")
            if jj == 15:
                e("@@HERE2")
                e("v_and_b32 v2, 7, v1")
                e("v_lshlrev_b32 v2, 5, v2                   ; (l&7)*32")
                e("v_lshrrev_b32 v3, 4, v1")
                e("v_lshl_add_u32 v2, v3, 3, v2              ; + (l>>4)*8")
                e("v_bfe_u32 v3, v1, 3, 1")
                e("v_mul_u32_u24 v3, 768, v3")
                e(f"s_mul_i32 s{S_T0}, s{S_SUB}, 1536")
                e(f"s_lshl_b32 s{S_T1}, s{S_TY}, 8")
                e(f"s_add_u32 s{S_T0}, s{S_T0}, s{S_T1}")
                e(f"v_add3_u32 v2, v2, v3, s{S_T0}")
                e(f"s_mul_i32 s{S_T0}, s{S_WAVE}, 768")
                e(f"v_lshl_add_u32 v3, v1, 4, s{S_T0}")
                if o.ttail:
                    e("; the accumulators are folded across lane bits 5 and 4 now; the last two loads are")
                    e("; transposed the same way while still packed, which shortens the work behind the last arrival")
                    scatter54()
                    for r in (a, b):
                        wait_for((r - D0) // 4)
                        if r == b:
                            self.stamp(3)
                        C = T + 8
                        e(f"v_mov_b64 v[{C}:{C + 1}], v[{r}:{r + 1}]")
                        e(f"v_mov_b64 v[{C + 2}:{C + 3}], v[{r + 2}:{r + 3}]")
                        e("s_nop 1")
                        e(f"v_permlane32_swap_b32 v{C}, v{C + 2}")
                        e(f"v_permlane32_swap_b32 v{C + 1}, v{C + 3}")
                        e("s_nop 1")
                        e(f"v_permlane16_swap_b32 v{C}, v{C + 1}")
                        e(f"v_permlane16_swap_b32 v{C + 2}, v{C + 3}")
                        for i in range(4):
                            t = T + 2 * i
                            e(f"v_lshlrev_b32 v{t}, 16, v{C + i}")
                            e(f"v_and_b32 v{t + 1}, s{S_MASK}, v{C + i}")
                        e(f"v_pk_add_f32 v[{C}:{C + 1}], v[{T}:{T + 1}], v[{T + 2}:{T + 3}]")
                        e(f"v_pk_add_f32 v[{C + 2}:{C + 3}], v[{T + 4}:{T + 5}], v[{T + 6}:{T + 7}]")
                        e(f"v_max3_f32 v{MAX}, v{MAX}, v{T}, v{T + 2}")
                        e(f"v_pk_add_f32 v[{C}:{C + 1}], v[{C}:{C + 1}], v[{C + 2}:{C + 3}]")
                        e(f"v_max3_f32 v{MAX + 1}, v{MAX + 1}, v{T + 1}, v{T + 3}")
                        e(f"v_pk_add_f32 v[{SUM}:{SUM + 1}], v[{SUM}:{SUM + 1}], v[{C}:{C + 1}]")
                        e(f"v_max3_f32 v{MAX}, v{MAX}, v{T + 4}, v{T + 6}")
                        e(f"v_max3_f32 v{MAX + 1}, v{MAX + 1}, v{T + 5}, v{T + 7}")
                    continue
                def fold(r):
                    for i in range(4):
                        t = T + 2 * i
                        e(f"v_lshlrev_b32 v{t}, 16, v{r + i}")
                        e(f"v_and_b32 v{t + 1}, s{S_MASK}, v{r + i}")
                    for i in range(8):
                        e(f"v_max_f32 v{MAX + i}, v{MAX + i}, v{T + i}")
                    for i in range(4):
                        t, s = T + 2 * i, SUM + 2 * i
                        e(f"v_pk_add_f32 v[{s}:{s + 1}], v[{s}:{s + 1}], v[{t}:{t + 1}]")
                if o.xfer:
                    assert o.xpos <= 28
                    e(f"s_cmp_lg_u32 s{S_XR}, 2")
                    e("s_cbranch_scc1 L_nox2")
                    e(f"s_lshl_b32 s{S_T0}, s{S_WAVE}, 10")
                    e(f"s_add_u32 s{S_T0}, s{S_T0}, {L_X}")
                    e(f"v_lshl_add_u32 v{V_AT}, v1, 4, s{S_T0}")
                    e(f"ds_read_b128 v[28:31], v{V_AT}")
                    e("s_waitcnt lgkmcnt(0)")
                    fold(28)
                    e("L_nox2:")
                e("; the last two loads are folded in one at a time")
                for r in (a, b):
                    wait_for((r - D0) // 4)
                    if r == b:
                        self.stamp(3)
                        if o.xfer:
                            e(f"s_cmp_eq_u32 s{S_XR}, 1")
                            e("s_cbranch_scc1 L_nox3")
                    fold(r)
                if o.xfer:
                    e("L_nox3:")
                continue
            wait_for(2 * jj + 1)
            if jj == 0 and not o.xbar:
                self.stamp(2)
            if jj >= o.skipfrom:
                continue
            for i in range(4):
                t = T + 4 * i
                e(f"v_lshlrev_b32 v{t}, 16, v{a + i}")
                e(f"v_and_b32 v{t + 1}, s{S_MASK}, v{a + i}")
                e(f"v_lshlrev_b32 v{t + 2}, 16, v{b + i}")
                e(f"v_and_b32 v{t + 3}, s{S_MASK}, v{b + i}")
            for i in range(4):
                t = T + 4 * i
                s, m = SUM + 2 * i, MAX + 2 * i
                if jj == 0:
                    e(f"v_max_f32 v{m}, v{t}, v{t + 2}")
                    e(f"v_max_f32 v{m + 1}, v{t + 1}, v{t + 3}")
                    e(f"v_pk_add_f32 v[{s}:{s + 1}], v[{t}:{t + 1}], v[{t + 2}:{t + 3}]")
                else:
                    e(f"v_max3_f32 v{m}, v{m}, v{t}, v{t + 2}")
                    e(f"v_max3_f32 v{m + 1}, v{m + 1}, v{t + 1}, v{t + 3}")
                    e(f"v_pk_add_f32 v[{t}:{t + 1}], v[{t}:{t + 1}], v[{t + 2}:{t + 3}]")
            if jj:
                for i in range(4):
                    t = T + 4 * i
                    s = SUM + 2 * i
                    e(f"v_pk_add_f32 v[{s}:{s + 1}], v[{s}:{s + 1}], v[{t}:{t + 1}]")

        if not o.ttail:
            scatter54()
        e(f"s_cmp_ge_u32 s{S_WAVE}, 2")
        for i in range(2):
            e(f"v_add_f32_dpp v{SUM + i}, v{SUM + i}, v{SUM + i} row_ror:8 row_mask:0xf bank_mask:0x3")
        for i in range(2):
            e(f"v_max_f32_dpp v{SUM + i}, v{MAX + i}, v{MAX + i} row_ror:8 row_mask:0xf bank_mask:0xc")
        e(f"ds_write_b64 v2, v[{SUM}:{SUM + 1}] offset:{L_RED}")
        e("s_waitcnt lgkmcnt(0)")
        e("s_barrier")
        self.stamp(4)
        e("s_cbranch_scc1 L_nopub")

        e("; ---- waves 0 (sums) and 1 (maxes): combine the four row groups, publish, then stage the weights")
        e("s_mov_b32 exec_hi, 0xffff")
        for k in range(4):
            e(f"ds_read_b128 v[{4 + 4 * k}:{7 + 4 * k}], v3 offset:{L_RED + 1536 * k}")
        e(f"s_cmp_eq_u32 s{S_WAVE}, 0")
        e(f"s_cselect_b64 s[{S_W}:{S_W + 1}], s[36:37], s[38:39]")
        e("s_cbranch_scc0 L_pubmax")
        e("s_waitcnt lgkmcnt(2)")
        e("v_pk_add_f32 v[4:5], v[4:5], v[8:9]")
        e("v_pk_add_f32 v[6:7], v[6:7], v[10:11]")
        e("s_waitcnt lgkmcnt(0)")
        e("v_pk_add_f32 v[12:13], v[12:13], v[16:17]")
        e("v_pk_add_f32 v[14:15], v[14:15], v[18:19]")
        e("v_pk_add_f32 v[4:5], v[4:5], v[12:13]")
        e("v_pk_add_f32 v[6:7], v[6:7], v[14:15]")
        e("s_branch L_pub")
        e("L_pubmax:")
        e("s_waitcnt lgkmcnt(1)")
        for i in range(4):
            e(f"v_max3_f32 v{4 + i}, v{4 + i}, v{8 + i}, v{12 + i}")
        e("s_waitcnt lgkmcnt(0)")
        for i in range(4):
            e(f"v_max_f32 v{4 + i}, v{4 + i}, v{16 + i}")
        e("L_pub:")
        for i in range(4):
            e(f"v_and_or_b32 v{4 + i}, v{4 + i}, -16, s{S_TG[i]}")
        e(f"buffer_store_dwordx4 v[4:7], v3, s[{S_WS}:{S_WS + 3}], s{S_PO} offen{' sc1' if o.psc1 else ' nt' if o.pnt else ''}")
        e("s_mov_b64 exec, -1")
        e(f"s_movk_i32 s{S_W + 2}, 18432")
        e(f"s_mov_b32 s{S_W + 3}, 0x20000")
        e(f"s_mul_i32 s{S_T0}, s{S_WAVE}, 18432")
        e(f"s_addk_i32 s{S_T0}, {L_W1}")
        e(f"s_mov_b32 s{S_T1}, 0")
        e("v_lshlrev_b32 v2, 4, v1")
        e("L_wloop:")
        e(f"s_add_u32 m0, s{S_T0}, s{S_T1}")
        e("s_nop 0")
        for k in range(3):
            e(f"buffer_load_dwordx4 v2, s[{S_W}:{S_W + 3}], s{S_T1} offen offset:{k * 1024} lds")
        e(f"s_addk_i32 s{S_T1}, 3072")
        e(f"s_cmp_lt_u32 s{S_T1}, 18432")
        e("s_cbranch_scc1 L_wloop")
        e("L_nopub:")

        B2 = 28
        V_H0, V_H1, V_SW, V_SR, V_Q = 24, 25, 26, 27, 37
        SP0 = 136
        A1 = 144
        B1 = [4, 8, 12, 16, 136, 140]
        e("v_lshrrev_b32 v20, 4, v1                  ; q")
        e(f"s_cmp_lt_u32 s{S_WAVE}, 3")
        e("s_cbranch_scc1 L_spill")
        e(f"s_cmp_ge_u32 s{S_RID}, {NRED}")
        e("s_cbranch_scc1 L_barw")
        e(f"s_cmp_lg_u32 s{S_WAVE}, 3")
        e("s_cbranch_scc1 L_barw")

        def clean(lbl, d, a):
            e("; every reducer is done: wave 3 writes the first-stage lines through, so that no dirty line stays in L2")
            e(f"s_cmp_lg_u32 s{S_WAVE}, 3")
            e(f"s_cbranch_scc1 {lbl}")
            if o.cw:
                e(f"v_mov_b32 v{d}, 0")
                e(f"v_lshlrev_b32 v{a}, {o.cw}, v1")
                e(f"s_mov_b64 exec, {(1 << (1536 >> o.cw)) - 1}")
                if o.cld:
                    e(f"buffer_atomic_or v{d}, v{a}, s[{S_WS}:{S_WS + 3}], s{S_PO} offen")
                else:
                    e(f"buffer_store_dword v{d}, v{a}, s[{S_WS}:{S_WS + 3}], s{S_PO} offen sc1")
                e("s_mov_b64 exec, -1")
                return
            for i in range(4):
                e(f"v_mov_b32 v{d + i}, 0")
            e(f"v_lshlrev_b32 v{a}, 4, v1")
            e("s_mov_b32 exec_hi, 0xffff")
            e(f"buffer_store_dwordx4 v[{d}:{d + 3}], v{a}, s[{S_WS}:{S_WS + 3}], s{S_PO} offen sc1")
            e(f"buffer_store_dwordx4 v[{d}:{d + 3}], v{a}, s[{S_WS}:{S_WS + 3}], s{S_PO} offen offset:768 sc1")
            e("s_mov_b64 exec, -1")

        e("v_lshrrev_b32 v2, 3, v1")
        e("v_mul_u32_u24 v2, 1536, v2")
        e("v_and_b32 v3, 7, v1")
        e(f"v_lshl_add_u32 v{V_Q}, v3, 4, v2")
        e(f"s_and_b32 s{S_T0}, s2, 7")
        e(f"s_mul_i32 s{S_V}, s{S_T0}, {32 * 1536}")
        e(f"s_lshl_b32 s{S_T1}, s{S_RID}, 7")
        e(f"s_add_u32 s{S_V}, s{S_V}, s{S_T1}")
        for k in range(1, 4):
            e(f"s_add_u32 s{S_V + k}, s{S_V}, {k * 8 * 1536}")
        e(f"s_lshl_b32 s{S_T0}, s{S_T0}, 8              ; group*256")
        e(f"s_lshr_b32 s{S_T1}, s{S_RID}, 2")
        e(f"s_lshl2_add_u32 s{S_T1}, s{S_T1}, s{S_RID}")
        e(f"s_lshl_b32 s{S_T1}, s{S_T1}, 11")
        e(f"s_add_u32 s{S_T1}, s{S_T1}, s{S_T0}")
        for k in range(o.qcopy // 2):
            e(f"s_add_u32 s{S_W + k}, s{S_T1}, {WS_Q + k * 49152}")
        e("v_and_b32 v2, 15, v1")
        e("v_lshlrev_b32 v3, 2, v2")
        e("v_bfe_u32 v2, v1, 4, 1")
        e("v_lshl_add_u32 v3, v2, 7, v3")
        e("v_lshrrev_b32 v2, 5, v1")
        e("v_lshl_add_u32 v3, v2, 13, v3             ; (l>>5)*8192 + ((l>>4)&1)*128 + (l&15)*4")
        e(f"s_lshl4_add_u32 s{S_T0}, s{S_TG[1]}, s{S_TG[0]}")
        e(f"s_xor_b32 s{S_CNT}, s{S_T0}, 0xff")
        e(f"s_lshl_b32 s{S_CNT}, s{S_CNT}, 8")
        e(f"s_or_b32 s{S_T0}, s{S_T0}, s{S_CNT}")
        e("v_and_b32 v2, 12, v3")
        e(f"v_bfe_u32 v23, s{S_T0}, v2, 4")
        e(f"s_mov_b32 s{S_CNT}, {NFB}")
        e(f"s_mov_b32 s{S_HOOK}, 0")
        e("L_rpoll:")
        for k in range(4):
            e(f"buffer_load_dwordx4 v[{4 + 4 * k}:{7 + 4 * k}], v{V_Q}, s[{S_WS}:{S_WS + 3}], s{S_V + k} offen sc1")
        e(f"s_sub_u32 s{S_CNT}, s{S_CNT}, 1")
        e("s_cbranch_scc1 L_rlong")
        for k in range(4):
            e(f"s_waitcnt vmcnt({3 - k})")
            r = 4 + 4 * k
            for i in range(4):
                e(f"v_xor_b32 v{r + i}, s{S_TG[i]}, v{r + i}" + ("            ; a matching tag leaves four zero bits" if k + i == 0 else ""))
            if k == 0:
                e(f"v_or3_b32 v21, v{r}, v{r + 1}, v{r + 2}")
                e(f"v_or_b32 v21, v21, v{r + 3}")
            elif k < 3:
                e(f"v_or3_b32 v21, v21, v{r}, v{r + 1}")
                e(f"v_or3_b32 v21, v21, v{r + 2}, v{r + 3}")
            else:
                e(f"v_or3_b32 v21, v21, v{r}, v{r + 1}")
                e(f"v_or_b32 v22, v{r + 2}, v{r + 3}")
        e("v_bitop3_b32 v21, v21, v22, 15 bitop3:0xa8          ; (a | b) & c")
        e("v_cmp_ne_u32 vcc, 0, v21")
        e("s_wqm_b64 exec, vcc                       ; 64-byte units still waiting poll again")
        e("s_cbranch_scc1 L_rpoll")
        e("L_rgot:")
        e("s_mov_b64 exec, -1")
        self.stamp(1, "r")
        e(f"s_cmp_ge_u32 s{S_RID}, 6")
        e("s_cbranch_scc1 L_rmax")
        for kind in (0, 1):
            op = "v_add_f32" if kind == 0 else "v_max_f32"
            if kind == 1:
                e("L_rmax:")
                for i in range(4):
                    e(f"v_max3_f32 v{4 + i}, v{4 + i}, v{8 + i}, v{12 + i}")
                for i in (0, 2, 1, 3):
                    e(f"v_max_f32 v{4 + i}, v{4 + i}, v{16 + i}")
            else:
                e("v_pk_add_f32 v[4:5], v[4:5], v[8:9]")
                e("v_pk_add_f32 v[6:7], v[6:7], v[10:11]")
                e("v_pk_add_f32 v[12:13], v[12:13], v[16:17]")
                e("v_pk_add_f32 v[14:15], v[14:15], v[18:19]")
                e("v_pk_add_f32 v[4:5], v[4:5], v[12:13]")
                e("v_pk_add_f32 v[6:7], v[6:7], v[14:15]")
                e("s_nop 0")
            e(f"{op}_dpp v4, v4, v4 row_ror:8 row_mask:0xf bank_mask:0x3")
            if kind == 0:
                e(f"{op}_dpp v5, v5, v5 row_ror:8 row_mask:0xf bank_mask:0x3")
                e(f"{op}_dpp v4, v6, v6 row_ror:8 row_mask:0xf bank_mask:0xc")
            else:
                e(f"{op}_dpp v4, v6, v6 row_ror:8 row_mask:0xf bank_mask:0xc")
                e(f"{op}_dpp v5, v5, v5 row_ror:8 row_mask:0xf bank_mask:0x3")
            e(f"{op}_dpp v5, v7, v7 row_ror:8 row_mask:0xf bank_mask:0xc")
            e("s_nop 1")
            e("v_permlane16_swap_b32 v4, v5")
            e(f"{op} v4, v4, v5")
            e("v_mov_b32 v5, v4")
            e("s_nop 1")
            e("v_permlane32_swap_b32 v4, v5")
            e(f"{op} v4, v4, v5                        ; lane 16a+8b+c: element 2b+a of piece c")
            if kind == 0:
                e("s_branch L_rpub")
        e("L_rpub:")
        e("v_and_or_b32 v4, v4, -16, v23")
        for k in range(o.qcopy // 2):
            e(f"buffer_store_dword v4, v3, s[{S_WS}:{S_WS + 3}], s{S_W + k} offen sc1")
            if k == 0:
                self.stamp(9)
        if o.clean == "r":
            e("; this wave was the only reader of these lines: write them through, so that none stays dirty in L2")
            for i in range(4):
                e(f"v_mov_b32 v{8 + i}, 0")
            for k in range(4):
                e(f"buffer_store_dwordx4 v[8:11], v{V_Q}, s[{S_WS}:{S_WS + 3}], s{S_V + k} offen sc1")
        e("s_barrier")
        e("s_branch L_afterw")

        if o.pad:
            e(f".fill {o.pad // 4}, 4, 0xbf800000")
        e("; ---- waves 0..2 park 32 data registers in LDS to make room for the first layer's operands")
        e("L_spill:")
        e(f"s_lshl_b32 s{S_T0}, s{S_WAVE}, 13")
        e(f"v_lshl_add_u32 v{V_AT}, v1, 4, s{S_T0}")
        for k in range(8):
            e(f"ds_write_b128 v{V_AT}, v[{SP0 + 4 * k}:{SP0 + 4 * k + 3}] offset:{L_SPILL + 1024 * k}")
        e("L_barw:")
        if o.tlb:
            e("; wave 5 touches d_out once per region so that the first stores find their translations (values unused)")
            e(f"s_cmp_lg_u32 s{S_WAVE}, 5")
            e("s_cbranch_scc1 L_notlb")
            e(f"v_lshlrev_b32 v2, {o.tlb}, v1")
            e(f"buffer_load_dword v4, v2, s[{S_OUT}:{S_OUT + 3}], 0 offen")
            e("L_notlb:")
        if o.lpf == 1:
            e("; wave 4 pulls the code of the store phase into this die's L2 (values unused)")
            e(f"s_cmp_lg_u32 s{S_WAVE}, 4")
            e("s_cbranch_scc1 L_nolpf")
            e("s_getpc_b64 s[20:21]")
            e("v_lshlrev_b32 v2, 7, v1")
            e("v_min_u32 v2, L_end - L_nolpf, v2")
            e("global_load_dword v4, v2, s[20:21]")
            e("L_nolpf:")
        e("s_waitcnt vmcnt(0) lgkmcnt(0)")
        e("s_barrier")
        e("L_afterw:")
        e("v_bfe_u32 v3, v1, 2, 2")
        e("v_lshl_add_u32 v21, v20, 3, v3            ; row")
        e("v_and_b32 v22, 15, v21                    ; row of the half step (q&1)")
        e("v_and_b32 v3, 3, v1")
        e(f"s_lshl_b32 s{S_T2}, s{S_WAVE}, 5")
        e(f"v_lshl_add_u32 v23, v3, 3, s{S_T2}          ; column bytes")
        e("v_mov_b32 v3, 384")
        e("v_mad_u32_u24 v2, v21, v3, v23")
        e("v_mad_u32_u24 v22, v22, v3, v23")
        e(f"ds_read_b64_tr_b16 v[{B2}:{B2 + 1}], v2 offset:{L_W2}")
        e(f"ds_read_b64_tr_b16 v[{B2 + 2}:{B2 + 3}], v2 offset:{L_W2 + 4 * 384}")
        e(f"ds_read_b64_tr_b16 v[{B2 + 4}:{B2 + 5}], v22 offset:{L_W2 + 32 * 384}")
        e(f"ds_read_b64_tr_b16 v[{B2 + 6}:{B2 + 7}], v22 offset:{L_W2 + 36 * 384}")
        e("; H read addresses: kind*96 + q*16 ; half step: kind*96 + 64 + (q&1)*16")
        e("v_and_b32 v2, 1, v1")
        e("v_mul_u32_u24 v22, 96, v2")
        e(f"v_lshl_add_u32 v{V_H0}, v20, 4, v22")
        e("v_and_b32 v3, 1, v20")
        e(f"v_lshl_add_u32 v{V_H1}, v3, 4, v22")
        e(f"s_lshl_b32 s{S_T0}, s{S_WAVE}, 6")
        e(f"v_lshl_add_u32 v{V_SW}, v1, 2, s{S_T0}")
        if o.mul == "dot":
            e("; a scale sits in the half of its word that faces its channel, the other half is zero")
            e("v_mov_b32 v3, 0")
            e("s_mov_b64 exec, 0xffff")
            e(f"ds_write_b32 v{V_SW}, v3 offset:{L_S}")
            e("s_mov_b64 exec, -1")
            e(f"v_lshl_add_u32 v{V_SW}, v2, 1, v{V_SW}")
        e("v_and_b32 v3, 7, v1")
        e(f"s_lshl_b32 s{S_T0}, s{S_TY}, 8")
        e(f"v_lshl_add_u32 v{V_SR}, v3, 5, s{S_T0}")
        e("s_waitcnt lgkmcnt(0)")
        e("s_mov_b32 exec_lo, 0")
        for i in range(4):
            e(f"v_mov_b32 v{B2 + 4 + i}, 0")
        e("s_mov_b64 exec, -1")
        e(f"s_cmp_ge_u32 s{S_WAVE}, 3")
        e("s_cbranch_scc1 L_noa1")
        e("v_mov_b32 v3, 96")
        e("v_mad_u32_u24 v2, v21, v3, v23")
        for s in range(6):
            for h in range(2):
                r = A1 + 4 * s + 2 * h
                e(f"ds_read_b64_tr_b16 v[{r}:{r + 1}], v2 offset:{L_W1 + s * 3072 + h * 384}")
        e("L_noa1:")
        e(f"v_lshl_add_u32 v3, v20, 3, v22")
        e(f"v_add_u32 v3, s{S_T2}, v3")
        e("v_lshlrev_b32 v2, 2, v22")
        e("v_lshl_add_u32 v2, v20, 4, v2")
        e("v_and_b32 v8, 1, v1")
        e("v_lshlrev_b32 v8, 4, v8")
        e("v_lshl_add_u32 v8, v20, 2, v8")
        e("v_and_b32 v9, 2, v1")
        e("v_bfe_u32 v10, v1, 2, 1")
        e("v_add3_u32 v8, v8, v9, v10")
        e(f"v_add_lshl_u32 v23, v8, s{S_T2}, 1")
        e("; second-stage address: (l>>2)*128 + (l&3)*16 in the copy kept for this die")
        e("v_lshrrev_b32 v8, 2, v1")
        e("v_lshlrev_b32 v8, 7, v8")
        e("v_and_b32 v9, 3, v1")
        e(f"v_lshl_add_u32 v{V_Q}, v9, 4, v8")
        e(f"s_and_b32 s{S_T0}, s{S_QC}, 4")
        if o.qcopy > 2:
            e(f"s_and_b32 s{S_CNT}, s{S_QC}, {o.qcopy // 2 - 1}")
            e(f"s_mul_i32 s{S_CNT}, s{S_CNT}, 24")
            e(f"s_add_u32 s{S_T0}, s{S_T0}, s{S_CNT}")
        e(f"s_lshr_b32 s{S_T1}, s{S_WAVE}, 2")
        e(f"s_lshl2_add_u32 s{S_T1}, s{S_T1}, s{S_WAVE}")
        e(f"s_add_u32 s{S_T1}, s{S_T1}, s{S_T0}")
        e(f"s_lshl_b32 s{S_T1}, s{S_T1}, 11")
        e(f"s_add_u32 s{S_T1}, s{S_T1}, {WS_Q}")
        if o.clean in ("q", "p", "a", "h", "g"):
            if o.cfull:
                for i in range(4):
                    e(f"v_mov_b32 v{16 + i}, s{S_TG[i]}")
                e("v_lshlrev_b32 v22, 4, v1")
            else:
                e(f"v_mov_b32 v19, s{S_TG[0]}")
            e(f"s_lshl_b32 s{S_V}, s{S_WAVE}, 7")
            e(f"s_add_u32 s{S_V}, s{S_V}, s{S_PO}")
        e(f"s_mov_b32 s{S_CNT}, {NFB}")
        e(f"s_mov_b32 s{S_HOOK}, 0")
        e(f"s_cmp_lt_u32 s{S_WAVE}, 6")
        e("s_cbranch_scc1 L_qpoll0")

        def clean1():
            e("; the reducer of line w is done: a write-through keeps this workgroup's line from staying dirty in L2")
            if o.cfull:
                e("s_mov_b64 exec, 0xff")
                e(f"buffer_store_dwordx4 v[16:19], v22, s[{S_WS}:{S_WS + 3}], s{S_V} offen sc1")
            else:
                e("s_mov_b64 exec, 1")
                e(f"buffer_store_dword v19, off, s[{S_WS}:{S_WS + 3}], s{S_V} sc1")
            e("s_mov_b64 exec, -1")

        for kind in (1, 0):
            op = "v_add_f32" if kind == 0 else "v_max_f32"
            if o.q2:
                def qld(r):
                    e(f"buffer_load_dwordx4 v[{r}:{r + 3}], v{V_Q}, s[{S_WS}:{S_WS + 3}], s{S_T1} offen sc1")

                def qchk(r):
                    e("s_waitcnt vmcnt(1)")
                    for i in range(4):
                        e(f"v_xor_b32 v{4 + i}, s{S_TG[i]}, v{r + i}")
                    e("v_or3_b32 v21, v4, v5, v6")
                    e("v_bitop3_b32 v21, v21, v7, 15 bitop3:0xa8")
                    e("v_cmp_ne_u32 vcc, 0, v21")
                    e("s_wqm_b64 exec, vcc")
                e(f"L_qpoll{kind}:")
                qld(8)
                e(f"s_sleep {o.q2}")
                e(f"L_qloop{kind}:")
                qld(12)
                e(f"s_sub_u32 s{S_CNT}, s{S_CNT}, 1")
                e(f"s_cbranch_scc1 L_qlong{kind}")
                qchk(8)
                e(f"s_cbranch_scc0 L_qgot{kind}")
                qld(8)
                qchk(12)
                e(f"s_cbranch_scc1 L_qloop{kind}")
            else:
                e(f"L_qpoll{kind}:")
                e(f"buffer_load_dwordx4 v[4:7], v{V_Q}, s[{S_WS}:{S_WS + 3}], s{S_T1} offen sc1")
                e(f"s_sub_u32 s{S_CNT}, s{S_CNT}, 1")
                e(f"s_cbranch_scc1 L_qlong{kind}")
                if o.qsleep:
                    e(f"s_sleep {o.qsleep}")
                e("s_waitcnt vmcnt(0)")
                for i in range(4):
                    e(f"v_xor_b32 v{4 + i}, s{S_TG[i]}, v{4 + i}")
                e("v_or3_b32 v21, v4, v5, v6")
                e("v_bitop3_b32 v21, v21, v7, 15 bitop3:0xa8")
                e("v_cmp_ne_u32 vcc, 0, v21")
                e("s_wqm_b64 exec, vcc")
                e(f"s_cbranch_scc1 L_qpoll{kind}")
            e(f"L_qgot{kind}:")
            if o.clean == "p":
                e("s_mov_b64 exec, 1")
                e(f"buffer_store_dword v19, off, s[{S_WS}:{S_WS + 3}], s{S_V} sc1")
            e("s_mov_b64 exec, -1")
            self.stamp(5)
            e("v_permlane32_swap_b32 v4, v6")
            e("v_permlane32_swap_b32 v5, v7")
            e(f"{op} v4, v4, v6")
            e(f"{op} v5, v5, v7")
            e("s_nop 1")
            e("v_permlane16_swap_b32 v4, v5")
            e(f"{op} v4, v4, v5")
            e(f"s_cmp_ge_u32 s{S_WAVE}, 3")
            e("s_nop 0")
            e(f"{op}_dpp v4, v4, v4 row_ror:8 row_mask:0xf bank_mask:0xf")
            if kind == 0:
                e("v_mul_f32 v4, 0x36800000, v4              ; 1/262144")
            e("v_cvt_pk_bf16_f32 v4, v4, v4")
            e(f"ds_write_b16 v23, v4 offset:{L_F}")
            if o.q2:
                e("s_waitcnt vmcnt(0)")
            if o.clean == "q" or (o.clean == "h" and kind == 1) or (o.clean == "g" and kind == 0):
                clean1()
            e("s_waitcnt lgkmcnt(0)")
            e("s_barrier")
            if kind == 1:
                if o.clean in ("a", "g"):
                    clean1()
                e("s_branch L_join")
            else:
                e("s_cbranch_scc1 " + ("L_clean0" if o.clean in ("a", "h") else "L_join"))

        e("; ---- waves 0..2: first MLP layer")
        e("L_mlp1:")
        for s in range(6):
            e(f"ds_read_b128 v[{B1[s]}:{B1[s] + 3}], v2 offset:{L_F + 64 * s}")
        if o.clean in ("a", "h"):
            clean1()
        for s in range(6):
            c = "0" if s == 0 else "v[20:23]"
            b = B1[s]
            e(f"s_waitcnt lgkmcnt({5 - s})")
            e(f"v_mfma_f32_16x16x32_bf16 v[20:23], v[{A1 + 4 * s}:{A1 + 4 * s + 3}], v[{b}:{b + 3}], {c}")
        e("s_nop 3")
        e("s_mov_b32 exec_lo, 0x00030003")
        e("s_mov_b32 exec_hi, 0x00030003")
        e("s_nop 1")
        for i in range(4):
            e(f"v_maximum3_f32 v{20 + i}, v{20 + i}, 0, 0")
        e("v_cvt_pk_bf16_f32 v20, v20, v21")
        e("v_cvt_pk_bf16_f32 v21, v22, v23")
        e(f"ds_write_b64 v3, v[20:21] offset:{L_H}")
        e("s_mov_b64 exec, -1")
        e("s_waitcnt lgkmcnt(0)")

        e("L_join:")
        e("s_barrier")
        self.stamp(6)
        e(f"ds_read_b128 v[4:7], v{V_H0} offset:{L_H}")
        e(f"ds_read_b128 v[8:11], v{V_H1} offset:{L_H + 64}")
        e("s_waitcnt lgkmcnt(1)")
        e(f"v_mfma_f32_16x16x32_bf16 v[12:15], v[4:7], v[{B2}:{B2 + 3}], 0")
        e("s_waitcnt lgkmcnt(0)")
        e(f"v_mfma_f32_16x16x32_bf16 v[12:15], v[8:11], v[{B2 + 4}:{B2 + 7}], v[12:15]")
        e("s_mov_b64 exec, 0xffff")
        e("s_nop 6")
        e("v_cvt_pk_bf16_f32 v12, 0, v12")
        e("v_cvt_pk_bf16_f32 v13, 0, v13")
        e("v_add_f32 v12, v12, v13")
        e("v_cvt_pk_bf16_f32 v12, 0, v12")
        e("v_mul_f32 v12, 0xbfb8aa3b, v12            ; -log2(e)")
        e("v_exp_f32 v12, v12")
        e("s_nop 0")
        e("v_add_f32 v12, 1.0, v12")
        e("v_rcp_f32 v12, v12")
        e("s_nop 0")
        if o.mul == "dot":
            e("v_cvt_pk_bf16_f32 v12, v12, v12")
            e(f"ds_write_b16 v{V_SW}, v12 offset:{L_S}")
        else:
            e("v_cvt_pk_bf16_f32 v12, 0, v12")
            e(f"ds_write_b32 v{V_SW}, v12 offset:{L_S}")
        e("s_mov_b64 exec, -1")
        e("s_waitcnt lgkmcnt(0)")
        e("s_barrier")
        e(f"ds_read_b128 v[4:7], v{V_SR} offset:{L_S}")
        e(f"ds_read_b128 v[8:11], v{V_SR} offset:{L_S + 16}")

        e("; ---- scale and store")
        if o.stlim:
            e(f"s_cmp_lt_u32 s2, {o.stlim}")
            e(f"s_cselect_b32 s{S_OUT + 2}, s{S_OUT + 2}, 0")
        zorder = [int(v) for v in o.zorder.split(",")]
        assert sorted(zorder) == list(range(16))
        restored = False
        late = []

        def wbl2():
            wv, lim, pos = [int(v) for v in o.wb.split(",")]
            e(f"s_cmp_lt_u32 s{S_WAVE}, {wv}")
            e("s_cbranch_scc1 L_nowb")
            e(f"s_cmp_ge_u32 s2, {lim}")
            e("s_cbranch_scc1 L_nowb")
            if pos == 33:
                e("s_waitcnt vmcnt(0)")
            e("buffer_wbl2 sc1")
            e("L_nowb:")
        jorder = [int(v) for v in o.jorder.split(",")] if o.jorder else [2 * z + u for z in zorder for u in (0, 1)]
        assert sorted(jorder) == list(range(32))
        self.pz = None
        for n, j in enumerate(jorder):
            a = D0 + 4 * j
            t0 = 12 + 8 * (n & 1)
            if a >= SP0 and not restored:
                assert n > 1
                e("s_waitcnt lgkmcnt(0)")
                restored = True
            md = o.mul
            for i in range(4 if md in ("pk", "mul", "u", "um") else 0):
                t = t0 + 2 * i
                e(f"v_lshlrev_b32 v{t}, 16, v{a + i}")
                e(f"v_and_b32 v{t + 1}, s{S_MASK}, v{a + i}")
            if n == 0:
                e("s_waitcnt lgkmcnt(0)")
                self.stamp(7)
            if o.al:
                e(f".p2align {o.al & 15}")
                if o.al >> 4:
                    e("s_nop 0")
            for i in range(4):
                t = t0 + 2 * i
                if md in ("pk", "um"):
                    e(f"v_pk_mul_f32 v[{t}:{t + 1}], v[{t}:{t + 1}], v[{4 + 2 * i}:{5 + 2 * i}]")
                if md == "mul":
                    e(f"v_mul_f32 v{t}, v{t}, v{4 + 2 * i}")
                    e(f"v_mul_f32 v{t + 1}, v{t + 1}, v{5 + 2 * i}")
                if md == "dot":
                    e(f"v_dot2_f32_bf16 v{t}, v{a + i}, v{4 + 2 * i}, 0")
                    e(f"v_dot2_f32_bf16 v{t + 1}, v{a + i}, v{5 + 2 * i}, 0")
            for i in range(4):
                t = t0 + 2 * i
                if md in ("pk", "mul", "dot"):
                    e(f"v_cvt_pk_bf16_f32 v{a + i}, v{t}, v{t + 1}")
                if md == "c":
                    e(f"v_cvt_pk_bf16_f32 v{a + i}, v{a + i}, v{a + (i ^ 1)}")
            def st(j=j, a=a, n=n):
                self.mem(j, lambda va, so: e(f"buffer_store_dwordx4 v[{a}:{a + 3}], {va}, s[{S_OUT}:{S_OUT + 3}], {so} offen{'' if n >= 32 - o.nplain else stf}"))
            if n < o.burst:
                st()
            else:
                late.append(st)
            if n == 31:
                for f in late:
                    f()
            if o.xfer and n == o.xspos:
                e(f"s_cmp_lg_u32 s{S_XR}, 2")
                e("s_cbranch_scc1 L_nox4")
                e(f"ds_read_b128 v[28:31], v{V_AT}")
                e(f"v_xad_u32 v32, v{V_G1}, s{S_XP}, v{V_L}")
                e("s_waitcnt lgkmcnt(0)")
                for i in range(4):
                    e(f"v_dot2_f32_bf16 v{12 + 2 * i}, v{28 + i}, v{4 + 2 * i}, 0")
                    e(f"v_dot2_f32_bf16 v{13 + 2 * i}, v{28 + i}, v{5 + 2 * i}, 0")
                for i in range(4):
                    e(f"v_cvt_pk_bf16_f32 v{28 + i}, v{12 + 2 * i}, v{13 + 2 * i}")
                e(f"buffer_store_dwordx4 v[28:31], v32, s[{S_OUT}:{S_OUT + 3}], s{S_XO} offen{stf}")
                e("L_nox4:")
            if n + 1 in o.sbar:
                e("s_barrier")
            if o.sthr and n >= o.sthr:
                e(f"s_waitcnt vmcnt({o.sthr - 1})")
            if o.wb and int(o.wb.split(",")[2]) == n:
                wbl2()
            if n & 1:
                self.trace("st", n >> 1)
            if n == 1:
                e(f"s_cmp_ge_u32 s{S_WAVE}, 3")
                e("s_cbranch_scc1 L_norestore")
                for k in range(8):
                    e(f"ds_read_b128 v[{SP0 + 4 * k}:{SP0 + 4 * k + 3}], v{V_AT} offset:{L_SPILL + 1024 * k}")
                e("L_norestore:")
                if o.clean == "st":
                    clean("L_noclean", 28, 32)
                    e("L_noclean:")
        if o.clean == "e":
            clean("L_noclean", 28, 32)
            e("L_noclean:")
        if o.wb and int(o.wb.split(",")[2]) >= 32:
            wbl2()
        if o.stamps:
            self.stamp(8)
            e("s_waitcnt vmcnt(0)")
            self.stamp(10)
            if o.idleclk:
                e("; wave 11 idles 40 us, then measures the clock over another 20 us into slots 1,2 / 3,6")
                e(f"s_cmp_lg_u32 s{S_WAVE}, 11")
                e("s_cbranch_scc1 L_noidle")
                for lbl, dur, m, r in (("a", o.idleclk, 1, 3), ("b", 2000, 2, 6)):
                    e("s_memrealtime s[96:97]")
                    e("s_waitcnt lgkmcnt(0)")
                    e(f"L_idle{lbl}:")
                    e("s_sleep 4")
                    e("s_memrealtime s[98:99]")
                    e("s_waitcnt lgkmcnt(0)")
                    e("s_sub_u32 s98, s98, s96")
                    e(f"s_cmp_lt_u32 s98, {dur}")
                    e(f"s_cbranch_scc1 L_idle{lbl}")
                    e(f"s_memtime s[{S_STAMP + 2 * m}:{S_STAMP + 2 * m + 1}]")
                    e(f"s_memrealtime s[{S_STAMP + 2 * r}:{S_STAMP + 2 * r + 1}]")
                e("L_noidle:")
            e("s_getreg_b32 s94, hwreg(HW_REG_XCC_ID)")
            e("s_getreg_b32 s95, hwreg(HW_REG_HW_ID)")
            e("s_waitcnt lgkmcnt(0)")
            e("v_mov_b32 v2, 0")
            for i in range(11 if o.trace else 14):
                e(f"v_writelane_b32 v2, s{S_STAMP + 2 * i}, {i}")
            e("v_writelane_b32 v2, s94, 14")
            e("v_writelane_b32 v2, s95, 15")
            e(f"s_mul_i32 s{S_T0}, s2, 12")
            e(f"s_add_u32 s{S_T0}, s{S_T0}, s{S_WAVE}")
            e(f"s_lshl_b32 s{S_T0}, s{S_T0}, 6")
            e(f"s_add_u32 s{S_T0}, s{S_T0}, {WS_STAMP}")
            e("v_mbcnt_lo_u32_b32 v3, -1, 0")
            e("v_lshlrev_b32 v3, 2, v3")
            e("s_mov_b64 exec, 0xffff")
            e(f"buffer_store_dword v2, v3, s[{S_WS}:{S_WS + 3}], s{S_T0} offen sc1")
            if o.trace:
                e("s_mov_b32 s91, s92")
                for i in range(16):
                    e(f"v_writelane_b32 v2, s{76 + i}, {i}")
                e(f"s_add_u32 s{S_T0}, s{S_T0}, {1 << 19}")
                e(f"buffer_store_dword v2, v3, s[{S_WS}:{S_WS + 3}], s{S_T0} offen sc1")
        if o.dbgptr:
            e("s_cmp_lg_u32 s2, 0")
            e("s_cbranch_scc1 L_nodp")
            e("s_mov_b64 exec, -1")
            e("v_mov_b32 v2, 0")
            for i, r in enumerate((4, 5, 8, 9, 12, 13, 16, 17, 0, 1)):
                e(f"v_writelane_b32 v2, s{r}, {i}")
            e("v_mbcnt_lo_u32_b32 v3, -1, 0")
            e("v_lshlrev_b32 v3, 2, v3")
            e("s_mov_b64 exec, 0x3ff")
            e(f"buffer_store_dword v2, v3, s[{S_DBG}:{S_DBG + 3}], 0 offen offset:8")
            e("L_nodp:")
        if o.probe:
            idx, K = [int(v) for v in o.probe.split(",")]
            if idx == -6:
                pass
            elif idx == -5:
                e("; skew probe: after the stamps are out, workgroups 0..7 read workgroup 0's entry stamp")
                e("s_cmp_ge_u32 s2, 8")
                e("s_cbranch_scc1 L_end")
            elif idx == -2:
                e("s_getreg_b32 s94, hwreg(HW_REG_XCC_ID)")
                e("s_xor_b32 s94, s94, s2")
                e("s_and_b32 s94, s94, 7")
                e("s_cbranch_scc0 L_end")
            elif idx == -3:
                e("s_cmp_lg_u32 s2, 0")
                e("s_cbranch_scc1 L_end")
            else:
                e(f"s_cmp_lg_u32 s2, {o.pwg}")
                e("s_cbranch_scc1 L_end")
            e(f"s_cmp_lg_u32 s{S_WAVE}, {o.pwave}")
            e("s_cbranch_scc1 L_end")
            if idx == -6:
                e("; every workgroup stays K times its own whole duration")
                e(f"s_sub_u32 s96, s{S_STAMP + 20}, s{S_STAMP}")
                e(f"s_mul_i32 s96, s96, {K}")
            elif idx == -5:
                e("s_mov_b32 s96, 0")
                e("L_sk:")
                e("s_sleep 100")
                e("s_add_u32 s96, s96, 1")
                e("s_cmp_lt_u32 s96, 4")
                e("s_cbranch_scc1 L_sk")
                e(f"s_mov_b32 s94, {WS_STAMP}")
                e(f"buffer_load_dword v4, off, s[{S_WS}:{S_WS + 3}], s94 sc1")
                e("s_waitcnt vmcnt(0)")
                e("v_readfirstlane_b32 s94, v4")
                e(f"s_sub_u32 s95, s{S_STAMP}, s94")
                e(f"s_mul_i32 s95, s95, {K - 1}")
                e("s_add_u32 s96, s95, 8000")
            elif idx == -4:
                e("; report the shader clock of phase K (0 read, 1 write): stay 50us + (MHz - 1800) * 0.2us")
                c0, c1, r0, r1 = ((11, 12, 0, 7), (12, 13, 7, 10))[K]
                e(f"s_sub_u32 s94, s{S_STAMP + 2 * c1}, s{S_STAMP + 2 * c0}")
                e(f"s_sub_u32 s95, s{S_STAMP + 2 * r1}, s{S_STAMP + 2 * r0}")
                e("v_cvt_f32_u32 v4, s94")
                e("v_cvt_f32_u32 v5, s95")
                e("v_rcp_f32 v5, v5")
                e("s_nop 1")
                e("v_mul_f32 v4, v4, v5")
                e("v_mul_f32 v4, 0x44fa0000, v4")
                e("v_cvt_u32_f32 v4, v4")
                e("s_nop 1")
                e("v_readfirstlane_b32 s96, v4")
                e("s_sub_u32 s96, s96, 31000")
            elif idx <= -10:
                e("; report 7 bits (from bit K) of an SGPR: (-idx - 10) names the register")
                e(f"s_bfe_u32 s94, s{-idx - 10}, {(7 << 16)} + {K}")
                e("s_mul_i32 s96, s94, 200")
                e("s_add_u32 s96, s96, 5000")
            elif idx == -3:
                e("s_getreg_b32 s94, hwreg(HW_REG_XCC_ID)")
                e("s_and_b32 s94, s94, 7")
                e(f"s_mul_i32 s96, s94, {K}")
                e("s_add_u32 s96, s96, 5000")
            elif idx < 0:
                e(f"s_mov_b32 s96, {K}")
            else:
                e(f"s_sub_u32 s96, s{S_STAMP + 2 * idx}, s{S_STAMP + 2 * o.pref}")
                e(f"s_mul_i32 s96, s96, {K}")
                if o.pref:
                    e("s_add_u32 s96, s96, 5000")
            e("s_min_u32 s96, s96, 200000")
            e("L_probe:")
            e("s_memrealtime s[98:99]")
            e("s_waitcnt lgkmcnt(0)")
            e(f"s_sub_u32 s98, s98, s{S_STAMP}")
            e("s_cmp_lt_u32 s98, s96")
            e("s_cbranch_scc1 L_probe")
        e("L_end:")
        e("s_endpgm")

        e("@@ROLE")
        e(".p2align 7")
        e("L_role:")
        e("s_load_dwordx4 s[44:47], s[0:1], 32")
        e(f"s_lshr_b32 s{S_V + 1}, s2, 3")
        e(f"s_and_b32 s{S_T1}, s2, 1")
        e(f"s_lshl1_add_u32 s{S_T1}, s{S_T1}, 1")
        e(f"s_mul_i32 s{S_T2}, s2, 0x104100")
        e(f"s_cmp_eq_u32 s2, {NVOTE_WG}")
        e("s_waitcnt lgkmcnt(0)")
        e("s_cbranch_scc1 L_tag")
        e(f"s_sub_u32 s{S_T0}, s{S_OUT}, s{S_X}")
        e(f"s_addk_i32 s{S_T0}, 2048")
        e(f"s_bitcmp1_b32 s{S_T0}, 12")
        e(f"s_cselect_b32 s{S_V}, {o.qout}, {o.qgen}")
        e(f"s_cselect_b32 s{S_V + 2}, s{S_V + 1}, 1")
        e(f"s_cmp_eq_u32 s{S_V + 2}, 2")
        e(f"s_cselect_b32 s{S_V + 1}, s{S_T1}, s{S_V + 1}")
        e(f"s_bitcmp1_b32 s{S_V + 1}, 0")
        e(f"s_cselect_b64 s[{S_W}:{S_W + 1}], s[8:9], s[4:5]")
        e(f"s_lshr_b32 s{S_T1}, s{S_V + 1}, 1")
        e(f"s_lshl_b32 s{S_T1}, s{S_T1}, 25" if o.bfirst else f"s_lshl_b32 s{S_T1}, 0x2000000, s{S_T1}")
        e(f"s_add_u32 s{S_T2}, s{S_T2}, s{S_T1}")
        e(f"s_lshr_b32 s{S_T0}, s{S_OUT}, 7")
        e(f"s_mul_i32 s{S_T0}, s{S_T0}, 21")
        e(f"s_and_b32 s{S_T0}, s{S_T0}, 63")
        e(f"s_mulk_i32 s{S_T0}, 384")
        e(f"s_add_u32 s{S_T0}, s{S_T0}, s{S_T2}")
        e(f"s_cmp_lg_u32 s{S_V + 2}, 0")
        e(f"s_cselect_b32 s{S_V + 3}, s{S_OUT}, 0")
        e("s_cbranch_scc1 L_notws")
        e(f"s_mov_b64 s[{S_W}:{S_W + 1}], s[46:47]")
        e(f"s_mov_b32 s{S_V}, {o.qws}")
        e(f"s_and_b32 s{S_T0}, s{S_T2}, 0xfffff")
        e(f"s_add_u32 s{S_T0}, s{S_T0}, {WS_PROBE}")
        e("L_notws:")
        e(f"s_add_u32 s{S_T1}, s{S_T0}, 8192")
        self.stamp(1, True)
        e(f"s_load_dword s42, s[{S_W}:{S_W + 1}], s{S_T0} glc")
        e(f"s_load_dword s43, s[{S_W}:{S_W + 1}], s{S_T1} glc")
        e(f"s_mov_b32 s{S_CNT}, {-(NRACE // 2)}")
        if o.dpf:
            e(f"s_load_dword s23, s[44:45], 192 glc")
        for k in range(NRACE):
            e("s_waitcnt lgkmcnt(0)")
            if k < 2:
                self.stamp(2 + k, True)
                if o.vdiag:
                    e("s_waitcnt lgkmcnt(0)")
            first, second = (S_T0, S_T1) if k % 2 == 0 else (S_T1, S_T0)
            e(f"s_load_dword s42, s[{S_W}:{S_W + 1}], s{first} glc")
            e(f"s_load_dword s43, s[{S_W}:{S_W + 1}], s{second} glc")
            e("s_waitcnt lgkmcnt(1)")
            e("s_nop 7")
            e(f"s_getreg_b32 s{S_T2}, hwreg(HW_REG_IB_STS, 8, 4)   ; 1: the second answer is still out")
            if k % 2 == 0:
                e(f"s_xor_b32 s{S_T2}, s{S_T2}, 1")
            e(f"s_add_u32 s{S_CNT}, s{S_CNT}, s{S_T2}")
        assert NRACE % 2 == 0 and o.qout <= 12 and o.qws <= 8 and o.qgen <= 8 and NVOTE_WG == 32
        e(f"s_sub_u32 s{S_T2}, 0, s{S_CNT}")
        e(f"s_add_u32 s{S_T0}, s{S_T0}, s{S_V + 3}")
        e(f"s_lshr_b32 s{S_T0}, s{S_T0}, 19")
        e(f"s_getreg_b32 s{S_T1}, hwreg(HW_REG_XCC_ID, 0, 3)")
        e(f"s_xor_b32 s{S_T0}, s{S_T0}, s{S_T1}")
        e(f"s_bitcmp1_b32 s{S_T0}, 2")
        e(f"s_cselect_b32 s{S_CNT}, s{S_T2}, s{S_CNT}")
        e(f"s_lshl_b32 s{S_CNT}, s{S_CNT}, 8")
        e(f"s_or_b32 s{S_CNT}, s{S_CNT}, 1")
        e(f"s_mov_b32 s{S_T1}, s{S_CNT}")
        e(f"s_lshl2_add_u32 s{S_T0}, s{S_V + 1}, {DBG_TAL}")
        self.stamp(6, True)
        e(f"s_atomic_add s{S_T1}, s[44:45], s{S_T0} glc")
        e(f"s_mul_i32 s{S_T2}, s{S_V + 1}, 6")
        e("s_waitcnt lgkmcnt(0)")
        e(f"s_add_u32 s{S_T1}, s{S_T1}, s{S_CNT}")
        self.stamp(13)
        e(f"s_and_b32 s{S_T0}, s{S_T1}, 0xff")
        e(f"s_cmp_lg_u32 s{S_T0}, s{S_V}")
        e("s_cbranch_scc1 L_stream")
        e("; exactly one voter completes the tally's quorum: it publishes bit 11+6t (known) and bit 12+6t (margin > 0)")
        e(f"s_cmp_gt_i32 s{S_T1}, 0xff")
        e(f"s_cselect_b32 s{S_T1}, 3, 1")
        e(f"s_add_u32 s{S_T2}, s{S_T2}, 11")
        e(f"s_lshl_b32 s{S_T1}, s{S_T1}, s{S_T2}")
        e("L_publish:")
        e(f"s_atomic_add s{S_T1}, s[44:45], {DBG_RES}")
        e("s_waitcnt lgkmcnt(0)")
        e("s_branch L_stream")

        e("; ---- one wave draws this launch's hand-off tag: different from the one the last launch left behind")
        e("L_tag:")
        e(f"s_mov_b32 s{S_T1}, 1")
        e("s_waitcnt lgkmcnt(0)")
        e(f"s_atomic_add s{S_T1}, s[46:47], {WS_E} glc")
        e("s_waitcnt lgkmcnt(0)")
        e(f"s_add_u32 s{S_T1}, s{S_T1}, 1")
        e(f"s_and_b32 s{S_T1}, s{S_T1}, 0xff")
        e(f"s_bitset1_b32 s{S_T1}, 8")
        assert NVOTE_WG % 8 == 0
        e(f"s_getreg_b32 s{S_T0}, hwreg(HW_REG_XCC_ID, 0, 3)")
        e(f"s_lshl_b32 s{S_T0}, s{S_T0}, 13")
        e(f"s_or_b32 s{S_T1}, s{S_T1}, s{S_T0}")
        self.stamp(13)
        e("s_branch L_publish")

        e("@@RARE")
        e("; ---- a wait has lasted: the group's reducers may sit on another die, so write this")
        e(";      workgroup's first-stage lines through to memory")
        if o.clean in ("a", "h"):
            e("L_clean0:")
            clean1()
            e("s_branch L_join")
        for nm in ("r", "q0", "q1"):
            k = nm[1:]
            e(f"L_{nm[0]}long{k}:")
            e("s_waitcnt vmcnt(0)")
            e(f"s_cmp_lg_u32 s{S_HOOK}, 0")
            e(f"s_cbranch_scc1 L_{nm[0]}got{k}")
            e(f"s_call_b64 s[{S_RET}:{S_RET + 1}], L_flush")
            e(f"s_branch L_{nm[0]}poll{k}")
        e("L_flush:")
        e(f"s_mov_b32 s{S_CNT}, {SPIN}")
        e(f"s_mov_b32 s{S_HOOK}, {SPIN}")
        e("s_mov_b32 exec_lo, -1")
        e("s_mov_b32 exec_hi, 0xffff")
        e("v_lshlrev_b32 v13, 4, v1")
        e("L_floop:")
        e(f"buffer_load_dwordx4 v[8:11], v13, s[{S_WS}:{S_WS + 3}], s{S_PO} offen sc1")
        e(f"buffer_load_dwordx4 v[4:7], v13, s[{S_WS}:{S_WS + 3}], s{S_PO} offen offset:768 sc1")
        e(f"s_sub_u32 s{S_HOOK}, s{S_HOOK}, 1")
        e("s_waitcnt vmcnt(0)")
        e(f"v_xor_b32 v12, s{S_TG[0]}, v8")
        for r in (9, 10, 11, 4, 5, 6, 7):
            e(f"v_bitop3_b32 v12, v12, v{r}, s{S_TG[r & 3]} bitop3:0xf6")
        e("v_and_b32 v12, 15, v12")
        e("v_cmp_ne_u32 vcc, 0, v12")
        e("s_cbranch_scc1 L_fdone")
        e("s_cbranch_vccnz L_floop")
        e("L_fdone:")
        e(f"buffer_store_dwordx4 v[8:11], v13, s[{S_WS}:{S_WS + 3}], s{S_PO} offen sc1")
        e(f"buffer_store_dwordx4 v[4:7], v13, s[{S_WS}:{S_WS + 3}], s{S_PO} offen offset:768 sc1")
        e("s_waitcnt vmcnt(0)")
        e("s_mov_b64 exec, -1")
        e(f"s_mov_b32 s{S_HOOK}, -1")
        e(f"s_setpc_b64 s[{S_RET}:{S_RET + 1}]")

        e("@@DPOLL")
        e("; ---- result not there yet: poll past the scalar cache")
        e("L_dpoll:")
        e(f"s_mov_b32 s{S_CNT}, {SPIN}")
        e(f"v_mov_b32 v{V_AT}, 0")
        e("s_mov_b64 exec, 1")
        e("L_dloop:")
        e(f"buffer_load_dword v{V_AT}, off, s[{S_DBG}:{S_DBG + 3}], 0 offset:{DBG_RES} sc1")
        e(f"s_sleep {o.dsleep}")
        e("s_waitcnt vmcnt(24)")
        e(f"v_readfirstlane_b32 s{S_T2}, v{V_AT}          ; whatever poll has landed last")
        e(f"s_sub_u32 s{S_CNT}, s{S_CNT}, 1")
        e("s_cbranch_scc1 L_dgot")
        e(f"s_andn2_b32 s{S_OFF}, s{S_OK}, s{S_T2}")
        e("s_cbranch_scc1 L_dloop")
        e("L_dgot:")
        e("s_mov_b64 exec, -1")
        e("s_branch L_decided")

        e("@@END")
        L = self.lines
        ix = {k: L.index("    @@" + k) for k in ("ROLE", "RARE", "DPOLL", "END")}
        role, rare, dpoll = L[ix["ROLE"] + 1:ix["RARE"]], L[ix["RARE"] + 1:ix["DPOLL"]], L[ix["DPOLL"] + 1:ix["END"]]
        main = L[:ix["ROLE"]]
        p1, p2 = main.index("    @@HERE1"), main.index("    @@HERE2")
        if o.lay:
            self.lines = (main[:p1] + ["    s_branch L_skip1"] + role + dpoll + ["L_skip1:"] + main[p1 + 1:p2]
                          + ["    s_branch L_tail"] + rare + ["    .p2align 12", "L_tail:"] + main[p2 + 1:])
        else:
            self.lines = main[:p1] + main[p1 + 1:p2] + main[p2 + 1:] + role + rare + dpoll

    def text(self):
        out = HEADER
        out += f"; @launch grid=({NWG},1,1) block=(768,1,1) lds={L_TOTAL}\n"
        out += DOC
        out += '.amdgcn_target "amdgcn-amd-amdhsa--gfx950"\n.text\n'
        out += f".globl {KNAME}\n.p2align 8\n.type {KNAME},@function\n{KNAME}:\n"
        out += "\n".join(self.lines) + "\n"
        out += f""".section .rodata,"a"
.p2align 6
.amdhsa_kernel {KNAME}
  .amdhsa_next_free_vgpr 168
  .amdhsa_next_free_sgpr {100 if self.o.stamps else 96 if self.o.xfer else 56}
  .amdhsa_accum_offset 168
  .amdhsa_group_segment_fixed_size 0
  .amdhsa_kernarg_size 48
  .amdhsa_user_sgpr_count 2
  .amdhsa_user_sgpr_kernarg_segment_ptr 1
  .amdhsa_system_sgpr_workgroup_id_x 1
  .amdhsa_float_denorm_mode_32 3
.end_amdhsa_kernel
"""
        return out


def main():
    p = argparse.ArgumentParser()
    p.add_argument("-o", default="standalone__channel_attn_cbam__vision.s")
    p.add_argument("--ldflags", default="nt")
    p.add_argument("--stflags", default="sc1")
    p.add_argument("--p1flags", default="sc1")
    p.add_argument("--stamps", action="store_true")
    p.add_argument("--probe", default="")
    p.add_argument("--depth", type=int, default=10)
    p.add_argument("--nrace", type=int, default=2)
    p.add_argument("--dsleep", type=int, default=8)
    p.add_argument("--trace", default="")
    p.add_argument("--nodec", action="store_true")
    p.add_argument("--vdiag", action="store_true")
    p.add_argument("--dbgptr", action="store_true")
    p.add_argument("--opp", default="5,9", type=lambda v: [int(x) for x in v.split(",")])
    p.add_argument("--quorum", type=int, default=16)
    p.add_argument("--quorum4", type=int, default=24)
    p.add_argument("--nvote", type=int, default=32)
    p.add_argument("--nagn", type=int, default=6)
    p.add_argument("--stlim", type=int, default=0)
    p.add_argument("--psc1", action="store_true")
    p.add_argument("--pnt", action="store_true")
    p.add_argument("--h6", type=int, default=0)
    p.add_argument("--bfirst", default="")
    p.add_argument("--q2", type=int, default=0)
    p.add_argument("--xfer", type=int, default=0)
    p.add_argument("--xpos", type=int, default=26)
    p.add_argument("--xspos", type=int, default=26)
    p.add_argument("--qout", type=int, default=7)
    p.add_argument("--qws", type=int, default=4)
    p.add_argument("--qgen", type=int, default=5)
    p.add_argument("--jorder", default="12,0,13,1,14,2,15,3,16,4,17,5,18,6,19,7,20,8,21,9,22,10,23,11,24,25,26,27,28,29,30,31")
    p.add_argument("--urot", type=int, default=0)
    p.add_argument("--lmap", type=int, default=0)
    p.add_argument("--qrot", type=int, default=0)
    p.add_argument("--umap", type=int, default=0)
    p.add_argument("--cfull", type=int, default=1)
    p.add_argument("--wtouch", type=int, default=1)
    p.add_argument("--lay", type=int, default=1)
    p.add_argument("--skipfrom", type=int, default=99)
    p.add_argument("--ttail", type=int, default=0)
    p.add_argument("--tlb", type=int, default=0)
    p.add_argument("--rot", type=int, default=0)
    p.add_argument("--pad", type=int, default=0)
    p.add_argument("--lpf", type=int, default=0)
    p.add_argument("--al", type=int, default=0)
    p.add_argument("--cap", type=int, default=0)
    p.add_argument("--capfrom", type=int, default=12)
    p.add_argument("--capto", type=int, default=32)
    p.add_argument("--skewa", type=int, default=1)
    p.add_argument("--skewd", type=int, default=1)
    p.add_argument("--skewc", type=int, default=0)
    p.add_argument("--skew", type=int, default=0, help="timing diagnostic only")
    p.add_argument("--warmfl", default="")
    p.add_argument("--sdiag", action="store_true")
    p.add_argument("--rpf", type=int, default=0)
    p.add_argument("--dpf", type=int, default=0)
    p.add_argument("--pwg", type=int, default=0)
    p.add_argument("--pwave", type=int, default=0)
    p.add_argument("--pref", type=int, default=0)
    p.add_argument("--qshift", type=int, default=32)
    p.add_argument("--rolepos", type=int, default=-1)
    p.add_argument("--prebar", type=int, default=1)
    p.add_argument("--qmap", type=int, default=0)
    p.add_argument("--agnu", type=int, default=4)
    p.add_argument("--warmst", type=int, default=0)
    p.add_argument("--cw", type=int, default=0)
    p.add_argument("--cld", action="store_true")
    p.add_argument("--qflip", type=int, default=0)
    p.add_argument("--qcopy", type=int, default=4)
    p.add_argument("--mul", default="dot")
    p.add_argument("--burst", type=int, default=32)
    p.add_argument("--idleclk", type=int, default=0)
    p.add_argument("--clk", action="store_true")
    p.add_argument("--sthr", type=int, default=0)
    p.add_argument("--sbar", default=[24], type=lambda v: [int(x) for x in v.split(",")])
    p.add_argument("--piece", type=int, default=128)
    p.add_argument("--xbar", default=[20, 24], type=lambda v: [int(x) for x in v.split(",")])
    p.add_argument("--cpf", type=int, default=0)
    p.add_argument("--cpfpos", type=int, default=0)
    p.add_argument("--wpace", type=int, default=40)
    p.add_argument("--clean", default="g")
    p.add_argument("--warm", type=int, default=30)
    p.add_argument("--warmwave", type=int, default=4)
    p.add_argument("--qsleep", type=int, default=0)
    p.add_argument("--red0", type=int, default=8)
    p.add_argument("--redstep", type=int, default=2)
    p.add_argument("--off", default="", help="diagnostics: v = no votes, c = no clears, r = result not read")
    p.add_argument("--spans", default="")
    p.add_argument("--split", action="store_true")
    p.add_argument("--pfback", type=int, default=0)
    p.add_argument("--nplain", type=int, default=0)
    p.add_argument("--wb", default="", help="minwave,wglimit,pos")
    p.add_argument("--thr", type=int, default=2)
    p.add_argument("--thrfrom", type=int, default=12)
    p.add_argument("--thrto", type=int, default=26)
    p.add_argument("--thrmask", default="0x55")
    p.add_argument("--zorder", default="8,0,9,1,10,2,11,3,12,4,13,5,14,6,15,7")
    o = p.parse_args()
    global NAGN, SPANS, NVOTE_WG
    NVOTE_WG = o.nvote
    NAGN = o.nagn
    if NAGN == 6:
        SPANS = [(0, 0), (0, 1), (1, 0), (1, 1), (2, 0), (2, 1),
                 (3, 0), (3, 1), (4, 0), (4, 1), (5, 0), (5, 1), (6, 0), (6, 1), (7, 0), (7, 1)]
        if o.zorder == p.get_default("zorder"):
            o.zorder = "6,0,7,1,8,2,9,3,10,4,11,5,12,13,14,15"
    if o.bfirst:
        st = [int(c) for c in o.bfirst]
        SPANS = [(a, h) for a in st for h in (0, 1)]
        o.agn0 = st[0] * 12 * MiB
    if o.xfer:
        global L_TOTAL
        L_TOTAL = L_X + 12288
        SPANS[14], SPANS[15] = SPANS[15], SPANS[14]
    if o.spans:
        SPANS = [(int(v[0]), int(v[1])) for v in o.spans.split(",")]
        assert sorted(SPANS) == [(a, b) for a in range(8) for b in range(2)]
    g = G(o)
    g.build()
    open(o.o, "w").write(g.text())


if __name__ == "__main__":
    main()
```

```python
import argparse

KNAME = "standalone__channel_attn_cbam__vision_kernel"

HEADER = """; Kernarg layout for this problem (48 bytes, ptrs only, base s[0:1]):
;   offset   0: d_in[0] x  shape=(1, 512, 512, 192) dtype=bfloat16 strides=(100663296, 196608, 384, 2) contiguous=True
;   offset   8: d_in[1] w1  shape=(192, 48) dtype=bfloat16 strides=(96, 2) contiguous=True
;   offset  16: d_in[2] w2  shape=(48, 192) dtype=bfloat16 strides=(384, 2) contiguous=True
;   offset  40: d_ws      402653184 bytes workspace (unspecified values whenever your kernel or launch list starts; a list's later launches find what earlier ones wrote)
"""

X_BYTES = 100663296
NWG = 256
NRED = 12
MiB = 1 << 20

L_RED = 0
L_H = 6144
L_DEC = 6336
L_S = 6400
L_F = 7168
L_W1 = 8192
L_W2 = L_W1 + 18432
L_SPILL = L_W2 + 18432
L_X = L_SPILL + 3 * 8192
L_TOTAL = L_X

WS_P = 0
WS_Q = 256 * 1536
WS_E = WS_Q + 4 * 49152
WS_USED = WS_E + 128
WS_PROBE = 640 * 1024
WS_STAMP = 1 << 20

S_X, S_OUT, S_WS, S_DBG, S_W = 4, 8, 12, 16, 20
S_WAVE, S_TY, S_SUB, S_OFF, S_MASK, S_CNT, S_T0, S_T1 = 28, 29, 30, 31, 32, 33, 34, 35
S_BASE, S_PM, S_P, S_T2 = 48, 49, 50, 51
S_AGN, S_RID, S_PO = 40, 42, 43
S_TG = [41, 47, 3, 0]
S_RET, S_HOOK, S_QC = 38, 46, 1
S_BASE1 = 45
NFB = 48
S_STAMP = 52
S_V = 24

D0 = 40
SPIN = 400000
V_L, V_G0, V_G1, V_AT = 0, 39, 38, 36

NAGN = 8
SPANS = [(0, 0), (0, 1), (1, 0), (1, 1), (2, 0), (2, 1), (3, 0), (3, 1),
         (6, 0), (4, 0), (6, 1), (4, 1), (7, 0), (5, 0), (7, 1), (5, 1)]
W_ROLE = 0
DBG_RES, DBG_TAL = 0, 128
NVOTE_WG = 32
RES_OK = (1 << 8) | (1 << 11) | (1 << 17) | (1 << 29)
S_OK = 44
S_XR, S_XO, S_XP = 92, 93, 91


def mask(pred):
    return sum(1 << z for z, s in enumerate(SPANS) if pred(z, s))


class G:
    def __init__(self, o):
        self.o = o
        self.lines = []

    def e(self, s=""):
        self.lines.append(("    " + s) if s and not s.endswith(":") else s)

    def stamp(self, idx, vote=False):
        if self.o.clk:
            if idx in (11, 12, 13):
                return
            m = {0: 11, 7: 12, 10: 13}.get(idx)
            if m:
                self.e(f"s_memtime s[{S_STAMP + 2 * m}:{S_STAMP + 2 * m + 1}]")
        if vote == "r":
            vote = False
        if self.o.vdiag and idx in (1, 2, 3, 6) and not vote:
            return
        if vote and not self.o.vdiag:
            return
        if self.o.stamps and not (self.o.trace and idx > 10):
            self.e(f"s_memrealtime s[{S_STAMP + 2 * idx}:{S_STAMP + 2 * idx + 1}]")

    def srd(self, d, lo, nbytes):
        e = self.e
        e(f"s_mov_b64 s[{d}:{d + 1}], s[{lo}:{lo + 1}]")
        e(f"s_mov_b32 s{d + 2}, {nbytes}")
        e(f"s_mov_b32 s{d + 3}, 0x20000")

    def span_off(self, z):
        return SPANS[z][0] * 12 * MiB + SPANS[z][1] * 49152

    def mem(self, j, fn):
        e = self.e
        z, u = j >> 1, j & 1
        if z < NAGN:
            if self.o.bfirst:
                off = SPANS[z][0] * 12 * MiB + (j % 4) * 12288 - self.o.agn0
            else:
                off = (j // self.o.agnu) * (self.o.agnu * 3 * MiB - (self.o.skew if self.o.skewa else 0)) + (j % self.o.agnu) * 12288
            so = f"s{S_OFF}" if off else f"s{S_AGN}"
            if off:
                e(f"s_add_u32 s{S_OFF}, s{S_AGN}, {off}")
            if SPANS[z] == (7, 1):
                at = 2 + u
                e(f"v_add_u32 v{at}, {so}, v{V_L}")
                e(f"v_subrev_u32 v{5 - at}, s{S_X + 2}, v{at}")
                e(f"v_min_u32 v{at}, v{at}, v{5 - at}             ; past the end: wrap to the rows the shift skipped")
                fn(f"v{at}", "0")
            else:
                fn(f"v{V_L}", so)
            return
        if getattr(self, "pz", None) != z:
            e(f"s_bitcmp1_b32 s{S_PM}, {z}")
            e(f"s_cselect_b32 s{S_P}, 24576, 0")
            self.pz = z
        e(f"s_add_u32 s{S_OFF}, s{(S_BASE, S_BASE1)[SPANS[z][1]]}, {SPANS[z][0] * 12 * MiB - self.o.skew * (SPANS[z][0] * self.o.skewd + self.o.skewc) + 12288 * u}")
        at = 2 + u
        if self.o.xfer and j == 31:
            e(f"s_cmp_eq_u32 s{S_XR}, 1")
            e(f"s_cselect_b32 s{S_P}, 0x40000000, s{S_P}")
            self.pz = None
        e(f"v_xad_u32 v{at}, v{(V_G0, V_G1)[u]}, s{S_P}, v{V_L}")
        if SPANS[z] == (7, 1):
            e(f"v_add_u32 v{at}, s{S_OFF}, v{at}")
            e(f"v_subrev_u32 v{5 - at}, s{S_X + 2}, v{at}")
            e(f"v_min_u32 v{at}, v{at}, v{5 - at}             ; past the end: wrap to the rows the shift skipped")
            fn(f"v{at}", "0")
        else:
            fn(f"v{at}", f"s{S_OFF}")

    def trace(self, kind, n):
        if self.o.trace == kind:
            if n > 0:
                self.e("s_waitcnt lgkmcnt(0)")
                self.e(f"s_mov_b32 s{76 + n - 1}, s92")
            self.e("s_memrealtime s[92:93]")

    def build(self):
        o, e = self.o, self.e
        NRACE = o.nrace
        ldf = (" " + o.ldflags) if o.ldflags else ""
        stf = (" " + o.stflags) if o.stflags else ""

        self.stamp(0)
        e("s_load_dwordx2 s[4:5], s[0:1], 0          ; x")
        e("s_load_dwordx2 s[8:9], s[0:1], 24         ; out")
        e("v_readfirstlane_b32 s%d, v0" % S_WAVE)
        e("v_and_b32 v1, 63, v0                      ; lane")
        pl = (o.piece // 16).bit_length() - 1
        e(f"v_bfe_u32 v2, v0, {pl}, {6 - pl}")
        e(f"v_mul_u32_u24 v2, {(3 * o.piece, 1536, 768, 384)[o.lmap]}, v2")
        e(f"v_and_b32 v3, {(1 << pl) - 1}, v0")
        e("s_cmpk_ge_u32 s2, %d" % NWG)
        e("s_cbranch_scc1 L_end")
        if o.rot:
            e(f"s_add_u32 s2, s2, {o.rot}")
            e("s_and_b32 s2, s2, 255")
        if o.rolepos < 0:
            e(f"s_lshl2_add_u32 s{S_T1}, s{S_WAVE}, s2")
            e(f"s_cmp_le_u32 s{S_T1}, {NVOTE_WG}              ; wave 0 of the first workgroups has a side job")
            e("s_cbranch_scc1 L_role")
            e("L_stream:")
        if o.lmap == 1:
            e("v_lshl_add_u32 v0, v3, 4, v2")
            e(f"v_lshl_add_u32 v{V_L}, s{S_WAVE}, 1, v0")
            e(f"s_lshr_b32 s{S_WAVE}, s{S_WAVE}, 6")
        elif o.lmap == 3:
            e(f"s_lshr_b32 s{S_TY}, s{S_WAVE}, 8")
            e(f"s_lshr_b32 s{S_WAVE}, s{S_WAVE}, 6")
            e(f"s_and_b32 s{S_SUB}, s{S_WAVE}, 3              ; sub = wave % 4")
            e(f"s_mul_i32 s{S_T0}, s{S_SUB}, 24")
            e(f"s_add_u32 s{S_T0}, s{S_T0}, s{S_TY}")
            e("v_lshl_add_u32 v0, v3, 4, v2")
            e(f"v_lshl_add_u32 v{V_L}, s{S_T0}, 7, v0")
        elif o.lmap == 2:
            e(f"s_lshr_b32 s{S_WAVE}, s{S_WAVE}, 6")
            e(f"s_cmp_ge_u32 s{S_WAVE}, 6")
            e(f"s_cselect_b32 s{S_T0}, 42, 0")
            e(f"s_add_u32 s{S_T0}, s{S_T0}, s{S_WAVE}")
            e("v_lshl_add_u32 v0, v3, 4, v2")
            e(f"v_lshl_add_u32 v{V_L}, s{S_T0}, 7, v0")
        else:
            e(f"s_lshr_b32 s{S_WAVE}, s{S_WAVE}, 6")
            e(f"s_mul_i32 s{S_SUB}, s{S_WAVE}, 43")
            e(f"s_lshr_b32 s{S_SUB}, s{S_SUB}, 7")
            e(f"s_mul_i32 s{S_T0}, s{S_SUB}, {3072 // o.piece - 3}")
            e(f"s_add_u32 s{S_T0}, s{S_T0}, s{S_WAVE}        ; sub*24 + wave % 3")
            e(f"s_lshl_b32 s{S_T0}, s{S_T0}, {pl + 4}")
            e("v_lshl_add_u32 v0, v3, 4, v2")
            e(f"v_add_u32 v{V_L}, s{S_T0}, v0               ; + sub*3072 + (wave % 3)*128")
        if o.umap == 1:
            pass
        elif o.umap >= 2:
            mul, rot = (o.umap >> 4) | 1, o.umap & 7
            e(f"s_lshr_b32 s{S_T1}, s2, 3")
            e(f"s_mul_i32 s{S_T1}, s{S_T1}, {rot}")
            e(f"s_mul_i32 s{S_T0}, s2, {mul}")
            e(f"s_add_u32 s{S_T0}, s{S_T0}, s{S_T1}")
            e(f"s_and_b32 s{S_T0}, s{S_T0}, 7")
            e(f"s_and_b32 s{S_T1}, s2, -8")
            e(f"s_add_u32 s{S_T0}, s{S_T0}, s{S_T1}")
        elif o.qmap == 0:
            e(f"s_and_b32 s{S_T0}, s2, 3")
            e(f"s_bfe_u32 s{S_T1}, s2, 0x10002")
            e(f"s_lshl1_add_u32 s{S_T0}, s{S_T0}, s{S_T1}")
            if o.urot:
                e(f"s_lshr_b32 s{S_T1}, s2, {o.urot & 15}")
                if o.urot >> 4:
                    e(f"s_lshl_b32 s{S_T1}, s{S_T1}, {o.urot >> 4}")
                e(f"s_add_u32 s{S_T0}, s{S_T0}, s{S_T1}")
                e(f"s_and_b32 s{S_T0}, s{S_T0}, 7")
            e(f"s_and_b32 s{S_T1}, s2, -8")
            e(f"s_add_u32 s{S_T0}, s{S_T0}, s{S_T1}")
        else:
            e(f"s_and_b32 s{S_T0}, s2, 7")
            e(f"s_lshl_b32 s{S_T0}, s{S_T0}, 5")
            e(f"s_lshr_b32 s{S_T1}, s2, 3")
            e(f"s_add_u32 s{S_T0}, s{S_T0}, s{S_T1}")
        e(f"s_mul_i32 s{S_AGN}, s{2 if o.umap == 1 else S_T0}, {o.agnu * 12288}")
        if o.bfirst:
            e(f"s_add_u32 s{S_AGN}, s{S_AGN}, {o.agn0}")
        e(f"s_mov_b32 s{S_X + 2}, {X_BYTES}")
        e(f"s_mov_b32 s{S_X + 3}, 0x20000")
        if o.rolepos >= 0:
            e(f"s_lshl_b32 s{S_T1}, s{S_WAVE}, 8")
            e(f"s_or_b32 s{S_T1}, s{S_T1}, s2")
        if o.sdiag:
            self.stamp(6, True)
        e("s_waitcnt lgkmcnt(0)")
        if o.sdiag:
            self.stamp(1, True)
        e(f"s_lshr_b32 s{S_T0}, s{S_OUT}, 7")
        e(f"s_mul_i32 s{S_T0}, s{S_T0}, 21              ; -43 mod 64")
        e(f"s_and_b32 s{S_T0}, s{S_T0}, 63")
        e(f"s_mulk_i32 s{S_T0}, 384")
        e(f"s_add_u32 s{S_AGN}, s{S_AGN}, s{S_T0}")
        assert W_ROLE == 0

        SUM, MAX, T = 4, 12, 20
        DEPTH = o.depth
        seq = []

        def issue(j):
            if j == o.rolepos:
                e(f"s_cmp_le_u32 s{S_T1}, {NVOTE_WG}              ; wave 0 of the first workgroups has a side job")
                e("s_cbranch_scc1 L_role")
                e("L_stream:")
            if o.cpf and j == o.cpfpos:
                e(f"s_sub_u32 s{S_T1}, s{S_T1}, 256")
                e(f"s_cmp_ge_u32 s{S_T1}, {o.cpf}")
                e("s_cbranch_scc1 L_nocpf")
                e("s_getpc_b64 s[20:21]")
                e("v_lshlrev_b32 v2, 7, v1")
                e("v_add_u32 v3, 8192, v2")
                e("v_min_u32 v3, L_codeend - L_nocpf, v3")
                e("global_load_dword v36, v2, s[20:21]")
                e("global_load_dword v37, v3, s[20:21]")
                e("L_nocpf:")
            if j == max(4, o.rolepos):
                e("s_load_dwordx4 s[36:39], s[0:1], 8        ; w1, w2")
                e(f"s_load_dwordx2 s[{S_DBG}:{S_DBG + 1}], s[0:1], 32")
                e(f"s_load_dwordx2 s[{S_WS}:{S_WS + 1}], s[0:1], 40")
                e(f"s_mov_b32 s{S_MASK}, 0xffff0000")
            if j == 2 * NAGN:
                if o.lmap in (1, 2):
                    e(f"s_mul_i32 s{S_SUB}, s{S_WAVE}, 43")
                    e(f"s_lshr_b32 s{S_SUB}, s{S_SUB}, 7")
                if o.lmap != 3:
                    e(f"s_mul_i32 s{S_TY}, s{S_SUB}, 3")
                    e(f"s_sub_u32 s{S_TY}, s{S_WAVE}, s{S_TY}        ; ty = wave % 3")
                e(f"s_mov_b32 s{S_OUT + 2}, s{S_X + 2}")
                e(f"s_mov_b32 s{S_OUT + 3}, s{S_X + 3}")
                e(f"s_mov_b32 s{S_WS + 2}, {(2 << 20) if o.stamps else WS_USED}")
                e(f"s_mov_b32 s{S_WS + 3}, s{S_X + 3}")
                e(f"s_movk_i32 s{S_DBG + 2}, 256")
                e(f"s_mov_b32 s{S_DBG + 3}, s{S_X + 3}")
                e(f"s_movk_i32 s{S_T2}, 24576")
                e(f"v_bfe_u32 v{V_G0}, v{V_L}, 13, 1")
                e(f"v_add_u32 v{V_G1}, 12288, v{V_L}")
                e(f"v_bfe_u32 v{V_G1}, v{V_G1}, 13, 1")
                e(f"v_mul_u32_u24 v{V_G0}, s{S_T2}, v{V_G0}")
                e(f"v_mul_u32_u24 v{V_G1}, s{S_T2}, v{V_G1}")
                e(f"s_lshr_b32 s{S_T0}, s{S_OUT}, 7")
                e(f"s_mul_i32 s{S_T0}, s{S_T0}, 21")
                e(f"s_and_b32 s{S_T0}, s{S_T0}, 63")
                e(f"s_mulk_i32 s{S_T0}, 384")
                e(f"s_lshr_b32 s{S_BASE}, s2, 3")
                if o.qrot:
                    if o.qrot >= 16:
                        e(f"s_lshr_b32 s{S_T1}, s{S_BASE}, {o.qrot - 16}")
                    else:
                        e(f"s_mul_i32 s{S_T1}, s{S_BASE}, {o.qrot}")
                    e(f"s_add_u32 s{S_T1}, s{S_T1}, s2")
                    e(f"s_and_b32 s{S_T1}, s{S_T1}, 3")
                else:
                    e(f"s_and_b32 s{S_T1}, s2, 3")
                if o.qmap == 0:
                    e(f"s_lshl2_add_u32 s{S_BASE}, s{S_BASE}, s{S_T1}")
                else:
                    e(f"s_lshl_b32 s{S_T1}, s{S_T1}, 5")
                    e(f"s_add_u32 s{S_BASE}, s{S_BASE}, s{S_T1}")
                e(f"s_add_u32 s{S_BASE1}, s{S_BASE}, {64 if o.h6 else o.qshift}")
                e(f"s_and_b32 s{S_BASE1}, s{S_BASE1}, 127")
                e(f"s_mul_i32 s{S_BASE}, s{S_BASE}, {49152 if o.h6 else 98304}")
                e(f"s_add_u32 s{S_BASE}, s{S_BASE}, s{S_T0}        ; the pair's first span of a step")
                e(f"s_mul_i32 s{S_BASE1}, s{S_BASE1}, {49152 if o.h6 else 98304}")
                e(f"s_add_u32 s{S_BASE1}, s{S_BASE1}, s{S_T0}")
                e(f"s_add_u32 s{S_BASE1}, s{S_BASE1}, {6 * MiB if o.h6 else 49152}      ; its second span: 3 MiB on, where the memory stacks swap")
                h1 = mask(lambda z, s: s[1] == 1)
                e(f"s_add_u32 s{S_T2}, s{S_T2}, s{S_OUT}")
                e(f"s_add_u32 s{S_T0}, s{S_BASE}, s{S_T2}")
                e(f"s_bfe_i32 s{S_PM}, s{S_T0}, 0x10015")
                e(f"s_add_u32 s{S_T2}, s{S_BASE1}, s{S_T2}")
                e(f"s_xor_b32 s{S_T0}, s{S_T0}, s{S_T2}")
                e(f"s_bfe_i32 s{S_T0}, s{S_T0}, 0x10015")
                e(f"s_and_b32 s{S_T0}, s{S_T0}, {h1}")
                e(f"s_xor_b32 s{S_PM}, s{S_PM}, s{S_T0}")
                m1 = mask(lambda z, s: z >= NAGN and s[0] in ((0, 1) if o.bfirst else (3, 4)))
                z50 = SPANS.index((2 if o.bfirst else 5, 0))
                z51 = SPANS.index((2 if o.bfirst else 5, 1))
                edge = (8 if o.bfirst else 4) * MiB - 24576
                dec = mask(lambda z, s: z >= NAGN)
                e(f"s_cmp_lt_u32 s{S_BASE}, {edge}")
                e(f"s_cselect_b32 s{S_T0}, {1 << z50}, 0")
                e(f"s_or_b32 s{S_T0}, s{S_T0}, {m1}")
                e(f"s_cmp_lt_u32 s{S_BASE1}, {edge}")
                e(f"s_cselect_b32 s{S_T1}, {1 << z51}, 0")
                e(f"s_or_b32 s{S_T0}, s{S_T0}, s{S_T1}            ; third 1")
                e(f"s_xor_b32 s{S_T1}, s{S_T0}, {dec}           ; third 2")
                per, pat = o.opp
                rep = sum(((pat >> (i % per)) & 1) << i for i in range(32))
                e(f"s_lshr_b32 s{S_P}, s2, 3")
                e(f"s_mul_i32 s{S_T2}, s{S_P}, {-(-256 // per)}")
                e(f"s_lshr_b32 s{S_T2}, s{S_T2}, 8")
                e(f"s_mul_i32 s{S_T2}, s{S_T2}, {per}")
                e(f"s_sub_u32 s{S_P}, s{S_P}, s{S_T2}             ; (b >> 3) % {per}")
                e(f"s_lshr_b32 s{S_P}, {rep}, s{S_P}")
                e(f"s_sub_u32 s{S_T2}, s{S_OUT}, s{S_X}")
                e(f"s_add_u32 s{S_T2}, s{S_T2}, 2048")
                e(f"s_bitcmp1_b32 s{S_T2}, 12")
                e(f"s_cselect_b32 s{S_P}, 0, s{S_P}")
                e(f"s_cselect_b32 s{S_OK}, 0, {1 << 23}")
                e(f"s_or_b32 s{S_OK}, s{S_OK}, {RES_OK}       ; the parts of the result word that must be in")
                e(f"s_lshr_b32 s{S_T2}, s2, 3")
                e(f"s_sub_u32 s{S_RID}, s{S_T2}, {o.red0}")
                e(f"s_and_b32 s{S_PO}, s2, 7")
                e(f"s_lshl_b32 s{S_PO}, s{S_PO}, 5")
                e(f"s_add_u32 s{S_PO}, s{S_PO}, s{S_T2}")
                e(f"s_mulk_i32 s{S_PO}, 1536")
                e("s_waitcnt lgkmcnt(0)")
                self.stamp(11)
                e("s_barrier")
                e(f"s_load_dword s{S_T2}, s[{S_DBG}:{S_DBG + 1}], {DBG_RES}")
                e("s_waitcnt lgkmcnt(0)")
                e(f"s_andn2_b32 s{S_CNT}, s{S_OK}, s{S_T2}")
                e("s_cbranch_scc1 L_dpoll")
                e("L_decided:")
                for i in range(4):
                    e(f"s_bitcmp1_b32 s{S_T2}, {7 + 6 * i + 5}")
                    e(f"s_cselect_b32 s{S_V + i}, s{(S_T0, S_T1)[i >> 1]}, 0")
                e(f"s_or_b32 s{S_V}, s{S_V}, s{S_V + 2}")
                e(f"s_or_b32 s{S_V + 1}, s{S_V + 1}, s{S_V + 3}")
                e(f"s_xor_b32 s{S_V}, s{S_V}, s{S_V + 1}")
                e(f"s_and_b32 s{S_V}, s{S_V}, s{S_P}")
                e(f"s_xor_b32 s{S_V}, s{S_V}, s{S_V + 1}")
                e(f"s_xor_b32 s{S_PM}, s{S_PM}, s{S_V}")
                e(f"s_lshr_b32 s{S_QC}, s{S_T2}, 13")
                e(f"s_add_u32 s{S_QC}, s{S_QC}, s2")
                e(f"s_bfe_i32 s{S_V}, s{S_QC}, 0x10002")
                e(f"s_xor_b32 s{S_PM}, s{S_PM}, s{S_V}")
                e(f"s_and_b32 s{S_TG[0]}, s{S_T2}, 15")
                e(f"s_bfe_u32 s{S_TG[1]}, s{S_T2}, 0x40004")
                e(f"s_xor_b32 s{S_TG[2]}, s{S_TG[0]}, 15")
                e(f"s_xor_b32 s{S_TG[3]}, s{S_TG[1]}, 15")
                e(f"s_lshr_b32 s{S_V}, s{S_T2}, 10")
                e(f"s_and_b32 s{S_V}, s{S_V}, 4")
                e(f"s_xor_b32 s{S_QC}, s{S_QC}, s{S_V}           ; bits 2:0: the second-stage copy near this die")
                if o.xfer:
                    assert SPANS[15] == (7, 0)
                    e(f"s_lshr_b32 s{S_T0}, s{S_T2}, 13")
                    e(f"s_add_u32 s{S_T1}, s{S_T0}, s2")
                    e(f"s_and_b32 s{S_XR}, s{S_T1}, 1")
                    e(f"s_sub_u32 s{S_XR}, 2, s{S_XR}")
                    e(f"s_cmp_ge_u32 s{S_WAVE}, {12 - o.xfer}")
                    e(f"s_cselect_b32 s{S_XR}, s{S_XR}, 0")
                    e(f"s_xor_b32 s{S_T1}, s{S_T1}, 1")
                    e(f"s_sub_u32 s{S_T1}, s{S_T1}, s{S_T0}")
                    e(f"s_and_b32 s{S_T1}, s{S_T1}, 3")
                    e(f"s_and_b32 s{S_T0}, s2, 3")
                    e(f"s_sub_u32 s{S_T1}, s{S_T1}, s{S_T0}")
                    e(f"s_mul_i32 s{S_T1}, s{S_T1}, 98304")
                    e(f"s_add_u32 s{S_XO}, s{S_BASE}, s{S_T1}        ; the neighbour's first span of a step")
                    e(f"s_add_u32 s{S_T0}, s{S_OUT}, 24576")
                    e(f"s_add_u32 s{S_T1}, s{S_T0}, s{S_XO}")
                    e(f"s_add_u32 s{S_T0}, s{S_T0}, s{S_BASE}")
                    e(f"s_xor_b32 s{S_T0}, s{S_T0}, s{S_T1}")
                    e(f"s_lshr_b32 s{S_T0}, s{S_T0}, 6")
                    e(f"s_xor_b32 s{S_T0}, s{S_T0}, s{S_PM}")
                    e(f"s_bitcmp1_b32 s{S_T0}, 15")
                    e(f"s_cselect_b32 s{S_XP}, 24576, 0")
                    e(f"s_add_u32 s{S_XO}, s{S_XO}, {7 * 12 * MiB + 12288}")
                if o.wtouch:
                    e("s_load_dword s22, s[36:37], 0")
                    e("s_load_dword s23, s[38:39], 0")
                self.stamp(12)
            if j in o.xbar:
                e("s_barrier")
                if j == o.xbar[-1]:
                    self.stamp(2, "r")
            if o.xfer and j == o.xpos:
                e(f"s_cmp_lg_u32 s{S_XR}, 2")
                e("s_cbranch_scc1 L_nox1")
                e(f"s_lshl_b32 s{S_T0}, s{S_WAVE}, 10")
                e(f"s_add_u32 m0, s{S_T0}, {L_X}")
                e(f"v_xad_u32 v3, v{V_G1}, s{S_XP}, v{V_L}")
                e(f"buffer_load_dwordx4 v3, s[{S_X}:{S_X + 3}], s{S_XO} offen{ldf} lds")
                e("L_nox1:")
            if j == o.warm and o.warmst:
                e(f"s_cmp_ge_u32 s{S_WAVE}, 2")
                e("s_cbranch_scc1 L_nowarm")
                for i in range(4):
                    e(f"v_mov_b32 v{20 + i}, 0")
                e(f"s_mul_i32 s{S_T0}, s{S_WAVE}, 768")
                e(f"v_lshl_add_u32 v3, v1, 4, s{S_T0}")
                e("s_mov_b32 exec_hi, 0xffff")
                e(f"buffer_store_dwordx4 v[20:23], v3, s[{S_WS}:{S_WS + 3}], s{S_PO} offen")
                e("s_mov_b64 exec, -1")
                e("L_nowarm:")
            if j == o.warm and not o.warmst:
                e(f"s_cmp_lg_u32 s{S_WAVE}, {o.warmwave}")
                e("s_cbranch_scc1 L_nowarm")
                e("v_lshlrev_b32 v3, 7, v1")
                e("s_mov_b64 exec, 0xfff")
                e(f"buffer_load_dword v37, v3, s[{S_WS}:{S_WS + 3}], s{S_PO} offen {o.warmfl}")
                e("s_mov_b64 exec, -1")
                if o.lpf == 2:
                    e(f"s_cmp_lg_u32 s{S_RID}, {NRED}")
                    e("s_cbranch_scc1 L_nowarm")
                    e("s_getpc_b64 s[20:21]")
                    if o.lay:
                        e("v_add_u32 v3, L_tail - L_nowarm + 32, v3")
                    e("v_min_u32 v3, L_end - L_nowarm, v3")
                    e("global_load_dword v37, v3, s[20:21]")
                e("L_nowarm:")
            r = D0 + 4 * j
            if o.thr and j == 10:
                e(f"s_getreg_b32 s{S_T0}, hwreg(HW_REG_XCC_ID, 0, 3)")
                e(f"s_lshr_b32 s{S_T0}, {o.thrmask}, s{S_T0}")
                e(f"s_and_b64 vcc, s[{S_T0}:{S_T0 + 1}], 1")
            if o.cap and o.capfrom <= j < o.capto:
                e(f"s_waitcnt vmcnt({o.cap - 1})")
            if o.thr and o.thrfrom <= j < o.thrto:
                e(f"s_cbranch_vccz L_thr{j}")
                e(f"s_waitcnt vmcnt({o.thr - 1})")
                e(f"L_thr{j}:")
            self.mem(j, lambda va, so: e(f"buffer_load_dwordx4 v[{r}:{r + 3}], {va}, s[{S_X}:{S_X + 3}], {so} offen{ldf}"))
            seq.append(j)
            if o.sdiag and j == 0:
                self.stamp(2, True)
            if o.sdiag and j == 2:
                e("s_waitcnt vmcnt(2)")
                self.stamp(3, True)
            if j & 1:
                self.trace("ld", j >> 1)

        def wait_for(j):
            e(f"s_waitcnt vmcnt({len(seq) - 1 - seq.index(j)})")

        def scatter54():
            for base in (MAX, SUM):
                for i in range(4):
                    e(f"v_permlane32_swap_b32 v{base + i}, v{base + 4 + i}")
            for i in range(4):
                e(f"v_max_f32 v{MAX + i}, v{MAX + i}, v{MAX + 4 + i}")
            for i in range(4):
                e(f"v_add_f32 v{SUM + i}, v{SUM + i}, v{SUM + 4 + i}")
            for i in range(2):
                e(f"v_permlane16_swap_b32 v{MAX + i}, v{MAX + 2 + i}")
            for i in range(2):
                e(f"v_permlane16_swap_b32 v{SUM + i}, v{SUM + 2 + i}")
            for i in range(2):
                e(f"v_add_f32 v{SUM + i}, v{SUM + i}, v{SUM + 2 + i}")
            for i in range(2):
                e(f"v_max_f32 v{MAX + i}, v{MAX + i}, v{MAX + 2 + i}")

        nxt = 0
        for jj in range(16):
            while nxt < 32 and nxt < max(2 * jj + DEPTH + 2, 2 * NAGN + 2 if o.prebar else 0):
                issue(nxt)
                nxt += 1
                if nxt == 32:
                    self.stamp(1)
            a, b = D0 + 8 * jj, D0 + 8 * jj + 4
            if jj == 0:
                e("@@HERE1")
            if jj == 15:
                e("@@HERE2")
                e("v_and_b32 v2, 7, v1")
                e("v_lshlrev_b32 v2, 5, v2                   ; (l&7)*32")
                e("v_lshrrev_b32 v3, 4, v1")
                e("v_lshl_add_u32 v2, v3, 3, v2              ; + (l>>4)*8")
                e("v_bfe_u32 v3, v1, 3, 1")
                e("v_mul_u32_u24 v3, 768, v3")
                e(f"s_mul_i32 s{S_T0}, s{S_SUB}, 1536")
                e(f"s_lshl_b32 s{S_T1}, s{S_TY}, 8")
                e(f"s_add_u32 s{S_T0}, s{S_T0}, s{S_T1}")
                e(f"v_add3_u32 v2, v2, v3, s{S_T0}")
                e(f"s_mul_i32 s{S_T0}, s{S_WAVE}, 768")
                e(f"v_lshl_add_u32 v3, v1, 4, s{S_T0}")
                if o.ttail:
                    scatter54()
                    for r in (a, b):
                        wait_for((r - D0) // 4)
                        if r == b:
                            self.stamp(3)
                        C = T + 8
                        e(f"v_mov_b64 v[{C}:{C + 1}], v[{r}:{r + 1}]")
                        e(f"v_mov_b64 v[{C + 2}:{C + 3}], v[{r + 2}:{r + 3}]")
                        e("s_nop 1")
                        e(f"v_permlane32_swap_b32 v{C}, v{C + 2}")
                        e(f"v_permlane32_swap_b32 v{C + 1}, v{C + 3}")
                        e("s_nop 1")
                        e(f"v_permlane16_swap_b32 v{C}, v{C + 1}")
                        e(f"v_permlane16_swap_b32 v{C + 2}, v{C + 3}")
                        for i in range(4):
                            t = T + 2 * i
                            e(f"v_lshlrev_b32 v{t}, 16, v{C + i}")
                            e(f"v_and_b32 v{t + 1}, s{S_MASK}, v{C + i}")
                        e(f"v_pk_add_f32 v[{C}:{C + 1}], v[{T}:{T + 1}], v[{T + 2}:{T + 3}]")
                        e(f"v_pk_add_f32 v[{C + 2}:{C + 3}], v[{T + 4}:{T + 5}], v[{T + 6}:{T + 7}]")
                        e(f"v_max3_f32 v{MAX}, v{MAX}, v{T}, v{T + 2}")
                        e(f"v_pk_add_f32 v[{C}:{C + 1}], v[{C}:{C + 1}], v[{C + 2}:{C + 3}]")
                        e(f"v_max3_f32 v{MAX + 1}, v{MAX + 1}, v{T + 1}, v{T + 3}")
                        e(f"v_pk_add_f32 v[{SUM}:{SUM + 1}], v[{SUM}:{SUM + 1}], v[{C}:{C + 1}]")
                        e(f"v_max3_f32 v{MAX}, v{MAX}, v{T + 4}, v{T + 6}")
                        e(f"v_max3_f32 v{MAX + 1}, v{MAX + 1}, v{T + 5}, v{T + 7}")
                    continue
                def fold(r):
                    for i in range(4):
                        t = T + 2 * i
                        e(f"v_lshlrev_b32 v{t}, 16, v{r + i}")
                        e(f"v_and_b32 v{t + 1}, s{S_MASK}, v{r + i}")
                    for i in range(8):
                        e(f"v_max_f32 v{MAX + i}, v{MAX + i}, v{T + i}")
                    for i in range(4):
                        t, s = T + 2 * i, SUM + 2 * i
                        e(f"v_pk_add_f32 v[{s}:{s + 1}], v[{s}:{s + 1}], v[{t}:{t + 1}]")
                if o.xfer:
                    assert o.xpos <= 28
                    e(f"s_cmp_lg_u32 s{S_XR}, 2")
                    e("s_cbranch_scc1 L_nox2")
                    e(f"s_lshl_b32 s{S_T0}, s{S_WAVE}, 10")
                    e(f"s_add_u32 s{S_T0}, s{S_T0}, {L_X}")
                    e(f"v_lshl_add_u32 v{V_AT}, v1, 4, s{S_T0}")
                    e(f"ds_read_b128 v[28:31], v{V_AT}")
                    e("s_waitcnt lgkmcnt(0)")
                    fold(28)
                    e("L_nox2:")
                for r in (a, b):
                    wait_for((r - D0) // 4)
                    if r == b:
                        self.stamp(3)
                        if o.xfer:
                            e(f"s_cmp_eq_u32 s{S_XR}, 1")
                            e("s_cbranch_scc1 L_nox3")
                    fold(r)
                if o.xfer:
                    e("L_nox3:")
                continue
            wait_for(2 * jj + 1)
            if jj == 0 and not o.xbar:
                self.stamp(2)
            if jj >= o.skipfrom:
                continue
            for i in range(4):
                t = T + 4 * i
                e(f"v_lshlrev_b32 v{t}, 16, v{a + i}")
                e(f"v_and_b32 v{t + 1}, s{S_MASK}, v{a + i}")
                e(f"v_lshlrev_b32 v{t + 2}, 16, v{b + i}")
                e(f"v_and_b32 v{t + 3}, s{S_MASK}, v{b + i}")
            for i in range(4):
                t = T + 4 * i
                s, m = SUM + 2 * i, MAX + 2 * i
                if jj == 0:
                    e(f"v_max_f32 v{m}, v{t}, v{t + 2}")
                    e(f"v_max_f32 v{m + 1}, v{t + 1}, v{t + 3}")
                    e(f"v_pk_add_f32 v[{s}:{s + 1}], v[{t}:{t + 1}], v[{t + 2}:{t + 3}]")
                else:
                    e(f"v_max3_f32 v{m}, v{m}, v{t}, v{t + 2}")
                    e(f"v_max3_f32 v{m + 1}, v{m + 1}, v{t + 1}, v{t + 3}")
                    e(f"v_pk_add_f32 v[{t}:{t + 1}], v[{t}:{t + 1}], v[{t + 2}:{t + 3}]")
            if jj:
                for i in range(4):
                    t = T + 4 * i
                    s = SUM + 2 * i
                    e(f"v_pk_add_f32 v[{s}:{s + 1}], v[{s}:{s + 1}], v[{t}:{t + 1}]")

        if not o.ttail:
            scatter54()
        e(f"s_cmp_ge_u32 s{S_WAVE}, 2")
        for i in range(2):
            e(f"v_add_f32_dpp v{SUM + i}, v{SUM + i}, v{SUM + i} row_ror:8 row_mask:0xf bank_mask:0x3")
        for i in range(2):
            e(f"v_max_f32_dpp v{SUM + i}, v{MAX + i}, v{MAX + i} row_ror:8 row_mask:0xf bank_mask:0xc")
        e(f"ds_write_b64 v2, v[{SUM}:{SUM + 1}] offset:{L_RED}")
        e("s_waitcnt lgkmcnt(0)")
        e("s_barrier")
        self.stamp(4)
        e("s_cbranch_scc1 L_nopub")

        e("s_mov_b32 exec_hi, 0xffff")
        for k in range(4):
            e(f"ds_read_b128 v[{4 + 4 * k}:{7 + 4 * k}], v3 offset:{L_RED + 1536 * k}")
        e(f"s_cmp_eq_u32 s{S_WAVE}, 0")
        e(f"s_cselect_b64 s[{S_W}:{S_W + 1}], s[36:37], s[38:39]")
        e("s_cbranch_scc0 L_pubmax")
        e("s_waitcnt lgkmcnt(2)")
        e("v_pk_add_f32 v[4:5], v[4:5], v[8:9]")
        e("v_pk_add_f32 v[6:7], v[6:7], v[10:11]")
        e("s_waitcnt lgkmcnt(0)")
        e("v_pk_add_f32 v[12:13], v[12:13], v[16:17]")
        e("v_pk_add_f32 v[14:15], v[14:15], v[18:19]")
        e("v_pk_add_f32 v[4:5], v[4:5], v[12:13]")
        e("v_pk_add_f32 v[6:7], v[6:7], v[14:15]")
        e("s_branch L_pub")
        e("L_pubmax:")
        e("s_waitcnt lgkmcnt(1)")
        for i in range(4):
            e(f"v_max3_f32 v{4 + i}, v{4 + i}, v{8 + i}, v{12 + i}")
        e("s_waitcnt lgkmcnt(0)")
        for i in range(4):
            e(f"v_max_f32 v{4 + i}, v{4 + i}, v{16 + i}")
        e("L_pub:")
        for i in range(4):
            e(f"v_and_or_b32 v{4 + i}, v{4 + i}, -16, s{S_TG[i]}")
        e(f"buffer_store_dwordx4 v[4:7], v3, s[{S_WS}:{S_WS + 3}], s{S_PO} offen{' sc1' if o.psc1 else ' nt' if o.pnt else ''}")
        e("s_mov_b64 exec, -1")
        e(f"s_movk_i32 s{S_W + 2}, 18432")
        e(f"s_mov_b32 s{S_W + 3}, 0x20000")
        e(f"s_mul_i32 s{S_T0}, s{S_WAVE}, 18432")
        e(f"s_addk_i32 s{S_T0}, {L_W1}")
        e(f"s_mov_b32 s{S_T1}, 0")
        e("v_lshlrev_b32 v2, 4, v1")
        e("L_wloop:")
        e(f"s_add_u32 m0, s{S_T0}, s{S_T1}")
        e("s_nop 0")
        for k in range(3):
            e(f"buffer_load_dwordx4 v2, s[{S_W}:{S_W + 3}], s{S_T1} offen offset:{k * 1024} lds")
        e(f"s_addk_i32 s{S_T1}, 3072")
        e(f"s_cmp_lt_u32 s{S_T1}, 18432")
        e("s_cbranch_scc1 L_wloop")
        e("L_nopub:")

        B2 = 28
        V_H0, V_H1, V_SW, V_SR, V_Q = 24, 25, 26, 27, 37
        SP0 = 136
        A1 = 144
        B1 = [4, 8, 12, 16, 136, 140]
        e("v_lshrrev_b32 v20, 4, v1                  ; q")
        e(f"s_cmp_lt_u32 s{S_WAVE}, 3")
        e("s_cbranch_scc1 L_spill")
        e(f"s_cmp_ge_u32 s{S_RID}, {NRED}")
        e("s_cbranch_scc1 L_barw")
        e(f"s_cmp_lg_u32 s{S_WAVE}, 3")
        e("s_cbranch_scc1 L_barw")

        def clean(lbl, d, a):
            e(f"s_cmp_lg_u32 s{S_WAVE}, 3")
            e(f"s_cbranch_scc1 {lbl}")
            if o.cw:
                e(f"v_mov_b32 v{d}, 0")
                e(f"v_lshlrev_b32 v{a}, {o.cw}, v1")
                e(f"s_mov_b64 exec, {(1 << (1536 >> o.cw)) - 1}")
                if o.cld:
                    e(f"buffer_atomic_or v{d}, v{a}, s[{S_WS}:{S_WS + 3}], s{S_PO} offen")
                else:
                    e(f"buffer_store_dword v{d}, v{a}, s[{S_WS}:{S_WS + 3}], s{S_PO} offen sc1")
                e("s_mov_b64 exec, -1")
                return
            for i in range(4):
                e(f"v_mov_b32 v{d + i}, 0")
            e(f"v_lshlrev_b32 v{a}, 4, v1")
            e("s_mov_b32 exec_hi, 0xffff")
            e(f"buffer_store_dwordx4 v[{d}:{d + 3}], v{a}, s[{S_WS}:{S_WS + 3}], s{S_PO} offen sc1")
            e(f"buffer_store_dwordx4 v[{d}:{d + 3}], v{a}, s[{S_WS}:{S_WS + 3}], s{S_PO} offen offset:768 sc1")
            e("s_mov_b64 exec, -1")

        e("v_lshrrev_b32 v2, 3, v1")
        e("v_mul_u32_u24 v2, 1536, v2")
        e("v_and_b32 v3, 7, v1")
        e(f"v_lshl_add_u32 v{V_Q}, v3, 4, v2")
        e(f"s_and_b32 s{S_T0}, s2, 7")
        e(f"s_mul_i32 s{S_V}, s{S_T0}, {32 * 1536}")
        e(f"s_lshl_b32 s{S_T1}, s{S_RID}, 7")
        e(f"s_add_u32 s{S_V}, s{S_V}, s{S_T1}")
        for k in range(1, 4):
            e(f"s_add_u32 s{S_V + k}, s{S_V}, {k * 8 * 1536}")
        e(f"s_lshl_b32 s{S_T0}, s{S_T0}, 8              ; group*256")
        e(f"s_lshr_b32 s{S_T1}, s{S_RID}, 2")
        e(f"s_lshl2_add_u32 s{S_T1}, s{S_T1}, s{S_RID}")
        e(f"s_lshl_b32 s{S_T1}, s{S_T1}, 11")
        e(f"s_add_u32 s{S_T1}, s{S_T1}, s{S_T0}")
        for k in range(o.qcopy // 2):
            e(f"s_add_u32 s{S_W + k}, s{S_T1}, {WS_Q + k * 49152}")
        e("v_and_b32 v2, 15, v1")
        e("v_lshlrev_b32 v3, 2, v2")
        e("v_bfe_u32 v2, v1, 4, 1")
        e("v_lshl_add_u32 v3, v2, 7, v3")
        e("v_lshrrev_b32 v2, 5, v1")
        e("v_lshl_add_u32 v3, v2, 13, v3             ; (l>>5)*8192 + ((l>>4)&1)*128 + (l&15)*4")
        e(f"s_lshl4_add_u32 s{S_T0}, s{S_TG[1]}, s{S_TG[0]}")
        e(f"s_xor_b32 s{S_CNT}, s{S_T0}, 0xff")
        e(f"s_lshl_b32 s{S_CNT}, s{S_CNT}, 8")
        e(f"s_or_b32 s{S_T0}, s{S_T0}, s{S_CNT}")
        e("v_and_b32 v2, 12, v3")
        e(f"v_bfe_u32 v23, s{S_T0}, v2, 4")
        e(f"s_mov_b32 s{S_CNT}, {NFB}")
        e(f"s_mov_b32 s{S_HOOK}, 0")
        e("L_rpoll:")
        for k in range(4):
            e(f"buffer_load_dwordx4 v[{4 + 4 * k}:{7 + 4 * k}], v{V_Q}, s[{S_WS}:{S_WS + 3}], s{S_V + k} offen sc1")
        e(f"s_sub_u32 s{S_CNT}, s{S_CNT}, 1")
        e("s_cbranch_scc1 L_rlong")
        for k in range(4):
            e(f"s_waitcnt vmcnt({3 - k})")
            r = 4 + 4 * k
            for i in range(4):
                e(f"v_xor_b32 v{r + i}, s{S_TG[i]}, v{r + i}" + ("            ; a matching tag leaves four zero bits" if k + i == 0 else ""))
            if k == 0:
                e(f"v_or3_b32 v21, v{r}, v{r + 1}, v{r + 2}")
                e(f"v_or_b32 v21, v21, v{r + 3}")
            elif k < 3:
                e(f"v_or3_b32 v21, v21, v{r}, v{r + 1}")
                e(f"v_or3_b32 v21, v21, v{r + 2}, v{r + 3}")
            else:
                e(f"v_or3_b32 v21, v21, v{r}, v{r + 1}")
                e(f"v_or_b32 v22, v{r + 2}, v{r + 3}")
        e("v_bitop3_b32 v21, v21, v22, 15 bitop3:0xa8          ; (a | b) & c")
        e("v_cmp_ne_u32 vcc, 0, v21")
        e("s_wqm_b64 exec, vcc                       ; 64-byte units still waiting poll again")
        e("s_cbranch_scc1 L_rpoll")
        e("L_rgot:")
        e("s_mov_b64 exec, -1")
        self.stamp(1, "r")
        e(f"s_cmp_ge_u32 s{S_RID}, 6")
        e("s_cbranch_scc1 L_rmax")
        for kind in (0, 1):
            op = "v_add_f32" if kind == 0 else "v_max_f32"
            if kind == 1:
                e("L_rmax:")
                for i in range(4):
                    e(f"v_max3_f32 v{4 + i}, v{4 + i}, v{8 + i}, v{12 + i}")
                for i in (0, 2, 1, 3):
                    e(f"v_max_f32 v{4 + i}, v{4 + i}, v{16 + i}")
            else:
                e("v_pk_add_f32 v[4:5], v[4:5], v[8:9]")
                e("v_pk_add_f32 v[6:7], v[6:7], v[10:11]")
                e("v_pk_add_f32 v[12:13], v[12:13], v[16:17]")
                e("v_pk_add_f32 v[14:15], v[14:15], v[18:19]")
                e("v_pk_add_f32 v[4:5], v[4:5], v[12:13]")
                e("v_pk_add_f32 v[6:7], v[6:7], v[14:15]")
                e("s_nop 0")
            e(f"{op}_dpp v4, v4, v4 row_ror:8 row_mask:0xf bank_mask:0x3")
            if kind == 0:
                e(f"{op}_dpp v5, v5, v5 row_ror:8 row_mask:0xf bank_mask:0x3")
                e(f"{op}_dpp v4, v6, v6 row_ror:8 row_mask:0xf bank_mask:0xc")
            else:
                e(f"{op}_dpp v4, v6, v6 row_ror:8 row_mask:0xf bank_mask:0xc")
                e(f"{op}_dpp v5, v5, v5 row_ror:8 row_mask:0xf bank_mask:0x3")
            e(f"{op}_dpp v5, v7, v7 row_ror:8 row_mask:0xf bank_mask:0xc")
            e("s_nop 1")
            e("v_permlane16_swap_b32 v4, v5")
            e(f"{op} v4, v4, v5")
            e("v_mov_b32 v5, v4")
            e("s_nop 1")
            e("v_permlane32_swap_b32 v4, v5")
            e(f"{op} v4, v4, v5                        ; lane 16a+8b+c: element 2b+a of piece c")
            if kind == 0:
                e("s_branch L_rpub")
        e("L_rpub:")
        e("v_and_or_b32 v4, v4, -16, v23")
        for k in range(o.qcopy // 2):
            e(f"buffer_store_dword v4, v3, s[{S_WS}:{S_WS + 3}], s{S_W + k} offen sc1")
            if k == 0:
                self.stamp(9)
        if o.clean == "r":
            for i in range(4):
                e(f"v_mov_b32 v{8 + i}, 0")
            for k in range(4):
                e(f"buffer_store_dwordx4 v[8:11], v{V_Q}, s[{S_WS}:{S_WS + 3}], s{S_V + k} offen sc1")
        e("s_barrier")
        e("s_branch L_afterw")

        if o.pad:
            e(f".fill {o.pad // 4}, 4, 0xbf800000")
        e("L_spill:")
        e(f"s_lshl_b32 s{S_T0}, s{S_WAVE}, 13")
        e(f"v_lshl_add_u32 v{V_AT}, v1, 4, s{S_T0}")
        for k in range(8):
            e(f"ds_write_b128 v{V_AT}, v[{SP0 + 4 * k}:{SP0 + 4 * k + 3}] offset:{L_SPILL + 1024 * k}")
        e("L_barw:")
        if o.tlb:
            e(f"s_cmp_lg_u32 s{S_WAVE}, 5")
            e("s_cbranch_scc1 L_notlb")
            e(f"v_lshlrev_b32 v2, {o.tlb}, v1")
            e(f"buffer_load_dword v4, v2, s[{S_OUT}:{S_OUT + 3}], 0 offen")
            e("L_notlb:")
        if o.lpf == 1:
            e(f"s_cmp_lg_u32 s{S_WAVE}, 4")
            e("s_cbranch_scc1 L_nolpf")
            e("s_getpc_b64 s[20:21]")
            e("v_lshlrev_b32 v2, 7, v1")
            e("v_min_u32 v2, L_end - L_nolpf, v2")
            e("global_load_dword v4, v2, s[20:21]")
            e("L_nolpf:")
        e("s_waitcnt vmcnt(0) lgkmcnt(0)")
        e("s_barrier")
        e("L_afterw:")
        e("v_bfe_u32 v3, v1, 2, 2")
        e("v_lshl_add_u32 v21, v20, 3, v3            ; row")
        e("v_and_b32 v22, 15, v21                    ; row of the half step (q&1)")
        e("v_and_b32 v3, 3, v1")
        e(f"s_lshl_b32 s{S_T2}, s{S_WAVE}, 5")
        e(f"v_lshl_add_u32 v23, v3, 3, s{S_T2}          ; column bytes")
        e("v_mov_b32 v3, 384")
        e("v_mad_u32_u24 v2, v21, v3, v23")
        e("v_mad_u32_u24 v22, v22, v3, v23")
        e(f"ds_read_b64_tr_b16 v[{B2}:{B2 + 1}], v2 offset:{L_W2}")
        e(f"ds_read_b64_tr_b16 v[{B2 + 2}:{B2 + 3}], v2 offset:{L_W2 + 4 * 384}")
        e(f"ds_read_b64_tr_b16 v[{B2 + 4}:{B2 + 5}], v22 offset:{L_W2 + 32 * 384}")
        e(f"ds_read_b64_tr_b16 v[{B2 + 6}:{B2 + 7}], v22 offset:{L_W2 + 36 * 384}")
        e("v_and_b32 v2, 1, v1")
        e("v_mul_u32_u24 v22, 96, v2")
        e(f"v_lshl_add_u32 v{V_H0}, v20, 4, v22")
        e("v_and_b32 v3, 1, v20")
        e(f"v_lshl_add_u32 v{V_H1}, v3, 4, v22")
        e(f"s_lshl_b32 s{S_T0}, s{S_WAVE}, 6")
        e(f"v_lshl_add_u32 v{V_SW}, v1, 2, s{S_T0}")
        if o.mul == "dot":
            e("v_mov_b32 v3, 0")
            e("s_mov_b64 exec, 0xffff")
            e(f"ds_write_b32 v{V_SW}, v3 offset:{L_S}")
            e("s_mov_b64 exec, -1")
            e(f"v_lshl_add_u32 v{V_SW}, v2, 1, v{V_SW}")
        e("v_and_b32 v3, 7, v1")
        e(f"s_lshl_b32 s{S_T0}, s{S_TY}, 8")
        e(f"v_lshl_add_u32 v{V_SR}, v3, 5, s{S_T0}")
        e("s_waitcnt lgkmcnt(0)")
        e("s_mov_b32 exec_lo, 0")
        for i in range(4):
            e(f"v_mov_b32 v{B2 + 4 + i}, 0")
        e("s_mov_b64 exec, -1")
        e(f"s_cmp_ge_u32 s{S_WAVE}, 3")
        e("s_cbranch_scc1 L_noa1")
        e("v_mov_b32 v3, 96")
        e("v_mad_u32_u24 v2, v21, v3, v23")
        for s in range(6):
            for h in range(2):
                r = A1 + 4 * s + 2 * h
                e(f"ds_read_b64_tr_b16 v[{r}:{r + 1}], v2 offset:{L_W1 + s * 3072 + h * 384}")
        e("L_noa1:")
        e(f"v_lshl_add_u32 v3, v20, 3, v22")
        e(f"v_add_u32 v3, s{S_T2}, v3")
        e("v_lshlrev_b32 v2, 2, v22")
        e("v_lshl_add_u32 v2, v20, 4, v2")
        e("v_and_b32 v8, 1, v1")
        e("v_lshlrev_b32 v8, 4, v8")
        e("v_lshl_add_u32 v8, v20, 2, v8")
        e("v_and_b32 v9, 2, v1")
        e("v_bfe_u32 v10, v1, 2, 1")
        e("v_add3_u32 v8, v8, v9, v10")
        e(f"v_add_lshl_u32 v23, v8, s{S_T2}, 1")
        e("v_lshrrev_b32 v8, 2, v1")
        e("v_lshlrev_b32 v8, 7, v8")
        e("v_and_b32 v9, 3, v1")
        e(f"v_lshl_add_u32 v{V_Q}, v9, 4, v8")
        e(f"s_and_b32 s{S_T0}, s{S_QC}, 4")
        if o.qcopy > 2:
            e(f"s_and_b32 s{S_CNT}, s{S_QC}, {o.qcopy // 2 - 1}")
            e(f"s_mul_i32 s{S_CNT}, s{S_CNT}, 24")
            e(f"s_add_u32 s{S_T0}, s{S_T0}, s{S_CNT}")
        e(f"s_lshr_b32 s{S_T1}, s{S_WAVE}, 2")
        e(f"s_lshl2_add_u32 s{S_T1}, s{S_T1}, s{S_WAVE}")
        e(f"s_add_u32 s{S_T1}, s{S_T1}, s{S_T0}")
        e(f"s_lshl_b32 s{S_T1}, s{S_T1}, 11")
        e(f"s_add_u32 s{S_T1}, s{S_T1}, {WS_Q}")
        if o.clean in ("q", "p", "a", "h", "g"):
            if o.cfull:
                for i in range(4):
                    e(f"v_mov_b32 v{16 + i}, s{S_TG[i]}")
                e("v_lshlrev_b32 v22, 4, v1")
            else:
                e(f"v_mov_b32 v19, s{S_TG[0]}")
            e(f"s_lshl_b32 s{S_V}, s{S_WAVE}, 7")
            e(f"s_add_u32 s{S_V}, s{S_V}, s{S_PO}")
        e(f"s_mov_b32 s{S_CNT}, {NFB}")
        e(f"s_mov_b32 s{S_HOOK}, 0")
        e(f"s_cmp_lt_u32 s{S_WAVE}, 6")
        e("s_cbranch_scc1 L_qpoll0")

        def clean1():
            if o.cfull:
                e("s_mov_b64 exec, 0xff")
                e(f"buffer_store_dwordx4 v[16:19], v22, s[{S_WS}:{S_WS + 3}], s{S_V} offen sc1")
            else:
                e("s_mov_b64 exec, 1")
                e(f"buffer_store_dword v19, off, s[{S_WS}:{S_WS + 3}], s{S_V} sc1")
            e("s_mov_b64 exec, -1")

        for kind in (1, 0):
            op = "v_add_f32" if kind == 0 else "v_max_f32"
            if o.q2:
                def qld(r):
                    e(f"buffer_load_dwordx4 v[{r}:{r + 3}], v{V_Q}, s[{S_WS}:{S_WS + 3}], s{S_T1} offen sc1")

                def qchk(r):
                    e("s_waitcnt vmcnt(1)")
                    for i in range(4):
                        e(f"v_xor_b32 v{4 + i}, s{S_TG[i]}, v{r + i}")
                    e("v_or3_b32 v21, v4, v5, v6")
                    e("v_bitop3_b32 v21, v21, v7, 15 bitop3:0xa8")
                    e("v_cmp_ne_u32 vcc, 0, v21")
                    e("s_wqm_b64 exec, vcc")
                e(f"L_qpoll{kind}:")
                qld(8)
                e(f"s_sleep {o.q2}")
                e(f"L_qloop{kind}:")
                qld(12)
                e(f"s_sub_u32 s{S_CNT}, s{S_CNT}, 1")
                e(f"s_cbranch_scc1 L_qlong{kind}")
                qchk(8)
                e(f"s_cbranch_scc0 L_qgot{kind}")
                qld(8)
                qchk(12)
                e(f"s_cbranch_scc1 L_qloop{kind}")
            else:
                e(f"L_qpoll{kind}:")
                e(f"buffer_load_dwordx4 v[4:7], v{V_Q}, s[{S_WS}:{S_WS + 3}], s{S_T1} offen sc1")
                e(f"s_sub_u32 s{S_CNT}, s{S_CNT}, 1")
                e(f"s_cbranch_scc1 L_qlong{kind}")
                if o.qsleep:
                    e(f"s_sleep {o.qsleep}")
                e("s_waitcnt vmcnt(0)")
                for i in range(4):
                    e(f"v_xor_b32 v{4 + i}, s{S_TG[i]}, v{4 + i}")
                e("v_or3_b32 v21, v4, v5, v6")
                e("v_bitop3_b32 v21, v21, v7, 15 bitop3:0xa8")
                e("v_cmp_ne_u32 vcc, 0, v21")
                e("s_wqm_b64 exec, vcc")
                e(f"s_cbranch_scc1 L_qpoll{kind}")
            e(f"L_qgot{kind}:")
            if o.clean == "p":
                e("s_mov_b64 exec, 1")
                e(f"buffer_store_dword v19, off, s[{S_WS}:{S_WS + 3}], s{S_V} sc1")
            e("s_mov_b64 exec, -1")
            self.stamp(5)
            e("v_permlane32_swap_b32 v4, v6")
            e("v_permlane32_swap_b32 v5, v7")
            e(f"{op} v4, v4, v6")
            e(f"{op} v5, v5, v7")
            e("s_nop 1")
            e("v_permlane16_swap_b32 v4, v5")
            e(f"{op} v4, v4, v5")
            e(f"s_cmp_ge_u32 s{S_WAVE}, 3")
            e("s_nop 0")
            e(f"{op}_dpp v4, v4, v4 row_ror:8 row_mask:0xf bank_mask:0xf")
            if kind == 0:
                e("v_mul_f32 v4, 0x36800000, v4              ; 1/262144")
            e("v_cvt_pk_bf16_f32 v4, v4, v4")
            e(f"ds_write_b16 v23, v4 offset:{L_F}")
            if o.q2:
                e("s_waitcnt vmcnt(0)")
            if o.clean == "q" or (o.clean == "h" and kind == 1) or (o.clean == "g" and kind == 0):
                clean1()
            e("s_waitcnt lgkmcnt(0)")
            e("s_barrier")
            if kind == 1:
                if o.clean in ("a", "g"):
                    clean1()
                e("s_branch L_join")
            else:
                e("s_cbranch_scc1 " + ("L_clean0" if o.clean in ("a", "h") else "L_join"))

        e("L_mlp1:")
        for s in range(6):
            e(f"ds_read_b128 v[{B1[s]}:{B1[s] + 3}], v2 offset:{L_F + 64 * s}")
        if o.clean in ("a", "h"):
            clean1()
        for s in range(6):
            c = "0" if s == 0 else "v[20:23]"
            b = B1[s]
            e(f"s_waitcnt lgkmcnt({5 - s})")
            e(f"v_mfma_f32_16x16x32_bf16 v[20:23], v[{A1 + 4 * s}:{A1 + 4 * s + 3}], v[{b}:{b + 3}], {c}")
        e("s_nop 3")
        e("s_mov_b32 exec_lo, 0x00030003")
        e("s_mov_b32 exec_hi, 0x00030003")
        e("s_nop 1")
        for i in range(4):
            e(f"v_maximum3_f32 v{20 + i}, v{20 + i}, 0, 0")
        e("v_cvt_pk_bf16_f32 v20, v20, v21")
        e("v_cvt_pk_bf16_f32 v21, v22, v23")
        e(f"ds_write_b64 v3, v[20:21] offset:{L_H}")
        e("s_mov_b64 exec, -1")
        e("s_waitcnt lgkmcnt(0)")

        e("L_join:")
        e("s_barrier")
        self.stamp(6)
        e(f"ds_read_b128 v[4:7], v{V_H0} offset:{L_H}")
        e(f"ds_read_b128 v[8:11], v{V_H1} offset:{L_H + 64}")
        e("s_waitcnt lgkmcnt(1)")
        e(f"v_mfma_f32_16x16x32_bf16 v[12:15], v[4:7], v[{B2}:{B2 + 3}], 0")
        e("s_waitcnt lgkmcnt(0)")
        e(f"v_mfma_f32_16x16x32_bf16 v[12:15], v[8:11], v[{B2 + 4}:{B2 + 7}], v[12:15]")
        e("s_mov_b64 exec, 0xffff")
        e("s_nop 6")
        e("v_cvt_pk_bf16_f32 v12, 0, v12")
        e("v_cvt_pk_bf16_f32 v13, 0, v13")
        e("v_add_f32 v12, v12, v13")
        e("v_cvt_pk_bf16_f32 v12, 0, v12")
        e("v_mul_f32 v12, 0xbfb8aa3b, v12            ; -log2(e)")
        e("v_exp_f32 v12, v12")
        e("s_nop 0")
        e("v_add_f32 v12, 1.0, v12")
        e("v_rcp_f32 v12, v12")
        e("s_nop 0")
        if o.mul == "dot":
            e("v_cvt_pk_bf16_f32 v12, v12, v12")
            e(f"ds_write_b16 v{V_SW}, v12 offset:{L_S}")
        else:
            e("v_cvt_pk_bf16_f32 v12, 0, v12")
            e(f"ds_write_b32 v{V_SW}, v12 offset:{L_S}")
        e("s_mov_b64 exec, -1")
        e("s_waitcnt lgkmcnt(0)")
        e("s_barrier")
        e(f"ds_read_b128 v[4:7], v{V_SR} offset:{L_S}")
        e(f"ds_read_b128 v[8:11], v{V_SR} offset:{L_S + 16}")

        if o.stlim:
            e(f"s_cmp_lt_u32 s2, {o.stlim}")
            e(f"s_cselect_b32 s{S_OUT + 2}, s{S_OUT + 2}, 0")
        zorder = [int(v) for v in o.zorder.split(",")]
        assert sorted(zorder) == list(range(16))
        restored = False
        late = []

        def wbl2():
            wv, lim, pos = [int(v) for v in o.wb.split(",")]
            e(f"s_cmp_lt_u32 s{S_WAVE}, {wv}")
            e("s_cbranch_scc1 L_nowb")
            e(f"s_cmp_ge_u32 s2, {lim}")
            e("s_cbranch_scc1 L_nowb")
            if pos == 33:
                e("s_waitcnt vmcnt(0)")
            e("buffer_wbl2 sc1")
            e("L_nowb:")
        jorder = [int(v) for v in o.jorder.split(",")] if o.jorder else [2 * z + u for z in zorder for u in (0, 1)]
        assert sorted(jorder) == list(range(32))
        self.pz = None
        for n, j in enumerate(jorder):
            a = D0 + 4 * j
            t0 = 12 + 8 * (n & 1)
            if a >= SP0 and not restored:
                assert n > 1
                e("s_waitcnt lgkmcnt(0)")
                restored = True
            md = o.mul
            for i in range(4 if md in ("pk", "mul", "u", "um") else 0):
                t = t0 + 2 * i
                e(f"v_lshlrev_b32 v{t}, 16, v{a + i}")
                e(f"v_and_b32 v{t + 1}, s{S_MASK}, v{a + i}")
            if n == 0:
                e("s_waitcnt lgkmcnt(0)")
                self.stamp(7)
            if o.al:
                e(f".p2align {o.al & 15}")
                if o.al >> 4:
                    e("s_nop 0")
            for i in range(4):
                t = t0 + 2 * i
                if md in ("pk", "um"):
                    e(f"v_pk_mul_f32 v[{t}:{t + 1}], v[{t}:{t + 1}], v[{4 + 2 * i}:{5 + 2 * i}]")
                if md == "mul":
                    e(f"v_mul_f32 v{t}, v{t}, v{4 + 2 * i}")
                    e(f"v_mul_f32 v{t + 1}, v{t + 1}, v{5 + 2 * i}")
                if md == "dot":
                    e(f"v_dot2_f32_bf16 v{t}, v{a + i}, v{4 + 2 * i}, 0")
                    e(f"v_dot2_f32_bf16 v{t + 1}, v{a + i}, v{5 + 2 * i}, 0")
            for i in range(4):
                t = t0 + 2 * i
                if md in ("pk", "mul", "dot"):
                    e(f"v_cvt_pk_bf16_f32 v{a + i}, v{t}, v{t + 1}")
                if md == "c":
                    e(f"v_cvt_pk_bf16_f32 v{a + i}, v{a + i}, v{a + (i ^ 1)}")
            def st(j=j, a=a, n=n):
                self.mem(j, lambda va, so: e(f"buffer_store_dwordx4 v[{a}:{a + 3}], {va}, s[{S_OUT}:{S_OUT + 3}], {so} offen{'' if n >= 32 - o.nplain else stf}"))
            if n < o.burst:
                st()
            else:
                late.append(st)
            if n == 31:
                for f in late:
                    f()
            if o.xfer and n == o.xspos:
                e(f"s_cmp_lg_u32 s{S_XR}, 2")
                e("s_cbranch_scc1 L_nox4")
                e(f"ds_read_b128 v[28:31], v{V_AT}")
                e(f"v_xad_u32 v32, v{V_G1}, s{S_XP}, v{V_L}")
                e("s_waitcnt lgkmcnt(0)")
                for i in range(4):
                    e(f"v_dot2_f32_bf16 v{12 + 2 * i}, v{28 + i}, v{4 + 2 * i}, 0")
                    e(f"v_dot2_f32_bf16 v{13 + 2 * i}, v{28 + i}, v{5 + 2 * i}, 0")
                for i in range(4):
                    e(f"v_cvt_pk_bf16_f32 v{28 + i}, v{12 + 2 * i}, v{13 + 2 * i}")
                e(f"buffer_store_dwordx4 v[28:31], v32, s[{S_OUT}:{S_OUT + 3}], s{S_XO} offen{stf}")
                e("L_nox4:")
            if n + 1 in o.sbar:
                e("s_barrier")
            if o.sthr and n >= o.sthr:
                e(f"s_waitcnt vmcnt({o.sthr - 1})")
            if o.wb and int(o.wb.split(",")[2]) == n:
                wbl2()
            if n & 1:
                self.trace("st", n >> 1)
            if n == 1:
                e(f"s_cmp_ge_u32 s{S_WAVE}, 3")
                e("s_cbranch_scc1 L_norestore")
                for k in range(8):
                    e(f"ds_read_b128 v[{SP0 + 4 * k}:{SP0 + 4 * k + 3}], v{V_AT} offset:{L_SPILL + 1024 * k}")
                e("L_norestore:")
                if o.clean == "st":
                    clean("L_noclean", 28, 32)
                    e("L_noclean:")
        if o.clean == "e":
            clean("L_noclean", 28, 32)
            e("L_noclean:")
        if o.wb and int(o.wb.split(",")[2]) >= 32:
            wbl2()
        if o.stamps:
            self.stamp(8)
            e("s_waitcnt vmcnt(0)")
            self.stamp(10)
            if o.idleclk:
                e(f"s_cmp_lg_u32 s{S_WAVE}, 11")
                e("s_cbranch_scc1 L_noidle")
                for lbl, dur, m, r in (("a", o.idleclk, 1, 3), ("b", 2000, 2, 6)):
                    e("s_memrealtime s[96:97]")
                    e("s_waitcnt lgkmcnt(0)")
                    e(f"L_idle{lbl}:")
                    e("s_sleep 4")
                    e("s_memrealtime s[98:99]")
                    e("s_waitcnt lgkmcnt(0)")
                    e("s_sub_u32 s98, s98, s96")
                    e(f"s_cmp_lt_u32 s98, {dur}")
                    e(f"s_cbranch_scc1 L_idle{lbl}")
                    e(f"s_memtime s[{S_STAMP + 2 * m}:{S_STAMP + 2 * m + 1}]")
                    e(f"s_memrealtime s[{S_STAMP + 2 * r}:{S_STAMP + 2 * r + 1}]")
                e("L_noidle:")
            e("s_getreg_b32 s94, hwreg(HW_REG_XCC_ID)")
            e("s_getreg_b32 s95, hwreg(HW_REG_HW_ID)")
            e("s_waitcnt lgkmcnt(0)")
            e("v_mov_b32 v2, 0")
            for i in range(11 if o.trace else 14):
                e(f"v_writelane_b32 v2, s{S_STAMP + 2 * i}, {i}")
            e("v_writelane_b32 v2, s94, 14")
            e("v_writelane_b32 v2, s95, 15")
            e(f"s_mul_i32 s{S_T0}, s2, 12")
            e(f"s_add_u32 s{S_T0}, s{S_T0}, s{S_WAVE}")
            e(f"s_lshl_b32 s{S_T0}, s{S_T0}, 6")
            e(f"s_add_u32 s{S_T0}, s{S_T0}, {WS_STAMP}")
            e("v_mbcnt_lo_u32_b32 v3, -1, 0")
            e("v_lshlrev_b32 v3, 2, v3")
            e("s_mov_b64 exec, 0xffff")
            e(f"buffer_store_dword v2, v3, s[{S_WS}:{S_WS + 3}], s{S_T0} offen sc1")
            if o.trace:
                e("s_mov_b32 s91, s92")
                for i in range(16):
                    e(f"v_writelane_b32 v2, s{76 + i}, {i}")
                e(f"s_add_u32 s{S_T0}, s{S_T0}, {1 << 19}")
                e(f"buffer_store_dword v2, v3, s[{S_WS}:{S_WS + 3}], s{S_T0} offen sc1")
        if o.dbgptr:
            e("s_cmp_lg_u32 s2, 0")
            e("s_cbranch_scc1 L_nodp")
            e("s_mov_b64 exec, -1")
            e("v_mov_b32 v2, 0")
            for i, r in enumerate((4, 5, 8, 9, 12, 13, 16, 17, 0, 1)):
                e(f"v_writelane_b32 v2, s{r}, {i}")
            e("v_mbcnt_lo_u32_b32 v3, -1, 0")
            e("v_lshlrev_b32 v3, 2, v3")
            e("s_mov_b64 exec, 0x3ff")
            e(f"buffer_store_dword v2, v3, s[{S_DBG}:{S_DBG + 3}], 0 offen offset:8")
            e("L_nodp:")
        if o.probe:
            idx, K = [int(v) for v in o.probe.split(",")]
            if idx == -6:
                pass
            elif idx == -5:
                e("s_cmp_ge_u32 s2, 8")
                e("s_cbranch_scc1 L_end")
            elif idx == -2:
                e("s_getreg_b32 s94, hwreg(HW_REG_XCC_ID)")
                e("s_xor_b32 s94, s94, s2")
                e("s_and_b32 s94, s94, 7")
                e("s_cbranch_scc0 L_end")
            elif idx == -3:
                e("s_cmp_lg_u32 s2, 0")
                e("s_cbranch_scc1 L_end")
            else:
                e(f"s_cmp_lg_u32 s2, {o.pwg}")
                e("s_cbranch_scc1 L_end")
            e(f"s_cmp_lg_u32 s{S_WAVE}, {o.pwave}")
            e("s_cbranch_scc1 L_end")
            if idx == -6:
                e(f"s_sub_u32 s96, s{S_STAMP + 20}, s{S_STAMP}")
                e(f"s_mul_i32 s96, s96, {K}")
            elif idx == -5:
                e("s_mov_b32 s96, 0")
                e("L_sk:")
                e("s_sleep 100")
                e("s_add_u32 s96, s96, 1")
                e("s_cmp_lt_u32 s96, 4")
                e("s_cbranch_scc1 L_sk")
                e(f"s_mov_b32 s94, {WS_STAMP}")
                e(f"buffer_load_dword v4, off, s[{S_WS}:{S_WS + 3}], s94 sc1")
                e("s_waitcnt vmcnt(0)")
                e("v_readfirstlane_b32 s94, v4")
                e(f"s_sub_u32 s95, s{S_STAMP}, s94")
                e(f"s_mul_i32 s95, s95, {K - 1}")
                e("s_add_u32 s96, s95, 8000")
            elif idx == -4:
                c0, c1, r0, r1 = ((11, 12, 0, 7), (12, 13, 7, 10))[K]
                e(f"s_sub_u32 s94, s{S_STAMP + 2 * c1}, s{S_STAMP + 2 * c0}")
                e(f"s_sub_u32 s95, s{S_STAMP + 2 * r1}, s{S_STAMP + 2 * r0}")
                e("v_cvt_f32_u32 v4, s94")
                e("v_cvt_f32_u32 v5, s95")
                e("v_rcp_f32 v5, v5")
                e("s_nop 1")
                e("v_mul_f32 v4, v4, v5")
                e("v_mul_f32 v4, 0x44fa0000, v4")
                e("v_cvt_u32_f32 v4, v4")
                e("s_nop 1")
                e("v_readfirstlane_b32 s96, v4")
                e("s_sub_u32 s96, s96, 31000")
            elif idx <= -10:
                e(f"s_bfe_u32 s94, s{-idx - 10}, {(7 << 16)} + {K}")
                e("s_mul_i32 s96, s94, 200")
                e("s_add_u32 s96, s96, 5000")
            elif idx == -3:
                e("s_getreg_b32 s94, hwreg(HW_REG_XCC_ID)")
                e("s_and_b32 s94, s94, 7")
                e(f"s_mul_i32 s96, s94, {K}")
                e("s_add_u32 s96, s96, 5000")
            elif idx < 0:
                e(f"s_mov_b32 s96, {K}")
            else:
                e(f"s_sub_u32 s96, s{S_STAMP + 2 * idx}, s{S_STAMP + 2 * o.pref}")
                e(f"s_mul_i32 s96, s96, {K}")
                if o.pref:
                    e("s_add_u32 s96, s96, 5000")
            e("s_min_u32 s96, s96, 200000")
            e("L_probe:")
            e("s_memrealtime s[98:99]")
            e("s_waitcnt lgkmcnt(0)")
            e(f"s_sub_u32 s98, s98, s{S_STAMP}")
            e("s_cmp_lt_u32 s98, s96")
            e("s_cbranch_scc1 L_probe")
        e("L_end:")
        e("s_endpgm")

        e("@@ROLE")
        e(".p2align 7")
        e("L_role:")
        e("s_load_dwordx4 s[44:47], s[0:1], 32")
        e(f"s_lshr_b32 s{S_V + 1}, s2, 3")
        e(f"s_and_b32 s{S_T1}, s2, 1")
        e(f"s_lshl1_add_u32 s{S_T1}, s{S_T1}, 1")
        e(f"s_mul_i32 s{S_T2}, s2, 0x104100")
        e(f"s_cmp_eq_u32 s2, {NVOTE_WG}")
        e("s_waitcnt lgkmcnt(0)")
        e("s_cbranch_scc1 L_tag")
        e(f"s_sub_u32 s{S_T0}, s{S_OUT}, s{S_X}")
        e(f"s_addk_i32 s{S_T0}, 2048")
        e(f"s_bitcmp1_b32 s{S_T0}, 12")
        e(f"s_cselect_b32 s{S_V}, {o.qout}, {o.qgen}")
        e(f"s_cselect_b32 s{S_V + 2}, s{S_V + 1}, 1")
        e(f"s_cmp_eq_u32 s{S_V + 2}, 2")
        e(f"s_cselect_b32 s{S_V + 1}, s{S_T1}, s{S_V + 1}")
        e(f"s_bitcmp1_b32 s{S_V + 1}, 0")
        e(f"s_cselect_b64 s[{S_W}:{S_W + 1}], s[8:9], s[4:5]")
        e(f"s_lshr_b32 s{S_T1}, s{S_V + 1}, 1")
        e(f"s_lshl_b32 s{S_T1}, s{S_T1}, 25" if o.bfirst else f"s_lshl_b32 s{S_T1}, 0x2000000, s{S_T1}")
        e(f"s_add_u32 s{S_T2}, s{S_T2}, s{S_T1}")
        e(f"s_lshr_b32 s{S_T0}, s{S_OUT}, 7")
        e(f"s_mul_i32 s{S_T0}, s{S_T0}, 21")
        e(f"s_and_b32 s{S_T0}, s{S_T0}, 63")
        e(f"s_mulk_i32 s{S_T0}, 384")
        e(f"s_add_u32 s{S_T0}, s{S_T0}, s{S_T2}")
        e(f"s_cmp_lg_u32 s{S_V + 2}, 0")
        e(f"s_cselect_b32 s{S_V + 3}, s{S_OUT}, 0")
        e("s_cbranch_scc1 L_notws")
        e(f"s_mov_b64 s[{S_W}:{S_W + 1}], s[46:47]")
        e(f"s_mov_b32 s{S_V}, {o.qws}")
        e(f"s_and_b32 s{S_T0}, s{S_T2}, 0xfffff")
        e(f"s_add_u32 s{S_T0}, s{S_T0}, {WS_PROBE}")
        e("L_notws:")
        e(f"s_add_u32 s{S_T1}, s{S_T0}, 8192")
        self.stamp(1, True)
        e(f"s_load_dword s42, s[{S_W}:{S_W + 1}], s{S_T0} glc")
        e(f"s_load_dword s43, s[{S_W}:{S_W + 1}], s{S_T1} glc")
        e(f"s_mov_b32 s{S_CNT}, {-(NRACE // 2)}")
        if o.dpf:
            e(f"s_load_dword s23, s[44:45], 192 glc")
        for k in range(NRACE):
            e("s_waitcnt lgkmcnt(0)")
            if k < 2:
                self.stamp(2 + k, True)
                if o.vdiag:
                    e("s_waitcnt lgkmcnt(0)")
            first, second = (S_T0, S_T1) if k % 2 == 0 else (S_T1, S_T0)
            e(f"s_load_dword s42, s[{S_W}:{S_W + 1}], s{first} glc")
            e(f"s_load_dword s43, s[{S_W}:{S_W + 1}], s{second} glc")
            e("s_waitcnt lgkmcnt(1)")
            e("s_nop 7")
            e(f"s_getreg_b32 s{S_T2}, hwreg(HW_REG_IB_STS, 8, 4)   ; 1: the second answer is still out")
            if k % 2 == 0:
                e(f"s_xor_b32 s{S_T2}, s{S_T2}, 1")
            e(f"s_add_u32 s{S_CNT}, s{S_CNT}, s{S_T2}")
        assert NRACE % 2 == 0 and o.qout <= 12 and o.qws <= 8 and o.qgen <= 8 and NVOTE_WG == 32
        e(f"s_sub_u32 s{S_T2}, 0, s{S_CNT}")
        e(f"s_add_u32 s{S_T0}, s{S_T0}, s{S_V + 3}")
        e(f"s_lshr_b32 s{S_T0}, s{S_T0}, 19")
        e(f"s_getreg_b32 s{S_T1}, hwreg(HW_REG_XCC_ID, 0, 3)")
        e(f"s_xor_b32 s{S_T0}, s{S_T0}, s{S_T1}")
        e(f"s_bitcmp1_b32 s{S_T0}, 2")
        e(f"s_cselect_b32 s{S_CNT}, s{S_T2}, s{S_CNT}")
        e(f"s_lshl_b32 s{S_CNT}, s{S_CNT}, 8")
        e(f"s_or_b32 s{S_CNT}, s{S_CNT}, 1")
        e(f"s_mov_b32 s{S_T1}, s{S_CNT}")
        e(f"s_lshl2_add_u32 s{S_T0}, s{S_V + 1}, {DBG_TAL}")
        self.stamp(6, True)
        e(f"s_atomic_add s{S_T1}, s[44:45], s{S_T0} glc")
        e(f"s_mul_i32 s{S_T2}, s{S_V + 1}, 6")
        e("s_waitcnt lgkmcnt(0)")
        e(f"s_add_u32 s{S_T1}, s{S_T1}, s{S_CNT}")
        self.stamp(13)
        e(f"s_and_b32 s{S_T0}, s{S_T1}, 0xff")
        e(f"s_cmp_lg_u32 s{S_T0}, s{S_V}")
        e("s_cbranch_scc1 L_stream")
        e(f"s_cmp_gt_i32 s{S_T1}, 0xff")
        e(f"s_cselect_b32 s{S_T1}, 3, 1")
        e(f"s_add_u32 s{S_T2}, s{S_T2}, 11")
        e(f"s_lshl_b32 s{S_T1}, s{S_T1}, s{S_T2}")
        e("L_publish:")
        e(f"s_atomic_add s{S_T1}, s[44:45], {DBG_RES}")
        e("s_waitcnt lgkmcnt(0)")
        e("s_branch L_stream")

        e("L_tag:")
        e(f"s_mov_b32 s{S_T1}, 1")
        e("s_waitcnt lgkmcnt(0)")
        e(f"s_atomic_add s{S_T1}, s[46:47], {WS_E} glc")
        e("s_waitcnt lgkmcnt(0)")
        e(f"s_add_u32 s{S_T1}, s{S_T1}, 1")
        e(f"s_and_b32 s{S_T1}, s{S_T1}, 0xff")
        e(f"s_bitset1_b32 s{S_T1}, 8")
        assert NVOTE_WG % 8 == 0
        e(f"s_getreg_b32 s{S_T0}, hwreg(HW_REG_XCC_ID, 0, 3)")
        e(f"s_lshl_b32 s{S_T0}, s{S_T0}, 13")
        e(f"s_or_b32 s{S_T1}, s{S_T1}, s{S_T0}")
        self.stamp(13)
        e("s_branch L_publish")

        e("@@RARE")
        if o.clean in ("a", "h"):
            e("L_clean0:")
            clean1()
            e("s_branch L_join")
        for nm in ("r", "q0", "q1"):
            k = nm[1:]
            e(f"L_{nm[0]}long{k}:")
            e("s_waitcnt vmcnt(0)")
            e(f"s_cmp_lg_u32 s{S_HOOK}, 0")
            e(f"s_cbranch_scc1 L_{nm[0]}got{k}")
            e(f"s_call_b64 s[{S_RET}:{S_RET + 1}], L_flush")
            e(f"s_branch L_{nm[0]}poll{k}")
        e("L_flush:")
        e(f"s_mov_b32 s{S_CNT}, {SPIN}")
        e(f"s_mov_b32 s{S_HOOK}, {SPIN}")
        e("s_mov_b32 exec_lo, -1")
        e("s_mov_b32 exec_hi, 0xffff")
        e("v_lshlrev_b32 v13, 4, v1")
        e("L_floop:")
        e(f"buffer_load_dwordx4 v[8:11], v13, s[{S_WS}:{S_WS + 3}], s{S_PO} offen sc1")
        e(f"buffer_load_dwordx4 v[4:7], v13, s[{S_WS}:{S_WS + 3}], s{S_PO} offen offset:768 sc1")
        e(f"s_sub_u32 s{S_HOOK}, s{S_HOOK}, 1")
        e("s_waitcnt vmcnt(0)")
        e(f"v_xor_b32 v12, s{S_TG[0]}, v8")
        for r in (9, 10, 11, 4, 5, 6, 7):
            e(f"v_bitop3_b32 v12, v12, v{r}, s{S_TG[r & 3]} bitop3:0xf6")
        e("v_and_b32 v12, 15, v12")
        e("v_cmp_ne_u32 vcc, 0, v12")
        e("s_cbranch_scc1 L_fdone")
        e("s_cbranch_vccnz L_floop")
        e("L_fdone:")
        e(f"buffer_store_dwordx4 v[8:11], v13, s[{S_WS}:{S_WS + 3}], s{S_PO} offen sc1")
        e(f"buffer_store_dwordx4 v[4:7], v13, s[{S_WS}:{S_WS + 3}], s{S_PO} offen offset:768 sc1")
        e("s_waitcnt vmcnt(0)")
        e("s_mov_b64 exec, -1")
        e(f"s_mov_b32 s{S_HOOK}, -1")
        e(f"s_setpc_b64 s[{S_RET}:{S_RET + 1}]")

        e("@@DPOLL")
        e("L_dpoll:")
        e(f"s_mov_b32 s{S_CNT}, {SPIN}")
        e(f"v_mov_b32 v{V_AT}, 0")
        e("s_mov_b64 exec, 1")
        e("L_dloop:")
        e(f"buffer_load_dword v{V_AT}, off, s[{S_DBG}:{S_DBG + 3}], 0 offset:{DBG_RES} sc1")
        e(f"s_sleep {o.dsleep}")
        e("s_waitcnt vmcnt(24)")
        e(f"v_readfirstlane_b32 s{S_T2}, v{V_AT}          ; whatever poll has landed last")
        e(f"s_sub_u32 s{S_CNT}, s{S_CNT}, 1")
        e("s_cbranch_scc1 L_dgot")
        e(f"s_andn2_b32 s{S_OFF}, s{S_OK}, s{S_T2}")
        e("s_cbranch_scc1 L_dloop")
        e("L_dgot:")
        e("s_mov_b64 exec, -1")
        e("s_branch L_decided")

        e("@@END")
        L = self.lines
        ix = {k: L.index("    @@" + k) for k in ("ROLE", "RARE", "DPOLL", "END")}
        role, rare, dpoll = L[ix["ROLE"] + 1:ix["RARE"]], L[ix["RARE"] + 1:ix["DPOLL"]], L[ix["DPOLL"] + 1:ix["END"]]
        main = L[:ix["ROLE"]]
        p1, p2 = main.index("    @@HERE1"), main.index("    @@HERE2")
        if o.lay:
            self.lines = (main[:p1] + ["    s_branch L_skip1"] + role + dpoll + ["L_skip1:"] + main[p1 + 1:p2]
                          + ["    s_branch L_tail"] + rare + ["    .p2align 12", "L_tail:"] + main[p2 + 1:])
        else:
            self.lines = main[:p1] + main[p1 + 1:p2] + main[p2 + 1:] + role + rare + dpoll

    def text(self):
        out = HEADER
        out += f"; @launch grid=({NWG},1,1) block=(768,1,1) lds={L_TOTAL}\n"
        out += '.amdgcn_target "amdgcn-amd-amdhsa--gfx950"\n.text\n'
        out += f".globl {KNAME}\n.p2align 8\n.type {KNAME},@function\n{KNAME}:\n"
        out += "\n".join(self.lines) + "\n"
        out += f""".section .rodata,"a"
.p2align 6
.amdhsa_kernel {KNAME}
  .amdhsa_next_free_vgpr 168
  .amdhsa_next_free_sgpr {100 if self.o.stamps else 96 if self.o.xfer else 56}
  .amdhsa_accum_offset 168
  .amdhsa_group_segment_fixed_size 0
  .amdhsa_kernarg_size 48
  .amdhsa_user_sgpr_count 2
  .amdhsa_user_sgpr_kernarg_segment_ptr 1
  .amdhsa_system_sgpr_workgroup_id_x 1
  .amdhsa_float_denorm_mode_32 3
.end_amdhsa_kernel
"""
        return out


def main():
    p = argparse.ArgumentParser()
    p.add_argument("-o", default="standalone__channel_attn_cbam__vision.s")
    p.add_argument("--ldflags", default="nt")
    p.add_argument("--stflags", default="sc1")
    p.add_argument("--p1flags", default="sc1")
    p.add_argument("--stamps", action="store_true")
    p.add_argument("--probe", default="")
    p.add_argument("--depth", type=int, default=10)
    p.add_argument("--nrace", type=int, default=2)
    p.add_argument("--dsleep", type=int, default=8)
    p.add_argument("--trace", default="")
    p.add_argument("--nodec", action="store_true")
    p.add_argument("--vdiag", action="store_true")
    p.add_argument("--dbgptr", action="store_true")
    p.add_argument("--opp", default="5,9", type=lambda v: [int(x) for x in v.split(",")])
    p.add_argument("--quorum", type=int, default=16)
    p.add_argument("--quorum4", type=int, default=24)
    p.add_argument("--nvote", type=int, default=32)
    p.add_argument("--nagn", type=int, default=6)
    p.add_argument("--stlim", type=int, default=0)
    p.add_argument("--psc1", action="store_true")
    p.add_argument("--pnt", action="store_true")
    p.add_argument("--h6", type=int, default=0)
    p.add_argument("--bfirst", default="")
    p.add_argument("--q2", type=int, default=0)
    p.add_argument("--xfer", type=int, default=0)
    p.add_argument("--xpos", type=int, default=26)
    p.add_argument("--xspos", type=int, default=26)
    p.add_argument("--qout", type=int, default=7)
    p.add_argument("--qws", type=int, default=4)
    p.add_argument("--qgen", type=int, default=5)
    p.add_argument("--jorder", default="12,0,13,1,14,2,15,3,16,4,17,5,18,6,19,7,20,8,21,9,22,10,23,11,24,25,26,27,28,29,30,31")
    p.add_argument("--urot", type=int, default=0)
    p.add_argument("--lmap", type=int, default=0)
    p.add_argument("--qrot", type=int, default=0)
    p.add_argument("--umap", type=int, default=0)
    p.add_argument("--cfull", type=int, default=1)
    p.add_argument("--wtouch", type=int, default=1)
    p.add_argument("--lay", type=int, default=1)
    p.add_argument("--skipfrom", type=int, default=99)
    p.add_argument("--ttail", type=int, default=0)
    p.add_argument("--tlb", type=int, default=0)
    p.add_argument("--rot", type=int, default=0)
    p.add_argument("--pad", type=int, default=0)
    p.add_argument("--lpf", type=int, default=0)
    p.add_argument("--al", type=int, default=0)
    p.add_argument("--cap", type=int, default=0)
    p.add_argument("--capfrom", type=int, default=12)
    p.add_argument("--capto", type=int, default=32)
    p.add_argument("--skewa", type=int, default=1)
    p.add_argument("--skewd", type=int, default=1)
    p.add_argument("--skewc", type=int, default=0)
    p.add_argument("--skew", type=int, default=0, help="timing diagnostic only")
    p.add_argument("--warmfl", default="")
    p.add_argument("--sdiag", action="store_true")
    p.add_argument("--rpf", type=int, default=0)
    p.add_argument("--dpf", type=int, default=0)
    p.add_argument("--pwg", type=int, default=0)
    p.add_argument("--pwave", type=int, default=0)
    p.add_argument("--pref", type=int, default=0)
    p.add_argument("--qshift", type=int, default=32)
    p.add_argument("--rolepos", type=int, default=-1)
    p.add_argument("--prebar", type=int, default=1)
    p.add_argument("--qmap", type=int, default=0)
    p.add_argument("--agnu", type=int, default=4)
    p.add_argument("--warmst", type=int, default=0)
    p.add_argument("--cw", type=int, default=0)
    p.add_argument("--cld", action="store_true")
    p.add_argument("--qflip", type=int, default=0)
    p.add_argument("--qcopy", type=int, default=4)
    p.add_argument("--mul", default="dot")
    p.add_argument("--burst", type=int, default=32)
    p.add_argument("--idleclk", type=int, default=0)
    p.add_argument("--clk", action="store_true")
    p.add_argument("--sthr", type=int, default=0)
    p.add_argument("--sbar", default=[24], type=lambda v: [int(x) for x in v.split(",")])
    p.add_argument("--piece", type=int, default=128)
    p.add_argument("--xbar", default=[20, 24], type=lambda v: [int(x) for x in v.split(",")])
    p.add_argument("--cpf", type=int, default=0)
    p.add_argument("--cpfpos", type=int, default=0)
    p.add_argument("--wpace", type=int, default=40)
    p.add_argument("--clean", default="g")
    p.add_argument("--warm", type=int, default=30)
    p.add_argument("--warmwave", type=int, default=4)
    p.add_argument("--qsleep", type=int, default=0)
    p.add_argument("--red0", type=int, default=8)
    p.add_argument("--redstep", type=int, default=2)
    p.add_argument("--off", default="", help="diagnostics: v = no votes, c = no clears, r = result not read")
    p.add_argument("--spans", default="")
    p.add_argument("--split", action="store_true")
    p.add_argument("--pfback", type=int, default=0)
    p.add_argument("--nplain", type=int, default=0)
    p.add_argument("--wb", default="", help="minwave,wglimit,pos")
    p.add_argument("--thr", type=int, default=2)
    p.add_argument("--thrfrom", type=int, default=12)
    p.add_argument("--thrto", type=int, default=26)
    p.add_argument("--thrmask", default="0x55")
    p.add_argument("--zorder", default="8,0,9,1,10,2,11,3,12,4,13,5,14,6,15,7")
    o = p.parse_args()
    global NAGN, SPANS, NVOTE_WG
    NVOTE_WG = o.nvote
    NAGN = o.nagn
    if NAGN == 6:
        SPANS = [(0, 0), (0, 1), (1, 0), (1, 1), (2, 0), (2, 1),
                 (3, 0), (3, 1), (4, 0), (4, 1), (5, 0), (5, 1), (6, 0), (6, 1), (7, 0), (7, 1)]
        if o.zorder == p.get_default("zorder"):
            o.zorder = "6,0,7,1,8,2,9,3,10,4,11,5,12,13,14,15"
    if o.bfirst:
        st = [int(c) for c in o.bfirst]
        SPANS = [(a, h) for a in st for h in (0, 1)]
        o.agn0 = st[0] * 12 * MiB
    if o.xfer:
        global L_TOTAL
        L_TOTAL = L_X + 12288
        SPANS[14], SPANS[15] = SPANS[15], SPANS[14]
    if o.spans:
        SPANS = [(int(v[0]), int(v[1])) for v in o.spans.split(",")]
        assert sorted(SPANS) == [(a, b) for a in range(8) for b in range(2)]
    g = G(o)
    g.build()
    open(o.o, "w").write(g.text())


if __name__ == "__main__":
    main()
```

```python
import argparse

KNAME = "standalone__channel_attn_cbam__vision_kernel"

HEADER = """; Kernarg layout for this problem (48 bytes, ptrs only, base s[0:1]):
;   offset   0: d_in[0] x  shape=(1, 512, 512, 192) dtype=bfloat16 strides=(100663296, 196608, 384, 2) contiguous=True
;   offset   8: d_in[1] w1  shape=(192, 48) dtype=bfloat16 strides=(96, 2) contiguous=True
;   offset  16: d_in[2] w2  shape=(48, 192) dtype=bfloat16 strides=(384, 2) contiguous=True
;   offset  40: d_ws      402653184 bytes workspace (unspecified values whenever your kernel or launch list starts; a list's later launches find what earlier ones wrote)
"""

DOC = '''; ---------------------------------------------------------------------------------------------
; x (96 MiB) is read once and stays in registers (128 VGPRs per lane) across a grid-wide
; all-reduce of the per-channel sum and max; every workgroup then runs the small MLP (MFMA),
; scales its registers and writes them out.  A lane always holds the same eight channels.
;
; Which rows a workgroup owns.  The first 36 MiB are dealt out statically.  The rest is shared by
; and writes across them are slow): wave 0 of the first 32 workgroups times two lines against
;
; All-reduce.  Stage 1: the 32 workgroups with the same b % 8 leave 12 lines each in d_ws and
; Stage 1 uses plain stores, which a reader on the same die sees in L2; if a wait lasts, every
; ---------------------------------------------------------------------------------------------
'''

X_BYTES = 100663296
NWG = 256
NRED = 12
MiB = 1 << 20

L_RED = 0
L_H = 6144
L_CNT = 6336
L_S = 6400
L_F = 7168
L_W1 = 8192
L_W2 = L_W1 + 18432
L_SPILL = L_W2 + 18432
L_X = L_SPILL + 3 * 8192
L_TOTAL = L_X

WS_P = 0
WS_Q = 256 * 1536
WS_E = WS_Q + 4 * 49152
WS_USED = WS_E + 128
WS_PROBE = 640 * 1024
WS_STAMP = 1 << 20

S_X, S_OUT, S_WS, S_DBG, S_W = 4, 8, 12, 16, 20
S_WAVE, S_TY, S_SUB, S_OFF, S_MASK, S_CNT, S_T0, S_T1 = 28, 29, 30, 31, 32, 33, 34, 35
S_BASE, S_PM, S_P, S_T2 = 48, 49, 50, 51
S_AGN, S_RID, S_PO = 40, 42, 43
S_TG = [41, 47, 3, 0]
S_RET, S_HOOK, S_QC = 38, 46, 1
S_BASE1 = 45
NFB = 48
S_STAMP = 52
S_V = 24

D0 = 40
SPIN = 2000000
V_L, V_G0, V_G1, V_AT = 0, 39, 38, 36

NAGN = 8
SPANS = [(0, 0), (0, 1), (1, 0), (1, 1), (2, 0), (2, 1), (3, 0), (3, 1),
         (6, 0), (4, 0), (6, 1), (4, 1), (7, 0), (5, 0), (7, 1), (5, 1)]
W_ROLE = 0
DBG_RES, DBG_TAL = 0, 128
NVOTE_WG = 32
RES_OK = (1 << 8) | (1 << 11) | (1 << 17) | (1 << 29)
S_OK = 44
S_XR, S_XO, S_XP = 92, 93, 91


def mask(pred):
    return sum(1 << z for z, s in enumerate(SPANS) if pred(z, s))


class G:
    def __init__(self, o):
        self.o = o
        self.lines = []

    def e(self, s=""):
        self.lines.append(("    " + s) if s and not s.endswith(":") else s)

    def stamp(self, idx, vote=False):
        if self.o.clk:
            if idx in (11, 12, 13):
                return
            m = {0: 11, 7: 12, 10: 13}.get(idx)
            if m:
                self.e(f"s_memtime s[{S_STAMP + 2 * m}:{S_STAMP + 2 * m + 1}]")
        if vote == "r":
            vote = False
        if self.o.vdiag and idx in (1, 2, 3, 6) and not vote:
            return
        if vote and not self.o.vdiag:
            return
        if self.o.stamps and not (self.o.trace and idx > 10):
            self.e(f"s_memrealtime s[{S_STAMP + 2 * idx}:{S_STAMP + 2 * idx + 1}]")

    def srd(self, d, lo, nbytes):
        e = self.e
        e(f"s_mov_b64 s[{d}:{d + 1}], s[{lo}:{lo + 1}]")
        e(f"s_mov_b32 s{d + 2}, {nbytes}")
        e(f"s_mov_b32 s{d + 3}, 0x20000")

    def span_off(self, z):
        return SPANS[z][0] * 12 * MiB + SPANS[z][1] * 49152

    def mem(self, j, fn):
        e = self.e
        z, u = j >> 1, j & 1
        if z < NAGN:
            if self.o.bfirst:
                off = SPANS[z][0] * 12 * MiB + (j % 4) * 12288 - self.o.agn0
            else:
                off = (j // self.o.agnu) * (self.o.agnu * 3 * MiB - (self.o.skew if self.o.skewa else 0)) + (j % self.o.agnu) * 12288
            so = f"s{S_OFF}" if off else f"s{S_AGN}"
            if off:
                e(f"s_add_u32 s{S_OFF}, s{S_AGN}, {off}")
            if SPANS[z] == (7, 1):
                at = 2 + u
                e(f"v_add_u32 v{at}, {so}, v{V_L}")
                e(f"v_subrev_u32 v{5 - at}, s{S_X + 2}, v{at}")
                e(f"v_min_u32 v{at}, v{at}, v{5 - at}             ; past the end: wrap to the rows the shift skipped")
                fn(f"v{at}", "0")
            else:
                fn(f"v{V_L}", so)
            return
        if getattr(self, "pz", None) != z:
            e(f"s_bitcmp1_b32 s{S_PM}, {z}")
            e(f"s_cselect_b32 s{S_P}, 24576, 0")
            self.pz = z
        e(f"s_add_u32 s{S_OFF}, s{(S_BASE, S_BASE1)[SPANS[z][1]]}, {SPANS[z][0] * 12 * MiB - self.o.skew * (SPANS[z][0] * self.o.skewd + self.o.skewc) + 12288 * u}")
        at = 2 + u
        if self.o.xfer and j == 31:
            e(f"s_cmp_eq_u32 s{S_XR}, 1")
            e(f"s_cselect_b32 s{S_P}, 0x40000000, s{S_P}")
            self.pz = None
        e(f"v_xad_u32 v{at}, v{(V_G0, V_G1)[u]}, s{S_P}, v{V_L}")
        if SPANS[z] == (7, 1):
            e(f"v_add_u32 v{at}, s{S_OFF}, v{at}")
            e(f"v_subrev_u32 v{5 - at}, s{S_X + 2}, v{at}")
            e(f"v_min_u32 v{at}, v{at}, v{5 - at}             ; past the end: wrap to the rows the shift skipped")
            fn(f"v{at}", "0")
        else:
            fn(f"v{at}", f"s{S_OFF}")

    def trace(self, kind, n):
        if self.o.trace == kind:
            if n > 0:
                self.e("s_waitcnt lgkmcnt(0)")
                self.e(f"s_mov_b32 s{76 + n - 1}, s92")
            self.e("s_memrealtime s[92:93]")

    def build(self):
        o, e = self.o, self.e
        NRACE = o.nrace
        ldf = (" " + o.ldflags) if o.ldflags else ""
        stf = (" " + o.stflags) if o.stflags else ""

        self.stamp(0)
        e("s_load_dwordx2 s[4:5], s[0:1], 0          ; x")
        e("s_load_dwordx2 s[8:9], s[0:1], 24         ; out")
        e("v_readfirstlane_b32 s%d, v0" % S_WAVE)
        e("v_and_b32 v1, 63, v0                      ; lane")
        pl = (o.piece // 16).bit_length() - 1
        e(f"v_bfe_u32 v2, v0, {pl}, {6 - pl}")
        e(f"v_mul_u32_u24 v2, {(3 * o.piece, 1536, 768, 384)[o.lmap]}, v2")
        e(f"v_and_b32 v3, {(1 << pl) - 1}, v0")
        e("s_cmpk_ge_u32 s2, %d" % NWG)
        e("s_cbranch_scc1 L_end")
        if o.rot:
            e(f"s_add_u32 s2, s2, {o.rot}")
            e("s_and_b32 s2, s2, 255")
        if o.rolepos < 0:
            e(f"s_lshl2_add_u32 s{S_T1}, s{S_WAVE}, s2")
            e(f"s_cmp_le_u32 s{S_T1}, {NVOTE_WG}              ; wave 0 of the first workgroups has a side job")
            e("s_cbranch_scc1 L_role")
            e("L_stream:")
        if o.lmap == 1:
            e("v_lshl_add_u32 v0, v3, 4, v2")
            e(f"v_lshl_add_u32 v{V_L}, s{S_WAVE}, 1, v0")
            e(f"s_lshr_b32 s{S_WAVE}, s{S_WAVE}, 6")
        elif o.lmap == 3:
            e(f"s_lshr_b32 s{S_TY}, s{S_WAVE}, 8")
            e(f"s_lshr_b32 s{S_WAVE}, s{S_WAVE}, 6")
            e(f"s_and_b32 s{S_SUB}, s{S_WAVE}, 3              ; sub = wave % 4")
            e(f"s_mul_i32 s{S_T0}, s{S_SUB}, 24")
            e(f"s_add_u32 s{S_T0}, s{S_T0}, s{S_TY}")
            e("v_lshl_add_u32 v0, v3, 4, v2")
            e(f"v_lshl_add_u32 v{V_L}, s{S_T0}, 7, v0")
        elif o.lmap == 2:
            e(f"s_lshr_b32 s{S_WAVE}, s{S_WAVE}, 6")
            e(f"s_cmp_ge_u32 s{S_WAVE}, 6")
            e(f"s_cselect_b32 s{S_T0}, 42, 0")
            e(f"s_add_u32 s{S_T0}, s{S_T0}, s{S_WAVE}")
            e("v_lshl_add_u32 v0, v3, 4, v2")
            e(f"v_lshl_add_u32 v{V_L}, s{S_T0}, 7, v0")
        else:
            e(f"s_lshr_b32 s{S_WAVE}, s{S_WAVE}, 6")
            e(f"s_mul_i32 s{S_SUB}, s{S_WAVE}, 43")
            e(f"s_lshr_b32 s{S_SUB}, s{S_SUB}, 7")
            e(f"s_mul_i32 s{S_T0}, s{S_SUB}, {3072 // o.piece - 3}")
            e(f"s_add_u32 s{S_T0}, s{S_T0}, s{S_WAVE}        ; sub*24 + wave % 3")
            e(f"s_lshl_b32 s{S_T0}, s{S_T0}, {pl + 4}")
            e("v_lshl_add_u32 v0, v3, 4, v2")
            e(f"v_add_u32 v{V_L}, s{S_T0}, v0               ; + sub*3072 + (wave % 3)*128")
        if o.umap == 1:
            pass
        elif o.umap >= 2:
            e("; unit = row*8 + ((b*mul + row*rot) & 7)")
            mul, rot = (o.umap >> 4) | 1, o.umap & 7
            e(f"s_lshr_b32 s{S_T1}, s2, 3")
            e(f"s_mul_i32 s{S_T1}, s{S_T1}, {rot}")
            e(f"s_mul_i32 s{S_T0}, s2, {mul}")
            e(f"s_add_u32 s{S_T0}, s{S_T0}, s{S_T1}")
            e(f"s_and_b32 s{S_T0}, s{S_T0}, 7")
            e(f"s_and_b32 s{S_T1}, s2, -8")
            e(f"s_add_u32 s{S_T0}, s{S_T0}, s{S_T1}")
        elif o.qmap == 0:
            e("; 48 KiB unit of this workgroup: pair q = (b>>3)*4 + (b&3), side = (b>>2)&1, unit = 2q + side")
            e(f"s_and_b32 s{S_T0}, s2, 3")
            e(f"s_bfe_u32 s{S_T1}, s2, 0x10002")
            e(f"s_lshl1_add_u32 s{S_T0}, s{S_T0}, s{S_T1}")
            if o.urot:
                e(f"s_lshr_b32 s{S_T1}, s2, {o.urot & 15}")
                if o.urot >> 4:
                    e(f"s_lshl_b32 s{S_T1}, s{S_T1}, {o.urot >> 4}")
                e(f"s_add_u32 s{S_T0}, s{S_T0}, s{S_T1}")
                e(f"s_and_b32 s{S_T0}, s{S_T0}, 7")
            e(f"s_and_b32 s{S_T1}, s2, -8")
            e(f"s_add_u32 s{S_T0}, s{S_T0}, s{S_T1}")
        else:
            e("; unit of this workgroup: neighbours in memory share b % 8")
            e(f"s_and_b32 s{S_T0}, s2, 7")
            e(f"s_lshl_b32 s{S_T0}, s{S_T0}, 5")
            e(f"s_lshr_b32 s{S_T1}, s2, 3")
            e(f"s_add_u32 s{S_T0}, s{S_T0}, s{S_T1}")
        e(f"s_mul_i32 s{S_AGN}, s{2 if o.umap == 1 else S_T0}, {o.agnu * 12288}")
        if o.bfirst:
            e(f"s_add_u32 s{S_AGN}, s{S_AGN}, {o.agn0}")
        e(f"s_mov_b32 s{S_X + 2}, {X_BYTES}")
        e(f"s_mov_b32 s{S_X + 3}, 0x20000")
        if o.rolepos >= 0:
            e(f"s_lshl_b32 s{S_T1}, s{S_WAVE}, 8")
            e(f"s_or_b32 s{S_T1}, s{S_T1}, s2")
        if o.sdiag:
            self.stamp(6, True)
        e("s_waitcnt lgkmcnt(0)")
        if o.sdiag:
            self.stamp(1, True)
        e(f"s_lshr_b32 s{S_T0}, s{S_OUT}, 7")
        e(f"s_mul_i32 s{S_T0}, s{S_T0}, 21              ; -43 mod 64")
        e(f"s_and_b32 s{S_T0}, s{S_T0}, 63")
        e(f"s_mulk_i32 s{S_T0}, 384")
        e(f"s_add_u32 s{S_AGN}, s{S_AGN}, s{S_T0}")
        assert W_ROLE == 0

        e("; ---- load + reduce pipeline.  sums v[4:11], maxes v[12:19], temps v[20:35]")
        SUM, MAX, T = 4, 12, 20
        DEPTH = o.depth
        seq = []

        def issue(j):
            if j == o.rolepos:
                e(f"s_cmp_le_u32 s{S_T1}, {NVOTE_WG}              ; wave 0 of the first workgroups has a side job")
                e("s_cbranch_scc1 L_role")
                e("L_stream:")
            if o.cpf and j == o.cpfpos:
                e("; wave 1 of the first workgroups pulls the kernel's code into this die's L2 (values unused)")
                e(f"s_sub_u32 s{S_T1}, s{S_T1}, 256")
                e(f"s_cmp_ge_u32 s{S_T1}, {o.cpf}")
                e("s_cbranch_scc1 L_nocpf")
                e("s_getpc_b64 s[20:21]")
                e("v_lshlrev_b32 v2, 7, v1")
                e("v_add_u32 v3, 8192, v2")
                e("v_min_u32 v3, L_codeend - L_nocpf, v3")
                e("global_load_dword v36, v2, s[20:21]")
                e("global_load_dword v37, v3, s[20:21]")
                e("L_nocpf:")
            if j == max(4, o.rolepos):
                e("s_load_dwordx4 s[36:39], s[0:1], 8        ; w1, w2")
                e(f"s_load_dwordx2 s[{S_DBG}:{S_DBG + 1}], s[0:1], 32")
                e(f"s_load_dwordx2 s[{S_WS}:{S_WS + 1}], s[0:1], 40")
                e(f"s_mov_b32 s{S_MASK}, 0xffff0000")
            if j == 2 * NAGN:
                if o.lmap in (1, 2):
                    e(f"s_mul_i32 s{S_SUB}, s{S_WAVE}, 43")
                    e(f"s_lshr_b32 s{S_SUB}, s{S_SUB}, 7")
                if o.lmap != 3:
                    e(f"s_mul_i32 s{S_TY}, s{S_SUB}, 3")
                    e(f"s_sub_u32 s{S_TY}, s{S_WAVE}, s{S_TY}        ; ty = wave % 3")
                e(f"s_mov_b32 s{S_OUT + 2}, s{S_X + 2}")
                e(f"s_mov_b32 s{S_OUT + 3}, s{S_X + 3}")
                e(f"s_mov_b32 s{S_WS + 2}, {(2 << 20) if o.stamps else WS_USED}")
                e(f"s_mov_b32 s{S_WS + 3}, s{S_X + 3}")
                e(f"s_movk_i32 s{S_DBG + 2}, 256")
                e(f"s_mov_b32 s{S_DBG + 3}, s{S_X + 3}")
                e(f"s_movk_i32 s{S_T2}, 24576")
                e(f"v_bfe_u32 v{V_G0}, v{V_L}, 13, 1")
                e(f"v_add_u32 v{V_G1}, 12288, v{V_L}")
                e(f"v_bfe_u32 v{V_G1}, v{V_G1}, 13, 1")
                e(f"v_mul_u32_u24 v{V_G0}, s{S_T2}, v{V_G0}")
                e(f"v_mul_u32_u24 v{V_G1}, s{S_T2}, v{V_G1}")
                e(f"s_lshr_b32 s{S_T0}, s{S_OUT}, 7")
                e(f"s_mul_i32 s{S_T0}, s{S_T0}, 21")
                e(f"s_and_b32 s{S_T0}, s{S_T0}, 63")
                e(f"s_mulk_i32 s{S_T0}, 384")
                e(f"s_lshr_b32 s{S_BASE}, s2, 3")
                if o.qrot:
                    if o.qrot >= 16:
                        e(f"s_lshr_b32 s{S_T1}, s{S_BASE}, {o.qrot - 16}")
                    else:
                        e(f"s_mul_i32 s{S_T1}, s{S_BASE}, {o.qrot}")
                    e(f"s_add_u32 s{S_T1}, s{S_T1}, s2")
                    e(f"s_and_b32 s{S_T1}, s{S_T1}, 3")
                else:
                    e(f"s_and_b32 s{S_T1}, s2, 3")
                if o.qmap == 0:
                    e(f"s_lshl2_add_u32 s{S_BASE}, s{S_BASE}, s{S_T1}")
                else:
                    e(f"s_lshl_b32 s{S_T1}, s{S_T1}, 5")
                    e(f"s_add_u32 s{S_BASE}, s{S_BASE}, s{S_T1}")
                e(f"s_add_u32 s{S_BASE1}, s{S_BASE}, {64 if o.h6 else o.qshift}")
                e(f"s_and_b32 s{S_BASE1}, s{S_BASE1}, 127")
                e(f"s_mul_i32 s{S_BASE}, s{S_BASE}, {49152 if o.h6 else 98304}")
                e(f"s_add_u32 s{S_BASE}, s{S_BASE}, s{S_T0}        ; the pair's first span of a step")
                e(f"s_mul_i32 s{S_BASE1}, s{S_BASE1}, {49152 if o.h6 else 98304}")
                e(f"s_add_u32 s{S_BASE1}, s{S_BASE1}, s{S_T0}")
                e(f"s_add_u32 s{S_BASE1}, s{S_BASE1}, {6 * MiB if o.h6 else 49152}      ; its second span: 3 MiB on, where the memory stacks swap")
                h1 = mask(lambda z, s: s[1] == 1)
                e(f"s_add_u32 s{S_T2}, s{S_T2}, s{S_OUT}")
                e(f"s_add_u32 s{S_T0}, s{S_BASE}, s{S_T2}")
                e(f"s_bfe_i32 s{S_PM}, s{S_T0}, 0x10015")
                e(f"s_add_u32 s{S_T2}, s{S_BASE1}, s{S_T2}")
                e(f"s_xor_b32 s{S_T0}, s{S_T0}, s{S_T2}")
                e(f"s_bfe_i32 s{S_T0}, s{S_T0}, 0x10015")
                e(f"s_and_b32 s{S_T0}, s{S_T0}, {h1}")
                e(f"s_xor_b32 s{S_PM}, s{S_PM}, s{S_T0}")
                m1 = mask(lambda z, s: z >= NAGN and s[0] in ((0, 1) if o.bfirst else (3, 4)))
                z50 = SPANS.index((2 if o.bfirst else 5, 0))
                z51 = SPANS.index((2 if o.bfirst else 5, 1))
                edge = (8 if o.bfirst else 4) * MiB - 24576
                dec = mask(lambda z, s: z >= NAGN)
                e(f"s_cmp_lt_u32 s{S_BASE}, {edge}")
                e(f"s_cselect_b32 s{S_T0}, {1 << z50}, 0")
                e(f"s_or_b32 s{S_T0}, s{S_T0}, {m1}")
                e(f"s_cmp_lt_u32 s{S_BASE1}, {edge}")
                e(f"s_cselect_b32 s{S_T1}, {1 << z51}, 0")
                e(f"s_or_b32 s{S_T0}, s{S_T0}, s{S_T1}            ; third 1")
                e(f"s_xor_b32 s{S_T1}, s{S_T0}, {dec}           ; third 2")
                per, pat = o.opp
                rep = sum(((pat >> (i % per)) & 1) << i for i in range(32))
                e(f"s_lshr_b32 s{S_P}, s2, 3")
                e(f"s_mul_i32 s{S_T2}, s{S_P}, {-(-256 // per)}")
                e(f"s_lshr_b32 s{S_T2}, s{S_T2}, 8")
                e(f"s_mul_i32 s{S_T2}, s{S_T2}, {per}")
                e(f"s_sub_u32 s{S_P}, s{S_P}, s{S_T2}             ; (b >> 3) % {per}")
                e(f"s_lshr_b32 s{S_P}, {rep}, s{S_P}")
                e(f"s_sub_u32 s{S_T2}, s{S_OUT}, s{S_X}")
                e(f"s_add_u32 s{S_T2}, s{S_T2}, 2048")
                e(f"s_bitcmp1_b32 s{S_T2}, 12")
                e(f"s_cselect_b32 s{S_P}, 0, s{S_P}")
                e(f"s_cselect_b32 s{S_OK}, 0, {1 << 23}")
                e(f"s_or_b32 s{S_OK}, s{S_OK}, {RES_OK}       ; the parts of the result word that must be in")
                e(f"s_lshr_b32 s{S_T2}, s2, 3")
                e(f"s_sub_u32 s{S_RID}, s{S_T2}, {o.red0}")
                e(f"s_and_b32 s{S_PO}, s2, 7")
                e(f"s_lshl_b32 s{S_PO}, s{S_PO}, 5")
                e(f"s_add_u32 s{S_PO}, s{S_PO}, s{S_T2}")
                e(f"s_mulk_i32 s{S_PO}, 1536")
                if o.last:
                    e("v_mov_b32 v20, 0")
                    e("v_lshlrev_b32 v21, 2, v1")
                    e("s_mov_b64 exec, 7")
                    e(f"ds_write_b32 v21, v20 offset:{L_CNT}")
                    e("s_mov_b64 exec, -1")
                e("s_waitcnt lgkmcnt(0)")
                self.stamp(11)
                e("s_barrier")
                e(f"s_load_dword s{S_T2}, s[{S_DBG}:{S_DBG + 1}], {DBG_RES}")
                e("s_waitcnt lgkmcnt(0)")
                e(f"s_andn2_b32 s{S_CNT}, s{S_OK}, s{S_T2}")
                e("s_cbranch_scc1 L_dpoll")
                e("L_decided:")
                for i in range(4):
                    e(f"s_bitcmp1_b32 s{S_T2}, {7 + 6 * i + 5}")
                    e(f"s_cselect_b32 s{S_V + i}, s{(S_T0, S_T1)[i >> 1]}, 0")
                e(f"s_or_b32 s{S_V}, s{S_V}, s{S_V + 2}")
                e(f"s_or_b32 s{S_V + 1}, s{S_V + 1}, s{S_V + 3}")
                e(f"s_xor_b32 s{S_V}, s{S_V}, s{S_V + 1}")
                e(f"s_and_b32 s{S_V}, s{S_V}, s{S_P}")
                e(f"s_xor_b32 s{S_V}, s{S_V}, s{S_V + 1}")
                e(f"s_xor_b32 s{S_PM}, s{S_PM}, s{S_V}")
                e(f"s_lshr_b32 s{S_QC}, s{S_T2}, 13")
                e(f"s_add_u32 s{S_QC}, s{S_QC}, s2")
                e(f"s_bfe_i32 s{S_V}, s{S_QC}, 0x10002")
                e(f"s_xor_b32 s{S_PM}, s{S_PM}, s{S_V}")
                e(f"s_and_b32 s{S_TG[0]}, s{S_T2}, 15")
                e(f"s_bfe_u32 s{S_TG[1]}, s{S_T2}, 0x40004")
                e(f"s_xor_b32 s{S_TG[2]}, s{S_TG[0]}, 15")
                e(f"s_xor_b32 s{S_TG[3]}, s{S_TG[1]}, 15")
                e(f"s_lshr_b32 s{S_V}, s{S_T2}, 10")
                e(f"s_and_b32 s{S_V}, s{S_V}, 4")
                e(f"s_xor_b32 s{S_QC}, s{S_QC}, s{S_V}           ; bits 2:0: the second-stage copy near this die")
                if o.xfer:
                    e("; dies with an odd number run a little slower: some waves there leave their last slot to the even neighbour")
                    assert SPANS[15] == (7, 0)
                    e(f"s_lshr_b32 s{S_T0}, s{S_T2}, 13")
                    e(f"s_add_u32 s{S_T1}, s{S_T0}, s2")
                    e(f"s_and_b32 s{S_XR}, s{S_T1}, 1")
                    e(f"s_sub_u32 s{S_XR}, 2, s{S_XR}")
                    e(f"s_cmp_ge_u32 s{S_WAVE}, {12 - o.xfer}")
                    e(f"s_cselect_b32 s{S_XR}, s{S_XR}, 0")
                    e(f"s_xor_b32 s{S_T1}, s{S_T1}, 1")
                    e(f"s_sub_u32 s{S_T1}, s{S_T1}, s{S_T0}")
                    e(f"s_and_b32 s{S_T1}, s{S_T1}, 3")
                    e(f"s_and_b32 s{S_T0}, s2, 3")
                    e(f"s_sub_u32 s{S_T1}, s{S_T1}, s{S_T0}")
                    e(f"s_mul_i32 s{S_T1}, s{S_T1}, 98304")
                    e(f"s_add_u32 s{S_XO}, s{S_BASE}, s{S_T1}        ; the neighbour's first span of a step")
                    e(f"s_add_u32 s{S_T0}, s{S_OUT}, 24576")
                    e(f"s_add_u32 s{S_T1}, s{S_T0}, s{S_XO}")
                    e(f"s_add_u32 s{S_T0}, s{S_T0}, s{S_BASE}")
                    e(f"s_xor_b32 s{S_T0}, s{S_T0}, s{S_T1}")
                    e(f"s_lshr_b32 s{S_T0}, s{S_T0}, 6")
                    e(f"s_xor_b32 s{S_T0}, s{S_T0}, s{S_PM}")
                    e(f"s_bitcmp1_b32 s{S_T0}, 15")
                    e(f"s_cselect_b32 s{S_XP}, 24576, 0")
                    e(f"s_add_u32 s{S_XO}, s{S_XO}, {7 * 12 * MiB + 12288}")
                if o.wtouch:
                    e("s_load_dword s22, s[36:37], 0")
                    e("s_load_dword s23, s[38:39], 0")
                self.stamp(12)
            if j in o.xbar:
                e("s_barrier")
                if j == o.xbar[-1]:
                    self.stamp(2, "r")
            if o.xfer and j == o.xpos:
                e(f"s_cmp_lg_u32 s{S_XR}, 2")
                e("s_cbranch_scc1 L_nox1")
                e(f"s_lshl_b32 s{S_T0}, s{S_WAVE}, 10")
                e(f"s_add_u32 m0, s{S_T0}, {L_X}")
                e(f"v_xad_u32 v3, v{V_G1}, s{S_XP}, v{V_L}")
                e(f"buffer_load_dwordx4 v3, s[{S_X}:{S_X + 3}], s{S_XO} offen{ldf} lds")
                e("L_nox1:")
            if j == o.warm and o.warmst:
                e("; waves 0 and 1 claim their first-stage lines in L2 with a pattern that no tag matches")
                e(f"s_cmp_ge_u32 s{S_WAVE}, 2")
                e("s_cbranch_scc1 L_nowarm")
                for i in range(4):
                    e(f"v_mov_b32 v{20 + i}, 0")
                e(f"s_mul_i32 s{S_T0}, s{S_WAVE}, 768")
                e(f"v_lshl_add_u32 v3, v1, 4, s{S_T0}")
                e("s_mov_b32 exec_hi, 0xffff")
                e(f"buffer_store_dwordx4 v[20:23], v3, s[{S_WS}:{S_WS + 3}], s{S_PO} offen")
                e("s_mov_b64 exec, -1")
                e("L_nowarm:")
            if j == o.warm and not o.warmst:
                e("; one wave pulls this workgroup's first-stage lines into L2 (values unused)")
                e(f"s_cmp_lg_u32 s{S_WAVE}, {o.warmwave}")
                e("s_cbranch_scc1 L_nowarm")
                e("v_lshlrev_b32 v3, 7, v1")
                e("s_mov_b64 exec, 0xfff")
                e(f"buffer_load_dword v37, v3, s[{S_WS}:{S_WS + 3}], s{S_PO} offen {o.warmfl}")
                e("s_mov_b64 exec, -1")
                if o.lpf == 2:
                    e("; ... and, in one workgroup per group, the code that is still to run")
                    e(f"s_cmp_lg_u32 s{S_RID}, {NRED}")
                    e("s_cbranch_scc1 L_nowarm")
                    e("s_getpc_b64 s[20:21]")
                    if o.lay:
                        e("v_add_u32 v3, L_tail - L_nowarm + 32, v3")
                    e("v_min_u32 v3, L_end - L_nowarm, v3")
                    e("global_load_dword v37, v3, s[20:21]")
                e("L_nowarm:")
            r = D0 + 4 * j
            if o.thr and j == 10:
                e("; dies with an even number win the fabric arbitration: they keep fewer loads in flight for a while")
                e(f"s_getreg_b32 s{S_T0}, hwreg(HW_REG_XCC_ID, 0, 3)")
                e(f"s_lshr_b32 s{S_T0}, {o.thrmask}, s{S_T0}")
                e(f"s_and_b64 vcc, s[{S_T0}:{S_T0 + 1}], 1")
            if o.cap and o.capfrom <= j < o.capto:
                e(f"s_waitcnt vmcnt({o.cap - 1})")
            if o.thr and o.thrfrom <= j < o.thrto:
                e(f"s_cbranch_vccz L_thr{j}")
                e(f"s_waitcnt vmcnt({o.thr - 1})")
                e(f"L_thr{j}:")
            self.mem(j, lambda va, so: e(f"buffer_load_dwordx4 v[{r}:{r + 3}], {va}, s[{S_X}:{S_X + 3}], {so} offen{ldf}"))
            seq.append(j)
            if o.sdiag and j == 0:
                self.stamp(2, True)
            if o.sdiag and j == 2:
                e("s_waitcnt vmcnt(2)")
                self.stamp(3, True)
            if j & 1:
                self.trace("ld", j >> 1)

        def wait_for(j):
            e(f"s_waitcnt vmcnt({len(seq) - 1 - seq.index(j)})")

        def scatter54():
            e("; ---- in-wave reduce-scatter across lane bits 5, 4, 3")
            for base in (MAX, SUM):
                for i in range(4):
                    e(f"v_permlane32_swap_b32 v{base + i}, v{base + 4 + i}")
            for i in range(4):
                e(f"v_max_f32 v{MAX + i}, v{MAX + i}, v{MAX + 4 + i}")
            for i in range(4):
                e(f"v_add_f32 v{SUM + i}, v{SUM + i}, v{SUM + 4 + i}")
            for i in range(2):
                e(f"v_permlane16_swap_b32 v{MAX + i}, v{MAX + 2 + i}")
            for i in range(2):
                e(f"v_permlane16_swap_b32 v{SUM + i}, v{SUM + 2 + i}")
            for i in range(2):
                e(f"v_add_f32 v{SUM + i}, v{SUM + i}, v{SUM + 2 + i}")
            for i in range(2):
                e(f"v_max_f32 v{MAX + i}, v{MAX + i}, v{MAX + 2 + i}")

        nxt = 0
        for jj in range(16):
            while nxt < 32 and nxt < max(2 * jj + DEPTH + 2, 2 * NAGN + 2 if o.prebar else 0):
                issue(nxt)
                nxt += 1
                if nxt == 32:
                    self.stamp(1)
            a, b = D0 + 8 * jj, D0 + 8 * jj + 4
            if jj == 0:
                e("@@HERE1")
            if jj == 15:
                e("@@HERE2")
                if o.last:
                    e("; LDS slots [ty][sub][lane] of 8 bytes, counter of this third of the channels")
                    e(f"s_lshl_b32 s{S_T0}, s{S_TY}, 11")
                    e(f"v_lshl_add_u32 v3, v1, 3, s{S_T0}")
                    e(f"s_lshl_b32 s{S_T0}, s{S_SUB}, 9")
                    e(f"v_add_u32 v2, s{S_T0}, v3")
                    e(f"s_lshl2_add_u32 s{S_T0}, s{S_TY}, {L_CNT}")
                    e(f"v_mov_b32 v28, s{S_T0}")
                    e("v_mov_b32 v29, 1")
                    e("; first-stage address: kind*768 + ty*256 + (l>>4)*64 + (l&7)*8, and the tags of its two words")
                    e("v_and_b32 v30, 7, v1")
                    e("v_lshrrev_b32 v31, 4, v1")
                    e("v_lshl_add_u32 v30, v31, 3, v30")
                    e("v_bfe_u32 v31, v1, 3, 1")
                    e("v_mul_u32_u24 v31, 96, v31")
                    e(f"s_lshl_b32 s{S_T0}, s{S_TY}, 5")
                    e(f"v_add3_u32 v30, v30, v31, s{S_T0}")
                    e("v_lshlrev_b32 v30, 3, v30")
                    e("v_bfe_i32 v31, v1, 0, 1")
                    e("v_and_b32 v31, 15, v31")
                    e(f"v_xor_b32 v32, s{S_TG[1]}, v31")
                    e(f"v_xor_b32 v31, s{S_TG[0]}, v31")
                else:
                    e("; LDS address for this lane: ((sub*2 + kind)*192 + ty*64 + (l&7)*8 + 2*(l>>4)) * 4")
                    e("v_and_b32 v2, 7, v1")
                    e("v_lshlrev_b32 v2, 5, v2                   ; (l&7)*32")
                    e("v_lshrrev_b32 v3, 4, v1")
                    e("v_lshl_add_u32 v2, v3, 3, v2              ; + (l>>4)*8")
                    e("v_bfe_u32 v3, v1, 3, 1")
                    e("v_mul_u32_u24 v3, 768, v3")
                    e(f"s_mul_i32 s{S_T0}, s{S_SUB}, 1536")
                    e(f"s_lshl_b32 s{S_T1}, s{S_TY}, 8")
                    e(f"s_add_u32 s{S_T0}, s{S_T0}, s{S_T1}")
                    e(f"v_add3_u32 v2, v2, v3, s{S_T0}")
                    e(f"s_mul_i32 s{S_T0}, s{S_WAVE}, 768")
                    e(f"v_lshl_add_u32 v3, v1, 4, s{S_T0}")
                if o.ttail:
                    e("; the accumulators are folded across lane bits 5 and 4 now; the last two loads are")
                    e("; transposed the same way while still packed, which shortens the work behind the last arrival")
                    scatter54()
                    for r in (a, b):
                        wait_for((r - D0) // 4)
                        if r == b:
                            self.stamp(3)
                        C = T + 8
                        e(f"v_mov_b64 v[{C}:{C + 1}], v[{r}:{r + 1}]")
                        e(f"v_mov_b64 v[{C + 2}:{C + 3}], v[{r + 2}:{r + 3}]")
                        e("s_nop 1")
                        e(f"v_permlane32_swap_b32 v{C}, v{C + 2}")
                        e(f"v_permlane32_swap_b32 v{C + 1}, v{C + 3}")
                        e("s_nop 1")
                        e(f"v_permlane16_swap_b32 v{C}, v{C + 1}")
                        e(f"v_permlane16_swap_b32 v{C + 2}, v{C + 3}")
                        for i in range(4):
                            t = T + 2 * i
                            e(f"v_lshlrev_b32 v{t}, 16, v{C + i}")
                            e(f"v_and_b32 v{t + 1}, s{S_MASK}, v{C + i}")
                        e(f"v_pk_add_f32 v[{C}:{C + 1}], v[{T}:{T + 1}], v[{T + 2}:{T + 3}]")
                        e(f"v_pk_add_f32 v[{C + 2}:{C + 3}], v[{T + 4}:{T + 5}], v[{T + 6}:{T + 7}]")
                        e(f"v_max3_f32 v{MAX}, v{MAX}, v{T}, v{T + 2}")
                        e(f"v_pk_add_f32 v[{C}:{C + 1}], v[{C}:{C + 1}], v[{C + 2}:{C + 3}]")
                        e(f"v_max3_f32 v{MAX + 1}, v{MAX + 1}, v{T + 1}, v{T + 3}")
                        e(f"v_pk_add_f32 v[{SUM}:{SUM + 1}], v[{SUM}:{SUM + 1}], v[{C}:{C + 1}]")
                        e(f"v_max3_f32 v{MAX}, v{MAX}, v{T + 4}, v{T + 6}")
                        e(f"v_max3_f32 v{MAX + 1}, v{MAX + 1}, v{T + 5}, v{T + 7}")
                    continue
                def fold(r):
                    for i in range(4):
                        t = T + 2 * i
                        e(f"v_lshlrev_b32 v{t}, 16, v{r + i}")
                        e(f"v_and_b32 v{t + 1}, s{S_MASK}, v{r + i}")
                    for i in range(8):
                        e(f"v_max_f32 v{MAX + i}, v{MAX + i}, v{T + i}")
                    for i in range(4):
                        t, s = T + 2 * i, SUM + 2 * i
                        e(f"v_pk_add_f32 v[{s}:{s + 1}], v[{s}:{s + 1}], v[{t}:{t + 1}]")
                if o.xfer:
                    assert o.xpos <= 28
                    e(f"s_cmp_lg_u32 s{S_XR}, 2")
                    e("s_cbranch_scc1 L_nox2")
                    e(f"s_lshl_b32 s{S_T0}, s{S_WAVE}, 10")
                    e(f"s_add_u32 s{S_T0}, s{S_T0}, {L_X}")
                    e(f"v_lshl_add_u32 v{V_AT}, v1, 4, s{S_T0}")
                    e(f"ds_read_b128 v[28:31], v{V_AT}")
                    e("s_waitcnt lgkmcnt(0)")
                    fold(28)
                    e("L_nox2:")
                e("; the last two loads are folded in one at a time")
                for r in (a, b):
                    wait_for((r - D0) // 4)
                    if r == b:
                        self.stamp(3)
                        if o.xfer:
                            e(f"s_cmp_eq_u32 s{S_XR}, 1")
                            e("s_cbranch_scc1 L_nox3")
                    fold(r)
                if o.xfer:
                    e("L_nox3:")
                continue
            wait_for(2 * jj + 1)
            if jj == 0 and not o.xbar:
                self.stamp(2)
            if jj >= o.skipfrom:
                continue
            for i in range(4):
                t = T + 4 * i
                e(f"v_lshlrev_b32 v{t}, 16, v{a + i}")
                e(f"v_and_b32 v{t + 1}, s{S_MASK}, v{a + i}")
                e(f"v_lshlrev_b32 v{t + 2}, 16, v{b + i}")
                e(f"v_and_b32 v{t + 3}, s{S_MASK}, v{b + i}")
            for i in range(4):
                t = T + 4 * i
                s, m = SUM + 2 * i, MAX + 2 * i
                if jj == 0:
                    e(f"v_max_f32 v{m}, v{t}, v{t + 2}")
                    e(f"v_max_f32 v{m + 1}, v{t + 1}, v{t + 3}")
                    e(f"v_pk_add_f32 v[{s}:{s + 1}], v[{t}:{t + 1}], v[{t + 2}:{t + 3}]")
                else:
                    e(f"v_max3_f32 v{m}, v{m}, v{t}, v{t + 2}")
                    e(f"v_max3_f32 v{m + 1}, v{m + 1}, v{t + 1}, v{t + 3}")
                    e(f"v_pk_add_f32 v[{t}:{t + 1}], v[{t}:{t + 1}], v[{t + 2}:{t + 3}]")
            if jj:
                for i in range(4):
                    t = T + 4 * i
                    s = SUM + 2 * i
                    e(f"v_pk_add_f32 v[{s}:{s + 1}], v[{s}:{s + 1}], v[{t}:{t + 1}]")

        if not o.ttail:
            scatter54()
        e(f"s_cmp_ge_u32 s{S_WAVE}, 2")
        for i in range(2):
            e(f"v_add_f32_dpp v{SUM + i}, v{SUM + i}, v{SUM + i} row_ror:8 row_mask:0xf bank_mask:0x3")
        for i in range(2):
            e(f"v_max_f32_dpp v{SUM + i}, v{MAX + i}, v{MAX + i} row_ror:8 row_mask:0xf bank_mask:0xc")
        if o.last:
            e("; the last of the four waves that share these channels folds the four slots and publishes")
            e(f"ds_write_b64 v2, v[{SUM}:{SUM + 1}] offset:{L_RED}")
            e("s_mov_b64 exec, 1")
            e("ds_add_rtn_u32 v6, v28, v29")
            e("s_mov_b64 exec, -1")
            e("ds_read2st64_b64 v[8:11], v3 offset0:0 offset1:1")
            e("ds_read2st64_b64 v[12:15], v3 offset0:2 offset1:3")
            e("s_waitcnt lgkmcnt(1)")
            e(f"v_readfirstlane_b32 s{S_T0}, v6")
            e("v_pk_add_f32 v[4:5], v[8:9], v[10:11]")
            e("s_waitcnt lgkmcnt(0)")
            e("v_max3_f32 v8, v8, v10, v12")
            e("v_max3_f32 v9, v9, v11, v13")
            e("v_pk_add_f32 v[16:17], v[12:13], v[14:15]")
            e(f"s_cmp_lg_u32 s{S_T0}, 3")
            e("v_pk_add_f32 v[4:5], v[4:5], v[16:17]")
            e("s_cbranch_scc1 L_notlast")
            e("v_max_f32_dpp v4, v8, v14 quad_perm:[0,1,2,3] row_mask:0xf bank_mask:0xc")
            e("v_max_f32_dpp v5, v9, v15 quad_perm:[0,1,2,3] row_mask:0xf bank_mask:0xc")
            e("v_and_or_b32 v4, v4, -16, v31")
            e("v_and_or_b32 v5, v5, -16, v32")
            e(f"buffer_store_dwordx2 v[4:5], v30, s[{S_WS}:{S_WS + 3}], s{S_PO} offen")
            e("L_notlast:")
            e("v_lshrrev_b32 v20, 4, v1                  ; q")
            e(f"s_cmp_lt_u32 s{S_RID}, {NRED}")
            e(f"s_cselect_b32 s{S_T0}, s{S_WAVE}, 0")
            e(f"s_cmp_eq_u32 s{S_T0}, 3")
            e("s_cbranch_scc1 L_rsetup")
            e(f"s_cmp_ge_u32 s{S_WAVE}, 2")
            e("s_barrier")
            self.stamp(4)
            e("s_cbranch_scc1 L_nopub")
            e("; ---- waves 0 and 1 stage the weights")
            e(f"s_cmp_eq_u32 s{S_WAVE}, 0")
            e(f"s_cselect_b64 s[{S_W}:{S_W + 1}], s[36:37], s[38:39]")
        else:
            e(f"ds_write_b64 v2, v[{SUM}:{SUM + 1}] offset:{L_RED}")
            e("s_waitcnt lgkmcnt(0)")
            e("s_barrier")
            self.stamp(4)
            e("s_cbranch_scc1 L_nopub")

            e("; ---- waves 0 (sums) and 1 (maxes): combine the four row groups, publish, then stage the weights")
            e("s_mov_b32 exec_hi, 0xffff")
            for k in range(4):
                e(f"ds_read_b128 v[{4 + 4 * k}:{7 + 4 * k}], v3 offset:{L_RED + 1536 * k}")
            e(f"s_cmp_eq_u32 s{S_WAVE}, 0")
            e(f"s_cselect_b64 s[{S_W}:{S_W + 1}], s[36:37], s[38:39]")
            e("s_cbranch_scc0 L_pubmax")
            e("s_waitcnt lgkmcnt(2)")
            e("v_pk_add_f32 v[4:5], v[4:5], v[8:9]")
            e("v_pk_add_f32 v[6:7], v[6:7], v[10:11]")
            e("s_waitcnt lgkmcnt(0)")
            e("v_pk_add_f32 v[12:13], v[12:13], v[16:17]")
            e("v_pk_add_f32 v[14:15], v[14:15], v[18:19]")
            e("v_pk_add_f32 v[4:5], v[4:5], v[12:13]")
            e("v_pk_add_f32 v[6:7], v[6:7], v[14:15]")
            e("s_branch L_pub")
            e("L_pubmax:")
            e("s_waitcnt lgkmcnt(1)")
            for i in range(4):
                e(f"v_max3_f32 v{4 + i}, v{4 + i}, v{8 + i}, v{12 + i}")
            e("s_waitcnt lgkmcnt(0)")
            for i in range(4):
                e(f"v_max_f32 v{4 + i}, v{4 + i}, v{16 + i}")
            e("L_pub:")
            for i in range(4):
                e(f"v_and_or_b32 v{4 + i}, v{4 + i}, -16, s{S_TG[i]}")
            e(f"buffer_store_dwordx4 v[4:7], v3, s[{S_WS}:{S_WS + 3}], s{S_PO} offen{' sc1' if o.psc1 else ' nt' if o.pnt else ''}")
            e("s_mov_b64 exec, -1")
        e(f"s_movk_i32 s{S_W + 2}, 18432")
        e(f"s_mov_b32 s{S_W + 3}, 0x20000")
        e(f"s_mul_i32 s{S_T0}, s{S_WAVE}, 18432")
        e(f"s_addk_i32 s{S_T0}, {L_W1}")
        e(f"s_mov_b32 s{S_T1}, 0")
        e("v_lshlrev_b32 v2, 4, v1")
        e("L_wloop:")
        e(f"s_add_u32 m0, s{S_T0}, s{S_T1}")
        e("s_nop 0")
        for k in range(3):
            e(f"buffer_load_dwordx4 v2, s[{S_W}:{S_W + 3}], s{S_T1} offen offset:{k * 1024} lds")
        e(f"s_addk_i32 s{S_T1}, 3072")
        e(f"s_cmp_lt_u32 s{S_T1}, 18432")
        e("s_cbranch_scc1 L_wloop")
        e("L_nopub:")

        B2 = 28
        V_H0, V_H1, V_SW, V_SR, V_Q = 24, 25, 26, 27, 37
        SP0 = 136
        A1 = 144
        B1 = [4, 8, 12, 16, 136, 140]
        if o.last:
            e(f"s_cmp_lt_u32 s{S_WAVE}, 3")
            e("s_cbranch_scc1 L_spill")
            e("s_branch L_barw")
            e("L_rsetup:")
        else:
            e("v_lshrrev_b32 v20, 4, v1                  ; q")
            e(f"s_cmp_lt_u32 s{S_WAVE}, 3")
            e("s_cbranch_scc1 L_spill")
            e(f"s_cmp_ge_u32 s{S_RID}, {NRED}")
            e("s_cbranch_scc1 L_barw")
            e(f"s_cmp_lg_u32 s{S_WAVE}, 3")
            e("s_cbranch_scc1 L_barw")

        def clean(lbl, d, a):
            e("; every reducer is done: wave 3 writes the first-stage lines through, so that no dirty line stays in L2")
            e(f"s_cmp_lg_u32 s{S_WAVE}, 3")
            e(f"s_cbranch_scc1 {lbl}")
            if o.cw:
                e(f"v_mov_b32 v{d}, 0")
                e(f"v_lshlrev_b32 v{a}, {o.cw}, v1")
                e(f"s_mov_b64 exec, {(1 << (1536 >> o.cw)) - 1}")
                if o.cld:
                    e(f"buffer_atomic_or v{d}, v{a}, s[{S_WS}:{S_WS + 3}], s{S_PO} offen")
                else:
                    e(f"buffer_store_dword v{d}, v{a}, s[{S_WS}:{S_WS + 3}], s{S_PO} offen sc1")
                e("s_mov_b64 exec, -1")
                return
            for i in range(4):
                e(f"v_mov_b32 v{d + i}, 0")
            e(f"v_lshlrev_b32 v{a}, 4, v1")
            e("s_mov_b32 exec_hi, 0xffff")
            e(f"buffer_store_dwordx4 v[{d}:{d + 3}], v{a}, s[{S_WS}:{S_WS + 3}], s{S_PO} offen sc1")
            e(f"buffer_store_dwordx4 v[{d}:{d + 3}], v{a}, s[{S_WS}:{S_WS + 3}], s{S_PO} offen offset:768 sc1")
            e("s_mov_b64 exec, -1")

        e("v_lshrrev_b32 v2, 3, v1")
        e("v_mul_u32_u24 v2, 1536, v2")
        e("v_and_b32 v3, 7, v1")
        e(f"v_lshl_add_u32 v{V_Q}, v3, 4, v2")
        e(f"s_and_b32 s{S_T0}, s2, 7")
        e(f"s_mul_i32 s{S_V}, s{S_T0}, {32 * 1536}")
        e(f"s_lshl_b32 s{S_T1}, s{S_RID}, 7")
        e(f"s_add_u32 s{S_V}, s{S_V}, s{S_T1}")
        for k in range(1, 4):
            e(f"s_add_u32 s{S_V + k}, s{S_V}, {k * 8 * 1536}")
        e(f"s_lshl_b32 s{S_T0}, s{S_T0}, 8              ; group*256")
        e(f"s_lshr_b32 s{S_T1}, s{S_RID}, 2")
        e(f"s_lshl2_add_u32 s{S_T1}, s{S_T1}, s{S_RID}")
        e(f"s_lshl_b32 s{S_T1}, s{S_T1}, 11")
        e(f"s_add_u32 s{S_T1}, s{S_T1}, s{S_T0}")
        for k in range(o.qcopy // 2):
            e(f"s_add_u32 s{S_W + k}, s{S_T1}, {WS_Q + k * 49152}")
        e("v_and_b32 v2, 15, v1")
        e("v_lshlrev_b32 v3, 2, v2")
        e("v_bfe_u32 v2, v1, 4, 1")
        e("v_lshl_add_u32 v3, v2, 7, v3")
        e("v_lshrrev_b32 v2, 5, v1")
        e("v_lshl_add_u32 v3, v2, 13, v3             ; (l>>5)*8192 + ((l>>4)&1)*128 + (l&15)*4")
        e(f"s_lshl4_add_u32 s{S_T0}, s{S_TG[1]}, s{S_TG[0]}")
        e(f"s_xor_b32 s{S_CNT}, s{S_T0}, 0xff")
        e(f"s_lshl_b32 s{S_CNT}, s{S_CNT}, 8")
        e(f"s_or_b32 s{S_T0}, s{S_T0}, s{S_CNT}")
        e("v_and_b32 v2, 12, v3")
        e(f"v_bfe_u32 v23, s{S_T0}, v2, 4")
        e(f"s_mov_b32 s{S_CNT}, {NFB}")
        e(f"s_mov_b32 s{S_HOOK}, 0")
        if o.last:
            e("s_barrier")
            self.stamp(4)
        e("L_rpoll:")
        for k in range(4):
            e(f"buffer_load_dwordx4 v[{4 + 4 * k}:{7 + 4 * k}], v{V_Q}, s[{S_WS}:{S_WS + 3}], s{S_V + k} offen sc1")
        e(f"s_sub_u32 s{S_CNT}, s{S_CNT}, 1")
        e("s_cbranch_scc1 L_rlong")
        for k in range(4):
            e(f"s_waitcnt vmcnt({3 - k})")
            r = 4 + 4 * k
            for i in range(4):
                e(f"v_xor_b32 v{r + i}, s{S_TG[i]}, v{r + i}" + ("            ; a matching tag leaves four zero bits" if k + i == 0 else ""))
            if k == 0:
                e(f"v_or3_b32 v21, v{r}, v{r + 1}, v{r + 2}")
                e(f"v_or_b32 v21, v21, v{r + 3}")
            elif k < 3:
                e(f"v_or3_b32 v21, v21, v{r}, v{r + 1}")
                e(f"v_or3_b32 v21, v21, v{r + 2}, v{r + 3}")
            else:
                e(f"v_or3_b32 v21, v21, v{r}, v{r + 1}")
                e(f"v_or_b32 v22, v{r + 2}, v{r + 3}")
        e("v_bitop3_b32 v21, v21, v22, 15 bitop3:0xa8          ; (a | b) & c")
        e("v_cmp_ne_u32 vcc, 0, v21")
        e("s_wqm_b64 exec, vcc                       ; 64-byte units still waiting poll again")
        e("s_cbranch_scc1 L_rpoll")
        e("L_rgot:")
        e("s_mov_b64 exec, -1")
        self.stamp(1, "r")
        e(f"s_cmp_ge_u32 s{S_RID}, 6")
        e("s_cbranch_scc1 L_rmax")
        for kind in (0, 1):
            op = "v_add_f32" if kind == 0 else "v_max_f32"
            if kind == 1:
                e("L_rmax:")
                for i in range(4):
                    e(f"v_max3_f32 v{4 + i}, v{4 + i}, v{8 + i}, v{12 + i}")
                for i in (0, 2, 1, 3):
                    e(f"v_max_f32 v{4 + i}, v{4 + i}, v{16 + i}")
            else:
                e("v_pk_add_f32 v[4:5], v[4:5], v[8:9]")
                e("v_pk_add_f32 v[6:7], v[6:7], v[10:11]")
                e("v_pk_add_f32 v[12:13], v[12:13], v[16:17]")
                e("v_pk_add_f32 v[14:15], v[14:15], v[18:19]")
                e("v_pk_add_f32 v[4:5], v[4:5], v[12:13]")
                e("v_pk_add_f32 v[6:7], v[6:7], v[14:15]")
                e("s_nop 0")
            e(f"{op}_dpp v4, v4, v4 row_ror:8 row_mask:0xf bank_mask:0x3")
            if kind == 0:
                e(f"{op}_dpp v5, v5, v5 row_ror:8 row_mask:0xf bank_mask:0x3")
                e(f"{op}_dpp v4, v6, v6 row_ror:8 row_mask:0xf bank_mask:0xc")
            else:
                e(f"{op}_dpp v4, v6, v6 row_ror:8 row_mask:0xf bank_mask:0xc")
                e(f"{op}_dpp v5, v5, v5 row_ror:8 row_mask:0xf bank_mask:0x3")
            e(f"{op}_dpp v5, v7, v7 row_ror:8 row_mask:0xf bank_mask:0xc")
            e("s_nop 1")
            e("v_permlane16_swap_b32 v4, v5")
            e(f"{op} v4, v4, v5")
            e("v_mov_b32 v5, v4")
            e("s_nop 1")
            e("v_permlane32_swap_b32 v4, v5")
            e(f"{op} v4, v4, v5                        ; lane 16a+8b+c: element 2b+a of piece c")
            if kind == 0:
                e("s_branch L_rpub")
        e("L_rpub:")
        e("v_and_or_b32 v4, v4, -16, v23")
        for k in range(o.qcopy // 2):
            e(f"buffer_store_dword v4, v3, s[{S_WS}:{S_WS + 3}], s{S_W + k} offen sc1")
            if k == 0:
                self.stamp(9)
        if o.clean == "r":
            e("; this wave was the only reader of these lines: write them through, so that none stays dirty in L2")
            for i in range(4):
                e(f"v_mov_b32 v{8 + i}, 0")
            for k in range(4):
                e(f"buffer_store_dwordx4 v[8:11], v{V_Q}, s[{S_WS}:{S_WS + 3}], s{S_V + k} offen sc1")
        e("s_barrier")
        e("s_branch L_afterw")

        if o.pad:
            e(f".fill {o.pad // 4}, 4, 0xbf800000")
        e("; ---- waves 0..2 park 32 data registers in LDS to make room for the first layer's operands")
        e("L_spill:")
        e(f"s_lshl_b32 s{S_T0}, s{S_WAVE}, 13")
        e(f"v_lshl_add_u32 v{V_AT}, v1, 4, s{S_T0}")
        for k in range(8):
            e(f"ds_write_b128 v{V_AT}, v[{SP0 + 4 * k}:{SP0 + 4 * k + 3}] offset:{L_SPILL + 1024 * k}")
        e("L_barw:")
        if o.tlb:
            e("; wave 5 touches d_out once per region so that the first stores find their translations (values unused)")
            e(f"s_cmp_lg_u32 s{S_WAVE}, 5")
            e("s_cbranch_scc1 L_notlb")
            e(f"v_lshlrev_b32 v2, {o.tlb}, v1")
            e(f"buffer_load_dword v4, v2, s[{S_OUT}:{S_OUT + 3}], 0 offen")
            e("L_notlb:")
        if o.lpf == 1:
            e("; wave 4 pulls the code of the store phase into this die's L2 (values unused)")
            e(f"s_cmp_lg_u32 s{S_WAVE}, 4")
            e("s_cbranch_scc1 L_nolpf")
            e("s_getpc_b64 s[20:21]")
            e("v_lshlrev_b32 v2, 7, v1")
            e("v_min_u32 v2, L_end - L_nolpf, v2")
            e("global_load_dword v4, v2, s[20:21]")
            e("L_nolpf:")
        e("s_waitcnt vmcnt(0) lgkmcnt(0)")
        e("s_barrier")
        e("L_afterw:")
        e("v_bfe_u32 v3, v1, 2, 2")
        e("v_lshl_add_u32 v21, v20, 3, v3            ; row")
        e("v_and_b32 v22, 15, v21                    ; row of the half step (q&1)")
        e("v_and_b32 v3, 3, v1")
        e(f"s_lshl_b32 s{S_T2}, s{S_WAVE}, 5")
        e(f"v_lshl_add_u32 v23, v3, 3, s{S_T2}          ; column bytes")
        e("v_mov_b32 v3, 384")
        e("v_mad_u32_u24 v2, v21, v3, v23")
        e("v_mad_u32_u24 v22, v22, v3, v23")
        e(f"ds_read_b64_tr_b16 v[{B2}:{B2 + 1}], v2 offset:{L_W2}")
        e(f"ds_read_b64_tr_b16 v[{B2 + 2}:{B2 + 3}], v2 offset:{L_W2 + 4 * 384}")
        e(f"ds_read_b64_tr_b16 v[{B2 + 4}:{B2 + 5}], v22 offset:{L_W2 + 32 * 384}")
        e(f"ds_read_b64_tr_b16 v[{B2 + 6}:{B2 + 7}], v22 offset:{L_W2 + 36 * 384}")
        e("; H read addresses: kind*96 + q*16 ; half step: kind*96 + 64 + (q&1)*16")
        e("v_and_b32 v2, 1, v1")
        e("v_mul_u32_u24 v22, 96, v2")
        e(f"v_lshl_add_u32 v{V_H0}, v20, 4, v22")
        e("v_and_b32 v3, 1, v20")
        e(f"v_lshl_add_u32 v{V_H1}, v3, 4, v22")
        e(f"s_lshl_b32 s{S_T0}, s{S_WAVE}, 6")
        e(f"v_lshl_add_u32 v{V_SW}, v1, 2, s{S_T0}")
        if o.mul == "dot":
            e("; a scale sits in the half of its word that faces its channel, the other half is zero")
            e("v_mov_b32 v3, 0")
            e("s_mov_b64 exec, 0xffff")
            e(f"ds_write_b32 v{V_SW}, v3 offset:{L_S}")
            e("s_mov_b64 exec, -1")
            e(f"v_lshl_add_u32 v{V_SW}, v2, 1, v{V_SW}")
        e("v_and_b32 v3, 7, v1")
        e(f"s_lshl_b32 s{S_T0}, s{S_TY}, 8")
        e(f"v_lshl_add_u32 v{V_SR}, v3, 5, s{S_T0}")
        e("s_waitcnt lgkmcnt(0)")
        e("s_mov_b32 exec_lo, 0")
        for i in range(4):
            e(f"v_mov_b32 v{B2 + 4 + i}, 0")
        e("s_mov_b64 exec, -1")
        e(f"s_cmp_ge_u32 s{S_WAVE}, 3")
        e("s_cbranch_scc1 L_noa1")
        e("v_mov_b32 v3, 96")
        e("v_mad_u32_u24 v2, v21, v3, v23")
        for s in range(6):
            for h in range(2):
                r = A1 + 4 * s + 2 * h
                e(f"ds_read_b64_tr_b16 v[{r}:{r + 1}], v2 offset:{L_W1 + s * 3072 + h * 384}")
        e("L_noa1:")
        e(f"v_lshl_add_u32 v3, v20, 3, v22")
        e(f"v_add_u32 v3, s{S_T2}, v3")
        e("v_lshlrev_b32 v2, 2, v22")
        e("v_lshl_add_u32 v2, v20, 4, v2")
        e("v_and_b32 v8, 1, v1")
        e("v_lshlrev_b32 v8, 4, v8")
        e("v_lshl_add_u32 v8, v20, 2, v8")
        e("v_and_b32 v9, 2, v1")
        e("v_bfe_u32 v10, v1, 2, 1")
        e("v_add3_u32 v8, v8, v9, v10")
        if o.last:
            e("; value p of line w is channel 64*(w>>1) + 8*((p>>1)&7) + 4*(w&1) + 2*(p>>4) + (p&1)")
            e("v_bfe_u32 v9, v8, 1, 3")
            e("v_lshrrev_b32 v11, 4, v8")
            e("v_and_b32 v8, 1, v8")
            e("v_lshl_add_u32 v8, v11, 1, v8")
            e("v_lshl_add_u32 v8, v9, 3, v8")
            e(f"s_lshr_b32 s{S_T0}, s{S_WAVE}, 1")
            e(f"s_and_b32 s{S_T1}, s{S_WAVE}, 1")
            e(f"s_lshl4_add_u32 s{S_T0}, s{S_T0}, s{S_T1}")
            e(f"s_lshl_b32 s{S_T0}, s{S_T0}, 2")
            e(f"v_add_lshl_u32 v23, v8, s{S_T0}, 1")
        else:
            e(f"v_add_lshl_u32 v23, v8, s{S_T2}, 1")
        e("; second-stage address: (l>>2)*128 + (l&3)*16 in the copy kept for this die")
        e("v_lshrrev_b32 v8, 2, v1")
        e("v_lshlrev_b32 v8, 7, v8")
        e("v_and_b32 v9, 3, v1")
        e(f"v_lshl_add_u32 v{V_Q}, v9, 4, v8")
        e(f"s_and_b32 s{S_T0}, s{S_QC}, 4")
        if o.qcopy > 2:
            e(f"s_and_b32 s{S_CNT}, s{S_QC}, {o.qcopy // 2 - 1}")
            e(f"s_mul_i32 s{S_CNT}, s{S_CNT}, 24")
            e(f"s_add_u32 s{S_T0}, s{S_T0}, s{S_CNT}")
        e(f"s_lshr_b32 s{S_T1}, s{S_WAVE}, 2")
        e(f"s_lshl2_add_u32 s{S_T1}, s{S_T1}, s{S_WAVE}")
        e(f"s_add_u32 s{S_T1}, s{S_T1}, s{S_T0}")
        e(f"s_lshl_b32 s{S_T1}, s{S_T1}, 11")
        e(f"s_add_u32 s{S_T1}, s{S_T1}, {WS_Q}")
        if o.clean in ("q", "p", "a", "h", "g"):
            if o.cfull:
                for i in range(4):
                    e(f"v_mov_b32 v{16 + i}, s{S_TG[i]}")
                e("v_lshlrev_b32 v22, 4, v1")
            else:
                e(f"v_mov_b32 v19, s{S_TG[0]}")
            e(f"s_lshl_b32 s{S_V}, s{S_WAVE}, 7")
            e(f"s_add_u32 s{S_V}, s{S_V}, s{S_PO}")
        e(f"s_mov_b32 s{S_CNT}, {NFB}")
        e(f"s_mov_b32 s{S_HOOK}, 0")
        e(f"s_cmp_lt_u32 s{S_WAVE}, 6")
        e("s_cbranch_scc1 L_qpoll0")

        def clean1():
            e("; the reducer of line w is done: a write-through keeps this workgroup's line from staying dirty in L2")
            if o.cfull:
                e("s_mov_b64 exec, 0xff")
                e(f"buffer_store_dwordx4 v[16:19], v22, s[{S_WS}:{S_WS + 3}], s{S_V} offen sc1")
            else:
                e("s_mov_b64 exec, 1")
                e(f"buffer_store_dword v19, off, s[{S_WS}:{S_WS + 3}], s{S_V} sc1")
            e("s_mov_b64 exec, -1")

        for kind in (1, 0):
            op = "v_add_f32" if kind == 0 else "v_max_f32"
            if o.q2:
                def qld(r):
                    e(f"buffer_load_dwordx4 v[{r}:{r + 3}], v{V_Q}, s[{S_WS}:{S_WS + 3}], s{S_T1} offen sc1")

                def qchk(r):
                    e("s_waitcnt vmcnt(1)")
                    for i in range(4):
                        e(f"v_xor_b32 v{4 + i}, s{S_TG[i]}, v{r + i}")
                    e("v_or3_b32 v21, v4, v5, v6")
                    e("v_bitop3_b32 v21, v21, v7, 15 bitop3:0xa8")
                    e("v_cmp_ne_u32 vcc, 0, v21")
                    e("s_wqm_b64 exec, vcc")
                e(f"L_qpoll{kind}:")
                qld(8)
                e(f"s_sleep {o.q2}")
                e(f"L_qloop{kind}:")
                qld(12)
                e(f"s_sub_u32 s{S_CNT}, s{S_CNT}, 1")
                e(f"s_cbranch_scc1 L_qlong{kind}")
                qchk(8)
                e(f"s_cbranch_scc0 L_qgot{kind}")
                qld(8)
                qchk(12)
                e(f"s_cbranch_scc1 L_qloop{kind}")
            else:
                e(f"L_qpoll{kind}:")
                e(f"buffer_load_dwordx4 v[4:7], v{V_Q}, s[{S_WS}:{S_WS + 3}], s{S_T1} offen sc1")
                e(f"s_sub_u32 s{S_CNT}, s{S_CNT}, 1")
                e(f"s_cbranch_scc1 L_qlong{kind}")
                if o.qsleep:
                    e(f"s_sleep {o.qsleep}")
                e("s_waitcnt vmcnt(0)")
                for i in range(4):
                    e(f"v_xor_b32 v{4 + i}, s{S_TG[i]}, v{4 + i}")
                e("v_or3_b32 v21, v4, v5, v6")
                e("v_bitop3_b32 v21, v21, v7, 15 bitop3:0xa8")
                e("v_cmp_ne_u32 vcc, 0, v21")
                e("s_wqm_b64 exec, vcc")
                e(f"s_cbranch_scc1 L_qpoll{kind}")
            e(f"L_qgot{kind}:")
            if o.clean == "p":
                e("s_mov_b64 exec, 1")
                e(f"buffer_store_dword v19, off, s[{S_WS}:{S_WS + 3}], s{S_V} sc1")
            e("s_mov_b64 exec, -1")
            self.stamp(5)
            e("v_permlane32_swap_b32 v4, v6")
            e("v_permlane32_swap_b32 v5, v7")
            e(f"{op} v4, v4, v6")
            e(f"{op} v5, v5, v7")
            e("s_nop 1")
            e("v_permlane16_swap_b32 v4, v5")
            e(f"{op} v4, v4, v5")
            e(f"s_cmp_ge_u32 s{S_WAVE}, 3")
            e("s_nop 0")
            e(f"{op}_dpp v4, v4, v4 row_ror:8 row_mask:0xf bank_mask:0xf")
            if kind == 0:
                e("v_mul_f32 v4, 0x36800000, v4              ; 1/262144")
            e("v_cvt_pk_bf16_f32 v4, v4, v4")
            e(f"ds_write_b16 v23, v4 offset:{L_F}")
            if o.q2:
                e("s_waitcnt vmcnt(0)")
            if o.clean == "q" or (o.clean == "h" and kind == 1) or (o.clean == "g" and kind == 0):
                clean1()
            e("s_waitcnt lgkmcnt(0)")
            e("s_barrier")
            if kind == 1:
                if o.clean in ("a", "g"):
                    clean1()
                e("s_branch L_join")
            else:
                e("s_cbranch_scc1 " + ("L_clean0" if o.clean in ("a", "h") else "L_join"))

        e("; ---- waves 0..2: first MLP layer")
        e("L_mlp1:")
        for s in range(6):
            e(f"ds_read_b128 v[{B1[s]}:{B1[s] + 3}], v2 offset:{L_F + 64 * s}")
        if o.clean in ("a", "h"):
            clean1()
        for s in range(6):
            c = "0" if s == 0 else "v[20:23]"
            b = B1[s]
            e(f"s_waitcnt lgkmcnt({5 - s})")
            e(f"v_mfma_f32_16x16x32_bf16 v[20:23], v[{A1 + 4 * s}:{A1 + 4 * s + 3}], v[{b}:{b + 3}], {c}")
        e("s_nop 3")
        e("s_mov_b32 exec_lo, 0x00030003")
        e("s_mov_b32 exec_hi, 0x00030003")
        e("s_nop 1")
        for i in range(4):
            e(f"v_maximum3_f32 v{20 + i}, v{20 + i}, 0, 0")
        e("v_cvt_pk_bf16_f32 v20, v20, v21")
        e("v_cvt_pk_bf16_f32 v21, v22, v23")
        e(f"ds_write_b64 v3, v[20:21] offset:{L_H}")
        e("s_mov_b64 exec, -1")
        e("s_waitcnt lgkmcnt(0)")

        e("L_join:")
        e("s_barrier")
        self.stamp(6)
        e(f"ds_read_b128 v[4:7], v{V_H0} offset:{L_H}")
        e(f"ds_read_b128 v[8:11], v{V_H1} offset:{L_H + 64}")
        e("s_waitcnt lgkmcnt(1)")
        e(f"v_mfma_f32_16x16x32_bf16 v[12:15], v[4:7], v[{B2}:{B2 + 3}], 0")
        e("s_waitcnt lgkmcnt(0)")
        e(f"v_mfma_f32_16x16x32_bf16 v[12:15], v[8:11], v[{B2 + 4}:{B2 + 7}], v[12:15]")
        e("s_mov_b64 exec, 0xffff")
        e("s_nop 6")
        e("v_cvt_pk_bf16_f32 v12, 0, v12")
        e("v_cvt_pk_bf16_f32 v13, 0, v13")
        e("v_add_f32 v12, v12, v13")
        e("v_cvt_pk_bf16_f32 v12, 0, v12")
        e("v_mul_f32 v12, 0xbfb8aa3b, v12            ; -log2(e)")
        e("v_exp_f32 v12, v12")
        e("s_nop 0")
        e("v_add_f32 v12, 1.0, v12")
        e("v_rcp_f32 v12, v12")
        e("s_nop 0")
        if o.mul == "dot":
            e("v_cvt_pk_bf16_f32 v12, v12, v12")
            e(f"ds_write_b16 v{V_SW}, v12 offset:{L_S}")
        else:
            e("v_cvt_pk_bf16_f32 v12, 0, v12")
            e(f"ds_write_b32 v{V_SW}, v12 offset:{L_S}")
        e("s_mov_b64 exec, -1")
        e("s_waitcnt lgkmcnt(0)")
        e("s_barrier")
        e(f"ds_read_b128 v[4:7], v{V_SR} offset:{L_S}")
        e(f"ds_read_b128 v[8:11], v{V_SR} offset:{L_S + 16}")

        e("; ---- scale and store")
        if o.stlim:
            e(f"s_cmp_lt_u32 s2, {o.stlim}")
            e(f"s_cselect_b32 s{S_OUT + 2}, s{S_OUT + 2}, 0")
        zorder = [int(v) for v in o.zorder.split(",")]
        assert sorted(zorder) == list(range(16))
        restored = False
        late = []

        def wbl2():
            wv, lim, pos = [int(v) for v in o.wb.split(",")]
            e(f"s_cmp_lt_u32 s{S_WAVE}, {wv}")
            e("s_cbranch_scc1 L_nowb")
            e(f"s_cmp_ge_u32 s2, {lim}")
            e("s_cbranch_scc1 L_nowb")
            if pos == 33:
                e("s_waitcnt vmcnt(0)")
            e("buffer_wbl2 sc1")
            e("L_nowb:")
        jorder = [int(v) for v in o.jorder.split(",")] if o.jorder else [2 * z + u for z in zorder for u in (0, 1)]
        assert sorted(jorder) == list(range(32))
        self.pz = None
        for n, j in enumerate(jorder):
            a = D0 + 4 * j
            t0 = 12 + 8 * (n & 1)
            if a >= SP0 and not restored:
                assert n > 1
                e("s_waitcnt lgkmcnt(0)")
                restored = True
            md = o.mul
            for i in range(4 if md in ("pk", "mul", "u", "um") else 0):
                t = t0 + 2 * i
                e(f"v_lshlrev_b32 v{t}, 16, v{a + i}")
                e(f"v_and_b32 v{t + 1}, s{S_MASK}, v{a + i}")
            if n == 0:
                e("s_waitcnt lgkmcnt(0)")
                self.stamp(7)
            if o.al:
                e(f".p2align {o.al & 15}")
                if o.al >> 4:
                    e("s_nop 0")
            for i in range(4):
                t = t0 + 2 * i
                if md in ("pk", "um"):
                    e(f"v_pk_mul_f32 v[{t}:{t + 1}], v[{t}:{t + 1}], v[{4 + 2 * i}:{5 + 2 * i}]")
                if md == "mul":
                    e(f"v_mul_f32 v{t}, v{t}, v{4 + 2 * i}")
                    e(f"v_mul_f32 v{t + 1}, v{t + 1}, v{5 + 2 * i}")
                if md == "dot":
                    e(f"v_dot2_f32_bf16 v{t}, v{a + i}, v{4 + 2 * i}, 0")
                    e(f"v_dot2_f32_bf16 v{t + 1}, v{a + i}, v{5 + 2 * i}, 0")
            for i in range(4):
                t = t0 + 2 * i
                if md in ("pk", "mul", "dot"):
                    e(f"v_cvt_pk_bf16_f32 v{a + i}, v{t}, v{t + 1}")
                if md == "c":
                    e(f"v_cvt_pk_bf16_f32 v{a + i}, v{a + i}, v{a + (i ^ 1)}")
            def st(j=j, a=a, n=n):
                self.mem(j, lambda va, so: e(f"buffer_store_dwordx4 v[{a}:{a + 3}], {va}, s[{S_OUT}:{S_OUT + 3}], {so} offen{'' if n >= 32 - o.nplain else stf}"))
            if n < o.burst:
                st()
            else:
                late.append(st)
            if n == 31:
                for f in late:
                    f()
            if o.xfer and n == o.xspos:
                e(f"s_cmp_lg_u32 s{S_XR}, 2")
                e("s_cbranch_scc1 L_nox4")
                e(f"ds_read_b128 v[28:31], v{V_AT}")
                e(f"v_xad_u32 v32, v{V_G1}, s{S_XP}, v{V_L}")
                e("s_waitcnt lgkmcnt(0)")
                for i in range(4):
                    e(f"v_dot2_f32_bf16 v{12 + 2 * i}, v{28 + i}, v{4 + 2 * i}, 0")
                    e(f"v_dot2_f32_bf16 v{13 + 2 * i}, v{28 + i}, v{5 + 2 * i}, 0")
                for i in range(4):
                    e(f"v_cvt_pk_bf16_f32 v{28 + i}, v{12 + 2 * i}, v{13 + 2 * i}")
                e(f"buffer_store_dwordx4 v[28:31], v32, s[{S_OUT}:{S_OUT + 3}], s{S_XO} offen{stf}")
                e("L_nox4:")
            if n + 1 in o.sbar:
                e("s_barrier")
            if o.sthr and n >= o.sthr:
                e(f"s_waitcnt vmcnt({o.sthr - 1})")
            if o.wb and int(o.wb.split(",")[2]) == n:
                wbl2()
            if n & 1:
                self.trace("st", n >> 1)
            if n == 1:
                e(f"s_cmp_ge_u32 s{S_WAVE}, 3")
                e("s_cbranch_scc1 L_norestore")
                for k in range(8):
                    e(f"ds_read_b128 v[{SP0 + 4 * k}:{SP0 + 4 * k + 3}], v{V_AT} offset:{L_SPILL + 1024 * k}")
                e("L_norestore:")
                if o.clean == "st":
                    clean("L_noclean", 28, 32)
                    e("L_noclean:")
        if o.clean == "e":
            clean("L_noclean", 28, 32)
            e("L_noclean:")
        if o.wb and int(o.wb.split(",")[2]) >= 32:
            wbl2()
        if o.stamps:
            self.stamp(8)
            e("s_waitcnt vmcnt(0)")
            self.stamp(10)
            if o.idleclk:
                e("; wave 11 idles 40 us, then measures the clock over another 20 us into slots 1,2 / 3,6")
                e(f"s_cmp_lg_u32 s{S_WAVE}, 11")
                e("s_cbranch_scc1 L_noidle")
                for lbl, dur, m, r in (("a", o.idleclk, 1, 3), ("b", 2000, 2, 6)):
                    e("s_memrealtime s[96:97]")
                    e("s_waitcnt lgkmcnt(0)")
                    e(f"L_idle{lbl}:")
                    e("s_sleep 4")
                    e("s_memrealtime s[98:99]")
                    e("s_waitcnt lgkmcnt(0)")
                    e("s_sub_u32 s98, s98, s96")
                    e(f"s_cmp_lt_u32 s98, {dur}")
                    e(f"s_cbranch_scc1 L_idle{lbl}")
                    e(f"s_memtime s[{S_STAMP + 2 * m}:{S_STAMP + 2 * m + 1}]")
                    e(f"s_memrealtime s[{S_STAMP + 2 * r}:{S_STAMP + 2 * r + 1}]")
                e("L_noidle:")
            e("s_getreg_b32 s94, hwreg(HW_REG_XCC_ID)")
            e("s_getreg_b32 s95, hwreg(HW_REG_HW_ID)")
            e("s_waitcnt lgkmcnt(0)")
            e("v_mov_b32 v2, 0")
            for i in range(11 if o.trace else 14):
                e(f"v_writelane_b32 v2, s{S_STAMP + 2 * i}, {i}")
            e("v_writelane_b32 v2, s94, 14")
            e("v_writelane_b32 v2, s95, 15")
            e(f"s_mul_i32 s{S_T0}, s2, 12")
            e(f"s_add_u32 s{S_T0}, s{S_T0}, s{S_WAVE}")
            e(f"s_lshl_b32 s{S_T0}, s{S_T0}, 6")
            e(f"s_add_u32 s{S_T0}, s{S_T0}, {WS_STAMP}")
            e("v_mbcnt_lo_u32_b32 v3, -1, 0")
            e("v_lshlrev_b32 v3, 2, v3")
            e("s_mov_b64 exec, 0xffff")
            e(f"buffer_store_dword v2, v3, s[{S_WS}:{S_WS + 3}], s{S_T0} offen sc1")
            if o.trace:
                e("s_mov_b32 s91, s92")
                for i in range(16):
                    e(f"v_writelane_b32 v2, s{76 + i}, {i}")
                e(f"s_add_u32 s{S_T0}, s{S_T0}, {1 << 19}")
                e(f"buffer_store_dword v2, v3, s[{S_WS}:{S_WS + 3}], s{S_T0} offen sc1")
        if o.dbgptr:
            e("s_cmp_lg_u32 s2, 0")
            e("s_cbranch_scc1 L_nodp")
            e("s_mov_b64 exec, -1")
            e("v_mov_b32 v2, 0")
            for i, r in enumerate((4, 5, 8, 9, 12, 13, 16, 17, 0, 1)):
                e(f"v_writelane_b32 v2, s{r}, {i}")
            e("v_mbcnt_lo_u32_b32 v3, -1, 0")
            e("v_lshlrev_b32 v3, 2, v3")
            e("s_mov_b64 exec, 0x3ff")
            e(f"buffer_store_dword v2, v3, s[{S_DBG}:{S_DBG + 3}], 0 offen offset:8")
            e("L_nodp:")
        if o.probe:
            idx, K = [int(v) for v in o.probe.split(",")]
            if idx == -6:
                pass
            elif idx == -5:
                e("; skew probe: after the stamps are out, workgroups 0..7 read workgroup 0's entry stamp")
                e("s_cmp_ge_u32 s2, 8")
                e("s_cbranch_scc1 L_end")
            elif idx == -2:
                e("s_getreg_b32 s94, hwreg(HW_REG_XCC_ID)")
                e("s_xor_b32 s94, s94, s2")
                e("s_and_b32 s94, s94, 7")
                e("s_cbranch_scc0 L_end")
            elif idx == -3:
                e("s_cmp_lg_u32 s2, 0")
                e("s_cbranch_scc1 L_end")
            else:
                e(f"s_cmp_lg_u32 s2, {o.pwg}")
                e("s_cbranch_scc1 L_end")
            e(f"s_cmp_lg_u32 s{S_WAVE}, {o.pwave}")
            e("s_cbranch_scc1 L_end")
            if idx == -6:
                e("; every workgroup stays K times its own whole duration")
                e(f"s_sub_u32 s96, s{S_STAMP + 20}, s{S_STAMP}")
                e(f"s_mul_i32 s96, s96, {K}")
            elif idx == -5:
                e("s_mov_b32 s96, 0")
                e("L_sk:")
                e("s_sleep 100")
                e("s_add_u32 s96, s96, 1")
                e("s_cmp_lt_u32 s96, 4")
                e("s_cbranch_scc1 L_sk")
                e(f"s_mov_b32 s94, {WS_STAMP}")
                e(f"buffer_load_dword v4, off, s[{S_WS}:{S_WS + 3}], s94 sc1")
                e("s_waitcnt vmcnt(0)")
                e("v_readfirstlane_b32 s94, v4")
                e(f"s_sub_u32 s95, s{S_STAMP}, s94")
                e(f"s_mul_i32 s95, s95, {K - 1}")
                e("s_add_u32 s96, s95, 8000")
            elif idx == -4:
                e("; report the shader clock of phase K (0 read, 1 write): stay 50us + (MHz - 1800) * 0.2us")
                c0, c1, r0, r1 = ((11, 12, 0, 7), (12, 13, 7, 10))[K]
                e(f"s_sub_u32 s94, s{S_STAMP + 2 * c1}, s{S_STAMP + 2 * c0}")
                e(f"s_sub_u32 s95, s{S_STAMP + 2 * r1}, s{S_STAMP + 2 * r0}")
                e("v_cvt_f32_u32 v4, s94")
                e("v_cvt_f32_u32 v5, s95")
                e("v_rcp_f32 v5, v5")
                e("s_nop 1")
                e("v_mul_f32 v4, v4, v5")
                e("v_mul_f32 v4, 0x44fa0000, v4")
                e("v_cvt_u32_f32 v4, v4")
                e("s_nop 1")
                e("v_readfirstlane_b32 s96, v4")
                e("s_sub_u32 s96, s96, 31000")
            elif idx <= -10:
                e("; report 7 bits (from bit K) of an SGPR: (-idx - 10) names the register")
                e(f"s_bfe_u32 s94, s{-idx - 10}, {(7 << 16)} + {K}")
                e("s_mul_i32 s96, s94, 200")
                e("s_add_u32 s96, s96, 5000")
            elif idx == -3:
                e("s_getreg_b32 s94, hwreg(HW_REG_XCC_ID)")
                e("s_and_b32 s94, s94, 7")
                e(f"s_mul_i32 s96, s94, {K}")
                e("s_add_u32 s96, s96, 5000")
            elif idx < 0:
                e(f"s_mov_b32 s96, {K}")
            else:
                e(f"s_sub_u32 s96, s{S_STAMP + 2 * idx}, s{S_STAMP + 2 * o.pref}")
                e(f"s_mul_i32 s96, s96, {K}")
                if o.pref:
                    e("s_add_u32 s96, s96, 5000")
            e("s_min_u32 s96, s96, 200000")
            e("L_probe:")
            e("s_memrealtime s[98:99]")
            e("s_waitcnt lgkmcnt(0)")
            e(f"s_sub_u32 s98, s98, s{S_STAMP}")
            e("s_cmp_lt_u32 s98, s96")
            e("s_cbranch_scc1 L_probe")
        e("L_end:")
        e("s_endpgm")

        e("@@ROLE")
        e(".p2align 7")
        e("L_role:")
        e("s_load_dwordx4 s[44:47], s[0:1], 32")
        e(f"s_lshr_b32 s{S_V + 1}, s2, 3")
        e(f"s_and_b32 s{S_T1}, s2, 1")
        e(f"s_lshl1_add_u32 s{S_T1}, s{S_T1}, 1")
        e(f"s_mul_i32 s{S_T2}, s2, 0x104100")
        e(f"s_cmp_eq_u32 s2, {NVOTE_WG}")
        e("s_waitcnt lgkmcnt(0)")
        e("s_cbranch_scc1 L_tag")
        e(f"s_sub_u32 s{S_T0}, s{S_OUT}, s{S_X}")
        e(f"s_addk_i32 s{S_T0}, 2048")
        e(f"s_bitcmp1_b32 s{S_T0}, 12")
        e(f"s_cselect_b32 s{S_V}, {o.qout}, {o.qgen}")
        e(f"s_cselect_b32 s{S_V + 2}, s{S_V + 1}, 1")
        e(f"s_cmp_eq_u32 s{S_V + 2}, 2")
        e(f"s_cselect_b32 s{S_V + 1}, s{S_T1}, s{S_V + 1}")
        e(f"s_bitcmp1_b32 s{S_V + 1}, 0")
        e(f"s_cselect_b64 s[{S_W}:{S_W + 1}], s[8:9], s[4:5]")
        e(f"s_lshr_b32 s{S_T1}, s{S_V + 1}, 1")
        e(f"s_lshl_b32 s{S_T1}, s{S_T1}, 25" if o.bfirst else f"s_lshl_b32 s{S_T1}, 0x2000000, s{S_T1}")
        e(f"s_add_u32 s{S_T2}, s{S_T2}, s{S_T1}")
        e(f"s_lshr_b32 s{S_T0}, s{S_OUT}, 7")
        e(f"s_mul_i32 s{S_T0}, s{S_T0}, 21")
        e(f"s_and_b32 s{S_T0}, s{S_T0}, 63")
        e(f"s_mulk_i32 s{S_T0}, 384")
        e(f"s_add_u32 s{S_T0}, s{S_T0}, s{S_T2}")
        e(f"s_cmp_lg_u32 s{S_V + 2}, 0")
        e(f"s_cselect_b32 s{S_V + 3}, s{S_OUT}, 0")
        e("s_cbranch_scc1 L_notws")
        e(f"s_mov_b64 s[{S_W}:{S_W + 1}], s[46:47]")
        e(f"s_mov_b32 s{S_V}, {o.qws}")
        e(f"s_and_b32 s{S_T0}, s{S_T2}, 0xfffff")
        e(f"s_add_u32 s{S_T0}, s{S_T0}, {WS_PROBE}")
        e("L_notws:")
        e(f"s_add_u32 s{S_T1}, s{S_T0}, 8192")
        self.stamp(1, True)
        e(f"s_load_dword s42, s[{S_W}:{S_W + 1}], s{S_T0} glc")
        e(f"s_load_dword s43, s[{S_W}:{S_W + 1}], s{S_T1} glc")
        e(f"s_mov_b32 s{S_CNT}, {-(NRACE // 2)}")
        if o.dpf:
            e(f"s_load_dword s23, s[44:45], 192 glc")
        for k in range(NRACE):
            e("s_waitcnt lgkmcnt(0)")
            if k < 2:
                self.stamp(2 + k, True)
                if o.vdiag:
                    e("s_waitcnt lgkmcnt(0)")
            first, second = (S_T0, S_T1) if k % 2 == 0 else (S_T1, S_T0)
            e(f"s_load_dword s42, s[{S_W}:{S_W + 1}], s{first} glc")
            e(f"s_load_dword s43, s[{S_W}:{S_W + 1}], s{second} glc")
            e("s_waitcnt lgkmcnt(1)")
            e("s_nop 7")
            e(f"s_getreg_b32 s{S_T2}, hwreg(HW_REG_IB_STS, 8, 4)   ; 1: the second answer is still out")
            if k % 2 == 0:
                e(f"s_xor_b32 s{S_T2}, s{S_T2}, 1")
            e(f"s_add_u32 s{S_CNT}, s{S_CNT}, s{S_T2}")
        assert NRACE % 2 == 0 and o.qout <= 12 and o.qws <= 8 and o.qgen <= 8 and NVOTE_WG == 32
        e(f"s_sub_u32 s{S_T2}, 0, s{S_CNT}")
        e(f"s_add_u32 s{S_T0}, s{S_T0}, s{S_V + 3}")
        e(f"s_lshr_b32 s{S_T0}, s{S_T0}, 19")
        e(f"s_getreg_b32 s{S_T1}, hwreg(HW_REG_XCC_ID, 0, 3)")
        e(f"s_xor_b32 s{S_T0}, s{S_T0}, s{S_T1}")
        e(f"s_bitcmp1_b32 s{S_T0}, 2")
        e(f"s_cselect_b32 s{S_CNT}, s{S_T2}, s{S_CNT}")
        e(f"s_lshl_b32 s{S_CNT}, s{S_CNT}, 8")
        e(f"s_or_b32 s{S_CNT}, s{S_CNT}, 1")
        e(f"s_mov_b32 s{S_T1}, s{S_CNT}")
        e(f"s_lshl2_add_u32 s{S_T0}, s{S_V + 1}, {DBG_TAL}")
        self.stamp(6, True)
        e(f"s_atomic_add s{S_T1}, s[44:45], s{S_T0} glc")
        e(f"s_mul_i32 s{S_T2}, s{S_V + 1}, 6")
        e("s_waitcnt lgkmcnt(0)")
        e(f"s_add_u32 s{S_T1}, s{S_T1}, s{S_CNT}")
        self.stamp(13)
        e(f"s_and_b32 s{S_T0}, s{S_T1}, 0xff")
        e(f"s_cmp_lg_u32 s{S_T0}, s{S_V}")
        e("s_cbranch_scc1 L_stream")
        e("; exactly one voter completes the tally's quorum: it publishes bit 11+6t (known) and bit 12+6t (margin > 0)")
        e(f"s_cmp_gt_i32 s{S_T1}, 0xff")
        e(f"s_cselect_b32 s{S_T1}, 3, 1")
        e(f"s_add_u32 s{S_T2}, s{S_T2}, 11")
        e(f"s_lshl_b32 s{S_T1}, s{S_T1}, s{S_T2}")
        e("L_publish:")
        e(f"s_atomic_add s{S_T1}, s[44:45], {DBG_RES}")
        e("s_waitcnt lgkmcnt(0)")
        e("s_branch L_stream")

        e("; ---- one wave draws this launch's hand-off tag: different from the one the last launch left behind")
        e("L_tag:")
        e(f"s_mov_b32 s{S_T1}, 1")
        e("s_waitcnt lgkmcnt(0)")
        e(f"s_atomic_add s{S_T1}, s[46:47], {WS_E} glc")
        e("s_waitcnt lgkmcnt(0)")
        e(f"s_add_u32 s{S_T1}, s{S_T1}, 1")
        e(f"s_and_b32 s{S_T1}, s{S_T1}, 0xff")
        e(f"s_bitset1_b32 s{S_T1}, 8")
        assert NVOTE_WG % 8 == 0
        e(f"s_getreg_b32 s{S_T0}, hwreg(HW_REG_XCC_ID, 0, 3)")
        e(f"s_lshl_b32 s{S_T0}, s{S_T0}, 13")
        e(f"s_or_b32 s{S_T1}, s{S_T1}, s{S_T0}")
        self.stamp(13)
        e("s_branch L_publish")

        e("@@RARE")
        e("; ---- a wait has lasted: the group's reducers may sit on another die, so write this")
        e(";      workgroup's first-stage lines through to memory")
        if o.clean in ("a", "h"):
            e("L_clean0:")
            clean1()
            e("s_branch L_join")
        for nm in ("r", "q0", "q1"):
            k = nm[1:]
            e(f"L_{nm[0]}long{k}:")
            e("s_waitcnt vmcnt(0)")
            e(f"s_cmp_lg_u32 s{S_HOOK}, 0")
            e(f"s_cbranch_scc1 L_{nm[0]}got{k}")
            e(f"s_call_b64 s[{S_RET}:{S_RET + 1}], L_flush")
            e(f"s_branch L_{nm[0]}poll{k}")
        e("L_flush:")
        e(f"s_mov_b32 s{S_CNT}, {SPIN}")
        e(f"s_mov_b32 s{S_HOOK}, {SPIN}")
        e("s_mov_b32 exec_lo, -1")
        e("s_mov_b32 exec_hi, 0xffff")
        e("v_lshlrev_b32 v13, 4, v1")
        e("L_floop:")
        e(f"buffer_load_dwordx4 v[8:11], v13, s[{S_WS}:{S_WS + 3}], s{S_PO} offen sc1")
        e(f"buffer_load_dwordx4 v[4:7], v13, s[{S_WS}:{S_WS + 3}], s{S_PO} offen offset:768 sc1")
        e(f"s_sub_u32 s{S_HOOK}, s{S_HOOK}, 1")
        e("s_waitcnt vmcnt(0)")
        e(f"v_xor_b32 v12, s{S_TG[0]}, v8")
        for r in (9, 10, 11, 4, 5, 6, 7):
            e(f"v_bitop3_b32 v12, v12, v{r}, s{S_TG[r & 3]} bitop3:0xf6")
        e("v_and_b32 v12, 15, v12")
        e("v_cmp_ne_u32 vcc, 0, v12")
        e("s_cbranch_scc1 L_fdone")
        e("s_cbranch_vccnz L_floop")
        e("L_fdone:")
        e(f"buffer_store_dwordx4 v[8:11], v13, s[{S_WS}:{S_WS + 3}], s{S_PO} offen sc1")
        e(f"buffer_store_dwordx4 v[4:7], v13, s[{S_WS}:{S_WS + 3}], s{S_PO} offen offset:768 sc1")
        e("s_waitcnt vmcnt(0)")
        e("s_mov_b64 exec, -1")
        e(f"s_mov_b32 s{S_HOOK}, -1")
        e(f"s_setpc_b64 s[{S_RET}:{S_RET + 1}]")

        e("@@DPOLL")
        e("; ---- result not there yet: poll past the scalar cache")
        e("L_dpoll:")
        e(f"s_mov_b32 s{S_CNT}, {SPIN}")
        e(f"v_mov_b32 v{V_AT}, 0")
        e("s_mov_b64 exec, 1")
        e("L_dloop:")
        e(f"buffer_load_dword v{V_AT}, off, s[{S_DBG}:{S_DBG + 3}], 0 offset:{DBG_RES} sc1")
        e(f"s_sleep {o.dsleep}")
        e("s_waitcnt vmcnt(24)")
        e(f"v_readfirstlane_b32 s{S_T2}, v{V_AT}          ; whatever poll has landed last")
        e(f"s_sub_u32 s{S_CNT}, s{S_CNT}, 1")
        e("s_cbranch_scc1 L_dgot")
        e(f"s_andn2_b32 s{S_OFF}, s{S_OK}, s{S_T2}")
        e("s_cbranch_scc1 L_dloop")
        e("L_dgot:")
        e("s_mov_b64 exec, -1")
        e("s_branch L_decided")

        e("@@END")
        L = self.lines
        ix = {k: L.index("    @@" + k) for k in ("ROLE", "RARE", "DPOLL", "END")}
        role, rare, dpoll = L[ix["ROLE"] + 1:ix["RARE"]], L[ix["RARE"] + 1:ix["DPOLL"]], L[ix["DPOLL"] + 1:ix["END"]]
        main = L[:ix["ROLE"]]
        p1, p2 = main.index("    @@HERE1"), main.index("    @@HERE2")
        if o.lay:
            self.lines = (main[:p1] + ["    s_branch L_skip1"] + role + dpoll + ["L_skip1:"] + main[p1 + 1:p2]
                          + ["    s_branch L_tail"] + rare + ["    .p2align 12", "L_tail:"] + main[p2 + 1:])
        else:
            self.lines = main[:p1] + main[p1 + 1:p2] + main[p2 + 1:] + role + rare + dpoll

    def text(self):
        out = HEADER
        out += f"; @launch grid=({NWG},1,1) block=(768,1,1) lds={L_TOTAL}\n"
        out += DOC
        out += '.amdgcn_target "amdgcn-amd-amdhsa--gfx950"\n.text\n'
        out += f".globl {KNAME}\n.p2align 8\n.type {KNAME},@function\n{KNAME}:\n"
        out += "\n".join(self.lines) + "\n"
        out += f""".section .rodata,"a"
.p2align 6
.amdhsa_kernel {KNAME}
  .amdhsa_next_free_vgpr 168
  .amdhsa_next_free_sgpr {100 if self.o.stamps else 96 if self.o.xfer else 56}
  .amdhsa_accum_offset 168
  .amdhsa_group_segment_fixed_size 0
  .amdhsa_kernarg_size 48
  .amdhsa_user_sgpr_count 2
  .amdhsa_user_sgpr_kernarg_segment_ptr 1
  .amdhsa_system_sgpr_workgroup_id_x 1
  .amdhsa_float_denorm_mode_32 3
.end_amdhsa_kernel
"""
        return out


def main():
    p = argparse.ArgumentParser()
    p.add_argument("-o", default="standalone__channel_attn_cbam__vision.s")
    p.add_argument("--ldflags", default="nt")
    p.add_argument("--stflags", default="sc1")
    p.add_argument("--p1flags", default="sc1")
    p.add_argument("--stamps", action="store_true")
    p.add_argument("--probe", default="")
    p.add_argument("--depth", type=int, default=10)
    p.add_argument("--nrace", type=int, default=2)
    p.add_argument("--dsleep", type=int, default=8)
    p.add_argument("--trace", default="")
    p.add_argument("--nodec", action="store_true")
    p.add_argument("--vdiag", action="store_true")
    p.add_argument("--dbgptr", action="store_true")
    p.add_argument("--opp", default="5,9", type=lambda v: [int(x) for x in v.split(",")])
    p.add_argument("--quorum", type=int, default=16)
    p.add_argument("--quorum4", type=int, default=24)
    p.add_argument("--nvote", type=int, default=32)
    p.add_argument("--nagn", type=int, default=6)
    p.add_argument("--stlim", type=int, default=0)
    p.add_argument("--psc1", action="store_true")
    p.add_argument("--pnt", action="store_true")
    p.add_argument("--last", type=int, default=1)
    p.add_argument("--h6", type=int, default=0)
    p.add_argument("--bfirst", default="")
    p.add_argument("--q2", type=int, default=0)
    p.add_argument("--xfer", type=int, default=0)
    p.add_argument("--xpos", type=int, default=26)
    p.add_argument("--xspos", type=int, default=26)
    p.add_argument("--qout", type=int, default=7)
    p.add_argument("--qws", type=int, default=4)
    p.add_argument("--qgen", type=int, default=5)
    p.add_argument("--jorder", default="12,0,13,1,14,2,15,3,16,4,17,5,18,6,19,7,20,8,21,9,22,10,23,11,24,25,26,27,28,29,30,31")
    p.add_argument("--urot", type=int, default=0)
    p.add_argument("--lmap", type=int, default=0)
    p.add_argument("--qrot", type=int, default=0)
    p.add_argument("--umap", type=int, default=0)
    p.add_argument("--cfull", type=int, default=1)
    p.add_argument("--wtouch", type=int, default=1)
    p.add_argument("--lay", type=int, default=1)
    p.add_argument("--skipfrom", type=int, default=99)
    p.add_argument("--ttail", type=int, default=0)
    p.add_argument("--tlb", type=int, default=0)
    p.add_argument("--rot", type=int, default=0)
    p.add_argument("--pad", type=int, default=0)
    p.add_argument("--lpf", type=int, default=0)
    p.add_argument("--al", type=int, default=0)
    p.add_argument("--cap", type=int, default=0)
    p.add_argument("--capfrom", type=int, default=12)
    p.add_argument("--capto", type=int, default=32)
    p.add_argument("--skewa", type=int, default=1)
    p.add_argument("--skewd", type=int, default=1)
    p.add_argument("--skewc", type=int, default=0)
    p.add_argument("--skew", type=int, default=0, help="timing diagnostic only")
    p.add_argument("--warmfl", default="")
    p.add_argument("--sdiag", action="store_true")
    p.add_argument("--rpf", type=int, default=0)
    p.add_argument("--dpf", type=int, default=0)
    p.add_argument("--pwg", type=int, default=0)
    p.add_argument("--pwave", type=int, default=0)
    p.add_argument("--pref", type=int, default=0)
    p.add_argument("--qshift", type=int, default=32)
    p.add_argument("--rolepos", type=int, default=-1)
    p.add_argument("--prebar", type=int, default=1)
    p.add_argument("--qmap", type=int, default=0)
    p.add_argument("--agnu", type=int, default=4)
    p.add_argument("--warmst", type=int, default=0)
    p.add_argument("--cw", type=int, default=0)
    p.add_argument("--cld", action="store_true")
    p.add_argument("--qflip", type=int, default=0)
    p.add_argument("--qcopy", type=int, default=4)
    p.add_argument("--mul", default="dot")
    p.add_argument("--burst", type=int, default=32)
    p.add_argument("--idleclk", type=int, default=0)
    p.add_argument("--clk", action="store_true")
    p.add_argument("--sthr", type=int, default=0)
    p.add_argument("--sbar", default=[24], type=lambda v: [int(x) for x in v.split(",")])
    p.add_argument("--piece", type=int, default=128)
    p.add_argument("--xbar", default=[20, 24], type=lambda v: [int(x) for x in v.split(",")])
    p.add_argument("--cpf", type=int, default=0)
    p.add_argument("--cpfpos", type=int, default=0)
    p.add_argument("--wpace", type=int, default=40)
    p.add_argument("--clean", default="g")
    p.add_argument("--warm", type=int, default=30)
    p.add_argument("--warmwave", type=int, default=4)
    p.add_argument("--qsleep", type=int, default=0)
    p.add_argument("--red0", type=int, default=8)
    p.add_argument("--redstep", type=int, default=2)
    p.add_argument("--off", default="", help="diagnostics: v = no votes, c = no clears, r = result not read")
    p.add_argument("--spans", default="")
    p.add_argument("--split", action="store_true")
    p.add_argument("--pfback", type=int, default=0)
    p.add_argument("--nplain", type=int, default=0)
    p.add_argument("--wb", default="", help="minwave,wglimit,pos")
    p.add_argument("--thr", type=int, default=2)
    p.add_argument("--thrfrom", type=int, default=12)
    p.add_argument("--thrto", type=int, default=26)
    p.add_argument("--thrmask", default="0x55")
    p.add_argument("--zorder", default="8,0,9,1,10,2,11,3,12,4,13,5,14,6,15,7")
    o = p.parse_args()
    global NAGN, SPANS, NVOTE_WG
    NVOTE_WG = o.nvote
    NAGN = o.nagn
    if NAGN == 6:
        SPANS = [(0, 0), (0, 1), (1, 0), (1, 1), (2, 0), (2, 1),
                 (3, 0), (3, 1), (4, 0), (4, 1), (5, 0), (5, 1), (6, 0), (6, 1), (7, 0), (7, 1)]
        if o.zorder == p.get_default("zorder"):
            o.zorder = "6,0,7,1,8,2,9,3,10,4,11,5,12,13,14,15"
    if o.bfirst:
        st = [int(c) for c in o.bfirst]
        SPANS = [(a, h) for a in st for h in (0, 1)]
        o.agn0 = st[0] * 12 * MiB
    if o.xfer:
        global L_TOTAL
        L_TOTAL = L_X + 12288
        SPANS[14], SPANS[15] = SPANS[15], SPANS[14]
    if o.spans:
        SPANS = [(int(v[0]), int(v[1])) for v in o.spans.split(",")]
        assert sorted(SPANS) == [(a, b) for a in range(8) for b in range(2)]
    g = G(o)
    g.build()
    open(o.o, "w").write(g.text())


if __name__ == "__main__":
    main()
```

```python
import argparse

KNAME = "standalone__channel_attn_cbam__vision_kernel"

HEADER = """; Kernarg layout for this problem (48 bytes, ptrs only, base s[0:1]):
;   offset   0: d_in[0] x  shape=(1, 512, 512, 192) dtype=bfloat16 strides=(100663296, 196608, 384, 2) contiguous=True
;   offset   8: d_in[1] w1  shape=(192, 48) dtype=bfloat16 strides=(96, 2) contiguous=True
;   offset  16: d_in[2] w2  shape=(48, 192) dtype=bfloat16 strides=(384, 2) contiguous=True
;   offset  40: d_ws      402653184 bytes workspace (unspecified values whenever your kernel or launch list starts; a list's later launches find what earlier ones wrote)
"""

X_BYTES = 100663296
NWG = 256
NRED = 12
MiB = 1 << 20

L_RED = 0
L_H = 6144
L_CNT = 6336
L_S = 6400
L_F = 7168
L_W1 = 8192
L_W2 = L_W1 + 18432
L_SPILL = L_W2 + 18432
L_X = L_SPILL + 3 * 8192
L_TOTAL = L_X

WS_P = 0
WS_Q = 256 * 1536
WS_E = WS_Q + 4 * 49152
WS_USED = WS_E + 128
WS_PROBE = 640 * 1024
WS_STAMP = 1 << 20

S_X, S_OUT, S_WS, S_DBG, S_W = 4, 8, 12, 16, 20
S_WAVE, S_TY, S_SUB, S_OFF, S_MASK, S_CNT, S_T0, S_T1 = 28, 29, 30, 31, 32, 33, 34, 35
S_BASE, S_PM, S_P, S_T2 = 48, 49, 50, 51
S_AGN, S_RID, S_PO = 40, 42, 43
S_TG = [41, 47, 3, 0]
S_RET, S_HOOK, S_QC = 38, 46, 1
S_BASE1 = 45
NFB = 48
S_STAMP = 52
S_V = 24

D0 = 40
SPIN = 2000000
V_L, V_G0, V_G1, V_AT = 0, 39, 38, 36

NAGN = 8
SPANS = [(0, 0), (0, 1), (1, 0), (1, 1), (2, 0), (2, 1), (3, 0), (3, 1),
         (6, 0), (4, 0), (6, 1), (4, 1), (7, 0), (5, 0), (7, 1), (5, 1)]
W_ROLE = 0
DBG_RES, DBG_TAL = 0, 128
NVOTE_WG = 32
RES_OK = (1 << 8) | (1 << 11) | (1 << 17) | (1 << 29)
S_OK = 44
S_XR, S_XO, S_XP = 92, 93, 91


def mask(pred):
    return sum(1 << z for z, s in enumerate(SPANS) if pred(z, s))


class G:
    def __init__(self, o):
        self.o = o
        self.lines = []

    def e(self, s=""):
        self.lines.append(("    " + s) if s and not s.endswith(":") else s)

    def stamp(self, idx, vote=False):
        if self.o.clk:
            if idx in (11, 12, 13):
                return
            m = {0: 11, 7: 12, 10: 13}.get(idx)
            if m:
                self.e(f"s_memtime s[{S_STAMP + 2 * m}:{S_STAMP + 2 * m + 1}]")
        if vote == "r":
            vote = False
        if self.o.vdiag and idx in (1, 2, 3, 6) and not vote:
            return
        if vote and not self.o.vdiag:
            return
        if self.o.stamps and not (self.o.trace and idx > 10):
            self.e(f"s_memrealtime s[{S_STAMP + 2 * idx}:{S_STAMP + 2 * idx + 1}]")

    def srd(self, d, lo, nbytes):
        e = self.e
        e(f"s_mov_b64 s[{d}:{d + 1}], s[{lo}:{lo + 1}]")
        e(f"s_mov_b32 s{d + 2}, {nbytes}")
        e(f"s_mov_b32 s{d + 3}, 0x20000")

    def span_off(self, z):
        return SPANS[z][0] * 12 * MiB + SPANS[z][1] * 49152

    def mem(self, j, fn):
        e = self.e
        z, u = j >> 1, j & 1
        if z < NAGN:
            if self.o.bfirst:
                off = SPANS[z][0] * 12 * MiB + (j % 4) * 12288 - self.o.agn0
            else:
                off = (j // self.o.agnu) * (self.o.agnu * 3 * MiB - (self.o.skew if self.o.skewa else 0)) + (j % self.o.agnu) * 12288
            so = f"s{S_OFF}" if off else f"s{S_AGN}"
            if off:
                e(f"s_add_u32 s{S_OFF}, s{S_AGN}, {off}")
            if SPANS[z] == (7, 1):
                at = 2 + u
                e(f"v_add_u32 v{at}, {so}, v{V_L}")
                e(f"v_subrev_u32 v{5 - at}, s{S_X + 2}, v{at}")
                e(f"v_min_u32 v{at}, v{at}, v{5 - at}             ; past the end: wrap to the rows the shift skipped")
                fn(f"v{at}", "0")
            else:
                fn(f"v{V_L}", so)
            return
        if getattr(self, "pz", None) != z:
            e(f"s_bitcmp1_b32 s{S_PM}, {z}")
            e(f"s_cselect_b32 s{S_P}, 24576, 0")
            self.pz = z
        e(f"s_add_u32 s{S_OFF}, s{(S_BASE, S_BASE1)[SPANS[z][1]]}, {SPANS[z][0] * 12 * MiB - self.o.skew * (SPANS[z][0] * self.o.skewd + self.o.skewc) + 12288 * u}")
        at = 2 + u
        if self.o.xfer and j == 31:
            e(f"s_cmp_eq_u32 s{S_XR}, 1")
            e(f"s_cselect_b32 s{S_P}, 0x40000000, s{S_P}")
            self.pz = None
        e(f"v_xad_u32 v{at}, v{(V_G0, V_G1)[u]}, s{S_P}, v{V_L}")
        if SPANS[z] == (7, 1):
            e(f"v_add_u32 v{at}, s{S_OFF}, v{at}")
            e(f"v_subrev_u32 v{5 - at}, s{S_X + 2}, v{at}")
            e(f"v_min_u32 v{at}, v{at}, v{5 - at}             ; past the end: wrap to the rows the shift skipped")
            fn(f"v{at}", "0")
        else:
            fn(f"v{at}", f"s{S_OFF}")

    def trace(self, kind, n):
        if self.o.trace == kind:
            if n > 0:
                self.e("s_waitcnt lgkmcnt(0)")
                self.e(f"s_mov_b32 s{76 + n - 1}, s92")
            self.e("s_memrealtime s[92:93]")

    def build(self):
        o, e = self.o, self.e
        NRACE = o.nrace
        ldf = (" " + o.ldflags) if o.ldflags else ""
        stf = (" " + o.stflags) if o.stflags else ""

        self.stamp(0)
        e("s_load_dwordx2 s[4:5], s[0:1], 0          ; x")
        e("s_load_dwordx2 s[8:9], s[0:1], 24         ; out")
        e("v_readfirstlane_b32 s%d, v0" % S_WAVE)
        e("v_and_b32 v1, 63, v0                      ; lane")
        pl = (o.piece // 16).bit_length() - 1
        e(f"v_bfe_u32 v2, v0, {pl}, {6 - pl}")
        e(f"v_mul_u32_u24 v2, {(3 * o.piece, 1536, 768, 384)[o.lmap]}, v2")
        e(f"v_and_b32 v3, {(1 << pl) - 1}, v0")
        e("s_cmpk_ge_u32 s2, %d" % NWG)
        e("s_cbranch_scc1 L_end")
        if o.rot:
            e(f"s_add_u32 s2, s2, {o.rot}")
            e("s_and_b32 s2, s2, 255")
        if o.rolepos < 0:
            e(f"s_lshl2_add_u32 s{S_T1}, s{S_WAVE}, s2")
            e(f"s_cmp_le_u32 s{S_T1}, {NVOTE_WG}              ; wave 0 of the first workgroups has a side job")
            e("s_cbranch_scc1 L_role")
            e("L_stream:")
        if o.lmap == 1:
            e("v_lshl_add_u32 v0, v3, 4, v2")
            e(f"v_lshl_add_u32 v{V_L}, s{S_WAVE}, 1, v0")
            e(f"s_lshr_b32 s{S_WAVE}, s{S_WAVE}, 6")
        elif o.lmap == 3:
            e(f"s_lshr_b32 s{S_TY}, s{S_WAVE}, 8")
            e(f"s_lshr_b32 s{S_WAVE}, s{S_WAVE}, 6")
            e(f"s_and_b32 s{S_SUB}, s{S_WAVE}, 3              ; sub = wave % 4")
            e(f"s_mul_i32 s{S_T0}, s{S_SUB}, 24")
            e(f"s_add_u32 s{S_T0}, s{S_T0}, s{S_TY}")
            e("v_lshl_add_u32 v0, v3, 4, v2")
            e(f"v_lshl_add_u32 v{V_L}, s{S_T0}, 7, v0")
        elif o.lmap == 2:
            e(f"s_lshr_b32 s{S_WAVE}, s{S_WAVE}, 6")
            e(f"s_cmp_ge_u32 s{S_WAVE}, 6")
            e(f"s_cselect_b32 s{S_T0}, 42, 0")
            e(f"s_add_u32 s{S_T0}, s{S_T0}, s{S_WAVE}")
            e("v_lshl_add_u32 v0, v3, 4, v2")
            e(f"v_lshl_add_u32 v{V_L}, s{S_T0}, 7, v0")
        else:
            e(f"s_lshr_b32 s{S_WAVE}, s{S_WAVE}, 6")
            e(f"s_mul_i32 s{S_SUB}, s{S_WAVE}, 43")
            e(f"s_lshr_b32 s{S_SUB}, s{S_SUB}, 7")
            e(f"s_mul_i32 s{S_T0}, s{S_SUB}, {3072 // o.piece - 3}")
            e(f"s_add_u32 s{S_T0}, s{S_T0}, s{S_WAVE}        ; sub*24 + wave % 3")
            e(f"s_lshl_b32 s{S_T0}, s{S_T0}, {pl + 4}")
            e("v_lshl_add_u32 v0, v3, 4, v2")
            e(f"v_add_u32 v{V_L}, s{S_T0}, v0               ; + sub*3072 + (wave % 3)*128")
        if o.umap == 1:
            pass
        elif o.umap >= 2:
            mul, rot = (o.umap >> 4) | 1, o.umap & 7
            e(f"s_lshr_b32 s{S_T1}, s2, 3")
            e(f"s_mul_i32 s{S_T1}, s{S_T1}, {rot}")
            e(f"s_mul_i32 s{S_T0}, s2, {mul}")
            e(f"s_add_u32 s{S_T0}, s{S_T0}, s{S_T1}")
            e(f"s_and_b32 s{S_T0}, s{S_T0}, 7")
            e(f"s_and_b32 s{S_T1}, s2, -8")
            e(f"s_add_u32 s{S_T0}, s{S_T0}, s{S_T1}")
        elif o.qmap == 0:
            e(f"s_and_b32 s{S_T0}, s2, 3")
            e(f"s_bfe_u32 s{S_T1}, s2, 0x10002")
            e(f"s_lshl1_add_u32 s{S_T0}, s{S_T0}, s{S_T1}")
            if o.urot:
                e(f"s_lshr_b32 s{S_T1}, s2, {o.urot & 15}")
                if o.urot >> 4:
                    e(f"s_lshl_b32 s{S_T1}, s{S_T1}, {o.urot >> 4}")
                e(f"s_add_u32 s{S_T0}, s{S_T0}, s{S_T1}")
                e(f"s_and_b32 s{S_T0}, s{S_T0}, 7")
            e(f"s_and_b32 s{S_T1}, s2, -8")
            e(f"s_add_u32 s{S_T0}, s{S_T0}, s{S_T1}")
        else:
            e(f"s_and_b32 s{S_T0}, s2, 7")
            e(f"s_lshl_b32 s{S_T0}, s{S_T0}, 5")
            e(f"s_lshr_b32 s{S_T1}, s2, 3")
            e(f"s_add_u32 s{S_T0}, s{S_T0}, s{S_T1}")
        e(f"s_mul_i32 s{S_AGN}, s{2 if o.umap == 1 else S_T0}, {o.agnu * 12288}")
        if o.bfirst:
            e(f"s_add_u32 s{S_AGN}, s{S_AGN}, {o.agn0}")
        e(f"s_mov_b32 s{S_X + 2}, {X_BYTES}")
        e(f"s_mov_b32 s{S_X + 3}, 0x20000")
        if o.rolepos >= 0:
            e(f"s_lshl_b32 s{S_T1}, s{S_WAVE}, 8")
            e(f"s_or_b32 s{S_T1}, s{S_T1}, s2")
        if o.sdiag:
            self.stamp(6, True)
        e("s_waitcnt lgkmcnt(0)")
        if o.sdiag:
            self.stamp(1, True)
        e(f"s_lshr_b32 s{S_T0}, s{S_OUT}, 7")
        e(f"s_mul_i32 s{S_T0}, s{S_T0}, 21              ; -43 mod 64")
        e(f"s_and_b32 s{S_T0}, s{S_T0}, 63")
        e(f"s_mulk_i32 s{S_T0}, 384")
        e(f"s_add_u32 s{S_AGN}, s{S_AGN}, s{S_T0}")
        assert W_ROLE == 0

        SUM, MAX, T = 4, 12, 20
        DEPTH = o.depth
        seq = []

        def issue(j):
            if j == o.rolepos:
                e(f"s_cmp_le_u32 s{S_T1}, {NVOTE_WG}              ; wave 0 of the first workgroups has a side job")
                e("s_cbranch_scc1 L_role")
                e("L_stream:")
            if o.cpf and j == o.cpfpos:
                e(f"s_sub_u32 s{S_T1}, s{S_T1}, 256")
                e(f"s_cmp_ge_u32 s{S_T1}, {o.cpf}")
                e("s_cbranch_scc1 L_nocpf")
                e("s_getpc_b64 s[20:21]")
                e("v_lshlrev_b32 v2, 7, v1")
                e("v_add_u32 v3, 8192, v2")
                e("v_min_u32 v3, L_codeend - L_nocpf, v3")
                e("global_load_dword v36, v2, s[20:21]")
                e("global_load_dword v37, v3, s[20:21]")
                e("L_nocpf:")
            if j == max(4, o.rolepos):
                e("s_load_dwordx4 s[36:39], s[0:1], 8        ; w1, w2")
                e(f"s_load_dwordx2 s[{S_DBG}:{S_DBG + 1}], s[0:1], 32")
                e(f"s_load_dwordx2 s[{S_WS}:{S_WS + 1}], s[0:1], 40")
                if not (o.msum and o.mul == "dot"):
                    e(f"s_mov_b32 s{S_MASK}, 0xffff0000")
            if j == 2 * NAGN:
                if o.lmap in (1, 2):
                    e(f"s_mul_i32 s{S_SUB}, s{S_WAVE}, 43")
                    e(f"s_lshr_b32 s{S_SUB}, s{S_SUB}, 7")
                if o.lmap != 3:
                    e(f"s_mul_i32 s{S_TY}, s{S_SUB}, 3")
                    e(f"s_sub_u32 s{S_TY}, s{S_WAVE}, s{S_TY}        ; ty = wave % 3")
                e(f"s_mov_b32 s{S_OUT + 2}, s{S_X + 2}")
                e(f"s_mov_b32 s{S_OUT + 3}, s{S_X + 3}")
                e(f"s_mov_b32 s{S_WS + 2}, {(2 << 20) if o.stamps else WS_USED}")
                e(f"s_mov_b32 s{S_WS + 3}, s{S_X + 3}")
                e(f"s_movk_i32 s{S_DBG + 2}, 256")
                e(f"s_mov_b32 s{S_DBG + 3}, s{S_X + 3}")
                e(f"s_movk_i32 s{S_T2}, 24576")
                e(f"v_bfe_u32 v{V_G0}, v{V_L}, 13, 1")
                e(f"v_add_u32 v{V_G1}, 12288, v{V_L}")
                e(f"v_bfe_u32 v{V_G1}, v{V_G1}, 13, 1")
                e(f"v_mul_u32_u24 v{V_G0}, s{S_T2}, v{V_G0}")
                e(f"v_mul_u32_u24 v{V_G1}, s{S_T2}, v{V_G1}")
                e(f"s_lshr_b32 s{S_T0}, s{S_OUT}, 7")
                e(f"s_mul_i32 s{S_T0}, s{S_T0}, 21")
                e(f"s_and_b32 s{S_T0}, s{S_T0}, 63")
                e(f"s_mulk_i32 s{S_T0}, 384")
                e(f"s_lshr_b32 s{S_BASE}, s2, 3")
                if o.qrot:
                    if o.qrot >= 16:
                        e(f"s_lshr_b32 s{S_T1}, s{S_BASE}, {o.qrot - 16}")
                    else:
                        e(f"s_mul_i32 s{S_T1}, s{S_BASE}, {o.qrot}")
                    e(f"s_add_u32 s{S_T1}, s{S_T1}, s2")
                    e(f"s_and_b32 s{S_T1}, s{S_T1}, 3")
                else:
                    e(f"s_and_b32 s{S_T1}, s2, 3")
                if o.qmap == 0:
                    e(f"s_lshl2_add_u32 s{S_BASE}, s{S_BASE}, s{S_T1}")
                else:
                    e(f"s_lshl_b32 s{S_T1}, s{S_T1}, 5")
                    e(f"s_add_u32 s{S_BASE}, s{S_BASE}, s{S_T1}")
                e(f"s_add_u32 s{S_BASE1}, s{S_BASE}, {64 if o.h6 else o.qshift}")
                e(f"s_and_b32 s{S_BASE1}, s{S_BASE1}, 127")
                e(f"s_mul_i32 s{S_BASE}, s{S_BASE}, {49152 if o.h6 else 98304}")
                e(f"s_add_u32 s{S_BASE}, s{S_BASE}, s{S_T0}        ; the pair's first span of a step")
                e(f"s_mul_i32 s{S_BASE1}, s{S_BASE1}, {49152 if o.h6 else 98304}")
                e(f"s_add_u32 s{S_BASE1}, s{S_BASE1}, s{S_T0}")
                e(f"s_add_u32 s{S_BASE1}, s{S_BASE1}, {6 * MiB if o.h6 else 49152}      ; its second span: 3 MiB on, where the memory stacks swap")
                h1 = mask(lambda z, s: s[1] == 1)
                e(f"s_add_u32 s{S_T2}, s{S_T2}, s{S_OUT}")
                e(f"s_add_u32 s{S_T0}, s{S_BASE}, s{S_T2}")
                e(f"s_bfe_i32 s{S_PM}, s{S_T0}, 0x10015")
                e(f"s_add_u32 s{S_T2}, s{S_BASE1}, s{S_T2}")
                e(f"s_xor_b32 s{S_T0}, s{S_T0}, s{S_T2}")
                e(f"s_bfe_i32 s{S_T0}, s{S_T0}, 0x10015")
                e(f"s_and_b32 s{S_T0}, s{S_T0}, {h1}")
                e(f"s_xor_b32 s{S_PM}, s{S_PM}, s{S_T0}")
                m1 = mask(lambda z, s: z >= NAGN and s[0] in ((0, 1) if o.bfirst else (3, 4)))
                z50 = SPANS.index((2 if o.bfirst else 5, 0))
                z51 = SPANS.index((2 if o.bfirst else 5, 1))
                edge = (8 if o.bfirst else 4) * MiB - 24576
                dec = mask(lambda z, s: z >= NAGN)
                e(f"s_cmp_lt_u32 s{S_BASE}, {edge}")
                e(f"s_cselect_b32 s{S_T0}, {1 << z50}, 0")
                e(f"s_or_b32 s{S_T0}, s{S_T0}, {m1}")
                e(f"s_cmp_lt_u32 s{S_BASE1}, {edge}")
                e(f"s_cselect_b32 s{S_T1}, {1 << z51}, 0")
                e(f"s_or_b32 s{S_T0}, s{S_T0}, s{S_T1}            ; third 1")
                e(f"s_xor_b32 s{S_T1}, s{S_T0}, {dec}           ; third 2")
                per, pat = o.opp
                rep = sum(((pat >> (i % per)) & 1) << i for i in range(32))
                e(f"s_lshr_b32 s{S_P}, s2, 3")
                e(f"s_mul_i32 s{S_T2}, s{S_P}, {-(-256 // per)}")
                e(f"s_lshr_b32 s{S_T2}, s{S_T2}, 8")
                e(f"s_mul_i32 s{S_T2}, s{S_T2}, {per}")
                e(f"s_sub_u32 s{S_P}, s{S_P}, s{S_T2}             ; (b >> 3) % {per}")
                e(f"s_lshr_b32 s{S_P}, {rep}, s{S_P}")
                e(f"s_sub_u32 s{S_T2}, s{S_OUT}, s{S_X}")
                e(f"s_add_u32 s{S_T2}, s{S_T2}, 2048")
                e(f"s_bitcmp1_b32 s{S_T2}, 12")
                e(f"s_cselect_b32 s{S_P}, 0, s{S_P}")
                e(f"s_cselect_b32 s{S_OK}, 0, {1 << 23}")
                e(f"s_or_b32 s{S_OK}, s{S_OK}, {RES_OK}       ; the parts of the result word that must be in")
                e(f"s_lshr_b32 s{S_T2}, s2, 3")
                e(f"s_sub_u32 s{S_RID}, s{S_T2}, {o.red0}")
                e(f"s_and_b32 s{S_PO}, s2, 7")
                e(f"s_lshl_b32 s{S_PO}, s{S_PO}, 5")
                e(f"s_add_u32 s{S_PO}, s{S_PO}, s{S_T2}")
                e(f"s_mulk_i32 s{S_PO}, 1536")
                if o.msum:
                    e("v_and_b32 v20, 1, v1")
                    e("v_lshlrev_b32 v20, 4, v20")
                    e("v_mov_b32 v21, 0x3f80")
                    e("v_lshlrev_b32 v20, v20, v21")
                    e("v_bfe_u32 v21, v1, 1, 3")
                    for d in range(4):
                        e(f"v_cmp_eq_u32 s[{S_V}:{S_V + 1}], {2 * d}, v21")
                        e("s_nop 1")
                        e(f"v_cndmask_b32 v{8 + d}, 0, v20, s[{S_V}:{S_V + 1}]")
                if o.last:
                    e("v_mov_b32 v20, 0")
                    e("v_lshlrev_b32 v21, 2, v1")
                    e("s_mov_b64 exec, 7")
                    e(f"ds_write_b32 v21, v20 offset:{L_CNT}")
                    e("s_mov_b64 exec, -1")
                e("s_waitcnt lgkmcnt(0)")
                self.stamp(11)
                e("s_barrier")
                e(f"s_load_dword s{S_T2}, s[{S_DBG}:{S_DBG + 1}], {DBG_RES}")
                e("s_waitcnt lgkmcnt(0)")
                e(f"s_andn2_b32 s{S_CNT}, s{S_OK}, s{S_T2}")
                e("s_cbranch_scc1 L_dpoll")
                e("L_decided:")
                for i in range(4):
                    e(f"s_bitcmp1_b32 s{S_T2}, {7 + 6 * i + 5}")
                    e(f"s_cselect_b32 s{S_V + i}, s{(S_T0, S_T1)[i >> 1]}, 0")
                e(f"s_or_b32 s{S_V}, s{S_V}, s{S_V + 2}")
                e(f"s_or_b32 s{S_V + 1}, s{S_V + 1}, s{S_V + 3}")
                e(f"s_xor_b32 s{S_V}, s{S_V}, s{S_V + 1}")
                e(f"s_and_b32 s{S_V}, s{S_V}, s{S_P}")
                e(f"s_xor_b32 s{S_V}, s{S_V}, s{S_V + 1}")
                e(f"s_xor_b32 s{S_PM}, s{S_PM}, s{S_V}")
                e(f"s_lshr_b32 s{S_QC}, s{S_T2}, 13")
                e(f"s_add_u32 s{S_QC}, s{S_QC}, s2")
                e(f"s_bfe_i32 s{S_V}, s{S_QC}, 0x10002")
                e(f"s_xor_b32 s{S_PM}, s{S_PM}, s{S_V}")
                e(f"s_and_b32 s{S_TG[0]}, s{S_T2}, 15")
                e(f"s_bfe_u32 s{S_TG[1]}, s{S_T2}, 0x40004")
                e(f"s_xor_b32 s{S_TG[2]}, s{S_TG[0]}, 15")
                e(f"s_xor_b32 s{S_TG[3]}, s{S_TG[1]}, 15")
                e(f"s_lshr_b32 s{S_V}, s{S_T2}, 10")
                e(f"s_and_b32 s{S_V}, s{S_V}, 4")
                e(f"s_xor_b32 s{S_QC}, s{S_QC}, s{S_V}           ; bits 2:0: the second-stage copy near this die")
                if o.xfer:
                    assert SPANS[15] == (7, 0)
                    e(f"s_lshr_b32 s{S_T0}, s{S_T2}, 13")
                    e(f"s_add_u32 s{S_T1}, s{S_T0}, s2")
                    e(f"s_and_b32 s{S_XR}, s{S_T1}, 1")
                    e(f"s_sub_u32 s{S_XR}, 2, s{S_XR}")
                    e(f"s_cmp_ge_u32 s{S_WAVE}, {12 - o.xfer}")
                    e(f"s_cselect_b32 s{S_XR}, s{S_XR}, 0")
                    e(f"s_xor_b32 s{S_T1}, s{S_T1}, 1")
                    e(f"s_sub_u32 s{S_T1}, s{S_T1}, s{S_T0}")
                    e(f"s_and_b32 s{S_T1}, s{S_T1}, 3")
                    e(f"s_and_b32 s{S_T0}, s2, 3")
                    e(f"s_sub_u32 s{S_T1}, s{S_T1}, s{S_T0}")
                    e(f"s_mul_i32 s{S_T1}, s{S_T1}, 98304")
                    e(f"s_add_u32 s{S_XO}, s{S_BASE}, s{S_T1}        ; the neighbour's first span of a step")
                    e(f"s_add_u32 s{S_T0}, s{S_OUT}, 24576")
                    e(f"s_add_u32 s{S_T1}, s{S_T0}, s{S_XO}")
                    e(f"s_add_u32 s{S_T0}, s{S_T0}, s{S_BASE}")
                    e(f"s_xor_b32 s{S_T0}, s{S_T0}, s{S_T1}")
                    e(f"s_lshr_b32 s{S_T0}, s{S_T0}, 6")
                    e(f"s_xor_b32 s{S_T0}, s{S_T0}, s{S_PM}")
                    e(f"s_bitcmp1_b32 s{S_T0}, 15")
                    e(f"s_cselect_b32 s{S_XP}, 24576, 0")
                    e(f"s_add_u32 s{S_XO}, s{S_XO}, {7 * 12 * MiB + 12288}")
                if o.wtouch:
                    e("s_load_dword s22, s[36:37], 0")
                    e("s_load_dword s23, s[38:39], 0")
                self.stamp(12)
            if j in o.xbar:
                e("s_barrier")
                if j == o.xbar[-1]:
                    self.stamp(2, "r")
            if o.xfer and j == o.xpos:
                e(f"s_cmp_lg_u32 s{S_XR}, 2")
                e("s_cbranch_scc1 L_nox1")
                e(f"s_lshl_b32 s{S_T0}, s{S_WAVE}, 10")
                e(f"s_add_u32 m0, s{S_T0}, {L_X}")
                e(f"v_xad_u32 v3, v{V_G1}, s{S_XP}, v{V_L}")
                e(f"buffer_load_dwordx4 v3, s[{S_X}:{S_X + 3}], s{S_XO} offen{ldf} lds")
                e("L_nox1:")
            if j == o.warm and o.warmst:
                e(f"s_cmp_ge_u32 s{S_WAVE}, 2")
                e("s_cbranch_scc1 L_nowarm")
                for i in range(4):
                    e(f"v_mov_b32 v{20 + i}, 0")
                e(f"s_mul_i32 s{S_T0}, s{S_WAVE}, 768")
                e(f"v_lshl_add_u32 v3, v1, 4, s{S_T0}")
                e("s_mov_b32 exec_hi, 0xffff")
                e(f"buffer_store_dwordx4 v[20:23], v3, s[{S_WS}:{S_WS + 3}], s{S_PO} offen")
                e("s_mov_b64 exec, -1")
                e("L_nowarm:")
            if j == o.warm and not o.warmst:
                e(f"s_cmp_lg_u32 s{S_WAVE}, {o.warmwave}")
                e("s_cbranch_scc1 L_nowarm")
                e("v_lshlrev_b32 v3, 7, v1")
                e("s_mov_b64 exec, 0xfff")
                e(f"buffer_load_dword v37, v3, s[{S_WS}:{S_WS + 3}], s{S_PO} offen {o.warmfl}")
                e("s_mov_b64 exec, -1")
                if o.lpf == 2:
                    e(f"s_cmp_lg_u32 s{S_RID}, {NRED}")
                    e("s_cbranch_scc1 L_nowarm")
                    e("s_getpc_b64 s[20:21]")
                    if o.lay:
                        e("v_add_u32 v3, L_tail - L_nowarm + 32, v3")
                    e("v_min_u32 v3, L_end - L_nowarm, v3")
                    e("global_load_dword v37, v3, s[20:21]")
                e("L_nowarm:")
            r = D0 + 4 * j
            if o.thr and j == 10:
                e(f"s_getreg_b32 s{S_T0}, hwreg(HW_REG_XCC_ID, 0, 3)")
                e(f"s_lshr_b32 s{S_T0}, {o.thrmask}, s{S_T0}")
                e(f"s_and_b64 vcc, s[{S_T0}:{S_T0 + 1}], 1")
            if o.cap and o.capfrom <= j < o.capto:
                e(f"s_waitcnt vmcnt({o.cap - 1})")
            if o.thr and o.thrfrom <= j < o.thrto:
                e(f"s_cbranch_vccz L_thr{j}")
                e(f"s_waitcnt vmcnt({o.thr - 1})")
                e(f"L_thr{j}:")
            self.mem(j, lambda va, so: e(f"buffer_load_dwordx4 v[{r}:{r + 3}], {va}, s[{S_X}:{S_X + 3}], {so} offen{ldf}"))
            seq.append(j)
            if o.sdiag and j == 0:
                self.stamp(2, True)
            if o.sdiag and j == 2:
                e("s_waitcnt vmcnt(2)")
                self.stamp(3, True)
            if j & 1:
                self.trace("ld", j >> 1)

        def wait_for(j):
            e(f"s_waitcnt vmcnt({len(seq) - 1 - seq.index(j)})")

        def hpair(a, b, first):
            e(f"v_mfma_f32_16x16x32_bf16 v[4:7], v[8:11], v[{a}:{a + 3}], {'0' if first else 'v[4:7]'}")
            for i in range(4):
                if i == 2:
                    e(f"v_mfma_f32_16x16x32_bf16 v[4:7], v[8:11], v[{b}:{b + 3}], v[4:7]")
                e(f"v_pk_maximum3_f16 v{MAX + i}, v{a + i if first else MAX + i}, v{a + i}, v{b + i}")

        def hscatter():
            e("s_nop 0")
            e(f"v_permlane32_swap_b32 v{MAX}, v{MAX + 2}")
            e(f"v_permlane32_swap_b32 v{MAX + 1}, v{MAX + 3}")
            e(f"v_pk_maximum3_f16 v{MAX}, v{MAX}, v{MAX + 2}, v{MAX + 2}")
            e(f"v_pk_maximum3_f16 v{MAX + 1}, v{MAX + 1}, v{MAX + 3}, v{MAX + 3}")
            e("s_nop 1")
            e(f"v_permlane16_swap_b32 v{MAX}, v{MAX + 1}")
            e(f"v_pk_maximum3_f16 v{MAX + 1}, v{MAX}, v{MAX + 1}, v{MAX + 1}")
            e(f"v_lshlrev_b32 v{MAX}, 16, v{MAX + 1}")
            e(f"v_cmp_u_f16_sdwa vcc, v{MAX + 1}, v{MAX + 1} src0_sel:WORD_0 src1_sel:WORD_1")
            e("s_cbranch_vccnz L_exact")
            e("L_maxok:")

        def mpair(a, b, first, sums=True):
            if o.hmax and sums:
                return hpair(a, b, first)
            if sums:
                e(f"v_mfma_f32_16x16x32_bf16 v[4:7], v[8:11], v[{a}:{a + 3}], {'0' if first else 'v[4:7]'}")
            for i in range(4):
                e(f"v_lshlrev_b32 v{T + 2 * i}, 16, v{a + i}")
            if sums:
                e(f"v_mfma_f32_16x16x32_bf16 v[4:7], v[8:11], v[{b}:{b + 3}], v[4:7]")
            for i in range(4):
                e(f"v_lshlrev_b32 v{T + 2 * i + 1}, 16, v{b + i}")
            for i in range(4):
                m = MAX + 2 * i
                if first:
                    e(f"v_max_f32 v{m + 1}, v{a + i}, v{b + i}")
                else:
                    e(f"v_max3_f32 v{m + 1}, v{m + 1}, v{a + i}, v{b + i}")
            for i in range(4):
                m, t = MAX + 2 * i, T + 2 * i
                if first:
                    e(f"v_max_f32 v{m}, v{t}, v{t + 1}")
                else:
                    e(f"v_max3_f32 v{m}, v{m}, v{t}, v{t + 1}")

        def mscatter():
            for i in (1, 3, 0, 2):
                e(f"v_permlane32_swap_b32 v{MAX + i}, v{MAX + 4 + i}")
            for i in (1, 3, 0, 2):
                e(f"v_max_f32 v{MAX + i}, v{MAX + i}, v{MAX + 4 + i}")
            e(f"v_permlane16_swap_b32 v{MAX + 1}, v{MAX + 3}")
            e("s_nop 0")
            e(f"v_permlane16_swap_b32 v{MAX}, v{MAX + 2}")
            e(f"v_max_f32 v{MAX + 1}, v{MAX + 1}, v{MAX + 3}")
            e(f"v_max_f32 v{MAX}, v{MAX}, v{MAX + 2}")

        def scatter54():
            for base in (MAX, SUM):
                for i in range(4):
                    e(f"v_permlane32_swap_b32 v{base + i}, v{base + 4 + i}")
            for i in range(4):
                e(f"v_max_f32 v{MAX + i}, v{MAX + i}, v{MAX + 4 + i}")
            for i in range(4):
                e(f"v_add_f32 v{SUM + i}, v{SUM + i}, v{SUM + 4 + i}")
            for i in range(2):
                e(f"v_permlane16_swap_b32 v{MAX + i}, v{MAX + 2 + i}")
            for i in range(2):
                e(f"v_permlane16_swap_b32 v{SUM + i}, v{SUM + 2 + i}")
            for i in range(2):
                e(f"v_add_f32 v{SUM + i}, v{SUM + i}, v{SUM + 2 + i}")
            for i in range(2):
                e(f"v_max_f32 v{MAX + i}, v{MAX + i}, v{MAX + 2 + i}")

        nxt = 0
        for jj in range(16):
            while nxt < 32 and nxt < max(2 * jj + DEPTH + 2, 2 * NAGN + 2 if o.prebar else 0):
                issue(nxt)
                nxt += 1
                if nxt == 32:
                    self.stamp(1)
            a, b = D0 + 8 * jj, D0 + 8 * jj + 4
            if jj == 0:
                e("@@HERE1")
            if jj == 15:
                e("@@HERE2")
                if o.last:
                    e(f"s_lshl_b32 s{S_T0}, s{S_TY}, 11")
                    e(f"v_lshl_add_u32 v3, v1, 3, s{S_T0}")
                    e(f"s_lshl_b32 s{S_T0}, s{S_SUB}, 9")
                    e(f"v_add_u32 v2, s{S_T0}, v3")
                    e(f"s_lshl2_add_u32 s{S_T0}, s{S_TY}, {L_CNT}")
                    e(f"v_mov_b32 v28, s{S_T0}")
                    e("v_mov_b32 v29, 1")
                    e("v_and_b32 v30, 7, v1")
                    e("v_lshrrev_b32 v31, 4, v1")
                    e("v_lshl_add_u32 v30, v31, 3, v30")
                    e("v_bfe_u32 v31, v1, 3, 1")
                    e("v_mul_u32_u24 v31, 96, v31")
                    e(f"s_lshl_b32 s{S_T0}, s{S_TY}, 5")
                    e(f"v_add3_u32 v30, v30, v31, s{S_T0}")
                    e("v_lshlrev_b32 v30, 3, v30")
                    e("v_bfe_i32 v31, v1, 0, 1")
                    e("v_and_b32 v31, 15, v31")
                    e(f"v_xor_b32 v32, s{S_TG[1]}, v31")
                    e(f"v_xor_b32 v31, s{S_TG[0]}, v31")
                else:
                    e("v_and_b32 v2, 7, v1")
                    e("v_lshlrev_b32 v2, 5, v2                   ; (l&7)*32")
                    e("v_lshrrev_b32 v3, 4, v1")
                    e("v_lshl_add_u32 v2, v3, 3, v2              ; + (l>>4)*8")
                    e("v_bfe_u32 v3, v1, 3, 1")
                    e("v_mul_u32_u24 v3, 768, v3")
                    e(f"s_mul_i32 s{S_T0}, s{S_SUB}, 1536")
                    e(f"s_lshl_b32 s{S_T1}, s{S_TY}, 8")
                    e(f"s_add_u32 s{S_T0}, s{S_T0}, s{S_T1}")
                    e(f"v_add3_u32 v2, v2, v3, s{S_T0}")
                    e(f"s_mul_i32 s{S_T0}, s{S_WAVE}, 768")
                    e(f"v_lshl_add_u32 v3, v1, 4, s{S_T0}")
                if o.msum:
                    assert o.last
                    e("v_bfe_i32 v33, v1, 3, 1")
                    e("v_and_b32 v33, 0xfff0, v33")
                    e("v_xor_b32 v33, -16, v33                   ; bits that carry the value: 31:4 of a sum, 31:16 of a max")
                    wait_for(31)
                    self.stamp(3)
                    mpair(a, b, False)
                    continue
                if o.ttail:
                    scatter54()
                    for r in (a, b):
                        wait_for((r - D0) // 4)
                        if r == b:
                            self.stamp(3)
                        C = 8
                        e(f"v_mov_b64 v[{C}:{C + 1}], v[{r}:{r + 1}]")
                        e(f"v_mov_b64 v[{C + 2}:{C + 3}], v[{r + 2}:{r + 3}]")
                        e("s_nop 1")
                        e(f"v_permlane32_swap_b32 v{C}, v{C + 2}")
                        e(f"v_permlane32_swap_b32 v{C + 1}, v{C + 3}")
                        e("s_nop 1")
                        e(f"v_permlane16_swap_b32 v{C}, v{C + 1}")
                        e(f"v_permlane16_swap_b32 v{C + 2}, v{C + 3}")
                        for i in range(4):
                            t = T + 2 * i
                            e(f"v_lshlrev_b32 v{t}, 16, v{C + i}")
                            e(f"v_and_b32 v{t + 1}, s{S_MASK}, v{C + i}")
                        e(f"v_pk_add_f32 v[{C}:{C + 1}], v[{T}:{T + 1}], v[{T + 2}:{T + 3}]")
                        e(f"v_pk_add_f32 v[{C + 2}:{C + 3}], v[{T + 4}:{T + 5}], v[{T + 6}:{T + 7}]")
                        e(f"v_max3_f32 v{MAX}, v{MAX}, v{T}, v{T + 2}")
                        e(f"v_pk_add_f32 v[{C}:{C + 1}], v[{C}:{C + 1}], v[{C + 2}:{C + 3}]")
                        e(f"v_max3_f32 v{MAX + 1}, v{MAX + 1}, v{T + 1}, v{T + 3}")
                        e(f"v_pk_add_f32 v[{SUM}:{SUM + 1}], v[{SUM}:{SUM + 1}], v[{C}:{C + 1}]")
                        e(f"v_max3_f32 v{MAX}, v{MAX}, v{T + 4}, v{T + 6}")
                        e(f"v_max3_f32 v{MAX + 1}, v{MAX + 1}, v{T + 5}, v{T + 7}")
                    continue
                def fold(r):
                    for i in range(4):
                        t = T + 2 * i
                        e(f"v_lshlrev_b32 v{t}, 16, v{r + i}")
                        e(f"v_and_b32 v{t + 1}, s{S_MASK}, v{r + i}")
                    for i in range(8):
                        e(f"v_max_f32 v{MAX + i}, v{MAX + i}, v{T + i}")
                    for i in range(4):
                        t, s = T + 2 * i, SUM + 2 * i
                        e(f"v_pk_add_f32 v[{s}:{s + 1}], v[{s}:{s + 1}], v[{t}:{t + 1}]")
                if o.xfer:
                    assert o.xpos <= 28
                    e(f"s_cmp_lg_u32 s{S_XR}, 2")
                    e("s_cbranch_scc1 L_nox2")
                    e(f"s_lshl_b32 s{S_T0}, s{S_WAVE}, 10")
                    e(f"s_add_u32 s{S_T0}, s{S_T0}, {L_X}")
                    e(f"v_lshl_add_u32 v{V_AT}, v1, 4, s{S_T0}")
                    e(f"ds_read_b128 v[28:31], v{V_AT}")
                    e("s_waitcnt lgkmcnt(0)")
                    fold(28)
                    e("L_nox2:")
                for r in (a, b):
                    wait_for((r - D0) // 4)
                    if r == b:
                        self.stamp(3)
                        if o.xfer:
                            e(f"s_cmp_eq_u32 s{S_XR}, 1")
                            e("s_cbranch_scc1 L_nox3")
                    fold(r)
                if o.xfer:
                    e("L_nox3:")
                continue
            wait_for(2 * jj + 1)
            if jj == 0 and not o.xbar:
                self.stamp(2)
            if jj >= o.skipfrom:
                continue
            if o.msum:
                mpair(a, b, jj == 0)
                continue
            for i in range(4):
                t = T + 4 * i
                e(f"v_lshlrev_b32 v{t}, 16, v{a + i}")
                e(f"v_and_b32 v{t + 1}, s{S_MASK}, v{a + i}")
                e(f"v_lshlrev_b32 v{t + 2}, 16, v{b + i}")
                e(f"v_and_b32 v{t + 3}, s{S_MASK}, v{b + i}")
            for i in range(4):
                t = T + 4 * i
                s, m = SUM + 2 * i, MAX + 2 * i
                if jj == 0:
                    e(f"v_max_f32 v{m}, v{t}, v{t + 2}")
                    e(f"v_max_f32 v{m + 1}, v{t + 1}, v{t + 3}")
                    e(f"v_pk_add_f32 v[{s}:{s + 1}], v[{t}:{t + 1}], v[{t + 2}:{t + 3}]")
                else:
                    e(f"v_max3_f32 v{m}, v{m}, v{t}, v{t + 2}")
                    e(f"v_max3_f32 v{m + 1}, v{m + 1}, v{t + 1}, v{t + 3}")
                    e(f"v_pk_add_f32 v[{t}:{t + 1}], v[{t}:{t + 1}], v[{t + 2}:{t + 3}]")
            if jj:
                for i in range(4):
                    t = T + 4 * i
                    s = SUM + 2 * i
                    e(f"v_pk_add_f32 v[{s}:{s + 1}], v[{s}:{s + 1}], v[{t}:{t + 1}]")

        if o.hmax:
            hscatter()
        elif o.msum:
            mscatter()
        elif not o.ttail:
            scatter54()
        e(f"s_cmp_ge_u32 s{S_WAVE}, 2")
        for i in range(2):
            e(f"v_add_f32_dpp v{SUM + i}, v{SUM + i}, v{SUM + i} row_ror:8 row_mask:0xf bank_mask:0x3")
        for i in range(2):
            e(f"v_max_f32_dpp v{SUM + i}, v{MAX + i}, v{MAX + i} row_ror:8 row_mask:0xf bank_mask:0xc")
        if o.last:
            e(f"ds_write_b64 v2, v[{SUM}:{SUM + 1}] offset:{L_RED}")
            e("s_mov_b64 exec, 1")
            e("ds_add_rtn_u32 v6, v28, v29")
            e("s_mov_b64 exec, -1")
            e("ds_read2st64_b64 v[8:11], v3 offset0:0 offset1:1")
            e("ds_read2st64_b64 v[12:15], v3 offset0:2 offset1:3")
            e("s_waitcnt lgkmcnt(1)")
            e(f"v_readfirstlane_b32 s{S_T0}, v6")
            e("v_pk_add_f32 v[4:5], v[8:9], v[10:11]")
            e("s_waitcnt lgkmcnt(0)")
            e("v_max3_f32 v8, v8, v10, v12")
            e("v_max3_f32 v9, v9, v11, v13")
            e("v_pk_add_f32 v[16:17], v[12:13], v[14:15]")
            e(f"s_cmp_lg_u32 s{S_T0}, 3")
            e("v_pk_add_f32 v[4:5], v[4:5], v[16:17]")
            e("s_cbranch_scc1 L_notlast")
            e("v_max_f32_dpp v4, v8, v14 quad_perm:[0,1,2,3] row_mask:0xf bank_mask:0xc")
            e("v_max_f32_dpp v5, v9, v15 quad_perm:[0,1,2,3] row_mask:0xf bank_mask:0xc")
            e("v_and_or_b32 v4, v4, -16, v31")
            e(f"v_and_or_b32 v5, v5, {'v33' if o.msum else '-16'}, v32")
            e(f"buffer_store_dwordx2 v[4:5], v30, s[{S_WS}:{S_WS + 3}], s{S_PO} offen")
            e("L_notlast:")
            e("v_lshrrev_b32 v20, 4, v1                  ; q")
            e(f"s_cmp_lt_u32 s{S_RID}, {NRED}")
            e(f"s_cselect_b32 s{S_T0}, s{S_WAVE}, 0")
            e(f"s_cmp_eq_u32 s{S_T0}, 3")
            e("s_cbranch_scc1 L_rsetup")
            e(f"s_cmp_ge_u32 s{S_WAVE}, 2")
            e("s_barrier")
            self.stamp(4)
            e("s_cbranch_scc1 L_nopub")
            e(f"s_cmp_eq_u32 s{S_WAVE}, 0")
            e(f"s_cselect_b64 s[{S_W}:{S_W + 1}], s[36:37], s[38:39]")
        else:
            e(f"ds_write_b64 v2, v[{SUM}:{SUM + 1}] offset:{L_RED}")
            e("s_waitcnt lgkmcnt(0)")
            e("s_barrier")
            self.stamp(4)
            e("s_cbranch_scc1 L_nopub")

            e("s_mov_b32 exec_hi, 0xffff")
            for k in range(4):
                e(f"ds_read_b128 v[{4 + 4 * k}:{7 + 4 * k}], v3 offset:{L_RED + 1536 * k}")
            e(f"s_cmp_eq_u32 s{S_WAVE}, 0")
            e(f"s_cselect_b64 s[{S_W}:{S_W + 1}], s[36:37], s[38:39]")
            e("s_cbranch_scc0 L_pubmax")
            e("s_waitcnt lgkmcnt(2)")
            e("v_pk_add_f32 v[4:5], v[4:5], v[8:9]")
            e("v_pk_add_f32 v[6:7], v[6:7], v[10:11]")
            e("s_waitcnt lgkmcnt(0)")
            e("v_pk_add_f32 v[12:13], v[12:13], v[16:17]")
            e("v_pk_add_f32 v[14:15], v[14:15], v[18:19]")
            e("v_pk_add_f32 v[4:5], v[4:5], v[12:13]")
            e("v_pk_add_f32 v[6:7], v[6:7], v[14:15]")
            e("s_branch L_pub")
            e("L_pubmax:")
            e("s_waitcnt lgkmcnt(1)")
            for i in range(4):
                e(f"v_max3_f32 v{4 + i}, v{4 + i}, v{8 + i}, v{12 + i}")
            e("s_waitcnt lgkmcnt(0)")
            for i in range(4):
                e(f"v_max_f32 v{4 + i}, v{4 + i}, v{16 + i}")
            e("L_pub:")
            for i in range(4):
                e(f"v_and_or_b32 v{4 + i}, v{4 + i}, -16, s{S_TG[i]}")
            e(f"buffer_store_dwordx4 v[4:7], v3, s[{S_WS}:{S_WS + 3}], s{S_PO} offen{' sc1' if o.psc1 else ' nt' if o.pnt else ''}")
            e("s_mov_b64 exec, -1")
        e(f"s_movk_i32 s{S_W + 2}, 18432")
        e(f"s_mov_b32 s{S_W + 3}, 0x20000")
        e(f"s_mul_i32 s{S_T0}, s{S_WAVE}, 18432")
        e(f"s_addk_i32 s{S_T0}, {L_W1}")
        e(f"s_mov_b32 s{S_T1}, 0")
        e("v_lshlrev_b32 v2, 4, v1")
        e("L_wloop:")
        e(f"s_add_u32 m0, s{S_T0}, s{S_T1}")
        e("s_nop 0")
        for k in range(3):
            e(f"buffer_load_dwordx4 v2, s[{S_W}:{S_W + 3}], s{S_T1} offen offset:{k * 1024} lds")
        e(f"s_addk_i32 s{S_T1}, 3072")
        e(f"s_cmp_lt_u32 s{S_T1}, 18432")
        e("s_cbranch_scc1 L_wloop")
        e("L_nopub:")

        B2 = 28
        V_H0, V_H1, V_SW, V_SR, V_Q = 24, 25, 26, 27, 37
        SP0 = 136
        A1 = 144
        B1 = [4, 8, 12, 16, 136, 140]
        if o.last:
            e(f"s_cmp_lt_u32 s{S_WAVE}, 3")
            e("s_cbranch_scc1 L_spill")
            e("s_branch L_barw")
            e("L_rsetup:")
        else:
            e("v_lshrrev_b32 v20, 4, v1                  ; q")
            e(f"s_cmp_lt_u32 s{S_WAVE}, 3")
            e("s_cbranch_scc1 L_spill")
            e(f"s_cmp_ge_u32 s{S_RID}, {NRED}")
            e("s_cbranch_scc1 L_barw")
            e(f"s_cmp_lg_u32 s{S_WAVE}, 3")
            e("s_cbranch_scc1 L_barw")

        def clean(lbl, d, a):
            e(f"s_cmp_lg_u32 s{S_WAVE}, 3")
            e(f"s_cbranch_scc1 {lbl}")
            if o.cw:
                e(f"v_mov_b32 v{d}, 0")
                e(f"v_lshlrev_b32 v{a}, {o.cw}, v1")
                e(f"s_mov_b64 exec, {(1 << (1536 >> o.cw)) - 1}")
                if o.cld:
                    e(f"buffer_atomic_or v{d}, v{a}, s[{S_WS}:{S_WS + 3}], s{S_PO} offen")
                else:
                    e(f"buffer_store_dword v{d}, v{a}, s[{S_WS}:{S_WS + 3}], s{S_PO} offen sc1")
                e("s_mov_b64 exec, -1")
                return
            for i in range(4):
                e(f"v_mov_b32 v{d + i}, 0")
            e(f"v_lshlrev_b32 v{a}, 4, v1")
            e("s_mov_b32 exec_hi, 0xffff")
            e(f"buffer_store_dwordx4 v[{d}:{d + 3}], v{a}, s[{S_WS}:{S_WS + 3}], s{S_PO} offen sc1")
            e(f"buffer_store_dwordx4 v[{d}:{d + 3}], v{a}, s[{S_WS}:{S_WS + 3}], s{S_PO} offen offset:768 sc1")
            e("s_mov_b64 exec, -1")

        e("v_lshrrev_b32 v2, 3, v1")
        e("v_mul_u32_u24 v2, 1536, v2")
        e("v_and_b32 v3, 7, v1")
        e(f"v_lshl_add_u32 v{V_Q}, v3, 4, v2")
        e(f"s_and_b32 s{S_T0}, s2, 7")
        e(f"s_mul_i32 s{S_V}, s{S_T0}, {32 * 1536}")
        e(f"s_lshl_b32 s{S_T1}, s{S_RID}, 7")
        e(f"s_add_u32 s{S_V}, s{S_V}, s{S_T1}")
        for k in range(1, 4):
            e(f"s_add_u32 s{S_V + k}, s{S_V}, {k * 8 * 1536}")
        e(f"s_lshl_b32 s{S_T0}, s{S_T0}, 8              ; group*256")
        e(f"s_lshr_b32 s{S_T1}, s{S_RID}, 2")
        e(f"s_lshl2_add_u32 s{S_T1}, s{S_T1}, s{S_RID}")
        e(f"s_lshl_b32 s{S_T1}, s{S_T1}, 11")
        e(f"s_add_u32 s{S_T1}, s{S_T1}, s{S_T0}")
        for k in range(o.qcopy // 2):
            e(f"s_add_u32 s{S_W + k}, s{S_T1}, {WS_Q + k * 49152}")
        e("v_and_b32 v2, 15, v1")
        e("v_lshlrev_b32 v3, 2, v2")
        e("v_bfe_u32 v2, v1, 4, 1")
        e("v_lshl_add_u32 v3, v2, 7, v3")
        e("v_lshrrev_b32 v2, 5, v1")
        e("v_lshl_add_u32 v3, v2, 13, v3             ; (l>>5)*8192 + ((l>>4)&1)*128 + (l&15)*4")
        e(f"s_lshl4_add_u32 s{S_T0}, s{S_TG[1]}, s{S_TG[0]}")
        e(f"s_xor_b32 s{S_CNT}, s{S_T0}, 0xff")
        e(f"s_lshl_b32 s{S_CNT}, s{S_CNT}, 8")
        e(f"s_or_b32 s{S_T0}, s{S_T0}, s{S_CNT}")
        e("v_and_b32 v2, 12, v3")
        e(f"v_bfe_u32 v23, s{S_T0}, v2, 4")
        e(f"s_mov_b32 s{S_CNT}, {NFB}")
        e(f"s_mov_b32 s{S_HOOK}, 0")
        if o.last:
            e("s_barrier")
            self.stamp(4)
        e("L_rpoll:")
        for k in range(4):
            e(f"buffer_load_dwordx4 v[{4 + 4 * k}:{7 + 4 * k}], v{V_Q}, s[{S_WS}:{S_WS + 3}], s{S_V + k} offen sc1")
        e(f"s_sub_u32 s{S_CNT}, s{S_CNT}, 1")
        e("s_cbranch_scc1 L_rlong")
        for k in range(4):
            e(f"s_waitcnt vmcnt({3 - k})")
            r = 4 + 4 * k
            for i in range(4):
                e(f"v_xor_b32 v{r + i}, s{S_TG[i]}, v{r + i}" + ("            ; a matching tag leaves four zero bits" if k + i == 0 else ""))
            if k == 0:
                e(f"v_or3_b32 v21, v{r}, v{r + 1}, v{r + 2}")
                e(f"v_or_b32 v21, v21, v{r + 3}")
            elif k < 3:
                e(f"v_or3_b32 v21, v21, v{r}, v{r + 1}")
                e(f"v_or3_b32 v21, v21, v{r + 2}, v{r + 3}")
            else:
                e(f"v_or3_b32 v21, v21, v{r}, v{r + 1}")
                e(f"v_or_b32 v22, v{r + 2}, v{r + 3}")
        e("v_bitop3_b32 v21, v21, v22, 15 bitop3:0xa8          ; (a | b) & c")
        e("v_cmp_ne_u32 vcc, 0, v21")
        e("s_wqm_b64 exec, vcc                       ; 64-byte units still waiting poll again")
        e("s_cbranch_scc1 L_rpoll")
        e("L_rgot:")
        e("s_mov_b64 exec, -1")
        self.stamp(1, "r")
        e(f"s_cmp_ge_u32 s{S_RID}, 6")
        e("s_cbranch_scc1 L_rmax")
        for kind in (0, 1):
            op = "v_add_f32" if kind == 0 else "v_max_f32"
            if kind == 1:
                e("L_rmax:")
                for i in range(4):
                    e(f"v_max3_f32 v{4 + i}, v{4 + i}, v{8 + i}, v{12 + i}")
                for i in (0, 2, 1, 3):
                    e(f"v_max_f32 v{4 + i}, v{4 + i}, v{16 + i}")
            else:
                e("v_pk_add_f32 v[4:5], v[4:5], v[8:9]")
                e("v_pk_add_f32 v[6:7], v[6:7], v[10:11]")
                e("v_pk_add_f32 v[12:13], v[12:13], v[16:17]")
                e("v_pk_add_f32 v[14:15], v[14:15], v[18:19]")
                e("v_pk_add_f32 v[4:5], v[4:5], v[12:13]")
                e("v_pk_add_f32 v[6:7], v[6:7], v[14:15]")
                e("s_nop 0")
            e(f"{op}_dpp v4, v4, v4 row_ror:8 row_mask:0xf bank_mask:0x3")
            if kind == 0:
                e(f"{op}_dpp v5, v5, v5 row_ror:8 row_mask:0xf bank_mask:0x3")
                e(f"{op}_dpp v4, v6, v6 row_ror:8 row_mask:0xf bank_mask:0xc")
            else:
                e(f"{op}_dpp v4, v6, v6 row_ror:8 row_mask:0xf bank_mask:0xc")
                e(f"{op}_dpp v5, v5, v5 row_ror:8 row_mask:0xf bank_mask:0x3")
            e(f"{op}_dpp v5, v7, v7 row_ror:8 row_mask:0xf bank_mask:0xc")
            e("s_nop 1")
            e("v_permlane16_swap_b32 v4, v5")
            e(f"{op} v4, v4, v5")
            e("v_mov_b32 v5, v4")
            e("s_nop 1")
            e("v_permlane32_swap_b32 v4, v5")
            e(f"{op} v4, v4, v5                        ; lane 16a+8b+c: element 2b+a of piece c")
            if kind == 0:
                e("s_branch L_rpub")
        e("L_rpub:")
        e("v_and_or_b32 v4, v4, -16, v23")
        for k in range(o.qcopy // 2):
            e(f"buffer_store_dword v4, v3, s[{S_WS}:{S_WS + 3}], s{S_W + k} offen sc1")
            if k == 0:
                self.stamp(9)
        if o.clean == "r":
            for i in range(4):
                e(f"v_mov_b32 v{8 + i}, 0")
            for k in range(4):
                e(f"buffer_store_dwordx4 v[8:11], v{V_Q}, s[{S_WS}:{S_WS + 3}], s{S_V + k} offen sc1")
        e("s_barrier")
        e("s_branch L_afterw")

        if o.pad:
            e(f".fill {o.pad // 4}, 4, 0xbf800000")
        e("L_spill:")
        e(f"s_lshl_b32 s{S_T0}, s{S_WAVE}, 13")
        e(f"v_lshl_add_u32 v{V_AT}, v1, 4, s{S_T0}")
        for k in range(8):
            e(f"ds_write_b128 v{V_AT}, v[{SP0 + 4 * k}:{SP0 + 4 * k + 3}] offset:{L_SPILL + 1024 * k}")
        e("L_barw:")
        if o.tlb:
            e(f"s_cmp_lg_u32 s{S_WAVE}, 5")
            e("s_cbranch_scc1 L_notlb")
            e(f"v_lshlrev_b32 v2, {o.tlb}, v1")
            e(f"buffer_load_dword v4, v2, s[{S_OUT}:{S_OUT + 3}], 0 offen")
            e("L_notlb:")
        if o.lpf == 1:
            e(f"s_cmp_lg_u32 s{S_WAVE}, 4")
            e("s_cbranch_scc1 L_nolpf")
            e("s_getpc_b64 s[20:21]")
            e("v_lshlrev_b32 v2, 7, v1")
            e("v_min_u32 v2, L_end - L_nolpf, v2")
            e("global_load_dword v4, v2, s[20:21]")
            e("L_nolpf:")
        e("s_waitcnt vmcnt(0) lgkmcnt(0)")
        e("s_barrier")
        e("L_afterw:")
        e("v_bfe_u32 v3, v1, 2, 2")
        e("v_lshl_add_u32 v21, v20, 3, v3            ; row")
        e("v_and_b32 v22, 15, v21                    ; row of the half step (q&1)")
        e("v_and_b32 v3, 3, v1")
        e(f"s_lshl_b32 s{S_T2}, s{S_WAVE}, 5")
        e(f"v_lshl_add_u32 v23, v3, 3, s{S_T2}          ; column bytes")
        e("v_mov_b32 v3, 384")
        e("v_mad_u32_u24 v2, v21, v3, v23")
        e("v_mad_u32_u24 v22, v22, v3, v23")
        e(f"ds_read_b64_tr_b16 v[{B2}:{B2 + 1}], v2 offset:{L_W2}")
        e(f"ds_read_b64_tr_b16 v[{B2 + 2}:{B2 + 3}], v2 offset:{L_W2 + 4 * 384}")
        e(f"ds_read_b64_tr_b16 v[{B2 + 4}:{B2 + 5}], v22 offset:{L_W2 + 32 * 384}")
        e(f"ds_read_b64_tr_b16 v[{B2 + 6}:{B2 + 7}], v22 offset:{L_W2 + 36 * 384}")
        e("v_and_b32 v2, 1, v1")
        e("v_mul_u32_u24 v22, 96, v2")
        e(f"v_lshl_add_u32 v{V_H0}, v20, 4, v22")
        e("v_and_b32 v3, 1, v20")
        e(f"v_lshl_add_u32 v{V_H1}, v3, 4, v22")
        e(f"s_lshl_b32 s{S_T0}, s{S_WAVE}, 6")
        e(f"v_lshl_add_u32 v{V_SW}, v1, 2, s{S_T0}")
        if o.mul == "dot":
            e("v_mov_b32 v3, 0")
            e("s_mov_b64 exec, 0xffff")
            e(f"ds_write_b32 v{V_SW}, v3 offset:{L_S}")
            e("s_mov_b64 exec, -1")
            e(f"v_lshl_add_u32 v{V_SW}, v2, 1, v{V_SW}")
        e("v_and_b32 v3, 7, v1")
        e(f"s_lshl_b32 s{S_T0}, s{S_TY}, 8")
        e(f"v_lshl_add_u32 v{V_SR}, v3, 5, s{S_T0}")
        e("s_waitcnt lgkmcnt(0)")
        e("s_mov_b32 exec_lo, 0")
        for i in range(4):
            e(f"v_mov_b32 v{B2 + 4 + i}, 0")
        e("s_mov_b64 exec, -1")
        e(f"s_cmp_ge_u32 s{S_WAVE}, 3")
        e("s_cbranch_scc1 L_noa1")
        e("v_mov_b32 v3, 96")
        e("v_mad_u32_u24 v2, v21, v3, v23")
        for s in range(6):
            for h in range(2):
                r = A1 + 4 * s + 2 * h
                e(f"ds_read_b64_tr_b16 v[{r}:{r + 1}], v2 offset:{L_W1 + s * 3072 + h * 384}")
        e("L_noa1:")
        e(f"v_lshl_add_u32 v3, v20, 3, v22")
        e(f"v_add_u32 v3, s{S_T2}, v3")
        e("v_lshlrev_b32 v2, 2, v22")
        e("v_lshl_add_u32 v2, v20, 4, v2")
        e("v_and_b32 v8, 1, v1")
        e("v_lshlrev_b32 v8, 4, v8")
        e("v_lshl_add_u32 v8, v20, 2, v8")
        e("v_and_b32 v9, 2, v1")
        e("v_bfe_u32 v10, v1, 2, 1")
        e("v_add3_u32 v8, v8, v9, v10")
        if o.last:
            e("v_bfe_u32 v9, v8, 1, 3")
            e("v_lshrrev_b32 v11, 4, v8")
            e("v_and_b32 v8, 1, v8")
            e("v_lshl_add_u32 v8, v11, 1, v8")
            e("v_lshl_add_u32 v8, v9, 3, v8")
            e(f"s_lshr_b32 s{S_T0}, s{S_WAVE}, 1")
            e(f"s_and_b32 s{S_T1}, s{S_WAVE}, 1")
            e(f"s_lshl4_add_u32 s{S_T0}, s{S_T0}, s{S_T1}")
            e(f"s_lshl_b32 s{S_T0}, s{S_T0}, 2")
            e(f"v_add_lshl_u32 v23, v8, s{S_T0}, 1")
        else:
            e(f"v_add_lshl_u32 v23, v8, s{S_T2}, 1")
        e("v_lshrrev_b32 v8, 2, v1")
        e("v_lshlrev_b32 v8, 7, v8")
        e("v_and_b32 v9, 3, v1")
        e(f"v_lshl_add_u32 v{V_Q}, v9, 4, v8")
        e(f"s_and_b32 s{S_T0}, s{S_QC}, 4")
        if o.qcopy > 2:
            e(f"s_and_b32 s{S_CNT}, s{S_QC}, {o.qcopy // 2 - 1}")
            e(f"s_mul_i32 s{S_CNT}, s{S_CNT}, 24")
            e(f"s_add_u32 s{S_T0}, s{S_T0}, s{S_CNT}")
        e(f"s_lshr_b32 s{S_T1}, s{S_WAVE}, 2")
        e(f"s_lshl2_add_u32 s{S_T1}, s{S_T1}, s{S_WAVE}")
        e(f"s_add_u32 s{S_T1}, s{S_T1}, s{S_T0}")
        e(f"s_lshl_b32 s{S_T1}, s{S_T1}, 11")
        e(f"s_add_u32 s{S_T1}, s{S_T1}, {WS_Q}")
        if o.clean in ("q", "p", "a", "h", "g"):
            if o.cfull:
                for i in range(4):
                    e(f"v_mov_b32 v{16 + i}, s{S_TG[i]}")
                e("v_lshlrev_b32 v22, 4, v1")
            else:
                e(f"v_mov_b32 v19, s{S_TG[0]}")
            e(f"s_lshl_b32 s{S_V}, s{S_WAVE}, 7")
            e(f"s_add_u32 s{S_V}, s{S_V}, s{S_PO}")
        e(f"s_mov_b32 s{S_CNT}, {NFB}")
        e(f"s_mov_b32 s{S_HOOK}, 0")
        e(f"s_cmp_lt_u32 s{S_WAVE}, 6")
        e("s_cbranch_scc1 L_qpoll0")

        def clean1():
            if o.cfull:
                e("s_mov_b64 exec, 0xff")
                e(f"buffer_store_dwordx4 v[16:19], v22, s[{S_WS}:{S_WS + 3}], s{S_V} offen sc1")
            else:
                e("s_mov_b64 exec, 1")
                e(f"buffer_store_dword v19, off, s[{S_WS}:{S_WS + 3}], s{S_V} sc1")
            e("s_mov_b64 exec, -1")

        for kind in (1, 0):
            op = "v_add_f32" if kind == 0 else "v_max_f32"
            if o.q2:
                def qld(r):
                    e(f"buffer_load_dwordx4 v[{r}:{r + 3}], v{V_Q}, s[{S_WS}:{S_WS + 3}], s{S_T1} offen sc1")

                def qchk(r):
                    e("s_waitcnt vmcnt(1)")
                    for i in range(4):
                        e(f"v_xor_b32 v{4 + i}, s{S_TG[i]}, v{r + i}")
                    e("v_or3_b32 v21, v4, v5, v6")
                    e("v_bitop3_b32 v21, v21, v7, 15 bitop3:0xa8")
                    e("v_cmp_ne_u32 vcc, 0, v21")
                    e("s_wqm_b64 exec, vcc")
                e(f"L_qpoll{kind}:")
                qld(8)
                e(f"s_sleep {o.q2}")
                e(f"L_qloop{kind}:")
                qld(12)
                e(f"s_sub_u32 s{S_CNT}, s{S_CNT}, 1")
                e(f"s_cbranch_scc1 L_qlong{kind}")
                qchk(8)
                e(f"s_cbranch_scc0 L_qgot{kind}")
                qld(8)
                qchk(12)
                e(f"s_cbranch_scc1 L_qloop{kind}")
            else:
                e(f"L_qpoll{kind}:")
                e(f"buffer_load_dwordx4 v[4:7], v{V_Q}, s[{S_WS}:{S_WS + 3}], s{S_T1} offen sc1")
                e(f"s_sub_u32 s{S_CNT}, s{S_CNT}, 1")
                e(f"s_cbranch_scc1 L_qlong{kind}")
                if o.qsleep:
                    e(f"s_sleep {o.qsleep}")
                e("s_waitcnt vmcnt(0)")
                for i in range(4):
                    e(f"v_xor_b32 v{4 + i}, s{S_TG[i]}, v{4 + i}")
                e("v_or3_b32 v21, v4, v5, v6")
                e("v_bitop3_b32 v21, v21, v7, 15 bitop3:0xa8")
                e("v_cmp_ne_u32 vcc, 0, v21")
                e("s_wqm_b64 exec, vcc")
                e(f"s_cbranch_scc1 L_qpoll{kind}")
            e(f"L_qgot{kind}:")
            if o.clean == "p":
                e("s_mov_b64 exec, 1")
                e(f"buffer_store_dword v19, off, s[{S_WS}:{S_WS + 3}], s{S_V} sc1")
            e("s_mov_b64 exec, -1")
            self.stamp(5)
            e("v_permlane32_swap_b32 v4, v6")
            e("v_permlane32_swap_b32 v5, v7")
            e(f"{op} v4, v4, v6")
            e(f"{op} v5, v5, v7")
            e("s_nop 1")
            e("v_permlane16_swap_b32 v4, v5")
            e(f"{op} v4, v4, v5")
            e(f"s_cmp_ge_u32 s{S_WAVE}, 3")
            e("s_nop 0")
            e(f"{op}_dpp v4, v4, v4 row_ror:8 row_mask:0xf bank_mask:0xf")
            if kind == 0:
                e("v_mul_f32 v4, 0x36800000, v4              ; 1/262144")
            e("v_cvt_pk_bf16_f32 v4, v4, v4")
            e(f"ds_write_b16 v23, v4 offset:{L_F}")
            if o.q2:
                e("s_waitcnt vmcnt(0)")
            if o.clean == "q" or (o.clean == "h" and kind == 1) or (o.clean == "g" and kind == 0):
                clean1()
            e("s_waitcnt lgkmcnt(0)")
            e("s_barrier")
            if kind == 1:
                if o.clean in ("a", "g"):
                    clean1()
                e("s_branch L_join")
            else:
                e("s_cbranch_scc1 " + ("L_clean0" if o.clean in ("a", "h") else "L_join"))

        e("L_mlp1:")
        for s in range(6):
            e(f"ds_read_b128 v[{B1[s]}:{B1[s] + 3}], v2 offset:{L_F + 64 * s}")
        if o.clean in ("a", "h"):
            clean1()
        for s in range(6):
            c = "0" if s == 0 else "v[20:23]"
            b = B1[s]
            e(f"s_waitcnt lgkmcnt({5 - s})")
            e(f"v_mfma_f32_16x16x32_bf16 v[20:23], v[{A1 + 4 * s}:{A1 + 4 * s + 3}], v[{b}:{b + 3}], {c}")
        e("s_nop 3")
        e("s_mov_b32 exec_lo, 0x00030003")
        e("s_mov_b32 exec_hi, 0x00030003")
        e("s_nop 1")
        for i in range(4):
            e(f"v_maximum3_f32 v{20 + i}, v{20 + i}, 0, 0")
        e("v_cvt_pk_bf16_f32 v20, v20, v21")
        e("v_cvt_pk_bf16_f32 v21, v22, v23")
        e(f"ds_write_b64 v3, v[20:21] offset:{L_H}")
        e("s_mov_b64 exec, -1")
        e("s_waitcnt lgkmcnt(0)")

        e("L_join:")
        e("s_barrier")
        self.stamp(6)
        e(f"ds_read_b128 v[4:7], v{V_H0} offset:{L_H}")
        e(f"ds_read_b128 v[8:11], v{V_H1} offset:{L_H + 64}")
        e("s_waitcnt lgkmcnt(1)")
        e(f"v_mfma_f32_16x16x32_bf16 v[12:15], v[4:7], v[{B2}:{B2 + 3}], 0")
        e("s_waitcnt lgkmcnt(0)")
        e(f"v_mfma_f32_16x16x32_bf16 v[12:15], v[8:11], v[{B2 + 4}:{B2 + 7}], v[12:15]")
        e("s_mov_b64 exec, 0xffff")
        e("s_nop 6")
        e("v_cvt_pk_bf16_f32 v12, 0, v12")
        e("v_cvt_pk_bf16_f32 v13, 0, v13")
        e("v_add_f32 v12, v12, v13")
        e("v_cvt_pk_bf16_f32 v12, 0, v12")
        e("v_mul_f32 v12, 0xbfb8aa3b, v12            ; -log2(e)")
        e("v_exp_f32 v12, v12")
        e("s_nop 0")
        e("v_add_f32 v12, 1.0, v12")
        e("v_rcp_f32 v12, v12")
        e("s_nop 0")
        if o.mul == "dot":
            e("v_cvt_pk_bf16_f32 v12, v12, v12")
            e(f"ds_write_b16 v{V_SW}, v12 offset:{L_S}")
        else:
            e("v_cvt_pk_bf16_f32 v12, 0, v12")
            e(f"ds_write_b32 v{V_SW}, v12 offset:{L_S}")
        e("s_mov_b64 exec, -1")
        e("s_waitcnt lgkmcnt(0)")
        e("s_barrier")
        e(f"ds_read_b128 v[4:7], v{V_SR} offset:{L_S}")
        e(f"ds_read_b128 v[8:11], v{V_SR} offset:{L_S + 16}")

        if o.stlim:
            e(f"s_cmp_lt_u32 s2, {o.stlim}")
            e(f"s_cselect_b32 s{S_OUT + 2}, s{S_OUT + 2}, 0")
        zorder = [int(v) for v in o.zorder.split(",")]
        assert sorted(zorder) == list(range(16))
        restored = False
        late = []

        def wbl2():
            wv, lim, pos = [int(v) for v in o.wb.split(",")]
            e(f"s_cmp_lt_u32 s{S_WAVE}, {wv}")
            e("s_cbranch_scc1 L_nowb")
            e(f"s_cmp_ge_u32 s2, {lim}")
            e("s_cbranch_scc1 L_nowb")
            if pos == 33:
                e("s_waitcnt vmcnt(0)")
            e("buffer_wbl2 sc1")
            e("L_nowb:")
        jorder = [int(v) for v in o.jorder.split(",")] if o.jorder else [2 * z + u for z in zorder for u in (0, 1)]
        assert sorted(jorder) == list(range(32))
        self.pz = None
        for n, j in enumerate(jorder):
            a = D0 + 4 * j
            t0 = 12 + 8 * (n & 1)
            if a >= SP0 and not restored:
                assert n > 1
                e("s_waitcnt lgkmcnt(0)")
                restored = True
            md = o.mul
            for i in range(4 if md in ("pk", "mul", "u", "um") else 0):
                t = t0 + 2 * i
                e(f"v_lshlrev_b32 v{t}, 16, v{a + i}")
                e(f"v_and_b32 v{t + 1}, s{S_MASK}, v{a + i}")
            if n == 0:
                e("s_waitcnt lgkmcnt(0)")
                self.stamp(7)
            if o.al:
                e(f".p2align {o.al & 15}")
                if o.al >> 4:
                    e("s_nop 0")
            for i in range(4):
                t = t0 + 2 * i
                if md in ("pk", "um"):
                    e(f"v_pk_mul_f32 v[{t}:{t + 1}], v[{t}:{t + 1}], v[{4 + 2 * i}:{5 + 2 * i}]")
                if md == "mul":
                    e(f"v_mul_f32 v{t}, v{t}, v{4 + 2 * i}")
                    e(f"v_mul_f32 v{t + 1}, v{t + 1}, v{5 + 2 * i}")
                if md == "dot":
                    e(f"v_dot2_f32_bf16 v{t}, v{a + i}, v{4 + 2 * i}, 0")
                    e(f"v_dot2_f32_bf16 v{t + 1}, v{a + i}, v{5 + 2 * i}, 0")
            for i in range(4):
                t = t0 + 2 * i
                if md in ("pk", "mul", "dot"):
                    e(f"v_cvt_pk_bf16_f32 v{a + i}, v{t}, v{t + 1}")
                if md == "c":
                    e(f"v_cvt_pk_bf16_f32 v{a + i}, v{a + i}, v{a + (i ^ 1)}")
            def st(j=j, a=a, n=n):
                self.mem(j, lambda va, so: e(f"buffer_store_dwordx4 v[{a}:{a + 3}], {va}, s[{S_OUT}:{S_OUT + 3}], {so} offen{'' if n >= 32 - o.nplain else stf}"))
            if n < o.burst:
                st()
            else:
                late.append(st)
            if n == 31:
                for f in late:
                    f()
            if o.xfer and n == o.xspos:
                e(f"s_cmp_lg_u32 s{S_XR}, 2")
                e("s_cbranch_scc1 L_nox4")
                e(f"ds_read_b128 v[28:31], v{V_AT}")
                e(f"v_xad_u32 v32, v{V_G1}, s{S_XP}, v{V_L}")
                e("s_waitcnt lgkmcnt(0)")
                for i in range(4):
                    e(f"v_dot2_f32_bf16 v{12 + 2 * i}, v{28 + i}, v{4 + 2 * i}, 0")
                    e(f"v_dot2_f32_bf16 v{13 + 2 * i}, v{28 + i}, v{5 + 2 * i}, 0")
                for i in range(4):
                    e(f"v_cvt_pk_bf16_f32 v{28 + i}, v{12 + 2 * i}, v{13 + 2 * i}")
                e(f"buffer_store_dwordx4 v[28:31], v32, s[{S_OUT}:{S_OUT + 3}], s{S_XO} offen{stf}")
                e("L_nox4:")
            if n + 1 in o.sbar:
                e("s_barrier")
            if o.sthr and n >= o.sthr:
                e(f"s_waitcnt vmcnt({o.sthr - 1})")
            if o.wb and int(o.wb.split(",")[2]) == n:
                wbl2()
            if n & 1:
                self.trace("st", n >> 1)
            if n == 1:
                e(f"s_cmp_ge_u32 s{S_WAVE}, 3")
                e("s_cbranch_scc1 L_norestore")
                for k in range(8):
                    e(f"ds_read_b128 v[{SP0 + 4 * k}:{SP0 + 4 * k + 3}], v{V_AT} offset:{L_SPILL + 1024 * k}")
                e("L_norestore:")
                if o.clean == "st":
                    clean("L_noclean", 28, 32)
                    e("L_noclean:")
        if o.clean == "e":
            clean("L_noclean", 28, 32)
            e("L_noclean:")
        if o.wb and int(o.wb.split(",")[2]) >= 32:
            wbl2()
        if o.stamps:
            self.stamp(8)
            e("s_waitcnt vmcnt(0)")
            self.stamp(10)
            if o.idleclk:
                e(f"s_cmp_lg_u32 s{S_WAVE}, 11")
                e("s_cbranch_scc1 L_noidle")
                for lbl, dur, m, r in (("a", o.idleclk, 1, 3), ("b", 2000, 2, 6)):
                    e("s_memrealtime s[96:97]")
                    e("s_waitcnt lgkmcnt(0)")
                    e(f"L_idle{lbl}:")
                    e("s_sleep 4")
                    e("s_memrealtime s[98:99]")
                    e("s_waitcnt lgkmcnt(0)")
                    e("s_sub_u32 s98, s98, s96")
                    e(f"s_cmp_lt_u32 s98, {dur}")
                    e(f"s_cbranch_scc1 L_idle{lbl}")
                    e(f"s_memtime s[{S_STAMP + 2 * m}:{S_STAMP + 2 * m + 1}]")
                    e(f"s_memrealtime s[{S_STAMP + 2 * r}:{S_STAMP + 2 * r + 1}]")
                e("L_noidle:")
            e("s_getreg_b32 s94, hwreg(HW_REG_XCC_ID)")
            e("s_getreg_b32 s95, hwreg(HW_REG_HW_ID)")
            e("s_waitcnt lgkmcnt(0)")
            e("v_mov_b32 v2, 0")
            for i in range(11 if o.trace else 14):
                e(f"v_writelane_b32 v2, s{S_STAMP + 2 * i}, {i}")
            e("v_writelane_b32 v2, s94, 14")
            e("v_writelane_b32 v2, s95, 15")
            e(f"s_mul_i32 s{S_T0}, s2, 12")
            e(f"s_add_u32 s{S_T0}, s{S_T0}, s{S_WAVE}")
            e(f"s_lshl_b32 s{S_T0}, s{S_T0}, 6")
            e(f"s_add_u32 s{S_T0}, s{S_T0}, {WS_STAMP}")
            e("v_mbcnt_lo_u32_b32 v3, -1, 0")
            e("v_lshlrev_b32 v3, 2, v3")
            e("s_mov_b64 exec, 0xffff")
            e(f"buffer_store_dword v2, v3, s[{S_WS}:{S_WS + 3}], s{S_T0} offen sc1")
            if o.trace:
                e("s_mov_b32 s91, s92")
                for i in range(16):
                    e(f"v_writelane_b32 v2, s{76 + i}, {i}")
                e(f"s_add_u32 s{S_T0}, s{S_T0}, {1 << 19}")
                e(f"buffer_store_dword v2, v3, s[{S_WS}:{S_WS + 3}], s{S_T0} offen sc1")
        if o.dbgptr:
            e("s_cmp_lg_u32 s2, 0")
            e("s_cbranch_scc1 L_nodp")
            e("s_mov_b64 exec, -1")
            e("v_mov_b32 v2, 0")
            for i, r in enumerate((4, 5, 8, 9, 12, 13, 16, 17, 0, 1)):
                e(f"v_writelane_b32 v2, s{r}, {i}")
            e("v_mbcnt_lo_u32_b32 v3, -1, 0")
            e("v_lshlrev_b32 v3, 2, v3")
            e("s_mov_b64 exec, 0x3ff")
            e(f"buffer_store_dword v2, v3, s[{S_DBG}:{S_DBG + 3}], 0 offen offset:8")
            e("L_nodp:")
        if o.probe:
            idx, K = [int(v) for v in o.probe.split(",")]
            if idx == -6:
                pass
            elif idx == -5:
                e("s_cmp_ge_u32 s2, 8")
                e("s_cbranch_scc1 L_end")
            elif idx == -2:
                e("s_getreg_b32 s94, hwreg(HW_REG_XCC_ID)")
                e("s_xor_b32 s94, s94, s2")
                e("s_and_b32 s94, s94, 7")
                e("s_cbranch_scc0 L_end")
            elif idx == -3:
                e("s_cmp_lg_u32 s2, 0")
                e("s_cbranch_scc1 L_end")
            else:
                e(f"s_cmp_lg_u32 s2, {o.pwg}")
                e("s_cbranch_scc1 L_end")
            e(f"s_cmp_lg_u32 s{S_WAVE}, {o.pwave}")
            e("s_cbranch_scc1 L_end")
            if idx == -6:
                e(f"s_sub_u32 s96, s{S_STAMP + 20}, s{S_STAMP}")
                e(f"s_mul_i32 s96, s96, {K}")
            elif idx == -5:
                e("s_mov_b32 s96, 0")
                e("L_sk:")
                e("s_sleep 100")
                e("s_add_u32 s96, s96, 1")
                e("s_cmp_lt_u32 s96, 4")
                e("s_cbranch_scc1 L_sk")
                e(f"s_mov_b32 s94, {WS_STAMP}")
                e(f"buffer_load_dword v4, off, s[{S_WS}:{S_WS + 3}], s94 sc1")
                e("s_waitcnt vmcnt(0)")
                e("v_readfirstlane_b32 s94, v4")
                e(f"s_sub_u32 s95, s{S_STAMP}, s94")
                e(f"s_mul_i32 s95, s95, {K - 1}")
                e("s_add_u32 s96, s95, 8000")
            elif idx == -4:
                c0, c1, r0, r1 = ((11, 12, 0, 7), (12, 13, 7, 10))[K]
                e(f"s_sub_u32 s94, s{S_STAMP + 2 * c1}, s{S_STAMP + 2 * c0}")
                e(f"s_sub_u32 s95, s{S_STAMP + 2 * r1}, s{S_STAMP + 2 * r0}")
                e("v_cvt_f32_u32 v4, s94")
                e("v_cvt_f32_u32 v5, s95")
                e("v_rcp_f32 v5, v5")
                e("s_nop 1")
                e("v_mul_f32 v4, v4, v5")
                e("v_mul_f32 v4, 0x44fa0000, v4")
                e("v_cvt_u32_f32 v4, v4")
                e("s_nop 1")
                e("v_readfirstlane_b32 s96, v4")
                e("s_sub_u32 s96, s96, 31000")
            elif idx <= -10:
                e(f"s_bfe_u32 s94, s{-idx - 10}, {(7 << 16)} + {K}")
                e("s_mul_i32 s96, s94, 200")
                e("s_add_u32 s96, s96, 5000")
            elif idx == -3:
                e("s_getreg_b32 s94, hwreg(HW_REG_XCC_ID)")
                e("s_and_b32 s94, s94, 7")
                e(f"s_mul_i32 s96, s94, {K}")
                e("s_add_u32 s96, s96, 5000")
            elif idx < 0:
                e(f"s_mov_b32 s96, {K}")
            else:
                e(f"s_sub_u32 s96, s{S_STAMP + 2 * idx}, s{S_STAMP + 2 * o.pref}")
                e(f"s_mul_i32 s96, s96, {K}")
                if o.pref:
                    e("s_add_u32 s96, s96, 5000")
            e("s_min_u32 s96, s96, 200000")
            e("L_probe:")
            e("s_memrealtime s[98:99]")
            e("s_waitcnt lgkmcnt(0)")
            e(f"s_sub_u32 s98, s98, s{S_STAMP}")
            e("s_cmp_lt_u32 s98, s96")
            e("s_cbranch_scc1 L_probe")
        e("L_end:")
        e("s_endpgm")

        e("@@ROLE")
        e(".p2align 7")
        e("L_role:")
        e("s_load_dwordx4 s[44:47], s[0:1], 32")
        e(f"s_lshr_b32 s{S_V + 1}, s2, 3")
        e(f"s_and_b32 s{S_T1}, s2, 1")
        e(f"s_lshl1_add_u32 s{S_T1}, s{S_T1}, 1")
        e(f"s_mul_i32 s{S_T2}, s2, 0x104100")
        e(f"s_cmp_eq_u32 s2, {NVOTE_WG}")
        e("s_waitcnt lgkmcnt(0)")
        e("s_cbranch_scc1 L_tag")
        e(f"s_sub_u32 s{S_T0}, s{S_OUT}, s{S_X}")
        e(f"s_addk_i32 s{S_T0}, 2048")
        e(f"s_bitcmp1_b32 s{S_T0}, 12")
        e(f"s_cselect_b32 s{S_V}, {o.qout}, {o.qgen}")
        e(f"s_cselect_b32 s{S_V + 2}, s{S_V + 1}, 1")
        e(f"s_cmp_eq_u32 s{S_V + 2}, 2")
        e(f"s_cselect_b32 s{S_V + 1}, s{S_T1}, s{S_V + 1}")
        e(f"s_bitcmp1_b32 s{S_V + 1}, 0")
        e(f"s_cselect_b64 s[{S_W}:{S_W + 1}], s[8:9], s[4:5]")
        e(f"s_lshr_b32 s{S_T1}, s{S_V + 1}, 1")
        e(f"s_lshl_b32 s{S_T1}, s{S_T1}, 25" if o.bfirst else f"s_lshl_b32 s{S_T1}, 0x2000000, s{S_T1}")
        e(f"s_add_u32 s{S_T2}, s{S_T2}, s{S_T1}")
        e(f"s_lshr_b32 s{S_T0}, s{S_OUT}, 7")
        e(f"s_mul_i32 s{S_T0}, s{S_T0}, 21")
        e(f"s_and_b32 s{S_T0}, s{S_T0}, 63")
        e(f"s_mulk_i32 s{S_T0}, 384")
        e(f"s_add_u32 s{S_T0}, s{S_T0}, s{S_T2}")
        e(f"s_cmp_lg_u32 s{S_V + 2}, 0")
        e(f"s_cselect_b32 s{S_V + 3}, s{S_OUT}, 0")
        e("s_cbranch_scc1 L_notws")
        e(f"s_mov_b64 s[{S_W}:{S_W + 1}], s[46:47]")
        e(f"s_mov_b32 s{S_V}, {o.qws}")
        e(f"s_and_b32 s{S_T0}, s{S_T2}, 0xfffff")
        e(f"s_add_u32 s{S_T0}, s{S_T0}, {WS_PROBE}")
        e("L_notws:")
        e(f"s_add_u32 s{S_T1}, s{S_T0}, 8192")
        self.stamp(1, True)
        e(f"s_load_dword s42, s[{S_W}:{S_W + 1}], s{S_T0} glc")
        e(f"s_load_dword s43, s[{S_W}:{S_W + 1}], s{S_T1} glc")
        e(f"s_mov_b32 s{S_CNT}, {-(NRACE // 2)}")
        if o.dpf:
            e(f"s_load_dword s23, s[44:45], 192 glc")
        for k in range(NRACE):
            e("s_waitcnt lgkmcnt(0)")
            if k < 2:
                self.stamp(2 + k, True)
                if o.vdiag:
                    e("s_waitcnt lgkmcnt(0)")
            first, second = (S_T0, S_T1) if k % 2 == 0 else (S_T1, S_T0)
            e(f"s_load_dword s42, s[{S_W}:{S_W + 1}], s{first} glc")
            e(f"s_load_dword s43, s[{S_W}:{S_W + 1}], s{second} glc")
            e("s_waitcnt lgkmcnt(1)")
            e("s_nop 7")
            e(f"s_getreg_b32 s{S_T2}, hwreg(HW_REG_IB_STS, 8, 4)   ; 1: the second answer is still out")
            if k % 2 == 0:
                e(f"s_xor_b32 s{S_T2}, s{S_T2}, 1")
            e(f"s_add_u32 s{S_CNT}, s{S_CNT}, s{S_T2}")
        assert NRACE % 2 == 0 and o.qout <= 12 and o.qws <= 8 and o.qgen <= 8 and NVOTE_WG == 32
        e(f"s_sub_u32 s{S_T2}, 0, s{S_CNT}")
        e(f"s_add_u32 s{S_T0}, s{S_T0}, s{S_V + 3}")
        e(f"s_lshr_b32 s{S_T0}, s{S_T0}, 19")
        e(f"s_getreg_b32 s{S_T1}, hwreg(HW_REG_XCC_ID, 0, 3)")
        e(f"s_xor_b32 s{S_T0}, s{S_T0}, s{S_T1}")
        e(f"s_bitcmp1_b32 s{S_T0}, 2")
        e(f"s_cselect_b32 s{S_CNT}, s{S_T2}, s{S_CNT}")
        e(f"s_lshl_b32 s{S_CNT}, s{S_CNT}, 8")
        e(f"s_or_b32 s{S_CNT}, s{S_CNT}, 1")
        e(f"s_mov_b32 s{S_T1}, s{S_CNT}")
        e(f"s_lshl2_add_u32 s{S_T0}, s{S_V + 1}, {DBG_TAL}")
        self.stamp(6, True)
        e(f"s_atomic_add s{S_T1}, s[44:45], s{S_T0} glc")
        e(f"s_mul_i32 s{S_T2}, s{S_V + 1}, 6")
        e("s_waitcnt lgkmcnt(0)")
        e(f"s_add_u32 s{S_T1}, s{S_T1}, s{S_CNT}")
        self.stamp(13)
        e(f"s_and_b32 s{S_T0}, s{S_T1}, 0xff")
        e(f"s_cmp_lg_u32 s{S_T0}, s{S_V}")
        e("s_cbranch_scc1 L_stream")
        e(f"s_cmp_gt_i32 s{S_T1}, 0xff")
        e(f"s_cselect_b32 s{S_T1}, 3, 1")
        e(f"s_add_u32 s{S_T2}, s{S_T2}, 11")
        e(f"s_lshl_b32 s{S_T1}, s{S_T1}, s{S_T2}")
        e("L_publish:")
        e(f"s_atomic_add s{S_T1}, s[44:45], {DBG_RES}")
        e("s_waitcnt lgkmcnt(0)")
        e("s_branch L_stream")

        e("L_tag:")
        e(f"s_mov_b32 s{S_T1}, 1")
        e("s_waitcnt lgkmcnt(0)")
        e(f"s_atomic_add s{S_T1}, s[46:47], {WS_E} glc")
        e("s_waitcnt lgkmcnt(0)")
        e(f"s_add_u32 s{S_T1}, s{S_T1}, 1")
        e(f"s_and_b32 s{S_T1}, s{S_T1}, 0xff")
        e(f"s_bitset1_b32 s{S_T1}, 8")
        assert NVOTE_WG % 8 == 0
        e(f"s_getreg_b32 s{S_T0}, hwreg(HW_REG_XCC_ID, 0, 3)")
        e(f"s_lshl_b32 s{S_T0}, s{S_T0}, 13")
        e(f"s_or_b32 s{S_T1}, s{S_T1}, s{S_T0}")
        self.stamp(13)
        e("s_branch L_publish")

        e("@@RARE")
        if o.hmax:
            e("L_exact:")
            for jj in range(16):
                mpair(D0 + 8 * jj, D0 + 8 * jj + 4, jj == 0, False)
            mscatter()
            e("s_branch L_maxok")
        if o.clean in ("a", "h"):
            e("L_clean0:")
            clean1()
            e("s_branch L_join")
        for nm in ("r", "q0", "q1"):
            k = nm[1:]
            e(f"L_{nm[0]}long{k}:")
            e("s_waitcnt vmcnt(0)")
            e(f"s_cmp_lg_u32 s{S_HOOK}, 0")
            e(f"s_cbranch_scc1 L_{nm[0]}got{k}")
            e(f"s_call_b64 s[{S_RET}:{S_RET + 1}], L_flush")
            e(f"s_branch L_{nm[0]}poll{k}")
        e("L_flush:")
        e(f"s_mov_b32 s{S_CNT}, {SPIN}")
        e(f"s_mov_b32 s{S_HOOK}, {SPIN}")
        e("s_mov_b32 exec_lo, -1")
        e("s_mov_b32 exec_hi, 0xffff")
        e("v_lshlrev_b32 v13, 4, v1")
        e("L_floop:")
        e(f"buffer_load_dwordx4 v[8:11], v13, s[{S_WS}:{S_WS + 3}], s{S_PO} offen sc1")
        e(f"buffer_load_dwordx4 v[4:7], v13, s[{S_WS}:{S_WS + 3}], s{S_PO} offen offset:768 sc1")
        e(f"s_sub_u32 s{S_HOOK}, s{S_HOOK}, 1")
        e("s_waitcnt vmcnt(0)")
        e(f"v_xor_b32 v12, s{S_TG[0]}, v8")
        for r in (9, 10, 11, 4, 5, 6, 7):
            e(f"v_bitop3_b32 v12, v12, v{r}, s{S_TG[r & 3]} bitop3:0xf6")
        e("v_and_b32 v12, 15, v12")
        e("v_cmp_ne_u32 vcc, 0, v12")
        e("s_cbranch_scc1 L_fdone")
        e("s_cbranch_vccnz L_floop")
        e("L_fdone:")
        e(f"buffer_store_dwordx4 v[8:11], v13, s[{S_WS}:{S_WS + 3}], s{S_PO} offen sc1")
        e(f"buffer_store_dwordx4 v[4:7], v13, s[{S_WS}:{S_WS + 3}], s{S_PO} offen offset:768 sc1")
        e("s_waitcnt vmcnt(0)")
        e("s_mov_b64 exec, -1")
        e(f"s_mov_b32 s{S_HOOK}, -1")
        e(f"s_setpc_b64 s[{S_RET}:{S_RET + 1}]")

        e("@@DPOLL")
        e("L_dpoll:")
        e(f"s_mov_b32 s{S_CNT}, {SPIN}")
        e(f"v_mov_b32 v{V_AT}, 0")
        e("s_mov_b64 exec, 1")
        e("L_dloop:")
        e(f"buffer_load_dword v{V_AT}, off, s[{S_DBG}:{S_DBG + 3}], 0 offset:{DBG_RES} sc1")
        e(f"s_sleep {o.dsleep}")
        e("s_waitcnt vmcnt(24)")
        e(f"v_readfirstlane_b32 s{S_T2}, v{V_AT}          ; whatever poll has landed last")
        e(f"s_sub_u32 s{S_CNT}, s{S_CNT}, 1")
        e("s_cbranch_scc1 L_dgot")
        e(f"s_andn2_b32 s{S_OFF}, s{S_OK}, s{S_T2}")
        e("s_cbranch_scc1 L_dloop")
        e("L_dgot:")
        e("s_mov_b64 exec, -1")
        e("s_branch L_decided")

        e("@@END")
        L = self.lines
        ix = {k: L.index("    @@" + k) for k in ("ROLE", "RARE", "DPOLL", "END")}
        role, rare, dpoll = L[ix["ROLE"] + 1:ix["RARE"]], L[ix["RARE"] + 1:ix["DPOLL"]], L[ix["DPOLL"] + 1:ix["END"]]
        main = L[:ix["ROLE"]]
        p1, p2 = main.index("    @@HERE1"), main.index("    @@HERE2")
        if o.lay:
            self.lines = (main[:p1] + ["    s_branch L_skip1"] + role + dpoll + ["L_skip1:"] + main[p1 + 1:p2]
                          + ["    s_branch L_tail"] + rare + ["    .p2align 12", "L_tail:"] + main[p2 + 1:])
        else:
            self.lines = main[:p1] + main[p1 + 1:p2] + main[p2 + 1:] + role + rare + dpoll

    def text(self):
        out = HEADER
        out += f"; @launch grid=({NWG},1,1) block=(768,1,1) lds={L_TOTAL}\n"
        out += '.amdgcn_target "amdgcn-amd-amdhsa--gfx950"\n.text\n'
        out += f".globl {KNAME}\n.p2align 8\n.type {KNAME},@function\n{KNAME}:\n"
        out += "\n".join(self.lines) + "\n"
        out += f""".section .rodata,"a"
.p2align 6
.amdhsa_kernel {KNAME}
  .amdhsa_next_free_vgpr 168
  .amdhsa_next_free_sgpr {100 if self.o.stamps else 96 if self.o.xfer else 56}
  .amdhsa_accum_offset 168
  .amdhsa_group_segment_fixed_size 0
  .amdhsa_kernarg_size 48
  .amdhsa_user_sgpr_count 2
  .amdhsa_user_sgpr_kernarg_segment_ptr 1
  .amdhsa_system_sgpr_workgroup_id_x 1
  .amdhsa_float_denorm_mode_32 3
.end_amdhsa_kernel
"""
        return out


def main():
    p = argparse.ArgumentParser()
    p.add_argument("-o", default="standalone__channel_attn_cbam__vision.s")
    p.add_argument("--ldflags", default="nt")
    p.add_argument("--stflags", default="sc1")
    p.add_argument("--p1flags", default="sc1")
    p.add_argument("--stamps", action="store_true")
    p.add_argument("--probe", default="")
    p.add_argument("--depth", type=int, default=10)
    p.add_argument("--nrace", type=int, default=2)
    p.add_argument("--dsleep", type=int, default=8)
    p.add_argument("--trace", default="")
    p.add_argument("--nodec", action="store_true")
    p.add_argument("--vdiag", action="store_true")
    p.add_argument("--dbgptr", action="store_true")
    p.add_argument("--opp", default="5,9", type=lambda v: [int(x) for x in v.split(",")])
    p.add_argument("--quorum", type=int, default=16)
    p.add_argument("--quorum4", type=int, default=24)
    p.add_argument("--nvote", type=int, default=32)
    p.add_argument("--nagn", type=int, default=6)
    p.add_argument("--stlim", type=int, default=0)
    p.add_argument("--psc1", action="store_true")
    p.add_argument("--pnt", action="store_true")
    p.add_argument("--hmax", type=int, default=0)
    p.add_argument("--msum", type=int, default=1)
    p.add_argument("--last", type=int, default=1)
    p.add_argument("--h6", type=int, default=0)
    p.add_argument("--bfirst", default="")
    p.add_argument("--q2", type=int, default=0)
    p.add_argument("--xfer", type=int, default=0)
    p.add_argument("--xpos", type=int, default=26)
    p.add_argument("--xspos", type=int, default=26)
    p.add_argument("--qout", type=int, default=7)
    p.add_argument("--qws", type=int, default=4)
    p.add_argument("--qgen", type=int, default=5)
    p.add_argument("--jorder", default="12,0,13,1,14,2,15,3,16,4,17,5,18,6,19,7,20,8,21,9,22,10,23,11,24,25,26,27,28,29,30,31")
    p.add_argument("--urot", type=int, default=0)
    p.add_argument("--lmap", type=int, default=0)
    p.add_argument("--qrot", type=int, default=0)
    p.add_argument("--umap", type=int, default=0)
    p.add_argument("--cfull", type=int, default=1)
    p.add_argument("--wtouch", type=int, default=1)
    p.add_argument("--lay", type=int, default=1)
    p.add_argument("--skipfrom", type=int, default=99)
    p.add_argument("--ttail", type=int, default=0)
    p.add_argument("--tlb", type=int, default=0)
    p.add_argument("--rot", type=int, default=0)
    p.add_argument("--pad", type=int, default=0)
    p.add_argument("--lpf", type=int, default=0)
    p.add_argument("--al", type=int, default=0)
    p.add_argument("--cap", type=int, default=0)
    p.add_argument("--capfrom", type=int, default=12)
    p.add_argument("--capto", type=int, default=32)
    p.add_argument("--skewa", type=int, default=1)
    p.add_argument("--skewd", type=int, default=1)
    p.add_argument("--skewc", type=int, default=0)
    p.add_argument("--skew", type=int, default=0, help="timing diagnostic only")
    p.add_argument("--warmfl", default="")
    p.add_argument("--sdiag", action="store_true")
    p.add_argument("--rpf", type=int, default=0)
    p.add_argument("--dpf", type=int, default=0)
    p.add_argument("--pwg", type=int, default=0)
    p.add_argument("--pwave", type=int, default=0)
    p.add_argument("--pref", type=int, default=0)
    p.add_argument("--qshift", type=int, default=32)
    p.add_argument("--rolepos", type=int, default=-1)
    p.add_argument("--prebar", type=int, default=1)
    p.add_argument("--qmap", type=int, default=0)
    p.add_argument("--agnu", type=int, default=4)
    p.add_argument("--warmst", type=int, default=0)
    p.add_argument("--cw", type=int, default=0)
    p.add_argument("--cld", action="store_true")
    p.add_argument("--qflip", type=int, default=0)
    p.add_argument("--qcopy", type=int, default=4)
    p.add_argument("--mul", default="dot")
    p.add_argument("--burst", type=int, default=32)
    p.add_argument("--idleclk", type=int, default=0)
    p.add_argument("--clk", action="store_true")
    p.add_argument("--sthr", type=int, default=0)
    p.add_argument("--sbar", default=[24], type=lambda v: [int(x) for x in v.split(",")])
    p.add_argument("--piece", type=int, default=128)
    p.add_argument("--xbar", default=[20, 24], type=lambda v: [int(x) for x in v.split(",")])
    p.add_argument("--cpf", type=int, default=0)
    p.add_argument("--cpfpos", type=int, default=0)
    p.add_argument("--wpace", type=int, default=40)
    p.add_argument("--clean", default="g")
    p.add_argument("--warm", type=int, default=30)
    p.add_argument("--warmwave", type=int, default=4)
    p.add_argument("--qsleep", type=int, default=0)
    p.add_argument("--red0", type=int, default=8)
    p.add_argument("--redstep", type=int, default=2)
    p.add_argument("--off", default="", help="diagnostics: v = no votes, c = no clears, r = result not read")
    p.add_argument("--spans", default="")
    p.add_argument("--split", action="store_true")
    p.add_argument("--pfback", type=int, default=0)
    p.add_argument("--nplain", type=int, default=0)
    p.add_argument("--wb", default="", help="minwave,wglimit,pos")
    p.add_argument("--thr", type=int, default=2)
    p.add_argument("--thrfrom", type=int, default=12)
    p.add_argument("--thrto", type=int, default=26)
    p.add_argument("--thrmask", default="0x55")
    p.add_argument("--zorder", default="8,0,9,1,10,2,11,3,12,4,13,5,14,6,15,7")
    o = p.parse_args()
    global NAGN, SPANS, NVOTE_WG
    NVOTE_WG = o.nvote
    NAGN = o.nagn
    if NAGN == 6:
        SPANS = [(0, 0), (0, 1), (1, 0), (1, 1), (2, 0), (2, 1),
                 (3, 0), (3, 1), (4, 0), (4, 1), (5, 0), (5, 1), (6, 0), (6, 1), (7, 0), (7, 1)]
        if o.zorder == p.get_default("zorder"):
            o.zorder = "6,0,7,1,8,2,9,3,10,4,11,5,12,13,14,15"
    if o.bfirst:
        st = [int(c) for c in o.bfirst]
        SPANS = [(a, h) for a in st for h in (0, 1)]
        o.agn0 = st[0] * 12 * MiB
    if o.xfer:
        global L_TOTAL
        L_TOTAL = L_X + 12288
        SPANS[14], SPANS[15] = SPANS[15], SPANS[14]
    if o.spans:
        SPANS = [(int(v[0]), int(v[1])) for v in o.spans.split(",")]
        assert sorted(SPANS) == [(a, b) for a in range(8) for b in range(2)]
    g = G(o)
    g.build()
    open(o.o, "w").write(g.text())


if __name__ == "__main__":
    main()
```

```python
import argparse

KNAME = "standalone__channel_attn_cbam__vision_kernel"

HEADER = """; Kernarg layout for this problem (48 bytes, ptrs only, base s[0:1]):
;   offset   0: d_in[0] x  shape=(1, 512, 512, 192) dtype=bfloat16 strides=(100663296, 196608, 384, 2) contiguous=True
;   offset   8: d_in[1] w1  shape=(192, 48) dtype=bfloat16 strides=(96, 2) contiguous=True
;   offset  16: d_in[2] w2  shape=(48, 192) dtype=bfloat16 strides=(384, 2) contiguous=True
;   offset  40: d_ws      402653184 bytes workspace (unspecified values whenever your kernel or launch list starts; a list's later launches find what earlier ones wrote)
"""

X_BYTES = 100663296
NWG = 256
NRED = 12
MiB = 1 << 20

L_RED = 0
L_H = 6144
L_CNT = 6336
L_S = 6400
L_F = 7168
L_W1 = 8192
L_W2 = L_W1 + 18432
L_SPILL = L_W2 + 18432
L_X = L_SPILL + 3 * 8192
L_TOTAL = L_X

WS_P = 0
WS_Q = 256 * 1536
WS_E = WS_Q + 4 * 49152
WS_USED = WS_E + 128
WS_PROBE = 640 * 1024
WS_STAMP = 1 << 20

S_X, S_OUT, S_WS, S_DBG, S_W = 4, 8, 12, 16, 20
S_WAVE, S_TY, S_SUB, S_OFF, S_MASK, S_CNT, S_T0, S_T1 = 28, 29, 30, 31, 32, 33, 34, 35
S_BASE, S_PM, S_P, S_T2 = 48, 49, 50, 51
S_AGN, S_RID, S_PO = 40, 42, 43
S_TG = [41, 47, 3, 0]
S_RET, S_HOOK, S_QC = 38, 46, 1
S_BASE1 = 45
NFB = 48
S_STAMP = 52
S_V = 24

D0 = 40
SPIN = 2000000
V_L, V_G0, V_G1, V_AT = 0, 39, 38, 36

NAGN = 8
SPANS = [(0, 0), (0, 1), (1, 0), (1, 1), (2, 0), (2, 1), (3, 0), (3, 1),
         (6, 0), (4, 0), (6, 1), (4, 1), (7, 0), (5, 0), (7, 1), (5, 1)]
W_ROLE = 0
DBG_RES, DBG_TAL = 0, 128
NVOTE_WG = 32
RES_OK = (1 << 8) | (1 << 11) | (1 << 17) | (1 << 29)
S_OK = 44
S_XR, S_XO, S_XP = 92, 93, 91


def mask(pred):
    return sum(1 << z for z, s in enumerate(SPANS) if pred(z, s))


class G:
    def __init__(self, o):
        self.o = o
        self.lines = []

    def e(self, s=""):
        self.lines.append(("    " + s) if s and not s.endswith(":") else s)

    def stamp(self, idx, vote=False):
        if self.o.clk:
            if idx in (11, 12, 13):
                return
            m = {0: 11, 7: 12, 10: 13}.get(idx)
            if m:
                self.e(f"s_memtime s[{S_STAMP + 2 * m}:{S_STAMP + 2 * m + 1}]")
        if vote == "r":
            vote = False
        if self.o.vdiag and idx in (1, 2, 3, 6) and not vote:
            return
        if vote and not self.o.vdiag:
            return
        if self.o.stamps and not (self.o.trace and idx > 10):
            self.e(f"s_memrealtime s[{S_STAMP + 2 * idx}:{S_STAMP + 2 * idx + 1}]")

    def srd(self, d, lo, nbytes):
        e = self.e
        e(f"s_mov_b64 s[{d}:{d + 1}], s[{lo}:{lo + 1}]")
        e(f"s_mov_b32 s{d + 2}, {nbytes}")
        e(f"s_mov_b32 s{d + 3}, 0x20000")

    def span_off(self, z):
        return SPANS[z][0] * 12 * MiB + SPANS[z][1] * 49152

    def mem(self, j, fn):
        e = self.e
        z, u = j >> 1, j & 1
        if z < NAGN:
            if self.o.bfirst:
                off = SPANS[z][0] * 12 * MiB + (j % 4) * 12288 - self.o.agn0
            else:
                off = (j // self.o.agnu) * (self.o.agnu * 3 * MiB - (self.o.skew if self.o.skewa else 0)) + (j % self.o.agnu) * 12288
            so = f"s{S_OFF}" if off else f"s{S_AGN}"
            if off:
                e(f"s_add_u32 s{S_OFF}, s{S_AGN}, {off}")
            if SPANS[z] == (7, 1):
                at = 2 + u
                e(f"v_add_u32 v{at}, {so}, v{V_L}")
                e(f"v_subrev_u32 v{5 - at}, s{S_X + 2}, v{at}")
                e(f"v_min_u32 v{at}, v{at}, v{5 - at}             ; past the end: wrap to the rows the shift skipped")
                fn(f"v{at}", "0")
            else:
                fn(f"v{V_L}", so)
            return
        if getattr(self, "pz", None) != z:
            e(f"s_bitcmp1_b32 s{S_PM}, {z}")
            e(f"s_cselect_b32 s{S_P}, 24576, 0")
            self.pz = z
        e(f"s_add_u32 s{S_OFF}, s{(S_BASE, S_BASE1)[SPANS[z][1]]}, {SPANS[z][0] * 12 * MiB - self.o.skew * (SPANS[z][0] * self.o.skewd + self.o.skewc) + 12288 * u}")
        at = 2 + u
        if self.o.xfer and j == 31:
            e(f"s_cmp_eq_u32 s{S_XR}, 1")
            e(f"s_cselect_b32 s{S_P}, 0x40000000, s{S_P}")
            self.pz = None
        e(f"v_xad_u32 v{at}, v{(V_G0, V_G1)[u]}, s{S_P}, v{V_L}")
        if SPANS[z] == (7, 1):
            e(f"v_add_u32 v{at}, s{S_OFF}, v{at}")
            e(f"v_subrev_u32 v{5 - at}, s{S_X + 2}, v{at}")
            e(f"v_min_u32 v{at}, v{at}, v{5 - at}             ; past the end: wrap to the rows the shift skipped")
            fn(f"v{at}", "0")
        else:
            fn(f"v{at}", f"s{S_OFF}")

    def trace(self, kind, n):
        if self.o.trace == kind:
            if n > 0:
                self.e("s_waitcnt lgkmcnt(0)")
                self.e(f"s_mov_b32 s{76 + n - 1}, s92")
            self.e("s_memrealtime s[92:93]")

    def build(self):
        o, e = self.o, self.e
        NRACE = o.nrace
        ldf = (" " + o.ldflags) if o.ldflags else ""
        stf = (" " + o.stflags) if o.stflags else ""

        self.stamp(0)
        e("s_load_dwordx2 s[4:5], s[0:1], 0          ; x")
        e("s_load_dwordx2 s[8:9], s[0:1], 24         ; out")
        e("v_readfirstlane_b32 s%d, v0" % S_WAVE)
        e("v_and_b32 v1, 63, v0                      ; lane")
        pl = (o.piece // 16).bit_length() - 1
        e(f"v_bfe_u32 v2, v0, {pl}, {6 - pl}")
        e(f"v_mul_u32_u24 v2, {(3 * o.piece, 1536, 768, 384)[o.lmap]}, v2")
        e(f"v_and_b32 v3, {(1 << pl) - 1}, v0")
        e("s_cmpk_ge_u32 s2, %d" % NWG)
        e("s_cbranch_scc1 L_end")
        if o.rot:
            e(f"s_add_u32 s2, s2, {o.rot}")
            e("s_and_b32 s2, s2, 255")
        if o.rolepos < 0:
            e(f"s_lshl2_add_u32 s{S_T1}, s{S_WAVE}, s2")
            e(f"s_cmp_le_u32 s{S_T1}, {NVOTE_WG}              ; wave 0 of the first workgroups has a side job")
            e("s_cbranch_scc1 L_role")
            e("L_stream:")
        if o.lmap == 1:
            e("v_lshl_add_u32 v0, v3, 4, v2")
            e(f"v_lshl_add_u32 v{V_L}, s{S_WAVE}, 1, v0")
            e(f"s_lshr_b32 s{S_WAVE}, s{S_WAVE}, 6")
        elif o.lmap == 3:
            e(f"s_lshr_b32 s{S_TY}, s{S_WAVE}, 8")
            e(f"s_lshr_b32 s{S_WAVE}, s{S_WAVE}, 6")
            e(f"s_and_b32 s{S_SUB}, s{S_WAVE}, 3              ; sub = wave % 4")
            e(f"s_mul_i32 s{S_T0}, s{S_SUB}, 24")
            e(f"s_add_u32 s{S_T0}, s{S_T0}, s{S_TY}")
            e("v_lshl_add_u32 v0, v3, 4, v2")
            e(f"v_lshl_add_u32 v{V_L}, s{S_T0}, 7, v0")
        elif o.lmap == 2:
            e(f"s_lshr_b32 s{S_WAVE}, s{S_WAVE}, 6")
            e(f"s_cmp_ge_u32 s{S_WAVE}, 6")
            e(f"s_cselect_b32 s{S_T0}, 42, 0")
            e(f"s_add_u32 s{S_T0}, s{S_T0}, s{S_WAVE}")
            e("v_lshl_add_u32 v0, v3, 4, v2")
            e(f"v_lshl_add_u32 v{V_L}, s{S_T0}, 7, v0")
        else:
            e(f"s_lshr_b32 s{S_WAVE}, s{S_WAVE}, 6")
            e(f"s_mul_i32 s{S_SUB}, s{S_WAVE}, 43")
            e(f"s_lshr_b32 s{S_SUB}, s{S_SUB}, 7")
            e(f"s_mul_i32 s{S_T0}, s{S_SUB}, {3072 // o.piece - 3}")
            e(f"s_add_u32 s{S_T0}, s{S_T0}, s{S_WAVE}        ; sub*24 + wave % 3")
            e(f"s_lshl_b32 s{S_T0}, s{S_T0}, {pl + 4}")
            e("v_lshl_add_u32 v0, v3, 4, v2")
            e(f"v_add_u32 v{V_L}, s{S_T0}, v0               ; + sub*3072 + (wave % 3)*128")
        if o.umap == 1:
            pass
        elif o.umap >= 2:
            mul, rot = (o.umap >> 4) | 1, o.umap & 7
            e(f"s_lshr_b32 s{S_T1}, s2, 3")
            e(f"s_mul_i32 s{S_T1}, s{S_T1}, {rot}")
            e(f"s_mul_i32 s{S_T0}, s2, {mul}")
            e(f"s_add_u32 s{S_T0}, s{S_T0}, s{S_T1}")
            e(f"s_and_b32 s{S_T0}, s{S_T0}, 7")
            e(f"s_and_b32 s{S_T1}, s2, -8")
            e(f"s_add_u32 s{S_T0}, s{S_T0}, s{S_T1}")
        elif o.qmap == 0:
            e(f"s_and_b32 s{S_T0}, s2, 3")
            e(f"s_bfe_u32 s{S_T1}, s2, 0x10002")
            e(f"s_lshl1_add_u32 s{S_T0}, s{S_T0}, s{S_T1}")
            if o.urot:
                e(f"s_lshr_b32 s{S_T1}, s2, {o.urot & 15}")
                if o.urot >> 4:
                    e(f"s_lshl_b32 s{S_T1}, s{S_T1}, {o.urot >> 4}")
                e(f"s_add_u32 s{S_T0}, s{S_T0}, s{S_T1}")
                e(f"s_and_b32 s{S_T0}, s{S_T0}, 7")
            e(f"s_and_b32 s{S_T1}, s2, -8")
            e(f"s_add_u32 s{S_T0}, s{S_T0}, s{S_T1}")
        else:
            e(f"s_and_b32 s{S_T0}, s2, 7")
            e(f"s_lshl_b32 s{S_T0}, s{S_T0}, 5")
            e(f"s_lshr_b32 s{S_T1}, s2, 3")
            e(f"s_add_u32 s{S_T0}, s{S_T0}, s{S_T1}")
        e(f"s_mul_i32 s{S_AGN}, s{2 if o.umap == 1 else S_T0}, {o.agnu * 12288}")
        if o.bfirst:
            e(f"s_add_u32 s{S_AGN}, s{S_AGN}, {o.agn0}")
        e(f"s_mov_b32 s{S_X + 2}, {X_BYTES}")
        e(f"s_mov_b32 s{S_X + 3}, 0x20000")
        if o.rolepos >= 0:
            e(f"s_lshl_b32 s{S_T1}, s{S_WAVE}, 8")
            e(f"s_or_b32 s{S_T1}, s{S_T1}, s2")
        if o.sdiag:
            self.stamp(6, True)
        e("s_waitcnt lgkmcnt(0)")
        if o.sdiag:
            self.stamp(1, True)
        e(f"s_lshr_b32 s{S_T0}, s{S_OUT}, 7")
        e(f"s_mul_i32 s{S_T0}, s{S_T0}, 21              ; -43 mod 64")
        e(f"s_and_b32 s{S_T0}, s{S_T0}, 63")
        e(f"s_mulk_i32 s{S_T0}, 384")
        e(f"s_add_u32 s{S_AGN}, s{S_AGN}, s{S_T0}")
        assert W_ROLE == 0

        SUM, MAX, T = 4, 12, 20
        DEPTH = o.depth
        seq = []

        def issue(j):
            if j == o.rolepos:
                e(f"s_cmp_le_u32 s{S_T1}, {NVOTE_WG}              ; wave 0 of the first workgroups has a side job")
                e("s_cbranch_scc1 L_role")
                e("L_stream:")
            if o.cpf and j == o.cpfpos:
                e(f"s_sub_u32 s{S_T1}, s{S_T1}, 256")
                e(f"s_cmp_ge_u32 s{S_T1}, {o.cpf}")
                e("s_cbranch_scc1 L_nocpf")
                e("s_getpc_b64 s[20:21]")
                e("v_lshlrev_b32 v2, 7, v1")
                e("v_add_u32 v3, 8192, v2")
                e("v_min_u32 v3, L_codeend - L_nocpf, v3")
                e("global_load_dword v36, v2, s[20:21]")
                e("global_load_dword v37, v3, s[20:21]")
                e("L_nocpf:")
            if j == max(4, o.rolepos):
                e("s_load_dwordx4 s[36:39], s[0:1], 8        ; w1, w2")
                e(f"s_load_dwordx2 s[{S_DBG}:{S_DBG + 1}], s[0:1], 32")
                e(f"s_load_dwordx2 s[{S_WS}:{S_WS + 1}], s[0:1], 40")
                if not (o.msum and o.mul == "dot"):
                    e(f"s_mov_b32 s{S_MASK}, 0xffff0000")
            if j == (o.hookpos or 2 * NAGN):
                if o.lmap in (1, 2):
                    e(f"s_mul_i32 s{S_SUB}, s{S_WAVE}, 43")
                    e(f"s_lshr_b32 s{S_SUB}, s{S_SUB}, 7")
                if o.lmap != 3:
                    e(f"s_mul_i32 s{S_TY}, s{S_SUB}, 3")
                    e(f"s_sub_u32 s{S_TY}, s{S_WAVE}, s{S_TY}        ; ty = wave % 3")
                e(f"s_mov_b32 s{S_OUT + 2}, s{S_X + 2}")
                e(f"s_mov_b32 s{S_OUT + 3}, s{S_X + 3}")
                e(f"s_mov_b32 s{S_WS + 2}, {(2 << 20) if o.stamps else WS_USED}")
                e(f"s_mov_b32 s{S_WS + 3}, s{S_X + 3}")
                e(f"s_movk_i32 s{S_DBG + 2}, 256")
                e(f"s_mov_b32 s{S_DBG + 3}, s{S_X + 3}")
                e(f"s_movk_i32 s{S_T2}, 24576")
                e(f"v_bfe_u32 v{V_G0}, v{V_L}, 13, 1")
                e(f"v_add_u32 v{V_G1}, 12288, v{V_L}")
                e(f"v_bfe_u32 v{V_G1}, v{V_G1}, 13, 1")
                e(f"v_mul_u32_u24 v{V_G0}, s{S_T2}, v{V_G0}")
                e(f"v_mul_u32_u24 v{V_G1}, s{S_T2}, v{V_G1}")
                e(f"s_lshr_b32 s{S_T0}, s{S_OUT}, 7")
                e(f"s_mul_i32 s{S_T0}, s{S_T0}, 21")
                e(f"s_and_b32 s{S_T0}, s{S_T0}, 63")
                e(f"s_mulk_i32 s{S_T0}, 384")
                e(f"s_lshr_b32 s{S_BASE}, s2, 3")
                if o.qrot:
                    if o.qrot >= 16:
                        e(f"s_lshr_b32 s{S_T1}, s{S_BASE}, {o.qrot - 16}")
                    else:
                        e(f"s_mul_i32 s{S_T1}, s{S_BASE}, {o.qrot}")
                    e(f"s_add_u32 s{S_T1}, s{S_T1}, s2")
                    e(f"s_and_b32 s{S_T1}, s{S_T1}, 3")
                else:
                    e(f"s_and_b32 s{S_T1}, s2, 3")
                if o.qmap == 0:
                    e(f"s_lshl2_add_u32 s{S_BASE}, s{S_BASE}, s{S_T1}")
                else:
                    e(f"s_lshl_b32 s{S_T1}, s{S_T1}, 5")
                    e(f"s_add_u32 s{S_BASE}, s{S_BASE}, s{S_T1}")
                e(f"s_add_u32 s{S_BASE1}, s{S_BASE}, {64 if o.h6 else o.qshift}")
                e(f"s_and_b32 s{S_BASE1}, s{S_BASE1}, 127")
                e(f"s_mul_i32 s{S_BASE}, s{S_BASE}, {49152 if o.h6 else 98304}")
                e(f"s_add_u32 s{S_BASE}, s{S_BASE}, s{S_T0}        ; the pair's first span of a step")
                e(f"s_mul_i32 s{S_BASE1}, s{S_BASE1}, {49152 if o.h6 else 98304}")
                e(f"s_add_u32 s{S_BASE1}, s{S_BASE1}, s{S_T0}")
                e(f"s_add_u32 s{S_BASE1}, s{S_BASE1}, {6 * MiB if o.h6 else 49152}      ; its second span: 3 MiB on, where the memory stacks swap")
                h1 = mask(lambda z, s: s[1] == 1)
                e(f"s_add_u32 s{S_T2}, s{S_T2}, s{S_OUT}")
                e(f"s_add_u32 s{S_T0}, s{S_BASE}, s{S_T2}")
                e(f"s_bfe_i32 s{S_PM}, s{S_T0}, 0x10015")
                e(f"s_add_u32 s{S_T2}, s{S_BASE1}, s{S_T2}")
                e(f"s_xor_b32 s{S_T0}, s{S_T0}, s{S_T2}")
                e(f"s_bfe_i32 s{S_T0}, s{S_T0}, 0x10015")
                e(f"s_and_b32 s{S_T0}, s{S_T0}, {h1}")
                e(f"s_xor_b32 s{S_PM}, s{S_PM}, s{S_T0}")
                m1 = mask(lambda z, s: z >= NAGN and s[0] in ((0, 1) if o.bfirst else (3, 4)))
                z50 = SPANS.index((2 if o.bfirst else 5, 0))
                z51 = SPANS.index((2 if o.bfirst else 5, 1))
                edge = (8 if o.bfirst else 4) * MiB - 24576
                dec = mask(lambda z, s: z >= NAGN)
                e(f"s_cmp_lt_u32 s{S_BASE}, {edge}")
                e(f"s_cselect_b32 s{S_T0}, {1 << z50}, 0")
                e(f"s_or_b32 s{S_T0}, s{S_T0}, {m1}")
                e(f"s_cmp_lt_u32 s{S_BASE1}, {edge}")
                e(f"s_cselect_b32 s{S_T1}, {1 << z51}, 0")
                e(f"s_or_b32 s{S_T0}, s{S_T0}, s{S_T1}            ; third 1")
                e(f"s_xor_b32 s{S_T1}, s{S_T0}, {dec}           ; third 2")
                per, pat = o.opp
                rep = sum(((pat >> (i % per)) & 1) << i for i in range(32))
                e(f"s_lshr_b32 s{S_P}, s2, 3")
                e(f"s_mul_i32 s{S_T2}, s{S_P}, {-(-256 // per)}")
                e(f"s_lshr_b32 s{S_T2}, s{S_T2}, 8")
                e(f"s_mul_i32 s{S_T2}, s{S_T2}, {per}")
                e(f"s_sub_u32 s{S_P}, s{S_P}, s{S_T2}             ; (b >> 3) % {per}")
                e(f"s_lshr_b32 s{S_P}, {rep}, s{S_P}")
                e(f"s_sub_u32 s{S_T2}, s{S_OUT}, s{S_X}")
                e(f"s_add_u32 s{S_T2}, s{S_T2}, 2048")
                e(f"s_bitcmp1_b32 s{S_T2}, 12")
                e(f"s_cselect_b32 s{S_P}, 0, s{S_P}")
                e(f"s_cselect_b32 s{S_OK}, 0, {1 << 23}")
                e(f"s_or_b32 s{S_OK}, s{S_OK}, {RES_OK}       ; the parts of the result word that must be in")
                e(f"s_lshr_b32 s{S_T2}, s2, 3")
                e(f"s_sub_u32 s{S_RID}, s{S_T2}, {o.red0}")
                e(f"s_and_b32 s{S_PO}, s2, 7")
                e(f"s_lshl_b32 s{S_PO}, s{S_PO}, 5")
                e(f"s_add_u32 s{S_PO}, s{S_PO}, s{S_T2}")
                e(f"s_mulk_i32 s{S_PO}, 1536")
                if o.msum:
                    e("v_and_b32 v20, 1, v1")
                    e("v_lshlrev_b32 v20, 4, v20")
                    e("v_mov_b32 v21, 0x3f80")
                    e("v_lshlrev_b32 v20, v20, v21")
                    e("v_bfe_u32 v21, v1, 1, 3")
                    for d in range(4):
                        e(f"v_cmp_eq_u32 s[{S_V}:{S_V + 1}], {2 * d}, v21")
                        e("s_nop 1")
                        e(f"v_cndmask_b32 v{8 + d}, 0, v20, s[{S_V}:{S_V + 1}]")
                if o.last:
                    e("v_mov_b32 v20, 0")
                    e("v_lshlrev_b32 v21, 2, v1")
                    e("s_mov_b64 exec, 7")
                    e(f"ds_write_b32 v21, v20 offset:{L_CNT}")
                    e("s_mov_b64 exec, -1")
            if j == 2 * NAGN:
                e("s_waitcnt lgkmcnt(0)")
                self.stamp(11)
                e("s_barrier")
                e(f"s_load_dword s{S_T2}, s[{S_DBG}:{S_DBG + 1}], {DBG_RES}")
                e("s_waitcnt lgkmcnt(0)")
                e(f"s_andn2_b32 s{S_CNT}, s{S_OK}, s{S_T2}")
                e("s_cbranch_scc1 L_dpoll")
                e("L_decided:")
                for i in range(4):
                    e(f"s_bitcmp1_b32 s{S_T2}, {7 + 6 * i + 5}")
                    e(f"s_cselect_b32 s{S_V + i}, s{(S_T0, S_T1)[i >> 1]}, 0")
                e(f"s_or_b32 s{S_V}, s{S_V}, s{S_V + 2}")
                e(f"s_or_b32 s{S_V + 1}, s{S_V + 1}, s{S_V + 3}")
                e(f"s_xor_b32 s{S_V}, s{S_V}, s{S_V + 1}")
                e(f"s_and_b32 s{S_V}, s{S_V}, s{S_P}")
                e(f"s_xor_b32 s{S_V}, s{S_V}, s{S_V + 1}")
                e(f"s_xor_b32 s{S_PM}, s{S_PM}, s{S_V}")
                e(f"s_lshr_b32 s{S_QC}, s{S_T2}, 13")
                e(f"s_add_u32 s{S_QC}, s{S_QC}, s2")
                e(f"s_bfe_i32 s{S_V}, s{S_QC}, 0x10002")
                e(f"s_xor_b32 s{S_PM}, s{S_PM}, s{S_V}")
                e(f"s_and_b32 s{S_TG[0]}, s{S_T2}, 15")
                e(f"s_bfe_u32 s{S_TG[1]}, s{S_T2}, 0x40004")
                e(f"s_xor_b32 s{S_TG[2]}, s{S_TG[0]}, 15")
                e(f"s_xor_b32 s{S_TG[3]}, s{S_TG[1]}, 15")
                e(f"s_lshr_b32 s{S_V}, s{S_T2}, 10")
                e(f"s_and_b32 s{S_V}, s{S_V}, 4")
                e(f"s_xor_b32 s{S_QC}, s{S_QC}, s{S_V}           ; bits 2:0: the second-stage copy near this die")
                if o.xfer:
                    assert SPANS[15] == (7, 0)
                    e(f"s_lshr_b32 s{S_T0}, s{S_T2}, 13")
                    e(f"s_add_u32 s{S_T1}, s{S_T0}, s2")
                    e(f"s_and_b32 s{S_XR}, s{S_T1}, 1")
                    e(f"s_sub_u32 s{S_XR}, 2, s{S_XR}")
                    e(f"s_cmp_ge_u32 s{S_WAVE}, {12 - o.xfer}")
                    e(f"s_cselect_b32 s{S_XR}, s{S_XR}, 0")
                    e(f"s_xor_b32 s{S_T1}, s{S_T1}, 1")
                    e(f"s_sub_u32 s{S_T1}, s{S_T1}, s{S_T0}")
                    e(f"s_and_b32 s{S_T1}, s{S_T1}, 3")
                    e(f"s_and_b32 s{S_T0}, s2, 3")
                    e(f"s_sub_u32 s{S_T1}, s{S_T1}, s{S_T0}")
                    e(f"s_mul_i32 s{S_T1}, s{S_T1}, 98304")
                    e(f"s_add_u32 s{S_XO}, s{S_BASE}, s{S_T1}        ; the neighbour's first span of a step")
                    e(f"s_add_u32 s{S_T0}, s{S_OUT}, 24576")
                    e(f"s_add_u32 s{S_T1}, s{S_T0}, s{S_XO}")
                    e(f"s_add_u32 s{S_T0}, s{S_T0}, s{S_BASE}")
                    e(f"s_xor_b32 s{S_T0}, s{S_T0}, s{S_T1}")
                    e(f"s_lshr_b32 s{S_T0}, s{S_T0}, 6")
                    e(f"s_xor_b32 s{S_T0}, s{S_T0}, s{S_PM}")
                    e(f"s_bitcmp1_b32 s{S_T0}, 15")
                    e(f"s_cselect_b32 s{S_XP}, 24576, 0")
                    e(f"s_add_u32 s{S_XO}, s{S_XO}, {7 * 12 * MiB + 12288}")
                if o.wtouch:
                    e("s_load_dword s22, s[36:37], 0")
                    e("s_load_dword s23, s[38:39], 0")
                self.stamp(12)
            if j in o.xbar:
                e("s_barrier")
                if j == o.xbar[-1]:
                    self.stamp(2, "r")
            if o.xfer and j == o.xpos:
                e(f"s_cmp_lg_u32 s{S_XR}, 2")
                e("s_cbranch_scc1 L_nox1")
                e(f"s_lshl_b32 s{S_T0}, s{S_WAVE}, 10")
                e(f"s_add_u32 m0, s{S_T0}, {L_X}")
                e(f"v_xad_u32 v3, v{V_G1}, s{S_XP}, v{V_L}")
                e(f"buffer_load_dwordx4 v3, s[{S_X}:{S_X + 3}], s{S_XO} offen{ldf} lds")
                e("L_nox1:")
            if j == o.warm and o.warmst:
                e(f"s_cmp_ge_u32 s{S_WAVE}, 2")
                e("s_cbranch_scc1 L_nowarm")
                for i in range(4):
                    e(f"v_mov_b32 v{20 + i}, 0")
                e(f"s_mul_i32 s{S_T0}, s{S_WAVE}, 768")
                e(f"v_lshl_add_u32 v3, v1, 4, s{S_T0}")
                e("s_mov_b32 exec_hi, 0xffff")
                e(f"buffer_store_dwordx4 v[20:23], v3, s[{S_WS}:{S_WS + 3}], s{S_PO} offen")
                e("s_mov_b64 exec, -1")
                e("L_nowarm:")
            if j == o.warm and not o.warmst:
                e(f"s_cmp_lg_u32 s{S_WAVE}, {o.warmwave}")
                e("s_cbranch_scc1 L_nowarm")
                e("v_lshlrev_b32 v3, 7, v1")
                e("s_mov_b64 exec, 0xfff")
                e(f"buffer_load_dword v37, v3, s[{S_WS}:{S_WS + 3}], s{S_PO} offen {o.warmfl}")
                e("s_mov_b64 exec, -1")
                if o.lpf == 2:
                    e(f"s_cmp_lg_u32 s{S_RID}, {NRED}")
                    e("s_cbranch_scc1 L_nowarm")
                    e("s_getpc_b64 s[20:21]")
                    if o.lay:
                        e("v_add_u32 v3, L_tail - L_nowarm + 32, v3")
                    e("v_min_u32 v3, L_end - L_nowarm, v3")
                    e("global_load_dword v37, v3, s[20:21]")
                e("L_nowarm:")
            r = D0 + 4 * j
            if o.thr and j == (o.hookpos - 1 if o.hookpos else 10):
                e(f"s_getreg_b32 s{S_T0}, hwreg(HW_REG_XCC_ID, 0, 3)")
                e(f"s_lshr_b32 s{S_T0}, {o.thrmask}, s{S_T0}")
                e(f"s_and_b64 vcc, s[{S_T0}:{S_T0 + 1}], 1")
            if o.cap and o.capfrom <= j < o.capto:
                e(f"s_waitcnt vmcnt({o.cap - 1})")
            if o.thr and o.thrfrom <= j < o.thrto:
                e(f"s_cbranch_vccz L_thr{j}")
                e(f"s_waitcnt vmcnt({o.thr - 1})")
                e(f"L_thr{j}:")
            self.mem(j, lambda va, so: e(f"buffer_load_dwordx4 v[{r}:{r + 3}], {va}, s[{S_X}:{S_X + 3}], {so} offen{ldf}"))
            seq.append(j)
            if o.sdiag and j == 0:
                self.stamp(2, True)
            if o.sdiag and j == 2:
                e("s_waitcnt vmcnt(2)")
                self.stamp(3, True)
            if j & 1:
                self.trace("ld", j >> 1)

        def wait_for(j):
            e(f"s_waitcnt vmcnt({len(seq) - 1 - seq.index(j)})")

        def hpair(a, b, first):
            e(f"v_mfma_f32_16x16x32_bf16 v[4:7], v[8:11], v[{a}:{a + 3}], {'0' if first else 'v[4:7]'}")
            for i in range(4):
                if i == 2:
                    e(f"v_mfma_f32_16x16x32_bf16 v[4:7], v[8:11], v[{b}:{b + 3}], v[4:7]")
                e(f"v_pk_maximum3_f16 v{MAX + i}, v{a + i if first else MAX + i}, v{a + i}, v{b + i}")

        def hscatter():
            e("s_nop 0")
            e(f"v_permlane32_swap_b32 v{MAX}, v{MAX + 2}")
            e(f"v_permlane32_swap_b32 v{MAX + 1}, v{MAX + 3}")
            e(f"v_pk_maximum3_f16 v{MAX}, v{MAX}, v{MAX + 2}, v{MAX + 2}")
            e(f"v_pk_maximum3_f16 v{MAX + 1}, v{MAX + 1}, v{MAX + 3}, v{MAX + 3}")
            e("s_nop 1")
            e(f"v_permlane16_swap_b32 v{MAX}, v{MAX + 1}")
            e(f"v_pk_maximum3_f16 v{MAX + 1}, v{MAX}, v{MAX + 1}, v{MAX + 1}")
            e(f"v_lshlrev_b32 v{MAX}, 16, v{MAX + 1}")
            e(f"v_cmp_u_f16_sdwa vcc, v{MAX + 1}, v{MAX + 1} src0_sel:WORD_0 src1_sel:WORD_1")
            e("s_cbranch_vccnz L_exact")
            e("L_maxok:")

        def mpair(a, b, first, sums=True):
            if o.hmax and sums:
                return hpair(a, b, first)
            if sums:
                e(f"v_mfma_f32_16x16x32_bf16 v[4:7], v[8:11], v[{a}:{a + 3}], {'0' if first else 'v[4:7]'}")
            for i in range(4):
                e(f"v_lshlrev_b32 v{T + 2 * i}, 16, v{a + i}")
            if sums:
                e(f"v_mfma_f32_16x16x32_bf16 v[4:7], v[8:11], v[{b}:{b + 3}], v[4:7]")
            for i in range(4):
                e(f"v_lshlrev_b32 v{T + 2 * i + 1}, 16, v{b + i}")
            for i in range(4):
                m = MAX + 2 * i
                if first:
                    e(f"v_max_f32 v{m + 1}, v{a + i}, v{b + i}")
                else:
                    e(f"v_max3_f32 v{m + 1}, v{m + 1}, v{a + i}, v{b + i}")
            for i in range(4):
                m, t = MAX + 2 * i, T + 2 * i
                if first:
                    e(f"v_max_f32 v{m}, v{t}, v{t + 1}")
                else:
                    e(f"v_max3_f32 v{m}, v{m}, v{t}, v{t + 1}")

        def mscatter():
            for i in (1, 3, 0, 2):
                e(f"v_permlane32_swap_b32 v{MAX + i}, v{MAX + 4 + i}")
            for i in (1, 3, 0, 2):
                e(f"v_max_f32 v{MAX + i}, v{MAX + i}, v{MAX + 4 + i}")
            e(f"v_permlane16_swap_b32 v{MAX + 1}, v{MAX + 3}")
            e("s_nop 0")
            e(f"v_permlane16_swap_b32 v{MAX}, v{MAX + 2}")
            e(f"v_max_f32 v{MAX + 1}, v{MAX + 1}, v{MAX + 3}")
            e(f"v_max_f32 v{MAX}, v{MAX}, v{MAX + 2}")

        def scatter54():
            for base in (MAX, SUM):
                for i in range(4):
                    e(f"v_permlane32_swap_b32 v{base + i}, v{base + 4 + i}")
            for i in range(4):
                e(f"v_max_f32 v{MAX + i}, v{MAX + i}, v{MAX + 4 + i}")
            for i in range(4):
                e(f"v_add_f32 v{SUM + i}, v{SUM + i}, v{SUM + 4 + i}")
            for i in range(2):
                e(f"v_permlane16_swap_b32 v{MAX + i}, v{MAX + 2 + i}")
            for i in range(2):
                e(f"v_permlane16_swap_b32 v{SUM + i}, v{SUM + 2 + i}")
            for i in range(2):
                e(f"v_add_f32 v{SUM + i}, v{SUM + i}, v{SUM + 2 + i}")
            for i in range(2):
                e(f"v_max_f32 v{MAX + i}, v{MAX + i}, v{MAX + 2 + i}")

        nxt = 0
        for jj in range(16):
            while nxt < 32 and nxt < max(2 * jj + DEPTH + 2, 2 * NAGN + 2 if o.prebar else 0):
                issue(nxt)
                nxt += 1
                if nxt == 32:
                    self.stamp(1)
            a, b = D0 + 8 * jj, D0 + 8 * jj + 4
            if jj == 0:
                e("@@HERE1")
            if jj == 15:
                e("@@HERE2")
                if o.last:
                    e(f"s_lshl_b32 s{S_T0}, s{S_TY}, 11")
                    e(f"v_lshl_add_u32 v3, v1, 3, s{S_T0}")
                    e(f"s_lshl_b32 s{S_T0}, s{S_SUB}, 9")
                    e(f"v_add_u32 v2, s{S_T0}, v3")
                    e(f"s_lshl2_add_u32 s{S_T0}, s{S_TY}, {L_CNT}")
                    e(f"v_mov_b32 v28, s{S_T0}")
                    e("v_mov_b32 v29, 1")
                    e("v_and_b32 v30, 7, v1")
                    e("v_lshrrev_b32 v31, 4, v1")
                    e("v_lshl_add_u32 v30, v31, 3, v30")
                    e("v_bfe_u32 v31, v1, 3, 1")
                    e("v_mul_u32_u24 v31, 96, v31")
                    e(f"s_lshl_b32 s{S_T0}, s{S_TY}, 5")
                    e(f"v_add3_u32 v30, v30, v31, s{S_T0}")
                    e("v_lshlrev_b32 v30, 3, v30")
                    e("v_bfe_i32 v31, v1, 0, 1")
                    e("v_and_b32 v31, 15, v31")
                    e(f"v_xor_b32 v32, s{S_TG[1]}, v31")
                    e(f"v_xor_b32 v31, s{S_TG[0]}, v31")
                else:
                    e("v_and_b32 v2, 7, v1")
                    e("v_lshlrev_b32 v2, 5, v2                   ; (l&7)*32")
                    e("v_lshrrev_b32 v3, 4, v1")
                    e("v_lshl_add_u32 v2, v3, 3, v2              ; + (l>>4)*8")
                    e("v_bfe_u32 v3, v1, 3, 1")
                    e("v_mul_u32_u24 v3, 768, v3")
                    e(f"s_mul_i32 s{S_T0}, s{S_SUB}, 1536")
                    e(f"s_lshl_b32 s{S_T1}, s{S_TY}, 8")
                    e(f"s_add_u32 s{S_T0}, s{S_T0}, s{S_T1}")
                    e(f"v_add3_u32 v2, v2, v3, s{S_T0}")
                    e(f"s_mul_i32 s{S_T0}, s{S_WAVE}, 768")
                    e(f"v_lshl_add_u32 v3, v1, 4, s{S_T0}")
                if o.msum:
                    assert o.last
                    e("v_bfe_i32 v33, v1, 3, 1")
                    e("v_and_b32 v33, 0xfff0, v33")
                    e("v_xor_b32 v33, -16, v33                   ; bits that carry the value: 31:4 of a sum, 31:16 of a max")
                    wait_for(31)
                    self.stamp(3)
                    mpair(a, b, False)
                    continue
                if o.ttail:
                    scatter54()
                    for r in (a, b):
                        wait_for((r - D0) // 4)
                        if r == b:
                            self.stamp(3)
                        C = 8
                        e(f"v_mov_b64 v[{C}:{C + 1}], v[{r}:{r + 1}]")
                        e(f"v_mov_b64 v[{C + 2}:{C + 3}], v[{r + 2}:{r + 3}]")
                        e("s_nop 1")
                        e(f"v_permlane32_swap_b32 v{C}, v{C + 2}")
                        e(f"v_permlane32_swap_b32 v{C + 1}, v{C + 3}")
                        e("s_nop 1")
                        e(f"v_permlane16_swap_b32 v{C}, v{C + 1}")
                        e(f"v_permlane16_swap_b32 v{C + 2}, v{C + 3}")
                        for i in range(4):
                            t = T + 2 * i
                            e(f"v_lshlrev_b32 v{t}, 16, v{C + i}")
                            e(f"v_and_b32 v{t + 1}, s{S_MASK}, v{C + i}")
                        e(f"v_pk_add_f32 v[{C}:{C + 1}], v[{T}:{T + 1}], v[{T + 2}:{T + 3}]")
                        e(f"v_pk_add_f32 v[{C + 2}:{C + 3}], v[{T + 4}:{T + 5}], v[{T + 6}:{T + 7}]")
                        e(f"v_max3_f32 v{MAX}, v{MAX}, v{T}, v{T + 2}")
                        e(f"v_pk_add_f32 v[{C}:{C + 1}], v[{C}:{C + 1}], v[{C + 2}:{C + 3}]")
                        e(f"v_max3_f32 v{MAX + 1}, v{MAX + 1}, v{T + 1}, v{T + 3}")
                        e(f"v_pk_add_f32 v[{SUM}:{SUM + 1}], v[{SUM}:{SUM + 1}], v[{C}:{C + 1}]")
                        e(f"v_max3_f32 v{MAX}, v{MAX}, v{T + 4}, v{T + 6}")
                        e(f"v_max3_f32 v{MAX + 1}, v{MAX + 1}, v{T + 5}, v{T + 7}")
                    continue
                def fold(r):
                    for i in range(4):
                        t = T + 2 * i
                        e(f"v_lshlrev_b32 v{t}, 16, v{r + i}")
                        e(f"v_and_b32 v{t + 1}, s{S_MASK}, v{r + i}")
                    for i in range(8):
                        e(f"v_max_f32 v{MAX + i}, v{MAX + i}, v{T + i}")
                    for i in range(4):
                        t, s = T + 2 * i, SUM + 2 * i
                        e(f"v_pk_add_f32 v[{s}:{s + 1}], v[{s}:{s + 1}], v[{t}:{t + 1}]")
                if o.xfer:
                    assert o.xpos <= 28
                    e(f"s_cmp_lg_u32 s{S_XR}, 2")
                    e("s_cbranch_scc1 L_nox2")
                    e(f"s_lshl_b32 s{S_T0}, s{S_WAVE}, 10")
                    e(f"s_add_u32 s{S_T0}, s{S_T0}, {L_X}")
                    e(f"v_lshl_add_u32 v{V_AT}, v1, 4, s{S_T0}")
                    e(f"ds_read_b128 v[28:31], v{V_AT}")
                    e("s_waitcnt lgkmcnt(0)")
                    fold(28)
                    e("L_nox2:")
                for r in (a, b):
                    wait_for((r - D0) // 4)
                    if r == b:
                        self.stamp(3)
                        if o.xfer:
                            e(f"s_cmp_eq_u32 s{S_XR}, 1")
                            e("s_cbranch_scc1 L_nox3")
                    fold(r)
                if o.xfer:
                    e("L_nox3:")
                continue
            wait_for(2 * jj + 1)
            if jj == 0 and not o.xbar:
                self.stamp(2)
            if jj >= o.skipfrom:
                continue
            if o.msum:
                mpair(a, b, jj == 0)
                continue
            for i in range(4):
                t = T + 4 * i
                e(f"v_lshlrev_b32 v{t}, 16, v{a + i}")
                e(f"v_and_b32 v{t + 1}, s{S_MASK}, v{a + i}")
                e(f"v_lshlrev_b32 v{t + 2}, 16, v{b + i}")
                e(f"v_and_b32 v{t + 3}, s{S_MASK}, v{b + i}")
            for i in range(4):
                t = T + 4 * i
                s, m = SUM + 2 * i, MAX + 2 * i
                if jj == 0:
                    e(f"v_max_f32 v{m}, v{t}, v{t + 2}")
                    e(f"v_max_f32 v{m + 1}, v{t + 1}, v{t + 3}")
                    e(f"v_pk_add_f32 v[{s}:{s + 1}], v[{t}:{t + 1}], v[{t + 2}:{t + 3}]")
                else:
                    e(f"v_max3_f32 v{m}, v{m}, v{t}, v{t + 2}")
                    e(f"v_max3_f32 v{m + 1}, v{m + 1}, v{t + 1}, v{t + 3}")
                    e(f"v_pk_add_f32 v[{t}:{t + 1}], v[{t}:{t + 1}], v[{t + 2}:{t + 3}]")
            if jj:
                for i in range(4):
                    t = T + 4 * i
                    s = SUM + 2 * i
                    e(f"v_pk_add_f32 v[{s}:{s + 1}], v[{s}:{s + 1}], v[{t}:{t + 1}]")

        if o.hmax:
            hscatter()
        elif o.msum:
            mscatter()
        elif not o.ttail:
            scatter54()
        e(f"s_cmp_ge_u32 s{S_WAVE}, 2")
        for i in range(2):
            e(f"v_add_f32_dpp v{SUM + i}, v{SUM + i}, v{SUM + i} row_ror:8 row_mask:0xf bank_mask:0x3")
        for i in range(2):
            e(f"v_max_f32_dpp v{SUM + i}, v{MAX + i}, v{MAX + i} row_ror:8 row_mask:0xf bank_mask:0xc")
        if o.last:
            e(f"ds_write_b64 v2, v[{SUM}:{SUM + 1}] offset:{L_RED}")
            e("s_mov_b64 exec, 1")
            e("ds_add_rtn_u32 v6, v28, v29")
            e("s_mov_b64 exec, -1")
            e("ds_read2st64_b64 v[8:11], v3 offset0:0 offset1:1")
            e("ds_read2st64_b64 v[12:15], v3 offset0:2 offset1:3")
            e("s_waitcnt lgkmcnt(1)")
            e(f"v_readfirstlane_b32 s{S_T0}, v6")
            e("v_pk_add_f32 v[4:5], v[8:9], v[10:11]")
            e("s_waitcnt lgkmcnt(0)")
            e("v_max3_f32 v8, v8, v10, v12")
            e("v_max3_f32 v9, v9, v11, v13")
            e("v_pk_add_f32 v[16:17], v[12:13], v[14:15]")
            e(f"s_cmp_lg_u32 s{S_T0}, 3")
            e("v_pk_add_f32 v[4:5], v[4:5], v[16:17]")
            e("s_cbranch_scc1 L_notlast")
            e("v_max_f32_dpp v4, v8, v14 quad_perm:[0,1,2,3] row_mask:0xf bank_mask:0xc")
            e("v_max_f32_dpp v5, v9, v15 quad_perm:[0,1,2,3] row_mask:0xf bank_mask:0xc")
            e("v_and_or_b32 v4, v4, -16, v31")
            e(f"v_and_or_b32 v5, v5, {'v33' if o.msum else '-16'}, v32")
            e(f"buffer_store_dwordx2 v[4:5], v30, s[{S_WS}:{S_WS + 3}], s{S_PO} offen")
            e("L_notlast:")
            e("v_lshrrev_b32 v20, 4, v1                  ; q")
            e(f"s_cmp_lt_u32 s{S_RID}, {NRED}")
            e(f"s_cselect_b32 s{S_T0}, s{S_WAVE}, 0")
            e(f"s_cmp_eq_u32 s{S_T0}, 3")
            e("s_cbranch_scc1 L_rsetup")
            e(f"s_cmp_ge_u32 s{S_WAVE}, 2")
            e("s_barrier")
            self.stamp(4)
            e("s_cbranch_scc1 L_nopub")
            e(f"s_cmp_eq_u32 s{S_WAVE}, 0")
            e(f"s_cselect_b64 s[{S_W}:{S_W + 1}], s[36:37], s[38:39]")
        else:
            e(f"ds_write_b64 v2, v[{SUM}:{SUM + 1}] offset:{L_RED}")
            e("s_waitcnt lgkmcnt(0)")
            e("s_barrier")
            self.stamp(4)
            e("s_cbranch_scc1 L_nopub")

            e("s_mov_b32 exec_hi, 0xffff")
            for k in range(4):
                e(f"ds_read_b128 v[{4 + 4 * k}:{7 + 4 * k}], v3 offset:{L_RED + 1536 * k}")
            e(f"s_cmp_eq_u32 s{S_WAVE}, 0")
            e(f"s_cselect_b64 s[{S_W}:{S_W + 1}], s[36:37], s[38:39]")
            e("s_cbranch_scc0 L_pubmax")
            e("s_waitcnt lgkmcnt(2)")
            e("v_pk_add_f32 v[4:5], v[4:5], v[8:9]")
            e("v_pk_add_f32 v[6:7], v[6:7], v[10:11]")
            e("s_waitcnt lgkmcnt(0)")
            e("v_pk_add_f32 v[12:13], v[12:13], v[16:17]")
            e("v_pk_add_f32 v[14:15], v[14:15], v[18:19]")
            e("v_pk_add_f32 v[4:5], v[4:5], v[12:13]")
            e("v_pk_add_f32 v[6:7], v[6:7], v[14:15]")
            e("s_branch L_pub")
            e("L_pubmax:")
            e("s_waitcnt lgkmcnt(1)")
            for i in range(4):
                e(f"v_max3_f32 v{4 + i}, v{4 + i}, v{8 + i}, v{12 + i}")
            e("s_waitcnt lgkmcnt(0)")
            for i in range(4):
                e(f"v_max_f32 v{4 + i}, v{4 + i}, v{16 + i}")
            e("L_pub:")
            for i in range(4):
                e(f"v_and_or_b32 v{4 + i}, v{4 + i}, -16, s{S_TG[i]}")
            e(f"buffer_store_dwordx4 v[4:7], v3, s[{S_WS}:{S_WS + 3}], s{S_PO} offen{' sc1' if o.psc1 else ' nt' if o.pnt else ''}")
            e("s_mov_b64 exec, -1")
        e(f"s_movk_i32 s{S_W + 2}, 18432")
        e(f"s_mov_b32 s{S_W + 3}, 0x20000")
        e(f"s_mul_i32 s{S_T0}, s{S_WAVE}, 18432")
        e(f"s_addk_i32 s{S_T0}, {L_W1}")
        e(f"s_mov_b32 s{S_T1}, 0")
        e("v_lshlrev_b32 v2, 4, v1")
        e("L_wloop:")
        e(f"s_add_u32 m0, s{S_T0}, s{S_T1}")
        e("s_nop 0")
        for k in range(3):
            e(f"buffer_load_dwordx4 v2, s[{S_W}:{S_W + 3}], s{S_T1} offen offset:{k * 1024} lds")
        e(f"s_addk_i32 s{S_T1}, 3072")
        e(f"s_cmp_lt_u32 s{S_T1}, 18432")
        e("s_cbranch_scc1 L_wloop")
        e("L_nopub:")

        B2 = 28
        V_H0, V_H1, V_SW, V_SR, V_Q = 24, 25, 26, 27, 37
        SP0 = 136
        A1 = 144
        B1 = [4, 8, 12, 16, 136, 140]
        if o.last:
            e(f"s_cmp_lt_u32 s{S_WAVE}, 3")
            e("s_cbranch_scc1 L_spill")
            e("s_branch L_barw")
            e("L_rsetup:")
        else:
            e("v_lshrrev_b32 v20, 4, v1                  ; q")
            e(f"s_cmp_lt_u32 s{S_WAVE}, 3")
            e("s_cbranch_scc1 L_spill")
            e(f"s_cmp_ge_u32 s{S_RID}, {NRED}")
            e("s_cbranch_scc1 L_barw")
            e(f"s_cmp_lg_u32 s{S_WAVE}, 3")
            e("s_cbranch_scc1 L_barw")

        def clean(lbl, d, a):
            e(f"s_cmp_lg_u32 s{S_WAVE}, 3")
            e(f"s_cbranch_scc1 {lbl}")
            if o.cw:
                e(f"v_mov_b32 v{d}, 0")
                e(f"v_lshlrev_b32 v{a}, {o.cw}, v1")
                e(f"s_mov_b64 exec, {(1 << (1536 >> o.cw)) - 1}")
                if o.cld:
                    e(f"buffer_atomic_or v{d}, v{a}, s[{S_WS}:{S_WS + 3}], s{S_PO} offen")
                else:
                    e(f"buffer_store_dword v{d}, v{a}, s[{S_WS}:{S_WS + 3}], s{S_PO} offen sc1")
                e("s_mov_b64 exec, -1")
                return
            for i in range(4):
                e(f"v_mov_b32 v{d + i}, 0")
            e(f"v_lshlrev_b32 v{a}, 4, v1")
            e("s_mov_b32 exec_hi, 0xffff")
            e(f"buffer_store_dwordx4 v[{d}:{d + 3}], v{a}, s[{S_WS}:{S_WS + 3}], s{S_PO} offen sc1")
            e(f"buffer_store_dwordx4 v[{d}:{d + 3}], v{a}, s[{S_WS}:{S_WS + 3}], s{S_PO} offen offset:768 sc1")
            e("s_mov_b64 exec, -1")

        e("v_lshrrev_b32 v2, 3, v1")
        e("v_mul_u32_u24 v2, 1536, v2")
        e("v_and_b32 v3, 7, v1")
        e(f"v_lshl_add_u32 v{V_Q}, v3, 4, v2")
        e(f"s_and_b32 s{S_T0}, s2, 7")
        e(f"s_mul_i32 s{S_V}, s{S_T0}, {32 * 1536}")
        e(f"s_lshl_b32 s{S_T1}, s{S_RID}, 7")
        e(f"s_add_u32 s{S_V}, s{S_V}, s{S_T1}")
        for k in range(1, 4):
            e(f"s_add_u32 s{S_V + k}, s{S_V}, {k * 8 * 1536}")
        e(f"s_lshl_b32 s{S_T0}, s{S_T0}, 8              ; group*256")
        e(f"s_lshr_b32 s{S_T1}, s{S_RID}, 2")
        e(f"s_lshl2_add_u32 s{S_T1}, s{S_T1}, s{S_RID}")
        e(f"s_lshl_b32 s{S_T1}, s{S_T1}, 11")
        e(f"s_add_u32 s{S_T1}, s{S_T1}, s{S_T0}")
        for k in range(o.qcopy // 2):
            e(f"s_add_u32 s{S_W + k}, s{S_T1}, {WS_Q + k * 49152}")
        e("v_and_b32 v2, 15, v1")
        e("v_lshlrev_b32 v3, 2, v2")
        e("v_bfe_u32 v2, v1, 4, 1")
        e("v_lshl_add_u32 v3, v2, 7, v3")
        e("v_lshrrev_b32 v2, 5, v1")
        e("v_lshl_add_u32 v3, v2, 13, v3             ; (l>>5)*8192 + ((l>>4)&1)*128 + (l&15)*4")
        e(f"s_lshl4_add_u32 s{S_T0}, s{S_TG[1]}, s{S_TG[0]}")
        e(f"s_xor_b32 s{S_CNT}, s{S_T0}, 0xff")
        e(f"s_lshl_b32 s{S_CNT}, s{S_CNT}, 8")
        e(f"s_or_b32 s{S_T0}, s{S_T0}, s{S_CNT}")
        e("v_and_b32 v2, 12, v3")
        e(f"v_bfe_u32 v23, s{S_T0}, v2, 4")
        e(f"s_mov_b32 s{S_CNT}, {NFB}")
        e(f"s_mov_b32 s{S_HOOK}, 0")
        if o.last:
            e("s_barrier")
            self.stamp(4)
        e("L_rpoll:")
        for k in range(4):
            e(f"buffer_load_dwordx4 v[{4 + 4 * k}:{7 + 4 * k}], v{V_Q}, s[{S_WS}:{S_WS + 3}], s{S_V + k} offen sc1")
        e(f"s_sub_u32 s{S_CNT}, s{S_CNT}, 1")
        e("s_cbranch_scc1 L_rlong")
        for k in range(4):
            e(f"s_waitcnt vmcnt({3 - k})")
            r = 4 + 4 * k
            for i in range(4):
                e(f"v_xor_b32 v{r + i}, s{S_TG[i]}, v{r + i}" + ("            ; a matching tag leaves four zero bits" if k + i == 0 else ""))
            if k == 0:
                e(f"v_or3_b32 v21, v{r}, v{r + 1}, v{r + 2}")
                e(f"v_or_b32 v21, v21, v{r + 3}")
            elif k < 3:
                e(f"v_or3_b32 v21, v21, v{r}, v{r + 1}")
                e(f"v_or3_b32 v21, v21, v{r + 2}, v{r + 3}")
            else:
                e(f"v_or3_b32 v21, v21, v{r}, v{r + 1}")
                e(f"v_or_b32 v22, v{r + 2}, v{r + 3}")
        e("v_bitop3_b32 v21, v21, v22, 15 bitop3:0xa8          ; (a | b) & c")
        e("v_cmp_ne_u32 vcc, 0, v21")
        e("s_wqm_b64 exec, vcc                       ; 64-byte units still waiting poll again")
        e("s_cbranch_scc1 L_rpoll")
        e("L_rgot:")
        e("s_mov_b64 exec, -1")
        self.stamp(1, "r")
        e(f"s_cmp_ge_u32 s{S_RID}, 6")
        e("s_cbranch_scc1 L_rmax")
        for kind in (0, 1):
            op = "v_add_f32" if kind == 0 else "v_max_f32"
            if kind == 1:
                e("L_rmax:")
                for i in range(4):
                    e(f"v_max3_f32 v{4 + i}, v{4 + i}, v{8 + i}, v{12 + i}")
                for i in (0, 2, 1, 3):
                    e(f"v_max_f32 v{4 + i}, v{4 + i}, v{16 + i}")
            else:
                e("v_pk_add_f32 v[4:5], v[4:5], v[8:9]")
                e("v_pk_add_f32 v[6:7], v[6:7], v[10:11]")
                e("v_pk_add_f32 v[12:13], v[12:13], v[16:17]")
                e("v_pk_add_f32 v[14:15], v[14:15], v[18:19]")
                e("v_pk_add_f32 v[4:5], v[4:5], v[12:13]")
                e("v_pk_add_f32 v[6:7], v[6:7], v[14:15]")
                e("s_nop 0")
            e(f"{op}_dpp v4, v4, v4 row_ror:8 row_mask:0xf bank_mask:0x3")
            if kind == 0:
                e(f"{op}_dpp v5, v5, v5 row_ror:8 row_mask:0xf bank_mask:0x3")
                e(f"{op}_dpp v4, v6, v6 row_ror:8 row_mask:0xf bank_mask:0xc")
            else:
                e(f"{op}_dpp v4, v6, v6 row_ror:8 row_mask:0xf bank_mask:0xc")
                e(f"{op}_dpp v5, v5, v5 row_ror:8 row_mask:0xf bank_mask:0x3")
            e(f"{op}_dpp v5, v7, v7 row_ror:8 row_mask:0xf bank_mask:0xc")
            e("s_nop 1")
            e("v_permlane16_swap_b32 v4, v5")
            e(f"{op} v4, v4, v5")
            e("v_mov_b32 v5, v4")
            e("s_nop 1")
            e("v_permlane32_swap_b32 v4, v5")
            e(f"{op} v4, v4, v5                        ; lane 16a+8b+c: element 2b+a of piece c")
            if kind == 0:
                e("s_branch L_rpub")
        e("L_rpub:")
        e("v_and_or_b32 v4, v4, -16, v23")
        for k in range(o.qcopy // 2):
            e(f"buffer_store_dword v4, v3, s[{S_WS}:{S_WS + 3}], s{S_W + k} offen sc1")
            if k == 0:
                self.stamp(9)
        if o.clean == "r":
            for i in range(4):
                e(f"v_mov_b32 v{8 + i}, 0")
            for k in range(4):
                e(f"buffer_store_dwordx4 v[8:11], v{V_Q}, s[{S_WS}:{S_WS + 3}], s{S_V + k} offen sc1")
        e("s_barrier")
        e("s_branch L_afterw")

        if o.pad:
            e(f".fill {o.pad // 4}, 4, 0xbf800000")
        e("L_spill:")
        e(f"s_lshl_b32 s{S_T0}, s{S_WAVE}, 13")
        e(f"v_lshl_add_u32 v{V_AT}, v1, 4, s{S_T0}")
        for k in range(8):
            e(f"ds_write_b128 v{V_AT}, v[{SP0 + 4 * k}:{SP0 + 4 * k + 3}] offset:{L_SPILL + 1024 * k}")
        e("L_barw:")
        if o.tlb:
            e(f"s_cmp_lg_u32 s{S_WAVE}, 5")
            e("s_cbranch_scc1 L_notlb")
            e(f"v_lshlrev_b32 v2, {o.tlb}, v1")
            e(f"buffer_load_dword v4, v2, s[{S_OUT}:{S_OUT + 3}], 0 offen")
            e("L_notlb:")
        if o.lpf == 1:
            e(f"s_cmp_lg_u32 s{S_WAVE}, 4")
            e("s_cbranch_scc1 L_nolpf")
            e("s_getpc_b64 s[20:21]")
            e("v_lshlrev_b32 v2, 7, v1")
            e("v_min_u32 v2, L_end - L_nolpf, v2")
            e("global_load_dword v4, v2, s[20:21]")
            e("L_nolpf:")
        e("s_waitcnt vmcnt(0) lgkmcnt(0)")
        e("s_barrier")
        e("L_afterw:")
        e("v_bfe_u32 v3, v1, 2, 2")
        e("v_lshl_add_u32 v21, v20, 3, v3            ; row")
        e("v_and_b32 v22, 15, v21                    ; row of the half step (q&1)")
        e("v_and_b32 v3, 3, v1")
        e(f"s_lshl_b32 s{S_T2}, s{S_WAVE}, 5")
        e(f"v_lshl_add_u32 v23, v3, 3, s{S_T2}          ; column bytes")
        e("v_mov_b32 v3, 384")
        e("v_mad_u32_u24 v2, v21, v3, v23")
        e("v_mad_u32_u24 v22, v22, v3, v23")
        e(f"ds_read_b64_tr_b16 v[{B2}:{B2 + 1}], v2 offset:{L_W2}")
        e(f"ds_read_b64_tr_b16 v[{B2 + 2}:{B2 + 3}], v2 offset:{L_W2 + 4 * 384}")
        e(f"ds_read_b64_tr_b16 v[{B2 + 4}:{B2 + 5}], v22 offset:{L_W2 + 32 * 384}")
        e(f"ds_read_b64_tr_b16 v[{B2 + 6}:{B2 + 7}], v22 offset:{L_W2 + 36 * 384}")
        e("v_and_b32 v2, 1, v1")
        e("v_mul_u32_u24 v22, 96, v2")
        e(f"v_lshl_add_u32 v{V_H0}, v20, 4, v22")
        e("v_and_b32 v3, 1, v20")
        e(f"v_lshl_add_u32 v{V_H1}, v3, 4, v22")
        e(f"s_lshl_b32 s{S_T0}, s{S_WAVE}, 6")
        e(f"v_lshl_add_u32 v{V_SW}, v1, 2, s{S_T0}")
        if o.mul == "dot":
            e("v_mov_b32 v3, 0")
            e("s_mov_b64 exec, 0xffff")
            e(f"ds_write_b32 v{V_SW}, v3 offset:{L_S}")
            e("s_mov_b64 exec, -1")
            e(f"v_lshl_add_u32 v{V_SW}, v2, 1, v{V_SW}")
        e("v_and_b32 v3, 7, v1")
        e(f"s_lshl_b32 s{S_T0}, s{S_TY}, 8")
        e(f"v_lshl_add_u32 v{V_SR}, v3, 5, s{S_T0}")
        e("s_waitcnt lgkmcnt(0)")
        e("s_mov_b32 exec_lo, 0")
        for i in range(4):
            e(f"v_mov_b32 v{B2 + 4 + i}, 0")
        e("s_mov_b64 exec, -1")
        e(f"s_cmp_ge_u32 s{S_WAVE}, 3")
        e("s_cbranch_scc1 L_noa1")
        e("v_mov_b32 v3, 96")
        e("v_mad_u32_u24 v2, v21, v3, v23")
        for s in range(6):
            for h in range(2):
                r = A1 + 4 * s + 2 * h
                e(f"ds_read_b64_tr_b16 v[{r}:{r + 1}], v2 offset:{L_W1 + s * 3072 + h * 384}")
        e("L_noa1:")
        e(f"v_lshl_add_u32 v3, v20, 3, v22")
        e(f"v_add_u32 v3, s{S_T2}, v3")
        e("v_lshlrev_b32 v2, 2, v22")
        e("v_lshl_add_u32 v2, v20, 4, v2")
        e("v_and_b32 v8, 1, v1")
        e("v_lshlrev_b32 v8, 4, v8")
        e("v_lshl_add_u32 v8, v20, 2, v8")
        e("v_and_b32 v9, 2, v1")
        e("v_bfe_u32 v10, v1, 2, 1")
        e("v_add3_u32 v8, v8, v9, v10")
        if o.last:
            e("v_bfe_u32 v9, v8, 1, 3")
            e("v_lshrrev_b32 v11, 4, v8")
            e("v_and_b32 v8, 1, v8")
            e("v_lshl_add_u32 v8, v11, 1, v8")
            e("v_lshl_add_u32 v8, v9, 3, v8")
            e(f"s_lshr_b32 s{S_T0}, s{S_WAVE}, 1")
            e(f"s_and_b32 s{S_T1}, s{S_WAVE}, 1")
            e(f"s_lshl4_add_u32 s{S_T0}, s{S_T0}, s{S_T1}")
            e(f"s_lshl_b32 s{S_T0}, s{S_T0}, 2")
            e(f"v_add_lshl_u32 v23, v8, s{S_T0}, 1")
        else:
            e(f"v_add_lshl_u32 v23, v8, s{S_T2}, 1")
        e("v_lshrrev_b32 v8, 2, v1")
        e("v_lshlrev_b32 v8, 7, v8")
        e("v_and_b32 v9, 3, v1")
        e(f"v_lshl_add_u32 v{V_Q}, v9, 4, v8")
        e(f"s_and_b32 s{S_T0}, s{S_QC}, 4")
        if o.qcopy > 2:
            e(f"s_and_b32 s{S_CNT}, s{S_QC}, {o.qcopy // 2 - 1}")
            e(f"s_mul_i32 s{S_CNT}, s{S_CNT}, 24")
            e(f"s_add_u32 s{S_T0}, s{S_T0}, s{S_CNT}")
        e(f"s_lshr_b32 s{S_T1}, s{S_WAVE}, 2")
        e(f"s_lshl2_add_u32 s{S_T1}, s{S_T1}, s{S_WAVE}")
        e(f"s_add_u32 s{S_T1}, s{S_T1}, s{S_T0}")
        e(f"s_lshl_b32 s{S_T1}, s{S_T1}, 11")
        e(f"s_add_u32 s{S_T1}, s{S_T1}, {WS_Q}")
        if o.clean in ("q", "p", "a", "h", "g"):
            if o.cfull:
                for i in range(4):
                    e(f"v_mov_b32 v{16 + i}, s{S_TG[i]}")
                e("v_lshlrev_b32 v22, 4, v1")
            else:
                e(f"v_mov_b32 v19, s{S_TG[0]}")
            e(f"s_lshl_b32 s{S_V}, s{S_WAVE}, 7")
            e(f"s_add_u32 s{S_V}, s{S_V}, s{S_PO}")
        e(f"s_mov_b32 s{S_CNT}, {NFB}")
        e(f"s_mov_b32 s{S_HOOK}, 0")
        e(f"s_cmp_lt_u32 s{S_WAVE}, 6")
        e("s_cbranch_scc1 L_qpoll0")

        def clean1():
            if o.cfull:
                e("s_mov_b64 exec, 0xff")
                e(f"buffer_store_dwordx4 v[16:19], v22, s[{S_WS}:{S_WS + 3}], s{S_V} offen sc1")
            else:
                e("s_mov_b64 exec, 1")
                e(f"buffer_store_dword v19, off, s[{S_WS}:{S_WS + 3}], s{S_V} sc1")
            e("s_mov_b64 exec, -1")

        for kind in (1, 0):
            op = "v_add_f32" if kind == 0 else "v_max_f32"
            if o.q2:
                def qld(r):
                    e(f"buffer_load_dwordx4 v[{r}:{r + 3}], v{V_Q}, s[{S_WS}:{S_WS + 3}], s{S_T1} offen sc1")

                def qchk(r):
                    e("s_waitcnt vmcnt(1)")
                    for i in range(4):
                        e(f"v_xor_b32 v{4 + i}, s{S_TG[i]}, v{r + i}")
                    e("v_or3_b32 v21, v4, v5, v6")
                    e("v_bitop3_b32 v21, v21, v7, 15 bitop3:0xa8")
                    e("v_cmp_ne_u32 vcc, 0, v21")
                    e("s_wqm_b64 exec, vcc")
                e(f"L_qpoll{kind}:")
                qld(8)
                e(f"s_sleep {o.q2}")
                e(f"L_qloop{kind}:")
                qld(12)
                e(f"s_sub_u32 s{S_CNT}, s{S_CNT}, 1")
                e(f"s_cbranch_scc1 L_qlong{kind}")
                qchk(8)
                e(f"s_cbranch_scc0 L_qgot{kind}")
                qld(8)
                qchk(12)
                e(f"s_cbranch_scc1 L_qloop{kind}")
            else:
                e(f"L_qpoll{kind}:")
                e(f"buffer_load_dwordx4 v[4:7], v{V_Q}, s[{S_WS}:{S_WS + 3}], s{S_T1} offen sc1")
                e(f"s_sub_u32 s{S_CNT}, s{S_CNT}, 1")
                e(f"s_cbranch_scc1 L_qlong{kind}")
                if o.qsleep:
                    e(f"s_sleep {o.qsleep}")
                e("s_waitcnt vmcnt(0)")
                for i in range(4):
                    e(f"v_xor_b32 v{4 + i}, s{S_TG[i]}, v{4 + i}")
                e("v_or3_b32 v21, v4, v5, v6")
                e("v_bitop3_b32 v21, v21, v7, 15 bitop3:0xa8")
                e("v_cmp_ne_u32 vcc, 0, v21")
                e("s_wqm_b64 exec, vcc")
                e(f"s_cbranch_scc1 L_qpoll{kind}")
            e(f"L_qgot{kind}:")
            if o.clean == "p":
                e("s_mov_b64 exec, 1")
                e(f"buffer_store_dword v19, off, s[{S_WS}:{S_WS + 3}], s{S_V} sc1")
            e("s_mov_b64 exec, -1")
            self.stamp(5)
            e("v_permlane32_swap_b32 v4, v6")
            e("v_permlane32_swap_b32 v5, v7")
            e(f"{op} v4, v4, v6")
            e(f"{op} v5, v5, v7")
            e("s_nop 1")
            e("v_permlane16_swap_b32 v4, v5")
            e(f"{op} v4, v4, v5")
            e(f"s_cmp_ge_u32 s{S_WAVE}, 3")
            e("s_nop 0")
            e(f"{op}_dpp v4, v4, v4 row_ror:8 row_mask:0xf bank_mask:0xf")
            if kind == 0:
                e("v_mul_f32 v4, 0x36800000, v4              ; 1/262144")
            e("v_cvt_pk_bf16_f32 v4, v4, v4")
            e(f"ds_write_b16 v23, v4 offset:{L_F}")
            if o.q2:
                e("s_waitcnt vmcnt(0)")
            if o.clean == "q" or (o.clean == "h" and kind == 1) or (o.clean == "g" and kind == 0):
                clean1()
            e("s_waitcnt lgkmcnt(0)")
            e("s_barrier")
            if kind == 1:
                if o.clean in ("a", "g"):
                    clean1()
                e("s_branch L_join")
            else:
                e("s_cbranch_scc1 " + ("L_clean0" if o.clean in ("a", "h") else "L_join"))

        e("L_mlp1:")
        for s in range(6):
            e(f"ds_read_b128 v[{B1[s]}:{B1[s] + 3}], v2 offset:{L_F + 64 * s}")
        if o.clean in ("a", "h"):
            clean1()
        for s in range(6):
            c = "0" if s == 0 else "v[20:23]"
            b = B1[s]
            e(f"s_waitcnt lgkmcnt({5 - s})")
            e(f"v_mfma_f32_16x16x32_bf16 v[20:23], v[{A1 + 4 * s}:{A1 + 4 * s + 3}], v[{b}:{b + 3}], {c}")
        e("s_nop 3")
        e("s_mov_b32 exec_lo, 0x00030003")
        e("s_mov_b32 exec_hi, 0x00030003")
        e("s_nop 1")
        for i in range(4):
            e(f"v_maximum3_f32 v{20 + i}, v{20 + i}, 0, 0")
        e("v_cvt_pk_bf16_f32 v20, v20, v21")
        e("v_cvt_pk_bf16_f32 v21, v22, v23")
        e(f"ds_write_b64 v3, v[20:21] offset:{L_H}")
        e("s_mov_b64 exec, -1")
        e("s_waitcnt lgkmcnt(0)")

        e("L_join:")
        e("s_barrier")
        self.stamp(6)
        e(f"ds_read_b128 v[4:7], v{V_H0} offset:{L_H}")
        e(f"ds_read_b128 v[8:11], v{V_H1} offset:{L_H + 64}")
        e("s_waitcnt lgkmcnt(1)")
        e(f"v_mfma_f32_16x16x32_bf16 v[12:15], v[4:7], v[{B2}:{B2 + 3}], 0")
        e("s_waitcnt lgkmcnt(0)")
        e(f"v_mfma_f32_16x16x32_bf16 v[12:15], v[8:11], v[{B2 + 4}:{B2 + 7}], v[12:15]")
        e("s_mov_b64 exec, 0xffff")
        e("s_nop 6")
        e("v_cvt_pk_bf16_f32 v12, 0, v12")
        e("v_cvt_pk_bf16_f32 v13, 0, v13")
        e("v_add_f32 v12, v12, v13")
        e("v_cvt_pk_bf16_f32 v12, 0, v12")
        e("v_mul_f32 v12, 0xbfb8aa3b, v12            ; -log2(e)")
        e("v_exp_f32 v12, v12")
        e("s_nop 0")
        e("v_add_f32 v12, 1.0, v12")
        e("v_rcp_f32 v12, v12")
        e("s_nop 0")
        if o.mul == "dot":
            e("v_cvt_pk_bf16_f32 v12, v12, v12")
            e(f"ds_write_b16 v{V_SW}, v12 offset:{L_S}")
        else:
            e("v_cvt_pk_bf16_f32 v12, 0, v12")
            e(f"ds_write_b32 v{V_SW}, v12 offset:{L_S}")
        e("s_mov_b64 exec, -1")
        e("s_waitcnt lgkmcnt(0)")
        e("s_barrier")
        e(f"ds_read_b128 v[4:7], v{V_SR} offset:{L_S}")
        e(f"ds_read_b128 v[8:11], v{V_SR} offset:{L_S + 16}")

        if o.stlim:
            e(f"s_cmp_lt_u32 s2, {o.stlim}")
            e(f"s_cselect_b32 s{S_OUT + 2}, s{S_OUT + 2}, 0")
        zorder = [int(v) for v in o.zorder.split(",")]
        assert sorted(zorder) == list(range(16))
        restored = False
        late = []

        def wbl2():
            wv, lim, pos = [int(v) for v in o.wb.split(",")]
            e(f"s_cmp_lt_u32 s{S_WAVE}, {wv}")
            e("s_cbranch_scc1 L_nowb")
            e(f"s_cmp_ge_u32 s2, {lim}")
            e("s_cbranch_scc1 L_nowb")
            if pos == 33:
                e("s_waitcnt vmcnt(0)")
            e("buffer_wbl2 sc1")
            e("L_nowb:")
        jorder = [int(v) for v in o.jorder.split(",")] if o.jorder else [2 * z + u for z in zorder for u in (0, 1)]
        assert sorted(jorder) == list(range(32))
        self.pz = None
        for n, j in enumerate(jorder):
            a = D0 + 4 * j
            t0 = 12 + 8 * (n & 1)
            if a >= SP0 and not restored:
                assert n > 1
                e("s_waitcnt lgkmcnt(0)")
                restored = True
            md = o.mul
            for i in range(4 if md in ("pk", "mul", "u", "um") else 0):
                t = t0 + 2 * i
                e(f"v_lshlrev_b32 v{t}, 16, v{a + i}")
                e(f"v_and_b32 v{t + 1}, s{S_MASK}, v{a + i}")
            if n == 0:
                e("s_waitcnt lgkmcnt(0)")
                self.stamp(7)
            if o.al:
                e(f".p2align {o.al & 15}")
                if o.al >> 4:
                    e("s_nop 0")
            for i in range(4):
                t = t0 + 2 * i
                if md in ("pk", "um"):
                    e(f"v_pk_mul_f32 v[{t}:{t + 1}], v[{t}:{t + 1}], v[{4 + 2 * i}:{5 + 2 * i}]")
                if md == "mul":
                    e(f"v_mul_f32 v{t}, v{t}, v{4 + 2 * i}")
                    e(f"v_mul_f32 v{t + 1}, v{t + 1}, v{5 + 2 * i}")
                if md == "dot":
                    e(f"v_dot2_f32_bf16 v{t}, v{a + i}, v{4 + 2 * i}, 0")
                    e(f"v_dot2_f32_bf16 v{t + 1}, v{a + i}, v{5 + 2 * i}, 0")
            for i in range(4):
                t = t0 + 2 * i
                if md in ("pk", "mul", "dot"):
                    e(f"v_cvt_pk_bf16_f32 v{a + i}, v{t}, v{t + 1}")
                if md == "c":
                    e(f"v_cvt_pk_bf16_f32 v{a + i}, v{a + i}, v{a + (i ^ 1)}")
            def st(j=j, a=a, n=n):
                self.mem(j, lambda va, so: e(f"buffer_store_dwordx4 v[{a}:{a + 3}], {va}, s[{S_OUT}:{S_OUT + 3}], {so} offen{'' if n >= 32 - o.nplain else stf}"))
            if n < o.burst:
                st()
            else:
                late.append(st)
            if n == 31:
                for f in late:
                    f()
            if o.xfer and n == o.xspos:
                e(f"s_cmp_lg_u32 s{S_XR}, 2")
                e("s_cbranch_scc1 L_nox4")
                e(f"ds_read_b128 v[28:31], v{V_AT}")
                e(f"v_xad_u32 v32, v{V_G1}, s{S_XP}, v{V_L}")
                e("s_waitcnt lgkmcnt(0)")
                for i in range(4):
                    e(f"v_dot2_f32_bf16 v{12 + 2 * i}, v{28 + i}, v{4 + 2 * i}, 0")
                    e(f"v_dot2_f32_bf16 v{13 + 2 * i}, v{28 + i}, v{5 + 2 * i}, 0")
                for i in range(4):
                    e(f"v_cvt_pk_bf16_f32 v{28 + i}, v{12 + 2 * i}, v{13 + 2 * i}")
                e(f"buffer_store_dwordx4 v[28:31], v32, s[{S_OUT}:{S_OUT + 3}], s{S_XO} offen{stf}")
                e("L_nox4:")
            if n + 1 in o.sbar:
                e("s_barrier")
            if o.sthr and n >= o.sthr:
                e(f"s_waitcnt vmcnt({o.sthr - 1})")
            if o.wb and int(o.wb.split(",")[2]) == n:
                wbl2()
            if n & 1:
                self.trace("st", n >> 1)
            if n == 1:
                e(f"s_cmp_ge_u32 s{S_WAVE}, 3")
                e("s_cbranch_scc1 L_norestore")
                for k in range(8):
                    e(f"ds_read_b128 v[{SP0 + 4 * k}:{SP0 + 4 * k + 3}], v{V_AT} offset:{L_SPILL + 1024 * k}")
                e("L_norestore:")
                if o.clean == "st":
                    clean("L_noclean", 28, 32)
                    e("L_noclean:")
        if o.clean == "e":
            clean("L_noclean", 28, 32)
            e("L_noclean:")
        if o.wb and int(o.wb.split(",")[2]) >= 32:
            wbl2()
        if o.stamps:
            self.stamp(8)
            e("s_waitcnt vmcnt(0)")
            self.stamp(10)
            if o.idleclk:
                e(f"s_cmp_lg_u32 s{S_WAVE}, 11")
                e("s_cbranch_scc1 L_noidle")
                for lbl, dur, m, r in (("a", o.idleclk, 1, 3), ("b", 2000, 2, 6)):
                    e("s_memrealtime s[96:97]")
                    e("s_waitcnt lgkmcnt(0)")
                    e(f"L_idle{lbl}:")
                    e("s_sleep 4")
                    e("s_memrealtime s[98:99]")
                    e("s_waitcnt lgkmcnt(0)")
                    e("s_sub_u32 s98, s98, s96")
                    e(f"s_cmp_lt_u32 s98, {dur}")
                    e(f"s_cbranch_scc1 L_idle{lbl}")
                    e(f"s_memtime s[{S_STAMP + 2 * m}:{S_STAMP + 2 * m + 1}]")
                    e(f"s_memrealtime s[{S_STAMP + 2 * r}:{S_STAMP + 2 * r + 1}]")
                e("L_noidle:")
            e("s_getreg_b32 s94, hwreg(HW_REG_XCC_ID)")
            e("s_getreg_b32 s95, hwreg(HW_REG_HW_ID)")
            e("s_waitcnt lgkmcnt(0)")
            e("v_mov_b32 v2, 0")
            for i in range(11 if o.trace else 14):
                e(f"v_writelane_b32 v2, s{S_STAMP + 2 * i}, {i}")
            e("v_writelane_b32 v2, s94, 14")
            e("v_writelane_b32 v2, s95, 15")
            e(f"s_mul_i32 s{S_T0}, s2, 12")
            e(f"s_add_u32 s{S_T0}, s{S_T0}, s{S_WAVE}")
            e(f"s_lshl_b32 s{S_T0}, s{S_T0}, 6")
            e(f"s_add_u32 s{S_T0}, s{S_T0}, {WS_STAMP}")
            e("v_mbcnt_lo_u32_b32 v3, -1, 0")
            e("v_lshlrev_b32 v3, 2, v3")
            e("s_mov_b64 exec, 0xffff")
            e(f"buffer_store_dword v2, v3, s[{S_WS}:{S_WS + 3}], s{S_T0} offen sc1")
            if o.trace:
                e("s_mov_b32 s91, s92")
                for i in range(16):
                    e(f"v_writelane_b32 v2, s{76 + i}, {i}")
                e(f"s_add_u32 s{S_T0}, s{S_T0}, {1 << 19}")
                e(f"buffer_store_dword v2, v3, s[{S_WS}:{S_WS + 3}], s{S_T0} offen sc1")
        if o.dbgptr:
            e("s_cmp_lg_u32 s2, 0")
            e("s_cbranch_scc1 L_nodp")
            e("s_mov_b64 exec, -1")
            e("v_mov_b32 v2, 0")
            for i, r in enumerate((4, 5, 8, 9, 12, 13, 16, 17, 0, 1)):
                e(f"v_writelane_b32 v2, s{r}, {i}")
            e("v_mbcnt_lo_u32_b32 v3, -1, 0")
            e("v_lshlrev_b32 v3, 2, v3")
            e("s_mov_b64 exec, 0x3ff")
            e(f"buffer_store_dword v2, v3, s[{S_DBG}:{S_DBG + 3}], 0 offen offset:8")
            e("L_nodp:")
        if o.probe:
            idx, K = [int(v) for v in o.probe.split(",")]
            if idx == -6:
                pass
            elif idx == -5:
                e("s_cmp_ge_u32 s2, 8")
                e("s_cbranch_scc1 L_end")
            elif idx == -2:
                e("s_getreg_b32 s94, hwreg(HW_REG_XCC_ID)")
                e("s_xor_b32 s94, s94, s2")
                e("s_and_b32 s94, s94, 7")
                e("s_cbranch_scc0 L_end")
            elif idx == -3:
                e("s_cmp_lg_u32 s2, 0")
                e("s_cbranch_scc1 L_end")
            else:
                e(f"s_cmp_lg_u32 s2, {o.pwg}")
                e("s_cbranch_scc1 L_end")
            e(f"s_cmp_lg_u32 s{S_WAVE}, {o.pwave}")
            e("s_cbranch_scc1 L_end")
            if idx == -6:
                e(f"s_sub_u32 s96, s{S_STAMP + 20}, s{S_STAMP}")
                e(f"s_mul_i32 s96, s96, {K}")
            elif idx == -5:
                e("s_mov_b32 s96, 0")
                e("L_sk:")
                e("s_sleep 100")
                e("s_add_u32 s96, s96, 1")
                e("s_cmp_lt_u32 s96, 4")
                e("s_cbranch_scc1 L_sk")
                e(f"s_mov_b32 s94, {WS_STAMP}")
                e(f"buffer_load_dword v4, off, s[{S_WS}:{S_WS + 3}], s94 sc1")
                e("s_waitcnt vmcnt(0)")
                e("v_readfirstlane_b32 s94, v4")
                e(f"s_sub_u32 s95, s{S_STAMP}, s94")
                e(f"s_mul_i32 s95, s95, {K - 1}")
                e("s_add_u32 s96, s95, 8000")
            elif idx == -4:
                c0, c1, r0, r1 = ((11, 12, 0, 7), (12, 13, 7, 10))[K]
                e(f"s_sub_u32 s94, s{S_STAMP + 2 * c1}, s{S_STAMP + 2 * c0}")
                e(f"s_sub_u32 s95, s{S_STAMP + 2 * r1}, s{S_STAMP + 2 * r0}")
                e("v_cvt_f32_u32 v4, s94")
                e("v_cvt_f32_u32 v5, s95")
                e("v_rcp_f32 v5, v5")
                e("s_nop 1")
                e("v_mul_f32 v4, v4, v5")
                e("v_mul_f32 v4, 0x44fa0000, v4")
                e("v_cvt_u32_f32 v4, v4")
                e("s_nop 1")
                e("v_readfirstlane_b32 s96, v4")
                e("s_sub_u32 s96, s96, 31000")
            elif idx <= -10:
                e(f"s_bfe_u32 s94, s{-idx - 10}, {(7 << 16)} + {K}")
                e("s_mul_i32 s96, s94, 200")
                e("s_add_u32 s96, s96, 5000")
            elif idx == -3:
                e("s_getreg_b32 s94, hwreg(HW_REG_XCC_ID)")
                e("s_and_b32 s94, s94, 7")
                e(f"s_mul_i32 s96, s94, {K}")
                e("s_add_u32 s96, s96, 5000")
            elif idx < 0:
                e(f"s_mov_b32 s96, {K}")
            else:
                e(f"s_sub_u32 s96, s{S_STAMP + 2 * idx}, s{S_STAMP + 2 * o.pref}")
                e(f"s_mul_i32 s96, s96, {K}")
                if o.pref:
                    e("s_add_u32 s96, s96, 5000")
            e("s_min_u32 s96, s96, 200000")
            e("L_probe:")
            e("s_memrealtime s[98:99]")
            e("s_waitcnt lgkmcnt(0)")
            e(f"s_sub_u32 s98, s98, s{S_STAMP}")
            e("s_cmp_lt_u32 s98, s96")
            e("s_cbranch_scc1 L_probe")
        e("L_end:")
        e("s_endpgm")

        e("@@ROLE")
        e(".p2align 7")
        e("L_role:")
        e("s_load_dwordx4 s[44:47], s[0:1], 32")
        e(f"s_lshr_b32 s{S_V + 1}, s2, 3")
        e(f"s_and_b32 s{S_T1}, s2, 1")
        e(f"s_lshl1_add_u32 s{S_T1}, s{S_T1}, 1")
        e(f"s_mul_i32 s{S_T2}, s2, 0x104100")
        e(f"s_cmp_eq_u32 s2, {NVOTE_WG}")
        e("s_waitcnt lgkmcnt(0)")
        e("s_cbranch_scc1 L_tag")
        e(f"s_sub_u32 s{S_T0}, s{S_OUT}, s{S_X}")
        e(f"s_addk_i32 s{S_T0}, 2048")
        e(f"s_bitcmp1_b32 s{S_T0}, 12")
        e(f"s_cselect_b32 s{S_V}, {o.qout}, {o.qgen}")
        e(f"s_cselect_b32 s{S_V + 2}, s{S_V + 1}, 1")
        e(f"s_cmp_eq_u32 s{S_V + 2}, 2")
        e(f"s_cselect_b32 s{S_V + 1}, s{S_T1}, s{S_V + 1}")
        e(f"s_bitcmp1_b32 s{S_V + 1}, 0")
        e(f"s_cselect_b64 s[{S_W}:{S_W + 1}], s[8:9], s[4:5]")
        e(f"s_lshr_b32 s{S_T1}, s{S_V + 1}, 1")
        e(f"s_lshl_b32 s{S_T1}, s{S_T1}, 25" if o.bfirst else f"s_lshl_b32 s{S_T1}, 0x2000000, s{S_T1}")
        e(f"s_add_u32 s{S_T2}, s{S_T2}, s{S_T1}")
        e(f"s_lshr_b32 s{S_T0}, s{S_OUT}, 7")
        e(f"s_mul_i32 s{S_T0}, s{S_T0}, 21")
        e(f"s_and_b32 s{S_T0}, s{S_T0}, 63")
        e(f"s_mulk_i32 s{S_T0}, 384")
        e(f"s_add_u32 s{S_T0}, s{S_T0}, s{S_T2}")
        e(f"s_cmp_lg_u32 s{S_V + 2}, 0")
        e(f"s_cselect_b32 s{S_V + 3}, s{S_OUT}, 0")
        e("s_cbranch_scc1 L_notws")
        e(f"s_mov_b64 s[{S_W}:{S_W + 1}], s[46:47]")
        e(f"s_mov_b32 s{S_V}, {o.qws}")
        e(f"s_and_b32 s{S_T0}, s{S_T2}, 0xfffff")
        e(f"s_add_u32 s{S_T0}, s{S_T0}, {WS_PROBE}")
        e("L_notws:")
        e(f"s_add_u32 s{S_T1}, s{S_T0}, 8192")
        self.stamp(1, True)
        e(f"s_load_dword s42, s[{S_W}:{S_W + 1}], s{S_T0} glc")
        e(f"s_load_dword s43, s[{S_W}:{S_W + 1}], s{S_T1} glc")
        e(f"s_mov_b32 s{S_CNT}, {-(NRACE // 2)}")
        if o.dpf:
            e(f"s_load_dword s23, s[44:45], 192 glc")
        for k in range(NRACE):
            e("s_waitcnt lgkmcnt(0)")
            if k < 2:
                self.stamp(2 + k, True)
                if o.vdiag:
                    e("s_waitcnt lgkmcnt(0)")
            first, second = (S_T0, S_T1) if k % 2 == 0 else (S_T1, S_T0)
            e(f"s_load_dword s42, s[{S_W}:{S_W + 1}], s{first} glc")
            e(f"s_load_dword s43, s[{S_W}:{S_W + 1}], s{second} glc")
            e("s_waitcnt lgkmcnt(1)")
            e("s_nop 7")
            e(f"s_getreg_b32 s{S_T2}, hwreg(HW_REG_IB_STS, 8, 4)   ; 1: the second answer is still out")
            if k % 2 == 0:
                e(f"s_xor_b32 s{S_T2}, s{S_T2}, 1")
            e(f"s_add_u32 s{S_CNT}, s{S_CNT}, s{S_T2}")
        assert NRACE % 2 == 0 and o.qout <= 12 and o.qws <= 8 and o.qgen <= 8 and NVOTE_WG == 32
        e(f"s_sub_u32 s{S_T2}, 0, s{S_CNT}")
        e(f"s_add_u32 s{S_T0}, s{S_T0}, s{S_V + 3}")
        e(f"s_lshr_b32 s{S_T0}, s{S_T0}, 19")
        e(f"s_getreg_b32 s{S_T1}, hwreg(HW_REG_XCC_ID, 0, 3)")
        e(f"s_xor_b32 s{S_T0}, s{S_T0}, s{S_T1}")
        e(f"s_bitcmp1_b32 s{S_T0}, 2")
        e(f"s_cselect_b32 s{S_CNT}, s{S_T2}, s{S_CNT}")
        e(f"s_lshl_b32 s{S_CNT}, s{S_CNT}, 8")
        e(f"s_or_b32 s{S_CNT}, s{S_CNT}, 1")
        e(f"s_mov_b32 s{S_T1}, s{S_CNT}")
        e(f"s_lshl2_add_u32 s{S_T0}, s{S_V + 1}, {DBG_TAL}")
        self.stamp(6, True)
        e(f"s_atomic_add s{S_T1}, s[44:45], s{S_T0} glc")
        e(f"s_mul_i32 s{S_T2}, s{S_V + 1}, 6")
        e("s_waitcnt lgkmcnt(0)")
        e(f"s_add_u32 s{S_T1}, s{S_T1}, s{S_CNT}")
        self.stamp(13)
        e(f"s_and_b32 s{S_T0}, s{S_T1}, 0xff")
        e(f"s_cmp_lg_u32 s{S_T0}, s{S_V}")
        e("s_cbranch_scc1 L_stream")
        e(f"s_cmp_gt_i32 s{S_T1}, 0xff")
        e(f"s_cselect_b32 s{S_T1}, 3, 1")
        e(f"s_add_u32 s{S_T2}, s{S_T2}, 11")
        e(f"s_lshl_b32 s{S_T1}, s{S_T1}, s{S_T2}")
        e("L_publish:")
        e(f"s_atomic_add s{S_T1}, s[44:45], {DBG_RES}")
        e("s_waitcnt lgkmcnt(0)")
        e("s_branch L_stream")

        e("L_tag:")
        e(f"s_mov_b32 s{S_T1}, 1")
        e("s_waitcnt lgkmcnt(0)")
        e(f"s_atomic_add s{S_T1}, s[46:47], {WS_E} glc")
        e("s_waitcnt lgkmcnt(0)")
        e(f"s_add_u32 s{S_T1}, s{S_T1}, 1")
        e(f"s_and_b32 s{S_T1}, s{S_T1}, 0xff")
        e(f"s_bitset1_b32 s{S_T1}, 8")
        assert NVOTE_WG % 8 == 0
        e(f"s_getreg_b32 s{S_T0}, hwreg(HW_REG_XCC_ID, 0, 3)")
        e(f"s_lshl_b32 s{S_T0}, s{S_T0}, 13")
        e(f"s_or_b32 s{S_T1}, s{S_T1}, s{S_T0}")
        self.stamp(13)
        e("s_branch L_publish")

        e("@@RARE")
        if o.hmax:
            e("L_exact:")
            for jj in range(16):
                mpair(D0 + 8 * jj, D0 + 8 * jj + 4, jj == 0, False)
            mscatter()
            e("s_branch L_maxok")
        if o.clean in ("a", "h"):
            e("L_clean0:")
            clean1()
            e("s_branch L_join")
        for nm in ("r", "q0", "q1"):
            k = nm[1:]
            e(f"L_{nm[0]}long{k}:")
            e("s_waitcnt vmcnt(0)")
            e(f"s_cmp_lg_u32 s{S_HOOK}, 0")
            e(f"s_cbranch_scc1 L_{nm[0]}got{k}")
            e(f"s_call_b64 s[{S_RET}:{S_RET + 1}], L_flush")
            e(f"s_branch L_{nm[0]}poll{k}")
        e("L_flush:")
        e(f"s_mov_b32 s{S_CNT}, {SPIN}")
        e(f"s_mov_b32 s{S_HOOK}, {SPIN}")
        e("s_mov_b32 exec_lo, -1")
        e("s_mov_b32 exec_hi, 0xffff")
        e("v_lshlrev_b32 v13, 4, v1")
        e("L_floop:")
        e(f"buffer_load_dwordx4 v[8:11], v13, s[{S_WS}:{S_WS + 3}], s{S_PO} offen sc1")
        e(f"buffer_load_dwordx4 v[4:7], v13, s[{S_WS}:{S_WS + 3}], s{S_PO} offen offset:768 sc1")
        e(f"s_sub_u32 s{S_HOOK}, s{S_HOOK}, 1")
        e("s_waitcnt vmcnt(0)")
        e(f"v_xor_b32 v12, s{S_TG[0]}, v8")
        for r in (9, 10, 11, 4, 5, 6, 7):
            e(f"v_bitop3_b32 v12, v12, v{r}, s{S_TG[r & 3]} bitop3:0xf6")
        e("v_and_b32 v12, 15, v12")
        e("v_cmp_ne_u32 vcc, 0, v12")
        e("s_cbranch_scc1 L_fdone")
        e("s_cbranch_vccnz L_floop")
        e("L_fdone:")
        e(f"buffer_store_dwordx4 v[8:11], v13, s[{S_WS}:{S_WS + 3}], s{S_PO} offen sc1")
        e(f"buffer_store_dwordx4 v[4:7], v13, s[{S_WS}:{S_WS + 3}], s{S_PO} offen offset:768 sc1")
        e("s_waitcnt vmcnt(0)")
        e("s_mov_b64 exec, -1")
        e(f"s_mov_b32 s{S_HOOK}, -1")
        e(f"s_setpc_b64 s[{S_RET}:{S_RET + 1}]")

        e("@@DPOLL")
        e("L_dpoll:")
        e(f"s_mov_b32 s{S_CNT}, {SPIN}")
        e(f"v_mov_b32 v{V_AT}, 0")
        e("s_mov_b64 exec, 1")
        e("L_dloop:")
        e(f"buffer_load_dword v{V_AT}, off, s[{S_DBG}:{S_DBG + 3}], 0 offset:{DBG_RES} sc1")
        e(f"s_sleep {o.dsleep}")
        e("s_waitcnt vmcnt(24)")
        e(f"v_readfirstlane_b32 s{S_T2}, v{V_AT}          ; whatever poll has landed last")
        e(f"s_sub_u32 s{S_CNT}, s{S_CNT}, 1")
        e("s_cbranch_scc1 L_dgot")
        e(f"s_andn2_b32 s{S_OFF}, s{S_OK}, s{S_T2}")
        e("s_cbranch_scc1 L_dloop")
        e("L_dgot:")
        e("s_mov_b64 exec, -1")
        e("s_branch L_decided")

        e("@@END")
        L = self.lines
        ix = {k: L.index("    @@" + k) for k in ("ROLE", "RARE", "DPOLL", "END")}
        role, rare, dpoll = L[ix["ROLE"] + 1:ix["RARE"]], L[ix["RARE"] + 1:ix["DPOLL"]], L[ix["DPOLL"] + 1:ix["END"]]
        main = L[:ix["ROLE"]]
        p1, p2 = main.index("    @@HERE1"), main.index("    @@HERE2")
        if o.lay:
            self.lines = (main[:p1] + ["    s_branch L_skip1"] + role + dpoll + ["L_skip1:"] + main[p1 + 1:p2]
                          + ["    s_branch L_tail"] + rare + ["    .p2align 12", "L_tail:"] + main[p2 + 1:])
        else:
            self.lines = main[:p1] + main[p1 + 1:p2] + main[p2 + 1:] + role + rare + dpoll

    def text(self):
        out = HEADER
        out += f"; @launch grid=({NWG},1,1) block=(768,1,1) lds={L_TOTAL}\n"
        out += '.amdgcn_target "amdgcn-amd-amdhsa--gfx950"\n.text\n'
        out += f".globl {KNAME}\n.p2align 8\n.type {KNAME},@function\n{KNAME}:\n"
        out += "\n".join(self.lines) + "\n"
        out += f""".section .rodata,"a"
.p2align 6
.amdhsa_kernel {KNAME}
  .amdhsa_next_free_vgpr 168
  .amdhsa_next_free_sgpr {100 if self.o.stamps else 96 if self.o.xfer else 56}
  .amdhsa_accum_offset 168
  .amdhsa_group_segment_fixed_size 0
  .amdhsa_kernarg_size 48
  .amdhsa_user_sgpr_count 2
  .amdhsa_user_sgpr_kernarg_segment_ptr 1
  .amdhsa_system_sgpr_workgroup_id_x 1
  .amdhsa_float_denorm_mode_32 3
.end_amdhsa_kernel
"""
        return out


def main():
    p = argparse.ArgumentParser()
    p.add_argument("-o", default="standalone__channel_attn_cbam__vision.s")
    p.add_argument("--ldflags", default="nt")
    p.add_argument("--stflags", default="sc1")
    p.add_argument("--p1flags", default="sc1")
    p.add_argument("--stamps", action="store_true")
    p.add_argument("--probe", default="")
    p.add_argument("--depth", type=int, default=10)
    p.add_argument("--nrace", type=int, default=2)
    p.add_argument("--dsleep", type=int, default=8)
    p.add_argument("--trace", default="")
    p.add_argument("--nodec", action="store_true")
    p.add_argument("--vdiag", action="store_true")
    p.add_argument("--dbgptr", action="store_true")
    p.add_argument("--opp", default="5,9", type=lambda v: [int(x) for x in v.split(",")])
    p.add_argument("--quorum", type=int, default=16)
    p.add_argument("--quorum4", type=int, default=24)
    p.add_argument("--nvote", type=int, default=32)
    p.add_argument("--nagn", type=int, default=6)
    p.add_argument("--stlim", type=int, default=0)
    p.add_argument("--psc1", action="store_true")
    p.add_argument("--pnt", action="store_true")
    p.add_argument("--hookpos", type=int, default=0)
    p.add_argument("--hmax", type=int, default=0)
    p.add_argument("--msum", type=int, default=1)
    p.add_argument("--last", type=int, default=1)
    p.add_argument("--h6", type=int, default=0)
    p.add_argument("--bfirst", default="")
    p.add_argument("--q2", type=int, default=0)
    p.add_argument("--xfer", type=int, default=0)
    p.add_argument("--xpos", type=int, default=26)
    p.add_argument("--xspos", type=int, default=26)
    p.add_argument("--qout", type=int, default=7)
    p.add_argument("--qws", type=int, default=4)
    p.add_argument("--qgen", type=int, default=5)
    p.add_argument("--jorder", default="12,0,13,1,14,2,15,3,16,4,17,5,18,6,19,7,20,8,21,9,22,10,23,11,24,25,26,27,28,29,30,31")
    p.add_argument("--urot", type=int, default=0)
    p.add_argument("--lmap", type=int, default=0)
    p.add_argument("--qrot", type=int, default=0)
    p.add_argument("--umap", type=int, default=0)
    p.add_argument("--cfull", type=int, default=1)
    p.add_argument("--wtouch", type=int, default=1)
    p.add_argument("--lay", type=int, default=1)
    p.add_argument("--skipfrom", type=int, default=99)
    p.add_argument("--ttail", type=int, default=0)
    p.add_argument("--tlb", type=int, default=0)
    p.add_argument("--rot", type=int, default=0)
    p.add_argument("--pad", type=int, default=0)
    p.add_argument("--lpf", type=int, default=0)
    p.add_argument("--al", type=int, default=0)
    p.add_argument("--cap", type=int, default=0)
    p.add_argument("--capfrom", type=int, default=12)
    p.add_argument("--capto", type=int, default=32)
    p.add_argument("--skewa", type=int, default=1)
    p.add_argument("--skewd", type=int, default=1)
    p.add_argument("--skewc", type=int, default=0)
    p.add_argument("--skew", type=int, default=0, help="timing diagnostic only")
    p.add_argument("--warmfl", default="")
    p.add_argument("--sdiag", action="store_true")
    p.add_argument("--rpf", type=int, default=0)
    p.add_argument("--dpf", type=int, default=0)
    p.add_argument("--pwg", type=int, default=0)
    p.add_argument("--pwave", type=int, default=0)
    p.add_argument("--pref", type=int, default=0)
    p.add_argument("--qshift", type=int, default=32)
    p.add_argument("--rolepos", type=int, default=-1)
    p.add_argument("--prebar", type=int, default=1)
    p.add_argument("--qmap", type=int, default=0)
    p.add_argument("--agnu", type=int, default=4)
    p.add_argument("--warmst", type=int, default=0)
    p.add_argument("--cw", type=int, default=0)
    p.add_argument("--cld", action="store_true")
    p.add_argument("--qflip", type=int, default=0)
    p.add_argument("--qcopy", type=int, default=4)
    p.add_argument("--mul", default="dot")
    p.add_argument("--burst", type=int, default=32)
    p.add_argument("--idleclk", type=int, default=0)
    p.add_argument("--clk", action="store_true")
    p.add_argument("--sthr", type=int, default=0)
    p.add_argument("--sbar", default=[24], type=lambda v: [int(x) for x in v.split(",")])
    p.add_argument("--piece", type=int, default=128)
    p.add_argument("--xbar", default=[20, 24], type=lambda v: [int(x) for x in v.split(",")])
    p.add_argument("--cpf", type=int, default=0)
    p.add_argument("--cpfpos", type=int, default=0)
    p.add_argument("--wpace", type=int, default=40)
    p.add_argument("--clean", default="g")
    p.add_argument("--warm", type=int, default=30)
    p.add_argument("--warmwave", type=int, default=4)
    p.add_argument("--qsleep", type=int, default=0)
    p.add_argument("--red0", type=int, default=8)
    p.add_argument("--redstep", type=int, default=2)
    p.add_argument("--off", default="", help="diagnostics: v = no votes, c = no clears, r = result not read")
    p.add_argument("--spans", default="")
    p.add_argument("--split", action="store_true")
    p.add_argument("--pfback", type=int, default=0)
    p.add_argument("--nplain", type=int, default=0)
    p.add_argument("--wb", default="", help="minwave,wglimit,pos")
    p.add_argument("--thr", type=int, default=2)
    p.add_argument("--thrfrom", type=int, default=12)
    p.add_argument("--thrto", type=int, default=26)
    p.add_argument("--thrmask", default="0x55")
    p.add_argument("--zorder", default="8,0,9,1,10,2,11,3,12,4,13,5,14,6,15,7")
    o = p.parse_args()
    global NAGN, SPANS, NVOTE_WG
    NVOTE_WG = o.nvote
    NAGN = o.nagn
    if NAGN == 6:
        SPANS = [(0, 0), (0, 1), (1, 0), (1, 1), (2, 0), (2, 1),
                 (3, 0), (3, 1), (4, 0), (4, 1), (5, 0), (5, 1), (6, 0), (6, 1), (7, 0), (7, 1)]
        if o.zorder == p.get_default("zorder"):
            o.zorder = "6,0,7,1,8,2,9,3,10,4,11,5,12,13,14,15"
    if o.bfirst:
        st = [int(c) for c in o.bfirst]
        SPANS = [(a, h) for a in st for h in (0, 1)]
        o.agn0 = st[0] * 12 * MiB
    if o.xfer:
        global L_TOTAL
        L_TOTAL = L_X + 12288
        SPANS[14], SPANS[15] = SPANS[15], SPANS[14]
    if o.spans:
        SPANS = [(int(v[0]), int(v[1])) for v in o.spans.split(",")]
        assert sorted(SPANS) == [(a, b) for a in range(8) for b in range(2)]
    g = G(o)
    g.build()
    open(o.o, "w").write(g.text())


if __name__ == "__main__":
    main()
```

```python
import argparse

KNAME = "standalone__channel_attn_cbam__vision_kernel"

HEADER = """; Kernarg layout for this problem (48 bytes, ptrs only, base s[0:1]):
;   offset   0: d_in[0] x  shape=(1, 512, 512, 192) dtype=bfloat16 strides=(100663296, 196608, 384, 2) contiguous=True
;   offset   8: d_in[1] w1  shape=(192, 48) dtype=bfloat16 strides=(96, 2) contiguous=True
;   offset  16: d_in[2] w2  shape=(48, 192) dtype=bfloat16 strides=(384, 2) contiguous=True
;   offset  40: d_ws      402653184 bytes workspace (unspecified values whenever your kernel or launch list starts; a list's later launches find what earlier ones wrote)
"""

DOC = '''; ---------------------------------------------------------------------------------------------
; x (96 MiB) is read once and stays in registers (128 VGPRs per lane) across a grid-wide
; all-reduce of the per-channel sum and max; every workgroup then runs the small MLP (MFMA),
; scales its registers and writes them out.  A lane always holds the same eight channels; the
; sums are accumulated in f32 by MFMA against a 0/1 selector, the maxes on the VALU.
;
; Which rows a workgroup owns.  The first 36 MiB are dealt out statically.  The rest is shared by
; and writes across them are slow): wave 0 of the first 32 workgroups times two lines against
;
; All-reduce.  Stage 1: the 32 workgroups with the same b % 8 leave 12 lines each in d_ws and
; Stage 1 uses plain stores, which a reader on the same die sees in L2; if a wait lasts, every
; ---------------------------------------------------------------------------------------------
'''

X_BYTES = 100663296
NWG = 256
NRED = 12
MiB = 1 << 20

L_RED = 0
L_H = 6144
L_CNT = 6336
L_S = 6400
L_F = 7168
L_W1 = 8192
L_W2 = L_W1 + 18432
L_SPILL = L_W2 + 18432
L_X = L_SPILL + 3 * 8192
L_TOTAL = L_X

WS_P = 0
WS_Q = 256 * 1536
WS_E = WS_Q + 4 * 49152
WS_USED = WS_E + 128
WS_PROBE = 640 * 1024
WS_STAMP = 1 << 20

S_X, S_OUT, S_WS, S_DBG, S_W = 4, 8, 12, 16, 20
S_WAVE, S_TY, S_SUB, S_OFF, S_MASK, S_CNT, S_T0, S_T1 = 28, 29, 30, 31, 32, 33, 34, 35
S_BASE, S_PM, S_P, S_T2 = 48, 49, 50, 51
S_AGN, S_RID, S_PO = 40, 42, 43
S_TG = [41, 47, 3, 0]
S_RET, S_HOOK, S_QC = 38, 46, 1
S_BASE1 = 45
NFB = 48
S_STAMP = 52
S_V = 24

D0 = 40
SPIN = 2000000
V_L, V_G0, V_G1, V_AT = 0, 39, 38, 36

NAGN = 8
SPANS = [(0, 0), (0, 1), (1, 0), (1, 1), (2, 0), (2, 1), (3, 0), (3, 1),
         (6, 0), (4, 0), (6, 1), (4, 1), (7, 0), (5, 0), (7, 1), (5, 1)]
W_ROLE = 0
DBG_RES, DBG_TAL = 0, 128
NVOTE_WG = 32
RES_OK = (1 << 8) | (1 << 11) | (1 << 17) | (1 << 29)
S_OK = 44
S_XR, S_XO, S_XP = 92, 93, 91


def mask(pred):
    return sum(1 << z for z, s in enumerate(SPANS) if pred(z, s))


class G:
    def __init__(self, o):
        self.o = o
        self.lines = []

    def e(self, s=""):
        self.lines.append(("    " + s) if s and not s.endswith(":") else s)

    def stamp(self, idx, vote=False):
        if self.o.clk:
            if idx in (11, 12, 13):
                return
            m = {0: 11, 7: 12, 10: 13}.get(idx)
            if m:
                self.e(f"s_memtime s[{S_STAMP + 2 * m}:{S_STAMP + 2 * m + 1}]")
        if vote == "r":
            vote = False
        if self.o.vdiag and idx in (1, 2, 3, 6) and not vote:
            return
        if vote and not self.o.vdiag:
            return
        if self.o.stamps and not (self.o.trace and idx > 10):
            self.e(f"s_memrealtime s[{S_STAMP + 2 * idx}:{S_STAMP + 2 * idx + 1}]")

    def srd(self, d, lo, nbytes):
        e = self.e
        e(f"s_mov_b64 s[{d}:{d + 1}], s[{lo}:{lo + 1}]")
        e(f"s_mov_b32 s{d + 2}, {nbytes}")
        e(f"s_mov_b32 s{d + 3}, 0x20000")

    def span_off(self, z):
        return SPANS[z][0] * 12 * MiB + SPANS[z][1] * 49152

    def mem(self, j, fn):
        e = self.e
        z, u = j >> 1, j & 1
        if z < NAGN:
            if self.o.bfirst:
                off = SPANS[z][0] * 12 * MiB + (j % 4) * 12288 - self.o.agn0
            else:
                off = (j // self.o.agnu) * (self.o.agnu * 3 * MiB - (self.o.skew if self.o.skewa else 0)) + (j % self.o.agnu) * 12288
            so = f"s{S_OFF}" if off else f"s{S_AGN}"
            if off:
                e(f"s_add_u32 s{S_OFF}, s{S_AGN}, {off}")
            if SPANS[z] == (7, 1):
                at = 2 + u
                e(f"v_add_u32 v{at}, {so}, v{V_L}")
                e(f"v_subrev_u32 v{5 - at}, s{S_X + 2}, v{at}")
                e(f"v_min_u32 v{at}, v{at}, v{5 - at}             ; past the end: wrap to the rows the shift skipped")
                fn(f"v{at}", "0")
            else:
                fn(f"v{V_L}", so)
            return
        if getattr(self, "pz", None) != z:
            e(f"s_bitcmp1_b32 s{S_PM}, {z}")
            e(f"s_cselect_b32 s{S_P}, 24576, 0")
            self.pz = z
        e(f"s_add_u32 s{S_OFF}, s{(S_BASE, S_BASE1)[SPANS[z][1]]}, {SPANS[z][0] * 12 * MiB - self.o.skew * (SPANS[z][0] * self.o.skewd + self.o.skewc) + 12288 * u}")
        at = 2 + u
        if self.o.xfer and j == 31:
            e(f"s_cmp_eq_u32 s{S_XR}, 1")
            e(f"s_cselect_b32 s{S_P}, 0x40000000, s{S_P}")
            self.pz = None
        e(f"v_xad_u32 v{at}, v{(V_G0, V_G1)[u]}, s{S_P}, v{V_L}")
        if SPANS[z] == (7, 1):
            e(f"v_add_u32 v{at}, s{S_OFF}, v{at}")
            e(f"v_subrev_u32 v{5 - at}, s{S_X + 2}, v{at}")
            e(f"v_min_u32 v{at}, v{at}, v{5 - at}             ; past the end: wrap to the rows the shift skipped")
            fn(f"v{at}", "0")
        else:
            fn(f"v{at}", f"s{S_OFF}")

    def trace(self, kind, n):
        if self.o.trace == kind:
            if n > 0:
                self.e("s_waitcnt lgkmcnt(0)")
                self.e(f"s_mov_b32 s{76 + n - 1}, s92")
            self.e("s_memrealtime s[92:93]")

    def build(self):
        o, e = self.o, self.e
        NRACE = o.nrace
        ldf = (" " + o.ldflags) if o.ldflags else ""
        stf = (" " + o.stflags) if o.stflags else ""

        self.stamp(0)
        e("s_load_dwordx2 s[4:5], s[0:1], 0          ; x")
        e("s_load_dwordx2 s[8:9], s[0:1], 24         ; out")
        e("v_readfirstlane_b32 s%d, v0" % S_WAVE)
        e("v_and_b32 v1, 63, v0                      ; lane")
        pl = (o.piece // 16).bit_length() - 1
        e(f"v_bfe_u32 v2, v0, {pl}, {6 - pl}")
        e(f"v_mul_u32_u24 v2, {(3 * o.piece, 1536, 768, 384)[o.lmap]}, v2")
        e(f"v_and_b32 v3, {(1 << pl) - 1}, v0")
        e("s_cmpk_ge_u32 s2, %d" % NWG)
        e("s_cbranch_scc1 L_end")
        if o.rot:
            e(f"s_add_u32 s2, s2, {o.rot}")
            e("s_and_b32 s2, s2, 255")
        if o.rolepos < 0:
            e(f"s_lshl2_add_u32 s{S_T1}, s{S_WAVE}, s2")
            e(f"s_cmp_le_u32 s{S_T1}, {NVOTE_WG}              ; wave 0 of the first workgroups has a side job")
            e("s_cbranch_scc1 L_role")
            e("L_stream:")
        if o.lmap == 1:
            e("v_lshl_add_u32 v0, v3, 4, v2")
            e(f"v_lshl_add_u32 v{V_L}, s{S_WAVE}, 1, v0")
            e(f"s_lshr_b32 s{S_WAVE}, s{S_WAVE}, 6")
        elif o.lmap == 3:
            e(f"s_lshr_b32 s{S_TY}, s{S_WAVE}, 8")
            e(f"s_lshr_b32 s{S_WAVE}, s{S_WAVE}, 6")
            e(f"s_and_b32 s{S_SUB}, s{S_WAVE}, 3              ; sub = wave % 4")
            e(f"s_mul_i32 s{S_T0}, s{S_SUB}, 24")
            e(f"s_add_u32 s{S_T0}, s{S_T0}, s{S_TY}")
            e("v_lshl_add_u32 v0, v3, 4, v2")
            e(f"v_lshl_add_u32 v{V_L}, s{S_T0}, 7, v0")
        elif o.lmap == 2:
            e(f"s_lshr_b32 s{S_WAVE}, s{S_WAVE}, 6")
            e(f"s_cmp_ge_u32 s{S_WAVE}, 6")
            e(f"s_cselect_b32 s{S_T0}, 42, 0")
            e(f"s_add_u32 s{S_T0}, s{S_T0}, s{S_WAVE}")
            e("v_lshl_add_u32 v0, v3, 4, v2")
            e(f"v_lshl_add_u32 v{V_L}, s{S_T0}, 7, v0")
        else:
            e(f"s_lshr_b32 s{S_WAVE}, s{S_WAVE}, 6")
            e(f"s_mul_i32 s{S_SUB}, s{S_WAVE}, 43")
            e(f"s_lshr_b32 s{S_SUB}, s{S_SUB}, 7")
            e(f"s_mul_i32 s{S_T0}, s{S_SUB}, {3072 // o.piece - 3}")
            e(f"s_add_u32 s{S_T0}, s{S_T0}, s{S_WAVE}        ; sub*24 + wave % 3")
            e(f"s_lshl_b32 s{S_T0}, s{S_T0}, {pl + 4}")
            e("v_lshl_add_u32 v0, v3, 4, v2")
            e(f"v_add_u32 v{V_L}, s{S_T0}, v0               ; + sub*3072 + (wave % 3)*128")
        if o.umap == 1:
            pass
        elif o.umap >= 2:
            e("; unit = row*8 + ((b*mul + row*rot) & 7)")
            mul, rot = (o.umap >> 4) | 1, o.umap & 7
            e(f"s_lshr_b32 s{S_T1}, s2, 3")
            e(f"s_mul_i32 s{S_T1}, s{S_T1}, {rot}")
            e(f"s_mul_i32 s{S_T0}, s2, {mul}")
            e(f"s_add_u32 s{S_T0}, s{S_T0}, s{S_T1}")
            e(f"s_and_b32 s{S_T0}, s{S_T0}, 7")
            e(f"s_and_b32 s{S_T1}, s2, -8")
            e(f"s_add_u32 s{S_T0}, s{S_T0}, s{S_T1}")
        elif o.qmap == 0:
            e("; 48 KiB unit of this workgroup: pair q = (b>>3)*4 + (b&3), side = (b>>2)&1, unit = 2q + side")
            e(f"s_and_b32 s{S_T0}, s2, 3")
            e(f"s_bfe_u32 s{S_T1}, s2, 0x10002")
            e(f"s_lshl1_add_u32 s{S_T0}, s{S_T0}, s{S_T1}")
            if o.urot:
                e(f"s_lshr_b32 s{S_T1}, s2, {o.urot & 15}")
                if o.urot >> 4:
                    e(f"s_lshl_b32 s{S_T1}, s{S_T1}, {o.urot >> 4}")
                e(f"s_add_u32 s{S_T0}, s{S_T0}, s{S_T1}")
                e(f"s_and_b32 s{S_T0}, s{S_T0}, 7")
            e(f"s_and_b32 s{S_T1}, s2, -8")
            e(f"s_add_u32 s{S_T0}, s{S_T0}, s{S_T1}")
        else:
            e("; unit of this workgroup: neighbours in memory share b % 8")
            e(f"s_and_b32 s{S_T0}, s2, 7")
            e(f"s_lshl_b32 s{S_T0}, s{S_T0}, 5")
            e(f"s_lshr_b32 s{S_T1}, s2, 3")
            e(f"s_add_u32 s{S_T0}, s{S_T0}, s{S_T1}")
        e(f"s_mul_i32 s{S_AGN}, s{2 if o.umap == 1 else S_T0}, {o.agnu * 12288}")
        if o.bfirst:
            e(f"s_add_u32 s{S_AGN}, s{S_AGN}, {o.agn0}")
        e(f"s_mov_b32 s{S_X + 2}, {X_BYTES}")
        e(f"s_mov_b32 s{S_X + 3}, 0x20000")
        if o.rolepos >= 0:
            e(f"s_lshl_b32 s{S_T1}, s{S_WAVE}, 8")
            e(f"s_or_b32 s{S_T1}, s{S_T1}, s2")
        if o.sdiag:
            self.stamp(6, True)
        e("s_waitcnt lgkmcnt(0)")
        if o.sdiag:
            self.stamp(1, True)
        e(f"s_lshr_b32 s{S_T0}, s{S_OUT}, 7")
        e(f"s_mul_i32 s{S_T0}, s{S_T0}, 21              ; -43 mod 64")
        e(f"s_and_b32 s{S_T0}, s{S_T0}, 63")
        e(f"s_mulk_i32 s{S_T0}, 384")
        e(f"s_add_u32 s{S_AGN}, s{S_AGN}, s{S_T0}")
        assert W_ROLE == 0

        e("; ---- load + reduce pipeline.  sums v[4:7] (selector v[8:11]), maxes v[12:19], temps from v20")
        SUM, MAX, T = 4, 12, 20
        DEPTH = o.depth
        seq = []

        def issue(j):
            if j == o.rolepos:
                e(f"s_cmp_le_u32 s{S_T1}, {NVOTE_WG}              ; wave 0 of the first workgroups has a side job")
                e("s_cbranch_scc1 L_role")
                e("L_stream:")
            if o.cpf and j == o.cpfpos:
                e("; wave 1 of the first workgroups pulls the kernel's code into this die's L2 (values unused)")
                e(f"s_sub_u32 s{S_T1}, s{S_T1}, 256")
                e(f"s_cmp_ge_u32 s{S_T1}, {o.cpf}")
                e("s_cbranch_scc1 L_nocpf")
                e("s_getpc_b64 s[20:21]")
                e("v_lshlrev_b32 v2, 7, v1")
                e("v_add_u32 v3, 8192, v2")
                e("v_min_u32 v3, L_codeend - L_nocpf, v3")
                e("global_load_dword v36, v2, s[20:21]")
                e("global_load_dword v37, v3, s[20:21]")
                e("L_nocpf:")
            if j == max(4, o.rolepos):
                e("s_load_dwordx4 s[36:39], s[0:1], 8        ; w1, w2")
                e(f"s_load_dwordx2 s[{S_DBG}:{S_DBG + 1}], s[0:1], 32")
                e(f"s_load_dwordx2 s[{S_WS}:{S_WS + 1}], s[0:1], 40")
                if not (o.msum and o.mul == "dot"):
                    e(f"s_mov_b32 s{S_MASK}, 0xffff0000")
            if j == (o.hookpos or 2 * NAGN):
                if o.lmap in (1, 2):
                    e(f"s_mul_i32 s{S_SUB}, s{S_WAVE}, 43")
                    e(f"s_lshr_b32 s{S_SUB}, s{S_SUB}, 7")
                if o.lmap != 3:
                    e(f"s_mul_i32 s{S_TY}, s{S_SUB}, 3")
                    e(f"s_sub_u32 s{S_TY}, s{S_WAVE}, s{S_TY}        ; ty = wave % 3")
                e(f"s_mov_b32 s{S_OUT + 2}, s{S_X + 2}")
                e(f"s_mov_b32 s{S_OUT + 3}, s{S_X + 3}")
                e(f"s_mov_b32 s{S_WS + 2}, {(2 << 20) if o.stamps else WS_USED}")
                e(f"s_mov_b32 s{S_WS + 3}, s{S_X + 3}")
                e(f"s_movk_i32 s{S_DBG + 2}, 256")
                e(f"s_mov_b32 s{S_DBG + 3}, s{S_X + 3}")
                e(f"s_movk_i32 s{S_T2}, 24576")
                e(f"v_bfe_u32 v{V_G0}, v{V_L}, 13, 1")
                e(f"v_add_u32 v{V_G1}, 12288, v{V_L}")
                e(f"v_bfe_u32 v{V_G1}, v{V_G1}, 13, 1")
                e(f"v_mul_u32_u24 v{V_G0}, s{S_T2}, v{V_G0}")
                e(f"v_mul_u32_u24 v{V_G1}, s{S_T2}, v{V_G1}")
                e(f"s_lshr_b32 s{S_T0}, s{S_OUT}, 7")
                e(f"s_mul_i32 s{S_T0}, s{S_T0}, 21")
                e(f"s_and_b32 s{S_T0}, s{S_T0}, 63")
                e(f"s_mulk_i32 s{S_T0}, 384")
                e(f"s_lshr_b32 s{S_BASE}, s2, 3")
                if o.qrot:
                    if o.qrot >= 16:
                        e(f"s_lshr_b32 s{S_T1}, s{S_BASE}, {o.qrot - 16}")
                    else:
                        e(f"s_mul_i32 s{S_T1}, s{S_BASE}, {o.qrot}")
                    e(f"s_add_u32 s{S_T1}, s{S_T1}, s2")
                    e(f"s_and_b32 s{S_T1}, s{S_T1}, 3")
                else:
                    e(f"s_and_b32 s{S_T1}, s2, 3")
                if o.qmap == 0:
                    e(f"s_lshl2_add_u32 s{S_BASE}, s{S_BASE}, s{S_T1}")
                else:
                    e(f"s_lshl_b32 s{S_T1}, s{S_T1}, 5")
                    e(f"s_add_u32 s{S_BASE}, s{S_BASE}, s{S_T1}")
                e(f"s_add_u32 s{S_BASE1}, s{S_BASE}, {64 if o.h6 else o.qshift}")
                e(f"s_and_b32 s{S_BASE1}, s{S_BASE1}, 127")
                e(f"s_mul_i32 s{S_BASE}, s{S_BASE}, {49152 if o.h6 else 98304}")
                e(f"s_add_u32 s{S_BASE}, s{S_BASE}, s{S_T0}        ; the pair's first span of a step")
                e(f"s_mul_i32 s{S_BASE1}, s{S_BASE1}, {49152 if o.h6 else 98304}")
                e(f"s_add_u32 s{S_BASE1}, s{S_BASE1}, s{S_T0}")
                e(f"s_add_u32 s{S_BASE1}, s{S_BASE1}, {6 * MiB if o.h6 else 49152}      ; its second span: 3 MiB on, where the memory stacks swap")
                h1 = mask(lambda z, s: s[1] == 1)
                e(f"s_add_u32 s{S_T2}, s{S_T2}, s{S_OUT}")
                e(f"s_add_u32 s{S_T0}, s{S_BASE}, s{S_T2}")
                e(f"s_bfe_i32 s{S_PM}, s{S_T0}, 0x10015")
                e(f"s_add_u32 s{S_T2}, s{S_BASE1}, s{S_T2}")
                e(f"s_xor_b32 s{S_T0}, s{S_T0}, s{S_T2}")
                e(f"s_bfe_i32 s{S_T0}, s{S_T0}, 0x10015")
                e(f"s_and_b32 s{S_T0}, s{S_T0}, {h1}")
                e(f"s_xor_b32 s{S_PM}, s{S_PM}, s{S_T0}")
                m1 = mask(lambda z, s: z >= NAGN and s[0] in ((0, 1) if o.bfirst else (3, 4)))
                z50 = SPANS.index((2 if o.bfirst else 5, 0))
                z51 = SPANS.index((2 if o.bfirst else 5, 1))
                edge = (8 if o.bfirst else 4) * MiB - 24576
                dec = mask(lambda z, s: z >= NAGN)
                e(f"s_cmp_lt_u32 s{S_BASE}, {edge}")
                e(f"s_cselect_b32 s{S_T0}, {1 << z50}, 0")
                e(f"s_or_b32 s{S_T0}, s{S_T0}, {m1}")
                e(f"s_cmp_lt_u32 s{S_BASE1}, {edge}")
                e(f"s_cselect_b32 s{S_T1}, {1 << z51}, 0")
                e(f"s_or_b32 s{S_T0}, s{S_T0}, s{S_T1}            ; third 1")
                e(f"s_xor_b32 s{S_T1}, s{S_T0}, {dec}           ; third 2")
                per, pat = o.opp
                rep = sum(((pat >> (i % per)) & 1) << i for i in range(32))
                e(f"s_lshr_b32 s{S_P}, s2, 3")
                e(f"s_mul_i32 s{S_T2}, s{S_P}, {-(-256 // per)}")
                e(f"s_lshr_b32 s{S_T2}, s{S_T2}, 8")
                e(f"s_mul_i32 s{S_T2}, s{S_T2}, {per}")
                e(f"s_sub_u32 s{S_P}, s{S_P}, s{S_T2}             ; (b >> 3) % {per}")
                e(f"s_lshr_b32 s{S_P}, {rep}, s{S_P}")
                e(f"s_sub_u32 s{S_T2}, s{S_OUT}, s{S_X}")
                e(f"s_add_u32 s{S_T2}, s{S_T2}, 2048")
                e(f"s_bitcmp1_b32 s{S_T2}, 12")
                e(f"s_cselect_b32 s{S_P}, 0, s{S_P}")
                e(f"s_cselect_b32 s{S_OK}, 0, {1 << 23}")
                e(f"s_or_b32 s{S_OK}, s{S_OK}, {RES_OK}       ; the parts of the result word that must be in")
                e(f"s_lshr_b32 s{S_T2}, s2, 3")
                e(f"s_sub_u32 s{S_RID}, s{S_T2}, {o.red0}")
                e(f"s_and_b32 s{S_PO}, s2, 7")
                e(f"s_lshl_b32 s{S_PO}, s{S_PO}, 5")
                e(f"s_add_u32 s{S_PO}, s{S_PO}, s{S_T2}")
                e(f"s_mulk_i32 s{S_PO}, 1536")
                if o.msum:
                    e("; sums by matrix product: row 4q+r (r < 2) of the selector picks element 2q+r of each lane's eight values")
                    e("v_and_b32 v20, 1, v1")
                    e("v_lshlrev_b32 v20, 4, v20")
                    e("v_mov_b32 v21, 0x3f80")
                    e("v_lshlrev_b32 v20, v20, v21")
                    e("v_bfe_u32 v21, v1, 1, 3")
                    for d in range(4):
                        e(f"v_cmp_eq_u32 s[{S_V}:{S_V + 1}], {2 * d}, v21")
                        e("s_nop 1")
                        e(f"v_cndmask_b32 v{8 + d}, 0, v20, s[{S_V}:{S_V + 1}]")
                if o.last:
                    e("v_mov_b32 v20, 0")
                    e("v_lshlrev_b32 v21, 2, v1")
                    e("s_mov_b64 exec, 7")
                    e(f"ds_write_b32 v21, v20 offset:{L_CNT}")
                    e("s_mov_b64 exec, -1")
            if j == 2 * NAGN:
                e("s_waitcnt lgkmcnt(0)")
                self.stamp(11)
                e("s_barrier")
                e(f"s_load_dword s{S_T2}, s[{S_DBG}:{S_DBG + 1}], {DBG_RES}")
                e("s_waitcnt lgkmcnt(0)")
                e(f"s_andn2_b32 s{S_CNT}, s{S_OK}, s{S_T2}")
                e("s_cbranch_scc1 L_dpoll")
                e("L_decided:")
                for i in range(4):
                    e(f"s_bitcmp1_b32 s{S_T2}, {7 + 6 * i + 5}")
                    e(f"s_cselect_b32 s{S_V + i}, s{(S_T0, S_T1)[i >> 1]}, 0")
                e(f"s_or_b32 s{S_V}, s{S_V}, s{S_V + 2}")
                e(f"s_or_b32 s{S_V + 1}, s{S_V + 1}, s{S_V + 3}")
                e(f"s_xor_b32 s{S_V}, s{S_V}, s{S_V + 1}")
                e(f"s_and_b32 s{S_V}, s{S_V}, s{S_P}")
                e(f"s_xor_b32 s{S_V}, s{S_V}, s{S_V + 1}")
                e(f"s_xor_b32 s{S_PM}, s{S_PM}, s{S_V}")
                e(f"s_lshr_b32 s{S_QC}, s{S_T2}, 13")
                e(f"s_add_u32 s{S_QC}, s{S_QC}, s2")
                e(f"s_bfe_i32 s{S_V}, s{S_QC}, 0x10002")
                e(f"s_xor_b32 s{S_PM}, s{S_PM}, s{S_V}")
                e(f"s_and_b32 s{S_TG[0]}, s{S_T2}, 15")
                e(f"s_bfe_u32 s{S_TG[1]}, s{S_T2}, 0x40004")
                e(f"s_xor_b32 s{S_TG[2]}, s{S_TG[0]}, 15")
                e(f"s_xor_b32 s{S_TG[3]}, s{S_TG[1]}, 15")
                e(f"s_lshr_b32 s{S_V}, s{S_T2}, 10")
                e(f"s_and_b32 s{S_V}, s{S_V}, 4")
                e(f"s_xor_b32 s{S_QC}, s{S_QC}, s{S_V}           ; bits 2:0: the second-stage copy near this die")
                if o.xfer:
                    e("; dies with an odd number run a little slower: some waves there leave their last slot to the even neighbour")
                    assert SPANS[15] == (7, 0)
                    e(f"s_lshr_b32 s{S_T0}, s{S_T2}, 13")
                    e(f"s_add_u32 s{S_T1}, s{S_T0}, s2")
                    e(f"s_and_b32 s{S_XR}, s{S_T1}, 1")
                    e(f"s_sub_u32 s{S_XR}, 2, s{S_XR}")
                    e(f"s_cmp_ge_u32 s{S_WAVE}, {12 - o.xfer}")
                    e(f"s_cselect_b32 s{S_XR}, s{S_XR}, 0")
                    e(f"s_xor_b32 s{S_T1}, s{S_T1}, 1")
                    e(f"s_sub_u32 s{S_T1}, s{S_T1}, s{S_T0}")
                    e(f"s_and_b32 s{S_T1}, s{S_T1}, 3")
                    e(f"s_and_b32 s{S_T0}, s2, 3")
                    e(f"s_sub_u32 s{S_T1}, s{S_T1}, s{S_T0}")
                    e(f"s_mul_i32 s{S_T1}, s{S_T1}, 98304")
                    e(f"s_add_u32 s{S_XO}, s{S_BASE}, s{S_T1}        ; the neighbour's first span of a step")
                    e(f"s_add_u32 s{S_T0}, s{S_OUT}, 24576")
                    e(f"s_add_u32 s{S_T1}, s{S_T0}, s{S_XO}")
                    e(f"s_add_u32 s{S_T0}, s{S_T0}, s{S_BASE}")
                    e(f"s_xor_b32 s{S_T0}, s{S_T0}, s{S_T1}")
                    e(f"s_lshr_b32 s{S_T0}, s{S_T0}, 6")
                    e(f"s_xor_b32 s{S_T0}, s{S_T0}, s{S_PM}")
                    e(f"s_bitcmp1_b32 s{S_T0}, 15")
                    e(f"s_cselect_b32 s{S_XP}, 24576, 0")
                    e(f"s_add_u32 s{S_XO}, s{S_XO}, {7 * 12 * MiB + 12288}")
                if o.wtouch:
                    e("s_load_dword s22, s[36:37], 0")
                    e("s_load_dword s23, s[38:39], 0")
                self.stamp(12)
            if j in o.xbar:
                e("s_barrier")
                if j == o.xbar[-1]:
                    self.stamp(2, "r")
            if o.xfer and j == o.xpos:
                e(f"s_cmp_lg_u32 s{S_XR}, 2")
                e("s_cbranch_scc1 L_nox1")
                e(f"s_lshl_b32 s{S_T0}, s{S_WAVE}, 10")
                e(f"s_add_u32 m0, s{S_T0}, {L_X}")
                e(f"v_xad_u32 v3, v{V_G1}, s{S_XP}, v{V_L}")
                e(f"buffer_load_dwordx4 v3, s[{S_X}:{S_X + 3}], s{S_XO} offen{ldf} lds")
                e("L_nox1:")
            if j == o.warm and o.warmst:
                e("; waves 0 and 1 claim their first-stage lines in L2 with a pattern that no tag matches")
                e(f"s_cmp_ge_u32 s{S_WAVE}, 2")
                e("s_cbranch_scc1 L_nowarm")
                for i in range(4):
                    e(f"v_mov_b32 v{20 + i}, 0")
                e(f"s_mul_i32 s{S_T0}, s{S_WAVE}, 768")
                e(f"v_lshl_add_u32 v3, v1, 4, s{S_T0}")
                e("s_mov_b32 exec_hi, 0xffff")
                e(f"buffer_store_dwordx4 v[20:23], v3, s[{S_WS}:{S_WS + 3}], s{S_PO} offen")
                e("s_mov_b64 exec, -1")
                e("L_nowarm:")
            if j == o.warm and not o.warmst:
                e("; one wave pulls this workgroup's first-stage lines into L2 (values unused)")
                e(f"s_cmp_lg_u32 s{S_WAVE}, {o.warmwave}")
                e("s_cbranch_scc1 L_nowarm")
                e("v_lshlrev_b32 v3, 7, v1")
                e("s_mov_b64 exec, 0xfff")
                e(f"buffer_load_dword v37, v3, s[{S_WS}:{S_WS + 3}], s{S_PO} offen {o.warmfl}")
                e("s_mov_b64 exec, -1")
                if o.lpf == 2:
                    e("; ... and, in one workgroup per group, the code that is still to run")
                    e(f"s_cmp_lg_u32 s{S_RID}, {NRED}")
                    e("s_cbranch_scc1 L_nowarm")
                    e("s_getpc_b64 s[20:21]")
                    if o.lay:
                        e("v_add_u32 v3, L_tail - L_nowarm + 32, v3")
                    e("v_min_u32 v3, L_end - L_nowarm, v3")
                    e("global_load_dword v37, v3, s[20:21]")
                e("L_nowarm:")
            r = D0 + 4 * j
            if o.thr and j == (o.hookpos - 1 if o.hookpos else 10):
                e("; dies with an even number win the fabric arbitration: they keep fewer loads in flight for a while")
                e(f"s_getreg_b32 s{S_T0}, hwreg(HW_REG_XCC_ID, 0, 3)")
                e(f"s_lshr_b32 s{S_T0}, {o.thrmask}, s{S_T0}")
                e(f"s_and_b64 vcc, s[{S_T0}:{S_T0 + 1}], 1")
            if o.cap and o.capfrom <= j < o.capto:
                e(f"s_waitcnt vmcnt({o.cap - 1})")
            if o.thr and o.thrfrom <= j < o.thrto:
                e(f"s_cbranch_vccz L_thr{j}")
                e(f"s_waitcnt vmcnt({o.thr - 1})")
                e(f"L_thr{j}:")
            self.mem(j, lambda va, so: e(f"buffer_load_dwordx4 v[{r}:{r + 3}], {va}, s[{S_X}:{S_X + 3}], {so} offen{ldf}"))
            seq.append(j)
            if o.sdiag and j == 0:
                self.stamp(2, True)
            if o.sdiag and j == 2:
                e("s_waitcnt vmcnt(2)")
                self.stamp(3, True)
            if j & 1:
                self.trace("ld", j >> 1)

        def wait_for(j):
            e(f"s_waitcnt vmcnt({len(seq) - 1 - seq.index(j)})")

        def hpair(a, b, first):
            e(f"v_mfma_f32_16x16x32_bf16 v[4:7], v[8:11], v[{a}:{a + 3}], {'0' if first else 'v[4:7]'}")
            for i in range(4):
                if i == 2:
                    e(f"v_mfma_f32_16x16x32_bf16 v[4:7], v[8:11], v[{b}:{b + 3}], v[4:7]")
                e(f"v_pk_maximum3_f16 v{MAX + i}, v{a + i if first else MAX + i}, v{a + i}, v{b + i}")

        def hscatter():
            e("; ---- the packed maxes are folded across lane bits 5 and 4 (the matrix product did that for the sums)")
            e("s_nop 0")
            e(f"v_permlane32_swap_b32 v{MAX}, v{MAX + 2}")
            e(f"v_permlane32_swap_b32 v{MAX + 1}, v{MAX + 3}")
            e(f"v_pk_maximum3_f16 v{MAX}, v{MAX}, v{MAX + 2}, v{MAX + 2}")
            e(f"v_pk_maximum3_f16 v{MAX + 1}, v{MAX + 1}, v{MAX + 3}, v{MAX + 3}")
            e("s_nop 1")
            e(f"v_permlane16_swap_b32 v{MAX}, v{MAX + 1}")
            e(f"v_pk_maximum3_f16 v{MAX + 1}, v{MAX}, v{MAX + 1}, v{MAX + 1}")
            e(f"v_lshlrev_b32 v{MAX}, 16, v{MAX + 1}")
            e("; bf16 and f16 order their bit patterns alike, except where f16 sees a NaN (|x| > 2^121), which sticks")
            e(f"v_cmp_u_f16_sdwa vcc, v{MAX + 1}, v{MAX + 1} src0_sel:WORD_0 src1_sel:WORD_1")
            e("s_cbranch_vccnz L_exact")
            e("L_maxok:")

        def mpair(a, b, first, sums=True):
            if o.hmax and sums:
                return hpair(a, b, first)
            if sums:
                e(f"v_mfma_f32_16x16x32_bf16 v[4:7], v[8:11], v[{a}:{a + 3}], {'0' if first else 'v[4:7]'}")
            for i in range(4):
                e(f"v_lshlrev_b32 v{T + 2 * i}, 16, v{a + i}")
            if sums:
                e(f"v_mfma_f32_16x16x32_bf16 v[4:7], v[8:11], v[{b}:{b + 3}], v[4:7]")
            for i in range(4):
                e(f"v_lshlrev_b32 v{T + 2 * i + 1}, 16, v{b + i}")
            for i in range(4):
                m = MAX + 2 * i
                if first:
                    e(f"v_max_f32 v{m + 1}, v{a + i}, v{b + i}")
                else:
                    e(f"v_max3_f32 v{m + 1}, v{m + 1}, v{a + i}, v{b + i}")
            for i in range(4):
                m, t = MAX + 2 * i, T + 2 * i
                if first:
                    e(f"v_max_f32 v{m}, v{t}, v{t + 1}")
                else:
                    e(f"v_max3_f32 v{m}, v{m}, v{t}, v{t + 1}")

        def mscatter():
            e("; ---- the maxes are folded across lane bits 5 and 4 (the matrix product did that for the sums)")
            for i in (1, 3, 0, 2):
                e(f"v_permlane32_swap_b32 v{MAX + i}, v{MAX + 4 + i}")
            for i in (1, 3, 0, 2):
                e(f"v_max_f32 v{MAX + i}, v{MAX + i}, v{MAX + 4 + i}")
            e(f"v_permlane16_swap_b32 v{MAX + 1}, v{MAX + 3}")
            e("s_nop 0")
            e(f"v_permlane16_swap_b32 v{MAX}, v{MAX + 2}")
            e(f"v_max_f32 v{MAX + 1}, v{MAX + 1}, v{MAX + 3}")
            e(f"v_max_f32 v{MAX}, v{MAX}, v{MAX + 2}")

        def scatter54():
            e("; ---- in-wave reduce-scatter across lane bits 5, 4, 3")
            for base in (MAX, SUM):
                for i in range(4):
                    e(f"v_permlane32_swap_b32 v{base + i}, v{base + 4 + i}")
            for i in range(4):
                e(f"v_max_f32 v{MAX + i}, v{MAX + i}, v{MAX + 4 + i}")
            for i in range(4):
                e(f"v_add_f32 v{SUM + i}, v{SUM + i}, v{SUM + 4 + i}")
            for i in range(2):
                e(f"v_permlane16_swap_b32 v{MAX + i}, v{MAX + 2 + i}")
            for i in range(2):
                e(f"v_permlane16_swap_b32 v{SUM + i}, v{SUM + 2 + i}")
            for i in range(2):
                e(f"v_add_f32 v{SUM + i}, v{SUM + i}, v{SUM + 2 + i}")
            for i in range(2):
                e(f"v_max_f32 v{MAX + i}, v{MAX + i}, v{MAX + 2 + i}")

        nxt = 0
        for jj in range(16):
            while nxt < 32 and nxt < max(2 * jj + DEPTH + 2, 2 * NAGN + 2 if o.prebar else 0):
                issue(nxt)
                nxt += 1
                if nxt == 32:
                    self.stamp(1)
            a, b = D0 + 8 * jj, D0 + 8 * jj + 4
            if jj == 0:
                e("@@HERE1")
            if jj == 15:
                e("@@HERE2")
                if o.last:
                    e("; LDS slots [ty][sub][lane] of 8 bytes, counter of this third of the channels")
                    e(f"s_lshl_b32 s{S_T0}, s{S_TY}, 11")
                    e(f"v_lshl_add_u32 v3, v1, 3, s{S_T0}")
                    e(f"s_lshl_b32 s{S_T0}, s{S_SUB}, 9")
                    e(f"v_add_u32 v2, s{S_T0}, v3")
                    e(f"s_lshl2_add_u32 s{S_T0}, s{S_TY}, {L_CNT}")
                    e(f"v_mov_b32 v28, s{S_T0}")
                    e("v_mov_b32 v29, 1")
                    e("; first-stage address: kind*768 + ty*256 + (l>>4)*64 + (l&7)*8, and the tags of its two words")
                    e("v_and_b32 v30, 7, v1")
                    e("v_lshrrev_b32 v31, 4, v1")
                    e("v_lshl_add_u32 v30, v31, 3, v30")
                    e("v_bfe_u32 v31, v1, 3, 1")
                    e("v_mul_u32_u24 v31, 96, v31")
                    e(f"s_lshl_b32 s{S_T0}, s{S_TY}, 5")
                    e(f"v_add3_u32 v30, v30, v31, s{S_T0}")
                    e("v_lshlrev_b32 v30, 3, v30")
                    e("v_bfe_i32 v31, v1, 0, 1")
                    e("v_and_b32 v31, 15, v31")
                    e(f"v_xor_b32 v32, s{S_TG[1]}, v31")
                    e(f"v_xor_b32 v31, s{S_TG[0]}, v31")
                else:
                    e("; LDS address for this lane: ((sub*2 + kind)*192 + ty*64 + (l&7)*8 + 2*(l>>4)) * 4")
                    e("v_and_b32 v2, 7, v1")
                    e("v_lshlrev_b32 v2, 5, v2                   ; (l&7)*32")
                    e("v_lshrrev_b32 v3, 4, v1")
                    e("v_lshl_add_u32 v2, v3, 3, v2              ; + (l>>4)*8")
                    e("v_bfe_u32 v3, v1, 3, 1")
                    e("v_mul_u32_u24 v3, 768, v3")
                    e(f"s_mul_i32 s{S_T0}, s{S_SUB}, 1536")
                    e(f"s_lshl_b32 s{S_T1}, s{S_TY}, 8")
                    e(f"s_add_u32 s{S_T0}, s{S_T0}, s{S_T1}")
                    e(f"v_add3_u32 v2, v2, v3, s{S_T0}")
                    e(f"s_mul_i32 s{S_T0}, s{S_WAVE}, 768")
                    e(f"v_lshl_add_u32 v3, v1, 4, s{S_T0}")
                if o.msum:
                    assert o.last
                    e("v_bfe_i32 v33, v1, 3, 1")
                    e("v_and_b32 v33, 0xfff0, v33")
                    e("v_xor_b32 v33, -16, v33                   ; bits that carry the value: 31:4 of a sum, 31:16 of a max")
                    wait_for(31)
                    self.stamp(3)
                    mpair(a, b, False)
                    continue
                if o.ttail:
                    e("; the accumulators are folded across lane bits 5 and 4 now; the last two loads are")
                    e("; transposed the same way while still packed, which shortens the work behind the last arrival")
                    scatter54()
                    for r in (a, b):
                        wait_for((r - D0) // 4)
                        if r == b:
                            self.stamp(3)
                        C = 8
                        e(f"v_mov_b64 v[{C}:{C + 1}], v[{r}:{r + 1}]")
                        e(f"v_mov_b64 v[{C + 2}:{C + 3}], v[{r + 2}:{r + 3}]")
                        e("s_nop 1")
                        e(f"v_permlane32_swap_b32 v{C}, v{C + 2}")
                        e(f"v_permlane32_swap_b32 v{C + 1}, v{C + 3}")
                        e("s_nop 1")
                        e(f"v_permlane16_swap_b32 v{C}, v{C + 1}")
                        e(f"v_permlane16_swap_b32 v{C + 2}, v{C + 3}")
                        for i in range(4):
                            t = T + 2 * i
                            e(f"v_lshlrev_b32 v{t}, 16, v{C + i}")
                            e(f"v_and_b32 v{t + 1}, s{S_MASK}, v{C + i}")
                        e(f"v_pk_add_f32 v[{C}:{C + 1}], v[{T}:{T + 1}], v[{T + 2}:{T + 3}]")
                        e(f"v_pk_add_f32 v[{C + 2}:{C + 3}], v[{T + 4}:{T + 5}], v[{T + 6}:{T + 7}]")
                        e(f"v_max3_f32 v{MAX}, v{MAX}, v{T}, v{T + 2}")
                        e(f"v_pk_add_f32 v[{C}:{C + 1}], v[{C}:{C + 1}], v[{C + 2}:{C + 3}]")
                        e(f"v_max3_f32 v{MAX + 1}, v{MAX + 1}, v{T + 1}, v{T + 3}")
                        e(f"v_pk_add_f32 v[{SUM}:{SUM + 1}], v[{SUM}:{SUM + 1}], v[{C}:{C + 1}]")
                        e(f"v_max3_f32 v{MAX}, v{MAX}, v{T + 4}, v{T + 6}")
                        e(f"v_max3_f32 v{MAX + 1}, v{MAX + 1}, v{T + 5}, v{T + 7}")
                    continue
                def fold(r):
                    for i in range(4):
                        t = T + 2 * i
                        e(f"v_lshlrev_b32 v{t}, 16, v{r + i}")
                        e(f"v_and_b32 v{t + 1}, s{S_MASK}, v{r + i}")
                    for i in range(8):
                        e(f"v_max_f32 v{MAX + i}, v{MAX + i}, v{T + i}")
                    for i in range(4):
                        t, s = T + 2 * i, SUM + 2 * i
                        e(f"v_pk_add_f32 v[{s}:{s + 1}], v[{s}:{s + 1}], v[{t}:{t + 1}]")
                if o.xfer:
                    assert o.xpos <= 28
                    e(f"s_cmp_lg_u32 s{S_XR}, 2")
                    e("s_cbranch_scc1 L_nox2")
                    e(f"s_lshl_b32 s{S_T0}, s{S_WAVE}, 10")
                    e(f"s_add_u32 s{S_T0}, s{S_T0}, {L_X}")
                    e(f"v_lshl_add_u32 v{V_AT}, v1, 4, s{S_T0}")
                    e(f"ds_read_b128 v[28:31], v{V_AT}")
                    e("s_waitcnt lgkmcnt(0)")
                    fold(28)
                    e("L_nox2:")
                e("; the last two loads are folded in one at a time")
                for r in (a, b):
                    wait_for((r - D0) // 4)
                    if r == b:
                        self.stamp(3)
                        if o.xfer:
                            e(f"s_cmp_eq_u32 s{S_XR}, 1")
                            e("s_cbranch_scc1 L_nox3")
                    fold(r)
                if o.xfer:
                    e("L_nox3:")
                continue
            wait_for(2 * jj + 1)
            if jj == 0 and not o.xbar:
                self.stamp(2)
            if jj >= o.skipfrom:
                continue
            if o.msum:
                mpair(a, b, jj == 0)
                continue
            for i in range(4):
                t = T + 4 * i
                e(f"v_lshlrev_b32 v{t}, 16, v{a + i}")
                e(f"v_and_b32 v{t + 1}, s{S_MASK}, v{a + i}")
                e(f"v_lshlrev_b32 v{t + 2}, 16, v{b + i}")
                e(f"v_and_b32 v{t + 3}, s{S_MASK}, v{b + i}")
            for i in range(4):
                t = T + 4 * i
                s, m = SUM + 2 * i, MAX + 2 * i
                if jj == 0:
                    e(f"v_max_f32 v{m}, v{t}, v{t + 2}")
                    e(f"v_max_f32 v{m + 1}, v{t + 1}, v{t + 3}")
                    e(f"v_pk_add_f32 v[{s}:{s + 1}], v[{t}:{t + 1}], v[{t + 2}:{t + 3}]")
                else:
                    e(f"v_max3_f32 v{m}, v{m}, v{t}, v{t + 2}")
                    e(f"v_max3_f32 v{m + 1}, v{m + 1}, v{t + 1}, v{t + 3}")
                    e(f"v_pk_add_f32 v[{t}:{t + 1}], v[{t}:{t + 1}], v[{t + 2}:{t + 3}]")
            if jj:
                for i in range(4):
                    t = T + 4 * i
                    s = SUM + 2 * i
                    e(f"v_pk_add_f32 v[{s}:{s + 1}], v[{s}:{s + 1}], v[{t}:{t + 1}]")

        if o.hmax:
            hscatter()
        elif o.msum:
            mscatter()
        elif not o.ttail:
            scatter54()
        e(f"s_cmp_ge_u32 s{S_WAVE}, 2")
        for i in range(2):
            e(f"v_add_f32_dpp v{SUM + i}, v{SUM + i}, v{SUM + i} row_ror:8 row_mask:0xf bank_mask:0x3")
        for i in range(2):
            e(f"v_max_f32_dpp v{SUM + i}, v{MAX + i}, v{MAX + i} row_ror:8 row_mask:0xf bank_mask:0xc")
        if o.last:
            e("; the last of the four waves that share these channels folds the four slots and publishes")
            e(f"ds_write_b64 v2, v[{SUM}:{SUM + 1}] offset:{L_RED}")
            e("s_mov_b64 exec, 1")
            e("ds_add_rtn_u32 v6, v28, v29")
            e("s_mov_b64 exec, -1")
            e("ds_read2st64_b64 v[8:11], v3 offset0:0 offset1:1")
            e("ds_read2st64_b64 v[12:15], v3 offset0:2 offset1:3")
            e("s_waitcnt lgkmcnt(1)")
            e(f"v_readfirstlane_b32 s{S_T0}, v6")
            e("v_pk_add_f32 v[4:5], v[8:9], v[10:11]")
            e("s_waitcnt lgkmcnt(0)")
            e("v_max3_f32 v8, v8, v10, v12")
            e("v_max3_f32 v9, v9, v11, v13")
            e("v_pk_add_f32 v[16:17], v[12:13], v[14:15]")
            e(f"s_cmp_lg_u32 s{S_T0}, 3")
            e("v_pk_add_f32 v[4:5], v[4:5], v[16:17]")
            e("s_cbranch_scc1 L_notlast")
            e("v_max_f32_dpp v4, v8, v14 quad_perm:[0,1,2,3] row_mask:0xf bank_mask:0xc")
            e("v_max_f32_dpp v5, v9, v15 quad_perm:[0,1,2,3] row_mask:0xf bank_mask:0xc")
            e("v_and_or_b32 v4, v4, -16, v31")
            e(f"v_and_or_b32 v5, v5, {'v33' if o.msum else '-16'}, v32")
            e(f"buffer_store_dwordx2 v[4:5], v30, s[{S_WS}:{S_WS + 3}], s{S_PO} offen")
            e("L_notlast:")
            e("v_lshrrev_b32 v20, 4, v1                  ; q")
            e(f"s_cmp_lt_u32 s{S_RID}, {NRED}")
            e(f"s_cselect_b32 s{S_T0}, s{S_WAVE}, 0")
            e(f"s_cmp_eq_u32 s{S_T0}, 3")
            e("s_cbranch_scc1 L_rsetup")
            e(f"s_cmp_ge_u32 s{S_WAVE}, 2")
            e("s_barrier")
            self.stamp(4)
            e("s_cbranch_scc1 L_nopub")
            e("; ---- waves 0 and 1 stage the weights")
            e(f"s_cmp_eq_u32 s{S_WAVE}, 0")
            e(f"s_cselect_b64 s[{S_W}:{S_W + 1}], s[36:37], s[38:39]")
        else:
            e(f"ds_write_b64 v2, v[{SUM}:{SUM + 1}] offset:{L_RED}")
            e("s_waitcnt lgkmcnt(0)")
            e("s_barrier")
            self.stamp(4)
            e("s_cbranch_scc1 L_nopub")

            e("; ---- waves 0 (sums) and 1 (maxes): combine the four row groups, publish, then stage the weights")
            e("s_mov_b32 exec_hi, 0xffff")
            for k in range(4):
                e(f"ds_read_b128 v[{4 + 4 * k}:{7 + 4 * k}], v3 offset:{L_RED + 1536 * k}")
            e(f"s_cmp_eq_u32 s{S_WAVE}, 0")
            e(f"s_cselect_b64 s[{S_W}:{S_W + 1}], s[36:37], s[38:39]")
            e("s_cbranch_scc0 L_pubmax")
            e("s_waitcnt lgkmcnt(2)")
            e("v_pk_add_f32 v[4:5], v[4:5], v[8:9]")
            e("v_pk_add_f32 v[6:7], v[6:7], v[10:11]")
            e("s_waitcnt lgkmcnt(0)")
            e("v_pk_add_f32 v[12:13], v[12:13], v[16:17]")
            e("v_pk_add_f32 v[14:15], v[14:15], v[18:19]")
            e("v_pk_add_f32 v[4:5], v[4:5], v[12:13]")
            e("v_pk_add_f32 v[6:7], v[6:7], v[14:15]")
            e("s_branch L_pub")
            e("L_pubmax:")
            e("s_waitcnt lgkmcnt(1)")
            for i in range(4):
                e(f"v_max3_f32 v{4 + i}, v{4 + i}, v{8 + i}, v{12 + i}")
            e("s_waitcnt lgkmcnt(0)")
            for i in range(4):
                e(f"v_max_f32 v{4 + i}, v{4 + i}, v{16 + i}")
            e("L_pub:")
            for i in range(4):
                e(f"v_and_or_b32 v{4 + i}, v{4 + i}, -16, s{S_TG[i]}")
            e(f"buffer_store_dwordx4 v[4:7], v3, s[{S_WS}:{S_WS + 3}], s{S_PO} offen{' sc1' if o.psc1 else ' nt' if o.pnt else ''}")
            e("s_mov_b64 exec, -1")
        e(f"s_movk_i32 s{S_W + 2}, 18432")
        e(f"s_mov_b32 s{S_W + 3}, 0x20000")
        e(f"s_mul_i32 s{S_T0}, s{S_WAVE}, 18432")
        e(f"s_addk_i32 s{S_T0}, {L_W1}")
        e(f"s_mov_b32 s{S_T1}, 0")
        e("v_lshlrev_b32 v2, 4, v1")
        e("L_wloop:")
        e(f"s_add_u32 m0, s{S_T0}, s{S_T1}")
        e("s_nop 0")
        for k in range(3):
            e(f"buffer_load_dwordx4 v2, s[{S_W}:{S_W + 3}], s{S_T1} offen offset:{k * 1024} lds")
        e(f"s_addk_i32 s{S_T1}, 3072")
        e(f"s_cmp_lt_u32 s{S_T1}, 18432")
        e("s_cbranch_scc1 L_wloop")
        e("L_nopub:")

        B2 = 28
        V_H0, V_H1, V_SW, V_SR, V_Q = 24, 25, 26, 27, 37
        SP0 = 136
        A1 = 144
        B1 = [4, 8, 12, 16, 136, 140]
        if o.last:
            e(f"s_cmp_lt_u32 s{S_WAVE}, 3")
            e("s_cbranch_scc1 L_spill")
            e("s_branch L_barw")
            e("L_rsetup:")
        else:
            e("v_lshrrev_b32 v20, 4, v1                  ; q")
            e(f"s_cmp_lt_u32 s{S_WAVE}, 3")
            e("s_cbranch_scc1 L_spill")
            e(f"s_cmp_ge_u32 s{S_RID}, {NRED}")
            e("s_cbranch_scc1 L_barw")
            e(f"s_cmp_lg_u32 s{S_WAVE}, 3")
            e("s_cbranch_scc1 L_barw")

        def clean(lbl, d, a):
            e("; every reducer is done: wave 3 writes the first-stage lines through, so that no dirty line stays in L2")
            e(f"s_cmp_lg_u32 s{S_WAVE}, 3")
            e(f"s_cbranch_scc1 {lbl}")
            if o.cw:
                e(f"v_mov_b32 v{d}, 0")
                e(f"v_lshlrev_b32 v{a}, {o.cw}, v1")
                e(f"s_mov_b64 exec, {(1 << (1536 >> o.cw)) - 1}")
                if o.cld:
                    e(f"buffer_atomic_or v{d}, v{a}, s[{S_WS}:{S_WS + 3}], s{S_PO} offen")
                else:
                    e(f"buffer_store_dword v{d}, v{a}, s[{S_WS}:{S_WS + 3}], s{S_PO} offen sc1")
                e("s_mov_b64 exec, -1")
                return
            for i in range(4):
                e(f"v_mov_b32 v{d + i}, 0")
            e(f"v_lshlrev_b32 v{a}, 4, v1")
            e("s_mov_b32 exec_hi, 0xffff")
            e(f"buffer_store_dwordx4 v[{d}:{d + 3}], v{a}, s[{S_WS}:{S_WS + 3}], s{S_PO} offen sc1")
            e(f"buffer_store_dwordx4 v[{d}:{d + 3}], v{a}, s[{S_WS}:{S_WS + 3}], s{S_PO} offen offset:768 sc1")
            e("s_mov_b64 exec, -1")

        e("v_lshrrev_b32 v2, 3, v1")
        e("v_mul_u32_u24 v2, 1536, v2")
        e("v_and_b32 v3, 7, v1")
        e(f"v_lshl_add_u32 v{V_Q}, v3, 4, v2")
        e(f"s_and_b32 s{S_T0}, s2, 7")
        e(f"s_mul_i32 s{S_V}, s{S_T0}, {32 * 1536}")
        e(f"s_lshl_b32 s{S_T1}, s{S_RID}, 7")
        e(f"s_add_u32 s{S_V}, s{S_V}, s{S_T1}")
        for k in range(1, 4):
            e(f"s_add_u32 s{S_V + k}, s{S_V}, {k * 8 * 1536}")
        e(f"s_lshl_b32 s{S_T0}, s{S_T0}, 8              ; group*256")
        e(f"s_lshr_b32 s{S_T1}, s{S_RID}, 2")
        e(f"s_lshl2_add_u32 s{S_T1}, s{S_T1}, s{S_RID}")
        e(f"s_lshl_b32 s{S_T1}, s{S_T1}, 11")
        e(f"s_add_u32 s{S_T1}, s{S_T1}, s{S_T0}")
        for k in range(o.qcopy // 2):
            e(f"s_add_u32 s{S_W + k}, s{S_T1}, {WS_Q + k * 49152}")
        e("v_and_b32 v2, 15, v1")
        e("v_lshlrev_b32 v3, 2, v2")
        e("v_bfe_u32 v2, v1, 4, 1")
        e("v_lshl_add_u32 v3, v2, 7, v3")
        e("v_lshrrev_b32 v2, 5, v1")
        e("v_lshl_add_u32 v3, v2, 13, v3             ; (l>>5)*8192 + ((l>>4)&1)*128 + (l&15)*4")
        e(f"s_lshl4_add_u32 s{S_T0}, s{S_TG[1]}, s{S_TG[0]}")
        e(f"s_xor_b32 s{S_CNT}, s{S_T0}, 0xff")
        e(f"s_lshl_b32 s{S_CNT}, s{S_CNT}, 8")
        e(f"s_or_b32 s{S_T0}, s{S_T0}, s{S_CNT}")
        e("v_and_b32 v2, 12, v3")
        e(f"v_bfe_u32 v23, s{S_T0}, v2, 4")
        e(f"s_mov_b32 s{S_CNT}, {NFB}")
        e(f"s_mov_b32 s{S_HOOK}, 0")
        if o.last:
            e("s_barrier")
            self.stamp(4)
        e("L_rpoll:")
        for k in range(4):
            e(f"buffer_load_dwordx4 v[{4 + 4 * k}:{7 + 4 * k}], v{V_Q}, s[{S_WS}:{S_WS + 3}], s{S_V + k} offen sc1")
        e(f"s_sub_u32 s{S_CNT}, s{S_CNT}, 1")
        e("s_cbranch_scc1 L_rlong")
        for k in range(4):
            e(f"s_waitcnt vmcnt({3 - k})")
            r = 4 + 4 * k
            for i in range(4):
                e(f"v_xor_b32 v{r + i}, s{S_TG[i]}, v{r + i}" + ("            ; a matching tag leaves four zero bits" if k + i == 0 else ""))
            if k == 0:
                e(f"v_or3_b32 v21, v{r}, v{r + 1}, v{r + 2}")
                e(f"v_or_b32 v21, v21, v{r + 3}")
            elif k < 3:
                e(f"v_or3_b32 v21, v21, v{r}, v{r + 1}")
                e(f"v_or3_b32 v21, v21, v{r + 2}, v{r + 3}")
            else:
                e(f"v_or3_b32 v21, v21, v{r}, v{r + 1}")
                e(f"v_or_b32 v22, v{r + 2}, v{r + 3}")
        e("v_bitop3_b32 v21, v21, v22, 15 bitop3:0xa8          ; (a | b) & c")
        e("v_cmp_ne_u32 vcc, 0, v21")
        e("s_wqm_b64 exec, vcc                       ; 64-byte units still waiting poll again")
        e("s_cbranch_scc1 L_rpoll")
        e("L_rgot:")
        e("s_mov_b64 exec, -1")
        self.stamp(1, "r")
        e(f"s_cmp_ge_u32 s{S_RID}, 6")
        e("s_cbranch_scc1 L_rmax")
        for kind in (0, 1):
            op = "v_add_f32" if kind == 0 else "v_max_f32"
            if kind == 1:
                e("L_rmax:")
                for i in range(4):
                    e(f"v_max3_f32 v{4 + i}, v{4 + i}, v{8 + i}, v{12 + i}")
                for i in (0, 2, 1, 3):
                    e(f"v_max_f32 v{4 + i}, v{4 + i}, v{16 + i}")
            else:
                e("v_pk_add_f32 v[4:5], v[4:5], v[8:9]")
                e("v_pk_add_f32 v[6:7], v[6:7], v[10:11]")
                e("v_pk_add_f32 v[12:13], v[12:13], v[16:17]")
                e("v_pk_add_f32 v[14:15], v[14:15], v[18:19]")
                e("v_pk_add_f32 v[4:5], v[4:5], v[12:13]")
                e("v_pk_add_f32 v[6:7], v[6:7], v[14:15]")
                e("s_nop 0")
            e(f"{op}_dpp v4, v4, v4 row_ror:8 row_mask:0xf bank_mask:0x3")
            if kind == 0:
                e(f"{op}_dpp v5, v5, v5 row_ror:8 row_mask:0xf bank_mask:0x3")
                e(f"{op}_dpp v4, v6, v6 row_ror:8 row_mask:0xf bank_mask:0xc")
            else:
                e(f"{op}_dpp v4, v6, v6 row_ror:8 row_mask:0xf bank_mask:0xc")
                e(f"{op}_dpp v5, v5, v5 row_ror:8 row_mask:0xf bank_mask:0x3")
            e(f"{op}_dpp v5, v7, v7 row_ror:8 row_mask:0xf bank_mask:0xc")
            e("s_nop 1")
            e("v_permlane16_swap_b32 v4, v5")
            e(f"{op} v4, v4, v5")
            e("v_mov_b32 v5, v4")
            e("s_nop 1")
            e("v_permlane32_swap_b32 v4, v5")
            e(f"{op} v4, v4, v5                        ; lane 16a+8b+c: element 2b+a of piece c")
            if kind == 0:
                e("s_branch L_rpub")
        e("L_rpub:")
        e("v_and_or_b32 v4, v4, -16, v23")
        for k in range(o.qcopy // 2):
            e(f"buffer_store_dword v4, v3, s[{S_WS}:{S_WS + 3}], s{S_W + k} offen sc1")
            if k == 0:
                self.stamp(9)
        if o.clean == "r":
            e("; this wave was the only reader of these lines: write them through, so that none stays dirty in L2")
            for i in range(4):
                e(f"v_mov_b32 v{8 + i}, 0")
            for k in range(4):
                e(f"buffer_store_dwordx4 v[8:11], v{V_Q}, s[{S_WS}:{S_WS + 3}], s{S_V + k} offen sc1")
        e("s_barrier")
        e("s_branch L_afterw")

        if o.pad:
            e(f".fill {o.pad // 4}, 4, 0xbf800000")
        e("; ---- waves 0..2 park 32 data registers in LDS to make room for the first layer's operands")
        e("L_spill:")
        e(f"s_lshl_b32 s{S_T0}, s{S_WAVE}, 13")
        e(f"v_lshl_add_u32 v{V_AT}, v1, 4, s{S_T0}")
        for k in range(8):
            e(f"ds_write_b128 v{V_AT}, v[{SP0 + 4 * k}:{SP0 + 4 * k + 3}] offset:{L_SPILL + 1024 * k}")
        e("L_barw:")
        if o.tlb:
            e("; wave 5 touches d_out once per region so that the first stores find their translations (values unused)")
            e(f"s_cmp_lg_u32 s{S_WAVE}, 5")
            e("s_cbranch_scc1 L_notlb")
            e(f"v_lshlrev_b32 v2, {o.tlb}, v1")
            e(f"buffer_load_dword v4, v2, s[{S_OUT}:{S_OUT + 3}], 0 offen")
            e("L_notlb:")
        if o.lpf == 1:
            e("; wave 4 pulls the code of the store phase into this die's L2 (values unused)")
            e(f"s_cmp_lg_u32 s{S_WAVE}, 4")
            e("s_cbranch_scc1 L_nolpf")
            e("s_getpc_b64 s[20:21]")
            e("v_lshlrev_b32 v2, 7, v1")
            e("v_min_u32 v2, L_end - L_nolpf, v2")
            e("global_load_dword v4, v2, s[20:21]")
            e("L_nolpf:")
        e("s_waitcnt vmcnt(0) lgkmcnt(0)")
        e("s_barrier")
        e("L_afterw:")
        e("v_bfe_u32 v3, v1, 2, 2")
        e("v_lshl_add_u32 v21, v20, 3, v3            ; row")
        e("v_and_b32 v22, 15, v21                    ; row of the half step (q&1)")
        e("v_and_b32 v3, 3, v1")
        e(f"s_lshl_b32 s{S_T2}, s{S_WAVE}, 5")
        e(f"v_lshl_add_u32 v23, v3, 3, s{S_T2}          ; column bytes")
        e("v_mov_b32 v3, 384")
        e("v_mad_u32_u24 v2, v21, v3, v23")
        e("v_mad_u32_u24 v22, v22, v3, v23")
        e(f"ds_read_b64_tr_b16 v[{B2}:{B2 + 1}], v2 offset:{L_W2}")
        e(f"ds_read_b64_tr_b16 v[{B2 + 2}:{B2 + 3}], v2 offset:{L_W2 + 4 * 384}")
        e(f"ds_read_b64_tr_b16 v[{B2 + 4}:{B2 + 5}], v22 offset:{L_W2 + 32 * 384}")
        e(f"ds_read_b64_tr_b16 v[{B2 + 6}:{B2 + 7}], v22 offset:{L_W2 + 36 * 384}")
        e("; H read addresses: kind*96 + q*16 ; half step: kind*96 + 64 + (q&1)*16")
        e("v_and_b32 v2, 1, v1")
        e("v_mul_u32_u24 v22, 96, v2")
        e(f"v_lshl_add_u32 v{V_H0}, v20, 4, v22")
        e("v_and_b32 v3, 1, v20")
        e(f"v_lshl_add_u32 v{V_H1}, v3, 4, v22")
        e(f"s_lshl_b32 s{S_T0}, s{S_WAVE}, 6")
        e(f"v_lshl_add_u32 v{V_SW}, v1, 2, s{S_T0}")
        if o.mul == "dot":
            e("; a scale sits in the half of its word that faces its channel, the other half is zero")
            e("v_mov_b32 v3, 0")
            e("s_mov_b64 exec, 0xffff")
            e(f"ds_write_b32 v{V_SW}, v3 offset:{L_S}")
            e("s_mov_b64 exec, -1")
            e(f"v_lshl_add_u32 v{V_SW}, v2, 1, v{V_SW}")
        e("v_and_b32 v3, 7, v1")
        e(f"s_lshl_b32 s{S_T0}, s{S_TY}, 8")
        e(f"v_lshl_add_u32 v{V_SR}, v3, 5, s{S_T0}")
        e("s_waitcnt lgkmcnt(0)")
        e("s_mov_b32 exec_lo, 0")
        for i in range(4):
            e(f"v_mov_b32 v{B2 + 4 + i}, 0")
        e("s_mov_b64 exec, -1")
        e(f"s_cmp_ge_u32 s{S_WAVE}, 3")
        e("s_cbranch_scc1 L_noa1")
        e("v_mov_b32 v3, 96")
        e("v_mad_u32_u24 v2, v21, v3, v23")
        for s in range(6):
            for h in range(2):
                r = A1 + 4 * s + 2 * h
                e(f"ds_read_b64_tr_b16 v[{r}:{r + 1}], v2 offset:{L_W1 + s * 3072 + h * 384}")
        e("L_noa1:")
        e(f"v_lshl_add_u32 v3, v20, 3, v22")
        e(f"v_add_u32 v3, s{S_T2}, v3")
        e("v_lshlrev_b32 v2, 2, v22")
        e("v_lshl_add_u32 v2, v20, 4, v2")
        e("v_and_b32 v8, 1, v1")
        e("v_lshlrev_b32 v8, 4, v8")
        e("v_lshl_add_u32 v8, v20, 2, v8")
        e("v_and_b32 v9, 2, v1")
        e("v_bfe_u32 v10, v1, 2, 1")
        e("v_add3_u32 v8, v8, v9, v10")
        if o.last:
            e("; value p of line w is channel 64*(w>>1) + 8*((p>>1)&7) + 4*(w&1) + 2*(p>>4) + (p&1)")
            e("v_bfe_u32 v9, v8, 1, 3")
            e("v_lshrrev_b32 v11, 4, v8")
            e("v_and_b32 v8, 1, v8")
            e("v_lshl_add_u32 v8, v11, 1, v8")
            e("v_lshl_add_u32 v8, v9, 3, v8")
            e(f"s_lshr_b32 s{S_T0}, s{S_WAVE}, 1")
            e(f"s_and_b32 s{S_T1}, s{S_WAVE}, 1")
            e(f"s_lshl4_add_u32 s{S_T0}, s{S_T0}, s{S_T1}")
            e(f"s_lshl_b32 s{S_T0}, s{S_T0}, 2")
            e(f"v_add_lshl_u32 v23, v8, s{S_T0}, 1")
        else:
            e(f"v_add_lshl_u32 v23, v8, s{S_T2}, 1")
        e("; second-stage address: (l>>2)*128 + (l&3)*16 in the copy kept for this die")
        e("v_lshrrev_b32 v8, 2, v1")
        e("v_lshlrev_b32 v8, 7, v8")
        e("v_and_b32 v9, 3, v1")
        e(f"v_lshl_add_u32 v{V_Q}, v9, 4, v8")
        e(f"s_and_b32 s{S_T0}, s{S_QC}, 4")
        if o.qcopy > 2:
            e(f"s_and_b32 s{S_CNT}, s{S_QC}, {o.qcopy // 2 - 1}")
            e(f"s_mul_i32 s{S_CNT}, s{S_CNT}, 24")
            e(f"s_add_u32 s{S_T0}, s{S_T0}, s{S_CNT}")
        e(f"s_lshr_b32 s{S_T1}, s{S_WAVE}, 2")
        e(f"s_lshl2_add_u32 s{S_T1}, s{S_T1}, s{S_WAVE}")
        e(f"s_add_u32 s{S_T1}, s{S_T1}, s{S_T0}")
        e(f"s_lshl_b32 s{S_T1}, s{S_T1}, 11")
        e(f"s_add_u32 s{S_T1}, s{S_T1}, {WS_Q}")
        if o.clean in ("q", "p", "a", "h", "g"):
            if o.cfull:
                for i in range(4):
                    e(f"v_mov_b32 v{16 + i}, s{S_TG[i]}")
                e("v_lshlrev_b32 v22, 4, v1")
            else:
                e(f"v_mov_b32 v19, s{S_TG[0]}")
            e(f"s_lshl_b32 s{S_V}, s{S_WAVE}, 7")
            e(f"s_add_u32 s{S_V}, s{S_V}, s{S_PO}")
        e(f"s_mov_b32 s{S_CNT}, {NFB}")
        e(f"s_mov_b32 s{S_HOOK}, 0")
        e(f"s_cmp_lt_u32 s{S_WAVE}, 6")
        e("s_cbranch_scc1 L_qpoll0")

        def clean1():
            e("; the reducer of line w is done: a write-through keeps this workgroup's line from staying dirty in L2")
            if o.cfull:
                e("s_mov_b64 exec, 0xff")
                e(f"buffer_store_dwordx4 v[16:19], v22, s[{S_WS}:{S_WS + 3}], s{S_V} offen sc1")
            else:
                e("s_mov_b64 exec, 1")
                e(f"buffer_store_dword v19, off, s[{S_WS}:{S_WS + 3}], s{S_V} sc1")
            e("s_mov_b64 exec, -1")

        for kind in (1, 0):
            op = "v_add_f32" if kind == 0 else "v_max_f32"
            if o.q2:
                def qld(r):
                    e(f"buffer_load_dwordx4 v[{r}:{r + 3}], v{V_Q}, s[{S_WS}:{S_WS + 3}], s{S_T1} offen sc1")

                def qchk(r):
                    e("s_waitcnt vmcnt(1)")
                    for i in range(4):
                        e(f"v_xor_b32 v{4 + i}, s{S_TG[i]}, v{r + i}")
                    e("v_or3_b32 v21, v4, v5, v6")
                    e("v_bitop3_b32 v21, v21, v7, 15 bitop3:0xa8")
                    e("v_cmp_ne_u32 vcc, 0, v21")
                    e("s_wqm_b64 exec, vcc")
                e(f"L_qpoll{kind}:")
                qld(8)
                e(f"s_sleep {o.q2}")
                e(f"L_qloop{kind}:")
                qld(12)
                e(f"s_sub_u32 s{S_CNT}, s{S_CNT}, 1")
                e(f"s_cbranch_scc1 L_qlong{kind}")
                qchk(8)
                e(f"s_cbranch_scc0 L_qgot{kind}")
                qld(8)
                qchk(12)
                e(f"s_cbranch_scc1 L_qloop{kind}")
            else:
                e(f"L_qpoll{kind}:")
                e(f"buffer_load_dwordx4 v[4:7], v{V_Q}, s[{S_WS}:{S_WS + 3}], s{S_T1} offen sc1")
                e(f"s_sub_u32 s{S_CNT}, s{S_CNT}, 1")
                e(f"s_cbranch_scc1 L_qlong{kind}")
                if o.qsleep:
                    e(f"s_sleep {o.qsleep}")
                e("s_waitcnt vmcnt(0)")
                for i in range(4):
                    e(f"v_xor_b32 v{4 + i}, s{S_TG[i]}, v{4 + i}")
                e("v_or3_b32 v21, v4, v5, v6")
                e("v_bitop3_b32 v21, v21, v7, 15 bitop3:0xa8")
                e("v_cmp_ne_u32 vcc, 0, v21")
                e("s_wqm_b64 exec, vcc")
                e(f"s_cbranch_scc1 L_qpoll{kind}")
            e(f"L_qgot{kind}:")
            if o.clean == "p":
                e("s_mov_b64 exec, 1")
                e(f"buffer_store_dword v19, off, s[{S_WS}:{S_WS + 3}], s{S_V} sc1")
            e("s_mov_b64 exec, -1")
            self.stamp(5)
            e("v_permlane32_swap_b32 v4, v6")
            e("v_permlane32_swap_b32 v5, v7")
            e(f"{op} v4, v4, v6")
            e(f"{op} v5, v5, v7")
            e("s_nop 1")
            e("v_permlane16_swap_b32 v4, v5")
            e(f"{op} v4, v4, v5")
            e(f"s_cmp_ge_u32 s{S_WAVE}, 3")
            e("s_nop 0")
            e(f"{op}_dpp v4, v4, v4 row_ror:8 row_mask:0xf bank_mask:0xf")
            if kind == 0:
                e("v_mul_f32 v4, 0x36800000, v4              ; 1/262144")
            e("v_cvt_pk_bf16_f32 v4, v4, v4")
            e(f"ds_write_b16 v23, v4 offset:{L_F}")
            if o.q2:
                e("s_waitcnt vmcnt(0)")
            if o.clean == "q" or (o.clean == "h" and kind == 1) or (o.clean == "g" and kind == 0):
                clean1()
            e("s_waitcnt lgkmcnt(0)")
            e("s_barrier")
            if kind == 1:
                if o.clean in ("a", "g"):
                    clean1()
                e("s_branch L_join")
            else:
                e("s_cbranch_scc1 " + ("L_clean0" if o.clean in ("a", "h") else "L_join"))

        e("; ---- waves 0..2: first MLP layer")
        e("L_mlp1:")
        for s in range(6):
            e(f"ds_read_b128 v[{B1[s]}:{B1[s] + 3}], v2 offset:{L_F + 64 * s}")
        if o.clean in ("a", "h"):
            clean1()
        for s in range(6):
            c = "0" if s == 0 else "v[20:23]"
            b = B1[s]
            e(f"s_waitcnt lgkmcnt({5 - s})")
            e(f"v_mfma_f32_16x16x32_bf16 v[20:23], v[{A1 + 4 * s}:{A1 + 4 * s + 3}], v[{b}:{b + 3}], {c}")
        e("s_nop 3")
        e("s_mov_b32 exec_lo, 0x00030003")
        e("s_mov_b32 exec_hi, 0x00030003")
        e("s_nop 1")
        for i in range(4):
            e(f"v_maximum3_f32 v{20 + i}, v{20 + i}, 0, 0")
        e("v_cvt_pk_bf16_f32 v20, v20, v21")
        e("v_cvt_pk_bf16_f32 v21, v22, v23")
        e(f"ds_write_b64 v3, v[20:21] offset:{L_H}")
        e("s_mov_b64 exec, -1")
        e("s_waitcnt lgkmcnt(0)")

        e("L_join:")
        e("s_barrier")
        self.stamp(6)
        e(f"ds_read_b128 v[4:7], v{V_H0} offset:{L_H}")
        e(f"ds_read_b128 v[8:11], v{V_H1} offset:{L_H + 64}")
        e("s_waitcnt lgkmcnt(1)")
        e(f"v_mfma_f32_16x16x32_bf16 v[12:15], v[4:7], v[{B2}:{B2 + 3}], 0")
        e("s_waitcnt lgkmcnt(0)")
        e(f"v_mfma_f32_16x16x32_bf16 v[12:15], v[8:11], v[{B2 + 4}:{B2 + 7}], v[12:15]")
        e("s_mov_b64 exec, 0xffff")
        e("s_nop 6")
        e("v_cvt_pk_bf16_f32 v12, 0, v12")
        e("v_cvt_pk_bf16_f32 v13, 0, v13")
        e("v_add_f32 v12, v12, v13")
        e("v_cvt_pk_bf16_f32 v12, 0, v12")
        e("v_mul_f32 v12, 0xbfb8aa3b, v12            ; -log2(e)")
        e("v_exp_f32 v12, v12")
        e("s_nop 0")
        e("v_add_f32 v12, 1.0, v12")
        e("v_rcp_f32 v12, v12")
        e("s_nop 0")
        if o.mul == "dot":
            e("v_cvt_pk_bf16_f32 v12, v12, v12")
            e(f"ds_write_b16 v{V_SW}, v12 offset:{L_S}")
        else:
            e("v_cvt_pk_bf16_f32 v12, 0, v12")
            e(f"ds_write_b32 v{V_SW}, v12 offset:{L_S}")
        e("s_mov_b64 exec, -1")
        e("s_waitcnt lgkmcnt(0)")
        e("s_barrier")
        e(f"ds_read_b128 v[4:7], v{V_SR} offset:{L_S}")
        e(f"ds_read_b128 v[8:11], v{V_SR} offset:{L_S + 16}")

        e("; ---- scale and store")
        if o.stlim:
            e(f"s_cmp_lt_u32 s2, {o.stlim}")
            e(f"s_cselect_b32 s{S_OUT + 2}, s{S_OUT + 2}, 0")
        zorder = [int(v) for v in o.zorder.split(",")]
        assert sorted(zorder) == list(range(16))
        restored = False
        late = []

        def wbl2():
            wv, lim, pos = [int(v) for v in o.wb.split(",")]
            e(f"s_cmp_lt_u32 s{S_WAVE}, {wv}")
            e("s_cbranch_scc1 L_nowb")
            e(f"s_cmp_ge_u32 s2, {lim}")
            e("s_cbranch_scc1 L_nowb")
            if pos == 33:
                e("s_waitcnt vmcnt(0)")
            e("buffer_wbl2 sc1")
            e("L_nowb:")
        jorder = [int(v) for v in o.jorder.split(",")] if o.jorder else [2 * z + u for z in zorder for u in (0, 1)]
        assert sorted(jorder) == list(range(32))
        self.pz = None
        for n, j in enumerate(jorder):
            a = D0 + 4 * j
            t0 = 12 + 8 * (n & 1)
            if a >= SP0 and not restored:
                assert n > 1
                e("s_waitcnt lgkmcnt(0)")
                restored = True
            md = o.mul
            for i in range(4 if md in ("pk", "mul", "u", "um") else 0):
                t = t0 + 2 * i
                e(f"v_lshlrev_b32 v{t}, 16, v{a + i}")
                e(f"v_and_b32 v{t + 1}, s{S_MASK}, v{a + i}")
            if n == 0:
                e("s_waitcnt lgkmcnt(0)")
                self.stamp(7)
            if o.al:
                e(f".p2align {o.al & 15}")
                if o.al >> 4:
                    e("s_nop 0")
            for i in range(4):
                t = t0 + 2 * i
                if md in ("pk", "um"):
                    e(f"v_pk_mul_f32 v[{t}:{t + 1}], v[{t}:{t + 1}], v[{4 + 2 * i}:{5 + 2 * i}]")
                if md == "mul":
                    e(f"v_mul_f32 v{t}, v{t}, v{4 + 2 * i}")
                    e(f"v_mul_f32 v{t + 1}, v{t + 1}, v{5 + 2 * i}")
                if md == "dot":
                    e(f"v_dot2_f32_bf16 v{t}, v{a + i}, v{4 + 2 * i}, 0")
                    e(f"v_dot2_f32_bf16 v{t + 1}, v{a + i}, v{5 + 2 * i}, 0")
            for i in range(4):
                t = t0 + 2 * i
                if md in ("pk", "mul", "dot"):
                    e(f"v_cvt_pk_bf16_f32 v{a + i}, v{t}, v{t + 1}")
                if md == "c":
                    e(f"v_cvt_pk_bf16_f32 v{a + i}, v{a + i}, v{a + (i ^ 1)}")
            def st(j=j, a=a, n=n):
                self.mem(j, lambda va, so: e(f"buffer_store_dwordx4 v[{a}:{a + 3}], {va}, s[{S_OUT}:{S_OUT + 3}], {so} offen{'' if n >= 32 - o.nplain else stf}"))
            if n < o.burst:
                st()
            else:
                late.append(st)
            if n == 31:
                for f in late:
                    f()
            if o.xfer and n == o.xspos:
                e(f"s_cmp_lg_u32 s{S_XR}, 2")
                e("s_cbranch_scc1 L_nox4")
                e(f"ds_read_b128 v[28:31], v{V_AT}")
                e(f"v_xad_u32 v32, v{V_G1}, s{S_XP}, v{V_L}")
                e("s_waitcnt lgkmcnt(0)")
                for i in range(4):
                    e(f"v_dot2_f32_bf16 v{12 + 2 * i}, v{28 + i}, v{4 + 2 * i}, 0")
                    e(f"v_dot2_f32_bf16 v{13 + 2 * i}, v{28 + i}, v{5 + 2 * i}, 0")
                for i in range(4):
                    e(f"v_cvt_pk_bf16_f32 v{28 + i}, v{12 + 2 * i}, v{13 + 2 * i}")
                e(f"buffer_store_dwordx4 v[28:31], v32, s[{S_OUT}:{S_OUT + 3}], s{S_XO} offen{stf}")
                e("L_nox4:")
            if n + 1 in o.sbar:
                e("s_barrier")
            if o.sthr and n >= o.sthr:
                e(f"s_waitcnt vmcnt({o.sthr - 1})")
            if o.wb and int(o.wb.split(",")[2]) == n:
                wbl2()
            if n & 1:
                self.trace("st", n >> 1)
            if n == 1:
                e(f"s_cmp_ge_u32 s{S_WAVE}, 3")
                e("s_cbranch_scc1 L_norestore")
                for k in range(8):
                    e(f"ds_read_b128 v[{SP0 + 4 * k}:{SP0 + 4 * k + 3}], v{V_AT} offset:{L_SPILL + 1024 * k}")
                e("L_norestore:")
                if o.clean == "st":
                    clean("L_noclean", 28, 32)
                    e("L_noclean:")
        if o.clean == "e":
            clean("L_noclean", 28, 32)
            e("L_noclean:")
        if o.wb and int(o.wb.split(",")[2]) >= 32:
            wbl2()
        if o.stamps:
            self.stamp(8)
            e("s_waitcnt vmcnt(0)")
            self.stamp(10)
            if o.idleclk:
                e("; wave 11 idles 40 us, then measures the clock over another 20 us into slots 1,2 / 3,6")
                e(f"s_cmp_lg_u32 s{S_WAVE}, 11")
                e("s_cbranch_scc1 L_noidle")
                for lbl, dur, m, r in (("a", o.idleclk, 1, 3), ("b", 2000, 2, 6)):
                    e("s_memrealtime s[96:97]")
                    e("s_waitcnt lgkmcnt(0)")
                    e(f"L_idle{lbl}:")
                    e("s_sleep 4")
                    e("s_memrealtime s[98:99]")
                    e("s_waitcnt lgkmcnt(0)")
                    e("s_sub_u32 s98, s98, s96")
                    e(f"s_cmp_lt_u32 s98, {dur}")
                    e(f"s_cbranch_scc1 L_idle{lbl}")
                    e(f"s_memtime s[{S_STAMP + 2 * m}:{S_STAMP + 2 * m + 1}]")
                    e(f"s_memrealtime s[{S_STAMP + 2 * r}:{S_STAMP + 2 * r + 1}]")
                e("L_noidle:")
            e("s_getreg_b32 s94, hwreg(HW_REG_XCC_ID)")
            e("s_getreg_b32 s95, hwreg(HW_REG_HW_ID)")
            e("s_waitcnt lgkmcnt(0)")
            e("v_mov_b32 v2, 0")
            for i in range(11 if o.trace else 14):
                e(f"v_writelane_b32 v2, s{S_STAMP + 2 * i}, {i}")
            e("v_writelane_b32 v2, s94, 14")
            e("v_writelane_b32 v2, s95, 15")
            e(f"s_mul_i32 s{S_T0}, s2, 12")
            e(f"s_add_u32 s{S_T0}, s{S_T0}, s{S_WAVE}")
            e(f"s_lshl_b32 s{S_T0}, s{S_T0}, 6")
            e(f"s_add_u32 s{S_T0}, s{S_T0}, {WS_STAMP}")
            e("v_mbcnt_lo_u32_b32 v3, -1, 0")
            e("v_lshlrev_b32 v3, 2, v3")
            e("s_mov_b64 exec, 0xffff")
            e(f"buffer_store_dword v2, v3, s[{S_WS}:{S_WS + 3}], s{S_T0} offen sc1")
            if o.trace:
                e("s_mov_b32 s91, s92")
                for i in range(16):
                    e(f"v_writelane_b32 v2, s{76 + i}, {i}")
                e(f"s_add_u32 s{S_T0}, s{S_T0}, {1 << 19}")
                e(f"buffer_store_dword v2, v3, s[{S_WS}:{S_WS + 3}], s{S_T0} offen sc1")
        if o.dbgptr:
            e("s_cmp_lg_u32 s2, 0")
            e("s_cbranch_scc1 L_nodp")
            e("s_mov_b64 exec, -1")
            e("v_mov_b32 v2, 0")
            for i, r in enumerate((4, 5, 8, 9, 12, 13, 16, 17, 0, 1)):
                e(f"v_writelane_b32 v2, s{r}, {i}")
            e("v_mbcnt_lo_u32_b32 v3, -1, 0")
            e("v_lshlrev_b32 v3, 2, v3")
            e("s_mov_b64 exec, 0x3ff")
            e(f"buffer_store_dword v2, v3, s[{S_DBG}:{S_DBG + 3}], 0 offen offset:8")
            e("L_nodp:")
        if o.probe:
            idx, K = [int(v) for v in o.probe.split(",")]
            if idx == -6:
                pass
            elif idx == -5:
                e("; skew probe: after the stamps are out, workgroups 0..7 read workgroup 0's entry stamp")
                e("s_cmp_ge_u32 s2, 8")
                e("s_cbranch_scc1 L_end")
            elif idx == -2:
                e("s_getreg_b32 s94, hwreg(HW_REG_XCC_ID)")
                e("s_xor_b32 s94, s94, s2")
                e("s_and_b32 s94, s94, 7")
                e("s_cbranch_scc0 L_end")
            elif idx == -3:
                e("s_cmp_lg_u32 s2, 0")
                e("s_cbranch_scc1 L_end")
            else:
                e(f"s_cmp_lg_u32 s2, {o.pwg}")
                e("s_cbranch_scc1 L_end")
            e(f"s_cmp_lg_u32 s{S_WAVE}, {o.pwave}")
            e("s_cbranch_scc1 L_end")
            if idx == -6:
                e("; every workgroup stays K times its own whole duration")
                e(f"s_sub_u32 s96, s{S_STAMP + 20}, s{S_STAMP}")
                e(f"s_mul_i32 s96, s96, {K}")
            elif idx == -5:
                e("s_mov_b32 s96, 0")
                e("L_sk:")
                e("s_sleep 100")
                e("s_add_u32 s96, s96, 1")
                e("s_cmp_lt_u32 s96, 4")
                e("s_cbranch_scc1 L_sk")
                e(f"s_mov_b32 s94, {WS_STAMP}")
                e(f"buffer_load_dword v4, off, s[{S_WS}:{S_WS + 3}], s94 sc1")
                e("s_waitcnt vmcnt(0)")
                e("v_readfirstlane_b32 s94, v4")
                e(f"s_sub_u32 s95, s{S_STAMP}, s94")
                e(f"s_mul_i32 s95, s95, {K - 1}")
                e("s_add_u32 s96, s95, 8000")
            elif idx == -4:
                e("; report the shader clock of phase K (0 read, 1 write): stay 50us + (MHz - 1800) * 0.2us")
                c0, c1, r0, r1 = ((11, 12, 0, 7), (12, 13, 7, 10))[K]
                e(f"s_sub_u32 s94, s{S_STAMP + 2 * c1}, s{S_STAMP + 2 * c0}")
                e(f"s_sub_u32 s95, s{S_STAMP + 2 * r1}, s{S_STAMP + 2 * r0}")
                e("v_cvt_f32_u32 v4, s94")
                e("v_cvt_f32_u32 v5, s95")
                e("v_rcp_f32 v5, v5")
                e("s_nop 1")
                e("v_mul_f32 v4, v4, v5")
                e("v_mul_f32 v4, 0x44fa0000, v4")
                e("v_cvt_u32_f32 v4, v4")
                e("s_nop 1")
                e("v_readfirstlane_b32 s96, v4")
                e("s_sub_u32 s96, s96, 31000")
            elif idx <= -10:
                e("; report 7 bits (from bit K) of an SGPR: (-idx - 10) names the register")
                e(f"s_bfe_u32 s94, s{-idx - 10}, {(7 << 16)} + {K}")
                e("s_mul_i32 s96, s94, 200")
                e("s_add_u32 s96, s96, 5000")
            elif idx == -3:
                e("s_getreg_b32 s94, hwreg(HW_REG_XCC_ID)")
                e("s_and_b32 s94, s94, 7")
                e(f"s_mul_i32 s96, s94, {K}")
                e("s_add_u32 s96, s96, 5000")
            elif idx < 0:
                e(f"s_mov_b32 s96, {K}")
            else:
                e(f"s_sub_u32 s96, s{S_STAMP + 2 * idx}, s{S_STAMP + 2 * o.pref}")
                e(f"s_mul_i32 s96, s96, {K}")
                if o.pref:
                    e("s_add_u32 s96, s96, 5000")
            e("s_min_u32 s96, s96, 200000")
            e("L_probe:")
            e("s_memrealtime s[98:99]")
            e("s_waitcnt lgkmcnt(0)")
            e(f"s_sub_u32 s98, s98, s{S_STAMP}")
            e("s_cmp_lt_u32 s98, s96")
            e("s_cbranch_scc1 L_probe")
        e("L_end:")
        e("s_endpgm")

        e("@@ROLE")
        e(".p2align 7")
        e("L_role:")
        e("s_load_dwordx4 s[44:47], s[0:1], 32")
        e(f"s_lshr_b32 s{S_V + 1}, s2, 3")
        e(f"s_and_b32 s{S_T1}, s2, 1")
        e(f"s_lshl1_add_u32 s{S_T1}, s{S_T1}, 1")
        e(f"s_mul_i32 s{S_T2}, s2, 0x104100")
        e(f"s_cmp_eq_u32 s2, {NVOTE_WG}")
        e("s_waitcnt lgkmcnt(0)")
        e("s_cbranch_scc1 L_tag")
        e(f"s_sub_u32 s{S_T0}, s{S_OUT}, s{S_X}")
        e(f"s_addk_i32 s{S_T0}, 2048")
        e(f"s_bitcmp1_b32 s{S_T0}, 12")
        e(f"s_cselect_b32 s{S_V}, {o.qout}, {o.qgen}")
        e(f"s_cselect_b32 s{S_V + 2}, s{S_V + 1}, 1")
        e(f"s_cmp_eq_u32 s{S_V + 2}, 2")
        e(f"s_cselect_b32 s{S_V + 1}, s{S_T1}, s{S_V + 1}")
        e(f"s_bitcmp1_b32 s{S_V + 1}, 0")
        e(f"s_cselect_b64 s[{S_W}:{S_W + 1}], s[8:9], s[4:5]")
        e(f"s_lshr_b32 s{S_T1}, s{S_V + 1}, 1")
        e(f"s_lshl_b32 s{S_T1}, s{S_T1}, 25" if o.bfirst else f"s_lshl_b32 s{S_T1}, 0x2000000, s{S_T1}")
        e(f"s_add_u32 s{S_T2}, s{S_T2}, s{S_T1}")
        e(f"s_lshr_b32 s{S_T0}, s{S_OUT}, 7")
        e(f"s_mul_i32 s{S_T0}, s{S_T0}, 21")
        e(f"s_and_b32 s{S_T0}, s{S_T0}, 63")
        e(f"s_mulk_i32 s{S_T0}, 384")
        e(f"s_add_u32 s{S_T0}, s{S_T0}, s{S_T2}")
        e(f"s_cmp_lg_u32 s{S_V + 2}, 0")
        e(f"s_cselect_b32 s{S_V + 3}, s{S_OUT}, 0")
        e("s_cbranch_scc1 L_notws")
        e(f"s_mov_b64 s[{S_W}:{S_W + 1}], s[46:47]")
        e(f"s_mov_b32 s{S_V}, {o.qws}")
        e(f"s_and_b32 s{S_T0}, s{S_T2}, 0xfffff")
        e(f"s_add_u32 s{S_T0}, s{S_T0}, {WS_PROBE}")
        e("L_notws:")
        e(f"s_add_u32 s{S_T1}, s{S_T0}, 8192")
        self.stamp(1, True)
        e(f"s_load_dword s42, s[{S_W}:{S_W + 1}], s{S_T0} glc")
        e(f"s_load_dword s43, s[{S_W}:{S_W + 1}], s{S_T1} glc")
        e(f"s_mov_b32 s{S_CNT}, {-(NRACE // 2)}")
        if o.dpf:
            e(f"s_load_dword s23, s[44:45], 192 glc")
        for k in range(NRACE):
            e("s_waitcnt lgkmcnt(0)")
            if k < 2:
                self.stamp(2 + k, True)
                if o.vdiag:
                    e("s_waitcnt lgkmcnt(0)")
            first, second = (S_T0, S_T1) if k % 2 == 0 else (S_T1, S_T0)
            e(f"s_load_dword s42, s[{S_W}:{S_W + 1}], s{first} glc")
            e(f"s_load_dword s43, s[{S_W}:{S_W + 1}], s{second} glc")
            e("s_waitcnt lgkmcnt(1)")
            e("s_nop 7")
            e(f"s_getreg_b32 s{S_T2}, hwreg(HW_REG_IB_STS, 8, 4)   ; 1: the second answer is still out")
            if k % 2 == 0:
                e(f"s_xor_b32 s{S_T2}, s{S_T2}, 1")
            e(f"s_add_u32 s{S_CNT}, s{S_CNT}, s{S_T2}")
        assert NRACE % 2 == 0 and o.qout <= 12 and o.qws <= 8 and o.qgen <= 8 and NVOTE_WG == 32
        e(f"s_sub_u32 s{S_T2}, 0, s{S_CNT}")
        e(f"s_add_u32 s{S_T0}, s{S_T0}, s{S_V + 3}")
        e(f"s_lshr_b32 s{S_T0}, s{S_T0}, 19")
        e(f"s_getreg_b32 s{S_T1}, hwreg(HW_REG_XCC_ID, 0, 3)")
        e(f"s_xor_b32 s{S_T0}, s{S_T0}, s{S_T1}")
        e(f"s_bitcmp1_b32 s{S_T0}, 2")
        e(f"s_cselect_b32 s{S_CNT}, s{S_T2}, s{S_CNT}")
        e(f"s_lshl_b32 s{S_CNT}, s{S_CNT}, 8")
        e(f"s_or_b32 s{S_CNT}, s{S_CNT}, 1")
        e(f"s_mov_b32 s{S_T1}, s{S_CNT}")
        e(f"s_lshl2_add_u32 s{S_T0}, s{S_V + 1}, {DBG_TAL}")
        self.stamp(6, True)
        e(f"s_atomic_add s{S_T1}, s[44:45], s{S_T0} glc")
        e(f"s_mul_i32 s{S_T2}, s{S_V + 1}, 6")
        e("s_waitcnt lgkmcnt(0)")
        e(f"s_add_u32 s{S_T1}, s{S_T1}, s{S_CNT}")
        self.stamp(13)
        e(f"s_and_b32 s{S_T0}, s{S_T1}, 0xff")
        e(f"s_cmp_lg_u32 s{S_T0}, s{S_V}")
        e("s_cbranch_scc1 L_stream")
        e("; exactly one voter completes the tally's quorum: it publishes bit 11+6t (known) and bit 12+6t (margin > 0)")
        e(f"s_cmp_gt_i32 s{S_T1}, 0xff")
        e(f"s_cselect_b32 s{S_T1}, 3, 1")
        e(f"s_add_u32 s{S_T2}, s{S_T2}, 11")
        e(f"s_lshl_b32 s{S_T1}, s{S_T1}, s{S_T2}")
        e("L_publish:")
        e(f"s_atomic_add s{S_T1}, s[44:45], {DBG_RES}")
        e("s_waitcnt lgkmcnt(0)")
        e("s_branch L_stream")

        e("; ---- one wave draws this launch's hand-off tag: different from the one the last launch left behind")
        e("L_tag:")
        e(f"s_mov_b32 s{S_T1}, 1")
        e("s_waitcnt lgkmcnt(0)")
        e(f"s_atomic_add s{S_T1}, s[46:47], {WS_E} glc")
        e("s_waitcnt lgkmcnt(0)")
        e(f"s_add_u32 s{S_T1}, s{S_T1}, 1")
        e(f"s_and_b32 s{S_T1}, s{S_T1}, 0xff")
        e(f"s_bitset1_b32 s{S_T1}, 8")
        assert NVOTE_WG % 8 == 0
        e(f"s_getreg_b32 s{S_T0}, hwreg(HW_REG_XCC_ID, 0, 3)")
        e(f"s_lshl_b32 s{S_T0}, s{S_T0}, 13")
        e(f"s_or_b32 s{S_T1}, s{S_T1}, s{S_T0}")
        self.stamp(13)
        e("s_branch L_publish")

        e("@@RARE")
        if o.hmax:
            e("; ---- magnitudes from 2^121 up: the maxes again, in f32")
            e("L_exact:")
            for jj in range(16):
                mpair(D0 + 8 * jj, D0 + 8 * jj + 4, jj == 0, False)
            mscatter()
            e("s_branch L_maxok")
        e("; ---- a wait has lasted: the group's reducers may sit on another die, so write this")
        e(";      workgroup's first-stage lines through to memory")
        if o.clean in ("a", "h"):
            e("L_clean0:")
            clean1()
            e("s_branch L_join")
        for nm in ("r", "q0", "q1"):
            k = nm[1:]
            e(f"L_{nm[0]}long{k}:")
            e("s_waitcnt vmcnt(0)")
            e(f"s_cmp_lg_u32 s{S_HOOK}, 0")
            e(f"s_cbranch_scc1 L_{nm[0]}got{k}")
            e(f"s_call_b64 s[{S_RET}:{S_RET + 1}], L_flush")
            e(f"s_branch L_{nm[0]}poll{k}")
        e("L_flush:")
        e(f"s_mov_b32 s{S_CNT}, {SPIN}")
        e(f"s_mov_b32 s{S_HOOK}, {SPIN}")
        e("s_mov_b32 exec_lo, -1")
        e("s_mov_b32 exec_hi, 0xffff")
        e("v_lshlrev_b32 v13, 4, v1")
        e("L_floop:")
        e(f"buffer_load_dwordx4 v[8:11], v13, s[{S_WS}:{S_WS + 3}], s{S_PO} offen sc1")
        e(f"buffer_load_dwordx4 v[4:7], v13, s[{S_WS}:{S_WS + 3}], s{S_PO} offen offset:768 sc1")
        e(f"s_sub_u32 s{S_HOOK}, s{S_HOOK}, 1")
        e("s_waitcnt vmcnt(0)")
        e(f"v_xor_b32 v12, s{S_TG[0]}, v8")
        for r in (9, 10, 11, 4, 5, 6, 7):
            e(f"v_bitop3_b32 v12, v12, v{r}, s{S_TG[r & 3]} bitop3:0xf6")
        e("v_and_b32 v12, 15, v12")
        e("v_cmp_ne_u32 vcc, 0, v12")
        e("s_cbranch_scc1 L_fdone")
        e("s_cbranch_vccnz L_floop")
        e("L_fdone:")
        e(f"buffer_store_dwordx4 v[8:11], v13, s[{S_WS}:{S_WS + 3}], s{S_PO} offen sc1")
        e(f"buffer_store_dwordx4 v[4:7], v13, s[{S_WS}:{S_WS + 3}], s{S_PO} offen offset:768 sc1")
        e("s_waitcnt vmcnt(0)")
        e("s_mov_b64 exec, -1")
        e(f"s_mov_b32 s{S_HOOK}, -1")
        e(f"s_setpc_b64 s[{S_RET}:{S_RET + 1}]")

        e("@@DPOLL")
        e("; ---- result not there yet: poll past the scalar cache")
        e("L_dpoll:")
        e(f"s_mov_b32 s{S_CNT}, {SPIN}")
        e(f"v_mov_b32 v{V_AT}, 0")
        e("s_mov_b64 exec, 1")
        e("L_dloop:")
        e(f"buffer_load_dword v{V_AT}, off, s[{S_DBG}:{S_DBG + 3}], 0 offset:{DBG_RES} sc1")
        e(f"s_sleep {o.dsleep}")
        e("s_waitcnt vmcnt(24)")
        e(f"v_readfirstlane_b32 s{S_T2}, v{V_AT}          ; whatever poll has landed last")
        e(f"s_sub_u32 s{S_CNT}, s{S_CNT}, 1")
        e("s_cbranch_scc1 L_dgot")
        e(f"s_andn2_b32 s{S_OFF}, s{S_OK}, s{S_T2}")
        e("s_cbranch_scc1 L_dloop")
        e("L_dgot:")
        e("s_mov_b64 exec, -1")
        e("s_branch L_decided")

        e("@@END")
        L = self.lines
        ix = {k: L.index("    @@" + k) for k in ("ROLE", "RARE", "DPOLL", "END")}
        role, rare, dpoll = L[ix["ROLE"] + 1:ix["RARE"]], L[ix["RARE"] + 1:ix["DPOLL"]], L[ix["DPOLL"] + 1:ix["END"]]
        main = L[:ix["ROLE"]]
        p1, p2 = main.index("    @@HERE1"), main.index("    @@HERE2")
        if o.lay:
            self.lines = (main[:p1] + ["    s_branch L_skip1"] + role + dpoll + ["L_skip1:"] + main[p1 + 1:p2]
                          + ["    s_branch L_tail"] + rare + ["    .p2align 12", "L_tail:"] + main[p2 + 1:])
        else:
            self.lines = main[:p1] + main[p1 + 1:p2] + main[p2 + 1:] + role + rare + dpoll

    def text(self):
        out = HEADER
        out += f"; @launch grid=({NWG},1,1) block=(768,1,1) lds={L_TOTAL}\n"
        out += DOC
        out += '.amdgcn_target "amdgcn-amd-amdhsa--gfx950"\n.text\n'
        out += f".globl {KNAME}\n.p2align 8\n.type {KNAME},@function\n{KNAME}:\n"
        out += "\n".join(self.lines) + "\n"
        out += f""".section .rodata,"a"
.p2align 6
.amdhsa_kernel {KNAME}
  .amdhsa_next_free_vgpr 168
  .amdhsa_next_free_sgpr {100 if self.o.stamps else 96 if self.o.xfer else 56}
  .amdhsa_accum_offset 168
  .amdhsa_group_segment_fixed_size 0
  .amdhsa_kernarg_size 48
  .amdhsa_user_sgpr_count 2
  .amdhsa_user_sgpr_kernarg_segment_ptr 1
  .amdhsa_system_sgpr_workgroup_id_x 1
  .amdhsa_float_denorm_mode_32 3
.end_amdhsa_kernel
"""
        return out


def main():
    p = argparse.ArgumentParser()
    p.add_argument("-o", default="standalone__channel_attn_cbam__vision.s")
    p.add_argument("--ldflags", default="nt")
    p.add_argument("--stflags", default="sc1")
    p.add_argument("--p1flags", default="sc1")
    p.add_argument("--stamps", action="store_true")
    p.add_argument("--probe", default="")
    p.add_argument("--depth", type=int, default=10)
    p.add_argument("--nrace", type=int, default=2)
    p.add_argument("--dsleep", type=int, default=8)
    p.add_argument("--trace", default="")
    p.add_argument("--nodec", action="store_true")
    p.add_argument("--vdiag", action="store_true")
    p.add_argument("--dbgptr", action="store_true")
    p.add_argument("--opp", default="5,9", type=lambda v: [int(x) for x in v.split(",")])
    p.add_argument("--quorum", type=int, default=16)
    p.add_argument("--quorum4", type=int, default=24)
    p.add_argument("--nvote", type=int, default=32)
    p.add_argument("--nagn", type=int, default=6)
    p.add_argument("--stlim", type=int, default=0)
    p.add_argument("--psc1", action="store_true")
    p.add_argument("--pnt", action="store_true")
    p.add_argument("--hookpos", type=int, default=8)
    p.add_argument("--hmax", type=int, default=0)
    p.add_argument("--msum", type=int, default=1)
    p.add_argument("--last", type=int, default=1)
    p.add_argument("--h6", type=int, default=0)
    p.add_argument("--bfirst", default="")
    p.add_argument("--q2", type=int, default=0)
    p.add_argument("--xfer", type=int, default=0)
    p.add_argument("--xpos", type=int, default=26)
    p.add_argument("--xspos", type=int, default=26)
    p.add_argument("--qout", type=int, default=7)
    p.add_argument("--qws", type=int, default=4)
    p.add_argument("--qgen", type=int, default=5)
    p.add_argument("--jorder", default="0,12,1,13,2,14,3,15,4,16,5,17,6,18,7,19,8,20,9,21,10,22,11,23,24,25,26,27,28,29,30,31")
    p.add_argument("--urot", type=int, default=0)
    p.add_argument("--lmap", type=int, default=0)
    p.add_argument("--qrot", type=int, default=0)
    p.add_argument("--umap", type=int, default=0)
    p.add_argument("--cfull", type=int, default=1)
    p.add_argument("--wtouch", type=int, default=1)
    p.add_argument("--lay", type=int, default=1)
    p.add_argument("--skipfrom", type=int, default=99)
    p.add_argument("--ttail", type=int, default=0)
    p.add_argument("--tlb", type=int, default=0)
    p.add_argument("--rot", type=int, default=0)
    p.add_argument("--pad", type=int, default=0)
    p.add_argument("--lpf", type=int, default=0)
    p.add_argument("--al", type=int, default=0)
    p.add_argument("--cap", type=int, default=0)
    p.add_argument("--capfrom", type=int, default=12)
    p.add_argument("--capto", type=int, default=32)
    p.add_argument("--skewa", type=int, default=1)
    p.add_argument("--skewd", type=int, default=1)
    p.add_argument("--skewc", type=int, default=0)
    p.add_argument("--skew", type=int, default=0, help="timing diagnostic only")
    p.add_argument("--warmfl", default="")
    p.add_argument("--sdiag", action="store_true")
    p.add_argument("--rpf", type=int, default=0)
    p.add_argument("--dpf", type=int, default=0)
    p.add_argument("--pwg", type=int, default=0)
    p.add_argument("--pwave", type=int, default=0)
    p.add_argument("--pref", type=int, default=0)
    p.add_argument("--qshift", type=int, default=32)
    p.add_argument("--rolepos", type=int, default=-1)
    p.add_argument("--prebar", type=int, default=1)
    p.add_argument("--qmap", type=int, default=0)
    p.add_argument("--agnu", type=int, default=4)
    p.add_argument("--warmst", type=int, default=0)
    p.add_argument("--cw", type=int, default=0)
    p.add_argument("--cld", action="store_true")
    p.add_argument("--qflip", type=int, default=0)
    p.add_argument("--qcopy", type=int, default=4)
    p.add_argument("--mul", default="dot")
    p.add_argument("--burst", type=int, default=32)
    p.add_argument("--idleclk", type=int, default=0)
    p.add_argument("--clk", action="store_true")
    p.add_argument("--sthr", type=int, default=0)
    p.add_argument("--sbar", default=[24], type=lambda v: [int(x) for x in v.split(",")])
    p.add_argument("--piece", type=int, default=128)
    p.add_argument("--xbar", default=[20, 24], type=lambda v: [int(x) for x in v.split(",")])
    p.add_argument("--cpf", type=int, default=0)
    p.add_argument("--cpfpos", type=int, default=0)
    p.add_argument("--wpace", type=int, default=40)
    p.add_argument("--clean", default="g")
    p.add_argument("--warm", type=int, default=30)
    p.add_argument("--warmwave", type=int, default=4)
    p.add_argument("--qsleep", type=int, default=0)
    p.add_argument("--red0", type=int, default=8)
    p.add_argument("--redstep", type=int, default=2)
    p.add_argument("--off", default="", help="diagnostics: v = no votes, c = no clears, r = result not read")
    p.add_argument("--spans", default="")
    p.add_argument("--split", action="store_true")
    p.add_argument("--pfback", type=int, default=0)
    p.add_argument("--nplain", type=int, default=0)
    p.add_argument("--wb", default="", help="minwave,wglimit,pos")
    p.add_argument("--thr", type=int, default=2)
    p.add_argument("--thrfrom", type=int, default=12)
    p.add_argument("--thrto", type=int, default=26)
    p.add_argument("--thrmask", default="0x55")
    p.add_argument("--zorder", default="8,0,9,1,10,2,11,3,12,4,13,5,14,6,15,7")
    o = p.parse_args()
    global NAGN, SPANS, NVOTE_WG
    NVOTE_WG = o.nvote
    NAGN = o.nagn
    if NAGN == 6:
        SPANS = [(0, 0), (0, 1), (1, 0), (1, 1), (2, 0), (2, 1),
                 (3, 0), (3, 1), (4, 0), (4, 1), (5, 0), (5, 1), (6, 0), (6, 1), (7, 0), (7, 1)]
        if o.zorder == p.get_default("zorder"):
            o.zorder = "6,0,7,1,8,2,9,3,10,4,11,5,12,13,14,15"
    if o.bfirst:
        st = [int(c) for c in o.bfirst]
        SPANS = [(a, h) for a in st for h in (0, 1)]
        o.agn0 = st[0] * 12 * MiB
    if o.xfer:
        global L_TOTAL
        L_TOTAL = L_X + 12288
        SPANS[14], SPANS[15] = SPANS[15], SPANS[14]
    if o.spans:
        SPANS = [(int(v[0]), int(v[1])) for v in o.spans.split(",")]
        assert sorted(SPANS) == [(a, b) for a in range(8) for b in range(2)]
    g = G(o)
    g.build()
    open(o.o, "w").write(g.text())


if __name__ == "__main__":
    main()
```

```python
import argparse

KNAME = "standalone__channel_attn_cbam__vision_kernel"

HEADER = """; Kernarg layout for this problem (48 bytes, ptrs only, base s[0:1]):
;   offset   0: d_in[0] x  shape=(1, 512, 512, 192) dtype=bfloat16 strides=(100663296, 196608, 384, 2) contiguous=True
;   offset   8: d_in[1] w1  shape=(192, 48) dtype=bfloat16 strides=(96, 2) contiguous=True
;   offset  16: d_in[2] w2  shape=(48, 192) dtype=bfloat16 strides=(384, 2) contiguous=True
;   offset  40: d_ws      402653184 bytes workspace (unspecified values whenever your kernel or launch list starts; a list's later launches find what earlier ones wrote)
"""

DOC = '''; ---------------------------------------------------------------------------------------------
; x (96 MiB) is read once and stays in registers (128 VGPRs per lane) across a grid-wide
; all-reduce of the per-channel sum and max; every workgroup then runs the small MLP (MFMA),
; scales its registers and writes them out.  A lane always holds the same eight channels; the
; sums are accumulated in f32 by MFMA against a 0/1 selector, the maxes on the VALU.
;
; Which rows a workgroup owns.  The first 36 MiB are dealt out statically.  The rest is shared by
; and writes across them are slow): wave 0 of the first 32 workgroups times two lines against
;
; All-reduce.  Stage 1: the 32 workgroups with the same b % 8 leave 12 lines each in d_ws and
; Stage 1 uses plain stores, which a reader on the same die sees in L2; if a wait lasts, every
; ---------------------------------------------------------------------------------------------
'''

X_BYTES = 100663296
NWG = 256
NRED = 12
MiB = 1 << 20

L_RED = 0
L_H = 6144
L_CNT = 6336
L_S = 6400
L_F = 7168
L_W1 = 8192
L_W2 = L_W1 + 18432
L_SPILL = L_W2 + 18432
L_X = L_SPILL + 3 * 8192
L_TOTAL = L_X

WS_P = 0
WS_Q = 256 * 1536
WS_E = WS_Q + 4 * 49152
WS_USED = WS_E + 128
WS_PROBE = 640 * 1024
WS_STAMP = 1 << 20

S_X, S_OUT, S_WS, S_DBG, S_W = 4, 8, 12, 16, 20
S_WAVE, S_TY, S_SUB, S_OFF, S_MASK, S_CNT, S_T0, S_T1 = 28, 29, 30, 31, 32, 33, 34, 35
S_BASE, S_PM, S_P, S_T2 = 48, 49, 50, 51
S_AGN, S_RID, S_PO = 40, 42, 43
S_TG = [41, 47, 3, 0]
S_RET, S_HOOK, S_QC = 38, 46, 1
S_BASE1 = 45
NFB = 48
S_STAMP = 52
S_V = 24

D0 = 40
SPIN = 2000000
V_L, V_G0, V_G1, V_AT = 0, 39, 38, 36

NAGN = 8
SPANS = [(0, 0), (0, 1), (1, 0), (1, 1), (2, 0), (2, 1), (3, 0), (3, 1),
         (6, 0), (4, 0), (6, 1), (4, 1), (7, 0), (5, 0), (7, 1), (5, 1)]
W_ROLE = 0
DBG_RES, DBG_TAL = 0, 128
NVOTE_WG = 32
RES_OK = (1 << 8) | (1 << 11) | (1 << 17) | (1 << 29)
S_OK = 44
S_XR, S_XO, S_XP = 92, 93, 91


def mask(pred):
    return sum(1 << z for z, s in enumerate(SPANS) if pred(z, s))


class G:
    def __init__(self, o):
        self.o = o
        self.lines = []

    def e(self, s=""):
        self.lines.append(("    " + s) if s and not s.endswith(":") else s)

    def stamp(self, idx, vote=False):
        if self.o.clk:
            if idx in (11, 12, 13):
                return
            m = {0: 11, 7: 12, 10: 13}.get(idx)
            if m:
                self.e(f"s_memtime s[{S_STAMP + 2 * m}:{S_STAMP + 2 * m + 1}]")
        if vote == "r":
            vote = False
        if self.o.vdiag and idx in (1, 2, 3, 6) and not vote:
            return
        if vote and not self.o.vdiag:
            return
        if self.o.stamps and not (self.o.trace and idx > 10):
            self.e(f"s_memrealtime s[{S_STAMP + 2 * idx}:{S_STAMP + 2 * idx + 1}]")

    def srd(self, d, lo, nbytes):
        e = self.e
        e(f"s_mov_b64 s[{d}:{d + 1}], s[{lo}:{lo + 1}]")
        e(f"s_mov_b32 s{d + 2}, {nbytes}")
        e(f"s_mov_b32 s{d + 3}, 0x20000")

    def span_off(self, z):
        return SPANS[z][0] * 12 * MiB + SPANS[z][1] * 49152

    def mem(self, j, fn):
        e = self.e
        z, u = j >> 1, j & 1
        if z < NAGN:
            if self.o.bfirst:
                off = SPANS[z][0] * 12 * MiB + (j % 4) * 12288 - self.o.agn0
            else:
                off = (j // self.o.agnu) * (self.o.agnu * 3 * MiB - (self.o.skew if self.o.skewa else 0)) + (j % self.o.agnu) * 12288
            so = f"s{S_OFF}" if off else f"s{S_AGN}"
            if off:
                e(f"s_add_u32 s{S_OFF}, s{S_AGN}, {off}")
            if SPANS[z] == (7, 1):
                at = 2 + u
                e(f"v_add_u32 v{at}, {so}, v{V_L}")
                e(f"v_subrev_u32 v{5 - at}, s{S_X + 2}, v{at}")
                e(f"v_min_u32 v{at}, v{at}, v{5 - at}             ; past the end: wrap to the rows the shift skipped")
                fn(f"v{at}", "0")
            else:
                fn(f"v{V_L}", so)
            return
        if getattr(self, "pz", None) != z:
            e(f"s_bitcmp1_b32 s{S_PM}, {z}")
            e(f"s_cselect_b32 s{S_P}, 24576, 0")
            self.pz = z
        e(f"s_add_u32 s{S_OFF}, s{(S_BASE, S_BASE1)[SPANS[z][1]]}, {SPANS[z][0] * 12 * MiB - self.o.skew * (SPANS[z][0] * self.o.skewd + self.o.skewc) + 12288 * u}")
        at = 2 + u
        if self.o.xfer and j == 31:
            e(f"s_cmp_eq_u32 s{S_XR}, 1")
            e(f"s_cselect_b32 s{S_P}, 0x40000000, s{S_P}")
            self.pz = None
        e(f"v_xad_u32 v{at}, v{(V_G0, V_G1)[u]}, s{S_P}, v{V_L}")
        if SPANS[z] == (7, 1):
            e(f"v_add_u32 v{at}, s{S_OFF}, v{at}")
            e(f"v_subrev_u32 v{5 - at}, s{S_X + 2}, v{at}")
            e(f"v_min_u32 v{at}, v{at}, v{5 - at}             ; past the end: wrap to the rows the shift skipped")
            fn(f"v{at}", "0")
        else:
            fn(f"v{at}", f"s{S_OFF}")

    def trace(self, kind, n):
        if self.o.trace == kind:
            if n > 0:
                self.e("s_waitcnt lgkmcnt(0)")
                self.e(f"s_mov_b32 s{76 + n - 1}, s92")
            self.e("s_memrealtime s[92:93]")

    def build(self):
        o, e = self.o, self.e
        NRACE = o.nrace
        ldf = (" " + o.ldflags) if o.ldflags else ""
        stf = (" " + o.stflags) if o.stflags else ""

        self.stamp(0)
        e("s_load_dwordx2 s[4:5], s[0:1], 0          ; x")
        e("s_load_dwordx2 s[8:9], s[0:1], 24         ; out")
        e("v_readfirstlane_b32 s%d, v0" % S_WAVE)
        e("v_and_b32 v1, 63, v0                      ; lane")
        pl = (o.piece // 16).bit_length() - 1
        e(f"v_bfe_u32 v2, v0, {pl}, {6 - pl}")
        e(f"v_mul_u32_u24 v2, {(3 * o.piece, 1536, 768, 384)[o.lmap]}, v2")
        e(f"v_and_b32 v3, {(1 << pl) - 1}, v0")
        e("s_cmpk_ge_u32 s2, %d" % NWG)
        e("s_cbranch_scc1 L_end")
        if o.rot:
            e(f"s_add_u32 s2, s2, {o.rot}")
            e("s_and_b32 s2, s2, 255")
        if o.rolepos < 0:
            e(f"s_lshl2_add_u32 s{S_T1}, s{S_WAVE}, s2")
            e(f"s_cmp_le_u32 s{S_T1}, {NVOTE_WG}              ; wave 0 of the first workgroups has a side job")
            e("s_cbranch_scc1 L_role")
            e("L_stream:")
        if o.lmap == 1:
            e("v_lshl_add_u32 v0, v3, 4, v2")
            e(f"v_lshl_add_u32 v{V_L}, s{S_WAVE}, 1, v0")
            e(f"s_lshr_b32 s{S_WAVE}, s{S_WAVE}, 6")
        elif o.lmap == 3:
            e(f"s_lshr_b32 s{S_TY}, s{S_WAVE}, 8")
            e(f"s_lshr_b32 s{S_WAVE}, s{S_WAVE}, 6")
            e(f"s_and_b32 s{S_SUB}, s{S_WAVE}, 3              ; sub = wave % 4")
            e(f"s_mul_i32 s{S_T0}, s{S_SUB}, 24")
            e(f"s_add_u32 s{S_T0}, s{S_T0}, s{S_TY}")
            e("v_lshl_add_u32 v0, v3, 4, v2")
            e(f"v_lshl_add_u32 v{V_L}, s{S_T0}, 7, v0")
        elif o.lmap == 2:
            e(f"s_lshr_b32 s{S_WAVE}, s{S_WAVE}, 6")
            e(f"s_cmp_ge_u32 s{S_WAVE}, 6")
            e(f"s_cselect_b32 s{S_T0}, 42, 0")
            e(f"s_add_u32 s{S_T0}, s{S_T0}, s{S_WAVE}")
            e("v_lshl_add_u32 v0, v3, 4, v2")
            e(f"v_lshl_add_u32 v{V_L}, s{S_T0}, 7, v0")
        else:
            e(f"s_lshr_b32 s{S_WAVE}, s{S_WAVE}, 6")
            e(f"s_mul_i32 s{S_SUB}, s{S_WAVE}, 43")
            e(f"s_lshr_b32 s{S_SUB}, s{S_SUB}, 7")
            e(f"s_mul_i32 s{S_T0}, s{S_SUB}, {3072 // o.piece - 3}")
            e(f"s_add_u32 s{S_T0}, s{S_T0}, s{S_WAVE}        ; sub*24 + wave % 3")
            e(f"s_lshl_b32 s{S_T0}, s{S_T0}, {pl + 4}")
            e("v_lshl_add_u32 v0, v3, 4, v2")
            e(f"v_add_u32 v{V_L}, s{S_T0}, v0               ; + sub*3072 + (wave % 3)*128")
        if o.umap == 1:
            pass
        elif o.umap >= 2:
            e("; unit = row*8 + ((b*mul + row*rot) & 7)")
            mul, rot = (o.umap >> 4) | 1, o.umap & 7
            e(f"s_lshr_b32 s{S_T1}, s2, 3")
            e(f"s_mul_i32 s{S_T1}, s{S_T1}, {rot}")
            e(f"s_mul_i32 s{S_T0}, s2, {mul}")
            e(f"s_add_u32 s{S_T0}, s{S_T0}, s{S_T1}")
            e(f"s_and_b32 s{S_T0}, s{S_T0}, 7")
            e(f"s_and_b32 s{S_T1}, s2, -8")
            e(f"s_add_u32 s{S_T0}, s{S_T0}, s{S_T1}")
        elif o.qmap == 0:
            e("; 48 KiB unit of this workgroup: pair q = (b>>3)*4 + (b&3), side = (b>>2)&1, unit = 2q + side")
            e(f"s_and_b32 s{S_T0}, s2, 3")
            e(f"s_bfe_u32 s{S_T1}, s2, 0x10002")
            e(f"s_lshl1_add_u32 s{S_T0}, s{S_T0}, s{S_T1}")
            if o.urot:
                e(f"s_lshr_b32 s{S_T1}, s2, {o.urot & 15}")
                if o.urot >> 4:
                    e(f"s_lshl_b32 s{S_T1}, s{S_T1}, {o.urot >> 4}")
                e(f"s_add_u32 s{S_T0}, s{S_T0}, s{S_T1}")
                e(f"s_and_b32 s{S_T0}, s{S_T0}, 7")
            e(f"s_and_b32 s{S_T1}, s2, -8")
            e(f"s_add_u32 s{S_T0}, s{S_T0}, s{S_T1}")
        else:
            e("; unit of this workgroup: neighbours in memory share b % 8")
            e(f"s_and_b32 s{S_T0}, s2, 7")
            e(f"s_lshl_b32 s{S_T0}, s{S_T0}, 5")
            e(f"s_lshr_b32 s{S_T1}, s2, 3")
            e(f"s_add_u32 s{S_T0}, s{S_T0}, s{S_T1}")
        e(f"s_mul_i32 s{S_AGN}, s{2 if o.umap == 1 else S_T0}, {o.agnu * 12288}")
        if o.bfirst:
            e(f"s_add_u32 s{S_AGN}, s{S_AGN}, {o.agn0}")
        e(f"s_mov_b32 s{S_X + 2}, {X_BYTES}")
        e(f"s_mov_b32 s{S_X + 3}, 0x20000")
        if o.rolepos >= 0:
            e(f"s_lshl_b32 s{S_T1}, s{S_WAVE}, 8")
            e(f"s_or_b32 s{S_T1}, s{S_T1}, s2")
        if o.sdiag:
            self.stamp(6, True)
        e("s_waitcnt lgkmcnt(0)")
        if o.sdiag:
            self.stamp(1, True)
        e(f"s_lshr_b32 s{S_T0}, s{S_OUT}, 7")
        e(f"s_mul_i32 s{S_T0}, s{S_T0}, 21              ; -43 mod 64")
        e(f"s_and_b32 s{S_T0}, s{S_T0}, 63")
        e(f"s_mulk_i32 s{S_T0}, 384")
        e(f"s_add_u32 s{S_AGN}, s{S_AGN}, s{S_T0}")
        assert W_ROLE == 0

        e("; ---- load + reduce pipeline.  sums v[4:7] (selector v[8:11]), maxes v[12:19], temps from v20")
        SUM, MAX, T = 4, 12, 20
        DEPTH = o.depth
        seq = []

        def issue(j):
            if j == o.rolepos:
                e(f"s_cmp_le_u32 s{S_T1}, {NVOTE_WG}              ; wave 0 of the first workgroups has a side job")
                e("s_cbranch_scc1 L_role")
                e("L_stream:")
            if o.cpf and j == o.cpfpos:
                e("; wave 1 of the first workgroups pulls the kernel's code into this die's L2 (values unused)")
                e(f"s_sub_u32 s{S_T1}, s{S_T1}, 256")
                e(f"s_cmp_ge_u32 s{S_T1}, {o.cpf}")
                e("s_cbranch_scc1 L_nocpf")
                e("s_getpc_b64 s[20:21]")
                e("v_lshlrev_b32 v2, 7, v1")
                e("v_add_u32 v3, 8192, v2")
                e("v_min_u32 v3, L_codeend - L_nocpf, v3")
                e("global_load_dword v36, v2, s[20:21]")
                e("global_load_dword v37, v3, s[20:21]")
                e("L_nocpf:")
            if j == max(4, o.rolepos):
                e("s_load_dwordx4 s[36:39], s[0:1], 8        ; w1, w2")
                e(f"s_load_dwordx2 s[{S_DBG}:{S_DBG + 1}], s[0:1], 32")
                e(f"s_load_dwordx2 s[{S_WS}:{S_WS + 1}], s[0:1], 40")
                if not (o.msum and o.mul == "dot"):
                    e(f"s_mov_b32 s{S_MASK}, 0xffff0000")
            if j == (o.hookpos or 2 * NAGN):
                if o.lmap in (1, 2):
                    e(f"s_mul_i32 s{S_SUB}, s{S_WAVE}, 43")
                    e(f"s_lshr_b32 s{S_SUB}, s{S_SUB}, 7")
                if o.lmap != 3:
                    e(f"s_mul_i32 s{S_TY}, s{S_SUB}, 3")
                    e(f"s_sub_u32 s{S_TY}, s{S_WAVE}, s{S_TY}        ; ty = wave % 3")
                e(f"s_mov_b32 s{S_OUT + 2}, s{S_X + 2}")
                e(f"s_mov_b32 s{S_OUT + 3}, s{S_X + 3}")
                e(f"s_mov_b32 s{S_WS + 2}, {(2 << 20) if o.stamps else WS_USED}")
                e(f"s_mov_b32 s{S_WS + 3}, s{S_X + 3}")
                e(f"s_movk_i32 s{S_DBG + 2}, 256")
                e(f"s_mov_b32 s{S_DBG + 3}, s{S_X + 3}")
                e(f"s_movk_i32 s{S_T2}, 24576")
                e(f"v_bfe_u32 v{V_G0}, v{V_L}, 13, 1")
                e(f"v_add_u32 v{V_G1}, 12288, v{V_L}")
                e(f"v_bfe_u32 v{V_G1}, v{V_G1}, 13, 1")
                e(f"v_mul_u32_u24 v{V_G0}, s{S_T2}, v{V_G0}")
                e(f"v_mul_u32_u24 v{V_G1}, s{S_T2}, v{V_G1}")
                e(f"s_lshr_b32 s{S_T0}, s{S_OUT}, 7")
                e(f"s_mul_i32 s{S_T0}, s{S_T0}, 21")
                e(f"s_and_b32 s{S_T0}, s{S_T0}, 63")
                e(f"s_mulk_i32 s{S_T0}, 384")
                e(f"s_lshr_b32 s{S_BASE}, s2, 3")
                if o.qrot:
                    if o.qrot >= 16:
                        e(f"s_lshr_b32 s{S_T1}, s{S_BASE}, {o.qrot - 16}")
                    else:
                        e(f"s_mul_i32 s{S_T1}, s{S_BASE}, {o.qrot}")
                    e(f"s_add_u32 s{S_T1}, s{S_T1}, s2")
                    e(f"s_and_b32 s{S_T1}, s{S_T1}, 3")
                else:
                    e(f"s_and_b32 s{S_T1}, s2, 3")
                if o.qmap == 0:
                    e(f"s_lshl2_add_u32 s{S_BASE}, s{S_BASE}, s{S_T1}")
                else:
                    e(f"s_lshl_b32 s{S_T1}, s{S_T1}, 5")
                    e(f"s_add_u32 s{S_BASE}, s{S_BASE}, s{S_T1}")
                e(f"s_add_u32 s{S_BASE1}, s{S_BASE}, {64 if o.h6 else o.qshift}")
                e(f"s_and_b32 s{S_BASE1}, s{S_BASE1}, 127")
                e(f"s_mul_i32 s{S_BASE}, s{S_BASE}, {49152 if o.h6 else 98304}")
                e(f"s_add_u32 s{S_BASE}, s{S_BASE}, s{S_T0}        ; the pair's first span of a step")
                e(f"s_mul_i32 s{S_BASE1}, s{S_BASE1}, {49152 if o.h6 else 98304}")
                e(f"s_add_u32 s{S_BASE1}, s{S_BASE1}, s{S_T0}")
                e(f"s_add_u32 s{S_BASE1}, s{S_BASE1}, {6 * MiB if o.h6 else 49152}      ; its second span: 3 MiB on, where the memory stacks swap")
                h1 = mask(lambda z, s: s[1] == 1)
                e(f"s_add_u32 s{S_T2}, s{S_T2}, s{S_OUT}")
                e(f"s_add_u32 s{S_T0}, s{S_BASE}, s{S_T2}")
                e(f"s_bfe_i32 s{S_PM}, s{S_T0}, 0x10015")
                e(f"s_add_u32 s{S_T2}, s{S_BASE1}, s{S_T2}")
                e(f"s_xor_b32 s{S_T0}, s{S_T0}, s{S_T2}")
                e(f"s_bfe_i32 s{S_T0}, s{S_T0}, 0x10015")
                e(f"s_and_b32 s{S_T0}, s{S_T0}, {h1}")
                e(f"s_xor_b32 s{S_PM}, s{S_PM}, s{S_T0}")
                m1 = mask(lambda z, s: z >= NAGN and s[0] in ((0, 1) if o.bfirst else (3, 4)))
                z50 = SPANS.index((2 if o.bfirst else 5, 0))
                z51 = SPANS.index((2 if o.bfirst else 5, 1))
                edge = (8 if o.bfirst else 4) * MiB - 24576
                dec = mask(lambda z, s: z >= NAGN)
                e(f"s_cmp_lt_u32 s{S_BASE}, {edge}")
                e(f"s_cselect_b32 s{S_T0}, {1 << z50}, 0")
                e(f"s_or_b32 s{S_T0}, s{S_T0}, {m1}")
                e(f"s_cmp_lt_u32 s{S_BASE1}, {edge}")
                e(f"s_cselect_b32 s{S_T1}, {1 << z51}, 0")
                e(f"s_or_b32 s{S_T0}, s{S_T0}, s{S_T1}            ; third 1")
                e(f"s_xor_b32 s{S_T1}, s{S_T0}, {dec}           ; third 2")
                per, pat = o.opp
                rep = sum(((pat >> (i % per)) & 1) << i for i in range(32))
                e(f"s_lshr_b32 s{S_P}, s2, 3")
                e(f"s_mul_i32 s{S_T2}, s{S_P}, {-(-256 // per)}")
                e(f"s_lshr_b32 s{S_T2}, s{S_T2}, 8")
                e(f"s_mul_i32 s{S_T2}, s{S_T2}, {per}")
                e(f"s_sub_u32 s{S_P}, s{S_P}, s{S_T2}             ; (b >> 3) % {per}")
                e(f"s_lshr_b32 s{S_P}, {rep}, s{S_P}")
                e(f"s_sub_u32 s{S_T2}, s{S_OUT}, s{S_X}")
                e(f"s_add_u32 s{S_T2}, s{S_T2}, 2048")
                e(f"s_bitcmp1_b32 s{S_T2}, 12")
                e(f"s_cselect_b32 s{S_P}, 0, s{S_P}")
                e(f"s_cselect_b32 s{S_OK}, 0, {1 << 23}")
                e(f"s_or_b32 s{S_OK}, s{S_OK}, {RES_OK}       ; the parts of the result word that must be in")
                e(f"s_lshr_b32 s{S_T2}, s2, 3")
                e(f"s_sub_u32 s{S_RID}, s{S_T2}, {o.red0}")
                e(f"s_and_b32 s{S_PO}, s2, 7")
                e(f"s_lshl_b32 s{S_PO}, s{S_PO}, 5")
                e(f"s_add_u32 s{S_PO}, s{S_PO}, s{S_T2}")
                e(f"s_mulk_i32 s{S_PO}, 1536")
                if o.msum:
                    e("; sums by matrix product: row 4q+r (r < 2) of the selector picks element 2q+r of each lane's eight values")
                    e("v_and_b32 v20, 1, v1")
                    e("v_lshlrev_b32 v20, 4, v20")
                    e("v_mov_b32 v21, 0x3f80")
                    e("v_lshlrev_b32 v20, v20, v21")
                    e("v_bfe_u32 v21, v1, 1, 3")
                    for d in range(4):
                        e(f"v_cmp_eq_u32 s[{S_V}:{S_V + 1}], {2 * d}, v21")
                        e("s_nop 1")
                        e(f"v_cndmask_b32 v{8 + d}, 0, v20, s[{S_V}:{S_V + 1}]")
                if o.last:
                    e("v_mov_b32 v20, 0")
                    e("v_lshlrev_b32 v21, 2, v1")
                    e(f"s_mov_b64 exec, {0xff if o.pre else 7}")
                    e(f"ds_write_b32 v21, v20 offset:{L_CNT}")
                    e("s_mov_b64 exec, -1")
            if j == 2 * NAGN:
                e("s_waitcnt lgkmcnt(0)")
                self.stamp(11)
                e("s_barrier")
                e(f"s_load_dword s{S_T2}, s[{S_DBG}:{S_DBG + 1}], {DBG_RES}")
                if o.early:
                    e("; one more span goes out with a fixed phase while the word is on its way")
                    e(f"s_mov_b32 s{S_V + 2}, s{S_PM}")
                    e(f"s_mov_b32 s{S_V + 3}, s{S_P}")
                    e(f"s_lshr_b32 s{S_PM}, s2, 1")
                    e(f"s_xor_b32 s{S_PM}, s{S_PM}, s2")
                    e(f"s_bfe_i32 s{S_PM}, s{S_PM}, 0x10002")
            if j == 2 * NAGN + 2 * o.early:
                if o.early:
                    e(f"s_and_b32 s{S_HOOK}, s{S_PM}, {((1 << o.early) - 1) << NAGN}")
                    e(f"s_mov_b32 s{S_PM}, s{S_V + 2}")
                    e(f"s_mov_b32 s{S_P}, s{S_V + 3}")
                e("s_waitcnt lgkmcnt(0)")
                e(f"s_andn2_b32 s{S_CNT}, s{S_OK}, s{S_T2}")
                e("s_cbranch_scc1 L_dpoll")
                e("L_decided:")
                for i in range(4):
                    e(f"s_bitcmp1_b32 s{S_T2}, {7 + 6 * i + 5}")
                    e(f"s_cselect_b32 s{S_V + i}, s{(S_T0, S_T1)[i >> 1]}, 0")
                e(f"s_or_b32 s{S_V}, s{S_V}, s{S_V + 2}")
                e(f"s_or_b32 s{S_V + 1}, s{S_V + 1}, s{S_V + 3}")
                e(f"s_xor_b32 s{S_V}, s{S_V}, s{S_V + 1}")
                e(f"s_and_b32 s{S_V}, s{S_V}, s{S_P}")
                e(f"s_xor_b32 s{S_V}, s{S_V}, s{S_V + 1}")
                e(f"s_xor_b32 s{S_PM}, s{S_PM}, s{S_V}")
                e(f"s_lshr_b32 s{S_QC}, s{S_T2}, 13")
                e(f"s_add_u32 s{S_QC}, s{S_QC}, s2")
                e(f"s_bfe_i32 s{S_V}, s{S_QC}, 0x10002")
                e(f"s_xor_b32 s{S_PM}, s{S_PM}, s{S_V}")
                if o.early:
                    e(f"s_andn2_b32 s{S_PM}, s{S_PM}, {((1 << o.early) - 1) << NAGN}")
                    e(f"s_or_b32 s{S_PM}, s{S_PM}, s{S_HOOK}")
                e(f"s_and_b32 s{S_TG[0]}, s{S_T2}, 15")
                e(f"s_bfe_u32 s{S_TG[1]}, s{S_T2}, 0x40004")
                e(f"s_xor_b32 s{S_TG[2]}, s{S_TG[0]}, 15")
                e(f"s_xor_b32 s{S_TG[3]}, s{S_TG[1]}, 15")
                e(f"s_lshr_b32 s{S_V}, s{S_T2}, 10")
                e(f"s_and_b32 s{S_V}, s{S_V}, 4")
                e(f"s_xor_b32 s{S_QC}, s{S_QC}, s{S_V}           ; bits 2:0: the second-stage copy near this die")
                if o.xfer:
                    e("; dies with an odd number run a little slower: some waves there leave their last slot to the even neighbour")
                    assert SPANS[15] == (7, 0)
                    e(f"s_lshr_b32 s{S_T0}, s{S_T2}, 13")
                    e(f"s_add_u32 s{S_T1}, s{S_T0}, s2")
                    e(f"s_and_b32 s{S_XR}, s{S_T1}, 1")
                    e(f"s_sub_u32 s{S_XR}, 2, s{S_XR}")
                    e(f"s_cmp_ge_u32 s{S_WAVE}, {12 - o.xfer}")
                    e(f"s_cselect_b32 s{S_XR}, s{S_XR}, 0")
                    e(f"s_xor_b32 s{S_T1}, s{S_T1}, 1")
                    e(f"s_sub_u32 s{S_T1}, s{S_T1}, s{S_T0}")
                    e(f"s_and_b32 s{S_T1}, s{S_T1}, 3")
                    e(f"s_and_b32 s{S_T0}, s2, 3")
                    e(f"s_sub_u32 s{S_T1}, s{S_T1}, s{S_T0}")
                    e(f"s_mul_i32 s{S_T1}, s{S_T1}, 98304")
                    e(f"s_add_u32 s{S_XO}, s{S_BASE}, s{S_T1}        ; the neighbour's first span of a step")
                    e(f"s_add_u32 s{S_T0}, s{S_OUT}, 24576")
                    e(f"s_add_u32 s{S_T1}, s{S_T0}, s{S_XO}")
                    e(f"s_add_u32 s{S_T0}, s{S_T0}, s{S_BASE}")
                    e(f"s_xor_b32 s{S_T0}, s{S_T0}, s{S_T1}")
                    e(f"s_lshr_b32 s{S_T0}, s{S_T0}, 6")
                    e(f"s_xor_b32 s{S_T0}, s{S_T0}, s{S_PM}")
                    e(f"s_bitcmp1_b32 s{S_T0}, 15")
                    e(f"s_cselect_b32 s{S_XP}, 24576, 0")
                    e(f"s_add_u32 s{S_XO}, s{S_XO}, {7 * 12 * MiB + 12288}")
                if o.wtouch:
                    e("s_load_dword s22, s[36:37], 0")
                    e("s_load_dword s23, s[38:39], 0")
                self.stamp(12)
            if j in o.xbar:
                e("s_barrier")
                if j == o.xbar[-1]:
                    self.stamp(2, "r")
            if o.xfer and j == o.xpos:
                e(f"s_cmp_lg_u32 s{S_XR}, 2")
                e("s_cbranch_scc1 L_nox1")
                e(f"s_lshl_b32 s{S_T0}, s{S_WAVE}, 10")
                e(f"s_add_u32 m0, s{S_T0}, {L_X}")
                e(f"v_xad_u32 v3, v{V_G1}, s{S_XP}, v{V_L}")
                e(f"buffer_load_dwordx4 v3, s[{S_X}:{S_X + 3}], s{S_XO} offen{ldf} lds")
                e("L_nox1:")
            if j == o.warm and o.warmst:
                e("; waves 0 and 1 claim their first-stage lines in L2 with a pattern that no tag matches")
                e(f"s_cmp_ge_u32 s{S_WAVE}, 2")
                e("s_cbranch_scc1 L_nowarm")
                for i in range(4):
                    e(f"v_mov_b32 v{20 + i}, 0")
                e(f"s_mul_i32 s{S_T0}, s{S_WAVE}, 768")
                e(f"v_lshl_add_u32 v3, v1, 4, s{S_T0}")
                e("s_mov_b32 exec_hi, 0xffff")
                e(f"buffer_store_dwordx4 v[20:23], v3, s[{S_WS}:{S_WS + 3}], s{S_PO} offen")
                e("s_mov_b64 exec, -1")
                e("L_nowarm:")
            if j == o.warm and not o.warmst:
                e("; one wave pulls this workgroup's first-stage lines into L2 (values unused)")
                e(f"s_cmp_lg_u32 s{S_WAVE}, {o.warmwave}")
                e("s_cbranch_scc1 L_nowarm")
                e("v_lshlrev_b32 v3, 7, v1")
                e("s_mov_b64 exec, 0xfff")
                e(f"buffer_load_dword v37, v3, s[{S_WS}:{S_WS + 3}], s{S_PO} offen {o.warmfl}")
                e("s_mov_b64 exec, -1")
                if o.lpf == 2:
                    e("; ... and, in one workgroup per group, the code that is still to run")
                    e(f"s_cmp_lg_u32 s{S_RID}, {NRED}")
                    e("s_cbranch_scc1 L_nowarm")
                    e("s_getpc_b64 s[20:21]")
                    if o.lay:
                        e("v_add_u32 v3, L_tail - L_nowarm + 32, v3")
                    e("v_min_u32 v3, L_end - L_nowarm, v3")
                    e("global_load_dword v37, v3, s[20:21]")
                e("L_nowarm:")
            r = D0 + 4 * j
            if o.thr and j == (o.hookpos - 1 if o.hookpos else 10):
                e("; dies with an even number win the fabric arbitration: they keep fewer loads in flight for a while")
                e(f"s_getreg_b32 s{S_T0}, hwreg(HW_REG_XCC_ID, 0, 3)")
                e(f"s_lshr_b32 s{S_T0}, {o.thrmask}, s{S_T0}")
                e(f"s_and_b64 vcc, s[{S_T0}:{S_T0 + 1}], 1")
            if o.cap and o.capfrom <= j < o.capto:
                e(f"s_waitcnt vmcnt({o.cap - 1})")
            if o.thr and o.thrfrom <= j < o.thrto:
                e(f"s_cbranch_vccz L_thr{j}")
                e(f"s_waitcnt vmcnt({o.thr - 1})")
                e(f"L_thr{j}:")
            self.mem(j, lambda va, so: e(f"buffer_load_dwordx4 v[{r}:{r + 3}], {va}, s[{S_X}:{S_X + 3}], {so} offen{ldf}"))
            seq.append(j)
            if o.sdiag and j == 0:
                self.stamp(2, True)
            if o.sdiag and j == 2:
                e("s_waitcnt vmcnt(2)")
                self.stamp(3, True)
            if j & 1:
                self.trace("ld", j >> 1)

        def wait_for(j):
            e(f"s_waitcnt vmcnt({len(seq) - 1 - seq.index(j)})")

        def hpair(a, b, first):
            e(f"v_mfma_f32_16x16x32_bf16 v[4:7], v[8:11], v[{a}:{a + 3}], {'0' if first else 'v[4:7]'}")
            for i in range(4):
                if i == 2:
                    e(f"v_mfma_f32_16x16x32_bf16 v[4:7], v[8:11], v[{b}:{b + 3}], v[4:7]")
                e(f"v_pk_maximum3_f16 v{MAX + i}, v{a + i if first else MAX + i}, v{a + i}, v{b + i}")

        def hscatter():
            e("; ---- the packed maxes are folded across lane bits 5 and 4 (the matrix product did that for the sums)")
            e("s_nop 0")
            e(f"v_permlane32_swap_b32 v{MAX}, v{MAX + 2}")
            e(f"v_permlane32_swap_b32 v{MAX + 1}, v{MAX + 3}")
            e(f"v_pk_maximum3_f16 v{MAX}, v{MAX}, v{MAX + 2}, v{MAX + 2}")
            e(f"v_pk_maximum3_f16 v{MAX + 1}, v{MAX + 1}, v{MAX + 3}, v{MAX + 3}")
            e("s_nop 1")
            e(f"v_permlane16_swap_b32 v{MAX}, v{MAX + 1}")
            e(f"v_pk_maximum3_f16 v{MAX + 1}, v{MAX}, v{MAX + 1}, v{MAX + 1}")
            e(f"v_lshlrev_b32 v{MAX}, 16, v{MAX + 1}")
            e("; bf16 and f16 order their bit patterns alike, except where f16 sees a NaN (|x| > 2^121), which sticks")
            e(f"v_cmp_u_f16_sdwa vcc, v{MAX + 1}, v{MAX + 1} src0_sel:WORD_0 src1_sel:WORD_1")
            e("s_cbranch_vccnz L_exact")
            e("L_maxok:")

        def mpair(a, b, first, sums=True):
            if o.hmax and sums:
                return hpair(a, b, first)
            if sums:
                e(f"v_mfma_f32_16x16x32_bf16 v[4:7], v[8:11], v[{a}:{a + 3}], {'0' if first else 'v[4:7]'}")
            for i in range(4):
                e(f"v_lshlrev_b32 v{T + 2 * i}, 16, v{a + i}")
            if sums:
                e(f"v_mfma_f32_16x16x32_bf16 v[4:7], v[8:11], v[{b}:{b + 3}], v[4:7]")
            for i in range(4):
                e(f"v_lshlrev_b32 v{T + 2 * i + 1}, 16, v{b + i}")
            for i in range(4):
                m = MAX + 2 * i
                if first:
                    e(f"v_max_f32 v{m + 1}, v{a + i}, v{b + i}")
                else:
                    e(f"v_max3_f32 v{m + 1}, v{m + 1}, v{a + i}, v{b + i}")
            for i in range(4):
                m, t = MAX + 2 * i, T + 2 * i
                if first:
                    e(f"v_max_f32 v{m}, v{t}, v{t + 1}")
                else:
                    e(f"v_max3_f32 v{m}, v{m}, v{t}, v{t + 1}")

        def mscatter():
            e("; ---- the maxes are folded across lane bits 5 and 4 (the matrix product did that for the sums)")
            for i in (1, 3, 0, 2):
                e(f"v_permlane32_swap_b32 v{MAX + i}, v{MAX + 4 + i}")
            for i in (1, 3, 0, 2):
                e(f"v_max_f32 v{MAX + i}, v{MAX + i}, v{MAX + 4 + i}")
            e(f"v_permlane16_swap_b32 v{MAX + 1}, v{MAX + 3}")
            e("s_nop 0")
            e(f"v_permlane16_swap_b32 v{MAX}, v{MAX + 2}")
            e(f"v_max_f32 v{MAX + 1}, v{MAX + 1}, v{MAX + 3}")
            e(f"v_max_f32 v{MAX}, v{MAX}, v{MAX + 2}")

        def scatter54():
            e("; ---- in-wave reduce-scatter across lane bits 5, 4, 3")
            for base in (MAX, SUM):
                for i in range(4):
                    e(f"v_permlane32_swap_b32 v{base + i}, v{base + 4 + i}")
            for i in range(4):
                e(f"v_max_f32 v{MAX + i}, v{MAX + i}, v{MAX + 4 + i}")
            for i in range(4):
                e(f"v_add_f32 v{SUM + i}, v{SUM + i}, v{SUM + 4 + i}")
            for i in range(2):
                e(f"v_permlane16_swap_b32 v{MAX + i}, v{MAX + 2 + i}")
            for i in range(2):
                e(f"v_permlane16_swap_b32 v{SUM + i}, v{SUM + 2 + i}")
            for i in range(2):
                e(f"v_add_f32 v{SUM + i}, v{SUM + i}, v{SUM + 2 + i}")
            for i in range(2):
                e(f"v_max_f32 v{MAX + i}, v{MAX + i}, v{MAX + 2 + i}")

        nxt = 0
        for jj in range(16):
            while nxt < 32 and nxt < max(2 * jj + DEPTH + 2, 2 * NAGN + 2 * o.early + 2 if o.prebar else 0):
                issue(nxt)
                nxt += 1
                if nxt == 32:
                    self.stamp(1)
            a, b = D0 + 8 * jj, D0 + 8 * jj + 4
            if jj == 0:
                e("@@HERE1")
            if jj == 15:
                e("@@HERE2")
                if o.last:
                    e("; LDS slots [ty][sub][lane] of 8 bytes, counter of this third of the channels")
                    e(f"s_lshl_b32 s{S_T0}, s{S_TY}, 11")
                    e(f"v_lshl_add_u32 v3, v1, 3, s{S_T0}")
                    e(f"s_lshl_b32 s{S_T0}, s{S_SUB}, 9")
                    e(f"v_add_u32 v2, s{S_T0}, v3")
                    e(f"s_lshl2_add_u32 s{S_T0}, s{S_TY}, {L_CNT}")
                    e(f"v_mov_b32 v28, s{S_T0}")
                    e("v_mov_b32 v29, 1")
                    e("; first-stage address: kind*768 + ty*256 + (l>>4)*64 + (l&7)*8, and the tags of its two words")
                    e("v_and_b32 v30, 7, v1")
                    e("v_lshrrev_b32 v31, 4, v1")
                    e("v_lshl_add_u32 v30, v31, 3, v30")
                    e("v_bfe_u32 v31, v1, 3, 1")
                    e("v_mul_u32_u24 v31, 96, v31")
                    e(f"s_lshl_b32 s{S_T0}, s{S_TY}, 5")
                    e(f"v_add3_u32 v30, v30, v31, s{S_T0}")
                    e("v_lshlrev_b32 v30, 3, v30")
                    e("v_bfe_i32 v31, v1, 0, 1")
                    e("v_and_b32 v31, 15, v31")
                    e(f"v_xor_b32 v32, s{S_TG[1]}, v31")
                    e(f"v_xor_b32 v31, s{S_TG[0]}, v31")
                else:
                    e("; LDS address for this lane: ((sub*2 + kind)*192 + ty*64 + (l&7)*8 + 2*(l>>4)) * 4")
                    e("v_and_b32 v2, 7, v1")
                    e("v_lshlrev_b32 v2, 5, v2                   ; (l&7)*32")
                    e("v_lshrrev_b32 v3, 4, v1")
                    e("v_lshl_add_u32 v2, v3, 3, v2              ; + (l>>4)*8")
                    e("v_bfe_u32 v3, v1, 3, 1")
                    e("v_mul_u32_u24 v3, 768, v3")
                    e(f"s_mul_i32 s{S_T0}, s{S_SUB}, 1536")
                    e(f"s_lshl_b32 s{S_T1}, s{S_TY}, 8")
                    e(f"s_add_u32 s{S_T0}, s{S_T0}, s{S_T1}")
                    e(f"v_add3_u32 v2, v2, v3, s{S_T0}")
                    e(f"s_mul_i32 s{S_T0}, s{S_WAVE}, 768")
                    e(f"v_lshl_add_u32 v3, v1, 4, s{S_T0}")
                if o.msum:
                    assert o.last
                    e("v_bfe_i32 v33, v1, 3, 1")
                    e("v_and_b32 v33, 0xfff0, v33")
                    e("v_xor_b32 v33, -16, v33                   ; bits that carry the value: 31:4 of a sum, 31:16 of a max")
                    wait_for(31)
                    self.stamp(3)
                    mpair(a, b, False)
                    continue
                if o.ttail:
                    e("; the accumulators are folded across lane bits 5 and 4 now; the last two loads are")
                    e("; transposed the same way while still packed, which shortens the work behind the last arrival")
                    scatter54()
                    for r in (a, b):
                        wait_for((r - D0) // 4)
                        if r == b:
                            self.stamp(3)
                        C = 8
                        e(f"v_mov_b64 v[{C}:{C + 1}], v[{r}:{r + 1}]")
                        e(f"v_mov_b64 v[{C + 2}:{C + 3}], v[{r + 2}:{r + 3}]")
                        e("s_nop 1")
                        e(f"v_permlane32_swap_b32 v{C}, v{C + 2}")
                        e(f"v_permlane32_swap_b32 v{C + 1}, v{C + 3}")
                        e("s_nop 1")
                        e(f"v_permlane16_swap_b32 v{C}, v{C + 1}")
                        e(f"v_permlane16_swap_b32 v{C + 2}, v{C + 3}")
                        for i in range(4):
                            t = T + 2 * i
                            e(f"v_lshlrev_b32 v{t}, 16, v{C + i}")
                            e(f"v_and_b32 v{t + 1}, s{S_MASK}, v{C + i}")
                        e(f"v_pk_add_f32 v[{C}:{C + 1}], v[{T}:{T + 1}], v[{T + 2}:{T + 3}]")
                        e(f"v_pk_add_f32 v[{C + 2}:{C + 3}], v[{T + 4}:{T + 5}], v[{T + 6}:{T + 7}]")
                        e(f"v_max3_f32 v{MAX}, v{MAX}, v{T}, v{T + 2}")
                        e(f"v_pk_add_f32 v[{C}:{C + 1}], v[{C}:{C + 1}], v[{C + 2}:{C + 3}]")
                        e(f"v_max3_f32 v{MAX + 1}, v{MAX + 1}, v{T + 1}, v{T + 3}")
                        e(f"v_pk_add_f32 v[{SUM}:{SUM + 1}], v[{SUM}:{SUM + 1}], v[{C}:{C + 1}]")
                        e(f"v_max3_f32 v{MAX}, v{MAX}, v{T + 4}, v{T + 6}")
                        e(f"v_max3_f32 v{MAX + 1}, v{MAX + 1}, v{T + 5}, v{T + 7}")
                    continue
                def fold(r):
                    for i in range(4):
                        t = T + 2 * i
                        e(f"v_lshlrev_b32 v{t}, 16, v{r + i}")
                        e(f"v_and_b32 v{t + 1}, s{S_MASK}, v{r + i}")
                    for i in range(8):
                        e(f"v_max_f32 v{MAX + i}, v{MAX + i}, v{T + i}")
                    for i in range(4):
                        t, s = T + 2 * i, SUM + 2 * i
                        e(f"v_pk_add_f32 v[{s}:{s + 1}], v[{s}:{s + 1}], v[{t}:{t + 1}]")
                if o.xfer:
                    assert o.xpos <= 28
                    e(f"s_cmp_lg_u32 s{S_XR}, 2")
                    e("s_cbranch_scc1 L_nox2")
                    e(f"s_lshl_b32 s{S_T0}, s{S_WAVE}, 10")
                    e(f"s_add_u32 s{S_T0}, s{S_T0}, {L_X}")
                    e(f"v_lshl_add_u32 v{V_AT}, v1, 4, s{S_T0}")
                    e(f"ds_read_b128 v[28:31], v{V_AT}")
                    e("s_waitcnt lgkmcnt(0)")
                    fold(28)
                    e("L_nox2:")
                e("; the last two loads are folded in one at a time")
                for r in (a, b):
                    wait_for((r - D0) // 4)
                    if r == b:
                        self.stamp(3)
                        if o.xfer:
                            e(f"s_cmp_eq_u32 s{S_XR}, 1")
                            e("s_cbranch_scc1 L_nox3")
                    fold(r)
                if o.xfer:
                    e("L_nox3:")
                continue
            wait_for(2 * jj + 1)
            if jj == 0 and not o.xbar:
                self.stamp(2)
            if jj >= o.skipfrom:
                continue
            if o.msum:
                mpair(a, b, jj == 0)
                continue
            for i in range(4):
                t = T + 4 * i
                e(f"v_lshlrev_b32 v{t}, 16, v{a + i}")
                e(f"v_and_b32 v{t + 1}, s{S_MASK}, v{a + i}")
                e(f"v_lshlrev_b32 v{t + 2}, 16, v{b + i}")
                e(f"v_and_b32 v{t + 3}, s{S_MASK}, v{b + i}")
            for i in range(4):
                t = T + 4 * i
                s, m = SUM + 2 * i, MAX + 2 * i
                if jj == 0:
                    e(f"v_max_f32 v{m}, v{t}, v{t + 2}")
                    e(f"v_max_f32 v{m + 1}, v{t + 1}, v{t + 3}")
                    e(f"v_pk_add_f32 v[{s}:{s + 1}], v[{t}:{t + 1}], v[{t + 2}:{t + 3}]")
                else:
                    e(f"v_max3_f32 v{m}, v{m}, v{t}, v{t + 2}")
                    e(f"v_max3_f32 v{m + 1}, v{m + 1}, v{t + 1}, v{t + 3}")
                    e(f"v_pk_add_f32 v[{t}:{t + 1}], v[{t}:{t + 1}], v[{t + 2}:{t + 3}]")
            if jj:
                for i in range(4):
                    t = T + 4 * i
                    s = SUM + 2 * i
                    e(f"v_pk_add_f32 v[{s}:{s + 1}], v[{s}:{s + 1}], v[{t}:{t + 1}]")

        if o.hmax:
            hscatter()
        elif o.msum:
            mscatter()
        elif not o.ttail:
            scatter54()
        e(f"s_cmp_ge_u32 s{S_WAVE}, 2")
        for i in range(2):
            e(f"v_add_f32_dpp v{SUM + i}, v{SUM + i}, v{SUM + i} row_ror:8 row_mask:0xf bank_mask:0x3")
        for i in range(2):
            e(f"v_max_f32_dpp v{SUM + i}, v{MAX + i}, v{MAX + i} row_ror:8 row_mask:0xf bank_mask:0xc")
        if o.last:
            e("; the last of the four waves that share these channels folds the four slots and publishes")
            e(f"ds_write_b64 v2, v[{SUM}:{SUM + 1}] offset:{L_RED}")
            e("s_mov_b64 exec, 1")
            e("ds_add_rtn_u32 v6, v28, v29")
            e("s_mov_b64 exec, -1")
            e("ds_read2st64_b64 v[8:11], v3 offset0:0 offset1:1")
            e("ds_read2st64_b64 v[12:15], v3 offset0:2 offset1:3")
            e("s_waitcnt lgkmcnt(1)")
            e(f"v_readfirstlane_b32 s{S_T0}, v6")
            e("v_pk_add_f32 v[4:5], v[8:9], v[10:11]")
            e("s_waitcnt lgkmcnt(0)")
            e("v_max3_f32 v8, v8, v10, v12")
            e("v_max3_f32 v9, v9, v11, v13")
            e("v_pk_add_f32 v[16:17], v[12:13], v[14:15]")
            e(f"s_cmp_lg_u32 s{S_T0}, 3")
            e("v_pk_add_f32 v[4:5], v[4:5], v[16:17]")
            e("s_cbranch_scc1 L_notlast")
            e("v_max_f32_dpp v4, v8, v14 quad_perm:[0,1,2,3] row_mask:0xf bank_mask:0xc")
            e("v_max_f32_dpp v5, v9, v15 quad_perm:[0,1,2,3] row_mask:0xf bank_mask:0xc")
            e("v_and_or_b32 v4, v4, -16, v31")
            e(f"v_and_or_b32 v5, v5, {'v33' if o.msum else '-16'}, v32")
            e(f"buffer_store_dwordx2 v[4:5], v30, s[{S_WS}:{S_WS + 3}], s{S_PO} offen")
            e("L_notlast:")
            e("v_lshrrev_b32 v20, 4, v1                  ; q")
            e(f"s_cmp_lt_u32 s{S_RID}, {24 if o.r24 else NRED}")
            e(f"s_cselect_b32 s{S_OFF}, s{S_WAVE}, 0")
            e(f"s_cmp_eq_u32 s{S_OFF}, 3")
            e("s_cbranch_scc1 " + ("L_barw" if o.pre else "L_rsetup"))
            if o.wearly:
                e(f"s_sub_u32 s{S_T2}, s{S_WAVE}, {o.wearly}")
                e(f"s_cmp_ge_u32 s{S_T2}, 2")
            else:
                e(f"s_cmp_ge_u32 s{S_WAVE}, 2")
                e("s_barrier")
                self.stamp(4)
            e("s_cbranch_scc1 L_nopub")
            e("; ---- two waves stage the weights")
            e(f"s_cmp_eq_u32 s{S_WAVE}, {o.wearly}")
            e(f"s_cselect_b64 s[{S_W}:{S_W + 1}], s[36:37], s[38:39]")
        else:
            e(f"ds_write_b64 v2, v[{SUM}:{SUM + 1}] offset:{L_RED}")
            e("s_waitcnt lgkmcnt(0)")
            e("s_barrier")
            self.stamp(4)
            e("s_cbranch_scc1 L_nopub")

            e("; ---- waves 0 (sums) and 1 (maxes): combine the four row groups, publish, then stage the weights")
            e("s_mov_b32 exec_hi, 0xffff")
            for k in range(4):
                e(f"ds_read_b128 v[{4 + 4 * k}:{7 + 4 * k}], v3 offset:{L_RED + 1536 * k}")
            e(f"s_cmp_eq_u32 s{S_WAVE}, 0")
            e(f"s_cselect_b64 s[{S_W}:{S_W + 1}], s[36:37], s[38:39]")
            e("s_cbranch_scc0 L_pubmax")
            e("s_waitcnt lgkmcnt(2)")
            e("v_pk_add_f32 v[4:5], v[4:5], v[8:9]")
            e("v_pk_add_f32 v[6:7], v[6:7], v[10:11]")
            e("s_waitcnt lgkmcnt(0)")
            e("v_pk_add_f32 v[12:13], v[12:13], v[16:17]")
            e("v_pk_add_f32 v[14:15], v[14:15], v[18:19]")
            e("v_pk_add_f32 v[4:5], v[4:5], v[12:13]")
            e("v_pk_add_f32 v[6:7], v[6:7], v[14:15]")
            e("s_branch L_pub")
            e("L_pubmax:")
            e("s_waitcnt lgkmcnt(1)")
            for i in range(4):
                e(f"v_max3_f32 v{4 + i}, v{4 + i}, v{8 + i}, v{12 + i}")
            e("s_waitcnt lgkmcnt(0)")
            for i in range(4):
                e(f"v_max_f32 v{4 + i}, v{4 + i}, v{16 + i}")
            e("L_pub:")
            for i in range(4):
                e(f"v_and_or_b32 v{4 + i}, v{4 + i}, -16, s{S_TG[i]}")
            e(f"buffer_store_dwordx4 v[4:7], v3, s[{S_WS}:{S_WS + 3}], s{S_PO} offen{' sc1' if o.psc1 else ' nt' if o.pnt else ''}")
            e("s_mov_b64 exec, -1")
        e(f"s_movk_i32 s{S_W + 2}, 18432")
        e(f"s_mov_b32 s{S_W + 3}, 0x20000")
        e(f"s_mul_i32 s{S_T0}, s{S_T2 if o.wearly else S_WAVE}, 18432")
        e(f"s_addk_i32 s{S_T0}, {L_W1}")
        e(f"s_mov_b32 s{S_T1}, 0")
        e("v_lshlrev_b32 v2, 4, v1")
        e("L_wloop:")
        e(f"s_add_u32 m0, s{S_T0}, s{S_T1}")
        e("s_nop 0")
        for k in range(3):
            e(f"buffer_load_dwordx4 v2, s[{S_W}:{S_W + 3}], s{S_T1} offen offset:{k * 1024} lds")
        e(f"s_addk_i32 s{S_T1}, 3072")
        e(f"s_cmp_lt_u32 s{S_T1}, 18432")
        e("s_cbranch_scc1 L_wloop")
        e("L_nopub:")
        if o.wearly:
            e("s_barrier")
            self.stamp(4)

        B2 = 28
        V_H0, V_H1, V_SW, V_SR, V_Q = 24, 25, 26, 27, 37
        SP0 = 136
        A1 = 144
        B1 = [4, 8, 12, 16, 136, 140]
        if o.last:
            e(f"s_cmp_lt_u32 s{S_WAVE}, 3")
            e("s_cbranch_scc1 L_spill")
            e("s_branch L_barw")
            e("L_rsetup:")
        else:
            e("v_lshrrev_b32 v20, 4, v1                  ; q")
            e(f"s_cmp_lt_u32 s{S_WAVE}, 3")
            e("s_cbranch_scc1 L_spill")
            e(f"s_cmp_ge_u32 s{S_RID}, {NRED}")
            e("s_cbranch_scc1 L_barw")
            e(f"s_cmp_lg_u32 s{S_WAVE}, 3")
            e("s_cbranch_scc1 L_barw")

        def clean(lbl, d, a):
            e("; every reducer is done: wave 3 writes the first-stage lines through, so that no dirty line stays in L2")
            e(f"s_cmp_lg_u32 s{S_WAVE}, 3")
            e(f"s_cbranch_scc1 {lbl}")
            if o.cw:
                e(f"v_mov_b32 v{d}, 0")
                e(f"v_lshlrev_b32 v{a}, {o.cw}, v1")
                e(f"s_mov_b64 exec, {(1 << (1536 >> o.cw)) - 1}")
                if o.cld:
                    e(f"buffer_atomic_or v{d}, v{a}, s[{S_WS}:{S_WS + 3}], s{S_PO} offen")
                else:
                    e(f"buffer_store_dword v{d}, v{a}, s[{S_WS}:{S_WS + 3}], s{S_PO} offen sc1")
                e("s_mov_b64 exec, -1")
                return
            for i in range(4):
                e(f"v_mov_b32 v{d + i}, 0")
            e(f"v_lshlrev_b32 v{a}, 4, v1")
            e("s_mov_b32 exec_hi, 0xffff")
            e(f"buffer_store_dwordx4 v[{d}:{d + 3}], v{a}, s[{S_WS}:{S_WS + 3}], s{S_PO} offen sc1")
            e(f"buffer_store_dwordx4 v[{d}:{d + 3}], v{a}, s[{S_WS}:{S_WS + 3}], s{S_PO} offen offset:768 sc1")
            e("s_mov_b64 exec, -1")

        if o.pre:
            assert o.r24 and not o.r2 and o.mul == 'dot' and o.cfull
            assert o.last and o.qcopy == 4
            e("v_lshrrev_b32 v33, 2, v1")
            e("v_mul_u32_u24 v33, 1536, v33")
            e("v_and_b32 v34, 3, v1")
            e(f"v_lshl_add_u32 v35, v34, 4, v33")
            e(f"s_and_b32 s{S_T0}, s2, 7")
            e(f"s_mul_i32 s{S_V + 2}, s{S_T0}, {32 * 1536}")
            e(f"s_lshl_b32 s{S_T2}, s{S_RID}, 6")
            e(f"s_add_u32 s{S_V + 2}, s{S_V + 2}, s{S_T2}")
            e(f"s_add_u32 s{S_V + 3}, s{S_V + 2}, {16 * 1536}")
            e(f"s_and_b32 s{S_T2}, s{S_RID}, 1")
            e(f"s_lshl1_add_u32 s{S_T0}, s{S_T0}, s{S_T2}")
            e(f"s_lshr_b32 s{S_T2}, s{S_RID}, 3")
            e(f"s_lshr_b32 s{S_W}, s{S_RID}, 1")
            e(f"s_lshl2_add_u32 s{S_T2}, s{S_T2}, s{S_W}")
            e(f"s_lshl4_add_u32 s{S_T2}, s{S_T2}, s{S_T0}")
            e(f"s_lshl_b32 s{S_T2}, s{S_T2}, 7")
            e(f"s_add_u32 s{S_W}, s{S_T2}, {WS_Q}")
            e("v_lshrrev_b32 v33, 5, v1")
            e("v_mul_u32_u24 v33, 6, v33")
            e("v_bfe_u32 v34, v1, 4, 1")
            e("v_add_lshl_u32 v33, v33, v34, 13")
            e("v_and_b32 v34, 15, v1")
            e("v_lshl_add_u32 v34, v34, 2, v33")
            e(f"s_lshl4_add_u32 s{S_T0}, s{S_TG[1]}, s{S_TG[0]}")
            e(f"s_xor_b32 s{S_CNT}, s{S_T0}, 0xff")
            e(f"s_lshl_b32 s{S_CNT}, s{S_CNT}, 8")
            e(f"s_or_b32 s{S_T0}, s{S_T0}, s{S_CNT}")
            e("v_and_b32 v33, 12, v34")
            e(f"v_bfe_u32 v36, s{S_T0}, v33, 4")
            e(f"s_mov_b32 s{S_CNT}, {NFB}")
            e(f"s_mov_b32 s{S_HOOK}, 0")
            e("s_barrier")
            self.stamp(4)
            if o.r2:
                def rld(r):
                    for k in range(2):
                        e(f"buffer_load_dwordx4 v[{r + 4 * k}:{r + 4 * k + 3}], v35, s[{S_WS}:{S_WS + 3}], s{S_V + 2 + k} offen sc1")

                def rchk(r):
                    for k in range(2):
                        e(f"s_waitcnt vmcnt({3 - k})")
                        for i in range(4):
                            e(f"v_xor_b32 v{4 + 4 * k + i}, s{S_TG[i]}, v{r + 4 * k + i}")
                        if k == 0:
                            e("v_or3_b32 v21, v4, v5, v6")
                            e("v_or_b32 v21, v21, v7")
                        else:
                            e("v_or3_b32 v21, v21, v8, v9")
                            e("v_or_b32 v15, v10, v11")
                    e("v_bitop3_b32 v21, v21, v15, 15 bitop3:0xa8")
                    e("v_cmp_ne_u32 vcc, 0, v21")
                    e("s_wqm_b64 exec, vcc")
                e("L_rpoll:")
                rld(12)
                if o.r2 > 1:
                    e(f"s_sleep {o.r2 - 1}")
                e("L_rloop:")
                rld(24)
                e(f"s_sub_u32 s{S_CNT}, s{S_CNT}, 1")
                e("s_cbranch_scc1 L_rlong")
                rchk(12)
                e("s_cbranch_scc0 L_rgot")
                rld(12)
                rchk(24)
                e("s_cbranch_scc1 L_rloop")
            else:
                e("L_rpoll:")
                for k in range(2):
                    e(f"buffer_load_dwordx4 v[{4 + 4 * k}:{7 + 4 * k}], v35, s[{S_WS}:{S_WS + 3}], s{S_V + 2 + k} offen sc1")
                e(f"s_sub_u32 s{S_CNT}, s{S_CNT}, 1")
                e("s_cbranch_scc1 L_rlong")
                for k in range(2):
                    e(f"s_waitcnt vmcnt({1 - k})")
                    r = 4 + 4 * k
                    for i in range(4):
                        e(f"v_xor_b32 v{r + i}, s{S_TG[i]}, v{r + i}" + ("            ; a matching tag leaves four zero bits" if k + i == 0 else ""))
                    if k == 0:
                        e("v_or3_b32 v21, v4, v5, v6")
                        e("v_or_b32 v21, v21, v7")
                    else:
                        e("v_or3_b32 v21, v21, v8, v9")
                        e("v_or_b32 v15, v10, v11")
                e("v_bitop3_b32 v21, v21, v15, 15 bitop3:0xa8          ; (a | b) & c")
                e("v_cmp_ne_u32 vcc, 0, v21")
                e("s_wqm_b64 exec, vcc                       ; 64-byte units still waiting poll again")
                e("s_cbranch_scc1 L_rpoll")
            e("L_rgot:")
            e("s_mov_b64 exec, -1")
            self.stamp(1, "r")
            e(f"s_cmp_ge_u32 s{S_RID}, 12")
            e("s_cbranch_scc1 L_rmax")
            for kind in (0, 1):
                op = "v_add_f32" if kind == 0 else "v_max_f32"
                if kind == 1:
                    e("L_rmax:")
                for i in range(4):
                    e(f"{op} v{4 + i}, v{4 + i}, v{8 + i}")
                e(f"{op}_dpp v4, v4, v4 row_ror:8 row_mask:0xf bank_mask:0x3")
                e(f"{op}_dpp v5, v5, v5 row_ror:8 row_mask:0xf bank_mask:0x3")
                e(f"{op}_dpp v4, v6, v6 row_ror:8 row_mask:0xf bank_mask:0xc")
                e(f"{op}_dpp v5, v7, v7 row_ror:8 row_mask:0xf bank_mask:0xc")
                e("s_nop 0")
                e(f"{op}_dpp v4, v4, v4 row_shl:4 row_mask:0xf bank_mask:0x5")
                e(f"{op}_dpp v4, v5, v5 row_shr:4 row_mask:0xf bank_mask:0xa")
                e("v_mov_b32 v5, v4")
                e("s_nop 1")
                e("v_permlane16_swap_b32 v4, v5")
                e(f"{op} v4, v4, v5")
                e("v_mov_b32 v5, v4")
                e("s_nop 1")
                e("v_permlane32_swap_b32 v4, v5")
                e(f"{op} v4, v4, v5                        ; lane 8a+4b+c of every row: element 2a+b of piece c")
                if kind == 0:
                    e("s_branch L_rpub")
            e("L_rpub:")
            e("v_and_or_b32 v4, v4, -16, v36")
            e(f"buffer_store_dword v4, v34, s[{S_WS}:{S_WS + 3}], s{S_W} offen sc1")
            self.stamp(9)
            if o.r2:
                e("s_waitcnt vmcnt(1)")
        elif o.r24:
            assert o.last and o.qcopy == 4
            e("v_lshrrev_b32 v2, 2, v1")
            e("v_mul_u32_u24 v2, 1536, v2")
            e("v_and_b32 v3, 3, v1")
            e(f"v_lshl_add_u32 v{V_Q}, v3, 4, v2")
            e(f"s_and_b32 s{S_T0}, s2, 7")
            e(f"s_mul_i32 s{S_V}, s{S_T0}, {32 * 1536}")
            e(f"s_lshl_b32 s{S_T1}, s{S_RID}, 6")
            e(f"s_add_u32 s{S_V}, s{S_V}, s{S_T1}")
            e(f"s_add_u32 s{S_V + 1}, s{S_V}, {16 * 1536}")
            e(f"s_and_b32 s{S_T1}, s{S_RID}, 1")
            e(f"s_lshl1_add_u32 s{S_T0}, s{S_T0}, s{S_T1}")
            e(f"s_lshr_b32 s{S_T1}, s{S_RID}, 3")
            e(f"s_lshr_b32 s{S_W}, s{S_RID}, 1")
            e(f"s_lshl2_add_u32 s{S_T1}, s{S_T1}, s{S_W}")
            e(f"s_lshl4_add_u32 s{S_T1}, s{S_T1}, s{S_T0}")
            e(f"s_lshl_b32 s{S_T1}, s{S_T1}, 7")
            e(f"s_add_u32 s{S_W}, s{S_T1}, {WS_Q}")
            e("v_lshrrev_b32 v2, 5, v1")
            e("v_mul_u32_u24 v2, 6, v2")
            e("v_bfe_u32 v3, v1, 4, 1")
            e("v_add_lshl_u32 v2, v2, v3, 13")
            e("v_and_b32 v3, 15, v1")
            e("v_lshl_add_u32 v3, v3, 2, v2")
            e(f"s_lshl4_add_u32 s{S_T0}, s{S_TG[1]}, s{S_TG[0]}")
            e(f"s_xor_b32 s{S_CNT}, s{S_T0}, 0xff")
            e(f"s_lshl_b32 s{S_CNT}, s{S_CNT}, 8")
            e(f"s_or_b32 s{S_T0}, s{S_T0}, s{S_CNT}")
            e("v_and_b32 v2, 12, v3")
            e(f"v_bfe_u32 v23, s{S_T0}, v2, 4")
            e(f"s_mov_b32 s{S_CNT}, {NFB}")
            e(f"s_mov_b32 s{S_HOOK}, 0")
            e("s_barrier")
            self.stamp(4)
            if o.r2:
                def rld(r):
                    for k in range(2):
                        e(f"buffer_load_dwordx4 v[{r + 4 * k}:{r + 4 * k + 3}], v{V_Q}, s[{S_WS}:{S_WS + 3}], s{S_V + k} offen sc1")

                def rchk(r):
                    for k in range(2):
                        e(f"s_waitcnt vmcnt({3 - k})")
                        for i in range(4):
                            e(f"v_xor_b32 v{4 + 4 * k + i}, s{S_TG[i]}, v{r + 4 * k + i}")
                        if k == 0:
                            e("v_or3_b32 v21, v4, v5, v6")
                            e("v_or_b32 v21, v21, v7")
                        else:
                            e("v_or3_b32 v21, v21, v8, v9")
                            e("v_or_b32 v22, v10, v11")
                    e("v_bitop3_b32 v21, v21, v22, 15 bitop3:0xa8")
                    e("v_cmp_ne_u32 vcc, 0, v21")
                    e("s_wqm_b64 exec, vcc")
                e("L_rpoll:")
                rld(12)
                if o.r2 > 1:
                    e(f"s_sleep {o.r2 - 1}")
                e("L_rloop:")
                rld(24)
                e(f"s_sub_u32 s{S_CNT}, s{S_CNT}, 1")
                e("s_cbranch_scc1 L_rlong")
                rchk(12)
                e("s_cbranch_scc0 L_rgot")
                rld(12)
                rchk(24)
                e("s_cbranch_scc1 L_rloop")
            else:
                e("L_rpoll:")
                for k in range(2):
                    e(f"buffer_load_dwordx4 v[{4 + 4 * k}:{7 + 4 * k}], v{V_Q}, s[{S_WS}:{S_WS + 3}], s{S_V + k} offen sc1")
                e(f"s_sub_u32 s{S_CNT}, s{S_CNT}, 1")
                e("s_cbranch_scc1 L_rlong")
                for k in range(2):
                    e(f"s_waitcnt vmcnt({1 - k})")
                    r = 4 + 4 * k
                    for i in range(4):
                        e(f"v_xor_b32 v{r + i}, s{S_TG[i]}, v{r + i}" + ("            ; a matching tag leaves four zero bits" if k + i == 0 else ""))
                    if k == 0:
                        e("v_or3_b32 v21, v4, v5, v6")
                        e("v_or_b32 v21, v21, v7")
                    else:
                        e("v_or3_b32 v21, v21, v8, v9")
                        e("v_or_b32 v22, v10, v11")
                e("v_bitop3_b32 v21, v21, v22, 15 bitop3:0xa8          ; (a | b) & c")
                e("v_cmp_ne_u32 vcc, 0, v21")
                e("s_wqm_b64 exec, vcc                       ; 64-byte units still waiting poll again")
                e("s_cbranch_scc1 L_rpoll")
            e("L_rgot:")
            e("s_mov_b64 exec, -1")
            self.stamp(1, "r")
            e(f"s_cmp_ge_u32 s{S_RID}, 12")
            e("s_cbranch_scc1 L_rmax")
            for kind in (0, 1):
                op = "v_add_f32" if kind == 0 else "v_max_f32"
                if kind == 1:
                    e("L_rmax:")
                for i in range(4):
                    e(f"{op} v{4 + i}, v{4 + i}, v{8 + i}")
                e(f"{op}_dpp v4, v4, v4 row_ror:8 row_mask:0xf bank_mask:0x3")
                e(f"{op}_dpp v5, v5, v5 row_ror:8 row_mask:0xf bank_mask:0x3")
                e(f"{op}_dpp v4, v6, v6 row_ror:8 row_mask:0xf bank_mask:0xc")
                e(f"{op}_dpp v5, v7, v7 row_ror:8 row_mask:0xf bank_mask:0xc")
                e("s_nop 0")
                e(f"{op}_dpp v4, v4, v4 row_shl:4 row_mask:0xf bank_mask:0x5")
                e(f"{op}_dpp v4, v5, v5 row_shr:4 row_mask:0xf bank_mask:0xa")
                e("v_mov_b32 v5, v4")
                e("s_nop 1")
                e("v_permlane16_swap_b32 v4, v5")
                e(f"{op} v4, v4, v5")
                e("v_mov_b32 v5, v4")
                e("s_nop 1")
                e("v_permlane32_swap_b32 v4, v5")
                e(f"{op} v4, v4, v5                        ; lane 8a+4b+c of every row: element 2a+b of piece c")
                if kind == 0:
                    e("s_branch L_rpub")
            e("L_rpub:")
            e("v_and_or_b32 v4, v4, -16, v23")
            e(f"buffer_store_dword v4, v3, s[{S_WS}:{S_WS + 3}], s{S_W} offen sc1")
            self.stamp(9)
            if o.r2:
                e("s_waitcnt vmcnt(1)")
        else:
            e("; ---- wave 3 of twelve workgroups per group: reduce one line over the group's 32 members")
            e("v_lshrrev_b32 v2, 3, v1")
            e("v_mul_u32_u24 v2, 1536, v2")
            e("v_and_b32 v3, 7, v1")
            e(f"v_lshl_add_u32 v{V_Q}, v3, 4, v2")
            e(f"s_and_b32 s{S_T0}, s2, 7")
            e(f"s_mul_i32 s{S_V}, s{S_T0}, {32 * 1536}")
            e(f"s_lshl_b32 s{S_T1}, s{S_RID}, 7")
            e(f"s_add_u32 s{S_V}, s{S_V}, s{S_T1}")
            for k in range(1, 4):
                e(f"s_add_u32 s{S_V + k}, s{S_V}, {k * 8 * 1536}")
            e(f"s_lshl_b32 s{S_T0}, s{S_T0}, 8              ; group*256")
            e(f"s_lshr_b32 s{S_T1}, s{S_RID}, 2")
            e(f"s_lshl2_add_u32 s{S_T1}, s{S_T1}, s{S_RID}")
            e(f"s_lshl_b32 s{S_T1}, s{S_T1}, 11")
            e(f"s_add_u32 s{S_T1}, s{S_T1}, s{S_T0}")
            for k in range(o.qcopy // 2):
                e(f"s_add_u32 s{S_W + k}, s{S_T1}, {WS_Q + k * 49152}")
            e("v_and_b32 v2, 15, v1")
            e("v_lshlrev_b32 v3, 2, v2")
            e("v_bfe_u32 v2, v1, 4, 1")
            e("v_lshl_add_u32 v3, v2, 7, v3")
            e("v_lshrrev_b32 v2, 5, v1")
            e("v_lshl_add_u32 v3, v2, 13, v3             ; (l>>5)*8192 + ((l>>4)&1)*128 + (l&15)*4")
            e(f"s_lshl4_add_u32 s{S_T0}, s{S_TG[1]}, s{S_TG[0]}")
            e(f"s_xor_b32 s{S_CNT}, s{S_T0}, 0xff")
            e(f"s_lshl_b32 s{S_CNT}, s{S_CNT}, 8")
            e(f"s_or_b32 s{S_T0}, s{S_T0}, s{S_CNT}")
            e("v_and_b32 v2, 12, v3")
            e(f"v_bfe_u32 v23, s{S_T0}, v2, 4")
            e(f"s_mov_b32 s{S_CNT}, {NFB}")
            e(f"s_mov_b32 s{S_HOOK}, 0")
            if o.last:
                e("s_barrier")
                self.stamp(4)
            e("L_rpoll:")
            for k in range(4):
                e(f"buffer_load_dwordx4 v[{4 + 4 * k}:{7 + 4 * k}], v{V_Q}, s[{S_WS}:{S_WS + 3}], s{S_V + k} offen sc1")
            e(f"s_sub_u32 s{S_CNT}, s{S_CNT}, 1")
            e("s_cbranch_scc1 L_rlong")
            for k in range(4):
                e(f"s_waitcnt vmcnt({3 - k})")
                r = 4 + 4 * k
                for i in range(4):
                    e(f"v_xor_b32 v{r + i}, s{S_TG[i]}, v{r + i}" + ("            ; a matching tag leaves four zero bits" if k + i == 0 else ""))
                if k == 0:
                    e(f"v_or3_b32 v21, v{r}, v{r + 1}, v{r + 2}")
                    e(f"v_or_b32 v21, v21, v{r + 3}")
                elif k < 3:
                    e(f"v_or3_b32 v21, v21, v{r}, v{r + 1}")
                    e(f"v_or3_b32 v21, v21, v{r + 2}, v{r + 3}")
                else:
                    e(f"v_or3_b32 v21, v21, v{r}, v{r + 1}")
                    e(f"v_or_b32 v22, v{r + 2}, v{r + 3}")
            e("v_bitop3_b32 v21, v21, v22, 15 bitop3:0xa8          ; (a | b) & c")
            e("v_cmp_ne_u32 vcc, 0, v21")
            e("s_wqm_b64 exec, vcc                       ; 64-byte units still waiting poll again")
            e("s_cbranch_scc1 L_rpoll")
            e("L_rgot:")
            e("s_mov_b64 exec, -1")
            self.stamp(1, "r")
            e(f"s_cmp_ge_u32 s{S_RID}, 6")
            e("s_cbranch_scc1 L_rmax")
            for kind in (0, 1):
                op = "v_add_f32" if kind == 0 else "v_max_f32"
                if kind == 1:
                    e("L_rmax:")
                    for i in range(4):
                        e(f"v_max3_f32 v{4 + i}, v{4 + i}, v{8 + i}, v{12 + i}")
                    for i in (0, 2, 1, 3):
                        e(f"v_max_f32 v{4 + i}, v{4 + i}, v{16 + i}")
                else:
                    e("v_pk_add_f32 v[4:5], v[4:5], v[8:9]")
                    e("v_pk_add_f32 v[6:7], v[6:7], v[10:11]")
                    e("v_pk_add_f32 v[12:13], v[12:13], v[16:17]")
                    e("v_pk_add_f32 v[14:15], v[14:15], v[18:19]")
                    e("v_pk_add_f32 v[4:5], v[4:5], v[12:13]")
                    e("v_pk_add_f32 v[6:7], v[6:7], v[14:15]")
                    e("s_nop 0")
                e(f"{op}_dpp v4, v4, v4 row_ror:8 row_mask:0xf bank_mask:0x3")
                if kind == 0:
                    e(f"{op}_dpp v5, v5, v5 row_ror:8 row_mask:0xf bank_mask:0x3")
                    e(f"{op}_dpp v4, v6, v6 row_ror:8 row_mask:0xf bank_mask:0xc")
                else:
                    e(f"{op}_dpp v4, v6, v6 row_ror:8 row_mask:0xf bank_mask:0xc")
                    e(f"{op}_dpp v5, v5, v5 row_ror:8 row_mask:0xf bank_mask:0x3")
                e(f"{op}_dpp v5, v7, v7 row_ror:8 row_mask:0xf bank_mask:0xc")
                e("s_nop 1")
                e("v_permlane16_swap_b32 v4, v5")
                e(f"{op} v4, v4, v5")
                e("v_mov_b32 v5, v4")
                e("s_nop 1")
                e("v_permlane32_swap_b32 v4, v5")
                e(f"{op} v4, v4, v5                        ; lane 16a+8b+c: element 2b+a of piece c")
                if kind == 0:
                    e("s_branch L_rpub")
            e("L_rpub:")
            e("v_and_or_b32 v4, v4, -16, v23")
            for k in range(o.qcopy // 2):
                e(f"buffer_store_dword v4, v3, s[{S_WS}:{S_WS + 3}], s{S_W + k} offen sc1")
                if k == 0:
                    self.stamp(9)
        if o.clean == "r":
            e("; this wave was the only reader of these lines: write them through, so that none stays dirty in L2")
            for i in range(4):
                e(f"v_mov_b32 v{8 + i}, 0")
            for k in range(4):
                e(f"buffer_store_dwordx4 v[8:11], v{V_Q}, s[{S_WS}:{S_WS + 3}], s{S_V + k} offen sc1")
        e("s_barrier")
        e("s_branch L_afterw")

        if o.pad:
            e(f".fill {o.pad // 4}, 4, 0xbf800000")
        e("; ---- waves 0..2 park 32 data registers in LDS to make room for the first layer's operands")
        e("L_spill:")
        e(f"s_lshl_b32 s{S_T0}, s{S_WAVE}, 13")
        e(f"v_lshl_add_u32 v{V_AT}, v1, 4, s{S_T0}")
        for k in range(8):
            e(f"ds_write_b128 v{V_AT}, v[{SP0 + 4 * k}:{SP0 + 4 * k + 3}] offset:{L_SPILL + 1024 * k}")
        e("L_barw:")
        if o.tlb:
            e("; wave 5 touches d_out once per region so that the first stores find their translations (values unused)")
            e(f"s_cmp_lg_u32 s{S_WAVE}, 5")
            e("s_cbranch_scc1 L_notlb")
            e(f"v_lshlrev_b32 v2, {o.tlb}, v1")
            e(f"buffer_load_dword v4, v2, s[{S_OUT}:{S_OUT + 3}], 0 offen")
            e("L_notlb:")
        if o.lpf == 1:
            e("; wave 4 pulls the code of the store phase into this die's L2 (values unused)")
            e(f"s_cmp_lg_u32 s{S_WAVE}, 4")
            e("s_cbranch_scc1 L_nolpf")
            e("s_getpc_b64 s[20:21]")
            e("v_lshlrev_b32 v2, 7, v1")
            e("v_min_u32 v2, L_end - L_nolpf, v2")
            e("global_load_dword v4, v2, s[20:21]")
            e("L_nolpf:")
        if o.pre:
            e("; ---- addresses of everything that follows, while the weights are on their way")
            e("v_bfe_u32 v3, v1, 2, 2")
            e("v_lshl_add_u32 v21, v20, 3, v3            ; row")
            e("v_and_b32 v13, 15, v21                    ; row of the half step (q&1)")
            e("v_and_b32 v3, 3, v1")
            e(f"s_lshl_b32 s{S_T2}, s{S_WAVE}, 5")
            e(f"v_lshl_add_u32 v23, v3, 3, s{S_T2}          ; column bytes")
            e("v_mov_b32 v3, 384")
            e("v_mad_u32_u24 v12, v21, v3, v23")
            e("v_mad_u32_u24 v13, v13, v3, v23")
            e("v_mov_b32 v3, 96")
            e("v_mad_u32_u24 v14, v21, v3, v23")
            e("; H reads: kind*96 + q*16 ; half step: kind*96 + 64 + q*16 for q < 2, sixteen zero bytes for the others")
            e("v_and_b32 v2, 1, v1")
            e("v_mul_u32_u24 v22, 96, v2")
            e(f"v_lshl_add_u32 v{V_H0}, v20, 4, v22")
            e(f"v_mov_b32 v{V_H1}, v{V_H0}")
            e("s_mov_b32 exec_lo, 0")
            e(f"v_mov_b32 v{V_H1}, {L_CNT + 16 - L_H - 64}")
            e("s_mov_b64 exec, 0xffff")
            e(f"s_lshl_b32 s{S_T0}, s{S_WAVE}, 6")
            e(f"v_lshl_add_u32 v{V_SW}, v1, 2, s{S_T0}")
            e("v_mov_b32 v3, 0")
            e(f"ds_write_b32 v{V_SW}, v3 offset:{L_S}")
            e(f"v_lshl_add_u32 v{V_SW}, v2, 1, v{V_SW}")
            e("s_mov_b64 exec, -1")
            e("v_and_b32 v3, 7, v1")
            e(f"s_lshl_b32 s{S_T0}, s{S_TY}, 8")
            e(f"v_lshl_add_u32 v{V_SR}, v3, 5, s{S_T0}")
            e(f"v_lshl_add_u32 v3, v20, 3, v22")
            e(f"v_add_u32 v3, s{S_T2}, v3")
            e("v_lshlrev_b32 v2, 2, v22")
            e("v_lshl_add_u32 v2, v20, 4, v2")
        else:
            e("s_waitcnt vmcnt(0) lgkmcnt(0)")
            e("s_barrier")
            e("L_afterw:")
            e("v_bfe_u32 v3, v1, 2, 2")
            e("v_lshl_add_u32 v21, v20, 3, v3            ; row")
            e("v_and_b32 v22, 15, v21                    ; row of the half step (q&1)")
            e("v_and_b32 v3, 3, v1")
            e(f"s_lshl_b32 s{S_T2}, s{S_WAVE}, 5")
            e(f"v_lshl_add_u32 v23, v3, 3, s{S_T2}          ; column bytes")
            e("v_mov_b32 v3, 384")
            e("v_mad_u32_u24 v2, v21, v3, v23")
            e("v_mad_u32_u24 v22, v22, v3, v23")
            e(f"ds_read_b64_tr_b16 v[{B2}:{B2 + 1}], v2 offset:{L_W2}")
            e(f"ds_read_b64_tr_b16 v[{B2 + 2}:{B2 + 3}], v2 offset:{L_W2 + 4 * 384}")
            e(f"ds_read_b64_tr_b16 v[{B2 + 4}:{B2 + 5}], v22 offset:{L_W2 + 32 * 384}")
            e(f"ds_read_b64_tr_b16 v[{B2 + 6}:{B2 + 7}], v22 offset:{L_W2 + 36 * 384}")
            e("; H read addresses: kind*96 + q*16 ; half step: kind*96 + 64 + (q&1)*16")
            e("v_and_b32 v2, 1, v1")
            e("v_mul_u32_u24 v22, 96, v2")
            e(f"v_lshl_add_u32 v{V_H0}, v20, 4, v22")
            e("v_and_b32 v3, 1, v20")
            e(f"v_lshl_add_u32 v{V_H1}, v3, 4, v22")
            e(f"s_lshl_b32 s{S_T0}, s{S_WAVE}, 6")
            e(f"v_lshl_add_u32 v{V_SW}, v1, 2, s{S_T0}")
            if o.mul == "dot":
                e("; a scale sits in the half of its word that faces its channel, the other half is zero")
                e("v_mov_b32 v3, 0")
                e("s_mov_b64 exec, 0xffff")
                e(f"ds_write_b32 v{V_SW}, v3 offset:{L_S}")
                e("s_mov_b64 exec, -1")
                e(f"v_lshl_add_u32 v{V_SW}, v2, 1, v{V_SW}")
            e("v_and_b32 v3, 7, v1")
            e(f"s_lshl_b32 s{S_T0}, s{S_TY}, 8")
            e(f"v_lshl_add_u32 v{V_SR}, v3, 5, s{S_T0}")
            e("s_waitcnt lgkmcnt(0)")
            e("s_mov_b32 exec_lo, 0")
            for i in range(4):
                e(f"v_mov_b32 v{B2 + 4 + i}, 0")
            e("s_mov_b64 exec, -1")
            e(f"s_cmp_ge_u32 s{S_WAVE}, 3")
            e("s_cbranch_scc1 L_noa1")
            e("v_mov_b32 v3, 96")
            e("v_mad_u32_u24 v2, v21, v3, v23")
            for s in range(6):
                for h in range(2):
                    r = A1 + 4 * s + 2 * h
                    e(f"ds_read_b64_tr_b16 v[{r}:{r + 1}], v2 offset:{L_W1 + s * 3072 + h * 384}")
            e("L_noa1:")
            e(f"v_lshl_add_u32 v3, v20, 3, v22")
            e(f"v_add_u32 v3, s{S_T2}, v3")
            e("v_lshlrev_b32 v2, 2, v22")
            e("v_lshl_add_u32 v2, v20, 4, v2")
        if o.r24:
            e("; this lane ends up with value p = 16*((l>>2)&1) + 4q + (l&3) of line w")
            e("v_bfe_u32 v8, v1, 2, 1")
            e("v_lshl_add_u32 v8, v8, 2, v20")
            e("v_and_b32 v9, 3, v1")
            e("v_lshl_add_u32 v8, v8, 2, v9")
        else:
            e("; descriptor write address: (32w + 16*(c&1) + 4q + 2*((c>>1)&1) + (c>>2)) * 2")
            e("v_and_b32 v8, 1, v1")
            e("v_lshlrev_b32 v8, 4, v8")
            e("v_lshl_add_u32 v8, v20, 2, v8")
            e("v_and_b32 v9, 2, v1")
            e("v_bfe_u32 v10, v1, 2, 1")
            e("v_add3_u32 v8, v8, v9, v10")
        if o.last:
            e("; value p of line w is channel 64*(w>>1) + 8*((p>>1)&7) + 4*(w&1) + 2*(p>>4) + (p&1)")
            e("v_bfe_u32 v9, v8, 1, 3")
            e("v_lshrrev_b32 v11, 4, v8")
            e("v_and_b32 v8, 1, v8")
            e("v_lshl_add_u32 v8, v11, 1, v8")
            e("v_lshl_add_u32 v8, v9, 3, v8")
            e(f"s_lshr_b32 s{S_T0}, s{S_WAVE}, 1")
            e(f"s_and_b32 s{S_T1}, s{S_WAVE}, 1")
            e(f"s_lshl4_add_u32 s{S_T0}, s{S_T0}, s{S_T1}")
            e(f"s_lshl_b32 s{S_T0}, s{S_T0}, 2")
            e(f"v_add_lshl_u32 v23, v8, s{S_T0}, 1")
        else:
            e(f"v_add_lshl_u32 v23, v8, s{S_T2}, 1")
        e("; second-stage address: (l>>2)*128 + (l&3)*16 in the copy kept for this die")
        e("v_lshrrev_b32 v8, 2, v1")
        e("v_lshlrev_b32 v8, 7, v8")
        e("v_and_b32 v9, 3, v1")
        e(f"v_lshl_add_u32 v{V_Q}, v9, 4, v8")
        e(f"s_and_b32 s{S_T0}, s{S_QC}, 4")
        if o.qcopy > 2:
            e(f"s_and_b32 s{S_CNT}, s{S_QC}, {o.qcopy // 2 - 1}")
            e(f"s_mul_i32 s{S_CNT}, s{S_CNT}, 24")
            e(f"s_add_u32 s{S_T0}, s{S_T0}, s{S_CNT}")
        e(f"s_lshr_b32 s{S_T1}, s{S_WAVE}, 2")
        e(f"s_lshl2_add_u32 s{S_T1}, s{S_T1}, s{S_WAVE}")
        e(f"s_add_u32 s{S_T1}, s{S_T1}, s{S_T0}")
        e(f"s_lshl_b32 s{S_T1}, s{S_T1}, 11")
        e(f"s_add_u32 s{S_T1}, s{S_T1}, {WS_Q}")
        if o.clean in ("q", "p", "a", "h", "g"):
            if o.cfull:
                for i in range(4):
                    e(f"v_mov_b32 v{16 + i}, s{S_TG[i]}")
                e("v_lshlrev_b32 v22, 4, v1")
            else:
                e(f"v_mov_b32 v19, s{S_TG[0]}")
            e(f"s_lshl_b32 s{S_V}, s{S_WAVE}, 7")
            e(f"s_add_u32 s{S_V}, s{S_V}, s{S_PO}")
        if o.pre:
            e(f"s_cmp_eq_u32 s{S_OFF}, 3")
            e("s_cbranch_scc1 L_rsetup")
            e("s_waitcnt vmcnt(0) lgkmcnt(0)")
            e("s_barrier")
            e("L_afterw:")
            e(f"ds_read_b64_tr_b16 v[{B2}:{B2 + 1}], v12 offset:{L_W2}")
            e(f"ds_read_b64_tr_b16 v[{B2 + 2}:{B2 + 3}], v12 offset:{L_W2 + 4 * 384}")
            e(f"ds_read_b64_tr_b16 v[{B2 + 4}:{B2 + 5}], v13 offset:{L_W2 + 32 * 384}")
            e(f"ds_read_b64_tr_b16 v[{B2 + 6}:{B2 + 7}], v13 offset:{L_W2 + 36 * 384}")
            e(f"s_cmp_ge_u32 s{S_WAVE}, 3")
            e("s_cbranch_scc1 L_noa1")
            for s in range(6):
                for h in range(2):
                    r = A1 + 4 * s + 2 * h
                    e(f"ds_read_b64_tr_b16 v[{r}:{r + 1}], v14 offset:{L_W1 + s * 3072 + h * 384}")
            e("L_noa1:")
        e(f"s_mov_b32 s{S_CNT}, {NFB}")
        e(f"s_mov_b32 s{S_HOOK}, 0")
        e(f"s_cmp_lt_u32 s{S_WAVE}, 6")
        e("s_cbranch_scc1 L_qpoll0")

        def clean1():
            e("; the reducer of line w is done: a write-through keeps this workgroup's line from staying dirty in L2")
            if o.cfull:
                e("s_mov_b64 exec, 0xff")
                e(f"buffer_store_dwordx4 v[16:19], v22, s[{S_WS}:{S_WS + 3}], s{S_V} offen sc1")
            else:
                e("s_mov_b64 exec, 1")
                e(f"buffer_store_dword v19, off, s[{S_WS}:{S_WS + 3}], s{S_V} sc1")
            e("s_mov_b64 exec, -1")

        for kind in (1, 0):
            op = "v_add_f32" if kind == 0 else "v_max_f32"
            if o.q2:
                def qld(r):
                    e(f"buffer_load_dwordx4 v[{r}:{r + 3}], v{V_Q}, s[{S_WS}:{S_WS + 3}], s{S_T1} offen sc1")

                def qchk(r):
                    e("s_waitcnt vmcnt(1)")
                    for i in range(4):
                        e(f"v_xor_b32 v{4 + i}, s{S_TG[i]}, v{r + i}")
                    e("v_or3_b32 v21, v4, v5, v6")
                    e("v_bitop3_b32 v21, v21, v7, 15 bitop3:0xa8")
                    e("v_cmp_ne_u32 vcc, 0, v21")
                    e("s_wqm_b64 exec, vcc")
                e(f"L_qpoll{kind}:")
                qld(8)
                e(f"s_sleep {o.q2}")
                e(f"L_qloop{kind}:")
                qld(12)
                e(f"s_sub_u32 s{S_CNT}, s{S_CNT}, 1")
                e(f"s_cbranch_scc1 L_qlong{kind}")
                qchk(8)
                e(f"s_cbranch_scc0 L_qgot{kind}")
                qld(8)
                qchk(12)
                e(f"s_cbranch_scc1 L_qloop{kind}")
            else:
                e(f"L_qpoll{kind}:")
                e(f"buffer_load_dwordx4 v[4:7], v{V_Q}, s[{S_WS}:{S_WS + 3}], s{S_T1} offen sc1")
                e(f"s_sub_u32 s{S_CNT}, s{S_CNT}, 1")
                e(f"s_cbranch_scc1 L_qlong{kind}")
                if o.qsleep:
                    e(f"s_sleep {o.qsleep}")
                e("s_waitcnt vmcnt(0)")
                for i in range(4):
                    e(f"v_xor_b32 v{4 + i}, s{S_TG[i]}, v{4 + i}")
                e("v_or3_b32 v21, v4, v5, v6")
                e("v_bitop3_b32 v21, v21, v7, 15 bitop3:0xa8")
                e("v_cmp_ne_u32 vcc, 0, v21")
                e("s_wqm_b64 exec, vcc")
                e(f"s_cbranch_scc1 L_qpoll{kind}")
            e(f"L_qgot{kind}:")
            if o.clean == "p":
                e("s_mov_b64 exec, 1")
                e(f"buffer_store_dword v19, off, s[{S_WS}:{S_WS + 3}], s{S_V} sc1")
            e("s_mov_b64 exec, -1")
            self.stamp(5)
            e("v_permlane32_swap_b32 v4, v6")
            e("v_permlane32_swap_b32 v5, v7")
            e(f"{op} v4, v4, v6")
            e(f"{op} v5, v5, v7")
            e("s_nop 1")
            e("v_permlane16_swap_b32 v4, v5")
            e(f"{op} v4, v4, v5")
            e(f"s_cmp_ge_u32 s{S_WAVE}, 3")
            e("s_nop 0")
            e(f"{op}_dpp v4, v4, v4 row_ror:8 row_mask:0xf bank_mask:0xf")
            if kind == 0:
                e("v_mul_f32 v4, 0x36800000, v4              ; 1/262144")
            e("v_cvt_pk_bf16_f32 v4, v4, v4")
            e(f"ds_write_b16 v23, v4 offset:{L_F}")
            if o.q2:
                e("s_waitcnt vmcnt(0)")
            if o.clean == "q" or (o.clean == "h" and kind == 1) or (o.clean == "g" and kind == 0):
                clean1()
            e("s_waitcnt lgkmcnt(0)")
            e("s_barrier")
            if kind == 1:
                if o.clean in ("a", "g"):
                    clean1()
                e("s_branch L_join")
            else:
                e("s_cbranch_scc1 " + ("L_clean0" if o.clean in ("a", "h") else "L_join"))

        e("; ---- waves 0..2: first MLP layer")
        e("L_mlp1:")
        for s in range(6):
            e(f"ds_read_b128 v[{B1[s]}:{B1[s] + 3}], v2 offset:{L_F + 64 * s}")
        if o.clean in ("a", "h"):
            clean1()
        for s in range(6):
            c = "0" if s == 0 else "v[20:23]"
            b = B1[s]
            e(f"s_waitcnt lgkmcnt({5 - s})")
            e(f"v_mfma_f32_16x16x32_bf16 v[20:23], v[{A1 + 4 * s}:{A1 + 4 * s + 3}], v[{b}:{b + 3}], {c}")
        e("s_nop 3")
        e("s_mov_b32 exec_lo, 0x00030003")
        e("s_mov_b32 exec_hi, 0x00030003")
        e("s_nop 1")
        for i in range(4):
            e(f"v_maximum3_f32 v{20 + i}, v{20 + i}, 0, 0")
        e("v_cvt_pk_bf16_f32 v20, v20, v21")
        e("v_cvt_pk_bf16_f32 v21, v22, v23")
        e(f"ds_write_b64 v3, v[20:21] offset:{L_H}")
        e("s_mov_b64 exec, -1")
        e("s_waitcnt lgkmcnt(0)")

        e("L_join:")
        e("s_barrier")
        self.stamp(6)
        e(f"ds_read_b128 v[4:7], v{V_H0} offset:{L_H}")
        e(f"ds_read_b128 v[8:11], v{V_H1} offset:{L_H + 64}")
        e("s_waitcnt lgkmcnt(1)")
        e(f"v_mfma_f32_16x16x32_bf16 v[12:15], v[4:7], v[{B2}:{B2 + 3}], 0")
        e("s_waitcnt lgkmcnt(0)")
        e(f"v_mfma_f32_16x16x32_bf16 v[12:15], v[8:11], v[{B2 + 4}:{B2 + 7}], v[12:15]")
        e("s_mov_b64 exec, 0xffff")
        e("s_nop 6")
        e("v_cvt_pk_bf16_f32 v12, 0, v12")
        e("v_cvt_pk_bf16_f32 v13, 0, v13")
        e("v_add_f32 v12, v12, v13")
        e("v_cvt_pk_bf16_f32 v12, 0, v12")
        e("v_mul_f32 v12, 0xbfb8aa3b, v12            ; -log2(e)")
        e("v_exp_f32 v12, v12")
        e("s_nop 0")
        e("v_add_f32 v12, 1.0, v12")
        e("v_rcp_f32 v12, v12")
        e("s_nop 0")
        if o.mul == "dot":
            e("v_cvt_pk_bf16_f32 v12, v12, v12")
            e(f"ds_write_b16 v{V_SW}, v12 offset:{L_S}")
        else:
            e("v_cvt_pk_bf16_f32 v12, 0, v12")
            e(f"ds_write_b32 v{V_SW}, v12 offset:{L_S}")
        e("s_mov_b64 exec, -1")
        e("s_waitcnt lgkmcnt(0)")
        e("s_barrier")
        e(f"ds_read_b128 v[4:7], v{V_SR} offset:{L_S}")
        e(f"ds_read_b128 v[8:11], v{V_SR} offset:{L_S + 16}")

        e("; ---- scale and store")
        if o.stlim:
            e(f"s_cmp_lt_u32 s2, {o.stlim}")
            e(f"s_cselect_b32 s{S_OUT + 2}, s{S_OUT + 2}, 0")
        zorder = [int(v) for v in o.zorder.split(",")]
        assert sorted(zorder) == list(range(16))
        restored = False
        late = []

        def wbl2():
            wv, lim, pos = [int(v) for v in o.wb.split(",")]
            e(f"s_cmp_lt_u32 s{S_WAVE}, {wv}")
            e("s_cbranch_scc1 L_nowb")
            e(f"s_cmp_ge_u32 s2, {lim}")
            e("s_cbranch_scc1 L_nowb")
            if pos == 33:
                e("s_waitcnt vmcnt(0)")
            e("buffer_wbl2 sc1")
            e("L_nowb:")
        jorder = [int(v) for v in o.jorder.split(",")] if o.jorder else [2 * z + u for z in zorder for u in (0, 1)]
        assert sorted(jorder) == list(range(32))
        self.pz = None
        for n, j in enumerate(jorder):
            a = D0 + 4 * j
            t0 = 12 + 8 * (n & 1)
            if a >= SP0 and not restored:
                assert n > 1
                e("s_waitcnt lgkmcnt(0)")
                restored = True
            md = o.mul
            for i in range(4 if md in ("pk", "mul", "u", "um") else 0):
                t = t0 + 2 * i
                e(f"v_lshlrev_b32 v{t}, 16, v{a + i}")
                e(f"v_and_b32 v{t + 1}, s{S_MASK}, v{a + i}")
            if n == 0:
                e("s_waitcnt lgkmcnt(0)")
                self.stamp(7)
            if o.al:
                e(f".p2align {o.al & 15}")
                if o.al >> 4:
                    e("s_nop 0")
            for i in range(4):
                t = t0 + 2 * i
                if md in ("pk", "um"):
                    e(f"v_pk_mul_f32 v[{t}:{t + 1}], v[{t}:{t + 1}], v[{4 + 2 * i}:{5 + 2 * i}]")
                if md == "mul":
                    e(f"v_mul_f32 v{t}, v{t}, v{4 + 2 * i}")
                    e(f"v_mul_f32 v{t + 1}, v{t + 1}, v{5 + 2 * i}")
                if md == "dot":
                    e(f"v_dot2_f32_bf16 v{t}, v{a + i}, v{4 + 2 * i}, 0")
                    e(f"v_dot2_f32_bf16 v{t + 1}, v{a + i}, v{5 + 2 * i}, 0")
            for i in range(4):
                t = t0 + 2 * i
                if md in ("pk", "mul", "dot"):
                    e(f"v_cvt_pk_bf16_f32 v{a + i}, v{t}, v{t + 1}")
                if md == "c":
                    e(f"v_cvt_pk_bf16_f32 v{a + i}, v{a + i}, v{a + (i ^ 1)}")
            def st(j=j, a=a, n=n):
                self.mem(j, lambda va, so: e(f"buffer_store_dwordx4 v[{a}:{a + 3}], {va}, s[{S_OUT}:{S_OUT + 3}], {so} offen{'' if n >= 32 - o.nplain else stf}"))
            if n < o.burst:
                st()
            else:
                late.append(st)
            if n == 31:
                for f in late:
                    f()
            if o.xfer and n == o.xspos:
                e(f"s_cmp_lg_u32 s{S_XR}, 2")
                e("s_cbranch_scc1 L_nox4")
                e(f"ds_read_b128 v[28:31], v{V_AT}")
                e(f"v_xad_u32 v32, v{V_G1}, s{S_XP}, v{V_L}")
                e("s_waitcnt lgkmcnt(0)")
                for i in range(4):
                    e(f"v_dot2_f32_bf16 v{12 + 2 * i}, v{28 + i}, v{4 + 2 * i}, 0")
                    e(f"v_dot2_f32_bf16 v{13 + 2 * i}, v{28 + i}, v{5 + 2 * i}, 0")
                for i in range(4):
                    e(f"v_cvt_pk_bf16_f32 v{28 + i}, v{12 + 2 * i}, v{13 + 2 * i}")
                e(f"buffer_store_dwordx4 v[28:31], v32, s[{S_OUT}:{S_OUT + 3}], s{S_XO} offen{stf}")
                e("L_nox4:")
            if n + 1 in o.sbar:
                e("s_barrier")
            if o.sthr and n >= o.sthr:
                e(f"s_waitcnt vmcnt({o.sthr - 1})")
            if o.wb and int(o.wb.split(",")[2]) == n:
                wbl2()
            if n & 1:
                self.trace("st", n >> 1)
            if n == 1:
                e(f"s_cmp_ge_u32 s{S_WAVE}, 3")
                e("s_cbranch_scc1 L_norestore")
                for k in range(8):
                    e(f"ds_read_b128 v[{SP0 + 4 * k}:{SP0 + 4 * k + 3}], v{V_AT} offset:{L_SPILL + 1024 * k}")
                e("L_norestore:")
                if o.clean == "st":
                    clean("L_noclean", 28, 32)
                    e("L_noclean:")
        if o.clean == "e":
            clean("L_noclean", 28, 32)
            e("L_noclean:")
        if o.wb and int(o.wb.split(",")[2]) >= 32:
            wbl2()
        if o.stamps:
            self.stamp(8)
            e("s_waitcnt vmcnt(0)")
            self.stamp(10)
            if o.idleclk:
                e("; wave 11 idles 40 us, then measures the clock over another 20 us into slots 1,2 / 3,6")
                e(f"s_cmp_lg_u32 s{S_WAVE}, 11")
                e("s_cbranch_scc1 L_noidle")
                for lbl, dur, m, r in (("a", o.idleclk, 1, 3), ("b", 2000, 2, 6)):
                    e("s_memrealtime s[96:97]")
                    e("s_waitcnt lgkmcnt(0)")
                    e(f"L_idle{lbl}:")
                    e("s_sleep 4")
                    e("s_memrealtime s[98:99]")
                    e("s_waitcnt lgkmcnt(0)")
                    e("s_sub_u32 s98, s98, s96")
                    e(f"s_cmp_lt_u32 s98, {dur}")
                    e(f"s_cbranch_scc1 L_idle{lbl}")
                    e(f"s_memtime s[{S_STAMP + 2 * m}:{S_STAMP + 2 * m + 1}]")
                    e(f"s_memrealtime s[{S_STAMP + 2 * r}:{S_STAMP + 2 * r + 1}]")
                e("L_noidle:")
            e("s_getreg_b32 s94, hwreg(HW_REG_XCC_ID)")
            e("s_getreg_b32 s95, hwreg(HW_REG_HW_ID)")
            e("s_waitcnt lgkmcnt(0)")
            e("v_mov_b32 v2, 0")
            for i in range(11 if o.trace else 14):
                e(f"v_writelane_b32 v2, s{S_STAMP + 2 * i}, {i}")
            e("v_writelane_b32 v2, s94, 14")
            e("v_writelane_b32 v2, s95, 15")
            e(f"s_mul_i32 s{S_T0}, s2, 12")
            e(f"s_add_u32 s{S_T0}, s{S_T0}, s{S_WAVE}")
            e(f"s_lshl_b32 s{S_T0}, s{S_T0}, 6")
            e(f"s_add_u32 s{S_T0}, s{S_T0}, {WS_STAMP}")
            e("v_mbcnt_lo_u32_b32 v3, -1, 0")
            e("v_lshlrev_b32 v3, 2, v3")
            e("s_mov_b64 exec, 0xffff")
            e(f"buffer_store_dword v2, v3, s[{S_WS}:{S_WS + 3}], s{S_T0} offen sc1")
            if o.trace:
                e("s_mov_b32 s91, s92")
                for i in range(16):
                    e(f"v_writelane_b32 v2, s{76 + i}, {i}")
                e(f"s_add_u32 s{S_T0}, s{S_T0}, {1 << 19}")
                e(f"buffer_store_dword v2, v3, s[{S_WS}:{S_WS + 3}], s{S_T0} offen sc1")
        if o.dbgptr:
            e("s_cmp_lg_u32 s2, 0")
            e("s_cbranch_scc1 L_nodp")
            e("s_mov_b64 exec, -1")
            e("v_mov_b32 v2, 0")
            for i, r in enumerate((4, 5, 8, 9, 12, 13, 16, 17, 0, 1)):
                e(f"v_writelane_b32 v2, s{r}, {i}")
            e("v_mbcnt_lo_u32_b32 v3, -1, 0")
            e("v_lshlrev_b32 v3, 2, v3")
            e("s_mov_b64 exec, 0x3ff")
            e(f"buffer_store_dword v2, v3, s[{S_DBG}:{S_DBG + 3}], 0 offen offset:8")
            e("L_nodp:")
        if o.probe:
            idx, K = [int(v) for v in o.probe.split(",")]
            if idx == -6:
                pass
            elif idx == -5:
                e("; skew probe: after the stamps are out, workgroups 0..7 read workgroup 0's entry stamp")
                e("s_cmp_ge_u32 s2, 8")
                e("s_cbranch_scc1 L_end")
            elif idx == -2:
                e("s_getreg_b32 s94, hwreg(HW_REG_XCC_ID)")
                e("s_xor_b32 s94, s94, s2")
                e("s_and_b32 s94, s94, 7")
                e("s_cbranch_scc0 L_end")
            elif idx == -3:
                e("s_cmp_lg_u32 s2, 0")
                e("s_cbranch_scc1 L_end")
            else:
                e(f"s_cmp_lg_u32 s2, {o.pwg}")
                e("s_cbranch_scc1 L_end")
            e(f"s_cmp_lg_u32 s{S_WAVE}, {o.pwave}")
            e("s_cbranch_scc1 L_end")
            if idx == -6:
                e("; every workgroup stays K times its own whole duration")
                e(f"s_sub_u32 s96, s{S_STAMP + 20}, s{S_STAMP}")
                e(f"s_mul_i32 s96, s96, {K}")
            elif idx == -5:
                e("s_mov_b32 s96, 0")
                e("L_sk:")
                e("s_sleep 100")
                e("s_add_u32 s96, s96, 1")
                e("s_cmp_lt_u32 s96, 4")
                e("s_cbranch_scc1 L_sk")
                e(f"s_mov_b32 s94, {WS_STAMP}")
                e(f"buffer_load_dword v4, off, s[{S_WS}:{S_WS + 3}], s94 sc1")
                e("s_waitcnt vmcnt(0)")
                e("v_readfirstlane_b32 s94, v4")
                e(f"s_sub_u32 s95, s{S_STAMP}, s94")
                e(f"s_mul_i32 s95, s95, {K - 1}")
                e("s_add_u32 s96, s95, 8000")
            elif idx == -4:
                e("; report the shader clock of phase K (0 read, 1 write): stay 50us + (MHz - 1800) * 0.2us")
                c0, c1, r0, r1 = ((11, 12, 0, 7), (12, 13, 7, 10))[K]
                e(f"s_sub_u32 s94, s{S_STAMP + 2 * c1}, s{S_STAMP + 2 * c0}")
                e(f"s_sub_u32 s95, s{S_STAMP + 2 * r1}, s{S_STAMP + 2 * r0}")
                e("v_cvt_f32_u32 v4, s94")
                e("v_cvt_f32_u32 v5, s95")
                e("v_rcp_f32 v5, v5")
                e("s_nop 1")
                e("v_mul_f32 v4, v4, v5")
                e("v_mul_f32 v4, 0x44fa0000, v4")
                e("v_cvt_u32_f32 v4, v4")
                e("s_nop 1")
                e("v_readfirstlane_b32 s96, v4")
                e("s_sub_u32 s96, s96, 31000")
            elif idx <= -10:
                e("; report 7 bits (from bit K) of an SGPR: (-idx - 10) names the register")
                e(f"s_bfe_u32 s94, s{-idx - 10}, {(7 << 16)} + {K}")
                e("s_mul_i32 s96, s94, 200")
                e("s_add_u32 s96, s96, 5000")
            elif idx == -3:
                e("s_getreg_b32 s94, hwreg(HW_REG_XCC_ID)")
                e("s_and_b32 s94, s94, 7")
                e(f"s_mul_i32 s96, s94, {K}")
                e("s_add_u32 s96, s96, 5000")
            elif idx < 0:
                e(f"s_mov_b32 s96, {K}")
            else:
                e(f"s_sub_u32 s96, s{S_STAMP + 2 * idx}, s{S_STAMP + 2 * o.pref}")
                e(f"s_mul_i32 s96, s96, {K}")
                if o.pref:
                    e("s_add_u32 s96, s96, 5000")
            e("s_min_u32 s96, s96, 200000")
            e("L_probe:")
            e("s_memrealtime s[98:99]")
            e("s_waitcnt lgkmcnt(0)")
            e(f"s_sub_u32 s98, s98, s{S_STAMP}")
            e("s_cmp_lt_u32 s98, s96")
            e("s_cbranch_scc1 L_probe")
        e("L_end:")
        e("s_endpgm")

        e("@@ROLE")
        e(".p2align 7")
        e("L_role:")
        e("s_load_dwordx4 s[44:47], s[0:1], 32")
        e(f"s_lshr_b32 s{S_V + 1}, s2, 3")
        e(f"s_and_b32 s{S_T1}, s2, 1")
        e(f"s_lshl1_add_u32 s{S_T1}, s{S_T1}, 1")
        e(f"s_mul_i32 s{S_T2}, s2, 0x104100")
        e(f"s_cmp_eq_u32 s2, {NVOTE_WG}")
        e("s_waitcnt lgkmcnt(0)")
        e("s_cbranch_scc1 L_tag")
        e(f"s_sub_u32 s{S_T0}, s{S_OUT}, s{S_X}")
        e(f"s_addk_i32 s{S_T0}, 2048")
        e(f"s_bitcmp1_b32 s{S_T0}, 12")
        e(f"s_cselect_b32 s{S_V}, {o.qout}, {o.qgen}")
        e(f"s_cselect_b32 s{S_V + 2}, s{S_V + 1}, 1")
        e(f"s_cmp_eq_u32 s{S_V + 2}, 2")
        e(f"s_cselect_b32 s{S_V + 1}, s{S_T1}, s{S_V + 1}")
        e(f"s_bitcmp1_b32 s{S_V + 1}, 0")
        e(f"s_cselect_b64 s[{S_W}:{S_W + 1}], s[8:9], s[4:5]")
        e(f"s_lshr_b32 s{S_T1}, s{S_V + 1}, 1")
        e(f"s_lshl_b32 s{S_T1}, s{S_T1}, 25" if o.bfirst else f"s_lshl_b32 s{S_T1}, 0x2000000, s{S_T1}")
        e(f"s_add_u32 s{S_T2}, s{S_T2}, s{S_T1}")
        e(f"s_lshr_b32 s{S_T0}, s{S_OUT}, 7")
        e(f"s_mul_i32 s{S_T0}, s{S_T0}, 21")
        e(f"s_and_b32 s{S_T0}, s{S_T0}, 63")
        e(f"s_mulk_i32 s{S_T0}, 384")
        e(f"s_add_u32 s{S_T0}, s{S_T0}, s{S_T2}")
        e(f"s_cmp_lg_u32 s{S_V + 2}, 0")
        e(f"s_cselect_b32 s{S_V + 3}, s{S_OUT}, 0")
        e("s_cbranch_scc1 L_notws")
        e(f"s_mov_b64 s[{S_W}:{S_W + 1}], s[46:47]")
        e(f"s_mov_b32 s{S_V}, {o.qws}")
        e(f"s_and_b32 s{S_T0}, s{S_T2}, 0xfffff")
        e(f"s_add_u32 s{S_T0}, s{S_T0}, {WS_PROBE}")
        e("L_notws:")
        e(f"s_add_u32 s{S_T1}, s{S_T0}, 8192")
        self.stamp(1, True)
        e(f"s_load_dword s42, s[{S_W}:{S_W + 1}], s{S_T0} glc")
        e(f"s_load_dword s43, s[{S_W}:{S_W + 1}], s{S_T1} glc")
        e(f"s_mov_b32 s{S_CNT}, {-(NRACE // 2)}")
        if o.dpf:
            e(f"s_load_dword s23, s[44:45], 192 glc")
        for k in range(NRACE):
            e("s_waitcnt lgkmcnt(0)")
            if k < 2:
                self.stamp(2 + k, True)
                if o.vdiag:
                    e("s_waitcnt lgkmcnt(0)")
            first, second = (S_T0, S_T1) if k % 2 == 0 else (S_T1, S_T0)
            e(f"s_load_dword s42, s[{S_W}:{S_W + 1}], s{first} glc")
            e(f"s_load_dword s43, s[{S_W}:{S_W + 1}], s{second} glc")
            e("s_waitcnt lgkmcnt(1)")
            e("s_nop 7")
            e(f"s_getreg_b32 s{S_T2}, hwreg(HW_REG_IB_STS, 8, 4)   ; 1: the second answer is still out")
            if k % 2 == 0:
                e(f"s_xor_b32 s{S_T2}, s{S_T2}, 1")
            e(f"s_add_u32 s{S_CNT}, s{S_CNT}, s{S_T2}")
        assert NRACE % 2 == 0 and o.qout <= 12 and o.qws <= 8 and o.qgen <= 8 and NVOTE_WG == 32
        e(f"s_sub_u32 s{S_T2}, 0, s{S_CNT}")
        e(f"s_add_u32 s{S_T0}, s{S_T0}, s{S_V + 3}")
        e(f"s_lshr_b32 s{S_T0}, s{S_T0}, 19")
        e(f"s_getreg_b32 s{S_T1}, hwreg(HW_REG_XCC_ID, 0, 3)")
        e(f"s_xor_b32 s{S_T0}, s{S_T0}, s{S_T1}")
        e(f"s_bitcmp1_b32 s{S_T0}, 2")
        e(f"s_cselect_b32 s{S_CNT}, s{S_T2}, s{S_CNT}")
        e(f"s_lshl_b32 s{S_CNT}, s{S_CNT}, 8")
        e(f"s_or_b32 s{S_CNT}, s{S_CNT}, 1")
        e(f"s_mov_b32 s{S_T1}, s{S_CNT}")
        e(f"s_lshl2_add_u32 s{S_T0}, s{S_V + 1}, {DBG_TAL}")
        self.stamp(6, True)
        e(f"s_atomic_add s{S_T1}, s[44:45], s{S_T0} glc")
        e(f"s_mul_i32 s{S_T2}, s{S_V + 1}, 6")
        e("s_waitcnt lgkmcnt(0)")
        e(f"s_add_u32 s{S_T1}, s{S_T1}, s{S_CNT}")
        self.stamp(13)
        e(f"s_and_b32 s{S_T0}, s{S_T1}, 0xff")
        e(f"s_cmp_lg_u32 s{S_T0}, s{S_V}")
        e("s_cbranch_scc1 L_stream")
        e("; exactly one voter completes the tally's quorum: it publishes bit 11+6t (known) and bit 12+6t (margin > 0)")
        e(f"s_cmp_gt_i32 s{S_T1}, 0xff")
        e(f"s_cselect_b32 s{S_T1}, 3, 1")
        e(f"s_add_u32 s{S_T2}, s{S_T2}, 11")
        e(f"s_lshl_b32 s{S_T1}, s{S_T1}, s{S_T2}")
        e("L_publish:")
        e(f"s_atomic_add s{S_T1}, s[44:45], {DBG_RES}")
        e("s_waitcnt lgkmcnt(0)")
        e("s_branch L_stream")

        e("; ---- one wave draws this launch's hand-off tag: different from the one the last launch left behind")
        e("L_tag:")
        e(f"s_mov_b32 s{S_T1}, 1")
        e("s_waitcnt lgkmcnt(0)")
        e(f"s_atomic_add s{S_T1}, s[46:47], {WS_E} glc")
        e("s_waitcnt lgkmcnt(0)")
        e(f"s_add_u32 s{S_T1}, s{S_T1}, 1")
        e(f"s_and_b32 s{S_T1}, s{S_T1}, 0xff")
        e(f"s_bitset1_b32 s{S_T1}, 8")
        assert NVOTE_WG % 8 == 0
        e(f"s_getreg_b32 s{S_T0}, hwreg(HW_REG_XCC_ID, 0, 3)")
        e(f"s_lshl_b32 s{S_T0}, s{S_T0}, 13")
        e(f"s_or_b32 s{S_T1}, s{S_T1}, s{S_T0}")
        self.stamp(13)
        e("s_branch L_publish")

        e("@@RARE")
        if o.hmax:
            e("; ---- magnitudes from 2^121 up: the maxes again, in f32")
            e("L_exact:")
            for jj in range(16):
                mpair(D0 + 8 * jj, D0 + 8 * jj + 4, jj == 0, False)
            mscatter()
            e("s_branch L_maxok")
        e("; ---- a wait has lasted: the group's reducers may sit on another die, so write this")
        e(";      workgroup's first-stage lines through to memory")
        if o.clean in ("a", "h"):
            e("L_clean0:")
            clean1()
            e("s_branch L_join")
        for nm in ("r", "q0", "q1"):
            k = nm[1:]
            e(f"L_{nm[0]}long{k}:")
            e("s_waitcnt vmcnt(0)")
            e(f"s_cmp_lg_u32 s{S_HOOK}, 0")
            e(f"s_cbranch_scc1 L_{nm[0]}got{k}")
            e(f"s_call_b64 s[{S_RET}:{S_RET + 1}], L_flush")
            e(f"s_branch L_{nm[0]}poll{k}")
        e("L_flush:")
        e(f"s_mov_b32 s{S_CNT}, {SPIN}")
        e(f"s_mov_b32 s{S_HOOK}, {SPIN}")
        e("s_mov_b32 exec_lo, -1")
        e("s_mov_b32 exec_hi, 0xffff")
        e("v_lshlrev_b32 v21, 4, v1")
        e("L_floop:")
        e(f"buffer_load_dwordx4 v[8:11], v21, s[{S_WS}:{S_WS + 3}], s{S_PO} offen sc1")
        e(f"buffer_load_dwordx4 v[4:7], v21, s[{S_WS}:{S_WS + 3}], s{S_PO} offen offset:768 sc1")
        e(f"s_sub_u32 s{S_HOOK}, s{S_HOOK}, 1")
        e("s_waitcnt vmcnt(0)")
        e(f"v_xor_b32 v15, s{S_TG[0]}, v8")
        for r in (9, 10, 11, 4, 5, 6, 7):
            e(f"v_bitop3_b32 v15, v15, v{r}, s{S_TG[r & 3]} bitop3:0xf6")
        e("v_and_b32 v15, 15, v15")
        e("v_cmp_ne_u32 vcc, 0, v15")
        e("s_cbranch_scc1 L_fdone")
        e("s_cbranch_vccnz L_floop")
        e("L_fdone:")
        e(f"buffer_store_dwordx4 v[8:11], v21, s[{S_WS}:{S_WS + 3}], s{S_PO} offen sc1")
        e(f"buffer_store_dwordx4 v[4:7], v21, s[{S_WS}:{S_WS + 3}], s{S_PO} offen offset:768 sc1")
        e("s_waitcnt vmcnt(0)")
        e("s_mov_b64 exec, -1")
        e(f"s_mov_b32 s{S_HOOK}, -1")
        e(f"s_setpc_b64 s[{S_RET}:{S_RET + 1}]")

        e("@@DPOLL")
        e("; ---- result not there yet: poll past the scalar cache")
        e("L_dpoll:")
        e(f"s_mov_b32 s{S_CNT}, {SPIN}")
        e(f"v_mov_b32 v{V_AT}, 0")
        e("s_mov_b64 exec, 1")
        e("L_dloop:")
        e(f"buffer_load_dword v{V_AT}, off, s[{S_DBG}:{S_DBG + 3}], 0 offset:{DBG_RES} sc1")
        e(f"s_sleep {o.dsleep}")
        e("s_waitcnt vmcnt(24)")
        e(f"v_readfirstlane_b32 s{S_T2}, v{V_AT}          ; whatever poll has landed last")
        e(f"s_sub_u32 s{S_CNT}, s{S_CNT}, 1")
        e("s_cbranch_scc1 L_dgot")
        e(f"s_andn2_b32 s{S_OFF}, s{S_OK}, s{S_T2}")
        e("s_cbranch_scc1 L_dloop")
        e("L_dgot:")
        e("s_mov_b64 exec, -1")
        e("s_branch L_decided")

        e("@@END")
        L = self.lines
        ix = {k: L.index("    @@" + k) for k in ("ROLE", "RARE", "DPOLL", "END")}
        role, rare, dpoll = L[ix["ROLE"] + 1:ix["RARE"]], L[ix["RARE"] + 1:ix["DPOLL"]], L[ix["DPOLL"] + 1:ix["END"]]
        main = L[:ix["ROLE"]]
        p1, p2 = main.index("    @@HERE1"), main.index("    @@HERE2")
        if o.lay:
            self.lines = (main[:p1] + ["    s_branch L_skip1"] + role + dpoll + ["L_skip1:"] + main[p1 + 1:p2]
                          + ["    s_branch L_tail"] + rare + ["    .p2align 12", "L_tail:"] + main[p2 + 1:])
        else:
            self.lines = main[:p1] + main[p1 + 1:p2] + main[p2 + 1:] + role + rare + dpoll

    def text(self):
        out = HEADER
        out += f"; @launch grid=({NWG},1,1) block=(768,1,1) lds={L_TOTAL}\n"
        out += DOC
        out += '.amdgcn_target "amdgcn-amd-amdhsa--gfx950"\n.text\n'
        out += f".globl {KNAME}\n.p2align 8\n.type {KNAME},@function\n{KNAME}:\n"
        out += "\n".join(self.lines) + "\n"
        out += f""".section .rodata,"a"
.p2align 6
.amdhsa_kernel {KNAME}
  .amdhsa_next_free_vgpr 168
  .amdhsa_next_free_sgpr {100 if self.o.stamps else 96 if self.o.xfer else 56}
  .amdhsa_accum_offset 168
  .amdhsa_group_segment_fixed_size 0
  .amdhsa_kernarg_size 48
  .amdhsa_user_sgpr_count 2
  .amdhsa_user_sgpr_kernarg_segment_ptr 1
  .amdhsa_system_sgpr_workgroup_id_x 1
  .amdhsa_float_denorm_mode_32 3
.end_amdhsa_kernel
"""
        return out


def main():
    p = argparse.ArgumentParser()
    p.add_argument("-o", default="standalone__channel_attn_cbam__vision.s")
    p.add_argument("--ldflags", default="nt")
    p.add_argument("--stflags", default="sc1")
    p.add_argument("--p1flags", default="sc1")
    p.add_argument("--stamps", action="store_true")
    p.add_argument("--probe", default="")
    p.add_argument("--depth", type=int, default=10)
    p.add_argument("--nrace", type=int, default=2)
    p.add_argument("--dsleep", type=int, default=8)
    p.add_argument("--trace", default="")
    p.add_argument("--nodec", action="store_true")
    p.add_argument("--vdiag", action="store_true")
    p.add_argument("--dbgptr", action="store_true")
    p.add_argument("--opp", default="5,9", type=lambda v: [int(x) for x in v.split(",")])
    p.add_argument("--quorum", type=int, default=16)
    p.add_argument("--quorum4", type=int, default=24)
    p.add_argument("--nvote", type=int, default=32)
    p.add_argument("--nagn", type=int, default=6)
    p.add_argument("--stlim", type=int, default=0)
    p.add_argument("--psc1", action="store_true")
    p.add_argument("--pnt", action="store_true")
    p.add_argument("--wearly", type=int, default=0)
    p.add_argument("--pre", type=int, default=0)
    p.add_argument("--r2", type=int, default=0)
    p.add_argument("--r24", type=int, default=1)
    p.add_argument("--early", type=int, default=0)
    p.add_argument("--hookpos", type=int, default=8)
    p.add_argument("--hmax", type=int, default=0)
    p.add_argument("--msum", type=int, default=1)
    p.add_argument("--last", type=int, default=1)
    p.add_argument("--h6", type=int, default=0)
    p.add_argument("--bfirst", default="")
    p.add_argument("--q2", type=int, default=0)
    p.add_argument("--xfer", type=int, default=0)
    p.add_argument("--xpos", type=int, default=26)
    p.add_argument("--xspos", type=int, default=26)
    p.add_argument("--qout", type=int, default=7)
    p.add_argument("--qws", type=int, default=4)
    p.add_argument("--qgen", type=int, default=5)
    p.add_argument("--jorder", default="0,12,1,13,2,14,3,15,4,16,5,17,6,18,7,19,8,20,9,21,10,22,11,23,24,25,26,27,28,29,30,31")
    p.add_argument("--urot", type=int, default=0)
    p.add_argument("--lmap", type=int, default=0)
    p.add_argument("--qrot", type=int, default=0)
    p.add_argument("--umap", type=int, default=0)
    p.add_argument("--cfull", type=int, default=1)
    p.add_argument("--wtouch", type=int, default=1)
    p.add_argument("--lay", type=int, default=1)
    p.add_argument("--skipfrom", type=int, default=99)
    p.add_argument("--ttail", type=int, default=0)
    p.add_argument("--tlb", type=int, default=0)
    p.add_argument("--rot", type=int, default=0)
    p.add_argument("--pad", type=int, default=0)
    p.add_argument("--lpf", type=int, default=0)
    p.add_argument("--al", type=int, default=0)
    p.add_argument("--cap", type=int, default=0)
    p.add_argument("--capfrom", type=int, default=12)
    p.add_argument("--capto", type=int, default=32)
    p.add_argument("--skewa", type=int, default=1)
    p.add_argument("--skewd", type=int, default=1)
    p.add_argument("--skewc", type=int, default=0)
    p.add_argument("--skew", type=int, default=0, help="timing diagnostic only")
    p.add_argument("--warmfl", default="")
    p.add_argument("--sdiag", action="store_true")
    p.add_argument("--rpf", type=int, default=0)
    p.add_argument("--dpf", type=int, default=0)
    p.add_argument("--pwg", type=int, default=0)
    p.add_argument("--pwave", type=int, default=0)
    p.add_argument("--pref", type=int, default=0)
    p.add_argument("--qshift", type=int, default=32)
    p.add_argument("--rolepos", type=int, default=-1)
    p.add_argument("--prebar", type=int, default=1)
    p.add_argument("--qmap", type=int, default=0)
    p.add_argument("--agnu", type=int, default=4)
    p.add_argument("--warmst", type=int, default=0)
    p.add_argument("--cw", type=int, default=0)
    p.add_argument("--cld", action="store_true")
    p.add_argument("--qflip", type=int, default=0)
    p.add_argument("--qcopy", type=int, default=4)
    p.add_argument("--mul", default="dot")
    p.add_argument("--burst", type=int, default=32)
    p.add_argument("--idleclk", type=int, default=0)
    p.add_argument("--clk", action="store_true")
    p.add_argument("--sthr", type=int, default=0)
    p.add_argument("--sbar", default=[24], type=lambda v: [int(x) for x in v.split(",")])
    p.add_argument("--piece", type=int, default=128)
    p.add_argument("--xbar", default=[20, 24], type=lambda v: [int(x) for x in v.split(",")])
    p.add_argument("--cpf", type=int, default=0)
    p.add_argument("--cpfpos", type=int, default=0)
    p.add_argument("--wpace", type=int, default=40)
    p.add_argument("--clean", default="g")
    p.add_argument("--warm", type=int, default=30)
    p.add_argument("--warmwave", type=int, default=4)
    p.add_argument("--qsleep", type=int, default=0)
    p.add_argument("--red0", type=int, default=8)
    p.add_argument("--redstep", type=int, default=2)
    p.add_argument("--off", default="", help="diagnostics: v = no votes, c = no clears, r = result not read")
    p.add_argument("--spans", default="")
    p.add_argument("--split", action="store_true")
    p.add_argument("--pfback", type=int, default=0)
    p.add_argument("--nplain", type=int, default=0)
    p.add_argument("--wb", default="", help="minwave,wglimit,pos")
    p.add_argument("--thr", type=int, default=2)
    p.add_argument("--thrfrom", type=int, default=12)
    p.add_argument("--thrto", type=int, default=26)
    p.add_argument("--thrmask", default="0x55")
    p.add_argument("--zorder", default="8,0,9,1,10,2,11,3,12,4,13,5,14,6,15,7")
    o = p.parse_args()
    global NAGN, SPANS, NVOTE_WG
    NVOTE_WG = o.nvote
    NAGN = o.nagn
    if NAGN == 6:
        SPANS = [(0, 0), (0, 1), (1, 0), (1, 1), (2, 0), (2, 1),
                 (3, 0), (3, 1), (4, 0), (4, 1), (5, 0), (5, 1), (6, 0), (6, 1), (7, 0), (7, 1)]
        if o.zorder == p.get_default("zorder"):
            o.zorder = "6,0,7,1,8,2,9,3,10,4,11,5,12,13,14,15"
    if o.bfirst:
        st = [int(c) for c in o.bfirst]
        SPANS = [(a, h) for a in st for h in (0, 1)]
        o.agn0 = st[0] * 12 * MiB
    if o.xfer:
        global L_TOTAL
        L_TOTAL = L_X + 12288
        SPANS[14], SPANS[15] = SPANS[15], SPANS[14]
    if o.spans:
        SPANS = [(int(v[0]), int(v[1])) for v in o.spans.split(",")]
        assert sorted(SPANS) == [(a, b) for a in range(8) for b in range(2)]
    g = G(o)
    g.build()
    open(o.o, "w").write(g.text())


if __name__ == "__main__":
    main()
```
